```python
import torch

def _softmax(x, axis=-1):
    return torch.softmax(x, dim=axis)
def _gelu(x):
    return torch.nn.functional.gelu(x, approximate="tanh")
def _silu(x):
    return torch.nn.functional.silu(x)
def _sigmoid(x):
    return torch.sigmoid(x)
def _layernorm(x, axis=-1, eps=1e-5):
    m = x.mean(dim=axis, keepdim=True)
    v = x.var(dim=axis, keepdim=True, unbiased=False)
    return (x - m) / torch.sqrt(v + eps)
def _scatter_add(tgt, idx, src, axis=0):
    return tgt.clone().index_add_(axis, idx, src)
def _segment_sum(src, seg, n):
    out = torch.zeros((n,) + src.shape[1:], dtype=src.dtype)
    return out.index_add_(0, seg, src)
def _pad(x, pw):
    flat = tuple(v for pair in reversed(pw) for v in pair)
    return torch.nn.functional.pad(x, flat)

kernel_name = 'sequential_preLN__spectral_fnet__moe_arch_mod__prompt'

def setup_inputs():

    _w = (lambda a: (lambda t: t.to(torch.bfloat16) if t.is_floating_point() else t)(torch.as_tensor(a)))
    def _A_setup():
        B, S, D = 1, 2048, 448
        ns = torch.arange(S)[:, None] * torch.arange(S)[None, :]
        nd = torch.arange(D)[:, None] * torch.arange(D)[None, :]
        Ws_re = torch.cos(-2.0 * torch.pi * ns / S).to(float)
        Ws_im = torch.sin(-2.0 * torch.pi * ns / S).to(float)
        Wd_re = torch.cos(-2.0 * torch.pi * nd / D).to(float)
        Wd_im = torch.sin(-2.0 * torch.pi * nd / D).to(float)
        return {
            "x": _w((lambda *s: torch.randn(*s, dtype=torch.bfloat16) * 0.05)(B, S, D)),
            "dft_seq_re": _w(Ws_re),
            "dft_seq_im": _w(Ws_im),
            "dft_hid_re": _w(Wd_re),
            "dft_hid_im": _w(Wd_im),
        }
    _A_in = _A_setup()

    def _B_setup():
        B, S, D, F, C = 1, 2048, 448, 1792, 8
        return {
            "x": _w((lambda *s: torch.randn(*s, dtype=torch.bfloat16) * 0.05)(B, S, D)),
            "w_r": _w((lambda *s: torch.randn(*s, dtype=torch.bfloat16) * 1.6)(D)),
            "w_gate": _w((lambda *s: torch.randn(*s, dtype=torch.bfloat16) * 0.4)(D, F)),
            "w_up": _w((lambda *s: torch.randn(*s, dtype=torch.bfloat16) * 0.4)(D, F)),
            "w_down": _w((lambda *s: torch.randn(*s, dtype=torch.bfloat16) * 0.4)(F, D)),
        }
    _B_in = _B_setup()

    return {
        "A_x": _A_in["x"],
        "A_dft_seq_re": _A_in["dft_seq_re"],
        "A_dft_seq_im": _A_in["dft_seq_im"],
        "A_dft_hid_re": _A_in["dft_hid_re"],
        "A_dft_hid_im": _A_in["dft_hid_im"],
        "B_x": _B_in["x"],
        "B_w_r": _B_in["w_r"],
        "B_w_gate": _B_in["w_gate"],
        "B_w_up": _B_in["w_up"],
        "B_w_down": _B_in["w_down"],
    }

def reference(A_x, A_dft_seq_re, A_dft_seq_im, A_dft_hid_re, A_dft_hid_im, B_x, B_w_r, B_w_gate, B_w_up, B_w_down):
    def _A_ref(x, dft_seq_re, dft_seq_im, dft_hid_re, dft_hid_im):
        a = torch.einsum("bsd,ed->bse", x, dft_hid_re)
        b = torch.einsum("bsd,ed->bse", x, dft_hid_im)
        y = torch.einsum("ts,bse->bte", dft_seq_re, a) - torch.einsum("ts,bse->bte", dft_seq_im, b)
        return y

    def _B_ref(x, w_r, w_gate, w_up, w_down):
        B, S, D = x.shape
        C = 8
        r = x @ w_r
        idx = torch.argsort(-r, axis=-1)[:, :C]
        idx_e = (lambda x, n, axis: torch.repeat_interleave(x, n, dim=axis))(idx.reshape(B, C, 1), D, axis=2)
        x_sel = (lambda x, i, axis: torch.take_along_dim(x, i, dim=axis))(x, idx_e, axis=1)
        g = _silu(x_sel @ w_gate)
        u = x_sel @ w_up
        y = (g * u) @ w_down
        r_sel = _sigmoid((lambda x, i, axis: torch.take_along_dim(x, i, dim=axis))(r, idx, axis=1))
        y = y * r_sel.reshape(B, C, 1)
        b_off = (torch.arange(B) * S).reshape(B, 1)
        flat_idx = (idx + b_off).reshape(B * C)
        zero = (x * 0.0).reshape(B * S, D)
        upd = _scatter_add(zero, flat_idx, y.reshape(B * C, D), axis=0)
        return x + upd.reshape(B, S, D)

    x = A_x
    h = x + _A_ref(_layernorm(x, axis=-1), A_dft_seq_re, A_dft_seq_im, A_dft_hid_re, A_dft_hid_im)
    h2 = h + _B_ref(_layernorm(h, axis=-1), B_w_r, B_w_gate, B_w_up, B_w_down)
    return h2
```

```python
import re, struct

def f2u(x):
    return struct.unpack("<I", struct.pack("<f", x))[0]
def fl(x):
    return hex(f2u(x))

_reg = re.compile(r"^(-?)(?:abs\()?([vas])(?:(\d+)|\[(\d+):(\d+)\])\)?$")
def regs(tok):
    tok = tok.strip()
    if tok.startswith("|") and tok.endswith("|"): tok = tok[1:-1]
    if tok in ("vcc",): return [("s", 106), ("s", 107)]
    if tok == "vcc_lo": return [("s", 106)]
    if tok == "vcc_hi": return [("s", 107)]
    if tok == "exec": return [("s", 126), ("s", 127)]
    if tok == "exec_lo": return [("s", 126)]
    if tok == "exec_hi": return [("s", 127)]
    if tok == "m0": return [("s", 124)]
    m = _reg.match(tok)
    if not m: return []
    k = m.group(2)
    if m.group(3) is not None: return [(k, int(m.group(3)))]
    return [(k, i) for i in range(int(m.group(4)), int(m.group(5)) + 1)]

TRANS = ("v_exp_f32", "v_log_f32", "v_rcp_f32", "v_rsq_f32", "v_sqrt_f32", "v_sin_f32", "v_cos_f32", "v_rcp_iflag_f32",
         "v_exp_f16", "v_log_f16", "v_rcp_f16", "v_rsq_f16", "v_sqrt_f16", "v_sin_f16", "v_cos_f16")

class Ins:
    def __init__(s, text):
        s.text = text
        t = text.split(";")[0].strip()
        s.is_label = t.endswith(":")
        s.is_dir = t.startswith(".") and not s.is_label
        s.op = ""; s.w = []; s.r = []; s.kind = "other"; s.states = 1
        s.A = []; s.B = []; s.C = []; s.passes = 0; s.dpp = False; s.storedata = []; s.sread_vmem = []
        s.lanesel = []
        if s.is_label or s.is_dir or not t:
            s.states = 0; return
        parts = t.split(None, 1)
        op = parts[0]; s.op = op
        rest = parts[1] if len(parts) > 1 else ""
        ops = []; depth = 0; cur = ""
        for ch in rest:
            if ch in "[(": depth += 1
            if ch in "])": depth -= 1
            if ch == "," and depth == 0: ops.append(cur.strip()); cur = ""
            else: cur += ch
        if cur.strip(): ops.append(cur.strip())
        mods = ""
        if ops:
            lp = ops[-1].split(None, 1)
            ops[-1] = lp[0]
            if len(lp) > 1: mods = lp[1]
        s.ops = ops; s.mods = mods
        R = [regs(o) for o in ops]
        base = re.sub(r"_(e32|e64|dpp|sdwa)$", "", op)
        s.base = base
        if op == "s_nop":
            s.states = int(ops[0], 0) + 1; s.kind = "salu"; return
        if op.startswith("v_mfma") or op.startswith("v_smfmac"):
            s.kind = "mfma"; s.w = R[0]; s.A = R[1]; s.B = R[2]; s.C = R[3]; s.r = R[1] + R[2] + R[3]
            s.passes = 8 if "32x32" in op else 4
            return
        if op.startswith("v_"):
            s.kind = "valu"
            s.dpp = op.endswith("_dpp") or any(k in mods for k in ("quad_perm", "row_", "wave_"))
            if base in TRANS: s.kind = "trans"
            if base.startswith("v_cmpx"):
                s.w = R[0] + regs("exec"); s.r = sum(R[1:], [])
            elif base.startswith("v_cmp"):
                s.w = R[0]; s.r = sum(R[1:], [])
            elif base in ("v_swap_b32", "v_permlane16_swap_b32", "v_permlane32_swap_b32"):
                s.w = R[0] + R[1]; s.r = R[0] + R[1]
            elif base in ("v_add_co_u32", "v_sub_co_u32", "v_subrev_co_u32"):
                s.w = R[0] + R[1]; s.r = sum(R[2:], [])
            elif base in ("v_addc_co_u32", "v_subb_co_u32", "v_subbrev_co_u32"):
                s.w = R[0] + R[1]; s.r = sum(R[2:], [])
            elif base in ("v_readlane_b32",):
                s.w = R[0]; s.r = R[1] + R[2]; s.lanesel = R[2]
            elif base in ("v_writelane_b32",):
                s.w = R[0]; s.r = R[0] + R[1] + R[2]; s.lanesel = R[2]
            elif base in ("v_fmac_f32", "v_dot2c_f32_bf16", "v_fmac_f16", "v_pk_fmac_f16", "v_dot2c_f32_f16"):
                s.w = R[0]; s.r = sum(R, [])
            else:
                s.w = R[0]; s.r = sum(R[1:], [])
                if base == "v_cndmask_b32" and len(ops) == 3: s.r += regs("vcc")
                if s.dpp: s.r += R[0]
            return
        if op.startswith("ds_"):
            s.kind = "ds"
            if op.startswith(("ds_read", "ds_bpermute", "ds_permute", "ds_swizzle")) or "_rtn" in op:
                s.w = R[0]; s.r = sum(R[1:], [])
            else:
                s.r = sum(R, [])
            return
        if op.startswith(("buffer_", "global_", "flat_")):
            s.kind = "vmem"
            lds = (" lds" in (" " + mods)) or "load_lds" in op
            s.lds = lds
            allr = sum(R, [])
            if "load" in op and not lds:
                s.w = R[0]; s.r = sum(R[1:], [])
            elif "atomic" in op and "sc0" in mods:
                s.r = allr; s.w = R[0]
            else:
                s.r = allr
            if lds: s.r += regs("m0")
            if "store" in op and ("x3" in op or "x4" in op):
                s.storedata = R[0] if op.startswith("buffer") else R[1]
            s.sread_vmem = [x for x in s.r if x[0] == "s"]
            return
        if op.startswith("s_"):
            s.kind = "salu"
            if op.startswith(("s_cmp", "s_cbranch", "s_branch", "s_waitcnt", "s_barrier", "s_endpgm", "s_sleep", "s_setprio", "s_bitcmp")):
                s.r = sum(R, [])
            elif "saveexec" in op:
                s.w = R[0] + regs("exec"); s.r = sum(R[1:], []) + regs("exec")
            else:
                s.w = R[0] if R else []; s.r = sum(R[1:], [])
            return

def need(p, c):
    n = 0
    pw = set(p.w)
    pv = {x for x in pw if x[0] in "va"}
    ps = {x for x in pw if x[0] == "s"}
    cr = set(c.r); cw = set(c.w)
    isvalu = lambda i: i.kind in ("valu", "trans")
    if isvalu(p):
        if c.kind == "mfma" and pv & cr: n = max(n, 2)
        if isvalu(c) and c.dpp and pv & cr: n = max(n, 2)
        if isvalu(c) and c.base.startswith("v_permlane") and pv & cr: n = max(n, 2)
        if isvalu(c) and c.base in ("v_readlane_b32", "v_readfirstlane_b32") and pv & cr: n = max(n, 1)
        if p.kind == "trans" and c.kind in ("valu",) and pv & cr: n = max(n, 1)
        if p.kind == "trans" and c.kind in ("vmem", "ds") and pv & cr: n = max(n, 1)
        if ("sdwa" in p.op or "op_sel" in p.mods and not p.op.startswith("v_pk")) and isvalu(c) and pv & (cr | cw): n = max(n, 1)
        if ps:
            if isvalu(c) and ps & cr: n = max(n, 2)
            if isvalu(c) and ps & set(c.lanesel): n = max(n, 4)
            if c.kind == "vmem" and ps & set(c.sread_vmem): n = max(n, 5)
            if set(regs("exec")) & ps:
                if isvalu(c) and c.dpp: n = max(n, 5)
                if isvalu(c) and (c.base.startswith(("v_permlane", "v_readlane", "v_readfirstlane", "v_writelane"))): n = max(n, 4)
                if c.kind == "mfma": n = max(n, 4)
    if p.kind == "mfma":
        big = p.passes == 8
        if c.kind == "mfma":
            if pv & set(c.A + c.B): n = max(n, 12 if big else 8)
            if pv & set(c.C):
                if not (c.C == p.w and c.passes == p.passes): n = max(n, 10 if big else 6)
            elif pv & cw: n = max(n, 10 if big else 6)
        elif c.kind in ("valu", "trans", "vmem", "ds"):
            if pv & (cr | cw): n = max(n, 12 if big else 8)
        if isvalu(c) and set(p.C) & cw: n = max(n, 7 if big else 3)
        if c.kind in ("vmem", "ds") and set(p.C) & cw: n = max(n, 7 if big else 3)
    if p.kind == "salu" and ("s", 124) in ps:
        if c.kind == "vmem" and getattr(c, "lds", False): n = max(n, 1)
        if c.kind == "ds" and "addtid" in c.op: n = max(n, 1)
        if c.op.startswith(("s_movrel", "s_sendmsg")): n = max(n, 1)
    if p.kind == "vmem" and p.storedata:
        if set(p.storedata) & cw: n = max(n, 2 if isvalu(c) else 1)
    return n

class Asm:
    def __init__(s):
        s.lines = []
    def __call__(s, text):
        for l in text.split("\n"):
            l = l.strip()
            if l: s.lines.append(l)
    def finish(s):
        out = []
        hist = []
        for l in s.lines:
            c = Ins(l)
            if c.states == 0:
                out.append(l); continue
            req = 0; dist = 0
            for p in reversed(hist):
                if dist >= 20: break
                n = need(p, c)
                if n > dist: req = max(req, n - dist)
                dist += p.states
            while req > 0:
                k = min(req, 16)
                nop = Ins(f"s_nop {k-1}")
                out.append(f"s_nop {k-1}"); hist.append(nop); req -= k
            out.append(l); hist.append(c)
            if len(hist) > 64: hist = hist[-40:]
        return "\n".join(("" if (x.endswith(":") or x.startswith(".")) else "    ") + x for x in out) + "\n"
```

```python
import sys
from asmlib import Asm, fl

WS_U = 0
WS_KEYS = 0x200000
WS_STATS = 0x202000
WS_ACT = 0x208000
WS_SEL = 0x210000
WS_SIZE = 0x400000
XB = 1835008
PX = 928
PF = 136
PY = 452

def srd(a, d, src, nbytes):
    a(f"""s_mov_b32 s{d}, s{src}
    s_and_b32 s{d+1}, s{src+1}, 0xffff
    s_mov_b32 s{d+2}, {nbytes}
    s_mov_b32 s{d+3}, 0x00020000""")

def v4(b): return f"v[{b}:{b+3}]"
def v2(b): return f"v[{b}:{b+1}]"
def a4(b): return f"a[{b}:{b+3}]"

def rbf(a, d, s):
    a(f"v_cvt_pk_bf16_f32 v{d}, v{s}, v{s}")
    a(f"v_and_b32 v{d}, 0xffff0000, v{d}")

def sd_chain(a, var, tmp):
    rbf(a, tmp, var)
    a(f"v_add_f32 v{tmp}, {fl(1e-5)}, v{tmp}")
    rbf(a, tmp, tmp)
    a(f"v_sqrt_f32 v{tmp}, v{tmp}")
    rbf(a, tmp, tmp)

def phaseA(a):
    LX = 0; LW = 64 * PX; LF = LW + 28 * 1024
    LANE, N, G, T0, T1, T2 = 1, 2, 3, 4, 5, 6
    EPS, BASE = 8, 9
    XF = 12
    AC1 = 68; AC2 = 84; GR = 100; CS = 104
    WC = 120; WSN = 128; WNS = 136
    TH = 144
    ONE = 152
    VU = 156; VFW = 157; VFR = 158; VXR = 159
    ST = 160
    a("""s_cmp_ge_u32 s2, 256
    s_cbranch_scc1 LA_end
    s_load_dwordx2 s[4:5], s[0:1], 0
    s_load_dwordx2 s[6:7], s[0:1], 96""")
    a(f"""v_and_b32 v{LANE}, 63, v0
    v_lshrrev_b32 v{T0}, 6, v0
    v_and_b32 v{N}, 15, v0
    v_readfirstlane_b32 s20, v{T0}
    v_bfe_u32 v{G}, v0, 4, 2
    s_and_b32 s21, s2, 31
    s_lshr_b32 s22, s2, 5
    v_lshlrev_b32 v{T1}, 4, v{LANE}
    s_lshl_b32 s23, s20, 9
    s_add_u32 s23, s23, s21
    s_mul_i32 s23, s23, 896
    s_mul_i32 s24, s20, {16*PX}
    s_waitcnt lgkmcnt(0)""")
    srd(a, 8, 4, XB)
    srd(a, 12, 6, WS_SIZE)
    a("s_mov_b32 exec_hi, 0x00ffffff")
    for i in range(16):
        a(f"s_mov_b32 m0, s24")
        a(f"s_add_u32 s24, s24, {PX}")
        a(f"buffer_load_dwordx4 v{T1}, s[8:11], s23 offen lds")
        a(f"s_add_u32 s23, s23, {32*896}")
    a("s_mov_b32 exec_hi, -1")
    a(f"""s_and_b32 s25, s20, 1
    s_lshl_b32 s25, s25, 4
    v_add_u32 v{T0}, s25, v{N}
    s_mul_i32 s26, s22, 28
    v_add_u32 v{T1}, s26, v{T0}
    v_cmp_ne_u32 vcc, 30, v{T0}
    s_lshr_b32 s25, s20, 1
    s_mul_i32 s25, s25, {fl(0.25)}
    v_cndmask_b32 v{T1}, 0, v{T1}, vcc
    v_cvt_f32_u32 v{T1}, v{T1}
    v_mul_f32 v{EPS}, {fl(1.0/448)}, v{T1}
    v_lshlrev_b32 v{T0}, 3, v{G}
    v_cvt_f32_u32 v{T2}, v{T0}
    v_fma_f32 v{BASE}, v{T2}, v{EPS}, s25
    s_mul_i32 s25, s20, {7*1024}
    s_add_u32 s25, s25, {LW}
    v_lshlrev_b32 v{T0}, 4, v{LANE}
    v_add_u32 v{T1}, s25, v{T0}""")
    for j in range(7):
        for i in range(8):
            k = 32 * j + i
            if k == 0: a(f"v_mov_b32 v{TH+i}, v{BASE}")
            else: a(f"v_fmamk_f32 v{TH+i}, v{EPS}, {fl(float(k))}, v{BASE}")
        for i in range(8): a(f"v_cos_f32 v{TH+i}, v{TH+i}")
        for i in range(4): a(f"v_cvt_pk_bf16_f32 v{XF+4*(j&1)+i}, v{TH+2*i}, v{TH+2*i+1}")
        a(f"ds_write_b128 v{T1}, {v4(XF+4*(j&1))} offset:{j*1024}")
    a(f"""v_lshrrev_b32 v{ST}, 1, v{N}
    s_lshl_b32 s25, s20, 3
    v_add_u32 v{ST}, s25, v{ST}
    v_sub_u32 v{ST+1}, 64, v{ST}
    v_cmp_eq_u32 vcc, 0, v{ST}
    v_and_b32 v{ST+2}, 1, v{N}
    v_cndmask_b32 v{ST+1}, v{ST+1}, 32, vcc
    v_cmp_eq_u32 vcc, 0, v{ST+2}
    v_lshlrev_b32 v{VU}, 16, v{ST}
    v_cndmask_b32 v{ST+1}, v{ST+1}, v{ST}, vcc
    v_lshl_add_u32 v{VU}, v{ST+2}, 6, v{VU}
    v_cvt_f32_u32 v{ST+1}, v{ST+1}
    v_lshl_add_u32 v{VU}, v{G}, 4, v{VU}
    v_mul_f32 v{EPS}, {fl(1.0/64)}, v{ST+1}
    v_mul_f32 v{BASE}, v{T2}, v{EPS}
    s_waitcnt lgkmcnt(0)
    s_barrier""")
    a(f"v_add_u32 v{T0}, {LW}, v{T0}")
    for f in range(28):
        a(f"ds_read_b128 {a4(4*f)}, v{T0} offset:{f*1024}")
    for ks in range(2):
        for h in range(2):
            for i in range(4):
                k = 32 * ks + 4 * h + i
                if k == 0: a(f"v_mov_b32 v{TH+i}, v{BASE}")
                else: a(f"v_fmamk_f32 v{TH+i}, v{EPS}, {fl(float(k))}, v{BASE}")
            for i in range(4):
                a(f"v_sin_f32 v{TH+4+i}, v{TH+i}")
                a(f"v_cos_f32 v{TH+i}, v{TH+i}")
            for i in range(2):
                a(f"v_cvt_pk_f16_f32 v{WC+4*ks+2*h+i}, v{TH+2*i}, v{TH+2*i+1}")
                a(f"v_cvt_pk_f16_f32 v{WSN+4*ks+2*h+i}, v{TH+4+2*i}, v{TH+4+2*i+1}")
    for i in range(8): a(f"v_xor_b32 v{WNS+i}, 0x80008000, v{WSN+i}")
    for i in range(4): a(f"v_mov_b32 v{ONE+i}, 0x3f803f80")
    a(f"""s_lshl_b32 s25, s20, 4
    v_add_u32 v{ST}, s25, v{N}
    v_mul_u32_u24 v{VXR}, {PX}, v{ST}
    v_lshl_add_u32 v{VXR}, v{G}, 4, v{VXR}
    v_mul_u32_u24 v{VFW}, {PF}, v{ST}
    v_lshl_add_u32 v{VFW}, v{G}, 3, v{VFW}
    v_add_u32 v{VFW}, {LF}, v{VFW}
    v_lshrrev_b32 v{ST}, 2, v{N}
    v_lshl_add_u32 v{ST}, v{G}, 3, v{ST}
    v_mul_u32_u24 v{VFR}, {PF}, v{ST}
    v_and_b32 v{ST}, 3, v{N}
    v_lshl_add_u32 v{VFR}, v{ST}, 3, v{VFR}
    v_add_u32 v{VFR}, {LF}, v{VFR}
    s_lshl_b32 s26, s21, 11
    s_lshl_b32 s27, s22, 8
    s_add_u32 s26, s26, s27""")
    for r in range(4):
        a(f"s_mov_b32 s{30+2*r}, {hex(((1<<r)|(1<<(20+r))) & 0xffffffff)}")
        a(f"s_mov_b32 s{31+2*r}, {hex(((1<<(8+r))|(1<<(28+r))) & 0xffffffff)}")
    a("s_mov_b32 s38, 0\ns_mov_b32 s39, 0xffff0000")
    a("s_waitcnt lgkmcnt(0)")
    for j in range(7):
        for T in range(4):
            c = "0" if j == 0 else v4(CS+4*T)
            a(f"v_mfma_f32_16x16x32_bf16 {v4(CS+4*T)}, {a4(4*(7*T+j))}, {v4(ONE)}, {c}")
    for T in range(4):
        for r in range(4):
            if r & 1: a(f"v_mov_b32 v{CS+4*T+r}, 0")
            else: a(f"v_add_f32 v{CS+4*T+r}, v{CS+4*T+r}, v{CS+4*T+r}")
    a("s_waitcnt vmcnt(0)")
    order = []
    for j in range(7): order += [j, j + 7]
    for k in order: a(f"ds_read_b128 {v4(XF+4*k)}, v{VXR} offset:{64*k}")
    for idx, k in enumerate(order):
        a(f"s_waitcnt lgkmcnt({13-idx})")
        j = k % 7; A = AC1 if k < 7 else AC2
        gc = "0" if idx == 0 else v4(GR)
        a(f"v_mfma_f32_16x16x32_bf16 {v4(GR)}, {v4(XF+4*k)}, {v4(XF+4*k)}, {gc}")
        for T in range(4):
            c = "0" if j == 0 else v4(A+4*T)
            a(f"v_mfma_f32_16x16x32_bf16 {v4(A+4*T)}, {a4(4*(7*T+j))}, {v4(XF+4*k)}, {c}")
    Q, S, M = ST, ST+1, ST+2
    RS = ST + 4
    a(f"v_mov_b32 v{Q}, 0")
    for r in range(4): a(f"v_cndmask_b32 v{Q}, v{Q}, v{GR+r}, s[{30+2*r}:{31+2*r}]")
    for T in (1, 0, 2, 3):
        for p in range(2):
            a(f"v_pk_add_f32 {v2(AC1+4*T+2*p)}, {v2(AC1+4*T+2*p)}, {v2(AC2+4*T+2*p)} neg_hi:[0,1]")
        if T == 1: a(f"v_cndmask_b32 v{S}, 0, v{AC1+4+2}, s[38:39]")
    a(f"""v_permlane32_swap_b32 v{Q}, v{S}
    v_add_f32 v{Q}, v{Q}, v{S}
    v_mov_b32 v{S}, v{Q}
    v_permlane16_swap_b32 v{Q}, v{S}
    v_add_f32 v{Q}, v{Q}, v{S}
    v_mov_b32 v{S}, v{Q}
    v_permlane32_swap_b32 v{Q}, v{S}
    v_mul_f32 v{M}, {fl(-1.0/448)}, v{S}
    v_mul_f32 v{Q}, {fl(1.0/448)}, v{Q}
    v_fma_f32 v{Q}, -v{M}, v{M}, v{Q}
    v_max_f32 v{Q}, 0, v{Q}""")
    sd_chain(a, Q, RS)
    a(f"v_rcp_f32 v{RS}, v{RS}")
    for T in range(4):
        for p in range(2):
            x = AC1 + 4*T + 2*p
            a(f"v_pk_fma_f32 {v2(x)}, {v2(CS+4*T+2*p)}, {v2(M)}, {v2(x)} op_sel_hi:[1,0,1]")
    for T in range(4):
        for p in range(2):
            x = AC1 + 4*T + 2*p
            a(f"v_pk_mul_f32 {v2(x)}, {v2(x)}, {v2(RS)} op_sel_hi:[1,0]")
        for p in range(2):
            x = AC1 + 4*T + 2*p
            a(f"v_cvt_pk_f16_f32 v{AC2+2*T+p}, v{x}, v{x+1}")
        a(f"ds_write_b64 v{VFW}, {v2(AC2+2*T)} offset:{32*T}")
    a("s_waitcnt lgkmcnt(0)\ns_barrier")
    FA = XF
    for ks in range(2):
        for T in range(4):
            for h in range(2):
                a(f"ds_read_b64_tr_b16 {v2(FA+(2*T+ks)*4+2*h)}, v{VFR} offset:{(32*ks+4*h)*PF+32*T}")
    UR = AC1; UI = AC1 + 8
    for ks in range(2):
        a(f"s_waitcnt lgkmcnt({8 if ks == 0 else 0})")
        for T in range(2):
            fr = v4(FA+(2*T+ks)*4); fi = v4(FA+(2*(T+2)+ks)*4)
            c = "0" if ks == 0 else v4(UR+4*T)
            a(f"v_mfma_f32_16x16x32_f16 {v4(UR+4*T)}, {fr}, {v4(WC+4*ks)}, {c}")
            c = "0" if ks == 0 else v4(UI+4*T)
            a(f"v_mfma_f32_16x16x32_f16 {v4(UI+4*T)}, {fi}, {v4(WC+4*ks)}, {c}")
        for T in range(2):
            fr = v4(FA+(2*T+ks)*4); fi = v4(FA+(2*(T+2)+ks)*4)
            a(f"v_mfma_f32_16x16x32_f16 {v4(UR+4*T)}, {fi}, {v4(WSN+4*ks)}, {v4(UR+4*T)}")
            a(f"v_mfma_f32_16x16x32_f16 {v4(UI+4*T)}, {fr}, {v4(WNS+4*ks)}, {v4(UI+4*T)}")
    for T in range(2):
        for r in range(4):
            a(f"v_cvt_pk_f16_f32 v{AC2+4*T+r}, v{UR+4*T+r}, v{UI+4*T+r}")
        a(f"buffer_store_dwordx4 {v4(AC2+4*T)}, v{VU}, s[12:15], s26 offen offset:{128*T}")
    a("LA_end:\ns_endpgm")
    return dict(vgpr=168, agpr=112, lds=LF + 64*PF, threads=256, grid=256)

def reduce3(a, A, B, C, T, sA, sB, sC):
    a(f"""v_mov_b32 v{T}, v{C}
    v_permlane32_swap_b32 v{A}, v{B}
    v_permlane32_swap_b32 v{C}, v{T}
    v_add_f32 v{A}, v{A}, v{B}
    v_add_f32 v{C}, v{C}, v{T}
    v_permlane16_swap_b32 v{A}, v{C}
    v_add_f32 v{A}, v{A}, v{C}""")
    for k in (8, 4, 2, 1):
        a(f"v_add_f32_dpp v{A}, v{A}, v{A} row_ror:{k} row_mask:0xf bank_mask:0xf")
    a(f"""v_readlane_b32 s{sA}, v{A}, 0
    v_readlane_b32 s{sC}, v{A}, 16
    v_readlane_b32 s{sB}, v{A}, 32""")

def unpack8(a, dst, src):
    for i in range(4):
        a(f"v_lshlrev_b32 v{dst+2*i}, 16, v{src+i}")
        a(f"v_and_b32 v{dst+2*i+1}, 0xffff0000, v{src+i}")

def phaseB(a):
    LANE, N, G, T0, T1, T2 = 1, 2, 3, 4, 5, 6
    EPS, BASE = 8, 9
    VL = 10; VY = 11
    R = 12
    AF = 44
    ACC = 52
    XR = 68; WR = 72
    XU = 76; WU = 84
    AD = 92
    TH = 96
    S1, S2, S3 = 104, 106, 108
    a("""s_cmp_ge_u32 s2, 256
    s_cbranch_scc1 LB_end
    s_load_dwordx2 s[4:5], s[0:1], 0
    s_load_dwordx2 s[6:7], s[0:1], 96
    s_load_dwordx2 s[40:41], s[0:1], 48
    s_load_dwordx2 s[42:43], s[0:1], 80""")
    a(f"""v_and_b32 v{LANE}, 63, v0
    v_lshrrev_b32 v{T0}, 6, v0
    v_and_b32 v{N}, 15, v0
    v_readfirstlane_b32 s20, v{T0}
    v_bfe_u32 v{G}, v0, 4, 2
    s_and_b32 s21, s2, 7
    s_lshr_b32 s22, s2, 6
    s_lshl_b32 s22, s22, 3
    s_or_b32 s21, s21, s22          ; p
    s_bfe_u32 s22, s2, 0x10003      ; which
    s_bfe_u32 s23, s2, 0x20004      ; q
    s_sub_u32 s24, 64, s21
    s_cmp_eq_u32 s21, 0
    s_cselect_b32 s24, 32, s24
    s_cselect_b32 s25, 0, 1
    s_xor_b32 s25, s25, s22         ; hi_which
    s_cmp_eq_u32 s22, 0
    s_cselect_b32 s24, s21, s24     ; t2
    s_lshl_b32 s26, s23, 9
    s_add_u32 s24, s24, s26         ; t0 = t2 + 512 q
    s_lshl_b32 s26, s20, 6
    s_add_u32 s26, s26, s24
    s_mul_i32 s27, s26, 896
    s_lshl_b32 s28, s21, 16
    s_lshl_b32 s29, s20, 8
    s_add_u32 s28, s28, s29
    s_add_u32 s29, s28, 4096
    s_add_u32 s30, s28, 32768
    s_add_u32 s31, s28, 36864
    v_lshlrev_b32 v{T0}, 13, v{G}
    v_lshl_add_u32 v{T0}, v{N}, 4, v{T0}
    v_lshlrev_b32 v{VL}, 4, v{LANE}
    s_waitcnt lgkmcnt(0)""")
    srd(a, 12, 6, WS_SIZE)
    for ks in range(2):
        for i in range(4):
            a(f"buffer_load_dwordx4 {v4(R+16*ks+4*i)}, v{T0}, s[12:15], s{28+2*ks+(i>>1)} offen offset:{2048*(i&1)}")
    srd(a, 8, 4, XB)
    srd(a, 16, 40, 896)
    a(f"buffer_load_dwordx4 {v4(WR)}, v{VL}, s[16:19], 0 offen")
    a(f"buffer_load_dwordx4 {v4(XR)}, v{VL}, s[8:11], s27 offen")
    srd(a, 44, 42, XB)
    a(f"""v_and_b32 v{T0}, 7, v{N}
    v_lshlrev_b32 v{T0}, 6, v{T0}
    v_add_u32 v{T0}, s24, v{T0}
    v_cvt_f32_u32 v{T0}, v{T0}
    v_cmp_gt_u32 vcc, 8, v{N}
    v_mul_f32 v{EPS}, {fl(1.0/2048)}, v{T0}
    v_lshlrev_b32 v{T1}, 2, v{G}
    v_cndmask_b32 v{EPS}, -v{EPS}, v{EPS}, vcc
    v_cvt_f32_u32 v{T1}, v{T1}
    v_mul_f32 v{BASE}, v{T1}, v{EPS}""")
    for ks in range(2):
        for i in range(4):
            k = 16*ks + i
            if k == 0: a(f"v_mov_b32 v{TH+i}, v{BASE}")
            else: a(f"v_fmamk_f32 v{TH+i}, v{EPS}, {fl(float(k))}, v{BASE}")
        for i in range(4):
            a(f"v_sin_f32 v{TH+4+i}, v{TH+i}")
            a(f"v_cos_f32 v{TH+i}, v{TH+i}")
        for i in range(4):
            a(f"v_cvt_pk_f16_f32 v{AF+4*ks+i}, v{TH+i}, v{TH+4+i}")
    a(f"""v_lshrrev_b32 v{T0}, 3, v{N}
    v_and_b32 v{T1}, 3, v{N}
    v_lshlrev_b32 v{T1}, 2, v{T1}
    v_lshl_add_u32 v{T0}, v{T0}, 4, v{T1}       ; slot0
    s_mul_i32 s32, s20, 28
    v_add_u32 v{T1}, s32, v{T0}                 ; e0
    v_sub_u32 v{T2}, 448, v{T1}
    v_cmp_gt_u32 s[34:35], 2, v{G}
    v_mov_b32 v{TH}, s22
    v_mov_b32 v{TH+1}, s25
    v_cndmask_b32 v{T2}, v{T2}, v{T1}, s[34:35] ; col0
    v_cndmask_b32 v{TH}, v{TH+1}, v{TH}, s[34:35]
    v_bfe_u32 v{TH+1}, v{N}, 2, 1
    v_cmp_eq_u32 s[36:37], v{TH}, v{TH+1}
    v_and_b32 v{TH+2}, 1, v{G}
    v_mul_u32_u24 v{TH+2}, {4*PY}, v{TH+2}
    v_add_lshl_u32 v{AD}, v{TH+2}, v{T2}, 2
    v_mov_b32 v{TH+3}, -4
    v_cndmask_b32 v{TH+3}, v{TH+3}, 4, s[34:35]
    v_add_u32 v{AD+1}, v{AD}, v{TH+3}
    v_add_u32 v{AD+2}, v{AD+1}, v{TH+3}
    v_add_u32 v{AD+3}, v{AD+2}, v{TH+3}
    v_cmp_gt_u32 s[50:51], 28, v{T0}
    s_and_b64 s[50:51], s[50:51], s[36:37]
    v_cmp_eq_u32 s[48:49], 0, v{T1}
    s_andn2_b64 s[48:49], s[48:49], s[34:35]
    s_andn2_b64 s[48:49], s[50:51], s[48:49]
    v_mov_b32 v{TH}, 224
    v_cmp_eq_u32 s[52:53], v{TH}, v{T1}
    s_and_b64 s[52:53], s[52:53], s[34:35]
    s_and_b64 s[52:53], s[52:53], s[36:37]
    s_or_b64 s[48:49], s[48:49], s[52:53]
    s_mul_i32 s33, s20, {PY*4}
    v_lshlrev_b32 v{VY}, 5, v{LANE}
    v_add_u32 v{VY}, s33, v{VY}""")
    a("s_waitcnt vmcnt(1)")
    unpack8(a, WU, WR)
    a(f"""v_pk_add_f32 {v2(S1)}, {v2(WU)}, {v2(WU+2)}
    v_pk_add_f32 {v2(S2)}, {v2(WU+4)}, {v2(WU+6)}
    v_pk_add_f32 {v2(S1)}, {v2(S1)}, {v2(S2)}
    v_add_f32 v{S1}, v{S1}, v{S1+1}
    v_mov_b32 v{S2}, 0
    v_mov_b32 v{S3}, 0""")
    reduce3(a, S1, S2, S3, T0, 54, 55, 56)
    for ks in range(2):
        for i in range(4):
            for j in range(i+1, 4):
                a(f"v_swap_b32 v{R+16*ks+4*i+j}, v{R+16*ks+4*j+i}")
    for ks in range(2):
        for j in range(4):
            c = "0" if ks == 0 else v4(ACC+4*j)
            a(f"v_mfma_f32_16x16x32_f16 {v4(ACC+4*j)}, {v4(AF+4*ks)}, {v4(R+16*ks+4*j)}, {c}")
    a("s_waitcnt vmcnt(0)")
    unpack8(a, XU, XR)
    for k in (S1, S1+1, S2, S2+1, S3, S3+1): a(f"v_mov_b32 v{k}, 0")
    for j in range(4):
        if j < 2: a(f"s_mov_b64 exec, s[{48+2*j}:{49+2*j}]")
        for r in range(4):
            a(f"ds_write_b32 v{AD+j}, v{ACC+4*j+r} offset:{r*PY*4}")
    a("""s_mov_b32 exec_lo, -1
    s_mov_b32 exec_hi, 0x00ffffff
    s_waitcnt lgkmcnt(0)
    s_barrier""")
    H = R
    a(f"ds_read_b128 {v4(H)}, v{VY}\nds_read_b128 {v4(H+4)}, v{VY} offset:16")
    for hf in range(2):
        a(f"s_waitcnt lgkmcnt({1-hf})")
        for p in range(2):
            x = 4*hf + 2*p
            a(f"v_pk_add_f32 {v2(H+x)}, {v2(H+x)}, {v2(XU+x)}")
        for p in range(2):
            x = 4*hf + 2*p
            a(f"v_pk_add_f32 {v2(S1)}, {v2(S1)}, {v2(H+x)}")
            a(f"v_pk_fma_f32 {v2(S2)}, {v2(H+x)}, {v2(H+x)}, {v2(S2)}")
            a(f"v_pk_fma_f32 {v2(S3)}, {v2(H+x)}, {v2(WU+x)}, {v2(S3)}")
    a(f"""s_mov_b32 exec_hi, -1
    v_add_f32 v{S1}, v{S1}, v{S1+1}
    v_add_f32 v{S2}, v{S2}, v{S2+1}
    v_add_f32 v{S3}, v{S3}, v{S3+1}""")
    reduce3(a, S1, S2, S3, T0, 57, 58, 59)
    M, V, SD, RS, C1, C0, KEY = TH, TH+1, TH+2, TH+3, TH+4, TH+6, T1
    a(f"""v_mov_b32 v{V}, {fl(1.0/448)}
    v_mul_f32 v{M}, s57, v{V}
    v_mul_f32 v{V}, s58, v{V}
    v_fma_f32 v{V}, -v{M}, v{M}, v{V}
    v_max_f32 v{V}, 0, v{V}""")
    sd_chain(a, V, SD)
    a(f"""v_rcp_f32 v{RS}, v{SD}
    v_mov_b32 v{KEY}, s59
    v_fma_f32 v{KEY}, -v{M}, s54, v{KEY}
    v_add_f32 v{C1}, 1.0, v{RS}
    v_mul_f32 v{C0}, -v{M}, v{RS}
    v_mul_f32 v{KEY}, v{KEY}, v{RS}""")
    for p in range(4):
        a(f"v_pk_fma_f32 {v2(H+2*p)}, {v2(H+2*p)}, {v2(C1)}, {v2(C0)} op_sel_hi:[1,0,0]")
    for p in range(4):
        a(f"v_cvt_pk_bf16_f32 v{XR+p}, v{H+2*p}, v{H+2*p+1}")
    a(f"""s_mov_b32 exec_hi, 0x00ffffff
    buffer_store_dwordx4 {v4(XR)}, v{VL}, s[44:47], s27 offen
    v_cvt_pk_bf16_f32 v{KEY}, v{KEY}, v{KEY}
    v_add_f32 v{SD}, 1.0, v{SD}
    v_ashrrev_i32 v{T0}, 31, v{KEY}
    v_rcp_f32 v{M+1}, v{SD}
    v_or_b32 v{T0}, 0x80000000, v{T0}
    v_xor_b32 v{KEY}, v{KEY}, v{T0}
    s_sub_u32 s32, 2047, s26
    v_and_b32 v{KEY}, 0xffff0000, v{KEY}
    v_or_b32 v{KEY}, s32, v{KEY}
    s_mov_b64 exec, 1
    s_lshl_b32 s33, s26, 2
    s_add_u32 s33, s33, {WS_KEYS}
    s_lshl_b32 s32, s26, 3
    s_add_u32 s32, s32, {WS_STATS}
    buffer_store_dwordx2 {v2(M)}, v{VL}, s[12:15], s32 offen
    buffer_store_dword v{KEY}, v{VL}, s[12:15], s33 offen
    LB_end:
    s_endpgm""")
    return dict(vgpr=112, agpr=0, lds=8*PY*4, threads=512, grid=256)

QP = {1: "quad_perm:[1,0,3,2]", 2: "quad_perm:[2,3,0,1]", 3: "quad_perm:[3,2,1,0]", 7: "row_half_mirror"}
def ce(a, xs, tmp, mask, L):
    if mask == 4:
        for k, x in enumerate(xs):
            a(f"v_max_u32_dpp v{tmp+k}, v{x}, v{x} row_shl:4 row_mask:0xf bank_mask:0x5")
            a(f"v_min_u32_dpp v{tmp+k}, v{x}, v{x} row_shr:4 row_mask:0xf bank_mask:0xa")
        for k, x in enumerate(xs):
            a(f"v_mov_b32 v{x}, v{tmp+k}")
        return
    top = 1 << (mask.bit_length() - 1)
    for k, x in enumerate(xs):
        a(f"v_mov_b32_dpp v{tmp+k}, v{x} {QP[mask]} row_mask:0xf bank_mask:0xf")
    for k, x in enumerate(xs):
        a(f"v_med3_u32 v{x}, v{x}, v{tmp+k}, v{L[top]}")

def clean(a, xs, tmp, L):
    for m in (4, 2, 1): ce(a, xs, tmp, m, L)

def wave_merge(a, x, tmp, L):
    a(f"v_max_u32_dpp v{x}, v{x}, v{x} row_mirror row_mask:0xf bank_mask:0xf")
    clean(a, [x], tmp, L)
    for sw in ("v_permlane16_swap_b32", "v_permlane32_swap_b32"):
        a(f"v_mov_b32 v{tmp}, v{x}")
        a(f"{sw} v{x}, v{tmp}")
        a(f"v_max_u32_dpp v{x}, v{tmp}, v{x} row_half_mirror row_mask:0xf bank_mask:0xf")
        clean(a, [x], tmp, L)

def lim_regs(a, L, lane, t):
    for b, r in L.items():
        a(f"v_and_b32 v{t}, {b}, v{lane}")
        a(f"v_cmp_eq_u32 vcc, 0, v{t}")
        a(f"v_cndmask_b32 v{r}, 0, -1, vcc")

def select8(a, K, tmp, L, lds_w, lds_r):
    xs = [K, K+1, K+2, K+3]
    for m in (1, 3, 1, 7, 2, 1): ce(a, xs, tmp, m, L)
    a(f"v_max_u32_dpp v{K}, v{K+1}, v{K} row_half_mirror row_mask:0xf bank_mask:0xf")
    a(f"v_max_u32_dpp v{K+2}, v{K+3}, v{K+2} row_half_mirror row_mask:0xf bank_mask:0xf")
    clean(a, [K, K+2], tmp, L)
    a(f"v_max_u32_dpp v{K}, v{K+2}, v{K} row_half_mirror row_mask:0xf bank_mask:0xf")
    clean(a, [K], tmp, L)
    wave_merge(a, K, tmp, L)
    a(f"""s_mov_b64 exec, 0xff
    ds_write_b32 v{lds_w}, v{K}
    s_mov_b64 exec, -1
    s_waitcnt lgkmcnt(0)
    s_barrier
    ds_read_b32 v{K}, v{lds_r}
    s_waitcnt lgkmcnt(0)""")
    wave_merge(a, K, tmp, L)

def sigmoid_mul(a, d, x, y, t):
    a(f"""v_mul_f32 v{t}, {fl(-1.4426950408889634)}, v{x}
    v_exp_f32 v{t}, v{t}
    v_add_f32 v{t}, 1.0, v{t}
    v_rcp_f32 v{t}, v{t}
    v_mul_f32 v{d}, {y}, v{t}""")

def phaseC1(a):
    LG = 0; LU = 7168; LXS = 14336; LS = LXS + 8*PX
    LANE, N, G, T0, T1, T2 = 1, 2, 3, 4, 5, 6
    VL = 7; K = 8; TMP = 12; L = {1: 16, 2: 17, 4: 18}; SW = 19; SR = 20
    XR = 24; ST = 28; XU = 32; WF = 40; XF = 96; ACC = 152
    a("""s_cmp_ge_u32 s2, 224
    s_cbranch_scc1 LC_end
    s_load_dwordx2 s[6:7], s[0:1], 96
    s_load_dwordx4 s[40:43], s[0:1], 56
    s_load_dwordx2 s[4:5], s[0:1], 80""")
    a(f"""v_and_b32 v{LANE}, 63, v0
    v_lshrrev_b32 v{T0}, 6, v0
    v_and_b32 v{N}, 15, v0
    v_readfirstlane_b32 s20, v{T0}
    v_bfe_u32 v{G}, v0, 4, 2
    v_lshlrev_b32 v{T1}, 4, v0
    v_lshlrev_b32 v{VL}, 4, v{LANE}
    s_and_b32 s21, s2, 7
    s_mul_i32 s21, s21, 28
    s_lshr_b32 s22, s2, 3
    s_add_u32 s21, s21, s22          ; f group
    v_mul_u32_u24 v{T2}, 3584, v0
    s_lshl_b32 s22, s21, 4
    s_lshl_b32 s23, s20, 10
    s_waitcnt lgkmcnt(0)""")
    srd(a, 12, 6, WS_SIZE)
    a(f"s_mov_b32 s24, {WS_KEYS}")
    a(f"buffer_load_dwordx4 {v4(K)}, v{T1}, s[12:15], s24 offen")
    srd(a, 16, 40, 448*3584)
    srd(a, 44, 42, 448*3584)
    srd(a, 8, 4, XB)
    a(f"""s_cmp_eq_u32 s20, 7
    s_cbranch_scc1 LC_nodma
    s_mov_b32 m0, s23
    s_add_u32 s23, s23, {LU}
    buffer_load_dwordx4 v{T2}, s[16:19], s22 offen lds
    s_mov_b32 m0, s23
    s_nop 0
    buffer_load_dwordx4 v{T2}, s[44:47], s22 offen lds
    LC_nodma:""")
    lim_regs(a, L, LANE, T0)
    a(f"""s_lshl_b32 s25, s20, 5
    s_add_u32 s25, s25, {LS}
    v_lshlrev_b32 v{SR}, 2, v{LANE}
    v_add_u32 v{SW}, s25, v{SR}
    v_add_u32 v{SR}, {LS}, v{SR}
    s_waitcnt vmcnt(0)""")
    select8(a, K, TMP, L, SW, SR)
    a(f"""v_readlane_b32 s26, v{K}, s20
    s_and_b32 s26, s26, 0x7ff
    s_sub_u32 s26, 2047, s26
    s_mul_i32 s27, s26, 896
    s_lshl_b32 s28, s26, 3
    s_add_u32 s28, s28, {WS_STATS}
    v_mov_b32 v{T0}, 0
    buffer_load_dwordx4 {v4(XR)}, v{VL}, s[8:11], s27 offen
    buffer_load_dwordx2 {v2(ST)}, v{T0}, s[12:15], s28 offen
    s_mul_i32 s29, s20, {PX}
    s_add_u32 s29, s29, {LXS}
    v_add_u32 v{T2}, s29, v{VL}
    s_cmp_lg_u32 s20, 0
    s_cbranch_scc1 LC_now""")
    a(f"""v_lshrrev_b32 v{T0}, 2, v{N}
    v_lshl_add_u32 v{T0}, v{G}, 3, v{T0}
    v_lshlrev_b32 v{T0}, 4, v{T0}
    v_and_b32 v{T1}, 1, v{N}
    v_lshl_add_u32 v{T0}, v{T1}, 3, v{T0}
    v_bfe_u32 v{T1}, v{N}, 1, 1
    v_mul_u32_u24 v{T1}, {LU}, v{T1}
    v_add_u32 v{T0}, v{T0}, v{T1}""")
    for j in range(14):
        for h in range(2):
            a(f"ds_read_b64_tr_b16 {v2(WF+4*j+2*h)}, v{T0} offset:{(32*j+4*h)*16}")
    a(f"""s_cmp_lg_u32 s2, 0
    s_cbranch_scc1 LC_now
    s_mov_b64 exec, 0xff
    v_lshlrev_b32 v{T0}, 2, v{LANE}
    s_mov_b32 s29, {WS_SEL}
    buffer_store_dword v{K}, v{T0}, s[12:15], s29 offen
    s_mov_b64 exec, -1
    LC_now:
    s_waitcnt vmcnt(0)""")
    unpack8(a, XU, XR)
    a(f"v_mul_f32 v{ST}, -v{ST}, v{ST+1}")
    a(f"v_mov_b32 v{ST+2}, v{ST+1}")
    for p in range(4):
        a(f"v_pk_fma_f32 {v2(XU+2*p)}, {v2(XU+2*p)}, {v2(ST+2)}, {v2(ST)} op_sel_hi:[1,0,0]")
    for p in range(4):
        a(f"v_cvt_pk_bf16_f32 v{XR+p}, v{XU+2*p}, v{XU+2*p+1}")
    a(f"""s_mov_b32 exec_hi, 0x00ffffff
    ds_write_b128 v{T2}, {v4(XR)}
    s_mov_b32 exec_hi, -1
    s_waitcnt lgkmcnt(0)
    s_barrier
    s_cmp_lg_u32 s20, 0
    s_cbranch_scc1 LC_end
    v_and_b32 v{T0}, 7, v{N}
    v_mul_u32_u24 v{T0}, {PX}, v{T0}
    v_lshl_add_u32 v{T0}, v{G}, 4, v{T0}""")
    for j in range(14):
        a(f"ds_read_b128 {v4(XF+4*j)}, v{T0} offset:{LXS+64*j}")
    for j in range(14):
        a(f"s_waitcnt lgkmcnt({13-j})")
        A = ACC + 4*(j & 1)
        c = "0" if j < 2 else v4(A)
        a(f"v_mfma_f32_16x16x32_bf16 {v4(A)}, {v4(WF+4*j)}, {v4(XF+4*j)}, {c}")
    a(f"""v_lshlrev_b32 v{T0}, 4, v{N}
    v_lshl_add_u32 v{T0}, v{G}, 3, v{T0}
    s_lshl_b32 s22, s21, 7
    s_add_u32 s22, s22, {WS_ACT}""")
    for p in range(2):
        a(f"v_pk_add_f32 {v2(ACC+2*p)}, {v2(ACC+2*p)}, {v2(ACC+4+2*p)}")
    for r in range(4): rbf(a, ACC+r, ACC+r)
    for r in range(4): a(f"v_mov_b32 v{ACC+4+r}, v{ACC+r}")
    for r in range(4): a(f"v_permlane32_swap_b32 v{ACC+r}, v{ACC+4+r}")
    for r in range(4): a(f"v_mul_f32 v{XU+r}, {fl(-1.4426950408889634)}, v{ACC+r}")
    for r in range(4): a(f"v_exp_f32 v{XU+r}, v{XU+r}")
    for r in range(4): a(f"v_add_f32 v{XU+r}, 1.0, v{XU+r}")
    for r in range(4): a(f"v_rcp_f32 v{XU+r}, v{XU+r}")
    for r in range(4): a(f"v_mul_f32 v{ACC+r}, v{ACC+r}, v{XU+r}")
    for r in range(4): rbf(a, ACC+r, ACC+r)
    for r in range(4): a(f"v_mul_f32 v{ACC+r}, v{ACC+r}, v{ACC+4+r}")
    for p in range(2): a(f"v_cvt_pk_bf16_f32 v{XR+p}, v{ACC+2*p}, v{ACC+2*p+1}")
    a(f"""s_mov_b32 exec_lo, 0x00ff00ff
    s_mov_b32 exec_hi, 0
    buffer_store_dwordx2 {v2(XR)}, v{T0}, s[12:15], s22 offen
    LC_end:
    s_endpgm""")
    return dict(vgpr=160, agpr=0, lds=LS + 256, threads=512, grid=224)

def phaseC2(a):
    LD = 0; LR = 1792*32
    LANE, N, G, T0, T1, T2 = 1, 2, 3, 4, 5, 6
    KEY = 7; OA = 8; OR = 10; AF = 12; WF = 40; ACC = 68; RD = 76; SG = 108
    a("""s_cmp_ge_u32 s2, 28
    s_cbranch_scc1 LD_end
    s_load_dwordx2 s[6:7], s[0:1], 96
    s_load_dwordx4 s[40:43], s[0:1], 72""")
    a(f"""v_and_b32 v{LANE}, 63, v0
    v_lshrrev_b32 v{T0}, 6, v0
    v_and_b32 v{N}, 15, v0
    v_readfirstlane_b32 s20, v{T0}
    v_bfe_u32 v{G}, v0, 4, 2
    v_lshrrev_b32 v{T0}, 1, v{LANE}
    v_mul_u32_u24 v{T0}, 896, v{T0}
    v_and_b32 v{T1}, 1, v{LANE}
    v_lshl_add_u32 v{T0}, v{T1}, 4, v{T0}
    s_mul_i32 s22, s20, {224*896}
    s_lshl_b32 s23, s2, 5
    s_add_u32 s22, s22, s23
    s_mul_i32 s24, s20, 7168
    v_and_b32 v{T1}, 7, v{N}
    v_lshlrev_b32 v{T2}, 2, v{T1}
    v_lshlrev_b32 v{T1}, 4, v{T1}
    v_lshl_add_u32 v{T1}, v{G}, 7, v{T1}
    s_mul_i32 s25, s20, {7*512}
    s_add_u32 s25, s25, {WS_ACT}
    s_mov_b32 s26, {WS_SEL}
    s_waitcnt lgkmcnt(0)""")
    srd(a, 12, 6, WS_SIZE)
    srd(a, 16, 40, 1792*896)
    srd(a, 8, 42, XB)
    a(f"buffer_load_dword v{KEY}, v{T2}, s[12:15], s26 offen")
    for j in range(7):
        a(f"buffer_load_dwordx4 {v4(AF+4*j)}, v{T1}, s[12:15], s25 offen offset:{512*j}")
    for j in range(7):
        a(f"s_mov_b32 m0, s24")
        a(f"s_add_u32 s24, s24, 1024")
        a(f"buffer_load_dwordx4 v{T0}, s[16:19], s22 offen lds")
        a(f"s_add_u32 s22, s22, {32*896}")
    a(f"""s_waitcnt vmcnt(14)
    v_and_b32 v{OA}, 0x7ff, v{KEY}
    v_sub_u32 v{OA}, 2047, v{OA}
    v_mul_u32_u24 v{OA}, 896, v{OA}
    v_lshl_add_u32 v{OA}, v{G}, 3, v{OA}
    buffer_load_dwordx2 {v2(OR)}, v{OA}, s[8:11], s23 offen
    v_ashrrev_i32 v{T2}, 31, v{KEY}
    v_not_b32 v{T2}, v{T2}
    v_or_b32 v{T2}, 0x80000000, v{T2}
    v_xor_b32 v{KEY}, v{KEY}, v{T2}
    v_and_b32 v{KEY}, 0xffff0000, v{KEY}""")
    sigmoid_mul(a, SG, KEY, "1.0", T2)
    rbf(a, SG, SG)
    a(f"""v_lshrrev_b32 v{T0}, 2, v{N}
    v_lshl_add_u32 v{T0}, v{G}, 3, v{T0}
    v_lshlrev_b32 v{T0}, 5, v{T0}
    v_and_b32 v{T1}, 3, v{N}
    v_lshl_add_u32 v{T0}, v{T1}, 3, v{T0}
    s_mul_i32 s24, s20, 7168
    v_add_u32 v{T0}, s24, v{T0}
    v_lshlrev_b32 v{T1}, 4, v0
    v_add_u32 v{T1}, {LR}, v{T1}
    s_waitcnt vmcnt(1)""")
    for j in range(7):
        for h in range(2):
            a(f"ds_read_b64_tr_b16 {v2(WF+4*j+2*h)}, v{T0} offset:{(32*j+4*h)*32}")
    for j in range(7):
        a(f"s_waitcnt lgkmcnt({12-2*j})")
        c = "0" if j == 0 else v4(ACC)
        a(f"v_mfma_f32_16x16x32_bf16 {v4(ACC)}, {v4(WF+4*j)}, {v4(AF+4*j)}, {c}")
    a(f"""ds_write_b128 v{T1}, {v4(ACC)}
    s_waitcnt lgkmcnt(0)
    s_barrier
    s_cmp_lg_u32 s20, 0
    s_cbranch_scc1 LD_end""")
    for w in range(1, 8):
        a(f"ds_read_b128 {v4(RD+4*w)}, v{T1} offset:{1024*w}")
    for w in range(1, 8):
        a(f"s_waitcnt lgkmcnt({7-w})")
        for p in range(2):
            a(f"v_pk_add_f32 {v2(ACC+2*p)}, {v2(ACC+2*p)}, {v2(RD+4*w+2*p)}")
    for r in range(4): rbf(a, ACC+r, ACC+r)
    for r in range(4): a(f"v_mul_f32 v{ACC+r}, v{ACC+r}, v{SG}")
    for r in range(4): rbf(a, ACC+r, ACC+r)
    a("s_waitcnt vmcnt(0)")
    for i in range(2):
        a(f"v_lshlrev_b32 v{RD+2*i}, 16, v{OR+i}")
        a(f"v_and_b32 v{RD+2*i+1}, 0xffff0000, v{OR+i}")
    for p in range(2):
        a(f"v_pk_add_f32 {v2(ACC+2*p)}, {v2(ACC+2*p)}, {v2(RD+2*p)}")
    for p in range(2): a(f"v_cvt_pk_bf16_f32 v{OR+p}, v{ACC+2*p}, v{ACC+2*p+1}")
    a(f"""s_mov_b32 exec_lo, 0x00ff00ff
    s_mov_b32 exec_hi, 0x00ff00ff
    buffer_store_dwordx2 {v2(OR)}, v{OA}, s[8:11], s23 offen
    LD_end:
    s_endpgm""")
    return dict(vgpr=112, agpr=0, lds=LR + 8192, threads=512, grid=28)

HDR = open("sequential_preLN__spectral_fnet__moe_arch_mod__prompt.s.ref").read().split("; Override launch")[0]

def build(kernels):
    launches = ""; text = ""; desc = ""
    for name, fn in kernels:
        a = Asm()
        info = fn(a)
        launches += f"; @launch kernel={name} grid=({info['grid']},1,1) block=({info['threads']},1,1) lds={info['lds']}\n"
        text += f".globl {name}\n.p2align 8\n.type {name},@function\n{name}:\n" + a.finish()
        acc = (info['vgpr'] + 3) // 4 * 4
        desc += f""".p2align 6
.amdhsa_kernel {name}
  .amdhsa_next_free_vgpr {acc + info['agpr']}
  .amdhsa_next_free_sgpr 96
  .amdhsa_accum_offset {acc}
  .amdhsa_group_segment_fixed_size 0
  .amdhsa_kernarg_size 104
  .amdhsa_user_sgpr_count 2
  .amdhsa_user_sgpr_kernarg_segment_ptr 1
  .amdhsa_system_sgpr_workgroup_id_x 1
.end_amdhsa_kernel
"""
    return HDR + launches + '.amdgcn_target "amdgcn-amd-amdhsa--gfx950"\n.text\n' + text + '.section .rodata,"a"\n' + desc

if __name__ == "__main__":
    out = sys.argv[1] if len(sys.argv) > 1 else "sequential_preLN__spectral_fnet__moe_arch_mod__prompt.s"
    open(out, "w").write(build([("fa_kernel", phaseA), ("fb_kernel", phaseB), ("fc_kernel", phaseC1), ("fd_kernel", phaseC2)]))
```

```python
import sys
from asmlib import Asm, fl

WS_U = 0
WS_KEYS = 0x200000
WS_STATS = 0x202000
WS_ACT = 0x208000
WS_SEL = 0x210000
WS_SIZE = 0x400000
XB = 1835008
PX = 928
PF = 136
PY = 452

def srd(a, d, src, nbytes):
    a(f"""s_mov_b32 s{d}, s{src}
    s_and_b32 s{d+1}, s{src+1}, 0xffff
    s_mov_b32 s{d+2}, {nbytes}
    s_mov_b32 s{d+3}, 0x00020000""")

STAMPS = False
def stamp(a, k):
    if STAMPS: a(f"s_memrealtime s[{64+2*k}:{65+2*k}]")
def dump_stamps(a, kid, n):
    if not STAMPS: return
    a(f"s_memrealtime s[{64+2*n}:{65+2*n}]")
    a("s_waitcnt vmcnt(0)")
    a(f"s_memrealtime s[{64+2*n+2}:{65+2*n+2}]")
    a("s_mov_b64 exec, 1\ns_waitcnt lgkmcnt(0)")
    a(f"s_lshl_b32 s60, s2, 3\ns_add_u32 s60, s60, s20\ns_lshl_b32 s60, s60, 6\ns_add_u32 s60, s60, {0x300000 + kid*0x20000}\nv_mov_b32 v1, 0")
    for k in range(n+2):
        a(f"v_mov_b32 v2, s{64+2*k}\nbuffer_store_dword v2, v1, s[12:15], s60 offen offset:{4*k}")
def v4(b): return f"v[{b}:{b+3}]"
def v2(b): return f"v[{b}:{b+1}]"
def a4(b): return f"a[{b}:{b+3}]"

def rbf(a, d, s):
    a(f"v_cvt_pk_bf16_f32 v{d}, v{s}, v{s}")
    a(f"v_and_b32 v{d}, 0xffff0000, v{d}")

def sd_chain(a, var, tmp):
    rbf(a, tmp, var)
    a(f"v_add_f32 v{tmp}, {fl(1e-5)}, v{tmp}")
    rbf(a, tmp, tmp)
    a(f"v_sqrt_f32 v{tmp}, v{tmp}")
    rbf(a, tmp, tmp)

def phaseA(a):
    LX = 0; LW = 64 * PX; LF = LW + 28 * 1024
    LANE, N, G, T0, T1, T2 = 1, 2, 3, 4, 5, 6
    EPS, BASE = 8, 9
    XF = 12
    AC1 = 68; AC2 = 84; GR = 100; CS = 104
    WC = 120; WSN = 128; WNS = 136
    TH = 144
    ONE = 152
    VU = 156; VFW = 157; VFR = 158; VXR = 159
    ST = 160
    stamp(a, 0)
    a("""s_cmp_ge_u32 s2, 256
    s_cbranch_scc1 LA_end
    s_load_dwordx2 s[4:5], s[0:1], 0
    s_load_dwordx2 s[6:7], s[0:1], 96""")
    a(f"""v_and_b32 v{LANE}, 63, v0
    v_lshrrev_b32 v{T0}, 6, v0
    v_and_b32 v{N}, 15, v0
    v_readfirstlane_b32 s20, v{T0}
    v_bfe_u32 v{G}, v0, 4, 2
    s_and_b32 s21, s2, 31
    s_lshr_b32 s22, s2, 5
    v_lshlrev_b32 v{T1}, 4, v{LANE}
    s_lshl_b32 s23, s20, 9
    s_add_u32 s23, s23, s21
    s_mul_i32 s23, s23, 896
    s_mul_i32 s24, s20, {16*PX}
    s_waitcnt lgkmcnt(0)""")
    srd(a, 8, 4, XB)
    srd(a, 12, 6, WS_SIZE)
    a("s_mov_b32 exec_hi, 0x00ffffff")
    for i in range(16):
        a(f"s_mov_b32 m0, s24")
        a(f"s_add_u32 s24, s24, {PX}")
        a(f"buffer_load_dwordx4 v{T1}, s[8:11], s23 offen lds")
        a(f"s_add_u32 s23, s23, {32*896}")
    a("s_mov_b32 exec_hi, -1")
    stamp(a, 1)
    a(f"""s_and_b32 s25, s20, 1
    s_lshl_b32 s25, s25, 4
    v_add_u32 v{T0}, s25, v{N}
    s_mul_i32 s26, s22, 28
    v_add_u32 v{T1}, s26, v{T0}
    v_cmp_ne_u32 vcc, 30, v{T0}
    s_lshr_b32 s25, s20, 1
    s_mul_i32 s25, s25, {fl(0.25)}
    v_cndmask_b32 v{T1}, 0, v{T1}, vcc
    v_cvt_f32_u32 v{T1}, v{T1}
    v_mul_f32 v{EPS}, {fl(1.0/448)}, v{T1}
    v_lshlrev_b32 v{T0}, 3, v{G}
    v_cvt_f32_u32 v{T2}, v{T0}
    v_fma_f32 v{BASE}, v{T2}, v{EPS}, s25
    s_mul_i32 s25, s20, {7*1024}
    s_add_u32 s25, s25, {LW}
    v_lshlrev_b32 v{T0}, 4, v{LANE}
    v_add_u32 v{T1}, s25, v{T0}""")
    for j in range(7):
        for i in range(8):
            k = 32 * j + i
            if k == 0: a(f"v_mov_b32 v{TH+i}, v{BASE}")
            else: a(f"v_fmamk_f32 v{TH+i}, v{EPS}, {fl(float(k))}, v{BASE}")
        for i in range(8): a(f"v_cos_f32 v{TH+i}, v{TH+i}")
        for i in range(4): a(f"v_cvt_pk_bf16_f32 v{XF+4*(j&1)+i}, v{TH+2*i}, v{TH+2*i+1}")
        a(f"ds_write_b128 v{T1}, {v4(XF+4*(j&1))} offset:{j*1024}")
    a(f"""v_lshrrev_b32 v{ST}, 1, v{N}
    s_lshl_b32 s25, s20, 3
    v_add_u32 v{ST}, s25, v{ST}
    v_sub_u32 v{ST+1}, 64, v{ST}
    v_cmp_eq_u32 vcc, 0, v{ST}
    v_and_b32 v{ST+2}, 1, v{N}
    v_cndmask_b32 v{ST+1}, v{ST+1}, 32, vcc
    v_cmp_eq_u32 vcc, 0, v{ST+2}
    v_lshlrev_b32 v{VU}, 16, v{ST}
    v_cndmask_b32 v{ST+1}, v{ST+1}, v{ST}, vcc
    v_lshl_add_u32 v{VU}, v{ST+2}, 6, v{VU}
    v_cvt_f32_u32 v{ST+1}, v{ST+1}
    v_lshl_add_u32 v{VU}, v{G}, 4, v{VU}
    v_mul_f32 v{EPS}, {fl(1.0/64)}, v{ST+1}
    v_mul_f32 v{BASE}, v{T2}, v{EPS}
    s_waitcnt lgkmcnt(0)
    s_barrier""")
    a(f"v_add_u32 v{T0}, {LW}, v{T0}")
    for f in range(28):
        a(f"ds_read_b128 {a4(4*f)}, v{T0} offset:{f*1024}")
    for ks in range(2):
        for h in range(2):
            for i in range(4):
                k = 32 * ks + 4 * h + i
                if k == 0: a(f"v_mov_b32 v{TH+i}, v{BASE}")
                else: a(f"v_fmamk_f32 v{TH+i}, v{EPS}, {fl(float(k))}, v{BASE}")
            for i in range(4):
                a(f"v_sin_f32 v{TH+4+i}, v{TH+i}")
                a(f"v_cos_f32 v{TH+i}, v{TH+i}")
            for i in range(2):
                a(f"v_cvt_pk_f16_f32 v{WC+4*ks+2*h+i}, v{TH+2*i}, v{TH+2*i+1}")
                a(f"v_cvt_pk_f16_f32 v{WSN+4*ks+2*h+i}, v{TH+4+2*i}, v{TH+4+2*i+1}")
    for i in range(8): a(f"v_xor_b32 v{WNS+i}, 0x80008000, v{WSN+i}")
    for i in range(4): a(f"v_mov_b32 v{ONE+i}, 0x3f803f80")
    a(f"""s_lshl_b32 s25, s20, 4
    v_add_u32 v{ST}, s25, v{N}
    v_mul_u32_u24 v{VXR}, {PX}, v{ST}
    v_lshl_add_u32 v{VXR}, v{G}, 4, v{VXR}
    v_mul_u32_u24 v{VFW}, {PF}, v{ST}
    v_lshl_add_u32 v{VFW}, v{G}, 3, v{VFW}
    v_add_u32 v{VFW}, {LF}, v{VFW}
    v_lshrrev_b32 v{ST}, 2, v{N}
    v_lshl_add_u32 v{ST}, v{G}, 3, v{ST}
    v_mul_u32_u24 v{VFR}, {PF}, v{ST}
    v_and_b32 v{ST}, 3, v{N}
    v_lshl_add_u32 v{VFR}, v{ST}, 3, v{VFR}
    v_add_u32 v{VFR}, {LF}, v{VFR}
    s_lshl_b32 s26, s21, 11
    s_lshl_b32 s27, s22, 8
    s_add_u32 s26, s26, s27""")
    for r in range(4):
        a(f"s_mov_b32 s{30+2*r}, {hex(((1<<r)|(1<<(20+r))) & 0xffffffff)}")
        a(f"s_mov_b32 s{31+2*r}, {hex(((1<<(8+r))|(1<<(28+r))) & 0xffffffff)}")
    a("s_mov_b32 s38, 0\ns_mov_b32 s39, 0xffff0000")
    a("s_waitcnt lgkmcnt(0)")
    for j in range(7):
        for T in range(4):
            c = "0" if j == 0 else v4(CS+4*T)
            a(f"v_mfma_f32_16x16x32_bf16 {v4(CS+4*T)}, {a4(4*(7*T+j))}, {v4(ONE)}, {c}")
    for T in range(4):
        for r in range(4):
            if r & 1: a(f"v_mov_b32 v{CS+4*T+r}, 0")
            else: a(f"v_add_f32 v{CS+4*T+r}, v{CS+4*T+r}, v{CS+4*T+r}")
    stamp(a, 2)
    a("s_waitcnt vmcnt(0)")
    stamp(a, 3)
    order = []
    for j in range(7): order += [j, j + 7]
    for k in order: a(f"ds_read_b128 {v4(XF+4*k)}, v{VXR} offset:{64*k}")
    for idx, k in enumerate(order):
        a(f"s_waitcnt lgkmcnt({13-idx})")
        j = k % 7; A = AC1 if k < 7 else AC2
        gc = "0" if idx == 0 else v4(GR)
        a(f"v_mfma_f32_16x16x32_bf16 {v4(GR)}, {v4(XF+4*k)}, {v4(XF+4*k)}, {gc}")
        for T in range(4):
            c = "0" if j == 0 else v4(A+4*T)
            a(f"v_mfma_f32_16x16x32_bf16 {v4(A+4*T)}, {a4(4*(7*T+j))}, {v4(XF+4*k)}, {c}")
    stamp(a, 4)
    Q, S, M = ST, ST+1, ST+2
    RS = ST + 4
    a(f"v_mov_b32 v{Q}, 0")
    for r in range(4): a(f"v_cndmask_b32 v{Q}, v{Q}, v{GR+r}, s[{30+2*r}:{31+2*r}]")
    for T in (1, 0, 2, 3):
        for p in range(2):
            a(f"v_pk_add_f32 {v2(AC1+4*T+2*p)}, {v2(AC1+4*T+2*p)}, {v2(AC2+4*T+2*p)} neg_hi:[0,1]")
        if T == 1: a(f"v_cndmask_b32 v{S}, 0, v{AC1+4+2}, s[38:39]")
    a(f"""v_permlane32_swap_b32 v{Q}, v{S}
    v_add_f32 v{Q}, v{Q}, v{S}
    v_mov_b32 v{S}, v{Q}
    v_permlane16_swap_b32 v{Q}, v{S}
    v_add_f32 v{Q}, v{Q}, v{S}
    v_mov_b32 v{S}, v{Q}
    v_permlane32_swap_b32 v{Q}, v{S}
    v_mul_f32 v{M}, {fl(-1.0/448)}, v{S}
    v_mul_f32 v{Q}, {fl(1.0/448)}, v{Q}
    v_fma_f32 v{Q}, -v{M}, v{M}, v{Q}
    v_max_f32 v{Q}, 0, v{Q}""")
    sd_chain(a, Q, RS)
    a(f"v_rcp_f32 v{RS}, v{RS}")
    for T in range(4):
        for p in range(2):
            x = AC1 + 4*T + 2*p
            a(f"v_pk_fma_f32 {v2(x)}, {v2(CS+4*T+2*p)}, {v2(M)}, {v2(x)} op_sel_hi:[1,0,1]")
    for T in range(4):
        for p in range(2):
            x = AC1 + 4*T + 2*p
            a(f"v_pk_mul_f32 {v2(x)}, {v2(x)}, {v2(RS)} op_sel_hi:[1,0]")
        for p in range(2):
            x = AC1 + 4*T + 2*p
            a(f"v_cvt_pk_f16_f32 v{AC2+2*T+p}, v{x}, v{x+1}")
        a(f"ds_write_b64 v{VFW}, {v2(AC2+2*T)} offset:{32*T}")
    a("s_waitcnt lgkmcnt(0)\ns_barrier")
    stamp(a, 5)
    FA = XF
    for ks in range(2):
        for T in range(4):
            for h in range(2):
                a(f"ds_read_b64_tr_b16 {v2(FA+(2*T+ks)*4+2*h)}, v{VFR} offset:{(32*ks+4*h)*PF+32*T}")
    UR = AC1; UI = AC1 + 8
    for ks in range(2):
        a(f"s_waitcnt lgkmcnt({8 if ks == 0 else 0})")
        for T in range(2):
            fr = v4(FA+(2*T+ks)*4); fi = v4(FA+(2*(T+2)+ks)*4)
            c = "0" if ks == 0 else v4(UR+4*T)
            a(f"v_mfma_f32_16x16x32_f16 {v4(UR+4*T)}, {fr}, {v4(WC+4*ks)}, {c}")
            c = "0" if ks == 0 else v4(UI+4*T)
            a(f"v_mfma_f32_16x16x32_f16 {v4(UI+4*T)}, {fi}, {v4(WC+4*ks)}, {c}")
        for T in range(2):
            fr = v4(FA+(2*T+ks)*4); fi = v4(FA+(2*(T+2)+ks)*4)
            a(f"v_mfma_f32_16x16x32_f16 {v4(UR+4*T)}, {fi}, {v4(WSN+4*ks)}, {v4(UR+4*T)}")
            a(f"v_mfma_f32_16x16x32_f16 {v4(UI+4*T)}, {fr}, {v4(WNS+4*ks)}, {v4(UI+4*T)}")
    for T in range(2):
        for r in range(4):
            a(f"v_cvt_pk_f16_f32 v{AC2+4*T+r}, v{UR+4*T+r}, v{UI+4*T+r}")
        a(f"buffer_store_dwordx4 {v4(AC2+4*T)}, v{VU}, s[12:15], s26 offen offset:{128*T}")
    dump_stamps(a, 0, 6)
    a("LA_end:\ns_endpgm")
    return dict(vgpr=168, agpr=112, lds=LF + 64*PF, threads=256, grid=256)

def reduce3(a, A, B, C, T, sA, sB, sC):
    a(f"""v_mov_b32 v{T}, v{C}
    v_permlane32_swap_b32 v{A}, v{B}
    v_permlane32_swap_b32 v{C}, v{T}
    v_add_f32 v{A}, v{A}, v{B}
    v_add_f32 v{C}, v{C}, v{T}
    v_permlane16_swap_b32 v{A}, v{C}
    v_add_f32 v{A}, v{A}, v{C}""")
    for k in (8, 4, 2, 1):
        a(f"v_add_f32_dpp v{A}, v{A}, v{A} row_ror:{k} row_mask:0xf bank_mask:0xf")
    a(f"""v_readlane_b32 s{sA}, v{A}, 0
    v_readlane_b32 s{sC}, v{A}, 16
    v_readlane_b32 s{sB}, v{A}, 32""")

def unpack8(a, dst, src):
    for i in range(4):
        a(f"v_lshlrev_b32 v{dst+2*i}, 16, v{src+i}")
        a(f"v_and_b32 v{dst+2*i+1}, 0xffff0000, v{src+i}")

def phaseB(a):
    LANE, N, G, T0, T1, T2 = 1, 2, 3, 4, 5, 6
    EPS, BASE = 8, 9
    VL = 10; VY = 11
    R = 12
    AF = 44
    ACC = 52
    XR = 68; WR = 72
    XU = 76; WU = 84
    AD = 92
    TH = 96
    S1, S2, S3 = 104, 106, 108
    stamp(a, 0)
    a("""s_cmp_ge_u32 s2, 256
    s_cbranch_scc1 LB_end
    s_load_dwordx2 s[4:5], s[0:1], 0
    s_load_dwordx2 s[6:7], s[0:1], 96
    s_load_dwordx2 s[40:41], s[0:1], 48
    s_load_dwordx2 s[42:43], s[0:1], 80""")
    a(f"""v_and_b32 v{LANE}, 63, v0
    v_lshrrev_b32 v{T0}, 6, v0
    v_and_b32 v{N}, 15, v0
    v_readfirstlane_b32 s20, v{T0}
    v_bfe_u32 v{G}, v0, 4, 2
    s_and_b32 s21, s2, 7
    s_lshr_b32 s22, s2, 6
    s_lshl_b32 s22, s22, 3
    s_or_b32 s21, s21, s22          ; p
    s_bfe_u32 s22, s2, 0x10003      ; which
    s_bfe_u32 s23, s2, 0x20004      ; q
    s_sub_u32 s24, 64, s21
    s_cmp_eq_u32 s21, 0
    s_cselect_b32 s24, 32, s24
    s_cselect_b32 s25, 0, 1
    s_xor_b32 s25, s25, s22         ; hi_which
    s_cmp_eq_u32 s22, 0
    s_cselect_b32 s24, s21, s24     ; t2
    s_lshl_b32 s26, s23, 9
    s_add_u32 s24, s24, s26         ; t0 = t2 + 512 q
    s_lshl_b32 s26, s20, 6
    s_add_u32 s26, s26, s24
    s_mul_i32 s27, s26, 896
    s_lshl_b32 s28, s21, 16
    s_lshl_b32 s29, s20, 8
    s_add_u32 s28, s28, s29
    s_add_u32 s29, s28, 4096
    s_add_u32 s30, s28, 32768
    s_add_u32 s31, s28, 36864
    v_lshlrev_b32 v{T0}, 13, v{G}
    v_lshl_add_u32 v{T0}, v{N}, 4, v{T0}
    v_lshlrev_b32 v{VL}, 4, v{LANE}
    s_waitcnt lgkmcnt(0)""")
    srd(a, 12, 6, WS_SIZE)
    for ks in range(2):
        for i in range(4):
            a(f"buffer_load_dwordx4 {v4(R+16*ks+4*i)}, v{T0}, s[12:15], s{28+2*ks+(i>>1)} offen offset:{2048*(i&1)}")
    srd(a, 8, 4, XB)
    srd(a, 16, 40, 896)
    a(f"buffer_load_dwordx4 {v4(WR)}, v{VL}, s[16:19], 0 offen")
    a(f"buffer_load_dwordx4 {v4(XR)}, v{VL}, s[8:11], s27 offen")
    srd(a, 44, 42, XB)
    stamp(a, 1)
    a(f"""v_and_b32 v{T0}, 7, v{N}
    v_lshlrev_b32 v{T0}, 6, v{T0}
    v_add_u32 v{T0}, s24, v{T0}
    v_cvt_f32_u32 v{T0}, v{T0}
    v_cmp_gt_u32 vcc, 8, v{N}
    v_mul_f32 v{EPS}, {fl(1.0/2048)}, v{T0}
    v_lshlrev_b32 v{T1}, 2, v{G}
    v_cndmask_b32 v{EPS}, -v{EPS}, v{EPS}, vcc
    v_cvt_f32_u32 v{T1}, v{T1}
    v_mul_f32 v{BASE}, v{T1}, v{EPS}""")
    for ks in range(2):
        for i in range(4):
            k = 16*ks + i
            if k == 0: a(f"v_mov_b32 v{TH+i}, v{BASE}")
            else: a(f"v_fmamk_f32 v{TH+i}, v{EPS}, {fl(float(k))}, v{BASE}")
        for i in range(4):
            a(f"v_sin_f32 v{TH+4+i}, v{TH+i}")
            a(f"v_cos_f32 v{TH+i}, v{TH+i}")
        for i in range(4):
            a(f"v_cvt_pk_f16_f32 v{AF+4*ks+i}, v{TH+i}, v{TH+4+i}")
    a(f"""v_lshrrev_b32 v{T0}, 3, v{N}
    v_and_b32 v{T1}, 3, v{N}
    v_lshlrev_b32 v{T1}, 2, v{T1}
    v_lshl_add_u32 v{T0}, v{T0}, 4, v{T1}       ; slot0
    s_mul_i32 s32, s20, 28
    v_add_u32 v{T1}, s32, v{T0}                 ; e0
    v_sub_u32 v{T2}, 448, v{T1}
    v_cmp_gt_u32 s[34:35], 2, v{G}
    v_mov_b32 v{TH}, s22
    v_mov_b32 v{TH+1}, s25
    v_cndmask_b32 v{T2}, v{T2}, v{T1}, s[34:35] ; col0
    v_cndmask_b32 v{TH}, v{TH+1}, v{TH}, s[34:35]
    v_bfe_u32 v{TH+1}, v{N}, 2, 1
    v_cmp_eq_u32 s[36:37], v{TH}, v{TH+1}
    v_and_b32 v{TH+2}, 1, v{G}
    v_mul_u32_u24 v{TH+2}, {4*PY}, v{TH+2}
    v_add_lshl_u32 v{AD}, v{TH+2}, v{T2}, 2
    v_mov_b32 v{TH+3}, -4
    v_cndmask_b32 v{TH+3}, v{TH+3}, 4, s[34:35]
    v_add_u32 v{AD+1}, v{AD}, v{TH+3}
    v_add_u32 v{AD+2}, v{AD+1}, v{TH+3}
    v_add_u32 v{AD+3}, v{AD+2}, v{TH+3}
    v_cmp_gt_u32 s[50:51], 28, v{T0}
    s_and_b64 s[50:51], s[50:51], s[36:37]
    v_cmp_eq_u32 s[48:49], 0, v{T1}
    s_andn2_b64 s[48:49], s[48:49], s[34:35]
    s_andn2_b64 s[48:49], s[50:51], s[48:49]
    v_mov_b32 v{TH}, 224
    v_cmp_eq_u32 s[52:53], v{TH}, v{T1}
    s_and_b64 s[52:53], s[52:53], s[34:35]
    s_and_b64 s[52:53], s[52:53], s[36:37]
    s_or_b64 s[48:49], s[48:49], s[52:53]
    s_mul_i32 s33, s20, {PY*4}
    v_lshlrev_b32 v{VY}, 5, v{LANE}
    v_add_u32 v{VY}, s33, v{VY}""")
    stamp(a, 2)
    a("s_waitcnt vmcnt(1)")
    stamp(a, 3)
    unpack8(a, WU, WR)
    a(f"""v_pk_add_f32 {v2(S1)}, {v2(WU)}, {v2(WU+2)}
    v_pk_add_f32 {v2(S2)}, {v2(WU+4)}, {v2(WU+6)}
    v_pk_add_f32 {v2(S1)}, {v2(S1)}, {v2(S2)}
    v_add_f32 v{S1}, v{S1}, v{S1+1}
    v_mov_b32 v{S2}, 0
    v_mov_b32 v{S3}, 0""")
    reduce3(a, S1, S2, S3, T0, 54, 55, 56)
    for ks in range(2):
        for i in range(4):
            for j in range(i+1, 4):
                a(f"v_swap_b32 v{R+16*ks+4*i+j}, v{R+16*ks+4*j+i}")
    for ks in range(2):
        for j in range(4):
            c = "0" if ks == 0 else v4(ACC+4*j)
            a(f"v_mfma_f32_16x16x32_f16 {v4(ACC+4*j)}, {v4(AF+4*ks)}, {v4(R+16*ks+4*j)}, {c}")
    a("s_waitcnt vmcnt(0)")
    unpack8(a, XU, XR)
    for k in (S1, S1+1, S2, S2+1, S3, S3+1): a(f"v_mov_b32 v{k}, 0")
    for j in range(4):
        if j < 2: a(f"s_mov_b64 exec, s[{48+2*j}:{49+2*j}]")
        for r in range(4):
            a(f"ds_write_b32 v{AD+j}, v{ACC+4*j+r} offset:{r*PY*4}")
    a("""s_mov_b32 exec_lo, -1
    s_mov_b32 exec_hi, 0x00ffffff
    s_waitcnt lgkmcnt(0)
    s_barrier""")
    H = R
    stamp(a, 4)
    a(f"ds_read_b128 {v4(H)}, v{VY}\nds_read_b128 {v4(H+4)}, v{VY} offset:16")
    for hf in range(2):
        a(f"s_waitcnt lgkmcnt({1-hf})")
        for p in range(2):
            x = 4*hf + 2*p
            a(f"v_pk_add_f32 {v2(H+x)}, {v2(H+x)}, {v2(XU+x)}")
        for p in range(2):
            x = 4*hf + 2*p
            a(f"v_pk_add_f32 {v2(S1)}, {v2(S1)}, {v2(H+x)}")
            a(f"v_pk_fma_f32 {v2(S2)}, {v2(H+x)}, {v2(H+x)}, {v2(S2)}")
            a(f"v_pk_fma_f32 {v2(S3)}, {v2(H+x)}, {v2(WU+x)}, {v2(S3)}")
    a(f"""s_mov_b32 exec_hi, -1
    v_add_f32 v{S1}, v{S1}, v{S1+1}
    v_add_f32 v{S2}, v{S2}, v{S2+1}
    v_add_f32 v{S3}, v{S3}, v{S3+1}""")
    reduce3(a, S1, S2, S3, T0, 57, 58, 59)
    M, V, SD, RS, C1, C0, KEY = TH, TH+1, TH+2, TH+3, TH+4, TH+6, T1
    a(f"""v_mov_b32 v{V}, {fl(1.0/448)}
    v_mul_f32 v{M}, s57, v{V}
    v_mul_f32 v{V}, s58, v{V}
    v_fma_f32 v{V}, -v{M}, v{M}, v{V}
    v_max_f32 v{V}, 0, v{V}""")
    sd_chain(a, V, SD)
    a(f"""v_rcp_f32 v{RS}, v{SD}
    v_mov_b32 v{KEY}, s59
    v_fma_f32 v{KEY}, -v{M}, s54, v{KEY}
    v_add_f32 v{C1}, 1.0, v{RS}
    v_mul_f32 v{C0}, -v{M}, v{RS}
    v_mul_f32 v{KEY}, v{KEY}, v{RS}""")
    for p in range(4):
        a(f"v_pk_fma_f32 {v2(H+2*p)}, {v2(H+2*p)}, {v2(C1)}, {v2(C0)} op_sel_hi:[1,0,0]")
    for p in range(4):
        a(f"v_cvt_pk_bf16_f32 v{XR+p}, v{H+2*p}, v{H+2*p+1}")
    a(f"""s_mov_b32 exec_hi, 0x00ffffff
    buffer_store_dwordx4 {v4(XR)}, v{VL}, s[44:47], s27 offen
    v_cvt_pk_bf16_f32 v{KEY}, v{KEY}, v{KEY}
    v_add_f32 v{SD}, 1.0, v{SD}
    v_ashrrev_i32 v{T0}, 31, v{KEY}
    v_rcp_f32 v{M+1}, v{SD}
    v_or_b32 v{T0}, 0x80000000, v{T0}
    v_xor_b32 v{KEY}, v{KEY}, v{T0}
    s_sub_u32 s32, 2047, s26
    v_and_b32 v{KEY}, 0xffff0000, v{KEY}
    v_or_b32 v{KEY}, s32, v{KEY}
    s_mov_b64 exec, 1
    s_lshl_b32 s33, s26, 2
    s_add_u32 s33, s33, {WS_KEYS}
    s_lshl_b32 s32, s26, 3
    s_add_u32 s32, s32, {WS_STATS}
    buffer_store_dwordx2 {v2(M)}, v{VL}, s[12:15], s32 offen
    buffer_store_dword v{KEY}, v{VL}, s[12:15], s33 offen""")
    dump_stamps(a, 1, 5)
    a("LB_end:\ns_endpgm")
    return dict(vgpr=112, agpr=0, lds=8*PY*4, threads=512, grid=256)

QP = {1: "quad_perm:[1,0,3,2]", 2: "quad_perm:[2,3,0,1]", 3: "quad_perm:[3,2,1,0]", 7: "row_half_mirror"}
def ce(a, xs, tmp, mask, L):
    if mask == 4:
        for k, x in enumerate(xs):
            a(f"v_max_u32_dpp v{tmp+k}, v{x}, v{x} row_shl:4 row_mask:0xf bank_mask:0x5")
            a(f"v_min_u32_dpp v{tmp+k}, v{x}, v{x} row_shr:4 row_mask:0xf bank_mask:0xa")
        for k, x in enumerate(xs):
            a(f"v_mov_b32 v{x}, v{tmp+k}")
        return
    top = 1 << (mask.bit_length() - 1)
    for k, x in enumerate(xs):
        a(f"v_mov_b32_dpp v{tmp+k}, v{x} {QP[mask]} row_mask:0xf bank_mask:0xf")
    for k, x in enumerate(xs):
        a(f"v_med3_u32 v{x}, v{x}, v{tmp+k}, v{L[top]}")

def clean(a, xs, tmp, L):
    for m in (4, 2, 1): ce(a, xs, tmp, m, L)

def wave_merge(a, x, tmp, L):
    a(f"v_max_u32_dpp v{x}, v{x}, v{x} row_mirror row_mask:0xf bank_mask:0xf")
    clean(a, [x], tmp, L)
    for sw in ("v_permlane16_swap_b32", "v_permlane32_swap_b32"):
        a(f"v_mov_b32 v{tmp}, v{x}")
        a(f"{sw} v{x}, v{tmp}")
        a(f"v_max_u32_dpp v{x}, v{tmp}, v{x} row_half_mirror row_mask:0xf bank_mask:0xf")
        clean(a, [x], tmp, L)

def lim_regs(a, L, lane, t):
    for b, r in L.items():
        a(f"v_and_b32 v{t}, {b}, v{lane}")
        a(f"v_cmp_eq_u32 vcc, 0, v{t}")
        a(f"v_cndmask_b32 v{r}, 0, -1, vcc")

def select8(a, K, tmp, L, lds_w, lds_r):
    xs = [K, K+1, K+2, K+3]
    for m in (1, 3, 1, 7, 2, 1): ce(a, xs, tmp, m, L)
    a(f"v_max_u32_dpp v{K}, v{K+1}, v{K} row_half_mirror row_mask:0xf bank_mask:0xf")
    a(f"v_max_u32_dpp v{K+2}, v{K+3}, v{K+2} row_half_mirror row_mask:0xf bank_mask:0xf")
    clean(a, [K, K+2], tmp, L)
    a(f"v_max_u32_dpp v{K}, v{K+2}, v{K} row_half_mirror row_mask:0xf bank_mask:0xf")
    clean(a, [K], tmp, L)
    wave_merge(a, K, tmp, L)
    a(f"""s_mov_b64 exec, 0xff
    ds_write_b32 v{lds_w}, v{K}
    s_mov_b64 exec, -1
    s_waitcnt lgkmcnt(0)
    s_barrier
    ds_read_b32 v{K}, v{lds_r}
    s_waitcnt lgkmcnt(0)""")
    wave_merge(a, K, tmp, L)

def sigmoid_mul(a, d, x, y, t):
    a(f"""v_mul_f32 v{t}, {fl(-1.4426950408889634)}, v{x}
    v_exp_f32 v{t}, v{t}
    v_add_f32 v{t}, 1.0, v{t}
    v_rcp_f32 v{t}, v{t}
    v_mul_f32 v{d}, {y}, v{t}""")

def phaseC1(a):
    LG = 0; LU = 7168; LXS = 14336; LS = LXS + 8*PX
    LANE, N, G, T0, T1, T2 = 1, 2, 3, 4, 5, 6
    VL = 7; K = 8; TMP = 12; L = {1: 16, 2: 17, 4: 18}; SW = 19; SR = 20
    XR = 24; ST = 28; XU = 32; WF = 40; XF = 96; ACC = 152
    stamp(a, 0)
    a("""s_cmp_ge_u32 s2, 224
    s_cbranch_scc1 LC_end
    s_load_dwordx2 s[6:7], s[0:1], 96
    s_load_dwordx4 s[40:43], s[0:1], 56
    s_load_dwordx2 s[4:5], s[0:1], 80""")
    a(f"""v_and_b32 v{LANE}, 63, v0
    v_lshrrev_b32 v{T0}, 6, v0
    v_and_b32 v{N}, 15, v0
    v_readfirstlane_b32 s20, v{T0}
    v_bfe_u32 v{G}, v0, 4, 2
    v_lshlrev_b32 v{T1}, 4, v0
    v_lshlrev_b32 v{VL}, 4, v{LANE}
    s_and_b32 s21, s2, 7
    s_mul_i32 s21, s21, 28
    s_lshr_b32 s22, s2, 3
    s_add_u32 s21, s21, s22          ; f group
    v_mul_u32_u24 v{T2}, 3584, v0
    s_lshl_b32 s22, s21, 4
    s_lshl_b32 s23, s20, 10
    s_waitcnt lgkmcnt(0)""")
    srd(a, 12, 6, WS_SIZE)
    a(f"s_mov_b32 s24, {WS_KEYS}")
    a(f"buffer_load_dwordx4 {v4(K)}, v{T1}, s[12:15], s24 offen")
    srd(a, 16, 40, 448*3584)
    srd(a, 44, 42, 448*3584)
    srd(a, 8, 4, XB)
    a(f"""s_cmp_eq_u32 s20, 7
    s_cbranch_scc1 LC_nodma
    s_mov_b32 m0, s23
    s_add_u32 s23, s23, {LU}
    buffer_load_dwordx4 v{T2}, s[16:19], s22 offen lds
    s_mov_b32 m0, s23
    s_nop 0
    buffer_load_dwordx4 v{T2}, s[44:47], s22 offen lds
    LC_nodma:""")
    lim_regs(a, L, LANE, T0)
    a(f"""s_lshl_b32 s25, s20, 5
    s_add_u32 s25, s25, {LS}
    v_lshlrev_b32 v{SR}, 2, v{LANE}
    v_add_u32 v{SW}, s25, v{SR}
    v_add_u32 v{SR}, {LS}, v{SR}""")
    stamp(a, 1)
    a("s_waitcnt vmcnt(0)")
    stamp(a, 2)
    select8(a, K, TMP, L, SW, SR)
    stamp(a, 3)
    a(f"""v_readlane_b32 s26, v{K}, s20
    s_and_b32 s26, s26, 0x7ff
    s_sub_u32 s26, 2047, s26
    s_mul_i32 s27, s26, 896
    s_lshl_b32 s28, s26, 3
    s_add_u32 s28, s28, {WS_STATS}
    v_mov_b32 v{T0}, 0
    buffer_load_dwordx4 {v4(XR)}, v{VL}, s[8:11], s27 offen
    buffer_load_dwordx2 {v2(ST)}, v{T0}, s[12:15], s28 offen
    s_mul_i32 s29, s20, {PX}
    s_add_u32 s29, s29, {LXS}
    v_add_u32 v{T2}, s29, v{VL}
    s_cmp_lg_u32 s20, 0
    s_cbranch_scc1 LC_now""")
    a(f"""v_lshrrev_b32 v{T0}, 2, v{N}
    v_lshl_add_u32 v{T0}, v{G}, 3, v{T0}
    v_lshlrev_b32 v{T0}, 4, v{T0}
    v_and_b32 v{T1}, 1, v{N}
    v_lshl_add_u32 v{T0}, v{T1}, 3, v{T0}
    v_bfe_u32 v{T1}, v{N}, 1, 1
    v_mul_u32_u24 v{T1}, {LU}, v{T1}
    v_add_u32 v{T0}, v{T0}, v{T1}""")
    for j in range(14):
        for h in range(2):
            a(f"ds_read_b64_tr_b16 {v2(WF+4*j+2*h)}, v{T0} offset:{(32*j+4*h)*16}")
    a(f"""s_cmp_lg_u32 s2, 0
    s_cbranch_scc1 LC_now
    s_mov_b64 exec, 0xff
    v_lshlrev_b32 v{T0}, 2, v{LANE}
    s_mov_b32 s29, {WS_SEL}
    buffer_store_dword v{K}, v{T0}, s[12:15], s29 offen
    s_mov_b64 exec, -1
    LC_now:
    s_waitcnt vmcnt(0)""")
    stamp(a, 4)
    unpack8(a, XU, XR)
    a(f"v_mul_f32 v{ST}, -v{ST}, v{ST+1}")
    a(f"v_mov_b32 v{ST+2}, v{ST+1}")
    for p in range(4):
        a(f"v_pk_fma_f32 {v2(XU+2*p)}, {v2(XU+2*p)}, {v2(ST+2)}, {v2(ST)} op_sel_hi:[1,0,0]")
    for p in range(4):
        a(f"v_cvt_pk_bf16_f32 v{XR+p}, v{XU+2*p}, v{XU+2*p+1}")
    a(f"""s_mov_b32 exec_hi, 0x00ffffff
    ds_write_b128 v{T2}, {v4(XR)}
    s_mov_b32 exec_hi, -1
    s_waitcnt lgkmcnt(0)
    s_barrier
    s_cmp_lg_u32 s20, 0
    s_cbranch_scc1 LC_end
    v_and_b32 v{T0}, 7, v{N}
    v_mul_u32_u24 v{T0}, {PX}, v{T0}
    v_lshl_add_u32 v{T0}, v{G}, 4, v{T0}""")
    stamp(a, 5)
    for j in range(14):
        a(f"ds_read_b128 {v4(XF+4*j)}, v{T0} offset:{LXS+64*j}")
    for j in range(14):
        a(f"s_waitcnt lgkmcnt({13-j})")
        A = ACC + 4*(j & 1)
        c = "0" if j < 2 else v4(A)
        a(f"v_mfma_f32_16x16x32_bf16 {v4(A)}, {v4(WF+4*j)}, {v4(XF+4*j)}, {c}")
    a(f"""v_lshlrev_b32 v{T0}, 4, v{N}
    v_lshl_add_u32 v{T0}, v{G}, 3, v{T0}
    s_lshl_b32 s22, s21, 7
    s_add_u32 s22, s22, {WS_ACT}""")
    for p in range(2):
        a(f"v_pk_add_f32 {v2(ACC+2*p)}, {v2(ACC+2*p)}, {v2(ACC+4+2*p)}")
    for r in range(4): rbf(a, ACC+r, ACC+r)
    for r in range(4): a(f"v_mov_b32 v{ACC+4+r}, v{ACC+r}")
    for r in range(4): a(f"v_permlane32_swap_b32 v{ACC+r}, v{ACC+4+r}")
    for r in range(4): a(f"v_mul_f32 v{XU+r}, {fl(-1.4426950408889634)}, v{ACC+r}")
    for r in range(4): a(f"v_exp_f32 v{XU+r}, v{XU+r}")
    for r in range(4): a(f"v_add_f32 v{XU+r}, 1.0, v{XU+r}")
    for r in range(4): a(f"v_rcp_f32 v{XU+r}, v{XU+r}")
    for r in range(4): a(f"v_mul_f32 v{ACC+r}, v{ACC+r}, v{XU+r}")
    for r in range(4): rbf(a, ACC+r, ACC+r)
    for r in range(4): a(f"v_mul_f32 v{ACC+r}, v{ACC+r}, v{ACC+4+r}")
    for p in range(2): a(f"v_cvt_pk_bf16_f32 v{XR+p}, v{ACC+2*p}, v{ACC+2*p+1}")
    a(f"""s_mov_b32 exec_lo, 0x00ff00ff
    s_mov_b32 exec_hi, 0
    buffer_store_dwordx2 {v2(XR)}, v{T0}, s[12:15], s22 offen""")
    dump_stamps(a, 2, 6)
    a("LC_end:\ns_endpgm")
    return dict(vgpr=160, agpr=0, lds=LS + 256, threads=512, grid=224)

def phaseC2(a):
    LD = 0; LR = 1792*32
    LANE, N, G, T0, T1, T2 = 1, 2, 3, 4, 5, 6
    KEY = 7; OA = 8; OR = 10; AF = 12; WF = 40; ACC = 68; RD = 76; SG = 108
    stamp(a, 0)
    a("""s_cmp_ge_u32 s2, 28
    s_cbranch_scc1 LD_end
    s_load_dwordx2 s[6:7], s[0:1], 96
    s_load_dwordx4 s[40:43], s[0:1], 72""")
    a(f"""v_and_b32 v{LANE}, 63, v0
    v_lshrrev_b32 v{T0}, 6, v0
    v_and_b32 v{N}, 15, v0
    v_readfirstlane_b32 s20, v{T0}
    v_bfe_u32 v{G}, v0, 4, 2
    v_lshrrev_b32 v{T0}, 1, v{LANE}
    v_mul_u32_u24 v{T0}, 896, v{T0}
    v_and_b32 v{T1}, 1, v{LANE}
    v_lshl_add_u32 v{T0}, v{T1}, 4, v{T0}
    s_mul_i32 s22, s20, {224*896}
    s_lshl_b32 s23, s2, 5
    s_add_u32 s22, s22, s23
    s_mul_i32 s24, s20, 7168
    v_and_b32 v{T1}, 7, v{N}
    v_lshlrev_b32 v{T2}, 2, v{T1}
    v_lshlrev_b32 v{T1}, 4, v{T1}
    v_lshl_add_u32 v{T1}, v{G}, 7, v{T1}
    s_mul_i32 s25, s20, {7*512}
    s_add_u32 s25, s25, {WS_ACT}
    s_mov_b32 s26, {WS_SEL}
    s_waitcnt lgkmcnt(0)""")
    srd(a, 12, 6, WS_SIZE)
    srd(a, 16, 40, 1792*896)
    srd(a, 8, 42, XB)
    a(f"buffer_load_dword v{KEY}, v{T2}, s[12:15], s26 offen")
    for j in range(7):
        a(f"buffer_load_dwordx4 {v4(AF+4*j)}, v{T1}, s[12:15], s25 offen offset:{512*j}")
    for j in range(7):
        a(f"s_mov_b32 m0, s24")
        a(f"s_add_u32 s24, s24, 1024")
        a(f"buffer_load_dwordx4 v{T0}, s[16:19], s22 offen lds")
        a(f"s_add_u32 s22, s22, {32*896}")
    stamp(a, 1)
    a(f"""s_waitcnt vmcnt(14)
    v_and_b32 v{OA}, 0x7ff, v{KEY}
    v_sub_u32 v{OA}, 2047, v{OA}
    v_mul_u32_u24 v{OA}, 896, v{OA}
    v_lshl_add_u32 v{OA}, v{G}, 3, v{OA}
    buffer_load_dwordx2 {v2(OR)}, v{OA}, s[8:11], s23 offen
    v_ashrrev_i32 v{T2}, 31, v{KEY}
    v_not_b32 v{T2}, v{T2}
    v_or_b32 v{T2}, 0x80000000, v{T2}
    v_xor_b32 v{KEY}, v{KEY}, v{T2}
    v_and_b32 v{KEY}, 0xffff0000, v{KEY}""")
    sigmoid_mul(a, SG, KEY, "1.0", T2)
    rbf(a, SG, SG)
    a(f"""v_lshrrev_b32 v{T0}, 2, v{N}
    v_lshl_add_u32 v{T0}, v{G}, 3, v{T0}
    v_lshlrev_b32 v{T0}, 5, v{T0}
    v_and_b32 v{T1}, 3, v{N}
    v_lshl_add_u32 v{T0}, v{T1}, 3, v{T0}
    s_mul_i32 s24, s20, 7168
    v_add_u32 v{T0}, s24, v{T0}
    v_lshlrev_b32 v{T1}, 4, v0
    v_add_u32 v{T1}, {LR}, v{T1}
    s_waitcnt vmcnt(1)""")
    stamp(a, 2)
    for j in range(7):
        for h in range(2):
            a(f"ds_read_b64_tr_b16 {v2(WF+4*j+2*h)}, v{T0} offset:{(32*j+4*h)*32}")
    for j in range(7):
        a(f"s_waitcnt lgkmcnt({12-2*j})")
        c = "0" if j == 0 else v4(ACC)
        a(f"v_mfma_f32_16x16x32_bf16 {v4(ACC)}, {v4(WF+4*j)}, {v4(AF+4*j)}, {c}")
    a(f"""ds_write_b128 v{T1}, {v4(ACC)}
    s_waitcnt lgkmcnt(0)
    s_barrier
    s_cmp_lg_u32 s20, 0
    s_cbranch_scc1 LD_end""")
    stamp(a, 3)
    for w in range(1, 8):
        a(f"ds_read_b128 {v4(RD+4*w)}, v{T1} offset:{1024*w}")
    for w in range(1, 8):
        a(f"s_waitcnt lgkmcnt({7-w})")
        for p in range(2):
            a(f"v_pk_add_f32 {v2(ACC+2*p)}, {v2(ACC+2*p)}, {v2(RD+4*w+2*p)}")
    for r in range(4): rbf(a, ACC+r, ACC+r)
    for r in range(4): a(f"v_mul_f32 v{ACC+r}, v{ACC+r}, v{SG}")
    for r in range(4): rbf(a, ACC+r, ACC+r)
    a("s_waitcnt vmcnt(0)")
    for i in range(2):
        a(f"v_lshlrev_b32 v{RD+2*i}, 16, v{OR+i}")
        a(f"v_and_b32 v{RD+2*i+1}, 0xffff0000, v{OR+i}")
    for p in range(2):
        a(f"v_pk_add_f32 {v2(ACC+2*p)}, {v2(ACC+2*p)}, {v2(RD+2*p)}")
    for p in range(2): a(f"v_cvt_pk_bf16_f32 v{OR+p}, v{ACC+2*p}, v{ACC+2*p+1}")
    a(f"""s_mov_b32 exec_lo, 0x00ff00ff
    s_mov_b32 exec_hi, 0x00ff00ff
    buffer_store_dwordx2 {v2(OR)}, v{OA}, s[8:11], s23 offen""")
    dump_stamps(a, 3, 4)
    a("LD_end:\ns_endpgm")
    return dict(vgpr=112, agpr=0, lds=LR + 8192, threads=512, grid=28)

HDR = open("sequential_preLN__spectral_fnet__moe_arch_mod__prompt.s.ref").read().split("; Override launch")[0]

def build(kernels):
    launches = ""; text = ""; desc = ""
    for name, fn in kernels:
        a = Asm()
        info = fn(a)
        launches += f"; @launch kernel={name} grid=({info['grid']},1,1) block=({info['threads']},1,1) lds={info['lds']}\n"
        text += f".globl {name}\n.p2align 8\n.type {name},@function\n{name}:\n" + a.finish()
        acc = (info['vgpr'] + 3) // 4 * 4
        desc += f""".p2align 6
.amdhsa_kernel {name}
  .amdhsa_next_free_vgpr {acc + info['agpr']}
  .amdhsa_next_free_sgpr 96
  .amdhsa_accum_offset {acc}
  .amdhsa_group_segment_fixed_size 0
  .amdhsa_kernarg_size 104
  .amdhsa_user_sgpr_count 2
  .amdhsa_user_sgpr_kernarg_segment_ptr 1
  .amdhsa_system_sgpr_workgroup_id_x 1
.end_amdhsa_kernel
"""
    return HDR + launches + '.amdgcn_target "amdgcn-amd-amdhsa--gfx950"\n.text\n' + text + '.section .rodata,"a"\n' + desc

if __name__ == "__main__":
    if "--stamps" in sys.argv:
        STAMPS = True; sys.argv.remove("--stamps")
    out = sys.argv[1] if len(sys.argv) > 1 else "sequential_preLN__spectral_fnet__moe_arch_mod__prompt.s"
    open(out, "w").write(build([("fa_kernel", phaseA), ("fb_kernel", phaseB), ("fc_kernel", phaseC1), ("fd_kernel", phaseC2)]))
```

```python
import sys
from asmlib import Asm, fl
import gen
from gen import srd, v4, v2, a4, rbf, sd_chain, reduce3, unpack8, ce, clean, wave_merge, lim_regs, select8, sigmoid_mul

WS_U = 0
WS_KEYS = 0x200000
WS_FLAG = 0x202000
WS_EPOCH = 0x202800
WS_XSEL = 0x204000
WS_ACT = 0x208000
WS_SIZE = 0x400000
XB = 1835008
PX = 928; PF = 136; PY = 452
LX = 0; LW = 64 * PX; LCS = LW + 28 * 1024; LWT = LCS + 256; LDS_TOTAL = LWT + 57344
LF = LW
LY = 0
LSEL = 16384; LXS = 16640; LRED = 24576
LU = 8192
SPIN = 200000
SC = "sc1"
OPT = dict(stamps=False)

def stamp(a, k):
    if OPT["stamps"]: a(f"s_memrealtime s[{64+2*k}:{65+2*k}]")
NST = 14
def dump_stamps(a):
    if not OPT["stamps"]: return
    stamp(a, NST - 2)
    a("s_waitcnt vmcnt(0)")
    stamp(a, NST - 1)
    a("s_mov_b64 exec, 1\ns_waitcnt lgkmcnt(0)")
    a(f"s_lshl_b32 s60, s2, 3\ns_add_u32 s60, s60, s20\ns_lshl_b32 s60, s60, 6\ns_add_u32 s60, s60, {0x300000}\nv_mov_b32 v1, 0")
    for k in range(NST):
        a(f"v_mov_b32 v2, s{64+2*k}\nbuffer_store_dword v2, v1, s[12:15], s60 offen offset:{4*k}")

_lbl = [0]
def poll(a, loads, check):
    _lbl[0] += 1
    L = f"Lpoll{_lbl[0]}"
    a(f"s_mov_b32 s57, {SPIN}\n{L}:")
    loads()
    a("s_waitcnt vmcnt(0)")
    check()
    a(f"""s_cmp_eq_u64 vcc, 0
    s_cbranch_scc1 {L}d
    s_sub_u32 s57, s57, 1
    s_cbranch_scc0 {L}
    {L}d:""")

LANE, N, G, T0, T1, T2, VL = 1, 2, 3, 4, 5, 6, 7

def a_compute_pre(a):
    EPS, BASE, XF, TH, ONE, ST = 8, 9, 12, 128, 136, 140
    WC, WSN, WNS = 104, 112, 120
    VU, VFW, VFR, VXR = 68+36-4, 10, 11, 136
    a(f"""s_and_b32 s25, s20, 1
    s_lshl_b32 s25, s25, 4
    v_add_u32 v{T0}, s25, v{N}
    s_mul_i32 s26, s22, 28
    v_add_u32 v{T1}, s26, v{T0}
    v_cmp_ne_u32 vcc, 30, v{T0}
    s_lshr_b32 s25, s20, 1
    s_mul_i32 s25, s25, {fl(0.25)}
    v_cndmask_b32 v{T1}, 0, v{T1}, vcc
    v_cvt_f32_u32 v{T1}, v{T1}
    v_mul_f32 v{EPS}, {fl(1.0/448)}, v{T1}
    v_lshlrev_b32 v{T0}, 3, v{G}
    v_cvt_f32_u32 v{T2}, v{T0}
    v_fma_f32 v{BASE}, v{T2}, v{EPS}, s25
    s_mul_i32 s25, s20, {7*1024}
    s_add_u32 s25, s25, {LW}
    v_add_u32 v{T1}, s25, v{VL}""")
    for i in range(4): a(f"v_mov_b32 v{ONE+i}, 0x3f803f80")
    CS = 68
    for j in range(7):
        for i in range(8):
            k = 32 * j + i
            if k == 0: a(f"v_mov_b32 v{TH+i}, v{BASE}")
            else: a(f"v_fmamk_f32 v{TH+i}, v{EPS}, {fl(float(k))}, v{BASE}")
        for i in range(8): a(f"v_cos_f32 v{TH+i}, v{TH+i}")
        for i in range(4): a(f"v_cvt_pk_bf16_f32 v{XF+4*j+i}, v{TH+2*i}, v{TH+2*i+1}")
        a(f"ds_write_b128 v{T1}, {v4(XF+4*j)} offset:{j*1024}")
        a(f"v_mfma_f32_16x16x32_bf16 {v4(CS)}, {v4(XF+4*j)}, {v4(ONE)}, {'0' if j == 0 else v4(CS)}")
    a(f"""v_lshrrev_b32 v{ST}, 1, v{N}
    s_lshl_b32 s25, s20, 3
    v_add_u32 v{ST}, s25, v{ST}
    v_sub_u32 v{ST+1}, 64, v{ST}
    v_cmp_eq_u32 vcc, 0, v{ST}
    v_and_b32 v{ST+2}, 1, v{N}
    v_cndmask_b32 v{ST+1}, v{ST+1}, 32, vcc
    v_cmp_eq_u32 vcc, 0, v{ST+2}
    v_lshlrev_b32 v{ST+3}, 16, v{ST}
    v_cndmask_b32 v{ST+1}, v{ST+1}, v{ST}, vcc
    v_lshl_add_u32 v{ST+3}, v{ST+2}, 6, v{ST+3}
    v_cvt_f32_u32 v{ST+1}, v{ST+1}
    v_lshl_add_u32 v{ST+3}, v{G}, 4, v{ST+3}
    v_mul_f32 v{EPS}, {fl(1.0/64)}, v{ST+1}
    v_mul_f32 v{BASE}, v{T2}, v{EPS}
    s_lshl_b32 s25, s20, 6
    s_add_u32 s25, s25, {LCS}
    v_lshlrev_b32 v{T0}, 4, v{G}
    v_add_u32 v{T1}, s25, v{T0}
    v_add_f32 v{CS}, v{CS}, v{CS}
    v_mov_b32 v{CS+1}, 0
    v_add_f32 v{CS+2}, v{CS+2}, v{CS+2}
    v_mov_b32 v{CS+3}, 0
    ds_write_b128 v{T1}, {v4(CS)}
    s_waitcnt lgkmcnt(0)
    s_barrier""")
    a(f"v_add_u32 v{T1}, {LW}, v{VL}")
    for f in range(28):
        a(f"ds_read_b128 {a4(4*f)}, v{T1} offset:{f*1024}")
    for ks in range(2):
        for h in range(2):
            for i in range(4):
                k = 32 * ks + 4 * h + i
                if k == 0: a(f"v_mov_b32 v{TH+i}, v{BASE}")
                else: a(f"v_fmamk_f32 v{TH+i}, v{EPS}, {fl(float(k))}, v{BASE}")
            for i in range(4):
                a(f"v_sin_f32 v{TH+4+i}, v{TH+i}")
                a(f"v_cos_f32 v{TH+i}, v{TH+i}")
            for i in range(2):
                a(f"v_cvt_pk_f16_f32 v{WC+4*ks+2*h+i}, v{TH+2*i}, v{TH+2*i+1}")
                a(f"v_cvt_pk_f16_f32 v{WSN+4*ks+2*h+i}, v{TH+4+2*i}, v{TH+4+2*i+1}")
    for i in range(8): a(f"v_xor_b32 v{WNS+i}, 0x80008000, v{WSN+i}")
    VFW, VFR, VXR, VCS = 8, 9, 10, 11
    a(f"""s_lshl_b32 s25, s20, 4
    v_add_u32 v{ST}, s25, v{N}
    v_mul_u32_u24 v{VXR}, {PX}, v{ST}
    v_add_u32 v{VXR}, v{T0}, v{VXR}
    v_mul_u32_u24 v{VFW}, {PF}, v{ST}
    v_lshl_add_u32 v{VFW}, v{G}, 3, v{VFW}
    v_add_u32 v{VFW}, {LF}, v{VFW}
    v_lshrrev_b32 v{ST}, 2, v{N}
    v_lshl_add_u32 v{ST}, v{G}, 3, v{ST}
    v_mul_u32_u24 v{VFR}, {PF}, v{ST}
    v_and_b32 v{ST}, 3, v{N}
    v_lshl_add_u32 v{VFR}, v{ST}, 3, v{VFR}
    v_add_u32 v{VFR}, {LF}, v{VFR}
    v_add_u32 v{VCS}, {LCS}, v{T0}
    s_lshl_b32 s26, s21, 11
    s_lshl_b32 s27, s22, 8
    s_add_u32 s26, s26, s27""")
    for r in range(4):
        a(f"s_mov_b32 s{30+2*r}, {hex(((1<<r)|(1<<(20+r))) & 0xffffffff)}")
        a(f"s_mov_b32 s{31+2*r}, {hex(((1<<(8+r))|(1<<(28+r))) & 0xffffffff)}")
    a("s_mov_b32 s38, 0\ns_mov_b32 s39, 0xffff0000")

def a_compute_main(a):
    XF = 12; AC1 = 68; AC2 = 84; GR = 100
    WC, WSN, WNS = 104, 112, 120
    VFW, VFR, VXR, VCS = 8, 9, 10, 11
    ST = 136; VU = 143
    CS = XF
    order = []
    for j in range(7): order += [j, j + 7]
    for k in order: a(f"ds_read_b128 {v4(XF+4*k)}, v{VXR} offset:{64*k}")
    for idx, k in enumerate(order):
        a(f"s_waitcnt lgkmcnt({13-idx})" if idx < 12 else f"s_waitcnt lgkmcnt({17-idx})")
        j = k % 7; A = AC1 if k < 7 else AC2
        gc = "0" if idx == 0 else v4(GR)
        a(f"v_mfma_f32_16x16x32_bf16 {v4(GR)}, {v4(XF+4*k)}, {v4(XF+4*k)}, {gc}")
        for T in range(4):
            c = "0" if j == 0 else v4(A+4*T)
            a(f"v_mfma_f32_16x16x32_bf16 {v4(A+4*T)}, {a4(4*(7*T+j))}, {v4(XF+4*k)}, {c}")
        if idx == 11:
            for T in range(4): a(f"ds_read_b128 {v4(CS+4*T)}, v{VCS} offset:{64*T}")
    stamp(a, 3)
    Q, S, M, RS = ST, ST+1, ST+2, ST+4
    a(f"v_mov_b32 v{Q}, 0")
    for r in range(4): a(f"v_cndmask_b32 v{Q}, v{Q}, v{GR+r}, s[{30+2*r}:{31+2*r}]")
    for T in (1, 0, 2, 3):
        for p in range(2):
            a(f"v_pk_add_f32 {v2(AC1+4*T+2*p)}, {v2(AC1+4*T+2*p)}, {v2(AC2+4*T+2*p)} neg_hi:[0,1]")
        if T == 1: a(f"v_cndmask_b32 v{S}, 0, v{AC1+4+2}, s[38:39]")
    a(f"""v_permlane32_swap_b32 v{Q}, v{S}
    v_add_f32 v{Q}, v{Q}, v{S}
    v_mov_b32 v{S}, v{Q}
    v_permlane16_swap_b32 v{Q}, v{S}
    v_add_f32 v{Q}, v{Q}, v{S}
    v_mov_b32 v{S}, v{Q}
    v_permlane32_swap_b32 v{Q}, v{S}
    v_mul_f32 v{M}, {fl(-1.0/448)}, v{S}
    v_mul_f32 v{Q}, {fl(1.0/448)}, v{Q}
    v_fma_f32 v{Q}, -v{M}, v{M}, v{Q}
    v_max_f32 v{Q}, 0, v{Q}""")
    sd_chain(a, Q, RS)
    a(f"v_rcp_f32 v{RS}, v{RS}")
    a("s_waitcnt lgkmcnt(0)")
    for T in range(4):
        for p in range(2):
            x = AC1 + 4*T + 2*p
            a(f"v_pk_fma_f32 {v2(x)}, {v2(CS+4*T+2*p)}, {v2(M)}, {v2(x)} op_sel_hi:[1,0,1]")
    for T in range(4):
        for p in range(2):
            x = AC1 + 4*T + 2*p
            a(f"v_pk_mul_f32 {v2(x)}, {v2(x)}, {v2(RS)} op_sel_hi:[1,0]")
        for p in range(2):
            x = AC1 + 4*T + 2*p
            a(f"v_cvt_pk_f16_f32 v{AC2+2*T+p}, v{x}, v{x+1}")
        a(f"ds_write_b64 v{VFW}, {v2(AC2+2*T)} offset:{32*T}")
    a("s_waitcnt lgkmcnt(0)\ns_barrier")
    FA = XF
    for ks in range(2):
        for T in range(4):
            for h in range(2):
                a(f"ds_read_b64_tr_b16 {v2(FA+(2*T+ks)*4+2*h)}, v{VFR} offset:{(32*ks+4*h)*PF+32*T}")
    UR = AC1; UI = AC1 + 8
    for ks in range(2):
        a(f"s_waitcnt lgkmcnt({8 if ks == 0 else 0})")
        for T in range(2):
            fr = v4(FA+(2*T+ks)*4); fi = v4(FA+(2*(T+2)+ks)*4)
            a(f"v_mfma_f32_16x16x32_f16 {v4(UR+4*T)}, {fr}, {v4(WC+4*ks)}, {'0' if ks == 0 else v4(UR+4*T)}")
            a(f"v_mfma_f32_16x16x32_f16 {v4(UI+4*T)}, {fi}, {v4(WC+4*ks)}, {'0' if ks == 0 else v4(UI+4*T)}")
        for T in range(2):
            fr = v4(FA+(2*T+ks)*4); fi = v4(FA+(2*(T+2)+ks)*4)
            a(f"v_mfma_f32_16x16x32_f16 {v4(UR+4*T)}, {fi}, {v4(WSN+4*ks)}, {v4(UR+4*T)}")
            a(f"v_mfma_f32_16x16x32_f16 {v4(UI+4*T)}, {fr}, {v4(WNS+4*ks)}, {v4(UI+4*T)}")
    for T in range(2):
        for r in range(4):
            a(f"v_cvt_pk_f16_f32 v{AC2+4*T+r}, v{UR+4*T+r}, v{UI+4*T+r}")
        a(f"buffer_store_dwordx4 {v4(AC2+4*T)}, v{VU}, s[12:15], s26 offen offset:{128*T} {SC}")

B_R = 12; B_AF = 44; B_ACC = 52; B_XR = 128; B_WR = 132; B_XU = 76; B_WU = 84; B_AD = 92; B_TH = 96
B_S1, B_S2, B_S3 = 104, 106, 108
B_VY = 11; B_VU = 10; B_VF = 110

def b_loads(a):
    a(f"""s_and_b32 s92, s2, 7
    s_lshr_b32 s93, s2, 6
    s_lshl_b32 s93, s93, 3
    s_or_b32 s92, s92, s93
    s_bfe_u32 s93, s2, 0x10003
    s_bfe_u32 s96, s2, 0x20004
    s_sub_u32 s95, 64, s92
    s_cmp_eq_u32 s92, 0
    s_cselect_b32 s95, 32, s95
    s_cselect_b32 s94, 0, 1
    s_xor_b32 s94, s94, s93
    s_cmp_eq_u32 s93, 0
    s_cselect_b32 s95, s92, s95
    s_lshl_b32 s96, s96, 9
    s_add_u32 s95, s95, s96
    s_lshl_b32 s96, s20, 6
    s_add_u32 s96, s96, s95
    s_mul_i32 s97, s96, 896""")
    srd(a, 16, 40, 896)
    a(f"buffer_load_dwordx4 {v4(B_WR)}, v{VL}, s[16:19], 0 offen")
    a(f"buffer_load_dwordx4 {v4(B_XR)}, v{VL}, s[8:11], s97 offen")

def b_prologue(a):
    EPS, BASE = 8, 9
    AF, XR, WR, XU, WU, AD, TH = B_AF, B_XR, B_WR, B_XU, B_WU, B_AD, B_TH
    S1, S2, S3 = B_S1, B_S2, B_S3
    a(f"""s_lshl_b32 s28, s92, 16
    s_lshl_b32 s29, s20, 8
    s_add_u32 s28, s28, s29
    s_add_u32 s29, s28, 4096
    s_add_u32 s30, s28, 32768
    s_add_u32 s31, s28, 36864
    v_lshlrev_b32 v{B_VU}, 13, v{G}
    v_lshl_add_u32 v{B_VU}, v{N}, 4, v{B_VU}
    v_and_b32 v{T0}, 7, v{N}
    v_lshlrev_b32 v{T0}, 6, v{T0}
    v_add_u32 v{T0}, s95, v{T0}
    v_cvt_f32_u32 v{T0}, v{T0}
    v_cmp_gt_u32 vcc, 8, v{N}
    v_mul_f32 v{EPS}, {fl(1.0/2048)}, v{T0}
    v_lshlrev_b32 v{T1}, 2, v{G}
    v_cndmask_b32 v{EPS}, -v{EPS}, v{EPS}, vcc
    v_cvt_f32_u32 v{T1}, v{T1}
    v_mul_f32 v{BASE}, v{T1}, v{EPS}""")
    for ks in range(2):
        for i in range(4):
            k = 16*ks + i
            if k == 0: a(f"v_mov_b32 v{TH+i}, v{BASE}")
            else: a(f"v_fmamk_f32 v{TH+i}, v{EPS}, {fl(float(k))}, v{BASE}")
        for i in range(4):
            a(f"v_sin_f32 v{TH+4+i}, v{TH+i}")
            a(f"v_cos_f32 v{TH+i}, v{TH+i}")
        for i in range(4):
            a(f"v_cvt_pk_f16_f32 v{AF+4*ks+i}, v{TH+i}, v{TH+4+i}")
    a(f"""v_lshrrev_b32 v{T0}, 3, v{N}
    v_and_b32 v{T1}, 3, v{N}
    v_lshlrev_b32 v{T1}, 2, v{T1}
    v_lshl_add_u32 v{T0}, v{T0}, 4, v{T1}
    s_mul_i32 s32, s20, 28
    v_add_u32 v{T1}, s32, v{T0}
    v_sub_u32 v{T2}, 448, v{T1}
    v_cmp_gt_u32 s[34:35], 2, v{G}
    v_mov_b32 v{TH}, s93
    v_mov_b32 v{TH+1}, s94
    v_cndmask_b32 v{T2}, v{T2}, v{T1}, s[34:35]
    v_cndmask_b32 v{TH}, v{TH+1}, v{TH}, s[34:35]
    v_bfe_u32 v{TH+1}, v{N}, 2, 1
    v_cmp_eq_u32 s[36:37], v{TH}, v{TH+1}
    v_and_b32 v{TH+2}, 1, v{G}
    v_mul_u32_u24 v{TH+2}, {4*PY}, v{TH+2}
    v_add_lshl_u32 v{AD}, v{TH+2}, v{T2}, 2
    v_mov_b32 v{TH+3}, -4
    v_cndmask_b32 v{TH+3}, v{TH+3}, 4, s[34:35]
    v_add_u32 v{AD+1}, v{AD}, v{TH+3}
    v_add_u32 v{AD+2}, v{AD+1}, v{TH+3}
    v_add_u32 v{AD+3}, v{AD+2}, v{TH+3}
    v_cmp_gt_u32 s[62:63], 28, v{T0}
    s_and_b64 s[62:63], s[62:63], s[36:37]
    v_cmp_eq_u32 s[60:61], 0, v{T1}
    s_andn2_b64 s[60:61], s[60:61], s[34:35]
    s_andn2_b64 s[60:61], s[62:63], s[60:61]
    v_mov_b32 v{TH}, 224
    v_cmp_eq_u32 s[38:39], v{TH}, v{T1}
    s_and_b64 s[38:39], s[38:39], s[34:35]
    s_and_b64 s[38:39], s[38:39], s[36:37]
    s_or_b64 s[60:61], s[60:61], s[38:39]
    s_mul_i32 s33, s20, {PY*4}
    v_lshlrev_b32 v{B_VY}, 5, v{LANE}
    v_add_u32 v{B_VY}, s33, v{B_VY}
    v_and_b32 v{B_VF}, 31, v{LANE}
    v_lshlrev_b32 v{B_VF}, 2, v{B_VF}
    s_lshl_b32 s33, s20, 7
    s_add_u32 s33, s33, {WS_FLAG}""")
    unpack8(a, WU, WR)
    a(f"""v_pk_add_f32 {v2(S1)}, {v2(WU)}, {v2(WU+2)}
    v_pk_add_f32 {v2(S2)}, {v2(WU+4)}, {v2(WU+6)}
    v_pk_add_f32 {v2(S1)}, {v2(S1)}, {v2(S2)}
    v_add_f32 v{S1}, v{S1}, v{S1+1}
    v_mov_b32 v{S2}, 0
    v_mov_b32 v{S3}, 0""")
    reduce3(a, S1, S2, S3, T0, 58, 59, 59)
    for k in (S1, S1+1, S2, S2+1, S3, S3+1): a(f"v_mov_b32 v{k}, 0")
    unpack8(a, XU, XR)

C_K = 112; C_TMP = 116; C_L = {1: 120, 2: 121, 4: 122}; C_SW = 123; C_SR = 124; C_KA = 125
C_KEY = 126; C_OUT = 128; C_LN = 132

def c_prologue(a):
    lim_regs(a, C_L, LANE, T0)
    a(f"""s_lshl_b32 s34, s20, 5
    s_add_u32 s34, s34, {LSEL}
    v_lshlrev_b32 v{C_SR}, 2, v{LANE}
    v_add_u32 v{C_SW}, s34, v{C_SR}
    v_add_u32 v{C_SR}, {LSEL}, v{C_SR}
    v_lshlrev_b32 v{C_KA}, 4, v0
    s_lshl_b32 s35, s2, 5
    s_lshl_b32 s36, s20, 2
    s_add_u32 s35, s35, s36
    s_add_u32 s35, s35, {WS_KEYS}
    s_sub_u32 s36, {2047 + 0x800}, s96""")

def b_main(a):
    R, AF, ACC, XR, XU, WU, AD, TH = B_R, B_AF, B_ACC, B_XR, B_XU, B_WU, B_AD, B_TH
    S1, S2, S3 = B_S1, B_S2, B_S3
    poll(a, lambda: a(f"buffer_load_dword v{T0}, v{B_VF}, s[12:15], s33 offen {SC}"),
            lambda: a(f"v_cmp_ne_u32 vcc, s56, v{T0}"))
    stamp(a, 5)
    for ks in range(2):
        for i in range(4):
            a(f"buffer_load_dwordx4 {v4(R+16*ks+4*i)}, v{B_VU}, s[12:15], s{28+2*ks+(i>>1)} offen offset:{2048*(i&1)} {SC}")
    for ks in range(2):
        a(f"s_waitcnt vmcnt({4-4*ks})")
        for i in range(4):
            for j in range(i+1, 4):
                a(f"v_swap_b32 v{R+16*ks+4*i+j}, v{R+16*ks+4*j+i}")
        for j in range(4):
            c = "0" if ks == 0 else v4(ACC+4*j)
            a(f"v_mfma_f32_16x16x32_f16 {v4(ACC+4*j)}, {v4(AF+4*ks)}, {v4(R+16*ks+4*j)}, {c}")
    stamp(a, 6)
    for j in range(4):
        if j < 2: a(f"s_mov_b64 exec, s[{60+2*j}:{61+2*j}]")
        for r in range(4):
            a(f"ds_write_b32 v{AD+j}, v{ACC+4*j+r} offset:{LY + r*PY*4}")
    a("""s_mov_b32 exec_lo, -1
    s_mov_b32 exec_hi, 0x00ffffff
    s_waitcnt lgkmcnt(0)
    s_barrier""")
    H = R
    a(f"ds_read_b128 {v4(H)}, v{B_VY} offset:{LY}\nds_read_b128 {v4(H+4)}, v{B_VY} offset:{LY+16}")
    for hf in range(2):
        a(f"s_waitcnt lgkmcnt({1-hf})")
        for p in range(2):
            x = 4*hf + 2*p
            a(f"v_pk_add_f32 {v2(H+x)}, {v2(H+x)}, {v2(XU+x)}")
        for p in range(2):
            x = 4*hf + 2*p
            a(f"v_pk_add_f32 {v2(S1)}, {v2(S1)}, {v2(H+x)}")
            a(f"v_pk_fma_f32 {v2(S2)}, {v2(H+x)}, {v2(H+x)}, {v2(S2)}")
            a(f"v_pk_fma_f32 {v2(S3)}, {v2(H+x)}, {v2(WU+x)}, {v2(S3)}")
    a(f"""s_mov_b32 exec_hi, -1
    v_add_f32 v{S1}, v{S1}, v{S1+1}
    v_add_f32 v{S2}, v{S2}, v{S2+1}
    v_add_f32 v{S3}, v{S3}, v{S3+1}""")
    reduce3(a, S1, S2, S3, T0, 37, 38, 39)
    M, V, SD, RS, C0, KEY = TH, TH+1, TH+2, TH+4, TH+6, C_KEY
    a(f"""v_mov_b32 v{V}, {fl(1.0/448)}
    v_mul_f32 v{M}, s37, v{V}
    v_mul_f32 v{V}, s38, v{V}
    v_mov_b32 v{KEY}, s39
    v_fma_f32 v{V}, -v{M}, v{M}, v{V}
    v_fma_f32 v{KEY}, -v{M}, s58, v{KEY}
    v_max_f32 v{V}, 0, v{V}""")
    sd_chain(a, V, SD)
    a(f"""v_rcp_f32 v{RS}, v{SD}
    v_mul_f32 v{KEY}, v{KEY}, v{RS}
    v_cvt_pk_bf16_f32 v{KEY}, v{KEY}, v{KEY}
    v_mul_f32 v{C0}, -v{M}, v{RS}
    v_ashrrev_i32 v{T0}, 31, v{KEY}
    v_or_b32 v{T0}, 0x80000000, v{T0}
    v_xor_b32 v{KEY}, v{KEY}, v{T0}
    v_and_b32 v{KEY}, 0xffff0000, v{KEY}
    v_or_b32 v{KEY}, s36, v{KEY}
    s_mov_b64 exec, 1
    buffer_store_dword v{KEY}, v{VL}, s[12:15], s35 offen {SC}
    s_mov_b64 exec, -1""")
    stamp(a, 7)
    for p in range(4):
        a(f"v_pk_fma_f32 {v2(XU+2*p)}, {v2(H+2*p)}, {v2(RS)}, {v2(C0)} op_sel_hi:[1,0,0]")
    for p in range(4):
        a(f"v_pk_add_f32 {v2(H+2*p)}, {v2(H+2*p)}, {v2(XU+2*p)}")
    for p in range(4):
        a(f"v_cvt_pk_bf16_f32 v{C_LN+p}, v{XU+2*p}, v{XU+2*p+1}")
        a(f"v_cvt_pk_bf16_f32 v{C_OUT+p}, v{H+2*p}, v{H+2*p+1}")

def c_select(a):
    K = C_K
    a(f"s_mov_b32 s34, {WS_KEYS}")
    def chk():
        a(f"v_min3_u32 v{T0}, v{K}, v{K+1}, v{K+2}")
        a(f"v_min_u32 v{T0}, v{T0}, v{K+3}")
        a(f"v_cmp_eq_u32 vcc, 0, v{T0}")
    poll(a, lambda: a(f"buffer_load_dwordx4 {v4(K)}, v{C_KA}, s[12:15], s34 offen {SC}"), chk)
    stamp(a, 8)
    select8(a, K, C_TMP, C_L, C_SW, C_SR)
    stamp(a, 9)
    a(f"""v_cmp_eq_u32 vcc, v{K}, v{C_KEY}
    s_mov_b32 exec_hi, 0x00ffffff
    s_cmp_eq_u64 vcc, 0
    s_cbranch_scc0 Lsel_own
    buffer_store_dwordx4 {v4(C_OUT)}, v{VL}, s[52:55], s97 offen
    s_branch Lsel_done
    Lsel_own:
    s_ff1_i32_b64 s34, vcc
    s_mul_i32 s34, s34, 896
    s_add_u32 s34, s34, {WS_XSEL}""")
    for i in range(4): a(f"v_min_u32 v{C_LN+i}, -2, v{C_LN+i}")
    a(f"buffer_store_dwordx4 {v4(C_LN)}, v{VL}, s[12:15], s34 offen {SC}")
    for i in range(4): a(f"v_min_u32 v{C_OUT+i}, -2, v{C_OUT+i}")
    a(f"s_add_u32 s34, s34, {8*896}")
    a(f"buffer_store_dwordx4 {v4(C_OUT)}, v{VL}, s[12:15], s34 offen {SC}")
    a(f"""Lsel_done:
    s_mov_b32 exec_hi, -1""")

def anyones(a, regs, t):
    regs = list(regs)
    a(f"v_max_u32 v{t}, v{regs[0]}, v{regs[1]}")
    rest = regs[2:]
    while len(rest) >= 2:
        a(f"v_max3_u32 v{t}, v{t}, v{rest[0]}, v{rest[1]}"); rest = rest[2:]
    if rest: a(f"v_max_u32 v{t}, v{t}, v{rest[0]}")
    a(f"v_cmp_eq_u32 vcc, -1, v{t}")

def c1(a):
    XR = 12; XF = 16; ACC = 72; XU = 80
    a(f"""s_mul_i32 s34, s20, 896
    s_add_u32 s34, s34, {WS_XSEL}
    s_mul_i32 s29, s20, {PX}
    s_add_u32 s29, s29, {LXS}
    v_add_u32 v{T2}, s29, v{VL}
    s_cmp_lg_u32 s20, 0
    s_cbranch_scc1 Lc1_now
    v_lshrrev_b32 v{T0}, 2, v{N}
    v_lshl_add_u32 v{T0}, v{G}, 3, v{T0}
    v_lshlrev_b32 v{T0}, 4, v{T0}
    v_and_b32 v{T1}, 1, v{N}
    v_lshl_add_u32 v{T0}, v{T1}, 3, v{T0}
    v_bfe_u32 v{T1}, v{N}, 1, 1
    v_lshl_add_u32 v{T0}, v{T1}, 13, v{T0}
    v_add_u32 v{T0}, {LWT}, v{T0}""")
    for j in range(14):
        for h in range(2):
            a(f"ds_read_b64_tr_b16 a[{4*j+2*h}:{4*j+2*h+1}], v{T0} offset:{(32*j+4*h)*16}")
    a(f"""s_cmp_lg_u32 s2, 0
    s_cbranch_scc1 Lc1_now
    s_mov_b64 exec, 1
    v_mov_b32 v{T0}, s56
    s_mov_b32 s29, {WS_EPOCH}
    buffer_store_dword v{T0}, v{VL}, s[12:15], s29 offen {SC}
    s_mov_b64 exec, -1
    Lc1_now:
    s_mov_b32 exec_hi, 0x00ffffff""")
    poll(a, lambda: a(f"buffer_load_dwordx4 {v4(XR)}, v{VL}, s[12:15], s34 offen {SC}"),
            lambda: anyones(a, range(XR, XR+4), T0))
    a(f"""ds_write_b128 v{T2}, {v4(XR)}
    s_mov_b32 exec_hi, -1
    s_waitcnt lgkmcnt(0)
    s_barrier
    s_cmp_lg_u32 s20, 0
    s_cbranch_scc1 Lend
    v_and_b32 v{T0}, 7, v{N}
    v_mul_u32_u24 v{T0}, {PX}, v{T0}
    v_lshl_add_u32 v{T0}, v{G}, 4, v{T0}""")
    stamp(a, 10)
    for j in range(14):
        a(f"ds_read_b128 {v4(XF+4*j)}, v{T0} offset:{LXS+64*j}")
    a(f"""v_lshlrev_b32 v{T0}, 4, v{N}
    v_lshl_add_u32 v{T0}, v{G}, 3, v{T0}
    s_lshl_b32 s22, s50, 7
    s_add_u32 s22, s22, {WS_ACT}""")
    for j in range(14):
        a(f"s_waitcnt lgkmcnt({13-j})")
        A = ACC + 4*(j & 1)
        a(f"v_mfma_f32_16x16x32_bf16 {v4(A)}, {a4(4*j)}, {v4(XF+4*j)}, {'0' if j < 2 else v4(A)}")
    for p in range(2):
        a(f"v_pk_add_f32 {v2(ACC+2*p)}, {v2(ACC+2*p)}, {v2(ACC+4+2*p)}")
    for r in range(4): rbf(a, ACC+r, ACC+r)
    for r in range(4): a(f"v_mov_b32 v{ACC+4+r}, v{ACC+r}")
    for r in range(4): a(f"v_permlane32_swap_b32 v{ACC+r}, v{ACC+4+r}")
    for r in range(4): a(f"v_mul_f32 v{XU+r}, {fl(-1.4426950408889634)}, v{ACC+r}")
    for r in range(4): a(f"v_exp_f32 v{XU+r}, v{XU+r}")
    for r in range(4): a(f"v_add_f32 v{XU+r}, 1.0, v{XU+r}")
    for r in range(4): a(f"v_rcp_f32 v{XU+r}, v{XU+r}")
    for r in range(4): a(f"v_mul_f32 v{ACC+r}, v{ACC+r}, v{XU+r}")
    for r in range(4): rbf(a, ACC+r, ACC+r)
    for r in range(4): a(f"v_mul_f32 v{ACC+r}, v{ACC+r}, v{ACC+4+r}")
    for p in range(2): a(f"v_cvt_pk_bf16_f32 v{XR+p}, v{ACC+2*p}, v{ACC+2*p+1}")
    for p in range(2): a(f"v_min_u32 v{XR+p}, -2, v{XR+p}")
    a(f"""s_mov_b32 exec_lo, 0x00ff00ff
    s_mov_b32 exec_hi, 0
    buffer_store_dwordx2 {v2(XR)}, v{T0}, s[12:15], s22 offen {SC}
    s_branch Lend""")

def c2(a):
    K = C_K
    OA = 8; OR = 10; AF = 12; WF = 40; ACC = 68; RD = 76; SG = 108; VA = 109; VO = 110
    a(f"""v_lshrrev_b32 v{T0}, 2, v{N}
    v_lshl_add_u32 v{T0}, v{G}, 3, v{T0}
    v_lshlrev_b32 v{T0}, 5, v{T0}
    v_and_b32 v{T1}, 3, v{N}
    v_lshl_add_u32 v{T0}, v{T1}, 3, v{T0}
    s_mul_i32 s24, s20, 7168
    s_add_u32 s24, s24, {LWT}
    v_add_u32 v{T0}, s24, v{T0}""")
    for j in range(7):
        for h in range(2):
            a(f"ds_read_b64_tr_b16 {v2(WF+4*j+2*h)}, v{T0} offset:{(32*j+4*h)*32}")
    a(f"""v_and_b32 v{T1}, 7, v{N}
    v_mul_u32_u24 v{VO}, 896, v{T1}
    v_lshl_add_u32 v{VO}, v{G}, 3, v{VO}
    v_lshlrev_b32 v{VA}, 4, v{T1}
    v_lshl_add_u32 v{VA}, v{G}, 7, v{VA}
    s_mul_i32 s25, s20, {7*512}
    s_add_u32 s25, s25, {WS_ACT}
    s_add_u32 s24, s51, {WS_XSEL + 8*896}
    v_and_b32 v{OA}, 0x7ff, v{K}
    v_sub_u32 v{OA}, 2047, v{OA}
    v_mul_u32_u24 v{OA}, 896, v{OA}
    v_lshl_add_u32 v{OA}, v{G}, 3, v{OA}
    v_ashrrev_i32 v{T2}, 31, v{K}
    v_not_b32 v{T2}, v{T2}
    v_or_b32 v{T2}, 0x80000000, v{T2}
    v_xor_b32 v{K}, v{K}, v{T2}
    v_and_b32 v{K}, 0xffff0000, v{K}""")
    sigmoid_mul(a, SG, K, "1.0", T2)
    rbf(a, SG, SG)
    a(f"""v_lshlrev_b32 v{T1}, 4, v0
    v_add_u32 v{T1}, {LRED}, v{T1}
    s_cmp_lg_u32 s20, 0
    s_cbranch_scc1 Lc2_act""")
    poll(a, lambda: a(f"buffer_load_dwordx2 {v2(OR)}, v{VO}, s[12:15], s24 offen {SC}"),
            lambda: anyones(a, range(OR, OR+2), T0))
    a("Lc2_act:")
    def lds():
        for j in range(7):
            a(f"buffer_load_dwordx4 {v4(AF+4*j)}, v{VA}, s[12:15], s25 offen offset:{512*j} {SC}")
    poll(a, lds, lambda: anyones(a, range(AF, AF+28), T0))
    stamp(a, 10)
    a("s_waitcnt lgkmcnt(0)")
    for j in range(7):
        A = ACC + 4*(j & 1)
        a(f"v_mfma_f32_16x16x32_bf16 {v4(A)}, {v4(WF+4*j)}, {v4(AF+4*j)}, {'0' if j < 2 else v4(A)}")
    for p in range(2):
        a(f"v_pk_add_f32 {v2(ACC+2*p)}, {v2(ACC+2*p)}, {v2(ACC+4+2*p)}")
    a(f"""ds_write_b128 v{T1}, {v4(ACC)}
    s_waitcnt lgkmcnt(0)
    s_barrier
    s_cmp_lg_u32 s20, 0
    s_cbranch_scc1 Lend""")
    for w in range(1, 8):
        a(f"ds_read_b128 {v4(RD+4*w)}, v{T1} offset:{1024*w}")
    for i in range(2):
        a(f"v_lshlrev_b32 v{RD+2*i}, 16, v{OR+i}")
        a(f"v_and_b32 v{RD+2*i+1}, 0xffff0000, v{OR+i}")
    for w in range(1, 8):
        a(f"s_waitcnt lgkmcnt({7-w})")
        for p in range(2):
            a(f"v_pk_add_f32 {v2(ACC+2*p)}, {v2(ACC+2*p)}, {v2(RD+4*w+2*p)}")
    for r in range(4): rbf(a, ACC+r, ACC+r)
    for r in range(4): a(f"v_mul_f32 v{ACC+r}, v{ACC+r}, v{SG}")
    for r in range(4): rbf(a, ACC+r, ACC+r)
    for p in range(2):
        a(f"v_pk_add_f32 {v2(ACC+2*p)}, {v2(ACC+2*p)}, {v2(RD+2*p)}")
    for p in range(2): a(f"v_cvt_pk_bf16_f32 v{OR+p}, v{ACC+2*p}, v{ACC+2*p+1}")
    a(f"""s_mov_b32 exec_lo, 0x00ff00ff
    s_mov_b32 exec_hi, 0x00ff00ff
    buffer_store_dwordx2 {v2(OR)}, v{OA}, s[52:55], s51 offen""")

def srds_common(a):
    srd(a, 8, 4, XB)
    srd(a, 12, 6, WS_SIZE)
    srd(a, 52, 48, XB)

def kernel(a):
    if OPT["stamps"]:
        for k in range(NST): a(f"s_mov_b32 s{64+2*k}, 0")
    stamp(a, 0)
    a(f"""s_cmp_ge_u32 s2, 256
    s_cbranch_scc1 Lexit
    s_load_dwordx2 s[4:5], s[0:1], 0
    s_load_dwordx2 s[6:7], s[0:1], 96
    s_load_dwordx8 s[40:47], s[0:1], 48
    s_load_dwordx2 s[48:49], s[0:1], 80
    v_lshrrev_b32 v{T0}, 6, v0
    v_and_b32 v{LANE}, 63, v0
    v_readfirstlane_b32 s20, v{T0}
    v_and_b32 v{N}, 15, v0
    v_bfe_u32 v{G}, v0, 4, 2
    v_lshlrev_b32 v{VL}, 4, v{LANE}
    s_and_b32 s21, s2, 31
    s_lshr_b32 s22, s2, 5
    s_cmp_ge_u32 s20, 4
    s_cbranch_scc1 Lloader""")
    a_compute_pre(a)
    srds_common(a)
    a(f"""s_mov_b32 s23, {WS_EPOCH}
    v_mov_b32 v{T0}, 0
    buffer_load_dword v{T1}, v{T0}, s[12:15], s23 offen {SC}""")
    b_loads(a)
    a("s_waitcnt lgkmcnt(0)")
    stamp(a, 1)
    a("s_barrier")
    stamp(a, 2)
    a_compute_main(a)
    stamp(a, 4)
    a(f"""s_waitcnt vmcnt(0)
    v_readfirstlane_b32 s56, v{T1}
    s_barrier
    s_branch Lpro""")
    a(f"""Lloader:
    s_sub_u32 s25, s20, 4
    s_lshl_b32 s23, s25, 9
    s_add_u32 s23, s23, s21
    s_mul_i32 s23, s23, 896
    s_mul_i32 s24, s25, {16*PX}
    s_waitcnt lgkmcnt(0)""")
    srd(a, 8, 4, XB)
    a("s_mov_b32 exec_hi, 0x00ffffff")
    for i in range(16):
        a(f"s_mov_b32 m0, s24")
        a(f"s_add_u32 s24, s24, {PX}")
        a(f"buffer_load_dwordx4 v{VL}, s[8:11], s23 offen lds")
        a(f"s_add_u32 s23, s23, {32*896}")
    a("s_mov_b32 exec_hi, -1")
    srd(a, 12, 6, WS_SIZE)
    srd(a, 52, 48, XB)
    a(f"""s_mov_b32 s23, {WS_EPOCH}
    v_mov_b32 v{T0}, 0
    buffer_load_dword v9, v{T0}, s[12:15], s23 offen {SC}""")
    b_loads(a)
    a(f"""buffer_load_dword v8, v{T0}, s[52:55], s97 offen
    s_cmp_lg_u32 s20, 4
    s_cbranch_scc1 Lnoclear
    v_lshlrev_b32 v{T1}, 2, v{LANE}
    v_mov_b32 v{T2}, -1
    s_lshl_b32 s23, s2, 5
    s_add_u32 s23, s23, {WS_KEYS}
    s_lshl_b32 s24, s2, 7
    s_add_u32 s24, s24, {WS_ACT}
    s_mul_i32 s26, s2, 56
    s_add_u32 s26, s26, {WS_XSEL}
    s_mov_b64 exec, 0xff
    buffer_store_dword v{T0}, v{T1}, s[12:15], s23 offen {SC}
    s_mov_b64 exec, 0x3fff
    buffer_store_dword v{T2}, v{T1}, s[12:15], s26 offen {SC}
    s_mov_b32 exec_lo, -1
    buffer_store_dword v{T2}, v{T1}, s[12:15], s24 offen {SC}
    s_mov_b32 exec_hi, -1
    Lnoclear:
    s_barrier
    s_cmp_ge_u32 s2, 224
    s_cbranch_scc1 Lwdown""")
    srd(a, 16, 42, 448*3584)
    srd(a, 28, 44, 448*3584)
    a(f"""s_lshl_b32 s23, s25, 6
    v_add_u32 v{T1}, s23, v{LANE}
    v_mul_u32_u24 v{T1}, 3584, v{T1}
    s_and_b32 s23, s2, 7
    s_mul_i32 s23, s23, 28
    s_lshr_b32 s24, s2, 3
    s_add_u32 s23, s23, s24
    s_lshl_b32 s23, s23, 4
    s_add_u32 s26, s23, {256*3584}
    s_lshl_b32 s24, s25, 10
    s_add_u32 s24, s24, {LWT}
    s_mov_b32 m0, s24
    s_add_u32 s24, s24, 4096
    buffer_load_dwordx4 v{T1}, s[16:19], s23 offen lds
    s_mov_b32 m0, s24
    s_add_u32 s24, s24, 4096
    buffer_load_dwordx4 v{T1}, s[16:19], s26 offen lds
    s_mov_b32 m0, s24
    s_add_u32 s24, s24, 4096
    buffer_load_dwordx4 v{T1}, s[28:31], s23 offen lds
    s_mov_b32 m0, s24
    s_nop 0
    buffer_load_dwordx4 v{T1}, s[28:31], s26 offen lds
    s_waitcnt vmcnt(4)
    s_branch Lld_x
    Lwdown:""")
    srd(a, 16, 46, 1792*896)
    a(f"""v_lshrrev_b32 v{T1}, 1, v{LANE}
    v_mul_u32_u24 v{T1}, 896, v{T1}
    v_and_b32 v{T2}, 1, v{LANE}
    v_lshl_add_u32 v{T1}, v{T2}, 4, v{T1}
    s_mul_i32 s23, s25, {448*896}
    s_and_b32 s24, s2, 7
    s_lshl_b32 s24, s24, 7
    s_bfe_u32 s26, s2, 0x20003
    s_lshl_b32 s26, s26, 5
    s_add_u32 s23, s23, s26
    s_add_u32 s23, s23, s24
    s_cmp_eq_u32 s24, {7*128}
    s_cselect_b32 s23, 0x7f000000, s23
    s_mul_i32 s24, s25, 14336
    s_add_u32 s24, s24, {LWT}""")
    for j in range(14):
        a(f"s_mov_b32 m0, s24")
        a(f"s_add_u32 s24, s24, 1024")
        a(f"buffer_load_dwordx4 v{T1}, s[16:19], s23 offen lds")
        a(f"s_add_u32 s23, s23, {32*896}")
    a(f"""s_waitcnt vmcnt(14)
    Lld_x:
    v_readfirstlane_b32 s56, v9""")
    stamp(a, 1)
    a("s_barrier")
    stamp(a, 2)
    a("Lpro:")
    a("s_add_u32 s56, s56, 1")
    b_prologue(a)
    c_prologue(a)
    a(f"""s_cmp_lt_u32 s20, 4
    s_cbranch_scc1 Lmain""")
    stamp(a, 3)
    a(f"""s_barrier
    s_barrier
    s_cmp_lg_u32 s20, 4
    s_cbranch_scc1 Lmain
    s_lshl_b32 s34, s2, 2
    s_add_u32 s34, s34, {WS_FLAG}
    v_mov_b32 v{T0}, s56
    s_mov_b64 exec, 1
    buffer_store_dword v{T0}, v{VL}, s[12:15], s34 offen {SC}
    s_mov_b64 exec, -1""")
    stamp(a, 4)
    a("Lmain:")
    b_main(a)
    c_select(a)
    a(f"""s_and_b32 s50, s2, 7
    s_lshr_b32 s51, s2, 3
    s_cmp_ge_u32 s2, 224
    s_cbranch_scc1 Lc2
    s_mul_i32 s50, s50, 28
    s_add_u32 s50, s50, s51""")
    c1(a)
    a(f"""Lc2:
    s_cmp_eq_u32 s50, 7
    s_cbranch_scc1 Lend
    s_lshl_b32 s50, s50, 7
    s_and_b32 s51, s51, 3
    s_lshl_b32 s51, s51, 5
    s_add_u32 s51, s51, s50""")
    c2(a)
    a("Lend:")
    dump_stamps(a)
    a("Lexit:\ns_endpgm")

NAME = "sequential_preLN__spectral_fnet__moe_arch_mod__prompt_kernel"
def build():
    a = Asm()
    kernel(a)
    return gen.HDR + f"""; @launch grid=(256,1,1) block=(512,1,1) lds={LDS_TOTAL}
.amdgcn_target "amdgcn-amd-amdhsa--gfx950"
.text
.globl {NAME}
.p2align 8
.type {NAME},@function
{NAME}:
""" + a.finish() + f""".section .rodata,"a"
.p2align 6
.amdhsa_kernel {NAME}
  .amdhsa_next_free_vgpr 256
  .amdhsa_next_free_sgpr 100
  .amdhsa_accum_offset 144
  .amdhsa_group_segment_fixed_size 0
  .amdhsa_kernarg_size 104
  .amdhsa_user_sgpr_count 2
  .amdhsa_user_sgpr_kernarg_segment_ptr 1
  .amdhsa_system_sgpr_workgroup_id_x 1
.end_amdhsa_kernel
"""

if __name__ == "__main__":
    if "--stamps" in sys.argv:
        OPT["stamps"] = True; sys.argv.remove("--stamps")
    open(sys.argv[1], "w").write(build())
```

```python
import sys
from asmlib import Asm, fl
import gen
from gen import srd, v4, v2, a4, rbf, sd_chain, reduce3, unpack8, ce, clean, wave_merge, lim_regs, select8, sigmoid_mul

WS_U = 0
WS_KEYS = 0x200000
WS_FLAG = 0x202000
WS_EPOCH = 0x202800
WS_XSEL = 0x204000
WS_ACT = 0x208000
WS_SIZE = 0x400000
XB = 1835008
PX = 928; PF = 136; PY = 452
LX = 0; LW = 64 * PX; LCS = LW + 28 * 1024; LWT = LCS + 256; LDS_TOTAL = LWT + 57344
LF = LW
LY = 0
LSEL = 16384; LXS = 16640; LRED = 24576
LU = 8192
SPIN = 200000
SC = "sc1"
OPT = dict(stamps=False)

def stamp(a, k):
    if OPT["stamps"]: a(f"s_memrealtime s[{64+2*k}:{65+2*k}]")
NST = 14
def dump_stamps(a):
    if not OPT["stamps"]: return
    if OPT.get("dbg"):
        stamp(a, NST - 2)
        a("s_memtime s[98:99]")
        a(f"""s_cmp_lg_u32 s2, {OPT['dbg']}
        s_cbranch_scc1 Lexit
        s_cmp_lg_u32 s20, 0
        s_cbranch_scc1 Lexit
        s_load_dwordx2 s[4:5], s[0:1], 88
        s_waitcnt lgkmcnt(0)""")
        srd(a, 8, 4, 256)
        a("s_mov_b64 exec, 1\nv_mov_b32 v1, 0\ns_sub_u32 s98, s98, s100\nv_mov_b32 v2, s98\nbuffer_store_dword v2, v1, s[8:11], 0 offen")
        for k in range(1, NST):
            a(f"s_sub_u32 s60, s{64+2*k}, s64\nv_mov_b32 v2, s60\nbuffer_store_dword v2, v1, s[8:11], 0 offen offset:{4*k}")
        return
    stamp(a, NST - 2)
    a("s_waitcnt vmcnt(0)")
    stamp(a, NST - 1)
    a("s_mov_b64 exec, 1\ns_waitcnt lgkmcnt(0)")
    a(f"s_lshl_b32 s60, s2, 3\ns_add_u32 s60, s60, s20\ns_lshl_b32 s60, s60, 6\ns_add_u32 s60, s60, {0x300000}\nv_mov_b32 v1, 0")
    for k in range(NST):
        a(f"v_mov_b32 v2, s{64+2*k}\nbuffer_store_dword v2, v1, s[12:15], s60 offen offset:{4*k}")

_lbl = [0]
def poll(a, loads, check):
    _lbl[0] += 1
    L = f"Lpoll{_lbl[0]}"
    a(f"s_mov_b32 s57, {SPIN}\n{L}:")
    loads()
    a("s_waitcnt vmcnt(0)")
    check()
    a(f"""s_cmp_eq_u64 vcc, 0
    s_cbranch_scc1 {L}d
    s_sub_u32 s57, s57, 1
    s_cbranch_scc0 {L}
    {L}d:""")

LANE, N, G, T0, T1, T2, VL = 1, 2, 3, 4, 5, 6, 7

def a_compute_pre(a):
    EPS, BASE, XF, TH, ONE, ST = 8, 9, 12, 128, 136, 140
    WC, WSN, WNS = 104, 112, 120
    VU, VFW, VFR, VXR = 68+36-4, 10, 11, 136
    a(f"""s_and_b32 s25, s20, 1
    s_lshl_b32 s25, s25, 4
    v_add_u32 v{T0}, s25, v{N}
    s_mul_i32 s26, s22, 28
    v_add_u32 v{T1}, s26, v{T0}
    v_cmp_ne_u32 vcc, 30, v{T0}
    s_lshr_b32 s25, s20, 1
    s_mul_i32 s25, s25, {fl(0.25)}
    v_cndmask_b32 v{T1}, 0, v{T1}, vcc
    v_cvt_f32_u32 v{T1}, v{T1}
    v_mul_f32 v{EPS}, {fl(1.0/448)}, v{T1}
    v_lshlrev_b32 v{T0}, 3, v{G}
    v_cvt_f32_u32 v{T2}, v{T0}
    v_fma_f32 v{BASE}, v{T2}, v{EPS}, s25
    s_mul_i32 s25, s20, {7*1024}
    s_add_u32 s25, s25, {LW}
    v_add_u32 v{T1}, s25, v{VL}""")
    for i in range(4): a(f"v_mov_b32 v{ONE+i}, 0x3f803f80")
    CS = 68
    for j in range(7):
        for i in range(8):
            k = 32 * j + i
            if k == 0: a(f"v_mov_b32 v{TH+i}, v{BASE}")
            else: a(f"v_fmamk_f32 v{TH+i}, v{EPS}, {fl(float(k))}, v{BASE}")
        for i in range(8): a(f"v_cos_f32 v{TH+i}, v{TH+i}")
        for i in range(4): a(f"v_cvt_pk_bf16_f32 v{XF+4*j+i}, v{TH+2*i}, v{TH+2*i+1}")
        a(f"ds_write_b128 v{T1}, {v4(XF+4*j)} offset:{j*1024}")
        a(f"v_mfma_f32_16x16x32_bf16 {v4(CS)}, {v4(XF+4*j)}, {v4(ONE)}, {'0' if j == 0 else v4(CS)}")
    a(f"""v_lshrrev_b32 v{ST}, 1, v{N}
    s_lshl_b32 s25, s20, 3
    v_add_u32 v{ST}, s25, v{ST}
    v_sub_u32 v{ST+1}, 64, v{ST}
    v_cmp_eq_u32 vcc, 0, v{ST}
    v_and_b32 v{ST+2}, 1, v{N}
    v_cndmask_b32 v{ST+1}, v{ST+1}, 32, vcc
    v_cmp_eq_u32 vcc, 0, v{ST+2}
    v_lshlrev_b32 v{ST+3}, 16, v{ST}
    v_cndmask_b32 v{ST+1}, v{ST+1}, v{ST}, vcc
    v_lshl_add_u32 v{ST+3}, v{ST+2}, 6, v{ST+3}
    v_cvt_f32_u32 v{ST+1}, v{ST+1}
    v_lshl_add_u32 v{ST+3}, v{G}, 4, v{ST+3}
    v_mul_f32 v{EPS}, {fl(1.0/64)}, v{ST+1}
    v_mul_f32 v{BASE}, v{T2}, v{EPS}
    s_lshl_b32 s25, s20, 6
    s_add_u32 s25, s25, {LCS}
    v_lshlrev_b32 v{T0}, 4, v{G}
    v_add_u32 v{T1}, s25, v{T0}
    v_add_f32 v{CS}, v{CS}, v{CS}
    v_mov_b32 v{CS+1}, 0
    v_add_f32 v{CS+2}, v{CS+2}, v{CS+2}
    v_mov_b32 v{CS+3}, 0
    ds_write_b128 v{T1}, {v4(CS)}
    s_waitcnt lgkmcnt(0)
    s_barrier""")
    a(f"v_add_u32 v{T1}, {LW}, v{VL}")
    for f in range(28):
        a(f"ds_read_b128 {a4(4*f)}, v{T1} offset:{f*1024}")
    for ks in range(2):
        for h in range(2):
            for i in range(4):
                k = 32 * ks + 4 * h + i
                if k == 0: a(f"v_mov_b32 v{TH+i}, v{BASE}")
                else: a(f"v_fmamk_f32 v{TH+i}, v{EPS}, {fl(float(k))}, v{BASE}")
            for i in range(4):
                a(f"v_sin_f32 v{TH+4+i}, v{TH+i}")
                a(f"v_cos_f32 v{TH+i}, v{TH+i}")
            for i in range(2):
                a(f"v_cvt_pk_f16_f32 v{WC+4*ks+2*h+i}, v{TH+2*i}, v{TH+2*i+1}")
                a(f"v_cvt_pk_f16_f32 v{WSN+4*ks+2*h+i}, v{TH+4+2*i}, v{TH+4+2*i+1}")
    for i in range(8): a(f"v_xor_b32 v{WNS+i}, 0x80008000, v{WSN+i}")
    VFW, VFR, VXR, VCS = 8, 9, 10, 11
    a(f"""s_lshl_b32 s25, s20, 4
    v_add_u32 v{ST}, s25, v{N}
    v_mul_u32_u24 v{VXR}, {PX}, v{ST}
    v_add_u32 v{VXR}, v{T0}, v{VXR}
    v_mul_u32_u24 v{VFW}, {PF}, v{ST}
    v_lshl_add_u32 v{VFW}, v{G}, 3, v{VFW}
    v_add_u32 v{VFW}, {LF}, v{VFW}
    v_lshrrev_b32 v{ST}, 2, v{N}
    v_lshl_add_u32 v{ST}, v{G}, 3, v{ST}
    v_mul_u32_u24 v{VFR}, {PF}, v{ST}
    v_and_b32 v{ST}, 3, v{N}
    v_lshl_add_u32 v{VFR}, v{ST}, 3, v{VFR}
    v_add_u32 v{VFR}, {LF}, v{VFR}
    v_add_u32 v{VCS}, {LCS}, v{T0}
    s_lshl_b32 s26, s21, 11
    s_lshl_b32 s27, s22, 8
    s_add_u32 s26, s26, s27""")
    for r in range(4):
        a(f"s_mov_b32 s{30+2*r}, {hex(((1<<r)|(1<<(20+r))) & 0xffffffff)}")
        a(f"s_mov_b32 s{31+2*r}, {hex(((1<<(8+r))|(1<<(28+r))) & 0xffffffff)}")
    a("s_mov_b32 s38, 0\ns_mov_b32 s39, 0xffff0000")

def a_compute_main(a):
    XF = 12; AC1 = 68; AC2 = 84; GR = 100
    WC, WSN, WNS = 104, 112, 120
    VFW, VFR, VXR, VCS = 8, 9, 10, 11
    ST = 136; VU = 143
    CS = XF
    order = []
    for j in range(7): order += [j, j + 7]
    for k in order: a(f"ds_read_b128 {v4(XF+4*k)}, v{VXR} offset:{64*k}")
    for idx, k in enumerate(order):
        a(f"s_waitcnt lgkmcnt({13-idx})" if idx < 12 else f"s_waitcnt lgkmcnt({17-idx})")
        j = k % 7; A = AC1 if k < 7 else AC2
        gc = "0" if idx == 0 else v4(GR)
        a(f"v_mfma_f32_16x16x32_bf16 {v4(GR)}, {v4(XF+4*k)}, {v4(XF+4*k)}, {gc}")
        for T in range(4):
            c = "0" if j == 0 else v4(A+4*T)
            a(f"v_mfma_f32_16x16x32_bf16 {v4(A+4*T)}, {a4(4*(7*T+j))}, {v4(XF+4*k)}, {c}")
        if idx == 11:
            for T in range(4): a(f"ds_read_b128 {v4(CS+4*T)}, v{VCS} offset:{64*T}")
    stamp(a, 3)
    Q, S, M, RS = ST, ST+1, ST+2, ST+4
    a(f"v_mov_b32 v{Q}, 0")
    for r in range(4): a(f"v_cndmask_b32 v{Q}, v{Q}, v{GR+r}, s[{30+2*r}:{31+2*r}]")
    for T in (1, 0, 2, 3):
        for p in range(2):
            a(f"v_pk_add_f32 {v2(AC1+4*T+2*p)}, {v2(AC1+4*T+2*p)}, {v2(AC2+4*T+2*p)} neg_hi:[0,1]")
        if T == 1: a(f"v_cndmask_b32 v{S}, 0, v{AC1+4+2}, s[38:39]")
    a(f"""v_permlane32_swap_b32 v{Q}, v{S}
    v_add_f32 v{Q}, v{Q}, v{S}
    v_mov_b32 v{S}, v{Q}
    v_permlane16_swap_b32 v{Q}, v{S}
    v_add_f32 v{Q}, v{Q}, v{S}
    v_mov_b32 v{S}, v{Q}
    v_permlane32_swap_b32 v{Q}, v{S}
    v_mul_f32 v{M}, {fl(-1.0/448)}, v{S}
    v_mul_f32 v{Q}, {fl(1.0/448)}, v{Q}
    v_fma_f32 v{Q}, -v{M}, v{M}, v{Q}
    v_max_f32 v{Q}, 0, v{Q}""")
    sd_chain(a, Q, RS)
    a(f"v_rcp_f32 v{RS}, v{RS}")
    a("s_waitcnt lgkmcnt(0)")
    for T in range(4):
        for p in range(2):
            x = AC1 + 4*T + 2*p
            a(f"v_pk_fma_f32 {v2(x)}, {v2(CS+4*T+2*p)}, {v2(M)}, {v2(x)} op_sel_hi:[1,0,1]")
    for T in range(4):
        for p in range(2):
            x = AC1 + 4*T + 2*p
            a(f"v_pk_mul_f32 {v2(x)}, {v2(x)}, {v2(RS)} op_sel_hi:[1,0]")
        for p in range(2):
            x = AC1 + 4*T + 2*p
            a(f"v_cvt_pk_f16_f32 v{AC2+2*T+p}, v{x}, v{x+1}")
        a(f"ds_write_b64 v{VFW}, {v2(AC2+2*T)} offset:{32*T}")
    a("s_waitcnt lgkmcnt(0)\ns_barrier")
    FA = XF
    for ks in range(2):
        for T in range(4):
            for h in range(2):
                a(f"ds_read_b64_tr_b16 {v2(FA+(2*T+ks)*4+2*h)}, v{VFR} offset:{(32*ks+4*h)*PF+32*T}")
    UR = AC1; UI = AC1 + 8
    for ks in range(2):
        a(f"s_waitcnt lgkmcnt({8 if ks == 0 else 0})")
        for T in range(2):
            fr = v4(FA+(2*T+ks)*4); fi = v4(FA+(2*(T+2)+ks)*4)
            a(f"v_mfma_f32_16x16x32_f16 {v4(UR+4*T)}, {fr}, {v4(WC+4*ks)}, {'0' if ks == 0 else v4(UR+4*T)}")
            a(f"v_mfma_f32_16x16x32_f16 {v4(UI+4*T)}, {fi}, {v4(WC+4*ks)}, {'0' if ks == 0 else v4(UI+4*T)}")
        for T in range(2):
            fr = v4(FA+(2*T+ks)*4); fi = v4(FA+(2*(T+2)+ks)*4)
            a(f"v_mfma_f32_16x16x32_f16 {v4(UR+4*T)}, {fi}, {v4(WSN+4*ks)}, {v4(UR+4*T)}")
            a(f"v_mfma_f32_16x16x32_f16 {v4(UI+4*T)}, {fr}, {v4(WNS+4*ks)}, {v4(UI+4*T)}")
    for T in range(2):
        for r in range(4):
            a(f"v_cvt_pk_f16_f32 v{AC2+4*T+r}, v{UR+4*T+r}, v{UI+4*T+r}")
        a(f"buffer_store_dwordx4 {v4(AC2+4*T)}, v{VU}, s[12:15], s26 offen offset:{128*T} {SC}")

B_R = 12; B_AF = 44; B_ACC = 52; B_XR = 128; B_WR = 132; B_XU = 76; B_WU = 84; B_AD = 92; B_TH = 96
B_S1, B_S2, B_S3 = 104, 106, 108
B_VY = 11; B_VU = 10; B_VF = 110

def b_loads(a):
    a(f"""s_and_b32 s92, s2, 7
    s_lshr_b32 s93, s2, 6
    s_lshl_b32 s93, s93, 3
    s_or_b32 s92, s92, s93
    s_bfe_u32 s93, s2, 0x10003
    s_bfe_u32 s96, s2, 0x20004
    s_sub_u32 s95, 64, s92
    s_cmp_eq_u32 s92, 0
    s_cselect_b32 s95, 32, s95
    s_cselect_b32 s94, 0, 1
    s_xor_b32 s94, s94, s93
    s_cmp_eq_u32 s93, 0
    s_cselect_b32 s95, s92, s95
    s_lshl_b32 s96, s96, 9
    s_add_u32 s95, s95, s96
    s_lshl_b32 s96, s20, 6
    s_add_u32 s96, s96, s95
    s_mul_i32 s97, s96, 896""")
    srd(a, 16, 40, 896)
    a(f"buffer_load_dwordx4 {v4(B_WR)}, v{VL}, s[16:19], 0 offen")
    a(f"buffer_load_dwordx4 {v4(B_XR)}, v{VL}, s[8:11], s97 offen")

def b_prologue(a):
    EPS, BASE = 8, 9
    AF, XR, WR, XU, WU, AD, TH = B_AF, B_XR, B_WR, B_XU, B_WU, B_AD, B_TH
    S1, S2, S3 = B_S1, B_S2, B_S3
    a(f"""s_lshl_b32 s28, s92, 16
    s_lshl_b32 s29, s20, 8
    s_add_u32 s28, s28, s29
    s_add_u32 s29, s28, 4096
    s_add_u32 s30, s28, 32768
    s_add_u32 s31, s28, 36864
    v_lshlrev_b32 v{B_VU}, 13, v{G}
    v_lshl_add_u32 v{B_VU}, v{N}, 4, v{B_VU}
    v_and_b32 v{T0}, 7, v{N}
    v_lshlrev_b32 v{T0}, 6, v{T0}
    v_add_u32 v{T0}, s95, v{T0}
    v_cvt_f32_u32 v{T0}, v{T0}
    v_cmp_gt_u32 vcc, 8, v{N}
    v_mul_f32 v{EPS}, {fl(1.0/2048)}, v{T0}
    v_lshlrev_b32 v{T1}, 2, v{G}
    v_cndmask_b32 v{EPS}, -v{EPS}, v{EPS}, vcc
    v_cvt_f32_u32 v{T1}, v{T1}
    v_mul_f32 v{BASE}, v{T1}, v{EPS}""")
    for ks in range(2):
        for i in range(4):
            k = 16*ks + i
            if k == 0: a(f"v_mov_b32 v{TH+i}, v{BASE}")
            else: a(f"v_fmamk_f32 v{TH+i}, v{EPS}, {fl(float(k))}, v{BASE}")
        for i in range(4):
            a(f"v_sin_f32 v{TH+4+i}, v{TH+i}")
            a(f"v_cos_f32 v{TH+i}, v{TH+i}")
        for i in range(4):
            a(f"v_cvt_pk_f16_f32 v{AF+4*ks+i}, v{TH+i}, v{TH+4+i}")
    a(f"""v_lshrrev_b32 v{T0}, 3, v{N}
    v_and_b32 v{T1}, 3, v{N}
    v_lshlrev_b32 v{T1}, 2, v{T1}
    v_lshl_add_u32 v{T0}, v{T0}, 4, v{T1}
    s_mul_i32 s32, s20, 28
    v_add_u32 v{T1}, s32, v{T0}
    v_sub_u32 v{T2}, 448, v{T1}
    v_cmp_gt_u32 s[34:35], 2, v{G}
    v_mov_b32 v{TH}, s93
    v_mov_b32 v{TH+1}, s94
    v_cndmask_b32 v{T2}, v{T2}, v{T1}, s[34:35]
    v_cndmask_b32 v{TH}, v{TH+1}, v{TH}, s[34:35]
    v_bfe_u32 v{TH+1}, v{N}, 2, 1
    v_cmp_eq_u32 s[36:37], v{TH}, v{TH+1}
    v_and_b32 v{TH+2}, 1, v{G}
    v_mul_u32_u24 v{TH+2}, {4*PY}, v{TH+2}
    v_add_lshl_u32 v{AD}, v{TH+2}, v{T2}, 2
    v_mov_b32 v{TH+3}, -4
    v_cndmask_b32 v{TH+3}, v{TH+3}, 4, s[34:35]
    v_add_u32 v{AD+1}, v{AD}, v{TH+3}
    v_add_u32 v{AD+2}, v{AD+1}, v{TH+3}
    v_add_u32 v{AD+3}, v{AD+2}, v{TH+3}
    v_cmp_gt_u32 s[62:63], 28, v{T0}
    s_and_b64 s[62:63], s[62:63], s[36:37]
    v_cmp_eq_u32 s[60:61], 0, v{T1}
    s_andn2_b64 s[60:61], s[60:61], s[34:35]
    s_andn2_b64 s[60:61], s[62:63], s[60:61]
    v_mov_b32 v{TH}, 224
    v_cmp_eq_u32 s[38:39], v{TH}, v{T1}
    s_and_b64 s[38:39], s[38:39], s[34:35]
    s_and_b64 s[38:39], s[38:39], s[36:37]
    s_or_b64 s[60:61], s[60:61], s[38:39]
    s_mul_i32 s33, s20, {PY*4}
    v_lshlrev_b32 v{B_VY}, 5, v{LANE}
    v_add_u32 v{B_VY}, s33, v{B_VY}
    v_and_b32 v{B_VF}, 31, v{LANE}
    v_lshlrev_b32 v{B_VF}, 2, v{B_VF}
    s_lshl_b32 s33, s20, 7
    s_add_u32 s33, s33, {WS_FLAG}""")
    unpack8(a, WU, WR)
    a(f"""v_pk_add_f32 {v2(S1)}, {v2(WU)}, {v2(WU+2)}
    v_pk_add_f32 {v2(S2)}, {v2(WU+4)}, {v2(WU+6)}
    v_pk_add_f32 {v2(S1)}, {v2(S1)}, {v2(S2)}
    v_add_f32 v{S1}, v{S1}, v{S1+1}
    v_mov_b32 v{S2}, 0
    v_mov_b32 v{S3}, 0""")
    reduce3(a, S1, S2, S3, T0, 58, 59, 59)
    for k in (S1, S1+1, S2, S2+1, S3, S3+1): a(f"v_mov_b32 v{k}, 0")
    unpack8(a, XU, XR)

C_K = 112; C_TMP = 116; C_L = {1: 120, 2: 121, 4: 122}; C_SW = 123; C_SR = 124; C_KA = 125
C_KEY = 126; C_OUT = 128; C_LN = 132

def c_prologue(a):
    lim_regs(a, C_L, LANE, T0)
    a(f"""s_lshl_b32 s34, s20, 5
    s_add_u32 s34, s34, {LSEL}
    v_lshlrev_b32 v{C_SR}, 2, v{LANE}
    v_add_u32 v{C_SW}, s34, v{C_SR}
    v_add_u32 v{C_SR}, {LSEL}, v{C_SR}
    v_lshlrev_b32 v{C_KA}, 4, v0
    s_lshl_b32 s35, s2, 5
    s_lshl_b32 s36, s20, 2
    s_add_u32 s35, s35, s36
    s_add_u32 s35, s35, {WS_KEYS}
    s_sub_u32 s36, {2047 + 0x800}, s96""")

def b_main(a):
    R, AF, ACC, XR, XU, WU, AD, TH = B_R, B_AF, B_ACC, B_XR, B_XU, B_WU, B_AD, B_TH
    S1, S2, S3 = B_S1, B_S2, B_S3
    poll(a, lambda: a(f"buffer_load_dword v{T0}, v{B_VF}, s[12:15], s33 offen {SC}"),
            lambda: a(f"v_cmp_ne_u32 vcc, s56, v{T0}"))
    stamp(a, 5)
    for ks in range(2):
        for i in range(4):
            a(f"buffer_load_dwordx4 {v4(R+16*ks+4*i)}, v{B_VU}, s[12:15], s{28+2*ks+(i>>1)} offen offset:{2048*(i&1)} {SC}")
    for ks in range(2):
        a(f"s_waitcnt vmcnt({4-4*ks})")
        for i in range(4):
            for j in range(i+1, 4):
                a(f"v_swap_b32 v{R+16*ks+4*i+j}, v{R+16*ks+4*j+i}")
        for j in range(4):
            c = "0" if ks == 0 else v4(ACC+4*j)
            a(f"v_mfma_f32_16x16x32_f16 {v4(ACC+4*j)}, {v4(AF+4*ks)}, {v4(R+16*ks+4*j)}, {c}")
    stamp(a, 6)
    for j in range(4):
        if j < 2: a(f"s_mov_b64 exec, s[{60+2*j}:{61+2*j}]")
        for r in range(4):
            a(f"ds_write_b32 v{AD+j}, v{ACC+4*j+r} offset:{LY + r*PY*4}")
    a("""s_mov_b32 exec_lo, -1
    s_mov_b32 exec_hi, 0x00ffffff
    s_waitcnt lgkmcnt(0)
    s_barrier""")
    H = R
    a(f"ds_read_b128 {v4(H)}, v{B_VY} offset:{LY}\nds_read_b128 {v4(H+4)}, v{B_VY} offset:{LY+16}")
    for hf in range(2):
        a(f"s_waitcnt lgkmcnt({1-hf})")
        for p in range(2):
            x = 4*hf + 2*p
            a(f"v_pk_add_f32 {v2(H+x)}, {v2(H+x)}, {v2(XU+x)}")
        for p in range(2):
            x = 4*hf + 2*p
            a(f"v_pk_add_f32 {v2(S1)}, {v2(S1)}, {v2(H+x)}")
            a(f"v_pk_fma_f32 {v2(S2)}, {v2(H+x)}, {v2(H+x)}, {v2(S2)}")
            a(f"v_pk_fma_f32 {v2(S3)}, {v2(H+x)}, {v2(WU+x)}, {v2(S3)}")
    a(f"""s_mov_b32 exec_hi, -1
    v_add_f32 v{S1}, v{S1}, v{S1+1}
    v_add_f32 v{S2}, v{S2}, v{S2+1}
    v_add_f32 v{S3}, v{S3}, v{S3+1}""")
    reduce3(a, S1, S2, S3, T0, 37, 38, 39)
    M, V, SD, RS, C0, KEY = TH, TH+1, TH+2, TH+4, TH+6, C_KEY
    a(f"""v_mov_b32 v{V}, {fl(1.0/448)}
    v_mul_f32 v{M}, s37, v{V}
    v_mul_f32 v{V}, s38, v{V}
    v_mov_b32 v{KEY}, s39
    v_fma_f32 v{V}, -v{M}, v{M}, v{V}
    v_fma_f32 v{KEY}, -v{M}, s58, v{KEY}
    v_max_f32 v{V}, 0, v{V}""")
    sd_chain(a, V, SD)
    a(f"""v_rcp_f32 v{RS}, v{SD}
    v_mul_f32 v{KEY}, v{KEY}, v{RS}
    v_cvt_pk_bf16_f32 v{KEY}, v{KEY}, v{KEY}
    v_mul_f32 v{C0}, -v{M}, v{RS}
    v_ashrrev_i32 v{T0}, 31, v{KEY}
    v_or_b32 v{T0}, 0x80000000, v{T0}
    v_xor_b32 v{KEY}, v{KEY}, v{T0}
    v_and_b32 v{KEY}, 0xffff0000, v{KEY}
    v_or_b32 v{KEY}, s36, v{KEY}
    s_mov_b64 exec, 1
    buffer_store_dword v{KEY}, v{VL}, s[12:15], s35 offen {SC}
    s_mov_b64 exec, -1""")
    stamp(a, 7)
    for p in range(4):
        a(f"v_pk_fma_f32 {v2(XU+2*p)}, {v2(H+2*p)}, {v2(RS)}, {v2(C0)} op_sel_hi:[1,0,0]")
    for p in range(4):
        a(f"v_pk_add_f32 {v2(H+2*p)}, {v2(H+2*p)}, {v2(XU+2*p)}")
    for p in range(4):
        a(f"v_cvt_pk_bf16_f32 v{C_LN+p}, v{XU+2*p}, v{XU+2*p+1}")
        a(f"v_cvt_pk_bf16_f32 v{C_OUT+p}, v{H+2*p}, v{H+2*p+1}")

def c_select(a):
    K = C_K
    a(f"s_mov_b32 s34, {WS_KEYS}")
    def chk():
        a(f"v_min3_u32 v{T0}, v{K}, v{K+1}, v{K+2}")
        a(f"v_min_u32 v{T0}, v{T0}, v{K+3}")
        a(f"v_cmp_eq_u32 vcc, 0, v{T0}")
    poll(a, lambda: a(f"buffer_load_dwordx4 {v4(K)}, v{C_KA}, s[12:15], s34 offen {SC}"), chk)
    stamp(a, 8)
    select8(a, K, C_TMP, C_L, C_SW, C_SR)
    stamp(a, 9)
    a(f"""v_cmp_eq_u32 vcc, v{K}, v{C_KEY}
    s_mov_b32 exec_hi, 0x00ffffff
    s_cmp_eq_u64 vcc, 0
    s_cbranch_scc0 Lsel_own
    buffer_store_dwordx4 {v4(C_OUT)}, v{VL}, s[52:55], s97 offen
    s_branch Lsel_done
    Lsel_own:
    s_ff1_i32_b64 s34, vcc
    s_mul_i32 s34, s34, 896
    s_add_u32 s34, s34, {WS_XSEL}""")
    for i in range(4): a(f"v_min_u32 v{C_LN+i}, -2, v{C_LN+i}")
    a(f"buffer_store_dwordx4 {v4(C_LN)}, v{VL}, s[12:15], s34 offen {SC}")
    for i in range(4): a(f"v_min_u32 v{C_OUT+i}, -2, v{C_OUT+i}")
    a(f"s_add_u32 s34, s34, {8*896}")
    a(f"buffer_store_dwordx4 {v4(C_OUT)}, v{VL}, s[12:15], s34 offen {SC}")
    a(f"""Lsel_done:
    s_mov_b32 exec_hi, -1""")

def anyones(a, regs, t):
    regs = list(regs)
    a(f"v_max_u32 v{t}, v{regs[0]}, v{regs[1]}")
    rest = regs[2:]
    while len(rest) >= 2:
        a(f"v_max3_u32 v{t}, v{t}, v{rest[0]}, v{rest[1]}"); rest = rest[2:]
    if rest: a(f"v_max_u32 v{t}, v{t}, v{rest[0]}")
    a(f"v_cmp_eq_u32 vcc, -1, v{t}")

def c1(a):
    XR = 12; XF = 16; ACC = 72; XU = 80
    a(f"""s_mul_i32 s34, s20, 896
    s_add_u32 s34, s34, {WS_XSEL}
    s_mul_i32 s29, s20, {PX}
    s_add_u32 s29, s29, {LXS}
    v_add_u32 v{T2}, s29, v{VL}
    s_cmp_lg_u32 s20, 0
    s_cbranch_scc1 Lc1_now
    v_lshrrev_b32 v{T0}, 2, v{N}
    v_lshl_add_u32 v{T0}, v{G}, 3, v{T0}
    v_lshlrev_b32 v{T0}, 4, v{T0}
    v_and_b32 v{T1}, 1, v{N}
    v_lshl_add_u32 v{T0}, v{T1}, 3, v{T0}
    v_bfe_u32 v{T1}, v{N}, 1, 1
    v_lshl_add_u32 v{T0}, v{T1}, 13, v{T0}
    v_add_u32 v{T0}, {LWT}, v{T0}""")
    for j in range(14):
        for h in range(2):
            a(f"ds_read_b64_tr_b16 a[{4*j+2*h}:{4*j+2*h+1}], v{T0} offset:{(32*j+4*h)*16}")
    a(f"""s_cmp_lg_u32 s2, 0
    s_cbranch_scc1 Lc1_now
    s_mov_b64 exec, 1
    v_mov_b32 v{T0}, s56
    s_mov_b32 s29, {WS_EPOCH}
    buffer_store_dword v{T0}, v{VL}, s[12:15], s29 offen {SC}
    s_mov_b64 exec, -1
    Lc1_now:
    s_mov_b32 exec_hi, 0x00ffffff""")
    poll(a, lambda: a(f"buffer_load_dwordx4 {v4(XR)}, v{VL}, s[12:15], s34 offen {SC}"),
            lambda: anyones(a, range(XR, XR+4), T0))
    a(f"""ds_write_b128 v{T2}, {v4(XR)}
    s_mov_b32 exec_hi, -1
    s_waitcnt lgkmcnt(0)
    s_barrier
    s_cmp_lg_u32 s20, 0
    s_cbranch_scc1 Lend
    v_and_b32 v{T0}, 7, v{N}
    v_mul_u32_u24 v{T0}, {PX}, v{T0}
    v_lshl_add_u32 v{T0}, v{G}, 4, v{T0}""")
    stamp(a, 10)
    for j in range(14):
        a(f"ds_read_b128 {v4(XF+4*j)}, v{T0} offset:{LXS+64*j}")
    a(f"""v_lshlrev_b32 v{T0}, 4, v{N}
    v_lshl_add_u32 v{T0}, v{G}, 3, v{T0}
    s_lshl_b32 s22, s50, 7
    s_add_u32 s22, s22, {WS_ACT}""")
    for j in range(14):
        a(f"s_waitcnt lgkmcnt({13-j})")
        A = ACC + 4*(j & 1)
        a(f"v_mfma_f32_16x16x32_bf16 {v4(A)}, {a4(4*j)}, {v4(XF+4*j)}, {'0' if j < 2 else v4(A)}")
    for p in range(2):
        a(f"v_pk_add_f32 {v2(ACC+2*p)}, {v2(ACC+2*p)}, {v2(ACC+4+2*p)}")
    for r in range(4): rbf(a, ACC+r, ACC+r)
    for r in range(4): a(f"v_mov_b32 v{ACC+4+r}, v{ACC+r}")
    for r in range(4): a(f"v_permlane32_swap_b32 v{ACC+r}, v{ACC+4+r}")
    for r in range(4): a(f"v_mul_f32 v{XU+r}, {fl(-1.4426950408889634)}, v{ACC+r}")
    for r in range(4): a(f"v_exp_f32 v{XU+r}, v{XU+r}")
    for r in range(4): a(f"v_add_f32 v{XU+r}, 1.0, v{XU+r}")
    for r in range(4): a(f"v_rcp_f32 v{XU+r}, v{XU+r}")
    for r in range(4): a(f"v_mul_f32 v{ACC+r}, v{ACC+r}, v{XU+r}")
    for r in range(4): rbf(a, ACC+r, ACC+r)
    for r in range(4): a(f"v_mul_f32 v{ACC+r}, v{ACC+r}, v{ACC+4+r}")
    for p in range(2): a(f"v_cvt_pk_bf16_f32 v{XR+p}, v{ACC+2*p}, v{ACC+2*p+1}")
    for p in range(2): a(f"v_min_u32 v{XR+p}, -2, v{XR+p}")
    a(f"""s_mov_b32 exec_lo, 0x00ff00ff
    s_mov_b32 exec_hi, 0
    buffer_store_dwordx2 {v2(XR)}, v{T0}, s[12:15], s22 offen {SC}
    s_branch Lend""")

def c2(a):
    K = C_K
    OA = 8; OR = 10; AF = 12; WF = 40; ACC = 68; RD = 76; SG = 108; VA = 109; VO = 110
    a(f"""v_lshrrev_b32 v{T0}, 2, v{N}
    v_lshl_add_u32 v{T0}, v{G}, 3, v{T0}
    v_lshlrev_b32 v{T0}, 5, v{T0}
    v_and_b32 v{T1}, 3, v{N}
    v_lshl_add_u32 v{T0}, v{T1}, 3, v{T0}
    s_mul_i32 s24, s20, 7168
    s_add_u32 s24, s24, {LWT}
    v_add_u32 v{T0}, s24, v{T0}""")
    for j in range(7):
        for h in range(2):
            a(f"ds_read_b64_tr_b16 {v2(WF+4*j+2*h)}, v{T0} offset:{(32*j+4*h)*32}")
    a(f"""v_and_b32 v{T1}, 7, v{N}
    v_mul_u32_u24 v{VO}, 896, v{T1}
    v_lshl_add_u32 v{VO}, v{G}, 3, v{VO}
    v_lshlrev_b32 v{VA}, 4, v{T1}
    v_lshl_add_u32 v{VA}, v{G}, 7, v{VA}
    s_mul_i32 s25, s20, {7*512}
    s_add_u32 s25, s25, {WS_ACT}
    s_add_u32 s24, s51, {WS_XSEL + 8*896}
    v_and_b32 v{OA}, 0x7ff, v{K}
    v_sub_u32 v{OA}, 2047, v{OA}
    v_mul_u32_u24 v{OA}, 896, v{OA}
    v_lshl_add_u32 v{OA}, v{G}, 3, v{OA}
    v_ashrrev_i32 v{T2}, 31, v{K}
    v_not_b32 v{T2}, v{T2}
    v_or_b32 v{T2}, 0x80000000, v{T2}
    v_xor_b32 v{K}, v{K}, v{T2}
    v_and_b32 v{K}, 0xffff0000, v{K}""")
    sigmoid_mul(a, SG, K, "1.0", T2)
    rbf(a, SG, SG)
    a(f"""v_lshlrev_b32 v{T1}, 4, v0
    v_add_u32 v{T1}, {LRED}, v{T1}
    s_cmp_lg_u32 s20, 0
    s_cbranch_scc1 Lc2_act""")
    poll(a, lambda: a(f"buffer_load_dwordx2 {v2(OR)}, v{VO}, s[12:15], s24 offen {SC}"),
            lambda: anyones(a, range(OR, OR+2), T0))
    a("Lc2_act:")
    def lds():
        for j in range(7):
            a(f"buffer_load_dwordx4 {v4(AF+4*j)}, v{VA}, s[12:15], s25 offen offset:{512*j} {SC}")
    poll(a, lds, lambda: anyones(a, range(AF, AF+28), T0))
    stamp(a, 10)
    a("s_waitcnt lgkmcnt(0)")
    for j in range(7):
        A = ACC + 4*(j & 1)
        a(f"v_mfma_f32_16x16x32_bf16 {v4(A)}, {v4(WF+4*j)}, {v4(AF+4*j)}, {'0' if j < 2 else v4(A)}")
    for p in range(2):
        a(f"v_pk_add_f32 {v2(ACC+2*p)}, {v2(ACC+2*p)}, {v2(ACC+4+2*p)}")
    a(f"""ds_write_b128 v{T1}, {v4(ACC)}
    s_waitcnt lgkmcnt(0)
    s_barrier
    s_cmp_lg_u32 s20, 0
    s_cbranch_scc1 Lend""")
    for w in range(1, 8):
        a(f"ds_read_b128 {v4(RD+4*w)}, v{T1} offset:{1024*w}")
    for i in range(2):
        a(f"v_lshlrev_b32 v{RD+2*i}, 16, v{OR+i}")
        a(f"v_and_b32 v{RD+2*i+1}, 0xffff0000, v{OR+i}")
    for w in range(1, 8):
        a(f"s_waitcnt lgkmcnt({7-w})")
        for p in range(2):
            a(f"v_pk_add_f32 {v2(ACC+2*p)}, {v2(ACC+2*p)}, {v2(RD+4*w+2*p)}")
    for r in range(4): rbf(a, ACC+r, ACC+r)
    for r in range(4): a(f"v_mul_f32 v{ACC+r}, v{ACC+r}, v{SG}")
    for r in range(4): rbf(a, ACC+r, ACC+r)
    for p in range(2):
        a(f"v_pk_add_f32 {v2(ACC+2*p)}, {v2(ACC+2*p)}, {v2(RD+2*p)}")
    for p in range(2): a(f"v_cvt_pk_bf16_f32 v{OR+p}, v{ACC+2*p}, v{ACC+2*p+1}")
    a(f"""s_mov_b32 exec_lo, 0x00ff00ff
    s_mov_b32 exec_hi, 0x00ff00ff
    buffer_store_dwordx2 {v2(OR)}, v{OA}, s[52:55], s51 offen""")

def srds_common(a):
    srd(a, 8, 4, XB)
    srd(a, 12, 6, WS_SIZE)
    srd(a, 52, 48, XB)

def kernel(a):
    if OPT["stamps"]:
        for k in range(NST): a(f"s_mov_b32 s{64+2*k}, 0")
    stamp(a, 0)
    if OPT.get("dbg"): a("s_memtime s[100:101]")
    a(f"""s_cmp_ge_u32 s2, 256
    s_cbranch_scc1 Lexit
    s_load_dwordx2 s[4:5], s[0:1], 0
    s_load_dwordx2 s[6:7], s[0:1], 96
    s_load_dwordx8 s[40:47], s[0:1], 48
    s_load_dwordx2 s[48:49], s[0:1], 80
    v_lshrrev_b32 v{T0}, 6, v0
    v_and_b32 v{LANE}, 63, v0
    v_readfirstlane_b32 s20, v{T0}
    v_and_b32 v{N}, 15, v0
    v_bfe_u32 v{G}, v0, 4, 2
    v_lshlrev_b32 v{VL}, 4, v{LANE}
    s_and_b32 s21, s2, 31
    s_lshr_b32 s22, s2, 5
    s_cmp_ge_u32 s20, 4
    s_cbranch_scc1 Lloader""")
    a_compute_pre(a)
    srds_common(a)
    a(f"""s_mov_b32 s23, {WS_EPOCH}
    v_mov_b32 v{T0}, 0
    buffer_load_dword v{T1}, v{T0}, s[12:15], s23 offen {SC}""")
    b_loads(a)
    a("s_waitcnt lgkmcnt(0)")
    stamp(a, 1)
    a("s_barrier")
    stamp(a, 2)
    a_compute_main(a)
    stamp(a, 4)
    a(f"""s_waitcnt vmcnt(0)
    v_readfirstlane_b32 s56, v{T1}
    s_barrier
    s_branch Lpro""")
    a(f"""Lloader:
    s_sub_u32 s25, s20, 4
    s_lshl_b32 s23, s25, 9
    s_add_u32 s23, s23, s21
    s_mul_i32 s23, s23, 896
    s_mul_i32 s24, s25, {16*PX}
    s_waitcnt lgkmcnt(0)""")
    srd(a, 8, 4, XB)
    a("s_mov_b32 exec_hi, 0x00ffffff")
    for i in range(16):
        a(f"s_mov_b32 m0, s24")
        a(f"s_add_u32 s24, s24, {PX}")
        a(f"buffer_load_dwordx4 v{VL}, s[8:11], s23 offen lds")
        a(f"s_add_u32 s23, s23, {32*896}")
    a("s_mov_b32 exec_hi, -1")
    srd(a, 12, 6, WS_SIZE)
    srd(a, 52, 48, XB)
    a(f"""s_mov_b32 s23, {WS_EPOCH}
    v_mov_b32 v{T0}, 0
    buffer_load_dword v9, v{T0}, s[12:15], s23 offen {SC}""")
    b_loads(a)
    a(f"""buffer_load_dword v8, v{T0}, s[52:55], s97 offen
    s_cmp_lg_u32 s20, 4
    s_cbranch_scc1 Lnoclear
    v_lshlrev_b32 v{T1}, 2, v{LANE}
    v_mov_b32 v{T2}, -1
    s_lshl_b32 s23, s2, 5
    s_add_u32 s23, s23, {WS_KEYS}
    s_lshl_b32 s24, s2, 7
    s_add_u32 s24, s24, {WS_ACT}
    s_mul_i32 s26, s2, 56
    s_add_u32 s26, s26, {WS_XSEL}
    s_mov_b64 exec, 0xff
    buffer_store_dword v{T0}, v{T1}, s[12:15], s23 offen {SC}
    s_mov_b64 exec, 0x3fff
    buffer_store_dword v{T2}, v{T1}, s[12:15], s26 offen {SC}
    s_mov_b32 exec_lo, -1
    buffer_store_dword v{T2}, v{T1}, s[12:15], s24 offen {SC}
    s_mov_b32 exec_hi, -1
    Lnoclear:
    s_barrier
    s_cmp_ge_u32 s2, 224
    s_cbranch_scc1 Lwdown""")
    srd(a, 16, 42, 448*3584)
    srd(a, 28, 44, 448*3584)
    a(f"""s_lshl_b32 s23, s25, 6
    v_add_u32 v{T1}, s23, v{LANE}
    v_mul_u32_u24 v{T1}, 3584, v{T1}
    s_and_b32 s23, s2, 7
    s_mul_i32 s23, s23, 28
    s_lshr_b32 s24, s2, 3
    s_add_u32 s23, s23, s24
    s_lshl_b32 s23, s23, 4
    s_add_u32 s26, s23, {256*3584}
    s_lshl_b32 s24, s25, 10
    s_add_u32 s24, s24, {LWT}
    s_mov_b32 m0, s24
    s_add_u32 s24, s24, 4096
    buffer_load_dwordx4 v{T1}, s[16:19], s23 offen lds
    s_mov_b32 m0, s24
    s_add_u32 s24, s24, 4096
    buffer_load_dwordx4 v{T1}, s[16:19], s26 offen lds
    s_mov_b32 m0, s24
    s_add_u32 s24, s24, 4096
    buffer_load_dwordx4 v{T1}, s[28:31], s23 offen lds
    s_mov_b32 m0, s24
    s_nop 0
    buffer_load_dwordx4 v{T1}, s[28:31], s26 offen lds
    s_waitcnt vmcnt(4)
    s_branch Lld_x
    Lwdown:""")
    srd(a, 16, 46, 1792*896)
    a(f"""v_lshrrev_b32 v{T1}, 1, v{LANE}
    v_mul_u32_u24 v{T1}, 896, v{T1}
    v_and_b32 v{T2}, 1, v{LANE}
    v_lshl_add_u32 v{T1}, v{T2}, 4, v{T1}
    s_mul_i32 s23, s25, {448*896}
    s_and_b32 s24, s2, 7
    s_lshl_b32 s24, s24, 7
    s_bfe_u32 s26, s2, 0x20003
    s_lshl_b32 s26, s26, 5
    s_add_u32 s23, s23, s26
    s_add_u32 s23, s23, s24
    s_cmp_eq_u32 s24, {7*128}
    s_cselect_b32 s23, 0x7f000000, s23
    s_mul_i32 s24, s25, 14336
    s_add_u32 s24, s24, {LWT}""")
    for j in range(14):
        a(f"s_mov_b32 m0, s24")
        a(f"s_add_u32 s24, s24, 1024")
        a(f"buffer_load_dwordx4 v{T1}, s[16:19], s23 offen lds")
        a(f"s_add_u32 s23, s23, {32*896}")
    a(f"""s_waitcnt vmcnt(14)
    Lld_x:
    v_readfirstlane_b32 s56, v9""")
    stamp(a, 1)
    a("s_barrier")
    stamp(a, 2)
    a("Lpro:")
    a("s_add_u32 s56, s56, 1")
    b_prologue(a)
    c_prologue(a)
    a(f"""s_cmp_lt_u32 s20, 4
    s_cbranch_scc1 Lmain""")
    stamp(a, 3)
    a(f"""s_barrier
    s_barrier
    s_cmp_lg_u32 s20, 4
    s_cbranch_scc1 Lmain
    s_lshl_b32 s34, s2, 2
    s_add_u32 s34, s34, {WS_FLAG}
    v_mov_b32 v{T0}, s56
    s_mov_b64 exec, 1
    buffer_store_dword v{T0}, v{VL}, s[12:15], s34 offen {SC}
    s_mov_b64 exec, -1""")
    stamp(a, 4)
    a("Lmain:")
    b_main(a)
    c_select(a)
    a(f"""s_and_b32 s50, s2, 7
    s_lshr_b32 s51, s2, 3
    s_cmp_ge_u32 s2, 224
    s_cbranch_scc1 Lc2
    s_mul_i32 s50, s50, 28
    s_add_u32 s50, s50, s51""")
    c1(a)
    a(f"""Lc2:
    s_cmp_eq_u32 s50, 7
    s_cbranch_scc1 Lend
    s_lshl_b32 s50, s50, 7
    s_and_b32 s51, s51, 3
    s_lshl_b32 s51, s51, 5
    s_add_u32 s51, s51, s50""")
    c2(a)
    a("Lend:")
    dump_stamps(a)
    a("Lexit:\ns_endpgm")

NAME = "sequential_preLN__spectral_fnet__moe_arch_mod__prompt_kernel"
def build():
    a = Asm()
    kernel(a)
    return gen.HDR + f"""; @launch grid=(256,1,1) block=(512,1,1) lds={LDS_TOTAL}
.amdgcn_target "amdgcn-amd-amdhsa--gfx950"
.text
.globl {NAME}
.p2align 8
.type {NAME},@function
{NAME}:
""" + a.finish() + f""".section .rodata,"a"
.p2align 6
.amdhsa_kernel {NAME}
  .amdhsa_next_free_vgpr 256
  .amdhsa_next_free_sgpr 102
  .amdhsa_accum_offset 144
  .amdhsa_group_segment_fixed_size 0
  .amdhsa_kernarg_size 104
  .amdhsa_user_sgpr_count 2
  .amdhsa_user_sgpr_kernarg_segment_ptr 1
  .amdhsa_system_sgpr_workgroup_id_x 1
.end_amdhsa_kernel
"""

if __name__ == "__main__":
    if "--stamps" in sys.argv:
        OPT["stamps"] = True; sys.argv.remove("--stamps")
    for x in list(sys.argv):
        if x.startswith("--dbg="):
            OPT["stamps"] = True; OPT["dbg"] = int(x[6:]); sys.argv.remove(x)
    open(sys.argv[1], "w").write(build())
```

```python
import sys
from asmlib import Asm, fl, regs
import gen
from gen import srd, v4, v2, rbf, sd_chain, reduce3, unpack8, lim_regs, select8, sigmoid_mul

WS_U = 0
WS_KEYS = 0x200000
WS_FLAG = 0x204000
WS_EPOCH = 0x208000
WS_XSEL = 0x209000
WS_ACT = 0x210000
WS_WD = 0x220000
WS_SIZE = 0x400000
WS_STAMP = 0x3c0000
XB = 1835008
PX = 928; PF = 136; PY = 452
LX = 0; LW = 64 * PX; LCS = LW + 28 * 1024; LF = LCS + 256; LWT = LF + 64 * PF; LDS_TOTAL = LWT + 57344
LY = 0
LSEL = 16384; LKEY = 16640; LXS = 16896; LRED = 24576
SPIN = 200000
SC = "sc1"
OPT = dict(stamps=False, keygather=True, sl_x=0, sl_a=0, sl_k=0, sl_u=0, hookj=0, codepf=1, gu=0, lateclr=2, ldpoll=1, sl_u0=0, sl_f=0, sl_fl=0, cyc=0, lateb=1)
NST = 14

def stamp(a, k):
    if OPT["stamps"]: a(f"{'s_memtime' if OPT['cyc'] else 's_memrealtime'} s[{64+2*k}:{65+2*k}]")
def dump_stamps(a):
    if not OPT["stamps"]: return
    stamp(a, NST - 2)
    a("s_waitcnt vmcnt(0)")
    stamp(a, NST - 1)
    a("s_mov_b64 exec, 1\ns_waitcnt lgkmcnt(0)")
    a(f"s_lshl_b32 s60, s2, 3\ns_add_u32 s60, s60, s20\ns_lshl_b32 s60, s60, 6\ns_add_u32 s60, s60, {WS_STAMP}\nv_mov_b32 v1, 0")
    for k in range(NST):
        a(f"v_mov_b32 v2, s{64+2*k}\nbuffer_store_dword v2, v1, s[12:15], s60 offen offset:{4*k}")

_lbl = [0]
def poll(a, loads, check, sleep=0, pre=0):
    _lbl[0] += 1
    L = f"Lpoll{_lbl[0]}"
    if pre: a(f"s_sleep {pre}")
    a(f"s_mov_b32 s57, {SPIN}\n{L}:")
    loads()
    a("s_waitcnt vmcnt(0)")
    check()
    a(f"""s_cmp_eq_u64 vcc, 0
    s_cbranch_scc1 {L}d""")
    if sleep: a(f"s_sleep {sleep}")
    a(f"""s_sub_u32 s57, s57, 1
    s_cbranch_scc0 {L}
    {L}d:""")

class LdsQ:
    def __init__(s, a): s.a = a; s.q = []
    def read(s, text, dst):
        s.a(text); s.q.append(set(dst))
    def need(s, rs):
        rs = set(rs); last = -1
        for i, d in enumerate(s.q):
            if d & rs: last = i
        if last >= 0:
            n = len(s.q) - 1 - last
            s.a(f"s_waitcnt lgkmcnt({n})")
            s.q = s.q[last+1:]

LANE, N, G, T0, T1, T2, VL = 1, 2, 3, 4, 5, 6, 7
B_AF = 8; B_AD = 16; B_VY = 20; B_VU = 21; B_VF = 22
C_L = {1: 23, 2: 24, 4: 25}; C_SW = 26; C_SR = 27; C_KA = 28; V_EP = 29
VFW = 30; VFR = 31; B_XR = 32; B_WR = 36; VXR = 40; VCS = 41; VWR = 42; VUS = 43
WC = 44; WSN = 52; WNS = 60
AC1 = 68; AC2 = 84; GR = 100; WB = 104; XBF = 136; ST = 152; TH = 160; ONE = 168; TO = 172
B_R = 104; B_ACC = 68; B_XU = 84; B_WU = 92; B_S1, B_S2, B_S3 = 136, 138, 140; B_TH = 144
C_K = 152; C_TMP = 156; C_KEY = 160; C_OUT = 164; C_LN = 168
NVGPR = 232

def trig_block(a, n, k0, eps, base, th, want_sin):
    for i in range(n):
        k = k0 + i
        if k == 0: a(f"v_mov_b32 v{th+i}, v{base}")
        else: a(f"v_fmamk_f32 v{th+i}, v{eps}, {fl(float(k))}, v{base}")
    for i in range(n):
        if want_sin: a(f"v_sin_f32 v{th+n+i}, v{th+i}")
        a(f"v_cos_f32 v{th+i}, v{th+i}")

def a_pre(a, hook):
    EPS, BASE = ST + 4, ST + 5
    a(f"""s_and_b32 s25, s3, 1
    s_lshl_b32 s25, s25, 4
    v_add_u32 v{T0}, s25, v{N}
    s_mul_i32 s26, s22, 28
    v_add_u32 v{T1}, s26, v{T0}
    v_cmp_ne_u32 vcc, 30, v{T0}
    s_lshr_b32 s25, s3, 1
    s_mul_i32 s25, s25, {fl(0.25)}
    v_cndmask_b32 v{T1}, 0, v{T1}, vcc
    v_cvt_f32_u32 v{T1}, v{T1}
    v_mul_f32 v{EPS}, {fl(1.0/448)}, v{T1}
    v_lshlrev_b32 v{T0}, 3, v{G}
    v_cvt_f32_u32 v{T2}, v{T0}
    v_fma_f32 v{BASE}, v{T2}, v{EPS}, s25
    s_mul_i32 s25, s3, {7*1024}
    v_add_u32 v{VWR}, {LW}, v{VL}
    v_add_u32 v{T1}, s25, v{VWR}""")
    for i in range(4): a(f"v_mov_b32 v{ONE+i}, 0x3f803f80")
    CS = AC1
    for j in range(7):
        trig_block(a, 8, 32*j, EPS, BASE, TH, False)
        o = TO + 4*(j & 1)
        for i in range(4): a(f"v_cvt_pk_bf16_f32 v{o+i}, v{TH+2*i}, v{TH+2*i+1}")
        a(f"ds_write_b128 v{T1}, {v4(o)} offset:{j*1024}")
        a(f"v_mfma_f32_16x16x32_bf16 {v4(CS)}, {v4(o)}, {v4(ONE)}, {'0' if j == 0 else v4(CS)}")
        if j == OPT["hookj"]: hook()
    a(f"""v_lshrrev_b32 v{ST}, 1, v{N}
    s_lshl_b32 s25, s3, 3
    v_add_u32 v{ST}, s25, v{ST}
    v_sub_u32 v{ST+1}, 64, v{ST}
    v_cmp_eq_u32 vcc, 0, v{ST}
    v_and_b32 v{ST+2}, 1, v{N}
    v_cndmask_b32 v{ST+1}, v{ST+1}, 32, vcc
    v_cmp_eq_u32 vcc, 0, v{ST+2}
    v_lshlrev_b32 v{VUS}, 16, v{ST}
    v_cndmask_b32 v{ST+1}, v{ST+1}, v{ST}, vcc
    v_lshl_add_u32 v{VUS}, v{ST+2}, 6, v{VUS}
    v_cvt_f32_u32 v{ST+1}, v{ST+1}
    v_lshl_add_u32 v{VUS}, v{G}, 4, v{VUS}
    v_mul_f32 v{EPS}, {fl(1.0/64)}, v{ST+1}
    v_mul_f32 v{BASE}, v{T2}, v{EPS}
    s_lshl_b32 s25, s3, 6
    v_lshlrev_b32 v{T0}, 4, v{G}
    v_add_u32 v{VCS}, {LCS}, v{T0}
    v_add_u32 v{T1}, s25, v{VCS}
    v_add_f32 v{CS}, v{CS}, v{CS}
    v_mov_b32 v{CS+1}, 0
    v_add_f32 v{CS+2}, v{CS+2}, v{CS+2}
    v_mov_b32 v{CS+3}, 0
    ds_write_b128 v{T1}, {v4(CS)}""")
    for ks in range(2):
        for h in range(2):
            trig_block(a, 4, 32*ks + 4*h, EPS, BASE, TH, True)
            for i in range(2):
                a(f"v_cvt_pk_f16_f32 v{WC+4*ks+2*h+i}, v{TH+2*i}, v{TH+2*i+1}")
                a(f"v_cvt_pk_f16_f32 v{WSN+4*ks+2*h+i}, v{TH+4+2*i}, v{TH+4+2*i+1}")
    for i in range(8): a(f"v_xor_b32 v{WNS+i}, 0x80008000, v{WSN+i}")
    a(f"""s_lshl_b32 s25, s3, 4
    v_add_u32 v{ST}, s25, v{N}
    v_mul_u32_u24 v{VXR}, {PX}, v{ST}
    v_add_u32 v{VXR}, v{T0}, v{VXR}
    v_mul_u32_u24 v{VFW}, {PF}, v{ST}
    v_lshl_add_u32 v{VFW}, v{G}, 3, v{VFW}
    v_add_u32 v{VFW}, {LF}, v{VFW}
    v_lshrrev_b32 v{ST}, 2, v{N}
    v_lshl_add_u32 v{ST}, v{G}, 3, v{ST}
    v_mul_u32_u24 v{VFR}, {PF}, v{ST}
    v_and_b32 v{ST}, 3, v{N}
    v_lshl_add_u32 v{VFR}, v{ST}, 3, v{VFR}
    v_add_u32 v{VFR}, {LF}, v{VFR}""")

def a_masks(a):
    for r in range(4):
        a(f"s_mov_b32 s{34+2*r if r < 3 else 50}, {hex(((1<<r)|(1<<(20+r))) & 0xffffffff)}")
        a(f"s_mov_b32 s{35+2*r if r < 3 else 51}, {hex(((1<<(8+r))|(1<<(28+r))) & 0xffffffff)}")
    a("s_mov_b32 s24, 0\ns_mov_b32 s25, 0xffff0000")
MSK = ["s[34:35]", "s[36:37]", "s[38:39]", "s[50:51]"]

def a_main(a):
    q = LdsQ(a)
    def rdx(k, b): q.read(f"ds_read_b128 {v4(b)}, v{VXR} offset:{64*k}", range(b, b+4))
    def rdw(T, j): b = WB + 16*(j & 1) + 4*T; q.read(f"ds_read_b128 {v4(b)}, v{VWR} offset:{(7*T+j)*1024}", range(b, b+4))
    xa = lambda j: XBF + 8*(j & 1)
    for j in range(2):
        rdx(j, xa(j))
        for T in range(4): rdw(T, j)
        rdx(j + 7, xa(j) + 4)
    CS = WB
    CS = WB + 16
    for j in range(7):
        for hf in range(2):
            x = xa(j) + 4*hf; A = AC2 if hf else AC1
            q.need(range(x, x+4))
            a(f"v_mfma_f32_16x16x32_bf16 {v4(GR)}, {v4(x)}, {v4(x)}, {'0' if (j == 0 and hf == 0) else v4(GR)}")
            for T in range(4):
                w = WB + 16*(j & 1) + 4*T
                q.need(range(w, w+4))
                a(f"v_mfma_f32_16x16x32_bf16 {v4(A+4*T)}, {v4(w)}, {v4(x)}, {'0' if j == 0 else v4(A+4*T)}")
                if hf == 1:
                    if j + 2 < 7: rdw(T, j + 2)
                    elif j == 5: q.read(f"ds_read_b128 {v4(CS+4*T)}, v{VCS} offset:{64*T}", range(CS+4*T, CS+4*T+4))
            if j + 2 < 7: rdx(j + 2 + 7*hf, x)
    stamp(a, 3)
    a(f"s_waitcnt vmcnt(2)\nv_readfirstlane_b32 s98, v{V_EP}")
    Q, S, M, RS = ST, ST+1, ST+2, ST+4
    a(f"v_mov_b32 v{Q}, 0")
    for r in range(4): a(f"v_cndmask_b32 v{Q}, v{Q}, v{GR+r}, {MSK[r]}")
    for T in (1, 0, 2, 3):
        for p in range(2):
            a(f"v_pk_add_f32 {v2(AC1+4*T+2*p)}, {v2(AC1+4*T+2*p)}, {v2(AC2+4*T+2*p)} neg_hi:[0,1]")
        if T == 1: a(f"v_cndmask_b32 v{S}, 0, v{AC1+4+2}, s[24:25]")
    a(f"""v_permlane32_swap_b32 v{Q}, v{S}
    v_add_f32 v{Q}, v{Q}, v{S}
    v_mov_b32 v{S}, v{Q}
    v_permlane16_swap_b32 v{Q}, v{S}
    v_add_f32 v{Q}, v{Q}, v{S}
    v_mov_b32 v{S}, v{Q}
    v_permlane32_swap_b32 v{Q}, v{S}
    v_mul_f32 v{M}, {fl(-1.0/448)}, v{S}
    v_mul_f32 v{Q}, {fl(1.0/448)}, v{Q}
    v_fma_f32 v{Q}, -v{M}, v{M}, v{Q}
    v_max_f32 v{Q}, 0, v{Q}""")
    sd_chain(a, Q, RS)
    a(f"v_rcp_f32 v{RS}, v{RS}")
    q.need(range(CS, CS+16))
    for T in range(4):
        for p in range(2):
            x = AC1 + 4*T + 2*p
            a(f"v_pk_fma_f32 {v2(x)}, {v2(CS+4*T+2*p)}, {v2(M)}, {v2(x)} op_sel_hi:[1,0,1]")
    for T in range(4):
        for p in range(2):
            x = AC1 + 4*T + 2*p
            a(f"v_pk_mul_f32 {v2(x)}, {v2(x)}, {v2(RS)} op_sel_hi:[1,0]")
        for p in range(2):
            x = AC1 + 4*T + 2*p
            a(f"v_cvt_pk_f16_f32 v{AC2+2*T+p}, v{x}, v{x+1}")
        a(f"ds_write_b64 v{VFW}, {v2(AC2+2*T)} offset:{32*T}")
    a("s_add_u32 s98, s98, 1\ns_mul_i32 s98, s98, 0x9e3779b1\ns_waitcnt lgkmcnt(0)\ns_barrier")
    FA = WB
    for ks in range(2):
        for T in range(4):
            for h in range(2):
                a(f"ds_read_b64_tr_b16 {v2(FA+(2*T+ks)*4+2*h)}, v{VFR} offset:{(32*ks+4*h)*PF+32*T}")
    UR = AC1; UI = AC1 + 8
    for ks in range(2):
        a(f"s_waitcnt lgkmcnt({8 if ks == 0 else 0})")
        for T in range(2):
            fr = v4(FA+(2*T+ks)*4); fi = v4(FA+(2*(T+2)+ks)*4)
            a(f"v_mfma_f32_16x16x32_f16 {v4(UR+4*T)}, {fr}, {v4(WC+4*ks)}, {'0' if ks == 0 else v4(UR+4*T)}")
            a(f"v_mfma_f32_16x16x32_f16 {v4(UI+4*T)}, {fi}, {v4(WC+4*ks)}, {'0' if ks == 0 else v4(UI+4*T)}")
        for T in range(2):
            fr = v4(FA+(2*T+ks)*4); fi = v4(FA+(2*(T+2)+ks)*4)
            a(f"v_mfma_f32_16x16x32_f16 {v4(UR+4*T)}, {fi}, {v4(WSN+4*ks)}, {v4(UR+4*T)}")
            a(f"v_mfma_f32_16x16x32_f16 {v4(UI+4*T)}, {fr}, {v4(WNS+4*ks)}, {v4(UI+4*T)}")
    o = XBF
    for r in range(4): a(f"v_cvt_pk_f16_f32 v{o+r}, v{UR+r}, v{UI+r}")
    a(f"buffer_store_dwordx4 {v4(o)}, v{VUS}, s[12:15], s23 offen {SC}")
    a(f"v_add3_u32 v{Q}, v{o}, v{o+1}, v{o+2}")
    for r in range(4): a(f"v_cvt_pk_f16_f32 v{o+4+r}, v{UR+4+r}, v{UI+4+r}")
    a(f"""v_cndmask_b32 v{o+7}, v{o+7}, 0, s[24:25]
    v_add3_u32 v{Q}, v{Q}, v{o+3}, v{o+4}
    v_add3_u32 v{S}, v{o+5}, v{o+6}, v{o+7}
    v_add_u32 v{Q}, v{Q}, v{S}
    v_mov_b32 v{S}, v{Q}
    v_permlane32_swap_b32 v{Q}, v{S}
    v_add_u32 v{Q}, v{Q}, v{S}
    v_mov_b32 v{S}, v{Q}
    v_permlane16_swap_b32 v{Q}, v{S}
    v_add_u32 v{Q}, v{Q}, v{S}
    v_sub_u32 v{Q}, s98, v{Q}
    v_cndmask_b32 v{o+7}, v{o+7}, v{Q}, s[24:25]
    buffer_store_dwordx4 {v4(o+4)}, v{VUS}, s[12:15], s23 offen offset:128 {SC}""")

def b_ids(a):
    a(f"""s_and_b32 s92, s2, 7
    s_lshr_b32 s93, s2, 6
    s_lshl_b32 s93, s93, 3
    s_or_b32 s92, s92, s93
    s_bfe_u32 s93, s2, 0x10003
    s_bfe_u32 s96, s2, 0x20004
    s_sub_u32 s95, 64, s92
    s_cmp_eq_u32 s92, 0
    s_cselect_b32 s95, 32, s95
    s_cselect_b32 s94, 0, 1
    s_xor_b32 s94, s94, s93
    s_cmp_eq_u32 s93, 0
    s_cselect_b32 s95, s92, s95
    s_lshl_b32 s96, s96, 9
    s_add_u32 s95, s95, s96
    s_lshl_b32 s96, s20, 6
    s_add_u32 s96, s96, s95
    s_mul_i32 s97, s96, 896""")

def b_loads(a):
    srd(a, 16, 40, 896)
    a(f"""s_mov_b32 s26, {WS_EPOCH}
    v_mov_b32 v{T0}, 0
    buffer_load_dword v{V_EP}, v{T0}, s[12:15], s26 offen {SC}
    buffer_load_dwordx4 {v4(B_WR)}, v{VL}, s[16:19], 0 offen
    buffer_load_dwordx4 {v4(B_XR)}, v{VL}, s[8:11], s97 offen""")

def pro(a):
    EPS, BASE = ST + 4, ST + 5
    AF, AD = B_AF, B_AD
    a(f"""s_lshl_b32 s28, s92, 16
    s_lshl_b32 s29, s20, 8
    s_add_u32 s28, s28, s29
    s_add_u32 s29, s28, 4096
    s_add_u32 s30, s28, 32768
    s_add_u32 s31, s28, 36864
    v_lshlrev_b32 v{B_VU}, 13, v{G}
    v_lshl_add_u32 v{B_VU}, v{N}, 4, v{B_VU}
    v_and_b32 v{T0}, 7, v{N}
    v_lshlrev_b32 v{T0}, 6, v{T0}
    v_add_u32 v{T0}, s95, v{T0}
    v_cvt_f32_u32 v{T0}, v{T0}
    v_cmp_gt_u32 vcc, 8, v{N}
    v_mul_f32 v{EPS}, {fl(1.0/2048)}, v{T0}
    v_lshlrev_b32 v{T1}, 2, v{G}
    v_cndmask_b32 v{EPS}, -v{EPS}, v{EPS}, vcc
    v_cvt_f32_u32 v{T1}, v{T1}
    v_mul_f32 v{BASE}, v{T1}, v{EPS}""")
    for ks in range(2):
        trig_block(a, 4, 16*ks, EPS, BASE, TH, True)
        for i in range(4):
            a(f"v_cvt_pk_f16_f32 v{AF+4*ks+i}, v{TH+i}, v{TH+4+i}")
    a(f"""v_lshrrev_b32 v{T0}, 3, v{N}
    v_and_b32 v{T1}, 3, v{N}
    v_lshlrev_b32 v{T1}, 2, v{T1}
    v_lshl_add_u32 v{T0}, v{T0}, 4, v{T1}
    s_mul_i32 s32, s20, 28
    v_add_u32 v{T1}, s32, v{T0}
    v_sub_u32 v{T2}, 448, v{T1}
    v_cmp_gt_u32 s[34:35], 2, v{G}
    v_mov_b32 v{TH}, s93
    v_mov_b32 v{TH+1}, s94
    v_cndmask_b32 v{T2}, v{T2}, v{T1}, s[34:35]
    v_cndmask_b32 v{TH}, v{TH+1}, v{TH}, s[34:35]
    v_bfe_u32 v{TH+1}, v{N}, 2, 1
    v_cmp_eq_u32 s[36:37], v{TH}, v{TH+1}
    v_and_b32 v{TH+2}, 1, v{G}
    v_mul_u32_u24 v{TH+2}, {4*PY}, v{TH+2}
    v_add_lshl_u32 v{AD}, v{TH+2}, v{T2}, 2
    v_mov_b32 v{TH+3}, -4
    v_cndmask_b32 v{TH+3}, v{TH+3}, 4, s[34:35]
    v_add_u32 v{AD+1}, v{AD}, v{TH+3}
    v_add_u32 v{AD+2}, v{AD+1}, v{TH+3}
    v_add_u32 v{AD+3}, v{AD+2}, v{TH+3}
    v_cmp_gt_u32 s[62:63], 28, v{T0}
    s_and_b64 s[62:63], s[62:63], s[36:37]
    v_cmp_eq_u32 s[60:61], 0, v{T1}
    s_andn2_b64 s[60:61], s[60:61], s[34:35]
    s_andn2_b64 s[60:61], s[62:63], s[60:61]
    v_mov_b32 v{TH}, 224
    v_cmp_eq_u32 s[38:39], v{TH}, v{T1}
    s_and_b64 s[38:39], s[38:39], s[34:35]
    s_and_b64 s[38:39], s[38:39], s[36:37]
    s_or_b64 s[60:61], s[60:61], s[38:39]
    s_mul_i32 s33, s20, {PY*4}
    v_lshlrev_b32 v{B_VY}, 5, v{LANE}
    v_add_u32 v{B_VY}, s33, v{B_VY}
""")
    lim_regs(a, C_L, LANE, T0)
    a(f"""s_lshl_b32 s34, s20, 5
    s_add_u32 s34, s34, {LSEL}
    v_lshlrev_b32 v{C_SR}, 2, v{LANE}
    v_add_u32 v{C_SW}, s34, v{C_SR}
    v_add_u32 v{C_SR}, {LSEL}, v{C_SR}
    v_lshrrev_b32 v{C_KA}, 1, v0
    v_lshlrev_b32 v{C_KA}, 6, v{C_KA}
    v_and_b32 v{T0}, 1, v0
    v_lshl_add_u32 v{C_KA}, v{T0}, 4, v{C_KA}
    s_lshl_b32 s27, s2, 6
    s_add_u32 s27, s27, {WS_KEYS}
    s_sub_u32 s32, {2047 + 0x800}, s96""")

def pro2(a):
    XU, WU, S1, S2, S3 = B_XU, B_WU, B_S1 + 8, B_S2 + 8, B_S3 + 8
    unpack8(a, WU, B_WR)
    a(f"""v_pk_add_f32 {v2(S1)}, {v2(WU)}, {v2(WU+2)}
    v_pk_add_f32 {v2(S2)}, {v2(WU+4)}, {v2(WU+6)}
    v_readfirstlane_b32 s56, v{V_EP}
    v_pk_add_f32 {v2(S1)}, {v2(S1)}, {v2(S2)}
    v_add_f32 v{S1}, v{S1}, v{S1+1}
    v_mov_b32 v{S2}, 0
    v_mov_b32 v{S3}, 0
    s_add_u32 s56, s56, 1
    s_mul_i32 s99, s56, 0x9e3779b1
    s_lshl_b32 s99, s99, 4""")
    reduce3(a, S1, S2, S3, T0, 58, 59, 59)
    unpack8(a, XU, B_XR)

def anyones(a, regs_, t):
    regs_ = list(regs_)
    a(f"v_max_u32 v{t}, v{regs_[0]}, v{regs_[1]}")
    rest = regs_[2:]
    while len(rest) >= 2:
        a(f"v_max3_u32 v{t}, v{t}, v{rest[0]}, v{rest[1]}"); rest = rest[2:]
    if rest: a(f"v_max_u32 v{t}, v{t}, v{rest[0]}")
    a(f"v_cmp_eq_u32 vcc, -1, v{t}")

def b_main(a):
    R, AF, ACC, XU, WU, AD, TH = B_R, B_AF, B_ACC, B_XU, B_WU, B_AD, B_TH
    S1, S2, S3 = B_S1, B_S2, B_S3
    def ld():
        for ks in range(2):
            for i in range(4):
                a(f"buffer_load_dwordx4 {v4(R+16*ks+4*i)}, v{B_VU}, s[12:15], s{28+2*ks+(i>>1)} offen offset:{2048*(i&1)} {SC}")
    for k in (S1, S1+1, S2, S2+1, S3, S3+1): a(f"v_mov_b32 v{k}, 0")
    if OPT["sl_u0"]: a(f"s_sleep {OPT['sl_u0']}")
    a(f"s_mov_b32 s57, {SPIN}\nLupoll:")
    ld()
    for ks in range(2):
        a(f"s_waitcnt vmcnt({4-4*ks})")
        b = R + 16*ks
        for i in range(8):
            if ks == 0 and i == 0: a(f"v_add_u32 v{T0}, v{b}, v{b+1}")
            else: a(f"v_add3_u32 v{T0}, v{T0}, v{b+2*i}, v{b+2*i+1}")
        for i in range(4):
            for j in range(i+1, 4):
                a(f"v_swap_b32 v{R+16*ks+4*i+j}, v{R+16*ks+4*j+i}")
        for j in range(4):
            c = "0" if ks == 0 else v4(ACC+4*j)
            a(f"v_mfma_f32_16x16x32_f16 {v4(ACC+4*j)}, {v4(AF+4*ks)}, {v4(R+16*ks+4*j)}, {c}")
            if ks == 1: a(f"v_add_u32_dpp v{T0}, v{T0}, v{T0} row_ror:{8 >> j} row_mask:0xf bank_mask:0xf")
    a(f"""v_cmp_ne_u32 vcc, s99, v{T0}
    s_cmp_eq_u64 vcc, 0
    s_cbranch_scc1 Lupolld""")
    if OPT["sl_u"]: a(f"s_sleep {OPT['sl_u']}")
    a(f"""s_sub_u32 s57, s57, 1
    s_cbranch_scc0 Lupoll
    Lupolld:""")
    stamp(a, 6)
    for j in range(4):
        if j < 2: a(f"s_mov_b64 exec, s[{60+2*j}:{61+2*j}]")
        for r in range(4):
            a(f"ds_write_b32 v{AD+j}, v{ACC+4*j+r} offset:{LY + r*PY*4}")
    a("""s_mov_b32 exec_lo, -1
    s_mov_b32 exec_hi, 0x00ffffff
    s_waitcnt lgkmcnt(0)
    s_barrier""")
    H = R
    a(f"ds_read_b128 {v4(H)}, v{B_VY} offset:{LY}\nds_read_b128 {v4(H+4)}, v{B_VY} offset:{LY+16}")
    for hf in range(2):
        a(f"s_waitcnt lgkmcnt({1-hf})")
        for p in range(2):
            x = 4*hf + 2*p
            a(f"v_pk_add_f32 {v2(H+x)}, {v2(H+x)}, {v2(XU+x)}")
        for p in range(2):
            x = 4*hf + 2*p
            a(f"v_pk_add_f32 {v2(S1)}, {v2(S1)}, {v2(H+x)}")
            a(f"v_pk_fma_f32 {v2(S2)}, {v2(H+x)}, {v2(H+x)}, {v2(S2)}")
            a(f"v_pk_fma_f32 {v2(S3)}, {v2(H+x)}, {v2(WU+x)}, {v2(S3)}")
    a(f"""s_mov_b32 exec_hi, -1
    v_add_f32 v{S1}, v{S1}, v{S1+1}
    v_add_f32 v{S2}, v{S2}, v{S2+1}
    v_add_f32 v{S3}, v{S3}, v{S3+1}""")
    reduce3(a, S1, S2, S3, T0, 37, 38, 39)
    M, V, SD, RS, C0, KEY = TH, TH+1, TH+2, TH+4, TH+6, C_KEY
    a(f"""v_mov_b32 v{V}, {fl(1.0/448)}
    v_mul_f32 v{M}, s37, v{V}
    v_mul_f32 v{V}, s38, v{V}
    v_mov_b32 v{KEY}, s39
    v_fma_f32 v{V}, -v{M}, v{M}, v{V}
    v_fma_f32 v{KEY}, -v{M}, s58, v{KEY}
    v_max_f32 v{V}, 0, v{V}""")
    sd_chain(a, V, SD)
    a(f"""v_rcp_f32 v{RS}, v{SD}
    v_mul_f32 v{KEY}, v{KEY}, v{RS}
    v_cvt_pk_bf16_f32 v{KEY}, v{KEY}, v{KEY}
    v_mul_f32 v{C0}, -v{M}, v{RS}
    v_ashrrev_i32 v{T0}, 31, v{KEY}
    v_or_b32 v{T0}, 0x80000000, v{T0}
    v_xor_b32 v{KEY}, v{KEY}, v{T0}
    v_and_b32 v{KEY}, 0xffff0000, v{KEY}
    v_or_b32 v{KEY}, s32, v{KEY}""")
    if OPT["keygather"]:
        a(f"""s_lshl_b32 s34, s20, 2
        v_mov_b32 v{T0}, s34
        ds_write_b32 v{T0}, v{KEY} offset:{LKEY}""")
    else:
        a(f"""s_lshl_b32 s34, s20, 2
        s_add_u32 s27, s27, s34
        s_mov_b64 exec, 1
        buffer_store_dword v{KEY}, v{VL}, s[12:15], s27 offen {SC}
        s_mov_b64 exec, -1""")
    def lnout():
        for p in range(4):
            a(f"v_pk_fma_f32 {v2(XU+2*p)}, {v2(H+2*p)}, {v2(RS)}, {v2(C0)} op_sel_hi:[1,0,0]")
        for p in range(4):
            a(f"v_pk_add_f32 {v2(H+2*p)}, {v2(H+2*p)}, {v2(XU+2*p)}")
        for p in range(4):
            a(f"v_cvt_pk_bf16_f32 v{C_LN+p}, v{XU+2*p}, v{XU+2*p+1}")
            a(f"v_cvt_pk_bf16_f32 v{C_OUT+p}, v{H+2*p}, v{H+2*p+1}")
    if OPT["keygather"]:
        a(f"""v_lshlrev_b32 v{T1}, 2, v{LANE}
        s_waitcnt lgkmcnt(0)
        s_barrier
        s_cmp_lg_u32 s20, 0
        s_cbranch_scc1 Lnokey
        s_mov_b64 exec, 0xff
        ds_read_b32 v{T0}, v{T1} offset:{LKEY}
        s_waitcnt lgkmcnt(0)
        buffer_store_dword v{T0}, v{T1}, s[12:15], s27 offen {SC}
        s_mov_b64 exec, -1
        Lnokey:""")
    stamp(a, 7)
    lnout()

def c_select(a):
    K = C_K
    a(f"s_mov_b32 s34, {WS_KEYS}")
    def chk():
        a(f"v_min3_u32 v{T0}, v{K}, v{K+1}, v{K+2}")
        a(f"v_min_u32 v{T0}, v{T0}, v{K+3}")
        a(f"v_cmp_eq_u32 vcc, 0, v{T0}")
    poll(a, lambda: a(f"buffer_load_dwordx4 {v4(K)}, v{C_KA}, s[12:15], s34 offen {SC}"), chk, pre=OPT["sl_k"])
    stamp(a, 8)
    select8(a, K, C_TMP, C_L, C_SW, C_SR)
    stamp(a, 9)
    a(f"""v_cmp_eq_u32 vcc, v{K}, v{C_KEY}
    s_mov_b32 exec_hi, 0x00ffffff
    s_cmp_eq_u64 vcc, 0
    s_cbranch_scc0 Lsel_own
    buffer_store_dwordx4 {v4(C_OUT)}, v{VL}, s[52:55], s97 offen
    s_branch Lsel_done
    Lsel_own:
    s_ff1_i32_b64 s34, vcc
    s_mul_i32 s34, s34, 896
    s_add_u32 s34, s34, {WS_XSEL}""")
    for i in range(4): a(f"v_min_u32 v{C_LN+i}, -2, v{C_LN+i}")
    a(f"buffer_store_dwordx4 {v4(C_LN)}, v{VL}, s[12:15], s34 offen {SC}")
    for i in range(4): a(f"v_min_u32 v{C_OUT+i}, -2, v{C_OUT+i}")
    a(f"s_add_u32 s34, s34, {8*896}")
    a(f"buffer_store_dwordx4 {v4(C_OUT)}, v{VL}, s[12:15], s34 offen {SC}")
    a(f"""Lsel_done:
    s_mov_b32 exec_hi, -1""")

def c1(a):
    XR = 100; XF = 104; ACC = 68; XU = 80; WF = 176
    a(f"""s_mul_i32 s34, s20, 896
    s_add_u32 s34, s34, {WS_XSEL}
    s_mul_i32 s29, s20, {PX}
    s_add_u32 s29, s29, {LXS}
    v_add_u32 v{T2}, s29, v{VL}
    s_cmp_lg_u32 s20, 0
    s_cbranch_scc1 Lc1_now
    v_lshrrev_b32 v{T0}, 2, v{N}
    v_lshl_add_u32 v{T0}, v{G}, 3, v{T0}
    v_lshlrev_b32 v{T0}, 4, v{T0}
    v_and_b32 v{T1}, 1, v{N}
    v_lshl_add_u32 v{T0}, v{T1}, 3, v{T0}
    v_bfe_u32 v{T1}, v{N}, 1, 1
    v_lshl_add_u32 v{T0}, v{T1}, 13, v{T0}
    v_add_u32 v{T0}, {LWT}, v{T0}""")
    for j in range(14):
        for h in range(2):
            a(f"ds_read_b64_tr_b16 {v2(WF+4*j+2*h)}, v{T0} offset:{(32*j+4*h)*16}")
    a(f"""s_cmp_lg_u32 s2, 0
    s_cbranch_scc1 Lc1_now
    s_mov_b64 exec, 1
    v_mov_b32 v{T0}, s56
    s_mov_b32 s29, {WS_EPOCH}
    buffer_store_dword v{T0}, v{VL}, s[12:15], s29 offen {SC}
    s_mov_b64 exec, -1
    Lc1_now:
    s_mov_b32 exec_hi, 0x00ffffff""")
    poll(a, lambda: a(f"buffer_load_dwordx4 {v4(XR)}, v{VL}, s[12:15], s34 offen {SC}"),
            lambda: anyones(a, range(XR, XR+4), T0), pre=OPT["sl_x"])
    a(f"""ds_write_b128 v{T2}, {v4(XR)}
    s_mov_b32 exec_hi, -1
    s_waitcnt lgkmcnt(0)
    s_barrier
    s_cmp_lg_u32 s20, 0
    s_cbranch_scc1 Lend
    v_and_b32 v{T0}, 7, v{N}
    v_mul_u32_u24 v{T0}, {PX}, v{T0}
    v_lshl_add_u32 v{T0}, v{G}, 4, v{T0}""")
    stamp(a, 10)
    for j in range(14):
        a(f"ds_read_b128 {v4(XF+4*j)}, v{T0} offset:{LXS+64*j}")
    a(f"""v_lshlrev_b32 v{T0}, 4, v{N}
    v_lshl_add_u32 v{T0}, v{G}, 3, v{T0}
    s_lshl_b32 s22, s50, 7
    s_add_u32 s22, s22, {WS_ACT}""")
    for j in range(14):
        a(f"s_waitcnt lgkmcnt({13-j})")
        A = ACC + 4*(j & 1)
        a(f"v_mfma_f32_16x16x32_bf16 {v4(A)}, {v4(WF+4*j)}, {v4(XF+4*j)}, {'0' if j < 2 else v4(A)}")
    for p in range(2):
        a(f"v_pk_add_f32 {v2(ACC+2*p)}, {v2(ACC+2*p)}, {v2(ACC+4+2*p)}")
    for r in range(4): rbf(a, ACC+r, ACC+r)
    for r in range(4): a(f"v_mov_b32 v{ACC+4+r}, v{ACC+r}")
    for r in range(4): a(f"v_permlane32_swap_b32 v{ACC+r}, v{ACC+4+r}")
    for r in range(4): a(f"v_mul_f32 v{XU+r}, {fl(-1.4426950408889634)}, v{ACC+r}")
    for r in range(4): a(f"v_exp_f32 v{XU+r}, v{XU+r}")
    for r in range(4): a(f"v_add_f32 v{XU+r}, 1.0, v{XU+r}")
    for r in range(4): a(f"v_rcp_f32 v{XU+r}, v{XU+r}")
    for r in range(4): a(f"v_mul_f32 v{ACC+r}, v{ACC+r}, v{XU+r}")
    for r in range(4): rbf(a, ACC+r, ACC+r)
    for r in range(4): a(f"v_mul_f32 v{ACC+r}, v{ACC+r}, v{ACC+4+r}")
    for p in range(2): a(f"v_cvt_pk_bf16_f32 v{XR+p}, v{ACC+2*p}, v{ACC+2*p+1}")
    for p in range(2): a(f"v_min_u32 v{XR+p}, -2, v{XR+p}")
    a(f"""s_mov_b32 exec_lo, 0x00ff00ff
    s_mov_b32 exec_hi, 0
    buffer_store_dwordx2 {v2(XR)}, v{T0}, s[12:15], s22 offen {SC}
    s_branch Lend""")

def c2(a):
    K = C_K
    OA = 8; OR = 10; AF = 104; WF = 40; ACC = 68; RD = 76+64; SG = 12; VA = 13; VO = 14; VW = 15
    srd(a, 16, 46, 1792*896)
    a(f"""v_lshrrev_b32 v{T1}, 1, v{LANE}
    v_mul_u32_u24 v{T1}, 896, v{T1}
    v_and_b32 v{T2}, 1, v{LANE}
    v_lshl_add_u32 v{T1}, v{T2}, 4, v{T1}
    s_mul_i32 s23, s20, {224*896}
    s_add_u32 s23, s23, s51
    s_mul_i32 s24, s20, 7168
    s_add_u32 s24, s24, {LWT}
    s_mov_b32 s25, s24""")
    for j in range(7):
        a(f"s_mov_b32 m0, s25")
        a(f"s_add_u32 s25, s25, 1024")
        a(f"buffer_load_dwordx4 v{T1}, s[16:19], s23 offen lds")
        a(f"s_add_u32 s23, s23, {32*896}")
    a(f"""v_lshrrev_b32 v{T0}, 2, v{N}
    v_lshl_add_u32 v{T0}, v{G}, 3, v{T0}
    v_lshlrev_b32 v{T0}, 5, v{T0}
    v_and_b32 v{T1}, 3, v{N}
    v_lshl_add_u32 v{T0}, v{T1}, 3, v{T0}
    v_add_u32 v{T0}, s24, v{T0}
    v_and_b32 v{T1}, 7, v{N}
    v_mul_u32_u24 v{VO}, 896, v{T1}
    v_lshl_add_u32 v{VO}, v{G}, 3, v{VO}
    v_lshlrev_b32 v{VA}, 4, v{T1}
    v_lshl_add_u32 v{VA}, v{G}, 7, v{VA}
    s_mul_i32 s25, s20, {7*512}
    s_add_u32 s25, s25, {WS_ACT}
    s_add_u32 s24, s51, {WS_XSEL + 8*896}
    v_and_b32 v{OA}, 0x7ff, v{K}
    v_sub_u32 v{OA}, 2047, v{OA}
    v_mul_u32_u24 v{OA}, 896, v{OA}
    v_lshl_add_u32 v{OA}, v{G}, 3, v{OA}
    v_ashrrev_i32 v{T2}, 31, v{K}
    v_not_b32 v{T2}, v{T2}
    v_or_b32 v{T2}, 0x80000000, v{T2}
    v_xor_b32 v{K}, v{K}, v{T2}
    v_and_b32 v{K}, 0xffff0000, v{K}
    v_mov_b32 v{VW}, v{T0}""")
    sigmoid_mul(a, SG, K, "1.0", T2)
    rbf(a, SG, SG)
    a(f"""v_lshlrev_b32 v{T1}, 4, v0
    v_add_u32 v{T1}, {LRED}, v{T1}""")
    poll(a, lambda: a(f"buffer_load_dwordx2 {v2(OR)}, v{VO}, s[12:15], s24 offen {SC}"),
            lambda: anyones(a, range(OR, OR+2), T0), pre=OPT["sl_x"])
    for j in range(7):
        for h in range(2):
            a(f"ds_read_b64_tr_b16 {v2(WF+4*j+2*h)}, v{VW} offset:{(32*j+4*h)*32}")
    def lds():
        for j in range(7):
            a(f"buffer_load_dwordx4 {v4(AF+4*j)}, v{VA}, s[12:15], s25 offen offset:{512*j} {SC}")
    poll(a, lds, lambda: anyones(a, range(AF, AF+28), T0), pre=OPT["sl_a"])
    stamp(a, 10)
    a("s_waitcnt lgkmcnt(0)")
    for j in range(7):
        A = ACC + 4*(j & 1)
        a(f"v_mfma_f32_16x16x32_bf16 {v4(A)}, {v4(WF+4*j)}, {v4(AF+4*j)}, {'0' if j < 2 else v4(A)}")
    for p in range(2):
        a(f"v_pk_add_f32 {v2(ACC+2*p)}, {v2(ACC+2*p)}, {v2(ACC+4+2*p)}")
    a(f"""ds_write_b128 v{T1}, {v4(ACC)}
    s_waitcnt lgkmcnt(0)
    s_barrier
    s_cmp_lg_u32 s20, 0
    s_cbranch_scc1 Lend""")
    for w in range(1, 8):
        a(f"ds_read_b128 {v4(RD+4*w)}, v{T1} offset:{1024*w}")
    for i in range(2):
        a(f"v_lshlrev_b32 v{RD+2*i}, 16, v{OR+i}")
        a(f"v_and_b32 v{RD+2*i+1}, 0xffff0000, v{OR+i}")
    for w in range(1, 8):
        a(f"s_waitcnt lgkmcnt({7-w})")
        for p in range(2):
            a(f"v_pk_add_f32 {v2(ACC+2*p)}, {v2(ACC+2*p)}, {v2(RD+4*w+2*p)}")
    for r in range(4): rbf(a, ACC+r, ACC+r)
    for r in range(4): a(f"v_mul_f32 v{ACC+r}, v{ACC+r}, v{SG}")
    for r in range(4): rbf(a, ACC+r, ACC+r)
    for p in range(2):
        a(f"v_pk_add_f32 {v2(ACC+2*p)}, {v2(ACC+2*p)}, {v2(RD+2*p)}")
    for p in range(2): a(f"v_cvt_pk_bf16_f32 v{OR+p}, v{ACC+2*p}, v{ACC+2*p+1}")
    a(f"""s_mov_b32 exec_lo, 0x00ff00ff
    s_mov_b32 exec_hi, 0x00ff00ff
    buffer_store_dwordx2 {v2(OR)}, v{OA}, s[52:55], s51 offen""")

def gu_dma(a):
    srd(a, 16, 42, 448*3584)
    a(f"""v_mul_u32_u24 v{T1}, 3584, v0
    s_and_b32 s50, s2, 7
    s_mul_i32 s50, s50, 28
    s_lshr_b32 s51, s2, 3
    s_add_u32 s50, s50, s51
    s_lshl_b32 s26, s50, 4
    s_lshl_b32 s24, s20, 10
    s_add_u32 s24, s24, {LWT}
    s_mov_b32 m0, s24
    s_add_u32 s24, s24, 8192
    buffer_load_dwordx4 v{T1}, s[16:19], s26 offen lds
    s_mov_b32 s16, s44
    s_and_b32 s17, s45, 0xffff
    s_mov_b32 m0, s24
    s_nop 0
    buffer_load_dwordx4 v{T1}, s[16:19], s26 offen lds""")

def clears(a):
    a("s_waitcnt lgkmcnt(0)")
    srd(a, 12, 6, WS_SIZE)
    a(f"""v_lshlrev_b32 v{WB+4}, 16, v{G}
    v_lshl_add_u32 v{WB+4}, v{N}, 4, v{WB+4}
    s_lshl_b32 s23, s21, 11
    s_lshl_b32 s24, s22, 8
    s_add_u32 s23, s23, s24
    s_lshl_b32 s24, s3, 19
    s_add_u32 s24, s24, s23
    s_add_u32 s27, s24, {4*65536}""")
    for i in range(4): a(f"v_mov_b32 v{WB+i}, -1")
    a(f"""buffer_store_dwordx4 {v4(WB)}, v{WB+4}, s[12:15], s24 offen {SC}
    buffer_store_dwordx4 {v4(WB)}, v{WB+4}, s[12:15], s27 offen {SC}
    s_cmp_lg_u32 s3, 0
    s_cbranch_scc1 Lnoclr
    v_lshlrev_b32 v{WB+4}, 2, v{LANE}
    v_mov_b32 v{WB+5}, 0
    s_lshl_b32 s28, s2, 6
    s_add_u32 s28, s28, {WS_KEYS}
    s_lshl_b32 s29, s2, 7
    s_add_u32 s29, s29, {WS_ACT}
    s_mul_i32 s30, s2, 56
    s_add_u32 s30, s30, {WS_XSEL}
    s_mov_b64 exec, 0xff
    buffer_store_dword v{WB+5}, v{WB+4}, s[12:15], s28 offen {SC}
    s_mov_b64 exec, 0x3fff
    buffer_store_dword v{WB}, v{WB+4}, s[12:15], s30 offen {SC}
    s_mov_b32 exec_lo, -1
    buffer_store_dword v{WB}, v{WB+4}, s[12:15], s29 offen {SC}
    s_mov_b32 exec_hi, -1
    Lnoclr:""")

def clears_w4(a):
    a(f"v_mov_b32 v{WB}, -1")
    a(f"""v_lshlrev_b32 v{WB+4}, 2, v{LANE}
    v_mov_b32 v{WB+5}, 0
    s_lshl_b32 s23, s2, 6
    s_add_u32 s23, s23, {WS_KEYS}
    s_lshl_b32 s24, s2, 7
    s_add_u32 s24, s24, {WS_ACT}
    s_mul_i32 s25, s2, 56
    s_add_u32 s25, s25, {WS_XSEL}
    s_mov_b64 exec, 0xff
    buffer_store_dword v{WB+5}, v{WB+4}, s[12:15], s23 offen {SC}
    s_mov_b64 exec, 0x3fff
    buffer_store_dword v{WB}, v{WB+4}, s[12:15], s25 offen {SC}
    s_mov_b32 exec_lo, -1
    buffer_store_dword v{WB}, v{WB+4}, s[12:15], s24 offen {SC}
    s_mov_b32 exec_hi, -1""")

def noclears(a):
    a("s_waitcnt lgkmcnt(0)")
    srd(a, 12, 6, WS_SIZE)
    a(f"""s_lshl_b32 s23, s21, 11
    s_lshl_b32 s24, s22, 8
    s_add_u32 s23, s23, s24""")

def prefetch_gu(a):
    srd(a, 16, 42, 448*3584)
    a(f"""s_and_b32 s24, s2, 7
    s_lshr_b32 s25, s2, 3
    v_lshrrev_b32 v{T0}, 2, v{LANE}
    v_mul_u32_u24 v{T0}, 3584, v{T0}
    v_and_b32 v{T1}, 3, v{LANE}
    v_lshl_add_u32 v{T0}, v{T1}, 7, v{T0}
    s_mul_i32 s26, s25, {14*3584}
    s_mul_i32 s34, s24, 448
    s_add_u32 s26, s26, s34
    s_mov_b32 exec_hi, 0x00ffffff
    buffer_load_dword v{WB}, v{T0}, s[16:19], s26 offen
    s_mov_b32 s16, s44
    s_and_b32 s17, s45, 0xffff
    s_nop 0
    buffer_load_dword v{WB+1}, v{T0}, s[16:19], s26 offen
    s_mov_b32 exec_hi, -1""")

def prefetch_wd(a):
    srd(a, 16, 46, 1792*896)
    a(f"""s_and_b32 s24, s2, 7
    s_lshr_b32 s25, s2, 3
    v_mul_u32_u24 v{T1}, 896, v{LANE}
    s_mul_i32 s25, s25, {56*896}
    s_lshl_b32 s24, s24, 7
    s_add_u32 s25, s25, s24
    s_mov_b32 exec_hi, 0x00ffffff
    buffer_load_dword v{WB+2}, v{T1}, s[16:19], s25 offen
    s_mov_b64 exec, 1
    buffer_load_dword v{WB+3}, v{VL}, s[52:55], s97 offen
    s_mov_b64 exec, -1""")

def gu_dma4(a):
    srd(a, 16, 42, 448*3584)
    a(f"""v_mul_u32_u24 v{T1}, 3584, v0
    s_and_b32 s50, s2, 7
    s_mul_i32 s50, s50, 28
    s_lshr_b32 s51, s2, 3
    s_add_u32 s50, s50, s51
    s_lshl_b32 s26, s50, 4
    s_add_u32 s25, s26, {256*3584}
    s_lshl_b32 s24, s20, 10
    s_add_u32 s24, s24, {LWT}
    s_mov_b32 m0, s24
    s_add_u32 s24, s24, 4096
    buffer_load_dwordx4 v{T1}, s[16:19], s26 offen lds
    s_mov_b32 m0, s24
    s_add_u32 s24, s24, 4096
    buffer_load_dwordx4 v{T1}, s[16:19], s25 offen lds
    s_mov_b32 s16, s44
    s_and_b32 s17, s45, 0xffff
    s_mov_b32 m0, s24
    s_add_u32 s24, s24, 4096
    buffer_load_dwordx4 v{T1}, s[16:19], s26 offen lds
    s_mov_b32 m0, s24
    s_nop 0
    buffer_load_dwordx4 v{T1}, s[16:19], s25 offen lds""")

def flag_store(a, off):
    a(f"""v_readfirstlane_b32 s56, v{V_EP}
    s_lshl_b32 s34, s2, 6
    s_add_u32 s34, s34, {WS_FLAG + off}
    s_add_u32 s56, s56, 1
    v_mov_b32 v{T0}, s56
    s_mov_b64 exec, 1
    buffer_store_dword v{T0}, v{VL}, s[12:15], s34 offen {SC}
    s_mov_b64 exec, -1""")

def kernel(a):
    if OPT["stamps"]:
        for k in range(NST): a(f"s_mov_b32 s{64+2*k}, 0")
    stamp(a, 0)
    a(f"""s_cmp_ge_u32 s2, 256
    s_cbranch_scc1 Lexit
    s_load_dwordx2 s[4:5], s[0:1], 0
    s_load_dwordx2 s[6:7], s[0:1], 96
    s_load_dwordx8 s[40:47], s[0:1], 48
    s_load_dwordx2 s[48:49], s[0:1], 80
    v_lshrrev_b32 v{T0}, 6, v0
    v_and_b32 v{LANE}, 63, v0
    v_readfirstlane_b32 s20, v{T0}
    v_lshlrev_b32 v{VL}, 4, v{LANE}
    s_and_b32 s21, s2, 31
    s_lshr_b32 s22, s2, 5
    v_and_b32 v{N}, 15, v0
    v_bfe_u32 v{G}, v0, 4, 2
    s_and_b32 s3, s20, 3
    s_cmp_ge_u32 s20, 4
    s_cbranch_scc1 Lcompute
    s_lshl_b32 s23, s20, 9
    s_add_u32 s23, s23, s21
    s_mul_i32 s23, s23, 896
    s_mul_i32 s24, s20, {16*PX}
    s_mov_b32 s10, {XB}
    s_mov_b32 s11, 0x00020000
    s_mov_b32 exec_hi, 0x00ffffff
    s_waitcnt lgkmcnt(0)
    s_mov_b32 s8, s4
    s_and_b32 s9, s5, 0xffff""")
    for i in range(16):
        a(f"s_mov_b32 m0, s24")
        a(f"s_add_u32 s24, s24, {PX}")
        a(f"buffer_load_dwordx4 v{VL}, s[8:11], s23 offen lds")
        a(f"s_add_u32 s23, s23, {32*896}")
    a("s_mov_b32 exec_hi, -1")
    srd(a, 12, 6, WS_SIZE)
    srd(a, 52, 48, XB)
    b_ids(a)
    b_loads(a)
    if OPT["lateclr"] == 2:
        a("s_cmp_lg_u32 s20, 0\ns_cbranch_scc1 Lpro")
        clears_w4(a)
    if OPT["gu"] == 1:
        a("s_cmp_lg_u32 s20, 3\ns_cbranch_scc1 Lpro")
        prefetch_gu(a)
    a("s_branch Lpro")
    a("Lcompute:")
    if OPT["codepf"]:
        a(f"""s_getpc_b64 s[30:31]
        Lpc:
        v_and_b32 v{WB+11}, 255, v0
        v_lshlrev_b32 v{WB+8}, 7, v{WB+11}
        v_mov_b32 v{WB+9}, s31
        v_add_co_u32 v{WB+8}, vcc, s30, v{WB+8}
        v_addc_co_u32 v{WB+9}, vcc, 0, v{WB+9}, vcc
        v_cmp_gt_u32 vcc, (Lexit-Lpc)/128+1, v{WB+11}
        s_and_saveexec_b64 s[30:31], vcc
        s_cbranch_execz Lnopf
        global_load_dword v{WB+10}, v[{WB+8}:{WB+9}], off
        Lnopf:
        s_mov_b64 exec, s[30:31]""")
    a_pre(a, lambda: (noclears if OPT['lateclr'] else clears)(a))
    srd(a, 8, 4, XB)
    srd(a, 52, 48, XB)
    b_ids(a)
    if not OPT["lateb"]: b_loads(a)
    a("Lpro:")
    pro(a)
    a(f"""s_cmp_ge_u32 s20, 4
    s_cbranch_scc1 Lamain""")
    if OPT["gu"] == 1:
        a("s_cmp_lg_u32 s20, 3\ns_cbranch_scc1 Lwx3\ns_waitcnt vmcnt(5)\ns_branch Lwx\nLwx3:")
    if OPT["lateclr"] == 2:
        a("s_cmp_lg_u32 s20, 0\ns_cbranch_scc1 Lwx3\ns_waitcnt vmcnt(6)\ns_branch Lwx\nLwx3:")
    a("s_waitcnt vmcnt(3)\nLwx:")
    stamp(a, 1)
    a("s_barrier")
    stamp(a, 2)
    if OPT["gu"] == 1:
        a("s_waitcnt vmcnt(0)\ns_cmp_lg_u32 s20, 0\ns_cbranch_scc1 Lnf")
        flag_store(a, 0)
        a("Lnf:\ns_cmp_lg_u32 s20, 1\ns_cbranch_scc1 Lnw")
        prefetch_wd(a)
        a("Lnw:\ns_cmp_ge_u32 s2, 224\ns_cbranch_scc1 Lb2b")
        gu_dma4(a)
    else:
        a(f"""s_cmp_eq_u32 s20, 1
        s_cbranch_scc1 Lw5""")
        if OPT["lateclr"] == 1:
            a("s_cmp_lg_u32 s20, 0\ns_cbranch_scc1 Lncl")
            clears_w4(a)
            a("Lncl:")
        a(f"""s_waitcnt vmcnt(0)
        s_branch Lb2b
        Lw5:""")
        prefetch_gu(a)
        prefetch_wd(a)
        a("s_waitcnt vmcnt(4)")
    a("Lb2b:")
    stamp(a, 3)
    a(f"""s_barrier
    s_branch Lpro2
    Lamain:""")
    a_masks(a)
    a("s_waitcnt lgkmcnt(0)")
    stamp(a, 1)
    a("s_barrier")
    stamp(a, 2)
    if OPT["lateb"]: b_loads(a)
    a_main(a)
    a("s_waitcnt vmcnt(2)")
    a("Lpro2:")
    stamp(a, 4)
    pro2(a)
    a("Lb3:\ns_barrier")
    stamp(a, 5)
    b_main(a)
    if OPT["gu"] == 0:
        a(f"""s_cmp_ge_u32 s2, 224
        s_cbranch_scc1 Lsel
        s_cmp_eq_u32 s20, 7
        s_cbranch_scc1 Lsel""")
        gu_dma(a)
    a("Lsel:")
    c_select(a)
    a(f"""s_cmp_ge_u32 s2, 224
    s_cbranch_scc1 Lc2
    s_and_b32 s50, s2, 7
    s_mul_i32 s50, s50, 28
    s_lshr_b32 s51, s2, 3
    s_add_u32 s50, s50, s51""")
    c1(a)
    a(f"""Lc2:
    s_and_b32 s50, s2, 7
    s_cmp_eq_u32 s50, 7
    s_cbranch_scc1 Lend
    s_lshl_b32 s50, s50, 7
    s_bfe_u32 s51, s2, 0x20003
    s_lshl_b32 s51, s51, 5
    s_add_u32 s51, s51, s50""")
    c2(a)
    a("Lend:")
    dump_stamps(a)
    a("Lexit:\ns_endpgm")

NAME = "sequential_preLN__spectral_fnet__moe_arch_mod__prompt_kernel"
def build():
    a = Asm()
    kernel(a)
    return gen.HDR + f"""; @launch grid=(256,1,1) block=(512,1,1) lds={LDS_TOTAL}
.amdgcn_target "amdgcn-amd-amdhsa--gfx950"
.text
.globl {NAME}
.p2align 8
.type {NAME},@function
{NAME}:
""" + a.finish() + f""".section .rodata,"a"
.p2align 6
.amdhsa_kernel {NAME}
  .amdhsa_next_free_vgpr {NVGPR}
  .amdhsa_next_free_sgpr 102
  .amdhsa_accum_offset {NVGPR}
  .amdhsa_group_segment_fixed_size 0
  .amdhsa_kernarg_size 104
  .amdhsa_user_sgpr_count 2
  .amdhsa_user_sgpr_kernarg_segment_ptr 1
  .amdhsa_system_sgpr_workgroup_id_x 1
.end_amdhsa_kernel
"""

if __name__ == "__main__":
    for x in list(sys.argv[1:]):
        if x.startswith("--"):
            k, _, v = x[2:].partition("=")
            OPT[k] = int(v) if v else True
            sys.argv.remove(x)
    open(sys.argv[1], "w").write(build())
```

```python
import re, struct

def f2u(x):
    return struct.unpack("<I", struct.pack("<f", x))[0]
def fl(x):
    return hex(f2u(x))

_reg = re.compile(r"^(-?)(?:abs\()?([vas])(?:(\d+)|\[(\d+):(\d+)\])\)?$")
def regs(tok):
    tok = tok.strip()
    if tok.startswith("|") and tok.endswith("|"): tok = tok[1:-1]
    if tok in ("vcc",): return [("s", 106), ("s", 107)]
    if tok == "vcc_lo": return [("s", 106)]
    if tok == "vcc_hi": return [("s", 107)]
    if tok == "exec": return [("s", 126), ("s", 127)]
    if tok == "exec_lo": return [("s", 126)]
    if tok == "exec_hi": return [("s", 127)]
    if tok == "m0": return [("s", 124)]
    m = _reg.match(tok)
    if not m: return []
    k = m.group(2)
    if m.group(3) is not None: return [(k, int(m.group(3)))]
    return [(k, i) for i in range(int(m.group(4)), int(m.group(5)) + 1)]

TRANS = ("v_exp_f32", "v_log_f32", "v_rcp_f32", "v_rsq_f32", "v_sqrt_f32", "v_sin_f32", "v_cos_f32", "v_rcp_iflag_f32",
         "v_exp_f16", "v_log_f16", "v_rcp_f16", "v_rsq_f16", "v_sqrt_f16", "v_sin_f16", "v_cos_f16")

class Ins:
    def __init__(s, text):
        s.text = text
        t = text.split(";")[0].strip()
        s.is_label = t.endswith(":")
        s.is_dir = t.startswith(".") and not s.is_label
        s.op = ""; s.w = []; s.r = []; s.kind = "other"; s.states = 1
        s.A = []; s.B = []; s.C = []; s.passes = 0; s.dpp = False; s.storedata = []; s.sread_vmem = []
        s.lanesel = []; s.dppsrc = []
        if s.is_label or s.is_dir or not t:
            s.states = 0; return
        parts = t.split(None, 1)
        op = parts[0]; s.op = op
        rest = parts[1] if len(parts) > 1 else ""
        ops = []; depth = 0; cur = ""
        for ch in rest:
            if ch in "[(": depth += 1
            if ch in "])": depth -= 1
            if ch == "," and depth == 0: ops.append(cur.strip()); cur = ""
            else: cur += ch
        if cur.strip(): ops.append(cur.strip())
        mods = ""
        if ops:
            lp = ops[-1].split(None, 1)
            ops[-1] = lp[0]
            if len(lp) > 1: mods = lp[1]
        s.ops = ops; s.mods = mods
        R = [regs(o) for o in ops]
        base = re.sub(r"_(e32|e64|dpp|sdwa)$", "", op)
        s.base = base
        if op == "s_nop":
            s.states = int(ops[0], 0) + 1; s.kind = "salu"; return
        if op.startswith("v_mfma") or op.startswith("v_smfmac"):
            s.kind = "mfma"; s.w = R[0]; s.A = R[1]; s.B = R[2]; s.C = R[3]; s.r = R[1] + R[2] + R[3]
            s.passes = 8 if "32x32" in op else 4
            return
        if op.startswith("v_"):
            s.kind = "valu"
            s.dpp = op.endswith("_dpp") or any(k in mods for k in ("quad_perm", "row_", "wave_"))
            s.dppsrc = sum(R[1:], []) if s.dpp else []
            if base in TRANS: s.kind = "trans"
            if base.startswith("v_cmpx"):
                s.w = R[0] + regs("exec"); s.r = sum(R[1:], [])
            elif base.startswith("v_cmp"):
                s.w = R[0]; s.r = sum(R[1:], [])
            elif base in ("v_swap_b32", "v_permlane16_swap_b32", "v_permlane32_swap_b32"):
                s.w = R[0] + R[1]; s.r = R[0] + R[1]
            elif base in ("v_add_co_u32", "v_sub_co_u32", "v_subrev_co_u32"):
                s.w = R[0] + R[1]; s.r = sum(R[2:], [])
            elif base in ("v_addc_co_u32", "v_subb_co_u32", "v_subbrev_co_u32"):
                s.w = R[0] + R[1]; s.r = sum(R[2:], [])
            elif base in ("v_readlane_b32",):
                s.w = R[0]; s.r = R[1] + R[2]; s.lanesel = R[2]
            elif base in ("v_writelane_b32",):
                s.w = R[0]; s.r = R[0] + R[1] + R[2]; s.lanesel = R[2]
            elif base in ("v_fmac_f32", "v_dot2c_f32_bf16", "v_fmac_f16", "v_pk_fmac_f16", "v_dot2c_f32_f16"):
                s.w = R[0]; s.r = sum(R, [])
            else:
                s.w = R[0]; s.r = sum(R[1:], [])
                if base == "v_cndmask_b32" and len(ops) == 3: s.r += regs("vcc")
            return
        if op.startswith("ds_"):
            s.kind = "ds"
            if op.startswith(("ds_read", "ds_bpermute", "ds_permute", "ds_swizzle")) or "_rtn" in op:
                s.w = R[0]; s.r = sum(R[1:], [])
            else:
                s.r = sum(R, [])
            return
        if op.startswith(("buffer_", "global_", "flat_")):
            s.kind = "vmem"
            lds = (" lds" in (" " + mods)) or "load_lds" in op
            s.lds = lds
            allr = sum(R, [])
            if "load" in op and not lds:
                s.w = R[0]; s.r = sum(R[1:], [])
            elif "atomic" in op and "sc0" in mods:
                s.r = allr; s.w = R[0]
            else:
                s.r = allr
            if lds: s.r += regs("m0")
            if "store" in op and ("x3" in op or "x4" in op):
                s.storedata = R[0] if op.startswith("buffer") else R[1]
            s.sread_vmem = [x for x in s.r if x[0] == "s"]
            return
        if op.startswith("s_"):
            s.kind = "salu"
            if op.startswith(("s_cmp", "s_cbranch", "s_branch", "s_waitcnt", "s_barrier", "s_endpgm", "s_sleep", "s_setprio", "s_bitcmp")):
                s.r = sum(R, [])
            elif "saveexec" in op:
                s.w = R[0] + regs("exec"); s.r = sum(R[1:], []) + regs("exec")
            else:
                s.w = R[0] if R else []; s.r = sum(R[1:], [])
            return

def need(p, c):
    n = 0
    pw = set(p.w)
    pv = {x for x in pw if x[0] in "va"}
    ps = {x for x in pw if x[0] == "s"}
    cr = set(c.r); cw = set(c.w)
    isvalu = lambda i: i.kind in ("valu", "trans")
    if isvalu(p):
        if c.kind == "mfma" and pv & cr: n = max(n, 2)
        if isvalu(c) and c.dpp and pv & set(c.dppsrc): n = max(n, 2)
        if isvalu(c) and c.base.startswith("v_permlane") and pv & cr: n = max(n, 2)
        if isvalu(c) and c.base in ("v_readlane_b32", "v_readfirstlane_b32") and pv & cr: n = max(n, 1)
        if p.kind == "trans" and c.kind in ("valu",) and pv & cr: n = max(n, 1)
        if p.kind == "trans" and c.kind in ("vmem", "ds") and pv & cr: n = max(n, 1)
        if ("sdwa" in p.op or "op_sel" in p.mods and not p.op.startswith("v_pk")) and isvalu(c) and pv & (cr | cw): n = max(n, 1)
        if ps:
            if isvalu(c) and ps & cr: n = max(n, 2)
            if isvalu(c) and ps & set(c.lanesel): n = max(n, 4)
            if c.kind == "vmem" and ps & set(c.sread_vmem): n = max(n, 5)
            if set(regs("exec")) & ps:
                if isvalu(c) and c.dpp: n = max(n, 5)
                if isvalu(c) and (c.base.startswith(("v_permlane", "v_readlane", "v_readfirstlane", "v_writelane"))): n = max(n, 4)
                if c.kind == "mfma": n = max(n, 4)
    if p.kind == "mfma":
        big = p.passes == 8
        if c.kind == "mfma":
            if pv & set(c.A + c.B): n = max(n, 12 if big else 8)
            if pv & set(c.C):
                if not (c.C == p.w and c.passes == p.passes): n = max(n, 10 if big else 6)
            elif pv & cw: n = max(n, 10 if big else 6)
        elif c.kind in ("valu", "trans", "vmem", "ds"):
            if pv & (cr | cw): n = max(n, 12 if big else 8)
        if isvalu(c) and set(p.C) & cw: n = max(n, 7 if big else 3)
        if c.kind in ("vmem", "ds") and set(p.C) & cw: n = max(n, 7 if big else 3)
    if p.kind == "salu" and ("s", 124) in ps:
        if c.kind == "vmem" and getattr(c, "lds", False): n = max(n, 1)
        if c.kind == "ds" and "addtid" in c.op: n = max(n, 1)
        if c.op.startswith(("s_movrel", "s_sendmsg")): n = max(n, 1)
    if p.kind == "vmem" and p.storedata:
        if set(p.storedata) & cw: n = max(n, 2 if isvalu(c) else 1)
    return n

class Asm:
    def __init__(s):
        s.lines = []
    def __call__(s, text):
        for l in text.split("\n"):
            l = l.strip()
            if l: s.lines.append(l)
    def finish(s):
        out = []
        hist = []
        for l in s.lines:
            c = Ins(l)
            if c.states == 0:
                out.append(l); continue
            req = 0; dist = 0
            for p in reversed(hist):
                if dist >= 20: break
                n = need(p, c)
                if n > dist: req = max(req, n - dist)
                dist += p.states
            while req > 0:
                k = min(req, 16)
                nop = Ins(f"s_nop {k-1}")
                out.append(f"s_nop {k-1}"); hist.append(nop); req -= k
            out.append(l); hist.append(c)
            if len(hist) > 64: hist = hist[-40:]
        return "\n".join(("" if (x.endswith(":") or x.startswith(".")) else "    ") + x for x in out) + "\n"

import subprocess, tempfile, os
_PROMO = ("v_mov_b32", "v_add_u32", "v_sub_u32", "v_subrev_u32", "v_and_b32", "v_or_b32", "v_xor_b32", "v_lshlrev_b32", "v_lshrrev_b32",
          "v_ashrrev_i32", "v_add_f32", "v_sub_f32", "v_mul_f32", "v_max_f32", "v_max_u32", "v_min_u32", "v_cvt_f32_u32", "v_cos_f32",
          "v_sin_f32", "v_exp_f32", "v_rcp_f32", "v_sqrt_f32", "v_mul_u32_u24", "v_not_b32", "v_cndmask_b32")
def _sizes(body):
    src = '.amdgcn_target "amdgcn-amd-amdhsa--gfx950"\n.text\n' + body
    d = tempfile.mkdtemp()
    open(d + "/a.s", "w").write(src)
    subprocess.run(["clang", "-x", "assembler", "-target", "amdgcn-amd-amdhsa", "-mcpu=gfx950", "-c", d + "/a.s", "-o", d + "/a.o"], check=True)
    out = subprocess.run(["llvm-objdump", "-d", "--mcpu=gfx950", d + "/a.o"], capture_output=True, text=True).stdout
    sz = []
    for l in out.splitlines():
        m = re.search(r"// ([0-9A-F]{12}): ((?:[0-9A-F]{8} ?)+)", l)
        if m: sz.append(4 * len(m.group(2).split()))
    return sz

def align_pass(body, nopcost=4.0):
    lines = body.split("\n")
    idx = [i for i, l in enumerate(lines) if l.strip() and not l.strip().endswith(":") and not l.strip().startswith((".", ";"))]
    sz = _sizes(body)
    assert len(sz) == len(idx), (len(sz), len(idx))
    n = len(idx)
    INF = 1e18
    cost = [[INF, INF] for _ in range(n + 1)]; back = [[None, None] for _ in range(n + 1)]
    cost[0][0] = 0
    for k in range(n):
        t = lines[idx[k]].strip(); op = t.split()[0]
        promo = sz[k] == 4 and (op in _PROMO or op.startswith("v_cmp_")) and "dpp" not in t and "row_" not in t and "quad_perm" not in t
        for p in (0, 1):
            c = cost[k][p]
            if c >= INF: continue
            opts = []
            if sz[k] == 4:
                opts.append((c, p ^ 1, "keep"))
                if promo: opts.append((c + 0.05 + (1 if p else 0), p, "promo"))
            else:
                opts.append((c + (1 if p else 0), p, "keep"))
                if p: opts.append((c + nopcost, 0, "nop"))
            for cc, q, act in opts:
                if cc < cost[k+1][q]: cost[k+1][q] = cc; back[k+1][q] = (p, act)
    q = 0 if cost[n][0] <= cost[n][1] else 1
    acts = [None] * n
    for k in range(n, 0, -1):
        p, act = back[k][q]; acts[k-1] = act; q = p
    before = 0; p = 0
    for k in range(n):
        if sz[k] == 8 and p: before += 1
        if sz[k] == 4: p ^= 1
    for k in range(n):
        l = lines[idx[k]]
        if acts[k] == "promo":
            op = l.strip().split()[0]
            lines[idx[k]] = l.replace(op, op + "_e64", 1)
        elif acts[k] == "nop":
            lines[idx[k]] = "    s_nop 0\n" + l
    import sys
    print(f"align: misaligned 8B before {before}, final cost {min(cost[n]):.1f}, promos {acts.count('promo')}, nops {acts.count('nop')}", file=sys.stderr)
    return "\n".join(lines)
```

```python
import sys
from asmlib import Asm, fl, align_pass
import gen
from gen import srd, v4, v2, rbf, sd_chain, reduce3, unpack8, lim_regs, select8, sigmoid_mul

WS_KEYS = 0x200000
WS_EPOCH = 0x208000
WS_ACT = 0x210000
WS_STAMP = 0x3c0000
WS_ROW = 0x400000
WS_SIZE = 0x800000
XB = 1835008
PH = 480; PX = 928; PF = 136; PY = 452
LXH = 64 * PH
LW = 2 * LXH; LCS = LW + 28 * 1024; LF = LCS + 256; LWT = LF + 64 * PF; LDS_TOTAL = LWT + 57344
LY = 0
LSEL = 16384; LSE2 = 16640; LKEY = 17152; LXS = 17408; LRED = 24832
SPIN = 200000
SC = "sc1"
HASH = "0x9e3779b1"
OPT = dict(stamps=0, cyc=0, align=0, sl_u0=2, sl_k=16, sl_a=0, rowpf=2, barj=4, dbgto=0, ost=0, c2re=1)
NST = 14

def stamp(a, k):
    if OPT["stamps"] == 2 and k not in (0, NST - 1): return
    if OPT["stamps"]: a(f"{'s_memtime' if OPT['cyc'] else 's_memrealtime'} s[{64+2*k}:{65+2*k}]")
def dump_stamps(a):
    if not OPT["stamps"]: return
    stamp(a, NST - 2)
    a("s_waitcnt vmcnt(0)")
    stamp(a, NST - 1)
    a("s_mov_b64 exec, 1\ns_waitcnt lgkmcnt(0)")
    a(f"s_lshl_b32 s60, s2, 3\ns_add_u32 s60, s60, s20\ns_lshl_b32 s60, s60, 6\ns_add_u32 s60, s60, {WS_STAMP}\nv_mov_b32 v1, 0")
    for k in range(NST):
        a(f"v_mov_b32 v2, s{64+2*k}\nbuffer_store_dword v2, v1, s[12:15], s60 offen offset:{4*k}")

_lbl = [0]
def timeout_note(a, ident):
    if not OPT["dbgto"]: return
    a(f"""s_lshl_b32 s100, s2, 8
    s_add_u32 s100, s100, s20
    s_add_u32 s100, s100, {ident << 24}
    v_mov_b32 v{JUNK+3}, s100
    s_mov_b32 s100, {0x3f0000 + 4*ident}
    s_mov_b64 exec, 1
    buffer_store_dword v{JUNK+3}, v{VL}, s[12:15], s100 offen
    s_mov_b64 exec, -1""")
def poll(a, loads, check, pre=0):
    _lbl[0] += 1
    L = f"Lpoll{_lbl[0]}"
    if pre: a(f"s_sleep {pre}")
    a(f"s_mov_b32 s57, {SPIN}\n{L}:")
    loads()
    a("s_waitcnt vmcnt(0)")
    check()
    a(f"""s_cmp_eq_u64 vcc, 0
    s_cbranch_scc1 {L}d
    s_sub_u32 s57, s57, 1
    s_cbranch_scc0 {L}""")
    timeout_note(a, _lbl[0])
    a(f"{L}d:")

class LdsQ:
    def __init__(s, a): s.a = a; s.q = []
    def read(s, text, b, n=4):
        s.a(text); s.q.append(set(range(b, b + n)))
    def need(s, b, n=4):
        rs = set(range(b, b + n)); last = -1
        for i, d in enumerate(s.q):
            if d & rs: last = i
        if last >= 0:
            s.a(f"s_waitcnt lgkmcnt({len(s.q) - 1 - last})")
            s.q = s.q[last+1:]

LANE, N, G, T0, T1, T2, VL = 1, 2, 3, 4, 5, 6, 7
B_XR = 8; B_WR = 12; V_EP = 16; VFW = 17; VFR = 18; VXR = 19; VCS = 20; VUS = 21; ST = 22
WC = 28; WSN = 36; WNS = 44
AC1 = 52; AC2 = 68; GR = 84; XF = 88; WD = 116
JUNK = 228; NVGPR = 232
B_AF = 28; B_AD = 36; B_VY = 40; B_VU = 41; C_L = {1: 42, 2: 43, 4: 44}; C_SW = 45; C_SR = 46; C_KA = 47
C_FW = 48; C_FR = 49; C_FY = 50; C_PF = 51
B_R = 116; B_ACC = 52; B_XU = 68; B_WU = 76; B_S1, B_S2, B_S3 = 88, 90, 92; B_TH = 96; P_TH = 104; P_EPS = 112; P_BASE = 113
C_K = 148; C_TMP = 152; C_KEY = 156; C_X = 157; C_Y = 158; C_OUT = 160; C_LN = 164

def trig_block(a, n, k0, eps, base, th, want_sin):
    for i in range(n):
        k = k0 + i
        if k == 0: a(f"v_mov_b32 v{th+i}, v{base}")
        else: a(f"v_fmamk_f32 v{th+i}, v{eps}, {fl(float(k))}, v{base}")
    for i in range(n):
        if want_sin: a(f"v_sin_f32 v{th+n+i}, v{th+i}")
        a(f"v_cos_f32 v{th+i}, v{th+i}")

def a_pre(a):
    EPS, BASE, TH, ONE, TO, CS = ST + 4, ST + 5, XF, XF + 8, XF + 12, AC1
    a(f"""s_and_b32 s25, s3, 1
    s_lshl_b32 s25, s25, 4
    v_add_u32 v{T0}, s25, v{N}
    s_mul_i32 s26, s22, 28
    v_add_u32 v{T1}, s26, v{T0}
    v_cmp_ne_u32 vcc, 30, v{T0}
    s_lshr_b32 s25, s3, 1
    s_mul_i32 s25, s25, {fl(0.25)}
    v_cndmask_b32 v{T1}, 0, v{T1}, vcc
    v_cvt_f32_u32 v{T1}, v{T1}
    v_mul_f32 v{EPS}, {fl(1.0/448)}, v{T1}
    v_lshlrev_b32 v{T0}, 3, v{G}
    v_cvt_f32_u32 v{T2}, v{T0}
    v_fma_f32 v{BASE}, v{T2}, v{EPS}, s25
    s_mul_i32 s25, s3, {7*1024}
    s_add_u32 s25, s25, {LW}
    v_add_u32 v{T1}, s25, v{VL}""")
    for i in range(4): a(f"v_mov_b32 v{ONE+i}, 0x3f803f80")
    for j in range(7):
        trig_block(a, 8, 32*j, EPS, BASE, TH, False)
        o = TO + 4*(j & 1)
        for i in range(4): a(f"v_cvt_pk_bf16_f32 v{o+i}, v{TH+2*i}, v{TH+2*i+1}")
        a(f"ds_write_b128 v{T1}, {v4(o)} offset:{j*1024}")
        a(f"v_mfma_f32_16x16x32_bf16 {v4(CS)}, {v4(o)}, {v4(ONE)}, {'0' if j == 0 else v4(CS)}")
    a(f"""v_lshrrev_b32 v{ST}, 1, v{N}
    s_lshl_b32 s25, s3, 3
    v_add_u32 v{ST}, s25, v{ST}
    v_sub_u32 v{ST+1}, 64, v{ST}
    v_cmp_eq_u32 vcc, 0, v{ST}
    v_and_b32 v{ST+2}, 1, v{N}
    v_cndmask_b32 v{ST+1}, v{ST+1}, 32, vcc
    v_cmp_eq_u32 vcc, 0, v{ST+2}
    v_lshlrev_b32 v{VUS}, 16, v{ST}
    v_cndmask_b32 v{ST+1}, v{ST+1}, v{ST}, vcc
    v_lshl_add_u32 v{VUS}, v{ST+2}, 6, v{VUS}
    v_cvt_f32_u32 v{ST+1}, v{ST+1}
    v_lshl_add_u32 v{VUS}, v{G}, 4, v{VUS}
    v_mul_f32 v{EPS}, {fl(1.0/64)}, v{ST+1}
    v_mul_f32 v{BASE}, v{T2}, v{EPS}
    s_lshl_b32 s25, s3, 6
    v_lshlrev_b32 v{T0}, 4, v{G}
    v_add_u32 v{VCS}, {LCS}, v{T0}
    v_add_u32 v{T1}, s25, v{VCS}
    v_add_f32 v{CS}, v{CS}, v{CS}
    v_mov_b32 v{CS+1}, 0
    v_add_f32 v{CS+2}, v{CS+2}, v{CS+2}
    v_mov_b32 v{CS+3}, 0
    ds_write_b128 v{T1}, {v4(CS)}""")
    for ks in range(2):
        for h in range(2):
            trig_block(a, 4, 32*ks + 4*h, EPS, BASE, TH, True)
            for i in range(2):
                a(f"v_cvt_pk_f16_f32 v{WC+4*ks+2*h+i}, v{TH+2*i}, v{TH+2*i+1}")
                a(f"v_cvt_pk_f16_f32 v{WSN+4*ks+2*h+i}, v{TH+4+2*i}, v{TH+4+2*i+1}")
    a(f"v_add_u32 v{T1}, {LW}, v{VL}\ns_waitcnt lgkmcnt(0)\ns_barrier")
    for f in range(28): a(f"ds_read_b128 {v4(WD+4*f)}, v{T1} offset:{f*1024}")
    for i in range(8): a(f"v_xor_b32 v{WNS+i}, 0x80008000, v{WSN+i}")
    a(f"""s_lshl_b32 s25, s3, 4
    v_add_u32 v{ST}, s25, v{N}
    v_mul_u32_u24 v{VXR}, {PH}, v{ST}
    v_add_u32 v{VXR}, v{T0}, v{VXR}
    v_mul_u32_u24 v{VFW}, {PF}, v{ST}
    v_lshl_add_u32 v{VFW}, v{G}, 3, v{VFW}
    v_add_u32 v{VFW}, {LF}, v{VFW}
    v_lshrrev_b32 v{ST}, 2, v{N}
    v_lshl_add_u32 v{ST}, v{G}, 3, v{ST}
    v_mul_u32_u24 v{VFR}, {PF}, v{ST}
    v_and_b32 v{ST}, 3, v{N}
    v_lshl_add_u32 v{VFR}, v{ST}, 3, v{VFR}
    v_add_u32 v{VFR}, {LF}, v{VFR}
    s_lshl_b32 s23, s21, 11
    s_lshl_b32 s24, s22, 8
    s_add_u32 s23, s23, s24""")
    for r in range(4):
        a(f"s_mov_b32 s{30+2*r}, {hex(((1<<r)|(1<<(20+r))) & 0xffffffff)}")
        a(f"s_mov_b32 s{31+2*r}, {hex(((1<<(8+r))|(1<<(28+r))) & 0xffffffff)}")
    a("s_mov_b32 s24, 0\ns_mov_b32 s25, 0xffff0000")

def a_main(a):
    q = LdsQ(a)
    def rdx(j, hf): q.read(f"ds_read_b128 {v4(XF+4*j)}, v{VXR} offset:{64*j + hf*LXH}", XF+4*j)
    CS = WD
    for j in range(7): rdx(j, 0)
    BJ = OPT["barj"]
    for hf in range(2):
        A = AC2 if hf else AC1
        for j in range(7):
            x = XF + 4*j
            q.need(x)
            a(f"v_mfma_f32_16x16x32_bf16 {v4(GR)}, {v4(x)}, {v4(x)}, {'0' if (j == 0 and hf == 0) else v4(GR)}")
            for T in range(4):
                a(f"v_mfma_f32_16x16x32_bf16 {v4(A+4*T)}, {v4(WD+4*(7*T+j))}, {v4(x)}, {'0' if j == 0 else v4(A+4*T)}")
            if hf == 0:
                if j == BJ:
                    if OPT["stamps"] != 3: stamp(a, 11)
                    a("s_barrier")
                    for k in range(BJ + 1): rdx(k, 1)
                elif j > BJ: rdx(j, 1)
            elif j == 4:
                for T in range(4): q.read(f"ds_read_b128 {v4(CS+4*T)}, v{VCS} offset:{64*T}", CS+4*T)
    stamp(a, 3)
    Q, S, M, RS = ST, ST+1, ST+2, ST+4
    a(f"s_waitcnt vmcnt(0)\nv_readfirstlane_b32 s98, v{V_EP}\nv_mov_b32 v{Q}, 0")
    for r in range(4): a(f"v_cndmask_b32 v{Q}, v{Q}, v{GR+r}, s[{30+2*r}:{31+2*r}]")
    for T in (1, 0, 2, 3):
        for p in range(2):
            a(f"v_pk_add_f32 {v2(AC1+4*T+2*p)}, {v2(AC1+4*T+2*p)}, {v2(AC2+4*T+2*p)} neg_hi:[0,1]")
        if T == 1:
            a(f"v_cndmask_b32 v{S}, 0, v{AC1+4+2}, s[24:25]")
        if T == 0:
            a(f"v_permlane32_swap_b32 v{Q}, v{S}\nv_add_f32 v{Q}, v{Q}, v{S}\nv_mov_b32 v{S}, v{Q}")
        if T == 2:
            a(f"v_permlane16_swap_b32 v{Q}, v{S}\nv_add_f32 v{Q}, v{Q}, v{S}\nv_mov_b32 v{S}, v{Q}")
    a(f"""v_permlane32_swap_b32 v{Q}, v{S}
    v_mul_f32 v{M}, {fl(-1.0/448)}, v{S}
    v_mul_f32 v{Q}, {fl(1.0/448)}, v{Q}
    v_fma_f32 v{Q}, -v{M}, v{M}, v{Q}
    v_max_f32 v{Q}, 0, v{Q}""")
    q.need(CS, 16)
    mc = [f"v_pk_fma_f32 {v2(AC1+4*T+2*p)}, {v2(CS+4*T+2*p)}, {v2(M)}, {v2(AC1+4*T+2*p)} op_sel_hi:[1,0,1]" for T in range(4) for p in range(2)]
    chain = [f"v_cvt_pk_bf16_f32 v{RS}, v{Q}, v{Q}", f"v_and_b32 v{RS}, 0xffff0000, v{RS}", f"v_add_f32 v{RS}, {fl(1e-5)}, v{RS}",
             f"v_cvt_pk_bf16_f32 v{RS}, v{RS}, v{RS}", f"v_and_b32 v{RS}, 0xffff0000, v{RS}", f"v_sqrt_f32 v{RS}, v{RS}",
             f"v_cvt_pk_bf16_f32 v{RS}, v{RS}, v{RS}", f"v_and_b32 v{RS}, 0xffff0000, v{RS}", f"v_rcp_f32 v{RS}, v{RS}"]
    for i in range(9):
        a(chain[i])
        if i < 8: a(mc[i])
    for T in range(4):
        for p in range(2):
            x = AC1 + 4*T + 2*p
            a(f"v_pk_mul_f32 {v2(x)}, {v2(x)}, {v2(RS)} op_sel_hi:[1,0]")
        for p in range(2):
            x = AC1 + 4*T + 2*p
            a(f"v_cvt_pk_f16_f32 v{AC2+2*T+p}, v{x}, v{x+1}")
        a(f"ds_write_b64 v{VFW}, {v2(AC2+2*T)} offset:{32*T}")
    a(f"s_add_u32 s98, s98, 1\ns_mul_i32 s98, s98, {HASH}\ns_waitcnt lgkmcnt(0)\ns_barrier")
    FA = WD + 16
    fa = lambda T, ks: FA + (2*T + ks) * 4
    q = LdsQ(a)
    for T in range(2):
        for ks in range(2):
            for TT in (T, T + 2):
                for h in range(2):
                    q.read(f"ds_read_b64_tr_b16 {v2(fa(TT, ks)+2*h)}, v{VFR} offset:{(32*ks+4*h)*PF+32*TT}", fa(TT, ks)+2*h, 2)
    UR = AC1; UI = AC1 + 8; o = XF
    for T in range(2):
        for ks in range(2):
            fr = v4(fa(T, ks)); fi = v4(fa(T + 2, ks))
            q.need(fa(T, ks))
            a(f"v_mfma_f32_16x16x32_f16 {v4(UR+4*T)}, {fr}, {v4(WC+4*ks)}, {'0' if ks == 0 else v4(UR+4*T)}")
            a(f"v_mfma_f32_16x16x32_f16 {v4(UI+4*T)}, {fr}, {v4(WNS+4*ks)}, {'0' if ks == 0 else v4(UI+4*T)}")
            q.need(fa(T + 2, ks))
            a(f"v_mfma_f32_16x16x32_f16 {v4(UR+4*T)}, {fi}, {v4(WSN+4*ks)}, {v4(UR+4*T)}")
            a(f"v_mfma_f32_16x16x32_f16 {v4(UI+4*T)}, {fi}, {v4(WC+4*ks)}, {v4(UI+4*T)}")
    for r in range(4): a(f"v_cvt_pk_f16_f32 v{o+r}, v{UR+r}, v{UI+r}")
    a(f"buffer_store_dwordx4 {v4(o)}, v{VUS}, s[12:15], s23 offen {SC}")
    a(f"v_add3_u32 v{Q}, v{o}, v{o+1}, v{o+2}")
    for r in range(4): a(f"v_cvt_pk_f16_f32 v{o+4+r}, v{UR+4+r}, v{UI+4+r}")
    a(f"""v_cndmask_b32 v{o+7}, v{o+7}, 0, s[24:25]
    v_add3_u32 v{Q}, v{Q}, v{o+3}, v{o+4}
    v_add3_u32 v{S}, v{o+5}, v{o+6}, v{o+7}
    v_add_u32 v{Q}, v{Q}, v{S}
    v_mov_b32 v{S}, v{Q}
    v_permlane32_swap_b32 v{Q}, v{S}
    v_add_u32 v{Q}, v{Q}, v{S}
    v_mov_b32 v{S}, v{Q}
    v_permlane16_swap_b32 v{Q}, v{S}
    v_sub_u32 v{Q}, s98, v{Q}
    v_sub_u32 v{Q}, v{Q}, v{S}
    v_cndmask_b32 v{o+7}, v{o+7}, v{Q}, s[24:25]
    buffer_store_dwordx4 {v4(o+4)}, v{VUS}, s[12:15], s23 offen offset:128 {SC}""")

def b_ids(a):
    a(f"""s_and_b32 s92, s2, 7
    s_lshr_b32 s93, s2, 6
    s_lshl_b32 s93, s93, 3
    s_or_b32 s92, s92, s93
    s_bfe_u32 s93, s2, 0x10003
    s_bfe_u32 s96, s2, 0x20004
    s_sub_u32 s95, 64, s92
    s_cmp_eq_u32 s92, 0
    s_cselect_b32 s95, 32, s95
    s_cselect_b32 s94, 0, 1
    s_xor_b32 s94, s94, s93
    s_cmp_eq_u32 s93, 0
    s_cselect_b32 s95, s92, s95
    s_lshl_b32 s96, s96, 9
    s_add_u32 s95, s95, s96
    s_lshl_b32 s96, s20, 6
    s_add_u32 s96, s96, s95
    s_mul_i32 s97, s96, 896""")

def b_loads(a):
    srd(a, 12, 6, WS_SIZE)
    srd(a, 52, 48, XB)
    srd(a, 16, 40, 896)
    b_ids(a)
    a(f"""s_mov_b32 s26, {WS_EPOCH}
    v_mov_b32 v{T0}, 0
    buffer_load_dword v{V_EP}, v{T0}, s[12:15], s26 offen {SC}
    buffer_load_dwordx4 {v4(B_WR)}, v{VL}, s[16:19], 0 offen
    buffer_load_dwordx4 {v4(B_XR)}, v{VL}, s[8:11], s97 offen""")

def pro(a):
    EPS, BASE, TH, AF, AD = P_EPS, P_BASE, P_TH, B_AF, B_AD
    a(f"""s_lshl_b32 s28, s92, 16
    s_lshl_b32 s29, s20, 8
    s_add_u32 s28, s28, s29
    s_add_u32 s29, s28, 4096
    s_add_u32 s30, s28, 32768
    s_add_u32 s31, s28, 36864
    v_lshlrev_b32 v{B_VU}, 13, v{G}
    v_lshl_add_u32 v{B_VU}, v{N}, 4, v{B_VU}
    v_and_b32 v{T0}, 7, v{N}
    v_lshlrev_b32 v{T0}, 6, v{T0}
    v_add_u32 v{T0}, s95, v{T0}
    v_cvt_f32_u32 v{T0}, v{T0}
    v_cmp_gt_u32 vcc, 8, v{N}
    v_mul_f32 v{EPS}, {fl(1.0/2048)}, v{T0}
    v_lshlrev_b32 v{T1}, 2, v{G}
    v_cndmask_b32 v{EPS}, -v{EPS}, v{EPS}, vcc
    v_cvt_f32_u32 v{T1}, v{T1}
    v_mul_f32 v{BASE}, v{T1}, v{EPS}""")
    for ks in range(2):
        trig_block(a, 4, 16*ks, EPS, BASE, TH, True)
        for i in range(4):
            a(f"v_cvt_pk_f16_f32 v{AF+4*ks+i}, v{TH+i}, v{TH+4+i}")
    a(f"""v_lshrrev_b32 v{T0}, 3, v{N}
    v_and_b32 v{T1}, 3, v{N}
    v_lshlrev_b32 v{T1}, 2, v{T1}
    v_lshl_add_u32 v{T0}, v{T0}, 4, v{T1}
    s_mul_i32 s32, s20, 28
    v_add_u32 v{T1}, s32, v{T0}
    v_sub_u32 v{T2}, 448, v{T1}
    v_cmp_gt_u32 s[34:35], 2, v{G}
    v_mov_b32 v{TH}, s93
    v_mov_b32 v{TH+1}, s94
    v_cndmask_b32 v{T2}, v{T2}, v{T1}, s[34:35]
    v_cndmask_b32 v{TH}, v{TH+1}, v{TH}, s[34:35]
    v_bfe_u32 v{TH+1}, v{N}, 2, 1
    v_cmp_eq_u32 s[36:37], v{TH}, v{TH+1}
    v_and_b32 v{TH+2}, 1, v{G}
    v_mul_u32_u24 v{TH+2}, {4*PY}, v{TH+2}
    v_add_lshl_u32 v{AD}, v{TH+2}, v{T2}, 2
    v_mov_b32 v{TH+3}, -4
    v_cndmask_b32 v{TH+3}, v{TH+3}, 4, s[34:35]
    v_add_u32 v{AD+1}, v{AD}, v{TH+3}
    v_add_u32 v{AD+2}, v{AD+1}, v{TH+3}
    v_add_u32 v{AD+3}, v{AD+2}, v{TH+3}
    v_cmp_gt_u32 s[62:63], 28, v{T0}
    s_and_b64 s[62:63], s[62:63], s[36:37]
    v_cmp_eq_u32 s[60:61], 0, v{T1}
    s_andn2_b64 s[60:61], s[60:61], s[34:35]
    s_andn2_b64 s[60:61], s[62:63], s[60:61]
    v_mov_b32 v{TH}, 224
    v_cmp_eq_u32 s[38:39], v{TH}, v{T1}
    s_and_b64 s[38:39], s[38:39], s[34:35]
    s_and_b64 s[38:39], s[38:39], s[36:37]
    s_or_b64 s[60:61], s[60:61], s[38:39]
    s_mul_i32 s33, s20, {PY*4}
    v_lshlrev_b32 v{B_VY}, 5, v{LANE}
    v_add_u32 v{B_VY}, s33, v{B_VY}""")
    lim_regs(a, C_L, LANE, T0)
    a(f"""s_lshl_b32 s34, s20, 5
    s_add_u32 s34, s34, {LSEL}
    v_lshlrev_b32 v{T1}, 2, v{LANE}
    v_add_u32 v{C_SW}, s34, v{T1}
    v_add_u32 v{C_SR}, {LSEL}, v{T1}
    v_lshrrev_b32 v{C_KA}, 1, v0
    v_lshlrev_b32 v{C_KA}, 6, v{C_KA}
    v_and_b32 v{T0}, 1, v0
    v_lshl_add_u32 v{C_KA}, v{T0}, 4, v{C_KA}
    s_lshl_b32 s34, s20, 6
    s_add_u32 s34, s34, {LSE2}
    v_add_u32 v{C_FW}, s34, v{T1}
    v_lshrrev_b32 v{C_PF}, 3, v{LANE}
    v_and_b32 v{C_FY}, 7, v{LANE}
    v_lshlrev_b32 v{C_FR}, 6, v{C_PF}
    v_lshl_add_u32 v{C_FR}, v{C_FY}, 2, v{C_FR}
    v_add_u32 v{C_FR}, {LSE2}, v{C_FR}
    v_lshlrev_b32 v{C_FY}, 6, v{C_FY}
    v_add_u32 v{C_FY}, {LSE2 + 32}, v{C_FY}
    v_lshlrev_b32 v{C_PF}, 7, v{C_PF}
    s_cmp_ge_u32 s2, 224
    s_cselect_b32 s33, 1024, 0
    s_add_u32 s33, s33, {WS_ROW}
    s_lshl_b32 s27, s2, 6
    s_add_u32 s27, s27, {WS_KEYS}
    s_sub_u32 s32, {2047 + 0x800}, s96""")

def pro2(a):
    XU, WU, S1, S2, S3 = B_XU, B_WU, P_TH, P_TH + 2, P_TH + 4
    unpack8(a, WU, B_WR)
    a(f"""v_pk_add_f32 {v2(S1)}, {v2(WU)}, {v2(WU+2)}
    v_pk_add_f32 {v2(S2)}, {v2(WU+4)}, {v2(WU+6)}
    v_readfirstlane_b32 s56, v{V_EP}
    v_pk_add_f32 {v2(S1)}, {v2(S1)}, {v2(S2)}
    v_add_f32 v{S1}, v{S1}, v{S1+1}
    v_mov_b32 v{S2}, 0
    v_mov_b32 v{S3}, 0
    s_add_u32 s56, s56, 1
    s_mul_i32 s98, s56, {HASH}
    s_lshl_b32 s99, s98, 4""")
    reduce3(a, S1, S2, S3, T0, 58, 59, 59)
    unpack8(a, XU, B_XR)
    for k in (B_S1, B_S1+1, B_S2, B_S2+1, B_S3, B_S3+1): a(f"v_mov_b32 v{k}, 0")

def anyones(a, regs_, t):
    regs_ = list(regs_)
    a(f"v_max_u32 v{t}, v{regs_[0]}, v{regs_[1]}")
    rest = regs_[2:]
    while len(rest) >= 2:
        a(f"v_max3_u32 v{t}, v{t}, v{rest[0]}, v{rest[1]}"); rest = rest[2:]
    if rest: a(f"v_max_u32 v{t}, v{t}, v{rest[0]}")
    a(f"v_cmp_eq_u32 vcc, -1, v{t}")

def wave_sum(a, v, sd):
    for k in (8, 4, 2, 1):
        a(f"v_add_u32_dpp v{v}, v{v}, v{v} row_ror:{k} row_mask:0xf bank_mask:0xf")
    for i in range(4): a(f"v_readlane_b32 s{sd+i}, v{v}, {16*i}")
    a(f"s_add_u32 s{sd}, s{sd}, s{sd+1}\ns_add_u32 s{sd+2}, s{sd+2}, s{sd+3}\ns_add_u32 s{sd}, s{sd}, s{sd+2}")

def publish_row(a):
    a(f"""s_lshl_b32 s34, s96, 11
    s_add_u32 s34, s34, {WS_ROW}
    v_mov_b32 v{T0}, 0
    v_mov_b32 v{T1}, 0
    v_writelane_b32 v{C_LN}, 0, 56
    v_writelane_b32 v{C_OUT}, 0, 56
    s_mov_b32 exec_hi, 0x01ffffff
    v_add3_u32 v{T0}, v{C_LN}, v{C_LN+1}, v{C_LN+2}
    v_add3_u32 v{T1}, v{C_OUT}, v{C_OUT+1}, v{C_OUT+2}
    v_add_u32 v{T0}, v{T0}, v{C_LN+3}
    v_add_u32 v{T1}, v{T1}, v{C_OUT+3}
    s_mov_b32 exec_hi, -1""")
    wave_sum(a, T0, 36)
    a(f"s_sub_u32 s35, s98, s36\nv_writelane_b32 v{C_LN}, s35, 56")
    wave_sum(a, T1, 36)
    a(f"""s_sub_u32 s35, s98, s36
    v_writelane_b32 v{C_OUT}, s35, 56
    s_mov_b32 exec_hi, 0x01ffffff
    buffer_store_dwordx4 {v4(C_LN)}, v{VL}, s[12:15], s34 offen {SC}
    buffer_store_dwordx4 {v4(C_OUT)}, v{VL}, s[12:15], s34 offen offset:1024 {SC}
    s_mov_b32 exec_hi, -1""")

def fetch_row_issue(a, dst):
    a(f"""v_readlane_b32 s34, v{C_K}, s20
    s_andn2_b32 s34, 0x7ff, s34
    s_lshl_b32 s34, s34, 11
    s_add_u32 s34, s34, s33
    s_mov_b32 exec_hi, 0x01ffffff
    buffer_load_dwordx4 {v4(dst)}, v{VL}, s[12:15], s34 offen {SC}
    s_mov_b32 exec_hi, -1""")

def fetch_row_finish(a, dst, ldsaddr):
    _lbl[0] += 1
    L = f"Lrow{_lbl[0]}"
    a(f"""s_mul_i32 s29, s20, {PX}
    s_add_u32 s29, s29, {LXS}
    v_add_u32 v{ldsaddr}, s29, v{VL}
    s_mov_b32 s57, {SPIN}
    {L}:
    v_mov_b32 v{T0}, 0
    s_mov_b32 exec_hi, 0x01ffffff
    s_waitcnt vmcnt(0)
    ds_write_b128 v{ldsaddr}, {v4(dst)}
    v_add3_u32 v{T0}, v{dst}, v{dst+1}, v{dst+2}
    v_add_u32 v{T0}, v{T0}, v{dst+3}
    s_mov_b32 exec_hi, -1""")
    wave_sum(a, T0, 36)
    a(f"""s_cmp_eq_u32 s36, s98
    s_cbranch_scc1 {L}d
    s_mov_b32 exec_hi, 0x01ffffff
    s_waitcnt lgkmcnt(0)
    buffer_load_dwordx4 {v4(dst)}, v{VL}, s[12:15], s34 offen {SC}
    s_mov_b32 exec_hi, -1
    s_sub_u32 s57, s57, 1
    s_cbranch_scc0 {L}""")
    timeout_note(a, _lbl[0])
    a(f"{L}d:")

def gu_dma(a):
    a(f"""s_cmp_ge_u32 s2, 224
    s_cbranch_scc1 Lngu
    s_cmp_eq_u32 s20, 7
    s_cbranch_scc1 Lngu""")
    srd(a, 16, 42, 448*3584)
    a(f"""v_mul_u32_u24 v{T1}, 3584, v0
    s_and_b32 s50, s2, 7
    s_mul_i32 s50, s50, 28
    s_lshr_b32 s51, s2, 3
    s_add_u32 s50, s50, s51
    s_lshl_b32 s26, s50, 4
    s_lshl_b32 s24, s20, 10
    s_add_u32 s24, s24, {LWT}
    s_mov_b32 m0, s24
    s_add_u32 s24, s24, 8192
    buffer_load_dwordx4 v{T1}, s[16:19], s26 offen lds
    s_mov_b32 s16, s44
    s_and_b32 s17, s45, 0xffff
    s_mov_b32 m0, s24
    s_nop 0
    buffer_load_dwordx4 v{T1}, s[16:19], s26 offen lds
    Lngu:""")

def wd_dma(a):
    a(f"""s_cmp_lt_u32 s2, 224
    s_cbranch_scc1 Lnwd
    s_and_b32 s50, s2, 7
    s_cmp_eq_u32 s50, 7
    s_cbranch_scc1 Lnwd
    s_lshl_b32 s50, s50, 7
    s_bfe_u32 s51, s2, 0x20003
    s_lshl_b32 s51, s51, 5
    s_add_u32 s51, s51, s50""")
    srd(a, 16, 46, 1792*896)
    a(f"""v_lshrrev_b32 v{T1}, 1, v{LANE}
    v_mul_u32_u24 v{T1}, 896, v{T1}
    v_and_b32 v{T2}, 1, v{LANE}
    v_lshl_add_u32 v{T1}, v{T2}, 4, v{T1}
    s_mul_i32 s23, s20, {224*896}
    s_add_u32 s23, s23, s51
    s_mul_i32 s25, s20, 7168
    s_add_u32 s25, s25, {LWT}""")
    for j in range(7):
        a(f"s_mov_b32 m0, s25")
        a(f"s_add_u32 s25, s25, 1024")
        a(f"buffer_load_dwordx4 v{T1}, s[16:19], s23 offen lds")
        a(f"s_add_u32 s23, s23, {32*896}")
    a("Lnwd:")

def b_main(a):
    R, AF, ACC, XU, WU, AD, TH = B_R, B_AF, B_ACC, B_XU, B_WU, B_AD, B_TH
    S1, S2, S3 = B_S1, B_S2, B_S3
    if OPT["sl_u0"]: a(f"s_sleep {OPT['sl_u0']}")
    a(f"s_mov_b32 s57, {SPIN}\nLupoll:")
    for ks in range(2):
        for i in range(4):
            a(f"buffer_load_dwordx4 {v4(R+16*ks+4*i)}, v{B_VU}, s[12:15], s{28+2*ks+(i>>1)} offen offset:{2048*(i&1)} {SC}")
    for ks in range(2):
        a(f"s_waitcnt vmcnt({4-4*ks})")
        b = R + 16*ks
        for i in range(8):
            if ks == 0 and i == 0: a(f"v_add_u32 v{T0}, v{b}, v{b+1}")
            else: a(f"v_add3_u32 v{T0}, v{T0}, v{b+2*i}, v{b+2*i+1}")
        for i in range(4):
            for j in range(i+1, 4):
                a(f"v_swap_b32 v{b+4*i+j}, v{b+4*j+i}")
        for j in range(4):
            c = "0" if ks == 0 else v4(ACC+4*j)
            a(f"v_mfma_f32_16x16x32_f16 {v4(ACC+4*j)}, {v4(AF+4*ks)}, {v4(b+4*j)}, {c}")
            if ks == 1: a(f"v_add_u32_dpp v{T0}, v{T0}, v{T0} row_ror:{8 >> j} row_mask:0xf bank_mask:0xf")
    a(f"""v_cmp_ne_u32 vcc, s99, v{T0}
    s_cmp_eq_u64 vcc, 0
    s_cbranch_scc1 Lupolld
    s_sub_u32 s57, s57, 1
    s_cbranch_scc0 Lupoll""")
    timeout_note(a, 9)
    a("Lupolld:")
    stamp(a, 6)
    if OPT["stamps"] == 3: a(f"s_sub_u32 s{64+2*11}, {SPIN+1}, s57")
    for j in range(4):
        if j < 2: a(f"s_mov_b64 exec, s[{60+2*j}:{61+2*j}]")
        for r in range(4):
            a(f"ds_write_b32 v{AD+j}, v{ACC+4*j+r} offset:{LY + r*PY*4}")
    a("s_mov_b64 exec, -1")
    gu_dma(a)
    a("""s_mov_b32 exec_hi, 0x00ffffff
    s_waitcnt lgkmcnt(0)
    s_barrier""")
    H = R
    a(f"ds_read_b128 {v4(H)}, v{B_VY} offset:{LY}\nds_read_b128 {v4(H+4)}, v{B_VY} offset:{LY+16}")
    for hf in range(2):
        a(f"s_waitcnt lgkmcnt({1-hf})")
        for p in range(2):
            x = 4*hf + 2*p
            a(f"v_pk_add_f32 {v2(H+x)}, {v2(H+x)}, {v2(XU+x)}")
        for p in range(2):
            x = 4*hf + 2*p
            a(f"v_pk_add_f32 {v2(S1)}, {v2(S1)}, {v2(H+x)}")
            a(f"v_pk_fma_f32 {v2(S2)}, {v2(H+x)}, {v2(H+x)}, {v2(S2)}")
            a(f"v_pk_fma_f32 {v2(S3)}, {v2(H+x)}, {v2(WU+x)}, {v2(S3)}")
    a(f"""s_mov_b32 exec_hi, -1
    v_add_f32 v{S1}, v{S1}, v{S1+1}
    v_add_f32 v{S2}, v{S2}, v{S2+1}
    v_add_f32 v{S3}, v{S3}, v{S3+1}""")
    reduce3(a, S1, S2, S3, T0, 37, 38, 39)
    M, V, SD, RS, C0, KEY = TH, TH+1, TH+2, TH+4, TH+6, C_KEY
    a(f"""v_mov_b32 v{V}, {fl(1.0/448)}
    v_mul_f32 v{M}, s37, v{V}
    v_mul_f32 v{V}, s38, v{V}
    v_mov_b32 v{KEY}, s39
    v_fma_f32 v{V}, -v{M}, v{M}, v{V}
    v_fma_f32 v{KEY}, -v{M}, s58, v{KEY}
    v_max_f32 v{V}, 0, v{V}""")
    sd_chain(a, V, SD)
    a(f"""v_rcp_f32 v{RS}, v{SD}
    s_lshl_b32 s34, s20, 2
    v_mov_b32 v{T2}, s34
    v_mul_f32 v{KEY}, v{KEY}, v{RS}
    v_cvt_pk_bf16_f32 v{KEY}, v{KEY}, v{KEY}
    v_mul_f32 v{C0}, -v{M}, v{RS}
    v_ashrrev_i32 v{T0}, 31, v{KEY}
    v_or_b32 v{T0}, 0x80000000, v{T0}
    v_xor_b32 v{KEY}, v{KEY}, v{T0}
    v_and_b32 v{KEY}, 0xffff0000, v{KEY}
    v_or_b32 v{KEY}, s32, v{KEY}
    ds_write_b32 v{T2}, v{KEY} offset:{LKEY}
    v_lshlrev_b32 v{T1}, 2, v{LANE}
    v_mov_b32 v{T2}, {LKEY}
    s_waitcnt lgkmcnt(0)
    s_barrier
    s_cmp_lg_u32 s20, 0
    s_cbranch_scc1 Lnokey
    s_mov_b64 exec, 0xff
    ds_read_b32 v{T0}, v{T1} offset:{LKEY}
    s_waitcnt lgkmcnt(0)
    buffer_store_dword v{T0}, v{T1}, s[12:15], s27 offen {SC}
    s_mov_b64 exec, -1
    Lnokey:
    ds_read_b128 {v4(ACC)}, v{T2}
    ds_read_b128 {v4(ACC+4)}, v{T2} offset:16""")
    stamp(a, 7)
    for p in range(4):
        a(f"v_pk_fma_f32 {v2(XU+2*p)}, {v2(H+2*p)}, {v2(RS)}, {v2(C0)} op_sel_hi:[1,0,0]")
    for p in range(4):
        a(f"v_pk_add_f32 {v2(H+2*p)}, {v2(H+2*p)}, {v2(XU+2*p)}")
    for p in range(4):
        a(f"v_cvt_pk_bf16_f32 v{C_LN+p}, v{XU+2*p}, v{XU+2*p+1}")
        a(f"v_cvt_pk_bf16_f32 v{C_OUT+p}, v{H+2*p}, v{H+2*p+1}")
    a(f"""s_waitcnt lgkmcnt(0)
    v_max3_u32 v{T0}, v{ACC}, v{ACC+1}, v{ACC+2}
    v_max3_u32 v{T1}, v{ACC+3}, v{ACC+4}, v{ACC+5}
    v_max3_u32 v{T0}, v{T0}, v{ACC+6}, v{ACC+7}
    v_max_u32 v{T0}, v{T0}, v{T1}
    v_cmp_eq_u32 s[60:61], v{T0}, v{KEY}
    s_cmp_eq_u64 s[60:61], 0
    s_cbranch_scc1 Lnoeager""")
    publish_row(a)
    a("Lnoeager:")

QP = {1: "quad_perm:[1,0,3,2]", 2: "quad_perm:[2,3,0,1]", 3: "quad_perm:[3,2,1,0]", 7: "row_half_mirror"}
class Net:
    def __init__(s, a, x, t, fill): s.a = a; s.x = x; s.t = t; s.fill = list(fill)
    def f(s, n=1):
        for _ in range(n):
            if s.fill: s.a(s.fill.pop(0))
    def ce(s, m):
        a, x, t = s.a, s.x, s.t
        s.f()
        if m == 4:
            a(f"v_max_u32_dpp v{t}, v{x}, v{x} row_shl:4 row_mask:0xf bank_mask:0x5")
            a(f"v_min_u32_dpp v{t}, v{x}, v{x} row_shr:4 row_mask:0xf bank_mask:0xa")
            s.x, s.t = t, x
        else:
            a(f"v_mov_b32_dpp v{t}, v{x} {QP[m]} row_mask:0xf bank_mask:0xf")
            a(f"v_med3_u32 v{x}, v{x}, v{t}, v{C_L[1 << (m.bit_length()-1)]}")
    def merge(s, last_clean=True):
        a = s.a
        s.f()
        a(f"v_max_u32_dpp v{s.x}, v{s.x}, v{s.x} row_mirror row_mask:0xf bank_mask:0xf")
        for m in (4, 2, 1): s.ce(m)
        for sw in ("v_permlane16_swap_b32", "v_permlane32_swap_b32"):
            a(f"v_mov_b32 v{s.t}, v{s.x}")
            s.f()
            a(f"{sw} v{s.x}, v{s.t}")
            s.f()
            a(f"v_max_u32_dpp v{s.x}, v{s.t}, v{s.x} row_half_mirror row_mask:0xf bank_mask:0xf")
            if last_clean or "16" in sw:
                for m in (4, 2, 1): s.ce(m)
        s.f(99)

def fast_select(a):
    K, X, Y, P, Q = C_K, C_X, C_Y, C_TMP, C_TMP + 1
    a(f"""v_max_u32 v{P}, v{K}, v{K+1}
    v_max_u32 v{Q}, v{K+2}, v{K+3}
    v_max_u32 v{X}, v{P}, v{Q}""")
    fill = [f"v_min_u32 v{Y}, v{P}, v{Q}", f"v_min_u32 v{P}, v{K}, v{K+1}", f"v_min_u32 v{Q}, v{K+2}, v{K+3}",
            f"v_max3_u32 v{Y}, v{Y}, v{P}, v{Q}"]
    fill += [f"v_max_u32_dpp v{Y}, v{Y}, v{Y} row_ror:{k} row_mask:0xf bank_mask:0xf" for k in (8, 4, 2, 1)]
    fill += [f"v_mov_b32 v{P}, v{Y}", f"v_permlane16_swap_b32 v{Y}, v{P}", f"v_max_u32 v{Y}, v{Y}, v{P}",
             f"v_mov_b32 v{P}, v{Y}", f"v_permlane32_swap_b32 v{Y}, v{P}", f"v_max_u32 v{Y}, v{Y}, v{P}",
             "s_mov_b64 vcc, 0x100"]
    n = Net(a, X, C_TMP + 2, fill)
    for m in (1, 3, 1, 7, 2, 1): n.ce(m)
    n.merge()
    a(f"""s_mov_b64 exec, 0x1ff
    v_cndmask_b32 v{P}, v{n.x}, v{Y}, vcc
    ds_write_b32 v{C_FW}, v{P}""")
    if OPT["rowpf"]:
        m8 = (1 << OPT["rowpf"]) - 1; m32 = m8 * 0x01010101
        a(f"""s_mov_b32 exec_lo, {hex(m32)}
        s_mov_b32 exec_hi, {hex(m32)}
        v_bfi_b32 v{Q}, v{n.x}, 0, v{C_TMP+3}
        v_lshl_add_u32 v{Q}, v{Q}, 11, v{C_PF}
        buffer_load_dword v{JUNK}, v{Q}, s[12:15], s33 offen {SC}""")
    a(f"""s_mov_b64 exec, -1
    s_waitcnt lgkmcnt(0)
    s_barrier
    ds_read_b32 v{X}, v{C_FR}
    ds_read_b32 v{Y}, v{C_FY}
    s_waitcnt lgkmcnt(0)""")
    fill = [f"v_max_u32_dpp v{Y}, v{Y}, v{Y} {QP[m]} row_mask:0xf bank_mask:0xf" for m in (1, 2, 7)]
    n = Net(a, X, C_TMP + 2, fill)
    n.merge(last_clean=False)
    a(f"""v_cmp_gt_u32 vcc, v{Y}, v{n.x}
    s_cmp_eq_u64 vcc, 0
    s_cbranch_scc0 Lfullsel
    v_mov_b32 v{K}, v{n.x}
    Lseldone:""")

def c_select(a):
    K = C_K
    a(f"s_mov_b32 s34, {WS_KEYS}\nv_mov_b32 v{C_TMP+3}, 0x7ff")
    def chk():
        a(f"v_min3_u32 v{T0}, v{K}, v{K+1}, v{K+2}")
        a(f"v_min_u32 v{T0}, v{T0}, v{K+3}")
        a(f"v_cmp_eq_u32 vcc, 0, v{T0}")
    poll(a, lambda: a(f"buffer_load_dwordx4 {v4(K)}, v{C_KA}, s[12:15], s34 offen {SC}"), chk, pre=OPT["sl_k"])
    stamp(a, 8)
    fast_select(a)
    stamp(a, 9)
    a(f"""v_cmp_eq_u32 vcc, v{K}, v{C_KEY}
    s_and_b64 s[62:63], vcc, s[60:61]
    s_cmp_lg_u64 s[62:63], vcc
    s_cbranch_scc0 Lsel_pub""")
    publish_row(a)
    a("Lsel_pub:")
    fetch_row_issue(a, 84)
    a(f"""s_cmp_eq_u64 vcc, 0
    s_cbranch_scc0 Lsel_done
    s_mov_b32 exec_hi, 0x00ffffff
    buffer_store_dwordx4 {v4(C_OUT)}, v{VL}, s[52:55], s97 offen {['', 'sc1', 'nt', 'sc0 sc1'][OPT['ost']]}
    s_mov_b32 exec_hi, -1
    Lsel_done:""")

def c1(a):
    XR = 84; XF_ = 168; ACC = 52; XU = 60; WF = 88
    a(f"""s_cmp_lg_u32 s20, 0
    s_cbranch_scc1 Lc1_now
    v_lshrrev_b32 v{T0}, 2, v{N}
    v_lshl_add_u32 v{T0}, v{G}, 3, v{T0}
    v_lshlrev_b32 v{T0}, 4, v{T0}
    v_and_b32 v{T1}, 1, v{N}
    v_lshl_add_u32 v{T0}, v{T1}, 3, v{T0}
    v_bfe_u32 v{T1}, v{N}, 1, 1
    v_lshl_add_u32 v{T0}, v{T1}, 13, v{T0}
    v_add_u32 v{T0}, {LWT}, v{T0}""")
    for j in range(14):
        for h in range(2):
            a(f"ds_read_b64_tr_b16 {v2(WF+4*j+2*h)}, v{T0} offset:{(32*j+4*h)*16}")
    a(f"""v_and_b32 v{XU+4}, 7, v{N}
    v_mul_u32_u24 v{XU+4}, {PX}, v{XU+4}
    v_lshl_add_u32 v{XU+4}, v{G}, 4, v{XU+4}
    v_lshlrev_b32 v{XU+5}, 4, v{N}
    v_lshl_add_u32 v{XU+5}, v{G}, 3, v{XU+5}
    s_lshl_b32 s22, s50, 7
    s_add_u32 s22, s22, {WS_ACT}
    Lc1_now:""")
    fetch_row_finish(a, XR, T2)
    a(f"""s_waitcnt lgkmcnt(0)
    s_barrier
    s_cmp_lg_u32 s20, 0
    s_cbranch_scc1 Lc1_epoch""")
    stamp(a, 10)
    for j in range(14):
        a(f"ds_read_b128 {v4(XF_+4*j)}, v{XU+4} offset:{LXS+64*j}")
    for j in range(14):
        a(f"s_waitcnt lgkmcnt({13-j})")
        A = ACC + 4*(j & 1)
        a(f"v_mfma_f32_16x16x32_bf16 {v4(A)}, {v4(WF+4*j)}, {v4(XF_+4*j)}, {'0' if j < 2 else v4(A)}")
    for p in range(2):
        a(f"v_pk_add_f32 {v2(ACC+2*p)}, {v2(ACC+2*p)}, {v2(ACC+4+2*p)}")
    for p in range(2): a(f"v_cvt_pk_bf16_f32 v{ACC+4+p}, v{ACC+2*p}, v{ACC+2*p+1}")
    for p in range(2): a(f"v_mov_b32 v{ACC+6+p}, v{ACC+4+p}")
    for p in range(2): a(f"v_permlane32_swap_b32 v{ACC+4+p}, v{ACC+6+p}")
    for p in range(2):
        a(f"v_lshlrev_b32 v{ACC+2*p}, 16, v{ACC+4+p}")
        a(f"v_and_b32 v{ACC+2*p+1}, 0xffff0000, v{ACC+4+p}")
    for r in range(4): a(f"v_mul_f32 v{XU+r}, {fl(-1.4426950408889634)}, v{ACC+r}")
    for r in range(4): a(f"v_exp_f32 v{XU+r}, v{XU+r}")
    for p in range(2):
        a(f"v_lshlrev_b32 v{XR+2*p}, 16, v{ACC+6+p}")
        a(f"v_and_b32 v{XR+2*p+1}, 0xffff0000, v{ACC+6+p}")
    for r in range(4): a(f"v_add_f32 v{XU+r}, 1.0, v{XU+r}")
    for r in range(4): a(f"v_rcp_f32 v{XU+r}, v{XU+r}")
    for r in range(4): a(f"v_mul_f32 v{ACC+r}, v{ACC+r}, v{XU+r}")
    for p in range(2): a(f"v_cvt_pk_bf16_f32 v{ACC+4+p}, v{ACC+2*p}, v{ACC+2*p+1}")
    for p in range(2):
        a(f"v_lshlrev_b32 v{ACC+2*p}, 16, v{ACC+4+p}")
        a(f"v_and_b32 v{ACC+2*p+1}, 0xffff0000, v{ACC+4+p}")
    for p in range(2): a(f"v_pk_mul_f32 {v2(ACC+2*p)}, {v2(ACC+2*p)}, {v2(XR+2*p)}")
    for p in range(2): a(f"v_cvt_pk_bf16_f32 v{XR+p}, v{ACC+2*p}, v{ACC+2*p+1}")
    for p in range(2): a(f"v_min_u32 v{XR+p}, -2, v{XR+p}")
    a(f"""s_mov_b32 exec_lo, 0x00ff00ff
    s_mov_b32 exec_hi, 0
    buffer_store_dwordx2 {v2(XR)}, v{XU+5}, s[12:15], s22 offen {SC}
    s_branch Lend
    Lc1_epoch:
    s_lshl_b32 s29, s2, 3
    s_add_u32 s29, s29, s20
    s_cmp_lg_u32 s29, 1
    s_cbranch_scc1 Lend
    s_mov_b64 exec, 1
    v_mov_b32 v{T0}, s56
    s_mov_b32 s29, {WS_EPOCH}
    buffer_store_dword v{T0}, v{VL}, s[12:15], s29 offen {SC}
    s_branch Lend""")

def c2(a):
    K = C_K
    OA = 8; OR = 10; SG = 12; VA = 13; VO = 14; VW = 15; WF = 88; AF = 116; ACC = 52; RD = 168
    a(f"""s_mul_i32 s24, s20, 7168
    s_add_u32 s24, s24, {LWT}
    v_lshrrev_b32 v{T0}, 2, v{N}
    v_lshl_add_u32 v{T0}, v{G}, 3, v{T0}
    v_lshlrev_b32 v{T0}, 5, v{T0}
    v_and_b32 v{T1}, 3, v{N}
    v_lshl_add_u32 v{T0}, v{T1}, 3, v{T0}
    v_add_u32 v{VW}, s24, v{T0}""")
    for j in range(7):
        for h in range(2):
            a(f"ds_read_b64_tr_b16 {v2(WF+4*j+2*h)}, v{VW} offset:{(32*j+4*h)*32}")
    a(f"""v_and_b32 v{T1}, 7, v{N}
    v_mul_u32_u24 v{VO}, {PX}, v{T1}
    v_lshl_add_u32 v{VO}, v{G}, 3, v{VO}
    v_add_u32 v{VO}, s51, v{VO}
    v_lshlrev_b32 v{VA}, 4, v{T1}
    v_lshl_add_u32 v{VA}, v{G}, 7, v{VA}
    s_mul_i32 s25, s20, {7*512}
    s_add_u32 s25, s25, {WS_ACT}
    v_and_b32 v{OA}, 0x7ff, v{K}
    v_sub_u32 v{OA}, 2047, v{OA}
    v_mul_u32_u24 v{OA}, 896, v{OA}
    v_lshl_add_u32 v{OA}, v{G}, 3, v{OA}
    v_ashrrev_i32 v{T2}, 31, v{K}
    v_not_b32 v{T2}, v{T2}
    v_or_b32 v{T2}, 0x80000000, v{T2}
    v_xor_b32 v{K+1}, v{K}, v{T2}
    v_and_b32 v{K+1}, 0xffff0000, v{K+1}""")
    sigmoid_mul(a, SG, K+1, "1.0", T2)
    rbf(a, SG, SG)
    a(f"""v_lshlrev_b32 v{T1}, 4, v0
    v_add_u32 v{T1}, {LRED}, v{T1}""")
    def lds():
        for j in range(7):
            a(f"buffer_load_dwordx4 {v4(AF+4*j)}, v{VA}, s[12:15], s25 offen offset:{512*j} {SC}")
    if OPT["c2re"]:
        if OPT["sl_a"]: a(f"s_sleep {OPT['sl_a']}")
        lds()
        fetch_row_finish(a, 84, T2)
        anyones(a, range(AF, AF+28), T0)
        a("s_cmp_eq_u64 vcc, 0\ns_cbranch_scc1 Lactok")
        poll(a, lds, lambda: anyones(a, range(AF, AF+28), T0))
        a("Lactok:")
    else:
        fetch_row_finish(a, 84, T2)
        poll(a, lds, lambda: anyones(a, range(AF, AF+28), T0), pre=OPT["sl_a"])
    stamp(a, 10)
    a("s_waitcnt lgkmcnt(0)")
    for j in range(7):
        A = ACC + 4*(j & 1)
        a(f"v_mfma_f32_16x16x32_bf16 {v4(A)}, {v4(WF+4*j)}, {v4(AF+4*j)}, {'0' if j < 2 else v4(A)}")
    for p in range(2):
        a(f"v_pk_add_f32 {v2(ACC+2*p)}, {v2(ACC+2*p)}, {v2(ACC+4+2*p)}")
    a(f"""ds_write_b128 v{T1}, {v4(ACC)}
    s_waitcnt lgkmcnt(0)
    s_barrier
    s_cmp_lg_u32 s20, 0
    s_cbranch_scc1 Lend
    ds_read_b64 {v2(OR)}, v{VO} offset:{LXS}""")
    for w in range(1, 8):
        a(f"ds_read_b128 {v4(RD+4*w)}, v{T1} offset:{1024*w}")
    a("s_waitcnt lgkmcnt(7)")
    for i in range(2):
        a(f"v_lshlrev_b32 v{RD+2*i}, 16, v{OR+i}")
        a(f"v_and_b32 v{RD+2*i+1}, 0xffff0000, v{OR+i}")
    for w in range(1, 8):
        a(f"s_waitcnt lgkmcnt({7-w})")
        for p in range(2):
            a(f"v_pk_add_f32 {v2(ACC+2*p)}, {v2(ACC+2*p)}, {v2(RD+4*w+2*p)}")
    for rnd in range(2):
        for p in range(2): a(f"v_cvt_pk_bf16_f32 v{ACC+4+p}, v{ACC+2*p}, v{ACC+2*p+1}")
        for p in range(2):
            a(f"v_lshlrev_b32 v{ACC+2*p}, 16, v{ACC+4+p}")
            a(f"v_and_b32 v{ACC+2*p+1}, 0xffff0000, v{ACC+4+p}")
        for p in range(2):
            if rnd == 0: a(f"v_pk_mul_f32 {v2(ACC+2*p)}, {v2(ACC+2*p)}, {v2(SG)} op_sel_hi:[1,0]")
            else: a(f"v_pk_add_f32 {v2(ACC+2*p)}, {v2(ACC+2*p)}, {v2(RD+2*p)}")
    for p in range(2): a(f"v_cvt_pk_bf16_f32 v{OR+p}, v{ACC+2*p}, v{ACC+2*p+1}")
    a(f"""s_mov_b32 exec_lo, 0x00ff00ff
    s_mov_b32 exec_hi, 0x00ff00ff
    buffer_store_dwordx2 {v2(OR)}, v{OA}, s[52:55], s51 offen {['', 'sc1', 'nt', 'sc0 sc1'][OPT['ost']]}""")

def clears(a):
    a(f"""v_mov_b32 v{JUNK+2}, -1
    v_lshlrev_b32 v{T1}, 2, v{LANE}
    s_lshl_b32 s23, s2, 6
    s_add_u32 s23, s23, {WS_KEYS}
    s_lshl_b32 s24, s2, 7
    s_add_u32 s24, s24, {WS_ACT}
    s_mov_b64 exec, 0xff
    buffer_store_dword v{T0}, v{T1}, s[12:15], s23 offen {SC}
    s_mov_b32 exec_lo, -1
    buffer_store_dword v{JUNK+2}, v{T1}, s[12:15], s24 offen {SC}
    s_mov_b32 exec_lo, 1
    s_lshl_b32 s23, s96, 11
    s_add_u32 s23, s23, {WS_ROW}
    buffer_load_dword v{JUNK}, v{VL}, s[52:55], s97 offen
    buffer_load_dword v{JUNK+1}, v{VL}, s[12:15], s23 offen
    s_mov_b64 exec, -1""")

def prefetch(a):
    a(f"""s_and_b32 s24, s2, 7
    s_lshr_b32 s25, s2, 3
    s_mul_i32 s26, s25, {14*3584}
    s_mov_b32 s18, {448*3584}
    s_cmp_eq_u32 s20, 3
    s_cbranch_scc1 Lpf_d
    v_lshrrev_b32 v{T0}, 2, v{LANE}
    v_mul_u32_u24 v{T0}, 3584, v{T0}
    v_and_b32 v{T1}, 3, v{LANE}
    v_lshl_add_u32 v{T0}, v{T1}, 7, v{T0}
    s_mul_i32 s24, s24, 448
    s_cmp_eq_u32 s20, 1
    s_cselect_b32 s16, s42, s44
    s_cselect_b32 s17, s43, s45
    s_branch Lpf_go
    Lpf_d:
    v_mul_u32_u24 v{T0}, 896, v{LANE}
    s_lshl_b32 s24, s24, 7
    s_mov_b32 s16, s46
    s_mov_b32 s17, s47
    Lpf_go:
    s_and_b32 s17, s17, 0xffff
    s_add_u32 s26, s26, s24
    s_mov_b32 exec_hi, 0x00ffffff
    buffer_load_dword v{JUNK}, v{T0}, s[16:19], s26 offen
    s_mov_b32 exec_hi, -1""")

def kernel(a):
    if OPT["stamps"]:
        for k in range(NST): a(f"s_mov_b32 s{64+2*k}, 0")
    stamp(a, 0)
    a(f"""s_cmp_ge_u32 s2, 256
    s_cbranch_scc1 Lexit
    s_load_dwordx2 s[4:5], s[0:1], 0
    s_load_dwordx2 s[6:7], s[0:1], 96
    s_load_dwordx8 s[40:47], s[0:1], 48
    s_load_dwordx2 s[48:49], s[0:1], 80
    v_lshrrev_b32 v{T0}, 6, v0
    v_and_b32 v{LANE}, 63, v0
    v_readfirstlane_b32 s20, v{T0}
    v_lshlrev_b32 v{VL}, 4, v{LANE}
    s_and_b32 s21, s2, 31
    s_lshr_b32 s22, s2, 5
    v_and_b32 v{N}, 15, v0
    v_bfe_u32 v{G}, v0, 4, 2
    s_mov_b32 s10, {XB}
    s_mov_b32 s11, 0x00020000
    s_and_b32 s3, s20, 3
    s_cmp_ge_u32 s20, 4
    s_cbranch_scc1 Lcompute
    v_cmp_lt_u32 vcc, 29, v{LANE}
    s_lshl_b32 s23, s20, 9
    s_add_u32 s23, s23, s21
    s_mul_i32 s23, s23, 896
    s_mul_i32 s24, s20, {16*PH}
    v_add_u32 v{T1}, {32*896 - 480}, v{VL}
    v_cndmask_b32 v{T1}, v{VL}, v{T1}, vcc
    s_mov_b32 exec_lo, 0xcfffffff
    s_mov_b32 exec_hi, 0x03ffffff
    s_waitcnt lgkmcnt(0)
    s_mov_b32 s8, s4
    s_and_b32 s9, s5, 0xffff""")
    for hf in range(2):
        for i in range(8):
            a(f"s_mov_b32 m0, s24")
            a(f"s_add_u32 s24, s24, {2*PH if i < 7 else LXH - 14*PH}")
            a(f"buffer_load_dwordx4 v{T1}, s[8:11], s23 offen lds")
            if i < 7: a(f"s_add_u32 s23, s23, {64*896}")
            else: a(f"s_sub_u32 s23, s23, {7*64*896 - 448}")
    a("s_mov_b64 exec, -1")
    b_loads(a)
    a("s_cmp_lg_u32 s20, 0\ns_cbranch_scc1 Lncl")
    clears(a)
    a("Lncl:\ns_barrier")
    pro(a)
    a(f"""s_cmp_lg_u32 s20, 0
    s_cbranch_scc1 Lw123
    s_waitcnt vmcnt(15)""")
    stamp(a, 1)
    a("s_barrier\ns_waitcnt vmcnt(7)")
    stamp(a, 2)
    a(f"""s_barrier
    s_waitcnt vmcnt(0)
    s_branch Lpro2l
    Lw123:
    s_waitcnt vmcnt(11)""")
    stamp(a, 1)
    a("s_barrier\ns_waitcnt vmcnt(3)")
    stamp(a, 2)
    a("s_barrier\ns_waitcnt vmcnt(0)")
    prefetch(a)
    a("Lpro2l:")
    stamp(a, 3)
    a("s_barrier\ns_branch Lpro2")
    a(f"""Lcompute:
    s_getpc_b64 s[30:31]
    Lpc:
    v_and_b32 v{T2}, 255, v0
    v_lshlrev_b32 v{JUNK}, 7, v{T2}
    v_mov_b32 v{JUNK+1}, s31
    v_add_co_u32 v{JUNK}, vcc, s30, v{JUNK}
    v_addc_co_u32 v{JUNK+1}, vcc, 0, v{JUNK+1}, vcc
    v_cmp_gt_u32 vcc, (Lexit-Lpc)/128+1, v{T2}
    s_and_saveexec_b64 s[30:31], vcc
    s_cbranch_execz Lnopf
    global_load_dword v{JUNK+2}, v[{JUNK}:{JUNK+1}], off
    Lnopf:
    s_mov_b64 exec, s[30:31]""")
    a_pre(a)
    a("s_mov_b32 s8, s4\ns_and_b32 s9, s5, 0xffff")
    b_loads(a)
    a("s_waitcnt lgkmcnt(0)")
    stamp(a, 1)
    a("s_barrier")
    stamp(a, 2)
    a_main(a)
    stamp(a, 4)
    pro(a)
    a("Lpro2:")
    pro2(a)
    a("s_barrier")
    stamp(a, 5)
    b_main(a)
    wd_dma(a)
    c_select(a)
    a("s_cmp_ge_u32 s2, 224\ns_cbranch_scc1 Lc2")
    c1(a)
    a("Lc2:\ns_and_b32 s50, s2, 7\ns_cmp_eq_u32 s50, 7\ns_cbranch_scc1 Lend")
    c2(a)
    a("Lend:")
    dump_stamps(a)
    a("Lexit:\ns_endpgm\nLfullsel:")
    select8(a, C_K, C_TMP, C_L, C_SW, C_SR)
    a("s_branch Lseldone")

NAME = "sequential_preLN__spectral_fnet__moe_arch_mod__prompt_kernel"
def build():
    a = Asm()
    kernel(a)
    body = a.finish()
    if OPT["align"]: body = align_pass(body)
    return gen.HDR + f"""; @launch grid=(256,1,1) block=(512,1,1) lds={LDS_TOTAL}
.amdgcn_target "amdgcn-amd-amdhsa--gfx950"
.text
.globl {NAME}
.p2align 8
.type {NAME},@function
{NAME}:
""" + body + f""".section .rodata,"a"
.p2align 6
.amdhsa_kernel {NAME}
  .amdhsa_next_free_vgpr {NVGPR}
  .amdhsa_next_free_sgpr 102
  .amdhsa_accum_offset {NVGPR}
  .amdhsa_group_segment_fixed_size 0
  .amdhsa_kernarg_size 104
  .amdhsa_user_sgpr_count 2
  .amdhsa_user_sgpr_kernarg_segment_ptr 1
  .amdhsa_system_sgpr_workgroup_id_x 1
.end_amdhsa_kernel
"""

if __name__ == "__main__":
    for x in list(sys.argv[1:]):
        if x.startswith("--"):
            k, _, v = x[2:].partition("=")
            assert k in OPT, k
            OPT[k] = int(v) if v else 1
            sys.argv.remove(x)
    open(sys.argv[1], "w").write(build())
```

```python
import sys
from asmlib import Asm, fl, align_pass
import gen
from gen import srd, v4, v2, rbf, sd_chain, reduce3, unpack8, lim_regs, select8, sigmoid_mul

WS_KEYS = 0x200000
WS_EPOCH = 0x208000
WS_ACT = 0x210000
WS_STAMP = 0x3c0000
WS_ROW = 0x400000
WS_SIZE = 0x800000
XB = 1835008
PH = 480; PX = 928; PF = 136; PY = 452
LXH = 64 * PH
LW = 2 * LXH; LCS = LW + 28 * 1024; LTAG = LCS + 256; LF = LCS + 272; LWT = LF + 64 * PF; LDS_TOTAL = LWT + 57344
LY = 0
LSEL = 16384; LSE2 = 16640; LKEY = 17152; LXS = 17408; LRED = 24832
SPIN = 4000000
SC = "sc1"
HASH = "0x9e3779b1"
OPT = dict(stamps=0, cyc=0, align=0, sl_u0=2, sl_k=16, sl_a=0, rowpf=2, barj=4, dbgto=0, ost=0, c2re=1, rot=1, pf=3, wdsplit=0, w64l=1, layout=1, e2a=1, prolate=1)
NST = 14

def stamp(a, k, early=False):
    if OPT["stamps"] == 4:
        if not early and k not in (0, 1, 2, NST - 1): return
    elif early: return
    if OPT["stamps"] == 2 and k not in (0, NST - 1): return
    if OPT["stamps"]: a(f"{'s_memtime' if OPT['cyc'] else 's_memrealtime'} s[{64+2*k}:{65+2*k}]")
def dump_stamps(a):
    if not OPT["stamps"]: return
    stamp(a, NST - 2)
    a("s_waitcnt vmcnt(0)")
    stamp(a, NST - 1)
    a("s_mov_b64 exec, 1\ns_waitcnt lgkmcnt(0)")
    a(f"s_lshl_b32 s60, s2, 3\ns_add_u32 s60, s60, s20\ns_lshl_b32 s60, s60, 6\ns_add_u32 s60, s60, {WS_STAMP}\nv_mov_b32 v1, 0")
    for k in range(NST):
        a(f"v_mov_b32 v2, s{64+2*k}\nbuffer_store_dword v2, v1, s[12:15], s60 offen offset:{4*k}")

_lbl = [0]
def timeout_note(a, ident):
    if not OPT["dbgto"]: return
    a(f"""s_lshl_b32 s100, s2, 8
    s_add_u32 s100, s100, s20
    s_add_u32 s100, s100, {ident << 24}
    v_mov_b32 v{JUNK+3}, s100
    s_mov_b32 s100, {0x3f0000 + 4*ident}
    s_mov_b64 exec, 1
    buffer_store_dword v{JUNK+3}, v{VL}, s[12:15], s100 offen
    v_mov_b32 v{JUNK+3}, s36
    buffer_store_dword v{JUNK+3}, v{VL}, s[12:15], s100 offen offset:64
    v_mov_b32 v{JUNK+3}, s98
    buffer_store_dword v{JUNK+3}, v{VL}, s[12:15], s100 offen offset:128
    v_mov_b32 v{JUNK+3}, s34
    buffer_store_dword v{JUNK+3}, v{VL}, s[12:15], s100 offen offset:192
    s_mov_b64 exec, -1""")
def poll(a, loads, check, pre=0):
    _lbl[0] += 1
    L = f"Lpoll{_lbl[0]}"
    if pre: a(f"s_sleep {pre}")
    a(f"s_mov_b32 s57, {SPIN}\n{L}:")
    loads()
    a("s_waitcnt vmcnt(0)")
    check()
    a(f"""s_cmp_eq_u64 vcc, 0
    s_cbranch_scc1 {L}d
    s_sub_u32 s57, s57, 1
    s_cbranch_scc0 {L}""")
    timeout_note(a, _lbl[0])
    a(f"{L}d:")

class LdsQ:
    def __init__(s, a): s.a = a; s.q = []
    def read(s, text, b, n=4):
        s.a(text); s.q.append(set(range(b, b + n)))
    def need(s, b, n=4):
        rs = set(range(b, b + n)); last = -1
        for i, d in enumerate(s.q):
            if d & rs: last = i
        if last >= 0:
            s.a(f"s_waitcnt lgkmcnt({len(s.q) - 1 - last})")
            s.q = s.q[last+1:]

LANE, N, G, T0, T1, T2, VL = 1, 2, 3, 4, 5, 6, 7
B_XR = 8; B_WR = 12; V_EP = 16; VFW = 17; VFR = 18; VXR = 19; VCS = 20; VUS = 21; ST = 22
WC = 28; WSN = 36; WNS = 44
AC1 = 52; AC2 = 68; GR = 84; XF = 88; WD = 116
JUNK = 228; NVGPR = 232
B_AF = 28; B_AD = 36; B_VY = 40; B_VU = 41; C_L = {1: 42, 2: 43, 4: 44}; C_SW = 45; C_SR = 46; C_KA = 47
C_FW = 48; C_FR = 49; C_FY = 50; C_PF = 51
B_R = 116; B_ACC = 52; B_XU = 68; B_WU = 76; B_S1, B_S2, B_S3 = 88, 90, 92; B_TH = 96; P_TH = 104; P_EPS = 112; P_BASE = 113
C_K = 148; C_TMP = 152; C_KEY = 156; C_X = 157; C_Y = 158; C_OUT = 160; C_LN = 164; C_IX = 224; C_STK = 159

def trig_block(a, n, k0, eps, base, th, want_sin):
    for i in range(n):
        k = k0 + i
        if k == 0: a(f"v_mov_b32 v{th+i}, v{base}")
        else: a(f"v_fmamk_f32 v{th+i}, v{eps}, {fl(float(k))}, v{base}")
    for i in range(n):
        if want_sin: a(f"v_sin_f32 v{th+n+i}, v{th+i}")
        a(f"v_cos_f32 v{th+i}, v{th+i}")

def w64(a, D):
    EPS, BASE, TH, S = ST + 4, ST + 5, XF, ST
    a(f"""v_lshrrev_b32 v{S}, 1, v{N}
    s_lshl_b32 s25, s3, 3
    v_add_u32 v{S}, s25, v{S}
    v_sub_u32 v{S+1}, 64, v{S}
    v_cmp_eq_u32 vcc, 0, v{S}
    v_and_b32 v{S+2}, 1, v{N}
    v_cndmask_b32 v{S+1}, v{S+1}, 32, vcc
    v_cmp_eq_u32 vcc, 0, v{S+2}
    v_lshlrev_b32 v{S+2}, 3, v{G}
    v_cndmask_b32 v{S+1}, v{S+1}, v{S}, vcc
    v_cvt_f32_u32 v{S+2}, v{S+2}
    v_cvt_f32_u32 v{S+1}, v{S+1}
    v_mul_f32 v{EPS}, {fl(1.0/64)}, v{S+1}
    v_mul_f32 v{BASE}, v{S+2}, v{EPS}""")
    for ks in range(2):
        for h in range(2):
            trig_block(a, 4, 32*ks + 4*h, EPS, BASE, TH, True)
            for i in range(2):
                a(f"v_cvt_pk_f16_f32 v{D+4*ks+2*h+i}, v{TH+2*i}, v{TH+2*i+1}")
                a(f"v_cvt_pk_f16_f32 v{D+8+4*ks+2*h+i}, v{TH+4+2*i}, v{TH+4+2*i+1}")

def a_pre(a):
    EPS, BASE, TH, ONE, TO, CS = ST + 4, ST + 5, XF, XF + 8, XF + 12, AC1
    a(f"""s_and_b32 s25, s3, 1
    s_lshl_b32 s25, s25, 4
    v_add_u32 v{T0}, s25, v{N}
    s_mul_i32 s26, s22, 28
    v_add_u32 v{T1}, s26, v{T0}
    v_cmp_ne_u32 vcc, 30, v{T0}
    s_lshr_b32 s25, s3, 1
    s_mul_i32 s25, s25, {fl(0.25)}
    v_cndmask_b32 v{T1}, 0, v{T1}, vcc
    v_cvt_f32_u32 v{T1}, v{T1}
    v_mul_f32 v{EPS}, {fl(1.0/448)}, v{T1}
    v_lshlrev_b32 v{T0}, 3, v{G}
    v_cvt_f32_u32 v{T2}, v{T0}
    v_fma_f32 v{BASE}, v{T2}, v{EPS}, s25
    s_mul_i32 s25, s3, {7*1024}
    s_add_u32 s25, s25, {LW}
    v_add_u32 v{T1}, s25, v{VL}""")
    for i in range(4): a(f"v_mov_b32 v{ONE+i}, 0x3f803f80")
    for j in range(7):
        trig_block(a, 8, 32*j, EPS, BASE, TH, False)
        o = TO + 4*(j & 1)
        for i in range(4): a(f"v_cvt_pk_bf16_f32 v{o+i}, v{TH+2*i}, v{TH+2*i+1}")
        a(f"ds_write_b128 v{T1}, {v4(o)} offset:{j*1024}")
        a(f"v_mfma_f32_16x16x32_bf16 {v4(CS)}, {v4(o)}, {v4(ONE)}, {'0' if j == 0 else v4(CS)}")
    a(f"""v_lshrrev_b32 v{ST}, 1, v{N}
    s_lshl_b32 s25, s3, 3
    v_add_u32 v{ST}, s25, v{ST}
    v_and_b32 v{ST+2}, 1, v{N}
    v_lshlrev_b32 v{VUS}, 16, v{ST}
    v_lshl_add_u32 v{VUS}, v{ST+2}, 6, v{VUS}
    v_lshl_add_u32 v{VUS}, v{G}, 4, v{VUS}
    s_lshl_b32 s25, s3, 6
    v_lshlrev_b32 v{T0}, 4, v{G}
    v_add_u32 v{VCS}, {LCS}, v{T0}
    v_add_u32 v{T1}, s25, v{VCS}
    v_add_f32 v{CS}, v{CS}, v{CS}
    v_mov_b32 v{CS+1}, 0
    v_add_f32 v{CS+2}, v{CS+2}, v{CS+2}
    v_mov_b32 v{CS+3}, 0
    ds_write_b128 v{T1}, {v4(CS)}""")
    if not OPT["w64l"]:
        w64(a, WC)
        for i in range(8): a(f"v_xor_b32 v{WNS+i}, 0x80008000, v{WSN+i}")
    stamp(a, 10, True)
    a(f"v_add_u32 v{T2}, {LW}, v{VL}")
    a(f"""s_lshl_b32 s25, s3, 4
    v_add_u32 v{ST}, s25, v{N}
    v_mul_u32_u24 v{VXR}, {PH}, v{ST}
    v_add_u32 v{VXR}, v{T0}, v{VXR}
    v_mul_u32_u24 v{VFW}, {PF}, v{ST}
    v_lshl_add_u32 v{VFW}, v{G}, 3, v{VFW}
    v_add_u32 v{VFW}, {LF}, v{VFW}
    v_lshrrev_b32 v{ST}, 2, v{N}
    v_lshl_add_u32 v{ST}, v{G}, 3, v{ST}
    v_mul_u32_u24 v{VFR}, {PF}, v{ST}
    v_and_b32 v{ST}, 3, v{N}
    v_lshl_add_u32 v{VFR}, v{ST}, 3, v{VFR}
    v_add_u32 v{VFR}, {LF}, v{VFR}
    s_lshl_b32 s23, s21, 11
    s_lshl_b32 s24, s22, 8
    s_add_u32 s23, s23, s24""")
    for r in range(4):
        a(f"s_mov_b32 s{30+2*r}, {hex(((1<<r)|(1<<(20+r))) & 0xffffffff)}")
        a(f"s_mov_b32 s{31+2*r}, {hex(((1<<(8+r))|(1<<(28+r))) & 0xffffffff)}")
    a("s_mov_b32 s24, 0\ns_mov_b32 s25, 0xffff0000")

def a_main(a):
    q = LdsQ(a)
    def rdx(j, hf): q.read(f"ds_read_b128 {v4(XF+4*j)}, v{VXR} offset:{64*j + hf*LXH}", XF+4*j)
    CS = WD
    def rdw(j):
        for T in range(4): q.read(f"ds_read_b128 {v4(WD+4*(7*T+j))}, v{T2} offset:{(7*T+j)*1024}", WD+4*(7*T+j))
    for j in range(3): rdx(j, 0); rdw(j)
    BJ = OPT["barj"]
    for hf in range(2):
        A = AC2 if hf else AC1
        for j in range(7):
            x = XF + 4*j
            q.need(x)
            a(f"v_mfma_f32_16x16x32_bf16 {v4(GR)}, {v4(x)}, {v4(x)}, {'0' if (j == 0 and hf == 0) else v4(GR)}")
            for T in range(4):
                q.need(WD+4*(7*T+j))
                a(f"v_mfma_f32_16x16x32_bf16 {v4(A+4*T)}, {v4(WD+4*(7*T+j))}, {v4(x)}, {'0' if j == 0 else v4(A+4*T)}")
            if hf == 0:
                if j + 3 < 7: rdx(j + 3, 0); rdw(j + 3)
                if j == BJ:
                    stamp(a, 11)
                    a("s_barrier")
                    for k in range(BJ + 1): rdx(k, 1)
                elif j > BJ: rdx(j, 1)
            elif j == 4:
                for T in range(4): q.read(f"ds_read_b128 {v4(CS+4*T)}, v{VCS} offset:{64*T}", CS+4*T)
    stamp(a, 3)
    Q, S, M, RS = ST, ST+1, ST+2, ST+4
    a(f"v_mov_b32 v{Q}, 0\nv_mov_b32 v{V_EP}, {LTAG}")
    for r in range(4): a(f"v_cndmask_b32 v{Q}, v{Q}, v{GR+r}, s[{30+2*r}:{31+2*r}]")
    for T in (1, 0, 2, 3):
        for p in range(2):
            a(f"v_pk_add_f32 {v2(AC1+4*T+2*p)}, {v2(AC1+4*T+2*p)}, {v2(AC2+4*T+2*p)} neg_hi:[0,1]")
        if T == 1:
            a(f"v_cndmask_b32 v{S}, 0, v{AC1+4+2}, s[24:25]")
        if T == 0:
            a(f"v_permlane32_swap_b32 v{Q}, v{S}\nv_add_f32 v{Q}, v{Q}, v{S}\nv_mov_b32 v{S}, v{Q}")
        if T == 2:
            a(f"v_permlane16_swap_b32 v{Q}, v{S}\nv_add_f32 v{Q}, v{Q}, v{S}\nv_mov_b32 v{S}, v{Q}")
    a(f"""v_permlane32_swap_b32 v{Q}, v{S}
    v_mul_f32 v{M}, {fl(-1.0/448)}, v{S}
    v_mul_f32 v{Q}, {fl(1.0/448)}, v{Q}
    v_fma_f32 v{Q}, -v{M}, v{M}, v{Q}
    v_max_f32 v{Q}, 0, v{Q}""")
    q.need(CS, 16)
    mc = [f"v_pk_fma_f32 {v2(AC1+4*T+2*p)}, {v2(CS+4*T+2*p)}, {v2(M)}, {v2(AC1+4*T+2*p)} op_sel_hi:[1,0,1]" for T in range(4) for p in range(2)]
    chain = [f"v_cvt_pk_bf16_f32 v{RS}, v{Q}, v{Q}", f"v_and_b32 v{RS}, 0xffff0000, v{RS}", f"v_add_f32 v{RS}, {fl(1e-5)}, v{RS}",
             f"v_cvt_pk_bf16_f32 v{RS}, v{RS}, v{RS}", f"v_and_b32 v{RS}, 0xffff0000, v{RS}", f"v_sqrt_f32 v{RS}, v{RS}",
             f"v_cvt_pk_bf16_f32 v{RS}, v{RS}, v{RS}", f"v_and_b32 v{RS}, 0xffff0000, v{RS}", f"v_rcp_f32 v{RS}, v{RS}"]
    for i in range(9):
        a(chain[i])
        if i < 8: a(mc[i])
    for T in range(4):
        for p in range(2):
            x = AC1 + 4*T + 2*p
            a(f"v_pk_mul_f32 {v2(x)}, {v2(x)}, {v2(RS)} op_sel_hi:[1,0]")
        for p in range(2):
            x = AC1 + 4*T + 2*p
            a(f"v_cvt_pk_f16_f32 v{AC2+2*T+p}, v{x}, v{x+1}")
        a(f"ds_write_b64 v{VFW}, {v2(AC2+2*T)} offset:{32*T}")
    if OPT["w64l"]: a(f"s_lshl_b32 s26, s3, 12\ns_add_u32 s26, s26, {LWT}\nv_add_u32 v{T1}, s26, v{VL}")
    a(f"s_waitcnt lgkmcnt(0)\ns_barrier\nds_read_b32 v{V_EP}, v{V_EP}")
    if OPT["w64l"]:
        for i in (0, 2, 4, 1, 3, 5): a(f"ds_read_b128 {v4(WC+4*i)}, v{T1} offset:{(i % 4 if i < 4 else i - 2 + 2) * 0 + i * 0 + [0, 1024, 2048, 3072, 16384, 17408][i]}")
    FA = WD + 16
    fa = lambda T, ks: FA + (2*T + ks) * 4
    q = LdsQ(a)
    for T in range(2):
        for ks in range(2):
            for TT in (T, T + 2):
                for h in range(2):
                    q.read(f"ds_read_b64_tr_b16 {v2(fa(TT, ks)+2*h)}, v{VFR} offset:{(32*ks+4*h)*PF+32*TT}", fa(TT, ks)+2*h, 2)
    UR = AC1; UI = AC1 + 8; o = XF
    tagcalc = [f"v_add_u32 v{M}, 1, v{V_EP}", f"s_mov_b32 s98, {HASH}", f"v_mul_lo_u32 v{M}, v{M}, s98"]
    for T in range(2):
        for ks in range(2):
            fr = v4(fa(T, ks)); fi = v4(fa(T + 2, ks))
            q.need(fa(T, ks))
            a(f"v_mfma_f32_16x16x32_f16 {v4(UR+4*T)}, {fr}, {v4(WC+4*ks)}, {'0' if ks == 0 else v4(UR+4*T)}")
            a(f"v_mfma_f32_16x16x32_f16 {v4(UI+4*T)}, {fr}, {v4(WNS+4*ks)}, {'0' if ks == 0 else v4(UI+4*T)}")
            q.need(fa(T + 2, ks))
            a(f"v_mfma_f32_16x16x32_f16 {v4(UR+4*T)}, {fi}, {v4(WSN+4*ks)}, {v4(UR+4*T)}")
            a(f"v_mfma_f32_16x16x32_f16 {v4(UI+4*T)}, {fi}, {v4(WC+4*ks)}, {v4(UI+4*T)}")
            if T == 0 and ks == 0:
                for t in tagcalc: a(t)
    for r in range(4): a(f"v_cvt_pk_f16_f32 v{o+r}, v{UR+r}, v{UI+r}")
    a(f"buffer_store_dwordx4 {v4(o)}, v{VUS}, s[12:15], s23 offen {SC}")
    a(f"v_add3_u32 v{Q}, v{o}, v{o+1}, v{o+2}")
    for r in range(4): a(f"v_cvt_pk_f16_f32 v{o+4+r}, v{UR+4+r}, v{UI+4+r}")
    a(f"""v_cndmask_b32 v{o+7}, v{o+7}, 0, s[24:25]
    v_add3_u32 v{Q}, v{Q}, v{o+3}, v{o+4}
    v_add3_u32 v{S}, v{o+5}, v{o+6}, v{o+7}
    v_add_u32 v{Q}, v{Q}, v{S}
    v_mov_b32 v{S}, v{Q}
    v_permlane32_swap_b32 v{Q}, v{S}
    v_add_u32 v{Q}, v{Q}, v{S}
    v_mov_b32 v{S}, v{Q}
    v_permlane16_swap_b32 v{Q}, v{S}
    v_sub_u32 v{Q}, v{M}, v{Q}
    v_sub_u32 v{Q}, v{Q}, v{S}
    v_cndmask_b32 v{o+7}, v{o+7}, v{Q}, s[24:25]
    buffer_store_dwordx4 {v4(o+4)}, v{VUS}, s[12:15], s23 offen offset:128 {SC}""")

def b_ids(a):
    a(f"""s_and_b32 s92, s2, 7
    s_lshr_b32 s93, s2, 6
    s_lshl_b32 s93, s93, 3
    s_or_b32 s92, s92, s93
    s_bfe_u32 s93, s2, 0x10003
    s_bfe_u32 s96, s2, 0x20004
    s_sub_u32 s95, 64, s92
    s_cmp_eq_u32 s92, 0
    s_cselect_b32 s95, 32, s95
    s_cselect_b32 s94, 0, 1
    s_xor_b32 s94, s94, s93
    s_cmp_eq_u32 s93, 0
    s_cselect_b32 s95, s92, s95
    s_lshl_b32 s96, s96, 9
    s_add_u32 s95, s95, s96
    s_lshl_b32 s96, s20, 6
    s_add_u32 s96, s96, s95
    s_mul_i32 s97, s96, 896""")

def b_setup(a):
    srd(a, 12, 6, WS_SIZE)
    srd(a, 52, 48, XB)
    srd(a, 16, 40, 896)
    b_ids(a)

def b_loads(a):
    a(f"""s_mov_b32 s26, {WS_EPOCH}
    v_mov_b32 v{T0}, 0
    buffer_load_dword v{V_EP}, v{T0}, s[12:15], s26 offen {SC}
    buffer_load_dwordx4 {v4(B_WR)}, v{VL}, s[16:19], 0 offen
    buffer_load_dwordx4 {v4(B_XR)}, v{VL}, s[8:11], s97 offen""")

def pro(a):
    EPS, BASE, TH, AF, AD = P_EPS, P_BASE, P_TH, B_AF, B_AD
    a(f"""s_lshl_b32 s28, s92, 16
    s_lshl_b32 s29, s20, 8
    s_add_u32 s28, s28, s29
    s_add_u32 s29, s28, 4096
    s_add_u32 s30, s28, 32768
    s_add_u32 s31, s28, 36864
    v_lshlrev_b32 v{B_VU}, 13, v{G}
    v_lshl_add_u32 v{B_VU}, v{N}, 4, v{B_VU}
    v_and_b32 v{T0}, 7, v{N}
    v_lshlrev_b32 v{T0}, 6, v{T0}
    v_add_u32 v{T0}, s95, v{T0}
    v_cvt_f32_u32 v{T0}, v{T0}
    v_cmp_gt_u32 vcc, 8, v{N}
    v_mul_f32 v{EPS}, {fl(1.0/2048)}, v{T0}
    v_lshlrev_b32 v{T1}, 2, v{G}
    v_cndmask_b32 v{EPS}, -v{EPS}, v{EPS}, vcc
    v_cvt_f32_u32 v{T1}, v{T1}
    v_mul_f32 v{BASE}, v{T1}, v{EPS}""")
    for ks in range(2):
        trig_block(a, 4, 16*ks, EPS, BASE, TH, True)
        for i in range(4):
            a(f"v_cvt_pk_f16_f32 v{AF+4*ks+i}, v{TH+i}, v{TH+4+i}")
    a(f"""v_lshrrev_b32 v{T0}, 3, v{N}
    v_and_b32 v{T1}, 3, v{N}
    v_lshlrev_b32 v{T1}, 2, v{T1}
    v_lshl_add_u32 v{T0}, v{T0}, 4, v{T1}
    s_mul_i32 s32, s20, 28
    v_add_u32 v{T1}, s32, v{T0}
    v_sub_u32 v{T2}, 448, v{T1}
    v_cmp_gt_u32 s[34:35], 2, v{G}
    v_mov_b32 v{TH}, s93
    v_mov_b32 v{TH+1}, s94
    v_cndmask_b32 v{T2}, v{T2}, v{T1}, s[34:35]
    v_cndmask_b32 v{TH}, v{TH+1}, v{TH}, s[34:35]
    v_bfe_u32 v{TH+1}, v{N}, 2, 1
    v_cmp_eq_u32 s[36:37], v{TH}, v{TH+1}
    v_and_b32 v{TH+2}, 1, v{G}
    v_mul_u32_u24 v{TH+2}, {4*PY}, v{TH+2}
    v_add_lshl_u32 v{AD}, v{TH+2}, v{T2}, 2
    v_mov_b32 v{TH+3}, -4
    v_cndmask_b32 v{TH+3}, v{TH+3}, 4, s[34:35]
    v_add_u32 v{AD+1}, v{AD}, v{TH+3}
    v_add_u32 v{AD+2}, v{AD+1}, v{TH+3}
    v_add_u32 v{AD+3}, v{AD+2}, v{TH+3}
    v_cmp_gt_u32 s[62:63], 28, v{T0}
    s_and_b64 s[62:63], s[62:63], s[36:37]
    v_cmp_eq_u32 s[60:61], 0, v{T1}
    s_andn2_b64 s[60:61], s[60:61], s[34:35]
    s_andn2_b64 s[60:61], s[62:63], s[60:61]
    v_mov_b32 v{TH}, 224
    v_cmp_eq_u32 s[38:39], v{TH}, v{T1}
    s_and_b64 s[38:39], s[38:39], s[34:35]
    s_and_b64 s[38:39], s[38:39], s[36:37]
    s_or_b64 s[60:61], s[60:61], s[38:39]
    s_mul_i32 s33, s20, {PY*4}
    v_lshlrev_b32 v{B_VY}, 5, v{LANE}
    v_add_u32 v{B_VY}, s33, v{B_VY}""")
    lim_regs(a, C_L, LANE, T0)
    a(f"""s_lshl_b32 s34, s20, 5
    s_add_u32 s34, s34, {LSEL}
    v_lshlrev_b32 v{T1}, 2, v{LANE}
    v_add_u32 v{C_SW}, s34, v{T1}
    v_add_u32 v{C_SR}, {LSEL}, v{T1}
    v_lshrrev_b32 v{C_KA}, 1, v0
    v_lshlrev_b32 v{C_KA}, 6, v{C_KA}
    v_and_b32 v{T0}, 1, v0
    v_lshl_add_u32 v{C_KA}, v{T0}, 4, v{C_KA}
    s_lshl_b32 s34, s20, 6
    s_add_u32 s34, s34, {LSE2}
    v_add_u32 v{C_FW}, s34, v{T1}
    v_lshrrev_b32 v{C_PF}, 3, v{LANE}
    v_and_b32 v{C_FY}, 7, v{LANE}
    v_lshlrev_b32 v{C_FR}, 6, v{C_PF}
    v_lshl_add_u32 v{C_FR}, v{C_FY}, 2, v{C_FR}
    v_add_u32 v{C_FR}, {LSE2}, v{C_FR}
    v_lshlrev_b32 v{C_FY}, 6, v{C_FY}
    v_add_u32 v{C_FY}, {LSE2 + 32}, v{C_FY}
    v_lshlrev_b32 v{C_PF}, 7, v{C_PF}
    s_cmp_ge_u32 s2, 224
    s_cselect_b32 s33, 1024, 0
    s_add_u32 s33, s33, {WS_ROW}
    s_lshl_b32 s27, s2, 6
    s_add_u32 s27, s27, {WS_KEYS}
    s_sub_u32 s32, 2047, s96
    v_lshrrev_b32 v{T0}, 1, v0
    v_and_b32 v{T1}, 7, v{T0}
    v_lshrrev_b32 v{T2}, 6, v{T0}
    v_lshl_or_b32 v{T1}, v{T2}, 3, v{T1}
    v_sub_u32 v{T2}, 64, v{T1}
    v_cmp_eq_u32 vcc, 0, v{T1}
    v_bfe_u32 v{TH}, v{T0}, 3, 1
    v_cndmask_b32 v{T2}, v{T2}, 32, vcc
    v_cmp_eq_u32 vcc, 0, v{TH}
    v_bfe_u32 v{TH}, v{T0}, 4, 2
    v_cndmask_b32 v{T1}, v{T2}, v{T1}, vcc
    v_lshl_add_u32 v{T1}, v{TH}, 9, v{T1}
    v_and_b32 v{T0}, 1, v0
    v_lshl_add_u32 v{T1}, v{T0}, 8, v{T1}
    v_sub_u32 v{C_IX}, 2047, v{T1}
    v_subrev_u32 v{C_IX+1}, 64, v{C_IX}
    v_subrev_u32 v{C_IX+2}, 128, v{C_IX}
    v_subrev_u32 v{C_IX+3}, 192, v{C_IX}""")

def pro2(a):
    XU, WU, S1, S2, S3 = B_XU, B_WU, P_TH, P_TH + 2, P_TH + 4
    unpack8(a, WU, B_WR)
    a(f"""v_pk_add_f32 {v2(S1)}, {v2(WU)}, {v2(WU+2)}
    v_pk_add_f32 {v2(S2)}, {v2(WU+4)}, {v2(WU+6)}
    v_pk_add_f32 {v2(S1)}, {v2(S1)}, {v2(S2)}
    v_add_f32 v{S1}, v{S1}, v{S1+1}
    v_mov_b32 v{S2}, 0
    v_mov_b32 v{S3}, 0""")
    reduce3(a, S1, S2, S3, T0, 58, 39, 39)
    unpack8(a, XU, B_XR)
    for k in (B_S1, B_S1+1, B_S2, B_S2+1, B_S3, B_S3+1): a(f"v_mov_b32 v{k}, 0")

def anyones(a, regs_, t):
    regs_ = list(regs_)
    a(f"v_max_u32 v{t}, v{regs_[0]}, v{regs_[1]}")
    rest = regs_[2:]
    while len(rest) >= 2:
        a(f"v_max3_u32 v{t}, v{t}, v{rest[0]}, v{rest[1]}"); rest = rest[2:]
    if rest: a(f"v_max_u32 v{t}, v{t}, v{rest[0]}")
    a(f"v_cmp_eq_u32 vcc, -1, v{t}")

def wave_sum(a, v, sd):
    for k in (8, 4, 2, 1):
        a(f"v_add_u32_dpp v{v}, v{v}, v{v} row_ror:{k} row_mask:0xf bank_mask:0xf")
    for i in range(4): a(f"v_readlane_b32 s{sd+i}, v{v}, {16*i}")
    a(f"s_add_u32 s{sd}, s{sd}, s{sd+1}\ns_add_u32 s{sd+2}, s{sd+2}, s{sd+3}\ns_add_u32 s{sd}, s{sd}, s{sd+2}")

def publish_row(a):
    a(f"""s_lshl_b32 s34, s96, 11
    s_add_u32 s34, s34, {WS_ROW}
    v_mov_b32 v{T0}, 0
    v_mov_b32 v{T1}, 0
    v_writelane_b32 v{C_LN}, 0, 56
    v_writelane_b32 v{C_OUT}, 0, 56
    s_mov_b32 exec_hi, 0x01ffffff
    v_add3_u32 v{T0}, v{C_LN}, v{C_LN+1}, v{C_LN+2}
    v_add3_u32 v{T1}, v{C_OUT}, v{C_OUT+1}, v{C_OUT+2}
    v_add_u32 v{T0}, v{T0}, v{C_LN+3}
    v_add_u32 v{T1}, v{T1}, v{C_OUT+3}
    s_mov_b32 exec_hi, -1""")
    wave_sum(a, T0, 36)
    a(f"s_sub_u32 s35, s98, s36\nv_writelane_b32 v{C_LN}, s35, 56")
    wave_sum(a, T1, 36)
    a(f"""s_sub_u32 s35, s98, s36
    v_writelane_b32 v{C_OUT}, s35, 56
    s_mov_b32 exec_hi, 0x01ffffff
    buffer_store_dwordx4 {v4(C_LN)}, v{VL}, s[12:15], s34 offen {SC}
    buffer_store_dwordx4 {v4(C_OUT)}, v{VL}, s[12:15], s34 offen offset:1024 {SC}
    s_mov_b32 exec_hi, -1""")

def fetch_row_issue(a, dst):
    a(f"""v_readlane_b32 s34, v{C_K}, s20
    s_andn2_b32 s34, 0x7ff, s34
    s_lshl_b32 s34, s34, 11
    s_add_u32 s34, s34, s33
    s_mov_b32 exec_hi, 0x01ffffff
    buffer_load_dwordx4 {v4(dst)}, v{VL}, s[12:15], s34 offen {SC}
    s_mov_b32 exec_hi, -1""")

def fetch_row_finish(a, dst, ldsaddr):
    _lbl[0] += 1
    L = f"Lrow{_lbl[0]}"
    a(f"""s_mul_i32 s29, s20, {PX}
    s_add_u32 s29, s29, {LXS}
    v_add_u32 v{ldsaddr}, s29, v{VL}
    s_mov_b32 s57, {SPIN}
    {L}:
    v_mov_b32 v{T0}, 0
    s_mov_b32 exec_hi, 0x01ffffff
    s_waitcnt vmcnt(0)
    ds_write_b128 v{ldsaddr}, {v4(dst)}
    v_add3_u32 v{T0}, v{dst}, v{dst+1}, v{dst+2}
    v_add_u32 v{T0}, v{T0}, v{dst+3}
    s_mov_b32 exec_hi, -1""")
    wave_sum(a, T0, 36)
    a(f"""s_cmp_eq_u32 s36, s98
    s_cbranch_scc1 {L}d
    s_mov_b32 exec_hi, 0x01ffffff
    s_waitcnt lgkmcnt(0)
    buffer_load_dwordx4 {v4(dst)}, v{VL}, s[12:15], s34 offen {SC}
    s_mov_b32 exec_hi, -1
    s_sub_u32 s57, s57, 1
    s_cbranch_scc0 {L}""")
    timeout_note(a, _lbl[0])
    a(f"{L}d:")

def gu_dma(a):
    a(f"""s_cmp_ge_u32 s2, 224
    s_cbranch_scc1 Lngu
    s_cmp_eq_u32 s20, 7
    s_cbranch_scc1 Lngu""")
    srd(a, 16, 42, 448*3584)
    a(f"""v_mul_u32_u24 v{T1}, 3584, v0
    s_and_b32 s50, s2, 7
    s_mul_i32 s50, s50, 28
    s_lshr_b32 s51, s2, 3
    s_add_u32 s50, s50, s51
    s_lshl_b32 s26, s50, 4
    s_lshl_b32 s24, s20, 10
    s_add_u32 s24, s24, {LWT}
    s_mov_b32 m0, s24
    s_add_u32 s24, s24, 8192
    buffer_load_dwordx4 v{T1}, s[16:19], s26 offen lds
    s_mov_b32 s16, s44
    s_and_b32 s17, s45, 0xffff
    s_mov_b32 m0, s24
    s_nop 0
    buffer_load_dwordx4 v{T1}, s[16:19], s26 offen lds
    Lngu:""")

def wd_dma(a, j0, j1, L):
    if j0 == j1: return
    a(f"""s_cmp_lt_u32 s2, 224
    s_cbranch_scc1 {L}
    s_and_b32 s50, s2, 7
    s_cmp_eq_u32 s50, 7
    s_cbranch_scc1 {L}
    s_lshl_b32 s50, s50, 7
    s_bfe_u32 s51, s2, 0x20003
    s_lshl_b32 s51, s51, 5
    s_add_u32 s51, s51, s50""")
    srd(a, 16, 46, 1792*896)
    a(f"""v_lshrrev_b32 v{T1}, 1, v{LANE}
    v_mul_u32_u24 v{T1}, 896, v{T1}
    v_and_b32 v{T2}, 1, v{LANE}
    v_lshl_add_u32 v{T1}, v{T2}, 4, v{T1}
    s_mul_i32 s23, s20, {224*896}
    s_add_u32 s23, s23, s51
    s_add_u32 s23, s23, {j0*32*896}
    s_mul_i32 s25, s20, 7168
    s_add_u32 s25, s25, {LWT + j0*1024}""")
    for j in range(j0, j1):
        a(f"s_mov_b32 m0, s25")
        a(f"s_add_u32 s25, s25, 1024")
        a(f"buffer_load_dwordx4 v{T1}, s[16:19], s23 offen lds")
        a(f"s_add_u32 s23, s23, {32*896}")
    a(f"{L}:")

def b_main(a):
    R, AF, ACC, XU, WU, AD, TH = B_R, B_AF, B_ACC, B_XU, B_WU, B_AD, B_TH
    S1, S2, S3 = B_S1, B_S2, B_S3
    if OPT["sl_u0"]: a(f"s_sleep {OPT['sl_u0']}")
    def uld():
        for ks in range(2):
            for i in range(4):
                a(f"buffer_load_dwordx4 {v4(R+16*ks+4*i)}, v{B_VU}, s[12:15], s{28+2*ks+(i>>1)} offen offset:{2048*(i&1)} {SC}")
    a(f"s_mov_b32 s57, {SPIN}")
    uld()
    a("s_waitcnt vmcnt(8)")
    pro2(a)
    a("s_branch Lupw\nLupoll:")
    uld()
    a("Lupw:")
    for ks in range(2):
        a(f"s_waitcnt vmcnt({4-4*ks})")
        b = R + 16*ks
        for i in range(8):
            if ks == 0 and i == 0: a(f"v_add_u32 v{T0}, v{b}, v{b+1}")
            else: a(f"v_add3_u32 v{T0}, v{T0}, v{b+2*i}, v{b+2*i+1}")
        for i in range(4):
            for j in range(i+1, 4):
                a(f"v_swap_b32 v{b+4*i+j}, v{b+4*j+i}")
        for j in range(4):
            c = "0" if ks == 0 else v4(ACC+4*j)
            a(f"v_mfma_f32_16x16x32_f16 {v4(ACC+4*j)}, {v4(AF+4*ks)}, {v4(b+4*j)}, {c}")
            if ks == 1: a(f"v_add_u32_dpp v{T0}, v{T0}, v{T0} row_ror:{8 >> j} row_mask:0xf bank_mask:0xf")
    a(f"""v_cmp_ne_u32 vcc, s99, v{T0}
    s_cmp_eq_u64 vcc, 0
    s_cbranch_scc1 Lupolld
    s_sub_u32 s57, s57, 1
    s_cbranch_scc0 Lupoll""")
    timeout_note(a, 9)
    a("Lupolld:")
    stamp(a, 6)
    if OPT["stamps"] == 3: a(f"s_sub_u32 s{64+2*11}, {SPIN+1}, s57")
    for j in range(4):
        if j < 2: a(f"s_mov_b64 exec, s[{60+2*j}:{61+2*j}]")
        for r in range(4):
            a(f"ds_write_b32 v{AD+j}, v{ACC+4*j+r} offset:{LY + r*PY*4}")
    a("s_mov_b64 exec, -1")
    gu_dma(a)
    wd_dma(a, 0, OPT['wdsplit'], 'Lnwd0')
    a("""s_mov_b32 exec_hi, 0x00ffffff
    s_waitcnt lgkmcnt(0)
    s_barrier""")
    H = R
    a(f"ds_read_b128 {v4(H)}, v{B_VY} offset:{LY}\nds_read_b128 {v4(H+4)}, v{B_VY} offset:{LY+16}")
    for hf in range(2):
        a(f"s_waitcnt lgkmcnt({1-hf})")
        for p in range(2):
            x = 4*hf + 2*p
            a(f"v_pk_add_f32 {v2(H+x)}, {v2(H+x)}, {v2(XU+x)}")
        for p in range(2):
            x = 4*hf + 2*p
            a(f"v_pk_add_f32 {v2(S1)}, {v2(S1)}, {v2(H+x)}")
            a(f"v_pk_fma_f32 {v2(S2)}, {v2(H+x)}, {v2(H+x)}, {v2(S2)}")
            a(f"v_pk_fma_f32 {v2(S3)}, {v2(H+x)}, {v2(WU+x)}, {v2(S3)}")
    a(f"""s_mov_b32 exec_hi, -1
    v_add_f32 v{S1}, v{S1}, v{S1+1}
    v_add_f32 v{S2}, v{S2}, v{S2+1}
    v_add_f32 v{S3}, v{S3}, v{S3+1}""")
    reduce3(a, S1, S2, S3, T0, 37, 38, 39)
    M, V, SD, RS, C0, KEY = TH, TH+1, TH+2, TH+4, TH+6, C_KEY
    a(f"""v_mov_b32 v{V}, {fl(1.0/448)}
    v_mul_f32 v{M}, s37, v{V}
    v_mul_f32 v{V}, s38, v{V}
    v_mov_b32 v{KEY}, s39
    v_fma_f32 v{V}, -v{M}, v{M}, v{V}
    v_fma_f32 v{KEY}, -v{M}, s58, v{KEY}
    v_max_f32 v{V}, 0, v{V}""")
    sd_chain(a, V, SD)
    a(f"""v_rcp_f32 v{RS}, v{SD}
    s_lshl_b32 s34, s20, 2
    v_mov_b32 v{T2}, s34
    v_mul_f32 v{KEY}, v{KEY}, v{RS}
    v_cvt_pk_bf16_f32 v{KEY}, v{KEY}, v{KEY}
    v_mul_f32 v{C0}, -v{M}, v{RS}
    v_ashrrev_i32 v{T0}, 31, v{KEY}
    v_or_b32 v{T0}, 0x80000000, v{T0}
    v_xor_b32 v{KEY}, v{KEY}, v{T0}
    v_and_b32 v{KEY}, 0xffff0000, v{KEY}
    v_or_b32 v{KEY}, s32, v{KEY}
    ds_write_b32 v{T2}, v{KEY} offset:{LKEY}
    v_mov_b32 v{C_STK}, 0xffff
    v_lshlrev_b32 v{T1}, 2, v{LANE}
    v_mov_b32 v{T2}, {LKEY}
    s_waitcnt lgkmcnt(0)
    s_barrier
    s_cmp_lg_u32 s20, 0
    s_cbranch_scc1 Lnokey
    s_mov_b64 exec, 0xff
    ds_read_b32 v{T0}, v{T1} offset:{LKEY}
    s_waitcnt lgkmcnt(0)
    v_bfi_b32 v{T0}, v{C_STK}, s59, v{T0}
    buffer_store_dword v{T0}, v{T1}, s[12:15], s27 offen {SC}
    s_mov_b64 exec, -1
    Lnokey:
    ds_read_b128 {v4(ACC)}, v{T2}
    ds_read_b128 {v4(ACC+4)}, v{T2} offset:16""")
    stamp(a, 7)
    for p in range(4):
        a(f"v_pk_fma_f32 {v2(XU+2*p)}, {v2(H+2*p)}, {v2(RS)}, {v2(C0)} op_sel_hi:[1,0,0]")
    for p in range(4):
        a(f"v_pk_add_f32 {v2(H+2*p)}, {v2(H+2*p)}, {v2(XU+2*p)}")
    for p in range(4):
        a(f"v_cvt_pk_bf16_f32 v{C_LN+p}, v{XU+2*p}, v{XU+2*p+1}")
        a(f"v_cvt_pk_bf16_f32 v{C_OUT+p}, v{H+2*p}, v{H+2*p+1}")
    a(f"""s_waitcnt lgkmcnt(0)
    v_max3_u32 v{T0}, v{ACC}, v{ACC+1}, v{ACC+2}
    v_max3_u32 v{T1}, v{ACC+3}, v{ACC+4}, v{ACC+5}
    v_max3_u32 v{T0}, v{T0}, v{ACC+6}, v{ACC+7}
    v_max_u32 v{T0}, v{T0}, v{T1}
    v_cmp_eq_u32 s[60:61], v{T0}, v{KEY}
    s_cmp_eq_u64 s[60:61], 0
    s_cbranch_scc1 Lnoeager""")
    publish_row(a)
    a("Lnoeager:")

QP = {1: "quad_perm:[1,0,3,2]", 2: "quad_perm:[2,3,0,1]", 3: "quad_perm:[3,2,1,0]", 7: "row_half_mirror"}
class Net:
    def __init__(s, a, x, t, fill): s.a = a; s.x = x; s.t = t; s.fill = list(fill)
    def f(s, n=1):
        for _ in range(n):
            if s.fill: s.a(s.fill.pop(0))
    def ce(s, m):
        a, x, t = s.a, s.x, s.t
        s.f()
        if m == 4:
            a(f"v_max_u32_dpp v{t}, v{x}, v{x} row_shl:4 row_mask:0xf bank_mask:0x5")
            a(f"v_min_u32_dpp v{t}, v{x}, v{x} row_shr:4 row_mask:0xf bank_mask:0xa")
            s.x, s.t = t, x
        else:
            a(f"v_mov_b32_dpp v{t}, v{x} {QP[m]} row_mask:0xf bank_mask:0xf")
            a(f"v_med3_u32 v{x}, v{x}, v{t}, v{C_L[1 << (m.bit_length()-1)]}")
    def merge(s, last_clean=True):
        a = s.a
        s.f()
        a(f"v_max_u32_dpp v{s.x}, v{s.x}, v{s.x} row_mirror row_mask:0xf bank_mask:0xf")
        for m in (4, 2, 1): s.ce(m)
        for sw in ("v_permlane16_swap_b32", "v_permlane32_swap_b32"):
            a(f"v_mov_b32 v{s.t}, v{s.x}")
            s.f()
            a(f"{sw} v{s.x}, v{s.t}")
            s.f()
            a(f"v_max_u32_dpp v{s.x}, v{s.t}, v{s.x} row_half_mirror row_mask:0xf bank_mask:0xf")
            if last_clean or "16" in sw:
                for m in (4, 2, 1): s.ce(m)
        s.f(99)

def fast_select(a):
    K, X, Y, P, Q = C_K, C_X, C_Y, C_TMP, C_TMP + 1
    a(f"""v_max_u32 v{P}, v{K}, v{K+1}
    v_max_u32 v{Q}, v{K+2}, v{K+3}
    v_max_u32 v{X}, v{P}, v{Q}""")
    fill = [f"v_min_u32 v{Y}, v{P}, v{Q}", f"v_min_u32 v{P}, v{K}, v{K+1}", f"v_min_u32 v{Q}, v{K+2}, v{K+3}",
            f"v_max3_u32 v{Y}, v{Y}, v{P}, v{Q}"]
    fill += [f"v_max_u32_dpp v{Y}, v{Y}, v{Y} row_ror:{k} row_mask:0xf bank_mask:0xf" for k in (8, 4, 2, 1)]
    fill += [f"v_mov_b32 v{P}, v{Y}", f"v_permlane16_swap_b32 v{Y}, v{P}", f"v_max_u32 v{Y}, v{Y}, v{P}",
             f"v_mov_b32 v{P}, v{Y}", f"v_permlane32_swap_b32 v{Y}, v{P}", f"v_max_u32 v{Y}, v{Y}, v{P}",
             "s_mov_b64 vcc, 0x100"]
    n = Net(a, X, C_TMP + 2, fill)
    for m in (1, 3, 1, 7, 2, 1): n.ce(m)
    n.merge()
    a(f"""s_mov_b64 exec, 0x1ff
    v_cndmask_b32 v{P}, v{n.x}, v{Y}, vcc
    ds_write_b32 v{C_FW}, v{P}""")
    if OPT["rowpf"]:
        m8 = (1 << OPT["rowpf"]) - 1; m32 = m8 * 0x01010101
        a(f"""s_mov_b32 exec_lo, {hex(m32)}
        s_mov_b32 exec_hi, {hex(m32)}
        v_bfi_b32 v{Q}, v{n.x}, 0, v{C_TMP+3}
        v_lshl_add_u32 v{Q}, v{Q}, 11, v{C_PF}
        buffer_load_dword v{JUNK}, v{Q}, s[12:15], s33 offen {SC}""")
    a(f"""s_mov_b64 exec, -1
    s_waitcnt lgkmcnt(0)
    s_barrier
    ds_read_b32 v{X}, v{C_FR}
    ds_read_b32 v{Y}, v{C_FY}
    s_waitcnt lgkmcnt(0)""")
    fill = [f"v_max_u32_dpp v{Y}, v{Y}, v{Y} {QP[m]} row_mask:0xf bank_mask:0xf" for m in (1, 2, 7)]
    n = Net(a, X, C_TMP + 2, fill)
    n.merge(last_clean=False)
    a(f"""v_cmp_gt_u32 vcc, v{Y}, v{n.x}
    s_cmp_eq_u64 vcc, 0
    s_cbranch_scc0 Lfullsel
    v_mov_b32 v{K}, v{n.x}
    Lseldone:""")

def c_select(a):
    K = C_K
    a(f"s_mov_b32 s34, {WS_KEYS}\nv_mov_b32 v{C_TMP+3}, 0x7ff")
    def chk():
        a(f"v_xor_b32 v{T0}, v{K}, v{K+1}")
        a(f"v_xor_b32 v{T1}, v{K+2}, v{K+3}")
        a(f"v_xor_b32 v{T2}, s59, v{K}")
        a(f"v_xor_b32 v{C_X}, s59, v{K+2}")
        a(f"v_or3_b32 v{T0}, v{T0}, v{T1}, v{T2}")
        for i in range(4): a(f"v_bfi_b32 v{K+i}, v{C_STK}, v{C_IX+i}, v{K+i}")
        a(f"v_or_b32 v{T0}, v{T0}, v{C_X}")
        a(f"v_cmp_ne_u16 vcc, 0, v{T0}")
    poll(a, lambda: a(f"buffer_load_dwordx4 {v4(K)}, v{C_KA}, s[12:15], s34 offen {SC}"), chk, pre=OPT["sl_k"])
    stamp(a, 8)
    fast_select(a)
    stamp(a, 9)
    a(f"""v_cmp_eq_u32 vcc, v{K}, v{C_KEY}
    s_and_b64 s[62:63], vcc, s[60:61]
    s_cmp_lg_u64 s[62:63], vcc
    s_cbranch_scc0 Lsel_pub""")
    publish_row(a)
    a("Lsel_pub:")
    fetch_row_issue(a, 84)
    a(f"""s_cmp_eq_u64 vcc, 0
    s_cbranch_scc0 Lsel_done
    s_mov_b32 exec_hi, 0x00ffffff
    buffer_store_dwordx4 {v4(C_OUT)}, v{VL}, s[52:55], s97 offen {['', 'sc1', 'nt', 'sc0 sc1'][OPT['ost']]}
    s_mov_b32 exec_hi, -1
    Lsel_done:""")

def c1(a):
    XR = 84; XF_ = 168; ACC = 52; XU = 60; WF = 88
    a(f"""s_cmp_lg_u32 s20, 0
    s_cbranch_scc1 Lc1_now
    v_lshrrev_b32 v{T0}, 2, v{N}
    v_lshl_add_u32 v{T0}, v{G}, 3, v{T0}
    v_lshlrev_b32 v{T0}, 4, v{T0}
    v_and_b32 v{T1}, 1, v{N}
    v_lshl_add_u32 v{T0}, v{T1}, 3, v{T0}
    v_bfe_u32 v{T1}, v{N}, 1, 1
    v_lshl_add_u32 v{T0}, v{T1}, 13, v{T0}
    v_add_u32 v{T0}, {LWT}, v{T0}""")
    for j in range(14):
        for h in range(2):
            a(f"ds_read_b64_tr_b16 {v2(WF+4*j+2*h)}, v{T0} offset:{(32*j+4*h)*16}")
    a(f"""v_and_b32 v{XU+4}, 7, v{N}
    v_mul_u32_u24 v{XU+4}, {PX}, v{XU+4}
    v_lshl_add_u32 v{XU+4}, v{G}, 4, v{XU+4}
    v_lshlrev_b32 v{XU+5}, 4, v{N}
    v_lshl_add_u32 v{XU+5}, v{G}, 3, v{XU+5}
    s_lshl_b32 s22, s50, 7
    s_add_u32 s22, s22, {WS_ACT}
    Lc1_now:""")
    fetch_row_finish(a, XR, T2)
    a(f"""s_waitcnt lgkmcnt(0)
    s_barrier
    s_cmp_lg_u32 s20, 0
    s_cbranch_scc1 Lc1_epoch""")
    stamp(a, 10)
    for j in range(14):
        a(f"ds_read_b128 {v4(XF_+4*j)}, v{XU+4} offset:{LXS+64*j}")
    for j in range(14):
        a(f"s_waitcnt lgkmcnt({13-j})")
        A = ACC + 4*(j & 1)
        a(f"v_mfma_f32_16x16x32_bf16 {v4(A)}, {v4(WF+4*j)}, {v4(XF_+4*j)}, {'0' if j < 2 else v4(A)}")
    for p in range(2):
        a(f"v_pk_add_f32 {v2(ACC+2*p)}, {v2(ACC+2*p)}, {v2(ACC+4+2*p)}")
    for p in range(2): a(f"v_cvt_pk_bf16_f32 v{ACC+4+p}, v{ACC+2*p}, v{ACC+2*p+1}")
    for p in range(2): a(f"v_mov_b32 v{ACC+6+p}, v{ACC+4+p}")
    for p in range(2): a(f"v_permlane32_swap_b32 v{ACC+4+p}, v{ACC+6+p}")
    for p in range(2):
        a(f"v_lshlrev_b32 v{ACC+2*p}, 16, v{ACC+4+p}")
        a(f"v_and_b32 v{ACC+2*p+1}, 0xffff0000, v{ACC+4+p}")
    for r in range(4): a(f"v_mul_f32 v{XU+r}, {fl(-1.4426950408889634)}, v{ACC+r}")
    for r in range(4): a(f"v_exp_f32 v{XU+r}, v{XU+r}")
    for p in range(2):
        a(f"v_lshlrev_b32 v{XR+2*p}, 16, v{ACC+6+p}")
        a(f"v_and_b32 v{XR+2*p+1}, 0xffff0000, v{ACC+6+p}")
    for r in range(4): a(f"v_add_f32 v{XU+r}, 1.0, v{XU+r}")
    for r in range(4): a(f"v_rcp_f32 v{XU+r}, v{XU+r}")
    for r in range(4): a(f"v_mul_f32 v{ACC+r}, v{ACC+r}, v{XU+r}")
    for p in range(2): a(f"v_cvt_pk_bf16_f32 v{ACC+4+p}, v{ACC+2*p}, v{ACC+2*p+1}")
    for p in range(2):
        a(f"v_lshlrev_b32 v{ACC+2*p}, 16, v{ACC+4+p}")
        a(f"v_and_b32 v{ACC+2*p+1}, 0xffff0000, v{ACC+4+p}")
    for p in range(2): a(f"v_pk_mul_f32 {v2(ACC+2*p)}, {v2(ACC+2*p)}, {v2(XR+2*p)}")
    for p in range(2): a(f"v_cvt_pk_bf16_f32 v{XR+p}, v{ACC+2*p}, v{ACC+2*p+1}")
    for p in range(2): a(f"v_min_u32 v{XR+p}, -2, v{XR+p}")
    a(f"""s_mov_b32 exec_lo, 0x00ff00ff
    s_mov_b32 exec_hi, 0
    buffer_store_dwordx2 {v2(XR)}, v{XU+5}, s[12:15], s22 offen {SC}
    s_branch Lend
    Lc1_epoch:
    s_lshl_b32 s29, s2, 3
    s_add_u32 s29, s29, s20
    s_cmp_lg_u32 s29, 1
    s_cbranch_scc1 Lend
    s_mov_b64 exec, 1
    v_mov_b32 v{T0}, s56
    s_mov_b32 s29, {WS_EPOCH}
    buffer_store_dword v{T0}, v{VL}, s[12:15], s29 offen {SC}
    s_branch Lend""")

def c2(a):
    K = C_K
    OA = 8; OR = 10; SG = 12; VA = 13; VO = 14; VW = 15; WF = 88; AF = 116; ACC = 52; RD = 168
    a(f"""s_mul_i32 s24, s20, 7168
    s_add_u32 s24, s24, {LWT}
    v_lshrrev_b32 v{T0}, 2, v{N}
    v_lshl_add_u32 v{T0}, v{G}, 3, v{T0}
    v_lshlrev_b32 v{T0}, 5, v{T0}
    v_and_b32 v{T1}, 3, v{N}
    v_lshl_add_u32 v{T0}, v{T1}, 3, v{T0}
    v_add_u32 v{VW}, s24, v{T0}""")
    for j in range(7):
        for h in range(2):
            a(f"ds_read_b64_tr_b16 {v2(WF+4*j+2*h)}, v{VW} offset:{(32*j+4*h)*32}")
    a(f"""v_and_b32 v{T1}, 7, v{N}
    v_mul_u32_u24 v{VO}, {PX}, v{T1}
    v_lshl_add_u32 v{VO}, v{G}, 3, v{VO}
    v_add_u32 v{VO}, s51, v{VO}
    v_lshlrev_b32 v{VA}, 4, v{T1}
    v_lshl_add_u32 v{VA}, v{G}, 7, v{VA}
    s_mul_i32 s25, s20, {7*512}
    s_add_u32 s25, s25, {WS_ACT}
    v_and_b32 v{OA}, 0x7ff, v{K}
    v_sub_u32 v{OA}, 2047, v{OA}
    v_mul_u32_u24 v{OA}, 896, v{OA}
    v_lshl_add_u32 v{OA}, v{G}, 3, v{OA}
    v_ashrrev_i32 v{T2}, 31, v{K}
    v_not_b32 v{T2}, v{T2}
    v_or_b32 v{T2}, 0x80000000, v{T2}
    v_xor_b32 v{K+1}, v{K}, v{T2}
    v_and_b32 v{K+1}, 0xffff0000, v{K+1}""")
    sigmoid_mul(a, SG, K+1, "1.0", T2)
    rbf(a, SG, SG)
    a(f"""v_lshlrev_b32 v{T1}, 4, v0
    v_add_u32 v{T1}, {LRED}, v{T1}""")
    def lds():
        for j in range(7):
            a(f"buffer_load_dwordx4 {v4(AF+4*j)}, v{VA}, s[12:15], s25 offen offset:{512*j} {SC}")
    if OPT["c2re"]:
        if OPT["sl_a"]: a(f"s_sleep {OPT['sl_a']}")
        lds()
        fetch_row_finish(a, 84, T2)
        anyones(a, range(AF, AF+28), T0)
        a("s_cmp_eq_u64 vcc, 0\ns_cbranch_scc1 Lactok")
        poll(a, lds, lambda: anyones(a, range(AF, AF+28), T0))
        a("Lactok:")
    else:
        fetch_row_finish(a, 84, T2)
        poll(a, lds, lambda: anyones(a, range(AF, AF+28), T0), pre=OPT["sl_a"])
    stamp(a, 10)
    a("s_waitcnt lgkmcnt(0)")
    for j in range(7):
        A = ACC + 4*(j & 1)
        a(f"v_mfma_f32_16x16x32_bf16 {v4(A)}, {v4(WF+4*j)}, {v4(AF+4*j)}, {'0' if j < 2 else v4(A)}")
    for p in range(2):
        a(f"v_pk_add_f32 {v2(ACC+2*p)}, {v2(ACC+2*p)}, {v2(ACC+4+2*p)}")
    a(f"""ds_write_b128 v{T1}, {v4(ACC)}
    s_waitcnt lgkmcnt(0)
    s_barrier
    s_cmp_lg_u32 s20, 0
    s_cbranch_scc1 Lend
    ds_read_b64 {v2(OR)}, v{VO} offset:{LXS}""")
    for w in range(1, 8):
        a(f"ds_read_b128 {v4(RD+4*w)}, v{T1} offset:{1024*w}")
    a("s_waitcnt lgkmcnt(7)")
    for i in range(2):
        a(f"v_lshlrev_b32 v{RD+2*i}, 16, v{OR+i}")
        a(f"v_and_b32 v{RD+2*i+1}, 0xffff0000, v{OR+i}")
    for w in range(1, 8):
        a(f"s_waitcnt lgkmcnt({7-w})")
        for p in range(2):
            a(f"v_pk_add_f32 {v2(ACC+2*p)}, {v2(ACC+2*p)}, {v2(RD+4*w+2*p)}")
    for rnd in range(2):
        for p in range(2): a(f"v_cvt_pk_bf16_f32 v{ACC+4+p}, v{ACC+2*p}, v{ACC+2*p+1}")
        for p in range(2):
            a(f"v_lshlrev_b32 v{ACC+2*p}, 16, v{ACC+4+p}")
            a(f"v_and_b32 v{ACC+2*p+1}, 0xffff0000, v{ACC+4+p}")
        for p in range(2):
            if rnd == 0: a(f"v_pk_mul_f32 {v2(ACC+2*p)}, {v2(ACC+2*p)}, {v2(SG)} op_sel_hi:[1,0]")
            else: a(f"v_pk_add_f32 {v2(ACC+2*p)}, {v2(ACC+2*p)}, {v2(RD+2*p)}")
    for p in range(2): a(f"v_cvt_pk_bf16_f32 v{OR+p}, v{ACC+2*p}, v{ACC+2*p+1}")
    a(f"""s_mov_b32 exec_lo, 0x00ff00ff
    s_mov_b32 exec_hi, 0x00ff00ff
    buffer_store_dwordx2 {v2(OR)}, v{OA}, s[52:55], s51 offen {['', 'sc1', 'nt', 'sc0 sc1'][OPT['ost']]}""")

def clears(a):
    a(f"""v_mov_b32 v{JUNK+2}, -1
    v_lshlrev_b32 v{T1}, 2, v{LANE}
    s_lshl_b32 s24, s2, 7
    s_add_u32 s24, s24, {WS_ACT}
    s_mov_b32 exec_hi, 0
    buffer_store_dword v{JUNK+2}, v{T1}, s[12:15], s24 offen {SC}
    s_mov_b32 exec_lo, 1
    s_lshl_b32 s23, s96, 11
    s_add_u32 s23, s23, {WS_ROW}
    buffer_load_dword v{JUNK}, v{VL}, s[52:55], s97 offen
    buffer_load_dword v{JUNK+1}, v{VL}, s[12:15], s23 offen
    s_mov_b64 exec, -1""")

def prefetch(a):
    a(f"""s_and_b32 s24, s2, 7
    s_lshr_b32 s25, s2, 3
    s_mul_i32 s26, s25, {14*3584}
    s_mov_b32 s18, {448*3584}
    s_cmp_eq_u32 s20, 3
    s_cbranch_scc1 Lpf_d
    v_lshrrev_b32 v{T0}, 2, v{LANE}
    v_mul_u32_u24 v{T0}, 3584, v{T0}
    v_and_b32 v{T1}, 3, v{LANE}
    v_lshl_add_u32 v{T0}, v{T1}, 7, v{T0}
    s_mul_i32 s24, s24, 448
    s_cmp_eq_u32 s20, 1
    s_cselect_b32 s16, s42, s44
    s_cselect_b32 s17, s43, s45
    s_branch Lpf_go
    Lpf_d:
    v_mul_u32_u24 v{T0}, 896, v{LANE}
    s_lshl_b32 s24, s24, 7
    s_mov_b32 s16, s46
    s_mov_b32 s17, s47
    Lpf_go:
    s_and_b32 s17, s17, 0xffff
    s_add_u32 s26, s26, s24
    s_mov_b32 exec_hi, 0x00ffffff
    buffer_load_dword v{JUNK}, v{T0}, s[16:19], s26 offen
    s_mov_b32 exec_hi, -1""")

def kernel(a):
    if OPT["stamps"]:
        for k in range(NST): a(f"s_mov_b32 s{64+2*k}, 0")
    stamp(a, 0)
    a(f"""s_load_dwordx2 s[8:9], s[0:1], 0
    s_cmp_ge_u32 s2, 256
    s_cbranch_scc1 Lexit
    v_lshrrev_b32 v{T0}, 6, v0
    v_and_b32 v{LANE}, 63, v0
    v_readfirstlane_b32 s20, v{T0}
    v_lshlrev_b32 v{VL}, 4, v{LANE}
    s_and_b32 s21, s2, 31
    s_lshr_b32 s22, s2, 5
    s_mov_b32 s10, {XB}
    s_mov_b32 s11, 0x00020000
    s_cmp_lt_u32 s20, 4
    s_cbranch_scc1 Lloader
    s_getpc_b64 s[30:31]
    Lpc:
    v_and_b32 v{T2}, 255, v0
    v_lshlrev_b32 v{JUNK}, 7, v{T2}
    v_mov_b32 v{JUNK+1}, s31
    v_add_co_u32 v{JUNK}, vcc, s30, v{JUNK}
    v_addc_co_u32 v{JUNK+1}, vcc, 0, v{JUNK+1}, vcc
    v_cmp_gt_u32 vcc, (Lexit-Lpc)/128+1, v{T2}
    s_and_saveexec_b64 s[30:31], vcc
    s_cbranch_execz Lcompute
    global_load_dword v{JUNK+2}, v[{JUNK}:{JUNK+1}], off
    s_branch Lcompute
    Lloader:
    v_cmp_lt_u32 vcc, 29, v{LANE}
    s_lshl_b32 s23, s20, 9
    s_add_u32 s23, s23, s21
    s_mul_i32 s23, s23, 896
    s_mul_i32 s24, s20, {16*PH}
    v_add_u32 v{T1}, {32*896 - 480}, v{VL}
    s_mov_b32 s25, {'s22' if OPT['rot'] else '0'}
    v_cndmask_b32 v{T1}, v{VL}, v{T1}, vcc
    s_mov_b32 exec_lo, 0xcfffffff
    s_mov_b32 exec_hi, 0x03ffffff
    s_mov_b32 s28, 0
    s_waitcnt lgkmcnt(0)""")
    stamp(a, 3, True)
    a(f"""Ldma:
    s_mul_i32 s26, s25, {2*PH}
    s_mul_i32 s27, s25, {64*896}
    s_add_u32 s26, s26, s24
    s_add_u32 s27, s27, s23
    s_mov_b32 m0, s26
    s_add_u32 s25, s25, 1
    buffer_load_dwordx4 v{T1}, s[8:11], s27 offen lds
    s_and_b32 s25, s25, 7
    s_add_u32 s28, s28, 1
    s_cmp_lg_u32 s28, 8
    s_cbranch_scc1 Ldma1
    s_add_u32 s24, s24, {LXH}
    s_add_u32 s23, s23, 448
    Ldma1:
    s_cmp_lt_u32 s28, 16
    s_cbranch_scc1 Ldma
""")
    def ltail():
        a(f"""Lltail:
        s_mov_b64 exec, -1
        s_load_dwordx2 s[6:7], s[0:1], 96
        s_load_dwordx8 s[40:47], s[0:1], 48
        s_load_dwordx2 s[48:49], s[0:1], 80
        v_and_b32 v{N}, 15, v0
        v_bfe_u32 v{G}, v0, 4, 2""")
        stamp(a, 6, True)
        early = OPT["e2a"]
        if early:
            a("s_waitcnt vmcnt(8)")
            stamp(a, 1)
            a("s_barrier")
        a("s_waitcnt lgkmcnt(0)")
        b_setup(a)
        b_loads(a)
        a("s_cmp_lg_u32 s20, 0\ns_cbranch_scc1 Lw123a")
        clears(a)
        if not early:
            a("s_waitcnt vmcnt(14)")
            stamp(a, 1)
            a("s_barrier")
        a("s_waitcnt vmcnt(6)")
        stamp(a, 2)
        a(f"""s_barrier
        v_mov_b32 v{T0}, {LTAG}
        s_waitcnt vmcnt(5)
        ds_write_b32 v{T0}, v{V_EP}
        s_branch Lprol
        Lw123a:""")
        prefetch(a)
        if not early:
            a(f"s_waitcnt vmcnt(12)")
            stamp(a, 1)
            a("s_barrier")
        a(f"s_waitcnt vmcnt(4)")
        stamp(a, 2)
        a(f"s_barrier")
        a("Lprol:")
        if OPT["w64l"]:
            a("s_mov_b32 s3, s20")
            w64(a, AC1)
            for i in range(8): a(f"v_xor_b32 v{AC1+16+i}, 0x80008000, v{AC1+8+i}")
            a(f"s_lshl_b32 s26, s3, 12\ns_add_u32 s26, s26, {LWT}\nv_add_u32 v{T1}, s26, v{VL}")
            for i in range(6): a(f"ds_write_b128 v{T1}, {v4(AC1+4*i)} offset:{[0, 1024, 2048, 3072, 16384, 17408][i]}")
        if not OPT["prolate"]: pro(a)
        stamp(a, 3)
        a("s_waitcnt vmcnt(3) lgkmcnt(0)\ns_barrier")
        a("s_branch Lpro1" if OPT["prolate"] else "s_branch Lpro2")
    if OPT["layout"]: a("s_branch Lltail")
    else: ltail()
    a(f"""Lcompute:
    s_mov_b64 exec, -1
    s_load_dwordx2 s[6:7], s[0:1], 96
    s_load_dwordx8 s[40:47], s[0:1], 48
    s_load_dwordx2 s[48:49], s[0:1], 80
    v_and_b32 v{N}, 15, v0
    v_bfe_u32 v{G}, v0, 4, 2
    s_and_b32 s3, s20, 3""")
    stamp(a, 9, True)
    a_pre(a)
    stamp(a, 11, True)
    a("s_waitcnt lgkmcnt(0)")
    b_setup(a)
    stamp(a, 1)
    a("s_barrier")
    stamp(a, 2)
    a_main(a)
    stamp(a, 4)
    a(f"buffer_load_dwordx4 {v4(B_WR)}, v{VL}, s[16:19], 0 offen")
    a(f"buffer_load_dwordx4 {v4(B_XR)}, v{VL}, s[8:11], s97 offen")
    a("Lpro1:")
    pro(a)
    a("Lpro2:")
    a(f"""v_readfirstlane_b32 s56, v{V_EP}
    s_add_u32 s56, s56, 1
    s_mul_i32 s98, s56, {HASH}
    s_lshl_b32 s99, s98, 4
    s_and_b32 s59, s56, 0xffff
    s_barrier""")
    stamp(a, 5)
    b_main(a)
    wd_dma(a, OPT['wdsplit'], 7, 'Lnwd1')
    c_select(a)
    a("s_cmp_ge_u32 s2, 224\ns_cbranch_scc1 Lc2")
    c1(a)
    a("Lc2:\ns_and_b32 s50, s2, 7\ns_cmp_eq_u32 s50, 7\ns_cbranch_scc1 Lend")
    c2(a)
    a("Lend:")
    dump_stamps(a)
    if OPT["layout"]:
        a("s_endpgm")
        ltail()
    a("Lexit:\ns_endpgm\nLfullsel:")
    select8(a, C_K, C_TMP, C_L, C_SW, C_SR)
    a("s_branch Lseldone")

NAME = "sequential_preLN__spectral_fnet__moe_arch_mod__prompt_kernel"
def build():
    a = Asm()
    kernel(a)
    body = a.finish()
    if OPT["align"]: body = align_pass(body)
    return gen.HDR + f"""; @launch grid=(256,1,1) block=(512,1,1) lds={LDS_TOTAL}
.amdgcn_target "amdgcn-amd-amdhsa--gfx950"
.text
.globl {NAME}
.p2align 8
.type {NAME},@function
{NAME}:
""" + body + f""".section .rodata,"a"
.p2align 6
.amdhsa_kernel {NAME}
  .amdhsa_next_free_vgpr {NVGPR}
  .amdhsa_next_free_sgpr 102
  .amdhsa_accum_offset {NVGPR}
  .amdhsa_group_segment_fixed_size 0
  .amdhsa_kernarg_size 104
  .amdhsa_user_sgpr_count 2
  .amdhsa_user_sgpr_kernarg_segment_ptr 1
  .amdhsa_system_sgpr_workgroup_id_x 1
.end_amdhsa_kernel
"""

if __name__ == "__main__":
    for x in list(sys.argv[1:]):
        if x.startswith("--"):
            k, _, v = x[2:].partition("=")
            assert k in OPT, k
            OPT[k] = int(v) if v else 1
            sys.argv.remove(x)
    open(sys.argv[1], "w").write(build())
```

```python
import sys
from asmlib import Asm, fl, align_pass
import gen
from gen import srd, v4, v2, rbf, sd_chain, reduce3, unpack8, lim_regs, select8, sigmoid_mul

WS_KEYS = 0x200000
WS_EPOCH = 0x208000
WS_ACT = 0x210000
WS_STAMP = 0x3c0000
WS_ROW = 0x400000
WS_SIZE = 0x800000
XB = 1835008
PH = 480; PX = 928; PF = 136; PY = 452
LXH = 64 * PH
LW = 2 * LXH; LCS = LW + 28 * 1024; LTAG = LCS + 256; LF = LCS + 272; LWT = LF + 64 * PF; LDS_TOTAL = LWT + 57344
LY = 0
LSEL = 16384; LSE2 = 16640; LKEY = 17152; LXS = 17408; LRED = 24832
SPIN = 4000000
SC = "sc1"
HASH = "0x9e3779b1"
OPT = dict(stamps=0, cyc=0, align=0, sl_u0=2, sl_k=16, sl_a=0, rowpf=2, barj=4, dbgto=0, ost=0, c2re=1, rot=1, pf=3, wdsplit=0, w64l=1, layout=1, e2a=1, prolate=1, amp=-1)
NST = 14

def stamp(a, k, early=False):
    if OPT["stamps"] == 4:
        if not early and k not in (0, 1, 2, NST - 1): return
    elif early: return
    if OPT["stamps"] == 2 and k not in (0, NST - 1): return
    if OPT["stamps"]: a(f"{'s_memtime' if OPT['cyc'] else 's_memrealtime'} s[{64+2*k}:{65+2*k}]")
def dump_stamps(a):
    if OPT["amp"] >= 0:
        k = OPT["amp"]
        stamp(a, NST - 2)
        a(f"""s_cmp_lg_u32 s2, 224
        s_cbranch_scc1 Lampd
        s_cmp_lg_u32 s20, 0
        s_cbranch_scc1 Lampd
        s_waitcnt lgkmcnt(0)
        s_sub_u32 s60, s{64+2*k}, s64
        s_mul_i32 s60, s60, 3
        s_add_u32 s60, s60, s{64+2*(NST-2)}
        Lamp:
        s_memrealtime s[62:63]
        s_waitcnt lgkmcnt(0)
        s_sub_u32 s61, s62, s60
        s_cmp_lt_i32 s61, 0
        s_cbranch_scc1 Lamp
        Lampd:""")
        return
    if not OPT["stamps"]: return
    stamp(a, NST - 2)
    a("s_waitcnt vmcnt(0)")
    stamp(a, NST - 1)
    a("s_mov_b64 exec, 1\ns_waitcnt lgkmcnt(0)")
    a(f"s_lshl_b32 s60, s2, 3\ns_add_u32 s60, s60, s20\ns_lshl_b32 s60, s60, 6\ns_add_u32 s60, s60, {WS_STAMP}\nv_mov_b32 v1, 0")
    for k in range(NST):
        a(f"v_mov_b32 v2, s{64+2*k}\nbuffer_store_dword v2, v1, s[12:15], s60 offen offset:{4*k}")

_lbl = [0]
def timeout_note(a, ident):
    if not OPT["dbgto"]: return
    a(f"""s_lshl_b32 s100, s2, 8
    s_add_u32 s100, s100, s20
    s_add_u32 s100, s100, {ident << 24}
    v_mov_b32 v{JUNK+3}, s100
    s_mov_b32 s100, {0x3f0000 + 4*ident}
    s_mov_b64 exec, 1
    buffer_store_dword v{JUNK+3}, v{VL}, s[12:15], s100 offen
    v_mov_b32 v{JUNK+3}, s36
    buffer_store_dword v{JUNK+3}, v{VL}, s[12:15], s100 offen offset:64
    v_mov_b32 v{JUNK+3}, s98
    buffer_store_dword v{JUNK+3}, v{VL}, s[12:15], s100 offen offset:128
    v_mov_b32 v{JUNK+3}, s34
    buffer_store_dword v{JUNK+3}, v{VL}, s[12:15], s100 offen offset:192
    s_mov_b64 exec, -1""")
def poll(a, loads, check, pre=0):
    _lbl[0] += 1
    L = f"Lpoll{_lbl[0]}"
    if pre: a(f"s_sleep {pre}")
    a(f"s_mov_b32 s57, {SPIN}\n{L}:")
    loads()
    a("s_waitcnt vmcnt(0)")
    check()
    a(f"""s_cmp_eq_u64 vcc, 0
    s_cbranch_scc1 {L}d
    s_sub_u32 s57, s57, 1
    s_cbranch_scc0 {L}""")
    timeout_note(a, _lbl[0])
    a(f"{L}d:")

class LdsQ:
    def __init__(s, a): s.a = a; s.q = []
    def read(s, text, b, n=4):
        s.a(text); s.q.append(set(range(b, b + n)))
    def need(s, b, n=4):
        rs = set(range(b, b + n)); last = -1
        for i, d in enumerate(s.q):
            if d & rs: last = i
        if last >= 0:
            s.a(f"s_waitcnt lgkmcnt({len(s.q) - 1 - last})")
            s.q = s.q[last+1:]

LANE, N, G, T0, T1, T2, VL = 1, 2, 3, 4, 5, 6, 7
B_XR = 8; B_WR = 12; V_EP = 16; VFW = 17; VFR = 18; VXR = 19; VCS = 20; VUS = 21; ST = 22
WC = 28; WSN = 36; WNS = 44
AC1 = 52; AC2 = 68; GR = 84; XF = 88; WD = 116
JUNK = 228; NVGPR = 232
B_AF = 28; B_AD = 36; B_VY = 40; B_VU = 41; C_L = {1: 42, 2: 43, 4: 44}; C_SW = 45; C_SR = 46; C_KA = 47
C_FW = 48; C_FR = 49; C_FY = 50; C_PF = 51
B_R = 116; B_ACC = 52; B_XU = 68; B_WU = 76; B_S1, B_S2, B_S3 = 88, 90, 92; B_TH = 96; P_TH = 104; P_EPS = 112; P_BASE = 113
C_K = 148; C_TMP = 152; C_KEY = 156; C_X = 157; C_Y = 158; C_OUT = 160; C_LN = 164; C_IX = 224; C_STK = 159

def trig_block(a, n, k0, eps, base, th, want_sin):
    for i in range(n):
        k = k0 + i
        if k == 0: a(f"v_mov_b32 v{th+i}, v{base}")
        else: a(f"v_fmamk_f32 v{th+i}, v{eps}, {fl(float(k))}, v{base}")
    for i in range(n):
        if want_sin: a(f"v_sin_f32 v{th+n+i}, v{th+i}")
        a(f"v_cos_f32 v{th+i}, v{th+i}")

def w64(a, D):
    EPS, BASE, TH, S = ST + 4, ST + 5, XF, ST
    a(f"""v_lshrrev_b32 v{S}, 1, v{N}
    s_lshl_b32 s25, s3, 3
    v_add_u32 v{S}, s25, v{S}
    v_sub_u32 v{S+1}, 64, v{S}
    v_cmp_eq_u32 vcc, 0, v{S}
    v_and_b32 v{S+2}, 1, v{N}
    v_cndmask_b32 v{S+1}, v{S+1}, 32, vcc
    v_cmp_eq_u32 vcc, 0, v{S+2}
    v_lshlrev_b32 v{S+2}, 3, v{G}
    v_cndmask_b32 v{S+1}, v{S+1}, v{S}, vcc
    v_cvt_f32_u32 v{S+2}, v{S+2}
    v_cvt_f32_u32 v{S+1}, v{S+1}
    v_mul_f32 v{EPS}, {fl(1.0/64)}, v{S+1}
    v_mul_f32 v{BASE}, v{S+2}, v{EPS}""")
    for ks in range(2):
        for h in range(2):
            trig_block(a, 4, 32*ks + 4*h, EPS, BASE, TH, True)
            for i in range(2):
                a(f"v_cvt_pk_f16_f32 v{D+4*ks+2*h+i}, v{TH+2*i}, v{TH+2*i+1}")
                a(f"v_cvt_pk_f16_f32 v{D+8+4*ks+2*h+i}, v{TH+4+2*i}, v{TH+4+2*i+1}")

def a_pre(a):
    EPS, BASE, TH, ONE, TO, CS = ST + 4, ST + 5, XF, XF + 8, XF + 12, AC1
    a(f"""s_and_b32 s25, s3, 1
    s_lshl_b32 s25, s25, 4
    v_add_u32 v{T0}, s25, v{N}
    s_mul_i32 s26, s22, 28
    v_add_u32 v{T1}, s26, v{T0}
    v_cmp_ne_u32 vcc, 30, v{T0}
    s_lshr_b32 s25, s3, 1
    s_mul_i32 s25, s25, {fl(0.25)}
    v_cndmask_b32 v{T1}, 0, v{T1}, vcc
    v_cvt_f32_u32 v{T1}, v{T1}
    v_mul_f32 v{EPS}, {fl(1.0/448)}, v{T1}
    v_lshlrev_b32 v{T0}, 3, v{G}
    v_cvt_f32_u32 v{T2}, v{T0}
    v_fma_f32 v{BASE}, v{T2}, v{EPS}, s25
    s_mul_i32 s25, s3, {7*1024}
    s_add_u32 s25, s25, {LW}
    v_add_u32 v{T1}, s25, v{VL}""")
    for i in range(4): a(f"v_mov_b32 v{ONE+i}, 0x3f803f80")
    for j in range(7):
        trig_block(a, 8, 32*j, EPS, BASE, TH, False)
        o = TO + 4*(j & 1)
        for i in range(4): a(f"v_cvt_pk_bf16_f32 v{o+i}, v{TH+2*i}, v{TH+2*i+1}")
        a(f"ds_write_b128 v{T1}, {v4(o)} offset:{j*1024}")
        a(f"v_mfma_f32_16x16x32_bf16 {v4(CS)}, {v4(o)}, {v4(ONE)}, {'0' if j == 0 else v4(CS)}")
    a(f"""v_lshrrev_b32 v{ST}, 1, v{N}
    s_lshl_b32 s25, s3, 3
    v_add_u32 v{ST}, s25, v{ST}
    v_and_b32 v{ST+2}, 1, v{N}
    v_lshlrev_b32 v{VUS}, 16, v{ST}
    v_lshl_add_u32 v{VUS}, v{ST+2}, 6, v{VUS}
    v_lshl_add_u32 v{VUS}, v{G}, 4, v{VUS}
    s_lshl_b32 s25, s3, 6
    v_lshlrev_b32 v{T0}, 4, v{G}
    v_add_u32 v{VCS}, {LCS}, v{T0}
    v_add_u32 v{T1}, s25, v{VCS}
    v_add_f32 v{CS}, v{CS}, v{CS}
    v_mov_b32 v{CS+1}, 0
    v_add_f32 v{CS+2}, v{CS+2}, v{CS+2}
    v_mov_b32 v{CS+3}, 0
    ds_write_b128 v{T1}, {v4(CS)}""")
    if not OPT["w64l"]:
        w64(a, WC)
        for i in range(8): a(f"v_xor_b32 v{WNS+i}, 0x80008000, v{WSN+i}")
    stamp(a, 10, True)
    a(f"v_add_u32 v{T2}, {LW}, v{VL}")
    a(f"""s_lshl_b32 s25, s3, 4
    v_add_u32 v{ST}, s25, v{N}
    v_mul_u32_u24 v{VXR}, {PH}, v{ST}
    v_add_u32 v{VXR}, v{T0}, v{VXR}
    v_mul_u32_u24 v{VFW}, {PF}, v{ST}
    v_lshl_add_u32 v{VFW}, v{G}, 3, v{VFW}
    v_add_u32 v{VFW}, {LF}, v{VFW}
    v_lshrrev_b32 v{ST}, 2, v{N}
    v_lshl_add_u32 v{ST}, v{G}, 3, v{ST}
    v_mul_u32_u24 v{VFR}, {PF}, v{ST}
    v_and_b32 v{ST}, 3, v{N}
    v_lshl_add_u32 v{VFR}, v{ST}, 3, v{VFR}
    v_add_u32 v{VFR}, {LF}, v{VFR}
    s_lshl_b32 s23, s21, 11
    s_lshl_b32 s24, s22, 8
    s_add_u32 s23, s23, s24""")
    for r in range(4):
        a(f"s_mov_b32 s{30+2*r}, {hex(((1<<r)|(1<<(20+r))) & 0xffffffff)}")
        a(f"s_mov_b32 s{31+2*r}, {hex(((1<<(8+r))|(1<<(28+r))) & 0xffffffff)}")
    a("s_mov_b32 s24, 0\ns_mov_b32 s25, 0xffff0000")

def a_main(a):
    q = LdsQ(a)
    def rdx(j, hf): q.read(f"ds_read_b128 {v4(XF+4*j)}, v{VXR} offset:{64*j + hf*LXH}", XF+4*j)
    CS = WD
    def rdw(j):
        for T in range(4): q.read(f"ds_read_b128 {v4(WD+4*(7*T+j))}, v{T2} offset:{(7*T+j)*1024}", WD+4*(7*T+j))
    for j in range(3): rdx(j, 0); rdw(j)
    BJ = OPT["barj"]
    for hf in range(2):
        A = AC2 if hf else AC1
        for j in range(7):
            x = XF + 4*j
            q.need(x)
            a(f"v_mfma_f32_16x16x32_bf16 {v4(GR)}, {v4(x)}, {v4(x)}, {'0' if (j == 0 and hf == 0) else v4(GR)}")
            for T in range(4):
                q.need(WD+4*(7*T+j))
                a(f"v_mfma_f32_16x16x32_bf16 {v4(A+4*T)}, {v4(WD+4*(7*T+j))}, {v4(x)}, {'0' if j == 0 else v4(A+4*T)}")
            if hf == 0:
                if j + 3 < 7: rdx(j + 3, 0); rdw(j + 3)
                if j == BJ:
                    stamp(a, 11)
                    a("s_barrier")
                    for k in range(BJ + 1): rdx(k, 1)
                elif j > BJ: rdx(j, 1)
            elif j == 4:
                for T in range(4): q.read(f"ds_read_b128 {v4(CS+4*T)}, v{VCS} offset:{64*T}", CS+4*T)
    stamp(a, 3)
    Q, S, M, RS = ST, ST+1, ST+2, ST+4
    a(f"v_mov_b32 v{Q}, 0\nv_mov_b32 v{V_EP}, {LTAG}")
    for r in range(4): a(f"v_cndmask_b32 v{Q}, v{Q}, v{GR+r}, s[{30+2*r}:{31+2*r}]")
    for T in (1, 0, 2, 3):
        for p in range(2):
            a(f"v_pk_add_f32 {v2(AC1+4*T+2*p)}, {v2(AC1+4*T+2*p)}, {v2(AC2+4*T+2*p)} neg_hi:[0,1]")
        if T == 1:
            a(f"v_cndmask_b32 v{S}, 0, v{AC1+4+2}, s[24:25]")
        if T == 0:
            a(f"v_permlane32_swap_b32 v{Q}, v{S}\nv_add_f32 v{Q}, v{Q}, v{S}\nv_mov_b32 v{S}, v{Q}")
        if T == 2:
            a(f"v_permlane16_swap_b32 v{Q}, v{S}\nv_add_f32 v{Q}, v{Q}, v{S}\nv_mov_b32 v{S}, v{Q}")
    a(f"""v_permlane32_swap_b32 v{Q}, v{S}
    v_mul_f32 v{M}, {fl(-1.0/448)}, v{S}
    v_mul_f32 v{Q}, {fl(1.0/448)}, v{Q}
    v_fma_f32 v{Q}, -v{M}, v{M}, v{Q}
    v_max_f32 v{Q}, 0, v{Q}""")
    q.need(CS, 16)
    mc = [f"v_pk_fma_f32 {v2(AC1+4*T+2*p)}, {v2(CS+4*T+2*p)}, {v2(M)}, {v2(AC1+4*T+2*p)} op_sel_hi:[1,0,1]" for T in range(4) for p in range(2)]
    chain = [f"v_cvt_pk_bf16_f32 v{RS}, v{Q}, v{Q}", f"v_and_b32 v{RS}, 0xffff0000, v{RS}", f"v_add_f32 v{RS}, {fl(1e-5)}, v{RS}",
             f"v_cvt_pk_bf16_f32 v{RS}, v{RS}, v{RS}", f"v_and_b32 v{RS}, 0xffff0000, v{RS}", f"v_sqrt_f32 v{RS}, v{RS}",
             f"v_cvt_pk_bf16_f32 v{RS}, v{RS}, v{RS}", f"v_and_b32 v{RS}, 0xffff0000, v{RS}", f"v_rcp_f32 v{RS}, v{RS}"]
    for i in range(9):
        a(chain[i])
        if i < 8: a(mc[i])
    for T in range(4):
        for p in range(2):
            x = AC1 + 4*T + 2*p
            a(f"v_pk_mul_f32 {v2(x)}, {v2(x)}, {v2(RS)} op_sel_hi:[1,0]")
        for p in range(2):
            x = AC1 + 4*T + 2*p
            a(f"v_cvt_pk_f16_f32 v{AC2+2*T+p}, v{x}, v{x+1}")
        a(f"ds_write_b64 v{VFW}, {v2(AC2+2*T)} offset:{32*T}")
    if OPT["w64l"]: a(f"s_lshl_b32 s26, s3, 12\ns_add_u32 s26, s26, {LWT}\nv_add_u32 v{T1}, s26, v{VL}")
    a(f"s_waitcnt lgkmcnt(0)\ns_barrier\nds_read_b32 v{V_EP}, v{V_EP}")
    if OPT["w64l"]:
        for i in (0, 2, 4, 1, 3, 5): a(f"ds_read_b128 {v4(WC+4*i)}, v{T1} offset:{(i % 4 if i < 4 else i - 2 + 2) * 0 + i * 0 + [0, 1024, 2048, 3072, 16384, 17408][i]}")
    FA = WD + 16
    fa = lambda T, ks: FA + (2*T + ks) * 4
    q = LdsQ(a)
    for T in range(2):
        for ks in range(2):
            for TT in (T, T + 2):
                for h in range(2):
                    q.read(f"ds_read_b64_tr_b16 {v2(fa(TT, ks)+2*h)}, v{VFR} offset:{(32*ks+4*h)*PF+32*TT}", fa(TT, ks)+2*h, 2)
    UR = AC1; UI = AC1 + 8; o = XF
    tagcalc = [f"v_add_u32 v{M}, 1, v{V_EP}", f"s_mov_b32 s98, {HASH}", f"v_mul_lo_u32 v{M}, v{M}, s98"]
    for T in range(2):
        for ks in range(2):
            fr = v4(fa(T, ks)); fi = v4(fa(T + 2, ks))
            q.need(fa(T, ks))
            a(f"v_mfma_f32_16x16x32_f16 {v4(UR+4*T)}, {fr}, {v4(WC+4*ks)}, {'0' if ks == 0 else v4(UR+4*T)}")
            a(f"v_mfma_f32_16x16x32_f16 {v4(UI+4*T)}, {fr}, {v4(WNS+4*ks)}, {'0' if ks == 0 else v4(UI+4*T)}")
            q.need(fa(T + 2, ks))
            a(f"v_mfma_f32_16x16x32_f16 {v4(UR+4*T)}, {fi}, {v4(WSN+4*ks)}, {v4(UR+4*T)}")
            a(f"v_mfma_f32_16x16x32_f16 {v4(UI+4*T)}, {fi}, {v4(WC+4*ks)}, {v4(UI+4*T)}")
            if T == 0 and ks == 0:
                for t in tagcalc: a(t)
    for r in range(4): a(f"v_cvt_pk_f16_f32 v{o+r}, v{UR+r}, v{UI+r}")
    a(f"buffer_store_dwordx4 {v4(o)}, v{VUS}, s[12:15], s23 offen {SC}")
    a(f"v_add3_u32 v{Q}, v{o}, v{o+1}, v{o+2}")
    for r in range(4): a(f"v_cvt_pk_f16_f32 v{o+4+r}, v{UR+4+r}, v{UI+4+r}")
    a(f"""v_cndmask_b32 v{o+7}, v{o+7}, 0, s[24:25]
    v_add3_u32 v{Q}, v{Q}, v{o+3}, v{o+4}
    v_add3_u32 v{S}, v{o+5}, v{o+6}, v{o+7}
    v_add_u32 v{Q}, v{Q}, v{S}
    v_mov_b32 v{S}, v{Q}
    v_permlane32_swap_b32 v{Q}, v{S}
    v_add_u32 v{Q}, v{Q}, v{S}
    v_mov_b32 v{S}, v{Q}
    v_permlane16_swap_b32 v{Q}, v{S}
    v_sub_u32 v{Q}, v{M}, v{Q}
    v_sub_u32 v{Q}, v{Q}, v{S}
    v_cndmask_b32 v{o+7}, v{o+7}, v{Q}, s[24:25]
    buffer_store_dwordx4 {v4(o+4)}, v{VUS}, s[12:15], s23 offen offset:128 {SC}""")

def b_ids(a):
    a(f"""s_and_b32 s92, s2, 7
    s_lshr_b32 s93, s2, 6
    s_lshl_b32 s93, s93, 3
    s_or_b32 s92, s92, s93
    s_bfe_u32 s93, s2, 0x10003
    s_bfe_u32 s96, s2, 0x20004
    s_sub_u32 s95, 64, s92
    s_cmp_eq_u32 s92, 0
    s_cselect_b32 s95, 32, s95
    s_cselect_b32 s94, 0, 1
    s_xor_b32 s94, s94, s93
    s_cmp_eq_u32 s93, 0
    s_cselect_b32 s95, s92, s95
    s_lshl_b32 s96, s96, 9
    s_add_u32 s95, s95, s96
    s_lshl_b32 s96, s20, 6
    s_add_u32 s96, s96, s95
    s_mul_i32 s97, s96, 896""")

def b_setup(a):
    srd(a, 12, 6, WS_SIZE)
    srd(a, 52, 48, XB)
    srd(a, 16, 40, 896)
    b_ids(a)

def b_loads(a):
    a(f"""s_mov_b32 s26, {WS_EPOCH}
    v_mov_b32 v{T0}, 0
    buffer_load_dword v{V_EP}, v{T0}, s[12:15], s26 offen {SC}
    buffer_load_dwordx4 {v4(B_WR)}, v{VL}, s[16:19], 0 offen
    buffer_load_dwordx4 {v4(B_XR)}, v{VL}, s[8:11], s97 offen""")

def pro(a):
    EPS, BASE, TH, AF, AD = P_EPS, P_BASE, P_TH, B_AF, B_AD
    a(f"""s_lshl_b32 s28, s92, 16
    s_lshl_b32 s29, s20, 8
    s_add_u32 s28, s28, s29
    s_add_u32 s29, s28, 4096
    s_add_u32 s30, s28, 32768
    s_add_u32 s31, s28, 36864
    v_lshlrev_b32 v{B_VU}, 13, v{G}
    v_lshl_add_u32 v{B_VU}, v{N}, 4, v{B_VU}
    v_and_b32 v{T0}, 7, v{N}
    v_lshlrev_b32 v{T0}, 6, v{T0}
    v_add_u32 v{T0}, s95, v{T0}
    v_cvt_f32_u32 v{T0}, v{T0}
    v_cmp_gt_u32 vcc, 8, v{N}
    v_mul_f32 v{EPS}, {fl(1.0/2048)}, v{T0}
    v_lshlrev_b32 v{T1}, 2, v{G}
    v_cndmask_b32 v{EPS}, -v{EPS}, v{EPS}, vcc
    v_cvt_f32_u32 v{T1}, v{T1}
    v_mul_f32 v{BASE}, v{T1}, v{EPS}""")
    for ks in range(2):
        trig_block(a, 4, 16*ks, EPS, BASE, TH, True)
        for i in range(4):
            a(f"v_cvt_pk_f16_f32 v{AF+4*ks+i}, v{TH+i}, v{TH+4+i}")
    a(f"""v_lshrrev_b32 v{T0}, 3, v{N}
    v_and_b32 v{T1}, 3, v{N}
    v_lshlrev_b32 v{T1}, 2, v{T1}
    v_lshl_add_u32 v{T0}, v{T0}, 4, v{T1}
    s_mul_i32 s32, s20, 28
    v_add_u32 v{T1}, s32, v{T0}
    v_sub_u32 v{T2}, 448, v{T1}
    v_cmp_gt_u32 s[34:35], 2, v{G}
    v_mov_b32 v{TH}, s93
    v_mov_b32 v{TH+1}, s94
    v_cndmask_b32 v{T2}, v{T2}, v{T1}, s[34:35]
    v_cndmask_b32 v{TH}, v{TH+1}, v{TH}, s[34:35]
    v_bfe_u32 v{TH+1}, v{N}, 2, 1
    v_cmp_eq_u32 s[36:37], v{TH}, v{TH+1}
    v_and_b32 v{TH+2}, 1, v{G}
    v_mul_u32_u24 v{TH+2}, {4*PY}, v{TH+2}
    v_add_lshl_u32 v{AD}, v{TH+2}, v{T2}, 2
    v_mov_b32 v{TH+3}, -4
    v_cndmask_b32 v{TH+3}, v{TH+3}, 4, s[34:35]
    v_add_u32 v{AD+1}, v{AD}, v{TH+3}
    v_add_u32 v{AD+2}, v{AD+1}, v{TH+3}
    v_add_u32 v{AD+3}, v{AD+2}, v{TH+3}
    v_cmp_gt_u32 s[62:63], 28, v{T0}
    s_and_b64 s[62:63], s[62:63], s[36:37]
    v_cmp_eq_u32 s[60:61], 0, v{T1}
    s_andn2_b64 s[60:61], s[60:61], s[34:35]
    s_andn2_b64 s[60:61], s[62:63], s[60:61]
    v_mov_b32 v{TH}, 224
    v_cmp_eq_u32 s[38:39], v{TH}, v{T1}
    s_and_b64 s[38:39], s[38:39], s[34:35]
    s_and_b64 s[38:39], s[38:39], s[36:37]
    s_or_b64 s[60:61], s[60:61], s[38:39]
    s_mul_i32 s33, s20, {PY*4}
    v_lshlrev_b32 v{B_VY}, 5, v{LANE}
    v_add_u32 v{B_VY}, s33, v{B_VY}""")
    lim_regs(a, C_L, LANE, T0)
    a(f"""s_lshl_b32 s34, s20, 5
    s_add_u32 s34, s34, {LSEL}
    v_lshlrev_b32 v{T1}, 2, v{LANE}
    v_add_u32 v{C_SW}, s34, v{T1}
    v_add_u32 v{C_SR}, {LSEL}, v{T1}
    v_lshrrev_b32 v{C_KA}, 1, v0
    v_lshlrev_b32 v{C_KA}, 6, v{C_KA}
    v_and_b32 v{T0}, 1, v0
    v_lshl_add_u32 v{C_KA}, v{T0}, 4, v{C_KA}
    s_lshl_b32 s34, s20, 6
    s_add_u32 s34, s34, {LSE2}
    v_add_u32 v{C_FW}, s34, v{T1}
    v_lshrrev_b32 v{C_PF}, 3, v{LANE}
    v_and_b32 v{C_FY}, 7, v{LANE}
    v_lshlrev_b32 v{C_FR}, 6, v{C_PF}
    v_lshl_add_u32 v{C_FR}, v{C_FY}, 2, v{C_FR}
    v_add_u32 v{C_FR}, {LSE2}, v{C_FR}
    v_lshlrev_b32 v{C_FY}, 6, v{C_FY}
    v_add_u32 v{C_FY}, {LSE2 + 32}, v{C_FY}
    v_lshlrev_b32 v{C_PF}, 7, v{C_PF}
    s_cmp_ge_u32 s2, 224
    s_cselect_b32 s33, 1024, 0
    s_add_u32 s33, s33, {WS_ROW}
    s_lshl_b32 s27, s2, 6
    s_add_u32 s27, s27, {WS_KEYS}
    s_sub_u32 s32, 2047, s96
    v_lshrrev_b32 v{T0}, 1, v0
    v_and_b32 v{T1}, 7, v{T0}
    v_lshrrev_b32 v{T2}, 6, v{T0}
    v_lshl_or_b32 v{T1}, v{T2}, 3, v{T1}
    v_sub_u32 v{T2}, 64, v{T1}
    v_cmp_eq_u32 vcc, 0, v{T1}
    v_bfe_u32 v{TH}, v{T0}, 3, 1
    v_cndmask_b32 v{T2}, v{T2}, 32, vcc
    v_cmp_eq_u32 vcc, 0, v{TH}
    v_bfe_u32 v{TH}, v{T0}, 4, 2
    v_cndmask_b32 v{T1}, v{T2}, v{T1}, vcc
    v_lshl_add_u32 v{T1}, v{TH}, 9, v{T1}
    v_and_b32 v{T0}, 1, v0
    v_lshl_add_u32 v{T1}, v{T0}, 8, v{T1}
    v_sub_u32 v{C_IX}, 2047, v{T1}
    v_subrev_u32 v{C_IX+1}, 64, v{C_IX}
    v_subrev_u32 v{C_IX+2}, 128, v{C_IX}
    v_subrev_u32 v{C_IX+3}, 192, v{C_IX}""")

def pro2(a):
    XU, WU, S1, S2, S3 = B_XU, B_WU, P_TH, P_TH + 2, P_TH + 4
    unpack8(a, WU, B_WR)
    a(f"""v_pk_add_f32 {v2(S1)}, {v2(WU)}, {v2(WU+2)}
    v_pk_add_f32 {v2(S2)}, {v2(WU+4)}, {v2(WU+6)}
    v_pk_add_f32 {v2(S1)}, {v2(S1)}, {v2(S2)}
    v_add_f32 v{S1}, v{S1}, v{S1+1}
    v_mov_b32 v{S2}, 0
    v_mov_b32 v{S3}, 0""")
    reduce3(a, S1, S2, S3, T0, 58, 39, 39)
    unpack8(a, XU, B_XR)
    for k in (B_S1, B_S1+1, B_S2, B_S2+1, B_S3, B_S3+1): a(f"v_mov_b32 v{k}, 0")

def anyones(a, regs_, t):
    regs_ = list(regs_)
    a(f"v_max_u32 v{t}, v{regs_[0]}, v{regs_[1]}")
    rest = regs_[2:]
    while len(rest) >= 2:
        a(f"v_max3_u32 v{t}, v{t}, v{rest[0]}, v{rest[1]}"); rest = rest[2:]
    if rest: a(f"v_max_u32 v{t}, v{t}, v{rest[0]}")
    a(f"v_cmp_eq_u32 vcc, -1, v{t}")

def wave_sum(a, v, sd):
    for k in (8, 4, 2, 1):
        a(f"v_add_u32_dpp v{v}, v{v}, v{v} row_ror:{k} row_mask:0xf bank_mask:0xf")
    for i in range(4): a(f"v_readlane_b32 s{sd+i}, v{v}, {16*i}")
    a(f"s_add_u32 s{sd}, s{sd}, s{sd+1}\ns_add_u32 s{sd+2}, s{sd+2}, s{sd+3}\ns_add_u32 s{sd}, s{sd}, s{sd+2}")

def publish_row(a):
    a(f"""s_lshl_b32 s34, s96, 11
    s_add_u32 s34, s34, {WS_ROW}
    v_mov_b32 v{T0}, 0
    v_mov_b32 v{T1}, 0
    v_writelane_b32 v{C_LN}, 0, 56
    v_writelane_b32 v{C_OUT}, 0, 56
    s_mov_b32 exec_hi, 0x01ffffff
    v_add3_u32 v{T0}, v{C_LN}, v{C_LN+1}, v{C_LN+2}
    v_add3_u32 v{T1}, v{C_OUT}, v{C_OUT+1}, v{C_OUT+2}
    v_add_u32 v{T0}, v{T0}, v{C_LN+3}
    v_add_u32 v{T1}, v{T1}, v{C_OUT+3}
    s_mov_b32 exec_hi, -1""")
    wave_sum(a, T0, 36)
    a(f"s_sub_u32 s35, s98, s36\nv_writelane_b32 v{C_LN}, s35, 56")
    wave_sum(a, T1, 36)
    a(f"""s_sub_u32 s35, s98, s36
    v_writelane_b32 v{C_OUT}, s35, 56
    s_mov_b32 exec_hi, 0x01ffffff
    buffer_store_dwordx4 {v4(C_LN)}, v{VL}, s[12:15], s34 offen {SC}
    buffer_store_dwordx4 {v4(C_OUT)}, v{VL}, s[12:15], s34 offen offset:1024 {SC}
    s_mov_b32 exec_hi, -1""")

def fetch_row_issue(a, dst):
    a(f"""v_readlane_b32 s34, v{C_K}, s20
    s_andn2_b32 s34, 0x7ff, s34
    s_lshl_b32 s34, s34, 11
    s_add_u32 s34, s34, s33
    s_mov_b32 exec_hi, 0x01ffffff
    buffer_load_dwordx4 {v4(dst)}, v{VL}, s[12:15], s34 offen {SC}
    s_mov_b32 exec_hi, -1""")

def fetch_row_finish(a, dst, ldsaddr):
    _lbl[0] += 1
    L = f"Lrow{_lbl[0]}"
    a(f"""s_mul_i32 s29, s20, {PX}
    s_add_u32 s29, s29, {LXS}
    v_add_u32 v{ldsaddr}, s29, v{VL}
    s_mov_b32 s57, {SPIN}
    {L}:
    v_mov_b32 v{T0}, 0
    s_mov_b32 exec_hi, 0x01ffffff
    s_waitcnt vmcnt(0)
    ds_write_b128 v{ldsaddr}, {v4(dst)}
    v_add3_u32 v{T0}, v{dst}, v{dst+1}, v{dst+2}
    v_add_u32 v{T0}, v{T0}, v{dst+3}
    s_mov_b32 exec_hi, -1""")
    wave_sum(a, T0, 36)
    a(f"""s_cmp_eq_u32 s36, s98
    s_cbranch_scc1 {L}d
    s_mov_b32 exec_hi, 0x01ffffff
    s_waitcnt lgkmcnt(0)
    buffer_load_dwordx4 {v4(dst)}, v{VL}, s[12:15], s34 offen {SC}
    s_mov_b32 exec_hi, -1
    s_sub_u32 s57, s57, 1
    s_cbranch_scc0 {L}""")
    timeout_note(a, _lbl[0])
    a(f"{L}d:")

def gu_dma(a):
    a(f"""s_cmp_ge_u32 s2, 224
    s_cbranch_scc1 Lngu
    s_cmp_eq_u32 s20, 7
    s_cbranch_scc1 Lngu""")
    srd(a, 16, 42, 448*3584)
    a(f"""v_mul_u32_u24 v{T1}, 3584, v0
    s_and_b32 s50, s2, 7
    s_mul_i32 s50, s50, 28
    s_lshr_b32 s51, s2, 3
    s_add_u32 s50, s50, s51
    s_lshl_b32 s26, s50, 4
    s_lshl_b32 s24, s20, 10
    s_add_u32 s24, s24, {LWT}
    s_mov_b32 m0, s24
    s_add_u32 s24, s24, 8192
    buffer_load_dwordx4 v{T1}, s[16:19], s26 offen lds
    s_mov_b32 s16, s44
    s_and_b32 s17, s45, 0xffff
    s_mov_b32 m0, s24
    s_nop 0
    buffer_load_dwordx4 v{T1}, s[16:19], s26 offen lds
    Lngu:""")

def wd_dma(a, j0, j1, L):
    if j0 == j1: return
    a(f"""s_cmp_lt_u32 s2, 224
    s_cbranch_scc1 {L}
    s_and_b32 s50, s2, 7
    s_cmp_eq_u32 s50, 7
    s_cbranch_scc1 {L}
    s_lshl_b32 s50, s50, 7
    s_bfe_u32 s51, s2, 0x20003
    s_lshl_b32 s51, s51, 5
    s_add_u32 s51, s51, s50""")
    srd(a, 16, 46, 1792*896)
    a(f"""v_lshrrev_b32 v{T1}, 1, v{LANE}
    v_mul_u32_u24 v{T1}, 896, v{T1}
    v_and_b32 v{T2}, 1, v{LANE}
    v_lshl_add_u32 v{T1}, v{T2}, 4, v{T1}
    s_mul_i32 s23, s20, {224*896}
    s_add_u32 s23, s23, s51
    s_add_u32 s23, s23, {j0*32*896}
    s_mul_i32 s25, s20, 7168
    s_add_u32 s25, s25, {LWT + j0*1024}""")
    for j in range(j0, j1):
        a(f"s_mov_b32 m0, s25")
        a(f"s_add_u32 s25, s25, 1024")
        a(f"buffer_load_dwordx4 v{T1}, s[16:19], s23 offen lds")
        a(f"s_add_u32 s23, s23, {32*896}")
    a(f"{L}:")

def b_main(a):
    R, AF, ACC, XU, WU, AD, TH = B_R, B_AF, B_ACC, B_XU, B_WU, B_AD, B_TH
    S1, S2, S3 = B_S1, B_S2, B_S3
    if OPT["sl_u0"]: a(f"s_sleep {OPT['sl_u0']}")
    def uld():
        for ks in range(2):
            for i in range(4):
                a(f"buffer_load_dwordx4 {v4(R+16*ks+4*i)}, v{B_VU}, s[12:15], s{28+2*ks+(i>>1)} offen offset:{2048*(i&1)} {SC}")
    a(f"s_mov_b32 s57, {SPIN}")
    uld()
    a("s_waitcnt vmcnt(8)")
    pro2(a)
    a("s_branch Lupw\nLupoll:")
    uld()
    a("Lupw:")
    for ks in range(2):
        a(f"s_waitcnt vmcnt({4-4*ks})")
        b = R + 16*ks
        for i in range(8):
            if ks == 0 and i == 0: a(f"v_add_u32 v{T0}, v{b}, v{b+1}")
            else: a(f"v_add3_u32 v{T0}, v{T0}, v{b+2*i}, v{b+2*i+1}")
        for i in range(4):
            for j in range(i+1, 4):
                a(f"v_swap_b32 v{b+4*i+j}, v{b+4*j+i}")
        for j in range(4):
            c = "0" if ks == 0 else v4(ACC+4*j)
            a(f"v_mfma_f32_16x16x32_f16 {v4(ACC+4*j)}, {v4(AF+4*ks)}, {v4(b+4*j)}, {c}")
            if ks == 1: a(f"v_add_u32_dpp v{T0}, v{T0}, v{T0} row_ror:{8 >> j} row_mask:0xf bank_mask:0xf")
    a(f"""v_cmp_ne_u32 vcc, s99, v{T0}
    s_cmp_eq_u64 vcc, 0
    s_cbranch_scc1 Lupolld
    s_sub_u32 s57, s57, 1
    s_cbranch_scc0 Lupoll""")
    timeout_note(a, 9)
    a("Lupolld:")
    stamp(a, 6)
    if OPT["stamps"] == 3: a(f"s_sub_u32 s{64+2*11}, {SPIN+1}, s57")
    for j in range(4):
        if j < 2: a(f"s_mov_b64 exec, s[{60+2*j}:{61+2*j}]")
        for r in range(4):
            a(f"ds_write_b32 v{AD+j}, v{ACC+4*j+r} offset:{LY + r*PY*4}")
    a("s_mov_b64 exec, -1")
    gu_dma(a)
    wd_dma(a, 0, OPT['wdsplit'], 'Lnwd0')
    a("""s_mov_b32 exec_hi, 0x00ffffff
    s_waitcnt lgkmcnt(0)
    s_barrier""")
    H = R
    a(f"ds_read_b128 {v4(H)}, v{B_VY} offset:{LY}\nds_read_b128 {v4(H+4)}, v{B_VY} offset:{LY+16}")
    for hf in range(2):
        a(f"s_waitcnt lgkmcnt({1-hf})")
        for p in range(2):
            x = 4*hf + 2*p
            a(f"v_pk_add_f32 {v2(H+x)}, {v2(H+x)}, {v2(XU+x)}")
        for p in range(2):
            x = 4*hf + 2*p
            a(f"v_pk_add_f32 {v2(S1)}, {v2(S1)}, {v2(H+x)}")
            a(f"v_pk_fma_f32 {v2(S2)}, {v2(H+x)}, {v2(H+x)}, {v2(S2)}")
            a(f"v_pk_fma_f32 {v2(S3)}, {v2(H+x)}, {v2(WU+x)}, {v2(S3)}")
    a(f"""s_mov_b32 exec_hi, -1
    v_add_f32 v{S1}, v{S1}, v{S1+1}
    v_add_f32 v{S2}, v{S2}, v{S2+1}
    v_add_f32 v{S3}, v{S3}, v{S3+1}""")
    reduce3(a, S1, S2, S3, T0, 37, 38, 39)
    M, V, SD, RS, C0, KEY = TH, TH+1, TH+2, TH+4, TH+6, C_KEY
    a(f"""v_mov_b32 v{V}, {fl(1.0/448)}
    v_mul_f32 v{M}, s37, v{V}
    v_mul_f32 v{V}, s38, v{V}
    v_mov_b32 v{KEY}, s39
    v_fma_f32 v{V}, -v{M}, v{M}, v{V}
    v_fma_f32 v{KEY}, -v{M}, s58, v{KEY}
    v_max_f32 v{V}, 0, v{V}""")
    sd_chain(a, V, SD)
    a(f"""v_rcp_f32 v{RS}, v{SD}
    s_lshl_b32 s34, s20, 2
    v_mov_b32 v{T2}, s34
    v_mul_f32 v{KEY}, v{KEY}, v{RS}
    v_cvt_pk_bf16_f32 v{KEY}, v{KEY}, v{KEY}
    v_mul_f32 v{C0}, -v{M}, v{RS}
    v_ashrrev_i32 v{T0}, 31, v{KEY}
    v_or_b32 v{T0}, 0x80000000, v{T0}
    v_xor_b32 v{KEY}, v{KEY}, v{T0}
    v_and_b32 v{KEY}, 0xffff0000, v{KEY}
    v_or_b32 v{KEY}, s32, v{KEY}
    ds_write_b32 v{T2}, v{KEY} offset:{LKEY}
    v_mov_b32 v{C_STK}, 0xffff
    v_lshlrev_b32 v{T1}, 2, v{LANE}
    v_mov_b32 v{T2}, {LKEY}
    s_waitcnt lgkmcnt(0)
    s_barrier
    s_cmp_lg_u32 s20, 0
    s_cbranch_scc1 Lnokey
    s_mov_b64 exec, 0xff
    ds_read_b32 v{T0}, v{T1} offset:{LKEY}
    s_waitcnt lgkmcnt(0)
    v_bfi_b32 v{T0}, v{C_STK}, s59, v{T0}
    buffer_store_dword v{T0}, v{T1}, s[12:15], s27 offen {SC}
    s_mov_b64 exec, -1
    Lnokey:
    ds_read_b128 {v4(ACC)}, v{T2}
    ds_read_b128 {v4(ACC+4)}, v{T2} offset:16""")
    stamp(a, 7)
    for p in range(4):
        a(f"v_pk_fma_f32 {v2(XU+2*p)}, {v2(H+2*p)}, {v2(RS)}, {v2(C0)} op_sel_hi:[1,0,0]")
    for p in range(4):
        a(f"v_pk_add_f32 {v2(H+2*p)}, {v2(H+2*p)}, {v2(XU+2*p)}")
    for p in range(4):
        a(f"v_cvt_pk_bf16_f32 v{C_LN+p}, v{XU+2*p}, v{XU+2*p+1}")
        a(f"v_cvt_pk_bf16_f32 v{C_OUT+p}, v{H+2*p}, v{H+2*p+1}")
    a(f"""s_waitcnt lgkmcnt(0)
    v_max3_u32 v{T0}, v{ACC}, v{ACC+1}, v{ACC+2}
    v_max3_u32 v{T1}, v{ACC+3}, v{ACC+4}, v{ACC+5}
    v_max3_u32 v{T0}, v{T0}, v{ACC+6}, v{ACC+7}
    v_max_u32 v{T0}, v{T0}, v{T1}
    v_cmp_eq_u32 s[60:61], v{T0}, v{KEY}
    s_cmp_eq_u64 s[60:61], 0
    s_cbranch_scc1 Lnoeager""")
    publish_row(a)
    a("Lnoeager:")

QP = {1: "quad_perm:[1,0,3,2]", 2: "quad_perm:[2,3,0,1]", 3: "quad_perm:[3,2,1,0]", 7: "row_half_mirror"}
class Net:
    def __init__(s, a, x, t, fill): s.a = a; s.x = x; s.t = t; s.fill = list(fill)
    def f(s, n=1):
        for _ in range(n):
            if s.fill: s.a(s.fill.pop(0))
    def ce(s, m):
        a, x, t = s.a, s.x, s.t
        s.f()
        if m == 4:
            a(f"v_max_u32_dpp v{t}, v{x}, v{x} row_shl:4 row_mask:0xf bank_mask:0x5")
            a(f"v_min_u32_dpp v{t}, v{x}, v{x} row_shr:4 row_mask:0xf bank_mask:0xa")
            s.x, s.t = t, x
        else:
            a(f"v_mov_b32_dpp v{t}, v{x} {QP[m]} row_mask:0xf bank_mask:0xf")
            a(f"v_med3_u32 v{x}, v{x}, v{t}, v{C_L[1 << (m.bit_length()-1)]}")
    def merge(s, last_clean=True):
        a = s.a
        s.f()
        a(f"v_max_u32_dpp v{s.x}, v{s.x}, v{s.x} row_mirror row_mask:0xf bank_mask:0xf")
        for m in (4, 2, 1): s.ce(m)
        for sw in ("v_permlane16_swap_b32", "v_permlane32_swap_b32"):
            a(f"v_mov_b32 v{s.t}, v{s.x}")
            s.f()
            a(f"{sw} v{s.x}, v{s.t}")
            s.f()
            a(f"v_max_u32_dpp v{s.x}, v{s.t}, v{s.x} row_half_mirror row_mask:0xf bank_mask:0xf")
            if last_clean or "16" in sw:
                for m in (4, 2, 1): s.ce(m)
        s.f(99)

def fast_select(a):
    K, X, Y, P, Q = C_K, C_X, C_Y, C_TMP, C_TMP + 1
    a(f"""v_max_u32 v{P}, v{K}, v{K+1}
    v_max_u32 v{Q}, v{K+2}, v{K+3}
    v_max_u32 v{X}, v{P}, v{Q}""")
    fill = [f"v_min_u32 v{Y}, v{P}, v{Q}", f"v_min_u32 v{P}, v{K}, v{K+1}", f"v_min_u32 v{Q}, v{K+2}, v{K+3}",
            f"v_max3_u32 v{Y}, v{Y}, v{P}, v{Q}"]
    fill += [f"v_max_u32_dpp v{Y}, v{Y}, v{Y} row_ror:{k} row_mask:0xf bank_mask:0xf" for k in (8, 4, 2, 1)]
    fill += [f"v_mov_b32 v{P}, v{Y}", f"v_permlane16_swap_b32 v{Y}, v{P}", f"v_max_u32 v{Y}, v{Y}, v{P}",
             f"v_mov_b32 v{P}, v{Y}", f"v_permlane32_swap_b32 v{Y}, v{P}", f"v_max_u32 v{Y}, v{Y}, v{P}",
             "s_mov_b64 vcc, 0x100"]
    n = Net(a, X, C_TMP + 2, fill)
    for m in (1, 3, 1, 7, 2, 1): n.ce(m)
    n.merge()
    a(f"""s_mov_b64 exec, 0x1ff
    v_cndmask_b32 v{P}, v{n.x}, v{Y}, vcc
    ds_write_b32 v{C_FW}, v{P}""")
    if OPT["rowpf"]:
        m8 = (1 << OPT["rowpf"]) - 1; m32 = m8 * 0x01010101
        a(f"""s_mov_b32 exec_lo, {hex(m32)}
        s_mov_b32 exec_hi, {hex(m32)}
        v_bfi_b32 v{Q}, v{n.x}, 0, v{C_TMP+3}
        v_lshl_add_u32 v{Q}, v{Q}, 11, v{C_PF}
        buffer_load_dword v{JUNK}, v{Q}, s[12:15], s33 offen {SC}""")
    a(f"""s_mov_b64 exec, -1
    s_waitcnt lgkmcnt(0)
    s_barrier
    ds_read_b32 v{X}, v{C_FR}
    ds_read_b32 v{Y}, v{C_FY}
    s_waitcnt lgkmcnt(0)""")
    fill = [f"v_max_u32_dpp v{Y}, v{Y}, v{Y} {QP[m]} row_mask:0xf bank_mask:0xf" for m in (1, 2, 7)]
    n = Net(a, X, C_TMP + 2, fill)
    n.merge(last_clean=False)
    a(f"""v_cmp_gt_u32 vcc, v{Y}, v{n.x}
    s_cmp_eq_u64 vcc, 0
    s_cbranch_scc0 Lfullsel
    v_mov_b32 v{K}, v{n.x}
    Lseldone:""")

def c_select(a):
    K = C_K
    a(f"s_mov_b32 s34, {WS_KEYS}\nv_mov_b32 v{C_TMP+3}, 0x7ff")
    def chk():
        a(f"v_xor_b32 v{T0}, v{K}, v{K+1}")
        a(f"v_xor_b32 v{T1}, v{K+2}, v{K+3}")
        a(f"v_xor_b32 v{T2}, s59, v{K}")
        a(f"v_xor_b32 v{C_X}, s59, v{K+2}")
        a(f"v_or3_b32 v{T0}, v{T0}, v{T1}, v{T2}")
        for i in range(4): a(f"v_bfi_b32 v{K+i}, v{C_STK}, v{C_IX+i}, v{K+i}")
        a(f"v_or_b32 v{T0}, v{T0}, v{C_X}")
        a(f"v_cmp_ne_u16 vcc, 0, v{T0}")
    poll(a, lambda: a(f"buffer_load_dwordx4 {v4(K)}, v{C_KA}, s[12:15], s34 offen {SC}"), chk, pre=OPT["sl_k"])
    stamp(a, 8)
    fast_select(a)
    stamp(a, 9)
    a(f"""v_cmp_eq_u32 vcc, v{K}, v{C_KEY}
    s_and_b64 s[62:63], vcc, s[60:61]
    s_cmp_lg_u64 s[62:63], vcc
    s_cbranch_scc0 Lsel_pub""")
    publish_row(a)
    a("Lsel_pub:")
    fetch_row_issue(a, 84)
    a(f"""s_cmp_eq_u64 vcc, 0
    s_cbranch_scc0 Lsel_done
    s_mov_b32 exec_hi, 0x00ffffff
    buffer_store_dwordx4 {v4(C_OUT)}, v{VL}, s[52:55], s97 offen {['', 'sc1', 'nt', 'sc0 sc1'][OPT['ost']]}
    s_mov_b32 exec_hi, -1
    Lsel_done:""")

def c1(a):
    XR = 84; XF_ = 168; ACC = 52; XU = 60; WF = 88
    a(f"""s_cmp_lg_u32 s20, 0
    s_cbranch_scc1 Lc1_now
    v_lshrrev_b32 v{T0}, 2, v{N}
    v_lshl_add_u32 v{T0}, v{G}, 3, v{T0}
    v_lshlrev_b32 v{T0}, 4, v{T0}
    v_and_b32 v{T1}, 1, v{N}
    v_lshl_add_u32 v{T0}, v{T1}, 3, v{T0}
    v_bfe_u32 v{T1}, v{N}, 1, 1
    v_lshl_add_u32 v{T0}, v{T1}, 13, v{T0}
    v_add_u32 v{T0}, {LWT}, v{T0}""")
    for j in range(14):
        for h in range(2):
            a(f"ds_read_b64_tr_b16 {v2(WF+4*j+2*h)}, v{T0} offset:{(32*j+4*h)*16}")
    a(f"""v_and_b32 v{XU+4}, 7, v{N}
    v_mul_u32_u24 v{XU+4}, {PX}, v{XU+4}
    v_lshl_add_u32 v{XU+4}, v{G}, 4, v{XU+4}
    v_lshlrev_b32 v{XU+5}, 4, v{N}
    v_lshl_add_u32 v{XU+5}, v{G}, 3, v{XU+5}
    s_lshl_b32 s22, s50, 7
    s_add_u32 s22, s22, {WS_ACT}
    Lc1_now:""")
    fetch_row_finish(a, XR, T2)
    a(f"""s_waitcnt lgkmcnt(0)
    s_barrier
    s_cmp_lg_u32 s20, 0
    s_cbranch_scc1 Lc1_epoch""")
    stamp(a, 10)
    for j in range(14):
        a(f"ds_read_b128 {v4(XF_+4*j)}, v{XU+4} offset:{LXS+64*j}")
    for j in range(14):
        a(f"s_waitcnt lgkmcnt({13-j})")
        A = ACC + 4*(j & 1)
        a(f"v_mfma_f32_16x16x32_bf16 {v4(A)}, {v4(WF+4*j)}, {v4(XF_+4*j)}, {'0' if j < 2 else v4(A)}")
    for p in range(2):
        a(f"v_pk_add_f32 {v2(ACC+2*p)}, {v2(ACC+2*p)}, {v2(ACC+4+2*p)}")
    for p in range(2): a(f"v_cvt_pk_bf16_f32 v{ACC+4+p}, v{ACC+2*p}, v{ACC+2*p+1}")
    for p in range(2): a(f"v_mov_b32 v{ACC+6+p}, v{ACC+4+p}")
    for p in range(2): a(f"v_permlane32_swap_b32 v{ACC+4+p}, v{ACC+6+p}")
    for p in range(2):
        a(f"v_lshlrev_b32 v{ACC+2*p}, 16, v{ACC+4+p}")
        a(f"v_and_b32 v{ACC+2*p+1}, 0xffff0000, v{ACC+4+p}")
    for r in range(4): a(f"v_mul_f32 v{XU+r}, {fl(-1.4426950408889634)}, v{ACC+r}")
    for r in range(4): a(f"v_exp_f32 v{XU+r}, v{XU+r}")
    for p in range(2):
        a(f"v_lshlrev_b32 v{XR+2*p}, 16, v{ACC+6+p}")
        a(f"v_and_b32 v{XR+2*p+1}, 0xffff0000, v{ACC+6+p}")
    for r in range(4): a(f"v_add_f32 v{XU+r}, 1.0, v{XU+r}")
    for r in range(4): a(f"v_rcp_f32 v{XU+r}, v{XU+r}")
    for r in range(4): a(f"v_mul_f32 v{ACC+r}, v{ACC+r}, v{XU+r}")
    for p in range(2): a(f"v_cvt_pk_bf16_f32 v{ACC+4+p}, v{ACC+2*p}, v{ACC+2*p+1}")
    for p in range(2):
        a(f"v_lshlrev_b32 v{ACC+2*p}, 16, v{ACC+4+p}")
        a(f"v_and_b32 v{ACC+2*p+1}, 0xffff0000, v{ACC+4+p}")
    for p in range(2): a(f"v_pk_mul_f32 {v2(ACC+2*p)}, {v2(ACC+2*p)}, {v2(XR+2*p)}")
    for p in range(2): a(f"v_cvt_pk_bf16_f32 v{XR+p}, v{ACC+2*p}, v{ACC+2*p+1}")
    for p in range(2): a(f"v_min_u32 v{XR+p}, -2, v{XR+p}")
    a(f"""s_mov_b32 exec_lo, 0x00ff00ff
    s_mov_b32 exec_hi, 0
    buffer_store_dwordx2 {v2(XR)}, v{XU+5}, s[12:15], s22 offen {SC}
    s_branch Lend
    Lc1_epoch:
    s_lshl_b32 s29, s2, 3
    s_add_u32 s29, s29, s20
    s_cmp_lg_u32 s29, 1
    s_cbranch_scc1 Lend
    s_mov_b64 exec, 1
    v_mov_b32 v{T0}, s56
    s_mov_b32 s29, {WS_EPOCH}
    buffer_store_dword v{T0}, v{VL}, s[12:15], s29 offen {SC}
    s_branch Lend""")

def c2(a):
    K = C_K
    OA = 8; OR = 10; SG = 12; VA = 13; VO = 14; VW = 15; WF = 88; AF = 116; ACC = 52; RD = 168
    a(f"""s_mul_i32 s24, s20, 7168
    s_add_u32 s24, s24, {LWT}
    v_lshrrev_b32 v{T0}, 2, v{N}
    v_lshl_add_u32 v{T0}, v{G}, 3, v{T0}
    v_lshlrev_b32 v{T0}, 5, v{T0}
    v_and_b32 v{T1}, 3, v{N}
    v_lshl_add_u32 v{T0}, v{T1}, 3, v{T0}
    v_add_u32 v{VW}, s24, v{T0}""")
    for j in range(7):
        for h in range(2):
            a(f"ds_read_b64_tr_b16 {v2(WF+4*j+2*h)}, v{VW} offset:{(32*j+4*h)*32}")
    a(f"""v_and_b32 v{T1}, 7, v{N}
    v_mul_u32_u24 v{VO}, {PX}, v{T1}
    v_lshl_add_u32 v{VO}, v{G}, 3, v{VO}
    v_add_u32 v{VO}, s51, v{VO}
    v_lshlrev_b32 v{VA}, 4, v{T1}
    v_lshl_add_u32 v{VA}, v{G}, 7, v{VA}
    s_mul_i32 s25, s20, {7*512}
    s_add_u32 s25, s25, {WS_ACT}
    v_and_b32 v{OA}, 0x7ff, v{K}
    v_sub_u32 v{OA}, 2047, v{OA}
    v_mul_u32_u24 v{OA}, 896, v{OA}
    v_lshl_add_u32 v{OA}, v{G}, 3, v{OA}
    v_ashrrev_i32 v{T2}, 31, v{K}
    v_not_b32 v{T2}, v{T2}
    v_or_b32 v{T2}, 0x80000000, v{T2}
    v_xor_b32 v{K+1}, v{K}, v{T2}
    v_and_b32 v{K+1}, 0xffff0000, v{K+1}""")
    sigmoid_mul(a, SG, K+1, "1.0", T2)
    rbf(a, SG, SG)
    a(f"""v_lshlrev_b32 v{T1}, 4, v0
    v_add_u32 v{T1}, {LRED}, v{T1}""")
    def lds():
        for j in range(7):
            a(f"buffer_load_dwordx4 {v4(AF+4*j)}, v{VA}, s[12:15], s25 offen offset:{512*j} {SC}")
    if OPT["c2re"]:
        if OPT["sl_a"]: a(f"s_sleep {OPT['sl_a']}")
        lds()
        fetch_row_finish(a, 84, T2)
        anyones(a, range(AF, AF+28), T0)
        a("s_cmp_eq_u64 vcc, 0\ns_cbranch_scc1 Lactok")
        poll(a, lds, lambda: anyones(a, range(AF, AF+28), T0))
        a("Lactok:")
    else:
        fetch_row_finish(a, 84, T2)
        poll(a, lds, lambda: anyones(a, range(AF, AF+28), T0), pre=OPT["sl_a"])
    stamp(a, 10)
    a("s_waitcnt lgkmcnt(0)")
    for j in range(7):
        A = ACC + 4*(j & 1)
        a(f"v_mfma_f32_16x16x32_bf16 {v4(A)}, {v4(WF+4*j)}, {v4(AF+4*j)}, {'0' if j < 2 else v4(A)}")
    for p in range(2):
        a(f"v_pk_add_f32 {v2(ACC+2*p)}, {v2(ACC+2*p)}, {v2(ACC+4+2*p)}")
    a(f"""ds_write_b128 v{T1}, {v4(ACC)}
    s_waitcnt lgkmcnt(0)
    s_barrier
    s_cmp_lg_u32 s20, 0
    s_cbranch_scc1 Lend
    ds_read_b64 {v2(OR)}, v{VO} offset:{LXS}""")
    for w in range(1, 8):
        a(f"ds_read_b128 {v4(RD+4*w)}, v{T1} offset:{1024*w}")
    a("s_waitcnt lgkmcnt(7)")
    for i in range(2):
        a(f"v_lshlrev_b32 v{RD+2*i}, 16, v{OR+i}")
        a(f"v_and_b32 v{RD+2*i+1}, 0xffff0000, v{OR+i}")
    for w in range(1, 8):
        a(f"s_waitcnt lgkmcnt({7-w})")
        for p in range(2):
            a(f"v_pk_add_f32 {v2(ACC+2*p)}, {v2(ACC+2*p)}, {v2(RD+4*w+2*p)}")
    for rnd in range(2):
        for p in range(2): a(f"v_cvt_pk_bf16_f32 v{ACC+4+p}, v{ACC+2*p}, v{ACC+2*p+1}")
        for p in range(2):
            a(f"v_lshlrev_b32 v{ACC+2*p}, 16, v{ACC+4+p}")
            a(f"v_and_b32 v{ACC+2*p+1}, 0xffff0000, v{ACC+4+p}")
        for p in range(2):
            if rnd == 0: a(f"v_pk_mul_f32 {v2(ACC+2*p)}, {v2(ACC+2*p)}, {v2(SG)} op_sel_hi:[1,0]")
            else: a(f"v_pk_add_f32 {v2(ACC+2*p)}, {v2(ACC+2*p)}, {v2(RD+2*p)}")
    for p in range(2): a(f"v_cvt_pk_bf16_f32 v{OR+p}, v{ACC+2*p}, v{ACC+2*p+1}")
    a(f"""s_mov_b32 exec_lo, 0x00ff00ff
    s_mov_b32 exec_hi, 0x00ff00ff
    buffer_store_dwordx2 {v2(OR)}, v{OA}, s[52:55], s51 offen {['', 'sc1', 'nt', 'sc0 sc1'][OPT['ost']]}""")

def clears(a):
    a(f"""v_mov_b32 v{JUNK+2}, -1
    v_lshlrev_b32 v{T1}, 2, v{LANE}
    s_lshl_b32 s24, s2, 7
    s_add_u32 s24, s24, {WS_ACT}
    s_mov_b32 exec_hi, 0
    buffer_store_dword v{JUNK+2}, v{T1}, s[12:15], s24 offen {SC}
    s_mov_b32 exec_lo, 1
    s_lshl_b32 s23, s96, 11
    s_add_u32 s23, s23, {WS_ROW}
    buffer_load_dword v{JUNK}, v{VL}, s[52:55], s97 offen
    buffer_load_dword v{JUNK+1}, v{VL}, s[12:15], s23 offen
    s_mov_b64 exec, -1""")

def prefetch(a):
    a(f"""s_and_b32 s24, s2, 7
    s_lshr_b32 s25, s2, 3
    s_mul_i32 s26, s25, {14*3584}
    s_mov_b32 s18, {448*3584}
    s_cmp_eq_u32 s20, 3
    s_cbranch_scc1 Lpf_d
    v_lshrrev_b32 v{T0}, 2, v{LANE}
    v_mul_u32_u24 v{T0}, 3584, v{T0}
    v_and_b32 v{T1}, 3, v{LANE}
    v_lshl_add_u32 v{T0}, v{T1}, 7, v{T0}
    s_mul_i32 s24, s24, 448
    s_cmp_eq_u32 s20, 1
    s_cselect_b32 s16, s42, s44
    s_cselect_b32 s17, s43, s45
    s_branch Lpf_go
    Lpf_d:
    v_mul_u32_u24 v{T0}, 896, v{LANE}
    s_lshl_b32 s24, s24, 7
    s_mov_b32 s16, s46
    s_mov_b32 s17, s47
    Lpf_go:
    s_and_b32 s17, s17, 0xffff
    s_add_u32 s26, s26, s24
    s_mov_b32 exec_hi, 0x00ffffff
    buffer_load_dword v{JUNK}, v{T0}, s[16:19], s26 offen
    s_mov_b32 exec_hi, -1""")

def kernel(a):
    if OPT["stamps"]:
        for k in range(NST): a(f"s_mov_b32 s{64+2*k}, 0")
    stamp(a, 0)
    a(f"""s_load_dwordx2 s[8:9], s[0:1], 0
    s_cmp_ge_u32 s2, 256
    s_cbranch_scc1 Lexit
    v_lshrrev_b32 v{T0}, 6, v0
    v_and_b32 v{LANE}, 63, v0
    v_readfirstlane_b32 s20, v{T0}
    v_lshlrev_b32 v{VL}, 4, v{LANE}
    s_and_b32 s21, s2, 31
    s_lshr_b32 s22, s2, 5
    s_mov_b32 s10, {XB}
    s_mov_b32 s11, 0x00020000
    s_cmp_lt_u32 s20, 4
    s_cbranch_scc1 Lloader
    s_getpc_b64 s[30:31]
    Lpc:
    v_and_b32 v{T2}, 255, v0
    v_lshlrev_b32 v{JUNK}, 7, v{T2}
    v_mov_b32 v{JUNK+1}, s31
    v_add_co_u32 v{JUNK}, vcc, s30, v{JUNK}
    v_addc_co_u32 v{JUNK+1}, vcc, 0, v{JUNK+1}, vcc
    v_cmp_gt_u32 vcc, (Lexit-Lpc)/128+1, v{T2}
    s_and_saveexec_b64 s[30:31], vcc
    s_cbranch_execz Lcompute
    global_load_dword v{JUNK+2}, v[{JUNK}:{JUNK+1}], off
    s_branch Lcompute
    Lloader:
    v_cmp_lt_u32 vcc, 29, v{LANE}
    s_lshl_b32 s23, s20, 9
    s_add_u32 s23, s23, s21
    s_mul_i32 s23, s23, 896
    s_mul_i32 s24, s20, {16*PH}
    v_add_u32 v{T1}, {32*896 - 480}, v{VL}
    s_mov_b32 s25, {'s22' if OPT['rot'] else '0'}
    v_cndmask_b32 v{T1}, v{VL}, v{T1}, vcc
    s_mov_b32 exec_lo, 0xcfffffff
    s_mov_b32 exec_hi, 0x03ffffff
    s_mov_b32 s28, 0
    s_waitcnt lgkmcnt(0)""")
    stamp(a, 3, True)
    a(f"""Ldma:
    s_mul_i32 s26, s25, {2*PH}
    s_mul_i32 s27, s25, {64*896}
    s_add_u32 s26, s26, s24
    s_add_u32 s27, s27, s23
    s_mov_b32 m0, s26
    s_add_u32 s25, s25, 1
    buffer_load_dwordx4 v{T1}, s[8:11], s27 offen lds
    s_and_b32 s25, s25, 7
    s_add_u32 s28, s28, 1
    s_cmp_lg_u32 s28, 8
    s_cbranch_scc1 Ldma1
    s_add_u32 s24, s24, {LXH}
    s_add_u32 s23, s23, 448
    Ldma1:
    s_cmp_lt_u32 s28, 16
    s_cbranch_scc1 Ldma
""")
    def ltail():
        a(f"""Lltail:
        s_mov_b64 exec, -1
        s_load_dwordx2 s[6:7], s[0:1], 96
        s_load_dwordx8 s[40:47], s[0:1], 48
        s_load_dwordx2 s[48:49], s[0:1], 80
        v_and_b32 v{N}, 15, v0
        v_bfe_u32 v{G}, v0, 4, 2""")
        stamp(a, 6, True)
        early = OPT["e2a"]
        if early:
            a("s_waitcnt vmcnt(8)")
            stamp(a, 1)
            a("s_barrier")
        a("s_waitcnt lgkmcnt(0)")
        b_setup(a)
        b_loads(a)
        a("s_cmp_lg_u32 s20, 0\ns_cbranch_scc1 Lw123a")
        clears(a)
        if not early:
            a("s_waitcnt vmcnt(14)")
            stamp(a, 1)
            a("s_barrier")
        a("s_waitcnt vmcnt(6)")
        stamp(a, 2)
        a(f"""s_barrier
        v_mov_b32 v{T0}, {LTAG}
        s_waitcnt vmcnt(5)
        ds_write_b32 v{T0}, v{V_EP}
        s_branch Lprol
        Lw123a:""")
        prefetch(a)
        if not early:
            a(f"s_waitcnt vmcnt(12)")
            stamp(a, 1)
            a("s_barrier")
        a(f"s_waitcnt vmcnt(4)")
        stamp(a, 2)
        a(f"s_barrier")
        a("Lprol:")
        if OPT["w64l"]:
            a("s_mov_b32 s3, s20")
            w64(a, AC1)
            for i in range(8): a(f"v_xor_b32 v{AC1+16+i}, 0x80008000, v{AC1+8+i}")
            a(f"s_lshl_b32 s26, s3, 12\ns_add_u32 s26, s26, {LWT}\nv_add_u32 v{T1}, s26, v{VL}")
            for i in range(6): a(f"ds_write_b128 v{T1}, {v4(AC1+4*i)} offset:{[0, 1024, 2048, 3072, 16384, 17408][i]}")
        if not OPT["prolate"]: pro(a)
        stamp(a, 3)
        a("s_waitcnt vmcnt(3) lgkmcnt(0)\ns_barrier")
        a("s_branch Lpro1" if OPT["prolate"] else "s_branch Lpro2")
    if OPT["layout"]: a("s_branch Lltail")
    else: ltail()
    a(f"""Lcompute:
    s_mov_b64 exec, -1
    s_load_dwordx2 s[6:7], s[0:1], 96
    s_load_dwordx8 s[40:47], s[0:1], 48
    s_load_dwordx2 s[48:49], s[0:1], 80
    v_and_b32 v{N}, 15, v0
    v_bfe_u32 v{G}, v0, 4, 2
    s_and_b32 s3, s20, 3""")
    stamp(a, 9, True)
    a_pre(a)
    stamp(a, 11, True)
    a("s_waitcnt lgkmcnt(0)")
    b_setup(a)
    stamp(a, 1)
    a("s_barrier")
    stamp(a, 2)
    a_main(a)
    stamp(a, 4)
    a(f"buffer_load_dwordx4 {v4(B_WR)}, v{VL}, s[16:19], 0 offen")
    a(f"buffer_load_dwordx4 {v4(B_XR)}, v{VL}, s[8:11], s97 offen")
    a("Lpro1:")
    pro(a)
    a("Lpro2:")
    a(f"""v_readfirstlane_b32 s56, v{V_EP}
    s_add_u32 s56, s56, 1
    s_mul_i32 s98, s56, {HASH}
    s_lshl_b32 s99, s98, 4
    s_and_b32 s59, s56, 0xffff
    s_barrier""")
    stamp(a, 5)
    b_main(a)
    wd_dma(a, OPT['wdsplit'], 7, 'Lnwd1')
    c_select(a)
    a("s_cmp_ge_u32 s2, 224\ns_cbranch_scc1 Lc2")
    c1(a)
    a("Lc2:\ns_and_b32 s50, s2, 7\ns_cmp_eq_u32 s50, 7\ns_cbranch_scc1 Lend")
    c2(a)
    a("Lend:")
    dump_stamps(a)
    if OPT["layout"]:
        a("s_endpgm")
        ltail()
    a("Lexit:\ns_endpgm\nLfullsel:")
    select8(a, C_K, C_TMP, C_L, C_SW, C_SR)
    a("s_branch Lseldone")

NAME = "sequential_preLN__spectral_fnet__moe_arch_mod__prompt_kernel"
def build():
    a = Asm()
    kernel(a)
    body = a.finish()
    if OPT["align"]: body = align_pass(body)
    return gen.HDR + f"""; @launch grid=(256,1,1) block=(512,1,1) lds={LDS_TOTAL}
.amdgcn_target "amdgcn-amd-amdhsa--gfx950"
.text
.globl {NAME}
.p2align 8
.type {NAME},@function
{NAME}:
""" + body + f""".section .rodata,"a"
.p2align 6
.amdhsa_kernel {NAME}
  .amdhsa_next_free_vgpr {NVGPR}
  .amdhsa_next_free_sgpr 102
  .amdhsa_accum_offset {NVGPR}
  .amdhsa_group_segment_fixed_size 0
  .amdhsa_kernarg_size 104
  .amdhsa_user_sgpr_count 2
  .amdhsa_user_sgpr_kernarg_segment_ptr 1
  .amdhsa_system_sgpr_workgroup_id_x 1
.end_amdhsa_kernel
"""

if __name__ == "__main__":
    for x in list(sys.argv[1:]):
        if x.startswith("--"):
            k, _, v = x[2:].partition("=")
            assert k in OPT, k
            OPT[k] = int(v) if v else 1
            sys.argv.remove(x)
    open(sys.argv[1], "w").write(build())
```

```python
import sys
from asmlib import Asm, fl, align_pass
import gen
from gen import srd, v4, v2, rbf, sd_chain, reduce3, unpack8, lim_regs, select8, sigmoid_mul

WS_KEYS = 0x200000
WS_EPOCH = 0x208000
WS_ACT = 0x210000
WS_STAMP = 0x3c0000
WS_ROW = 0x400000
WS_SIZE = 0x800000
XB = 1835008
PH = 480; PX = 928; PF = 136; PY = 452
LXH = 64 * PH
LW = 2 * LXH; LCS = LW + 28 * 1024; LTAG = LCS + 256; LF = LCS + 272; LWT = LF + 64 * PF; LDS_TOTAL = LWT + 57344
LY = 0
LSEL = 16384; LSE2 = 16640; LKEY = 17152; LXS = 17408; LRED = 24832
SPIN = 4000000
SC = "sc1"
HASH = "0x9e3779b1"
OPT = dict(stamps=0, cyc=0, align=0, sl_u0=14, sl_k=10, sl_a=0, rowpf=2, barj=4, dbgto=0, ost=2, c2re=1, rot=1, pf=3, wdsplit=0, w64l=0, layout=1, e2a=1, prolate=1, amp=-1, ampw=0, ampb=224, prio=1, wdh=1)
NST = 14

def stamp(a, k, early=False):
    if OPT["stamps"] == 5:
        if early != 5 and k not in (0, 3, 4, NST - 1): return
    elif OPT["stamps"] == 4:
        if early == 5 or (not early and k not in (0, 1, 2, NST - 1)): return
    elif early: return
    if OPT["stamps"] == 2 and k not in (0, NST - 1): return
    if OPT["stamps"]: a(f"{'s_memtime' if OPT['cyc'] else 's_memrealtime'} s[{64+2*k}:{65+2*k}]")
def dump_stamps(a):
    if OPT["amp"] >= 0:
        k = OPT["amp"]
        a(f"s_memrealtime s[{64+2*(NST-2)}:{65+2*(NST-2)}]")
        a(f"""s_cmp_lg_u32 s2, {OPT['ampb']}
        s_cbranch_scc1 Lampd
        s_cmp_lg_u32 s20, {OPT['ampw']}
        s_cbranch_scc1 Lampd
        s_waitcnt lgkmcnt(0)
        s_sub_u32 s60, s{64+2*k}, s64
        s_mul_i32 s60, s60, 9
        s_add_u32 s60, s60, s{64+2*(NST-2)}
        Lamp:
        s_memrealtime s[62:63]
        s_waitcnt lgkmcnt(0)
        s_sub_u32 s61, s62, s60
        s_cmp_lt_i32 s61, 0
        s_cbranch_scc1 Lamp
        Lampd:""")
        return
    if not OPT["stamps"]: return
    stamp(a, NST - 2)
    a("s_waitcnt vmcnt(0)")
    stamp(a, NST - 1)
    a("s_mov_b64 exec, 1\ns_waitcnt lgkmcnt(0)")
    a(f"s_lshl_b32 s60, s2, 3\ns_add_u32 s60, s60, s20\ns_lshl_b32 s60, s60, 6\ns_add_u32 s60, s60, {WS_STAMP}\nv_mov_b32 v1, 0")
    for k in range(NST):
        a(f"v_mov_b32 v2, s{64+2*k}\nbuffer_store_dword v2, v1, s[12:15], s60 offen offset:{4*k}")

_lbl = [0]
def timeout_note(a, ident):
    if not OPT["dbgto"]: return
    a(f"""s_lshl_b32 s100, s2, 8
    s_add_u32 s100, s100, s20
    s_add_u32 s100, s100, {ident << 24}
    v_mov_b32 v{JUNK+3}, s100
    s_mov_b32 s100, {0x3f0000 + 4*ident}
    s_mov_b64 exec, 1
    buffer_store_dword v{JUNK+3}, v{VL}, s[12:15], s100 offen
    v_mov_b32 v{JUNK+3}, s36
    buffer_store_dword v{JUNK+3}, v{VL}, s[12:15], s100 offen offset:64
    v_mov_b32 v{JUNK+3}, s98
    buffer_store_dword v{JUNK+3}, v{VL}, s[12:15], s100 offen offset:128
    v_mov_b32 v{JUNK+3}, s34
    buffer_store_dword v{JUNK+3}, v{VL}, s[12:15], s100 offen offset:192
    s_mov_b64 exec, -1""")
def poll(a, loads, check, pre=0):
    _lbl[0] += 1
    L = f"Lpoll{_lbl[0]}"
    if pre: a(f"s_sleep {pre}")
    a(f"s_mov_b32 s57, {SPIN}\n{L}:")
    loads()
    a("s_waitcnt vmcnt(0)")
    check()
    a(f"""s_cmp_eq_u64 vcc, 0
    s_cbranch_scc1 {L}d
    s_sub_u32 s57, s57, 1
    s_cbranch_scc0 {L}""")
    timeout_note(a, _lbl[0])
    a(f"{L}d:")

class LdsQ:
    def __init__(s, a): s.a = a; s.q = []
    def read(s, text, b, n=4):
        s.a(text); s.q.append(set(range(b, b + n)))
    def need(s, b, n=4):
        rs = set(range(b, b + n)); last = -1
        for i, d in enumerate(s.q):
            if d & rs: last = i
        if last >= 0:
            s.a(f"s_waitcnt lgkmcnt({len(s.q) - 1 - last})")
            s.q = s.q[last+1:]

LANE, N, G, T0, T1, T2, VL = 1, 2, 3, 4, 5, 6, 7
B_XR = 8; B_WR = 12; V_EP = 16; VFW = 17; VFR = 18; VXR = 19; VCS = 20; VUS = 21; ST = 22
WC = 28; WSN = 36; WNS = 44
AC1 = 52; AC2 = 68; GR = 84; XF = 88; WD = 116
JUNK = 228; SG2 = 232; NVGPR = 236
B_AF = 28; B_AD = 36; B_VY = 40; B_VU = 41; C_L = {1: 42, 2: 43, 4: 44}; C_SW = 45; C_SR = 46; C_KA = 47
C_FW = 48; C_FR = 49; C_FY = 50; C_PF = 51
B_R = 116; B_ACC = 52; B_XU = 68; B_WU = 76; B_S1, B_S2, B_S3 = 88, 90, 92; B_TH = 96; P_TH = 104; P_EPS = 112; P_BASE = 113
C_K = 148; C_TMP = 152; C_KEY = 156; C_X = 157; C_Y = 158; C_OUT = 160; C_LN = 164; C_IX = 224; C_STK = 159

def trig_block(a, n, k0, eps, base, th, want_sin):
    for i in range(n):
        k = k0 + i
        if k == 0: a(f"v_mov_b32 v{th+i}, v{base}")
        else: a(f"v_fmamk_f32 v{th+i}, v{eps}, {fl(float(k))}, v{base}")
    for i in range(n):
        if want_sin: a(f"v_sin_f32 v{th+n+i}, v{th+i}")
        a(f"v_cos_f32 v{th+i}, v{th+i}")

def w64(a, D):
    EPS, BASE, TH, S = ST + 4, ST + 5, XF, ST
    a(f"""v_lshrrev_b32 v{S}, 1, v{N}
    s_lshl_b32 s25, s3, 3
    v_add_u32 v{S}, s25, v{S}
    v_sub_u32 v{S+1}, 64, v{S}
    v_cmp_eq_u32 vcc, 0, v{S}
    v_and_b32 v{S+2}, 1, v{N}
    v_cndmask_b32 v{S+1}, v{S+1}, 32, vcc
    v_cmp_eq_u32 vcc, 0, v{S+2}
    v_lshlrev_b32 v{S+2}, 3, v{G}
    v_cndmask_b32 v{S+1}, v{S+1}, v{S}, vcc
    v_cvt_f32_u32 v{S+2}, v{S+2}
    v_cvt_f32_u32 v{S+1}, v{S+1}
    v_mul_f32 v{EPS}, {fl(1.0/64)}, v{S+1}
    v_mul_f32 v{BASE}, v{S+2}, v{EPS}""")
    for ks in range(2):
        for h in range(2):
            trig_block(a, 4, 32*ks + 4*h, EPS, BASE, TH, True)
            for i in range(2):
                a(f"v_cvt_pk_f16_f32 v{D+4*ks+2*h+i}, v{TH+2*i}, v{TH+2*i+1}")
                a(f"v_cvt_pk_f16_f32 v{D+8+4*ks+2*h+i}, v{TH+4+2*i}, v{TH+4+2*i+1}")

def a_pre(a):
    EPS, BASE, TH, ONE, TO, CS = ST + 4, ST + 5, XF, XF + 8, XF + 12, AC1
    a(f"""s_and_b32 s25, s3, 1
    s_lshl_b32 s25, s25, 2
    v_and_b32 v{T0}, 3, v{N}
    v_add_u32 v{T0}, s25, v{T0}
    v_lshrrev_b32 v{T1}, 2, v{N}
    s_mul_i32 s26, s22, 28
    s_add_u32 s26, s26, 1
    v_mad_u32_u24 v{T1}, v{T1}, 7, v{T0}
    v_add_u32 v{T1}, s26, v{T1}
    v_cmp_ne_u32 vcc, 7, v{T0}
    s_lshr_b32 s25, s3, 1
    s_mul_i32 s25, s25, {fl(0.25)}
    v_cndmask_b32 v{T1}, 0, v{T1}, vcc
    v_cvt_f32_u32 v{T1}, v{T1}
    v_mul_f32 v{EPS}, {fl(1.0/448)}, v{T1}
    v_lshlrev_b32 v{T0}, 3, v{G}
    v_cvt_f32_u32 v{T2}, v{T0}
    v_fma_f32 v{BASE}, v{T2}, v{EPS}, s25
    s_mul_i32 s25, s3, {7*1024}
    s_add_u32 s25, s25, {LW}
    v_add_u32 v{T1}, s25, v{VL}""")
    for i in range(4): a(f"v_mov_b32 v{ONE+i}, 0x3f803f80")
    for j in range(7):
        trig_block(a, 8, 32*j, EPS, BASE, TH, False)
        o = TO + 4*(j & 1)
        for i in range(4): a(f"v_cvt_pk_bf16_f32 v{o+i}, v{TH+2*i}, v{TH+2*i+1}")
        a(f"ds_write_b128 v{T1}, {v4(o)} offset:{j*1024}")
        a(f"v_mfma_f32_16x16x32_bf16 {v4(CS)}, {v4(o)}, {v4(ONE)}, {'0' if j == 0 else v4(CS)}")
    a(f"""v_lshrrev_b32 v{ST}, 1, v{N}
    s_lshl_b32 s25, s3, 3
    v_add_u32 v{ST}, s25, v{ST}
    v_and_b32 v{ST+2}, 1, v{N}
    v_lshlrev_b32 v{VUS}, 16, v{ST}
    v_lshl_add_u32 v{VUS}, v{ST+2}, 6, v{VUS}
    v_lshl_add_u32 v{VUS}, v{G}, 4, v{VUS}
    s_lshl_b32 s25, s3, 6
    v_lshlrev_b32 v{T0}, 4, v{G}
    v_add_u32 v{VCS}, {LCS}, v{T0}
    v_add_u32 v{T1}, s25, v{VCS}
    v_lshlrev_b32 v{SG2+1}, 31, v{G}
    v_or_b32 v{SG2+1}, 1.0, v{SG2+1}
    v_xor_b32 v{SG2}, 0x80000000, v{SG2+1}
    v_pk_fma_f32 {v2(CS)}, {v2(CS)}, {v2(SG2)}, {v2(CS)}
    v_pk_fma_f32 {v2(CS+2)}, {v2(CS+2)}, {v2(SG2)}, {v2(CS+2)}
    ds_write_b128 v{T1}, {v4(CS)}""")
    if not OPT["w64l"]:
        w64(a, WC)
        for i in range(8): a(f"v_xor_b32 v{WNS+i}, 0x80008000, v{WSN+i}")
    stamp(a, 10, True)
    a(f"v_add_u32 v{T2}, {LW}, v{VL}")
    a(f"""s_lshl_b32 s25, s3, 4
    v_add_u32 v{ST}, s25, v{N}
    v_mul_u32_u24 v{VXR}, {PH}, v{ST}
    v_add_u32 v{VXR}, v{T0}, v{VXR}
    v_mul_u32_u24 v{VFW}, {PF}, v{ST}
    v_lshl_add_u32 v{VFW}, v{G}, 3, v{VFW}
    v_add_u32 v{VFW}, {LF}, v{VFW}
    v_lshrrev_b32 v{ST}, 2, v{N}
    v_lshl_add_u32 v{ST}, v{G}, 3, v{ST}
    v_mul_u32_u24 v{VFR}, {PF}, v{ST}
    v_and_b32 v{ST}, 3, v{N}
    v_lshl_add_u32 v{VFR}, v{ST}, 3, v{VFR}
    v_add_u32 v{VFR}, {LF}, v{VFR}
    s_lshl_b32 s23, s21, 11
    s_lshl_b32 s24, s22, 8
    s_add_u32 s23, s23, s24""")
    for r in range(4):
        a(f"s_mov_b32 s{30+2*r}, {hex(((1<<r)|(1<<(20+r))) & 0xffffffff)}")
        a(f"s_mov_b32 s{31+2*r}, {hex(((1<<(8+r))|(1<<(28+r))) & 0xffffffff)}")
    a("s_mov_b64 s[24:25], 0xffff")

def a_main(a):
    q = LdsQ(a)
    def rdx(j, hf): q.read(f"ds_read_b128 {v4(XF+4*j)}, v{VXR} offset:{64*j + hf*LXH}", XF+4*j)
    def rdw(j):
        for T in range(4): q.read(f"ds_read_b128 {v4(WD+4*(7*T+j))}, v{T2} offset:{(7*T+j)*1024}", WD+4*(7*T+j))
    for j in range(3): rdx(j, 0); rdw(j)
    BJ = OPT["barj"]
    Q, S, M, RS = ST, ST+1, ST+2, ST+4
    def mf(A, T, j, first): a(f"v_mfma_f32_16x16x32_bf16 {v4(A+4*T)}, {v4(WD+4*(7*T+j))}, {v4(XF+4*j)}, {'0' if first else v4(A+4*T)}")
    def gram(j, first): a(f"v_mfma_f32_16x16x32_bf16 {v4(GR)}, {v4(XF+4*j)}, {v4(XF+4*j)}, {'0' if first else v4(GR)}")
    for j in range(7):
        q.need(XF + 4*j)
        gram(j, j == 0)
        for T in range(4):
            q.need(WD+4*(7*T+j))
            mf(AC1, T, j, j == 0)
        if j + 3 < 7: rdx(j + 3, 0); rdw(j + 3)
        if j == BJ:
            stamp(a, 11)
            a("s_barrier")
            for k in range(BJ + 1): rdx(k, 1)
        elif j > BJ: rdx(j, 1)
    CS = WD + 28
    for j in range(7):
        q.need(XF + 4*j)
        gram(j, False)
        mf(AC2, 1, j, j == 0)
    for T in range(4): q.read(f"ds_read_b128 {v4(CS+4*T)}, v{VCS} offset:{64*T}", CS+4*T)
    stats = [None, None, f"v_mov_b32 v{Q}, 0", f"v_mov_b32 v{V_EP}, {LTAG}"]
    stats += [f"v_cndmask_b32 v{Q}, v{Q}, v{GR+r}, s[{30+2*r}:{31+2*r}]" for r in range(4)]
    stats += [f"v_add_f32 v{S}, v{AC1+7}, v{AC2+7}", f"v_cndmask_b32 v{S}, 0, v{S}, s[24:25]", None, None,
              f"v_permlane32_swap_b32 v{Q}, v{S}", f"v_add_f32 v{Q}, v{Q}, v{S}", f"v_mov_b32 v{S}, v{Q}", None, None,
              f"v_permlane16_swap_b32 v{Q}, v{S}", f"v_add_f32 v{Q}, v{Q}, v{S}", f"v_mov_b32 v{S}, v{Q}", None, None,
              f"v_permlane32_swap_b32 v{Q}, v{S}", f"v_mul_f32 v{M}, {fl(-1.0/448)}, v{S}", f"v_mul_f32 v{Q}, {fl(1.0/448)}, v{Q}",
              f"v_fma_f32 v{Q}, -v{M}, v{M}, v{Q}", f"v_max_f32 v{Q}, 0, v{Q}", f"v_add_f32 v{Q}, {fl(1e-5)}, v{Q}",
              f"v_rsq_f32 v{RS}, v{Q}", "WAITCS", f"v_mul_f32 v{M}, v{M}, v{RS}"]
    stats += [f"v_mul_f32 v{CS+i}, v{CS+i}, v{M}" for i in range(16)]
    for j in range(7):
        for T in (0, 2, 3):
            mf(AC2, T, j, j == 0)
            for _ in range(2):
                if stats:
                    t = stats.pop(0)
                    if t == "WAITCS": q.need(CS, 16)
                    elif t: a(t)
    for p in range(2): a(f"v_pk_fma_f32 {v2(AC1+4+2*p)}, {v2(AC2+4+2*p)}, {v2(SG2)}, {v2(AC1+4+2*p)}")
    for t in stats: a(t)
    stamp(a, 3)
    for T in (0, 2, 3):
        for p in range(2):
            x = AC1 + 4*T + 2*p
            a(f"v_pk_fma_f32 {v2(x)}, {v2(AC2+4*T+2*p)}, {v2(SG2)}, {v2(x)}")
    for T in (1, 0, 2, 3):
        for p in range(2):
            x = AC1 + 4*T + 2*p
            a(f"v_pk_fma_f32 {v2(x)}, {v2(x)}, {v2(RS)}, {v2(CS+4*T+2*p)} op_sel_hi:[1,0,1]")
    for T in (1, 0, 2, 3):
        for p in range(2):
            x = AC1 + 4*T + 2*p
            a(f"v_cvt_pk_f16_f32 v{AC2+2*T+p}, v{x}, v{x+1}")
        a(f"ds_write_b64 v{VFW}, {v2(AC2+2*T)} offset:{32*T}")
    if OPT["w64l"]: a(f"s_lshl_b32 s26, s3, 12\ns_add_u32 s26, s26, {LWT}\nv_add_u32 v{T1}, s26, v{VL}")
    stamp(a, 5, 5)
    a(f"s_waitcnt lgkmcnt(0)")
    stamp(a, 6, 5)
    a(f"s_barrier")
    stamp(a, 7, 5)
    if OPT["w64l"]:
        for i in (0, 2, 4, 1, 3, 5): a(f"ds_read_b128 {v4(WC+4*i)}, v{T1} offset:{(i % 4 if i < 4 else i - 2 + 2) * 0 + i * 0 + [0, 1024, 2048, 3072, 16384, 17408][i]}")
    FA = WD + 48
    fa = lambda T, ks: FA + (2*T + ks) * 4
    q = LdsQ(a)
    for T in range(2):
        for ks in range(2):
            for TT in (T, T + 2):
                for h in range(2):
                    q.read(f"ds_read_b64_tr_b16 {v2(fa(TT, ks)+2*h)}, v{VFR} offset:{(32*ks+4*h)*PF+32*TT}", fa(TT, ks)+2*h, 2)
    q.read(f"ds_read_b32 v{V_EP}, v{V_EP}", V_EP, 1)
    UR = AC1; UI = AC1 + 8; o = XF
    tagcalc = [f"v_add_u32 v{M}, 1, v{V_EP}", f"s_mov_b32 s98, {HASH}", f"v_mul_lo_u32 v{M}, v{M}, s98"]
    for T in range(2):
        for ks in range(2):
            fr = v4(fa(T, ks)); fi = v4(fa(T + 2, ks))
            q.need(fa(T, ks))
            if T == 0 and ks == 0: stamp(a, 8, 5)
            a(f"v_mfma_f32_16x16x32_f16 {v4(UR+4*T)}, {fr}, {v4(WC+4*ks)}, {'0' if ks == 0 else v4(UR+4*T)}")
            a(f"v_mfma_f32_16x16x32_f16 {v4(UI+4*T)}, {fr}, {v4(WNS+4*ks)}, {'0' if ks == 0 else v4(UI+4*T)}")
            q.need(fa(T + 2, ks))
            a(f"v_mfma_f32_16x16x32_f16 {v4(UR+4*T)}, {fi}, {v4(WSN+4*ks)}, {v4(UR+4*T)}")
            a(f"v_mfma_f32_16x16x32_f16 {v4(UI+4*T)}, {fi}, {v4(WC+4*ks)}, {v4(UI+4*T)}")
            if T == 1 and ks == 1:
                q.need(V_EP, 1)
                for t in tagcalc: a(t)
    stamp(a, 9, 5)
    for r in range(4): a(f"v_cvt_pk_f16_f32 v{o+r}, v{UR+r}, v{UI+r}")
    a(f"buffer_store_dwordx4 {v4(o)}, v{VUS}, s[12:15], s23 offen {SC}")
    stamp(a, 10, 5)
    a(f"v_add3_u32 v{Q}, v{o}, v{o+1}, v{o+2}")
    a(f"v_sub_u32 v{M}, v{M}, v{o+3}")
    a(f"v_sub_u32 v{M}, v{M}, v{Q}")
    for r in range(3): a(f"v_cvt_pk_f16_f32 v{o+4+r}, v{UR+4+r}, v{UI+4+r}")
    a(f"""v_add3_u32 v{Q}, v{o+4}, v{o+5}, v{o+6}
    v_sub_u32 v{o+7}, v{M}, v{Q}
    buffer_store_dwordx4 {v4(o+4)}, v{VUS}, s[12:15], s23 offen offset:128 {SC}""")

def b_ids(a):
    a(f"""s_and_b32 s92, s2, 7
    s_lshr_b32 s93, s2, 6
    s_lshl_b32 s93, s93, 3
    s_or_b32 s92, s92, s93
    s_bfe_u32 s93, s2, 0x10003
    s_bfe_u32 s96, s2, 0x20004
    s_sub_u32 s95, 64, s92
    s_cmp_eq_u32 s92, 0
    s_cselect_b32 s95, 32, s95
    s_cselect_b32 s94, 0, 1
    s_xor_b32 s94, s94, s93
    s_cmp_eq_u32 s93, 0
    s_cselect_b32 s95, s92, s95
    s_lshl_b32 s96, s96, 9
    s_add_u32 s95, s95, s96
    s_lshl_b32 s96, s20, 6
    s_add_u32 s96, s96, s95
    s_mul_i32 s97, s96, 896""")

def b_setup(a):
    srd(a, 12, 6, WS_SIZE)
    srd(a, 52, 48, XB)
    srd(a, 16, 40, 896)
    b_ids(a)

def b_loads(a):
    a(f"""s_mov_b32 s26, {WS_EPOCH}
    v_mov_b32 v{T0}, 0
    buffer_load_dword v{V_EP}, v{T0}, s[12:15], s26 offen {SC}
    buffer_load_dwordx4 {v4(B_WR)}, v{VL}, s[16:19], 0 offen
    buffer_load_dwordx4 {v4(B_XR)}, v{VL}, s[8:11], s97 offen""")

def pro(a):
    EPS, BASE, TH, AF, AD = P_EPS, P_BASE, P_TH, B_AF, B_AD
    a(f"""s_lshl_b32 s28, s92, 16
    s_lshl_b32 s29, s20, 8
    s_add_u32 s28, s28, s29
    s_add_u32 s29, s28, 4096
    s_add_u32 s30, s28, 32768
    s_add_u32 s31, s28, 36864
    v_lshlrev_b32 v{B_VU}, 13, v{G}
    v_lshl_add_u32 v{B_VU}, v{N}, 4, v{B_VU}
    v_and_b32 v{T0}, 7, v{N}
    v_lshlrev_b32 v{T0}, 6, v{T0}
    v_add_u32 v{T0}, s95, v{T0}
    v_cvt_f32_u32 v{T0}, v{T0}
    v_cmp_gt_u32 vcc, 8, v{N}
    v_mul_f32 v{EPS}, {fl(1.0/2048)}, v{T0}
    v_lshlrev_b32 v{T1}, 2, v{G}
    v_cndmask_b32 v{EPS}, -v{EPS}, v{EPS}, vcc
    v_cvt_f32_u32 v{T1}, v{T1}
    v_mul_f32 v{BASE}, v{T1}, v{EPS}""")
    for ks in range(2):
        trig_block(a, 4, 16*ks, EPS, BASE, TH, True)
        for i in range(4):
            a(f"v_cvt_pk_f16_f32 v{AF+4*ks+i}, v{TH+i}, v{TH+4+i}")
    a(f"""v_lshrrev_b32 v{T0}, 3, v{N}
    v_and_b32 v{T1}, 3, v{N}
    v_mul_u32_u24 v{T1}, 7, v{T1}
    v_lshl_add_u32 v{T1}, v{T0}, 2, v{T1}
    s_mul_i32 s32, s20, 28
    s_add_u32 s32, s32, 1
    v_add_u32 v{T1}, s32, v{T1}
    v_sub_u32 v{T2}, 448, v{T1}
    v_cmp_gt_u32 s[34:35], 2, v{G}
    v_mov_b32 v{TH}, s93
    v_mov_b32 v{TH+1}, s94
    v_cndmask_b32 v{T2}, v{T2}, v{T1}, s[34:35]
    v_cndmask_b32 v{TH}, v{TH+1}, v{TH}, s[34:35]
    v_bfe_u32 v{TH+1}, v{N}, 2, 1
    v_cmp_eq_u32 s[60:61], v{TH}, v{TH+1}
    v_and_b32 v{TH+2}, 1, v{G}
    v_mul_u32_u24 v{TH+2}, {4*PY}, v{TH+2}
    v_add_lshl_u32 v{AD}, v{TH+2}, v{T2}, 2
    v_mov_b32 v{TH+3}, -4
    v_cndmask_b32 v{TH+3}, v{TH+3}, 4, s[34:35]
    v_add_u32 v{AD+1}, v{AD}, v{TH+3}
    v_add_u32 v{AD+2}, v{AD+1}, v{TH+3}
    v_add_u32 v{AD+3}, v{AD+2}, v{TH+3}
    v_cmp_eq_u32 s[50:51], 0, v{T0}
    s_and_b64 s[50:51], s[50:51], s[60:61]
    v_mov_b32 v{TH}, 222
    v_cmp_eq_u32 s[62:63], v{TH}, v{T1}
    s_andn2_b64 s[62:63], s[62:63], s[34:35]
    s_andn2_b64 s[62:63], s[60:61], s[62:63]
    s_mul_i32 s33, s20, {PY*4}
    v_lshlrev_b32 v{B_VY}, 5, v{LANE}
    v_add_u32 v{B_VY}, s33, v{B_VY}""")
    lim_regs(a, C_L, LANE, T0)
    a(f"""s_lshl_b32 s34, s20, 5
    s_add_u32 s34, s34, {LSEL}
    v_lshlrev_b32 v{T1}, 2, v{LANE}
    v_add_u32 v{C_SW}, s34, v{T1}
    v_add_u32 v{C_SR}, {LSEL}, v{T1}
    v_lshrrev_b32 v{C_KA}, 1, v0
    v_lshlrev_b32 v{C_KA}, 6, v{C_KA}
    v_and_b32 v{T0}, 1, v0
    v_lshl_add_u32 v{C_KA}, v{T0}, 4, v{C_KA}
    s_lshl_b32 s34, s20, 6
    s_add_u32 s34, s34, {LSE2}
    v_add_u32 v{C_FW}, s34, v{T1}
    v_lshrrev_b32 v{C_PF}, 3, v{LANE}
    v_and_b32 v{C_FY}, 7, v{LANE}
    v_lshlrev_b32 v{C_FR}, 6, v{C_PF}
    v_lshl_add_u32 v{C_FR}, v{C_FY}, 2, v{C_FR}
    v_add_u32 v{C_FR}, {LSE2}, v{C_FR}
    v_lshlrev_b32 v{C_FY}, 6, v{C_FY}
    v_add_u32 v{C_FY}, {LSE2 + 32}, v{C_FY}
    v_lshlrev_b32 v{C_PF}, 7, v{C_PF}
    s_cmp_ge_u32 s2, 224
    s_cselect_b32 s33, 1024, 0
    s_add_u32 s33, s33, {WS_ROW}
    s_lshl_b32 s27, s2, 6
    s_add_u32 s27, s27, {WS_KEYS}
    s_sub_u32 s32, 2047, s96
    v_lshrrev_b32 v{T0}, 1, v0
    v_and_b32 v{T1}, 7, v{T0}
    v_lshrrev_b32 v{T2}, 6, v{T0}
    v_lshl_or_b32 v{T1}, v{T2}, 3, v{T1}
    v_sub_u32 v{T2}, 64, v{T1}
    v_cmp_eq_u32 vcc, 0, v{T1}
    v_bfe_u32 v{TH}, v{T0}, 3, 1
    v_cndmask_b32 v{T2}, v{T2}, 32, vcc
    v_cmp_eq_u32 vcc, 0, v{TH}
    v_bfe_u32 v{TH}, v{T0}, 4, 2
    v_cndmask_b32 v{T1}, v{T2}, v{T1}, vcc
    v_lshl_add_u32 v{T1}, v{TH}, 9, v{T1}
    v_and_b32 v{T0}, 1, v0
    v_lshl_add_u32 v{T1}, v{T0}, 8, v{T1}
    v_sub_u32 v{C_IX}, 2047, v{T1}
    v_subrev_u32 v{C_IX+1}, 64, v{C_IX}
    v_subrev_u32 v{C_IX+2}, 128, v{C_IX}
    v_subrev_u32 v{C_IX+3}, 192, v{C_IX}""")

def pro2(a):
    XU, WU, S1, S2, S3 = B_XU, B_WU, P_TH, P_TH + 2, P_TH + 4
    unpack8(a, WU, B_WR)
    a(f"""v_pk_add_f32 {v2(S1)}, {v2(WU)}, {v2(WU+2)}
    v_pk_add_f32 {v2(S2)}, {v2(WU+4)}, {v2(WU+6)}
    v_pk_add_f32 {v2(S1)}, {v2(S1)}, {v2(S2)}
    v_add_f32 v{S1}, v{S1}, v{S1+1}
    v_mov_b32 v{S2}, 0
    v_mov_b32 v{S3}, 0""")
    reduce3(a, S1, S2, S3, T0, 58, 39, 39)
    unpack8(a, XU, B_XR)
    for k in (B_S1, B_S1+1, B_S2, B_S2+1, B_S3, B_S3+1): a(f"v_mov_b32 v{k}, 0")

def anyones(a, regs_, t):
    regs_ = list(regs_)
    a(f"v_max_u32 v{t}, v{regs_[0]}, v{regs_[1]}")
    rest = regs_[2:]
    while len(rest) >= 2:
        a(f"v_max3_u32 v{t}, v{t}, v{rest[0]}, v{rest[1]}"); rest = rest[2:]
    if rest: a(f"v_max_u32 v{t}, v{t}, v{rest[0]}")
    a(f"v_cmp_eq_u32 vcc, -1, v{t}")

def wave_sum(a, v, sd):
    for k in (8, 4, 2, 1):
        a(f"v_add_u32_dpp v{v}, v{v}, v{v} row_ror:{k} row_mask:0xf bank_mask:0xf")
    for i in range(4): a(f"v_readlane_b32 s{sd+i}, v{v}, {16*i}")
    a(f"s_add_u32 s{sd}, s{sd}, s{sd+1}\ns_add_u32 s{sd+2}, s{sd+2}, s{sd+3}\ns_add_u32 s{sd}, s{sd}, s{sd+2}")

def publish_row(a):
    a(f"""s_lshl_b32 s34, s96, 11
    s_add_u32 s34, s34, {WS_ROW}
    v_mov_b32 v{T0}, 0
    v_mov_b32 v{T1}, 0
    v_writelane_b32 v{C_LN}, 0, 56
    v_writelane_b32 v{C_OUT}, 0, 56
    s_mov_b32 exec_hi, 0x01ffffff
    v_add3_u32 v{T0}, v{C_LN}, v{C_LN+1}, v{C_LN+2}
    v_add3_u32 v{T1}, v{C_OUT}, v{C_OUT+1}, v{C_OUT+2}
    v_add_u32 v{T0}, v{T0}, v{C_LN+3}
    v_add_u32 v{T1}, v{T1}, v{C_OUT+3}
    s_mov_b32 exec_hi, -1""")
    wave_sum(a, T0, 36)
    a(f"s_sub_u32 s35, s98, s36\nv_writelane_b32 v{C_LN}, s35, 56")
    wave_sum(a, T1, 36)
    a(f"""s_sub_u32 s35, s98, s36
    v_writelane_b32 v{C_OUT}, s35, 56
    s_mov_b32 exec_hi, 0x01ffffff
    buffer_store_dwordx4 {v4(C_LN)}, v{VL}, s[12:15], s34 offen {SC}
    buffer_store_dwordx4 {v4(C_OUT)}, v{VL}, s[12:15], s34 offen offset:1024 {SC}
    s_mov_b32 exec_hi, -1""")

def fetch_row_issue(a, dst):
    a(f"""v_readlane_b32 s34, v{C_K}, s20
    s_andn2_b32 s34, 0x7ff, s34
    s_lshl_b32 s34, s34, 11
    s_add_u32 s34, s34, s33
    s_mov_b32 exec_hi, 0x01ffffff
    buffer_load_dwordx4 {v4(dst)}, v{VL}, s[12:15], s34 offen {SC}
    s_mov_b32 exec_hi, -1""")

def fetch_row_finish(a, dst, ldsaddr):
    _lbl[0] += 1
    L = f"Lrow{_lbl[0]}"
    a(f"""s_mul_i32 s29, s20, {PX}
    s_add_u32 s29, s29, {LXS}
    v_add_u32 v{ldsaddr}, s29, v{VL}
    s_mov_b32 s57, {SPIN}
    {L}:
    v_mov_b32 v{T0}, 0
    s_mov_b32 exec_hi, 0x01ffffff
    s_waitcnt vmcnt(0)
    ds_write_b128 v{ldsaddr}, {v4(dst)}
    v_add3_u32 v{T0}, v{dst}, v{dst+1}, v{dst+2}
    v_add_u32 v{T0}, v{T0}, v{dst+3}
    s_mov_b32 exec_hi, -1""")
    wave_sum(a, T0, 36)
    a(f"""s_cmp_eq_u32 s36, s98
    s_cbranch_scc1 {L}d
    s_mov_b32 exec_hi, 0x01ffffff
    s_waitcnt lgkmcnt(0)
    buffer_load_dwordx4 {v4(dst)}, v{VL}, s[12:15], s34 offen {SC}
    s_mov_b32 exec_hi, -1
    s_sub_u32 s57, s57, 1
    s_cbranch_scc0 {L}""")
    timeout_note(a, _lbl[0])
    a(f"{L}d:")

def gu_dma(a):
    a(f"""s_cmp_ge_u32 s2, 224
    s_cbranch_scc1 Lngu
    s_cmp_eq_u32 s20, 7
    s_cbranch_scc1 Lngu""")
    srd(a, 16, 42, 448*3584)
    a(f"""v_mul_u32_u24 v{T1}, 3584, v0
    s_and_b32 s50, s2, 7
    s_mul_i32 s50, s50, 28
    s_lshr_b32 s51, s2, 3
    s_add_u32 s50, s50, s51
    s_lshl_b32 s26, s50, 4
    s_lshl_b32 s24, s20, 10
    s_add_u32 s24, s24, {LWT}
    s_mov_b32 m0, s24
    s_add_u32 s24, s24, 8192
    buffer_load_dwordx4 v{T1}, s[16:19], s26 offen lds
    s_mov_b32 s16, s44
    s_and_b32 s17, s45, 0xffff
    s_mov_b32 m0, s24
    s_nop 0
    buffer_load_dwordx4 v{T1}, s[16:19], s26 offen lds
    Lngu:""")

def wd_dma(a, j0, j1, L):
    if j0 == j1: return
    a(f"""s_cmp_lt_u32 s2, 224
    s_cbranch_scc1 {L}
    s_and_b32 s50, s2, 7
    s_cmp_eq_u32 s50, 7
    s_cbranch_scc1 {L}
    s_lshl_b32 s50, s50, 7
    s_bfe_u32 s51, s2, 0x20003
    s_lshl_b32 s51, s51, 5
    s_add_u32 s51, s51, s50""")
    srd(a, 16, 46, 1792*896)
    a(f"""v_lshrrev_b32 v{T1}, 1, v{LANE}
    v_mul_u32_u24 v{T1}, 896, v{T1}
    v_and_b32 v{T2}, 1, v{LANE}
    v_lshl_add_u32 v{T1}, v{T2}, 4, v{T1}
    s_mul_i32 s23, s20, {224*896}
    s_add_u32 s23, s23, s51
    s_add_u32 s23, s23, {j0*32*896}
    s_mul_i32 s25, s20, 7168
    s_add_u32 s25, s25, {LWT + j0*1024}""")
    for j in range(j0, j1):
        a(f"s_mov_b32 m0, s25")
        a(f"s_add_u32 s25, s25, 1024")
        a(f"buffer_load_dwordx4 v{T1}, s[16:19], s23 offen lds")
        a(f"s_add_u32 s23, s23, {32*896}")
    a(f"{L}:")

def b_main(a):
    R, AF, ACC, XU, WU, AD, TH = B_R, B_AF, B_ACC, B_XU, B_WU, B_AD, B_TH
    S1, S2, S3 = B_S1, B_S2, B_S3
    if OPT["sl_u0"]: a(f"s_sleep {OPT['sl_u0']}")
    def uld():
        for ks in range(2):
            for i in range(4):
                a(f"buffer_load_dwordx4 {v4(R+16*ks+4*i)}, v{B_VU}, s[12:15], s{28+2*ks+(i>>1)} offen offset:{2048*(i&1)} {SC}")
    a(f"s_mov_b32 s57, {SPIN}")
    uld()
    a("s_waitcnt vmcnt(8)")
    pro2(a)
    a("s_branch Lupw\nLupoll:")
    uld()
    a("Lupw:")
    for ks in range(2):
        a(f"s_waitcnt vmcnt({4-4*ks})")
        b = R + 16*ks
        for i in range(8):
            if ks == 0 and i == 0: a(f"v_add_u32 v{T0}, v{b}, v{b+1}")
            else: a(f"v_add3_u32 v{T0}, v{T0}, v{b+2*i}, v{b+2*i+1}")
        for i in range(4):
            for j in range(i+1, 4):
                a(f"v_swap_b32 v{b+4*i+j}, v{b+4*j+i}")
        for j in range(4):
            c = "0" if ks == 0 else v4(ACC+4*j)
            a(f"v_mfma_f32_16x16x32_f16 {v4(ACC+4*j)}, {v4(AF+4*ks)}, {v4(b+4*j)}, {c}")
            if ks == 1: a(f"v_add_u32_dpp v{T0}, v{T0}, v{T0} row_ror:{8 >> j} row_mask:0xf bank_mask:0xf")
    a(f"""v_cmp_ne_u32 vcc, s99, v{T0}
    s_cmp_eq_u64 vcc, 0
    s_cbranch_scc1 Lupolld
    s_sub_u32 s57, s57, 1
    s_cbranch_scc0 Lupoll""")
    timeout_note(a, 9)
    a("Lupolld:")
    stamp(a, 6)
    if OPT["stamps"] == 3: a(f"s_sub_u32 s{64+2*11}, {SPIN+1}, s57")
    for j in range(4):
        if j != 1: a(f"s_mov_b64 exec, {['s[60:61]', '', 's[62:63]', 's[50:51]'][j]}")
        for r in range(4):
            a(f"ds_write_b32 v{AD+j}, v{ACC+4*j+r} offset:{LY + r*PY*4}")
    a("s_mov_b64 exec, -1")
    gu_dma(a)
    wd_dma(a, 0, OPT['wdsplit'], 'Lnwd0')
    a("""s_mov_b32 exec_hi, 0x00ffffff
    s_waitcnt lgkmcnt(0)
    s_barrier""")
    H = R
    a(f"ds_read_b128 {v4(H)}, v{B_VY} offset:{LY}\nds_read_b128 {v4(H+4)}, v{B_VY} offset:{LY+16}")
    for hf in range(2):
        a(f"s_waitcnt lgkmcnt({1-hf})")
        if hf == 0: a(f"v_writelane_b32 v{H}, 0, 0")
        for p in range(2):
            x = 4*hf + 2*p
            a(f"v_pk_add_f32 {v2(H+x)}, {v2(H+x)}, {v2(XU+x)}")
        for p in range(2):
            x = 4*hf + 2*p
            a(f"v_pk_add_f32 {v2(S1)}, {v2(S1)}, {v2(H+x)}")
            a(f"v_pk_fma_f32 {v2(S2)}, {v2(H+x)}, {v2(H+x)}, {v2(S2)}")
            a(f"v_pk_fma_f32 {v2(S3)}, {v2(H+x)}, {v2(WU+x)}, {v2(S3)}")
    a(f"""s_mov_b32 exec_hi, -1
    v_add_f32 v{S1}, v{S1}, v{S1+1}
    v_add_f32 v{S2}, v{S2}, v{S2+1}
    v_add_f32 v{S3}, v{S3}, v{S3+1}""")
    reduce3(a, S1, S2, S3, T0, 37, 38, 39)
    M, V, SD, RS, C0, KEY = TH, TH+1, TH+2, TH+4, TH+6, C_KEY
    a(f"""v_mov_b32 v{V}, {fl(1.0/448)}
    v_mul_f32 v{M}, s37, v{V}
    v_mul_f32 v{V}, s38, v{V}
    v_mov_b32 v{KEY}, s39
    v_fma_f32 v{V}, -v{M}, v{M}, v{V}
    v_fma_f32 v{KEY}, -v{M}, s58, v{KEY}
    v_max_f32 v{SD}, 0, v{V}
    v_add_f32 v{V}, {fl(1e-5)}, v{SD}""")
    a(f"""v_rsq_f32 v{RS}, v{V}
    s_lshl_b32 s34, s20, 2
    v_mov_b32 v{T2}, s34
    v_mul_f32 v{KEY}, v{KEY}, v{RS}
    v_cvt_pk_bf16_f32 v{KEY}, v{KEY}, v{KEY}
    v_ashrrev_i32 v{T0}, 31, v{KEY}
    v_or_b32 v{T0}, 0x80000000, v{T0}
    v_xor_b32 v{KEY}, v{KEY}, v{T0}
    v_and_b32 v{KEY}, 0xffff0000, v{KEY}
    v_or_b32 v{KEY}, s32, v{KEY}
    ds_write_b32 v{T2}, v{KEY} offset:{LKEY}
    v_mov_b32 v{C_STK}, 0xffff
    v_lshlrev_b32 v{T1}, 2, v{LANE}
    v_mov_b32 v{T2}, {LKEY}
    s_waitcnt lgkmcnt(0)
    s_barrier
    s_cmp_lg_u32 s20, 0
    s_cbranch_scc1 Lnokey
    s_mov_b64 exec, 0xff
    ds_read_b32 v{T0}, v{T1} offset:{LKEY}
    s_waitcnt lgkmcnt(0)
    v_bfi_b32 v{T0}, v{C_STK}, s59, v{T0}
    buffer_store_dword v{T0}, v{T1}, s[12:15], s27 offen {SC}
    s_mov_b64 exec, -1
    Lnokey:
    ds_read_b128 {v4(ACC)}, v{T2}
    ds_read_b128 {v4(ACC+4)}, v{T2} offset:16""")
    stamp(a, 7)
    sd_chain(a, SD, SD)
    a(f"v_rcp_f32 v{RS}, v{SD}\ns_nop 0\nv_mul_f32 v{C0}, -v{M}, v{RS}")
    for p in range(4):
        a(f"v_pk_fma_f32 {v2(XU+2*p)}, {v2(H+2*p)}, {v2(RS)}, {v2(C0)} op_sel_hi:[1,0,0]")
    for p in range(4):
        a(f"v_pk_add_f32 {v2(H+2*p)}, {v2(H+2*p)}, {v2(XU+2*p)}")
    for p in range(4):
        a(f"v_cvt_pk_bf16_f32 v{C_LN+p}, v{XU+2*p}, v{XU+2*p+1}")
        a(f"v_cvt_pk_bf16_f32 v{C_OUT+p}, v{H+2*p}, v{H+2*p+1}")
    a(f"""s_waitcnt lgkmcnt(0)
    v_max3_u32 v{T0}, v{ACC}, v{ACC+1}, v{ACC+2}
    v_max3_u32 v{T1}, v{ACC+3}, v{ACC+4}, v{ACC+5}
    v_max3_u32 v{T0}, v{T0}, v{ACC+6}, v{ACC+7}
    v_max_u32 v{T0}, v{T0}, v{T1}
    v_cmp_eq_u32 s[60:61], v{T0}, v{KEY}
    s_cmp_eq_u64 s[60:61], 0
    s_cbranch_scc1 Lnoeager""")
    publish_row(a)
    a("Lnoeager:")

QP = {1: "quad_perm:[1,0,3,2]", 2: "quad_perm:[2,3,0,1]", 3: "quad_perm:[3,2,1,0]", 7: "row_half_mirror"}
class Net:
    def __init__(s, a, x, t, fill): s.a = a; s.x = x; s.t = t; s.fill = list(fill)
    def f(s, n=1):
        for _ in range(n):
            if s.fill: s.a(s.fill.pop(0))
    def ce(s, m):
        a, x, t = s.a, s.x, s.t
        s.f()
        if m == 4:
            a(f"v_max_u32_dpp v{t}, v{x}, v{x} row_shl:4 row_mask:0xf bank_mask:0x5")
            a(f"v_min_u32_dpp v{t}, v{x}, v{x} row_shr:4 row_mask:0xf bank_mask:0xa")
            s.x, s.t = t, x
        else:
            a(f"v_mov_b32_dpp v{t}, v{x} {QP[m]} row_mask:0xf bank_mask:0xf")
            a(f"v_med3_u32 v{x}, v{x}, v{t}, v{C_L[1 << (m.bit_length()-1)]}")
    def merge(s, last_clean=True):
        a = s.a
        s.f()
        a(f"v_max_u32_dpp v{s.x}, v{s.x}, v{s.x} row_mirror row_mask:0xf bank_mask:0xf")
        for m in (4, 2, 1): s.ce(m)
        for sw in ("v_permlane16_swap_b32", "v_permlane32_swap_b32"):
            a(f"v_mov_b32 v{s.t}, v{s.x}")
            s.f()
            a(f"{sw} v{s.x}, v{s.t}")
            s.f()
            a(f"v_max_u32_dpp v{s.x}, v{s.t}, v{s.x} row_half_mirror row_mask:0xf bank_mask:0xf")
            if last_clean or "16" in sw:
                for m in (4, 2, 1): s.ce(m)
        s.f(99)

def fast_select(a):
    K, X, Y, P, Q = C_K, C_X, C_Y, C_TMP, C_TMP + 1
    a(f"""v_max_u32 v{P}, v{K}, v{K+1}
    v_max_u32 v{Q}, v{K+2}, v{K+3}
    v_max_u32 v{X}, v{P}, v{Q}""")
    fill = [f"v_min_u32 v{Y}, v{P}, v{Q}", f"v_min_u32 v{P}, v{K}, v{K+1}", f"v_min_u32 v{Q}, v{K+2}, v{K+3}",
            f"v_max3_u32 v{Y}, v{Y}, v{P}, v{Q}"]
    fill += [f"v_max_u32_dpp v{Y}, v{Y}, v{Y} row_ror:{k} row_mask:0xf bank_mask:0xf" for k in (8, 4, 2, 1)]
    fill += [f"v_mov_b32 v{P}, v{Y}", f"v_permlane16_swap_b32 v{Y}, v{P}", f"v_max_u32 v{Y}, v{Y}, v{P}",
             f"v_mov_b32 v{P}, v{Y}", f"v_permlane32_swap_b32 v{Y}, v{P}", f"v_max_u32 v{Y}, v{Y}, v{P}",
             "s_mov_b64 vcc, 0x100"]
    n = Net(a, X, C_TMP + 2, fill)
    for m in (1, 3, 1, 7, 2, 1): n.ce(m)
    n.merge()
    a(f"""s_mov_b64 exec, 0x1ff
    v_cndmask_b32 v{P}, v{n.x}, v{Y}, vcc
    ds_write_b32 v{C_FW}, v{P}""")
    if OPT["rowpf"]:
        m8 = (1 << OPT["rowpf"]) - 1; m32 = m8 * 0x01010101
        a(f"""s_mov_b32 exec_lo, {hex(m32)}
        s_mov_b32 exec_hi, {hex(m32)}
        v_bfi_b32 v{Q}, v{n.x}, 0, v{C_TMP+3}
        v_lshl_add_u32 v{Q}, v{Q}, 11, v{C_PF}
        buffer_load_dword v{JUNK}, v{Q}, s[12:15], s33 offen {SC}""")
    a(f"""s_mov_b64 exec, -1
    s_waitcnt lgkmcnt(0)
    s_barrier
    ds_read_b32 v{X}, v{C_FR}
    ds_read_b32 v{Y}, v{C_FY}
    s_waitcnt lgkmcnt(0)""")
    fill = [f"v_max_u32_dpp v{Y}, v{Y}, v{Y} {QP[m]} row_mask:0xf bank_mask:0xf" for m in (1, 2, 7)]
    n = Net(a, X, C_TMP + 2, fill)
    n.merge(last_clean=False)
    a(f"""v_cmp_gt_u32 vcc, v{Y}, v{n.x}
    s_cmp_eq_u64 vcc, 0
    s_cbranch_scc0 Lfullsel
    v_mov_b32 v{K}, v{n.x}
    Lseldone:""")

def c_select(a):
    K = C_K
    a(f"s_mov_b32 s34, {WS_KEYS}\nv_mov_b32 v{C_TMP+3}, 0x7ff")
    def chk():
        a(f"v_xor_b32 v{T0}, v{K}, v{K+1}")
        a(f"v_xor_b32 v{T1}, v{K+2}, v{K+3}")
        a(f"v_xor_b32 v{T2}, s59, v{K}")
        a(f"v_xor_b32 v{C_X}, s59, v{K+2}")
        a(f"v_or3_b32 v{T0}, v{T0}, v{T1}, v{T2}")
        for i in range(4): a(f"v_bfi_b32 v{K+i}, v{C_STK}, v{C_IX+i}, v{K+i}")
        a(f"v_or_b32 v{T0}, v{T0}, v{C_X}")
        a(f"v_cmp_ne_u16 vcc, 0, v{T0}")
    poll(a, lambda: a(f"buffer_load_dwordx4 {v4(K)}, v{C_KA}, s[12:15], s34 offen {SC}"), chk, pre=OPT["sl_k"])
    stamp(a, 8)
    fast_select(a)
    stamp(a, 9)
    a(f"""v_cmp_eq_u32 vcc, v{K}, v{C_KEY}
    s_and_b64 s[62:63], vcc, s[60:61]
    s_cmp_lg_u64 s[62:63], vcc
    s_cbranch_scc0 Lsel_pub""")
    publish_row(a)
    a("Lsel_pub:")
    fetch_row_issue(a, 84)
    a(f"""s_cmp_eq_u64 vcc, 0
    s_cbranch_scc0 Lsel_done
    s_mov_b32 exec_hi, 0x00ffffff
    buffer_store_dwordx4 {v4(C_OUT)}, v{VL}, s[52:55], s97 offen {['', 'sc1', 'nt', 'sc0 sc1'][OPT['ost']]}
    s_mov_b32 exec_hi, -1
    Lsel_done:""")

def c1(a):
    XR = 84; XF_ = 168; ACC = 52; XU = 60; WF = 88
    a(f"""s_cmp_lg_u32 s20, 0
    s_cbranch_scc1 Lc1_now
    v_lshrrev_b32 v{T0}, 2, v{N}
    v_lshl_add_u32 v{T0}, v{G}, 3, v{T0}
    v_lshlrev_b32 v{T0}, 4, v{T0}
    v_and_b32 v{T1}, 1, v{N}
    v_lshl_add_u32 v{T0}, v{T1}, 3, v{T0}
    v_bfe_u32 v{T1}, v{N}, 1, 1
    v_lshl_add_u32 v{T0}, v{T1}, 13, v{T0}
    v_add_u32 v{T0}, {LWT}, v{T0}""")
    for j in range(14):
        for h in range(2):
            a(f"ds_read_b64_tr_b16 {v2(WF+4*j+2*h)}, v{T0} offset:{(32*j+4*h)*16}")
    a(f"""v_and_b32 v{XU+4}, 7, v{N}
    v_mul_u32_u24 v{XU+4}, {PX}, v{XU+4}
    v_lshl_add_u32 v{XU+4}, v{G}, 4, v{XU+4}
    v_lshlrev_b32 v{XU+5}, 4, v{N}
    v_lshl_add_u32 v{XU+5}, v{G}, 3, v{XU+5}
    s_lshl_b32 s22, s50, 7
    s_add_u32 s22, s22, {WS_ACT}
    Lc1_now:""")
    fetch_row_finish(a, XR, T2)
    a(f"""s_waitcnt lgkmcnt(0)
    s_barrier
    s_cmp_lg_u32 s20, 0
    s_cbranch_scc1 Lc1_epoch""")
    stamp(a, 10)
    for j in range(14):
        a(f"ds_read_b128 {v4(XF_+4*j)}, v{XU+4} offset:{LXS+64*j}")
    for j in range(14):
        a(f"s_waitcnt lgkmcnt({13-j})")
        A = ACC + 4*(j & 1)
        a(f"v_mfma_f32_16x16x32_bf16 {v4(A)}, {v4(WF+4*j)}, {v4(XF_+4*j)}, {'0' if j < 2 else v4(A)}")
    for p in range(2):
        a(f"v_pk_add_f32 {v2(ACC+2*p)}, {v2(ACC+2*p)}, {v2(ACC+4+2*p)}")
    for p in range(2): a(f"v_cvt_pk_bf16_f32 v{ACC+4+p}, v{ACC+2*p}, v{ACC+2*p+1}")
    for p in range(2): a(f"v_mov_b32 v{ACC+6+p}, v{ACC+4+p}")
    for p in range(2): a(f"v_permlane32_swap_b32 v{ACC+4+p}, v{ACC+6+p}")
    for p in range(2):
        a(f"v_lshlrev_b32 v{ACC+2*p}, 16, v{ACC+4+p}")
        a(f"v_and_b32 v{ACC+2*p+1}, 0xffff0000, v{ACC+4+p}")
    for r in range(4): a(f"v_mul_f32 v{XU+r}, {fl(-1.4426950408889634)}, v{ACC+r}")
    for r in range(4): a(f"v_exp_f32 v{XU+r}, v{XU+r}")
    for p in range(2):
        a(f"v_lshlrev_b32 v{XR+2*p}, 16, v{ACC+6+p}")
        a(f"v_and_b32 v{XR+2*p+1}, 0xffff0000, v{ACC+6+p}")
    for r in range(4): a(f"v_add_f32 v{XU+r}, 1.0, v{XU+r}")
    for r in range(4): a(f"v_rcp_f32 v{XU+r}, v{XU+r}")
    for r in range(4): a(f"v_mul_f32 v{ACC+r}, v{ACC+r}, v{XU+r}")
    for p in range(2): a(f"v_cvt_pk_bf16_f32 v{ACC+4+p}, v{ACC+2*p}, v{ACC+2*p+1}")
    for p in range(2):
        a(f"v_lshlrev_b32 v{ACC+2*p}, 16, v{ACC+4+p}")
        a(f"v_and_b32 v{ACC+2*p+1}, 0xffff0000, v{ACC+4+p}")
    for p in range(2): a(f"v_pk_mul_f32 {v2(ACC+2*p)}, {v2(ACC+2*p)}, {v2(XR+2*p)}")
    for p in range(2): a(f"v_cvt_pk_bf16_f32 v{XR+p}, v{ACC+2*p}, v{ACC+2*p+1}")
    for p in range(2): a(f"v_min_u32 v{XR+p}, -2, v{XR+p}")
    a(f"""s_mov_b32 exec_lo, 0x00ff00ff
    s_mov_b32 exec_hi, 0
    buffer_store_dwordx2 {v2(XR)}, v{XU+5}, s[12:15], s22 offen {SC}
    s_branch Lend
    Lc1_epoch:
    s_lshl_b32 s29, s2, 3
    s_add_u32 s29, s29, s20
    s_cmp_lg_u32 s29, 1
    s_cbranch_scc1 Lend
    s_mov_b64 exec, 1
    v_mov_b32 v{T0}, s56
    s_mov_b32 s29, {WS_EPOCH}
    buffer_store_dword v{T0}, v{VL}, s[12:15], s29 offen {SC}
    s_branch Lend""")

def c2(a):
    K = C_K
    OA = 8; OR = 10; SG = 12; VA = 13; VO = 14; VW = 15; WF = 88; AF = 116; ACC = 52; RD = 168
    a(f"""s_mul_i32 s24, s20, 7168
    s_add_u32 s24, s24, {LWT}
    v_lshrrev_b32 v{T0}, 2, v{N}
    v_lshl_add_u32 v{T0}, v{G}, 3, v{T0}
    v_lshlrev_b32 v{T0}, 5, v{T0}
    v_and_b32 v{T1}, 3, v{N}
    v_lshl_add_u32 v{T0}, v{T1}, 3, v{T0}
    v_add_u32 v{VW}, s24, v{T0}""")
    for j in range(7):
        for h in range(2):
            a(f"ds_read_b64_tr_b16 {v2(WF+4*j+2*h)}, v{VW} offset:{(32*j+4*h)*32}")
    a(f"""v_and_b32 v{T1}, 7, v{N}
    v_mul_u32_u24 v{VO}, {PX}, v{T1}
    v_lshl_add_u32 v{VO}, v{G}, 3, v{VO}
    v_add_u32 v{VO}, s51, v{VO}
    v_lshlrev_b32 v{VA}, 4, v{T1}
    v_lshl_add_u32 v{VA}, v{G}, 7, v{VA}
    s_mul_i32 s25, s20, {7*512}
    s_add_u32 s25, s25, {WS_ACT}
    v_and_b32 v{OA}, 0x7ff, v{K}
    v_sub_u32 v{OA}, 2047, v{OA}
    v_mul_u32_u24 v{OA}, 896, v{OA}
    v_lshl_add_u32 v{OA}, v{G}, 3, v{OA}
    v_ashrrev_i32 v{T2}, 31, v{K}
    v_not_b32 v{T2}, v{T2}
    v_or_b32 v{T2}, 0x80000000, v{T2}
    v_xor_b32 v{K+1}, v{K}, v{T2}
    v_and_b32 v{K+1}, 0xffff0000, v{K+1}""")
    sigmoid_mul(a, SG, K+1, "1.0", T2)
    rbf(a, SG, SG)
    a(f"""v_lshlrev_b32 v{T1}, 4, v0
    v_add_u32 v{T1}, {LRED}, v{T1}""")
    def lds():
        for j in range(7):
            a(f"buffer_load_dwordx4 {v4(AF+4*j)}, v{VA}, s[12:15], s25 offen offset:{512*j} {SC}")
    if OPT["c2re"]:
        if OPT["sl_a"]: a(f"s_sleep {OPT['sl_a']}")
        lds()
        fetch_row_finish(a, 84, T2)
        anyones(a, range(AF, AF+28), T0)
        a("s_cmp_eq_u64 vcc, 0\ns_cbranch_scc1 Lactok")
        poll(a, lds, lambda: anyones(a, range(AF, AF+28), T0))
        a("Lactok:")
    else:
        fetch_row_finish(a, 84, T2)
        poll(a, lds, lambda: anyones(a, range(AF, AF+28), T0), pre=OPT["sl_a"])
    stamp(a, 10)
    a("s_waitcnt lgkmcnt(0)")
    for j in range(7):
        A = ACC + 4*(j & 1)
        a(f"v_mfma_f32_16x16x32_bf16 {v4(A)}, {v4(WF+4*j)}, {v4(AF+4*j)}, {'0' if j < 2 else v4(A)}")
    for p in range(2):
        a(f"v_pk_add_f32 {v2(ACC+2*p)}, {v2(ACC+2*p)}, {v2(ACC+4+2*p)}")
    a(f"""ds_write_b128 v{T1}, {v4(ACC)}
    s_waitcnt lgkmcnt(0)
    s_barrier
    s_cmp_lg_u32 s20, 0
    s_cbranch_scc1 Lend
    ds_read_b64 {v2(OR)}, v{VO} offset:{LXS}""")
    for w in range(1, 8):
        a(f"ds_read_b128 {v4(RD+4*w)}, v{T1} offset:{1024*w}")
    a("s_waitcnt lgkmcnt(7)")
    for i in range(2):
        a(f"v_lshlrev_b32 v{RD+2*i}, 16, v{OR+i}")
        a(f"v_and_b32 v{RD+2*i+1}, 0xffff0000, v{OR+i}")
    for w in range(1, 8):
        a(f"s_waitcnt lgkmcnt({7-w})")
        for p in range(2):
            a(f"v_pk_add_f32 {v2(ACC+2*p)}, {v2(ACC+2*p)}, {v2(RD+4*w+2*p)}")
    for rnd in range(2):
        for p in range(2): a(f"v_cvt_pk_bf16_f32 v{ACC+4+p}, v{ACC+2*p}, v{ACC+2*p+1}")
        for p in range(2):
            a(f"v_lshlrev_b32 v{ACC+2*p}, 16, v{ACC+4+p}")
            a(f"v_and_b32 v{ACC+2*p+1}, 0xffff0000, v{ACC+4+p}")
        for p in range(2):
            if rnd == 0: a(f"v_pk_mul_f32 {v2(ACC+2*p)}, {v2(ACC+2*p)}, {v2(SG)} op_sel_hi:[1,0]")
            else: a(f"v_pk_add_f32 {v2(ACC+2*p)}, {v2(ACC+2*p)}, {v2(RD+2*p)}")
    for p in range(2): a(f"v_cvt_pk_bf16_f32 v{OR+p}, v{ACC+2*p}, v{ACC+2*p+1}")
    a(f"""s_mov_b32 exec_lo, 0x00ff00ff
    s_mov_b32 exec_hi, 0x00ff00ff
    buffer_store_dwordx2 {v2(OR)}, v{OA}, s[52:55], s51 offen {['', 'sc1', 'nt', 'sc0 sc1'][OPT['ost']]}""")

def clears(a):
    a(f"""v_mov_b32 v{JUNK+2}, -1
    v_lshlrev_b32 v{T1}, 2, v{LANE}
    s_lshl_b32 s24, s2, 7
    s_add_u32 s24, s24, {WS_ACT}
    s_mov_b32 exec_hi, 0
    buffer_store_dword v{JUNK+2}, v{T1}, s[12:15], s24 offen {SC}
    s_mov_b32 exec_lo, 1
    s_lshl_b32 s23, s96, 11
    s_add_u32 s23, s23, {WS_ROW}
    buffer_load_dword v{JUNK}, v{VL}, s[52:55], s97 offen
    buffer_load_dword v{JUNK+1}, v{VL}, s[12:15], s23 offen
    s_mov_b64 exec, -1""")

def prefetch(a):
    a(f"""s_and_b32 s24, s2, 7
    s_lshr_b32 s25, s2, 3
    s_mul_i32 s26, s25, {14*3584}
    s_mov_b32 s18, {448*3584}
    s_cmp_eq_u32 s20, 3
    s_cbranch_scc1 Lpf_d
    v_lshrrev_b32 v{T0}, 2, v{LANE}
    v_mul_u32_u24 v{T0}, 3584, v{T0}
    v_and_b32 v{T1}, 3, v{LANE}
    v_lshl_add_u32 v{T0}, v{T1}, 7, v{T0}
    s_mul_i32 s24, s24, 448
    s_cmp_eq_u32 s20, 1
    s_cselect_b32 s16, s42, s44
    s_cselect_b32 s17, s43, s45
    s_branch Lpf_go
    Lpf_d:
    v_mul_u32_u24 v{T0}, 896, v{LANE}
    s_lshl_b32 s24, s24, 7
    s_mov_b32 s16, s46
    s_mov_b32 s17, s47
    Lpf_go:
    s_and_b32 s17, s17, 0xffff
    s_add_u32 s26, s26, s24
    s_mov_b32 exec_hi, 0x00ffffff
    buffer_load_dword v{JUNK}, v{T0}, s[16:19], s26 offen
    s_mov_b32 exec_hi, -1""")

def kernel(a):
    if OPT["stamps"]:
        for k in range(NST): a(f"s_mov_b32 s{64+2*k}, 0")
    stamp(a, 0)
    a(f"""s_load_dwordx2 s[8:9], s[0:1], 0
    s_cmp_ge_u32 s2, 256
    s_cbranch_scc1 Lexit
    v_lshrrev_b32 v{T0}, 6, v0
    v_and_b32 v{LANE}, 63, v0
    v_readfirstlane_b32 s20, v{T0}
    v_lshlrev_b32 v{VL}, 4, v{LANE}
    s_and_b32 s21, s2, 31
    s_lshr_b32 s22, s2, 5
    s_mov_b32 s10, {XB}
    s_mov_b32 s11, 0x00020000
    s_cmp_lt_u32 s20, 4
    s_cbranch_scc1 Lloader
    s_getpc_b64 s[30:31]
    Lpc:
    v_and_b32 v{T2}, 255, v0
    v_lshlrev_b32 v{JUNK}, 7, v{T2}
    v_mov_b32 v{JUNK+1}, s31
    v_add_co_u32 v{JUNK}, vcc, s30, v{JUNK}
    v_addc_co_u32 v{JUNK+1}, vcc, 0, v{JUNK+1}, vcc
    v_cmp_gt_u32 vcc, (Lexit-Lpc)/128+1, v{T2}
    s_and_saveexec_b64 s[30:31], vcc
    s_cbranch_execz Lcompute
    global_load_dword v{JUNK+2}, v[{JUNK}:{JUNK+1}], off
    s_branch Lcompute
    Lloader:
    v_cmp_lt_u32 vcc, 29, v{LANE}
    s_lshl_b32 s23, s20, 9
    s_add_u32 s23, s23, s21
    s_mul_i32 s23, s23, 896
    s_mul_i32 s24, s20, {16*PH}
    v_add_u32 v{T1}, {32*896 - 480}, v{VL}
    s_mov_b32 s25, {'s22' if OPT['rot'] else '0'}
    v_cndmask_b32 v{T1}, v{VL}, v{T1}, vcc
    s_mov_b32 exec_lo, 0xcfffffff
    s_mov_b32 exec_hi, 0x03ffffff
    s_mov_b32 s28, 0
    s_waitcnt lgkmcnt(0)""")
    stamp(a, 3, True)
    a(f"""Ldma:
    s_mul_i32 s26, s25, {2*PH}
    s_mul_i32 s27, s25, {64*896}
    s_add_u32 s26, s26, s24
    s_add_u32 s27, s27, s23
    s_mov_b32 m0, s26
    s_add_u32 s25, s25, 1
    buffer_load_dwordx4 v{T1}, s[8:11], s27 offen lds
    s_and_b32 s25, s25, 7
    s_add_u32 s28, s28, 1
    s_cmp_lg_u32 s28, 8
    s_cbranch_scc1 Ldma1
    s_add_u32 s24, s24, {LXH}
    s_add_u32 s23, s23, 448
    Ldma1:
    s_cmp_lt_u32 s28, 16
    s_cbranch_scc1 Ldma
""")
    def ltail():
        a(f"""Lltail:
        s_mov_b64 exec, -1
        s_load_dwordx2 s[6:7], s[0:1], 96
        s_load_dwordx8 s[40:47], s[0:1], 48
        s_load_dwordx2 s[48:49], s[0:1], 80
        v_and_b32 v{N}, 15, v0
        v_bfe_u32 v{G}, v0, 4, 2""")
        stamp(a, 6, True)
        early = OPT["e2a"]
        if early:
            a("s_waitcnt vmcnt(8)")
            stamp(a, 1)
            a("s_barrier")
        a("s_waitcnt lgkmcnt(0)")
        b_setup(a)
        b_loads(a)
        a("s_cmp_lg_u32 s20, 0\ns_cbranch_scc1 Lw123a")
        clears(a)
        if not early:
            a("s_waitcnt vmcnt(14)")
            stamp(a, 1)
            a("s_barrier")
        a("s_waitcnt vmcnt(6)")
        stamp(a, 2)
        a(f"""s_barrier
        v_mov_b32 v{T0}, {LTAG}
        s_waitcnt vmcnt(5)
        ds_write_b32 v{T0}, v{V_EP}
        s_branch Lprol
        Lw123a:""")
        prefetch(a)
        if not early:
            a(f"s_waitcnt vmcnt(12)")
            stamp(a, 1)
            a("s_barrier")
        a(f"s_waitcnt vmcnt(4)")
        stamp(a, 2)
        a(f"s_barrier\ns_waitcnt vmcnt(3)")
        a("Lprol:")
        if OPT["wdh"]: wd_dma(a, 0, 7, "Lnwd2")
        if OPT["w64l"]:
            a("s_mov_b32 s3, s20")
            w64(a, AC1)
            for i in range(8): a(f"v_xor_b32 v{AC1+16+i}, 0x80008000, v{AC1+8+i}")
            a(f"s_lshl_b32 s26, s3, 12\ns_add_u32 s26, s26, {LWT}\nv_add_u32 v{T1}, s26, v{VL}")
            for i in range(6): a(f"ds_write_b128 v{T1}, {v4(AC1+4*i)} offset:{[0, 1024, 2048, 3072, 16384, 17408][i]}")
        if not OPT["prolate"]: pro(a)
        stamp(a, 3)
        a("s_waitcnt lgkmcnt(0)\ns_barrier")
        a("s_branch Lpro1" if OPT["prolate"] else "s_branch Lpro2")
    if OPT["layout"]: a("s_branch Lltail")
    else: ltail()
    a(f"""Lcompute:
    s_mov_b64 exec, -1
    s_load_dwordx2 s[6:7], s[0:1], 96
    s_load_dwordx8 s[40:47], s[0:1], 48
    s_load_dwordx2 s[48:49], s[0:1], 80
    v_and_b32 v{N}, 15, v0
    v_bfe_u32 v{G}, v0, 4, 2
    s_and_b32 s3, s20, 3""")
    if OPT["prio"]: a("s_setprio 3")
    stamp(a, 9, True)
    a_pre(a)
    stamp(a, 11, True)
    a("s_waitcnt lgkmcnt(0)")
    b_setup(a)
    stamp(a, 1)
    a("s_barrier")
    stamp(a, 2)
    a_main(a)
    stamp(a, 4)
    if OPT["prio"]: a("s_setprio 0")
    a(f"buffer_load_dwordx4 {v4(B_WR)}, v{VL}, s[16:19], 0 offen")
    a(f"buffer_load_dwordx4 {v4(B_XR)}, v{VL}, s[8:11], s97 offen")
    a("Lpro1:")
    pro(a)
    a("Lpro2:")
    a(f"""v_readfirstlane_b32 s56, v{V_EP}
    s_add_u32 s56, s56, 1
    s_mul_i32 s98, s56, {HASH}
    s_lshl_b32 s99, s98, 6
    s_and_b32 s59, s56, 0xffff
    s_barrier""")
    stamp(a, 5)
    b_main(a)
    if OPT["wdh"]: a("s_cmp_lt_u32 s20, 4\ns_cbranch_scc1 Lnwd1")
    wd_dma(a, OPT['wdsplit'], 7, 'Lnwd1')
    c_select(a)
    a("s_cmp_ge_u32 s2, 224\ns_cbranch_scc1 Lc2")
    c1(a)
    a("Lc2:\ns_and_b32 s50, s2, 7\ns_cmp_eq_u32 s50, 7\ns_cbranch_scc1 Lend\ns_lshl_b32 s50, s50, 7\ns_bfe_u32 s51, s2, 0x20003\ns_lshl_b32 s51, s51, 5\ns_add_u32 s51, s51, s50")
    c2(a)
    a("Lend:")
    dump_stamps(a)
    if OPT["layout"]:
        a("s_endpgm")
        ltail()
    a("Lexit:\ns_endpgm\nLfullsel:")
    select8(a, C_K, C_TMP, C_L, C_SW, C_SR)
    a("s_branch Lseldone")

NAME = "sequential_preLN__spectral_fnet__moe_arch_mod__prompt_kernel"
def build():
    a = Asm()
    kernel(a)
    body = a.finish()
    if OPT["align"]: body = align_pass(body)
    return gen.HDR + f"""; @launch grid=(256,1,1) block=(512,1,1) lds={LDS_TOTAL}
.amdgcn_target "amdgcn-amd-amdhsa--gfx950"
.text
.globl {NAME}
.p2align 8
.type {NAME},@function
{NAME}:
""" + body + f""".section .rodata,"a"
.p2align 6
.amdhsa_kernel {NAME}
  .amdhsa_next_free_vgpr {NVGPR}
  .amdhsa_next_free_sgpr 102
  .amdhsa_accum_offset {NVGPR}
  .amdhsa_group_segment_fixed_size 0
  .amdhsa_kernarg_size 104
  .amdhsa_user_sgpr_count 2
  .amdhsa_user_sgpr_kernarg_segment_ptr 1
  .amdhsa_system_sgpr_workgroup_id_x 1
.end_amdhsa_kernel
"""

if __name__ == "__main__":
    for x in list(sys.argv[1:]):
        if x.startswith("--"):
            k, _, v = x[2:].partition("=")
            assert k in OPT, k
            OPT[k] = int(v) if v else 1
            sys.argv.remove(x)
    open(sys.argv[1], "w").write(build())
```

```python
import sys
from asmlib import Asm, fl, align_pass
import gen
from gen import srd, v4, v2, rbf, sd_chain, reduce3, unpack8, lim_regs, select8, sigmoid_mul

WS_KEYS = 0x200000
WS_EPOCH = 0x208000
WS_ACT = 0x210000
WS_STAMP = 0x3c0000
WS_ROW = 0x400000
WS_SIZE = 0x800000
XB = 1835008
PH = 480; PX = 928; PF = 136; PY = 452
LXH = 64 * PH
LW = 2 * LXH; LCS = LW + 28 * 1024; LTAG = LCS + 256; LF = LCS + 272; LWT = LF + 64 * PF; LDS_TOTAL = LWT + 57344
LY = 0
LSEL = 16384; LSE2 = 16640; LKEY = 17152; LXS = 17408; LRED = 24832
SPIN = 4000000
SC = "sc1"
HASH = "0x9e3779b1"
OPT = dict(stamps=0, cyc=0, align=0, sl_u0=8, sl_k=13, sl_a=0, rowpf=2, barj=4, dbgto=0, ost=0, c2re=1, rot=1, pf=3, wdsplit=0, w64l=0, layout=1, e2a=1, prolate=1, amp=-1, ampw=0, ampb=224, prio=1, wdh=0, cheb=1, ln1emu=1)
NST = 14

def stamp(a, k, early=False):
    if OPT["stamps"] == 5:
        if early != 5 and k not in (0, 3, 4, NST - 1): return
    elif OPT["stamps"] == 4:
        if early == 5 or (not early and k not in (0, 1, 2, NST - 1)): return
    elif early: return
    if OPT["stamps"] == 2 and k not in (0, NST - 1): return
    if OPT["stamps"]: a(f"{'s_memtime' if OPT['cyc'] else 's_memrealtime'} s[{64+2*k}:{65+2*k}]")
def dump_stamps(a):
    if OPT["amp"] >= 0:
        k = OPT["amp"]
        a(f"s_memrealtime s[{64+2*(NST-2)}:{65+2*(NST-2)}]")
        a(f"""s_cmp_lg_u32 s2, {OPT['ampb']}
        s_cbranch_scc1 Lampd
        s_cmp_lg_u32 s20, {OPT['ampw']}
        s_cbranch_scc1 Lampd
        s_waitcnt lgkmcnt(0)
        s_sub_u32 s60, s{64+2*k}, s64
        s_mul_i32 s60, s60, 9
        s_add_u32 s60, s60, s{64+2*(NST-2)}
        Lamp:
        s_memrealtime s[62:63]
        s_waitcnt lgkmcnt(0)
        s_sub_u32 s61, s62, s60
        s_cmp_lt_i32 s61, 0
        s_cbranch_scc1 Lamp
        Lampd:""")
        return
    if not OPT["stamps"]: return
    stamp(a, NST - 2)
    a("s_waitcnt vmcnt(0)")
    stamp(a, NST - 1)
    a("s_mov_b64 exec, 1\ns_waitcnt lgkmcnt(0)")
    a(f"s_lshl_b32 s60, s2, 3\ns_add_u32 s60, s60, s20\ns_lshl_b32 s60, s60, 6\ns_add_u32 s60, s60, {WS_STAMP}\nv_mov_b32 v1, 0")
    for k in range(NST):
        a(f"v_mov_b32 v2, s{64+2*k}\nbuffer_store_dword v2, v1, s[12:15], s60 offen offset:{4*k}")

_lbl = [0]
def timeout_note(a, ident):
    if not OPT["dbgto"]: return
    a(f"""s_lshl_b32 s100, s2, 8
    s_add_u32 s100, s100, s20
    s_add_u32 s100, s100, {ident << 24}
    v_mov_b32 v{JUNK+3}, s100
    s_mov_b32 s100, {0x3f0000 + 4*ident}
    s_mov_b64 exec, 1
    buffer_store_dword v{JUNK+3}, v{VL}, s[12:15], s100 offen
    v_mov_b32 v{JUNK+3}, s36
    buffer_store_dword v{JUNK+3}, v{VL}, s[12:15], s100 offen offset:64
    v_mov_b32 v{JUNK+3}, s98
    buffer_store_dword v{JUNK+3}, v{VL}, s[12:15], s100 offen offset:128
    v_mov_b32 v{JUNK+3}, s34
    buffer_store_dword v{JUNK+3}, v{VL}, s[12:15], s100 offen offset:192
    s_mov_b64 exec, -1""")
def poll(a, loads, check, pre=0):
    _lbl[0] += 1
    L = f"Lpoll{_lbl[0]}"
    if pre: a(f"s_sleep {pre}")
    a(f"s_mov_b32 s57, {SPIN}\n{L}:")
    loads()
    a("s_waitcnt vmcnt(0)")
    check()
    a(f"""s_cmp_eq_u64 vcc, 0
    s_cbranch_scc1 {L}d
    s_sub_u32 s57, s57, 1
    s_cbranch_scc0 {L}""")
    timeout_note(a, _lbl[0])
    a(f"{L}d:")

class LdsQ:
    def __init__(s, a): s.a = a; s.q = []
    def read(s, text, b, n=4):
        s.a(text); s.q.append(set(range(b, b + n)))
    def need(s, b, n=4):
        rs = set(range(b, b + n)); last = -1
        for i, d in enumerate(s.q):
            if d & rs: last = i
        if last >= 0:
            s.a(f"s_waitcnt lgkmcnt({len(s.q) - 1 - last})")
            s.q = s.q[last+1:]

LANE, N, G, T0, T1, T2, VL = 1, 2, 3, 4, 5, 6, 7
B_XR = 8; B_WR = 12; V_EP = 16; VFW = 17; VFR = 18; VXR = 19; VCS = 20; VUS = 21; ST = 22
WC = 28; WSN = 36; WNS = 44
AC1 = 52; AC2 = 68; GR = 84; XF = 88; WD = 116
JUNK = 228; SG2 = 232; NVGPR = 236
B_AF = 28; B_AD = 36; B_VY = 40; B_VU = 41; C_L = {1: 42, 2: 43, 4: 44}; C_SW = 45; C_SR = 46; C_KA = 47
C_FW = 48; C_FR = 49; C_FY = 50; C_PF = 51
B_R = 116; B_ACC = 52; B_XU = 68; B_WU = 76; B_S1, B_S2, B_S3 = 88, 90, 92; B_TH = 96; P_TH = 104; P_EPS = 112; P_BASE = 113
C_K = 148; C_TMP = 152; C_KEY = 156; C_X = 157; C_Y = 158; C_OUT = 160; C_LN = 164; C_IX = 224; C_STK = 159

def trig_block(a, n, k0, eps, base, th, want_sin):
    for i in range(n):
        k = k0 + i
        if k == 0: a(f"v_mov_b32 v{th+i}, v{base}")
        else: a(f"v_fmamk_f32 v{th+i}, v{eps}, {fl(float(k))}, v{base}")
    for i in range(n):
        if want_sin: a(f"v_sin_f32 v{th+n+i}, v{th+i}")
        a(f"v_cos_f32 v{th+i}, v{th+i}")

def w64(a, D):
    EPS, BASE, TH, S = ST + 4, ST + 5, XF, ST
    a(f"""v_lshrrev_b32 v{S}, 1, v{N}
    s_lshl_b32 s25, s3, 3
    v_add_u32 v{S}, s25, v{S}
    v_sub_u32 v{S+1}, 64, v{S}
    v_cmp_eq_u32 vcc, 0, v{S}
    v_and_b32 v{S+2}, 1, v{N}
    v_cndmask_b32 v{S+1}, v{S+1}, 32, vcc
    v_cmp_eq_u32 vcc, 0, v{S+2}
    v_lshlrev_b32 v{S+2}, 3, v{G}
    v_cndmask_b32 v{S+1}, v{S+1}, v{S}, vcc
    v_cvt_f32_u32 v{S+2}, v{S+2}
    v_and_b32 v{S}, 1, v{S+1}
    v_cvt_f32_u32 v{S+1}, v{S+1}
    v_mul_u32_u24 v{S}, 0x8000, v{S}
    v_mul_f32 v{EPS}, {fl(1.0/64)}, v{S+1}
    v_lshl_or_b32 v{S}, v{S}, 16, v{S}
    v_mul_f32 v{BASE}, v{S+2}, v{EPS}""")
    if OPT["cheb"]:
        C2 = S + 3; CV = XF; SV = XF + 8
        a(f"""v_cos_f32 v{C2}, v{EPS}
        v_add_f32 v{CV+1}, v{EPS}, v{BASE}
        v_sin_f32 v{SV}, v{BASE}
        v_cos_f32 v{CV}, v{BASE}
        v_sin_f32 v{SV+1}, v{CV+1}
        v_cos_f32 v{CV+1}, v{CV+1}
        v_add_f32 v{C2}, v{C2}, v{C2}""")
        for i in range(2, 8):
            for Vv in (CV, SV): a(f"v_fma_f32 v{Vv+i}, v{C2}, v{Vv+i-1}, -v{Vv+i-2}")
        for i in range(4):
            a(f"v_cvt_pk_f16_f32 v{D+i}, v{CV+2*i}, v{CV+2*i+1}")
            a(f"v_cvt_pk_f16_f32 v{D+8+i}, v{SV+2*i}, v{SV+2*i+1}")
        for i in range(4):
            a(f"v_xor_b32 v{D+4+i}, v{S}, v{D+i}")
            a(f"v_xor_b32 v{D+12+i}, v{S}, v{D+8+i}")
        return
    for ks in range(2):
        for h in range(2):
            trig_block(a, 4, 32*ks + 4*h, EPS, BASE, TH, True)
            for i in range(2):
                a(f"v_cvt_pk_f16_f32 v{D+4*ks+2*h+i}, v{TH+2*i}, v{TH+2*i+1}")
                a(f"v_cvt_pk_f16_f32 v{D+8+4*ks+2*h+i}, v{TH+4+2*i}, v{TH+4+2*i+1}")

def a_pre(a):
    EPS, BASE, TH, ONE, TO, CS = ST + 4, ST + 5, XF, XF + 8, XF + 12, AC1
    a(f"""s_and_b32 s25, s3, 1
    s_lshl_b32 s25, s25, 2
    v_and_b32 v{T0}, 3, v{N}
    v_add_u32 v{T0}, s25, v{T0}
    v_lshrrev_b32 v{T1}, 2, v{N}
    s_mul_i32 s26, s22, 28
    s_add_u32 s26, s26, 1
    v_mad_u32_u24 v{T1}, v{T1}, 7, v{T0}
    v_add_u32 v{T1}, s26, v{T1}
    v_cmp_ne_u32 vcc, 7, v{T0}
    s_lshr_b32 s25, s3, 1
    s_mul_i32 s25, s25, {fl(0.25)}
    v_cndmask_b32 v{T1}, 0, v{T1}, vcc
    v_cvt_f32_u32 v{T1}, v{T1}
    v_mul_f32 v{EPS}, {fl(1.0/448)}, v{T1}
    v_lshlrev_b32 v{T0}, 3, v{G}
    v_cvt_f32_u32 v{T2}, v{T0}
    v_fma_f32 v{BASE}, v{T2}, v{EPS}, s25
    s_mul_i32 s25, s3, {7*1024}
    s_add_u32 s25, s25, {LW}
    v_add_u32 v{T1}, s25, v{VL}""")
    for i in range(4): a(f"v_mov_b32 v{ONE+i}, 0x3f803f80")
    if OPT["cheb"]:
        C2 = ST + 3; V = WD
        a(f"v_cos_f32 v{C2}, v{EPS}")
        for j in range(7):
            for i in range(2):
                k = 32*j + i
                if k == 0: a(f"v_mov_b32 v{V}, v{BASE}")
                else: a(f"v_fmamk_f32 v{V+8*j+i}, v{EPS}, {fl(float(k))}, v{BASE}")
        a(f"v_add_f32 v{C2}, v{C2}, v{C2}")
        for j in range(7):
            for i in range(2): a(f"v_cos_f32 v{V+8*j+i}, v{V+8*j+i}")
        for i in range(2, 8):
            for j in range(7):
                a(f"v_fma_f32 v{V+8*j+i}, v{C2}, v{V+8*j+i-1}, -v{V+8*j+i-2}")
        for j in range(7):
            o = V + 56 + 4*j
            for i in range(4): a(f"v_cvt_pk_bf16_f32 v{o+i}, v{V+8*j+2*i}, v{V+8*j+2*i+1}")
            a(f"ds_write_b128 v{T1}, {v4(o)} offset:{j*1024}")
            a(f"v_mfma_f32_16x16x32_bf16 {v4(CS)}, {v4(o)}, {v4(ONE)}, {'0' if j == 0 else v4(CS)}")
    else:
      for j in range(7):
        trig_block(a, 8, 32*j, EPS, BASE, TH, False)
        o = TO + 4*(j & 1)
        for i in range(4): a(f"v_cvt_pk_bf16_f32 v{o+i}, v{TH+2*i}, v{TH+2*i+1}")
        a(f"ds_write_b128 v{T1}, {v4(o)} offset:{j*1024}")
        a(f"v_mfma_f32_16x16x32_bf16 {v4(CS)}, {v4(o)}, {v4(ONE)}, {'0' if j == 0 else v4(CS)}")
    a(f"""v_lshrrev_b32 v{ST}, 1, v{N}
    s_lshl_b32 s25, s3, 3
    v_add_u32 v{ST}, s25, v{ST}
    v_and_b32 v{ST+2}, 1, v{N}
    v_lshlrev_b32 v{VUS}, 16, v{ST}
    v_lshl_add_u32 v{VUS}, v{ST+2}, 6, v{VUS}
    v_lshl_add_u32 v{VUS}, v{G}, 4, v{VUS}
    s_lshl_b32 s25, s3, 6
    v_lshlrev_b32 v{T0}, 4, v{G}
    v_add_u32 v{VCS}, {LCS}, v{T0}
    v_add_u32 v{T1}, s25, v{VCS}
    v_lshlrev_b32 v{SG2+1}, 31, v{G}
    v_or_b32 v{SG2+1}, 1.0, v{SG2+1}
    v_xor_b32 v{SG2}, 0x80000000, v{SG2+1}
    v_pk_fma_f32 {v2(CS)}, {v2(CS)}, {v2(SG2)}, {v2(CS)}
    v_pk_fma_f32 {v2(CS+2)}, {v2(CS+2)}, {v2(SG2)}, {v2(CS+2)}
    ds_write_b128 v{T1}, {v4(CS)}""")
    if not OPT["w64l"]:
        w64(a, WC)
        for i in range(8): a(f"v_xor_b32 v{WNS+i}, 0x80008000, v{WSN+i}")
    stamp(a, 10, True)
    a(f"v_add_u32 v{T2}, {LW}, v{VL}")
    a(f"""s_lshl_b32 s25, s3, 4
    v_add_u32 v{ST}, s25, v{N}
    v_mul_u32_u24 v{VXR}, {PH}, v{ST}
    v_add_u32 v{VXR}, v{T0}, v{VXR}
    v_mul_u32_u24 v{VFW}, {PF}, v{ST}
    v_lshl_add_u32 v{VFW}, v{G}, 3, v{VFW}
    v_add_u32 v{VFW}, {LF}, v{VFW}
    v_lshrrev_b32 v{ST}, 2, v{N}
    v_lshl_add_u32 v{ST}, v{G}, 3, v{ST}
    v_mul_u32_u24 v{VFR}, {PF}, v{ST}
    v_and_b32 v{ST}, 3, v{N}
    v_lshl_add_u32 v{VFR}, v{ST}, 3, v{VFR}
    v_add_u32 v{VFR}, {LF}, v{VFR}
    s_lshl_b32 s23, s21, 11
    s_lshl_b32 s24, s22, 8
    s_add_u32 s23, s23, s24""")
    for r in range(4):
        a(f"s_mov_b32 s{30+2*r}, {hex(((1<<r)|(1<<(20+r))) & 0xffffffff)}")
        a(f"s_mov_b32 s{31+2*r}, {hex(((1<<(8+r))|(1<<(28+r))) & 0xffffffff)}")
    a("s_mov_b64 s[24:25], 0xffff")

def a_main(a):
    q = LdsQ(a)
    def rdx(j, hf): q.read(f"ds_read_b128 {v4(XF+4*j)}, v{VXR} offset:{64*j + hf*LXH}", XF+4*j)
    def rdw(j):
        for T in range(4): q.read(f"ds_read_b128 {v4(WD+4*(7*T+j))}, v{T2} offset:{(7*T+j)*1024}", WD+4*(7*T+j))
    for j in range(3): rdx(j, 0); rdw(j)
    BJ = OPT["barj"]
    Q, S, M, RS = ST, ST+1, ST+2, ST+4
    def mf(A, T, j, first): a(f"v_mfma_f32_16x16x32_bf16 {v4(A+4*T)}, {v4(WD+4*(7*T+j))}, {v4(XF+4*j)}, {'0' if first else v4(A+4*T)}")
    def gram(j, first): a(f"v_mfma_f32_16x16x32_bf16 {v4(GR)}, {v4(XF+4*j)}, {v4(XF+4*j)}, {'0' if first else v4(GR)}")
    for j in range(7):
        q.need(XF + 4*j)
        gram(j, j == 0)
        for T in range(4):
            q.need(WD+4*(7*T+j))
            mf(AC1, T, j, j == 0)
        if j + 3 < 7: rdx(j + 3, 0); rdw(j + 3)
        if j == BJ:
            stamp(a, 11)
            a("s_barrier")
            for k in range(BJ + 1): rdx(k, 1)
        elif j > BJ: rdx(j, 1)
    CS = WD + 28
    for j in range(7):
        q.need(XF + 4*j)
        gram(j, False)
        mf(AC2, 1, j, j == 0)
    for T in range(4): q.read(f"ds_read_b128 {v4(CS+4*T)}, v{VCS} offset:{64*T}", CS+4*T)
    stats = [None, None, f"v_mov_b32 v{Q}, 0", f"v_mov_b32 v{V_EP}, {LTAG}"]
    stats += [f"v_cndmask_b32 v{Q}, v{Q}, v{GR+r}, s[{30+2*r}:{31+2*r}]" for r in range(4)]
    stats += [f"v_add_f32 v{S}, v{AC1+7}, v{AC2+7}", f"v_cndmask_b32 v{S}, 0, v{S}, s[24:25]", None, None,
              f"v_permlane32_swap_b32 v{Q}, v{S}", f"v_add_f32 v{Q}, v{Q}, v{S}", f"v_mov_b32 v{S}, v{Q}", None, None,
              f"v_permlane16_swap_b32 v{Q}, v{S}", f"v_add_f32 v{Q}, v{Q}, v{S}", f"v_mov_b32 v{S}, v{Q}", None, None,
              f"v_permlane32_swap_b32 v{Q}, v{S}", f"v_mul_f32 v{M}, {fl(-1.0/448)}, v{S}", f"v_mul_f32 v{Q}, {fl(1.0/448)}, v{Q}",
              f"v_fma_f32 v{Q}, -v{M}, v{M}, v{Q}", f"v_max_f32 v{Q}, 0, v{Q}"]
    rb = [f"v_cvt_pk_bf16_f32 v{Q}, v{Q}, v{Q}", f"v_and_b32 v{Q}, 0xffff0000, v{Q}"]
    if OPT["ln1emu"]:
        stats += rb + [f"v_add_f32 v{Q}, {fl(1e-5)}, v{Q}"] + rb + [f"v_sqrt_f32 v{Q}, v{Q}", None] + rb + [f"v_rcp_f32 v{RS}, v{Q}"]
    else:
        stats += [f"v_add_f32 v{Q}, {fl(1e-5)}, v{Q}", f"v_rsq_f32 v{RS}, v{Q}"]
    stats += ["WAITCS", f"v_mul_f32 v{M}, v{M}, v{RS}"]
    stats += [f"v_mul_f32 v{CS+i}, v{CS+i}, v{M}" for i in range(16)]
    for j in range(7):
        for T in (0, 2, 3):
            mf(AC2, T, j, j == 0)
            for _ in range(2):
                if stats:
                    t = stats.pop(0)
                    if t == "WAITCS": q.need(CS, 16)
                    elif t: a(t)
    for p in range(2): a(f"v_pk_fma_f32 {v2(AC1+4+2*p)}, {v2(AC2+4+2*p)}, {v2(SG2)}, {v2(AC1+4+2*p)}")
    for t in stats:
        if t == "WAITCS": q.need(CS, 16)
        elif t: a(t)
    stamp(a, 3)
    for T in (0, 2, 3):
        for p in range(2):
            x = AC1 + 4*T + 2*p
            a(f"v_pk_fma_f32 {v2(x)}, {v2(AC2+4*T+2*p)}, {v2(SG2)}, {v2(x)}")
    for T in (1, 0, 2, 3):
        for p in range(2):
            x = AC1 + 4*T + 2*p
            a(f"v_pk_fma_f32 {v2(x)}, {v2(x)}, {v2(RS)}, {v2(CS+4*T+2*p)} op_sel_hi:[1,0,1]")
    for T in (1, 0, 2, 3):
        for p in range(2):
            x = AC1 + 4*T + 2*p
            a(f"v_cvt_pk_f16_f32 v{AC2+2*T+p}, v{x}, v{x+1}")
        a(f"ds_write_b64 v{VFW}, {v2(AC2+2*T)} offset:{32*T}")
    if OPT["w64l"]: a(f"s_lshl_b32 s26, s3, 12\ns_add_u32 s26, s26, {LWT}\nv_add_u32 v{T1}, s26, v{VL}")
    stamp(a, 5, 5)
    a(f"s_waitcnt lgkmcnt(0)")
    stamp(a, 6, 5)
    a(f"s_barrier")
    stamp(a, 7, 5)
    if OPT["w64l"]:
        for i in (0, 2, 4, 1, 3, 5): a(f"ds_read_b128 {v4(WC+4*i)}, v{T1} offset:{(i % 4 if i < 4 else i - 2 + 2) * 0 + i * 0 + [0, 1024, 2048, 3072, 16384, 17408][i]}")
    FA = WD + 48
    fa = lambda T, ks: FA + (2*T + ks) * 4
    q = LdsQ(a)
    for T in range(2):
        for ks in range(2):
            for TT in (T, T + 2):
                for h in range(2):
                    q.read(f"ds_read_b64_tr_b16 {v2(fa(TT, ks)+2*h)}, v{VFR} offset:{(32*ks+4*h)*PF+32*TT}", fa(TT, ks)+2*h, 2)
    q.read(f"ds_read_b32 v{V_EP}, v{V_EP}", V_EP, 1)
    UR = AC1; UI = AC1 + 8; o = XF
    tagcalc = [f"v_add_u32 v{M}, 1, v{V_EP}", f"s_mov_b32 s98, {HASH}", f"v_mul_lo_u32 v{M}, v{M}, s98"]
    for T in range(2):
        for ks in range(2):
            fr = v4(fa(T, ks)); fi = v4(fa(T + 2, ks))
            q.need(fa(T, ks))
            if T == 0 and ks == 0: stamp(a, 8, 5)
            a(f"v_mfma_f32_16x16x32_f16 {v4(UR+4*T)}, {fr}, {v4(WC+4*ks)}, {'0' if ks == 0 else v4(UR+4*T)}")
            a(f"v_mfma_f32_16x16x32_f16 {v4(UI+4*T)}, {fr}, {v4(WNS+4*ks)}, {'0' if ks == 0 else v4(UI+4*T)}")
            q.need(fa(T + 2, ks))
            a(f"v_mfma_f32_16x16x32_f16 {v4(UR+4*T)}, {fi}, {v4(WSN+4*ks)}, {v4(UR+4*T)}")
            a(f"v_mfma_f32_16x16x32_f16 {v4(UI+4*T)}, {fi}, {v4(WC+4*ks)}, {v4(UI+4*T)}")
            if T == 1 and ks == 1:
                q.need(V_EP, 1)
                for t in tagcalc: a(t)
    stamp(a, 9, 5)
    for r in range(4): a(f"v_cvt_pk_f16_f32 v{o+r}, v{UR+r}, v{UI+r}")
    a(f"buffer_store_dwordx4 {v4(o)}, v{VUS}, s[12:15], s23 offen {SC}")
    stamp(a, 10, 5)
    a(f"v_add3_u32 v{Q}, v{o}, v{o+1}, v{o+2}")
    a(f"v_sub_u32 v{M}, v{M}, v{o+3}")
    a(f"v_sub_u32 v{M}, v{M}, v{Q}")
    for r in range(3): a(f"v_cvt_pk_f16_f32 v{o+4+r}, v{UR+4+r}, v{UI+4+r}")
    a(f"""v_add3_u32 v{Q}, v{o+4}, v{o+5}, v{o+6}
    v_sub_u32 v{o+7}, v{M}, v{Q}
    buffer_store_dwordx4 {v4(o+4)}, v{VUS}, s[12:15], s23 offen offset:128 {SC}""")

def b_ids(a):
    a(f"""s_and_b32 s92, s2, 7
    s_lshr_b32 s93, s2, 6
    s_lshl_b32 s93, s93, 3
    s_or_b32 s92, s92, s93
    s_bfe_u32 s93, s2, 0x10003
    s_bfe_u32 s96, s2, 0x20004
    s_sub_u32 s95, 64, s92
    s_cmp_eq_u32 s92, 0
    s_cselect_b32 s95, 32, s95
    s_cselect_b32 s94, 0, 1
    s_xor_b32 s94, s94, s93
    s_cmp_eq_u32 s93, 0
    s_cselect_b32 s95, s92, s95
    s_lshl_b32 s96, s96, 9
    s_add_u32 s95, s95, s96
    s_lshl_b32 s96, s20, 6
    s_add_u32 s96, s96, s95
    s_mul_i32 s97, s96, 896""")

def b_setup(a):
    srd(a, 12, 6, WS_SIZE)
    srd(a, 52, 48, XB)
    srd(a, 16, 40, 896)
    b_ids(a)

def b_loads(a):
    a(f"""s_mov_b32 s26, {WS_EPOCH}
    v_mov_b32 v{T0}, 0
    buffer_load_dword v{V_EP}, v{T0}, s[12:15], s26 offen {SC}
    buffer_load_dwordx4 {v4(B_WR)}, v{VL}, s[16:19], 0 offen
    buffer_load_dwordx4 {v4(B_XR)}, v{VL}, s[8:11], s97 offen""")

def pro(a):
    EPS, BASE, TH, AF, AD = P_EPS, P_BASE, P_TH, B_AF, B_AD
    a(f"""s_lshl_b32 s28, s92, 16
    s_lshl_b32 s29, s20, 8
    s_add_u32 s28, s28, s29
    s_add_u32 s29, s28, 4096
    s_add_u32 s30, s28, 32768
    s_add_u32 s31, s28, 36864
    v_lshlrev_b32 v{B_VU}, 13, v{G}
    v_lshl_add_u32 v{B_VU}, v{N}, 4, v{B_VU}
    v_and_b32 v{T0}, 7, v{N}
    v_lshlrev_b32 v{T0}, 6, v{T0}
    v_add_u32 v{T0}, s95, v{T0}
    v_cvt_f32_u32 v{T0}, v{T0}
    v_cmp_gt_u32 vcc, 8, v{N}
    v_mul_f32 v{EPS}, {fl(1.0/2048)}, v{T0}
    v_lshlrev_b32 v{T1}, 2, v{G}
    v_cndmask_b32 v{EPS}, -v{EPS}, v{EPS}, vcc
    v_cvt_f32_u32 v{T1}, v{T1}
    v_mul_f32 v{BASE}, v{T1}, v{EPS}""")
    for ks in range(2):
        trig_block(a, 4, 16*ks, EPS, BASE, TH, True)
        for i in range(4):
            a(f"v_cvt_pk_f16_f32 v{AF+4*ks+i}, v{TH+i}, v{TH+4+i}")
    a(f"""v_lshrrev_b32 v{T0}, 3, v{N}
    v_and_b32 v{T1}, 3, v{N}
    v_mul_u32_u24 v{T1}, 7, v{T1}
    v_lshl_add_u32 v{T1}, v{T0}, 2, v{T1}
    s_mul_i32 s32, s20, 28
    s_add_u32 s32, s32, 1
    v_add_u32 v{T1}, s32, v{T1}
    v_sub_u32 v{T2}, 448, v{T1}
    v_cmp_gt_u32 s[34:35], 2, v{G}
    v_mov_b32 v{TH}, s93
    v_mov_b32 v{TH+1}, s94
    v_cndmask_b32 v{T2}, v{T2}, v{T1}, s[34:35]
    v_cndmask_b32 v{TH}, v{TH+1}, v{TH}, s[34:35]
    v_bfe_u32 v{TH+1}, v{N}, 2, 1
    v_cmp_eq_u32 s[60:61], v{TH}, v{TH+1}
    v_and_b32 v{TH+2}, 1, v{G}
    v_mul_u32_u24 v{TH+2}, {4*PY}, v{TH+2}
    v_add_lshl_u32 v{AD}, v{TH+2}, v{T2}, 2
    v_mov_b32 v{TH+3}, -4
    v_cndmask_b32 v{TH+3}, v{TH+3}, 4, s[34:35]
    v_add_u32 v{AD+1}, v{AD}, v{TH+3}
    v_add_u32 v{AD+2}, v{AD+1}, v{TH+3}
    v_add_u32 v{AD+3}, v{AD+2}, v{TH+3}
    v_cmp_eq_u32 s[50:51], 0, v{T0}
    s_and_b64 s[50:51], s[50:51], s[60:61]
    v_mov_b32 v{TH}, 222
    v_cmp_eq_u32 s[62:63], v{TH}, v{T1}
    s_andn2_b64 s[62:63], s[62:63], s[34:35]
    s_andn2_b64 s[62:63], s[60:61], s[62:63]
    s_mul_i32 s33, s20, {PY*4}
    v_lshlrev_b32 v{B_VY}, 5, v{LANE}
    v_add_u32 v{B_VY}, s33, v{B_VY}""")
    lim_regs(a, C_L, LANE, T0)
    a(f"""s_lshl_b32 s34, s20, 5
    s_add_u32 s34, s34, {LSEL}
    v_lshlrev_b32 v{T1}, 2, v{LANE}
    v_add_u32 v{C_SW}, s34, v{T1}
    v_add_u32 v{C_SR}, {LSEL}, v{T1}
    v_lshrrev_b32 v{C_KA}, 1, v0
    v_lshlrev_b32 v{C_KA}, 6, v{C_KA}
    v_and_b32 v{T0}, 1, v0
    v_lshl_add_u32 v{C_KA}, v{T0}, 4, v{C_KA}
    s_lshl_b32 s34, s20, 6
    s_add_u32 s34, s34, {LSE2}
    v_add_u32 v{C_FW}, s34, v{T1}
    v_lshrrev_b32 v{C_PF}, 3, v{LANE}
    v_and_b32 v{C_FY}, 7, v{LANE}
    v_lshlrev_b32 v{C_FR}, 6, v{C_PF}
    v_lshl_add_u32 v{C_FR}, v{C_FY}, 2, v{C_FR}
    v_add_u32 v{C_FR}, {LSE2}, v{C_FR}
    v_lshlrev_b32 v{C_FY}, 6, v{C_FY}
    v_add_u32 v{C_FY}, {LSE2 + 32}, v{C_FY}
    v_lshlrev_b32 v{C_PF}, 7, v{C_PF}
    s_cmp_ge_u32 s2, 224
    s_cselect_b32 s33, 1024, 0
    s_add_u32 s33, s33, {WS_ROW}
    s_lshl_b32 s27, s2, 6
    s_add_u32 s27, s27, {WS_KEYS}
    s_sub_u32 s32, 2047, s96
    v_lshrrev_b32 v{T0}, 1, v0
    v_and_b32 v{T1}, 7, v{T0}
    v_lshrrev_b32 v{T2}, 6, v{T0}
    v_lshl_or_b32 v{T1}, v{T2}, 3, v{T1}
    v_sub_u32 v{T2}, 64, v{T1}
    v_cmp_eq_u32 vcc, 0, v{T1}
    v_bfe_u32 v{TH}, v{T0}, 3, 1
    v_cndmask_b32 v{T2}, v{T2}, 32, vcc
    v_cmp_eq_u32 vcc, 0, v{TH}
    v_bfe_u32 v{TH}, v{T0}, 4, 2
    v_cndmask_b32 v{T1}, v{T2}, v{T1}, vcc
    v_lshl_add_u32 v{T1}, v{TH}, 9, v{T1}
    v_and_b32 v{T0}, 1, v0
    v_lshl_add_u32 v{T1}, v{T0}, 8, v{T1}
    v_sub_u32 v{C_IX}, 2047, v{T1}
    v_subrev_u32 v{C_IX+1}, 64, v{C_IX}
    v_subrev_u32 v{C_IX+2}, 128, v{C_IX}
    v_subrev_u32 v{C_IX+3}, 192, v{C_IX}""")

def pro2(a):
    XU, WU, S1, S2, S3 = B_XU, B_WU, P_TH, P_TH + 2, P_TH + 4
    unpack8(a, WU, B_WR)
    a(f"""v_pk_add_f32 {v2(S1)}, {v2(WU)}, {v2(WU+2)}
    v_pk_add_f32 {v2(S2)}, {v2(WU+4)}, {v2(WU+6)}
    v_pk_add_f32 {v2(S1)}, {v2(S1)}, {v2(S2)}
    v_add_f32 v{S1}, v{S1}, v{S1+1}
    v_mov_b32 v{S2}, 0
    v_mov_b32 v{S3}, 0""")
    reduce3(a, S1, S2, S3, T0, 58, 39, 39)
    unpack8(a, XU, B_XR)
    for k in (B_S1, B_S1+1, B_S2, B_S2+1, B_S3, B_S3+1): a(f"v_mov_b32 v{k}, 0")

def anyones(a, regs_, t):
    regs_ = list(regs_)
    a(f"v_max_u32 v{t}, v{regs_[0]}, v{regs_[1]}")
    rest = regs_[2:]
    while len(rest) >= 2:
        a(f"v_max3_u32 v{t}, v{t}, v{rest[0]}, v{rest[1]}"); rest = rest[2:]
    if rest: a(f"v_max_u32 v{t}, v{t}, v{rest[0]}")
    a(f"v_cmp_eq_u32 vcc, -1, v{t}")

def wave_sum(a, v, sd):
    for k in (8, 4, 2, 1):
        a(f"v_add_u32_dpp v{v}, v{v}, v{v} row_ror:{k} row_mask:0xf bank_mask:0xf")
    for i in range(4): a(f"v_readlane_b32 s{sd+i}, v{v}, {16*i}")
    a(f"s_add_u32 s{sd}, s{sd}, s{sd+1}\ns_add_u32 s{sd+2}, s{sd+2}, s{sd+3}\ns_add_u32 s{sd}, s{sd}, s{sd+2}")

def publish_row(a):
    a(f"""s_lshl_b32 s34, s96, 11
    s_add_u32 s34, s34, {WS_ROW}
    v_mov_b32 v{T0}, 0
    v_mov_b32 v{T1}, 0
    v_writelane_b32 v{C_LN}, 0, 56
    v_writelane_b32 v{C_OUT}, 0, 56
    s_mov_b32 exec_hi, 0x01ffffff
    v_add3_u32 v{T0}, v{C_LN}, v{C_LN+1}, v{C_LN+2}
    v_add3_u32 v{T1}, v{C_OUT}, v{C_OUT+1}, v{C_OUT+2}
    v_add_u32 v{T0}, v{T0}, v{C_LN+3}
    v_add_u32 v{T1}, v{T1}, v{C_OUT+3}
    s_mov_b32 exec_hi, -1""")
    wave_sum(a, T0, 36)
    a(f"s_sub_u32 s35, s98, s36\nv_writelane_b32 v{C_LN}, s35, 56")
    wave_sum(a, T1, 36)
    a(f"""s_sub_u32 s35, s98, s36
    v_writelane_b32 v{C_OUT}, s35, 56
    s_mov_b32 exec_hi, 0x01ffffff
    buffer_store_dwordx4 {v4(C_LN)}, v{VL}, s[12:15], s34 offen {SC}
    buffer_store_dwordx4 {v4(C_OUT)}, v{VL}, s[12:15], s34 offen offset:1024 {SC}
    s_mov_b32 exec_hi, -1""")

def fetch_row_issue(a, dst):
    a(f"""v_readlane_b32 s34, v{C_K}, s20
    s_andn2_b32 s34, 0x7ff, s34
    s_lshl_b32 s34, s34, 11
    s_add_u32 s34, s34, s33
    s_mov_b32 exec_hi, 0x01ffffff
    buffer_load_dwordx4 {v4(dst)}, v{VL}, s[12:15], s34 offen {SC}
    s_mov_b32 exec_hi, -1""")

def fetch_row_finish(a, dst, ldsaddr):
    _lbl[0] += 1
    L = f"Lrow{_lbl[0]}"
    a(f"""s_mul_i32 s29, s20, {PX}
    s_add_u32 s29, s29, {LXS}
    v_add_u32 v{ldsaddr}, s29, v{VL}
    s_mov_b32 s57, {SPIN}
    {L}:
    v_mov_b32 v{T0}, 0
    s_mov_b32 exec_hi, 0x01ffffff
    s_waitcnt vmcnt(0)
    ds_write_b128 v{ldsaddr}, {v4(dst)}
    v_add3_u32 v{T0}, v{dst}, v{dst+1}, v{dst+2}
    v_add_u32 v{T0}, v{T0}, v{dst+3}
    s_mov_b32 exec_hi, -1""")
    wave_sum(a, T0, 36)
    a(f"""s_cmp_eq_u32 s36, s98
    s_cbranch_scc1 {L}d
    s_mov_b32 exec_hi, 0x01ffffff
    s_waitcnt lgkmcnt(0)
    buffer_load_dwordx4 {v4(dst)}, v{VL}, s[12:15], s34 offen {SC}
    s_mov_b32 exec_hi, -1
    s_sub_u32 s57, s57, 1
    s_cbranch_scc0 {L}""")
    timeout_note(a, _lbl[0])
    a(f"{L}d:")

def gu_dma(a):
    a(f"""s_cmp_ge_u32 s2, 224
    s_cbranch_scc1 Lngu
    s_cmp_eq_u32 s20, 7
    s_cbranch_scc1 Lngu""")
    srd(a, 16, 42, 448*3584)
    a(f"""v_mul_u32_u24 v{T1}, 3584, v0
    s_and_b32 s50, s2, 7
    s_mul_i32 s50, s50, 28
    s_lshr_b32 s51, s2, 3
    s_add_u32 s50, s50, s51
    s_lshl_b32 s26, s50, 4
    s_lshl_b32 s24, s20, 10
    s_add_u32 s24, s24, {LWT}
    s_mov_b32 m0, s24
    s_add_u32 s24, s24, 8192
    buffer_load_dwordx4 v{T1}, s[16:19], s26 offen lds
    s_mov_b32 s16, s44
    s_and_b32 s17, s45, 0xffff
    s_mov_b32 m0, s24
    s_nop 0
    buffer_load_dwordx4 v{T1}, s[16:19], s26 offen lds
    Lngu:""")

def wd_dma(a, j0, j1, L):
    if j0 == j1: return
    a(f"""s_cmp_lt_u32 s2, 224
    s_cbranch_scc1 {L}
    s_and_b32 s50, s2, 7
    s_cmp_eq_u32 s50, 7
    s_cbranch_scc1 {L}
    s_lshl_b32 s50, s50, 7
    s_bfe_u32 s51, s2, 0x20003
    s_lshl_b32 s51, s51, 5
    s_add_u32 s51, s51, s50""")
    srd(a, 16, 46, 1792*896)
    a(f"""v_lshrrev_b32 v{T1}, 1, v{LANE}
    v_mul_u32_u24 v{T1}, 896, v{T1}
    v_and_b32 v{T2}, 1, v{LANE}
    v_lshl_add_u32 v{T1}, v{T2}, 4, v{T1}
    s_mul_i32 s23, s20, {224*896}
    s_add_u32 s23, s23, s51
    s_add_u32 s23, s23, {j0*32*896}
    s_mul_i32 s25, s20, 7168
    s_add_u32 s25, s25, {LWT + j0*1024}""")
    for j in range(j0, j1):
        a(f"s_mov_b32 m0, s25")
        a(f"s_add_u32 s25, s25, 1024")
        a(f"buffer_load_dwordx4 v{T1}, s[16:19], s23 offen lds")
        a(f"s_add_u32 s23, s23, {32*896}")
    a(f"{L}:")

def b_main(a):
    R, AF, ACC, XU, WU, AD, TH = B_R, B_AF, B_ACC, B_XU, B_WU, B_AD, B_TH
    S1, S2, S3 = B_S1, B_S2, B_S3
    if OPT["sl_u0"]: a(f"s_sleep {OPT['sl_u0']}")
    def uld():
        for ks in range(2):
            for i in range(4):
                a(f"buffer_load_dwordx4 {v4(R+16*ks+4*i)}, v{B_VU}, s[12:15], s{28+2*ks+(i>>1)} offen offset:{2048*(i&1)} {SC}")
    a(f"s_mov_b32 s57, {SPIN}")
    uld()
    a("s_waitcnt vmcnt(8)")
    pro2(a)
    a("s_branch Lupw\nLupoll:")
    uld()
    a("Lupw:")
    for ks in range(2):
        a(f"s_waitcnt vmcnt({4-4*ks})")
        b = R + 16*ks
        for i in range(8):
            if ks == 0 and i == 0: a(f"v_add_u32 v{T0}, v{b}, v{b+1}")
            else: a(f"v_add3_u32 v{T0}, v{T0}, v{b+2*i}, v{b+2*i+1}")
        for i in range(4):
            for j in range(i+1, 4):
                a(f"v_swap_b32 v{b+4*i+j}, v{b+4*j+i}")
        for j in range(4):
            c = "0" if ks == 0 else v4(ACC+4*j)
            a(f"v_mfma_f32_16x16x32_f16 {v4(ACC+4*j)}, {v4(AF+4*ks)}, {v4(b+4*j)}, {c}")
            if ks == 1: a(f"v_add_u32_dpp v{T0}, v{T0}, v{T0} row_ror:{8 >> j} row_mask:0xf bank_mask:0xf")
    a(f"""v_cmp_ne_u32 vcc, s99, v{T0}
    s_cmp_eq_u64 vcc, 0
    s_cbranch_scc1 Lupolld
    s_sub_u32 s57, s57, 1
    s_cbranch_scc0 Lupoll""")
    timeout_note(a, 9)
    a("Lupolld:")
    stamp(a, 6)
    if OPT["stamps"] == 3: a(f"s_sub_u32 s{64+2*11}, {SPIN+1}, s57")
    for j in range(4):
        if j != 1: a(f"s_mov_b64 exec, {['s[60:61]', '', 's[62:63]', 's[50:51]'][j]}")
        for r in range(4):
            a(f"ds_write_b32 v{AD+j}, v{ACC+4*j+r} offset:{LY + r*PY*4}")
    a("s_mov_b64 exec, -1")
    gu_dma(a)
    wd_dma(a, 0, OPT['wdsplit'], 'Lnwd0')
    a("""s_mov_b32 exec_hi, 0x00ffffff
    s_waitcnt lgkmcnt(0)
    s_barrier""")
    H = R
    a(f"ds_read_b128 {v4(H)}, v{B_VY} offset:{LY}\nds_read_b128 {v4(H+4)}, v{B_VY} offset:{LY+16}")
    for hf in range(2):
        a(f"s_waitcnt lgkmcnt({1-hf})")
        if hf == 0: a(f"v_writelane_b32 v{H}, 0, 0")
        for p in range(2):
            x = 4*hf + 2*p
            a(f"v_pk_add_f32 {v2(H+x)}, {v2(H+x)}, {v2(XU+x)}")
        for p in range(2):
            x = 4*hf + 2*p
            a(f"v_pk_add_f32 {v2(S1)}, {v2(S1)}, {v2(H+x)}")
            a(f"v_pk_fma_f32 {v2(S2)}, {v2(H+x)}, {v2(H+x)}, {v2(S2)}")
            a(f"v_pk_fma_f32 {v2(S3)}, {v2(H+x)}, {v2(WU+x)}, {v2(S3)}")
    a(f"""s_mov_b32 exec_hi, -1
    v_add_f32 v{S1}, v{S1}, v{S1+1}
    v_add_f32 v{S2}, v{S2}, v{S2+1}
    v_add_f32 v{S3}, v{S3}, v{S3+1}""")
    reduce3(a, S1, S2, S3, T0, 37, 38, 39)
    M, V, SD, RS, C0, KEY = TH, TH+1, TH+2, TH+4, TH+6, C_KEY
    a(f"""v_mov_b32 v{V}, {fl(1.0/448)}
    v_mul_f32 v{M}, s37, v{V}
    v_mul_f32 v{V}, s38, v{V}
    v_mov_b32 v{KEY}, s39
    v_fma_f32 v{V}, -v{M}, v{M}, v{V}
    v_fma_f32 v{KEY}, -v{M}, s58, v{KEY}
    v_max_f32 v{SD}, 0, v{V}
    v_add_f32 v{V}, {fl(1e-5)}, v{SD}""")
    a(f"""v_rsq_f32 v{RS}, v{V}
    s_lshl_b32 s34, s20, 2
    v_mov_b32 v{T2}, s34
    v_mul_f32 v{KEY}, v{KEY}, v{RS}
    v_cvt_pk_bf16_f32 v{KEY}, v{KEY}, v{KEY}
    v_ashrrev_i32 v{T0}, 31, v{KEY}
    v_or_b32 v{T0}, 0x80000000, v{T0}
    v_xor_b32 v{KEY}, v{KEY}, v{T0}
    v_and_b32 v{KEY}, 0xffff0000, v{KEY}
    v_or_b32 v{KEY}, s32, v{KEY}
    ds_write_b32 v{T2}, v{KEY} offset:{LKEY}
    v_mov_b32 v{C_STK}, 0xffff
    v_lshlrev_b32 v{T1}, 2, v{LANE}
    v_mov_b32 v{T2}, {LKEY}
    s_waitcnt lgkmcnt(0)
    s_barrier
    s_cmp_lg_u32 s20, 0
    s_cbranch_scc1 Lnokey
    s_mov_b64 exec, 0xff
    ds_read_b32 v{T0}, v{T1} offset:{LKEY}
    s_waitcnt lgkmcnt(0)
    v_bfi_b32 v{T0}, v{C_STK}, s59, v{T0}
    buffer_store_dword v{T0}, v{T1}, s[12:15], s27 offen {SC}
    s_mov_b64 exec, -1
    Lnokey:
    ds_read_b128 {v4(ACC)}, v{T2}
    ds_read_b128 {v4(ACC+4)}, v{T2} offset:16""")
    stamp(a, 7)
    sd_chain(a, SD, SD)
    a(f"v_rcp_f32 v{RS}, v{SD}\ns_nop 0\nv_mul_f32 v{C0}, -v{M}, v{RS}")
    for p in range(4):
        a(f"v_pk_fma_f32 {v2(XU+2*p)}, {v2(H+2*p)}, {v2(RS)}, {v2(C0)} op_sel_hi:[1,0,0]")
    for p in range(4):
        a(f"v_pk_add_f32 {v2(H+2*p)}, {v2(H+2*p)}, {v2(XU+2*p)}")
    for p in range(4):
        a(f"v_cvt_pk_bf16_f32 v{C_LN+p}, v{XU+2*p}, v{XU+2*p+1}")
        a(f"v_cvt_pk_bf16_f32 v{C_OUT+p}, v{H+2*p}, v{H+2*p+1}")
    a(f"""s_waitcnt lgkmcnt(0)
    v_max3_u32 v{T0}, v{ACC}, v{ACC+1}, v{ACC+2}
    v_max3_u32 v{T1}, v{ACC+3}, v{ACC+4}, v{ACC+5}
    v_max3_u32 v{T0}, v{T0}, v{ACC+6}, v{ACC+7}
    v_max_u32 v{T0}, v{T0}, v{T1}
    v_cmp_eq_u32 s[60:61], v{T0}, v{KEY}
    s_cmp_eq_u64 s[60:61], 0
    s_cbranch_scc1 Lnoeager""")
    publish_row(a)
    a("Lnoeager:")

QP = {1: "quad_perm:[1,0,3,2]", 2: "quad_perm:[2,3,0,1]", 3: "quad_perm:[3,2,1,0]", 7: "row_half_mirror"}
class Net:
    def __init__(s, a, x, t, fill): s.a = a; s.x = x; s.t = t; s.fill = list(fill)
    def f(s, n=1):
        for _ in range(n):
            if s.fill: s.a(s.fill.pop(0))
    def ce(s, m):
        a, x, t = s.a, s.x, s.t
        s.f()
        if m == 4:
            a(f"v_max_u32_dpp v{t}, v{x}, v{x} row_shl:4 row_mask:0xf bank_mask:0x5")
            a(f"v_min_u32_dpp v{t}, v{x}, v{x} row_shr:4 row_mask:0xf bank_mask:0xa")
            s.x, s.t = t, x
        else:
            a(f"v_mov_b32_dpp v{t}, v{x} {QP[m]} row_mask:0xf bank_mask:0xf")
            a(f"v_med3_u32 v{x}, v{x}, v{t}, v{C_L[1 << (m.bit_length()-1)]}")
    def merge(s, last_clean=True):
        a = s.a
        s.f()
        a(f"v_max_u32_dpp v{s.x}, v{s.x}, v{s.x} row_mirror row_mask:0xf bank_mask:0xf")
        for m in (4, 2, 1): s.ce(m)
        for sw in ("v_permlane16_swap_b32", "v_permlane32_swap_b32"):
            a(f"v_mov_b32 v{s.t}, v{s.x}")
            s.f()
            a(f"{sw} v{s.x}, v{s.t}")
            s.f()
            a(f"v_max_u32_dpp v{s.x}, v{s.t}, v{s.x} row_half_mirror row_mask:0xf bank_mask:0xf")
            if last_clean or "16" in sw:
                for m in (4, 2, 1): s.ce(m)
        s.f(99)

def fast_select(a):
    K, X, Y, P, Q = C_K, C_X, C_Y, C_TMP, C_TMP + 1
    a(f"""v_max_u32 v{P}, v{K}, v{K+1}
    v_max_u32 v{Q}, v{K+2}, v{K+3}
    v_max_u32 v{X}, v{P}, v{Q}""")
    fill = [f"v_min_u32 v{Y}, v{P}, v{Q}", f"v_min_u32 v{P}, v{K}, v{K+1}", f"v_min_u32 v{Q}, v{K+2}, v{K+3}",
            f"v_max3_u32 v{Y}, v{Y}, v{P}, v{Q}"]
    fill += [f"v_max_u32_dpp v{Y}, v{Y}, v{Y} row_ror:{k} row_mask:0xf bank_mask:0xf" for k in (8, 4, 2, 1)]
    fill += [f"v_mov_b32 v{P}, v{Y}", f"v_permlane16_swap_b32 v{Y}, v{P}", f"v_max_u32 v{Y}, v{Y}, v{P}",
             f"v_mov_b32 v{P}, v{Y}", f"v_permlane32_swap_b32 v{Y}, v{P}", f"v_max_u32 v{Y}, v{Y}, v{P}",
             "s_mov_b64 vcc, 0x100"]
    n = Net(a, X, C_TMP + 2, fill)
    for m in (1, 3, 1, 7, 2, 1): n.ce(m)
    n.merge()
    a(f"""s_mov_b64 exec, 0x1ff
    v_cndmask_b32 v{P}, v{n.x}, v{Y}, vcc
    ds_write_b32 v{C_FW}, v{P}""")
    if OPT["rowpf"]:
        m8 = (1 << OPT["rowpf"]) - 1; m32 = m8 * 0x01010101
        a(f"""s_mov_b32 exec_lo, {hex(m32)}
        s_mov_b32 exec_hi, {hex(m32)}
        v_bfi_b32 v{Q}, v{n.x}, 0, v{C_TMP+3}
        v_lshl_add_u32 v{Q}, v{Q}, 11, v{C_PF}
        buffer_load_dword v{JUNK}, v{Q}, s[12:15], s33 offen {SC}""")
    a(f"""s_mov_b64 exec, -1
    s_waitcnt lgkmcnt(0)
    s_barrier
    ds_read_b32 v{X}, v{C_FR}
    ds_read_b32 v{Y}, v{C_FY}
    s_waitcnt lgkmcnt(0)""")
    fill = [f"v_max_u32_dpp v{Y}, v{Y}, v{Y} {QP[m]} row_mask:0xf bank_mask:0xf" for m in (1, 2, 7)]
    n = Net(a, X, C_TMP + 2, fill)
    n.merge(last_clean=False)
    a(f"""v_cmp_gt_u32 vcc, v{Y}, v{n.x}
    s_cmp_eq_u64 vcc, 0
    s_cbranch_scc0 Lfullsel
    v_mov_b32 v{K}, v{n.x}
    Lseldone:""")

def c_select(a):
    K = C_K
    a(f"s_mov_b32 s34, {WS_KEYS}\nv_mov_b32 v{C_TMP+3}, 0x7ff")
    def chk():
        a(f"v_xor_b32 v{T0}, v{K}, v{K+1}")
        a(f"v_xor_b32 v{T1}, v{K+2}, v{K+3}")
        a(f"v_xor_b32 v{T2}, s59, v{K}")
        a(f"v_xor_b32 v{C_X}, s59, v{K+2}")
        a(f"v_or3_b32 v{T0}, v{T0}, v{T1}, v{T2}")
        for i in range(4): a(f"v_bfi_b32 v{K+i}, v{C_STK}, v{C_IX+i}, v{K+i}")
        a(f"v_or_b32 v{T0}, v{T0}, v{C_X}")
        a(f"v_cmp_ne_u16 vcc, 0, v{T0}")
    poll(a, lambda: a(f"buffer_load_dwordx4 {v4(K)}, v{C_KA}, s[12:15], s34 offen {SC}"), chk, pre=OPT["sl_k"])
    stamp(a, 8)
    fast_select(a)
    stamp(a, 9)
    a(f"""v_cmp_eq_u32 vcc, v{K}, v{C_KEY}
    s_and_b64 s[62:63], vcc, s[60:61]
    s_cmp_lg_u64 s[62:63], vcc
    s_cbranch_scc0 Lsel_pub""")
    publish_row(a)
    a("Lsel_pub:")
    fetch_row_issue(a, 84)
    a(f"""s_cmp_eq_u64 vcc, 0
    s_cbranch_scc0 Lsel_done
    s_mov_b32 exec_hi, 0x00ffffff
    buffer_store_dwordx4 {v4(C_OUT)}, v{VL}, s[52:55], s97 offen {['', 'sc1', 'nt', 'sc0 sc1'][OPT['ost']]}
    s_mov_b32 exec_hi, -1
    Lsel_done:""")

def c1(a):
    XR = 84; XF_ = 168; ACC = 52; XU = 60; WF = 88
    a(f"""s_cmp_lg_u32 s20, 0
    s_cbranch_scc1 Lc1_now
    v_lshrrev_b32 v{T0}, 2, v{N}
    v_lshl_add_u32 v{T0}, v{G}, 3, v{T0}
    v_lshlrev_b32 v{T0}, 4, v{T0}
    v_and_b32 v{T1}, 1, v{N}
    v_lshl_add_u32 v{T0}, v{T1}, 3, v{T0}
    v_bfe_u32 v{T1}, v{N}, 1, 1
    v_lshl_add_u32 v{T0}, v{T1}, 13, v{T0}
    v_add_u32 v{T0}, {LWT}, v{T0}""")
    for j in range(14):
        for h in range(2):
            a(f"ds_read_b64_tr_b16 {v2(WF+4*j+2*h)}, v{T0} offset:{(32*j+4*h)*16}")
    a(f"""v_and_b32 v{XU+4}, 7, v{N}
    v_mul_u32_u24 v{XU+4}, {PX}, v{XU+4}
    v_lshl_add_u32 v{XU+4}, v{G}, 4, v{XU+4}
    v_lshlrev_b32 v{XU+5}, 4, v{N}
    v_lshl_add_u32 v{XU+5}, v{G}, 3, v{XU+5}
    s_lshl_b32 s22, s50, 7
    s_add_u32 s22, s22, {WS_ACT}
    Lc1_now:""")
    fetch_row_finish(a, XR, T2)
    a(f"""s_waitcnt lgkmcnt(0)
    s_barrier
    s_cmp_lg_u32 s20, 0
    s_cbranch_scc1 Lc1_epoch""")
    stamp(a, 10)
    for j in range(14):
        a(f"ds_read_b128 {v4(XF_+4*j)}, v{XU+4} offset:{LXS+64*j}")
    for j in range(14):
        a(f"s_waitcnt lgkmcnt({13-j})")
        A = ACC + 4*(j & 1)
        a(f"v_mfma_f32_16x16x32_bf16 {v4(A)}, {v4(WF+4*j)}, {v4(XF_+4*j)}, {'0' if j < 2 else v4(A)}")
    for p in range(2):
        a(f"v_pk_add_f32 {v2(ACC+2*p)}, {v2(ACC+2*p)}, {v2(ACC+4+2*p)}")
    for p in range(2): a(f"v_cvt_pk_bf16_f32 v{ACC+4+p}, v{ACC+2*p}, v{ACC+2*p+1}")
    for p in range(2): a(f"v_mov_b32 v{ACC+6+p}, v{ACC+4+p}")
    for p in range(2): a(f"v_permlane32_swap_b32 v{ACC+4+p}, v{ACC+6+p}")
    for p in range(2):
        a(f"v_lshlrev_b32 v{ACC+2*p}, 16, v{ACC+4+p}")
        a(f"v_and_b32 v{ACC+2*p+1}, 0xffff0000, v{ACC+4+p}")
    for r in range(4): a(f"v_mul_f32 v{XU+r}, {fl(-1.4426950408889634)}, v{ACC+r}")
    for r in range(4): a(f"v_exp_f32 v{XU+r}, v{XU+r}")
    for p in range(2):
        a(f"v_lshlrev_b32 v{XR+2*p}, 16, v{ACC+6+p}")
        a(f"v_and_b32 v{XR+2*p+1}, 0xffff0000, v{ACC+6+p}")
    for r in range(4): a(f"v_add_f32 v{XU+r}, 1.0, v{XU+r}")
    for r in range(4): a(f"v_rcp_f32 v{XU+r}, v{XU+r}")
    for r in range(4): a(f"v_mul_f32 v{ACC+r}, v{ACC+r}, v{XU+r}")
    for p in range(2): a(f"v_cvt_pk_bf16_f32 v{ACC+4+p}, v{ACC+2*p}, v{ACC+2*p+1}")
    for p in range(2):
        a(f"v_lshlrev_b32 v{ACC+2*p}, 16, v{ACC+4+p}")
        a(f"v_and_b32 v{ACC+2*p+1}, 0xffff0000, v{ACC+4+p}")
    for p in range(2): a(f"v_pk_mul_f32 {v2(ACC+2*p)}, {v2(ACC+2*p)}, {v2(XR+2*p)}")
    for p in range(2): a(f"v_cvt_pk_bf16_f32 v{XR+p}, v{ACC+2*p}, v{ACC+2*p+1}")
    for p in range(2): a(f"v_min_u32 v{XR+p}, -2, v{XR+p}")
    a(f"""s_mov_b32 exec_lo, 0x00ff00ff
    s_mov_b32 exec_hi, 0
    buffer_store_dwordx2 {v2(XR)}, v{XU+5}, s[12:15], s22 offen {SC}
    s_branch Lend
    Lc1_epoch:
    s_lshl_b32 s29, s2, 3
    s_add_u32 s29, s29, s20
    s_cmp_lg_u32 s29, 1
    s_cbranch_scc1 Lend
    s_mov_b64 exec, 1
    v_mov_b32 v{T0}, s56
    s_mov_b32 s29, {WS_EPOCH}
    buffer_store_dword v{T0}, v{VL}, s[12:15], s29 offen {SC}
    s_branch Lend""")

def c2(a):
    K = C_K
    OA = 8; OR = 10; SG = 12; VA = 13; VO = 14; VW = 15; WF = 88; AF = 116; ACC = 52; RD = 168
    a(f"""s_mul_i32 s24, s20, 7168
    s_add_u32 s24, s24, {LWT}
    v_lshrrev_b32 v{T0}, 2, v{N}
    v_lshl_add_u32 v{T0}, v{G}, 3, v{T0}
    v_lshlrev_b32 v{T0}, 5, v{T0}
    v_and_b32 v{T1}, 3, v{N}
    v_lshl_add_u32 v{T0}, v{T1}, 3, v{T0}
    v_add_u32 v{VW}, s24, v{T0}""")
    for j in range(7):
        for h in range(2):
            a(f"ds_read_b64_tr_b16 {v2(WF+4*j+2*h)}, v{VW} offset:{(32*j+4*h)*32}")
    a(f"""v_and_b32 v{T1}, 7, v{N}
    v_mul_u32_u24 v{VO}, {PX}, v{T1}
    v_lshl_add_u32 v{VO}, v{G}, 3, v{VO}
    v_add_u32 v{VO}, s51, v{VO}
    v_lshlrev_b32 v{VA}, 4, v{T1}
    v_lshl_add_u32 v{VA}, v{G}, 7, v{VA}
    s_mul_i32 s25, s20, {7*512}
    s_add_u32 s25, s25, {WS_ACT}
    v_and_b32 v{OA}, 0x7ff, v{K}
    v_sub_u32 v{OA}, 2047, v{OA}
    v_mul_u32_u24 v{OA}, 896, v{OA}
    v_lshl_add_u32 v{OA}, v{G}, 3, v{OA}
    v_ashrrev_i32 v{T2}, 31, v{K}
    v_not_b32 v{T2}, v{T2}
    v_or_b32 v{T2}, 0x80000000, v{T2}
    v_xor_b32 v{K+1}, v{K}, v{T2}
    v_and_b32 v{K+1}, 0xffff0000, v{K+1}""")
    sigmoid_mul(a, SG, K+1, "1.0", T2)
    rbf(a, SG, SG)
    a(f"""v_lshlrev_b32 v{T1}, 4, v0
    v_add_u32 v{T1}, {LRED}, v{T1}""")
    def lds():
        for j in range(7):
            a(f"buffer_load_dwordx4 {v4(AF+4*j)}, v{VA}, s[12:15], s25 offen offset:{512*j} {SC}")
    if OPT["c2re"]:
        if OPT["sl_a"]: a(f"s_sleep {OPT['sl_a']}")
        lds()
        fetch_row_finish(a, 84, T2)
        anyones(a, range(AF, AF+28), T0)
        a("s_cmp_eq_u64 vcc, 0\ns_cbranch_scc1 Lactok")
        poll(a, lds, lambda: anyones(a, range(AF, AF+28), T0))
        a("Lactok:")
    else:
        fetch_row_finish(a, 84, T2)
        poll(a, lds, lambda: anyones(a, range(AF, AF+28), T0), pre=OPT["sl_a"])
    stamp(a, 10)
    a("s_waitcnt lgkmcnt(0)")
    for j in range(7):
        A = ACC + 4*(j & 1)
        a(f"v_mfma_f32_16x16x32_bf16 {v4(A)}, {v4(WF+4*j)}, {v4(AF+4*j)}, {'0' if j < 2 else v4(A)}")
    for p in range(2):
        a(f"v_pk_add_f32 {v2(ACC+2*p)}, {v2(ACC+2*p)}, {v2(ACC+4+2*p)}")
    a(f"""ds_write_b128 v{T1}, {v4(ACC)}
    s_waitcnt lgkmcnt(0)
    s_barrier
    s_cmp_lg_u32 s20, 0
    s_cbranch_scc1 Lend
    ds_read_b64 {v2(OR)}, v{VO} offset:{LXS}""")
    for w in range(1, 8):
        a(f"ds_read_b128 {v4(RD+4*w)}, v{T1} offset:{1024*w}")
    a("s_waitcnt lgkmcnt(7)")
    for i in range(2):
        a(f"v_lshlrev_b32 v{RD+2*i}, 16, v{OR+i}")
        a(f"v_and_b32 v{RD+2*i+1}, 0xffff0000, v{OR+i}")
    for w in range(1, 8):
        a(f"s_waitcnt lgkmcnt({7-w})")
        for p in range(2):
            a(f"v_pk_add_f32 {v2(ACC+2*p)}, {v2(ACC+2*p)}, {v2(RD+4*w+2*p)}")
    for rnd in range(2):
        for p in range(2): a(f"v_cvt_pk_bf16_f32 v{ACC+4+p}, v{ACC+2*p}, v{ACC+2*p+1}")
        for p in range(2):
            a(f"v_lshlrev_b32 v{ACC+2*p}, 16, v{ACC+4+p}")
            a(f"v_and_b32 v{ACC+2*p+1}, 0xffff0000, v{ACC+4+p}")
        for p in range(2):
            if rnd == 0: a(f"v_pk_mul_f32 {v2(ACC+2*p)}, {v2(ACC+2*p)}, {v2(SG)} op_sel_hi:[1,0]")
            else: a(f"v_pk_add_f32 {v2(ACC+2*p)}, {v2(ACC+2*p)}, {v2(RD+2*p)}")
    for p in range(2): a(f"v_cvt_pk_bf16_f32 v{OR+p}, v{ACC+2*p}, v{ACC+2*p+1}")
    a(f"""s_mov_b32 exec_lo, 0x00ff00ff
    s_mov_b32 exec_hi, 0x00ff00ff
    buffer_store_dwordx2 {v2(OR)}, v{OA}, s[52:55], s51 offen {['', 'sc1', 'nt', 'sc0 sc1'][OPT['ost']]}""")

def clears(a):
    a(f"""v_mov_b32 v{JUNK+2}, -1
    v_lshlrev_b32 v{T1}, 2, v{LANE}
    s_lshl_b32 s24, s2, 7
    s_add_u32 s24, s24, {WS_ACT}
    s_mov_b32 exec_hi, 0
    buffer_store_dword v{JUNK+2}, v{T1}, s[12:15], s24 offen {SC}
    s_mov_b32 exec_lo, 1
    s_lshl_b32 s23, s96, 11
    s_add_u32 s23, s23, {WS_ROW}
    buffer_load_dword v{JUNK}, v{VL}, s[52:55], s97 offen
    buffer_load_dword v{JUNK+1}, v{VL}, s[12:15], s23 offen
    s_mov_b64 exec, -1""")

def prefetch(a):
    a(f"""s_and_b32 s24, s2, 7
    s_lshr_b32 s25, s2, 3
    s_mul_i32 s26, s25, {14*3584}
    s_mov_b32 s18, {448*3584}
    s_cmp_eq_u32 s20, 3
    s_cbranch_scc1 Lpf_d
    v_lshrrev_b32 v{T0}, 2, v{LANE}
    v_mul_u32_u24 v{T0}, 3584, v{T0}
    v_and_b32 v{T1}, 3, v{LANE}
    v_lshl_add_u32 v{T0}, v{T1}, 7, v{T0}
    s_mul_i32 s24, s24, 448
    s_cmp_eq_u32 s20, 1
    s_cselect_b32 s16, s42, s44
    s_cselect_b32 s17, s43, s45
    s_branch Lpf_go
    Lpf_d:
    v_mul_u32_u24 v{T0}, 896, v{LANE}
    s_lshl_b32 s24, s24, 7
    s_mov_b32 s16, s46
    s_mov_b32 s17, s47
    Lpf_go:
    s_and_b32 s17, s17, 0xffff
    s_add_u32 s26, s26, s24
    s_mov_b32 exec_hi, 0x00ffffff
    buffer_load_dword v{JUNK}, v{T0}, s[16:19], s26 offen
    s_mov_b32 exec_hi, -1""")

def kernel(a):
    if OPT["stamps"]:
        for k in range(NST): a(f"s_mov_b32 s{64+2*k}, 0")
    stamp(a, 0)
    a(f"""s_load_dwordx2 s[8:9], s[0:1], 0
    s_cmp_ge_u32 s2, 256
    s_cbranch_scc1 Lexit
    v_lshrrev_b32 v{T0}, 6, v0
    v_and_b32 v{LANE}, 63, v0
    v_readfirstlane_b32 s20, v{T0}
    v_lshlrev_b32 v{VL}, 4, v{LANE}
    s_and_b32 s21, s2, 31
    s_lshr_b32 s22, s2, 5
    s_mov_b32 s10, {XB}
    s_mov_b32 s11, 0x00020000
    s_cmp_lt_u32 s20, 4
    s_cbranch_scc1 Lloader
    s_getpc_b64 s[30:31]
    Lpc:
    v_and_b32 v{T2}, 255, v0
    v_lshlrev_b32 v{JUNK}, 7, v{T2}
    v_mov_b32 v{JUNK+1}, s31
    v_add_co_u32 v{JUNK}, vcc, s30, v{JUNK}
    v_addc_co_u32 v{JUNK+1}, vcc, 0, v{JUNK+1}, vcc
    v_cmp_gt_u32 vcc, (Lexit-Lpc)/128+1, v{T2}
    s_and_saveexec_b64 s[30:31], vcc
    s_cbranch_execz Lcompute
    global_load_dword v{JUNK+2}, v[{JUNK}:{JUNK+1}], off
    s_branch Lcompute
    Lloader:
    v_cmp_lt_u32 vcc, 29, v{LANE}
    s_lshl_b32 s23, s20, 9
    s_add_u32 s23, s23, s21
    s_mul_i32 s23, s23, 896
    s_mul_i32 s24, s20, {16*PH}
    v_add_u32 v{T1}, {32*896 - 480}, v{VL}
    s_mov_b32 s25, {'s22' if OPT['rot'] else '0'}
    v_cndmask_b32 v{T1}, v{VL}, v{T1}, vcc
    s_mov_b32 exec_lo, 0xcfffffff
    s_mov_b32 exec_hi, 0x03ffffff
    s_mov_b32 s28, 0
    s_waitcnt lgkmcnt(0)""")
    stamp(a, 3, True)
    a(f"""Ldma:
    s_mul_i32 s26, s25, {2*PH}
    s_mul_i32 s27, s25, {64*896}
    s_add_u32 s26, s26, s24
    s_add_u32 s27, s27, s23
    s_mov_b32 m0, s26
    s_add_u32 s25, s25, 1
    buffer_load_dwordx4 v{T1}, s[8:11], s27 offen lds
    s_and_b32 s25, s25, 7
    s_add_u32 s28, s28, 1
    s_cmp_lg_u32 s28, 8
    s_cbranch_scc1 Ldma1
    s_add_u32 s24, s24, {LXH}
    s_add_u32 s23, s23, 448
    Ldma1:
    s_cmp_lt_u32 s28, 16
    s_cbranch_scc1 Ldma
""")
    def ltail():
        a(f"""Lltail:
        s_mov_b64 exec, -1
        s_load_dwordx2 s[6:7], s[0:1], 96
        s_load_dwordx8 s[40:47], s[0:1], 48
        s_load_dwordx2 s[48:49], s[0:1], 80
        v_and_b32 v{N}, 15, v0
        v_bfe_u32 v{G}, v0, 4, 2""")
        stamp(a, 6, True)
        early = OPT["e2a"]
        if early:
            a("s_waitcnt vmcnt(8)")
            stamp(a, 1)
            a("s_barrier")
        a("s_waitcnt lgkmcnt(0)")
        b_setup(a)
        b_loads(a)
        a("s_cmp_lg_u32 s20, 0\ns_cbranch_scc1 Lw123a")
        clears(a)
        if not early:
            a("s_waitcnt vmcnt(14)")
            stamp(a, 1)
            a("s_barrier")
        a("s_waitcnt vmcnt(6)")
        stamp(a, 2)
        a(f"""s_barrier
        v_mov_b32 v{T0}, {LTAG}
        s_waitcnt vmcnt(5)
        ds_write_b32 v{T0}, v{V_EP}
        s_branch Lprol
        Lw123a:""")
        prefetch(a)
        if not early:
            a(f"s_waitcnt vmcnt(12)")
            stamp(a, 1)
            a("s_barrier")
        a(f"s_waitcnt vmcnt(4)")
        stamp(a, 2)
        a(f"s_barrier\ns_waitcnt vmcnt(3)")
        a("Lprol:")
        if OPT["wdh"]: wd_dma(a, 0, 7, "Lnwd2")
        if OPT["w64l"]:
            a("s_mov_b32 s3, s20")
            w64(a, AC1)
            for i in range(8): a(f"v_xor_b32 v{AC1+16+i}, 0x80008000, v{AC1+8+i}")
            a(f"s_lshl_b32 s26, s3, 12\ns_add_u32 s26, s26, {LWT}\nv_add_u32 v{T1}, s26, v{VL}")
            for i in range(6): a(f"ds_write_b128 v{T1}, {v4(AC1+4*i)} offset:{[0, 1024, 2048, 3072, 16384, 17408][i]}")
        if not OPT["prolate"]: pro(a)
        stamp(a, 3)
        a("s_waitcnt lgkmcnt(0)\ns_barrier")
        a("s_branch Lpro1" if OPT["prolate"] else "s_branch Lpro2")
    if OPT["layout"]: a("s_branch Lltail")
    else: ltail()
    a(f"""Lcompute:
    s_mov_b64 exec, -1
    s_load_dwordx2 s[6:7], s[0:1], 96
    s_load_dwordx8 s[40:47], s[0:1], 48
    s_load_dwordx2 s[48:49], s[0:1], 80
    v_and_b32 v{N}, 15, v0
    v_bfe_u32 v{G}, v0, 4, 2
    s_and_b32 s3, s20, 3""")
    if OPT["prio"]: a("s_setprio 3")
    stamp(a, 9, True)
    a_pre(a)
    stamp(a, 11, True)
    a("s_waitcnt lgkmcnt(0)")
    b_setup(a)
    stamp(a, 1)
    a("s_barrier")
    stamp(a, 2)
    a_main(a)
    stamp(a, 4)
    if OPT["prio"]: a("s_setprio 0")
    a(f"buffer_load_dwordx4 {v4(B_WR)}, v{VL}, s[16:19], 0 offen")
    a(f"buffer_load_dwordx4 {v4(B_XR)}, v{VL}, s[8:11], s97 offen")
    a("Lpro1:")
    pro(a)
    a("Lpro2:")
    a(f"""v_readfirstlane_b32 s56, v{V_EP}
    s_add_u32 s56, s56, 1
    s_mul_i32 s98, s56, {HASH}
    s_lshl_b32 s99, s98, 6
    s_and_b32 s59, s56, 0xffff
    s_barrier""")
    stamp(a, 5)
    b_main(a)
    if OPT["wdh"]: a("s_cmp_lt_u32 s20, 4\ns_cbranch_scc1 Lnwd1")
    wd_dma(a, OPT['wdsplit'], 7, 'Lnwd1')
    c_select(a)
    a("s_cmp_ge_u32 s2, 224\ns_cbranch_scc1 Lc2")
    c1(a)
    a("Lc2:\ns_and_b32 s50, s2, 7\ns_cmp_eq_u32 s50, 7\ns_cbranch_scc1 Lend\ns_lshl_b32 s50, s50, 7\ns_bfe_u32 s51, s2, 0x20003\ns_lshl_b32 s51, s51, 5\ns_add_u32 s51, s51, s50")
    c2(a)
    a("Lend:")
    dump_stamps(a)
    if OPT["layout"]:
        a("s_endpgm")
        ltail()
    a("Lexit:\ns_endpgm\nLfullsel:")
    select8(a, C_K, C_TMP, C_L, C_SW, C_SR)
    a("s_branch Lseldone")

NAME = "sequential_preLN__spectral_fnet__moe_arch_mod__prompt_kernel"
def build():
    a = Asm()
    kernel(a)
    body = a.finish()
    if OPT["align"]: body = align_pass(body)
    return gen.HDR + f"""; @launch grid=(256,1,1) block=(512,1,1) lds={LDS_TOTAL}
.amdgcn_target "amdgcn-amd-amdhsa--gfx950"
.text
.globl {NAME}
.p2align 8
.type {NAME},@function
{NAME}:
""" + body + f""".section .rodata,"a"
.p2align 6
.amdhsa_kernel {NAME}
  .amdhsa_next_free_vgpr {NVGPR}
  .amdhsa_next_free_sgpr 102
  .amdhsa_accum_offset {NVGPR}
  .amdhsa_group_segment_fixed_size 0
  .amdhsa_kernarg_size 104
  .amdhsa_user_sgpr_count 2
  .amdhsa_user_sgpr_kernarg_segment_ptr 1
  .amdhsa_system_sgpr_workgroup_id_x 1
.end_amdhsa_kernel
"""

if __name__ == "__main__":
    for x in list(sys.argv[1:]):
        if x.startswith("--"):
            k, _, v = x[2:].partition("=")
            assert k in OPT, k
            OPT[k] = int(v) if v else 1
            sys.argv.remove(x)
    open(sys.argv[1], "w").write(build())
```

```python
import sys
from asmlib import Asm, fl, align_pass
import gen
from gen import srd, v4, v2, rbf, sd_chain, reduce3, unpack8, lim_regs, select8, sigmoid_mul

WS_KEYS = 0x200000
WS_EPOCH = 0x208000
WS_ACT = 0x210000
WS_STAMP = 0x3c0000
WS_ROW = 0x400000
WS_SIZE = 0x800000
XB = 1835008
PH = 480; PX = 928; PF = 136; PY = 452
LXH = 64 * PH
LW = 2 * LXH; LCS = LW + 28 * 1024; LTAG = LCS + 256; LF = LCS + 272; LWT = LF + 64 * PF; LDS_TOTAL = LWT + 57344
LY = 0
LSEL = 16384; LSE2 = 16640; LKEY = 17152; LXS = 17408; LRED = 24832
SPIN = 4000000
SC = "sc1"
HASH = "0x9e3779b1"
OPT = dict(stamps=0, cyc=0, align=0, sl_u0=6, sl_k=13, sl_a=0, rowpf=2, barj=5, dbgto=0, ost=0, c2re=1, rot=1, pf=3, wdsplit=0, w64l=0, layout=1, e2a=1, prolate=1, amp=-1, ampw=0, ampb=224, prio=1, wdh=0, cheb=1, ln1emu=1, dmau=1)
NST = 14

def stamp(a, k, early=False):
    if OPT["stamps"] == 5:
        if early != 5 and k not in (0, 3, 4, NST - 1): return
    elif OPT["stamps"] == 4:
        if early == 5 or (not early and k not in (0, 1, 2, NST - 1)): return
    elif early: return
    if OPT["stamps"] == 2 and k not in (0, NST - 1): return
    if OPT["stamps"]: a(f"{'s_memtime' if OPT['cyc'] else 's_memrealtime'} s[{64+2*k}:{65+2*k}]")
def dump_stamps(a):
    if OPT["amp"] >= 0:
        k = OPT["amp"]
        a(f"s_memrealtime s[{64+2*(NST-2)}:{65+2*(NST-2)}]")
        a(f"""s_cmp_lg_u32 s2, {OPT['ampb']}
        s_cbranch_scc1 Lampd
        s_cmp_lg_u32 s20, {OPT['ampw']}
        s_cbranch_scc1 Lampd
        s_waitcnt lgkmcnt(0)
        s_sub_u32 s60, s{64+2*k}, s64
        s_mul_i32 s60, s60, 9
        s_add_u32 s60, s60, s{64+2*(NST-2)}
        Lamp:
        s_memrealtime s[62:63]
        s_waitcnt lgkmcnt(0)
        s_sub_u32 s61, s62, s60
        s_cmp_lt_i32 s61, 0
        s_cbranch_scc1 Lamp
        Lampd:""")
        return
    if not OPT["stamps"]: return
    stamp(a, NST - 2)
    a("s_waitcnt vmcnt(0)")
    stamp(a, NST - 1)
    a("s_mov_b64 exec, 1\ns_waitcnt lgkmcnt(0)")
    a(f"s_lshl_b32 s60, s2, 3\ns_add_u32 s60, s60, s20\ns_lshl_b32 s60, s60, 6\ns_add_u32 s60, s60, {WS_STAMP}\nv_mov_b32 v1, 0")
    for k in range(NST):
        a(f"v_mov_b32 v2, s{64+2*k}\nbuffer_store_dword v2, v1, s[12:15], s60 offen offset:{4*k}")

_lbl = [0]
def timeout_note(a, ident):
    if not OPT["dbgto"]: return
    a(f"""s_lshl_b32 s100, s2, 8
    s_add_u32 s100, s100, s20
    s_add_u32 s100, s100, {ident << 24}
    v_mov_b32 v{JUNK+3}, s100
    s_mov_b32 s100, {0x3f0000 + 4*ident}
    s_mov_b64 exec, 1
    buffer_store_dword v{JUNK+3}, v{VL}, s[12:15], s100 offen
    v_mov_b32 v{JUNK+3}, s36
    buffer_store_dword v{JUNK+3}, v{VL}, s[12:15], s100 offen offset:64
    v_mov_b32 v{JUNK+3}, s98
    buffer_store_dword v{JUNK+3}, v{VL}, s[12:15], s100 offen offset:128
    v_mov_b32 v{JUNK+3}, s34
    buffer_store_dword v{JUNK+3}, v{VL}, s[12:15], s100 offen offset:192
    s_mov_b64 exec, -1""")
def poll(a, loads, check, pre=0):
    _lbl[0] += 1
    L = f"Lpoll{_lbl[0]}"
    if pre: a(f"s_sleep {pre}")
    a(f"s_mov_b32 s57, {SPIN}\n{L}:")
    loads()
    a("s_waitcnt vmcnt(0)")
    check()
    a(f"""s_cmp_eq_u64 vcc, 0
    s_cbranch_scc1 {L}d
    s_sub_u32 s57, s57, 1
    s_cbranch_scc0 {L}""")
    timeout_note(a, _lbl[0])
    a(f"{L}d:")

class LdsQ:
    def __init__(s, a): s.a = a; s.q = []
    def read(s, text, b, n=4):
        s.a(text); s.q.append(set(range(b, b + n)))
    def need(s, b, n=4):
        rs = set(range(b, b + n)); last = -1
        for i, d in enumerate(s.q):
            if d & rs: last = i
        if last >= 0:
            s.a(f"s_waitcnt lgkmcnt({len(s.q) - 1 - last})")
            s.q = s.q[last+1:]

LANE, N, G, T0, T1, T2, VL = 1, 2, 3, 4, 5, 6, 7
B_XR = 8; B_WR = 12; V_EP = 16; VFW = 17; VFR = 18; VXR = 19; VCS = 20; VUS = 21; ST = 22
WC = 28; WSN = 36; WNS = 44
AC1 = 52; AC2 = 68; GR = 84; XF = 88; WD = 116
JUNK = 228; SG2 = 232; NVGPR = 236
B_AF = 28; B_AD = 36; B_VY = 40; B_VU = 41; C_L = {1: 42, 2: 43, 4: 44}; C_SW = 45; C_SR = 46; C_KA = 47
C_FW = 48; C_FR = 49; C_FY = 50; C_PF = 51
B_R = 116; B_ACC = 52; B_XU = 68; B_WU = 76; B_S1, B_S2, B_S3 = 88, 90, 92; B_TH = 96; P_TH = 104; P_EPS = 112; P_BASE = 113
C_K = 148; C_TMP = 152; C_KEY = 156; C_X = 157; C_Y = 158; C_OUT = 160; C_LN = 164; C_IX = 224; C_STK = 159

def trig_block(a, n, k0, eps, base, th, want_sin):
    for i in range(n):
        k = k0 + i
        if k == 0: a(f"v_mov_b32 v{th+i}, v{base}")
        else: a(f"v_fmamk_f32 v{th+i}, v{eps}, {fl(float(k))}, v{base}")
    for i in range(n):
        if want_sin: a(f"v_sin_f32 v{th+n+i}, v{th+i}")
        a(f"v_cos_f32 v{th+i}, v{th+i}")

def w64(a, D):
    EPS, BASE, TH, S = ST + 4, ST + 5, XF, ST
    a(f"""v_lshrrev_b32 v{S}, 1, v{N}
    s_lshl_b32 s25, s3, 3
    v_add_u32 v{S}, s25, v{S}
    v_sub_u32 v{S+1}, 64, v{S}
    v_cmp_eq_u32 vcc, 0, v{S}
    v_and_b32 v{S+2}, 1, v{N}
    v_cndmask_b32 v{S+1}, v{S+1}, 32, vcc
    v_cmp_eq_u32 vcc, 0, v{S+2}
    v_lshlrev_b32 v{S+2}, 3, v{G}
    v_cndmask_b32 v{S+1}, v{S+1}, v{S}, vcc
    v_cvt_f32_u32 v{S+2}, v{S+2}
    v_and_b32 v{S}, 1, v{S+1}
    v_cvt_f32_u32 v{S+1}, v{S+1}
    v_mul_u32_u24 v{S}, 0x8000, v{S}
    v_mul_f32 v{EPS}, {fl(1.0/64)}, v{S+1}
    v_lshl_or_b32 v{S}, v{S}, 16, v{S}
    v_mul_f32 v{BASE}, v{S+2}, v{EPS}""")
    if OPT["cheb"]:
        C2 = S + 3; CV = XF; SV = XF + 8
        a(f"""v_cos_f32 v{C2}, v{EPS}
        v_add_f32 v{CV+1}, v{EPS}, v{BASE}
        v_sin_f32 v{SV}, v{BASE}
        v_cos_f32 v{CV}, v{BASE}
        v_sin_f32 v{SV+1}, v{CV+1}
        v_cos_f32 v{CV+1}, v{CV+1}
        v_add_f32 v{C2}, v{C2}, v{C2}""")
        for i in range(2, 8):
            for Vv in (CV, SV): a(f"v_fma_f32 v{Vv+i}, v{C2}, v{Vv+i-1}, -v{Vv+i-2}")
        for i in range(4):
            a(f"v_cvt_pk_f16_f32 v{D+i}, v{CV+2*i}, v{CV+2*i+1}")
            a(f"v_cvt_pk_f16_f32 v{D+8+i}, v{SV+2*i}, v{SV+2*i+1}")
        for i in range(4):
            a(f"v_xor_b32 v{D+4+i}, v{S}, v{D+i}")
            a(f"v_xor_b32 v{D+12+i}, v{S}, v{D+8+i}")
        return
    for ks in range(2):
        for h in range(2):
            trig_block(a, 4, 32*ks + 4*h, EPS, BASE, TH, True)
            for i in range(2):
                a(f"v_cvt_pk_f16_f32 v{D+4*ks+2*h+i}, v{TH+2*i}, v{TH+2*i+1}")
                a(f"v_cvt_pk_f16_f32 v{D+8+4*ks+2*h+i}, v{TH+4+2*i}, v{TH+4+2*i+1}")

def a_pre(a):
    EPS, BASE, TH, ONE, TO, CS = ST + 4, ST + 5, XF, XF + 8, XF + 12, AC1
    a(f"""s_and_b32 s25, s3, 1
    s_lshl_b32 s25, s25, 2
    v_and_b32 v{T0}, 3, v{N}
    v_add_u32 v{T0}, s25, v{T0}
    v_lshrrev_b32 v{T1}, 2, v{N}
    s_mul_i32 s26, s22, 28
    s_add_u32 s26, s26, 1
    v_mad_u32_u24 v{T1}, v{T1}, 7, v{T0}
    v_add_u32 v{T1}, s26, v{T1}
    v_cmp_ne_u32 vcc, 7, v{T0}
    s_lshr_b32 s25, s3, 1
    s_mul_i32 s25, s25, {fl(0.25)}
    v_cndmask_b32 v{T1}, 0, v{T1}, vcc
    v_cvt_f32_u32 v{T1}, v{T1}
    v_mul_f32 v{EPS}, {fl(1.0/448)}, v{T1}
    v_lshlrev_b32 v{T0}, 3, v{G}
    v_cvt_f32_u32 v{T2}, v{T0}
    v_fma_f32 v{BASE}, v{T2}, v{EPS}, s25
    s_mul_i32 s25, s3, {7*1024}
    s_add_u32 s25, s25, {LW}
    v_add_u32 v{T1}, s25, v{VL}""")
    for i in range(4): a(f"v_mov_b32 v{ONE+i}, 0x3f803f80")
    if OPT["cheb"]:
        C2 = ST + 3; V = WD
        a(f"v_cos_f32 v{C2}, v{EPS}")
        for j in range(7):
            for i in range(2):
                k = 32*j + i
                if k == 0: a(f"v_mov_b32 v{V}, v{BASE}")
                else: a(f"v_fmamk_f32 v{V+8*j+i}, v{EPS}, {fl(float(k))}, v{BASE}")
        a(f"v_add_f32 v{C2}, v{C2}, v{C2}")
        for j in range(7):
            for i in range(2): a(f"v_cos_f32 v{V+8*j+i}, v{V+8*j+i}")
        for i in range(2, 8):
            for j in range(7):
                a(f"v_fma_f32 v{V+8*j+i}, v{C2}, v{V+8*j+i-1}, -v{V+8*j+i-2}")
        for j in range(7):
            o = V + 56 + 4*j
            for i in range(4): a(f"v_cvt_pk_bf16_f32 v{o+i}, v{V+8*j+2*i}, v{V+8*j+2*i+1}")
            a(f"ds_write_b128 v{T1}, {v4(o)} offset:{j*1024}")
            a(f"v_mfma_f32_16x16x32_bf16 {v4(CS)}, {v4(o)}, {v4(ONE)}, {'0' if j == 0 else v4(CS)}")
    else:
      for j in range(7):
        trig_block(a, 8, 32*j, EPS, BASE, TH, False)
        o = TO + 4*(j & 1)
        for i in range(4): a(f"v_cvt_pk_bf16_f32 v{o+i}, v{TH+2*i}, v{TH+2*i+1}")
        a(f"ds_write_b128 v{T1}, {v4(o)} offset:{j*1024}")
        a(f"v_mfma_f32_16x16x32_bf16 {v4(CS)}, {v4(o)}, {v4(ONE)}, {'0' if j == 0 else v4(CS)}")
    a(f"""v_lshrrev_b32 v{ST}, 1, v{N}
    s_lshl_b32 s25, s3, 3
    v_add_u32 v{ST}, s25, v{ST}
    v_and_b32 v{ST+2}, 1, v{N}
    v_lshlrev_b32 v{VUS}, 16, v{ST}
    v_lshl_add_u32 v{VUS}, v{ST+2}, 6, v{VUS}
    v_lshl_add_u32 v{VUS}, v{G}, 4, v{VUS}
    s_lshl_b32 s25, s3, 6
    v_lshlrev_b32 v{T0}, 4, v{G}
    v_add_u32 v{VCS}, {LCS}, v{T0}
    v_add_u32 v{T1}, s25, v{VCS}
    v_lshlrev_b32 v{SG2+1}, 31, v{G}
    v_or_b32 v{SG2+1}, 1.0, v{SG2+1}
    v_xor_b32 v{SG2}, 0x80000000, v{SG2+1}
    v_pk_fma_f32 {v2(CS)}, {v2(CS)}, {v2(SG2)}, {v2(CS)}
    v_pk_fma_f32 {v2(CS+2)}, {v2(CS+2)}, {v2(SG2)}, {v2(CS+2)}
    ds_write_b128 v{T1}, {v4(CS)}""")
    if not OPT["w64l"]:
        w64(a, WC)
        for i in range(8): a(f"v_xor_b32 v{WNS+i}, 0x80008000, v{WSN+i}")
    stamp(a, 10, True)
    a(f"v_add_u32 v{T2}, {LW}, v{VL}")
    a(f"""s_lshl_b32 s25, s3, 4
    v_add_u32 v{ST}, s25, v{N}
    v_mul_u32_u24 v{VXR}, {PH}, v{ST}
    v_add_u32 v{VXR}, v{T0}, v{VXR}
    v_mul_u32_u24 v{VFW}, {PF}, v{ST}
    v_lshl_add_u32 v{VFW}, v{G}, 3, v{VFW}
    v_add_u32 v{VFW}, {LF}, v{VFW}
    v_lshrrev_b32 v{ST}, 2, v{N}
    v_lshl_add_u32 v{ST}, v{G}, 3, v{ST}
    v_mul_u32_u24 v{VFR}, {PF}, v{ST}
    v_and_b32 v{ST}, 3, v{N}
    v_lshl_add_u32 v{VFR}, v{ST}, 3, v{VFR}
    v_add_u32 v{VFR}, {LF}, v{VFR}
    s_lshl_b32 s23, s21, 11
    s_lshl_b32 s24, s22, 8
    s_add_u32 s23, s23, s24""")
    for r in range(4):
        a(f"s_mov_b32 s{30+2*r}, {hex(((1<<r)|(1<<(20+r))) & 0xffffffff)}")
        a(f"s_mov_b32 s{31+2*r}, {hex(((1<<(8+r))|(1<<(28+r))) & 0xffffffff)}")
    a("s_mov_b64 s[24:25], 0xffff")

def a_main(a):
    q = LdsQ(a)
    def rdx(j, hf): q.read(f"ds_read_b128 {v4(XF+4*j)}, v{VXR} offset:{64*j + hf*LXH}", XF+4*j)
    def rdw(j):
        for T in range(4): q.read(f"ds_read_b128 {v4(WD+4*(7*T+j))}, v{T2} offset:{(7*T+j)*1024}", WD+4*(7*T+j))
    for j in range(3): rdx(j, 0); rdw(j)
    BJ = OPT["barj"]
    Q, S, M, RS = ST, ST+1, ST+2, ST+4
    def mf(A, T, j, first): a(f"v_mfma_f32_16x16x32_bf16 {v4(A+4*T)}, {v4(WD+4*(7*T+j))}, {v4(XF+4*j)}, {'0' if first else v4(A+4*T)}")
    def gram(j, first): a(f"v_mfma_f32_16x16x32_bf16 {v4(GR)}, {v4(XF+4*j)}, {v4(XF+4*j)}, {'0' if first else v4(GR)}")
    for j in range(7):
        q.need(XF + 4*j)
        gram(j, j == 0)
        for T in range(4):
            q.need(WD+4*(7*T+j))
            mf(AC1, T, j, j == 0)
        if j + 3 < 7: rdx(j + 3, 0); rdw(j + 3)
        if j == BJ:
            stamp(a, 11)
            a("s_barrier")
            for k in range(BJ + 1): rdx(k, 1)
        elif j > BJ: rdx(j, 1)
    CS = WD + 28
    for j in range(7):
        q.need(XF + 4*j)
        gram(j, False)
        mf(AC2, 1, j, j == 0)
    for T in range(4): q.read(f"ds_read_b128 {v4(CS+4*T)}, v{VCS} offset:{64*T}", CS+4*T)
    stats = [None, None, f"v_mov_b32 v{Q}, 0", f"v_mov_b32 v{V_EP}, {LTAG}"]
    stats += [f"v_cndmask_b32 v{Q}, v{Q}, v{GR+r}, s[{30+2*r}:{31+2*r}]" for r in range(4)]
    stats += [f"v_add_f32 v{S}, v{AC1+7}, v{AC2+7}", f"v_cndmask_b32 v{S}, 0, v{S}, s[24:25]", None, None,
              f"v_permlane32_swap_b32 v{Q}, v{S}", f"v_add_f32 v{Q}, v{Q}, v{S}", f"v_mov_b32 v{S}, v{Q}", None, None,
              f"v_permlane16_swap_b32 v{Q}, v{S}", f"v_add_f32 v{Q}, v{Q}, v{S}", f"v_mov_b32 v{S}, v{Q}", None, None,
              f"v_permlane32_swap_b32 v{Q}, v{S}", f"v_mul_f32 v{M}, {fl(-1.0/448)}, v{S}", f"v_mul_f32 v{Q}, {fl(1.0/448)}, v{Q}",
              f"v_fma_f32 v{Q}, -v{M}, v{M}, v{Q}", f"v_max_f32 v{Q}, 0, v{Q}"]
    rb = [f"v_cvt_pk_bf16_f32 v{Q}, v{Q}, v{Q}", f"v_and_b32 v{Q}, 0xffff0000, v{Q}"]
    if OPT["ln1emu"]:
        stats += rb + [f"v_add_f32 v{Q}, {fl(1e-5)}, v{Q}"] + rb + [f"v_sqrt_f32 v{Q}, v{Q}", None] + rb + [f"v_rcp_f32 v{RS}, v{Q}"]
    else:
        stats += [f"v_add_f32 v{Q}, {fl(1e-5)}, v{Q}", f"v_rsq_f32 v{RS}, v{Q}"]
    stats += ["WAITCS", f"v_mul_f32 v{M}, v{M}, v{RS}"]
    stats += [f"v_mul_f32 v{CS+i}, v{CS+i}, v{M}" for i in range(16)]
    for j in range(7):
        for T in (0, 2, 3):
            mf(AC2, T, j, j == 0)
            for _ in range(2):
                if stats:
                    t = stats.pop(0)
                    if t == "WAITCS": q.need(CS, 16)
                    elif t: a(t)
    for p in range(2): a(f"v_pk_fma_f32 {v2(AC1+4+2*p)}, {v2(AC2+4+2*p)}, {v2(SG2)}, {v2(AC1+4+2*p)}")
    for t in stats:
        if t == "WAITCS": q.need(CS, 16)
        elif t: a(t)
    stamp(a, 3)
    for T in (0, 2, 3):
        for p in range(2):
            x = AC1 + 4*T + 2*p
            a(f"v_pk_fma_f32 {v2(x)}, {v2(AC2+4*T+2*p)}, {v2(SG2)}, {v2(x)}")
    for T in (1, 0, 2, 3):
        for p in range(2):
            x = AC1 + 4*T + 2*p
            a(f"v_pk_fma_f32 {v2(x)}, {v2(x)}, {v2(RS)}, {v2(CS+4*T+2*p)} op_sel_hi:[1,0,1]")
    for T in (1, 0, 2, 3):
        for p in range(2):
            x = AC1 + 4*T + 2*p
            a(f"v_cvt_pk_f16_f32 v{AC2+2*T+p}, v{x}, v{x+1}")
        a(f"ds_write_b64 v{VFW}, {v2(AC2+2*T)} offset:{32*T}")
    if OPT["w64l"]: a(f"s_lshl_b32 s26, s3, 12\ns_add_u32 s26, s26, {LWT}\nv_add_u32 v{T1}, s26, v{VL}")
    stamp(a, 5, 5)
    a(f"s_waitcnt lgkmcnt(0)")
    stamp(a, 6, 5)
    a(f"s_barrier")
    stamp(a, 7, 5)
    if OPT["w64l"]:
        for i in (0, 2, 4, 1, 3, 5): a(f"ds_read_b128 {v4(WC+4*i)}, v{T1} offset:{(i % 4 if i < 4 else i - 2 + 2) * 0 + i * 0 + [0, 1024, 2048, 3072, 16384, 17408][i]}")
    FA = WD + 48
    fa = lambda T, ks: FA + (2*T + ks) * 4
    q = LdsQ(a)
    for T in range(2):
        for ks in range(2):
            for TT in (T, T + 2):
                for h in range(2):
                    q.read(f"ds_read_b64_tr_b16 {v2(fa(TT, ks)+2*h)}, v{VFR} offset:{(32*ks+4*h)*PF+32*TT}", fa(TT, ks)+2*h, 2)
    q.read(f"ds_read_b32 v{V_EP}, v{V_EP}", V_EP, 1)
    UR = AC1; UI = AC1 + 8; o = XF
    tagcalc = [f"v_add_u32 v{M}, 1, v{V_EP}", f"s_mov_b32 s98, {HASH}", f"v_mul_lo_u32 v{M}, v{M}, s98"]
    for T in range(2):
        for ks in range(2):
            fr = v4(fa(T, ks)); fi = v4(fa(T + 2, ks))
            q.need(fa(T, ks))
            if T == 0 and ks == 0: stamp(a, 8, 5)
            a(f"v_mfma_f32_16x16x32_f16 {v4(UR+4*T)}, {fr}, {v4(WC+4*ks)}, {'0' if ks == 0 else v4(UR+4*T)}")
            a(f"v_mfma_f32_16x16x32_f16 {v4(UI+4*T)}, {fr}, {v4(WNS+4*ks)}, {'0' if ks == 0 else v4(UI+4*T)}")
            q.need(fa(T + 2, ks))
            a(f"v_mfma_f32_16x16x32_f16 {v4(UR+4*T)}, {fi}, {v4(WSN+4*ks)}, {v4(UR+4*T)}")
            a(f"v_mfma_f32_16x16x32_f16 {v4(UI+4*T)}, {fi}, {v4(WC+4*ks)}, {v4(UI+4*T)}")
            if T == 1 and ks == 1:
                q.need(V_EP, 1)
                for t in tagcalc: a(t)
    stamp(a, 9, 5)
    for r in range(4): a(f"v_cvt_pk_f16_f32 v{o+r}, v{UR+r}, v{UI+r}")
    a(f"buffer_store_dwordx4 {v4(o)}, v{VUS}, s[12:15], s23 offen {SC}")
    stamp(a, 10, 5)
    a(f"v_add3_u32 v{Q}, v{o}, v{o+1}, v{o+2}")
    a(f"v_sub_u32 v{M}, v{M}, v{o+3}")
    a(f"v_sub_u32 v{M}, v{M}, v{Q}")
    for r in range(3): a(f"v_cvt_pk_f16_f32 v{o+4+r}, v{UR+4+r}, v{UI+4+r}")
    a(f"""v_add3_u32 v{Q}, v{o+4}, v{o+5}, v{o+6}
    v_sub_u32 v{o+7}, v{M}, v{Q}
    buffer_store_dwordx4 {v4(o+4)}, v{VUS}, s[12:15], s23 offen offset:128 {SC}""")

def b_ids(a):
    a(f"""s_and_b32 s92, s2, 7
    s_lshr_b32 s93, s2, 6
    s_lshl_b32 s93, s93, 3
    s_or_b32 s92, s92, s93
    s_bfe_u32 s93, s2, 0x10003
    s_bfe_u32 s96, s2, 0x20004
    s_sub_u32 s95, 64, s92
    s_cmp_eq_u32 s92, 0
    s_cselect_b32 s95, 32, s95
    s_cselect_b32 s94, 0, 1
    s_xor_b32 s94, s94, s93
    s_cmp_eq_u32 s93, 0
    s_cselect_b32 s95, s92, s95
    s_lshl_b32 s96, s96, 9
    s_add_u32 s95, s95, s96
    s_lshl_b32 s96, s20, 6
    s_add_u32 s96, s96, s95
    s_mul_i32 s97, s96, 896""")

def b_setup(a):
    srd(a, 12, 6, WS_SIZE)
    srd(a, 52, 48, XB)
    srd(a, 16, 40, 896)
    b_ids(a)

def b_loads(a):
    a(f"""s_mov_b32 s26, {WS_EPOCH}
    v_mov_b32 v{T0}, 0
    buffer_load_dword v{V_EP}, v{T0}, s[12:15], s26 offen {SC}
    buffer_load_dwordx4 {v4(B_WR)}, v{VL}, s[16:19], 0 offen
    buffer_load_dwordx4 {v4(B_XR)}, v{VL}, s[8:11], s97 offen""")

def pro(a):
    EPS, BASE, TH, AF, AD = P_EPS, P_BASE, P_TH, B_AF, B_AD
    a(f"""s_lshl_b32 s28, s92, 16
    s_lshl_b32 s29, s20, 8
    s_add_u32 s28, s28, s29
    s_add_u32 s29, s28, 4096
    s_add_u32 s30, s28, 32768
    s_add_u32 s31, s28, 36864
    v_lshlrev_b32 v{B_VU}, 13, v{G}
    v_lshl_add_u32 v{B_VU}, v{N}, 4, v{B_VU}
    v_and_b32 v{T0}, 7, v{N}
    v_lshlrev_b32 v{T0}, 6, v{T0}
    v_add_u32 v{T0}, s95, v{T0}
    v_cvt_f32_u32 v{T0}, v{T0}
    v_cmp_gt_u32 vcc, 8, v{N}
    v_mul_f32 v{EPS}, {fl(1.0/2048)}, v{T0}
    v_lshlrev_b32 v{T1}, 2, v{G}
    v_cndmask_b32 v{EPS}, -v{EPS}, v{EPS}, vcc
    v_cvt_f32_u32 v{T1}, v{T1}
    v_mul_f32 v{BASE}, v{T1}, v{EPS}""")
    for ks in range(2):
        trig_block(a, 4, 16*ks, EPS, BASE, TH, True)
        for i in range(4):
            a(f"v_cvt_pk_f16_f32 v{AF+4*ks+i}, v{TH+i}, v{TH+4+i}")
    a(f"""v_lshrrev_b32 v{T0}, 3, v{N}
    v_and_b32 v{T1}, 3, v{N}
    v_mul_u32_u24 v{T1}, 7, v{T1}
    v_lshl_add_u32 v{T1}, v{T0}, 2, v{T1}
    s_mul_i32 s32, s20, 28
    s_add_u32 s32, s32, 1
    v_add_u32 v{T1}, s32, v{T1}
    v_sub_u32 v{T2}, 448, v{T1}
    v_cmp_gt_u32 s[34:35], 2, v{G}
    v_mov_b32 v{TH}, s93
    v_mov_b32 v{TH+1}, s94
    v_cndmask_b32 v{T2}, v{T2}, v{T1}, s[34:35]
    v_cndmask_b32 v{TH}, v{TH+1}, v{TH}, s[34:35]
    v_bfe_u32 v{TH+1}, v{N}, 2, 1
    v_cmp_eq_u32 s[60:61], v{TH}, v{TH+1}
    v_and_b32 v{TH+2}, 1, v{G}
    v_mul_u32_u24 v{TH+2}, {4*PY}, v{TH+2}
    v_add_lshl_u32 v{AD}, v{TH+2}, v{T2}, 2
    v_mov_b32 v{TH+3}, -4
    v_cndmask_b32 v{TH+3}, v{TH+3}, 4, s[34:35]
    v_add_u32 v{AD+1}, v{AD}, v{TH+3}
    v_add_u32 v{AD+2}, v{AD+1}, v{TH+3}
    v_add_u32 v{AD+3}, v{AD+2}, v{TH+3}
    v_cmp_eq_u32 s[50:51], 0, v{T0}
    s_and_b64 s[50:51], s[50:51], s[60:61]
    v_mov_b32 v{TH}, 222
    v_cmp_eq_u32 s[62:63], v{TH}, v{T1}
    s_andn2_b64 s[62:63], s[62:63], s[34:35]
    s_andn2_b64 s[62:63], s[60:61], s[62:63]
    s_mul_i32 s33, s20, {PY*4}
    v_lshlrev_b32 v{B_VY}, 5, v{LANE}
    v_add_u32 v{B_VY}, s33, v{B_VY}""")
    lim_regs(a, C_L, LANE, T0)
    a(f"""s_lshl_b32 s34, s20, 5
    s_add_u32 s34, s34, {LSEL}
    v_lshlrev_b32 v{T1}, 2, v{LANE}
    v_add_u32 v{C_SW}, s34, v{T1}
    v_add_u32 v{C_SR}, {LSEL}, v{T1}
    v_lshrrev_b32 v{C_KA}, 1, v0
    v_lshlrev_b32 v{C_KA}, 6, v{C_KA}
    v_and_b32 v{T0}, 1, v0
    v_lshl_add_u32 v{C_KA}, v{T0}, 4, v{C_KA}
    s_lshl_b32 s34, s20, 6
    s_add_u32 s34, s34, {LSE2}
    v_add_u32 v{C_FW}, s34, v{T1}
    v_lshrrev_b32 v{C_PF}, 3, v{LANE}
    v_and_b32 v{C_FY}, 7, v{LANE}
    v_lshlrev_b32 v{C_FR}, 6, v{C_PF}
    v_lshl_add_u32 v{C_FR}, v{C_FY}, 2, v{C_FR}
    v_add_u32 v{C_FR}, {LSE2}, v{C_FR}
    v_lshlrev_b32 v{C_FY}, 6, v{C_FY}
    v_add_u32 v{C_FY}, {LSE2 + 32}, v{C_FY}
    v_lshlrev_b32 v{C_PF}, 7, v{C_PF}
    s_cmp_ge_u32 s2, 224
    s_cselect_b32 s33, 1024, 0
    s_add_u32 s33, s33, {WS_ROW}
    s_lshl_b32 s27, s2, 6
    s_add_u32 s27, s27, {WS_KEYS}
    s_sub_u32 s32, 2047, s96
    v_lshrrev_b32 v{T0}, 1, v0
    v_and_b32 v{T1}, 7, v{T0}
    v_lshrrev_b32 v{T2}, 6, v{T0}
    v_lshl_or_b32 v{T1}, v{T2}, 3, v{T1}
    v_sub_u32 v{T2}, 64, v{T1}
    v_cmp_eq_u32 vcc, 0, v{T1}
    v_bfe_u32 v{TH}, v{T0}, 3, 1
    v_cndmask_b32 v{T2}, v{T2}, 32, vcc
    v_cmp_eq_u32 vcc, 0, v{TH}
    v_bfe_u32 v{TH}, v{T0}, 4, 2
    v_cndmask_b32 v{T1}, v{T2}, v{T1}, vcc
    v_lshl_add_u32 v{T1}, v{TH}, 9, v{T1}
    v_and_b32 v{T0}, 1, v0
    v_lshl_add_u32 v{T1}, v{T0}, 8, v{T1}
    v_sub_u32 v{C_IX}, 2047, v{T1}
    v_subrev_u32 v{C_IX+1}, 64, v{C_IX}
    v_subrev_u32 v{C_IX+2}, 128, v{C_IX}
    v_subrev_u32 v{C_IX+3}, 192, v{C_IX}""")

def pro2(a):
    XU, WU, S1, S2, S3 = B_XU, B_WU, P_TH, P_TH + 2, P_TH + 4
    unpack8(a, WU, B_WR)
    a(f"""v_pk_add_f32 {v2(S1)}, {v2(WU)}, {v2(WU+2)}
    v_pk_add_f32 {v2(S2)}, {v2(WU+4)}, {v2(WU+6)}
    v_pk_add_f32 {v2(S1)}, {v2(S1)}, {v2(S2)}
    v_add_f32 v{S1}, v{S1}, v{S1+1}
    v_mov_b32 v{S2}, 0
    v_mov_b32 v{S3}, 0""")
    reduce3(a, S1, S2, S3, T0, 58, 39, 39)
    unpack8(a, XU, B_XR)
    for k in (B_S1, B_S1+1, B_S2, B_S2+1, B_S3, B_S3+1): a(f"v_mov_b32 v{k}, 0")

def anyones(a, regs_, t):
    regs_ = list(regs_)
    a(f"v_max_u32 v{t}, v{regs_[0]}, v{regs_[1]}")
    rest = regs_[2:]
    while len(rest) >= 2:
        a(f"v_max3_u32 v{t}, v{t}, v{rest[0]}, v{rest[1]}"); rest = rest[2:]
    if rest: a(f"v_max_u32 v{t}, v{t}, v{rest[0]}")
    a(f"v_cmp_eq_u32 vcc, -1, v{t}")

def wave_sum(a, v, sd):
    for k in (8, 4, 2, 1):
        a(f"v_add_u32_dpp v{v}, v{v}, v{v} row_ror:{k} row_mask:0xf bank_mask:0xf")
    for i in range(4): a(f"v_readlane_b32 s{sd+i}, v{v}, {16*i}")
    a(f"s_add_u32 s{sd}, s{sd}, s{sd+1}\ns_add_u32 s{sd+2}, s{sd+2}, s{sd+3}\ns_add_u32 s{sd}, s{sd}, s{sd+2}")

def publish_row(a):
    a(f"""s_lshl_b32 s34, s96, 11
    s_add_u32 s34, s34, {WS_ROW}
    v_mov_b32 v{T0}, 0
    v_mov_b32 v{T1}, 0
    v_writelane_b32 v{C_LN}, 0, 56
    v_writelane_b32 v{C_OUT}, 0, 56
    s_mov_b32 exec_hi, 0x01ffffff
    v_add3_u32 v{T0}, v{C_LN}, v{C_LN+1}, v{C_LN+2}
    v_add3_u32 v{T1}, v{C_OUT}, v{C_OUT+1}, v{C_OUT+2}
    v_add_u32 v{T0}, v{T0}, v{C_LN+3}
    v_add_u32 v{T1}, v{T1}, v{C_OUT+3}
    s_mov_b32 exec_hi, -1""")
    wave_sum(a, T0, 36)
    a(f"s_sub_u32 s35, s98, s36\nv_writelane_b32 v{C_LN}, s35, 56")
    wave_sum(a, T1, 36)
    a(f"""s_sub_u32 s35, s98, s36
    v_writelane_b32 v{C_OUT}, s35, 56
    s_mov_b32 exec_hi, 0x01ffffff
    buffer_store_dwordx4 {v4(C_LN)}, v{VL}, s[12:15], s34 offen {SC}
    buffer_store_dwordx4 {v4(C_OUT)}, v{VL}, s[12:15], s34 offen offset:1024 {SC}
    s_mov_b32 exec_hi, -1""")

def fetch_row_issue(a, dst):
    a(f"""v_readlane_b32 s34, v{C_K}, s20
    s_andn2_b32 s34, 0x7ff, s34
    s_lshl_b32 s34, s34, 11
    s_add_u32 s34, s34, s33
    s_mov_b32 exec_hi, 0x01ffffff
    buffer_load_dwordx4 {v4(dst)}, v{VL}, s[12:15], s34 offen {SC}
    s_mov_b32 exec_hi, -1""")

def fetch_row_finish(a, dst, ldsaddr):
    _lbl[0] += 1
    L = f"Lrow{_lbl[0]}"
    a(f"""s_mul_i32 s29, s20, {PX}
    s_add_u32 s29, s29, {LXS}
    v_add_u32 v{ldsaddr}, s29, v{VL}
    s_mov_b32 s57, {SPIN}
    {L}:
    v_mov_b32 v{T0}, 0
    s_mov_b32 exec_hi, 0x01ffffff
    s_waitcnt vmcnt(0)
    ds_write_b128 v{ldsaddr}, {v4(dst)}
    v_add3_u32 v{T0}, v{dst}, v{dst+1}, v{dst+2}
    v_add_u32 v{T0}, v{T0}, v{dst+3}
    s_mov_b32 exec_hi, -1""")
    wave_sum(a, T0, 36)
    a(f"""s_cmp_eq_u32 s36, s98
    s_cbranch_scc1 {L}d
    s_mov_b32 exec_hi, 0x01ffffff
    s_waitcnt lgkmcnt(0)
    buffer_load_dwordx4 {v4(dst)}, v{VL}, s[12:15], s34 offen {SC}
    s_mov_b32 exec_hi, -1
    s_sub_u32 s57, s57, 1
    s_cbranch_scc0 {L}""")
    timeout_note(a, _lbl[0])
    a(f"{L}d:")

def gu_dma(a):
    a(f"""s_cmp_ge_u32 s2, 224
    s_cbranch_scc1 Lngu
    s_cmp_eq_u32 s20, 7
    s_cbranch_scc1 Lngu""")
    srd(a, 16, 42, 448*3584)
    a(f"""v_mul_u32_u24 v{T1}, 3584, v0
    s_and_b32 s50, s2, 7
    s_mul_i32 s50, s50, 28
    s_lshr_b32 s51, s2, 3
    s_add_u32 s50, s50, s51
    s_lshl_b32 s26, s50, 4
    s_lshl_b32 s24, s20, 10
    s_add_u32 s24, s24, {LWT}
    s_mov_b32 m0, s24
    s_add_u32 s24, s24, 8192
    buffer_load_dwordx4 v{T1}, s[16:19], s26 offen lds
    s_mov_b32 s16, s44
    s_and_b32 s17, s45, 0xffff
    s_mov_b32 m0, s24
    s_nop 0
    buffer_load_dwordx4 v{T1}, s[16:19], s26 offen lds
    Lngu:""")

def wd_dma(a, j0, j1, L):
    if j0 == j1: return
    a(f"""s_cmp_lt_u32 s2, 224
    s_cbranch_scc1 {L}
    s_and_b32 s50, s2, 7
    s_cmp_eq_u32 s50, 7
    s_cbranch_scc1 {L}
    s_lshl_b32 s50, s50, 7
    s_bfe_u32 s51, s2, 0x20003
    s_lshl_b32 s51, s51, 5
    s_add_u32 s51, s51, s50""")
    srd(a, 16, 46, 1792*896)
    a(f"""v_lshrrev_b32 v{T1}, 1, v{LANE}
    v_mul_u32_u24 v{T1}, 896, v{T1}
    v_and_b32 v{T2}, 1, v{LANE}
    v_lshl_add_u32 v{T1}, v{T2}, 4, v{T1}
    s_mul_i32 s23, s20, {224*896}
    s_add_u32 s23, s23, s51
    s_add_u32 s23, s23, {j0*32*896}
    s_mul_i32 s25, s20, 7168
    s_add_u32 s25, s25, {LWT + j0*1024}""")
    for j in range(j0, j1):
        a(f"s_mov_b32 m0, s25")
        a(f"s_add_u32 s25, s25, 1024")
        a(f"buffer_load_dwordx4 v{T1}, s[16:19], s23 offen lds")
        a(f"s_add_u32 s23, s23, {32*896}")
    a(f"{L}:")

def b_main(a):
    R, AF, ACC, XU, WU, AD, TH = B_R, B_AF, B_ACC, B_XU, B_WU, B_AD, B_TH
    S1, S2, S3 = B_S1, B_S2, B_S3
    if OPT["sl_u0"]: a(f"s_sleep {OPT['sl_u0']}")
    def uld():
        for ks in range(2):
            for i in range(4):
                a(f"buffer_load_dwordx4 {v4(R+16*ks+4*i)}, v{B_VU}, s[12:15], s{28+2*ks+(i>>1)} offen offset:{2048*(i&1)} {SC}")
    a(f"s_mov_b32 s57, {SPIN}")
    uld()
    a("s_waitcnt vmcnt(8)")
    pro2(a)
    a("s_branch Lupw\nLupoll:")
    uld()
    a("Lupw:")
    for ks in range(2):
        a(f"s_waitcnt vmcnt({4-4*ks})")
        b = R + 16*ks
        for i in range(8):
            if ks == 0 and i == 0: a(f"v_add_u32 v{T0}, v{b}, v{b+1}")
            else: a(f"v_add3_u32 v{T0}, v{T0}, v{b+2*i}, v{b+2*i+1}")
        for i in range(4):
            for j in range(i+1, 4):
                a(f"v_swap_b32 v{b+4*i+j}, v{b+4*j+i}")
        for j in range(4):
            c = "0" if ks == 0 else v4(ACC+4*j)
            a(f"v_mfma_f32_16x16x32_f16 {v4(ACC+4*j)}, {v4(AF+4*ks)}, {v4(b+4*j)}, {c}")
            if ks == 1: a(f"v_add_u32_dpp v{T0}, v{T0}, v{T0} row_ror:{8 >> j} row_mask:0xf bank_mask:0xf")
    a(f"""v_cmp_ne_u32 vcc, s99, v{T0}
    s_cmp_eq_u64 vcc, 0
    s_cbranch_scc1 Lupolld
    s_sub_u32 s57, s57, 1
    s_cbranch_scc0 Lupoll""")
    timeout_note(a, 9)
    a("Lupolld:")
    stamp(a, 6)
    if OPT["stamps"] == 3: a(f"s_sub_u32 s{64+2*11}, {SPIN+1}, s57")
    for j in range(4):
        if j != 1: a(f"s_mov_b64 exec, {['s[60:61]', '', 's[62:63]', 's[50:51]'][j]}")
        for r in range(4):
            a(f"ds_write_b32 v{AD+j}, v{ACC+4*j+r} offset:{LY + r*PY*4}")
    a("s_mov_b64 exec, -1")
    gu_dma(a)
    wd_dma(a, 0, OPT['wdsplit'], 'Lnwd0')
    a("""s_mov_b32 exec_hi, 0x00ffffff
    s_waitcnt lgkmcnt(0)
    s_barrier""")
    H = R
    a(f"ds_read_b128 {v4(H)}, v{B_VY} offset:{LY}\nds_read_b128 {v4(H+4)}, v{B_VY} offset:{LY+16}")
    for hf in range(2):
        a(f"s_waitcnt lgkmcnt({1-hf})")
        if hf == 0: a(f"v_writelane_b32 v{H}, 0, 0")
        for p in range(2):
            x = 4*hf + 2*p
            a(f"v_pk_add_f32 {v2(H+x)}, {v2(H+x)}, {v2(XU+x)}")
        for p in range(2):
            x = 4*hf + 2*p
            a(f"v_pk_add_f32 {v2(S1)}, {v2(S1)}, {v2(H+x)}")
            a(f"v_pk_fma_f32 {v2(S2)}, {v2(H+x)}, {v2(H+x)}, {v2(S2)}")
            a(f"v_pk_fma_f32 {v2(S3)}, {v2(H+x)}, {v2(WU+x)}, {v2(S3)}")
    a(f"""s_mov_b32 exec_hi, -1
    v_add_f32 v{S1}, v{S1}, v{S1+1}
    v_add_f32 v{S2}, v{S2}, v{S2+1}
    v_add_f32 v{S3}, v{S3}, v{S3+1}""")
    reduce3(a, S1, S2, S3, T0, 37, 38, 39)
    M, V, SD, RS, C0, KEY = TH, TH+1, TH+2, TH+4, TH+6, C_KEY
    a(f"""v_mov_b32 v{V}, {fl(1.0/448)}
    v_mul_f32 v{M}, s37, v{V}
    v_mul_f32 v{V}, s38, v{V}
    v_mov_b32 v{KEY}, s39
    v_fma_f32 v{V}, -v{M}, v{M}, v{V}
    v_fma_f32 v{KEY}, -v{M}, s58, v{KEY}
    v_max_f32 v{SD}, 0, v{V}
    v_add_f32 v{V}, {fl(1e-5)}, v{SD}""")
    a(f"""v_rsq_f32 v{RS}, v{V}
    s_lshl_b32 s34, s20, 2
    v_mov_b32 v{T2}, s34
    v_mul_f32 v{KEY}, v{KEY}, v{RS}
    v_cvt_pk_bf16_f32 v{KEY}, v{KEY}, v{KEY}
    v_ashrrev_i32 v{T0}, 31, v{KEY}
    v_or_b32 v{T0}, 0x80000000, v{T0}
    v_xor_b32 v{KEY}, v{KEY}, v{T0}
    v_and_b32 v{KEY}, 0xffff0000, v{KEY}
    v_or_b32 v{KEY}, s32, v{KEY}
    ds_write_b32 v{T2}, v{KEY} offset:{LKEY}
    v_mov_b32 v{C_STK}, 0xffff
    v_lshlrev_b32 v{T1}, 2, v{LANE}
    v_mov_b32 v{T2}, {LKEY}
    s_waitcnt lgkmcnt(0)
    s_barrier
    s_cmp_lg_u32 s20, 0
    s_cbranch_scc1 Lnokey
    s_mov_b64 exec, 0xff
    ds_read_b32 v{T0}, v{T1} offset:{LKEY}
    s_waitcnt lgkmcnt(0)
    v_bfi_b32 v{T0}, v{C_STK}, s59, v{T0}
    buffer_store_dword v{T0}, v{T1}, s[12:15], s27 offen {SC}
    s_mov_b64 exec, -1
    Lnokey:
    ds_read_b128 {v4(ACC)}, v{T2}
    ds_read_b128 {v4(ACC+4)}, v{T2} offset:16""")
    stamp(a, 7)
    sd_chain(a, SD, SD)
    a(f"v_rcp_f32 v{RS}, v{SD}\ns_nop 0\nv_mul_f32 v{C0}, -v{M}, v{RS}")
    for p in range(4):
        a(f"v_pk_fma_f32 {v2(XU+2*p)}, {v2(H+2*p)}, {v2(RS)}, {v2(C0)} op_sel_hi:[1,0,0]")
    for p in range(4):
        a(f"v_pk_add_f32 {v2(H+2*p)}, {v2(H+2*p)}, {v2(XU+2*p)}")
    for p in range(4):
        a(f"v_cvt_pk_bf16_f32 v{C_LN+p}, v{XU+2*p}, v{XU+2*p+1}")
        a(f"v_cvt_pk_bf16_f32 v{C_OUT+p}, v{H+2*p}, v{H+2*p+1}")
    a(f"""s_waitcnt lgkmcnt(0)
    v_max3_u32 v{T0}, v{ACC}, v{ACC+1}, v{ACC+2}
    v_max3_u32 v{T1}, v{ACC+3}, v{ACC+4}, v{ACC+5}
    v_max3_u32 v{T0}, v{T0}, v{ACC+6}, v{ACC+7}
    v_max_u32 v{T0}, v{T0}, v{T1}
    v_cmp_eq_u32 s[60:61], v{T0}, v{KEY}
    s_cmp_eq_u64 s[60:61], 0
    s_cbranch_scc1 Lnoeager""")
    publish_row(a)
    a("Lnoeager:")

QP = {1: "quad_perm:[1,0,3,2]", 2: "quad_perm:[2,3,0,1]", 3: "quad_perm:[3,2,1,0]", 7: "row_half_mirror"}
class Net:
    def __init__(s, a, x, t, fill): s.a = a; s.x = x; s.t = t; s.fill = list(fill)
    def f(s, n=1):
        for _ in range(n):
            if s.fill: s.a(s.fill.pop(0))
    def ce(s, m):
        a, x, t = s.a, s.x, s.t
        s.f()
        if m == 4:
            a(f"v_max_u32_dpp v{t}, v{x}, v{x} row_shl:4 row_mask:0xf bank_mask:0x5")
            a(f"v_min_u32_dpp v{t}, v{x}, v{x} row_shr:4 row_mask:0xf bank_mask:0xa")
            s.x, s.t = t, x
        else:
            a(f"v_mov_b32_dpp v{t}, v{x} {QP[m]} row_mask:0xf bank_mask:0xf")
            a(f"v_med3_u32 v{x}, v{x}, v{t}, v{C_L[1 << (m.bit_length()-1)]}")
    def merge(s, last_clean=True):
        a = s.a
        s.f()
        a(f"v_max_u32_dpp v{s.x}, v{s.x}, v{s.x} row_mirror row_mask:0xf bank_mask:0xf")
        for m in (4, 2, 1): s.ce(m)
        for sw in ("v_permlane16_swap_b32", "v_permlane32_swap_b32"):
            a(f"v_mov_b32 v{s.t}, v{s.x}")
            s.f()
            a(f"{sw} v{s.x}, v{s.t}")
            s.f()
            a(f"v_max_u32_dpp v{s.x}, v{s.t}, v{s.x} row_half_mirror row_mask:0xf bank_mask:0xf")
            if last_clean or "16" in sw:
                for m in (4, 2, 1): s.ce(m)
        s.f(99)

def fast_select(a):
    K, X, Y, P, Q = C_K, C_X, C_Y, C_TMP, C_TMP + 1
    a(f"""v_max_u32 v{P}, v{K}, v{K+1}
    v_max_u32 v{Q}, v{K+2}, v{K+3}
    v_max_u32 v{X}, v{P}, v{Q}""")
    fill = [f"v_min_u32 v{Y}, v{P}, v{Q}", f"v_min_u32 v{P}, v{K}, v{K+1}", f"v_min_u32 v{Q}, v{K+2}, v{K+3}",
            f"v_max3_u32 v{Y}, v{Y}, v{P}, v{Q}"]
    fill += [f"v_max_u32_dpp v{Y}, v{Y}, v{Y} row_ror:{k} row_mask:0xf bank_mask:0xf" for k in (8, 4, 2, 1)]
    fill += [f"v_mov_b32 v{P}, v{Y}", f"v_permlane16_swap_b32 v{Y}, v{P}", f"v_max_u32 v{Y}, v{Y}, v{P}",
             f"v_mov_b32 v{P}, v{Y}", f"v_permlane32_swap_b32 v{Y}, v{P}", f"v_max_u32 v{Y}, v{Y}, v{P}",
             "s_mov_b64 vcc, 0x100"]
    n = Net(a, X, C_TMP + 2, fill)
    for m in (1, 3, 1, 7, 2, 1): n.ce(m)
    n.merge()
    a(f"""s_mov_b64 exec, 0x1ff
    v_cndmask_b32 v{P}, v{n.x}, v{Y}, vcc
    ds_write_b32 v{C_FW}, v{P}""")
    if OPT["rowpf"]:
        m8 = (1 << OPT["rowpf"]) - 1; m32 = m8 * 0x01010101
        a(f"""s_mov_b32 exec_lo, {hex(m32)}
        s_mov_b32 exec_hi, {hex(m32)}
        v_bfi_b32 v{Q}, v{n.x}, 0, v{C_TMP+3}
        v_lshl_add_u32 v{Q}, v{Q}, 11, v{C_PF}
        buffer_load_dword v{JUNK}, v{Q}, s[12:15], s33 offen {SC}""")
    a(f"""s_mov_b64 exec, -1
    s_waitcnt lgkmcnt(0)
    s_barrier
    ds_read_b32 v{X}, v{C_FR}
    ds_read_b32 v{Y}, v{C_FY}
    s_waitcnt lgkmcnt(0)""")
    fill = [f"v_max_u32_dpp v{Y}, v{Y}, v{Y} {QP[m]} row_mask:0xf bank_mask:0xf" for m in (1, 2, 7)]
    n = Net(a, X, C_TMP + 2, fill)
    n.merge(last_clean=False)
    a(f"""v_cmp_gt_u32 vcc, v{Y}, v{n.x}
    s_cmp_eq_u64 vcc, 0
    s_cbranch_scc0 Lfullsel
    v_mov_b32 v{K}, v{n.x}
    Lseldone:""")

def c_select(a):
    K = C_K
    a(f"s_mov_b32 s34, {WS_KEYS}\nv_mov_b32 v{C_TMP+3}, 0x7ff")
    def chk():
        a(f"v_xor_b32 v{T0}, v{K}, v{K+1}")
        a(f"v_xor_b32 v{T1}, v{K+2}, v{K+3}")
        a(f"v_xor_b32 v{T2}, s59, v{K}")
        a(f"v_xor_b32 v{C_X}, s59, v{K+2}")
        a(f"v_or3_b32 v{T0}, v{T0}, v{T1}, v{T2}")
        for i in range(4): a(f"v_bfi_b32 v{K+i}, v{C_STK}, v{C_IX+i}, v{K+i}")
        a(f"v_or_b32 v{T0}, v{T0}, v{C_X}")
        a(f"v_cmp_ne_u16 vcc, 0, v{T0}")
    poll(a, lambda: a(f"buffer_load_dwordx4 {v4(K)}, v{C_KA}, s[12:15], s34 offen {SC}"), chk, pre=OPT["sl_k"])
    stamp(a, 8)
    fast_select(a)
    stamp(a, 9)
    a(f"""v_cmp_eq_u32 vcc, v{K}, v{C_KEY}
    s_and_b64 s[62:63], vcc, s[60:61]
    s_cmp_lg_u64 s[62:63], vcc
    s_cbranch_scc0 Lsel_pub""")
    publish_row(a)
    a("Lsel_pub:")
    fetch_row_issue(a, 84)
    a(f"""s_cmp_eq_u64 vcc, 0
    s_cbranch_scc0 Lsel_done
    s_mov_b32 exec_hi, 0x00ffffff
    buffer_store_dwordx4 {v4(C_OUT)}, v{VL}, s[52:55], s97 offen {['', 'sc1', 'nt', 'sc0 sc1'][OPT['ost']]}
    s_mov_b32 exec_hi, -1
    Lsel_done:""")

def c1(a):
    XR = 84; XF_ = 168; ACC = 52; XU = 60; WF = 88
    a(f"""s_cmp_lg_u32 s20, 0
    s_cbranch_scc1 Lc1_now
    v_lshrrev_b32 v{T0}, 2, v{N}
    v_lshl_add_u32 v{T0}, v{G}, 3, v{T0}
    v_lshlrev_b32 v{T0}, 4, v{T0}
    v_and_b32 v{T1}, 1, v{N}
    v_lshl_add_u32 v{T0}, v{T1}, 3, v{T0}
    v_bfe_u32 v{T1}, v{N}, 1, 1
    v_lshl_add_u32 v{T0}, v{T1}, 13, v{T0}
    v_add_u32 v{T0}, {LWT}, v{T0}""")
    for j in range(14):
        for h in range(2):
            a(f"ds_read_b64_tr_b16 {v2(WF+4*j+2*h)}, v{T0} offset:{(32*j+4*h)*16}")
    a(f"""v_and_b32 v{XU+4}, 7, v{N}
    v_mul_u32_u24 v{XU+4}, {PX}, v{XU+4}
    v_lshl_add_u32 v{XU+4}, v{G}, 4, v{XU+4}
    v_lshlrev_b32 v{XU+5}, 4, v{N}
    v_lshl_add_u32 v{XU+5}, v{G}, 3, v{XU+5}
    s_lshl_b32 s22, s50, 7
    s_add_u32 s22, s22, {WS_ACT}
    Lc1_now:""")
    fetch_row_finish(a, XR, T2)
    a(f"""s_waitcnt lgkmcnt(0)
    s_barrier
    s_cmp_lg_u32 s20, 0
    s_cbranch_scc1 Lc1_epoch""")
    stamp(a, 10)
    for j in range(14):
        a(f"ds_read_b128 {v4(XF_+4*j)}, v{XU+4} offset:{LXS+64*j}")
    for j in range(14):
        a(f"s_waitcnt lgkmcnt({13-j})")
        A = ACC + 4*(j & 1)
        a(f"v_mfma_f32_16x16x32_bf16 {v4(A)}, {v4(WF+4*j)}, {v4(XF_+4*j)}, {'0' if j < 2 else v4(A)}")
    for p in range(2):
        a(f"v_pk_add_f32 {v2(ACC+2*p)}, {v2(ACC+2*p)}, {v2(ACC+4+2*p)}")
    for p in range(2): a(f"v_cvt_pk_bf16_f32 v{ACC+4+p}, v{ACC+2*p}, v{ACC+2*p+1}")
    for p in range(2): a(f"v_mov_b32 v{ACC+6+p}, v{ACC+4+p}")
    for p in range(2): a(f"v_permlane32_swap_b32 v{ACC+4+p}, v{ACC+6+p}")
    for p in range(2):
        a(f"v_lshlrev_b32 v{ACC+2*p}, 16, v{ACC+4+p}")
        a(f"v_and_b32 v{ACC+2*p+1}, 0xffff0000, v{ACC+4+p}")
    for r in range(4): a(f"v_mul_f32 v{XU+r}, {fl(-1.4426950408889634)}, v{ACC+r}")
    for r in range(4): a(f"v_exp_f32 v{XU+r}, v{XU+r}")
    for p in range(2):
        a(f"v_lshlrev_b32 v{XR+2*p}, 16, v{ACC+6+p}")
        a(f"v_and_b32 v{XR+2*p+1}, 0xffff0000, v{ACC+6+p}")
    for r in range(4): a(f"v_add_f32 v{XU+r}, 1.0, v{XU+r}")
    for r in range(4): a(f"v_rcp_f32 v{XU+r}, v{XU+r}")
    for r in range(4): a(f"v_mul_f32 v{ACC+r}, v{ACC+r}, v{XU+r}")
    for p in range(2): a(f"v_cvt_pk_bf16_f32 v{ACC+4+p}, v{ACC+2*p}, v{ACC+2*p+1}")
    for p in range(2):
        a(f"v_lshlrev_b32 v{ACC+2*p}, 16, v{ACC+4+p}")
        a(f"v_and_b32 v{ACC+2*p+1}, 0xffff0000, v{ACC+4+p}")
    for p in range(2): a(f"v_pk_mul_f32 {v2(ACC+2*p)}, {v2(ACC+2*p)}, {v2(XR+2*p)}")
    for p in range(2): a(f"v_cvt_pk_bf16_f32 v{XR+p}, v{ACC+2*p}, v{ACC+2*p+1}")
    for p in range(2): a(f"v_min_u32 v{XR+p}, -2, v{XR+p}")
    a(f"""s_mov_b32 exec_lo, 0x00ff00ff
    s_mov_b32 exec_hi, 0
    buffer_store_dwordx2 {v2(XR)}, v{XU+5}, s[12:15], s22 offen {SC}
    s_branch Lend
    Lc1_epoch:
    s_lshl_b32 s29, s2, 3
    s_add_u32 s29, s29, s20
    s_cmp_lg_u32 s29, 1
    s_cbranch_scc1 Lend
    s_mov_b64 exec, 1
    v_mov_b32 v{T0}, s56
    s_mov_b32 s29, {WS_EPOCH}
    buffer_store_dword v{T0}, v{VL}, s[12:15], s29 offen {SC}
    s_branch Lend""")

def c2(a):
    K = C_K
    OA = 8; OR = 10; SG = 12; VA = 13; VO = 14; VW = 15; WF = 88; AF = 116; ACC = 52; RD = 168
    a(f"""s_mul_i32 s24, s20, 7168
    s_add_u32 s24, s24, {LWT}
    v_lshrrev_b32 v{T0}, 2, v{N}
    v_lshl_add_u32 v{T0}, v{G}, 3, v{T0}
    v_lshlrev_b32 v{T0}, 5, v{T0}
    v_and_b32 v{T1}, 3, v{N}
    v_lshl_add_u32 v{T0}, v{T1}, 3, v{T0}
    v_add_u32 v{VW}, s24, v{T0}""")
    for j in range(7):
        for h in range(2):
            a(f"ds_read_b64_tr_b16 {v2(WF+4*j+2*h)}, v{VW} offset:{(32*j+4*h)*32}")
    a(f"""v_and_b32 v{T1}, 7, v{N}
    v_mul_u32_u24 v{VO}, {PX}, v{T1}
    v_lshl_add_u32 v{VO}, v{G}, 3, v{VO}
    v_add_u32 v{VO}, s51, v{VO}
    v_lshlrev_b32 v{VA}, 4, v{T1}
    v_lshl_add_u32 v{VA}, v{G}, 7, v{VA}
    s_mul_i32 s25, s20, {7*512}
    s_add_u32 s25, s25, {WS_ACT}
    v_and_b32 v{OA}, 0x7ff, v{K}
    v_sub_u32 v{OA}, 2047, v{OA}
    v_mul_u32_u24 v{OA}, 896, v{OA}
    v_lshl_add_u32 v{OA}, v{G}, 3, v{OA}
    v_ashrrev_i32 v{T2}, 31, v{K}
    v_not_b32 v{T2}, v{T2}
    v_or_b32 v{T2}, 0x80000000, v{T2}
    v_xor_b32 v{K+1}, v{K}, v{T2}
    v_and_b32 v{K+1}, 0xffff0000, v{K+1}""")
    sigmoid_mul(a, SG, K+1, "1.0", T2)
    rbf(a, SG, SG)
    a(f"""v_lshlrev_b32 v{T1}, 4, v0
    v_add_u32 v{T1}, {LRED}, v{T1}""")
    def lds():
        for j in range(7):
            a(f"buffer_load_dwordx4 {v4(AF+4*j)}, v{VA}, s[12:15], s25 offen offset:{512*j} {SC}")
    if OPT["c2re"]:
        if OPT["sl_a"]: a(f"s_sleep {OPT['sl_a']}")
        lds()
        fetch_row_finish(a, 84, T2)
        anyones(a, range(AF, AF+28), T0)
        a("s_cmp_eq_u64 vcc, 0\ns_cbranch_scc1 Lactok")
        poll(a, lds, lambda: anyones(a, range(AF, AF+28), T0))
        a("Lactok:")
    else:
        fetch_row_finish(a, 84, T2)
        poll(a, lds, lambda: anyones(a, range(AF, AF+28), T0), pre=OPT["sl_a"])
    stamp(a, 10)
    a("s_waitcnt lgkmcnt(0)")
    for j in range(7):
        A = ACC + 4*(j & 1)
        a(f"v_mfma_f32_16x16x32_bf16 {v4(A)}, {v4(WF+4*j)}, {v4(AF+4*j)}, {'0' if j < 2 else v4(A)}")
    for p in range(2):
        a(f"v_pk_add_f32 {v2(ACC+2*p)}, {v2(ACC+2*p)}, {v2(ACC+4+2*p)}")
    a(f"""ds_write_b128 v{T1}, {v4(ACC)}
    s_waitcnt lgkmcnt(0)
    s_barrier
    s_cmp_lg_u32 s20, 0
    s_cbranch_scc1 Lend
    ds_read_b64 {v2(OR)}, v{VO} offset:{LXS}""")
    for w in range(1, 8):
        a(f"ds_read_b128 {v4(RD+4*w)}, v{T1} offset:{1024*w}")
    a("s_waitcnt lgkmcnt(7)")
    for i in range(2):
        a(f"v_lshlrev_b32 v{RD+2*i}, 16, v{OR+i}")
        a(f"v_and_b32 v{RD+2*i+1}, 0xffff0000, v{OR+i}")
    for w in range(1, 8):
        a(f"s_waitcnt lgkmcnt({7-w})")
        for p in range(2):
            a(f"v_pk_add_f32 {v2(ACC+2*p)}, {v2(ACC+2*p)}, {v2(RD+4*w+2*p)}")
    for rnd in range(2):
        for p in range(2): a(f"v_cvt_pk_bf16_f32 v{ACC+4+p}, v{ACC+2*p}, v{ACC+2*p+1}")
        for p in range(2):
            a(f"v_lshlrev_b32 v{ACC+2*p}, 16, v{ACC+4+p}")
            a(f"v_and_b32 v{ACC+2*p+1}, 0xffff0000, v{ACC+4+p}")
        for p in range(2):
            if rnd == 0: a(f"v_pk_mul_f32 {v2(ACC+2*p)}, {v2(ACC+2*p)}, {v2(SG)} op_sel_hi:[1,0]")
            else: a(f"v_pk_add_f32 {v2(ACC+2*p)}, {v2(ACC+2*p)}, {v2(RD+2*p)}")
    for p in range(2): a(f"v_cvt_pk_bf16_f32 v{OR+p}, v{ACC+2*p}, v{ACC+2*p+1}")
    a(f"""s_mov_b32 exec_lo, 0x00ff00ff
    s_mov_b32 exec_hi, 0x00ff00ff
    buffer_store_dwordx2 {v2(OR)}, v{OA}, s[52:55], s51 offen {['', 'sc1', 'nt', 'sc0 sc1'][OPT['ost']]}""")

def clears(a):
    a(f"""v_mov_b32 v{JUNK+2}, -1
    v_lshlrev_b32 v{T1}, 2, v{LANE}
    s_lshl_b32 s24, s2, 7
    s_add_u32 s24, s24, {WS_ACT}
    s_mov_b32 exec_hi, 0
    buffer_store_dword v{JUNK+2}, v{T1}, s[12:15], s24 offen {SC}
    s_mov_b32 exec_lo, 1
    s_lshl_b32 s23, s96, 11
    s_add_u32 s23, s23, {WS_ROW}
    buffer_load_dword v{JUNK}, v{VL}, s[52:55], s97 offen
    buffer_load_dword v{JUNK+1}, v{VL}, s[12:15], s23 offen
    s_mov_b64 exec, -1""")

def prefetch(a):
    a(f"""s_and_b32 s24, s2, 7
    s_lshr_b32 s25, s2, 3
    s_mul_i32 s26, s25, {14*3584}
    s_mov_b32 s18, {448*3584}
    s_cmp_eq_u32 s20, 3
    s_cbranch_scc1 Lpf_d
    v_lshrrev_b32 v{T0}, 2, v{LANE}
    v_mul_u32_u24 v{T0}, 3584, v{T0}
    v_and_b32 v{T1}, 3, v{LANE}
    v_lshl_add_u32 v{T0}, v{T1}, 7, v{T0}
    s_mul_i32 s24, s24, 448
    s_cmp_eq_u32 s20, 1
    s_cselect_b32 s16, s42, s44
    s_cselect_b32 s17, s43, s45
    s_branch Lpf_go
    Lpf_d:
    v_mul_u32_u24 v{T0}, 896, v{LANE}
    s_lshl_b32 s24, s24, 7
    s_mov_b32 s16, s46
    s_mov_b32 s17, s47
    Lpf_go:
    s_and_b32 s17, s17, 0xffff
    s_add_u32 s26, s26, s24
    s_mov_b32 exec_hi, 0x00ffffff
    buffer_load_dword v{JUNK}, v{T0}, s[16:19], s26 offen
    s_mov_b32 exec_hi, -1""")

def kernel(a):
    if OPT["stamps"]:
        for k in range(NST): a(f"s_mov_b32 s{64+2*k}, 0")
    stamp(a, 0)
    a(f"""s_load_dwordx2 s[8:9], s[0:1], 0
    s_cmp_ge_u32 s2, 256
    s_cbranch_scc1 Lexit
    v_lshrrev_b32 v{T0}, 6, v0
    v_and_b32 v{LANE}, 63, v0
    v_readfirstlane_b32 s20, v{T0}
    v_lshlrev_b32 v{VL}, 4, v{LANE}
    s_and_b32 s21, s2, 31
    s_lshr_b32 s22, s2, 5
    s_mov_b32 s10, {XB}
    s_mov_b32 s11, 0x00020000
    s_cmp_lt_u32 s20, 4
    s_cbranch_scc1 Lloader
    s_getpc_b64 s[30:31]
    Lpc:
    v_and_b32 v{T2}, 255, v0
    v_lshlrev_b32 v{JUNK}, 7, v{T2}
    v_mov_b32 v{JUNK+1}, s31
    v_add_co_u32 v{JUNK}, vcc, s30, v{JUNK}
    v_addc_co_u32 v{JUNK+1}, vcc, 0, v{JUNK+1}, vcc
    v_cmp_gt_u32 vcc, (Lexit-Lpc)/128+1, v{T2}
    s_and_saveexec_b64 s[30:31], vcc
    s_cbranch_execz Lcompute
    global_load_dword v{JUNK+2}, v[{JUNK}:{JUNK+1}], off
    s_branch Lcompute
    Lloader:
    v_cmp_lt_u32 vcc, 29, v{LANE}
    s_lshl_b32 s23, s20, 9
    s_add_u32 s23, s23, s21
    s_mul_i32 s23, s23, 896
    s_mul_i32 s24, s20, {16*PH}
    v_add_u32 v{T1}, {32*896 - 480}, v{VL}
    s_mov_b32 s25, {'s22' if OPT['rot'] else '0'}
    v_cndmask_b32 v{T1}, v{VL}, v{T1}, vcc
    s_mov_b32 exec_lo, 0xcfffffff
    s_mov_b32 exec_hi, 0x03ffffff
    s_mov_b32 s28, 0
    s_waitcnt lgkmcnt(0)""")
    stamp(a, 3, True)
    if OPT["dmau"]:
        a("Ldma:")
        for i in range(8):
            a(f"""s_mul_i32 s26, s25, {2*PH}
            s_mul_i32 s27, s25, {64*896}
            s_add_u32 m0, s26, s24
            s_add_u32 s27, s27, s23
            s_add_u32 s25, s25, 1
            buffer_load_dwordx4 v{T1}, s[8:11], s27 offen lds
            s_and_b32 s25, s25, 7""")
        a(f"""s_add_u32 s24, s24, {LXH}
        s_add_u32 s23, s23, 448
        s_add_u32 s28, s28, 1
        s_cmp_lt_u32 s28, 2
        s_cbranch_scc1 Ldma""")
    else:
        a(f"""Ldma:
        s_mul_i32 s26, s25, {2*PH}
        s_mul_i32 s27, s25, {64*896}
        s_add_u32 s26, s26, s24
        s_add_u32 s27, s27, s23
        s_mov_b32 m0, s26
        s_add_u32 s25, s25, 1
        buffer_load_dwordx4 v{T1}, s[8:11], s27 offen lds
        s_and_b32 s25, s25, 7
        s_add_u32 s28, s28, 1
        s_cmp_lg_u32 s28, 8
        s_cbranch_scc1 Ldma1
        s_add_u32 s24, s24, {LXH}
        s_add_u32 s23, s23, 448
        Ldma1:
        s_cmp_lt_u32 s28, 16
        s_cbranch_scc1 Ldma""")
    def ltail():
        a(f"""Lltail:
        s_mov_b64 exec, -1
        s_load_dwordx2 s[6:7], s[0:1], 96
        s_load_dwordx8 s[40:47], s[0:1], 48
        s_load_dwordx2 s[48:49], s[0:1], 80
        v_and_b32 v{N}, 15, v0
        v_bfe_u32 v{G}, v0, 4, 2""")
        stamp(a, 6, True)
        early = OPT["e2a"]
        if early:
            a("s_waitcnt vmcnt(8)")
            stamp(a, 1)
            a("s_barrier")
        a("s_waitcnt lgkmcnt(0)")
        b_setup(a)
        b_loads(a)
        a("s_cmp_lg_u32 s20, 0\ns_cbranch_scc1 Lw123a")
        clears(a)
        if not early:
            a("s_waitcnt vmcnt(14)")
            stamp(a, 1)
            a("s_barrier")
        a("s_waitcnt vmcnt(6)")
        stamp(a, 2)
        a(f"""s_barrier
        v_mov_b32 v{T0}, {LTAG}
        s_waitcnt vmcnt(5)
        ds_write_b32 v{T0}, v{V_EP}
        s_branch Lprol
        Lw123a:""")
        prefetch(a)
        if not early:
            a(f"s_waitcnt vmcnt(12)")
            stamp(a, 1)
            a("s_barrier")
        a(f"s_waitcnt vmcnt(4)")
        stamp(a, 2)
        a(f"s_barrier\ns_waitcnt vmcnt(3)")
        a("Lprol:")
        if OPT["wdh"]: wd_dma(a, 0, 7, "Lnwd2")
        if OPT["w64l"]:
            a("s_mov_b32 s3, s20")
            w64(a, AC1)
            for i in range(8): a(f"v_xor_b32 v{AC1+16+i}, 0x80008000, v{AC1+8+i}")
            a(f"s_lshl_b32 s26, s3, 12\ns_add_u32 s26, s26, {LWT}\nv_add_u32 v{T1}, s26, v{VL}")
            for i in range(6): a(f"ds_write_b128 v{T1}, {v4(AC1+4*i)} offset:{[0, 1024, 2048, 3072, 16384, 17408][i]}")
        if not OPT["prolate"]: pro(a)
        stamp(a, 3)
        a("s_waitcnt lgkmcnt(0)\ns_barrier")
        a("s_branch Lpro1" if OPT["prolate"] else "s_branch Lpro2")
    if OPT["layout"]: a("s_branch Lltail")
    else: ltail()
    a(f"""Lcompute:
    s_mov_b64 exec, -1
    s_load_dwordx2 s[6:7], s[0:1], 96
    s_load_dwordx8 s[40:47], s[0:1], 48
    s_load_dwordx2 s[48:49], s[0:1], 80
    v_and_b32 v{N}, 15, v0
    v_bfe_u32 v{G}, v0, 4, 2
    s_and_b32 s3, s20, 3""")
    if OPT["prio"]: a("s_setprio 3")
    stamp(a, 9, True)
    a_pre(a)
    stamp(a, 11, True)
    a("s_waitcnt lgkmcnt(0)")
    b_setup(a)
    stamp(a, 1)
    a("s_barrier")
    stamp(a, 2)
    a_main(a)
    stamp(a, 4)
    if OPT["prio"]: a("s_setprio 0")
    a(f"buffer_load_dwordx4 {v4(B_WR)}, v{VL}, s[16:19], 0 offen")
    a(f"buffer_load_dwordx4 {v4(B_XR)}, v{VL}, s[8:11], s97 offen")
    a("Lpro1:")
    pro(a)
    a("Lpro2:")
    a(f"""v_readfirstlane_b32 s56, v{V_EP}
    s_add_u32 s56, s56, 1
    s_mul_i32 s98, s56, {HASH}
    s_lshl_b32 s99, s98, 6
    s_and_b32 s59, s56, 0xffff
    s_barrier""")
    stamp(a, 5)
    b_main(a)
    if OPT["wdh"]: a("s_cmp_lt_u32 s20, 4\ns_cbranch_scc1 Lnwd1")
    wd_dma(a, OPT['wdsplit'], 7, 'Lnwd1')
    c_select(a)
    a("s_cmp_ge_u32 s2, 224\ns_cbranch_scc1 Lc2")
    c1(a)
    a("Lc2:\ns_and_b32 s50, s2, 7\ns_cmp_eq_u32 s50, 7\ns_cbranch_scc1 Lend\ns_lshl_b32 s50, s50, 7\ns_bfe_u32 s51, s2, 0x20003\ns_lshl_b32 s51, s51, 5\ns_add_u32 s51, s51, s50")
    c2(a)
    a("Lend:")
    dump_stamps(a)
    if OPT["layout"]:
        a("s_endpgm")
        ltail()
    a("Lexit:\ns_endpgm\nLfullsel:")
    select8(a, C_K, C_TMP, C_L, C_SW, C_SR)
    a("s_branch Lseldone")

NAME = "sequential_preLN__spectral_fnet__moe_arch_mod__prompt_kernel"
def build():
    a = Asm()
    kernel(a)
    body = a.finish()
    if OPT["align"]: body = align_pass(body)
    return gen.HDR + f"""; @launch grid=(256,1,1) block=(512,1,1) lds={LDS_TOTAL}
.amdgcn_target "amdgcn-amd-amdhsa--gfx950"
.text
.globl {NAME}
.p2align 8
.type {NAME},@function
{NAME}:
""" + body + f""".section .rodata,"a"
.p2align 6
.amdhsa_kernel {NAME}
  .amdhsa_next_free_vgpr {NVGPR}
  .amdhsa_next_free_sgpr 102
  .amdhsa_accum_offset {NVGPR}
  .amdhsa_group_segment_fixed_size 0
  .amdhsa_kernarg_size 104
  .amdhsa_user_sgpr_count 2
  .amdhsa_user_sgpr_kernarg_segment_ptr 1
  .amdhsa_system_sgpr_workgroup_id_x 1
.end_amdhsa_kernel
"""

if __name__ == "__main__":
    for x in list(sys.argv[1:]):
        if x.startswith("--"):
            k, _, v = x[2:].partition("=")
            assert k in OPT, k
            OPT[k] = int(v) if v else 1
            sys.argv.remove(x)
    open(sys.argv[1], "w").write(build())
```

```python
import sys
from asmlib import Asm, fl, align_pass
import gen
from gen import srd, v4, v2, rbf, sd_chain, reduce3, unpack8, lim_regs, select8, sigmoid_mul

WS_KEYS = 0x200000
WS_EPOCH = 0x208000
WS_ACT = 0x210000
WS_STAMP = 0x3c0000
WS_ROW = 0x400000
WS_SIZE = 0x800000
XB = 1835008
PH = 480; PX = 928; PF = 136; PY = 452
LXH = 64 * PH
LW = 2 * LXH; LCS = LW + 28 * 1024; LTAG = LCS + 256; LF = LCS + 272; LWT = LF + 64 * PF; LDS_TOTAL = LWT + 57344
LY = 0
LSEL = 16384; LSE2 = 16640; LKEY = 17152; LXS = 17408; LRED = 24832
SPIN = 4000000
SC = "sc1"
HASH = "0x9e3779b1"
OPT = dict(stamps=0, cyc=0, align=0, sl_u0=6, sl_k=13, sl_a=0, rowpf=2, barj=5, dbgto=0, ost=0, c2re=1, rot=1, pf=3, wdsplit=0, w64l=0, layout=1, e2a=1, prolate=1, amp=-1, ampw=0, ampb=224, prio=1, wdh=0, cheb=1, ln1emu=1, dmau=1)
NST = 14

def stamp(a, k, early=False):
    if OPT["stamps"] == 5:
        if early != 5 and k not in (0, 3, 4, NST - 1): return
    elif OPT["stamps"] == 4:
        if early == 5 or (not early and k not in (0, 1, 2, NST - 1)): return
    elif early: return
    if OPT["stamps"] == 2 and k not in (0, NST - 1): return
    if OPT["stamps"]: a(f"{'s_memtime' if OPT['cyc'] else 's_memrealtime'} s[{64+2*k}:{65+2*k}]")
def dump_stamps(a):
    if OPT["amp"] >= 0:
        k = OPT["amp"]
        a(f"s_memrealtime s[{64+2*(NST-2)}:{65+2*(NST-2)}]")
        a(f"""s_cmp_lg_u32 s2, {OPT['ampb']}
        s_cbranch_scc1 Lampd
        s_cmp_lg_u32 s20, {OPT['ampw']}
        s_cbranch_scc1 Lampd
        s_waitcnt lgkmcnt(0)
        s_sub_u32 s60, s{64+2*k}, s64
        s_mul_i32 s60, s60, 9
        s_add_u32 s60, s60, s{64+2*(NST-2)}
        Lamp:
        s_memrealtime s[62:63]
        s_waitcnt lgkmcnt(0)
        s_sub_u32 s61, s62, s60
        s_cmp_lt_i32 s61, 0
        s_cbranch_scc1 Lamp
        Lampd:""")
        return
    if not OPT["stamps"]: return
    stamp(a, NST - 2)
    a("s_waitcnt vmcnt(0)")
    stamp(a, NST - 1)
    a("s_mov_b64 exec, 1\ns_waitcnt lgkmcnt(0)")
    a(f"s_lshl_b32 s60, s2, 3\ns_add_u32 s60, s60, s20\ns_lshl_b32 s60, s60, 6\ns_add_u32 s60, s60, {WS_STAMP}\nv_mov_b32 v1, 0")
    for k in range(NST):
        a(f"v_mov_b32 v2, s{64+2*k}\nbuffer_store_dword v2, v1, s[12:15], s60 offen offset:{4*k}")

_lbl = [0]
def timeout_note(a, ident):
    if not OPT["dbgto"]: return
    a(f"""s_lshl_b32 s100, s2, 8
    s_add_u32 s100, s100, s20
    s_add_u32 s100, s100, {ident << 24}
    v_mov_b32 v{JUNK+3}, s100
    s_mov_b32 s100, {0x3f0000 + 4*ident}
    s_mov_b64 exec, 1
    buffer_store_dword v{JUNK+3}, v{VL}, s[12:15], s100 offen
    v_mov_b32 v{JUNK+3}, s36
    buffer_store_dword v{JUNK+3}, v{VL}, s[12:15], s100 offen offset:64
    v_mov_b32 v{JUNK+3}, s98
    buffer_store_dword v{JUNK+3}, v{VL}, s[12:15], s100 offen offset:128
    v_mov_b32 v{JUNK+3}, s34
    buffer_store_dword v{JUNK+3}, v{VL}, s[12:15], s100 offen offset:192
    s_mov_b64 exec, -1""")
def poll(a, loads, check, pre=0):
    _lbl[0] += 1
    L = f"Lpoll{_lbl[0]}"
    if pre: a(f"s_sleep {pre}")
    a(f"s_mov_b32 s57, {SPIN}\n{L}:")
    loads()
    a("s_waitcnt vmcnt(0)")
    check()
    a(f"""s_cmp_eq_u64 vcc, 0
    s_cbranch_scc1 {L}d
    s_sub_u32 s57, s57, 1
    s_cbranch_scc0 {L}""")
    timeout_note(a, _lbl[0])
    a(f"{L}d:")

class LdsQ:
    def __init__(s, a): s.a = a; s.q = []
    def read(s, text, b, n=4):
        s.a(text); s.q.append(set(range(b, b + n)))
    def need(s, b, n=4):
        rs = set(range(b, b + n)); last = -1
        for i, d in enumerate(s.q):
            if d & rs: last = i
        if last >= 0:
            s.a(f"s_waitcnt lgkmcnt({len(s.q) - 1 - last})")
            s.q = s.q[last+1:]

LANE, N, G, T0, T1, T2, VL = 1, 2, 3, 4, 5, 6, 7
B_XR = 8; B_WR = 12; V_EP = 16; VFW = 17; VFR = 18; VXR = 19; VCS = 20; VUS = 21; ST = 22
WC = 28; WSN = 36; WNS = 44
AC1 = 52; AC2 = 68; GR = 84; XF = 88; WD = 116
JUNK = 228; SG2 = 232; NVGPR = 236
B_AF = 28; B_AD = 36; B_VY = 40; B_VU = 41; C_L = {1: 42, 2: 43, 4: 44}; C_SW = 45; C_SR = 46; C_KA = 47
C_FW = 48; C_FR = 49; C_FY = 50; C_PF = 51
B_R = 116; B_ACC = 52; B_XU = 68; B_WU = 76; B_S1, B_S2, B_S3 = 88, 90, 92; B_TH = 96; P_TH = 104; P_EPS = 112; P_BASE = 113
C_K = 148; C_TMP = 152; C_KEY = 156; C_X = 157; C_Y = 158; C_OUT = 160; C_LN = 164; C_IX = 224; C_STK = 159

def trig_block(a, n, k0, eps, base, th, want_sin):
    for i in range(n):
        k = k0 + i
        if k == 0: a(f"v_mov_b32 v{th+i}, v{base}")
        else: a(f"v_fmamk_f32 v{th+i}, v{eps}, {fl(float(k))}, v{base}")
    for i in range(n):
        if want_sin: a(f"v_sin_f32 v{th+n+i}, v{th+i}")
        a(f"v_cos_f32 v{th+i}, v{th+i}")

def w64(a, D):
    EPS, BASE, TH, S = ST + 4, ST + 5, XF, ST
    a(f"""v_lshrrev_b32 v{S}, 1, v{N}
    s_lshl_b32 s25, s3, 3
    v_add_u32 v{S}, s25, v{S}
    v_sub_u32 v{S+1}, 64, v{S}
    v_cmp_eq_u32 vcc, 0, v{S}
    v_and_b32 v{S+2}, 1, v{N}
    v_cndmask_b32 v{S+1}, v{S+1}, 32, vcc
    v_cmp_eq_u32 vcc, 0, v{S+2}
    v_lshlrev_b32 v{S+2}, 3, v{G}
    v_cndmask_b32 v{S+1}, v{S+1}, v{S}, vcc
    v_cvt_f32_u32 v{S+2}, v{S+2}
    v_and_b32 v{S}, 1, v{S+1}
    v_cvt_f32_u32 v{S+1}, v{S+1}
    v_mul_u32_u24 v{S}, 0x8000, v{S}
    v_mul_f32 v{EPS}, {fl(1.0/64)}, v{S+1}
    v_lshl_or_b32 v{S}, v{S}, 16, v{S}
    v_mul_f32 v{BASE}, v{S+2}, v{EPS}""")
    if OPT["cheb"]:
        C2 = S + 3; CV = XF; SV = XF + 8
        a(f"""v_cos_f32 v{C2}, v{EPS}
        v_add_f32 v{CV+1}, v{EPS}, v{BASE}
        v_sin_f32 v{SV}, v{BASE}
        v_cos_f32 v{CV}, v{BASE}
        v_sin_f32 v{SV+1}, v{CV+1}
        v_cos_f32 v{CV+1}, v{CV+1}
        v_add_f32 v{C2}, v{C2}, v{C2}""")
        for i in range(2, 8):
            for Vv in (CV, SV): a(f"v_fma_f32 v{Vv+i}, v{C2}, v{Vv+i-1}, -v{Vv+i-2}")
        for i in range(4):
            a(f"v_cvt_pk_f16_f32 v{D+i}, v{CV+2*i}, v{CV+2*i+1}")
            a(f"v_cvt_pk_f16_f32 v{D+8+i}, v{SV+2*i}, v{SV+2*i+1}")
        for i in range(4):
            a(f"v_xor_b32 v{D+4+i}, v{S}, v{D+i}")
            a(f"v_xor_b32 v{D+12+i}, v{S}, v{D+8+i}")
        return
    for ks in range(2):
        for h in range(2):
            trig_block(a, 4, 32*ks + 4*h, EPS, BASE, TH, True)
            for i in range(2):
                a(f"v_cvt_pk_f16_f32 v{D+4*ks+2*h+i}, v{TH+2*i}, v{TH+2*i+1}")
                a(f"v_cvt_pk_f16_f32 v{D+8+4*ks+2*h+i}, v{TH+4+2*i}, v{TH+4+2*i+1}")

def a_pre(a):
    EPS, BASE, TH, ONE, TO, CS = ST + 4, ST + 5, XF, XF + 8, XF + 12, AC1
    a(f"""s_and_b32 s25, s3, 1
    s_lshl_b32 s25, s25, 2
    v_and_b32 v{T0}, 3, v{N}
    v_add_u32 v{T0}, s25, v{T0}
    v_lshrrev_b32 v{T1}, 2, v{N}
    s_mul_i32 s26, s22, 28
    s_add_u32 s26, s26, 1
    v_mad_u32_u24 v{T1}, v{T1}, 7, v{T0}
    v_add_u32 v{T1}, s26, v{T1}
    v_cmp_ne_u32 vcc, 7, v{T0}
    s_lshr_b32 s25, s3, 1
    s_mul_i32 s25, s25, {fl(0.25)}
    v_cndmask_b32 v{T1}, 0, v{T1}, vcc
    v_cvt_f32_u32 v{T1}, v{T1}
    v_mul_f32 v{EPS}, {fl(1.0/448)}, v{T1}
    v_lshlrev_b32 v{T0}, 3, v{G}
    v_cvt_f32_u32 v{T2}, v{T0}
    v_fma_f32 v{BASE}, v{T2}, v{EPS}, s25
    s_mul_i32 s25, s3, {7*1024}
    s_add_u32 s25, s25, {LW}
    v_add_u32 v{T1}, s25, v{VL}""")
    for i in range(4): a(f"v_mov_b32 v{ONE+i}, 0x3f803f80")
    if OPT["cheb"]:
        C2 = ST + 3; V = WD
        a(f"v_cos_f32 v{C2}, v{EPS}")
        for j in range(7):
            for i in range(2):
                k = 32*j + i
                if k == 0: a(f"v_mov_b32 v{V}, v{BASE}")
                else: a(f"v_fmamk_f32 v{V+8*j+i}, v{EPS}, {fl(float(k))}, v{BASE}")
        a(f"v_add_f32 v{C2}, v{C2}, v{C2}")
        for j in range(7):
            for i in range(2): a(f"v_cos_f32 v{V+8*j+i}, v{V+8*j+i}")
        for i in range(2, 8):
            for j in range(7):
                a(f"v_fma_f32 v{V+8*j+i}, v{C2}, v{V+8*j+i-1}, -v{V+8*j+i-2}")
        for j in range(7):
            o = V + 56 + 4*j
            for i in range(4): a(f"v_cvt_pk_bf16_f32 v{o+i}, v{V+8*j+2*i}, v{V+8*j+2*i+1}")
            a(f"ds_write_b128 v{T1}, {v4(o)} offset:{j*1024}")
            a(f"v_mfma_f32_16x16x32_bf16 {v4(CS)}, {v4(o)}, {v4(ONE)}, {'0' if j == 0 else v4(CS)}")
    else:
      for j in range(7):
        trig_block(a, 8, 32*j, EPS, BASE, TH, False)
        o = TO + 4*(j & 1)
        for i in range(4): a(f"v_cvt_pk_bf16_f32 v{o+i}, v{TH+2*i}, v{TH+2*i+1}")
        a(f"ds_write_b128 v{T1}, {v4(o)} offset:{j*1024}")
        a(f"v_mfma_f32_16x16x32_bf16 {v4(CS)}, {v4(o)}, {v4(ONE)}, {'0' if j == 0 else v4(CS)}")
    a(f"""v_lshrrev_b32 v{ST}, 1, v{N}
    s_lshl_b32 s25, s3, 3
    v_add_u32 v{ST}, s25, v{ST}
    v_and_b32 v{ST+2}, 1, v{N}
    v_lshlrev_b32 v{VUS}, 16, v{ST}
    v_lshl_add_u32 v{VUS}, v{ST+2}, 6, v{VUS}
    v_lshl_add_u32 v{VUS}, v{G}, 4, v{VUS}
    s_lshl_b32 s25, s3, 6
    v_lshlrev_b32 v{T0}, 4, v{G}
    v_add_u32 v{VCS}, {LCS}, v{T0}
    v_add_u32 v{T1}, s25, v{VCS}
    v_lshlrev_b32 v{SG2+1}, 31, v{G}
    v_or_b32 v{SG2+1}, 1.0, v{SG2+1}
    v_xor_b32 v{SG2}, 0x80000000, v{SG2+1}
    v_pk_fma_f32 {v2(CS)}, {v2(CS)}, {v2(SG2)}, {v2(CS)}
    v_pk_fma_f32 {v2(CS+2)}, {v2(CS+2)}, {v2(SG2)}, {v2(CS+2)}
    ds_write_b128 v{T1}, {v4(CS)}""")
    if not OPT["w64l"]:
        w64(a, WC)
        for i in range(8): a(f"v_xor_b32 v{WNS+i}, 0x80008000, v{WSN+i}")
    stamp(a, 10, True)
    a(f"v_add_u32 v{T2}, {LW}, v{VL}")
    a(f"""s_lshl_b32 s25, s3, 4
    v_add_u32 v{ST}, s25, v{N}
    v_mul_u32_u24 v{VXR}, {PH}, v{ST}
    v_add_u32 v{VXR}, v{T0}, v{VXR}
    v_mul_u32_u24 v{VFW}, {PF}, v{ST}
    v_lshl_add_u32 v{VFW}, v{G}, 3, v{VFW}
    v_add_u32 v{VFW}, {LF}, v{VFW}
    v_lshrrev_b32 v{ST}, 2, v{N}
    v_lshl_add_u32 v{ST}, v{G}, 3, v{ST}
    v_mul_u32_u24 v{VFR}, {PF}, v{ST}
    v_and_b32 v{ST}, 3, v{N}
    v_lshl_add_u32 v{VFR}, v{ST}, 3, v{VFR}
    v_add_u32 v{VFR}, {LF}, v{VFR}
    s_lshl_b32 s23, s21, 11
    s_lshl_b32 s24, s22, 8
    s_add_u32 s23, s23, s24""")
    for r in range(4):
        a(f"s_mov_b32 s{30+2*r}, {hex(((1<<r)|(1<<(20+r))) & 0xffffffff)}")
        a(f"s_mov_b32 s{31+2*r}, {hex(((1<<(8+r))|(1<<(28+r))) & 0xffffffff)}")
    a("s_mov_b64 s[24:25], 0xffff")

def a_main(a):
    q = LdsQ(a)
    def rdx(j, hf): q.read(f"ds_read_b128 {v4(XF+4*j)}, v{VXR} offset:{64*j + hf*LXH}", XF+4*j)
    def rdw(j):
        for T in range(4): q.read(f"ds_read_b128 {v4(WD+4*(7*T+j))}, v{T2} offset:{(7*T+j)*1024}", WD+4*(7*T+j))
    for j in range(3): rdx(j, 0); rdw(j)
    BJ = OPT["barj"]
    Q, S, M, RS = ST, ST+1, ST+2, ST+4
    def mf(A, T, j, first): a(f"v_mfma_f32_16x16x32_bf16 {v4(A+4*T)}, {v4(WD+4*(7*T+j))}, {v4(XF+4*j)}, {'0' if first else v4(A+4*T)}")
    def gram(j, first): a(f"v_mfma_f32_16x16x32_bf16 {v4(GR)}, {v4(XF+4*j)}, {v4(XF+4*j)}, {'0' if first else v4(GR)}")
    for j in range(7):
        q.need(XF + 4*j)
        gram(j, j == 0)
        for T in range(4):
            q.need(WD+4*(7*T+j))
            mf(AC1, T, j, j == 0)
        if j + 3 < 7: rdx(j + 3, 0); rdw(j + 3)
        if j == BJ:
            stamp(a, 11)
            a("s_barrier")
            for k in range(BJ + 1): rdx(k, 1)
        elif j > BJ: rdx(j, 1)
    CS = WD + 28
    for j in range(7):
        q.need(XF + 4*j)
        gram(j, False)
        mf(AC2, 1, j, j == 0)
    for T in range(4): q.read(f"ds_read_b128 {v4(CS+4*T)}, v{VCS} offset:{64*T}", CS+4*T)
    stats = [None, None, f"v_mov_b32 v{Q}, 0", f"v_mov_b32 v{V_EP}, {LTAG}"]
    stats += [f"v_cndmask_b32 v{Q}, v{Q}, v{GR+r}, s[{30+2*r}:{31+2*r}]" for r in range(4)]
    stats += [f"v_add_f32 v{S}, v{AC1+7}, v{AC2+7}", f"v_cndmask_b32 v{S}, 0, v{S}, s[24:25]", None, None,
              f"v_permlane32_swap_b32 v{Q}, v{S}", f"v_add_f32 v{Q}, v{Q}, v{S}", f"v_mov_b32 v{S}, v{Q}", None, None,
              f"v_permlane16_swap_b32 v{Q}, v{S}", f"v_add_f32 v{Q}, v{Q}, v{S}", f"v_mov_b32 v{S}, v{Q}", None, None,
              f"v_permlane32_swap_b32 v{Q}, v{S}", f"v_mul_f32 v{M}, {fl(-1.0/448)}, v{S}", f"v_mul_f32 v{Q}, {fl(1.0/448)}, v{Q}",
              f"v_fma_f32 v{Q}, -v{M}, v{M}, v{Q}", f"v_max_f32 v{Q}, 0, v{Q}"]
    rb = [f"v_cvt_pk_bf16_f32 v{Q}, v{Q}, v{Q}", f"v_and_b32 v{Q}, 0xffff0000, v{Q}"]
    if OPT["ln1emu"]:
        stats += rb + [f"v_add_f32 v{Q}, {fl(1e-5)}, v{Q}"] + rb + [f"v_sqrt_f32 v{Q}, v{Q}", None] + rb + [f"v_rcp_f32 v{RS}, v{Q}"]
    else:
        stats += [f"v_add_f32 v{Q}, {fl(1e-5)}, v{Q}", f"v_rsq_f32 v{RS}, v{Q}"]
    stats += ["WAITCS", f"v_mul_f32 v{M}, v{M}, v{RS}"]
    stats += [f"v_mul_f32 v{CS+i}, v{CS+i}, v{M}" for i in range(16)]
    for j in range(7):
        for T in (0, 2, 3):
            mf(AC2, T, j, j == 0)
            for _ in range(2):
                if stats:
                    t = stats.pop(0)
                    if t == "WAITCS": q.need(CS, 16)
                    elif t: a(t)
    for p in range(2): a(f"v_pk_fma_f32 {v2(AC1+4+2*p)}, {v2(AC2+4+2*p)}, {v2(SG2)}, {v2(AC1+4+2*p)}")
    for t in stats:
        if t == "WAITCS": q.need(CS, 16)
        elif t: a(t)
    stamp(a, 3)
    for T in (0, 2, 3):
        for p in range(2):
            x = AC1 + 4*T + 2*p
            a(f"v_pk_fma_f32 {v2(x)}, {v2(AC2+4*T+2*p)}, {v2(SG2)}, {v2(x)}")
    for T in (1, 0, 2, 3):
        for p in range(2):
            x = AC1 + 4*T + 2*p
            a(f"v_pk_fma_f32 {v2(x)}, {v2(x)}, {v2(RS)}, {v2(CS+4*T+2*p)} op_sel_hi:[1,0,1]")
    for T in (1, 0, 2, 3):
        for p in range(2):
            x = AC1 + 4*T + 2*p
            a(f"v_cvt_pk_f16_f32 v{AC2+2*T+p}, v{x}, v{x+1}")
        a(f"ds_write_b64 v{VFW}, {v2(AC2+2*T)} offset:{32*T}")
    if OPT["w64l"]: a(f"s_lshl_b32 s26, s3, 12\ns_add_u32 s26, s26, {LWT}\nv_add_u32 v{T1}, s26, v{VL}")
    stamp(a, 5, 5)
    a(f"s_waitcnt lgkmcnt(0)")
    stamp(a, 6, 5)
    a(f"s_barrier")
    stamp(a, 7, 5)
    if OPT["w64l"]:
        for i in (0, 2, 4, 1, 3, 5): a(f"ds_read_b128 {v4(WC+4*i)}, v{T1} offset:{(i % 4 if i < 4 else i - 2 + 2) * 0 + i * 0 + [0, 1024, 2048, 3072, 16384, 17408][i]}")
    FA = WD + 48
    fa = lambda T, ks: FA + (2*T + ks) * 4
    q = LdsQ(a)
    for T in range(2):
        for ks in range(2):
            for TT in (T, T + 2):
                for h in range(2):
                    q.read(f"ds_read_b64_tr_b16 {v2(fa(TT, ks)+2*h)}, v{VFR} offset:{(32*ks+4*h)*PF+32*TT}", fa(TT, ks)+2*h, 2)
    q.read(f"ds_read_b32 v{V_EP}, v{V_EP}", V_EP, 1)
    UR = AC1; UI = AC1 + 8; o = XF
    tagcalc = [f"v_add_u32 v{M}, 1, v{V_EP}", f"s_mov_b32 s98, {HASH}", f"v_mul_lo_u32 v{M}, v{M}, s98"]
    for T in range(2):
        for ks in range(2):
            fr = v4(fa(T, ks)); fi = v4(fa(T + 2, ks))
            q.need(fa(T, ks))
            if T == 0 and ks == 0: stamp(a, 8, 5)
            a(f"v_mfma_f32_16x16x32_f16 {v4(UR+4*T)}, {fr}, {v4(WC+4*ks)}, {'0' if ks == 0 else v4(UR+4*T)}")
            a(f"v_mfma_f32_16x16x32_f16 {v4(UI+4*T)}, {fr}, {v4(WNS+4*ks)}, {'0' if ks == 0 else v4(UI+4*T)}")
            q.need(fa(T + 2, ks))
            a(f"v_mfma_f32_16x16x32_f16 {v4(UR+4*T)}, {fi}, {v4(WSN+4*ks)}, {v4(UR+4*T)}")
            a(f"v_mfma_f32_16x16x32_f16 {v4(UI+4*T)}, {fi}, {v4(WC+4*ks)}, {v4(UI+4*T)}")
            if T == 1 and ks == 1:
                q.need(V_EP, 1)
                for t in tagcalc: a(t)
    stamp(a, 9, 5)
    for r in range(4): a(f"v_cvt_pk_f16_f32 v{o+r}, v{UR+r}, v{UI+r}")
    a(f"buffer_store_dwordx4 {v4(o)}, v{VUS}, s[12:15], s23 offen {SC}")
    stamp(a, 10, 5)
    a(f"v_add3_u32 v{Q}, v{o}, v{o+1}, v{o+2}")
    a(f"v_sub_u32 v{M}, v{M}, v{o+3}")
    a(f"v_sub_u32 v{M}, v{M}, v{Q}")
    for r in range(3): a(f"v_cvt_pk_f16_f32 v{o+4+r}, v{UR+4+r}, v{UI+4+r}")
    a(f"""v_add3_u32 v{Q}, v{o+4}, v{o+5}, v{o+6}
    v_sub_u32 v{o+7}, v{M}, v{Q}
    buffer_store_dwordx4 {v4(o+4)}, v{VUS}, s[12:15], s23 offen offset:128 {SC}""")

def b_ids(a):
    a(f"""s_and_b32 s92, s2, 7
    s_lshr_b32 s93, s2, 6
    s_lshl_b32 s93, s93, 3
    s_or_b32 s92, s92, s93
    s_bfe_u32 s93, s2, 0x10003
    s_bfe_u32 s96, s2, 0x20004
    s_sub_u32 s95, 64, s92
    s_cmp_eq_u32 s92, 0
    s_cselect_b32 s95, 32, s95
    s_cselect_b32 s94, 0, 1
    s_xor_b32 s94, s94, s93
    s_cmp_eq_u32 s93, 0
    s_cselect_b32 s95, s92, s95
    s_lshl_b32 s96, s96, 9
    s_add_u32 s95, s95, s96
    s_lshl_b32 s96, s20, 6
    s_add_u32 s96, s96, s95
    s_mul_i32 s97, s96, 896""")

def b_setup(a):
    srd(a, 12, 6, WS_SIZE)
    srd(a, 52, 48, XB)
    srd(a, 16, 40, 896)
    b_ids(a)

def b_loads(a):
    a(f"""s_mov_b32 s26, {WS_EPOCH}
    v_mov_b32 v{T0}, 0
    buffer_load_dword v{V_EP}, v{T0}, s[12:15], s26 offen {SC}
    buffer_load_dwordx4 {v4(B_WR)}, v{VL}, s[16:19], 0 offen
    buffer_load_dwordx4 {v4(B_XR)}, v{VL}, s[8:11], s97 offen""")

def pro(a):
    EPS, BASE, TH, AF, AD = P_EPS, P_BASE, P_TH, B_AF, B_AD
    a(f"""s_lshl_b32 s28, s92, 16
    s_lshl_b32 s29, s20, 8
    s_add_u32 s28, s28, s29
    s_add_u32 s29, s28, 4096
    s_add_u32 s30, s28, 32768
    s_add_u32 s31, s28, 36864
    v_lshlrev_b32 v{B_VU}, 13, v{G}
    v_lshl_add_u32 v{B_VU}, v{N}, 4, v{B_VU}
    v_and_b32 v{T0}, 7, v{N}
    v_lshlrev_b32 v{T0}, 6, v{T0}
    v_add_u32 v{T0}, s95, v{T0}
    v_cvt_f32_u32 v{T0}, v{T0}
    v_cmp_gt_u32 vcc, 8, v{N}
    v_mul_f32 v{EPS}, {fl(1.0/2048)}, v{T0}
    v_lshlrev_b32 v{T1}, 2, v{G}
    v_cndmask_b32 v{EPS}, -v{EPS}, v{EPS}, vcc
    v_cvt_f32_u32 v{T1}, v{T1}
    v_mul_f32 v{BASE}, v{T1}, v{EPS}""")
    for ks in range(2):
        trig_block(a, 4, 16*ks, EPS, BASE, TH, True)
        for i in range(4):
            a(f"v_cvt_pk_f16_f32 v{AF+4*ks+i}, v{TH+i}, v{TH+4+i}")
    a(f"""v_lshrrev_b32 v{T0}, 3, v{N}
    v_and_b32 v{T1}, 3, v{N}
    v_mul_u32_u24 v{T1}, 7, v{T1}
    v_lshl_add_u32 v{T1}, v{T0}, 2, v{T1}
    s_mul_i32 s32, s20, 28
    s_add_u32 s32, s32, 1
    v_add_u32 v{T1}, s32, v{T1}
    v_sub_u32 v{T2}, 448, v{T1}
    v_cmp_gt_u32 s[34:35], 2, v{G}
    v_mov_b32 v{TH}, s93
    v_mov_b32 v{TH+1}, s94
    v_cndmask_b32 v{T2}, v{T2}, v{T1}, s[34:35]
    v_cndmask_b32 v{TH}, v{TH+1}, v{TH}, s[34:35]
    v_bfe_u32 v{TH+1}, v{N}, 2, 1
    v_cmp_eq_u32 s[60:61], v{TH}, v{TH+1}
    v_and_b32 v{TH+2}, 1, v{G}
    v_mul_u32_u24 v{TH+2}, {4*PY}, v{TH+2}
    v_add_lshl_u32 v{AD}, v{TH+2}, v{T2}, 2
    v_mov_b32 v{TH+3}, -4
    v_cndmask_b32 v{TH+3}, v{TH+3}, 4, s[34:35]
    v_add_u32 v{AD+1}, v{AD}, v{TH+3}
    v_add_u32 v{AD+2}, v{AD+1}, v{TH+3}
    v_add_u32 v{AD+3}, v{AD+2}, v{TH+3}
    v_cmp_eq_u32 s[50:51], 0, v{T0}
    s_and_b64 s[50:51], s[50:51], s[60:61]
    v_mov_b32 v{TH}, 222
    v_cmp_eq_u32 s[62:63], v{TH}, v{T1}
    s_andn2_b64 s[62:63], s[62:63], s[34:35]
    s_andn2_b64 s[62:63], s[60:61], s[62:63]
    s_mul_i32 s33, s20, {PY*4}
    v_lshlrev_b32 v{B_VY}, 5, v{LANE}
    v_add_u32 v{B_VY}, s33, v{B_VY}""")
    lim_regs(a, C_L, LANE, T0)
    a(f"""s_lshl_b32 s34, s20, 5
    s_add_u32 s34, s34, {LSEL}
    v_lshlrev_b32 v{T1}, 2, v{LANE}
    v_add_u32 v{C_SW}, s34, v{T1}
    v_add_u32 v{C_SR}, {LSEL}, v{T1}
    v_lshrrev_b32 v{C_KA}, 1, v0
    v_lshlrev_b32 v{C_KA}, 6, v{C_KA}
    v_and_b32 v{T0}, 1, v0
    v_lshl_add_u32 v{C_KA}, v{T0}, 4, v{C_KA}
    s_lshl_b32 s34, s20, 6
    s_add_u32 s34, s34, {LSE2}
    v_add_u32 v{C_FW}, s34, v{T1}
    v_lshrrev_b32 v{C_PF}, 3, v{LANE}
    v_and_b32 v{C_FY}, 7, v{LANE}
    v_lshlrev_b32 v{C_FR}, 6, v{C_PF}
    v_lshl_add_u32 v{C_FR}, v{C_FY}, 2, v{C_FR}
    v_add_u32 v{C_FR}, {LSE2}, v{C_FR}
    v_lshlrev_b32 v{C_FY}, 6, v{C_FY}
    v_add_u32 v{C_FY}, {LSE2 + 32}, v{C_FY}
    v_lshlrev_b32 v{C_PF}, 7, v{C_PF}
    s_cmp_ge_u32 s2, 224
    s_cselect_b32 s33, 1024, 0
    s_add_u32 s33, s33, {WS_ROW}
    s_lshl_b32 s27, s2, 6
    s_add_u32 s27, s27, {WS_KEYS}
    s_sub_u32 s32, 2047, s96
    v_lshrrev_b32 v{T0}, 1, v0
    v_and_b32 v{T1}, 7, v{T0}
    v_lshrrev_b32 v{T2}, 6, v{T0}
    v_lshl_or_b32 v{T1}, v{T2}, 3, v{T1}
    v_sub_u32 v{T2}, 64, v{T1}
    v_cmp_eq_u32 vcc, 0, v{T1}
    v_bfe_u32 v{TH}, v{T0}, 3, 1
    v_cndmask_b32 v{T2}, v{T2}, 32, vcc
    v_cmp_eq_u32 vcc, 0, v{TH}
    v_bfe_u32 v{TH}, v{T0}, 4, 2
    v_cndmask_b32 v{T1}, v{T2}, v{T1}, vcc
    v_lshl_add_u32 v{T1}, v{TH}, 9, v{T1}
    v_and_b32 v{T0}, 1, v0
    v_lshl_add_u32 v{T1}, v{T0}, 8, v{T1}
    v_sub_u32 v{C_IX}, 2047, v{T1}
    v_subrev_u32 v{C_IX+1}, 64, v{C_IX}
    v_subrev_u32 v{C_IX+2}, 128, v{C_IX}
    v_subrev_u32 v{C_IX+3}, 192, v{C_IX}""")

def pro2(a):
    XU, WU, S1, S2, S3 = B_XU, B_WU, P_TH, P_TH + 2, P_TH + 4
    unpack8(a, WU, B_WR)
    a(f"""v_pk_add_f32 {v2(S1)}, {v2(WU)}, {v2(WU+2)}
    v_pk_add_f32 {v2(S2)}, {v2(WU+4)}, {v2(WU+6)}
    v_pk_add_f32 {v2(S1)}, {v2(S1)}, {v2(S2)}
    v_add_f32 v{S1}, v{S1}, v{S1+1}
    v_mov_b32 v{S2}, 0
    v_mov_b32 v{S3}, 0""")
    reduce3(a, S1, S2, S3, T0, 58, 39, 39)
    unpack8(a, XU, B_XR)
    for k in (B_S1, B_S1+1, B_S2, B_S2+1, B_S3, B_S3+1): a(f"v_mov_b32 v{k}, 0")

def anyones(a, regs_, t):
    regs_ = list(regs_)
    a(f"v_max_u32 v{t}, v{regs_[0]}, v{regs_[1]}")
    rest = regs_[2:]
    while len(rest) >= 2:
        a(f"v_max3_u32 v{t}, v{t}, v{rest[0]}, v{rest[1]}"); rest = rest[2:]
    if rest: a(f"v_max_u32 v{t}, v{t}, v{rest[0]}")
    a(f"v_cmp_eq_u32 vcc, -1, v{t}")

def wave_sum(a, v, sd):
    for k in (8, 4, 2, 1):
        a(f"v_add_u32_dpp v{v}, v{v}, v{v} row_ror:{k} row_mask:0xf bank_mask:0xf")
    for i in range(4): a(f"v_readlane_b32 s{sd+i}, v{v}, {16*i}")
    a(f"s_add_u32 s{sd}, s{sd}, s{sd+1}\ns_add_u32 s{sd+2}, s{sd+2}, s{sd+3}\ns_add_u32 s{sd}, s{sd}, s{sd+2}")

def publish_row(a):
    a(f"""s_lshl_b32 s34, s96, 11
    s_add_u32 s34, s34, {WS_ROW}
    v_mov_b32 v{T0}, 0
    v_mov_b32 v{T1}, 0
    v_writelane_b32 v{C_LN}, 0, 56
    v_writelane_b32 v{C_OUT}, 0, 56
    s_mov_b32 exec_hi, 0x01ffffff
    v_add3_u32 v{T0}, v{C_LN}, v{C_LN+1}, v{C_LN+2}
    v_add3_u32 v{T1}, v{C_OUT}, v{C_OUT+1}, v{C_OUT+2}
    v_add_u32 v{T0}, v{T0}, v{C_LN+3}
    v_add_u32 v{T1}, v{T1}, v{C_OUT+3}
    s_mov_b32 exec_hi, -1""")
    wave_sum(a, T0, 36)
    a(f"s_sub_u32 s35, s98, s36\nv_writelane_b32 v{C_LN}, s35, 56")
    wave_sum(a, T1, 36)
    a(f"""s_sub_u32 s35, s98, s36
    v_writelane_b32 v{C_OUT}, s35, 56
    s_mov_b32 exec_hi, 0x01ffffff
    buffer_store_dwordx4 {v4(C_LN)}, v{VL}, s[12:15], s34 offen {SC}
    buffer_store_dwordx4 {v4(C_OUT)}, v{VL}, s[12:15], s34 offen offset:1024 {SC}
    s_mov_b32 exec_hi, -1""")

def fetch_row_issue(a, dst):
    a(f"""v_readlane_b32 s34, v{C_K}, s20
    s_andn2_b32 s34, 0x7ff, s34
    s_lshl_b32 s34, s34, 11
    s_add_u32 s34, s34, s33
    s_mov_b32 exec_hi, 0x01ffffff
    buffer_load_dwordx4 {v4(dst)}, v{VL}, s[12:15], s34 offen {SC}
    s_mov_b32 exec_hi, -1""")

def fetch_row_finish(a, dst, ldsaddr):
    _lbl[0] += 1
    L = f"Lrow{_lbl[0]}"
    a(f"""s_mul_i32 s29, s20, {PX}
    s_add_u32 s29, s29, {LXS}
    v_add_u32 v{ldsaddr}, s29, v{VL}
    s_mov_b32 s57, {SPIN}
    {L}:
    v_mov_b32 v{T0}, 0
    s_mov_b32 exec_hi, 0x01ffffff
    s_waitcnt vmcnt(0)
    ds_write_b128 v{ldsaddr}, {v4(dst)}
    v_add3_u32 v{T0}, v{dst}, v{dst+1}, v{dst+2}
    v_add_u32 v{T0}, v{T0}, v{dst+3}
    s_mov_b32 exec_hi, -1""")
    wave_sum(a, T0, 36)
    a(f"""s_cmp_eq_u32 s36, s98
    s_cbranch_scc1 {L}d
    s_mov_b32 exec_hi, 0x01ffffff
    s_waitcnt lgkmcnt(0)
    buffer_load_dwordx4 {v4(dst)}, v{VL}, s[12:15], s34 offen {SC}
    s_mov_b32 exec_hi, -1
    s_sub_u32 s57, s57, 1
    s_cbranch_scc0 {L}""")
    timeout_note(a, _lbl[0])
    a(f"{L}d:")

def gu_dma(a):
    a(f"""s_cmp_ge_u32 s2, 224
    s_cbranch_scc1 Lngu
    s_cmp_eq_u32 s20, 7
    s_cbranch_scc1 Lngu""")
    srd(a, 16, 42, 448*3584)
    a(f"""v_mul_u32_u24 v{T1}, 3584, v0
    s_and_b32 s50, s2, 7
    s_mul_i32 s50, s50, 28
    s_lshr_b32 s51, s2, 3
    s_add_u32 s50, s50, s51
    s_lshl_b32 s26, s50, 4
    s_lshl_b32 s24, s20, 10
    s_add_u32 s24, s24, {LWT}
    s_mov_b32 m0, s24
    s_add_u32 s24, s24, 8192
    buffer_load_dwordx4 v{T1}, s[16:19], s26 offen lds
    s_mov_b32 s16, s44
    s_and_b32 s17, s45, 0xffff
    s_mov_b32 m0, s24
    s_nop 0
    buffer_load_dwordx4 v{T1}, s[16:19], s26 offen lds
    Lngu:""")

def wd_dma(a, j0, j1, L):
    if j0 == j1: return
    a(f"""s_cmp_lt_u32 s2, 224
    s_cbranch_scc1 {L}
    s_and_b32 s50, s2, 7
    s_cmp_eq_u32 s50, 7
    s_cbranch_scc1 {L}
    s_lshl_b32 s50, s50, 7
    s_bfe_u32 s51, s2, 0x20003
    s_lshl_b32 s51, s51, 5
    s_add_u32 s51, s51, s50""")
    srd(a, 16, 46, 1792*896)
    a(f"""v_lshrrev_b32 v{T1}, 1, v{LANE}
    v_mul_u32_u24 v{T1}, 896, v{T1}
    v_and_b32 v{T2}, 1, v{LANE}
    v_lshl_add_u32 v{T1}, v{T2}, 4, v{T1}
    s_mul_i32 s23, s20, {224*896}
    s_add_u32 s23, s23, s51
    s_add_u32 s23, s23, {j0*32*896}
    s_mul_i32 s25, s20, 7168
    s_add_u32 s25, s25, {LWT + j0*1024}""")
    for j in range(j0, j1):
        a(f"s_mov_b32 m0, s25")
        a(f"s_add_u32 s25, s25, 1024")
        a(f"buffer_load_dwordx4 v{T1}, s[16:19], s23 offen lds")
        a(f"s_add_u32 s23, s23, {32*896}")
    a(f"{L}:")

def b_main(a):
    R, AF, ACC, XU, WU, AD, TH = B_R, B_AF, B_ACC, B_XU, B_WU, B_AD, B_TH
    S1, S2, S3 = B_S1, B_S2, B_S3
    if OPT["sl_u0"]: a(f"s_sleep {OPT['sl_u0']}")
    def uld():
        for ks in range(2):
            for i in range(4):
                a(f"buffer_load_dwordx4 {v4(R+16*ks+4*i)}, v{B_VU}, s[12:15], s{28+2*ks+(i>>1)} offen offset:{2048*(i&1)} {SC}")
    a(f"s_mov_b32 s57, {SPIN}")
    uld()
    a("s_waitcnt vmcnt(8)")
    pro2(a)
    a("s_branch Lupw\nLupoll:")
    uld()
    a("Lupw:")
    for ks in range(2):
        a(f"s_waitcnt vmcnt({4-4*ks})")
        b = R + 16*ks
        for i in range(8):
            if ks == 0 and i == 0: a(f"v_add_u32 v{T0}, v{b}, v{b+1}")
            else: a(f"v_add3_u32 v{T0}, v{T0}, v{b+2*i}, v{b+2*i+1}")
        for i in range(4):
            for j in range(i+1, 4):
                a(f"v_swap_b32 v{b+4*i+j}, v{b+4*j+i}")
        for j in range(4):
            c = "0" if ks == 0 else v4(ACC+4*j)
            a(f"v_mfma_f32_16x16x32_f16 {v4(ACC+4*j)}, {v4(AF+4*ks)}, {v4(b+4*j)}, {c}")
            if ks == 1: a(f"v_add_u32_dpp v{T0}, v{T0}, v{T0} row_ror:{8 >> j} row_mask:0xf bank_mask:0xf")
    a(f"""v_cmp_ne_u32 vcc, s99, v{T0}
    s_cmp_eq_u64 vcc, 0
    s_cbranch_scc1 Lupolld
    s_sub_u32 s57, s57, 1
    s_cbranch_scc0 Lupoll""")
    timeout_note(a, 9)
    a("Lupolld:")
    stamp(a, 6)
    if OPT["stamps"] == 3: a(f"s_sub_u32 s{64+2*11}, {SPIN+1}, s57")
    for j in range(4):
        if j != 1: a(f"s_mov_b64 exec, {['s[60:61]', '', 's[62:63]', 's[50:51]'][j]}")
        for r in range(4):
            a(f"ds_write_b32 v{AD+j}, v{ACC+4*j+r} offset:{LY + r*PY*4}")
    a("s_mov_b64 exec, -1")
    gu_dma(a)
    wd_dma(a, 0, OPT['wdsplit'], 'Lnwd0')
    a("""s_mov_b32 exec_hi, 0x00ffffff
    s_waitcnt lgkmcnt(0)
    s_barrier""")
    H = R
    a(f"ds_read_b128 {v4(H)}, v{B_VY} offset:{LY}\nds_read_b128 {v4(H+4)}, v{B_VY} offset:{LY+16}")
    for hf in range(2):
        a(f"s_waitcnt lgkmcnt({1-hf})")
        if hf == 0: a(f"v_writelane_b32 v{H}, 0, 0")
        for p in range(2):
            x = 4*hf + 2*p
            a(f"v_pk_add_f32 {v2(H+x)}, {v2(H+x)}, {v2(XU+x)}")
        for p in range(2):
            x = 4*hf + 2*p
            a(f"v_pk_add_f32 {v2(S1)}, {v2(S1)}, {v2(H+x)}")
            a(f"v_pk_fma_f32 {v2(S2)}, {v2(H+x)}, {v2(H+x)}, {v2(S2)}")
            a(f"v_pk_fma_f32 {v2(S3)}, {v2(H+x)}, {v2(WU+x)}, {v2(S3)}")
    a(f"""s_mov_b32 exec_hi, -1
    v_add_f32 v{S1}, v{S1}, v{S1+1}
    v_add_f32 v{S2}, v{S2}, v{S2+1}
    v_add_f32 v{S3}, v{S3}, v{S3+1}""")
    reduce3(a, S1, S2, S3, T0, 37, 38, 39)
    M, V, SD, RS, C0, KEY = TH, TH+1, TH+2, TH+4, TH+6, C_KEY
    a(f"""v_mov_b32 v{V}, {fl(1.0/448)}
    v_mul_f32 v{M}, s37, v{V}
    v_mul_f32 v{V}, s38, v{V}
    v_mov_b32 v{KEY}, s39
    v_fma_f32 v{V}, -v{M}, v{M}, v{V}
    v_fma_f32 v{KEY}, -v{M}, s58, v{KEY}
    v_max_f32 v{SD}, 0, v{V}
    v_add_f32 v{V}, {fl(1e-5)}, v{SD}""")
    a(f"""v_rsq_f32 v{RS}, v{V}
    s_lshl_b32 s34, s20, 2
    v_mov_b32 v{T2}, s34
    v_mul_f32 v{KEY}, v{KEY}, v{RS}
    v_cvt_pk_bf16_f32 v{KEY}, v{KEY}, v{KEY}
    v_ashrrev_i32 v{T0}, 31, v{KEY}
    v_or_b32 v{T0}, 0x80000000, v{T0}
    v_xor_b32 v{KEY}, v{KEY}, v{T0}
    v_and_b32 v{KEY}, 0xffff0000, v{KEY}
    v_or_b32 v{KEY}, s32, v{KEY}
    ds_write_b32 v{T2}, v{KEY} offset:{LKEY}
    v_mov_b32 v{C_STK}, 0xffff
    v_lshlrev_b32 v{T1}, 2, v{LANE}
    v_mov_b32 v{T2}, {LKEY}
    s_waitcnt lgkmcnt(0)
    s_barrier
    s_cmp_lg_u32 s20, 0
    s_cbranch_scc1 Lnokey
    s_mov_b64 exec, 0xff
    ds_read_b32 v{T0}, v{T1} offset:{LKEY}
    s_waitcnt lgkmcnt(0)
    v_bfi_b32 v{T0}, v{C_STK}, s59, v{T0}
    buffer_store_dword v{T0}, v{T1}, s[12:15], s27 offen {SC}
    s_mov_b64 exec, -1
    Lnokey:
    ds_read_b128 {v4(ACC)}, v{T2}
    ds_read_b128 {v4(ACC+4)}, v{T2} offset:16""")
    stamp(a, 7)
    sd_chain(a, SD, SD)
    a(f"v_rcp_f32 v{RS}, v{SD}\ns_nop 0\nv_mul_f32 v{C0}, -v{M}, v{RS}")
    for p in range(4):
        a(f"v_pk_fma_f32 {v2(XU+2*p)}, {v2(H+2*p)}, {v2(RS)}, {v2(C0)} op_sel_hi:[1,0,0]")
    for p in range(4):
        a(f"v_pk_add_f32 {v2(H+2*p)}, {v2(H+2*p)}, {v2(XU+2*p)}")
    for p in range(4):
        a(f"v_cvt_pk_bf16_f32 v{C_LN+p}, v{XU+2*p}, v{XU+2*p+1}")
        a(f"v_cvt_pk_bf16_f32 v{C_OUT+p}, v{H+2*p}, v{H+2*p+1}")
    a(f"""s_waitcnt lgkmcnt(0)
    v_max3_u32 v{T0}, v{ACC}, v{ACC+1}, v{ACC+2}
    v_max3_u32 v{T1}, v{ACC+3}, v{ACC+4}, v{ACC+5}
    v_max3_u32 v{T0}, v{T0}, v{ACC+6}, v{ACC+7}
    v_max_u32 v{T0}, v{T0}, v{T1}
    v_cmp_eq_u32 s[60:61], v{T0}, v{KEY}
    s_cmp_eq_u64 s[60:61], 0
    s_cbranch_scc1 Lnoeager""")
    publish_row(a)
    a("Lnoeager:")

QP = {1: "quad_perm:[1,0,3,2]", 2: "quad_perm:[2,3,0,1]", 3: "quad_perm:[3,2,1,0]", 7: "row_half_mirror"}
class Net:
    def __init__(s, a, x, t, fill): s.a = a; s.x = x; s.t = t; s.fill = list(fill)
    def f(s, n=1):
        for _ in range(n):
            if s.fill: s.a(s.fill.pop(0))
    def ce(s, m):
        a, x, t = s.a, s.x, s.t
        s.f()
        if m == 4:
            a(f"v_max_u32_dpp v{t}, v{x}, v{x} row_shl:4 row_mask:0xf bank_mask:0x5")
            a(f"v_min_u32_dpp v{t}, v{x}, v{x} row_shr:4 row_mask:0xf bank_mask:0xa")
            s.x, s.t = t, x
        else:
            a(f"v_mov_b32_dpp v{t}, v{x} {QP[m]} row_mask:0xf bank_mask:0xf")
            a(f"v_med3_u32 v{x}, v{x}, v{t}, v{C_L[1 << (m.bit_length()-1)]}")
    def merge(s, last_clean=True):
        a = s.a
        s.f()
        a(f"v_max_u32_dpp v{s.x}, v{s.x}, v{s.x} row_mirror row_mask:0xf bank_mask:0xf")
        for m in (4, 2, 1): s.ce(m)
        for sw in ("v_permlane16_swap_b32", "v_permlane32_swap_b32"):
            a(f"v_mov_b32 v{s.t}, v{s.x}")
            s.f()
            a(f"{sw} v{s.x}, v{s.t}")
            s.f()
            a(f"v_max_u32_dpp v{s.x}, v{s.t}, v{s.x} row_half_mirror row_mask:0xf bank_mask:0xf")
            if last_clean or "16" in sw:
                for m in (4, 2, 1): s.ce(m)
        s.f(99)

def fast_select(a):
    K, X, Y, P, Q = C_K, C_X, C_Y, C_TMP, C_TMP + 1
    a(f"""v_max_u32 v{P}, v{K}, v{K+1}
    v_max_u32 v{Q}, v{K+2}, v{K+3}
    v_max_u32 v{X}, v{P}, v{Q}""")
    fill = [f"v_min_u32 v{Y}, v{P}, v{Q}", f"v_min_u32 v{P}, v{K}, v{K+1}", f"v_min_u32 v{Q}, v{K+2}, v{K+3}",
            f"v_max3_u32 v{Y}, v{Y}, v{P}, v{Q}"]
    fill += [f"v_max_u32_dpp v{Y}, v{Y}, v{Y} row_ror:{k} row_mask:0xf bank_mask:0xf" for k in (8, 4, 2, 1)]
    fill += [f"v_mov_b32 v{P}, v{Y}", f"v_permlane16_swap_b32 v{Y}, v{P}", f"v_max_u32 v{Y}, v{Y}, v{P}",
             f"v_mov_b32 v{P}, v{Y}", f"v_permlane32_swap_b32 v{Y}, v{P}", f"v_max_u32 v{Y}, v{Y}, v{P}",
             "s_mov_b64 vcc, 0x100"]
    n = Net(a, X, C_TMP + 2, fill)
    for m in (1, 3, 1, 7, 2, 1): n.ce(m)
    n.merge()
    a(f"""s_mov_b64 exec, 0x1ff
    v_cndmask_b32 v{P}, v{n.x}, v{Y}, vcc
    ds_write_b32 v{C_FW}, v{P}""")
    if OPT["rowpf"]:
        m8 = (1 << OPT["rowpf"]) - 1; m32 = m8 * 0x01010101
        a(f"""s_mov_b32 exec_lo, {hex(m32)}
        s_mov_b32 exec_hi, {hex(m32)}
        v_bfi_b32 v{Q}, v{n.x}, 0, v{C_TMP+3}
        v_lshl_add_u32 v{Q}, v{Q}, 11, v{C_PF}
        buffer_load_dword v{JUNK}, v{Q}, s[12:15], s33 offen {SC}""")
    a(f"""s_mov_b64 exec, -1
    s_waitcnt lgkmcnt(0)
    s_barrier
    ds_read_b32 v{X}, v{C_FR}
    ds_read_b32 v{Y}, v{C_FY}
    s_waitcnt lgkmcnt(0)""")
    fill = [f"v_max_u32_dpp v{Y}, v{Y}, v{Y} {QP[m]} row_mask:0xf bank_mask:0xf" for m in (1, 2, 7)]
    n = Net(a, X, C_TMP + 2, fill)
    n.merge(last_clean=False)
    a(f"""v_cmp_gt_u32 vcc, v{Y}, v{n.x}
    s_cmp_eq_u64 vcc, 0
    s_cbranch_scc0 Lfullsel
    v_mov_b32 v{K}, v{n.x}
    Lseldone:""")

def c_select(a):
    K = C_K
    a(f"s_mov_b32 s34, {WS_KEYS}\nv_mov_b32 v{C_TMP+3}, 0x7ff")
    def chk():
        a(f"v_xor_b32 v{T0}, v{K}, v{K+1}")
        a(f"v_xor_b32 v{T1}, v{K+2}, v{K+3}")
        a(f"v_xor_b32 v{T2}, s59, v{K}")
        a(f"v_xor_b32 v{C_X}, s59, v{K+2}")
        a(f"v_or3_b32 v{T0}, v{T0}, v{T1}, v{T2}")
        for i in range(4): a(f"v_bfi_b32 v{K+i}, v{C_STK}, v{C_IX+i}, v{K+i}")
        a(f"v_or_b32 v{T0}, v{T0}, v{C_X}")
        a(f"v_cmp_ne_u16 vcc, 0, v{T0}")
    poll(a, lambda: a(f"buffer_load_dwordx4 {v4(K)}, v{C_KA}, s[12:15], s34 offen {SC}"), chk, pre=OPT["sl_k"])
    stamp(a, 8)
    fast_select(a)
    stamp(a, 9)
    a(f"""v_cmp_eq_u32 vcc, v{K}, v{C_KEY}
    s_and_b64 s[62:63], vcc, s[60:61]
    s_cmp_lg_u64 s[62:63], vcc
    s_cbranch_scc0 Lsel_pub""")
    publish_row(a)
    a("Lsel_pub:")
    fetch_row_issue(a, 84)
    a(f"""s_cmp_eq_u64 vcc, 0
    s_cbranch_scc0 Lsel_done
    s_mov_b32 exec_hi, 0x00ffffff
    buffer_store_dwordx4 {v4(C_OUT)}, v{VL}, s[52:55], s97 offen {['', 'sc1', 'nt', 'sc0 sc1'][OPT['ost']]}
    s_mov_b32 exec_hi, -1
    Lsel_done:""")

def c1(a):
    XR = 84; XF_ = 168; ACC = 52; XU = 60; WF = 88
    a(f"""s_cmp_lg_u32 s20, 0
    s_cbranch_scc1 Lc1_now
    v_lshrrev_b32 v{T0}, 2, v{N}
    v_lshl_add_u32 v{T0}, v{G}, 3, v{T0}
    v_lshlrev_b32 v{T0}, 4, v{T0}
    v_and_b32 v{T1}, 1, v{N}
    v_lshl_add_u32 v{T0}, v{T1}, 3, v{T0}
    v_bfe_u32 v{T1}, v{N}, 1, 1
    v_lshl_add_u32 v{T0}, v{T1}, 13, v{T0}
    v_add_u32 v{T0}, {LWT}, v{T0}""")
    for j in range(14):
        for h in range(2):
            a(f"ds_read_b64_tr_b16 {v2(WF+4*j+2*h)}, v{T0} offset:{(32*j+4*h)*16}")
    a(f"""v_and_b32 v{XU+4}, 7, v{N}
    v_mul_u32_u24 v{XU+4}, {PX}, v{XU+4}
    v_lshl_add_u32 v{XU+4}, v{G}, 4, v{XU+4}
    v_lshlrev_b32 v{XU+5}, 4, v{N}
    v_lshl_add_u32 v{XU+5}, v{G}, 3, v{XU+5}
    s_lshl_b32 s22, s50, 7
    s_add_u32 s22, s22, {WS_ACT}
    Lc1_now:""")
    fetch_row_finish(a, XR, T2)
    a(f"""s_waitcnt lgkmcnt(0)
    s_barrier
    s_cmp_lg_u32 s20, 0
    s_cbranch_scc1 Lc1_epoch""")
    stamp(a, 10)
    for j in range(14):
        a(f"ds_read_b128 {v4(XF_+4*j)}, v{XU+4} offset:{LXS+64*j}")
    for j in range(14):
        a(f"s_waitcnt lgkmcnt({13-j})")
        A = ACC + 4*(j & 1)
        a(f"v_mfma_f32_16x16x32_bf16 {v4(A)}, {v4(WF+4*j)}, {v4(XF_+4*j)}, {'0' if j < 2 else v4(A)}")
    for p in range(2):
        a(f"v_pk_add_f32 {v2(ACC+2*p)}, {v2(ACC+2*p)}, {v2(ACC+4+2*p)}")
    for p in range(2): a(f"v_cvt_pk_bf16_f32 v{ACC+4+p}, v{ACC+2*p}, v{ACC+2*p+1}")
    for p in range(2): a(f"v_mov_b32 v{ACC+6+p}, v{ACC+4+p}")
    for p in range(2): a(f"v_permlane32_swap_b32 v{ACC+4+p}, v{ACC+6+p}")
    for p in range(2):
        a(f"v_lshlrev_b32 v{ACC+2*p}, 16, v{ACC+4+p}")
        a(f"v_and_b32 v{ACC+2*p+1}, 0xffff0000, v{ACC+4+p}")
    for r in range(4): a(f"v_mul_f32 v{XU+r}, {fl(-1.4426950408889634)}, v{ACC+r}")
    for r in range(4): a(f"v_exp_f32 v{XU+r}, v{XU+r}")
    for p in range(2):
        a(f"v_lshlrev_b32 v{XR+2*p}, 16, v{ACC+6+p}")
        a(f"v_and_b32 v{XR+2*p+1}, 0xffff0000, v{ACC+6+p}")
    for r in range(4): a(f"v_add_f32 v{XU+r}, 1.0, v{XU+r}")
    for r in range(4): a(f"v_rcp_f32 v{XU+r}, v{XU+r}")
    for r in range(4): a(f"v_mul_f32 v{ACC+r}, v{ACC+r}, v{XU+r}")
    for p in range(2): a(f"v_cvt_pk_bf16_f32 v{ACC+4+p}, v{ACC+2*p}, v{ACC+2*p+1}")
    for p in range(2):
        a(f"v_lshlrev_b32 v{ACC+2*p}, 16, v{ACC+4+p}")
        a(f"v_and_b32 v{ACC+2*p+1}, 0xffff0000, v{ACC+4+p}")
    for p in range(2): a(f"v_pk_mul_f32 {v2(ACC+2*p)}, {v2(ACC+2*p)}, {v2(XR+2*p)}")
    for p in range(2): a(f"v_cvt_pk_bf16_f32 v{XR+p}, v{ACC+2*p}, v{ACC+2*p+1}")
    for p in range(2): a(f"v_min_u32 v{XR+p}, -2, v{XR+p}")
    a(f"""s_mov_b32 exec_lo, 0x00ff00ff
    s_mov_b32 exec_hi, 0
    buffer_store_dwordx2 {v2(XR)}, v{XU+5}, s[12:15], s22 offen {SC}
    s_branch Lend
    Lc1_epoch:
    s_lshl_b32 s29, s2, 3
    s_add_u32 s29, s29, s20
    s_cmp_lg_u32 s29, 1
    s_cbranch_scc1 Lend
    s_mov_b64 exec, 1
    v_mov_b32 v{T0}, s56
    s_mov_b32 s29, {WS_EPOCH}
    buffer_store_dword v{T0}, v{VL}, s[12:15], s29 offen {SC}
    s_branch Lend""")

def c2(a):
    K = C_K
    OA = 8; OR = 10; SG = 12; VA = 13; VO = 14; VW = 15; WF = 88; AF = 116; ACC = 52; RD = 168
    a(f"""s_mul_i32 s24, s20, 7168
    s_add_u32 s24, s24, {LWT}
    v_lshrrev_b32 v{T0}, 2, v{N}
    v_lshl_add_u32 v{T0}, v{G}, 3, v{T0}
    v_lshlrev_b32 v{T0}, 5, v{T0}
    v_and_b32 v{T1}, 3, v{N}
    v_lshl_add_u32 v{T0}, v{T1}, 3, v{T0}
    v_add_u32 v{VW}, s24, v{T0}""")
    for j in range(7):
        for h in range(2):
            a(f"ds_read_b64_tr_b16 {v2(WF+4*j+2*h)}, v{VW} offset:{(32*j+4*h)*32}")
    a(f"""v_and_b32 v{T1}, 7, v{N}
    v_mul_u32_u24 v{VO}, {PX}, v{T1}
    v_lshl_add_u32 v{VO}, v{G}, 3, v{VO}
    v_add_u32 v{VO}, s51, v{VO}
    v_lshlrev_b32 v{VA}, 4, v{T1}
    v_lshl_add_u32 v{VA}, v{G}, 7, v{VA}
    s_mul_i32 s25, s20, {7*512}
    s_add_u32 s25, s25, {WS_ACT}
    v_and_b32 v{OA}, 0x7ff, v{K}
    v_sub_u32 v{OA}, 2047, v{OA}
    v_mul_u32_u24 v{OA}, 896, v{OA}
    v_lshl_add_u32 v{OA}, v{G}, 3, v{OA}
    v_ashrrev_i32 v{T2}, 31, v{K}
    v_not_b32 v{T2}, v{T2}
    v_or_b32 v{T2}, 0x80000000, v{T2}
    v_xor_b32 v{K+1}, v{K}, v{T2}
    v_and_b32 v{K+1}, 0xffff0000, v{K+1}""")
    sigmoid_mul(a, SG, K+1, "1.0", T2)
    rbf(a, SG, SG)
    a(f"""v_lshlrev_b32 v{T1}, 4, v0
    v_add_u32 v{T1}, {LRED}, v{T1}""")
    def lds():
        for j in range(7):
            a(f"buffer_load_dwordx4 {v4(AF+4*j)}, v{VA}, s[12:15], s25 offen offset:{512*j} {SC}")
    if OPT["c2re"]:
        if OPT["sl_a"]: a(f"s_sleep {OPT['sl_a']}")
        lds()
        fetch_row_finish(a, 84, T2)
        anyones(a, range(AF, AF+28), T0)
        a("s_cmp_eq_u64 vcc, 0\ns_cbranch_scc1 Lactok")
        poll(a, lds, lambda: anyones(a, range(AF, AF+28), T0))
        a("Lactok:")
    else:
        fetch_row_finish(a, 84, T2)
        poll(a, lds, lambda: anyones(a, range(AF, AF+28), T0), pre=OPT["sl_a"])
    stamp(a, 10)
    a("s_waitcnt lgkmcnt(0)")
    for j in range(7):
        A = ACC + 4*(j & 1)
        a(f"v_mfma_f32_16x16x32_bf16 {v4(A)}, {v4(WF+4*j)}, {v4(AF+4*j)}, {'0' if j < 2 else v4(A)}")
    for p in range(2):
        a(f"v_pk_add_f32 {v2(ACC+2*p)}, {v2(ACC+2*p)}, {v2(ACC+4+2*p)}")
    a(f"""ds_write_b128 v{T1}, {v4(ACC)}
    s_waitcnt lgkmcnt(0)
    s_barrier
    s_cmp_lg_u32 s20, 0
    s_cbranch_scc1 Lend
    ds_read_b64 {v2(OR)}, v{VO} offset:{LXS}""")
    for w in range(1, 8):
        a(f"ds_read_b128 {v4(RD+4*w)}, v{T1} offset:{1024*w}")
    a("s_waitcnt lgkmcnt(7)")
    for i in range(2):
        a(f"v_lshlrev_b32 v{RD+2*i}, 16, v{OR+i}")
        a(f"v_and_b32 v{RD+2*i+1}, 0xffff0000, v{OR+i}")
    for w in range(1, 8):
        a(f"s_waitcnt lgkmcnt({7-w})")
        for p in range(2):
            a(f"v_pk_add_f32 {v2(ACC+2*p)}, {v2(ACC+2*p)}, {v2(RD+4*w+2*p)}")
    for rnd in range(2):
        for p in range(2): a(f"v_cvt_pk_bf16_f32 v{ACC+4+p}, v{ACC+2*p}, v{ACC+2*p+1}")
        for p in range(2):
            a(f"v_lshlrev_b32 v{ACC+2*p}, 16, v{ACC+4+p}")
            a(f"v_and_b32 v{ACC+2*p+1}, 0xffff0000, v{ACC+4+p}")
        for p in range(2):
            if rnd == 0: a(f"v_pk_mul_f32 {v2(ACC+2*p)}, {v2(ACC+2*p)}, {v2(SG)} op_sel_hi:[1,0]")
            else: a(f"v_pk_add_f32 {v2(ACC+2*p)}, {v2(ACC+2*p)}, {v2(RD+2*p)}")
    for p in range(2): a(f"v_cvt_pk_bf16_f32 v{OR+p}, v{ACC+2*p}, v{ACC+2*p+1}")
    a(f"""s_mov_b32 exec_lo, 0x00ff00ff
    s_mov_b32 exec_hi, 0x00ff00ff
    buffer_store_dwordx2 {v2(OR)}, v{OA}, s[52:55], s51 offen {['', 'sc1', 'nt', 'sc0 sc1'][OPT['ost']]}""")

def clears(a):
    a(f"""v_mov_b32 v{JUNK+2}, -1
    v_lshlrev_b32 v{T1}, 2, v{LANE}
    s_lshl_b32 s24, s2, 7
    s_add_u32 s24, s24, {WS_ACT}
    s_mov_b32 exec_hi, 0
    buffer_store_dword v{JUNK+2}, v{T1}, s[12:15], s24 offen {SC}
    s_mov_b32 exec_lo, 1
    s_lshl_b32 s23, s96, 11
    s_add_u32 s23, s23, {WS_ROW}
    buffer_load_dword v{JUNK}, v{VL}, s[52:55], s97 offen
    buffer_load_dword v{JUNK+1}, v{VL}, s[12:15], s23 offen
    s_mov_b64 exec, -1""")

def prefetch(a):
    a(f"""s_and_b32 s24, s2, 7
    s_lshr_b32 s25, s2, 3
    s_mul_i32 s26, s25, {14*3584}
    s_mov_b32 s18, {448*3584}
    s_cmp_eq_u32 s20, 3
    s_cbranch_scc1 Lpf_d
    v_lshrrev_b32 v{T0}, 2, v{LANE}
    v_mul_u32_u24 v{T0}, 3584, v{T0}
    v_and_b32 v{T1}, 3, v{LANE}
    v_lshl_add_u32 v{T0}, v{T1}, 7, v{T0}
    s_mul_i32 s24, s24, 448
    s_cmp_eq_u32 s20, 1
    s_cselect_b32 s16, s42, s44
    s_cselect_b32 s17, s43, s45
    s_branch Lpf_go
    Lpf_d:
    v_mul_u32_u24 v{T0}, 896, v{LANE}
    s_lshl_b32 s24, s24, 7
    s_mov_b32 s16, s46
    s_mov_b32 s17, s47
    Lpf_go:
    s_and_b32 s17, s17, 0xffff
    s_add_u32 s26, s26, s24
    s_mov_b32 exec_hi, 0x00ffffff
    buffer_load_dword v{JUNK}, v{T0}, s[16:19], s26 offen
    s_mov_b32 exec_hi, -1""")

def kernel(a):
    if OPT["stamps"]:
        for k in range(NST): a(f"s_mov_b32 s{64+2*k}, 0")
    stamp(a, 0)
    a(f"""s_load_dwordx2 s[8:9], s[0:1], 0
    s_cmp_ge_u32 s2, 256
    s_cbranch_scc1 Lexit
    v_lshrrev_b32 v{T0}, 6, v0
    v_and_b32 v{LANE}, 63, v0
    v_readfirstlane_b32 s20, v{T0}
    v_lshlrev_b32 v{VL}, 4, v{LANE}
    s_and_b32 s21, s2, 31
    s_lshr_b32 s22, s2, 5
    s_mov_b32 s10, {XB}
    s_mov_b32 s11, 0x00020000
    s_cmp_lt_u32 s20, 4
    s_cbranch_scc1 Lloader
    s_getpc_b64 s[30:31]
    Lpc:
    v_and_b32 v{T2}, 255, v0
    v_lshlrev_b32 v{JUNK}, 7, v{T2}
    v_mov_b32 v{JUNK+1}, s31
    v_add_co_u32 v{JUNK}, vcc, s30, v{JUNK}
    v_addc_co_u32 v{JUNK+1}, vcc, 0, v{JUNK+1}, vcc
    v_cmp_gt_u32 vcc, (Lexit-Lpc)/128+1, v{T2}
    s_and_saveexec_b64 s[30:31], vcc
    s_cbranch_execz Lcompute
    global_load_dword v{JUNK+2}, v[{JUNK}:{JUNK+1}], off
    s_branch Lcompute
    Lloader:
    v_cmp_lt_u32 vcc, 29, v{LANE}
    s_lshl_b32 s23, s20, 9
    s_add_u32 s23, s23, s21
    s_mul_i32 s23, s23, 896
    s_mul_i32 s24, s20, {16*PH}
    v_add_u32 v{T1}, {32*896 - 480}, v{VL}
    s_mov_b32 s25, {'s22' if OPT['rot'] else '0'}
    v_cndmask_b32 v{T1}, v{VL}, v{T1}, vcc
    s_mov_b32 exec_lo, 0xcfffffff
    s_mov_b32 exec_hi, 0x03ffffff
    s_mov_b32 s28, 0
    s_waitcnt lgkmcnt(0)""")
    stamp(a, 3, True)
    if OPT["dmau"]:
        a("Ldma:")
        for i in range(8):
            a(f"""s_mul_i32 s26, s25, {2*PH}
            s_mul_i32 s27, s25, {64*896}
            s_add_u32 m0, s26, s24
            s_add_u32 s27, s27, s23
            s_add_u32 s25, s25, 1
            buffer_load_dwordx4 v{T1}, s[8:11], s27 offen lds
            s_and_b32 s25, s25, 7""")
        a(f"""s_add_u32 s24, s24, {LXH}
        s_add_u32 s23, s23, 448
        s_add_u32 s28, s28, 1
        s_cmp_lt_u32 s28, 2
        s_cbranch_scc1 Ldma""")
    else:
        a(f"""Ldma:
        s_mul_i32 s26, s25, {2*PH}
        s_mul_i32 s27, s25, {64*896}
        s_add_u32 s26, s26, s24
        s_add_u32 s27, s27, s23
        s_mov_b32 m0, s26
        s_add_u32 s25, s25, 1
        buffer_load_dwordx4 v{T1}, s[8:11], s27 offen lds
        s_and_b32 s25, s25, 7
        s_add_u32 s28, s28, 1
        s_cmp_lg_u32 s28, 8
        s_cbranch_scc1 Ldma1
        s_add_u32 s24, s24, {LXH}
        s_add_u32 s23, s23, 448
        Ldma1:
        s_cmp_lt_u32 s28, 16
        s_cbranch_scc1 Ldma""")
    def ltail():
        a(f"""Lltail:
        s_mov_b64 exec, -1
        s_load_dwordx2 s[6:7], s[0:1], 96
        s_load_dwordx8 s[40:47], s[0:1], 48
        s_load_dwordx2 s[48:49], s[0:1], 80
        v_and_b32 v{N}, 15, v0
        v_bfe_u32 v{G}, v0, 4, 2""")
        stamp(a, 6, True)
        early = OPT["e2a"]
        if early:
            a("s_waitcnt vmcnt(8)")
            stamp(a, 1)
            a("s_barrier")
        a("s_waitcnt lgkmcnt(0)")
        b_setup(a)
        b_loads(a)
        a("s_cmp_lg_u32 s20, 0\ns_cbranch_scc1 Lw123a")
        clears(a)
        if not early:
            a("s_waitcnt vmcnt(14)")
            stamp(a, 1)
            a("s_barrier")
        a("s_waitcnt vmcnt(6)")
        stamp(a, 2)
        a(f"""s_barrier
        v_mov_b32 v{T0}, {LTAG}
        s_waitcnt vmcnt(5)
        ds_write_b32 v{T0}, v{V_EP}
        s_branch Lprol
        Lw123a:""")
        if OPT["pf"] == 3: prefetch(a)
        if not early:
            a(f"s_waitcnt vmcnt(12)")
            stamp(a, 1)
            a("s_barrier")
        a(f"s_waitcnt vmcnt({4 if OPT['pf'] == 3 else 3})")
        stamp(a, 2)
        a(f"s_barrier")
        if OPT["pf"] == 1: prefetch(a)
        a("s_waitcnt vmcnt(3)")
        a("Lprol:")
        if OPT["wdh"]: wd_dma(a, 0, 7, "Lnwd2")
        if OPT["w64l"]:
            a("s_mov_b32 s3, s20")
            w64(a, AC1)
            for i in range(8): a(f"v_xor_b32 v{AC1+16+i}, 0x80008000, v{AC1+8+i}")
            a(f"s_lshl_b32 s26, s3, 12\ns_add_u32 s26, s26, {LWT}\nv_add_u32 v{T1}, s26, v{VL}")
            for i in range(6): a(f"ds_write_b128 v{T1}, {v4(AC1+4*i)} offset:{[0, 1024, 2048, 3072, 16384, 17408][i]}")
        if not OPT["prolate"]: pro(a)
        stamp(a, 3)
        a("s_waitcnt lgkmcnt(0)\ns_barrier")
        a("s_branch Lpro1" if OPT["prolate"] else "s_branch Lpro2")
    if OPT["layout"]: a("s_branch Lltail")
    else: ltail()
    a(f"""Lcompute:
    s_mov_b64 exec, -1
    s_load_dwordx2 s[6:7], s[0:1], 96
    s_load_dwordx8 s[40:47], s[0:1], 48
    s_load_dwordx2 s[48:49], s[0:1], 80
    v_and_b32 v{N}, 15, v0
    v_bfe_u32 v{G}, v0, 4, 2
    s_and_b32 s3, s20, 3""")
    if OPT["prio"]: a("s_setprio 3")
    stamp(a, 9, True)
    a_pre(a)
    stamp(a, 11, True)
    a("s_waitcnt lgkmcnt(0)")
    b_setup(a)
    stamp(a, 1)
    a("s_barrier")
    stamp(a, 2)
    a_main(a)
    stamp(a, 4)
    if OPT["prio"]: a("s_setprio 0")
    a(f"buffer_load_dwordx4 {v4(B_WR)}, v{VL}, s[16:19], 0 offen")
    a(f"buffer_load_dwordx4 {v4(B_XR)}, v{VL}, s[8:11], s97 offen")
    a("Lpro1:")
    pro(a)
    a("Lpro2:")
    a(f"""v_readfirstlane_b32 s56, v{V_EP}
    s_add_u32 s56, s56, 1
    s_mul_i32 s98, s56, {HASH}
    s_lshl_b32 s99, s98, 6
    s_and_b32 s59, s56, 0xffff
    s_barrier""")
    stamp(a, 5)
    b_main(a)
    if OPT["wdh"]: a("s_cmp_lt_u32 s20, 4\ns_cbranch_scc1 Lnwd1")
    wd_dma(a, OPT['wdsplit'], 7, 'Lnwd1')
    c_select(a)
    a("s_cmp_ge_u32 s2, 224\ns_cbranch_scc1 Lc2")
    c1(a)
    a("Lc2:\ns_and_b32 s50, s2, 7\ns_cmp_eq_u32 s50, 7\ns_cbranch_scc1 Lend\ns_lshl_b32 s50, s50, 7\ns_bfe_u32 s51, s2, 0x20003\ns_lshl_b32 s51, s51, 5\ns_add_u32 s51, s51, s50")
    c2(a)
    a("Lend:")
    dump_stamps(a)
    if OPT["layout"]:
        a("s_endpgm")
        ltail()
    a("Lexit:\ns_endpgm\nLfullsel:")
    select8(a, C_K, C_TMP, C_L, C_SW, C_SR)
    a("s_branch Lseldone")

NAME = "sequential_preLN__spectral_fnet__moe_arch_mod__prompt_kernel"
def build():
    a = Asm()
    kernel(a)
    body = a.finish()
    if OPT["align"]: body = align_pass(body)
    return gen.HDR + f"""; @launch grid=(256,1,1) block=(512,1,1) lds={LDS_TOTAL}
.amdgcn_target "amdgcn-amd-amdhsa--gfx950"
.text
.globl {NAME}
.p2align 8
.type {NAME},@function
{NAME}:
""" + body + f""".section .rodata,"a"
.p2align 6
.amdhsa_kernel {NAME}
  .amdhsa_next_free_vgpr {NVGPR}
  .amdhsa_next_free_sgpr 102
  .amdhsa_accum_offset {NVGPR}
  .amdhsa_group_segment_fixed_size 0
  .amdhsa_kernarg_size 104
  .amdhsa_user_sgpr_count 2
  .amdhsa_user_sgpr_kernarg_segment_ptr 1
  .amdhsa_system_sgpr_workgroup_id_x 1
.end_amdhsa_kernel
"""

if __name__ == "__main__":
    for x in list(sys.argv[1:]):
        if x.startswith("--"):
            k, _, v = x[2:].partition("=")
            assert k in OPT, k
            OPT[k] = int(v) if v else 1
            sys.argv.remove(x)
    open(sys.argv[1], "w").write(build())
```

```python
import sys
from asmlib import Asm, fl, align_pass
import gen
from gen import srd, v4, v2, rbf, sd_chain, reduce3, unpack8, lim_regs, select8, sigmoid_mul

WS_KEYS = 0x200000
WS_EPOCH = 0x208000
WS_ACT = 0x210000
WS_STAMP = 0x3c0000
WS_ROW = 0x400000
WS_SIZE = 0x800000
XB = 1835008
PH = 480; PX = 928; PF = 136; PY = 452
LXH = 64 * PH
LW = 2 * LXH; LCS = LW + 28 * 1024; LTAG = LCS + 256; LF = LCS + 272; LWT = LF + 64 * PF; LDS_TOTAL = LWT + 57344
LY = 0
LSEL = 16384; LSE2 = 16640; LKEY = 17152; LXS = 17408; LRED = 24832
SPIN = 4000000
SC = "sc1"
HASH = "0x9e3779b1"
OPT = dict(stamps=0, cyc=0, align=0, sl_u0=6, sl_k=13, sl_a=0, rowpf=2, barj=5, dbgto=0, ost=0, c2re=1, rot=1, pf=3, wdsplit=0, w64l=0, layout=1, e2a=1, prolate=1, amp=-1, ampw=0, ampb=224, prio=1, wdh=0, cheb=1, ln1emu=1, dmau=1)
NST = 14

def stamp(a, k, early=False):
    if OPT["stamps"] == 5:
        if early != 5 and k not in (0, 3, 4, NST - 1): return
    elif OPT["stamps"] == 4:
        if early == 5 or (not early and k not in (0, 1, 2, NST - 1)): return
    elif early: return
    if OPT["stamps"] == 2 and k not in (0, NST - 1): return
    if OPT["stamps"]: a(f"{'s_memtime' if OPT['cyc'] else 's_memrealtime'} s[{64+2*k}:{65+2*k}]")
def dump_stamps(a):
    if OPT["amp"] >= 0:
        k = OPT["amp"]
        a(f"s_memrealtime s[{64+2*(NST-2)}:{65+2*(NST-2)}]")
        a(f"""s_cmp_lg_u32 s2, {OPT['ampb']}
        s_cbranch_scc1 Lampd
        s_cmp_lg_u32 s20, {OPT['ampw']}
        s_cbranch_scc1 Lampd
        s_waitcnt lgkmcnt(0)
        s_sub_u32 s60, s{64+2*k}, s64
        s_mul_i32 s60, s60, 9
        s_add_u32 s60, s60, s{64+2*(NST-2)}
        Lamp:
        s_memrealtime s[62:63]
        s_waitcnt lgkmcnt(0)
        s_sub_u32 s61, s62, s60
        s_cmp_lt_i32 s61, 0
        s_cbranch_scc1 Lamp
        Lampd:""")
        return
    if not OPT["stamps"]: return
    stamp(a, NST - 2)
    a("s_waitcnt vmcnt(0)")
    stamp(a, NST - 1)
    a("s_mov_b64 exec, 1\ns_waitcnt lgkmcnt(0)")
    a(f"s_lshl_b32 s60, s2, 3\ns_add_u32 s60, s60, s20\ns_lshl_b32 s60, s60, 6\ns_add_u32 s60, s60, {WS_STAMP}\nv_mov_b32 v1, 0")
    for k in range(NST):
        a(f"v_mov_b32 v2, s{64+2*k}\nbuffer_store_dword v2, v1, s[12:15], s60 offen offset:{4*k}")

_lbl = [0]
def timeout_note(a, ident):
    if not OPT["dbgto"]: return
    a(f"""s_lshl_b32 s100, s2, 8
    s_add_u32 s100, s100, s20
    s_add_u32 s100, s100, {ident << 24}
    v_mov_b32 v{JUNK+3}, s100
    s_mov_b32 s100, {0x3f0000 + 4*ident}
    s_mov_b64 exec, 1
    buffer_store_dword v{JUNK+3}, v{VL}, s[12:15], s100 offen
    v_mov_b32 v{JUNK+3}, s36
    buffer_store_dword v{JUNK+3}, v{VL}, s[12:15], s100 offen offset:64
    v_mov_b32 v{JUNK+3}, s98
    buffer_store_dword v{JUNK+3}, v{VL}, s[12:15], s100 offen offset:128
    v_mov_b32 v{JUNK+3}, s34
    buffer_store_dword v{JUNK+3}, v{VL}, s[12:15], s100 offen offset:192
    s_mov_b64 exec, -1""")
def poll(a, loads, check, pre=0):
    _lbl[0] += 1
    L = f"Lpoll{_lbl[0]}"
    if pre: a(f"s_sleep {pre}")
    a(f"s_mov_b32 s57, {SPIN}\n{L}:")
    loads()
    a("s_waitcnt vmcnt(0)")
    check()
    a(f"""s_cmp_eq_u64 vcc, 0
    s_cbranch_scc1 {L}d
    s_sub_u32 s57, s57, 1
    s_cbranch_scc0 {L}""")
    timeout_note(a, _lbl[0])
    a(f"{L}d:")

class LdsQ:
    def __init__(s, a): s.a = a; s.q = []
    def read(s, text, b, n=4):
        s.a(text); s.q.append(set(range(b, b + n)))
    def need(s, b, n=4):
        rs = set(range(b, b + n)); last = -1
        for i, d in enumerate(s.q):
            if d & rs: last = i
        if last >= 0:
            s.a(f"s_waitcnt lgkmcnt({len(s.q) - 1 - last})")
            s.q = s.q[last+1:]

LANE, N, G, T0, T1, T2, VL = 1, 2, 3, 4, 5, 6, 7
B_XR = 8; B_WR = 12; V_EP = 16; VFW = 17; VFR = 18; VXR = 19; VCS = 20; VUS = 21; ST = 22
WC = 28; WSN = 36; WNS = 44
AC1 = 52; AC2 = 68; GR = 84; XF = 88; WD = 116
JUNK = 228; SG2 = 232; NVGPR = 236
B_AF = 28; B_AD = 36; B_VY = 40; B_VU = 41; C_L = {1: 42, 2: 43, 4: 44}; C_SW = 45; C_SR = 46; C_KA = 47
C_FW = 48; C_FR = 49; C_FY = 50; C_PF = 51
B_R = 116; B_ACC = 52; B_XU = 68; B_WU = 76; B_S1, B_S2, B_S3 = 88, 90, 92; B_TH = 96; P_TH = 104; P_EPS = 112; P_BASE = 113
C_K = 148; C_TMP = 152; C_KEY = 156; C_X = 157; C_Y = 158; C_OUT = 160; C_LN = 164; C_IX = 224; C_STK = 159

def trig_block(a, n, k0, eps, base, th, want_sin):
    for i in range(n):
        k = k0 + i
        if k == 0: a(f"v_mov_b32 v{th+i}, v{base}")
        else: a(f"v_fmamk_f32 v{th+i}, v{eps}, {fl(float(k))}, v{base}")
    for i in range(n):
        if want_sin: a(f"v_sin_f32 v{th+n+i}, v{th+i}")
        a(f"v_cos_f32 v{th+i}, v{th+i}")

def w64(a, D):
    EPS, BASE, TH, S = ST + 4, ST + 5, XF, ST
    a(f"""v_lshrrev_b32 v{S}, 1, v{N}
    s_lshl_b32 s25, s3, 3
    v_add_u32 v{S}, s25, v{S}
    v_sub_u32 v{S+1}, 64, v{S}
    v_cmp_eq_u32 vcc, 0, v{S}
    v_and_b32 v{S+2}, 1, v{N}
    v_cndmask_b32 v{S+1}, v{S+1}, 32, vcc
    v_cmp_eq_u32 vcc, 0, v{S+2}
    v_lshlrev_b32 v{S+2}, 3, v{G}
    v_cndmask_b32 v{S+1}, v{S+1}, v{S}, vcc
    v_cvt_f32_u32 v{S+2}, v{S+2}
    v_and_b32 v{S}, 1, v{S+1}
    v_cvt_f32_u32 v{S+1}, v{S+1}
    v_mul_u32_u24 v{S}, 0x8000, v{S}
    v_mul_f32 v{EPS}, {fl(1.0/64)}, v{S+1}
    v_lshl_or_b32 v{S}, v{S}, 16, v{S}
    v_mul_f32 v{BASE}, v{S+2}, v{EPS}""")
    if OPT["cheb"]:
        C2 = S + 3; CV = XF; SV = XF + 8
        a(f"""v_cos_f32 v{C2}, v{EPS}
        v_add_f32 v{CV+1}, v{EPS}, v{BASE}
        v_sin_f32 v{SV}, v{BASE}
        v_cos_f32 v{CV}, v{BASE}
        v_sin_f32 v{SV+1}, v{CV+1}
        v_cos_f32 v{CV+1}, v{CV+1}
        v_add_f32 v{C2}, v{C2}, v{C2}""")
        for i in range(2, 8):
            for Vv in (CV, SV): a(f"v_fma_f32 v{Vv+i}, v{C2}, v{Vv+i-1}, -v{Vv+i-2}")
        for i in range(4):
            a(f"v_cvt_pk_f16_f32 v{D+i}, v{CV+2*i}, v{CV+2*i+1}")
            a(f"v_cvt_pk_f16_f32 v{D+8+i}, v{SV+2*i}, v{SV+2*i+1}")
        for i in range(4):
            a(f"v_xor_b32 v{D+4+i}, v{S}, v{D+i}")
            a(f"v_xor_b32 v{D+12+i}, v{S}, v{D+8+i}")
        return
    for ks in range(2):
        for h in range(2):
            trig_block(a, 4, 32*ks + 4*h, EPS, BASE, TH, True)
            for i in range(2):
                a(f"v_cvt_pk_f16_f32 v{D+4*ks+2*h+i}, v{TH+2*i}, v{TH+2*i+1}")
                a(f"v_cvt_pk_f16_f32 v{D+8+4*ks+2*h+i}, v{TH+4+2*i}, v{TH+4+2*i+1}")

def a_pre(a):
    EPS, BASE, TH, ONE, TO, CS = ST + 4, ST + 5, XF, XF + 8, XF + 12, AC1
    a(f"""s_and_b32 s25, s3, 1
    s_lshl_b32 s25, s25, 2
    v_and_b32 v{T0}, 3, v{N}
    v_add_u32 v{T0}, s25, v{T0}
    v_lshrrev_b32 v{T1}, 2, v{N}
    s_mul_i32 s26, s22, 28
    s_add_u32 s26, s26, 1
    v_mad_u32_u24 v{T1}, v{T1}, 7, v{T0}
    v_add_u32 v{T1}, s26, v{T1}
    v_cmp_ne_u32 vcc, 7, v{T0}
    s_lshr_b32 s25, s3, 1
    s_mul_i32 s25, s25, {fl(0.25)}
    v_cndmask_b32 v{T1}, 0, v{T1}, vcc
    v_cvt_f32_u32 v{T1}, v{T1}
    v_mul_f32 v{EPS}, {fl(1.0/448)}, v{T1}
    v_lshlrev_b32 v{T0}, 3, v{G}
    v_cvt_f32_u32 v{T2}, v{T0}
    v_fma_f32 v{BASE}, v{T2}, v{EPS}, s25
    s_mul_i32 s25, s3, {7*1024}
    s_add_u32 s25, s25, {LW}
    v_add_u32 v{T1}, s25, v{VL}""")
    for i in range(4): a(f"v_mov_b32 v{ONE+i}, 0x3f803f80")
    if OPT["cheb"]:
        C2 = ST + 3; V = WD
        a(f"v_cos_f32 v{C2}, v{EPS}")
        for j in range(7):
            for i in range(2):
                k = 32*j + i
                if k == 0: a(f"v_mov_b32 v{V}, v{BASE}")
                else: a(f"v_fmamk_f32 v{V+8*j+i}, v{EPS}, {fl(float(k))}, v{BASE}")
        a(f"v_add_f32 v{C2}, v{C2}, v{C2}")
        for j in range(7):
            for i in range(2): a(f"v_cos_f32 v{V+8*j+i}, v{V+8*j+i}")
        for i in range(2, 8):
            for j in range(7):
                a(f"v_fma_f32 v{V+8*j+i}, v{C2}, v{V+8*j+i-1}, -v{V+8*j+i-2}")
        for j in range(7):
            o = V + 56 + 4*j
            for i in range(4): a(f"v_cvt_pk_bf16_f32 v{o+i}, v{V+8*j+2*i}, v{V+8*j+2*i+1}")
            a(f"ds_write_b128 v{T1}, {v4(o)} offset:{j*1024}")
            a(f"v_mfma_f32_16x16x32_bf16 {v4(CS)}, {v4(o)}, {v4(ONE)}, {'0' if j == 0 else v4(CS)}")
    else:
      for j in range(7):
        trig_block(a, 8, 32*j, EPS, BASE, TH, False)
        o = TO + 4*(j & 1)
        for i in range(4): a(f"v_cvt_pk_bf16_f32 v{o+i}, v{TH+2*i}, v{TH+2*i+1}")
        a(f"ds_write_b128 v{T1}, {v4(o)} offset:{j*1024}")
        a(f"v_mfma_f32_16x16x32_bf16 {v4(CS)}, {v4(o)}, {v4(ONE)}, {'0' if j == 0 else v4(CS)}")
    a(f"""v_lshrrev_b32 v{ST}, 1, v{N}
    s_lshl_b32 s25, s3, 3
    v_add_u32 v{ST}, s25, v{ST}
    v_and_b32 v{ST+2}, 1, v{N}
    v_lshlrev_b32 v{VUS}, 16, v{ST}
    v_lshl_add_u32 v{VUS}, v{ST+2}, 6, v{VUS}
    v_lshl_add_u32 v{VUS}, v{G}, 4, v{VUS}
    s_lshl_b32 s25, s3, 6
    v_lshlrev_b32 v{T0}, 4, v{G}
    v_add_u32 v{VCS}, {LCS}, v{T0}
    v_add_u32 v{T1}, s25, v{VCS}
    v_lshlrev_b32 v{SG2+1}, 31, v{G}
    v_or_b32 v{SG2+1}, 1.0, v{SG2+1}
    v_xor_b32 v{SG2}, 0x80000000, v{SG2+1}
    v_pk_fma_f32 {v2(CS)}, {v2(CS)}, {v2(SG2)}, {v2(CS)}
    v_pk_fma_f32 {v2(CS+2)}, {v2(CS+2)}, {v2(SG2)}, {v2(CS+2)}
    ds_write_b128 v{T1}, {v4(CS)}""")
    if OPT["pf"] == 4:
        a("s_waitcnt lgkmcnt(0)\ns_cmp_eq_u32 s20, 7\ns_cbranch_scc1 Lnpf4")
        prefetch(a, 4, XF, XF + 1)
        a("Lnpf4:")
    if not OPT["w64l"]:
        w64(a, WC)
        for i in range(8): a(f"v_xor_b32 v{WNS+i}, 0x80008000, v{WSN+i}")
    stamp(a, 10, True)
    a(f"v_add_u32 v{T2}, {LW}, v{VL}")
    a(f"""s_lshl_b32 s25, s3, 4
    v_add_u32 v{ST}, s25, v{N}
    v_mul_u32_u24 v{VXR}, {PH}, v{ST}
    v_add_u32 v{VXR}, v{T0}, v{VXR}
    v_mul_u32_u24 v{VFW}, {PF}, v{ST}
    v_lshl_add_u32 v{VFW}, v{G}, 3, v{VFW}
    v_add_u32 v{VFW}, {LF}, v{VFW}
    v_lshrrev_b32 v{ST}, 2, v{N}
    v_lshl_add_u32 v{ST}, v{G}, 3, v{ST}
    v_mul_u32_u24 v{VFR}, {PF}, v{ST}
    v_and_b32 v{ST}, 3, v{N}
    v_lshl_add_u32 v{VFR}, v{ST}, 3, v{VFR}
    v_add_u32 v{VFR}, {LF}, v{VFR}
    s_lshl_b32 s23, s21, 11
    s_lshl_b32 s24, s22, 8
    s_add_u32 s23, s23, s24""")
    for r in range(4):
        a(f"s_mov_b32 s{30+2*r}, {hex(((1<<r)|(1<<(20+r))) & 0xffffffff)}")
        a(f"s_mov_b32 s{31+2*r}, {hex(((1<<(8+r))|(1<<(28+r))) & 0xffffffff)}")
    a("s_mov_b64 s[24:25], 0xffff")

def a_main(a):
    q = LdsQ(a)
    def rdx(j, hf): q.read(f"ds_read_b128 {v4(XF+4*j)}, v{VXR} offset:{64*j + hf*LXH}", XF+4*j)
    def rdw(j):
        for T in range(4): q.read(f"ds_read_b128 {v4(WD+4*(7*T+j))}, v{T2} offset:{(7*T+j)*1024}", WD+4*(7*T+j))
    for j in range(3): rdx(j, 0); rdw(j)
    BJ = OPT["barj"]
    Q, S, M, RS = ST, ST+1, ST+2, ST+4
    def mf(A, T, j, first): a(f"v_mfma_f32_16x16x32_bf16 {v4(A+4*T)}, {v4(WD+4*(7*T+j))}, {v4(XF+4*j)}, {'0' if first else v4(A+4*T)}")
    def gram(j, first): a(f"v_mfma_f32_16x16x32_bf16 {v4(GR)}, {v4(XF+4*j)}, {v4(XF+4*j)}, {'0' if first else v4(GR)}")
    for j in range(7):
        q.need(XF + 4*j)
        gram(j, j == 0)
        for T in range(4):
            q.need(WD+4*(7*T+j))
            mf(AC1, T, j, j == 0)
        if j + 3 < 7: rdx(j + 3, 0); rdw(j + 3)
        if j == BJ:
            stamp(a, 11)
            a("s_barrier")
            for k in range(BJ + 1): rdx(k, 1)
        elif j > BJ: rdx(j, 1)
    CS = WD + 28
    for j in range(7):
        q.need(XF + 4*j)
        gram(j, False)
        mf(AC2, 1, j, j == 0)
    for T in range(4): q.read(f"ds_read_b128 {v4(CS+4*T)}, v{VCS} offset:{64*T}", CS+4*T)
    stats = [None, None, f"v_mov_b32 v{Q}, 0", f"v_mov_b32 v{V_EP}, {LTAG}"]
    stats += [f"v_cndmask_b32 v{Q}, v{Q}, v{GR+r}, s[{30+2*r}:{31+2*r}]" for r in range(4)]
    stats += [f"v_add_f32 v{S}, v{AC1+7}, v{AC2+7}", f"v_cndmask_b32 v{S}, 0, v{S}, s[24:25]", None, None,
              f"v_permlane32_swap_b32 v{Q}, v{S}", f"v_add_f32 v{Q}, v{Q}, v{S}", f"v_mov_b32 v{S}, v{Q}", None, None,
              f"v_permlane16_swap_b32 v{Q}, v{S}", f"v_add_f32 v{Q}, v{Q}, v{S}", f"v_mov_b32 v{S}, v{Q}", None, None,
              f"v_permlane32_swap_b32 v{Q}, v{S}", f"v_mul_f32 v{M}, {fl(-1.0/448)}, v{S}", f"v_mul_f32 v{Q}, {fl(1.0/448)}, v{Q}",
              f"v_fma_f32 v{Q}, -v{M}, v{M}, v{Q}", f"v_max_f32 v{Q}, 0, v{Q}"]
    rb = [f"v_cvt_pk_bf16_f32 v{Q}, v{Q}, v{Q}", f"v_and_b32 v{Q}, 0xffff0000, v{Q}"]
    if OPT["ln1emu"]:
        stats += rb + [f"v_add_f32 v{Q}, {fl(1e-5)}, v{Q}"] + rb + [f"v_sqrt_f32 v{Q}, v{Q}", None] + rb + [f"v_rcp_f32 v{RS}, v{Q}"]
    else:
        stats += [f"v_add_f32 v{Q}, {fl(1e-5)}, v{Q}", f"v_rsq_f32 v{RS}, v{Q}"]
    stats += ["WAITCS", f"v_mul_f32 v{M}, v{M}, v{RS}"]
    stats += [f"v_mul_f32 v{CS+i}, v{CS+i}, v{M}" for i in range(16)]
    for j in range(7):
        for T in (0, 2, 3):
            mf(AC2, T, j, j == 0)
            for _ in range(2):
                if stats:
                    t = stats.pop(0)
                    if t == "WAITCS": q.need(CS, 16)
                    elif t: a(t)
    for p in range(2): a(f"v_pk_fma_f32 {v2(AC1+4+2*p)}, {v2(AC2+4+2*p)}, {v2(SG2)}, {v2(AC1+4+2*p)}")
    for t in stats:
        if t == "WAITCS": q.need(CS, 16)
        elif t: a(t)
    stamp(a, 3)
    for T in (0, 2, 3):
        for p in range(2):
            x = AC1 + 4*T + 2*p
            a(f"v_pk_fma_f32 {v2(x)}, {v2(AC2+4*T+2*p)}, {v2(SG2)}, {v2(x)}")
    for T in (1, 0, 2, 3):
        for p in range(2):
            x = AC1 + 4*T + 2*p
            a(f"v_pk_fma_f32 {v2(x)}, {v2(x)}, {v2(RS)}, {v2(CS+4*T+2*p)} op_sel_hi:[1,0,1]")
    for T in (1, 0, 2, 3):
        for p in range(2):
            x = AC1 + 4*T + 2*p
            a(f"v_cvt_pk_f16_f32 v{AC2+2*T+p}, v{x}, v{x+1}")
        a(f"ds_write_b64 v{VFW}, {v2(AC2+2*T)} offset:{32*T}")
    if OPT["w64l"]: a(f"s_lshl_b32 s26, s3, 12\ns_add_u32 s26, s26, {LWT}\nv_add_u32 v{T1}, s26, v{VL}")
    stamp(a, 5, 5)
    a(f"s_waitcnt lgkmcnt(0)")
    stamp(a, 6, 5)
    a(f"s_barrier")
    stamp(a, 7, 5)
    if OPT["w64l"]:
        for i in (0, 2, 4, 1, 3, 5): a(f"ds_read_b128 {v4(WC+4*i)}, v{T1} offset:{(i % 4 if i < 4 else i - 2 + 2) * 0 + i * 0 + [0, 1024, 2048, 3072, 16384, 17408][i]}")
    FA = WD + 48
    fa = lambda T, ks: FA + (2*T + ks) * 4
    q = LdsQ(a)
    for T in range(2):
        for ks in range(2):
            for TT in (T, T + 2):
                for h in range(2):
                    q.read(f"ds_read_b64_tr_b16 {v2(fa(TT, ks)+2*h)}, v{VFR} offset:{(32*ks+4*h)*PF+32*TT}", fa(TT, ks)+2*h, 2)
    q.read(f"ds_read_b32 v{V_EP}, v{V_EP}", V_EP, 1)
    UR = AC1; UI = AC1 + 8; o = XF
    tagcalc = [f"v_add_u32 v{M}, 1, v{V_EP}", f"s_mov_b32 s98, {HASH}", f"v_mul_lo_u32 v{M}, v{M}, s98"]
    for T in range(2):
        for ks in range(2):
            fr = v4(fa(T, ks)); fi = v4(fa(T + 2, ks))
            q.need(fa(T, ks))
            if T == 0 and ks == 0: stamp(a, 8, 5)
            a(f"v_mfma_f32_16x16x32_f16 {v4(UR+4*T)}, {fr}, {v4(WC+4*ks)}, {'0' if ks == 0 else v4(UR+4*T)}")
            a(f"v_mfma_f32_16x16x32_f16 {v4(UI+4*T)}, {fr}, {v4(WNS+4*ks)}, {'0' if ks == 0 else v4(UI+4*T)}")
            q.need(fa(T + 2, ks))
            a(f"v_mfma_f32_16x16x32_f16 {v4(UR+4*T)}, {fi}, {v4(WSN+4*ks)}, {v4(UR+4*T)}")
            a(f"v_mfma_f32_16x16x32_f16 {v4(UI+4*T)}, {fi}, {v4(WC+4*ks)}, {v4(UI+4*T)}")
            if T == 1 and ks == 1:
                q.need(V_EP, 1)
                for t in tagcalc: a(t)
    stamp(a, 9, 5)
    for r in range(4): a(f"v_cvt_pk_f16_f32 v{o+r}, v{UR+r}, v{UI+r}")
    a(f"buffer_store_dwordx4 {v4(o)}, v{VUS}, s[12:15], s23 offen {SC}")
    stamp(a, 10, 5)
    a(f"v_add3_u32 v{Q}, v{o}, v{o+1}, v{o+2}")
    a(f"v_sub_u32 v{M}, v{M}, v{o+3}")
    a(f"v_sub_u32 v{M}, v{M}, v{Q}")
    for r in range(3): a(f"v_cvt_pk_f16_f32 v{o+4+r}, v{UR+4+r}, v{UI+4+r}")
    a(f"""v_add3_u32 v{Q}, v{o+4}, v{o+5}, v{o+6}
    v_sub_u32 v{o+7}, v{M}, v{Q}
    buffer_store_dwordx4 {v4(o+4)}, v{VUS}, s[12:15], s23 offen offset:128 {SC}""")

def b_ids(a):
    a(f"""s_and_b32 s92, s2, 7
    s_lshr_b32 s93, s2, 6
    s_lshl_b32 s93, s93, 3
    s_or_b32 s92, s92, s93
    s_bfe_u32 s93, s2, 0x10003
    s_bfe_u32 s96, s2, 0x20004
    s_sub_u32 s95, 64, s92
    s_cmp_eq_u32 s92, 0
    s_cselect_b32 s95, 32, s95
    s_cselect_b32 s94, 0, 1
    s_xor_b32 s94, s94, s93
    s_cmp_eq_u32 s93, 0
    s_cselect_b32 s95, s92, s95
    s_lshl_b32 s96, s96, 9
    s_add_u32 s95, s95, s96
    s_lshl_b32 s96, s20, 6
    s_add_u32 s96, s96, s95
    s_mul_i32 s97, s96, 896""")

def b_setup(a):
    srd(a, 12, 6, WS_SIZE)
    srd(a, 52, 48, XB)
    srd(a, 16, 40, 896)
    b_ids(a)

def b_loads(a):
    a(f"""s_mov_b32 s26, {WS_EPOCH}
    v_mov_b32 v{T0}, 0
    buffer_load_dword v{V_EP}, v{T0}, s[12:15], s26 offen {SC}
    buffer_load_dwordx4 {v4(B_WR)}, v{VL}, s[16:19], 0 offen
    buffer_load_dwordx4 {v4(B_XR)}, v{VL}, s[8:11], s97 offen""")

def pro(a):
    EPS, BASE, TH, AF, AD = P_EPS, P_BASE, P_TH, B_AF, B_AD
    a(f"""s_lshl_b32 s28, s92, 16
    s_lshl_b32 s29, s20, 8
    s_add_u32 s28, s28, s29
    s_add_u32 s29, s28, 4096
    s_add_u32 s30, s28, 32768
    s_add_u32 s31, s28, 36864
    v_lshlrev_b32 v{B_VU}, 13, v{G}
    v_lshl_add_u32 v{B_VU}, v{N}, 4, v{B_VU}
    v_and_b32 v{T0}, 7, v{N}
    v_lshlrev_b32 v{T0}, 6, v{T0}
    v_add_u32 v{T0}, s95, v{T0}
    v_cvt_f32_u32 v{T0}, v{T0}
    v_cmp_gt_u32 vcc, 8, v{N}
    v_mul_f32 v{EPS}, {fl(1.0/2048)}, v{T0}
    v_lshlrev_b32 v{T1}, 2, v{G}
    v_cndmask_b32 v{EPS}, -v{EPS}, v{EPS}, vcc
    v_cvt_f32_u32 v{T1}, v{T1}
    v_mul_f32 v{BASE}, v{T1}, v{EPS}""")
    for ks in range(2):
        trig_block(a, 4, 16*ks, EPS, BASE, TH, True)
        for i in range(4):
            a(f"v_cvt_pk_f16_f32 v{AF+4*ks+i}, v{TH+i}, v{TH+4+i}")
    a(f"""v_lshrrev_b32 v{T0}, 3, v{N}
    v_and_b32 v{T1}, 3, v{N}
    v_mul_u32_u24 v{T1}, 7, v{T1}
    v_lshl_add_u32 v{T1}, v{T0}, 2, v{T1}
    s_mul_i32 s32, s20, 28
    s_add_u32 s32, s32, 1
    v_add_u32 v{T1}, s32, v{T1}
    v_sub_u32 v{T2}, 448, v{T1}
    v_cmp_gt_u32 s[34:35], 2, v{G}
    v_mov_b32 v{TH}, s93
    v_mov_b32 v{TH+1}, s94
    v_cndmask_b32 v{T2}, v{T2}, v{T1}, s[34:35]
    v_cndmask_b32 v{TH}, v{TH+1}, v{TH}, s[34:35]
    v_bfe_u32 v{TH+1}, v{N}, 2, 1
    v_cmp_eq_u32 s[60:61], v{TH}, v{TH+1}
    v_and_b32 v{TH+2}, 1, v{G}
    v_mul_u32_u24 v{TH+2}, {4*PY}, v{TH+2}
    v_add_lshl_u32 v{AD}, v{TH+2}, v{T2}, 2
    v_mov_b32 v{TH+3}, -4
    v_cndmask_b32 v{TH+3}, v{TH+3}, 4, s[34:35]
    v_add_u32 v{AD+1}, v{AD}, v{TH+3}
    v_add_u32 v{AD+2}, v{AD+1}, v{TH+3}
    v_add_u32 v{AD+3}, v{AD+2}, v{TH+3}
    v_cmp_eq_u32 s[50:51], 0, v{T0}
    s_and_b64 s[50:51], s[50:51], s[60:61]
    v_mov_b32 v{TH}, 222
    v_cmp_eq_u32 s[62:63], v{TH}, v{T1}
    s_andn2_b64 s[62:63], s[62:63], s[34:35]
    s_andn2_b64 s[62:63], s[60:61], s[62:63]
    s_mul_i32 s33, s20, {PY*4}
    v_lshlrev_b32 v{B_VY}, 5, v{LANE}
    v_add_u32 v{B_VY}, s33, v{B_VY}""")
    lim_regs(a, C_L, LANE, T0)
    a(f"""s_lshl_b32 s34, s20, 5
    s_add_u32 s34, s34, {LSEL}
    v_lshlrev_b32 v{T1}, 2, v{LANE}
    v_add_u32 v{C_SW}, s34, v{T1}
    v_add_u32 v{C_SR}, {LSEL}, v{T1}
    v_lshrrev_b32 v{C_KA}, 1, v0
    v_lshlrev_b32 v{C_KA}, 6, v{C_KA}
    v_and_b32 v{T0}, 1, v0
    v_lshl_add_u32 v{C_KA}, v{T0}, 4, v{C_KA}
    s_lshl_b32 s34, s20, 6
    s_add_u32 s34, s34, {LSE2}
    v_add_u32 v{C_FW}, s34, v{T1}
    v_lshrrev_b32 v{C_PF}, 3, v{LANE}
    v_and_b32 v{C_FY}, 7, v{LANE}
    v_lshlrev_b32 v{C_FR}, 6, v{C_PF}
    v_lshl_add_u32 v{C_FR}, v{C_FY}, 2, v{C_FR}
    v_add_u32 v{C_FR}, {LSE2}, v{C_FR}
    v_lshlrev_b32 v{C_FY}, 6, v{C_FY}
    v_add_u32 v{C_FY}, {LSE2 + 32}, v{C_FY}
    v_lshlrev_b32 v{C_PF}, 7, v{C_PF}
    s_cmp_ge_u32 s2, 224
    s_cselect_b32 s33, 1024, 0
    s_add_u32 s33, s33, {WS_ROW}
    s_lshl_b32 s27, s2, 6
    s_add_u32 s27, s27, {WS_KEYS}
    s_sub_u32 s32, 2047, s96
    v_lshrrev_b32 v{T0}, 1, v0
    v_and_b32 v{T1}, 7, v{T0}
    v_lshrrev_b32 v{T2}, 6, v{T0}
    v_lshl_or_b32 v{T1}, v{T2}, 3, v{T1}
    v_sub_u32 v{T2}, 64, v{T1}
    v_cmp_eq_u32 vcc, 0, v{T1}
    v_bfe_u32 v{TH}, v{T0}, 3, 1
    v_cndmask_b32 v{T2}, v{T2}, 32, vcc
    v_cmp_eq_u32 vcc, 0, v{TH}
    v_bfe_u32 v{TH}, v{T0}, 4, 2
    v_cndmask_b32 v{T1}, v{T2}, v{T1}, vcc
    v_lshl_add_u32 v{T1}, v{TH}, 9, v{T1}
    v_and_b32 v{T0}, 1, v0
    v_lshl_add_u32 v{T1}, v{T0}, 8, v{T1}
    v_sub_u32 v{C_IX}, 2047, v{T1}
    v_subrev_u32 v{C_IX+1}, 64, v{C_IX}
    v_subrev_u32 v{C_IX+2}, 128, v{C_IX}
    v_subrev_u32 v{C_IX+3}, 192, v{C_IX}""")

def pro2(a):
    XU, WU, S1, S2, S3 = B_XU, B_WU, P_TH, P_TH + 2, P_TH + 4
    unpack8(a, WU, B_WR)
    a(f"""v_pk_add_f32 {v2(S1)}, {v2(WU)}, {v2(WU+2)}
    v_pk_add_f32 {v2(S2)}, {v2(WU+4)}, {v2(WU+6)}
    v_pk_add_f32 {v2(S1)}, {v2(S1)}, {v2(S2)}
    v_add_f32 v{S1}, v{S1}, v{S1+1}
    v_mov_b32 v{S2}, 0
    v_mov_b32 v{S3}, 0""")
    reduce3(a, S1, S2, S3, T0, 58, 39, 39)
    unpack8(a, XU, B_XR)
    for k in (B_S1, B_S1+1, B_S2, B_S2+1, B_S3, B_S3+1): a(f"v_mov_b32 v{k}, 0")

def anyones(a, regs_, t):
    regs_ = list(regs_)
    a(f"v_max_u32 v{t}, v{regs_[0]}, v{regs_[1]}")
    rest = regs_[2:]
    while len(rest) >= 2:
        a(f"v_max3_u32 v{t}, v{t}, v{rest[0]}, v{rest[1]}"); rest = rest[2:]
    if rest: a(f"v_max_u32 v{t}, v{t}, v{rest[0]}")
    a(f"v_cmp_eq_u32 vcc, -1, v{t}")

def wave_sum(a, v, sd):
    for k in (8, 4, 2, 1):
        a(f"v_add_u32_dpp v{v}, v{v}, v{v} row_ror:{k} row_mask:0xf bank_mask:0xf")
    for i in range(4): a(f"v_readlane_b32 s{sd+i}, v{v}, {16*i}")
    a(f"s_add_u32 s{sd}, s{sd}, s{sd+1}\ns_add_u32 s{sd+2}, s{sd+2}, s{sd+3}\ns_add_u32 s{sd}, s{sd}, s{sd+2}")

def publish_row(a):
    a(f"""s_lshl_b32 s34, s96, 11
    s_add_u32 s34, s34, {WS_ROW}
    v_mov_b32 v{T0}, 0
    v_mov_b32 v{T1}, 0
    v_writelane_b32 v{C_LN}, 0, 56
    v_writelane_b32 v{C_OUT}, 0, 56
    s_mov_b32 exec_hi, 0x01ffffff
    v_add3_u32 v{T0}, v{C_LN}, v{C_LN+1}, v{C_LN+2}
    v_add3_u32 v{T1}, v{C_OUT}, v{C_OUT+1}, v{C_OUT+2}
    v_add_u32 v{T0}, v{T0}, v{C_LN+3}
    v_add_u32 v{T1}, v{T1}, v{C_OUT+3}
    s_mov_b32 exec_hi, -1""")
    wave_sum(a, T0, 36)
    a(f"s_sub_u32 s35, s98, s36\nv_writelane_b32 v{C_LN}, s35, 56")
    wave_sum(a, T1, 36)
    a(f"""s_sub_u32 s35, s98, s36
    v_writelane_b32 v{C_OUT}, s35, 56
    s_mov_b32 exec_hi, 0x01ffffff
    buffer_store_dwordx4 {v4(C_LN)}, v{VL}, s[12:15], s34 offen {SC}
    buffer_store_dwordx4 {v4(C_OUT)}, v{VL}, s[12:15], s34 offen offset:1024 {SC}
    s_mov_b32 exec_hi, -1""")

def fetch_row_issue(a, dst):
    a(f"""v_readlane_b32 s34, v{C_K}, s20
    s_andn2_b32 s34, 0x7ff, s34
    s_lshl_b32 s34, s34, 11
    s_add_u32 s34, s34, s33
    s_mov_b32 exec_hi, 0x01ffffff
    buffer_load_dwordx4 {v4(dst)}, v{VL}, s[12:15], s34 offen {SC}
    s_mov_b32 exec_hi, -1""")

def fetch_row_finish(a, dst, ldsaddr):
    _lbl[0] += 1
    L = f"Lrow{_lbl[0]}"
    a(f"""s_mul_i32 s29, s20, {PX}
    s_add_u32 s29, s29, {LXS}
    v_add_u32 v{ldsaddr}, s29, v{VL}
    s_mov_b32 s57, {SPIN}
    {L}:
    v_mov_b32 v{T0}, 0
    s_mov_b32 exec_hi, 0x01ffffff
    s_waitcnt vmcnt(0)
    ds_write_b128 v{ldsaddr}, {v4(dst)}
    v_add3_u32 v{T0}, v{dst}, v{dst+1}, v{dst+2}
    v_add_u32 v{T0}, v{T0}, v{dst+3}
    s_mov_b32 exec_hi, -1""")
    wave_sum(a, T0, 36)
    a(f"""s_cmp_eq_u32 s36, s98
    s_cbranch_scc1 {L}d
    s_mov_b32 exec_hi, 0x01ffffff
    s_waitcnt lgkmcnt(0)
    buffer_load_dwordx4 {v4(dst)}, v{VL}, s[12:15], s34 offen {SC}
    s_mov_b32 exec_hi, -1
    s_sub_u32 s57, s57, 1
    s_cbranch_scc0 {L}""")
    timeout_note(a, _lbl[0])
    a(f"{L}d:")

def gu_dma(a):
    a(f"""s_cmp_ge_u32 s2, 224
    s_cbranch_scc1 Lngu
    s_cmp_eq_u32 s20, 7
    s_cbranch_scc1 Lngu""")
    srd(a, 16, 42, 448*3584)
    a(f"""v_mul_u32_u24 v{T1}, 3584, v0
    s_and_b32 s50, s2, 7
    s_mul_i32 s50, s50, 28
    s_lshr_b32 s51, s2, 3
    s_add_u32 s50, s50, s51
    s_lshl_b32 s26, s50, 4
    s_lshl_b32 s24, s20, 10
    s_add_u32 s24, s24, {LWT}
    s_mov_b32 m0, s24
    s_add_u32 s24, s24, 8192
    buffer_load_dwordx4 v{T1}, s[16:19], s26 offen lds
    s_mov_b32 s16, s44
    s_and_b32 s17, s45, 0xffff
    s_mov_b32 m0, s24
    s_nop 0
    buffer_load_dwordx4 v{T1}, s[16:19], s26 offen lds
    Lngu:""")

def wd_dma(a, j0, j1, L):
    if j0 == j1: return
    a(f"""s_cmp_lt_u32 s2, 224
    s_cbranch_scc1 {L}
    s_and_b32 s50, s2, 7
    s_cmp_eq_u32 s50, 7
    s_cbranch_scc1 {L}
    s_lshl_b32 s50, s50, 7
    s_bfe_u32 s51, s2, 0x20003
    s_lshl_b32 s51, s51, 5
    s_add_u32 s51, s51, s50""")
    srd(a, 16, 46, 1792*896)
    a(f"""v_lshrrev_b32 v{T1}, 1, v{LANE}
    v_mul_u32_u24 v{T1}, 896, v{T1}
    v_and_b32 v{T2}, 1, v{LANE}
    v_lshl_add_u32 v{T1}, v{T2}, 4, v{T1}
    s_mul_i32 s23, s20, {224*896}
    s_add_u32 s23, s23, s51
    s_add_u32 s23, s23, {j0*32*896}
    s_mul_i32 s25, s20, 7168
    s_add_u32 s25, s25, {LWT + j0*1024}""")
    for j in range(j0, j1):
        a(f"s_mov_b32 m0, s25")
        a(f"s_add_u32 s25, s25, 1024")
        a(f"buffer_load_dwordx4 v{T1}, s[16:19], s23 offen lds")
        a(f"s_add_u32 s23, s23, {32*896}")
    a(f"{L}:")

def b_main(a):
    R, AF, ACC, XU, WU, AD, TH = B_R, B_AF, B_ACC, B_XU, B_WU, B_AD, B_TH
    S1, S2, S3 = B_S1, B_S2, B_S3
    if OPT["sl_u0"]: a(f"s_sleep {OPT['sl_u0']}")
    def uld():
        for ks in range(2):
            for i in range(4):
                a(f"buffer_load_dwordx4 {v4(R+16*ks+4*i)}, v{B_VU}, s[12:15], s{28+2*ks+(i>>1)} offen offset:{2048*(i&1)} {SC}")
    a(f"s_mov_b32 s57, {SPIN}")
    uld()
    a("s_waitcnt vmcnt(8)")
    pro2(a)
    a("s_branch Lupw\nLupoll:")
    uld()
    a("Lupw:")
    for ks in range(2):
        a(f"s_waitcnt vmcnt({4-4*ks})")
        b = R + 16*ks
        for i in range(8):
            if ks == 0 and i == 0: a(f"v_add_u32 v{T0}, v{b}, v{b+1}")
            else: a(f"v_add3_u32 v{T0}, v{T0}, v{b+2*i}, v{b+2*i+1}")
        for i in range(4):
            for j in range(i+1, 4):
                a(f"v_swap_b32 v{b+4*i+j}, v{b+4*j+i}")
        for j in range(4):
            c = "0" if ks == 0 else v4(ACC+4*j)
            a(f"v_mfma_f32_16x16x32_f16 {v4(ACC+4*j)}, {v4(AF+4*ks)}, {v4(b+4*j)}, {c}")
            if ks == 1: a(f"v_add_u32_dpp v{T0}, v{T0}, v{T0} row_ror:{8 >> j} row_mask:0xf bank_mask:0xf")
    a(f"""v_cmp_ne_u32 vcc, s99, v{T0}
    s_cmp_eq_u64 vcc, 0
    s_cbranch_scc1 Lupolld
    s_sub_u32 s57, s57, 1
    s_cbranch_scc0 Lupoll""")
    timeout_note(a, 9)
    a("Lupolld:")
    stamp(a, 6)
    if OPT["stamps"] == 3: a(f"s_sub_u32 s{64+2*11}, {SPIN+1}, s57")
    for j in range(4):
        if j != 1: a(f"s_mov_b64 exec, {['s[60:61]', '', 's[62:63]', 's[50:51]'][j]}")
        for r in range(4):
            a(f"ds_write_b32 v{AD+j}, v{ACC+4*j+r} offset:{LY + r*PY*4}")
    a("s_mov_b64 exec, -1")
    gu_dma(a)
    wd_dma(a, 0, OPT['wdsplit'], 'Lnwd0')
    a("""s_mov_b32 exec_hi, 0x00ffffff
    s_waitcnt lgkmcnt(0)
    s_barrier""")
    H = R
    a(f"ds_read_b128 {v4(H)}, v{B_VY} offset:{LY}\nds_read_b128 {v4(H+4)}, v{B_VY} offset:{LY+16}")
    for hf in range(2):
        a(f"s_waitcnt lgkmcnt({1-hf})")
        if hf == 0: a(f"v_writelane_b32 v{H}, 0, 0")
        for p in range(2):
            x = 4*hf + 2*p
            a(f"v_pk_add_f32 {v2(H+x)}, {v2(H+x)}, {v2(XU+x)}")
        for p in range(2):
            x = 4*hf + 2*p
            a(f"v_pk_add_f32 {v2(S1)}, {v2(S1)}, {v2(H+x)}")
            a(f"v_pk_fma_f32 {v2(S2)}, {v2(H+x)}, {v2(H+x)}, {v2(S2)}")
            a(f"v_pk_fma_f32 {v2(S3)}, {v2(H+x)}, {v2(WU+x)}, {v2(S3)}")
    a(f"""s_mov_b32 exec_hi, -1
    v_add_f32 v{S1}, v{S1}, v{S1+1}
    v_add_f32 v{S2}, v{S2}, v{S2+1}
    v_add_f32 v{S3}, v{S3}, v{S3+1}""")
    reduce3(a, S1, S2, S3, T0, 37, 38, 39)
    M, V, SD, RS, C0, KEY = TH, TH+1, TH+2, TH+4, TH+6, C_KEY
    a(f"""v_mov_b32 v{V}, {fl(1.0/448)}
    v_mul_f32 v{M}, s37, v{V}
    v_mul_f32 v{V}, s38, v{V}
    v_mov_b32 v{KEY}, s39
    v_fma_f32 v{V}, -v{M}, v{M}, v{V}
    v_fma_f32 v{KEY}, -v{M}, s58, v{KEY}
    v_max_f32 v{SD}, 0, v{V}
    v_add_f32 v{V}, {fl(1e-5)}, v{SD}""")
    a(f"""v_rsq_f32 v{RS}, v{V}
    s_lshl_b32 s34, s20, 2
    v_mov_b32 v{T2}, s34
    v_mul_f32 v{KEY}, v{KEY}, v{RS}
    v_cvt_pk_bf16_f32 v{KEY}, v{KEY}, v{KEY}
    v_ashrrev_i32 v{T0}, 31, v{KEY}
    v_or_b32 v{T0}, 0x80000000, v{T0}
    v_xor_b32 v{KEY}, v{KEY}, v{T0}
    v_and_b32 v{KEY}, 0xffff0000, v{KEY}
    v_or_b32 v{KEY}, s32, v{KEY}
    ds_write_b32 v{T2}, v{KEY} offset:{LKEY}
    v_mov_b32 v{C_STK}, 0xffff
    v_lshlrev_b32 v{T1}, 2, v{LANE}
    v_mov_b32 v{T2}, {LKEY}
    s_waitcnt lgkmcnt(0)
    s_barrier
    s_cmp_lg_u32 s20, 0
    s_cbranch_scc1 Lnokey
    s_mov_b64 exec, 0xff
    ds_read_b32 v{T0}, v{T1} offset:{LKEY}
    s_waitcnt lgkmcnt(0)
    v_bfi_b32 v{T0}, v{C_STK}, s59, v{T0}
    buffer_store_dword v{T0}, v{T1}, s[12:15], s27 offen {SC}
    s_mov_b64 exec, -1
    Lnokey:
    ds_read_b128 {v4(ACC)}, v{T2}
    ds_read_b128 {v4(ACC+4)}, v{T2} offset:16""")
    stamp(a, 7)
    sd_chain(a, SD, SD)
    a(f"v_rcp_f32 v{RS}, v{SD}\ns_nop 0\nv_mul_f32 v{C0}, -v{M}, v{RS}")
    for p in range(4):
        a(f"v_pk_fma_f32 {v2(XU+2*p)}, {v2(H+2*p)}, {v2(RS)}, {v2(C0)} op_sel_hi:[1,0,0]")
    for p in range(4):
        a(f"v_pk_add_f32 {v2(H+2*p)}, {v2(H+2*p)}, {v2(XU+2*p)}")
    for p in range(4):
        a(f"v_cvt_pk_bf16_f32 v{C_LN+p}, v{XU+2*p}, v{XU+2*p+1}")
        a(f"v_cvt_pk_bf16_f32 v{C_OUT+p}, v{H+2*p}, v{H+2*p+1}")
    a(f"""s_waitcnt lgkmcnt(0)
    v_max3_u32 v{T0}, v{ACC}, v{ACC+1}, v{ACC+2}
    v_max3_u32 v{T1}, v{ACC+3}, v{ACC+4}, v{ACC+5}
    v_max3_u32 v{T0}, v{T0}, v{ACC+6}, v{ACC+7}
    v_max_u32 v{T0}, v{T0}, v{T1}
    v_cmp_eq_u32 s[60:61], v{T0}, v{KEY}
    s_cmp_eq_u64 s[60:61], 0
    s_cbranch_scc1 Lnoeager""")
    publish_row(a)
    a("Lnoeager:")

QP = {1: "quad_perm:[1,0,3,2]", 2: "quad_perm:[2,3,0,1]", 3: "quad_perm:[3,2,1,0]", 7: "row_half_mirror"}
class Net:
    def __init__(s, a, x, t, fill): s.a = a; s.x = x; s.t = t; s.fill = list(fill)
    def f(s, n=1):
        for _ in range(n):
            if s.fill: s.a(s.fill.pop(0))
    def ce(s, m):
        a, x, t = s.a, s.x, s.t
        s.f()
        if m == 4:
            a(f"v_max_u32_dpp v{t}, v{x}, v{x} row_shl:4 row_mask:0xf bank_mask:0x5")
            a(f"v_min_u32_dpp v{t}, v{x}, v{x} row_shr:4 row_mask:0xf bank_mask:0xa")
            s.x, s.t = t, x
        else:
            a(f"v_mov_b32_dpp v{t}, v{x} {QP[m]} row_mask:0xf bank_mask:0xf")
            a(f"v_med3_u32 v{x}, v{x}, v{t}, v{C_L[1 << (m.bit_length()-1)]}")
    def merge(s, last_clean=True):
        a = s.a
        s.f()
        a(f"v_max_u32_dpp v{s.x}, v{s.x}, v{s.x} row_mirror row_mask:0xf bank_mask:0xf")
        for m in (4, 2, 1): s.ce(m)
        for sw in ("v_permlane16_swap_b32", "v_permlane32_swap_b32"):
            a(f"v_mov_b32 v{s.t}, v{s.x}")
            s.f()
            a(f"{sw} v{s.x}, v{s.t}")
            s.f()
            a(f"v_max_u32_dpp v{s.x}, v{s.t}, v{s.x} row_half_mirror row_mask:0xf bank_mask:0xf")
            if last_clean or "16" in sw:
                for m in (4, 2, 1): s.ce(m)
        s.f(99)

def fast_select(a):
    K, X, Y, P, Q = C_K, C_X, C_Y, C_TMP, C_TMP + 1
    a(f"""v_max_u32 v{P}, v{K}, v{K+1}
    v_max_u32 v{Q}, v{K+2}, v{K+3}
    v_max_u32 v{X}, v{P}, v{Q}""")
    fill = [f"v_min_u32 v{Y}, v{P}, v{Q}", f"v_min_u32 v{P}, v{K}, v{K+1}", f"v_min_u32 v{Q}, v{K+2}, v{K+3}",
            f"v_max3_u32 v{Y}, v{Y}, v{P}, v{Q}"]
    fill += [f"v_max_u32_dpp v{Y}, v{Y}, v{Y} row_ror:{k} row_mask:0xf bank_mask:0xf" for k in (8, 4, 2, 1)]
    fill += [f"v_mov_b32 v{P}, v{Y}", f"v_permlane16_swap_b32 v{Y}, v{P}", f"v_max_u32 v{Y}, v{Y}, v{P}",
             f"v_mov_b32 v{P}, v{Y}", f"v_permlane32_swap_b32 v{Y}, v{P}", f"v_max_u32 v{Y}, v{Y}, v{P}",
             "s_mov_b64 vcc, 0x100"]
    n = Net(a, X, C_TMP + 2, fill)
    for m in (1, 3, 1, 7, 2, 1): n.ce(m)
    n.merge()
    a(f"""s_mov_b64 exec, 0x1ff
    v_cndmask_b32 v{P}, v{n.x}, v{Y}, vcc
    ds_write_b32 v{C_FW}, v{P}""")
    if OPT["rowpf"]:
        m8 = (1 << OPT["rowpf"]) - 1; m32 = m8 * 0x01010101
        a(f"""s_mov_b32 exec_lo, {hex(m32)}
        s_mov_b32 exec_hi, {hex(m32)}
        v_bfi_b32 v{Q}, v{n.x}, 0, v{C_TMP+3}
        v_lshl_add_u32 v{Q}, v{Q}, 11, v{C_PF}
        buffer_load_dword v{JUNK}, v{Q}, s[12:15], s33 offen {SC}""")
    a(f"""s_mov_b64 exec, -1
    s_waitcnt lgkmcnt(0)
    s_barrier
    ds_read_b32 v{X}, v{C_FR}
    ds_read_b32 v{Y}, v{C_FY}
    s_waitcnt lgkmcnt(0)""")
    fill = [f"v_max_u32_dpp v{Y}, v{Y}, v{Y} {QP[m]} row_mask:0xf bank_mask:0xf" for m in (1, 2, 7)]
    n = Net(a, X, C_TMP + 2, fill)
    n.merge(last_clean=False)
    a(f"""v_cmp_gt_u32 vcc, v{Y}, v{n.x}
    s_cmp_eq_u64 vcc, 0
    s_cbranch_scc0 Lfullsel
    v_mov_b32 v{K}, v{n.x}
    Lseldone:""")

def c_select(a):
    K = C_K
    a(f"s_mov_b32 s34, {WS_KEYS}\nv_mov_b32 v{C_TMP+3}, 0x7ff")
    def chk():
        a(f"v_xor_b32 v{T0}, v{K}, v{K+1}")
        a(f"v_xor_b32 v{T1}, v{K+2}, v{K+3}")
        a(f"v_xor_b32 v{T2}, s59, v{K}")
        a(f"v_xor_b32 v{C_X}, s59, v{K+2}")
        a(f"v_or3_b32 v{T0}, v{T0}, v{T1}, v{T2}")
        for i in range(4): a(f"v_bfi_b32 v{K+i}, v{C_STK}, v{C_IX+i}, v{K+i}")
        a(f"v_or_b32 v{T0}, v{T0}, v{C_X}")
        a(f"v_cmp_ne_u16 vcc, 0, v{T0}")
    poll(a, lambda: a(f"buffer_load_dwordx4 {v4(K)}, v{C_KA}, s[12:15], s34 offen {SC}"), chk, pre=OPT["sl_k"])
    stamp(a, 8)
    fast_select(a)
    stamp(a, 9)
    a(f"""v_cmp_eq_u32 vcc, v{K}, v{C_KEY}
    s_and_b64 s[62:63], vcc, s[60:61]
    s_cmp_lg_u64 s[62:63], vcc
    s_cbranch_scc0 Lsel_pub""")
    publish_row(a)
    a("Lsel_pub:")
    fetch_row_issue(a, 84)
    a(f"""s_cmp_eq_u64 vcc, 0
    s_cbranch_scc0 Lsel_done
    s_mov_b32 exec_hi, 0x00ffffff
    buffer_store_dwordx4 {v4(C_OUT)}, v{VL}, s[52:55], s97 offen {['', 'sc1', 'nt', 'sc0 sc1'][OPT['ost']]}
    s_mov_b32 exec_hi, -1
    Lsel_done:""")

def c1(a):
    XR = 84; XF_ = 168; ACC = 52; XU = 60; WF = 88
    a(f"""s_cmp_lg_u32 s20, 0
    s_cbranch_scc1 Lc1_now
    v_lshrrev_b32 v{T0}, 2, v{N}
    v_lshl_add_u32 v{T0}, v{G}, 3, v{T0}
    v_lshlrev_b32 v{T0}, 4, v{T0}
    v_and_b32 v{T1}, 1, v{N}
    v_lshl_add_u32 v{T0}, v{T1}, 3, v{T0}
    v_bfe_u32 v{T1}, v{N}, 1, 1
    v_lshl_add_u32 v{T0}, v{T1}, 13, v{T0}
    v_add_u32 v{T0}, {LWT}, v{T0}""")
    for j in range(14):
        for h in range(2):
            a(f"ds_read_b64_tr_b16 {v2(WF+4*j+2*h)}, v{T0} offset:{(32*j+4*h)*16}")
    a(f"""v_and_b32 v{XU+4}, 7, v{N}
    v_mul_u32_u24 v{XU+4}, {PX}, v{XU+4}
    v_lshl_add_u32 v{XU+4}, v{G}, 4, v{XU+4}
    v_lshlrev_b32 v{XU+5}, 4, v{N}
    v_lshl_add_u32 v{XU+5}, v{G}, 3, v{XU+5}
    s_lshl_b32 s22, s50, 7
    s_add_u32 s22, s22, {WS_ACT}
    Lc1_now:""")
    fetch_row_finish(a, XR, T2)
    a(f"""s_waitcnt lgkmcnt(0)
    s_barrier
    s_cmp_lg_u32 s20, 0
    s_cbranch_scc1 Lc1_epoch""")
    stamp(a, 10)
    for j in range(14):
        a(f"ds_read_b128 {v4(XF_+4*j)}, v{XU+4} offset:{LXS+64*j}")
    for j in range(14):
        a(f"s_waitcnt lgkmcnt({13-j})")
        A = ACC + 4*(j & 1)
        a(f"v_mfma_f32_16x16x32_bf16 {v4(A)}, {v4(WF+4*j)}, {v4(XF_+4*j)}, {'0' if j < 2 else v4(A)}")
    for p in range(2):
        a(f"v_pk_add_f32 {v2(ACC+2*p)}, {v2(ACC+2*p)}, {v2(ACC+4+2*p)}")
    for p in range(2): a(f"v_cvt_pk_bf16_f32 v{ACC+4+p}, v{ACC+2*p}, v{ACC+2*p+1}")
    for p in range(2): a(f"v_mov_b32 v{ACC+6+p}, v{ACC+4+p}")
    for p in range(2): a(f"v_permlane32_swap_b32 v{ACC+4+p}, v{ACC+6+p}")
    for p in range(2):
        a(f"v_lshlrev_b32 v{ACC+2*p}, 16, v{ACC+4+p}")
        a(f"v_and_b32 v{ACC+2*p+1}, 0xffff0000, v{ACC+4+p}")
    for r in range(4): a(f"v_mul_f32 v{XU+r}, {fl(-1.4426950408889634)}, v{ACC+r}")
    for r in range(4): a(f"v_exp_f32 v{XU+r}, v{XU+r}")
    for p in range(2):
        a(f"v_lshlrev_b32 v{XR+2*p}, 16, v{ACC+6+p}")
        a(f"v_and_b32 v{XR+2*p+1}, 0xffff0000, v{ACC+6+p}")
    for r in range(4): a(f"v_add_f32 v{XU+r}, 1.0, v{XU+r}")
    for r in range(4): a(f"v_rcp_f32 v{XU+r}, v{XU+r}")
    for r in range(4): a(f"v_mul_f32 v{ACC+r}, v{ACC+r}, v{XU+r}")
    for p in range(2): a(f"v_cvt_pk_bf16_f32 v{ACC+4+p}, v{ACC+2*p}, v{ACC+2*p+1}")
    for p in range(2):
        a(f"v_lshlrev_b32 v{ACC+2*p}, 16, v{ACC+4+p}")
        a(f"v_and_b32 v{ACC+2*p+1}, 0xffff0000, v{ACC+4+p}")
    for p in range(2): a(f"v_pk_mul_f32 {v2(ACC+2*p)}, {v2(ACC+2*p)}, {v2(XR+2*p)}")
    for p in range(2): a(f"v_cvt_pk_bf16_f32 v{XR+p}, v{ACC+2*p}, v{ACC+2*p+1}")
    for p in range(2): a(f"v_min_u32 v{XR+p}, -2, v{XR+p}")
    a(f"""s_mov_b32 exec_lo, 0x00ff00ff
    s_mov_b32 exec_hi, 0
    buffer_store_dwordx2 {v2(XR)}, v{XU+5}, s[12:15], s22 offen {SC}
    s_branch Lend
    Lc1_epoch:
    s_lshl_b32 s29, s2, 3
    s_add_u32 s29, s29, s20
    s_cmp_lg_u32 s29, 1
    s_cbranch_scc1 Lend
    s_mov_b64 exec, 1
    v_mov_b32 v{T0}, s56
    s_mov_b32 s29, {WS_EPOCH}
    buffer_store_dword v{T0}, v{VL}, s[12:15], s29 offen {SC}
    s_branch Lend""")

def c2(a):
    K = C_K
    OA = 8; OR = 10; SG = 12; VA = 13; VO = 14; VW = 15; WF = 88; AF = 116; ACC = 52; RD = 168
    a(f"""s_mul_i32 s24, s20, 7168
    s_add_u32 s24, s24, {LWT}
    v_lshrrev_b32 v{T0}, 2, v{N}
    v_lshl_add_u32 v{T0}, v{G}, 3, v{T0}
    v_lshlrev_b32 v{T0}, 5, v{T0}
    v_and_b32 v{T1}, 3, v{N}
    v_lshl_add_u32 v{T0}, v{T1}, 3, v{T0}
    v_add_u32 v{VW}, s24, v{T0}""")
    for j in range(7):
        for h in range(2):
            a(f"ds_read_b64_tr_b16 {v2(WF+4*j+2*h)}, v{VW} offset:{(32*j+4*h)*32}")
    a(f"""v_and_b32 v{T1}, 7, v{N}
    v_mul_u32_u24 v{VO}, {PX}, v{T1}
    v_lshl_add_u32 v{VO}, v{G}, 3, v{VO}
    v_add_u32 v{VO}, s51, v{VO}
    v_lshlrev_b32 v{VA}, 4, v{T1}
    v_lshl_add_u32 v{VA}, v{G}, 7, v{VA}
    s_mul_i32 s25, s20, {7*512}
    s_add_u32 s25, s25, {WS_ACT}
    v_and_b32 v{OA}, 0x7ff, v{K}
    v_sub_u32 v{OA}, 2047, v{OA}
    v_mul_u32_u24 v{OA}, 896, v{OA}
    v_lshl_add_u32 v{OA}, v{G}, 3, v{OA}
    v_ashrrev_i32 v{T2}, 31, v{K}
    v_not_b32 v{T2}, v{T2}
    v_or_b32 v{T2}, 0x80000000, v{T2}
    v_xor_b32 v{K+1}, v{K}, v{T2}
    v_and_b32 v{K+1}, 0xffff0000, v{K+1}""")
    sigmoid_mul(a, SG, K+1, "1.0", T2)
    rbf(a, SG, SG)
    a(f"""v_lshlrev_b32 v{T1}, 4, v0
    v_add_u32 v{T1}, {LRED}, v{T1}""")
    def lds():
        for j in range(7):
            a(f"buffer_load_dwordx4 {v4(AF+4*j)}, v{VA}, s[12:15], s25 offen offset:{512*j} {SC}")
    if OPT["c2re"]:
        if OPT["sl_a"]: a(f"s_sleep {OPT['sl_a']}")
        lds()
        fetch_row_finish(a, 84, T2)
        anyones(a, range(AF, AF+28), T0)
        a("s_cmp_eq_u64 vcc, 0\ns_cbranch_scc1 Lactok")
        poll(a, lds, lambda: anyones(a, range(AF, AF+28), T0))
        a("Lactok:")
    else:
        fetch_row_finish(a, 84, T2)
        poll(a, lds, lambda: anyones(a, range(AF, AF+28), T0), pre=OPT["sl_a"])
    stamp(a, 10)
    a("s_waitcnt lgkmcnt(0)")
    for j in range(7):
        A = ACC + 4*(j & 1)
        a(f"v_mfma_f32_16x16x32_bf16 {v4(A)}, {v4(WF+4*j)}, {v4(AF+4*j)}, {'0' if j < 2 else v4(A)}")
    for p in range(2):
        a(f"v_pk_add_f32 {v2(ACC+2*p)}, {v2(ACC+2*p)}, {v2(ACC+4+2*p)}")
    a(f"""ds_write_b128 v{T1}, {v4(ACC)}
    s_waitcnt lgkmcnt(0)
    s_barrier
    s_cmp_lg_u32 s20, 0
    s_cbranch_scc1 Lend
    ds_read_b64 {v2(OR)}, v{VO} offset:{LXS}""")
    for w in range(1, 8):
        a(f"ds_read_b128 {v4(RD+4*w)}, v{T1} offset:{1024*w}")
    a("s_waitcnt lgkmcnt(7)")
    for i in range(2):
        a(f"v_lshlrev_b32 v{RD+2*i}, 16, v{OR+i}")
        a(f"v_and_b32 v{RD+2*i+1}, 0xffff0000, v{OR+i}")
    for w in range(1, 8):
        a(f"s_waitcnt lgkmcnt({7-w})")
        for p in range(2):
            a(f"v_pk_add_f32 {v2(ACC+2*p)}, {v2(ACC+2*p)}, {v2(RD+4*w+2*p)}")
    for rnd in range(2):
        for p in range(2): a(f"v_cvt_pk_bf16_f32 v{ACC+4+p}, v{ACC+2*p}, v{ACC+2*p+1}")
        for p in range(2):
            a(f"v_lshlrev_b32 v{ACC+2*p}, 16, v{ACC+4+p}")
            a(f"v_and_b32 v{ACC+2*p+1}, 0xffff0000, v{ACC+4+p}")
        for p in range(2):
            if rnd == 0: a(f"v_pk_mul_f32 {v2(ACC+2*p)}, {v2(ACC+2*p)}, {v2(SG)} op_sel_hi:[1,0]")
            else: a(f"v_pk_add_f32 {v2(ACC+2*p)}, {v2(ACC+2*p)}, {v2(RD+2*p)}")
    for p in range(2): a(f"v_cvt_pk_bf16_f32 v{OR+p}, v{ACC+2*p}, v{ACC+2*p+1}")
    a(f"""s_mov_b32 exec_lo, 0x00ff00ff
    s_mov_b32 exec_hi, 0x00ff00ff
    buffer_store_dwordx2 {v2(OR)}, v{OA}, s[52:55], s51 offen {['', 'sc1', 'nt', 'sc0 sc1'][OPT['ost']]}""")

def clears(a):
    a(f"""v_mov_b32 v{JUNK+2}, -1
    v_lshlrev_b32 v{T1}, 2, v{LANE}
    s_lshl_b32 s24, s2, 7
    s_add_u32 s24, s24, {WS_ACT}
    s_mov_b32 exec_hi, 0
    buffer_store_dword v{JUNK+2}, v{T1}, s[12:15], s24 offen {SC}
    s_mov_b32 exec_lo, 1
    s_lshl_b32 s23, s96, 11
    s_add_u32 s23, s23, {WS_ROW}
    buffer_load_dword v{JUNK}, v{VL}, s[52:55], s97 offen
    buffer_load_dword v{JUNK+1}, v{VL}, s[12:15], s23 offen
    s_mov_b64 exec, -1""")

def prefetch(a, w0=1, T0=T0, T1=T1):
    a(f"""s_and_b32 s24, s2, 7
    s_lshr_b32 s25, s2, 3
    s_mul_i32 s26, s25, {14*3584}
    s_mov_b32 s18, {448*3584}
    s_mov_b32 s19, 0x00020000
    s_cmp_eq_u32 s20, {w0+2}
    s_cbranch_scc1 Lpf_d
    v_lshrrev_b32 v{T0}, 2, v{LANE}
    v_mul_u32_u24 v{T0}, 3584, v{T0}
    v_and_b32 v{T1}, 3, v{LANE}
    v_lshl_add_u32 v{T0}, v{T1}, 7, v{T0}
    s_mul_i32 s24, s24, 448
    s_cmp_eq_u32 s20, {w0}
    s_cselect_b32 s16, s42, s44
    s_cselect_b32 s17, s43, s45
    s_branch Lpf_go
    Lpf_d:
    v_mul_u32_u24 v{T0}, 896, v{LANE}
    s_lshl_b32 s24, s24, 7
    s_mov_b32 s16, s46
    s_mov_b32 s17, s47
    Lpf_go:
    s_and_b32 s17, s17, 0xffff
    s_add_u32 s26, s26, s24
    s_mov_b32 exec_hi, 0x00ffffff
    buffer_load_dword v{JUNK}, v{T0}, s[16:19], s26 offen
    s_mov_b32 exec_hi, -1""")

def kernel(a):
    if OPT["stamps"]:
        for k in range(NST): a(f"s_mov_b32 s{64+2*k}, 0")
    stamp(a, 0)
    a(f"""s_load_dwordx2 s[8:9], s[0:1], 0
    s_cmp_ge_u32 s2, 256
    s_cbranch_scc1 Lexit
    v_lshrrev_b32 v{T0}, 6, v0
    v_and_b32 v{LANE}, 63, v0
    v_readfirstlane_b32 s20, v{T0}
    v_lshlrev_b32 v{VL}, 4, v{LANE}
    s_and_b32 s21, s2, 31
    s_lshr_b32 s22, s2, 5
    s_mov_b32 s10, {XB}
    s_mov_b32 s11, 0x00020000
    s_cmp_lt_u32 s20, 4
    s_cbranch_scc1 Lloader
    s_getpc_b64 s[30:31]
    Lpc:
    v_and_b32 v{T2}, 255, v0
    v_lshlrev_b32 v{JUNK}, 7, v{T2}
    v_mov_b32 v{JUNK+1}, s31
    v_add_co_u32 v{JUNK}, vcc, s30, v{JUNK}
    v_addc_co_u32 v{JUNK+1}, vcc, 0, v{JUNK+1}, vcc
    v_cmp_gt_u32 vcc, (Lexit-Lpc)/128+1, v{T2}
    s_and_saveexec_b64 s[30:31], vcc
    s_cbranch_execz Lcompute
    global_load_dword v{JUNK+2}, v[{JUNK}:{JUNK+1}], off
    s_branch Lcompute
    Lloader:
    v_cmp_lt_u32 vcc, 29, v{LANE}
    s_lshl_b32 s23, s20, 9
    s_add_u32 s23, s23, s21
    s_mul_i32 s23, s23, 896
    s_mul_i32 s24, s20, {16*PH}
    v_add_u32 v{T1}, {32*896 - 480}, v{VL}
    s_mov_b32 s25, {'s22' if OPT['rot'] else '0'}
    v_cndmask_b32 v{T1}, v{VL}, v{T1}, vcc
    s_mov_b32 exec_lo, 0xcfffffff
    s_mov_b32 exec_hi, 0x03ffffff
    s_mov_b32 s28, 0
    s_waitcnt lgkmcnt(0)""")
    stamp(a, 3, True)
    if OPT["dmau"]:
        a("Ldma:")
        for i in range(8):
            a(f"""s_mul_i32 s26, s25, {2*PH}
            s_mul_i32 s27, s25, {64*896}
            s_add_u32 m0, s26, s24
            s_add_u32 s27, s27, s23
            s_add_u32 s25, s25, 1
            buffer_load_dwordx4 v{T1}, s[8:11], s27 offen lds
            s_and_b32 s25, s25, 7""")
        a(f"""s_add_u32 s24, s24, {LXH}
        s_add_u32 s23, s23, 448
        s_add_u32 s28, s28, 1
        s_cmp_lt_u32 s28, 2
        s_cbranch_scc1 Ldma""")
    else:
        a(f"""Ldma:
        s_mul_i32 s26, s25, {2*PH}
        s_mul_i32 s27, s25, {64*896}
        s_add_u32 s26, s26, s24
        s_add_u32 s27, s27, s23
        s_mov_b32 m0, s26
        s_add_u32 s25, s25, 1
        buffer_load_dwordx4 v{T1}, s[8:11], s27 offen lds
        s_and_b32 s25, s25, 7
        s_add_u32 s28, s28, 1
        s_cmp_lg_u32 s28, 8
        s_cbranch_scc1 Ldma1
        s_add_u32 s24, s24, {LXH}
        s_add_u32 s23, s23, 448
        Ldma1:
        s_cmp_lt_u32 s28, 16
        s_cbranch_scc1 Ldma""")
    def ltail():
        a(f"""Lltail:
        s_mov_b64 exec, -1
        s_load_dwordx2 s[6:7], s[0:1], 96
        s_load_dwordx8 s[40:47], s[0:1], 48
        s_load_dwordx2 s[48:49], s[0:1], 80
        v_and_b32 v{N}, 15, v0
        v_bfe_u32 v{G}, v0, 4, 2""")
        stamp(a, 6, True)
        early = OPT["e2a"]
        if early:
            a("s_waitcnt vmcnt(8)")
            stamp(a, 1)
            a("s_barrier")
        a("s_waitcnt lgkmcnt(0)")
        b_setup(a)
        b_loads(a)
        a("s_cmp_lg_u32 s20, 0\ns_cbranch_scc1 Lw123a")
        clears(a)
        if not early:
            a("s_waitcnt vmcnt(14)")
            stamp(a, 1)
            a("s_barrier")
        a("s_waitcnt vmcnt(6)")
        stamp(a, 2)
        a(f"""s_barrier
        v_mov_b32 v{T0}, {LTAG}
        s_waitcnt vmcnt(5)
        ds_write_b32 v{T0}, v{V_EP}
        s_branch Lprol
        Lw123a:""")
        if OPT["pf"] == 3: prefetch(a)
        if not early:
            a(f"s_waitcnt vmcnt(12)")
            stamp(a, 1)
            a("s_barrier")
        a(f"s_waitcnt vmcnt({4 if OPT['pf'] == 3 else 3})")
        stamp(a, 2)
        a(f"s_barrier")
        if OPT["pf"] == 1: prefetch(a)
        a(f"s_waitcnt vmcnt({2 if OPT['pf'] == 4 else 3})")
        a("Lprol:")
        if OPT["wdh"]: wd_dma(a, 0, 7, "Lnwd2")
        if OPT["w64l"]:
            a("s_mov_b32 s3, s20")
            w64(a, AC1)
            for i in range(8): a(f"v_xor_b32 v{AC1+16+i}, 0x80008000, v{AC1+8+i}")
            a(f"s_lshl_b32 s26, s3, 12\ns_add_u32 s26, s26, {LWT}\nv_add_u32 v{T1}, s26, v{VL}")
            for i in range(6): a(f"ds_write_b128 v{T1}, {v4(AC1+4*i)} offset:{[0, 1024, 2048, 3072, 16384, 17408][i]}")
        if not OPT["prolate"]: pro(a)
        stamp(a, 3)
        a("s_waitcnt lgkmcnt(0)\ns_barrier")
        a("s_branch Lpro1" if OPT["prolate"] else "s_branch Lpro2")
    if OPT["layout"]: a("s_branch Lltail")
    else: ltail()
    a(f"""Lcompute:
    s_mov_b64 exec, -1
    s_load_dwordx2 s[6:7], s[0:1], 96
    s_load_dwordx8 s[40:47], s[0:1], 48
    s_load_dwordx2 s[48:49], s[0:1], 80
    v_and_b32 v{N}, 15, v0
    v_bfe_u32 v{G}, v0, 4, 2
    s_and_b32 s3, s20, 3""")
    if OPT["prio"]: a("s_setprio 3")
    stamp(a, 9, True)
    a_pre(a)
    stamp(a, 11, True)
    a("s_waitcnt lgkmcnt(0)")
    b_setup(a)
    stamp(a, 1)
    a("s_barrier")
    stamp(a, 2)
    a_main(a)
    stamp(a, 4)
    if OPT["prio"]: a("s_setprio 0")
    a(f"buffer_load_dwordx4 {v4(B_WR)}, v{VL}, s[16:19], 0 offen")
    a(f"buffer_load_dwordx4 {v4(B_XR)}, v{VL}, s[8:11], s97 offen")
    a("Lpro1:")
    pro(a)
    a("Lpro2:")
    a(f"""v_readfirstlane_b32 s56, v{V_EP}
    s_add_u32 s56, s56, 1
    s_mul_i32 s98, s56, {HASH}
    s_lshl_b32 s99, s98, 6
    s_and_b32 s59, s56, 0xffff
    s_barrier""")
    stamp(a, 5)
    b_main(a)
    if OPT["wdh"]: a("s_cmp_lt_u32 s20, 4\ns_cbranch_scc1 Lnwd1")
    wd_dma(a, OPT['wdsplit'], 7, 'Lnwd1')
    c_select(a)
    a("s_cmp_ge_u32 s2, 224\ns_cbranch_scc1 Lc2")
    c1(a)
    a("Lc2:\ns_and_b32 s50, s2, 7\ns_cmp_eq_u32 s50, 7\ns_cbranch_scc1 Lend\ns_lshl_b32 s50, s50, 7\ns_bfe_u32 s51, s2, 0x20003\ns_lshl_b32 s51, s51, 5\ns_add_u32 s51, s51, s50")
    c2(a)
    a("Lend:")
    dump_stamps(a)
    if OPT["layout"]:
        a("s_endpgm")
        ltail()
    a("Lexit:\ns_endpgm\nLfullsel:")
    select8(a, C_K, C_TMP, C_L, C_SW, C_SR)
    a("s_branch Lseldone")

NAME = "sequential_preLN__spectral_fnet__moe_arch_mod__prompt_kernel"
def build():
    a = Asm()
    kernel(a)
    body = a.finish()
    if OPT["align"]: body = align_pass(body)
    return gen.HDR + f"""; @launch grid=(256,1,1) block=(512,1,1) lds={LDS_TOTAL}
.amdgcn_target "amdgcn-amd-amdhsa--gfx950"
.text
.globl {NAME}
.p2align 8
.type {NAME},@function
{NAME}:
""" + body + f""".section .rodata,"a"
.p2align 6
.amdhsa_kernel {NAME}
  .amdhsa_next_free_vgpr {NVGPR}
  .amdhsa_next_free_sgpr 102
  .amdhsa_accum_offset {NVGPR}
  .amdhsa_group_segment_fixed_size 0
  .amdhsa_kernarg_size 104
  .amdhsa_user_sgpr_count 2
  .amdhsa_user_sgpr_kernarg_segment_ptr 1
  .amdhsa_system_sgpr_workgroup_id_x 1
.end_amdhsa_kernel
"""

if __name__ == "__main__":
    for x in list(sys.argv[1:]):
        if x.startswith("--"):
            k, _, v = x[2:].partition("=")
            assert k in OPT, k
            OPT[k] = int(v) if v else 1
            sys.argv.remove(x)
    open(sys.argv[1], "w").write(build())
```

```python
import sys
from asmlib import Asm, fl, align_pass
import gen
from gen import srd, v4, v2, rbf, sd_chain, reduce3, unpack8, lim_regs, select8, sigmoid_mul

WS_KEYS = 0x200000
WS_EPOCH = 0x208000
WS_ACT = 0x210000
WS_STAMP = 0x3c0000
WS_ROW = 0x400000
WS_SIZE = 0x800000
XB = 1835008
PH = 480; PX = 928; PF = 136; PY = 452
LXH = 64 * PH
LW = 2 * LXH; LCS = LW + 28 * 1024; LTAG = LCS + 256; LF = LCS + 272; LWT = LF + 64 * PF; LDS_TOTAL = LWT + 57344
LY = 0
LSEL = 16384; LSE2 = 16640; LKEY = 17152; LXS = 17408; LRED = 24832
SPIN = 4000000
SC = "sc1"
HASH = "0x9e3779b1"
OPT = dict(stamps=0, cyc=0, align=0, sl_u0=6, sl_k=13, sl_a=0, rowpf=2, barj=5, dbgto=0, ost=0, c2re=1, rot=1, pf=3, wdsplit=0, w64l=0, layout=1, e2a=1, prolate=1, amp=-1, ampw=0, ampb=224, prio=1, wdh=0, cheb=1, ln1emu=1, dmau=1, b1=1)
NST = 14

def stamp(a, k, early=False):
    if OPT["stamps"] == 5:
        if early != 5 and k not in (0, 3, 4, NST - 1): return
    elif OPT["stamps"] == 4:
        if early == 5 or (not early and k not in (0, 1, 2, NST - 1)): return
    elif early: return
    if OPT["stamps"] == 2 and k not in (0, NST - 1): return
    if OPT["stamps"]: a(f"{'s_memtime' if OPT['cyc'] else 's_memrealtime'} s[{64+2*k}:{65+2*k}]")
def dump_stamps(a):
    if OPT["amp"] >= 0:
        k = OPT["amp"]
        a(f"s_memrealtime s[{64+2*(NST-2)}:{65+2*(NST-2)}]")
        a(f"""s_cmp_lg_u32 s2, {OPT['ampb']}
        s_cbranch_scc1 Lampd
        s_cmp_lg_u32 s20, {OPT['ampw']}
        s_cbranch_scc1 Lampd
        s_waitcnt lgkmcnt(0)
        s_sub_u32 s60, s{64+2*k}, s64
        s_mul_i32 s60, s60, 9
        s_add_u32 s60, s60, s{64+2*(NST-2)}
        Lamp:
        s_memrealtime s[62:63]
        s_waitcnt lgkmcnt(0)
        s_sub_u32 s61, s62, s60
        s_cmp_lt_i32 s61, 0
        s_cbranch_scc1 Lamp
        Lampd:""")
        return
    if not OPT["stamps"]: return
    stamp(a, NST - 2)
    a("s_waitcnt vmcnt(0)")
    stamp(a, NST - 1)
    a("s_mov_b64 exec, 1\ns_waitcnt lgkmcnt(0)")
    a(f"s_lshl_b32 s60, s2, 3\ns_add_u32 s60, s60, s20\ns_lshl_b32 s60, s60, 6\ns_add_u32 s60, s60, {WS_STAMP}\nv_mov_b32 v1, 0")
    for k in range(NST):
        a(f"v_mov_b32 v2, s{64+2*k}\nbuffer_store_dword v2, v1, s[12:15], s60 offen offset:{4*k}")

_lbl = [0]
def timeout_note(a, ident):
    if not OPT["dbgto"]: return
    a(f"""s_lshl_b32 s100, s2, 8
    s_add_u32 s100, s100, s20
    s_add_u32 s100, s100, {ident << 24}
    v_mov_b32 v{JUNK+3}, s100
    s_mov_b32 s100, {0x3f0000 + 4*ident}
    s_mov_b64 exec, 1
    buffer_store_dword v{JUNK+3}, v{VL}, s[12:15], s100 offen
    v_mov_b32 v{JUNK+3}, s36
    buffer_store_dword v{JUNK+3}, v{VL}, s[12:15], s100 offen offset:64
    v_mov_b32 v{JUNK+3}, s98
    buffer_store_dword v{JUNK+3}, v{VL}, s[12:15], s100 offen offset:128
    v_mov_b32 v{JUNK+3}, s34
    buffer_store_dword v{JUNK+3}, v{VL}, s[12:15], s100 offen offset:192
    s_mov_b64 exec, -1""")
def poll(a, loads, check, pre=0):
    _lbl[0] += 1
    L = f"Lpoll{_lbl[0]}"
    if pre: a(f"s_sleep {pre}")
    a(f"s_mov_b32 s57, {SPIN}\n{L}:")
    loads()
    a("s_waitcnt vmcnt(0)")
    check()
    a(f"""s_cmp_eq_u64 vcc, 0
    s_cbranch_scc1 {L}d
    s_sub_u32 s57, s57, 1
    s_cbranch_scc0 {L}""")
    timeout_note(a, _lbl[0])
    a(f"{L}d:")

class LdsQ:
    def __init__(s, a): s.a = a; s.q = []
    def read(s, text, b, n=4):
        s.a(text); s.q.append(set(range(b, b + n)))
    def need(s, b, n=4):
        rs = set(range(b, b + n)); last = -1
        for i, d in enumerate(s.q):
            if d & rs: last = i
        if last >= 0:
            s.a(f"s_waitcnt lgkmcnt({len(s.q) - 1 - last})")
            s.q = s.q[last+1:]

LANE, N, G, T0, T1, T2, VL = 1, 2, 3, 4, 5, 6, 7
B_XR = 8; B_WR = 12; V_EP = 16; VFW = 17; VFR = 18; VXR = 19; VCS = 20; VUS = 21; ST = 22
WC = 28; WSN = 36; WNS = 44
AC1 = 52; AC2 = 68; GR = 84; XF = 88; WD = 116
JUNK = 228; SG2 = 232; NVGPR = 236
B_AF = 28; B_AD = 36; B_VY = 40; B_VU = 41; C_L = {1: 42, 2: 43, 4: 44}; C_SW = 45; C_SR = 46; C_KA = 47
C_FW = 48; C_FR = 49; C_FY = 50; C_PF = 51
B_R = 116; B_ACC = 52; B_XU = 68; B_WU = 76; B_S1, B_S2, B_S3 = 88, 90, 92; B_TH = 96; P_TH = 104; P_EPS = 112; P_BASE = 113
C_K = 148; C_TMP = 152; C_KEY = 156; C_X = 157; C_Y = 158; C_OUT = 160; C_LN = 164; C_IX = 224; C_STK = 159

def trig_block(a, n, k0, eps, base, th, want_sin):
    for i in range(n):
        k = k0 + i
        if k == 0: a(f"v_mov_b32 v{th+i}, v{base}")
        else: a(f"v_fmamk_f32 v{th+i}, v{eps}, {fl(float(k))}, v{base}")
    for i in range(n):
        if want_sin: a(f"v_sin_f32 v{th+n+i}, v{th+i}")
        a(f"v_cos_f32 v{th+i}, v{th+i}")

def w64(a, D):
    EPS, BASE, TH, S = ST + 4, ST + 5, XF, ST
    a(f"""v_lshrrev_b32 v{S}, 1, v{N}
    s_lshl_b32 s25, s3, 3
    v_add_u32 v{S}, s25, v{S}
    v_sub_u32 v{S+1}, 64, v{S}
    v_cmp_eq_u32 vcc, 0, v{S}
    v_and_b32 v{S+2}, 1, v{N}
    v_cndmask_b32 v{S+1}, v{S+1}, 32, vcc
    v_cmp_eq_u32 vcc, 0, v{S+2}
    v_lshlrev_b32 v{S+2}, 3, v{G}
    v_cndmask_b32 v{S+1}, v{S+1}, v{S}, vcc
    v_cvt_f32_u32 v{S+2}, v{S+2}
    v_and_b32 v{S}, 1, v{S+1}
    v_cvt_f32_u32 v{S+1}, v{S+1}
    v_mul_u32_u24 v{S}, 0x8000, v{S}
    v_mul_f32 v{EPS}, {fl(1.0/64)}, v{S+1}
    v_lshl_or_b32 v{S}, v{S}, 16, v{S}
    v_mul_f32 v{BASE}, v{S+2}, v{EPS}""")
    if OPT["cheb"]:
        C2 = S + 3; CV = XF; SV = XF + 8
        a(f"""v_cos_f32 v{C2}, v{EPS}
        v_add_f32 v{CV+1}, v{EPS}, v{BASE}
        v_sin_f32 v{SV}, v{BASE}
        v_cos_f32 v{CV}, v{BASE}
        v_sin_f32 v{SV+1}, v{CV+1}
        v_cos_f32 v{CV+1}, v{CV+1}
        v_add_f32 v{C2}, v{C2}, v{C2}""")
        for i in range(2, 8):
            for Vv in (CV, SV): a(f"v_fma_f32 v{Vv+i}, v{C2}, v{Vv+i-1}, -v{Vv+i-2}")
        for i in range(4):
            a(f"v_cvt_pk_f16_f32 v{D+i}, v{CV+2*i}, v{CV+2*i+1}")
            a(f"v_cvt_pk_f16_f32 v{D+8+i}, v{SV+2*i}, v{SV+2*i+1}")
        for i in range(4):
            a(f"v_xor_b32 v{D+4+i}, v{S}, v{D+i}")
            a(f"v_xor_b32 v{D+12+i}, v{S}, v{D+8+i}")
        return
    for ks in range(2):
        for h in range(2):
            trig_block(a, 4, 32*ks + 4*h, EPS, BASE, TH, True)
            for i in range(2):
                a(f"v_cvt_pk_f16_f32 v{D+4*ks+2*h+i}, v{TH+2*i}, v{TH+2*i+1}")
                a(f"v_cvt_pk_f16_f32 v{D+8+4*ks+2*h+i}, v{TH+4+2*i}, v{TH+4+2*i+1}")

def a_pre(a):
    EPS, BASE, TH, ONE, TO, CS = ST + 4, ST + 5, XF, XF + 8, XF + 12, AC1
    a(f"""s_and_b32 s25, s3, 1
    s_lshl_b32 s25, s25, 2
    v_and_b32 v{T0}, 3, v{N}
    v_add_u32 v{T0}, s25, v{T0}
    v_lshrrev_b32 v{T1}, 2, v{N}
    s_mul_i32 s26, s22, 28
    s_add_u32 s26, s26, 1
    v_mad_u32_u24 v{T1}, v{T1}, 7, v{T0}
    v_add_u32 v{T1}, s26, v{T1}
    v_cmp_ne_u32 vcc, 7, v{T0}
    s_lshr_b32 s25, s3, 1
    s_mul_i32 s25, s25, {fl(0.25)}
    v_cndmask_b32 v{T1}, 0, v{T1}, vcc
    v_cvt_f32_u32 v{T1}, v{T1}
    v_mul_f32 v{EPS}, {fl(1.0/448)}, v{T1}
    v_lshlrev_b32 v{T0}, 3, v{G}
    v_cvt_f32_u32 v{T2}, v{T0}
    v_fma_f32 v{BASE}, v{T2}, v{EPS}, s25
    s_mul_i32 s25, s3, {7*1024}
    s_add_u32 s25, s25, {LW}
    v_add_u32 v{T1}, s25, v{VL}""")
    for i in range(4): a(f"v_mov_b32 v{ONE+i}, 0x3f803f80")
    if OPT["cheb"]:
        C2 = ST + 3; V = WD
        a(f"v_cos_f32 v{C2}, v{EPS}")
        for j in range(7):
            for i in range(2):
                k = 32*j + i
                if k == 0: a(f"v_mov_b32 v{V}, v{BASE}")
                else: a(f"v_fmamk_f32 v{V+8*j+i}, v{EPS}, {fl(float(k))}, v{BASE}")
        a(f"v_add_f32 v{C2}, v{C2}, v{C2}")
        for j in range(7):
            for i in range(2): a(f"v_cos_f32 v{V+8*j+i}, v{V+8*j+i}")
        for i in range(2, 8):
            for j in range(7):
                a(f"v_fma_f32 v{V+8*j+i}, v{C2}, v{V+8*j+i-1}, -v{V+8*j+i-2}")
        for j in range(7):
            o = V + 56 + 4*j
            for i in range(4): a(f"v_cvt_pk_bf16_f32 v{o+i}, v{V+8*j+2*i}, v{V+8*j+2*i+1}")
            a(f"ds_write_b128 v{T1}, {v4(o)} offset:{j*1024}")
            a(f"v_mfma_f32_16x16x32_bf16 {v4(CS)}, {v4(o)}, {v4(ONE)}, {'0' if j == 0 else v4(CS)}")
    else:
      for j in range(7):
        trig_block(a, 8, 32*j, EPS, BASE, TH, False)
        o = TO + 4*(j & 1)
        for i in range(4): a(f"v_cvt_pk_bf16_f32 v{o+i}, v{TH+2*i}, v{TH+2*i+1}")
        a(f"ds_write_b128 v{T1}, {v4(o)} offset:{j*1024}")
        a(f"v_mfma_f32_16x16x32_bf16 {v4(CS)}, {v4(o)}, {v4(ONE)}, {'0' if j == 0 else v4(CS)}")
    a(f"""v_lshrrev_b32 v{ST}, 1, v{N}
    s_lshl_b32 s25, s3, 3
    v_add_u32 v{ST}, s25, v{ST}
    v_and_b32 v{ST+2}, 1, v{N}
    v_lshlrev_b32 v{VUS}, 16, v{ST}
    v_lshl_add_u32 v{VUS}, v{ST+2}, 6, v{VUS}
    v_lshl_add_u32 v{VUS}, v{G}, 4, v{VUS}
    s_lshl_b32 s25, s3, 6
    v_lshlrev_b32 v{T0}, 4, v{G}
    v_add_u32 v{VCS}, {LCS}, v{T0}
    v_add_u32 v{T1}, s25, v{VCS}
    v_lshlrev_b32 v{SG2+1}, 31, v{G}
    v_or_b32 v{SG2+1}, 1.0, v{SG2+1}
    v_xor_b32 v{SG2}, 0x80000000, v{SG2+1}
    v_pk_fma_f32 {v2(CS)}, {v2(CS)}, {v2(SG2)}, {v2(CS)}
    v_pk_fma_f32 {v2(CS+2)}, {v2(CS+2)}, {v2(SG2)}, {v2(CS+2)}
    ds_write_b128 v{T1}, {v4(CS)}""")
    if OPT["b1"]:
        a(f"v_add_u32 v{T2}, {LW}, v{VL}\ns_waitcnt lgkmcnt(0)\ns_barrier")
        for f in range(28): a(f"ds_read_b128 {v4(WD+4*f)}, v{T2} offset:{f*1024}")
    if OPT["pf"] == 4:
        a("s_waitcnt lgkmcnt(0)\ns_cmp_eq_u32 s20, 7\ns_cbranch_scc1 Lnpf4")
        prefetch(a, 4, XF, XF + 1)
        a("Lnpf4:")
    if not OPT["w64l"]:
        w64(a, WC)
        for i in range(8): a(f"v_xor_b32 v{WNS+i}, 0x80008000, v{WSN+i}")
    stamp(a, 10, True)
    a(f"v_add_u32 v{T2}, {LW}, v{VL}")
    a(f"""s_lshl_b32 s25, s3, 4
    v_add_u32 v{ST}, s25, v{N}
    v_mul_u32_u24 v{VXR}, {PH}, v{ST}
    v_add_u32 v{VXR}, v{T0}, v{VXR}
    v_mul_u32_u24 v{VFW}, {PF}, v{ST}
    v_lshl_add_u32 v{VFW}, v{G}, 3, v{VFW}
    v_add_u32 v{VFW}, {LF}, v{VFW}
    v_lshrrev_b32 v{ST}, 2, v{N}
    v_lshl_add_u32 v{ST}, v{G}, 3, v{ST}
    v_mul_u32_u24 v{VFR}, {PF}, v{ST}
    v_and_b32 v{ST}, 3, v{N}
    v_lshl_add_u32 v{VFR}, v{ST}, 3, v{VFR}
    v_add_u32 v{VFR}, {LF}, v{VFR}
    s_lshl_b32 s23, s21, 11
    s_lshl_b32 s24, s22, 8
    s_add_u32 s23, s23, s24""")
    for r in range(4):
        a(f"s_mov_b32 s{30+2*r}, {hex(((1<<r)|(1<<(20+r))) & 0xffffffff)}")
        a(f"s_mov_b32 s{31+2*r}, {hex(((1<<(8+r))|(1<<(28+r))) & 0xffffffff)}")
    a("s_mov_b64 s[24:25], 0xffff")

def a_main(a):
    q = LdsQ(a)
    def rdx(j, hf): q.read(f"ds_read_b128 {v4(XF+4*j)}, v{VXR} offset:{64*j + hf*LXH}", XF+4*j)
    def rdw(j):
        for T in range(4): q.read(f"ds_read_b128 {v4(WD+4*(7*T+j))}, v{T2} offset:{(7*T+j)*1024}", WD+4*(7*T+j))
    if OPT["b1"]:
        for j in range(7): rdx(j, 0)
    else:
        for j in range(3): rdx(j, 0); rdw(j)
    BJ = OPT["barj"]
    Q, S, M, RS = ST, ST+1, ST+2, ST+4
    def mf(A, T, j, first): a(f"v_mfma_f32_16x16x32_bf16 {v4(A+4*T)}, {v4(WD+4*(7*T+j))}, {v4(XF+4*j)}, {'0' if first else v4(A+4*T)}")
    def gram(j, first): a(f"v_mfma_f32_16x16x32_bf16 {v4(GR)}, {v4(XF+4*j)}, {v4(XF+4*j)}, {'0' if first else v4(GR)}")
    for j in range(7):
        q.need(XF + 4*j)
        gram(j, j == 0)
        for T in range(4):
            q.need(WD+4*(7*T+j))
            mf(AC1, T, j, j == 0)
        if j + 3 < 7 and not OPT["b1"]: rdx(j + 3, 0); rdw(j + 3)
        if j == BJ:
            stamp(a, 11)
            a("s_barrier")
            for k in range(BJ + 1): rdx(k, 1)
        elif j > BJ: rdx(j, 1)
    CS = WD + 28
    for j in range(7):
        q.need(XF + 4*j)
        gram(j, False)
        mf(AC2, 1, j, j == 0)
    for T in range(4): q.read(f"ds_read_b128 {v4(CS+4*T)}, v{VCS} offset:{64*T}", CS+4*T)
    stats = [None, None, f"v_mov_b32 v{Q}, 0", f"v_mov_b32 v{V_EP}, {LTAG}"]
    stats += [f"v_cndmask_b32 v{Q}, v{Q}, v{GR+r}, s[{30+2*r}:{31+2*r}]" for r in range(4)]
    stats += [f"v_add_f32 v{S}, v{AC1+7}, v{AC2+7}", f"v_cndmask_b32 v{S}, 0, v{S}, s[24:25]", None, None,
              f"v_permlane32_swap_b32 v{Q}, v{S}", f"v_add_f32 v{Q}, v{Q}, v{S}", f"v_mov_b32 v{S}, v{Q}", None, None,
              f"v_permlane16_swap_b32 v{Q}, v{S}", f"v_add_f32 v{Q}, v{Q}, v{S}", f"v_mov_b32 v{S}, v{Q}", None, None,
              f"v_permlane32_swap_b32 v{Q}, v{S}", f"v_mul_f32 v{M}, {fl(-1.0/448)}, v{S}", f"v_mul_f32 v{Q}, {fl(1.0/448)}, v{Q}",
              f"v_fma_f32 v{Q}, -v{M}, v{M}, v{Q}", f"v_max_f32 v{Q}, 0, v{Q}"]
    rb = [f"v_cvt_pk_bf16_f32 v{Q}, v{Q}, v{Q}", f"v_and_b32 v{Q}, 0xffff0000, v{Q}"]
    if OPT["ln1emu"]:
        stats += rb + [f"v_add_f32 v{Q}, {fl(1e-5)}, v{Q}"] + rb + [f"v_sqrt_f32 v{Q}, v{Q}", None] + rb + [f"v_rcp_f32 v{RS}, v{Q}"]
    else:
        stats += [f"v_add_f32 v{Q}, {fl(1e-5)}, v{Q}", f"v_rsq_f32 v{RS}, v{Q}"]
    stats += ["WAITCS", f"v_mul_f32 v{M}, v{M}, v{RS}"]
    stats += [f"v_mul_f32 v{CS+i}, v{CS+i}, v{M}" for i in range(16)]
    for j in range(7):
        for T in (0, 2, 3):
            mf(AC2, T, j, j == 0)
            for _ in range(2):
                if stats:
                    t = stats.pop(0)
                    if t == "WAITCS": q.need(CS, 16)
                    elif t: a(t)
    for p in range(2): a(f"v_pk_fma_f32 {v2(AC1+4+2*p)}, {v2(AC2+4+2*p)}, {v2(SG2)}, {v2(AC1+4+2*p)}")
    for t in stats:
        if t == "WAITCS": q.need(CS, 16)
        elif t: a(t)
    stamp(a, 3)
    for T in (0, 2, 3):
        for p in range(2):
            x = AC1 + 4*T + 2*p
            a(f"v_pk_fma_f32 {v2(x)}, {v2(AC2+4*T+2*p)}, {v2(SG2)}, {v2(x)}")
    for T in (1, 0, 2, 3):
        for p in range(2):
            x = AC1 + 4*T + 2*p
            a(f"v_pk_fma_f32 {v2(x)}, {v2(x)}, {v2(RS)}, {v2(CS+4*T+2*p)} op_sel_hi:[1,0,1]")
    for T in (1, 0, 2, 3):
        for p in range(2):
            x = AC1 + 4*T + 2*p
            a(f"v_cvt_pk_f16_f32 v{AC2+2*T+p}, v{x}, v{x+1}")
        a(f"ds_write_b64 v{VFW}, {v2(AC2+2*T)} offset:{32*T}")
    if OPT["w64l"]: a(f"s_lshl_b32 s26, s3, 12\ns_add_u32 s26, s26, {LWT}\nv_add_u32 v{T1}, s26, v{VL}")
    stamp(a, 5, 5)
    a(f"s_waitcnt lgkmcnt(0)")
    stamp(a, 6, 5)
    a(f"s_barrier")
    stamp(a, 7, 5)
    if OPT["w64l"]:
        for i in (0, 2, 4, 1, 3, 5): a(f"ds_read_b128 {v4(WC+4*i)}, v{T1} offset:{(i % 4 if i < 4 else i - 2 + 2) * 0 + i * 0 + [0, 1024, 2048, 3072, 16384, 17408][i]}")
    FA = WD + 48
    fa = lambda T, ks: FA + (2*T + ks) * 4
    q = LdsQ(a)
    for T in range(2):
        for ks in range(2):
            for TT in (T, T + 2):
                for h in range(2):
                    q.read(f"ds_read_b64_tr_b16 {v2(fa(TT, ks)+2*h)}, v{VFR} offset:{(32*ks+4*h)*PF+32*TT}", fa(TT, ks)+2*h, 2)
    q.read(f"ds_read_b32 v{V_EP}, v{V_EP}", V_EP, 1)
    UR = AC1; UI = AC1 + 8; o = XF
    tagcalc = [f"v_add_u32 v{M}, 1, v{V_EP}", f"s_mov_b32 s98, {HASH}", f"v_mul_lo_u32 v{M}, v{M}, s98"]
    for T in range(2):
        for ks in range(2):
            fr = v4(fa(T, ks)); fi = v4(fa(T + 2, ks))
            q.need(fa(T, ks))
            if T == 0 and ks == 0: stamp(a, 8, 5)
            a(f"v_mfma_f32_16x16x32_f16 {v4(UR+4*T)}, {fr}, {v4(WC+4*ks)}, {'0' if ks == 0 else v4(UR+4*T)}")
            a(f"v_mfma_f32_16x16x32_f16 {v4(UI+4*T)}, {fr}, {v4(WNS+4*ks)}, {'0' if ks == 0 else v4(UI+4*T)}")
            q.need(fa(T + 2, ks))
            a(f"v_mfma_f32_16x16x32_f16 {v4(UR+4*T)}, {fi}, {v4(WSN+4*ks)}, {v4(UR+4*T)}")
            a(f"v_mfma_f32_16x16x32_f16 {v4(UI+4*T)}, {fi}, {v4(WC+4*ks)}, {v4(UI+4*T)}")
            if T == 1 and ks == 1:
                q.need(V_EP, 1)
                for t in tagcalc: a(t)
    stamp(a, 9, 5)
    for r in range(4): a(f"v_cvt_pk_f16_f32 v{o+r}, v{UR+r}, v{UI+r}")
    a(f"buffer_store_dwordx4 {v4(o)}, v{VUS}, s[12:15], s23 offen {SC}")
    stamp(a, 10, 5)
    a(f"v_add3_u32 v{Q}, v{o}, v{o+1}, v{o+2}")
    a(f"v_sub_u32 v{M}, v{M}, v{o+3}")
    a(f"v_sub_u32 v{M}, v{M}, v{Q}")
    for r in range(3): a(f"v_cvt_pk_f16_f32 v{o+4+r}, v{UR+4+r}, v{UI+4+r}")
    a(f"""v_add3_u32 v{Q}, v{o+4}, v{o+5}, v{o+6}
    v_sub_u32 v{o+7}, v{M}, v{Q}
    buffer_store_dwordx4 {v4(o+4)}, v{VUS}, s[12:15], s23 offen offset:128 {SC}""")

def b_ids(a):
    a(f"""s_and_b32 s92, s2, 7
    s_lshr_b32 s93, s2, 6
    s_lshl_b32 s93, s93, 3
    s_or_b32 s92, s92, s93
    s_bfe_u32 s93, s2, 0x10003
    s_bfe_u32 s96, s2, 0x20004
    s_sub_u32 s95, 64, s92
    s_cmp_eq_u32 s92, 0
    s_cselect_b32 s95, 32, s95
    s_cselect_b32 s94, 0, 1
    s_xor_b32 s94, s94, s93
    s_cmp_eq_u32 s93, 0
    s_cselect_b32 s95, s92, s95
    s_lshl_b32 s96, s96, 9
    s_add_u32 s95, s95, s96
    s_lshl_b32 s96, s20, 6
    s_add_u32 s96, s96, s95
    s_mul_i32 s97, s96, 896""")

def b_setup(a):
    srd(a, 12, 6, WS_SIZE)
    srd(a, 52, 48, XB)
    srd(a, 16, 40, 896)
    b_ids(a)

def b_loads(a):
    a(f"""s_mov_b32 s26, {WS_EPOCH}
    v_mov_b32 v{T0}, 0
    buffer_load_dword v{V_EP}, v{T0}, s[12:15], s26 offen {SC}
    buffer_load_dwordx4 {v4(B_WR)}, v{VL}, s[16:19], 0 offen
    buffer_load_dwordx4 {v4(B_XR)}, v{VL}, s[8:11], s97 offen""")

def pro(a):
    EPS, BASE, TH, AF, AD = P_EPS, P_BASE, P_TH, B_AF, B_AD
    a(f"""s_lshl_b32 s28, s92, 16
    s_lshl_b32 s29, s20, 8
    s_add_u32 s28, s28, s29
    s_add_u32 s29, s28, 4096
    s_add_u32 s30, s28, 32768
    s_add_u32 s31, s28, 36864
    v_lshlrev_b32 v{B_VU}, 13, v{G}
    v_lshl_add_u32 v{B_VU}, v{N}, 4, v{B_VU}
    v_and_b32 v{T0}, 7, v{N}
    v_lshlrev_b32 v{T0}, 6, v{T0}
    v_add_u32 v{T0}, s95, v{T0}
    v_cvt_f32_u32 v{T0}, v{T0}
    v_cmp_gt_u32 vcc, 8, v{N}
    v_mul_f32 v{EPS}, {fl(1.0/2048)}, v{T0}
    v_lshlrev_b32 v{T1}, 2, v{G}
    v_cndmask_b32 v{EPS}, -v{EPS}, v{EPS}, vcc
    v_cvt_f32_u32 v{T1}, v{T1}
    v_mul_f32 v{BASE}, v{T1}, v{EPS}""")
    for ks in range(2):
        trig_block(a, 4, 16*ks, EPS, BASE, TH, True)
        for i in range(4):
            a(f"v_cvt_pk_f16_f32 v{AF+4*ks+i}, v{TH+i}, v{TH+4+i}")
    a(f"""v_lshrrev_b32 v{T0}, 3, v{N}
    v_and_b32 v{T1}, 3, v{N}
    v_mul_u32_u24 v{T1}, 7, v{T1}
    v_lshl_add_u32 v{T1}, v{T0}, 2, v{T1}
    s_mul_i32 s32, s20, 28
    s_add_u32 s32, s32, 1
    v_add_u32 v{T1}, s32, v{T1}
    v_sub_u32 v{T2}, 448, v{T1}
    v_cmp_gt_u32 s[34:35], 2, v{G}
    v_mov_b32 v{TH}, s93
    v_mov_b32 v{TH+1}, s94
    v_cndmask_b32 v{T2}, v{T2}, v{T1}, s[34:35]
    v_cndmask_b32 v{TH}, v{TH+1}, v{TH}, s[34:35]
    v_bfe_u32 v{TH+1}, v{N}, 2, 1
    v_cmp_eq_u32 s[60:61], v{TH}, v{TH+1}
    v_and_b32 v{TH+2}, 1, v{G}
    v_mul_u32_u24 v{TH+2}, {4*PY}, v{TH+2}
    v_add_lshl_u32 v{AD}, v{TH+2}, v{T2}, 2
    v_mov_b32 v{TH+3}, -4
    v_cndmask_b32 v{TH+3}, v{TH+3}, 4, s[34:35]
    v_add_u32 v{AD+1}, v{AD}, v{TH+3}
    v_add_u32 v{AD+2}, v{AD+1}, v{TH+3}
    v_add_u32 v{AD+3}, v{AD+2}, v{TH+3}
    v_cmp_eq_u32 s[50:51], 0, v{T0}
    s_and_b64 s[50:51], s[50:51], s[60:61]
    v_mov_b32 v{TH}, 222
    v_cmp_eq_u32 s[62:63], v{TH}, v{T1}
    s_andn2_b64 s[62:63], s[62:63], s[34:35]
    s_andn2_b64 s[62:63], s[60:61], s[62:63]
    s_mul_i32 s33, s20, {PY*4}
    v_lshlrev_b32 v{B_VY}, 5, v{LANE}
    v_add_u32 v{B_VY}, s33, v{B_VY}""")
    lim_regs(a, C_L, LANE, T0)
    a(f"""s_lshl_b32 s34, s20, 5
    s_add_u32 s34, s34, {LSEL}
    v_lshlrev_b32 v{T1}, 2, v{LANE}
    v_add_u32 v{C_SW}, s34, v{T1}
    v_add_u32 v{C_SR}, {LSEL}, v{T1}
    v_lshrrev_b32 v{C_KA}, 1, v0
    v_lshlrev_b32 v{C_KA}, 6, v{C_KA}
    v_and_b32 v{T0}, 1, v0
    v_lshl_add_u32 v{C_KA}, v{T0}, 4, v{C_KA}
    s_lshl_b32 s34, s20, 6
    s_add_u32 s34, s34, {LSE2}
    v_add_u32 v{C_FW}, s34, v{T1}
    v_lshrrev_b32 v{C_PF}, 3, v{LANE}
    v_and_b32 v{C_FY}, 7, v{LANE}
    v_lshlrev_b32 v{C_FR}, 6, v{C_PF}
    v_lshl_add_u32 v{C_FR}, v{C_FY}, 2, v{C_FR}
    v_add_u32 v{C_FR}, {LSE2}, v{C_FR}
    v_lshlrev_b32 v{C_FY}, 6, v{C_FY}
    v_add_u32 v{C_FY}, {LSE2 + 32}, v{C_FY}
    v_lshlrev_b32 v{C_PF}, 7, v{C_PF}
    s_cmp_ge_u32 s2, 224
    s_cselect_b32 s33, 1024, 0
    s_add_u32 s33, s33, {WS_ROW}
    s_lshl_b32 s27, s2, 6
    s_add_u32 s27, s27, {WS_KEYS}
    s_sub_u32 s32, 2047, s96
    v_lshrrev_b32 v{T0}, 1, v0
    v_and_b32 v{T1}, 7, v{T0}
    v_lshrrev_b32 v{T2}, 6, v{T0}
    v_lshl_or_b32 v{T1}, v{T2}, 3, v{T1}
    v_sub_u32 v{T2}, 64, v{T1}
    v_cmp_eq_u32 vcc, 0, v{T1}
    v_bfe_u32 v{TH}, v{T0}, 3, 1
    v_cndmask_b32 v{T2}, v{T2}, 32, vcc
    v_cmp_eq_u32 vcc, 0, v{TH}
    v_bfe_u32 v{TH}, v{T0}, 4, 2
    v_cndmask_b32 v{T1}, v{T2}, v{T1}, vcc
    v_lshl_add_u32 v{T1}, v{TH}, 9, v{T1}
    v_and_b32 v{T0}, 1, v0
    v_lshl_add_u32 v{T1}, v{T0}, 8, v{T1}
    v_sub_u32 v{C_IX}, 2047, v{T1}
    v_subrev_u32 v{C_IX+1}, 64, v{C_IX}
    v_subrev_u32 v{C_IX+2}, 128, v{C_IX}
    v_subrev_u32 v{C_IX+3}, 192, v{C_IX}""")

def pro2(a):
    XU, WU, S1, S2, S3 = B_XU, B_WU, P_TH, P_TH + 2, P_TH + 4
    unpack8(a, WU, B_WR)
    a(f"""v_pk_add_f32 {v2(S1)}, {v2(WU)}, {v2(WU+2)}
    v_pk_add_f32 {v2(S2)}, {v2(WU+4)}, {v2(WU+6)}
    v_pk_add_f32 {v2(S1)}, {v2(S1)}, {v2(S2)}
    v_add_f32 v{S1}, v{S1}, v{S1+1}
    v_mov_b32 v{S2}, 0
    v_mov_b32 v{S3}, 0""")
    reduce3(a, S1, S2, S3, T0, 58, 39, 39)
    unpack8(a, XU, B_XR)
    for k in (B_S1, B_S1+1, B_S2, B_S2+1, B_S3, B_S3+1): a(f"v_mov_b32 v{k}, 0")

def anyones(a, regs_, t):
    regs_ = list(regs_)
    a(f"v_max_u32 v{t}, v{regs_[0]}, v{regs_[1]}")
    rest = regs_[2:]
    while len(rest) >= 2:
        a(f"v_max3_u32 v{t}, v{t}, v{rest[0]}, v{rest[1]}"); rest = rest[2:]
    if rest: a(f"v_max_u32 v{t}, v{t}, v{rest[0]}")
    a(f"v_cmp_eq_u32 vcc, -1, v{t}")

def wave_sum(a, v, sd):
    for k in (8, 4, 2, 1):
        a(f"v_add_u32_dpp v{v}, v{v}, v{v} row_ror:{k} row_mask:0xf bank_mask:0xf")
    for i in range(4): a(f"v_readlane_b32 s{sd+i}, v{v}, {16*i}")
    a(f"s_add_u32 s{sd}, s{sd}, s{sd+1}\ns_add_u32 s{sd+2}, s{sd+2}, s{sd+3}\ns_add_u32 s{sd}, s{sd}, s{sd+2}")

def publish_row(a):
    a(f"""s_lshl_b32 s34, s96, 11
    s_add_u32 s34, s34, {WS_ROW}
    v_mov_b32 v{T0}, 0
    v_mov_b32 v{T1}, 0
    v_writelane_b32 v{C_LN}, 0, 56
    v_writelane_b32 v{C_OUT}, 0, 56
    s_mov_b32 exec_hi, 0x01ffffff
    v_add3_u32 v{T0}, v{C_LN}, v{C_LN+1}, v{C_LN+2}
    v_add3_u32 v{T1}, v{C_OUT}, v{C_OUT+1}, v{C_OUT+2}
    v_add_u32 v{T0}, v{T0}, v{C_LN+3}
    v_add_u32 v{T1}, v{T1}, v{C_OUT+3}
    s_mov_b32 exec_hi, -1""")
    wave_sum(a, T0, 36)
    a(f"s_sub_u32 s35, s98, s36\nv_writelane_b32 v{C_LN}, s35, 56")
    wave_sum(a, T1, 36)
    a(f"""s_sub_u32 s35, s98, s36
    v_writelane_b32 v{C_OUT}, s35, 56
    s_mov_b32 exec_hi, 0x01ffffff
    buffer_store_dwordx4 {v4(C_LN)}, v{VL}, s[12:15], s34 offen {SC}
    buffer_store_dwordx4 {v4(C_OUT)}, v{VL}, s[12:15], s34 offen offset:1024 {SC}
    s_mov_b32 exec_hi, -1""")

def fetch_row_issue(a, dst):
    a(f"""v_readlane_b32 s34, v{C_K}, s20
    s_andn2_b32 s34, 0x7ff, s34
    s_lshl_b32 s34, s34, 11
    s_add_u32 s34, s34, s33
    s_mov_b32 exec_hi, 0x01ffffff
    buffer_load_dwordx4 {v4(dst)}, v{VL}, s[12:15], s34 offen {SC}
    s_mov_b32 exec_hi, -1""")

def fetch_row_finish(a, dst, ldsaddr):
    _lbl[0] += 1
    L = f"Lrow{_lbl[0]}"
    a(f"""s_mul_i32 s29, s20, {PX}
    s_add_u32 s29, s29, {LXS}
    v_add_u32 v{ldsaddr}, s29, v{VL}
    s_mov_b32 s57, {SPIN}
    {L}:
    v_mov_b32 v{T0}, 0
    s_mov_b32 exec_hi, 0x01ffffff
    s_waitcnt vmcnt(0)
    ds_write_b128 v{ldsaddr}, {v4(dst)}
    v_add3_u32 v{T0}, v{dst}, v{dst+1}, v{dst+2}
    v_add_u32 v{T0}, v{T0}, v{dst+3}
    s_mov_b32 exec_hi, -1""")
    wave_sum(a, T0, 36)
    a(f"""s_cmp_eq_u32 s36, s98
    s_cbranch_scc1 {L}d
    s_mov_b32 exec_hi, 0x01ffffff
    s_waitcnt lgkmcnt(0)
    buffer_load_dwordx4 {v4(dst)}, v{VL}, s[12:15], s34 offen {SC}
    s_mov_b32 exec_hi, -1
    s_sub_u32 s57, s57, 1
    s_cbranch_scc0 {L}""")
    timeout_note(a, _lbl[0])
    a(f"{L}d:")

def gu_dma(a):
    a(f"""s_cmp_ge_u32 s2, 224
    s_cbranch_scc1 Lngu
    s_cmp_eq_u32 s20, 7
    s_cbranch_scc1 Lngu""")
    srd(a, 16, 42, 448*3584)
    a(f"""v_mul_u32_u24 v{T1}, 3584, v0
    s_and_b32 s50, s2, 7
    s_mul_i32 s50, s50, 28
    s_lshr_b32 s51, s2, 3
    s_add_u32 s50, s50, s51
    s_lshl_b32 s26, s50, 4
    s_lshl_b32 s24, s20, 10
    s_add_u32 s24, s24, {LWT}
    s_mov_b32 m0, s24
    s_add_u32 s24, s24, 8192
    buffer_load_dwordx4 v{T1}, s[16:19], s26 offen lds
    s_mov_b32 s16, s44
    s_and_b32 s17, s45, 0xffff
    s_mov_b32 m0, s24
    s_nop 0
    buffer_load_dwordx4 v{T1}, s[16:19], s26 offen lds
    Lngu:""")

def wd_dma(a, j0, j1, L):
    if j0 == j1: return
    a(f"""s_cmp_lt_u32 s2, 224
    s_cbranch_scc1 {L}
    s_and_b32 s50, s2, 7
    s_cmp_eq_u32 s50, 7
    s_cbranch_scc1 {L}
    s_lshl_b32 s50, s50, 7
    s_bfe_u32 s51, s2, 0x20003
    s_lshl_b32 s51, s51, 5
    s_add_u32 s51, s51, s50""")
    srd(a, 16, 46, 1792*896)
    a(f"""v_lshrrev_b32 v{T1}, 1, v{LANE}
    v_mul_u32_u24 v{T1}, 896, v{T1}
    v_and_b32 v{T2}, 1, v{LANE}
    v_lshl_add_u32 v{T1}, v{T2}, 4, v{T1}
    s_mul_i32 s23, s20, {224*896}
    s_add_u32 s23, s23, s51
    s_add_u32 s23, s23, {j0*32*896}
    s_mul_i32 s25, s20, 7168
    s_add_u32 s25, s25, {LWT + j0*1024}""")
    for j in range(j0, j1):
        a(f"s_mov_b32 m0, s25")
        a(f"s_add_u32 s25, s25, 1024")
        a(f"buffer_load_dwordx4 v{T1}, s[16:19], s23 offen lds")
        a(f"s_add_u32 s23, s23, {32*896}")
    a(f"{L}:")

def b_main(a):
    R, AF, ACC, XU, WU, AD, TH = B_R, B_AF, B_ACC, B_XU, B_WU, B_AD, B_TH
    S1, S2, S3 = B_S1, B_S2, B_S3
    if OPT["sl_u0"]: a(f"s_sleep {OPT['sl_u0']}")
    def uld():
        for ks in range(2):
            for i in range(4):
                a(f"buffer_load_dwordx4 {v4(R+16*ks+4*i)}, v{B_VU}, s[12:15], s{28+2*ks+(i>>1)} offen offset:{2048*(i&1)} {SC}")
    a(f"s_mov_b32 s57, {SPIN}")
    uld()
    a("s_waitcnt vmcnt(8)")
    pro2(a)
    a("s_branch Lupw\nLupoll:")
    uld()
    a("Lupw:")
    for ks in range(2):
        a(f"s_waitcnt vmcnt({4-4*ks})")
        b = R + 16*ks
        for i in range(8):
            if ks == 0 and i == 0: a(f"v_add_u32 v{T0}, v{b}, v{b+1}")
            else: a(f"v_add3_u32 v{T0}, v{T0}, v{b+2*i}, v{b+2*i+1}")
        for i in range(4):
            for j in range(i+1, 4):
                a(f"v_swap_b32 v{b+4*i+j}, v{b+4*j+i}")
        for j in range(4):
            c = "0" if ks == 0 else v4(ACC+4*j)
            a(f"v_mfma_f32_16x16x32_f16 {v4(ACC+4*j)}, {v4(AF+4*ks)}, {v4(b+4*j)}, {c}")
            if ks == 1: a(f"v_add_u32_dpp v{T0}, v{T0}, v{T0} row_ror:{8 >> j} row_mask:0xf bank_mask:0xf")
    a(f"""v_cmp_ne_u32 vcc, s99, v{T0}
    s_cmp_eq_u64 vcc, 0
    s_cbranch_scc1 Lupolld
    s_sub_u32 s57, s57, 1
    s_cbranch_scc0 Lupoll""")
    timeout_note(a, 9)
    a("Lupolld:")
    stamp(a, 6)
    if OPT["stamps"] == 3: a(f"s_sub_u32 s{64+2*11}, {SPIN+1}, s57")
    for j in range(4):
        if j != 1: a(f"s_mov_b64 exec, {['s[60:61]', '', 's[62:63]', 's[50:51]'][j]}")
        for r in range(4):
            a(f"ds_write_b32 v{AD+j}, v{ACC+4*j+r} offset:{LY + r*PY*4}")
    a("s_mov_b64 exec, -1")
    gu_dma(a)
    wd_dma(a, 0, OPT['wdsplit'], 'Lnwd0')
    a("""s_mov_b32 exec_hi, 0x00ffffff
    s_waitcnt lgkmcnt(0)
    s_barrier""")
    H = R
    a(f"ds_read_b128 {v4(H)}, v{B_VY} offset:{LY}\nds_read_b128 {v4(H+4)}, v{B_VY} offset:{LY+16}")
    for hf in range(2):
        a(f"s_waitcnt lgkmcnt({1-hf})")
        if hf == 0: a(f"v_writelane_b32 v{H}, 0, 0")
        for p in range(2):
            x = 4*hf + 2*p
            a(f"v_pk_add_f32 {v2(H+x)}, {v2(H+x)}, {v2(XU+x)}")
        for p in range(2):
            x = 4*hf + 2*p
            a(f"v_pk_add_f32 {v2(S1)}, {v2(S1)}, {v2(H+x)}")
            a(f"v_pk_fma_f32 {v2(S2)}, {v2(H+x)}, {v2(H+x)}, {v2(S2)}")
            a(f"v_pk_fma_f32 {v2(S3)}, {v2(H+x)}, {v2(WU+x)}, {v2(S3)}")
    a(f"""s_mov_b32 exec_hi, -1
    v_add_f32 v{S1}, v{S1}, v{S1+1}
    v_add_f32 v{S2}, v{S2}, v{S2+1}
    v_add_f32 v{S3}, v{S3}, v{S3+1}""")
    reduce3(a, S1, S2, S3, T0, 37, 38, 39)
    M, V, SD, RS, C0, KEY = TH, TH+1, TH+2, TH+4, TH+6, C_KEY
    a(f"""v_mov_b32 v{V}, {fl(1.0/448)}
    v_mul_f32 v{M}, s37, v{V}
    v_mul_f32 v{V}, s38, v{V}
    v_mov_b32 v{KEY}, s39
    v_fma_f32 v{V}, -v{M}, v{M}, v{V}
    v_fma_f32 v{KEY}, -v{M}, s58, v{KEY}
    v_max_f32 v{SD}, 0, v{V}
    v_add_f32 v{V}, {fl(1e-5)}, v{SD}""")
    a(f"""v_rsq_f32 v{RS}, v{V}
    s_lshl_b32 s34, s20, 2
    v_mov_b32 v{T2}, s34
    v_mul_f32 v{KEY}, v{KEY}, v{RS}
    v_cvt_pk_bf16_f32 v{KEY}, v{KEY}, v{KEY}
    v_ashrrev_i32 v{T0}, 31, v{KEY}
    v_or_b32 v{T0}, 0x80000000, v{T0}
    v_xor_b32 v{KEY}, v{KEY}, v{T0}
    v_and_b32 v{KEY}, 0xffff0000, v{KEY}
    v_or_b32 v{KEY}, s32, v{KEY}
    ds_write_b32 v{T2}, v{KEY} offset:{LKEY}
    v_mov_b32 v{C_STK}, 0xffff
    v_lshlrev_b32 v{T1}, 2, v{LANE}
    v_mov_b32 v{T2}, {LKEY}
    s_waitcnt lgkmcnt(0)
    s_barrier
    s_cmp_lg_u32 s20, 0
    s_cbranch_scc1 Lnokey
    s_mov_b64 exec, 0xff
    ds_read_b32 v{T0}, v{T1} offset:{LKEY}
    s_waitcnt lgkmcnt(0)
    v_bfi_b32 v{T0}, v{C_STK}, s59, v{T0}
    buffer_store_dword v{T0}, v{T1}, s[12:15], s27 offen {SC}
    s_mov_b64 exec, -1
    Lnokey:
    ds_read_b128 {v4(ACC)}, v{T2}
    ds_read_b128 {v4(ACC+4)}, v{T2} offset:16""")
    stamp(a, 7)
    sd_chain(a, SD, SD)
    a(f"v_rcp_f32 v{RS}, v{SD}\ns_nop 0\nv_mul_f32 v{C0}, -v{M}, v{RS}")
    for p in range(4):
        a(f"v_pk_fma_f32 {v2(XU+2*p)}, {v2(H+2*p)}, {v2(RS)}, {v2(C0)} op_sel_hi:[1,0,0]")
    for p in range(4):
        a(f"v_pk_add_f32 {v2(H+2*p)}, {v2(H+2*p)}, {v2(XU+2*p)}")
    for p in range(4):
        a(f"v_cvt_pk_bf16_f32 v{C_LN+p}, v{XU+2*p}, v{XU+2*p+1}")
        a(f"v_cvt_pk_bf16_f32 v{C_OUT+p}, v{H+2*p}, v{H+2*p+1}")
    a(f"""s_waitcnt lgkmcnt(0)
    v_max3_u32 v{T0}, v{ACC}, v{ACC+1}, v{ACC+2}
    v_max3_u32 v{T1}, v{ACC+3}, v{ACC+4}, v{ACC+5}
    v_max3_u32 v{T0}, v{T0}, v{ACC+6}, v{ACC+7}
    v_max_u32 v{T0}, v{T0}, v{T1}
    v_cmp_eq_u32 s[60:61], v{T0}, v{KEY}
    s_cmp_eq_u64 s[60:61], 0
    s_cbranch_scc1 Lnoeager""")
    publish_row(a)
    a("Lnoeager:")

QP = {1: "quad_perm:[1,0,3,2]", 2: "quad_perm:[2,3,0,1]", 3: "quad_perm:[3,2,1,0]", 7: "row_half_mirror"}
class Net:
    def __init__(s, a, x, t, fill): s.a = a; s.x = x; s.t = t; s.fill = list(fill)
    def f(s, n=1):
        for _ in range(n):
            if s.fill: s.a(s.fill.pop(0))
    def ce(s, m):
        a, x, t = s.a, s.x, s.t
        s.f()
        if m == 4:
            a(f"v_max_u32_dpp v{t}, v{x}, v{x} row_shl:4 row_mask:0xf bank_mask:0x5")
            a(f"v_min_u32_dpp v{t}, v{x}, v{x} row_shr:4 row_mask:0xf bank_mask:0xa")
            s.x, s.t = t, x
        else:
            a(f"v_mov_b32_dpp v{t}, v{x} {QP[m]} row_mask:0xf bank_mask:0xf")
            a(f"v_med3_u32 v{x}, v{x}, v{t}, v{C_L[1 << (m.bit_length()-1)]}")
    def merge(s, last_clean=True):
        a = s.a
        s.f()
        a(f"v_max_u32_dpp v{s.x}, v{s.x}, v{s.x} row_mirror row_mask:0xf bank_mask:0xf")
        for m in (4, 2, 1): s.ce(m)
        for sw in ("v_permlane16_swap_b32", "v_permlane32_swap_b32"):
            a(f"v_mov_b32 v{s.t}, v{s.x}")
            s.f()
            a(f"{sw} v{s.x}, v{s.t}")
            s.f()
            a(f"v_max_u32_dpp v{s.x}, v{s.t}, v{s.x} row_half_mirror row_mask:0xf bank_mask:0xf")
            if last_clean or "16" in sw:
                for m in (4, 2, 1): s.ce(m)
        s.f(99)

def fast_select(a):
    K, X, Y, P, Q = C_K, C_X, C_Y, C_TMP, C_TMP + 1
    a(f"""v_max_u32 v{P}, v{K}, v{K+1}
    v_max_u32 v{Q}, v{K+2}, v{K+3}
    v_max_u32 v{X}, v{P}, v{Q}""")
    fill = [f"v_min_u32 v{Y}, v{P}, v{Q}", f"v_min_u32 v{P}, v{K}, v{K+1}", f"v_min_u32 v{Q}, v{K+2}, v{K+3}",
            f"v_max3_u32 v{Y}, v{Y}, v{P}, v{Q}"]
    fill += [f"v_max_u32_dpp v{Y}, v{Y}, v{Y} row_ror:{k} row_mask:0xf bank_mask:0xf" for k in (8, 4, 2, 1)]
    fill += [f"v_mov_b32 v{P}, v{Y}", f"v_permlane16_swap_b32 v{Y}, v{P}", f"v_max_u32 v{Y}, v{Y}, v{P}",
             f"v_mov_b32 v{P}, v{Y}", f"v_permlane32_swap_b32 v{Y}, v{P}", f"v_max_u32 v{Y}, v{Y}, v{P}",
             "s_mov_b64 vcc, 0x100"]
    n = Net(a, X, C_TMP + 2, fill)
    for m in (1, 3, 1, 7, 2, 1): n.ce(m)
    n.merge()
    a(f"""s_mov_b64 exec, 0x1ff
    v_cndmask_b32 v{P}, v{n.x}, v{Y}, vcc
    ds_write_b32 v{C_FW}, v{P}""")
    if OPT["rowpf"]:
        m8 = (1 << OPT["rowpf"]) - 1; m32 = m8 * 0x01010101
        a(f"""s_mov_b32 exec_lo, {hex(m32)}
        s_mov_b32 exec_hi, {hex(m32)}
        v_bfi_b32 v{Q}, v{n.x}, 0, v{C_TMP+3}
        v_lshl_add_u32 v{Q}, v{Q}, 11, v{C_PF}
        buffer_load_dword v{JUNK}, v{Q}, s[12:15], s33 offen {SC}""")
    a(f"""s_mov_b64 exec, -1
    s_waitcnt lgkmcnt(0)
    s_barrier
    ds_read_b32 v{X}, v{C_FR}
    ds_read_b32 v{Y}, v{C_FY}
    s_waitcnt lgkmcnt(0)""")
    fill = [f"v_max_u32_dpp v{Y}, v{Y}, v{Y} {QP[m]} row_mask:0xf bank_mask:0xf" for m in (1, 2, 7)]
    n = Net(a, X, C_TMP + 2, fill)
    n.merge(last_clean=False)
    a(f"""v_cmp_gt_u32 vcc, v{Y}, v{n.x}
    s_cmp_eq_u64 vcc, 0
    s_cbranch_scc0 Lfullsel
    v_mov_b32 v{K}, v{n.x}
    Lseldone:""")

def c_select(a):
    K = C_K
    a(f"s_mov_b32 s34, {WS_KEYS}\nv_mov_b32 v{C_TMP+3}, 0x7ff")
    def chk():
        a(f"v_xor_b32 v{T0}, v{K}, v{K+1}")
        a(f"v_xor_b32 v{T1}, v{K+2}, v{K+3}")
        a(f"v_xor_b32 v{T2}, s59, v{K}")
        a(f"v_xor_b32 v{C_X}, s59, v{K+2}")
        a(f"v_or3_b32 v{T0}, v{T0}, v{T1}, v{T2}")
        for i in range(4): a(f"v_bfi_b32 v{K+i}, v{C_STK}, v{C_IX+i}, v{K+i}")
        a(f"v_or_b32 v{T0}, v{T0}, v{C_X}")
        a(f"v_cmp_ne_u16 vcc, 0, v{T0}")
    poll(a, lambda: a(f"buffer_load_dwordx4 {v4(K)}, v{C_KA}, s[12:15], s34 offen {SC}"), chk, pre=OPT["sl_k"])
    stamp(a, 8)
    fast_select(a)
    stamp(a, 9)
    a(f"""v_cmp_eq_u32 vcc, v{K}, v{C_KEY}
    s_and_b64 s[62:63], vcc, s[60:61]
    s_cmp_lg_u64 s[62:63], vcc
    s_cbranch_scc0 Lsel_pub""")
    publish_row(a)
    a("Lsel_pub:")
    fetch_row_issue(a, 84)
    a(f"""s_cmp_eq_u64 vcc, 0
    s_cbranch_scc0 Lsel_done
    s_mov_b32 exec_hi, 0x00ffffff
    buffer_store_dwordx4 {v4(C_OUT)}, v{VL}, s[52:55], s97 offen {['', 'sc1', 'nt', 'sc0 sc1'][OPT['ost']]}
    s_mov_b32 exec_hi, -1
    Lsel_done:""")

def c1(a):
    XR = 84; XF_ = 168; ACC = 52; XU = 60; WF = 88
    a(f"""s_cmp_lg_u32 s20, 0
    s_cbranch_scc1 Lc1_now
    v_lshrrev_b32 v{T0}, 2, v{N}
    v_lshl_add_u32 v{T0}, v{G}, 3, v{T0}
    v_lshlrev_b32 v{T0}, 4, v{T0}
    v_and_b32 v{T1}, 1, v{N}
    v_lshl_add_u32 v{T0}, v{T1}, 3, v{T0}
    v_bfe_u32 v{T1}, v{N}, 1, 1
    v_lshl_add_u32 v{T0}, v{T1}, 13, v{T0}
    v_add_u32 v{T0}, {LWT}, v{T0}""")
    for j in range(14):
        for h in range(2):
            a(f"ds_read_b64_tr_b16 {v2(WF+4*j+2*h)}, v{T0} offset:{(32*j+4*h)*16}")
    a(f"""v_and_b32 v{XU+4}, 7, v{N}
    v_mul_u32_u24 v{XU+4}, {PX}, v{XU+4}
    v_lshl_add_u32 v{XU+4}, v{G}, 4, v{XU+4}
    v_lshlrev_b32 v{XU+5}, 4, v{N}
    v_lshl_add_u32 v{XU+5}, v{G}, 3, v{XU+5}
    s_lshl_b32 s22, s50, 7
    s_add_u32 s22, s22, {WS_ACT}
    Lc1_now:""")
    fetch_row_finish(a, XR, T2)
    a(f"""s_waitcnt lgkmcnt(0)
    s_barrier
    s_cmp_lg_u32 s20, 0
    s_cbranch_scc1 Lc1_epoch""")
    stamp(a, 10)
    for j in range(14):
        a(f"ds_read_b128 {v4(XF_+4*j)}, v{XU+4} offset:{LXS+64*j}")
    for j in range(14):
        a(f"s_waitcnt lgkmcnt({13-j})")
        A = ACC + 4*(j & 1)
        a(f"v_mfma_f32_16x16x32_bf16 {v4(A)}, {v4(WF+4*j)}, {v4(XF_+4*j)}, {'0' if j < 2 else v4(A)}")
    for p in range(2):
        a(f"v_pk_add_f32 {v2(ACC+2*p)}, {v2(ACC+2*p)}, {v2(ACC+4+2*p)}")
    for p in range(2): a(f"v_cvt_pk_bf16_f32 v{ACC+4+p}, v{ACC+2*p}, v{ACC+2*p+1}")
    for p in range(2): a(f"v_mov_b32 v{ACC+6+p}, v{ACC+4+p}")
    for p in range(2): a(f"v_permlane32_swap_b32 v{ACC+4+p}, v{ACC+6+p}")
    for p in range(2):
        a(f"v_lshlrev_b32 v{ACC+2*p}, 16, v{ACC+4+p}")
        a(f"v_and_b32 v{ACC+2*p+1}, 0xffff0000, v{ACC+4+p}")
    for r in range(4): a(f"v_mul_f32 v{XU+r}, {fl(-1.4426950408889634)}, v{ACC+r}")
    for r in range(4): a(f"v_exp_f32 v{XU+r}, v{XU+r}")
    for p in range(2):
        a(f"v_lshlrev_b32 v{XR+2*p}, 16, v{ACC+6+p}")
        a(f"v_and_b32 v{XR+2*p+1}, 0xffff0000, v{ACC+6+p}")
    for r in range(4): a(f"v_add_f32 v{XU+r}, 1.0, v{XU+r}")
    for r in range(4): a(f"v_rcp_f32 v{XU+r}, v{XU+r}")
    for r in range(4): a(f"v_mul_f32 v{ACC+r}, v{ACC+r}, v{XU+r}")
    for p in range(2): a(f"v_cvt_pk_bf16_f32 v{ACC+4+p}, v{ACC+2*p}, v{ACC+2*p+1}")
    for p in range(2):
        a(f"v_lshlrev_b32 v{ACC+2*p}, 16, v{ACC+4+p}")
        a(f"v_and_b32 v{ACC+2*p+1}, 0xffff0000, v{ACC+4+p}")
    for p in range(2): a(f"v_pk_mul_f32 {v2(ACC+2*p)}, {v2(ACC+2*p)}, {v2(XR+2*p)}")
    for p in range(2): a(f"v_cvt_pk_bf16_f32 v{XR+p}, v{ACC+2*p}, v{ACC+2*p+1}")
    for p in range(2): a(f"v_min_u32 v{XR+p}, -2, v{XR+p}")
    a(f"""s_mov_b32 exec_lo, 0x00ff00ff
    s_mov_b32 exec_hi, 0
    buffer_store_dwordx2 {v2(XR)}, v{XU+5}, s[12:15], s22 offen {SC}
    s_branch Lend
    Lc1_epoch:
    s_lshl_b32 s29, s2, 3
    s_add_u32 s29, s29, s20
    s_cmp_lg_u32 s29, 1
    s_cbranch_scc1 Lend
    s_mov_b64 exec, 1
    v_mov_b32 v{T0}, s56
    s_mov_b32 s29, {WS_EPOCH}
    buffer_store_dword v{T0}, v{VL}, s[12:15], s29 offen {SC}
    s_branch Lend""")

def c2(a):
    K = C_K
    OA = 8; OR = 10; SG = 12; VA = 13; VO = 14; VW = 15; WF = 88; AF = 116; ACC = 52; RD = 168
    a(f"""s_mul_i32 s24, s20, 7168
    s_add_u32 s24, s24, {LWT}
    v_lshrrev_b32 v{T0}, 2, v{N}
    v_lshl_add_u32 v{T0}, v{G}, 3, v{T0}
    v_lshlrev_b32 v{T0}, 5, v{T0}
    v_and_b32 v{T1}, 3, v{N}
    v_lshl_add_u32 v{T0}, v{T1}, 3, v{T0}
    v_add_u32 v{VW}, s24, v{T0}""")
    for j in range(7):
        for h in range(2):
            a(f"ds_read_b64_tr_b16 {v2(WF+4*j+2*h)}, v{VW} offset:{(32*j+4*h)*32}")
    a(f"""v_and_b32 v{T1}, 7, v{N}
    v_mul_u32_u24 v{VO}, {PX}, v{T1}
    v_lshl_add_u32 v{VO}, v{G}, 3, v{VO}
    v_add_u32 v{VO}, s51, v{VO}
    v_lshlrev_b32 v{VA}, 4, v{T1}
    v_lshl_add_u32 v{VA}, v{G}, 7, v{VA}
    s_mul_i32 s25, s20, {7*512}
    s_add_u32 s25, s25, {WS_ACT}
    v_and_b32 v{OA}, 0x7ff, v{K}
    v_sub_u32 v{OA}, 2047, v{OA}
    v_mul_u32_u24 v{OA}, 896, v{OA}
    v_lshl_add_u32 v{OA}, v{G}, 3, v{OA}
    v_ashrrev_i32 v{T2}, 31, v{K}
    v_not_b32 v{T2}, v{T2}
    v_or_b32 v{T2}, 0x80000000, v{T2}
    v_xor_b32 v{K+1}, v{K}, v{T2}
    v_and_b32 v{K+1}, 0xffff0000, v{K+1}""")
    sigmoid_mul(a, SG, K+1, "1.0", T2)
    rbf(a, SG, SG)
    a(f"""v_lshlrev_b32 v{T1}, 4, v0
    v_add_u32 v{T1}, {LRED}, v{T1}""")
    def lds():
        for j in range(7):
            a(f"buffer_load_dwordx4 {v4(AF+4*j)}, v{VA}, s[12:15], s25 offen offset:{512*j} {SC}")
    if OPT["c2re"]:
        if OPT["sl_a"]: a(f"s_sleep {OPT['sl_a']}")
        lds()
        fetch_row_finish(a, 84, T2)
        anyones(a, range(AF, AF+28), T0)
        a("s_cmp_eq_u64 vcc, 0\ns_cbranch_scc1 Lactok")
        poll(a, lds, lambda: anyones(a, range(AF, AF+28), T0))
        a("Lactok:")
    else:
        fetch_row_finish(a, 84, T2)
        poll(a, lds, lambda: anyones(a, range(AF, AF+28), T0), pre=OPT["sl_a"])
    stamp(a, 10)
    a("s_waitcnt lgkmcnt(0)")
    for j in range(7):
        A = ACC + 4*(j & 1)
        a(f"v_mfma_f32_16x16x32_bf16 {v4(A)}, {v4(WF+4*j)}, {v4(AF+4*j)}, {'0' if j < 2 else v4(A)}")
    for p in range(2):
        a(f"v_pk_add_f32 {v2(ACC+2*p)}, {v2(ACC+2*p)}, {v2(ACC+4+2*p)}")
    a(f"""ds_write_b128 v{T1}, {v4(ACC)}
    s_waitcnt lgkmcnt(0)
    s_barrier
    s_cmp_lg_u32 s20, 0
    s_cbranch_scc1 Lend
    ds_read_b64 {v2(OR)}, v{VO} offset:{LXS}""")
    for w in range(1, 8):
        a(f"ds_read_b128 {v4(RD+4*w)}, v{T1} offset:{1024*w}")
    a("s_waitcnt lgkmcnt(7)")
    for i in range(2):
        a(f"v_lshlrev_b32 v{RD+2*i}, 16, v{OR+i}")
        a(f"v_and_b32 v{RD+2*i+1}, 0xffff0000, v{OR+i}")
    for w in range(1, 8):
        a(f"s_waitcnt lgkmcnt({7-w})")
        for p in range(2):
            a(f"v_pk_add_f32 {v2(ACC+2*p)}, {v2(ACC+2*p)}, {v2(RD+4*w+2*p)}")
    for rnd in range(2):
        for p in range(2): a(f"v_cvt_pk_bf16_f32 v{ACC+4+p}, v{ACC+2*p}, v{ACC+2*p+1}")
        for p in range(2):
            a(f"v_lshlrev_b32 v{ACC+2*p}, 16, v{ACC+4+p}")
            a(f"v_and_b32 v{ACC+2*p+1}, 0xffff0000, v{ACC+4+p}")
        for p in range(2):
            if rnd == 0: a(f"v_pk_mul_f32 {v2(ACC+2*p)}, {v2(ACC+2*p)}, {v2(SG)} op_sel_hi:[1,0]")
            else: a(f"v_pk_add_f32 {v2(ACC+2*p)}, {v2(ACC+2*p)}, {v2(RD+2*p)}")
    for p in range(2): a(f"v_cvt_pk_bf16_f32 v{OR+p}, v{ACC+2*p}, v{ACC+2*p+1}")
    a(f"""s_mov_b32 exec_lo, 0x00ff00ff
    s_mov_b32 exec_hi, 0x00ff00ff
    buffer_store_dwordx2 {v2(OR)}, v{OA}, s[52:55], s51 offen {['', 'sc1', 'nt', 'sc0 sc1'][OPT['ost']]}""")

def clears(a):
    a(f"""v_mov_b32 v{JUNK+2}, -1
    v_lshlrev_b32 v{T1}, 2, v{LANE}
    s_lshl_b32 s24, s2, 7
    s_add_u32 s24, s24, {WS_ACT}
    s_mov_b32 exec_hi, 0
    buffer_store_dword v{JUNK+2}, v{T1}, s[12:15], s24 offen {SC}
    s_mov_b32 exec_lo, 1
    s_lshl_b32 s23, s96, 11
    s_add_u32 s23, s23, {WS_ROW}
    buffer_load_dword v{JUNK}, v{VL}, s[52:55], s97 offen
    buffer_load_dword v{JUNK+1}, v{VL}, s[12:15], s23 offen
    s_mov_b64 exec, -1""")

def prefetch(a, w0=1, T0=T0, T1=T1):
    a(f"""s_and_b32 s24, s2, 7
    s_lshr_b32 s25, s2, 3
    s_mul_i32 s26, s25, {14*3584}
    s_mov_b32 s18, {448*3584}
    s_mov_b32 s19, 0x00020000
    s_cmp_eq_u32 s20, {w0+2}
    s_cbranch_scc1 Lpf_d
    v_lshrrev_b32 v{T0}, 2, v{LANE}
    v_mul_u32_u24 v{T0}, 3584, v{T0}
    v_and_b32 v{T1}, 3, v{LANE}
    v_lshl_add_u32 v{T0}, v{T1}, 7, v{T0}
    s_mul_i32 s24, s24, 448
    s_cmp_eq_u32 s20, {w0}
    s_cselect_b32 s16, s42, s44
    s_cselect_b32 s17, s43, s45
    s_branch Lpf_go
    Lpf_d:
    v_mul_u32_u24 v{T0}, 896, v{LANE}
    s_lshl_b32 s24, s24, 7
    s_mov_b32 s16, s46
    s_mov_b32 s17, s47
    Lpf_go:
    s_and_b32 s17, s17, 0xffff
    s_add_u32 s26, s26, s24
    s_mov_b32 exec_hi, 0x00ffffff
    buffer_load_dword v{JUNK}, v{T0}, s[16:19], s26 offen
    s_mov_b32 exec_hi, -1""")

def kernel(a):
    if OPT["stamps"]:
        for k in range(NST): a(f"s_mov_b32 s{64+2*k}, 0")
    stamp(a, 0)
    a(f"""s_load_dwordx2 s[8:9], s[0:1], 0
    s_cmp_ge_u32 s2, 256
    s_cbranch_scc1 Lexit
    v_lshrrev_b32 v{T0}, 6, v0
    v_and_b32 v{LANE}, 63, v0
    v_readfirstlane_b32 s20, v{T0}
    v_lshlrev_b32 v{VL}, 4, v{LANE}
    s_and_b32 s21, s2, 31
    s_lshr_b32 s22, s2, 5
    s_mov_b32 s10, {XB}
    s_mov_b32 s11, 0x00020000
    s_cmp_lt_u32 s20, 4
    s_cbranch_scc1 Lloader
    s_getpc_b64 s[30:31]
    Lpc:
    v_and_b32 v{T2}, 255, v0
    v_lshlrev_b32 v{JUNK}, 7, v{T2}
    v_mov_b32 v{JUNK+1}, s31
    v_add_co_u32 v{JUNK}, vcc, s30, v{JUNK}
    v_addc_co_u32 v{JUNK+1}, vcc, 0, v{JUNK+1}, vcc
    v_cmp_gt_u32 vcc, (Lexit-Lpc)/128+1, v{T2}
    s_and_saveexec_b64 s[30:31], vcc
    s_cbranch_execz Lcompute
    global_load_dword v{JUNK+2}, v[{JUNK}:{JUNK+1}], off
    s_branch Lcompute
    Lloader:
    v_cmp_lt_u32 vcc, 29, v{LANE}
    s_lshl_b32 s23, s20, 9
    s_add_u32 s23, s23, s21
    s_mul_i32 s23, s23, 896
    s_mul_i32 s24, s20, {16*PH}
    v_add_u32 v{T1}, {32*896 - 480}, v{VL}
    s_mov_b32 s25, {'s22' if OPT['rot'] else '0'}
    v_cndmask_b32 v{T1}, v{VL}, v{T1}, vcc
    s_mov_b32 exec_lo, 0xcfffffff
    s_mov_b32 exec_hi, 0x03ffffff
    s_mov_b32 s28, 0
    s_waitcnt lgkmcnt(0)""")
    stamp(a, 3, True)
    if OPT["dmau"]:
        a("Ldma:")
        for i in range(8):
            a(f"""s_mul_i32 s26, s25, {2*PH}
            s_mul_i32 s27, s25, {64*896}
            s_add_u32 m0, s26, s24
            s_add_u32 s27, s27, s23
            s_add_u32 s25, s25, 1
            buffer_load_dwordx4 v{T1}, s[8:11], s27 offen lds
            s_and_b32 s25, s25, 7""")
        a(f"""s_add_u32 s24, s24, {LXH}
        s_add_u32 s23, s23, 448
        s_add_u32 s28, s28, 1
        s_cmp_lt_u32 s28, 2""")
        if OPT["b1"]: a("s_cbranch_scc0 Ldmad\ns_barrier\ns_branch Ldma\nLdmad:")
        else: a("s_cbranch_scc1 Ldma")
    else:
        a(f"""Ldma:
        s_mul_i32 s26, s25, {2*PH}
        s_mul_i32 s27, s25, {64*896}
        s_add_u32 s26, s26, s24
        s_add_u32 s27, s27, s23
        s_mov_b32 m0, s26
        s_add_u32 s25, s25, 1
        buffer_load_dwordx4 v{T1}, s[8:11], s27 offen lds
        s_and_b32 s25, s25, 7
        s_add_u32 s28, s28, 1
        s_cmp_lg_u32 s28, 8
        s_cbranch_scc1 Ldma1
        s_add_u32 s24, s24, {LXH}
        s_add_u32 s23, s23, 448
        Ldma1:
        s_cmp_lt_u32 s28, 16
        s_cbranch_scc1 Ldma""")
    def ltail():
        a(f"""Lltail:
        s_mov_b64 exec, -1
        s_load_dwordx2 s[6:7], s[0:1], 96
        s_load_dwordx8 s[40:47], s[0:1], 48
        s_load_dwordx2 s[48:49], s[0:1], 80
        v_and_b32 v{N}, 15, v0
        v_bfe_u32 v{G}, v0, 4, 2""")
        stamp(a, 6, True)
        early = OPT["e2a"]
        if early:
            a("s_waitcnt vmcnt(8)")
            stamp(a, 1)
            a("s_barrier")
        a("s_waitcnt lgkmcnt(0)")
        b_setup(a)
        b_loads(a)
        a("s_cmp_lg_u32 s20, 0\ns_cbranch_scc1 Lw123a")
        clears(a)
        if not early:
            a("s_waitcnt vmcnt(14)")
            stamp(a, 1)
            a("s_barrier")
        a("s_waitcnt vmcnt(6)")
        stamp(a, 2)
        a(f"""s_barrier
        v_mov_b32 v{T0}, {LTAG}
        s_waitcnt vmcnt(5)
        ds_write_b32 v{T0}, v{V_EP}
        s_branch Lprol
        Lw123a:""")
        if OPT["pf"] == 3: prefetch(a)
        if not early:
            a(f"s_waitcnt vmcnt(12)")
            stamp(a, 1)
            a("s_barrier")
        a(f"s_waitcnt vmcnt({4 if OPT['pf'] == 3 else 3})")
        stamp(a, 2)
        a(f"s_barrier")
        if OPT["pf"] == 1: prefetch(a)
        a(f"s_waitcnt vmcnt({2 if OPT['pf'] == 4 else 3})")
        a("Lprol:")
        if OPT["wdh"]: wd_dma(a, 0, 7, "Lnwd2")
        if OPT["w64l"]:
            a("s_mov_b32 s3, s20")
            w64(a, AC1)
            for i in range(8): a(f"v_xor_b32 v{AC1+16+i}, 0x80008000, v{AC1+8+i}")
            a(f"s_lshl_b32 s26, s3, 12\ns_add_u32 s26, s26, {LWT}\nv_add_u32 v{T1}, s26, v{VL}")
            for i in range(6): a(f"ds_write_b128 v{T1}, {v4(AC1+4*i)} offset:{[0, 1024, 2048, 3072, 16384, 17408][i]}")
        if not OPT["prolate"]: pro(a)
        stamp(a, 3)
        a("s_waitcnt lgkmcnt(0)\ns_barrier")
        a("s_branch Lpro1" if OPT["prolate"] else "s_branch Lpro2")
    if OPT["layout"]: a("s_branch Lltail")
    else: ltail()
    a(f"""Lcompute:
    s_mov_b64 exec, -1
    s_load_dwordx2 s[6:7], s[0:1], 96
    s_load_dwordx8 s[40:47], s[0:1], 48
    s_load_dwordx2 s[48:49], s[0:1], 80
    v_and_b32 v{N}, 15, v0
    v_bfe_u32 v{G}, v0, 4, 2
    s_and_b32 s3, s20, 3""")
    if OPT["prio"]: a("s_setprio 3")
    stamp(a, 9, True)
    a_pre(a)
    stamp(a, 11, True)
    a("s_waitcnt lgkmcnt(0)")
    b_setup(a)
    stamp(a, 1)
    a("s_barrier")
    stamp(a, 2)
    a_main(a)
    stamp(a, 4)
    if OPT["prio"]: a("s_setprio 0")
    a(f"buffer_load_dwordx4 {v4(B_WR)}, v{VL}, s[16:19], 0 offen")
    a(f"buffer_load_dwordx4 {v4(B_XR)}, v{VL}, s[8:11], s97 offen")
    a("Lpro1:")
    pro(a)
    a("Lpro2:")
    a(f"""v_readfirstlane_b32 s56, v{V_EP}
    s_add_u32 s56, s56, 1
    s_mul_i32 s98, s56, {HASH}
    s_lshl_b32 s99, s98, 6
    s_and_b32 s59, s56, 0xffff
    s_barrier""")
    stamp(a, 5)
    b_main(a)
    if OPT["wdh"]: a("s_cmp_lt_u32 s20, 4\ns_cbranch_scc1 Lnwd1")
    wd_dma(a, OPT['wdsplit'], 7, 'Lnwd1')
    c_select(a)
    a("s_cmp_ge_u32 s2, 224\ns_cbranch_scc1 Lc2")
    c1(a)
    a("Lc2:\ns_and_b32 s50, s2, 7\ns_cmp_eq_u32 s50, 7\ns_cbranch_scc1 Lend\ns_lshl_b32 s50, s50, 7\ns_bfe_u32 s51, s2, 0x20003\ns_lshl_b32 s51, s51, 5\ns_add_u32 s51, s51, s50")
    c2(a)
    a("Lend:")
    dump_stamps(a)
    if OPT["layout"]:
        a("s_endpgm")
        ltail()
    a("Lexit:\ns_endpgm\nLfullsel:")
    select8(a, C_K, C_TMP, C_L, C_SW, C_SR)
    a("s_branch Lseldone")

NAME = "sequential_preLN__spectral_fnet__moe_arch_mod__prompt_kernel"
def build():
    a = Asm()
    kernel(a)
    body = a.finish()
    if OPT["align"]: body = align_pass(body)
    return gen.HDR + f"""; @launch grid=(256,1,1) block=(512,1,1) lds={LDS_TOTAL}
.amdgcn_target "amdgcn-amd-amdhsa--gfx950"
.text
.globl {NAME}
.p2align 8
.type {NAME},@function
{NAME}:
""" + body + f""".section .rodata,"a"
.p2align 6
.amdhsa_kernel {NAME}
  .amdhsa_next_free_vgpr {NVGPR}
  .amdhsa_next_free_sgpr 102
  .amdhsa_accum_offset {NVGPR}
  .amdhsa_group_segment_fixed_size 0
  .amdhsa_kernarg_size 104
  .amdhsa_user_sgpr_count 2
  .amdhsa_user_sgpr_kernarg_segment_ptr 1
  .amdhsa_system_sgpr_workgroup_id_x 1
.end_amdhsa_kernel
"""

if __name__ == "__main__":
    for x in list(sys.argv[1:]):
        if x.startswith("--"):
            k, _, v = x[2:].partition("=")
            assert k in OPT, k
            OPT[k] = int(v) if v else 1
            sys.argv.remove(x)
    open(sys.argv[1], "w").write(build())
```

```python
import sys
from asmlib import Asm, fl, align_pass
import gen
from gen import srd, v4, v2, rbf, sd_chain, reduce3, unpack8, lim_regs, select8, sigmoid_mul

WS_KEYS = 0x200000
WS_EPOCH = 0x208000
WS_ACT = 0x210000
WS_STAMP = 0x3c0000
WS_ROW = 0x400000
WS_SIZE = 0x800000
XB = 1835008
PH = 480; PX = 928; PF = 136; PY = 452
LXH = 64 * PH
LW = 2 * LXH; LCS = LW + 28 * 1024; LTAG = LCS + 256; LF = LCS + 272; LWT = LF + 64 * PF; LDS_TOTAL = LWT + 57344
LY = 0
LSEL = 16384; LSE2 = 16640; LKEY = 17152; LXS = 17408; LRED = 24832
SPIN = 4000000
SC = "sc1"
HASH = "0x9e3779b1"
OPT = dict(stamps=0, cyc=0, align=0, sl_u0=6, sl_k=13, sl_a=0, rowpf=2, barj=5, dbgto=0, ost=0, c2re=1, rot=1, pf=3, wdsplit=0, w64l=0, layout=1, e2a=1, prolate=1, amp=-1, ampw=0, ampb=224, prio=1, wdh=0, cheb=1, ln1emu=1, dmau=1, b1=0, part=1, sl_r=4)
NST = 14

def stamp(a, k, early=False):
    if OPT["stamps"] == 5:
        if early != 5 and k not in (0, 3, 4, NST - 1): return
    elif OPT["stamps"] == 4:
        if early == 5 or (not early and k not in (0, 1, 2, NST - 1)): return
    elif early: return
    if OPT["stamps"] == 2 and k not in (0, NST - 1): return
    if OPT["stamps"]: a(f"{'s_memtime' if OPT['cyc'] else 's_memrealtime'} s[{64+2*k}:{65+2*k}]")
def dump_stamps(a):
    if OPT["amp"] >= 0:
        k = OPT["amp"]
        a(f"s_memrealtime s[{64+2*(NST-2)}:{65+2*(NST-2)}]")
        a(f"""s_cmp_lg_u32 s2, {OPT['ampb']}
        s_cbranch_scc1 Lampd
        s_cmp_lg_u32 s20, {OPT['ampw']}
        s_cbranch_scc1 Lampd
        s_waitcnt lgkmcnt(0)
        s_sub_u32 s60, s{64+2*k}, s64
        s_mul_i32 s60, s60, 9
        s_add_u32 s60, s60, s{64+2*(NST-2)}
        Lamp:
        s_memrealtime s[62:63]
        s_waitcnt lgkmcnt(0)
        s_sub_u32 s61, s62, s60
        s_cmp_lt_i32 s61, 0
        s_cbranch_scc1 Lamp
        Lampd:""")
        return
    if not OPT["stamps"]: return
    stamp(a, NST - 2)
    a("s_waitcnt vmcnt(0)")
    stamp(a, NST - 1)
    a("s_mov_b64 exec, 1\ns_waitcnt lgkmcnt(0)")
    a(f"s_lshl_b32 s60, s2, 3\ns_add_u32 s60, s60, s20\ns_lshl_b32 s60, s60, 6\ns_add_u32 s60, s60, {WS_STAMP}\nv_mov_b32 v1, 0")
    for k in range(NST):
        a(f"v_mov_b32 v2, s{64+2*k}\nbuffer_store_dword v2, v1, s[12:15], s60 offen offset:{4*k}")

_lbl = [0]
TAIL = []
def timeout_note(a, ident):
    if not OPT["dbgto"]: return
    a(f"""s_lshl_b32 s100, s2, 8
    s_add_u32 s100, s100, s20
    s_add_u32 s100, s100, {ident << 24}
    v_mov_b32 v{JUNK+3}, s100
    s_mov_b32 s100, {0x3f0000 + 4*ident}
    s_mov_b64 exec, 1
    buffer_store_dword v{JUNK+3}, v{VL}, s[12:15], s100 offen
    v_mov_b32 v{JUNK+3}, s36
    buffer_store_dword v{JUNK+3}, v{VL}, s[12:15], s100 offen offset:64
    v_mov_b32 v{JUNK+3}, s98
    buffer_store_dword v{JUNK+3}, v{VL}, s[12:15], s100 offen offset:128
    v_mov_b32 v{JUNK+3}, s34
    buffer_store_dword v{JUNK+3}, v{VL}, s[12:15], s100 offen offset:192
    s_mov_b64 exec, -1""")
def poll(a, loads, check, pre=0):
    _lbl[0] += 1
    L = f"Lpoll{_lbl[0]}"
    if pre: a(f"s_sleep {pre}")
    a(f"s_mov_b32 s57, {SPIN}\n{L}:")
    loads()
    a("s_waitcnt vmcnt(0)")
    check()
    a(f"""s_cmp_eq_u64 vcc, 0
    s_cbranch_scc1 {L}d
    s_sub_u32 s57, s57, 1
    s_cbranch_scc0 {L}""")
    timeout_note(a, _lbl[0])
    a(f"{L}d:")

class LdsQ:
    def __init__(s, a): s.a = a; s.q = []
    def read(s, text, b, n=4):
        s.a(text); s.q.append(set(range(b, b + n)))
    def need(s, b, n=4):
        rs = set(range(b, b + n)); last = -1
        for i, d in enumerate(s.q):
            if d & rs: last = i
        if last >= 0:
            s.a(f"s_waitcnt lgkmcnt({len(s.q) - 1 - last})")
            s.q = s.q[last+1:]

LANE, N, G, T0, T1, T2, VL = 1, 2, 3, 4, 5, 6, 7
B_XR = 8; B_WR = 12; V_EP = 16; VFW = 17; VFR = 18; VXR = 19; VCS = 20; VUS = 21; ST = 22
WC = 28; WSN = 36; WNS = 44
AC1 = 52; AC2 = 68; GR = 84; XF = 88; WD = 116
JUNK = 228; SG2 = 232; NVGPR = 236
B_AF = 28; B_AD = 36; B_VY = 40; B_VU = 41; C_L = {1: 42, 2: 43, 4: 44}; C_SW = 45; C_SR = 46; C_KA = 47
C_FW = 48; C_FR = 49; C_FY = 50; C_PF = 51
B_R = 116; B_ACC = 52; B_XU = 68; B_WU = 76; B_S1, B_S2, B_S3 = 88, 90, 92; B_TH = 96; P_TH = 104; P_EPS = 112; P_BASE = 113
C_K = 148; C_TMP = 152; C_KEY = 156; C_X = 157; C_Y = 158; C_OUT = 160; C_LN = 164; C_IX = 224; C_STK = 159

def trig_block(a, n, k0, eps, base, th, want_sin):
    for i in range(n):
        k = k0 + i
        if k == 0: a(f"v_mov_b32 v{th+i}, v{base}")
        else: a(f"v_fmamk_f32 v{th+i}, v{eps}, {fl(float(k))}, v{base}")
    for i in range(n):
        if want_sin: a(f"v_sin_f32 v{th+n+i}, v{th+i}")
        a(f"v_cos_f32 v{th+i}, v{th+i}")

def w64(a, D):
    EPS, BASE, TH, S = ST + 4, ST + 5, XF, ST
    a(f"""v_lshrrev_b32 v{S}, 1, v{N}
    s_lshl_b32 s25, s3, 3
    v_add_u32 v{S}, s25, v{S}
    v_sub_u32 v{S+1}, 64, v{S}
    v_cmp_eq_u32 vcc, 0, v{S}
    v_and_b32 v{S+2}, 1, v{N}
    v_cndmask_b32 v{S+1}, v{S+1}, 32, vcc
    v_cmp_eq_u32 vcc, 0, v{S+2}
    v_lshlrev_b32 v{S+2}, 3, v{G}
    v_cndmask_b32 v{S+1}, v{S+1}, v{S}, vcc
    v_cvt_f32_u32 v{S+2}, v{S+2}
    v_and_b32 v{S}, 1, v{S+1}
    v_cvt_f32_u32 v{S+1}, v{S+1}
    v_mul_u32_u24 v{S}, 0x8000, v{S}
    v_mul_f32 v{EPS}, {fl(1.0/64)}, v{S+1}
    v_lshl_or_b32 v{S}, v{S}, 16, v{S}
    v_mul_f32 v{BASE}, v{S+2}, v{EPS}""")
    if OPT["cheb"]:
        C2 = S + 3; CV = XF; SV = XF + 8
        a(f"""v_cos_f32 v{C2}, v{EPS}
        v_add_f32 v{CV+1}, v{EPS}, v{BASE}
        v_sin_f32 v{SV}, v{BASE}
        v_cos_f32 v{CV}, v{BASE}
        v_sin_f32 v{SV+1}, v{CV+1}
        v_cos_f32 v{CV+1}, v{CV+1}
        v_add_f32 v{C2}, v{C2}, v{C2}""")
        for i in range(2, 8):
            for Vv in (CV, SV): a(f"v_fma_f32 v{Vv+i}, v{C2}, v{Vv+i-1}, -v{Vv+i-2}")
        for i in range(4):
            a(f"v_cvt_pk_f16_f32 v{D+i}, v{CV+2*i}, v{CV+2*i+1}")
            a(f"v_cvt_pk_f16_f32 v{D+8+i}, v{SV+2*i}, v{SV+2*i+1}")
        for i in range(4):
            a(f"v_xor_b32 v{D+4+i}, v{S}, v{D+i}")
            a(f"v_xor_b32 v{D+12+i}, v{S}, v{D+8+i}")
        return
    for ks in range(2):
        for h in range(2):
            trig_block(a, 4, 32*ks + 4*h, EPS, BASE, TH, True)
            for i in range(2):
                a(f"v_cvt_pk_f16_f32 v{D+4*ks+2*h+i}, v{TH+2*i}, v{TH+2*i+1}")
                a(f"v_cvt_pk_f16_f32 v{D+8+4*ks+2*h+i}, v{TH+4+2*i}, v{TH+4+2*i+1}")

def a_pre(a):
    EPS, BASE, TH, ONE, TO, CS = ST + 4, ST + 5, XF, XF + 8, XF + 12, AC1
    a(f"""s_and_b32 s25, s3, 1
    s_lshl_b32 s25, s25, 2
    v_and_b32 v{T0}, 3, v{N}
    v_add_u32 v{T0}, s25, v{T0}
    v_lshrrev_b32 v{T1}, 2, v{N}
    s_mul_i32 s26, s22, 28
    s_add_u32 s26, s26, 1
    v_mad_u32_u24 v{T1}, v{T1}, 7, v{T0}
    v_add_u32 v{T1}, s26, v{T1}
    v_cmp_ne_u32 vcc, 7, v{T0}
    s_lshr_b32 s25, s3, 1
    s_mul_i32 s25, s25, {fl(0.25)}
    v_cndmask_b32 v{T1}, 0, v{T1}, vcc
    v_cvt_f32_u32 v{T1}, v{T1}
    v_mul_f32 v{EPS}, {fl(1.0/448)}, v{T1}
    v_lshlrev_b32 v{T0}, 3, v{G}
    v_cvt_f32_u32 v{T2}, v{T0}
    v_fma_f32 v{BASE}, v{T2}, v{EPS}, s25
    s_mul_i32 s25, s3, {7*1024}
    s_add_u32 s25, s25, {LW}
    v_add_u32 v{T1}, s25, v{VL}""")
    for i in range(4): a(f"v_mov_b32 v{ONE+i}, 0x3f803f80")
    if OPT["cheb"]:
        C2 = ST + 3; V = WD
        a(f"v_cos_f32 v{C2}, v{EPS}")
        for j in range(7):
            for i in range(2):
                k = 32*j + i
                if k == 0: a(f"v_mov_b32 v{V}, v{BASE}")
                else: a(f"v_fmamk_f32 v{V+8*j+i}, v{EPS}, {fl(float(k))}, v{BASE}")
        a(f"v_add_f32 v{C2}, v{C2}, v{C2}")
        for j in range(7):
            for i in range(2): a(f"v_cos_f32 v{V+8*j+i}, v{V+8*j+i}")
        for i in range(2, 8):
            for j in range(7):
                a(f"v_fma_f32 v{V+8*j+i}, v{C2}, v{V+8*j+i-1}, -v{V+8*j+i-2}")
        for j in range(7):
            o = V + 56 + 4*j
            for i in range(4): a(f"v_cvt_pk_bf16_f32 v{o+i}, v{V+8*j+2*i}, v{V+8*j+2*i+1}")
            a(f"ds_write_b128 v{T1}, {v4(o)} offset:{j*1024}")
            a(f"v_mfma_f32_16x16x32_bf16 {v4(CS)}, {v4(o)}, {v4(ONE)}, {'0' if j == 0 else v4(CS)}")
    else:
      for j in range(7):
        trig_block(a, 8, 32*j, EPS, BASE, TH, False)
        o = TO + 4*(j & 1)
        for i in range(4): a(f"v_cvt_pk_bf16_f32 v{o+i}, v{TH+2*i}, v{TH+2*i+1}")
        a(f"ds_write_b128 v{T1}, {v4(o)} offset:{j*1024}")
        a(f"v_mfma_f32_16x16x32_bf16 {v4(CS)}, {v4(o)}, {v4(ONE)}, {'0' if j == 0 else v4(CS)}")
    a(f"""v_lshrrev_b32 v{ST}, 1, v{N}
    s_lshl_b32 s25, s3, 3
    v_add_u32 v{ST}, s25, v{ST}
    v_and_b32 v{ST+2}, 1, v{N}
    v_lshlrev_b32 v{VUS}, 16, v{ST}
    v_lshl_add_u32 v{VUS}, v{ST+2}, 6, v{VUS}
    v_lshl_add_u32 v{VUS}, v{G}, 4, v{VUS}
    s_lshl_b32 s25, s3, 6
    v_lshlrev_b32 v{T0}, 4, v{G}
    v_add_u32 v{VCS}, {LCS}, v{T0}
    v_add_u32 v{T1}, s25, v{VCS}
    v_lshlrev_b32 v{SG2+1}, 31, v{G}
    v_or_b32 v{SG2+1}, 1.0, v{SG2+1}
    v_xor_b32 v{SG2}, 0x80000000, v{SG2+1}
    v_pk_fma_f32 {v2(CS)}, {v2(CS)}, {v2(SG2)}, {v2(CS)}
    v_pk_fma_f32 {v2(CS+2)}, {v2(CS+2)}, {v2(SG2)}, {v2(CS+2)}
    ds_write_b128 v{T1}, {v4(CS)}""")
    if OPT["b1"]:
        a(f"v_add_u32 v{T2}, {LW}, v{VL}\ns_waitcnt lgkmcnt(0)\ns_barrier")
        for f in range(28): a(f"ds_read_b128 {v4(WD+4*f)}, v{T2} offset:{f*1024}")
    if OPT["pf"] == 4:
        a("s_waitcnt lgkmcnt(0)\ns_cmp_eq_u32 s20, 7\ns_cbranch_scc1 Lnpf4")
        prefetch(a, 4, XF, XF + 1)
        a("Lnpf4:")
    if not OPT["w64l"]:
        w64(a, WC)
        for i in range(8): a(f"v_xor_b32 v{WNS+i}, 0x80008000, v{WSN+i}")
    stamp(a, 10, True)
    a(f"v_add_u32 v{T2}, {LW}, v{VL}")
    a(f"""s_lshl_b32 s25, s3, 4
    v_add_u32 v{ST}, s25, v{N}
    v_mul_u32_u24 v{VXR}, {PH}, v{ST}
    v_add_u32 v{VXR}, v{T0}, v{VXR}
    v_mul_u32_u24 v{VFW}, {PF}, v{ST}
    v_lshl_add_u32 v{VFW}, v{G}, 3, v{VFW}
    v_add_u32 v{VFW}, {LF}, v{VFW}
    v_lshrrev_b32 v{ST}, 2, v{N}
    v_lshl_add_u32 v{ST}, v{G}, 3, v{ST}
    v_mul_u32_u24 v{VFR}, {PF}, v{ST}
    v_and_b32 v{ST}, 3, v{N}
    v_lshl_add_u32 v{VFR}, v{ST}, 3, v{VFR}
    v_add_u32 v{VFR}, {LF}, v{VFR}
    s_lshl_b32 s23, s21, 11
    s_lshl_b32 s24, s22, 8
    s_add_u32 s23, s23, s24""")
    for r in range(4):
        a(f"s_mov_b32 s{30+2*r}, {hex(((1<<r)|(1<<(20+r))) & 0xffffffff)}")
        a(f"s_mov_b32 s{31+2*r}, {hex(((1<<(8+r))|(1<<(28+r))) & 0xffffffff)}")
    a("s_mov_b64 s[24:25], 0xffff")

def a_main(a):
    q = LdsQ(a)
    def rdx(j, hf): q.read(f"ds_read_b128 {v4(XF+4*j)}, v{VXR} offset:{64*j + hf*LXH}", XF+4*j)
    def rdw(j):
        for T in range(4): q.read(f"ds_read_b128 {v4(WD+4*(7*T+j))}, v{T2} offset:{(7*T+j)*1024}", WD+4*(7*T+j))
    if OPT["b1"]:
        for j in range(7): rdx(j, 0)
    else:
        for j in range(3): rdx(j, 0); rdw(j)
    BJ = OPT["barj"]
    Q, S, M, RS = ST, ST+1, ST+2, ST+4
    def mf(A, T, j, first): a(f"v_mfma_f32_16x16x32_bf16 {v4(A+4*T)}, {v4(WD+4*(7*T+j))}, {v4(XF+4*j)}, {'0' if first else v4(A+4*T)}")
    def gram(j, first): a(f"v_mfma_f32_16x16x32_bf16 {v4(GR)}, {v4(XF+4*j)}, {v4(XF+4*j)}, {'0' if first else v4(GR)}")
    for j in range(7):
        q.need(XF + 4*j)
        gram(j, j == 0)
        for T in range(4):
            q.need(WD+4*(7*T+j))
            mf(AC1, T, j, j == 0)
        if j + 3 < 7 and not OPT["b1"]: rdx(j + 3, 0); rdw(j + 3)
        if j == BJ:
            stamp(a, 11)
            a("s_barrier")
            for k in range(BJ + 1): rdx(k, 1)
        elif j > BJ: rdx(j, 1)
    CS = WD + 28
    for j in range(7):
        q.need(XF + 4*j)
        gram(j, False)
        mf(AC2, 1, j, j == 0)
    for T in range(4): q.read(f"ds_read_b128 {v4(CS+4*T)}, v{VCS} offset:{64*T}", CS+4*T)
    stats = [None, None, f"v_mov_b32 v{Q}, 0", f"v_mov_b32 v{V_EP}, {LTAG}"]
    stats += [f"v_cndmask_b32 v{Q}, v{Q}, v{GR+r}, s[{30+2*r}:{31+2*r}]" for r in range(4)]
    stats += [f"v_add_f32 v{S}, v{AC1+7}, v{AC2+7}", f"v_cndmask_b32 v{S}, 0, v{S}, s[24:25]", None, None,
              f"v_permlane32_swap_b32 v{Q}, v{S}", f"v_add_f32 v{Q}, v{Q}, v{S}", f"v_mov_b32 v{S}, v{Q}", None, None,
              f"v_permlane16_swap_b32 v{Q}, v{S}", f"v_add_f32 v{Q}, v{Q}, v{S}", f"v_mov_b32 v{S}, v{Q}", None, None,
              f"v_permlane32_swap_b32 v{Q}, v{S}", f"v_mul_f32 v{M}, {fl(-1.0/448)}, v{S}", f"v_mul_f32 v{Q}, {fl(1.0/448)}, v{Q}",
              f"v_fma_f32 v{Q}, -v{M}, v{M}, v{Q}", f"v_max_f32 v{Q}, 0, v{Q}"]
    rb = [f"v_cvt_pk_bf16_f32 v{Q}, v{Q}, v{Q}", f"v_and_b32 v{Q}, 0xffff0000, v{Q}"]
    if OPT["ln1emu"]:
        stats += rb + [f"v_add_f32 v{Q}, {fl(1e-5)}, v{Q}"] + rb + [f"v_sqrt_f32 v{Q}, v{Q}", None] + rb + [f"v_rcp_f32 v{RS}, v{Q}"]
    else:
        stats += [f"v_add_f32 v{Q}, {fl(1e-5)}, v{Q}", f"v_rsq_f32 v{RS}, v{Q}"]
    stats += ["WAITCS", f"v_mul_f32 v{M}, v{M}, v{RS}"]
    stats += [f"v_mul_f32 v{CS+i}, v{CS+i}, v{M}" for i in range(16)]
    for j in range(7):
        for T in (0, 2, 3):
            mf(AC2, T, j, j == 0)
            for _ in range(2):
                if stats:
                    t = stats.pop(0)
                    if t == "WAITCS": q.need(CS, 16)
                    elif t: a(t)
    for p in range(2): a(f"v_pk_fma_f32 {v2(AC1+4+2*p)}, {v2(AC2+4+2*p)}, {v2(SG2)}, {v2(AC1+4+2*p)}")
    for t in stats:
        if t == "WAITCS": q.need(CS, 16)
        elif t: a(t)
    stamp(a, 3)
    for T in (0, 2, 3):
        for p in range(2):
            x = AC1 + 4*T + 2*p
            a(f"v_pk_fma_f32 {v2(x)}, {v2(AC2+4*T+2*p)}, {v2(SG2)}, {v2(x)}")
    for T in (1, 0, 2, 3):
        for p in range(2):
            x = AC1 + 4*T + 2*p
            a(f"v_pk_fma_f32 {v2(x)}, {v2(x)}, {v2(RS)}, {v2(CS+4*T+2*p)} op_sel_hi:[1,0,1]")
    for T in (1, 0, 2, 3):
        for p in range(2):
            x = AC1 + 4*T + 2*p
            a(f"v_cvt_pk_f16_f32 v{AC2+2*T+p}, v{x}, v{x+1}")
        a(f"ds_write_b64 v{VFW}, {v2(AC2+2*T)} offset:{32*T}")
    if OPT["w64l"]: a(f"s_lshl_b32 s26, s3, 12\ns_add_u32 s26, s26, {LWT}\nv_add_u32 v{T1}, s26, v{VL}")
    stamp(a, 5, 5)
    a(f"s_waitcnt lgkmcnt(0)")
    stamp(a, 6, 5)
    a(f"s_barrier")
    stamp(a, 7, 5)
    if OPT["w64l"]:
        for i in (0, 2, 4, 1, 3, 5): a(f"ds_read_b128 {v4(WC+4*i)}, v{T1} offset:{(i % 4 if i < 4 else i - 2 + 2) * 0 + i * 0 + [0, 1024, 2048, 3072, 16384, 17408][i]}")
    FA = WD + 48
    fa = lambda T, ks: FA + (2*T + ks) * 4
    q = LdsQ(a)
    for T in range(2):
        for ks in range(2):
            for TT in (T, T + 2):
                for h in range(2):
                    q.read(f"ds_read_b64_tr_b16 {v2(fa(TT, ks)+2*h)}, v{VFR} offset:{(32*ks+4*h)*PF+32*TT}", fa(TT, ks)+2*h, 2)
    q.read(f"ds_read_b32 v{V_EP}, v{V_EP}", V_EP, 1)
    UR = AC1; UI = AC1 + 8; o = XF
    tagcalc = [f"v_add_u32 v{M}, 1, v{V_EP}", f"s_mov_b32 s98, {HASH}", f"v_mul_lo_u32 v{M}, v{M}, s98"]
    for T in range(2):
        for ks in range(2):
            fr = v4(fa(T, ks)); fi = v4(fa(T + 2, ks))
            q.need(fa(T, ks))
            if T == 0 and ks == 0: stamp(a, 8, 5)
            a(f"v_mfma_f32_16x16x32_f16 {v4(UR+4*T)}, {fr}, {v4(WC+4*ks)}, {'0' if ks == 0 else v4(UR+4*T)}")
            a(f"v_mfma_f32_16x16x32_f16 {v4(UI+4*T)}, {fr}, {v4(WNS+4*ks)}, {'0' if ks == 0 else v4(UI+4*T)}")
            q.need(fa(T + 2, ks))
            a(f"v_mfma_f32_16x16x32_f16 {v4(UR+4*T)}, {fi}, {v4(WSN+4*ks)}, {v4(UR+4*T)}")
            a(f"v_mfma_f32_16x16x32_f16 {v4(UI+4*T)}, {fi}, {v4(WC+4*ks)}, {v4(UI+4*T)}")
            if T == 1 and ks == 1:
                q.need(V_EP, 1)
                for t in tagcalc: a(t)
    stamp(a, 9, 5)
    for r in range(4): a(f"v_cvt_pk_f16_f32 v{o+r}, v{UR+r}, v{UI+r}")
    a(f"buffer_store_dwordx4 {v4(o)}, v{VUS}, s[12:15], s23 offen {SC}")
    stamp(a, 10, 5)
    a(f"v_add3_u32 v{Q}, v{o}, v{o+1}, v{o+2}")
    a(f"v_sub_u32 v{M}, v{M}, v{o+3}")
    a(f"v_sub_u32 v{M}, v{M}, v{Q}")
    for r in range(3): a(f"v_cvt_pk_f16_f32 v{o+4+r}, v{UR+4+r}, v{UI+4+r}")
    a(f"""v_add3_u32 v{Q}, v{o+4}, v{o+5}, v{o+6}
    v_sub_u32 v{o+7}, v{M}, v{Q}
    buffer_store_dwordx4 {v4(o+4)}, v{VUS}, s[12:15], s23 offen offset:128 {SC}""")

def b_ids(a):
    a(f"""s_and_b32 s92, s2, 7
    s_lshr_b32 s93, s2, 6
    s_lshl_b32 s93, s93, 3
    s_or_b32 s92, s92, s93
    s_bfe_u32 s93, s2, 0x10003
    s_bfe_u32 s96, s2, 0x20004
    s_sub_u32 s95, 64, s92
    s_cmp_eq_u32 s92, 0
    s_cselect_b32 s95, 32, s95
    s_cselect_b32 s94, 0, 1
    s_xor_b32 s94, s94, s93
    s_cmp_eq_u32 s93, 0
    s_cselect_b32 s95, s92, s95
    s_lshl_b32 s96, s96, 9
    s_add_u32 s95, s95, s96
    s_lshl_b32 s96, s20, 6
    s_add_u32 s96, s96, s95
    s_mul_i32 s97, s96, 896""")

def b_setup(a):
    srd(a, 12, 6, WS_SIZE)
    srd(a, 52, 48, XB)
    srd(a, 16, 40, 896)
    b_ids(a)

def b_loads(a):
    a(f"""s_mov_b32 s26, {WS_EPOCH}
    v_mov_b32 v{T0}, 0
    buffer_load_dword v{V_EP}, v{T0}, s[12:15], s26 offen {SC}
    buffer_load_dwordx4 {v4(B_WR)}, v{VL}, s[16:19], 0 offen
    buffer_load_dwordx4 {v4(B_XR)}, v{VL}, s[8:11], s97 offen""")

def pro(a):
    EPS, BASE, TH, AF, AD = P_EPS, P_BASE, P_TH, B_AF, B_AD
    a(f"""s_lshl_b32 s28, s92, 16
    s_lshl_b32 s29, s20, 8
    s_add_u32 s28, s28, s29
    s_add_u32 s29, s28, 4096
    s_add_u32 s30, s28, 32768
    s_add_u32 s31, s28, 36864
    v_lshlrev_b32 v{B_VU}, 13, v{G}
    v_lshl_add_u32 v{B_VU}, v{N}, 4, v{B_VU}
    v_and_b32 v{T0}, 7, v{N}
    v_lshlrev_b32 v{T0}, 6, v{T0}
    v_add_u32 v{T0}, s95, v{T0}
    v_cvt_f32_u32 v{T0}, v{T0}
    v_cmp_gt_u32 vcc, 8, v{N}
    v_mul_f32 v{EPS}, {fl(1.0/2048)}, v{T0}
    v_lshlrev_b32 v{T1}, 2, v{G}
    v_cndmask_b32 v{EPS}, -v{EPS}, v{EPS}, vcc
    v_cvt_f32_u32 v{T1}, v{T1}
    v_mul_f32 v{BASE}, v{T1}, v{EPS}""")
    for ks in range(2):
        trig_block(a, 4, 16*ks, EPS, BASE, TH, True)
        for i in range(4):
            a(f"v_cvt_pk_f16_f32 v{AF+4*ks+i}, v{TH+i}, v{TH+4+i}")
    a(f"""v_lshrrev_b32 v{T0}, 3, v{N}
    v_and_b32 v{T1}, 3, v{N}
    v_mul_u32_u24 v{T1}, 7, v{T1}
    v_lshl_add_u32 v{T1}, v{T0}, 2, v{T1}
    s_mul_i32 s32, s20, 28
    s_add_u32 s32, s32, 1
    v_add_u32 v{T1}, s32, v{T1}
    v_sub_u32 v{T2}, 448, v{T1}
    v_cmp_gt_u32 s[34:35], 2, v{G}
    v_mov_b32 v{TH}, s93
    v_mov_b32 v{TH+1}, s94
    v_cndmask_b32 v{T2}, v{T2}, v{T1}, s[34:35]
    v_cndmask_b32 v{TH}, v{TH+1}, v{TH}, s[34:35]
    v_bfe_u32 v{TH+1}, v{N}, 2, 1
    v_cmp_eq_u32 s[60:61], v{TH}, v{TH+1}
    v_and_b32 v{TH+2}, 1, v{G}
    v_mul_u32_u24 v{TH+2}, {4*PY}, v{TH+2}
    v_add_lshl_u32 v{AD}, v{TH+2}, v{T2}, 2
    v_mov_b32 v{TH+3}, -4
    v_cndmask_b32 v{TH+3}, v{TH+3}, 4, s[34:35]
    v_add_u32 v{AD+1}, v{AD}, v{TH+3}
    v_add_u32 v{AD+2}, v{AD+1}, v{TH+3}
    v_add_u32 v{AD+3}, v{AD+2}, v{TH+3}
    v_cmp_eq_u32 s[50:51], 0, v{T0}
    s_and_b64 s[50:51], s[50:51], s[60:61]
    v_mov_b32 v{TH}, 222
    v_cmp_eq_u32 s[62:63], v{TH}, v{T1}
    s_andn2_b64 s[62:63], s[62:63], s[34:35]
    s_andn2_b64 s[62:63], s[60:61], s[62:63]
    s_mul_i32 s33, s20, {PY*4}
    v_lshlrev_b32 v{B_VY}, 5, v{LANE}
    v_add_u32 v{B_VY}, s33, v{B_VY}""")
    lim_regs(a, C_L, LANE, T0)
    a(f"""s_lshl_b32 s34, s20, 5
    s_add_u32 s34, s34, {LSEL}
    v_lshlrev_b32 v{T1}, 2, v{LANE}
    v_add_u32 v{C_SW}, s34, v{T1}
    v_add_u32 v{C_SR}, {LSEL}, v{T1}
    v_lshrrev_b32 v{C_KA}, 1, v0
    v_lshlrev_b32 v{C_KA}, 6, v{C_KA}
    v_and_b32 v{T0}, 1, v0
    v_lshl_add_u32 v{C_KA}, v{T0}, 4, v{C_KA}
    s_lshl_b32 s34, s20, 6
    s_add_u32 s34, s34, {LSE2}
    v_add_u32 v{C_FW}, s34, v{T1}
    v_lshrrev_b32 v{C_PF}, 3, v{LANE}
    v_and_b32 v{C_FY}, 7, v{LANE}
    v_lshlrev_b32 v{C_FR}, 6, v{C_PF}
    v_lshl_add_u32 v{C_FR}, v{C_FY}, 2, v{C_FR}
    v_add_u32 v{C_FR}, {LSE2}, v{C_FR}
    v_lshlrev_b32 v{C_FY}, 6, v{C_FY}
    v_add_u32 v{C_FY}, {LSE2 + 32}, v{C_FY}
    v_lshlrev_b32 v{C_PF}, 7, v{C_PF}
    s_cmp_ge_u32 s2, 224
    s_cselect_b32 s33, 1024, 0
    s_add_u32 s33, s33, {WS_ROW}
    s_lshl_b32 s27, s2, 6
    s_add_u32 s27, s27, {WS_KEYS}
    s_sub_u32 s32, 2047, s96
    v_lshrrev_b32 v{T0}, 1, v0
    v_and_b32 v{T1}, 7, v{T0}
    v_lshrrev_b32 v{T2}, 6, v{T0}
    v_lshl_or_b32 v{T1}, v{T2}, 3, v{T1}
    v_sub_u32 v{T2}, 64, v{T1}
    v_cmp_eq_u32 vcc, 0, v{T1}
    v_bfe_u32 v{TH}, v{T0}, 3, 1
    v_cndmask_b32 v{T2}, v{T2}, 32, vcc
    v_cmp_eq_u32 vcc, 0, v{TH}
    v_bfe_u32 v{TH}, v{T0}, 4, 2
    v_cndmask_b32 v{T1}, v{T2}, v{T1}, vcc
    v_lshl_add_u32 v{T1}, v{TH}, 9, v{T1}
    v_and_b32 v{T0}, 1, v0
    v_lshl_add_u32 v{T1}, v{T0}, 8, v{T1}
    v_sub_u32 v{C_IX}, 2047, v{T1}
    v_subrev_u32 v{C_IX+1}, 64, v{C_IX}
    v_subrev_u32 v{C_IX+2}, 128, v{C_IX}
    v_subrev_u32 v{C_IX+3}, 192, v{C_IX}""")

def pro2(a):
    XU, WU, S1, S2, S3 = B_XU, B_WU, P_TH, P_TH + 2, P_TH + 4
    unpack8(a, WU, B_WR)
    a(f"""v_pk_add_f32 {v2(S1)}, {v2(WU)}, {v2(WU+2)}
    v_pk_add_f32 {v2(S2)}, {v2(WU+4)}, {v2(WU+6)}
    v_pk_add_f32 {v2(S1)}, {v2(S1)}, {v2(S2)}
    v_add_f32 v{S1}, v{S1}, v{S1+1}
    v_mov_b32 v{S2}, 0
    v_mov_b32 v{S3}, 0""")
    reduce3(a, S1, S2, S3, T0, 58, 39, 39)
    unpack8(a, XU, B_XR)
    for k in (B_S1, B_S1+1, B_S2, B_S2+1, B_S3, B_S3+1): a(f"v_mov_b32 v{k}, 0")

def anyones(a, regs_, t):
    regs_ = list(regs_)
    a(f"v_max_u32 v{t}, v{regs_[0]}, v{regs_[1]}")
    rest = regs_[2:]
    while len(rest) >= 2:
        a(f"v_max3_u32 v{t}, v{t}, v{rest[0]}, v{rest[1]}"); rest = rest[2:]
    if rest: a(f"v_max_u32 v{t}, v{t}, v{rest[0]}")
    a(f"v_cmp_eq_u32 vcc, -1, v{t}")

def wave_sum(a, v, sd):
    for k in (8, 4, 2, 1):
        a(f"v_add_u32_dpp v{v}, v{v}, v{v} row_ror:{k} row_mask:0xf bank_mask:0xf")
    for i in range(4): a(f"v_readlane_b32 s{sd+i}, v{v}, {16*i}")
    a(f"s_add_u32 s{sd}, s{sd}, s{sd+1}\ns_add_u32 s{sd+2}, s{sd+2}, s{sd+3}\ns_add_u32 s{sd}, s{sd}, s{sd+2}")

def publish_row(a):
    a(f"""s_lshl_b32 s34, s96, 11
    s_add_u32 s34, s34, {WS_ROW}
    v_mov_b32 v{T0}, 0
    v_mov_b32 v{T1}, 0
    v_writelane_b32 v{C_LN}, 0, 56
    v_writelane_b32 v{C_OUT}, 0, 56
    s_mov_b32 exec_hi, 0x01ffffff
    v_add3_u32 v{T0}, v{C_LN}, v{C_LN+1}, v{C_LN+2}
    v_add3_u32 v{T1}, v{C_OUT}, v{C_OUT+1}, v{C_OUT+2}
    v_add_u32 v{T0}, v{T0}, v{C_LN+3}
    v_add_u32 v{T1}, v{T1}, v{C_OUT+3}
    s_mov_b32 exec_hi, -1""")
    wave_sum(a, T0, 36)
    a(f"s_sub_u32 s35, s98, s36\nv_writelane_b32 v{C_LN}, s35, 56")
    wave_sum(a, T1, 36)
    a(f"""s_sub_u32 s35, s98, s36
    v_writelane_b32 v{C_OUT}, s35, 56
    s_mov_b32 exec_hi, 0x01ffffff
    buffer_store_dwordx4 {v4(C_LN)}, v{VL}, s[12:15], s34 offen {SC}
    buffer_store_dwordx4 {v4(C_OUT)}, v{VL}, s[12:15], s34 offen offset:1024 {SC}
    s_mov_b32 exec_hi, -1""")

def fetch_row_issue(a, dst):
    a(f"""v_readlane_b32 s34, v{C_K}, s20
    s_andn2_b32 s34, 0x7ff, s34
    s_lshl_b32 s34, s34, 11
    s_add_u32 s34, s34, s33
    s_mov_b32 exec_hi, 0x01ffffff
    buffer_load_dwordx4 {v4(dst)}, v{VL}, s[12:15], s34 offen {SC}
    s_mov_b32 exec_hi, -1""")

def fetch_row_finish(a, dst, ldsaddr):
    _lbl[0] += 1
    L = f"Lrow{_lbl[0]}"
    a(f"""s_mul_i32 s29, s20, {PX}
    s_add_u32 s29, s29, {LXS}
    v_add_u32 v{ldsaddr}, s29, v{VL}
    s_mov_b32 s57, {SPIN}
    {L}:
    v_mov_b32 v{T0}, 0
    s_mov_b32 exec_hi, 0x01ffffff
    s_waitcnt vmcnt(0)
    ds_write_b128 v{ldsaddr}, {v4(dst)}
    v_add3_u32 v{T0}, v{dst}, v{dst+1}, v{dst+2}
    v_add_u32 v{T0}, v{T0}, v{dst+3}
    s_mov_b32 exec_hi, -1""")
    wave_sum(a, T0, 36)
    a(f"""s_cmp_eq_u32 s36, s98
    s_cbranch_scc1 {L}d
    s_mov_b32 exec_hi, 0x01ffffff
    s_waitcnt lgkmcnt(0)
    buffer_load_dwordx4 {v4(dst)}, v{VL}, s[12:15], s34 offen {SC}
    s_mov_b32 exec_hi, -1
    s_sub_u32 s57, s57, 1
    s_cbranch_scc0 {L}""")
    timeout_note(a, _lbl[0])
    a(f"{L}d:")

def gu_dma(a):
    a(f"""s_cmp_ge_u32 s2, 224
    s_cbranch_scc1 Lngu
    s_cmp_eq_u32 s20, 7
    s_cbranch_scc1 Lngu""")
    srd(a, 16, 42, 448*3584)
    a(f"""v_mul_u32_u24 v{T1}, 3584, v0
    s_and_b32 s50, s2, 7
    s_mul_i32 s50, s50, 28
    s_lshr_b32 s51, s2, 3
    s_add_u32 s50, s50, s51
    s_lshl_b32 s26, s50, 4
    s_lshl_b32 s24, s20, 10
    s_add_u32 s24, s24, {LWT}
    s_mov_b32 m0, s24
    s_add_u32 s24, s24, 8192
    buffer_load_dwordx4 v{T1}, s[16:19], s26 offen lds
    s_mov_b32 s16, s44
    s_and_b32 s17, s45, 0xffff
    s_mov_b32 m0, s24
    s_nop 0
    buffer_load_dwordx4 v{T1}, s[16:19], s26 offen lds
    Lngu:""")

def wd_dma(a, j0, j1, L):
    if j0 == j1: return
    a(f"""s_cmp_lt_u32 s2, 224
    s_cbranch_scc1 {L}
    s_and_b32 s50, s2, 7
    s_cmp_eq_u32 s50, 7
    s_cbranch_scc1 {L}
    s_lshl_b32 s50, s50, 7
    s_bfe_u32 s51, s2, 0x20003
    s_lshl_b32 s51, s51, 5
    s_add_u32 s51, s51, s50""")
    srd(a, 16, 46, 1792*896)
    a(f"""v_lshrrev_b32 v{T1}, 1, v{LANE}
    v_mul_u32_u24 v{T1}, 896, v{T1}
    v_and_b32 v{T2}, 1, v{LANE}
    v_lshl_add_u32 v{T1}, v{T2}, 4, v{T1}
    s_mul_i32 s23, s20, {224*896}
    s_add_u32 s23, s23, s51
    s_add_u32 s23, s23, {j0*32*896}
    s_mul_i32 s25, s20, 7168
    s_add_u32 s25, s25, {LWT + j0*1024}""")
    for j in range(j0, j1):
        a(f"s_mov_b32 m0, s25")
        a(f"s_add_u32 s25, s25, 1024")
        a(f"buffer_load_dwordx4 v{T1}, s[16:19], s23 offen lds")
        a(f"s_add_u32 s23, s23, {32*896}")
    a(f"{L}:")

def b_main(a):
    R, AF, ACC, XU, WU, AD, TH = B_R, B_AF, B_ACC, B_XU, B_WU, B_AD, B_TH
    S1, S2, S3 = B_S1, B_S2, B_S3
    if OPT["sl_u0"]: a(f"s_sleep {OPT['sl_u0']}")
    def uld():
        for ks in range(2):
            for i in range(4):
                a(f"buffer_load_dwordx4 {v4(R+16*ks+4*i)}, v{B_VU}, s[12:15], s{28+2*ks+(i>>1)} offen offset:{2048*(i&1)} {SC}")
    a(f"s_mov_b32 s57, {SPIN}")
    uld()
    a("s_waitcnt vmcnt(8)")
    pro2(a)
    def swaps(ks):
        b = R + 16*ks
        for i in range(4):
            for j in range(i+1, 4):
                a(f"v_swap_b32 v{b+4*i+j}, v{b+4*j+i}")
    def mm(ks, dpp):
        for j in range(4):
            c = "0" if ks == 0 else v4(ACC+4*j)
            a(f"v_mfma_f32_16x16x32_f16 {v4(ACC+4*j)}, {v4(AF+4*ks)}, {v4(R+16*ks+4*j)}, {c}")
            if dpp: a(f"v_add_u32_dpp v{T0}, v{T0}, v{T0} row_ror:{8 >> j} row_mask:0xf bank_mask:0xf")
    if not OPT["part"]:
        a("s_branch Lupw\nLupoll:")
        uld()
        a("Lupw:")
    for ks in range(2):
        a(f"s_waitcnt vmcnt({4-4*ks})")
        b = R + 16*ks
        for i in range(8):
            if ks == 0 and i == 0: a(f"v_add_u32 v{T0}, v{b}, v{b+1}")
            else: a(f"v_add3_u32 v{T0}, v{T0}, v{b+2*i}, v{b+2*i+1}")
        swaps(ks)
        mm(ks, ks == 1)
    a(f"""v_cmp_ne_u32 vcc, s99, v{T0}
    s_cmp_eq_u64 vcc, 0""")
    if OPT["part"]:
        a("s_cbranch_scc0 Lupart")
        def part():
            C4 = B_TH
            a("Lupart:\ns_lshl_b32 s34, s98, 4")
            swaps(0); swaps(1)
            a("Lupchk:")
            for i in range(4):
                a(f"v_add3_u32 v{C4+i}, v{R+4*i}, v{R+4*i+1}, v{R+4*i+2}")
            for i in range(4):
                a(f"v_add3_u32 v{C4+i}, v{C4+i}, v{R+4*i+3}, v{R+16+4*i}")
            for i in range(4):
                a(f"v_add3_u32 v{C4+i}, v{C4+i}, v{R+16+4*i+1}, v{R+16+4*i+2}")
            for i in range(4):
                a(f"v_add_u32 v{C4+i}, v{C4+i}, v{R+16+4*i+3}")
            for k in (8, 4, 2, 1):
                for i in range(4):
                    a(f"v_add_u32_dpp v{C4+i}, v{C4+i}, v{C4+i} row_ror:{k} row_mask:0xf bank_mask:0xf")
            MK = ["s[36:37]", "s[38:39]", "s[24:25]", "vcc"]
            for i in range(4): a(f"v_cmp_ne_u32 {MK[i]}, s34, v{C4+i}")
            a(f"""s_or_b64 s[26:27], s[36:37], s[38:39]""".replace("s[26:27]", "s[100:101]"))
            a(f"""s_or_b64 s[100:101], s[100:101], s[24:25]
            s_or_b64 s[100:101], s[100:101], vcc
            s_cbranch_scc0 Lupgo""")
            if OPT["sl_r"]: a(f"s_sleep {OPT['sl_r']}")
            for i in range(4):
                a(f"s_cmp_eq_u64 {MK[i]}, 0\ns_cbranch_scc1 Lupok{i}")
                for ks in range(2):
                    a(f"buffer_load_dwordx4 {v4(R+16*ks+4*i)}, v{B_VU}, s[12:15], s{28+2*ks+(i>>1)} offen offset:{2048*(i&1)} {SC}")
                a(f"Lupok{i}:")
            a(f"""s_waitcnt vmcnt(0)
            s_sub_u32 s57, s57, 1
            s_cbranch_scc0 Lupchk
            Lupgo:""")
            for ks in range(2):
                swaps(ks); mm(ks, False)
            a("s_nop 7\ns_branch Lupolld")
        TAIL.append(part)
    else:
        a(f"""s_cbranch_scc1 Lupolld
        s_sub_u32 s57, s57, 1
        s_cbranch_scc0 Lupoll""")
        timeout_note(a, 9)
    a("Lupolld:")
    stamp(a, 6)
    if OPT["stamps"] == 3: a(f"s_sub_u32 s{64+2*11}, {SPIN+1}, s57")
    for j in range(4):
        if j != 1: a(f"s_mov_b64 exec, {['s[60:61]', '', 's[62:63]', 's[50:51]'][j]}")
        for r in range(4):
            a(f"ds_write_b32 v{AD+j}, v{ACC+4*j+r} offset:{LY + r*PY*4}")
    a("s_mov_b64 exec, -1")
    gu_dma(a)
    wd_dma(a, 0, OPT['wdsplit'], 'Lnwd0')
    a("""s_mov_b32 exec_hi, 0x00ffffff
    s_waitcnt lgkmcnt(0)
    s_barrier""")
    H = R
    a(f"ds_read_b128 {v4(H)}, v{B_VY} offset:{LY}\nds_read_b128 {v4(H+4)}, v{B_VY} offset:{LY+16}")
    for hf in range(2):
        a(f"s_waitcnt lgkmcnt({1-hf})")
        if hf == 0: a(f"v_writelane_b32 v{H}, 0, 0")
        for p in range(2):
            x = 4*hf + 2*p
            a(f"v_pk_add_f32 {v2(H+x)}, {v2(H+x)}, {v2(XU+x)}")
        for p in range(2):
            x = 4*hf + 2*p
            a(f"v_pk_add_f32 {v2(S1)}, {v2(S1)}, {v2(H+x)}")
            a(f"v_pk_fma_f32 {v2(S2)}, {v2(H+x)}, {v2(H+x)}, {v2(S2)}")
            a(f"v_pk_fma_f32 {v2(S3)}, {v2(H+x)}, {v2(WU+x)}, {v2(S3)}")
    a(f"""s_mov_b32 exec_hi, -1
    v_add_f32 v{S1}, v{S1}, v{S1+1}
    v_add_f32 v{S2}, v{S2}, v{S2+1}
    v_add_f32 v{S3}, v{S3}, v{S3+1}""")
    reduce3(a, S1, S2, S3, T0, 37, 38, 39)
    M, V, SD, RS, C0, KEY = TH, TH+1, TH+2, TH+4, TH+6, C_KEY
    a(f"""v_mov_b32 v{V}, {fl(1.0/448)}
    v_mul_f32 v{M}, s37, v{V}
    v_mul_f32 v{V}, s38, v{V}
    v_mov_b32 v{KEY}, s39
    v_fma_f32 v{V}, -v{M}, v{M}, v{V}
    v_fma_f32 v{KEY}, -v{M}, s58, v{KEY}
    v_max_f32 v{SD}, 0, v{V}
    v_add_f32 v{V}, {fl(1e-5)}, v{SD}""")
    a(f"""v_rsq_f32 v{RS}, v{V}
    s_lshl_b32 s34, s20, 2
    v_mov_b32 v{T2}, s34
    v_mul_f32 v{KEY}, v{KEY}, v{RS}
    v_cvt_pk_bf16_f32 v{KEY}, v{KEY}, v{KEY}
    v_ashrrev_i32 v{T0}, 31, v{KEY}
    v_or_b32 v{T0}, 0x80000000, v{T0}
    v_xor_b32 v{KEY}, v{KEY}, v{T0}
    v_and_b32 v{KEY}, 0xffff0000, v{KEY}
    v_or_b32 v{KEY}, s32, v{KEY}
    ds_write_b32 v{T2}, v{KEY} offset:{LKEY}
    v_mov_b32 v{C_STK}, 0xffff
    v_lshlrev_b32 v{T1}, 2, v{LANE}
    v_mov_b32 v{T2}, {LKEY}
    s_waitcnt lgkmcnt(0)
    s_barrier
    s_cmp_lg_u32 s20, 0
    s_cbranch_scc1 Lnokey
    s_mov_b64 exec, 0xff
    ds_read_b32 v{T0}, v{T1} offset:{LKEY}
    s_waitcnt lgkmcnt(0)
    v_bfi_b32 v{T0}, v{C_STK}, s59, v{T0}
    buffer_store_dword v{T0}, v{T1}, s[12:15], s27 offen {SC}
    s_mov_b64 exec, -1
    Lnokey:
    ds_read_b128 {v4(ACC)}, v{T2}
    ds_read_b128 {v4(ACC+4)}, v{T2} offset:16""")
    stamp(a, 7)
    sd_chain(a, SD, SD)
    a(f"v_rcp_f32 v{RS}, v{SD}\ns_nop 0\nv_mul_f32 v{C0}, -v{M}, v{RS}")
    for p in range(4):
        a(f"v_pk_fma_f32 {v2(XU+2*p)}, {v2(H+2*p)}, {v2(RS)}, {v2(C0)} op_sel_hi:[1,0,0]")
    for p in range(4):
        a(f"v_pk_add_f32 {v2(H+2*p)}, {v2(H+2*p)}, {v2(XU+2*p)}")
    for p in range(4):
        a(f"v_cvt_pk_bf16_f32 v{C_LN+p}, v{XU+2*p}, v{XU+2*p+1}")
        a(f"v_cvt_pk_bf16_f32 v{C_OUT+p}, v{H+2*p}, v{H+2*p+1}")
    a(f"""s_waitcnt lgkmcnt(0)
    v_max3_u32 v{T0}, v{ACC}, v{ACC+1}, v{ACC+2}
    v_max3_u32 v{T1}, v{ACC+3}, v{ACC+4}, v{ACC+5}
    v_max3_u32 v{T0}, v{T0}, v{ACC+6}, v{ACC+7}
    v_max_u32 v{T0}, v{T0}, v{T1}
    v_cmp_eq_u32 s[60:61], v{T0}, v{KEY}
    s_cmp_eq_u64 s[60:61], 0
    s_cbranch_scc1 Lnoeager""")
    publish_row(a)
    a("Lnoeager:")

QP = {1: "quad_perm:[1,0,3,2]", 2: "quad_perm:[2,3,0,1]", 3: "quad_perm:[3,2,1,0]", 7: "row_half_mirror"}
class Net:
    def __init__(s, a, x, t, fill): s.a = a; s.x = x; s.t = t; s.fill = list(fill)
    def f(s, n=1):
        for _ in range(n):
            if s.fill: s.a(s.fill.pop(0))
    def ce(s, m):
        a, x, t = s.a, s.x, s.t
        s.f()
        if m == 4:
            a(f"v_max_u32_dpp v{t}, v{x}, v{x} row_shl:4 row_mask:0xf bank_mask:0x5")
            a(f"v_min_u32_dpp v{t}, v{x}, v{x} row_shr:4 row_mask:0xf bank_mask:0xa")
            s.x, s.t = t, x
        else:
            a(f"v_mov_b32_dpp v{t}, v{x} {QP[m]} row_mask:0xf bank_mask:0xf")
            a(f"v_med3_u32 v{x}, v{x}, v{t}, v{C_L[1 << (m.bit_length()-1)]}")
    def merge(s, last_clean=True):
        a = s.a
        s.f()
        a(f"v_max_u32_dpp v{s.x}, v{s.x}, v{s.x} row_mirror row_mask:0xf bank_mask:0xf")
        for m in (4, 2, 1): s.ce(m)
        for sw in ("v_permlane16_swap_b32", "v_permlane32_swap_b32"):
            a(f"v_mov_b32 v{s.t}, v{s.x}")
            s.f()
            a(f"{sw} v{s.x}, v{s.t}")
            s.f()
            a(f"v_max_u32_dpp v{s.x}, v{s.t}, v{s.x} row_half_mirror row_mask:0xf bank_mask:0xf")
            if last_clean or "16" in sw:
                for m in (4, 2, 1): s.ce(m)
        s.f(99)

def fast_select(a):
    K, X, Y, P, Q = C_K, C_X, C_Y, C_TMP, C_TMP + 1
    a(f"""v_max_u32 v{P}, v{K}, v{K+1}
    v_max_u32 v{Q}, v{K+2}, v{K+3}
    v_max_u32 v{X}, v{P}, v{Q}""")
    fill = [f"v_min_u32 v{Y}, v{P}, v{Q}", f"v_min_u32 v{P}, v{K}, v{K+1}", f"v_min_u32 v{Q}, v{K+2}, v{K+3}",
            f"v_max3_u32 v{Y}, v{Y}, v{P}, v{Q}"]
    fill += [f"v_max_u32_dpp v{Y}, v{Y}, v{Y} row_ror:{k} row_mask:0xf bank_mask:0xf" for k in (8, 4, 2, 1)]
    fill += [f"v_mov_b32 v{P}, v{Y}", f"v_permlane16_swap_b32 v{Y}, v{P}", f"v_max_u32 v{Y}, v{Y}, v{P}",
             f"v_mov_b32 v{P}, v{Y}", f"v_permlane32_swap_b32 v{Y}, v{P}", f"v_max_u32 v{Y}, v{Y}, v{P}",
             "s_mov_b64 vcc, 0x100"]
    n = Net(a, X, C_TMP + 2, fill)
    for m in (1, 3, 1, 7, 2, 1): n.ce(m)
    n.merge()
    a(f"""s_mov_b64 exec, 0x1ff
    v_cndmask_b32 v{P}, v{n.x}, v{Y}, vcc
    ds_write_b32 v{C_FW}, v{P}""")
    if OPT["rowpf"]:
        m8 = (1 << OPT["rowpf"]) - 1; m32 = m8 * 0x01010101
        a(f"""s_mov_b32 exec_lo, {hex(m32)}
        s_mov_b32 exec_hi, {hex(m32)}
        v_bfi_b32 v{Q}, v{n.x}, 0, v{C_TMP+3}
        v_lshl_add_u32 v{Q}, v{Q}, 11, v{C_PF}
        buffer_load_dword v{JUNK}, v{Q}, s[12:15], s33 offen {SC}""")
    a(f"""s_mov_b64 exec, -1
    s_waitcnt lgkmcnt(0)
    s_barrier
    ds_read_b32 v{X}, v{C_FR}
    ds_read_b32 v{Y}, v{C_FY}
    s_waitcnt lgkmcnt(0)""")
    fill = [f"v_max_u32_dpp v{Y}, v{Y}, v{Y} {QP[m]} row_mask:0xf bank_mask:0xf" for m in (1, 2, 7)]
    n = Net(a, X, C_TMP + 2, fill)
    n.merge(last_clean=False)
    a(f"""v_cmp_gt_u32 vcc, v{Y}, v{n.x}
    s_cmp_eq_u64 vcc, 0
    s_cbranch_scc0 Lfullsel
    v_mov_b32 v{K}, v{n.x}
    Lseldone:""")

def c_select(a):
    K = C_K
    a(f"s_mov_b32 s34, {WS_KEYS}\nv_mov_b32 v{C_TMP+3}, 0x7ff")
    def chk():
        a(f"v_xor_b32 v{T0}, v{K}, v{K+1}")
        a(f"v_xor_b32 v{T1}, v{K+2}, v{K+3}")
        a(f"v_xor_b32 v{T2}, s59, v{K}")
        a(f"v_xor_b32 v{C_X}, s59, v{K+2}")
        a(f"v_or3_b32 v{T0}, v{T0}, v{T1}, v{T2}")
        for i in range(4): a(f"v_bfi_b32 v{K+i}, v{C_STK}, v{C_IX+i}, v{K+i}")
        a(f"v_or_b32 v{T0}, v{T0}, v{C_X}")
        a(f"v_cmp_ne_u16 vcc, 0, v{T0}")
    poll(a, lambda: a(f"buffer_load_dwordx4 {v4(K)}, v{C_KA}, s[12:15], s34 offen {SC}"), chk, pre=OPT["sl_k"])
    stamp(a, 8)
    fast_select(a)
    stamp(a, 9)
    a(f"""v_cmp_eq_u32 vcc, v{K}, v{C_KEY}
    s_and_b64 s[62:63], vcc, s[60:61]
    s_cmp_lg_u64 s[62:63], vcc
    s_cbranch_scc0 Lsel_pub""")
    publish_row(a)
    a("Lsel_pub:")
    fetch_row_issue(a, 84)
    a(f"""s_cmp_eq_u64 vcc, 0
    s_cbranch_scc0 Lsel_done
    s_mov_b32 exec_hi, 0x00ffffff
    buffer_store_dwordx4 {v4(C_OUT)}, v{VL}, s[52:55], s97 offen {['', 'sc1', 'nt', 'sc0 sc1'][OPT['ost']]}
    s_mov_b32 exec_hi, -1
    Lsel_done:""")

def c1(a):
    XR = 84; XF_ = 168; ACC = 52; XU = 60; WF = 88
    a(f"""s_cmp_lg_u32 s20, 0
    s_cbranch_scc1 Lc1_now
    v_lshrrev_b32 v{T0}, 2, v{N}
    v_lshl_add_u32 v{T0}, v{G}, 3, v{T0}
    v_lshlrev_b32 v{T0}, 4, v{T0}
    v_and_b32 v{T1}, 1, v{N}
    v_lshl_add_u32 v{T0}, v{T1}, 3, v{T0}
    v_bfe_u32 v{T1}, v{N}, 1, 1
    v_lshl_add_u32 v{T0}, v{T1}, 13, v{T0}
    v_add_u32 v{T0}, {LWT}, v{T0}""")
    for j in range(14):
        for h in range(2):
            a(f"ds_read_b64_tr_b16 {v2(WF+4*j+2*h)}, v{T0} offset:{(32*j+4*h)*16}")
    a(f"""v_and_b32 v{XU+4}, 7, v{N}
    v_mul_u32_u24 v{XU+4}, {PX}, v{XU+4}
    v_lshl_add_u32 v{XU+4}, v{G}, 4, v{XU+4}
    v_lshlrev_b32 v{XU+5}, 4, v{N}
    v_lshl_add_u32 v{XU+5}, v{G}, 3, v{XU+5}
    s_lshl_b32 s22, s50, 7
    s_add_u32 s22, s22, {WS_ACT}
    Lc1_now:""")
    fetch_row_finish(a, XR, T2)
    a(f"""s_waitcnt lgkmcnt(0)
    s_barrier
    s_cmp_lg_u32 s20, 0
    s_cbranch_scc1 Lc1_epoch""")
    stamp(a, 10)
    for j in range(14):
        a(f"ds_read_b128 {v4(XF_+4*j)}, v{XU+4} offset:{LXS+64*j}")
    for j in range(14):
        a(f"s_waitcnt lgkmcnt({13-j})")
        A = ACC + 4*(j & 1)
        a(f"v_mfma_f32_16x16x32_bf16 {v4(A)}, {v4(WF+4*j)}, {v4(XF_+4*j)}, {'0' if j < 2 else v4(A)}")
    for p in range(2):
        a(f"v_pk_add_f32 {v2(ACC+2*p)}, {v2(ACC+2*p)}, {v2(ACC+4+2*p)}")
    for p in range(2): a(f"v_cvt_pk_bf16_f32 v{ACC+4+p}, v{ACC+2*p}, v{ACC+2*p+1}")
    for p in range(2): a(f"v_mov_b32 v{ACC+6+p}, v{ACC+4+p}")
    for p in range(2): a(f"v_permlane32_swap_b32 v{ACC+4+p}, v{ACC+6+p}")
    for p in range(2):
        a(f"v_lshlrev_b32 v{ACC+2*p}, 16, v{ACC+4+p}")
        a(f"v_and_b32 v{ACC+2*p+1}, 0xffff0000, v{ACC+4+p}")
    for r in range(4): a(f"v_mul_f32 v{XU+r}, {fl(-1.4426950408889634)}, v{ACC+r}")
    for r in range(4): a(f"v_exp_f32 v{XU+r}, v{XU+r}")
    for p in range(2):
        a(f"v_lshlrev_b32 v{XR+2*p}, 16, v{ACC+6+p}")
        a(f"v_and_b32 v{XR+2*p+1}, 0xffff0000, v{ACC+6+p}")
    for r in range(4): a(f"v_add_f32 v{XU+r}, 1.0, v{XU+r}")
    for r in range(4): a(f"v_rcp_f32 v{XU+r}, v{XU+r}")
    for r in range(4): a(f"v_mul_f32 v{ACC+r}, v{ACC+r}, v{XU+r}")
    for p in range(2): a(f"v_cvt_pk_bf16_f32 v{ACC+4+p}, v{ACC+2*p}, v{ACC+2*p+1}")
    for p in range(2):
        a(f"v_lshlrev_b32 v{ACC+2*p}, 16, v{ACC+4+p}")
        a(f"v_and_b32 v{ACC+2*p+1}, 0xffff0000, v{ACC+4+p}")
    for p in range(2): a(f"v_pk_mul_f32 {v2(ACC+2*p)}, {v2(ACC+2*p)}, {v2(XR+2*p)}")
    for p in range(2): a(f"v_cvt_pk_bf16_f32 v{XR+p}, v{ACC+2*p}, v{ACC+2*p+1}")
    for p in range(2): a(f"v_min_u32 v{XR+p}, -2, v{XR+p}")
    a(f"""s_mov_b32 exec_lo, 0x00ff00ff
    s_mov_b32 exec_hi, 0
    buffer_store_dwordx2 {v2(XR)}, v{XU+5}, s[12:15], s22 offen {SC}
    s_branch Lend
    Lc1_epoch:
    s_lshl_b32 s29, s2, 3
    s_add_u32 s29, s29, s20
    s_cmp_lg_u32 s29, 1
    s_cbranch_scc1 Lend
    s_mov_b64 exec, 1
    v_mov_b32 v{T0}, s56
    s_mov_b32 s29, {WS_EPOCH}
    buffer_store_dword v{T0}, v{VL}, s[12:15], s29 offen {SC}
    s_branch Lend""")

def c2(a):
    K = C_K
    OA = 8; OR = 10; SG = 12; VA = 13; VO = 14; VW = 15; WF = 88; AF = 116; ACC = 52; RD = 168
    a(f"""s_mul_i32 s24, s20, 7168
    s_add_u32 s24, s24, {LWT}
    v_lshrrev_b32 v{T0}, 2, v{N}
    v_lshl_add_u32 v{T0}, v{G}, 3, v{T0}
    v_lshlrev_b32 v{T0}, 5, v{T0}
    v_and_b32 v{T1}, 3, v{N}
    v_lshl_add_u32 v{T0}, v{T1}, 3, v{T0}
    v_add_u32 v{VW}, s24, v{T0}""")
    for j in range(7):
        for h in range(2):
            a(f"ds_read_b64_tr_b16 {v2(WF+4*j+2*h)}, v{VW} offset:{(32*j+4*h)*32}")
    a(f"""v_and_b32 v{T1}, 7, v{N}
    v_mul_u32_u24 v{VO}, {PX}, v{T1}
    v_lshl_add_u32 v{VO}, v{G}, 3, v{VO}
    v_add_u32 v{VO}, s51, v{VO}
    v_lshlrev_b32 v{VA}, 4, v{T1}
    v_lshl_add_u32 v{VA}, v{G}, 7, v{VA}
    s_mul_i32 s25, s20, {7*512}
    s_add_u32 s25, s25, {WS_ACT}
    v_and_b32 v{OA}, 0x7ff, v{K}
    v_sub_u32 v{OA}, 2047, v{OA}
    v_mul_u32_u24 v{OA}, 896, v{OA}
    v_lshl_add_u32 v{OA}, v{G}, 3, v{OA}
    v_ashrrev_i32 v{T2}, 31, v{K}
    v_not_b32 v{T2}, v{T2}
    v_or_b32 v{T2}, 0x80000000, v{T2}
    v_xor_b32 v{K+1}, v{K}, v{T2}
    v_and_b32 v{K+1}, 0xffff0000, v{K+1}""")
    sigmoid_mul(a, SG, K+1, "1.0", T2)
    rbf(a, SG, SG)
    a(f"""v_lshlrev_b32 v{T1}, 4, v0
    v_add_u32 v{T1}, {LRED}, v{T1}""")
    def lds():
        for j in range(7):
            a(f"buffer_load_dwordx4 {v4(AF+4*j)}, v{VA}, s[12:15], s25 offen offset:{512*j} {SC}")
    if OPT["c2re"]:
        if OPT["sl_a"]: a(f"s_sleep {OPT['sl_a']}")
        lds()
        fetch_row_finish(a, 84, T2)
        anyones(a, range(AF, AF+28), T0)
        a("s_cmp_eq_u64 vcc, 0\ns_cbranch_scc1 Lactok")
        poll(a, lds, lambda: anyones(a, range(AF, AF+28), T0))
        a("Lactok:")
    else:
        fetch_row_finish(a, 84, T2)
        poll(a, lds, lambda: anyones(a, range(AF, AF+28), T0), pre=OPT["sl_a"])
    stamp(a, 10)
    a("s_waitcnt lgkmcnt(0)")
    for j in range(7):
        A = ACC + 4*(j & 1)
        a(f"v_mfma_f32_16x16x32_bf16 {v4(A)}, {v4(WF+4*j)}, {v4(AF+4*j)}, {'0' if j < 2 else v4(A)}")
    for p in range(2):
        a(f"v_pk_add_f32 {v2(ACC+2*p)}, {v2(ACC+2*p)}, {v2(ACC+4+2*p)}")
    a(f"""ds_write_b128 v{T1}, {v4(ACC)}
    s_waitcnt lgkmcnt(0)
    s_barrier
    s_cmp_lg_u32 s20, 0
    s_cbranch_scc1 Lend
    ds_read_b64 {v2(OR)}, v{VO} offset:{LXS}""")
    for w in range(1, 8):
        a(f"ds_read_b128 {v4(RD+4*w)}, v{T1} offset:{1024*w}")
    a("s_waitcnt lgkmcnt(7)")
    for i in range(2):
        a(f"v_lshlrev_b32 v{RD+2*i}, 16, v{OR+i}")
        a(f"v_and_b32 v{RD+2*i+1}, 0xffff0000, v{OR+i}")
    for w in range(1, 8):
        a(f"s_waitcnt lgkmcnt({7-w})")
        for p in range(2):
            a(f"v_pk_add_f32 {v2(ACC+2*p)}, {v2(ACC+2*p)}, {v2(RD+4*w+2*p)}")
    for rnd in range(2):
        for p in range(2): a(f"v_cvt_pk_bf16_f32 v{ACC+4+p}, v{ACC+2*p}, v{ACC+2*p+1}")
        for p in range(2):
            a(f"v_lshlrev_b32 v{ACC+2*p}, 16, v{ACC+4+p}")
            a(f"v_and_b32 v{ACC+2*p+1}, 0xffff0000, v{ACC+4+p}")
        for p in range(2):
            if rnd == 0: a(f"v_pk_mul_f32 {v2(ACC+2*p)}, {v2(ACC+2*p)}, {v2(SG)} op_sel_hi:[1,0]")
            else: a(f"v_pk_add_f32 {v2(ACC+2*p)}, {v2(ACC+2*p)}, {v2(RD+2*p)}")
    for p in range(2): a(f"v_cvt_pk_bf16_f32 v{OR+p}, v{ACC+2*p}, v{ACC+2*p+1}")
    a(f"""s_mov_b32 exec_lo, 0x00ff00ff
    s_mov_b32 exec_hi, 0x00ff00ff
    buffer_store_dwordx2 {v2(OR)}, v{OA}, s[52:55], s51 offen {['', 'sc1', 'nt', 'sc0 sc1'][OPT['ost']]}""")

def clears(a):
    a(f"""v_mov_b32 v{JUNK+2}, -1
    v_lshlrev_b32 v{T1}, 2, v{LANE}
    s_lshl_b32 s24, s2, 7
    s_add_u32 s24, s24, {WS_ACT}
    s_mov_b32 exec_hi, 0
    buffer_store_dword v{JUNK+2}, v{T1}, s[12:15], s24 offen {SC}
    s_mov_b32 exec_lo, 1
    s_lshl_b32 s23, s96, 11
    s_add_u32 s23, s23, {WS_ROW}
    buffer_load_dword v{JUNK}, v{VL}, s[52:55], s97 offen
    buffer_load_dword v{JUNK+1}, v{VL}, s[12:15], s23 offen
    s_mov_b64 exec, -1""")

def prefetch(a, w0=1, T0=T0, T1=T1):
    a(f"""s_and_b32 s24, s2, 7
    s_lshr_b32 s25, s2, 3
    s_mul_i32 s26, s25, {14*3584}
    s_mov_b32 s18, {448*3584}
    s_mov_b32 s19, 0x00020000
    s_cmp_eq_u32 s20, {w0+2}
    s_cbranch_scc1 Lpf_d
    v_lshrrev_b32 v{T0}, 2, v{LANE}
    v_mul_u32_u24 v{T0}, 3584, v{T0}
    v_and_b32 v{T1}, 3, v{LANE}
    v_lshl_add_u32 v{T0}, v{T1}, 7, v{T0}
    s_mul_i32 s24, s24, 448
    s_cmp_eq_u32 s20, {w0}
    s_cselect_b32 s16, s42, s44
    s_cselect_b32 s17, s43, s45
    s_branch Lpf_go
    Lpf_d:
    v_mul_u32_u24 v{T0}, 896, v{LANE}
    s_lshl_b32 s24, s24, 7
    s_mov_b32 s16, s46
    s_mov_b32 s17, s47
    Lpf_go:
    s_and_b32 s17, s17, 0xffff
    s_add_u32 s26, s26, s24
    s_mov_b32 exec_hi, 0x00ffffff
    buffer_load_dword v{JUNK}, v{T0}, s[16:19], s26 offen
    s_mov_b32 exec_hi, -1""")

def kernel(a):
    if OPT["stamps"]:
        for k in range(NST): a(f"s_mov_b32 s{64+2*k}, 0")
    stamp(a, 0)
    a(f"""s_load_dwordx2 s[8:9], s[0:1], 0
    s_cmp_ge_u32 s2, 256
    s_cbranch_scc1 Lexit
    v_lshrrev_b32 v{T0}, 6, v0
    v_and_b32 v{LANE}, 63, v0
    v_readfirstlane_b32 s20, v{T0}
    v_lshlrev_b32 v{VL}, 4, v{LANE}
    s_and_b32 s21, s2, 31
    s_lshr_b32 s22, s2, 5
    s_mov_b32 s10, {XB}
    s_mov_b32 s11, 0x00020000
    s_cmp_lt_u32 s20, 4
    s_cbranch_scc1 Lloader
    s_getpc_b64 s[30:31]
    Lpc:
    v_and_b32 v{T2}, 255, v0
    v_lshlrev_b32 v{JUNK}, 7, v{T2}
    v_mov_b32 v{JUNK+1}, s31
    v_add_co_u32 v{JUNK}, vcc, s30, v{JUNK}
    v_addc_co_u32 v{JUNK+1}, vcc, 0, v{JUNK+1}, vcc
    v_cmp_gt_u32 vcc, (Lexit-Lpc)/128+1, v{T2}
    s_and_saveexec_b64 s[30:31], vcc
    s_cbranch_execz Lcompute
    global_load_dword v{JUNK+2}, v[{JUNK}:{JUNK+1}], off
    s_branch Lcompute
    Lloader:
    v_cmp_lt_u32 vcc, 29, v{LANE}
    s_lshl_b32 s23, s20, 9
    s_add_u32 s23, s23, s21
    s_mul_i32 s23, s23, 896
    s_mul_i32 s24, s20, {16*PH}
    v_add_u32 v{T1}, {32*896 - 480}, v{VL}
    s_mov_b32 s25, {'s22' if OPT['rot'] else '0'}
    v_cndmask_b32 v{T1}, v{VL}, v{T1}, vcc
    s_mov_b32 exec_lo, 0xcfffffff
    s_mov_b32 exec_hi, 0x03ffffff
    s_mov_b32 s28, 0
    s_waitcnt lgkmcnt(0)""")
    stamp(a, 3, True)
    if OPT["dmau"]:
        a("Ldma:")
        for i in range(8):
            a(f"""s_mul_i32 s26, s25, {2*PH}
            s_mul_i32 s27, s25, {64*896}
            s_add_u32 m0, s26, s24
            s_add_u32 s27, s27, s23
            s_add_u32 s25, s25, 1
            buffer_load_dwordx4 v{T1}, s[8:11], s27 offen lds
            s_and_b32 s25, s25, 7""")
        a(f"""s_add_u32 s24, s24, {LXH}
        s_add_u32 s23, s23, 448
        s_add_u32 s28, s28, 1
        s_cmp_lt_u32 s28, 2""")
        if OPT["b1"]: a("s_cbranch_scc0 Ldmad\ns_barrier\ns_branch Ldma\nLdmad:")
        else: a("s_cbranch_scc1 Ldma")
    else:
        a(f"""Ldma:
        s_mul_i32 s26, s25, {2*PH}
        s_mul_i32 s27, s25, {64*896}
        s_add_u32 s26, s26, s24
        s_add_u32 s27, s27, s23
        s_mov_b32 m0, s26
        s_add_u32 s25, s25, 1
        buffer_load_dwordx4 v{T1}, s[8:11], s27 offen lds
        s_and_b32 s25, s25, 7
        s_add_u32 s28, s28, 1
        s_cmp_lg_u32 s28, 8
        s_cbranch_scc1 Ldma1
        s_add_u32 s24, s24, {LXH}
        s_add_u32 s23, s23, 448
        Ldma1:
        s_cmp_lt_u32 s28, 16
        s_cbranch_scc1 Ldma""")
    def ltail():
        a(f"""Lltail:
        s_mov_b64 exec, -1
        s_load_dwordx2 s[6:7], s[0:1], 96
        s_load_dwordx8 s[40:47], s[0:1], 48
        s_load_dwordx2 s[48:49], s[0:1], 80
        v_and_b32 v{N}, 15, v0
        v_bfe_u32 v{G}, v0, 4, 2""")
        stamp(a, 6, True)
        early = OPT["e2a"]
        if early:
            a("s_waitcnt vmcnt(8)")
            stamp(a, 1)
            a("s_barrier")
        a("s_waitcnt lgkmcnt(0)")
        b_setup(a)
        b_loads(a)
        a("s_cmp_lg_u32 s20, 0\ns_cbranch_scc1 Lw123a")
        clears(a)
        if not early:
            a("s_waitcnt vmcnt(14)")
            stamp(a, 1)
            a("s_barrier")
        a("s_waitcnt vmcnt(6)")
        stamp(a, 2)
        a(f"""s_barrier
        v_mov_b32 v{T0}, {LTAG}
        s_waitcnt vmcnt(5)
        ds_write_b32 v{T0}, v{V_EP}
        s_branch Lprol
        Lw123a:""")
        if OPT["pf"] == 3: prefetch(a)
        if not early:
            a(f"s_waitcnt vmcnt(12)")
            stamp(a, 1)
            a("s_barrier")
        a(f"s_waitcnt vmcnt({4 if OPT['pf'] == 3 else 3})")
        stamp(a, 2)
        a(f"s_barrier")
        if OPT["pf"] == 1: prefetch(a)
        a(f"s_waitcnt vmcnt({2 if OPT['pf'] == 4 else 3})")
        a("Lprol:")
        if OPT["wdh"]: wd_dma(a, 0, 7, "Lnwd2")
        if OPT["w64l"]:
            a("s_mov_b32 s3, s20")
            w64(a, AC1)
            for i in range(8): a(f"v_xor_b32 v{AC1+16+i}, 0x80008000, v{AC1+8+i}")
            a(f"s_lshl_b32 s26, s3, 12\ns_add_u32 s26, s26, {LWT}\nv_add_u32 v{T1}, s26, v{VL}")
            for i in range(6): a(f"ds_write_b128 v{T1}, {v4(AC1+4*i)} offset:{[0, 1024, 2048, 3072, 16384, 17408][i]}")
        if not OPT["prolate"]: pro(a)
        stamp(a, 3)
        a("s_waitcnt lgkmcnt(0)\ns_barrier")
        a("s_branch Lpro1" if OPT["prolate"] else "s_branch Lpro2")
    if OPT["layout"]: a("s_branch Lltail")
    else: ltail()
    a(f"""Lcompute:
    s_mov_b64 exec, -1
    s_load_dwordx2 s[6:7], s[0:1], 96
    s_load_dwordx8 s[40:47], s[0:1], 48
    s_load_dwordx2 s[48:49], s[0:1], 80
    v_and_b32 v{N}, 15, v0
    v_bfe_u32 v{G}, v0, 4, 2
    s_and_b32 s3, s20, 3""")
    if OPT["prio"]: a("s_setprio 3")
    stamp(a, 9, True)
    a_pre(a)
    stamp(a, 11, True)
    a("s_waitcnt lgkmcnt(0)")
    b_setup(a)
    stamp(a, 1)
    a("s_barrier")
    stamp(a, 2)
    a_main(a)
    stamp(a, 4)
    if OPT["prio"]: a("s_setprio 0")
    a(f"buffer_load_dwordx4 {v4(B_WR)}, v{VL}, s[16:19], 0 offen")
    a(f"buffer_load_dwordx4 {v4(B_XR)}, v{VL}, s[8:11], s97 offen")
    a("Lpro1:")
    pro(a)
    a("Lpro2:")
    a(f"""v_readfirstlane_b32 s56, v{V_EP}
    s_add_u32 s56, s56, 1
    s_mul_i32 s98, s56, {HASH}
    s_lshl_b32 s99, s98, 6
    s_and_b32 s59, s56, 0xffff
    s_barrier""")
    stamp(a, 5)
    b_main(a)
    if OPT["wdh"]: a("s_cmp_lt_u32 s20, 4\ns_cbranch_scc1 Lnwd1")
    wd_dma(a, OPT['wdsplit'], 7, 'Lnwd1')
    c_select(a)
    a("s_cmp_ge_u32 s2, 224\ns_cbranch_scc1 Lc2")
    c1(a)
    a("Lc2:\ns_and_b32 s50, s2, 7\ns_cmp_eq_u32 s50, 7\ns_cbranch_scc1 Lend\ns_lshl_b32 s50, s50, 7\ns_bfe_u32 s51, s2, 0x20003\ns_lshl_b32 s51, s51, 5\ns_add_u32 s51, s51, s50")
    c2(a)
    a("Lend:")
    dump_stamps(a)
    if OPT["layout"]:
        a("s_endpgm")
        ltail()
        for f in TAIL: f()
    a("Lexit:\ns_endpgm\nLfullsel:")
    select8(a, C_K, C_TMP, C_L, C_SW, C_SR)
    a("s_branch Lseldone")

NAME = "sequential_preLN__spectral_fnet__moe_arch_mod__prompt_kernel"
def build():
    a = Asm()
    kernel(a)
    body = a.finish()
    if OPT["align"]: body = align_pass(body)
    return gen.HDR + f"""; @launch grid=(256,1,1) block=(512,1,1) lds={LDS_TOTAL}
.amdgcn_target "amdgcn-amd-amdhsa--gfx950"
.text
.globl {NAME}
.p2align 8
.type {NAME},@function
{NAME}:
""" + body + f""".section .rodata,"a"
.p2align 6
.amdhsa_kernel {NAME}
  .amdhsa_next_free_vgpr {NVGPR}
  .amdhsa_next_free_sgpr 102
  .amdhsa_accum_offset {NVGPR}
  .amdhsa_group_segment_fixed_size 0
  .amdhsa_kernarg_size 104
  .amdhsa_user_sgpr_count 2
  .amdhsa_user_sgpr_kernarg_segment_ptr 1
  .amdhsa_system_sgpr_workgroup_id_x 1
.end_amdhsa_kernel
"""

if __name__ == "__main__":
    for x in list(sys.argv[1:]):
        if x.startswith("--"):
            k, _, v = x[2:].partition("=")
            assert k in OPT, k
            OPT[k] = int(v) if v else 1
            sys.argv.remove(x)
    open(sys.argv[1], "w").write(build())
```

```python
import sys
from asmlib import Asm, fl, align_pass
import gen
from gen import srd, v4, v2, rbf, sd_chain, reduce3, unpack8, lim_regs, select8, sigmoid_mul

WS_KEYS = 0x200000
WS_HINT = 0x204000
WS_EPOCH = 0x208000
WS_ACT = 0x210000
WS_STAMP = 0x3c0000
WS_ROW = 0x400000
WS_SIZE = 0x800000
XB = 1835008
PH = 480; PX = 928; PF = 136; PY = 512
LXH = 64 * PH
LW = 2 * LXH; LCS = LW + 28 * 1024; LTAG = LCS + 256; LF = LCS + 272; LWT = LF + 64 * PF; LDS_TOTAL = LWT + 57344
LY = 0
LSEL = 16384; LSE2 = 16640; LKEY = 17152; LXS = 17408; LRED = 24832
SPIN = 4000000
SC = "sc1"
HASH = "0x9e3779b1"
OPT = dict(stamps=0, cyc=0, align=0, sl_u0=6, sl_k=15, sl_a=0, rowpf=2, barj=5, dbgto=0, ost=0, c2re=1, rot=1, pf=3, wdsplit=0, w64l=0, layout=1, e2a=1, prolate=1, amp=-1, ampw=0, ampb=224, prio=1, wdh=0, cheb=1, ln1emu=1, dmau=1, b1=0, part=0, sl_r=4, hint=0, sl_h=4, sl_h0=0, trim=1)
NST = 14

def stamp(a, k, early=False):
    if OPT["stamps"] == 5:
        if early != 5 and k not in (0, 3, 4, NST - 1): return
    elif OPT["stamps"] == 4:
        if early == 5 or (not early and k not in (0, 1, 2, NST - 1)): return
    elif early: return
    if OPT["stamps"] == 2 and k not in (0, NST - 1): return
    if OPT["stamps"]: a(f"{'s_memtime' if OPT['cyc'] else 's_memrealtime'} s[{64+2*k}:{65+2*k}]")
def dump_stamps(a):
    if OPT["amp"] >= 0:
        k = OPT["amp"]
        a(f"s_memrealtime s[{64+2*(NST-2)}:{65+2*(NST-2)}]")
        a(f"""s_cmp_lg_u32 s2, {OPT['ampb']}
        s_cbranch_scc1 Lampd
        s_cmp_lg_u32 s20, {OPT['ampw']}
        s_cbranch_scc1 Lampd
        s_waitcnt lgkmcnt(0)
        s_sub_u32 s60, s{64+2*k}, s64
        s_mul_i32 s60, s60, 9
        s_add_u32 s60, s60, s{64+2*(NST-2)}
        Lamp:
        s_memrealtime s[62:63]
        s_waitcnt lgkmcnt(0)
        s_sub_u32 s61, s62, s60
        s_cmp_lt_i32 s61, 0
        s_cbranch_scc1 Lamp
        Lampd:""")
        return
    if not OPT["stamps"]: return
    stamp(a, NST - 2)
    a("s_waitcnt vmcnt(0)")
    stamp(a, NST - 1)
    a("s_mov_b64 exec, 1\ns_waitcnt lgkmcnt(0)")
    a(f"s_lshl_b32 s60, s2, 3\ns_add_u32 s60, s60, s20\ns_lshl_b32 s60, s60, 6\ns_add_u32 s60, s60, {WS_STAMP}\nv_mov_b32 v1, 0")
    for k in range(NST):
        a(f"v_mov_b32 v2, s{64+2*k}\nbuffer_store_dword v2, v1, s[12:15], s60 offen offset:{4*k}")

_lbl = [0]
TAIL = []
def timeout_note(a, ident):
    if not OPT["dbgto"]: return
    a(f"""s_lshl_b32 s100, s2, 8
    s_add_u32 s100, s100, s20
    s_add_u32 s100, s100, {ident << 24}
    v_mov_b32 v{JUNK+3}, s100
    s_mov_b32 s100, {0x3f0000 + 4*ident}
    s_mov_b64 exec, 1
    buffer_store_dword v{JUNK+3}, v{VL}, s[12:15], s100 offen
    v_mov_b32 v{JUNK+3}, s36
    buffer_store_dword v{JUNK+3}, v{VL}, s[12:15], s100 offen offset:64
    v_mov_b32 v{JUNK+3}, s98
    buffer_store_dword v{JUNK+3}, v{VL}, s[12:15], s100 offen offset:128
    v_mov_b32 v{JUNK+3}, s34
    buffer_store_dword v{JUNK+3}, v{VL}, s[12:15], s100 offen offset:192
    s_mov_b64 exec, -1""")
def poll(a, loads, check, pre=0):
    _lbl[0] += 1
    L = f"Lpoll{_lbl[0]}"
    if pre: a(f"s_sleep {pre}")
    a(f"s_mov_b32 s57, {SPIN}\n{L}:")
    loads()
    a("s_waitcnt vmcnt(0)")
    check()
    a(f"""s_cmp_eq_u64 vcc, 0
    s_cbranch_scc1 {L}d
    s_sub_u32 s57, s57, 1
    s_cbranch_scc0 {L}""")
    timeout_note(a, _lbl[0])
    a(f"{L}d:")

class LdsQ:
    def __init__(s, a): s.a = a; s.q = []
    def read(s, text, b, n=4):
        s.a(text); s.q.append(set(range(b, b + n)))
    def need(s, b, n=4):
        rs = set(range(b, b + n)); last = -1
        for i, d in enumerate(s.q):
            if d & rs: last = i
        if last >= 0:
            s.a(f"s_waitcnt lgkmcnt({len(s.q) - 1 - last})")
            s.q = s.q[last+1:]

LANE, N, G, T0, T1, T2, VL = 1, 2, 3, 4, 5, 6, 7
B_XR = 8; B_WR = 12; V_EP = 16; VFW = 17; VFR = 18; VXR = 19; VCS = 20; VUS = 21; ST = 22
WC = 28; WSN = 36; WNS = 44
AC1 = 52; AC2 = 68; GR = 84; XF = 88; WD = 116
JUNK = 228; SG2 = 232; V_GU = 234; NVGPR = 236
B_AF = 28; B_AD = 36; B_VY = 40; B_VU = 41; C_L = {1: 42, 2: 43, 4: 44}; C_SW = 45; C_SR = 46; C_KA = 47
C_FW = 48; C_FR = 49; C_FY = 50; C_PF = 51
B_R = 116; B_ACC = 52; B_XU = 68; B_WU = 76; B_S1, B_S2, B_S3 = 88, 90, 92; B_TH = 96; P_TH = 104; P_EPS = 112; P_BASE = 113
C_K = 148; C_TMP = 152; C_KEY = 156; C_X = 157; C_Y = 158; C_OUT = 160; C_LN = 164; C_IX = 224; C_STK = 159

def trig_block(a, n, k0, eps, base, th, want_sin):
    for i in range(n):
        k = k0 + i
        if k == 0: a(f"v_mov_b32 v{th+i}, v{base}")
        else: a(f"v_fmamk_f32 v{th+i}, v{eps}, {fl(float(k))}, v{base}")
    for i in range(n):
        if want_sin: a(f"v_sin_f32 v{th+n+i}, v{th+i}")
        a(f"v_cos_f32 v{th+i}, v{th+i}")

def w64(a, D):
    EPS, BASE, TH, S = ST + 4, ST + 5, XF, ST
    a(f"""v_lshrrev_b32 v{S}, 1, v{N}
    s_lshl_b32 s25, s3, 3
    v_add_u32 v{S}, s25, v{S}
    v_sub_u32 v{S+1}, 64, v{S}
    v_cmp_eq_u32 vcc, 0, v{S}
    v_and_b32 v{S+2}, 1, v{N}
    v_cndmask_b32 v{S+1}, v{S+1}, 32, vcc
    v_cmp_eq_u32 vcc, 0, v{S+2}
    v_lshlrev_b32 v{S+2}, 3, v{G}
    v_cndmask_b32 v{S+1}, v{S+1}, v{S}, vcc
    v_cvt_f32_u32 v{S+2}, v{S+2}
    v_and_b32 v{S}, 1, v{S+1}
    v_cvt_f32_u32 v{S+1}, v{S+1}
    v_mul_u32_u24 v{S}, 0x8000, v{S}
    v_mul_f32 v{EPS}, {fl(1.0/64)}, v{S+1}
    v_lshl_or_b32 v{S}, v{S}, 16, v{S}
    v_mul_f32 v{BASE}, v{S+2}, v{EPS}""")
    if OPT["cheb"]:
        C2 = S + 3; CV = XF; SV = XF + 8
        a(f"""v_cos_f32 v{C2}, v{EPS}
        v_add_f32 v{CV+1}, v{EPS}, v{BASE}
        v_sin_f32 v{SV}, v{BASE}
        v_cos_f32 v{CV}, v{BASE}
        v_sin_f32 v{SV+1}, v{CV+1}
        v_cos_f32 v{CV+1}, v{CV+1}
        v_add_f32 v{C2}, v{C2}, v{C2}""")
        for i in range(2, 8):
            for Vv in (CV, SV): a(f"v_fma_f32 v{Vv+i}, v{C2}, v{Vv+i-1}, -v{Vv+i-2}")
        for i in range(4):
            a(f"v_cvt_pk_f16_f32 v{D+i}, v{CV+2*i}, v{CV+2*i+1}")
            a(f"v_cvt_pk_f16_f32 v{D+8+i}, v{SV+2*i}, v{SV+2*i+1}")
        for i in range(4):
            a(f"v_xor_b32 v{D+4+i}, v{S}, v{D+i}")
            a(f"v_xor_b32 v{D+12+i}, v{S}, v{D+8+i}")
        return
    for ks in range(2):
        for h in range(2):
            trig_block(a, 4, 32*ks + 4*h, EPS, BASE, TH, True)
            for i in range(2):
                a(f"v_cvt_pk_f16_f32 v{D+4*ks+2*h+i}, v{TH+2*i}, v{TH+2*i+1}")
                a(f"v_cvt_pk_f16_f32 v{D+8+4*ks+2*h+i}, v{TH+4+2*i}, v{TH+4+2*i+1}")

def a_pre(a):
    EPS, BASE, TH, ONE, TO, CS = ST + 4, ST + 5, XF, XF + 8, XF + 12, AC1
    a(f"""s_and_b32 s25, s3, 1
    s_lshl_b32 s25, s25, 2
    v_and_b32 v{T0}, 3, v{N}
    v_add_u32 v{T0}, s25, v{T0}
    v_lshrrev_b32 v{T1}, 2, v{N}
    s_mul_i32 s26, s22, 28
    s_add_u32 s26, s26, 1
    v_mad_u32_u24 v{T1}, v{T1}, 7, v{T0}
    v_add_u32 v{T1}, s26, v{T1}
    v_cmp_ne_u32 vcc, 7, v{T0}
    s_lshr_b32 s25, s3, 1
    s_mul_i32 s25, s25, {fl(0.25)}
    v_cndmask_b32 v{T1}, 0, v{T1}, vcc
    v_cvt_f32_u32 v{T1}, v{T1}
    v_mul_f32 v{EPS}, {fl(1.0/448)}, v{T1}
    v_lshlrev_b32 v{T0}, 3, v{G}
    v_cvt_f32_u32 v{T2}, v{T0}
    v_fma_f32 v{BASE}, v{T2}, v{EPS}, s25
    s_mul_i32 s25, s3, {7*1024}
    s_add_u32 s25, s25, {LW}
    v_add_u32 v{T1}, s25, v{VL}""")
    for i in range(4): a(f"v_mov_b32 v{ONE+i}, 0x3f803f80")
    if OPT["cheb"]:
        C2 = ST + 3; V = WD
        a(f"v_cos_f32 v{C2}, v{EPS}")
        for j in range(7):
            for i in range(2):
                k = 32*j + i
                if k == 0: a(f"v_mov_b32 v{V}, v{BASE}")
                else: a(f"v_fmamk_f32 v{V+8*j+i}, v{EPS}, {fl(float(k))}, v{BASE}")
        a(f"v_add_f32 v{C2}, v{C2}, v{C2}")
        for j in range(7):
            for i in range(2): a(f"v_cos_f32 v{V+8*j+i}, v{V+8*j+i}")
        for i in range(2, 8):
            for j in range(7):
                a(f"v_fma_f32 v{V+8*j+i}, v{C2}, v{V+8*j+i-1}, -v{V+8*j+i-2}")
        for j in range(7):
            o = V + 56 + 4*j
            for i in range(4): a(f"v_cvt_pk_bf16_f32 v{o+i}, v{V+8*j+2*i}, v{V+8*j+2*i+1}")
            a(f"ds_write_b128 v{T1}, {v4(o)} offset:{j*1024}")
            a(f"v_mfma_f32_16x16x32_bf16 {v4(CS)}, {v4(o)}, {v4(ONE)}, {'0' if j == 0 else v4(CS)}")
    else:
      for j in range(7):
        trig_block(a, 8, 32*j, EPS, BASE, TH, False)
        o = TO + 4*(j & 1)
        for i in range(4): a(f"v_cvt_pk_bf16_f32 v{o+i}, v{TH+2*i}, v{TH+2*i+1}")
        a(f"ds_write_b128 v{T1}, {v4(o)} offset:{j*1024}")
        a(f"v_mfma_f32_16x16x32_bf16 {v4(CS)}, {v4(o)}, {v4(ONE)}, {'0' if j == 0 else v4(CS)}")
    a(f"""v_lshrrev_b32 v{ST}, 1, v{N}
    s_lshl_b32 s25, s3, 3
    v_add_u32 v{ST}, s25, v{ST}
    v_and_b32 v{ST+2}, 1, v{N}
    v_lshlrev_b32 v{VUS}, 16, v{ST}
    v_lshl_add_u32 v{VUS}, v{ST+2}, 6, v{VUS}
    v_lshl_add_u32 v{VUS}, v{G}, 4, v{VUS}
    s_lshl_b32 s25, s3, 6
    v_lshlrev_b32 v{T0}, 4, v{G}
    v_add_u32 v{VCS}, {LCS}, v{T0}
    v_add_u32 v{T1}, s25, v{VCS}
    v_lshlrev_b32 v{SG2+1}, 31, v{G}
    v_or_b32 v{SG2+1}, 1.0, v{SG2+1}
    v_xor_b32 v{SG2}, 0x80000000, v{SG2+1}
    v_pk_fma_f32 {v2(CS)}, {v2(CS)}, {v2(SG2)}, {v2(CS)}
    v_pk_fma_f32 {v2(CS+2)}, {v2(CS+2)}, {v2(SG2)}, {v2(CS+2)}
    ds_write_b128 v{T1}, {v4(CS)}""")
    if OPT["b1"]:
        a(f"v_add_u32 v{T2}, {LW}, v{VL}\ns_waitcnt lgkmcnt(0)\ns_barrier")
        for f in range(28): a(f"ds_read_b128 {v4(WD+4*f)}, v{T2} offset:{f*1024}")
    if OPT["pf"] == 4:
        a("s_waitcnt lgkmcnt(0)\ns_cmp_eq_u32 s20, 7\ns_cbranch_scc1 Lnpf4")
        prefetch(a, 4, XF, XF + 1)
        a("Lnpf4:")
    if not OPT["w64l"]:
        w64(a, WC)
        for i in range(8): a(f"v_xor_b32 v{WNS+i}, 0x80008000, v{WSN+i}")
    stamp(a, 10, True)
    a(f"v_add_u32 v{T2}, {LW}, v{VL}")
    a(f"""s_lshl_b32 s25, s3, 4
    v_add_u32 v{ST}, s25, v{N}
    v_mul_u32_u24 v{VXR}, {PH}, v{ST}
    v_add_u32 v{VXR}, v{T0}, v{VXR}
    v_mul_u32_u24 v{VFW}, {PF}, v{ST}
    v_lshl_add_u32 v{VFW}, v{G}, 3, v{VFW}
    v_add_u32 v{VFW}, {LF}, v{VFW}
    v_lshrrev_b32 v{ST}, 2, v{N}
    v_lshl_add_u32 v{ST}, v{G}, 3, v{ST}
    v_mul_u32_u24 v{VFR}, {PF}, v{ST}
    v_and_b32 v{ST}, 3, v{N}
    v_lshl_add_u32 v{VFR}, v{ST}, 3, v{VFR}
    v_add_u32 v{VFR}, {LF}, v{VFR}
    s_lshl_b32 s23, s21, 11
    s_lshl_b32 s24, s22, 8
    s_add_u32 s23, s23, s24""")
    for r in range(4):
        a(f"s_mov_b32 s{30+2*r}, {hex(((1<<r)|(1<<(20+r))) & 0xffffffff)}")
        a(f"s_mov_b32 s{31+2*r}, {hex(((1<<(8+r))|(1<<(28+r))) & 0xffffffff)}")
    a("s_mov_b64 s[24:25], 0xffff")

def a_main(a):
    q = LdsQ(a)
    def rdx(j, hf): q.read(f"ds_read_b128 {v4(XF+4*j)}, v{VXR} offset:{64*j + hf*LXH}", XF+4*j)
    def rdw(j):
        for T in range(4): q.read(f"ds_read_b128 {v4(WD+4*(7*T+j))}, v{T2} offset:{(7*T+j)*1024}", WD+4*(7*T+j))
    if OPT["b1"]:
        for j in range(7): rdx(j, 0)
    else:
        for j in range(3): rdx(j, 0); rdw(j)
    BJ = OPT["barj"]
    Q, S, M, RS = ST, ST+1, ST+2, ST+4
    def mf(A, T, j, first): a(f"v_mfma_f32_16x16x32_bf16 {v4(A+4*T)}, {v4(WD+4*(7*T+j))}, {v4(XF+4*j)}, {'0' if first else v4(A+4*T)}")
    def gram(j, first): a(f"v_mfma_f32_16x16x32_bf16 {v4(GR)}, {v4(XF+4*j)}, {v4(XF+4*j)}, {'0' if first else v4(GR)}")
    for j in range(7):
        q.need(XF + 4*j)
        gram(j, j == 0)
        for T in range(4):
            q.need(WD+4*(7*T+j))
            mf(AC1, T, j, j == 0)
        if j + 3 < 7 and not OPT["b1"]: rdx(j + 3, 0); rdw(j + 3)
        if j == BJ:
            stamp(a, 11)
            a("s_barrier")
            for k in range(BJ + 1): rdx(k, 1)
        elif j > BJ: rdx(j, 1)
    CS = WD + 28
    for j in range(7):
        q.need(XF + 4*j)
        gram(j, False)
        mf(AC2, 1, j, j == 0)
    for T in range(4): q.read(f"ds_read_b128 {v4(CS+4*T)}, v{VCS} offset:{64*T}", CS+4*T)
    stats = [None, None, f"v_mov_b32 v{Q}, 0", f"v_mov_b32 v{V_EP}, {LTAG}"]
    stats += [f"v_cndmask_b32 v{Q}, v{Q}, v{GR+r}, s[{30+2*r}:{31+2*r}]" for r in range(4)]
    stats += [f"v_add_f32 v{S}, v{AC1+7}, v{AC2+7}", f"v_cndmask_b32 v{S}, 0, v{S}, s[24:25]", None, None,
              f"v_permlane32_swap_b32 v{Q}, v{S}", f"v_add_f32 v{Q}, v{Q}, v{S}", f"v_mov_b32 v{S}, v{Q}", None, None,
              f"v_permlane16_swap_b32 v{Q}, v{S}", f"v_add_f32 v{Q}, v{Q}, v{S}", f"v_mov_b32 v{S}, v{Q}", None, None,
              f"v_permlane32_swap_b32 v{Q}, v{S}", f"v_mul_f32 v{M}, {fl(-1.0/448)}, v{S}", f"v_mul_f32 v{Q}, {fl(1.0/448)}, v{Q}",
              f"v_fma_f32 v{Q}, -v{M}, v{M}, v{Q}", f"v_max_f32 v{Q}, 0, v{Q}"]
    rb = [f"v_cvt_pk_bf16_f32 v{Q}, v{Q}, v{Q}", f"v_and_b32 v{Q}, 0xffff0000, v{Q}"]
    if OPT["ln1emu"]:
        stats += rb + [f"v_add_f32 v{Q}, {fl(1e-5)}, v{Q}"] + rb + [f"v_sqrt_f32 v{Q}, v{Q}", None] + rb + [f"v_rcp_f32 v{RS}, v{Q}"]
    else:
        stats += [f"v_add_f32 v{Q}, {fl(1e-5)}, v{Q}", f"v_rsq_f32 v{RS}, v{Q}"]
    stats += ["WAITCS", f"v_mul_f32 v{M}, v{M}, v{RS}"]
    stats += [f"v_mul_f32 v{CS+i}, v{CS+i}, v{M}" for i in range(16)]
    for j in range(7):
        for T in (0, 2, 3):
            mf(AC2, T, j, j == 0)
            for _ in range(2):
                if stats:
                    t = stats.pop(0)
                    if t == "WAITCS": q.need(CS, 16)
                    elif t: a(t)
    for p in range(2): a(f"v_pk_fma_f32 {v2(AC1+4+2*p)}, {v2(AC2+4+2*p)}, {v2(SG2)}, {v2(AC1+4+2*p)}")
    for t in stats:
        if t == "WAITCS": q.need(CS, 16)
        elif t: a(t)
    stamp(a, 3)
    for T in (0, 2, 3):
        for p in range(2):
            x = AC1 + 4*T + 2*p
            a(f"v_pk_fma_f32 {v2(x)}, {v2(AC2+4*T+2*p)}, {v2(SG2)}, {v2(x)}")
    for T in (1, 0, 2, 3):
        for p in range(2):
            x = AC1 + 4*T + 2*p
            a(f"v_pk_fma_f32 {v2(x)}, {v2(x)}, {v2(RS)}, {v2(CS+4*T+2*p)} op_sel_hi:[1,0,1]")
    for T in (1, 0, 2, 3):
        for p in range(2):
            x = AC1 + 4*T + 2*p
            a(f"v_cvt_pk_f16_f32 v{AC2+2*T+p}, v{x}, v{x+1}")
        a(f"ds_write_b64 v{VFW}, {v2(AC2+2*T)} offset:{32*T}")
    if OPT["w64l"]: a(f"s_lshl_b32 s26, s3, 12\ns_add_u32 s26, s26, {LWT}\nv_add_u32 v{T1}, s26, v{VL}")
    stamp(a, 5, 5)
    a(f"s_waitcnt lgkmcnt(0)")
    stamp(a, 6, 5)
    a(f"s_barrier")
    stamp(a, 7, 5)
    if OPT["w64l"]:
        for i in (0, 2, 4, 1, 3, 5): a(f"ds_read_b128 {v4(WC+4*i)}, v{T1} offset:{(i % 4 if i < 4 else i - 2 + 2) * 0 + i * 0 + [0, 1024, 2048, 3072, 16384, 17408][i]}")
    FA = WD + 48
    fa = lambda T, ks: FA + (2*T + ks) * 4
    q = LdsQ(a)
    for T in range(2):
        for ks in range(2):
            for TT in (T, T + 2):
                for h in range(2):
                    q.read(f"ds_read_b64_tr_b16 {v2(fa(TT, ks)+2*h)}, v{VFR} offset:{(32*ks+4*h)*PF+32*TT}", fa(TT, ks)+2*h, 2)
    q.read(f"ds_read_b32 v{V_EP}, v{V_EP}", V_EP, 1)
    UR = AC1; UI = AC1 + 8; o = XF
    tagcalc = [f"v_add_u32 v{M}, 1, v{V_EP}", f"s_mov_b32 s98, {HASH}", f"v_mul_lo_u32 v{M}, v{M}, s98"]
    for T in range(2):
        for ks in range(2):
            fr = v4(fa(T, ks)); fi = v4(fa(T + 2, ks))
            q.need(fa(T, ks))
            if T == 0 and ks == 0: stamp(a, 8, 5)
            a(f"v_mfma_f32_16x16x32_f16 {v4(UR+4*T)}, {fr}, {v4(WC+4*ks)}, {'0' if ks == 0 else v4(UR+4*T)}")
            a(f"v_mfma_f32_16x16x32_f16 {v4(UI+4*T)}, {fr}, {v4(WNS+4*ks)}, {'0' if ks == 0 else v4(UI+4*T)}")
            q.need(fa(T + 2, ks))
            a(f"v_mfma_f32_16x16x32_f16 {v4(UR+4*T)}, {fi}, {v4(WSN+4*ks)}, {v4(UR+4*T)}")
            a(f"v_mfma_f32_16x16x32_f16 {v4(UI+4*T)}, {fi}, {v4(WC+4*ks)}, {v4(UI+4*T)}")
            if T == 1 and ks == 1:
                q.need(V_EP, 1)
                for t in tagcalc: a(t)
    stamp(a, 9, 5)
    for r in range(4): a(f"v_cvt_pk_f16_f32 v{o+r}, v{UR+r}, v{UI+r}")
    a(f"buffer_store_dwordx4 {v4(o)}, v{VUS}, s[12:15], s23 offen {SC}")
    stamp(a, 10, 5)
    a(f"v_add3_u32 v{Q}, v{o}, v{o+1}, v{o+2}")
    a(f"v_sub_u32 v{M}, v{M}, v{o+3}")
    a(f"v_sub_u32 v{M}, v{M}, v{Q}")
    for r in range(3): a(f"v_cvt_pk_f16_f32 v{o+4+r}, v{UR+4+r}, v{UI+4+r}")
    a(f"""v_add3_u32 v{Q}, v{o+4}, v{o+5}, v{o+6}
    v_sub_u32 v{o+7}, v{M}, v{Q}
    buffer_store_dwordx4 {v4(o+4)}, v{VUS}, s[12:15], s23 offen offset:128 {SC}""")

def b_ids(a):
    a(f"""s_and_b32 s92, s2, 7
    s_lshr_b32 s93, s2, 6
    s_lshl_b32 s93, s93, 3
    s_or_b32 s92, s92, s93
    s_bfe_u32 s93, s2, 0x10003
    s_bfe_u32 s96, s2, 0x20004
    s_sub_u32 s95, 64, s92
    s_cmp_eq_u32 s92, 0
    s_cselect_b32 s95, 32, s95
    s_cselect_b32 s94, 0, 1
    s_xor_b32 s94, s94, s93
    s_cmp_eq_u32 s93, 0
    s_cselect_b32 s95, s92, s95
    s_lshl_b32 s96, s96, 9
    s_add_u32 s95, s95, s96
    s_lshl_b32 s96, s20, 6
    s_add_u32 s96, s96, s95
    s_mul_i32 s97, s96, 896""")

def b_setup(a):
    srd(a, 12, 6, WS_SIZE)
    srd(a, 52, 48, XB)
    srd(a, 16, 40, 896)
    b_ids(a)

def b_loads(a):
    a(f"""s_mov_b32 s26, {WS_EPOCH}
    v_mov_b32 v{T0}, 0
    buffer_load_dword v{V_EP}, v{T0}, s[12:15], s26 offen {SC}
    buffer_load_dwordx4 {v4(B_WR)}, v{VL}, s[16:19], 0 offen
    buffer_load_dwordx4 {v4(B_XR)}, v{VL}, s[8:11], s97 offen""")

def pro(a):
    EPS, BASE, TH, AF, AD = P_EPS, P_BASE, P_TH, B_AF, B_AD
    a(f"""s_lshl_b32 s28, s92, 16
    s_lshl_b32 s29, s20, 8
    s_add_u32 s28, s28, s29
    s_add_u32 s29, s28, 4096
    s_add_u32 s30, s28, 32768
    s_add_u32 s31, s28, 36864
    v_lshlrev_b32 v{B_VU}, 13, v{G}
    v_lshl_add_u32 v{B_VU}, v{N}, 4, v{B_VU}
    v_and_b32 v{T0}, 7, v{N}
    v_lshlrev_b32 v{T0}, 6, v{T0}
    v_add_u32 v{T0}, s95, v{T0}
    v_cvt_f32_u32 v{T0}, v{T0}
    v_cmp_gt_u32 vcc, 8, v{N}
    v_mul_f32 v{EPS}, {fl(1.0/2048)}, v{T0}
    v_lshlrev_b32 v{T1}, 2, v{G}
    v_cndmask_b32 v{EPS}, -v{EPS}, v{EPS}, vcc
    v_cvt_f32_u32 v{T1}, v{T1}
    v_mul_f32 v{BASE}, v{T1}, v{EPS}""")
    for ks in range(2):
        trig_block(a, 4, 16*ks, EPS, BASE, TH, True)
        for i in range(4):
            a(f"v_cvt_pk_f16_f32 v{AF+4*ks+i}, v{TH+i}, v{TH+4+i}")
    a(f"""v_lshrrev_b32 v{T0}, 3, v{N}
    v_and_b32 v{T1}, 3, v{N}
    v_mul_u32_u24 v{T1}, 7, v{T1}
    v_lshl_add_u32 v{T1}, v{T0}, 2, v{T1}
    s_mul_i32 s32, s20, 28
    s_add_u32 s32, s32, 1
    v_add_u32 v{T1}, s32, v{T1}
    v_sub_u32 v{T2}, 448, v{T1}
    v_cmp_gt_u32 s[34:35], 2, v{G}
    v_mov_b32 v{TH}, s93
    v_mov_b32 v{TH+1}, s94
    v_cndmask_b32 v{T2}, v{T2}, v{T1}, s[34:35]
    v_cndmask_b32 v{TH}, v{TH+1}, v{TH}, s[34:35]
    v_bfe_u32 v{TH+1}, v{N}, 2, 1
    v_cmp_eq_u32 s[60:61], v{TH}, v{TH+1}
    v_and_b32 v{TH+2}, 1, v{G}
    v_mul_u32_u24 v{TH+2}, {4*PY}, v{TH+2}
    v_add_lshl_u32 v{AD}, v{TH+2}, v{T2}, 2
    v_mov_b32 v{TH+3}, -4
    v_cndmask_b32 v{TH+3}, v{TH+3}, 4, s[34:35]
    v_add_u32 v{AD+1}, v{AD}, v{TH+3}
    v_add_u32 v{AD+2}, v{AD+1}, v{TH+3}
    v_add_u32 v{AD+3}, v{AD+2}, v{TH+3}
    v_cmp_eq_u32 s[50:51], 0, v{T0}
    s_and_b64 s[50:51], s[50:51], s[60:61]
    v_mov_b32 v{TH}, 222
    v_cmp_eq_u32 s[62:63], v{TH}, v{T1}
    s_andn2_b64 s[62:63], s[62:63], s[34:35]
    s_andn2_b64 s[62:63], s[60:61], s[62:63]
    s_mul_i32 s33, s20, {PY*4}
    v_lshlrev_b32 v{B_VY}, 5, v{LANE}
    v_add_u32 v{B_VY}, s33, v{B_VY}""")
    lim_regs(a, C_L, LANE, T0)
    a(f"""s_lshl_b32 s34, s20, 5
    s_add_u32 s34, s34, {LSEL}
    v_lshlrev_b32 v{T1}, 2, v{LANE}
    v_add_u32 v{C_SW}, s34, v{T1}
    v_add_u32 v{C_SR}, {LSEL}, v{T1}
    v_lshrrev_b32 v{C_KA}, 1, v0
    v_lshlrev_b32 v{C_KA}, 6, v{C_KA}
    v_and_b32 v{T0}, 1, v0
    v_lshl_add_u32 v{C_KA}, v{T0}, 4, v{C_KA}
    s_lshl_b32 s34, s20, 6
    s_add_u32 s34, s34, {LSE2}
    v_add_u32 v{C_FW}, s34, v{T1}
    v_lshrrev_b32 v{C_PF}, 3, v{LANE}
    v_and_b32 v{C_FY}, 7, v{LANE}
    v_lshlrev_b32 v{C_FR}, 6, v{C_PF}
    v_lshl_add_u32 v{C_FR}, v{C_FY}, 2, v{C_FR}
    v_add_u32 v{C_FR}, {LSE2}, v{C_FR}
    v_lshlrev_b32 v{C_FY}, 6, v{C_FY}
    v_add_u32 v{C_FY}, {LSE2 + 32}, v{C_FY}
    v_lshlrev_b32 v{C_PF}, 7, v{C_PF}
    s_cmp_ge_u32 s2, 224
    s_cselect_b32 s33, 1024, 0
    s_add_u32 s33, s33, {WS_ROW}
    s_lshl_b32 s27, s2, 6
    s_add_u32 s27, s27, {WS_KEYS}
    s_sub_u32 s32, 2047, s96
    v_lshrrev_b32 v{T0}, 1, v0
    v_and_b32 v{T1}, 7, v{T0}
    v_lshrrev_b32 v{T2}, 6, v{T0}
    v_lshl_or_b32 v{T1}, v{T2}, 3, v{T1}
    v_sub_u32 v{T2}, 64, v{T1}
    v_cmp_eq_u32 vcc, 0, v{T1}
    v_bfe_u32 v{TH}, v{T0}, 3, 1
    v_cndmask_b32 v{T2}, v{T2}, 32, vcc
    v_cmp_eq_u32 vcc, 0, v{TH}
    v_bfe_u32 v{TH}, v{T0}, 4, 2
    v_cndmask_b32 v{T1}, v{T2}, v{T1}, vcc
    v_lshl_add_u32 v{T1}, v{TH}, 9, v{T1}
    v_and_b32 v{T0}, 1, v0
    v_lshl_add_u32 v{T1}, v{T0}, 8, v{T1}
    v_sub_u32 v{C_IX}, 2047, v{T1}
    v_subrev_u32 v{C_IX+1}, 64, v{C_IX}
    v_subrev_u32 v{C_IX+2}, 128, v{C_IX}
    v_subrev_u32 v{C_IX+3}, 192, v{C_IX}""")
    gu_prep(a)

def pro2(a):
    XU, WU, S1, S2, S3 = B_XU, B_WU, P_TH, P_TH + 2, P_TH + 4
    unpack8(a, WU, B_WR)
    a(f"""v_pk_add_f32 {v2(S1)}, {v2(WU)}, {v2(WU+2)}
    v_pk_add_f32 {v2(S2)}, {v2(WU+4)}, {v2(WU+6)}
    v_pk_add_f32 {v2(S1)}, {v2(S1)}, {v2(S2)}
    v_add_f32 v{S1}, v{S1}, v{S1+1}
    v_mov_b32 v{S2}, 0
    v_mov_b32 v{S3}, 0""")
    reduce3(a, S1, S2, S3, T0, 58, 39, 39)
    unpack8(a, XU, B_XR)
    for k in (B_S1, B_S1+1, B_S2, B_S2+1, B_S3, B_S3+1): a(f"v_mov_b32 v{k}, 0")

def anyones(a, regs_, t):
    regs_ = list(regs_)
    a(f"v_max_u32 v{t}, v{regs_[0]}, v{regs_[1]}")
    rest = regs_[2:]
    while len(rest) >= 2:
        a(f"v_max3_u32 v{t}, v{t}, v{rest[0]}, v{rest[1]}"); rest = rest[2:]
    if rest: a(f"v_max_u32 v{t}, v{t}, v{rest[0]}")
    a(f"v_cmp_eq_u32 vcc, -1, v{t}")

def wave_sum(a, v, sd):
    for k in (8, 4, 2, 1):
        a(f"v_add_u32_dpp v{v}, v{v}, v{v} row_ror:{k} row_mask:0xf bank_mask:0xf")
    for i in range(4): a(f"v_readlane_b32 s{sd+i}, v{v}, {16*i}")
    a(f"s_add_u32 s{sd}, s{sd}, s{sd+1}\ns_add_u32 s{sd+2}, s{sd+2}, s{sd+3}\ns_add_u32 s{sd}, s{sd}, s{sd+2}")

def publish_row(a):
    a(f"""s_lshl_b32 s34, s96, 11
    s_add_u32 s34, s34, {WS_ROW}
    v_mov_b32 v{T0}, 0
    v_mov_b32 v{T1}, 0
    v_writelane_b32 v{C_LN}, 0, 56
    v_writelane_b32 v{C_OUT}, 0, 56
    s_mov_b32 exec_hi, 0x01ffffff
    v_add3_u32 v{T0}, v{C_LN}, v{C_LN+1}, v{C_LN+2}
    v_add3_u32 v{T1}, v{C_OUT}, v{C_OUT+1}, v{C_OUT+2}
    v_add_u32 v{T0}, v{T0}, v{C_LN+3}
    v_add_u32 v{T1}, v{T1}, v{C_OUT+3}
    s_mov_b32 exec_hi, -1""")
    wave_sum(a, T0, 36)
    a(f"s_sub_u32 s35, s98, s36\nv_writelane_b32 v{C_LN}, s35, 56")
    wave_sum(a, T1, 36)
    a(f"""s_sub_u32 s35, s98, s36
    v_writelane_b32 v{C_OUT}, s35, 56
    s_mov_b32 exec_hi, 0x01ffffff
    buffer_store_dwordx4 {v4(C_LN)}, v{VL}, s[12:15], s34 offen {SC}
    buffer_store_dwordx4 {v4(C_OUT)}, v{VL}, s[12:15], s34 offen offset:1024 {SC}
    s_mov_b32 exec_hi, -1""")

def fetch_row_issue(a, dst):
    a(f"""v_readlane_b32 s34, v{C_K}, s20
    s_andn2_b32 s34, 0x7ff, s34
    s_lshl_b32 s34, s34, 11
    s_add_u32 s34, s34, s33
    s_mov_b32 exec_hi, 0x01ffffff
    buffer_load_dwordx4 {v4(dst)}, v{VL}, s[12:15], s34 offen {SC}
    s_mov_b32 exec_hi, -1""")

def fetch_row_finish(a, dst, ldsaddr):
    _lbl[0] += 1
    L = f"Lrow{_lbl[0]}"
    a(f"""s_mul_i32 s29, s20, {PX}
    s_add_u32 s29, s29, {LXS}
    v_add_u32 v{ldsaddr}, s29, v{VL}
    s_mov_b32 s57, {SPIN}
    {L}:
    v_mov_b32 v{T0}, 0
    s_mov_b32 exec_hi, 0x01ffffff
    s_waitcnt vmcnt(0)
    ds_write_b128 v{ldsaddr}, {v4(dst)}
    v_add3_u32 v{T0}, v{dst}, v{dst+1}, v{dst+2}
    v_add_u32 v{T0}, v{T0}, v{dst+3}
    s_mov_b32 exec_hi, -1""")
    wave_sum(a, T0, 36)
    a(f"""s_cmp_eq_u32 s36, s98
    s_cbranch_scc1 {L}d
    s_mov_b32 exec_hi, 0x01ffffff
    s_waitcnt lgkmcnt(0)
    buffer_load_dwordx4 {v4(dst)}, v{VL}, s[12:15], s34 offen {SC}
    s_mov_b32 exec_hi, -1
    s_sub_u32 s57, s57, 1
    s_cbranch_scc0 {L}""")
    timeout_note(a, _lbl[0])
    a(f"{L}d:")

def gu_prep(a):
    srd(a, 16, 42, 448*3584)
    a(f"""v_mul_u32_u24 v{V_GU}, 3584, v0
    s_and_b32 s100, s2, 7
    s_mul_i32 s100, s100, 28
    s_lshr_b32 s101, s2, 3
    s_add_u32 s100, s100, s101
    s_lshl_b32 s26, s100, 4
    s_lshl_b32 s101, s20, 10
    s_add_u32 s101, s101, {LWT}
    s_and_b32 s45, s45, 0xffff
    s_cmp_ge_u32 s2, 224
    s_cselect_b32 s24, 7, s20""")

def gu_dma(a):
    a(f"""s_cmp_eq_u32 s24, 7
    s_cbranch_scc1 Lngu
    s_mov_b32 m0, s101
    s_add_u32 s101, s101, 8192
    buffer_load_dwordx4 v{V_GU}, s[16:19], s26 offen lds
    s_mov_b32 s16, s44
    s_mov_b32 m0, s101
    s_mov_b32 s17, s45
    buffer_load_dwordx4 v{V_GU}, s[16:19], s26 offen lds
    Lngu:""")

def wd_dma(a, j0, j1, L):
    if j0 == j1: return
    a(f"""s_cmp_lt_u32 s2, 224
    s_cbranch_scc1 {L}
    s_and_b32 s50, s2, 7
    s_cmp_eq_u32 s50, 7
    s_cbranch_scc1 {L}
    s_lshl_b32 s50, s50, 7
    s_bfe_u32 s51, s2, 0x20003
    s_lshl_b32 s51, s51, 5
    s_add_u32 s51, s51, s50""")
    srd(a, 16, 46, 1792*896)
    a(f"""v_lshrrev_b32 v{T1}, 1, v{LANE}
    v_mul_u32_u24 v{T1}, 896, v{T1}
    v_and_b32 v{T2}, 1, v{LANE}
    v_lshl_add_u32 v{T1}, v{T2}, 4, v{T1}
    s_mul_i32 s23, s20, {224*896}
    s_add_u32 s23, s23, s51
    s_add_u32 s23, s23, {j0*32*896}
    s_mul_i32 s25, s20, 7168
    s_add_u32 s25, s25, {LWT + j0*1024}""")
    for j in range(j0, j1):
        a(f"s_mov_b32 m0, s25")
        a(f"s_add_u32 s25, s25, 1024")
        a(f"buffer_load_dwordx4 v{T1}, s[16:19], s23 offen lds")
        a(f"s_add_u32 s23, s23, {32*896}")
    a(f"{L}:")

def b_main(a):
    R, AF, ACC, XU, WU, AD, TH = B_R, B_AF, B_ACC, B_XU, B_WU, B_AD, B_TH
    S1, S2, S3 = B_S1, B_S2, B_S3
    if OPT["sl_u0"]: a(f"s_sleep {OPT['sl_u0']}")
    def uld():
        for ks in range(2):
            for i in range(4):
                a(f"buffer_load_dwordx4 {v4(R+16*ks+4*i)}, v{B_VU}, s[12:15], s{28+2*ks+(i>>1)} offen offset:{2048*(i&1)} {SC}")
    a(f"s_mov_b32 s57, {SPIN}")
    uld()
    a("s_waitcnt vmcnt(8)")
    pro2(a)
    def swaps(ks):
        b = R + 16*ks
        for i in range(4):
            for j in range(i+1, 4):
                a(f"v_swap_b32 v{b+4*i+j}, v{b+4*j+i}")
    def mm(ks, dpp):
        for j in range(4):
            c = "0" if ks == 0 else v4(ACC+4*j)
            a(f"v_mfma_f32_16x16x32_f16 {v4(ACC+4*j)}, {v4(AF+4*ks)}, {v4(R+16*ks+4*j)}, {c}")
            if dpp: a(f"v_add_u32_dpp v{T0}, v{T0}, v{T0} row_ror:{8 >> j} row_mask:0xf bank_mask:0xf")
    if not OPT["part"]:
        a("s_branch Lupw\nLupoll:")
        uld()
        a("Lupw:")
    for ks in range(2):
        a(f"s_waitcnt vmcnt({4-4*ks})")
        b = R + 16*ks
        for i in range(8):
            if ks == 0 and i == 0: a(f"v_add_u32 v{T0}, v{b}, v{b+1}")
            else: a(f"v_add3_u32 v{T0}, v{T0}, v{b+2*i}, v{b+2*i+1}")
        swaps(ks)
        mm(ks, ks == 1)
    a(f"""v_cmp_ne_u32 vcc, s99, v{T0}
    s_cmp_eq_u64 vcc, 0""")
    if OPT["part"]:
        a("s_cbranch_scc0 Lupart")
        def part():
            C4 = B_TH
            a("Lupart:\ns_lshl_b32 s34, s98, 4")
            swaps(0); swaps(1)
            a("Lupchk:")
            for i in range(4):
                a(f"v_add3_u32 v{C4+i}, v{R+4*i}, v{R+4*i+1}, v{R+4*i+2}")
            for i in range(4):
                a(f"v_add3_u32 v{C4+i}, v{C4+i}, v{R+4*i+3}, v{R+16+4*i}")
            for i in range(4):
                a(f"v_add3_u32 v{C4+i}, v{C4+i}, v{R+16+4*i+1}, v{R+16+4*i+2}")
            for i in range(4):
                a(f"v_add_u32 v{C4+i}, v{C4+i}, v{R+16+4*i+3}")
            for k in (8, 4, 2, 1):
                for i in range(4):
                    a(f"v_add_u32_dpp v{C4+i}, v{C4+i}, v{C4+i} row_ror:{k} row_mask:0xf bank_mask:0xf")
            MK = ["s[36:37]", "s[38:39]", "s[24:25]", "vcc"]
            for i in range(4): a(f"v_cmp_ne_u32 {MK[i]}, s34, v{C4+i}")
            a(f"""s_or_b64 s[26:27], s[36:37], s[38:39]""".replace("s[26:27]", "s[100:101]"))
            a(f"""s_or_b64 s[100:101], s[100:101], s[24:25]
            s_or_b64 s[100:101], s[100:101], vcc
            s_cbranch_scc0 Lupgo""")
            if OPT["sl_r"]: a(f"s_sleep {OPT['sl_r']}")
            for i in range(4):
                a(f"s_cmp_eq_u64 {MK[i]}, 0\ns_cbranch_scc1 Lupok{i}")
                for ks in range(2):
                    a(f"buffer_load_dwordx4 {v4(R+16*ks+4*i)}, v{B_VU}, s[12:15], s{28+2*ks+(i>>1)} offen offset:{2048*(i&1)} {SC}")
                a(f"Lupok{i}:")
            a(f"""s_waitcnt vmcnt(0)
            s_sub_u32 s57, s57, 1
            s_cbranch_scc0 Lupchk
            Lupgo:""")
            for ks in range(2):
                swaps(ks); mm(ks, False)
            a("s_nop 7\ns_branch Lupolld")
        TAIL.append(part)
    else:
        a(f"""s_cbranch_scc1 Lupolld
        s_sub_u32 s57, s57, 1
        s_cbranch_scc0 Lupoll""")
        timeout_note(a, 9)
    a("Lupolld:")
    stamp(a, 6)
    if OPT["stamps"] == 3: a(f"s_sub_u32 s{64+2*11}, {SPIN+1}, s57")
    for j in range(4):
        if j != 1: a(f"s_mov_b64 exec, {['s[60:61]', '', 's[62:63]', 's[50:51]'][j]}")
        for r in (0, 2):
            a(f"ds_write2st64_b32 v{AD+j}, v{ACC+4*j+r}, v{ACC+4*j+r+1} offset0:{r*PY//64} offset1:{(r+1)*PY//64}")
    a("s_mov_b64 exec, -1")
    gu_dma(a)
    wd_dma(a, 0, OPT['wdsplit'], 'Lnwd0')
    a("""s_mov_b32 exec_hi, 0x00ffffff
    s_waitcnt lgkmcnt(0)
    s_barrier""")
    H = R
    a(f"ds_read_b128 {v4(H)}, v{B_VY} offset:{LY}\nds_read_b128 {v4(H+4)}, v{B_VY} offset:{LY+16}")
    for hf in range(2):
        a(f"s_waitcnt lgkmcnt({1-hf})")
        if hf == 0: a(f"v_writelane_b32 v{H}, 0, 0")
        for p in range(2):
            x = 4*hf + 2*p
            a(f"v_pk_add_f32 {v2(H+x)}, {v2(H+x)}, {v2(XU+x)}")
        for p in range(2):
            x = 4*hf + 2*p
            a(f"v_pk_add_f32 {v2(S1)}, {v2(S1)}, {v2(H+x)}")
            a(f"v_pk_fma_f32 {v2(S2)}, {v2(H+x)}, {v2(H+x)}, {v2(S2)}")
            a(f"v_pk_fma_f32 {v2(S3)}, {v2(H+x)}, {v2(WU+x)}, {v2(S3)}")
    a(f"""s_mov_b32 exec_hi, -1
    v_add_f32 v{S1}, v{S1}, v{S1+1}
    v_add_f32 v{S2}, v{S2}, v{S2+1}
    v_add_f32 v{S3}, v{S3}, v{S3+1}""")
    reduce3(a, S1, S2, S3, T0, 37, 38, 39)
    M, V, SD, RS, C0, KEY = TH, TH+1, TH+2, TH+4, TH+6, C_KEY
    a(f"""v_mov_b32 v{V}, {fl(1.0/448)}
    v_mul_f32 v{M}, s37, v{V}
    v_mul_f32 v{V}, s38, v{V}
    v_mov_b32 v{KEY}, s39
    v_fma_f32 v{V}, -v{M}, v{M}, v{V}
    v_fma_f32 v{KEY}, -v{M}, s58, v{KEY}
    v_max_f32 v{SD}, 0, v{V}
    v_add_f32 v{V}, {fl(1e-5)}, v{SD}""")
    a(f"""v_rsq_f32 v{RS}, v{V}
    s_lshl_b32 s34, s20, 2
    v_mov_b32 v{T2}, s34
    v_mul_f32 v{KEY}, v{KEY}, v{RS}
    v_cvt_pk_bf16_f32 v{KEY}, v{KEY}, v{KEY}
    v_ashrrev_i32 v{T0}, 31, v{KEY}
    v_or_b32 v{T0}, 0x80000000, v{T0}
    v_xor_b32 v{KEY}, v{KEY}, v{T0}
    v_and_b32 v{KEY}, 0xffff0000, v{KEY}
    v_or_b32 v{KEY}, s32, v{KEY}
    ds_write_b32 v{T2}, v{KEY} offset:{LKEY}
    v_mov_b32 v{C_STK}, 0xffff
    v_lshlrev_b32 v{T1}, 2, v{LANE}
    v_mov_b32 v{T2}, {LKEY}
    s_waitcnt lgkmcnt(0)
    s_barrier
    s_cmp_lg_u32 s20, 0
    s_cbranch_scc1 Lnokey
    s_mov_b64 exec, 0xff
    ds_read_b32 v{T0}, v{T1} offset:{LKEY}
    s_waitcnt lgkmcnt(0)
    v_bfi_b32 v{T0}, v{C_STK}, s59, v{T0}
    buffer_store_dword v{T0}, v{T1}, s[12:15], s27 offen {SC}
    s_mov_b64 exec, -1
    Lnokey:
    ds_read_b128 {v4(ACC)}, v{T2}
    ds_read_b128 {v4(ACC+4)}, v{T2} offset:16""")
    stamp(a, 7)
    sd_chain(a, SD, SD)
    a(f"v_rcp_f32 v{RS}, v{SD}\ns_nop 0\nv_mul_f32 v{C0}, -v{M}, v{RS}")
    for p in range(4):
        a(f"v_pk_fma_f32 {v2(XU+2*p)}, {v2(H+2*p)}, {v2(RS)}, {v2(C0)} op_sel_hi:[1,0,0]")
    for p in range(4):
        a(f"v_pk_add_f32 {v2(H+2*p)}, {v2(H+2*p)}, {v2(XU+2*p)}")
    for p in range(4):
        a(f"v_cvt_pk_bf16_f32 v{C_LN+p}, v{XU+2*p}, v{XU+2*p+1}")
        a(f"v_cvt_pk_bf16_f32 v{C_OUT+p}, v{H+2*p}, v{H+2*p+1}")
    a(f"""s_waitcnt lgkmcnt(0)
    v_max3_u32 v{T0}, v{ACC}, v{ACC+1}, v{ACC+2}
    v_max3_u32 v{T1}, v{ACC+3}, v{ACC+4}, v{ACC+5}
    v_max3_u32 v{T0}, v{T0}, v{ACC+6}, v{ACC+7}
    v_max_u32 v{T0}, v{T0}, v{T1}
    v_cmp_eq_u32 s[60:61], v{T0}, v{KEY}
    s_cmp_eq_u64 s[60:61], 0
    s_cbranch_scc1 Lnoeager""")
    publish_row(a)
    a("Lnoeager:")

QP = {1: "quad_perm:[1,0,3,2]", 2: "quad_perm:[2,3,0,1]", 3: "quad_perm:[3,2,1,0]", 7: "row_half_mirror"}
class Net:
    def __init__(s, a, x, t, fill): s.a = a; s.x = x; s.t = t; s.fill = list(fill)
    def f(s, n=1):
        for _ in range(n):
            if s.fill: s.a(s.fill.pop(0))
    def ce(s, m):
        a, x, t = s.a, s.x, s.t
        s.f()
        if m == 4:
            a(f"v_max_u32_dpp v{t}, v{x}, v{x} row_shl:4 row_mask:0xf bank_mask:0x5")
            a(f"v_min_u32_dpp v{t}, v{x}, v{x} row_shr:4 row_mask:0xf bank_mask:0xa")
            s.x, s.t = t, x
        else:
            a(f"v_mov_b32_dpp v{t}, v{x} {QP[m]} row_mask:0xf bank_mask:0xf")
            a(f"v_med3_u32 v{x}, v{x}, v{t}, v{C_L[1 << (m.bit_length()-1)]}")
    def merge(s, last_clean=True):
        a = s.a
        s.f()
        a(f"v_max_u32_dpp v{s.x}, v{s.x}, v{s.x} row_mirror row_mask:0xf bank_mask:0xf")
        for m in (4, 2, 1): s.ce(m)
        for sw in ("v_permlane16_swap_b32", "v_permlane32_swap_b32"):
            a(f"v_mov_b32 v{s.t}, v{s.x}")
            s.f()
            a(f"{sw} v{s.x}, v{s.t}")
            s.f()
            a(f"v_max_u32_dpp v{s.x}, v{s.t}, v{s.x} row_half_mirror row_mask:0xf bank_mask:0xf")
            if last_clean or "16" in sw:
                for m in (4, 2, 1): s.ce(m)
        s.f(99)

def fast_select(a):
    K, X, Y, P, Q = C_K, C_X, C_Y, C_TMP, C_TMP + 1
    a(f"""v_max_u32 v{P}, v{K}, v{K+1}
    v_max_u32 v{Q}, v{K+2}, v{K+3}
    v_max_u32 v{X}, v{P}, v{Q}""")
    fill = [f"v_min_u32 v{Y}, v{P}, v{Q}", f"v_min_u32 v{P}, v{K}, v{K+1}", f"v_min_u32 v{Q}, v{K+2}, v{K+3}",
            f"v_max3_u32 v{Y}, v{Y}, v{P}, v{Q}"]
    fill += [f"v_max_u32_dpp v{Y}, v{Y}, v{Y} row_ror:{k} row_mask:0xf bank_mask:0xf" for k in (8, 4, 2, 1)]
    fill += [f"v_mov_b32 v{P}, v{Y}", f"v_permlane16_swap_b32 v{Y}, v{P}", f"v_max_u32 v{Y}, v{Y}, v{P}",
             f"v_mov_b32 v{P}, v{Y}", f"v_permlane32_swap_b32 v{Y}, v{P}", f"v_max_u32 v{Y}, v{Y}, v{P}",
             "s_mov_b64 vcc, 0x100"]
    n = Net(a, X, C_TMP + 2, fill)
    for m in (1, 3, 1, 7, 2, 1): n.ce(m)
    n.merge()
    a(f"""s_mov_b64 exec, 0x1ff
    v_cndmask_b32 v{P}, v{n.x}, v{Y}, vcc
    ds_write_b32 v{C_FW}, v{P}""")
    if OPT["rowpf"]:
        m8 = (1 << OPT["rowpf"]) - 1; m32 = m8 * 0x01010101
        a(f"""s_mov_b32 exec_lo, {hex(m32)}
        s_mov_b32 exec_hi, {hex(m32)}
        v_bfi_b32 v{Q}, v{n.x}, 0, v{C_TMP+3}
        v_lshl_add_u32 v{Q}, v{Q}, 11, v{C_PF}
        buffer_load_dword v{JUNK}, v{Q}, s[12:15], s33 offen {SC}""")
    a(f"""s_mov_b64 exec, -1
    s_waitcnt lgkmcnt(0)
    s_barrier
    ds_read_b32 v{X}, v{C_FR}
    ds_read_b32 v{Y}, v{C_FY}
    s_waitcnt lgkmcnt(0)""")
    fill = [f"v_max_u32_dpp v{Y}, v{Y}, v{Y} {QP[m]} row_mask:0xf bank_mask:0xf" for m in (1, 2, 7)]
    n = Net(a, X, C_TMP + 2, fill)
    n.merge(last_clean=False)
    a(f"""v_cmp_gt_u32 vcc, v{Y}, v{n.x}
    s_cmp_eq_u64 vcc, 0
    s_cbranch_scc0 Lfullsel
    v_mov_b32 v{K}, v{n.x}
    Lseldone:""")

def c_select(a):
    K = C_K
    a(f"s_mov_b32 s34, {WS_KEYS}\nv_mov_b32 v{C_TMP+3}, 0x7ff")
    def chk():
        a(f"v_xor_b32 v{T0}, v{K}, v{K+1}")
        a(f"v_xor_b32 v{T1}, v{K+2}, v{K+3}")
        a(f"v_xor_b32 v{T2}, s59, v{K}")
        a(f"v_xor_b32 v{C_X}, s59, v{K+2}")
        a(f"v_or3_b32 v{T0}, v{T0}, v{T1}, v{T2}")
        for i in range(4): a(f"v_bfi_b32 v{K+i}, v{C_STK}, v{C_IX+i}, v{K+i}")
        a(f"v_or_b32 v{T0}, v{T0}, v{C_X}")
        a(f"v_cmp_ne_u16 vcc, 0, v{T0}")
    poll(a, lambda: a(f"buffer_load_dwordx4 {v4(K)}, v{C_KA}, s[12:15], s34 offen {SC}"), chk, pre=OPT["sl_k"])
    stamp(a, 8)
    fast_select(a)
    stamp(a, 9)
    a(f"""v_cmp_eq_u32 vcc, v{K}, v{C_KEY}
    s_and_b64 s[62:63], vcc, s[60:61]
    s_cmp_lg_u64 s[62:63], vcc
    s_cbranch_scc0 Lsel_pub""")
    publish_row(a)
    a("Lsel_pub:")
    fetch_row_issue(a, 84)
    a(f"""s_cmp_eq_u64 vcc, 0
    s_cbranch_scc0 Lsel_done
    s_mov_b32 exec_hi, 0x00ffffff
    buffer_store_dwordx4 {v4(C_OUT)}, v{VL}, s[52:55], s97 offen {['', 'sc1', 'nt', 'sc0 sc1'][OPT['ost']]}
    s_mov_b32 exec_hi, -1
    Lsel_done:""")

def c1(a):
    XR = 84; XF_ = 168; ACC = 52; XU = 60; WF = 88
    a(f"""s_cmp_lg_u32 s20, 0
    s_cbranch_scc1 Lc1_now
    v_lshrrev_b32 v{T0}, 2, v{N}
    v_lshl_add_u32 v{T0}, v{G}, 3, v{T0}
    v_lshlrev_b32 v{T0}, 4, v{T0}
    v_and_b32 v{T1}, 1, v{N}
    v_lshl_add_u32 v{T0}, v{T1}, 3, v{T0}
    v_bfe_u32 v{T1}, v{N}, 1, 1
    v_lshl_add_u32 v{T0}, v{T1}, 13, v{T0}
    v_add_u32 v{T0}, {LWT}, v{T0}""")
    for j in range(14):
        for h in range(2):
            a(f"ds_read_b64_tr_b16 {v2(WF+4*j+2*h)}, v{T0} offset:{(32*j+4*h)*16}")
    a(f"""v_and_b32 v{XU+4}, 7, v{N}
    v_mul_u32_u24 v{XU+4}, {PX}, v{XU+4}
    v_lshl_add_u32 v{XU+4}, v{G}, 4, v{XU+4}
    v_lshlrev_b32 v{XU+5}, 4, v{N}
    v_lshl_add_u32 v{XU+5}, v{G}, 3, v{XU+5}
    s_lshl_b32 s22, s100, 7
    s_add_u32 s22, s22, {WS_ACT}
    Lc1_now:""")
    fetch_row_finish(a, XR, T2)
    a(f"""s_waitcnt lgkmcnt(0)
    s_barrier
    s_cmp_lg_u32 s20, 0
    s_cbranch_scc1 Lc1_epoch""")
    stamp(a, 10)
    for j in range(14):
        a(f"ds_read_b128 {v4(XF_+4*j)}, v{XU+4} offset:{LXS+64*j}")
    for j in range(14):
        a(f"s_waitcnt lgkmcnt({13-j})")
        A = ACC + 4*(j & 1)
        a(f"v_mfma_f32_16x16x32_bf16 {v4(A)}, {v4(WF+4*j)}, {v4(XF_+4*j)}, {'0' if j < 2 else v4(A)}")
    for p in range(2):
        a(f"v_pk_add_f32 {v2(ACC+2*p)}, {v2(ACC+2*p)}, {v2(ACC+4+2*p)}")
    for p in range(2): a(f"v_cvt_pk_bf16_f32 v{ACC+4+p}, v{ACC+2*p}, v{ACC+2*p+1}")
    for p in range(2): a(f"v_mov_b32 v{ACC+6+p}, v{ACC+4+p}")
    for p in range(2): a(f"v_permlane32_swap_b32 v{ACC+4+p}, v{ACC+6+p}")
    for p in range(2):
        a(f"v_lshlrev_b32 v{ACC+2*p}, 16, v{ACC+4+p}")
        a(f"v_and_b32 v{ACC+2*p+1}, 0xffff0000, v{ACC+4+p}")
    for r in range(4): a(f"v_mul_f32 v{XU+r}, {fl(-1.4426950408889634)}, v{ACC+r}")
    for r in range(4): a(f"v_exp_f32 v{XU+r}, v{XU+r}")
    for p in range(2):
        a(f"v_lshlrev_b32 v{XR+2*p}, 16, v{ACC+6+p}")
        a(f"v_and_b32 v{XR+2*p+1}, 0xffff0000, v{ACC+6+p}")
    for r in range(4): a(f"v_add_f32 v{XU+r}, 1.0, v{XU+r}")
    for r in range(4): a(f"v_rcp_f32 v{XU+r}, v{XU+r}")
    for r in range(4): a(f"v_mul_f32 v{ACC+r}, v{ACC+r}, v{XU+r}")
    for p in range(2): a(f"v_cvt_pk_bf16_f32 v{ACC+4+p}, v{ACC+2*p}, v{ACC+2*p+1}")
    for p in range(2):
        a(f"v_lshlrev_b32 v{ACC+2*p}, 16, v{ACC+4+p}")
        a(f"v_and_b32 v{ACC+2*p+1}, 0xffff0000, v{ACC+4+p}")
    for p in range(2): a(f"v_pk_mul_f32 {v2(ACC+2*p)}, {v2(ACC+2*p)}, {v2(XR+2*p)}")
    for p in range(2): a(f"v_cvt_pk_bf16_f32 v{XR+p}, v{ACC+2*p}, v{ACC+2*p+1}")
    for p in range(2): a(f"v_min_u32 v{XR+p}, -2, v{XR+p}")
    a(f"""s_mov_b32 exec_lo, 0x00ff00ff
    s_mov_b32 exec_hi, 0
    buffer_store_dwordx2 {v2(XR)}, v{XU+5}, s[12:15], s22 offen {SC}
    s_branch Lend
    Lc1_epoch:
    s_lshl_b32 s29, s2, 3
    s_add_u32 s29, s29, s20
    s_cmp_lg_u32 s29, 1
    s_cbranch_scc1 Lend
    s_mov_b64 exec, 1
    v_mov_b32 v{T0}, s56
    s_mov_b32 s29, {WS_EPOCH}
    buffer_store_dword v{T0}, v{VL}, s[12:15], s29 offen {SC}
    s_branch Lend""")

def c2(a):
    K = C_K
    OA = 8; OR = 10; SG = 12; VA = 13; VO = 14; VW = 15; WF = 88; AF = 116; ACC = 52; RD = 168
    a(f"""s_mul_i32 s24, s20, 7168
    s_add_u32 s24, s24, {LWT}
    v_lshrrev_b32 v{T0}, 2, v{N}
    v_lshl_add_u32 v{T0}, v{G}, 3, v{T0}
    v_lshlrev_b32 v{T0}, 5, v{T0}
    v_and_b32 v{T1}, 3, v{N}
    v_lshl_add_u32 v{T0}, v{T1}, 3, v{T0}
    v_add_u32 v{VW}, s24, v{T0}""")
    for j in range(7):
        for h in range(2):
            a(f"ds_read_b64_tr_b16 {v2(WF+4*j+2*h)}, v{VW} offset:{(32*j+4*h)*32}")
    a(f"""v_and_b32 v{T1}, 7, v{N}
    v_mul_u32_u24 v{VO}, {PX}, v{T1}
    v_lshl_add_u32 v{VO}, v{G}, 3, v{VO}
    v_add_u32 v{VO}, s51, v{VO}
    v_lshlrev_b32 v{VA}, 4, v{T1}
    v_lshl_add_u32 v{VA}, v{G}, 7, v{VA}
    s_mul_i32 s25, s20, {7*512}
    s_add_u32 s25, s25, {WS_ACT}
    v_and_b32 v{OA}, 0x7ff, v{K}
    v_sub_u32 v{OA}, 2047, v{OA}
    v_mul_u32_u24 v{OA}, 896, v{OA}
    v_lshl_add_u32 v{OA}, v{G}, 3, v{OA}
    v_ashrrev_i32 v{T2}, 31, v{K}
    v_not_b32 v{T2}, v{T2}
    v_or_b32 v{T2}, 0x80000000, v{T2}
    v_xor_b32 v{K+1}, v{K}, v{T2}
    v_and_b32 v{K+1}, 0xffff0000, v{K+1}""")
    sigmoid_mul(a, SG, K+1, "1.0", T2)
    rbf(a, SG, SG)
    a(f"""v_lshlrev_b32 v{T1}, 4, v0
    v_add_u32 v{T1}, {LRED}, v{T1}""")
    def lds():
        for j in range(7):
            a(f"buffer_load_dwordx4 {v4(AF+4*j)}, v{VA}, s[12:15], s25 offen offset:{512*j} {SC}")
    if OPT["c2re"]:
        if OPT["sl_a"]: a(f"s_sleep {OPT['sl_a']}")
        lds()
        fetch_row_finish(a, 84, T2)
        anyones(a, range(AF, AF+28), T0)
        a("s_cmp_eq_u64 vcc, 0\ns_cbranch_scc1 Lactok")
        poll(a, lds, lambda: anyones(a, range(AF, AF+28), T0))
        a("Lactok:")
    else:
        fetch_row_finish(a, 84, T2)
        poll(a, lds, lambda: anyones(a, range(AF, AF+28), T0), pre=OPT["sl_a"])
    stamp(a, 10)
    a("s_waitcnt lgkmcnt(0)")
    for j in range(7):
        A = ACC + 4*(j & 1)
        a(f"v_mfma_f32_16x16x32_bf16 {v4(A)}, {v4(WF+4*j)}, {v4(AF+4*j)}, {'0' if j < 2 else v4(A)}")
    for p in range(2):
        a(f"v_pk_add_f32 {v2(ACC+2*p)}, {v2(ACC+2*p)}, {v2(ACC+4+2*p)}")
    a(f"""ds_write_b128 v{T1}, {v4(ACC)}
    s_waitcnt lgkmcnt(0)
    s_barrier
    s_cmp_lg_u32 s20, 0
    s_cbranch_scc1 Lend
    ds_read_b64 {v2(OR)}, v{VO} offset:{LXS}""")
    for w in range(1, 8):
        a(f"ds_read_b128 {v4(RD+4*w)}, v{T1} offset:{1024*w}")
    a("s_waitcnt lgkmcnt(7)")
    for i in range(2):
        a(f"v_lshlrev_b32 v{RD+2*i}, 16, v{OR+i}")
        a(f"v_and_b32 v{RD+2*i+1}, 0xffff0000, v{OR+i}")
    for w in range(1, 8):
        a(f"s_waitcnt lgkmcnt({7-w})")
        for p in range(2):
            a(f"v_pk_add_f32 {v2(ACC+2*p)}, {v2(ACC+2*p)}, {v2(RD+4*w+2*p)}")
    for rnd in range(2):
        for p in range(2): a(f"v_cvt_pk_bf16_f32 v{ACC+4+p}, v{ACC+2*p}, v{ACC+2*p+1}")
        for p in range(2):
            a(f"v_lshlrev_b32 v{ACC+2*p}, 16, v{ACC+4+p}")
            a(f"v_and_b32 v{ACC+2*p+1}, 0xffff0000, v{ACC+4+p}")
        for p in range(2):
            if rnd == 0: a(f"v_pk_mul_f32 {v2(ACC+2*p)}, {v2(ACC+2*p)}, {v2(SG)} op_sel_hi:[1,0]")
            else: a(f"v_pk_add_f32 {v2(ACC+2*p)}, {v2(ACC+2*p)}, {v2(RD+2*p)}")
    for p in range(2): a(f"v_cvt_pk_bf16_f32 v{OR+p}, v{ACC+2*p}, v{ACC+2*p+1}")
    a(f"""s_mov_b32 exec_lo, 0x00ff00ff
    s_mov_b32 exec_hi, 0x00ff00ff
    buffer_store_dwordx2 {v2(OR)}, v{OA}, s[52:55], s51 offen {['', 'sc1', 'nt', 'sc0 sc1'][OPT['ost']]}""")

def clears(a):
    a(f"""v_mov_b32 v{JUNK+2}, -1
    v_lshlrev_b32 v{T1}, 2, v{LANE}
    s_lshl_b32 s24, s2, 7
    s_add_u32 s24, s24, {WS_ACT}
    s_mov_b32 exec_hi, 0
    buffer_store_dword v{JUNK+2}, v{T1}, s[12:15], s24 offen {SC}
    s_mov_b32 exec_lo, 1
    s_lshl_b32 s23, s96, 11
    s_add_u32 s23, s23, {WS_ROW}
    buffer_load_dword v{JUNK}, v{VL}, s[52:55], s97 offen
    buffer_load_dword v{JUNK+1}, v{VL}, s[12:15], s23 offen
    s_mov_b64 exec, -1""")

def prefetch(a, w0=1, T0=T0, T1=T1):
    a(f"""s_and_b32 s24, s2, 7
    s_lshr_b32 s25, s2, 3
    s_mul_i32 s26, s25, {14*3584}
    s_mov_b32 s18, {448*3584}
    s_mov_b32 s19, 0x00020000
    s_cmp_eq_u32 s20, {w0+2}
    s_cbranch_scc1 Lpf_d
    v_lshrrev_b32 v{T0}, 2, v{LANE}
    v_mul_u32_u24 v{T0}, 3584, v{T0}
    v_and_b32 v{T1}, 3, v{LANE}
    v_lshl_add_u32 v{T0}, v{T1}, 7, v{T0}
    s_mul_i32 s24, s24, 448
    s_cmp_eq_u32 s20, {w0}
    s_cselect_b32 s16, s42, s44
    s_cselect_b32 s17, s43, s45
    s_branch Lpf_go
    Lpf_d:
    v_mul_u32_u24 v{T0}, 896, v{LANE}
    s_lshl_b32 s24, s24, 7
    s_mov_b32 s16, s46
    s_mov_b32 s17, s47
    Lpf_go:
    s_and_b32 s17, s17, 0xffff
    s_add_u32 s26, s26, s24
    s_mov_b32 exec_hi, 0x00ffffff
    buffer_load_dword v{JUNK}, v{T0}, s[16:19], s26 offen
    s_mov_b32 exec_hi, -1""")

def kernel(a):
    if OPT["stamps"]:
        for k in range(NST): a(f"s_mov_b32 s{64+2*k}, 0")
    stamp(a, 0)
    a(f"""s_load_dwordx2 s[8:9], s[0:1], 0
    s_cmp_ge_u32 s2, 256
    s_cbranch_scc1 Lexit
    v_lshrrev_b32 v{T0}, 6, v0
    v_and_b32 v{LANE}, 63, v0
    v_readfirstlane_b32 s20, v{T0}
    v_lshlrev_b32 v{VL}, 4, v{LANE}
    s_and_b32 s21, s2, 31
    s_lshr_b32 s22, s2, 5
    s_mov_b32 s10, {XB}
    s_mov_b32 s11, 0x00020000
    s_cmp_lt_u32 s20, 4
    s_cbranch_scc1 Lloader
    s_getpc_b64 s[30:31]
    Lpc:
    v_and_b32 v{T2}, 255, v0
    v_lshlrev_b32 v{JUNK}, 7, v{T2}
    v_mov_b32 v{JUNK+1}, s31
    v_add_co_u32 v{JUNK}, vcc, s30, v{JUNK}
    v_addc_co_u32 v{JUNK+1}, vcc, 0, v{JUNK+1}, vcc
    v_cmp_gt_u32 vcc, (Lexit-Lpc)/128+1, v{T2}
    s_and_saveexec_b64 s[30:31], vcc
    s_cbranch_execz Lcompute
    global_load_dword v{JUNK+2}, v[{JUNK}:{JUNK+1}], off
    s_branch Lcompute
    Lloader:
    v_cmp_lt_u32 vcc, 29, v{LANE}
    s_lshl_b32 s23, s20, 9
    s_add_u32 s23, s23, s21
    s_mul_i32 s23, s23, 896
    s_mul_i32 s24, s20, {16*PH}
    v_add_u32 v{T1}, {32*896 - 480}, v{VL}
    s_mov_b32 s25, {'s22' if OPT['rot'] else '0'}
    v_cndmask_b32 v{T1}, v{VL}, v{T1}, vcc
    s_mov_b32 exec_lo, 0xcfffffff
    s_mov_b32 exec_hi, 0x03ffffff
    s_mov_b32 s28, 0
    s_waitcnt lgkmcnt(0)""")
    stamp(a, 3, True)
    if OPT["dmau"]:
        a("Ldma:")
        for i in range(8):
            a(f"""s_mul_i32 s26, s25, {2*PH}
            s_mul_i32 s27, s25, {64*896}
            s_add_u32 m0, s26, s24
            s_add_u32 s27, s27, s23
            s_add_u32 s25, s25, 1
            buffer_load_dwordx4 v{T1}, s[8:11], s27 offen lds
            s_and_b32 s25, s25, 7""")
        a(f"""s_add_u32 s24, s24, {LXH}
        s_add_u32 s23, s23, 448
        s_add_u32 s28, s28, 1
        s_cmp_lt_u32 s28, 2""")
        if OPT["b1"]: a("s_cbranch_scc0 Ldmad\ns_barrier\ns_branch Ldma\nLdmad:")
        else: a("s_cbranch_scc1 Ldma")
    else:
        a(f"""Ldma:
        s_mul_i32 s26, s25, {2*PH}
        s_mul_i32 s27, s25, {64*896}
        s_add_u32 s26, s26, s24
        s_add_u32 s27, s27, s23
        s_mov_b32 m0, s26
        s_add_u32 s25, s25, 1
        buffer_load_dwordx4 v{T1}, s[8:11], s27 offen lds
        s_and_b32 s25, s25, 7
        s_add_u32 s28, s28, 1
        s_cmp_lg_u32 s28, 8
        s_cbranch_scc1 Ldma1
        s_add_u32 s24, s24, {LXH}
        s_add_u32 s23, s23, 448
        Ldma1:
        s_cmp_lt_u32 s28, 16
        s_cbranch_scc1 Ldma""")
    def ltail():
        a(f"""Lltail:
        s_mov_b64 exec, -1
        s_load_dwordx2 s[6:7], s[0:1], 96
        s_load_dwordx8 s[40:47], s[0:1], 48
        s_load_dwordx2 s[48:49], s[0:1], 80
        v_and_b32 v{N}, 15, v0
        v_bfe_u32 v{G}, v0, 4, 2""")
        stamp(a, 6, True)
        early = OPT["e2a"]
        if early:
            a("s_waitcnt vmcnt(8)")
            stamp(a, 1)
            a("s_barrier")
        a("s_waitcnt lgkmcnt(0)")
        b_setup(a)
        b_loads(a)
        a("s_cmp_lg_u32 s20, 0\ns_cbranch_scc1 Lw123a")
        clears(a)
        if not early:
            a("s_waitcnt vmcnt(14)")
            stamp(a, 1)
            a("s_barrier")
        a("s_waitcnt vmcnt(6)")
        stamp(a, 2)
        a(f"""s_barrier
        v_mov_b32 v{T0}, {LTAG}
        s_waitcnt vmcnt(5)
        ds_write_b32 v{T0}, v{V_EP}
        s_branch Lprol
        Lw123a:""")
        if OPT["pf"] == 3: prefetch(a)
        if not early:
            a(f"s_waitcnt vmcnt(12)")
            stamp(a, 1)
            a("s_barrier")
        a(f"s_waitcnt vmcnt({4 if OPT['pf'] == 3 else 3})")
        stamp(a, 2)
        a(f"s_barrier")
        if OPT["pf"] == 1: prefetch(a)
        a(f"s_waitcnt vmcnt({2 if OPT['pf'] == 4 else 3})")
        a("Lprol:")
        if OPT["wdh"]: wd_dma(a, 0, 7, "Lnwd2")
        if OPT["w64l"]:
            a("s_mov_b32 s3, s20")
            w64(a, AC1)
            for i in range(8): a(f"v_xor_b32 v{AC1+16+i}, 0x80008000, v{AC1+8+i}")
            a(f"s_lshl_b32 s26, s3, 12\ns_add_u32 s26, s26, {LWT}\nv_add_u32 v{T1}, s26, v{VL}")
            for i in range(6): a(f"ds_write_b128 v{T1}, {v4(AC1+4*i)} offset:{[0, 1024, 2048, 3072, 16384, 17408][i]}")
        if not OPT["prolate"]: pro(a)
        stamp(a, 3)
        def hint_store():
            a(f"""s_cmp_lg_u32 s20, 0
            s_cbranch_scc1 Lnh
            s_lshl_b32 s34, s2, 6
            s_add_u32 s34, s34, {WS_HINT}
            v_add_u32 v{T0}, 1, v{V_EP}
            s_mov_b64 exec, 1
            buffer_store_dword v{T0}, v{VL}, s[12:15], s34 offen {SC}
            s_mov_b64 exec, -1
            Lnh:""")
        if OPT["hint"] == 2: hint_store()
        a("s_waitcnt lgkmcnt(0)\ns_barrier")
        if OPT["hint"] == 1: hint_store()
        a("s_branch Lpro1" if OPT["prolate"] else "s_branch Lpro2")
    if OPT["layout"]: a("s_branch Lltail")
    else: ltail()
    a(f"""Lcompute:
    s_mov_b64 exec, -1
    s_load_dwordx2 s[6:7], s[0:1], 96
    s_load_dwordx8 s[40:47], s[0:1], 48
    s_load_dwordx2 s[48:49], s[0:1], 80
    v_and_b32 v{N}, 15, v0
    v_bfe_u32 v{G}, v0, 4, 2
    s_and_b32 s3, s20, 3""")
    if OPT["prio"]: a("s_setprio 3")
    stamp(a, 9, True)
    a_pre(a)
    stamp(a, 11, True)
    a("s_waitcnt lgkmcnt(0)")
    b_setup(a)
    stamp(a, 1)
    a("s_barrier")
    stamp(a, 2)
    a_main(a)
    stamp(a, 4)
    if OPT["prio"]: a("s_setprio 0")
    a(f"buffer_load_dwordx4 {v4(B_WR)}, v{VL}, s[16:19], 0 offen")
    a(f"buffer_load_dwordx4 {v4(B_XR)}, v{VL}, s[8:11], s97 offen")
    a("Lpro1:")
    pro(a)
    a("Lpro2:")
    a(f"""v_readfirstlane_b32 s56, v{V_EP}
    s_add_u32 s56, s56, 1
    s_mul_i32 s98, s56, {HASH}
    s_lshl_b32 s99, s98, 6
    s_and_b32 s59, s56, 0xffff""")
    if OPT["hint"]:
        a(f"""v_and_b32 v{T1}, 31, v{LANE}
        v_lshlrev_b32 v{T1}, 6, v{T1}
        s_lshl_b32 s34, s20, 11
        s_add_u32 s34, s34, {WS_HINT}
        s_mov_b32 s57, 4000""")
        if OPT["sl_h0"]: a(f"s_sleep {OPT['sl_h0']}")
        a(f"""Lhint:
        buffer_load_dword v{T0}, v{T1}, s[12:15], s34 offen {SC}
        s_waitcnt vmcnt(0)
        v_cmp_ne_u32 vcc, s56, v{T0}
        s_cmp_eq_u64 vcc, 0
        s_cbranch_scc1 Lhintd""")
        if OPT["sl_h"]: a(f"s_sleep {OPT['sl_h']}")
        a(f"""s_sub_u32 s57, s57, 1
        s_cbranch_scc0 Lhint
        Lhintd:""")
    else:
        a("s_barrier")
    stamp(a, 5)
    b_main(a)
    if OPT["wdh"]: a("s_cmp_lt_u32 s20, 4\ns_cbranch_scc1 Lnwd1")
    wd_dma(a, OPT['wdsplit'], 7, 'Lnwd1')
    c_select(a)
    a("s_cmp_ge_u32 s2, 224\ns_cbranch_scc1 Lc2")
    c1(a)
    a("Lc2:\ns_and_b32 s50, s2, 7\ns_cmp_eq_u32 s50, 7\ns_cbranch_scc1 Lend\ns_lshl_b32 s50, s50, 7\ns_bfe_u32 s51, s2, 0x20003\ns_lshl_b32 s51, s51, 5\ns_add_u32 s51, s51, s50")
    c2(a)
    a("Lend:")
    dump_stamps(a)
    if OPT["layout"]:
        a("s_endpgm")
        ltail()
        for f in TAIL: f()
    a("Lexit:\ns_endpgm\nLfullsel:")
    select8(a, C_K, C_TMP, C_L, C_SW, C_SR)
    a("s_branch Lseldone")

NAME = "sequential_preLN__spectral_fnet__moe_arch_mod__prompt_kernel"
def build():
    a = Asm()
    kernel(a)
    body = a.finish()
    if OPT["align"]: body = align_pass(body)
    return gen.HDR + f"""; @launch grid=(256,1,1) block=(512,1,1) lds={LDS_TOTAL}
.amdgcn_target "amdgcn-amd-amdhsa--gfx950"
.text
.globl {NAME}
.p2align 8
.type {NAME},@function
{NAME}:
""" + body + f""".section .rodata,"a"
.p2align 6
.amdhsa_kernel {NAME}
  .amdhsa_next_free_vgpr {NVGPR}
  .amdhsa_next_free_sgpr 102
  .amdhsa_accum_offset {NVGPR}
  .amdhsa_group_segment_fixed_size 0
  .amdhsa_kernarg_size 104
  .amdhsa_user_sgpr_count 2
  .amdhsa_user_sgpr_kernarg_segment_ptr 1
  .amdhsa_system_sgpr_workgroup_id_x 1
.end_amdhsa_kernel
"""

if __name__ == "__main__":
    for x in list(sys.argv[1:]):
        if x.startswith("--"):
            k, _, v = x[2:].partition("=")
            assert k in OPT, k
            OPT[k] = int(v) if v else 1
            sys.argv.remove(x)
    open(sys.argv[1], "w").write(build())
```

```python
import sys
from asmlib import Asm, fl, align_pass
import gen
from gen import srd, v4, v2, rbf, sd_chain, reduce3, unpack8, lim_regs, select8, sigmoid_mul

WS_KEYS = 0x200000
WS_HINT = 0x204000
WS_EPOCH = 0x208000
WS_ACT = 0x210000
WS_STAMP = 0x3c0000
WS_ROW = 0x400000
WS_SIZE = 0x800000
XB = 1835008
PH = 480; PX = 928; PF = 136; PY = 512
LXH = 64 * PH
LW = 2 * LXH; LCS = LW + 28 * 1024; LTAG = LCS + 256; LF = LCS + 272; LWT = LF + 64 * PF; LDS_TOTAL = LWT + 57344
LY = 0
LSEL = 16384; LSE2 = 16640; LKEY = 17152; LXS = 17408; LRED = 24832
SPIN = 4000000
SC = "sc1"
HASH = "0x9e3779b1"
OPT = dict(stamps=0, cyc=0, align=0, sl_u0=6, sl_k=15, sl_a=0, rowpf=2, barj=5, dbgto=0, ost=0, c2re=1, rot=1, pf=3, wdsplit=0, w64l=0, layout=1, e2a=1, prolate=1, amp=-1, ampw=0, ampb=224, prio=1, wdh=0, cheb=1, ln1emu=1, dmau=1, b1=0, part=0, sl_r=4, hint=0, sl_h=4, sl_h0=0, trim=1)
NST = 14

def stamp(a, k, early=False):
    if OPT["stamps"] == 5:
        if early != 5 and k not in (0, 3, 4, NST - 1): return
    elif OPT["stamps"] == 4:
        if early == 5 or (not early and k not in (0, 1, 2, NST - 1)): return
    elif early: return
    if OPT["stamps"] == 2 and k not in (0, NST - 1): return
    if OPT["stamps"]: a(f"{'s_memtime' if OPT['cyc'] else 's_memrealtime'} s[{64+2*k}:{65+2*k}]")
def dump_stamps(a):
    if OPT["amp"] >= 0:
        k = OPT["amp"]
        a(f"s_memrealtime s[{64+2*(NST-2)}:{65+2*(NST-2)}]")
        a(f"""s_cmp_lg_u32 s2, {OPT['ampb']}
        s_cbranch_scc1 Lampd
        s_cmp_lg_u32 s20, {OPT['ampw']}
        s_cbranch_scc1 Lampd
        s_waitcnt lgkmcnt(0)
        s_sub_u32 s60, s{64+2*k}, s64
        s_mul_i32 s60, s60, 9
        s_add_u32 s60, s60, s{64+2*(NST-2)}
        Lamp:
        s_memrealtime s[62:63]
        s_waitcnt lgkmcnt(0)
        s_sub_u32 s61, s62, s60
        s_cmp_lt_i32 s61, 0
        s_cbranch_scc1 Lamp
        Lampd:""")
        return
    if not OPT["stamps"]: return
    stamp(a, NST - 2)
    a("s_waitcnt vmcnt(0)")
    stamp(a, NST - 1)
    a("s_mov_b64 exec, 1\ns_waitcnt lgkmcnt(0)")
    a(f"s_lshl_b32 s60, s2, 3\ns_add_u32 s60, s60, s20\ns_lshl_b32 s60, s60, 6\ns_add_u32 s60, s60, {WS_STAMP}\nv_mov_b32 v1, 0")
    for k in range(NST):
        a(f"v_mov_b32 v2, s{64+2*k}\nbuffer_store_dword v2, v1, s[12:15], s60 offen offset:{4*k}")

_lbl = [0]
TAIL = []
def timeout_note(a, ident):
    if not OPT["dbgto"]: return
    a(f"""s_lshl_b32 s100, s2, 8
    s_add_u32 s100, s100, s20
    s_add_u32 s100, s100, {ident << 24}
    v_mov_b32 v{JUNK+3}, s100
    s_mov_b32 s100, {0x3f0000 + 4*ident}
    s_mov_b64 exec, 1
    buffer_store_dword v{JUNK+3}, v{VL}, s[12:15], s100 offen
    v_mov_b32 v{JUNK+3}, s36
    buffer_store_dword v{JUNK+3}, v{VL}, s[12:15], s100 offen offset:64
    v_mov_b32 v{JUNK+3}, s98
    buffer_store_dword v{JUNK+3}, v{VL}, s[12:15], s100 offen offset:128
    v_mov_b32 v{JUNK+3}, s34
    buffer_store_dword v{JUNK+3}, v{VL}, s[12:15], s100 offen offset:192
    s_mov_b64 exec, -1""")
def poll(a, loads, check, pre=0):
    _lbl[0] += 1
    L = f"Lpoll{_lbl[0]}"
    if pre: a(f"s_sleep {pre}")
    a(f"s_mov_b32 s57, {SPIN}\n{L}:")
    loads()
    a("s_waitcnt vmcnt(0)")
    check()
    a(f"""s_cmp_eq_u64 vcc, 0
    s_cbranch_scc1 {L}d
    s_sub_u32 s57, s57, 1
    s_cbranch_scc0 {L}""")
    timeout_note(a, _lbl[0])
    a(f"{L}d:")

class LdsQ:
    def __init__(s, a): s.a = a; s.q = []
    def read(s, text, b, n=4):
        s.a(text); s.q.append(set(range(b, b + n)))
    def need(s, b, n=4):
        rs = set(range(b, b + n)); last = -1
        for i, d in enumerate(s.q):
            if d & rs: last = i
        if last >= 0:
            s.a(f"s_waitcnt lgkmcnt({len(s.q) - 1 - last})")
            s.q = s.q[last+1:]

LANE, N, G, T0, T1, T2, VL = 1, 2, 3, 4, 5, 6, 7
B_XR = 8; B_WR = 12; V_EP = 16; VFW = 17; VFR = 18; VXR = 19; VCS = 20; VUS = 21; ST = 22
WC = 28; WSN = 36; WNS = 44
AC1 = 52; AC2 = 68; GR = 84; XF = 88; WD = 116
JUNK = 228; SG2 = 232; V_GU = 234; V_DC = 235; B_A2 = 236; B_AD4 = 244; NVGPR = 248
B_AF = 28; B_AD = 36; B_VY = 40; B_VU = 41; C_L = {1: 42, 2: 43, 4: 44}; C_SW = 45; C_SR = 46; C_KA = 47
C_FW = 48; C_FR = 49; C_FY = 50; C_PF = 51
B_R = 116; B_ACC = 52; B_XU = 68; B_WU = 76; B_S1, B_S2, B_S3 = 88, 90, 92; B_TH = 96; P_TH = 104; P_EPS = 112; P_BASE = 113
C_K = 148; C_TMP = 152; C_KEY = 156; C_X = 157; C_Y = 158; C_OUT = 160; C_LN = 164; C_IX = 224; C_STK = 159

def trig_block(a, n, k0, eps, base, th, want_sin):
    for i in range(n):
        k = k0 + i
        if k == 0: a(f"v_mov_b32 v{th+i}, v{base}")
        else: a(f"v_fmamk_f32 v{th+i}, v{eps}, {fl(float(k))}, v{base}")
    for i in range(n):
        if want_sin: a(f"v_sin_f32 v{th+n+i}, v{th+i}")
        a(f"v_cos_f32 v{th+i}, v{th+i}")

def w64(a, D):
    EPS, BASE, TH, S = ST + 4, ST + 5, XF, ST
    a(f"""v_lshrrev_b32 v{S}, 1, v{N}
    s_lshl_b32 s25, s3, 3
    v_add_u32 v{S}, s25, v{S}
    v_sub_u32 v{S+1}, 64, v{S}
    v_cmp_eq_u32 vcc, 0, v{S}
    v_and_b32 v{S+2}, 1, v{N}
    v_cndmask_b32 v{S+1}, v{S+1}, 32, vcc
    v_cmp_eq_u32 vcc, 0, v{S+2}
    v_lshlrev_b32 v{S+2}, 3, v{G}
    v_cndmask_b32 v{S+1}, v{S+1}, v{S}, vcc
    v_cvt_f32_u32 v{S+2}, v{S+2}
    v_and_b32 v{S}, 1, v{S+1}
    v_cvt_f32_u32 v{S+1}, v{S+1}
    v_mul_u32_u24 v{S}, 0x8000, v{S}
    v_mul_f32 v{EPS}, {fl(1.0/64)}, v{S+1}
    v_lshl_or_b32 v{S}, v{S}, 16, v{S}
    v_mul_f32 v{BASE}, v{S+2}, v{EPS}""")
    if OPT["cheb"]:
        C2 = S + 3; CV = XF; SV = XF + 8
        a(f"""v_cos_f32 v{C2}, v{EPS}
        v_add_f32 v{CV+1}, v{EPS}, v{BASE}
        v_sin_f32 v{SV}, v{BASE}
        v_cos_f32 v{CV}, v{BASE}
        v_sin_f32 v{SV+1}, v{CV+1}
        v_cos_f32 v{CV+1}, v{CV+1}
        v_add_f32 v{C2}, v{C2}, v{C2}""")
        for i in range(2, 8):
            for Vv in (CV, SV): a(f"v_fma_f32 v{Vv+i}, v{C2}, v{Vv+i-1}, -v{Vv+i-2}")
        for i in range(4):
            a(f"v_cvt_pk_f16_f32 v{D+i}, v{CV+2*i}, v{CV+2*i+1}")
            a(f"v_cvt_pk_f16_f32 v{D+8+i}, v{SV+2*i}, v{SV+2*i+1}")
        for i in range(4):
            a(f"v_xor_b32 v{D+4+i}, v{S}, v{D+i}")
            a(f"v_xor_b32 v{D+12+i}, v{S}, v{D+8+i}")
        return
    for ks in range(2):
        for h in range(2):
            trig_block(a, 4, 32*ks + 4*h, EPS, BASE, TH, True)
            for i in range(2):
                a(f"v_cvt_pk_f16_f32 v{D+4*ks+2*h+i}, v{TH+2*i}, v{TH+2*i+1}")
                a(f"v_cvt_pk_f16_f32 v{D+8+4*ks+2*h+i}, v{TH+4+2*i}, v{TH+4+2*i+1}")

def a_pre(a):
    EPS, BASE, TH, ONE, TO, CS = ST + 4, ST + 5, XF, XF + 8, XF + 12, AC1
    a(f"""s_and_b32 s25, s3, 1
    s_lshl_b32 s25, s25, 2
    v_and_b32 v{T0}, 3, v{N}
    v_add_u32 v{T0}, s25, v{T0}
    v_lshrrev_b32 v{T1}, 2, v{N}
    s_mul_i32 s26, s22, 28
    s_add_u32 s26, s26, 1
    v_mad_u32_u24 v{T1}, v{T1}, 7, v{T0}
    v_add_u32 v{T1}, s26, v{T1}
    v_cmp_ne_u32 vcc, 7, v{T0}
    s_lshr_b32 s25, s3, 1
    s_mul_i32 s25, s25, {fl(0.25)}
    v_cndmask_b32 v{T1}, 0, v{T1}, vcc
    v_cvt_f32_u32 v{T1}, v{T1}
    v_mul_f32 v{EPS}, {fl(1.0/448)}, v{T1}
    v_lshlrev_b32 v{T0}, 3, v{G}
    v_cvt_f32_u32 v{T2}, v{T0}
    v_fma_f32 v{BASE}, v{T2}, v{EPS}, s25
    s_mul_i32 s25, s3, {7*1024}
    s_add_u32 s25, s25, {LW}
    v_add_u32 v{T1}, s25, v{VL}""")
    for i in range(4): a(f"v_mov_b32 v{ONE+i}, 0x3f803f80")
    if OPT["cheb"]:
        C2 = ST + 3; V = WD
        a(f"v_cos_f32 v{C2}, v{EPS}")
        for j in range(7):
            for i in range(2):
                k = 32*j + i
                if k == 0: a(f"v_mov_b32 v{V}, v{BASE}")
                else: a(f"v_fmamk_f32 v{V+8*j+i}, v{EPS}, {fl(float(k))}, v{BASE}")
        a(f"v_add_f32 v{C2}, v{C2}, v{C2}")
        for j in range(7):
            for i in range(2): a(f"v_cos_f32 v{V+8*j+i}, v{V+8*j+i}")
        for i in range(2, 8):
            for j in range(7):
                a(f"v_fma_f32 v{V+8*j+i}, v{C2}, v{V+8*j+i-1}, -v{V+8*j+i-2}")
        for j in range(7):
            o = V + 56 + 4*j
            for i in range(4): a(f"v_cvt_pk_bf16_f32 v{o+i}, v{V+8*j+2*i}, v{V+8*j+2*i+1}")
            a(f"ds_write_b128 v{T1}, {v4(o)} offset:{j*1024}")
            a(f"v_mfma_f32_16x16x32_bf16 {v4(CS)}, {v4(o)}, {v4(ONE)}, {'0' if j == 0 else v4(CS)}")
    else:
      for j in range(7):
        trig_block(a, 8, 32*j, EPS, BASE, TH, False)
        o = TO + 4*(j & 1)
        for i in range(4): a(f"v_cvt_pk_bf16_f32 v{o+i}, v{TH+2*i}, v{TH+2*i+1}")
        a(f"ds_write_b128 v{T1}, {v4(o)} offset:{j*1024}")
        a(f"v_mfma_f32_16x16x32_bf16 {v4(CS)}, {v4(o)}, {v4(ONE)}, {'0' if j == 0 else v4(CS)}")
    a(f"""v_lshrrev_b32 v{ST}, 1, v{N}
    s_lshl_b32 s25, s3, 3
    v_add_u32 v{ST}, s25, v{ST}
    v_and_b32 v{ST+2}, 1, v{N}
    v_lshlrev_b32 v{VUS}, 16, v{ST}
    v_lshl_add_u32 v{VUS}, v{ST+2}, 6, v{VUS}
    v_lshl_add_u32 v{VUS}, v{G}, 4, v{VUS}
    s_lshl_b32 s25, s3, 6
    v_lshlrev_b32 v{T0}, 4, v{G}
    v_add_u32 v{VCS}, {LCS}, v{T0}
    v_add_u32 v{T1}, s25, v{VCS}
    v_lshlrev_b32 v{SG2+1}, 31, v{G}
    v_or_b32 v{SG2+1}, 1.0, v{SG2+1}
    v_xor_b32 v{SG2}, 0x80000000, v{SG2+1}
    v_pk_fma_f32 {v2(CS)}, {v2(CS)}, {v2(SG2)}, {v2(CS)}
    v_pk_fma_f32 {v2(CS+2)}, {v2(CS+2)}, {v2(SG2)}, {v2(CS+2)}
    ds_write_b128 v{T1}, {v4(CS)}""")
    if OPT["b1"]:
        a(f"v_add_u32 v{T2}, {LW}, v{VL}\ns_waitcnt lgkmcnt(0)\ns_barrier")
        for f in range(28): a(f"ds_read_b128 {v4(WD+4*f)}, v{T2} offset:{f*1024}")
    if OPT["pf"] == 4:
        a("s_waitcnt lgkmcnt(0)\ns_cmp_eq_u32 s20, 7\ns_cbranch_scc1 Lnpf4")
        prefetch(a, 4, XF, XF + 1)
        a("Lnpf4:")
    if not OPT["w64l"]:
        w64(a, WC)
        for i in range(8): a(f"v_xor_b32 v{WNS+i}, 0x80008000, v{WSN+i}")
    stamp(a, 10, True)
    a(f"v_add_u32 v{T2}, {LW}, v{VL}")
    a(f"""s_lshl_b32 s25, s3, 4
    v_add_u32 v{ST}, s25, v{N}
    v_mul_u32_u24 v{VXR}, {PH}, v{ST}
    v_add_u32 v{VXR}, v{T0}, v{VXR}
    v_mul_u32_u24 v{VFW}, {PF}, v{ST}
    v_lshl_add_u32 v{VFW}, v{G}, 3, v{VFW}
    v_add_u32 v{VFW}, {LF}, v{VFW}
    v_lshrrev_b32 v{ST}, 2, v{N}
    v_lshl_add_u32 v{ST}, v{G}, 3, v{ST}
    v_mul_u32_u24 v{VFR}, {PF}, v{ST}
    v_and_b32 v{ST}, 3, v{N}
    v_lshl_add_u32 v{VFR}, v{ST}, 3, v{VFR}
    v_add_u32 v{VFR}, {LF}, v{VFR}
    s_lshl_b32 s23, s21, 11
    s_lshl_b32 s24, s22, 8
    s_add_u32 s23, s23, s24""")
    for r in range(4):
        a(f"s_mov_b32 s{30+2*r}, {hex(((1<<r)|(1<<(20+r))) & 0xffffffff)}")
        a(f"s_mov_b32 s{31+2*r}, {hex(((1<<(8+r))|(1<<(28+r))) & 0xffffffff)}")
    a("s_mov_b64 s[24:25], 0xffff\ns_mov_b32 s38, 0\ns_cmp_eq_u32 s22, 7\ns_cselect_b32 s39, 0xffff0000, 0")

def a_main(a):
    q = LdsQ(a)
    def rdx(j, hf): q.read(f"ds_read_b128 {v4(XF+4*j)}, v{VXR} offset:{64*j + hf*LXH}", XF+4*j)
    def rdw(j):
        for T in range(4): q.read(f"ds_read_b128 {v4(WD+4*(7*T+j))}, v{T2} offset:{(7*T+j)*1024}", WD+4*(7*T+j))
    if OPT["b1"]:
        for j in range(7): rdx(j, 0)
    else:
        for j in range(3): rdx(j, 0); rdw(j)
    BJ = OPT["barj"]
    Q, S, M, RS = ST, ST+1, ST+2, ST+4
    def mf(A, T, j, first): a(f"v_mfma_f32_16x16x32_bf16 {v4(A+4*T)}, {v4(WD+4*(7*T+j))}, {v4(XF+4*j)}, {'0' if first else v4(A+4*T)}")
    def gram(j, first): a(f"v_mfma_f32_16x16x32_bf16 {v4(GR)}, {v4(XF+4*j)}, {v4(XF+4*j)}, {'0' if first else v4(GR)}")
    for j in range(7):
        q.need(XF + 4*j)
        gram(j, j == 0)
        for T in range(4):
            q.need(WD+4*(7*T+j))
            mf(AC1, T, j, j == 0)
        if j + 3 < 7 and not OPT["b1"]: rdx(j + 3, 0); rdw(j + 3)
        if j == BJ:
            stamp(a, 11)
            a("s_barrier")
            for k in range(BJ + 1): rdx(k, 1)
        elif j > BJ: rdx(j, 1)
    CS = WD + 28
    for j in range(7):
        q.need(XF + 4*j)
        gram(j, False)
        mf(AC2, 1, j, j == 0)
    for T in range(4): q.read(f"ds_read_b128 {v4(CS+4*T)}, v{VCS} offset:{64*T}", CS+4*T)
    stats = [None, None, f"v_mov_b32 v{Q}, 0", f"v_mov_b32 v{V_EP}, {LTAG}"]
    stats += [f"v_cndmask_b32 v{Q}, v{Q}, v{GR+r}, s[{30+2*r}:{31+2*r}]" for r in range(4)]
    stats += [f"v_add_f32 v{S}, v{AC1+7}, v{AC2+7}", f"v_cndmask_b32 v{S}, 0, v{S}, s[24:25]", None, None,
              f"v_permlane32_swap_b32 v{Q}, v{S}", f"v_add_f32 v{Q}, v{Q}, v{S}", f"v_mov_b32 v{S}, v{Q}", None, None,
              f"v_permlane16_swap_b32 v{Q}, v{S}", f"v_add_f32 v{Q}, v{Q}, v{S}", f"v_mov_b32 v{S}, v{Q}", None, None,
              f"v_permlane32_swap_b32 v{Q}, v{S}", f"v_mul_f32 v{M}, {fl(-1.0/448)}, v{S}", f"v_mul_f32 v{Q}, {fl(1.0/448)}, v{Q}",
              f"v_fma_f32 v{Q}, -v{M}, v{M}, v{Q}", f"v_max_f32 v{Q}, 0, v{Q}"]
    rb = [f"v_cvt_pk_bf16_f32 v{Q}, v{Q}, v{Q}", f"v_and_b32 v{Q}, 0xffff0000, v{Q}"]
    if OPT["ln1emu"]:
        stats += rb + [f"v_add_f32 v{Q}, {fl(1e-5)}, v{Q}"] + rb + [f"v_sqrt_f32 v{Q}, v{Q}", None] + rb + [f"v_rcp_f32 v{RS}, v{Q}"]
    else:
        stats += [f"v_add_f32 v{Q}, {fl(1e-5)}, v{Q}", f"v_rsq_f32 v{RS}, v{Q}"]
    k = stats.index(f"v_max_f32 v{Q}, 0, v{Q}") + 1
    stats[k:k] = [f"v_cvt_pk_bf16_f32 v{V_DC}, v{M}, v{M}", f"v_and_b32 v{V_DC}, 0xffff0000, v{V_DC}",
                  f"v_sub_f32 v{V_DC}, v{V_DC}, v{M}", f"v_mul_f32 v{V_DC}, {fl(448.0)}, v{V_DC}"]
    stats += ["WAITCS", f"v_mul_f32 v{M}, v{M}, v{RS}", f"v_mul_f32 v{V_DC}, v{V_DC}, v{RS}"]
    stats += [f"v_mul_f32 v{CS+i}, v{CS+i}, v{M}" for i in range(16)]
    for j in range(7):
        for T in (0, 2, 3):
            mf(AC2, T, j, j == 0)
            for _ in range(2):
                if stats:
                    t = stats.pop(0)
                    if t == "WAITCS": q.need(CS, 16)
                    elif t: a(t)
    for p in range(2): a(f"v_pk_fma_f32 {v2(AC1+4+2*p)}, {v2(AC2+4+2*p)}, {v2(SG2)}, {v2(AC1+4+2*p)}")
    for t in stats:
        if t == "WAITCS": q.need(CS, 16)
        elif t: a(t)
    stamp(a, 3)
    for T in (0, 2, 3):
        for p in range(2):
            x = AC1 + 4*T + 2*p
            a(f"v_pk_fma_f32 {v2(x)}, {v2(AC2+4*T+2*p)}, {v2(SG2)}, {v2(x)}")
    for T in (1, 0, 2, 3):
        for p in range(2):
            x = AC1 + 4*T + 2*p
            a(f"v_pk_fma_f32 {v2(x)}, {v2(x)}, {v2(RS)}, {v2(CS+4*T+2*p)} op_sel_hi:[1,0,1]")
    a(f"v_cndmask_b32 v{AC1+14}, v{AC1+14}, v{V_DC}, s[38:39]")
    for T in (1, 0, 2, 3):
        for p in range(2):
            x = AC1 + 4*T + 2*p
            a(f"v_cvt_pk_f16_f32 v{AC2+2*T+p}, v{x}, v{x+1}")
        a(f"ds_write_b64 v{VFW}, {v2(AC2+2*T)} offset:{32*T}")
    if OPT["w64l"]: a(f"s_lshl_b32 s26, s3, 12\ns_add_u32 s26, s26, {LWT}\nv_add_u32 v{T1}, s26, v{VL}")
    stamp(a, 5, 5)
    a(f"s_waitcnt lgkmcnt(0)")
    stamp(a, 6, 5)
    a(f"s_barrier")
    stamp(a, 7, 5)
    if OPT["w64l"]:
        for i in (0, 2, 4, 1, 3, 5): a(f"ds_read_b128 {v4(WC+4*i)}, v{T1} offset:{(i % 4 if i < 4 else i - 2 + 2) * 0 + i * 0 + [0, 1024, 2048, 3072, 16384, 17408][i]}")
    FA = WD + 48
    fa = lambda T, ks: FA + (2*T + ks) * 4
    q = LdsQ(a)
    for T in range(2):
        for ks in range(2):
            for TT in (T, T + 2):
                for h in range(2):
                    q.read(f"ds_read_b64_tr_b16 {v2(fa(TT, ks)+2*h)}, v{VFR} offset:{(32*ks+4*h)*PF+32*TT}", fa(TT, ks)+2*h, 2)
    q.read(f"ds_read_b32 v{V_EP}, v{V_EP}", V_EP, 1)
    UR = AC1; UI = AC1 + 8; o = XF
    tagcalc = [f"v_add_u32 v{M}, 1, v{V_EP}", f"s_mov_b32 s98, {HASH}", f"v_mul_lo_u32 v{M}, v{M}, s98"]
    for T in range(2):
        for ks in range(2):
            fr = v4(fa(T, ks)); fi = v4(fa(T + 2, ks))
            q.need(fa(T, ks))
            if T == 0 and ks == 0: stamp(a, 8, 5)
            a(f"v_mfma_f32_16x16x32_f16 {v4(UR+4*T)}, {fr}, {v4(WC+4*ks)}, {'0' if ks == 0 else v4(UR+4*T)}")
            a(f"v_mfma_f32_16x16x32_f16 {v4(UI+4*T)}, {fr}, {v4(WNS+4*ks)}, {'0' if ks == 0 else v4(UI+4*T)}")
            q.need(fa(T + 2, ks))
            a(f"v_mfma_f32_16x16x32_f16 {v4(UR+4*T)}, {fi}, {v4(WSN+4*ks)}, {v4(UR+4*T)}")
            a(f"v_mfma_f32_16x16x32_f16 {v4(UI+4*T)}, {fi}, {v4(WC+4*ks)}, {v4(UI+4*T)}")
            if T == 1 and ks == 1:
                q.need(V_EP, 1)
                for t in tagcalc: a(t)
    stamp(a, 9, 5)
    for r in range(4): a(f"v_cvt_pk_f16_f32 v{o+r}, v{UR+r}, v{UI+r}")
    a(f"buffer_store_dwordx4 {v4(o)}, v{VUS}, s[12:15], s23 offen {SC}")
    stamp(a, 10, 5)
    a(f"v_add3_u32 v{Q}, v{o}, v{o+1}, v{o+2}")
    a(f"v_sub_u32 v{M}, v{M}, v{o+3}")
    a(f"v_sub_u32 v{M}, v{M}, v{Q}")
    for r in range(3): a(f"v_cvt_pk_f16_f32 v{o+4+r}, v{UR+4+r}, v{UI+4+r}")
    a(f"""v_add3_u32 v{Q}, v{o+4}, v{o+5}, v{o+6}
    v_sub_u32 v{o+7}, v{M}, v{Q}
    buffer_store_dwordx4 {v4(o+4)}, v{VUS}, s[12:15], s23 offen offset:128 {SC}""")

def b_ids(a):
    a(f"""s_and_b32 s92, s2, 7
    s_lshr_b32 s93, s2, 6
    s_lshl_b32 s93, s93, 3
    s_or_b32 s92, s92, s93
    s_bfe_u32 s93, s2, 0x10003
    s_bfe_u32 s96, s2, 0x20004
    s_sub_u32 s95, 64, s92
    s_cmp_eq_u32 s92, 0
    s_cselect_b32 s95, 32, s95
    s_cselect_b32 s94, 0, 1
    s_xor_b32 s94, s94, s93
    s_cmp_eq_u32 s93, 0
    s_cselect_b32 s95, s92, s95
    s_lshl_b32 s96, s96, 9
    s_add_u32 s95, s95, s96
    s_lshl_b32 s96, s20, 6
    s_add_u32 s96, s96, s95
    s_mul_i32 s97, s96, 896""")

def b_setup(a):
    srd(a, 12, 6, WS_SIZE)
    srd(a, 52, 48, XB)
    srd(a, 16, 40, 896)
    b_ids(a)

def b_loads(a):
    a(f"""s_mov_b32 s26, {WS_EPOCH}
    v_mov_b32 v{T0}, 0
    buffer_load_dword v{V_EP}, v{T0}, s[12:15], s26 offen {SC}
    buffer_load_dwordx4 {v4(B_WR)}, v{VL}, s[16:19], 0 offen
    buffer_load_dwordx4 {v4(B_XR)}, v{VL}, s[8:11], s97 offen""")

def pro(a):
    EPS, BASE, TH, AF, AD = P_EPS, P_BASE, P_TH, B_AF, B_AD
    a(f"""s_lshl_b32 s28, s92, 16
    s_lshl_b32 s29, s20, 8
    s_add_u32 s28, s28, s29
    s_add_u32 s29, s28, 4096
    s_add_u32 s30, s28, 32768
    s_add_u32 s31, s28, 36864
    v_lshlrev_b32 v{B_VU}, 13, v{G}
    v_lshl_add_u32 v{B_VU}, v{N}, 4, v{B_VU}
    v_and_b32 v{T0}, 7, v{N}
    v_lshlrev_b32 v{T0}, 6, v{T0}
    v_add_u32 v{T0}, s95, v{T0}
    v_cvt_f32_u32 v{T0}, v{T0}
    v_cmp_gt_u32 vcc, 8, v{N}
    v_mul_f32 v{EPS}, {fl(1.0/2048)}, v{T0}
    v_lshlrev_b32 v{T1}, 2, v{G}
    v_cndmask_b32 v{EPS}, -v{EPS}, v{EPS}, vcc
    v_cvt_f32_u32 v{T1}, v{T1}
    v_mul_f32 v{BASE}, v{T1}, v{EPS}""")
    for ks in range(2):
        trig_block(a, 4, 16*ks, EPS, BASE, TH, True)
        for i in range(4):
            a(f"v_cvt_pk_f16_f32 v{AF+4*ks+i}, v{TH+i}, v{TH+4+i}")
    a(f"""v_lshrrev_b32 v{T0}, 3, v{N}
    v_and_b32 v{T1}, 3, v{N}
    v_mul_u32_u24 v{T1}, 7, v{T1}
    v_lshl_add_u32 v{T1}, v{T0}, 2, v{T1}
    s_mul_i32 s32, s20, 28
    s_add_u32 s32, s32, 1
    v_add_u32 v{T1}, s32, v{T1}
    v_sub_u32 v{T2}, 448, v{T1}
    v_cmp_gt_u32 s[34:35], 2, v{G}
    v_mov_b32 v{TH}, s93
    v_mov_b32 v{TH+1}, s94
    v_cndmask_b32 v{T2}, v{T2}, v{T1}, s[34:35]
    v_cndmask_b32 v{TH}, v{TH+1}, v{TH}, s[34:35]
    v_bfe_u32 v{TH+1}, v{N}, 2, 1
    v_cmp_eq_u32 s[60:61], v{TH}, v{TH+1}
    v_and_b32 v{TH+2}, 1, v{G}
    v_mul_u32_u24 v{TH+2}, {4*PY}, v{TH+2}
    v_add_lshl_u32 v{AD}, v{TH+2}, v{T2}, 2
    v_mov_b32 v{TH+3}, -4
    v_cndmask_b32 v{TH+3}, v{TH+3}, 4, s[34:35]
    v_add_u32 v{AD+1}, v{AD}, v{TH+3}
    v_add_u32 v{AD+2}, v{AD+1}, v{TH+3}
    v_add_u32 v{AD+3}, v{AD+2}, v{TH+3}
    v_cmp_eq_u32 s[50:51], 0, v{T0}
    s_and_b64 s[50:51], s[50:51], s[60:61]
    v_mov_b32 v{TH}, 222
    v_cmp_eq_u32 s[62:63], v{TH}, v{T1}
    s_and_b64 s[62:63], s[62:63], s[60:61]
    s_andn2_b64 s[36:37], s[62:63], s[34:35]
    v_lshlrev_b32 v{TH+2}, 2, v{TH+2}
    v_add_u32 v{TH}, {448*4}, v{TH+2}
    v_cndmask_b32 v{AD+2}, v{AD+2}, v{TH}, s[36:37]
    v_add_u32 v{TH}, {449*4}, v{TH+2}
    v_add_u32 v{B_AD4}, {450*4}, v{TH+2}
    v_cndmask_b32 v{B_AD4}, v{B_AD4}, v{TH}, s[34:35]
    s_mul_i32 s33, s20, {PY*4}
    v_lshlrev_b32 v{B_VY}, 5, v{LANE}
    v_add_u32 v{B_VY}, s33, v{B_VY}
    s_add_u32 s33, s33, {448*4}
    v_mov_b32 v{B_AD4+1}, s33""")
    for i in range(8):
        a(f"v_alignbit_b32 v{B_A2+i}, v{AF+i}, v{AF+i}, 16")
        a(f"v_xor_b32 v{B_A2+i}, 0x8000, v{B_A2+i}")
    lim_regs(a, C_L, LANE, T0)
    a(f"""s_lshl_b32 s34, s20, 5
    s_add_u32 s34, s34, {LSEL}
    v_lshlrev_b32 v{T1}, 2, v{LANE}
    v_add_u32 v{C_SW}, s34, v{T1}
    v_add_u32 v{C_SR}, {LSEL}, v{T1}
    v_lshrrev_b32 v{C_KA}, 1, v0
    v_lshlrev_b32 v{C_KA}, 6, v{C_KA}
    v_and_b32 v{T0}, 1, v0
    v_lshl_add_u32 v{C_KA}, v{T0}, 4, v{C_KA}
    s_lshl_b32 s34, s20, 6
    s_add_u32 s34, s34, {LSE2}
    v_add_u32 v{C_FW}, s34, v{T1}
    v_lshrrev_b32 v{C_PF}, 3, v{LANE}
    v_and_b32 v{C_FY}, 7, v{LANE}
    v_lshlrev_b32 v{C_FR}, 6, v{C_PF}
    v_lshl_add_u32 v{C_FR}, v{C_FY}, 2, v{C_FR}
    v_add_u32 v{C_FR}, {LSE2}, v{C_FR}
    v_lshlrev_b32 v{C_FY}, 6, v{C_FY}
    v_add_u32 v{C_FY}, {LSE2 + 32}, v{C_FY}
    v_lshlrev_b32 v{C_PF}, 7, v{C_PF}
    s_cmp_ge_u32 s2, 224
    s_cselect_b32 s33, 1024, 0
    s_add_u32 s33, s33, {WS_ROW}
    s_lshl_b32 s27, s2, 6
    s_add_u32 s27, s27, {WS_KEYS}
    s_sub_u32 s32, 2047, s96
    v_lshrrev_b32 v{T0}, 1, v0
    v_and_b32 v{T1}, 7, v{T0}
    v_lshrrev_b32 v{T2}, 6, v{T0}
    v_lshl_or_b32 v{T1}, v{T2}, 3, v{T1}
    v_sub_u32 v{T2}, 64, v{T1}
    v_cmp_eq_u32 vcc, 0, v{T1}
    v_bfe_u32 v{TH}, v{T0}, 3, 1
    v_cndmask_b32 v{T2}, v{T2}, 32, vcc
    v_cmp_eq_u32 vcc, 0, v{TH}
    v_bfe_u32 v{TH}, v{T0}, 4, 2
    v_cndmask_b32 v{T1}, v{T2}, v{T1}, vcc
    v_lshl_add_u32 v{T1}, v{TH}, 9, v{T1}
    v_and_b32 v{T0}, 1, v0
    v_lshl_add_u32 v{T1}, v{T0}, 8, v{T1}
    v_sub_u32 v{C_IX}, 2047, v{T1}
    v_subrev_u32 v{C_IX+1}, 64, v{C_IX}
    v_subrev_u32 v{C_IX+2}, 128, v{C_IX}
    v_subrev_u32 v{C_IX+3}, 192, v{C_IX}""")
    gu_prep(a)

def pro2(a):
    XU, WU, S1, S2, S3 = B_XU, B_WU, P_TH, P_TH + 2, P_TH + 4
    unpack8(a, WU, B_WR)
    a(f"""v_pk_add_f32 {v2(S1)}, {v2(WU)}, {v2(WU+2)}
    v_pk_add_f32 {v2(S2)}, {v2(WU+4)}, {v2(WU+6)}
    v_pk_add_f32 {v2(S1)}, {v2(S1)}, {v2(S2)}
    v_add_f32 v{S1}, v{S1}, v{S1+1}
    v_mov_b32 v{S2}, 0
    v_mov_b32 v{S3}, 0""")
    reduce3(a, S1, S2, S3, T0, 58, 39, 39)
    unpack8(a, XU, B_XR)
    for k in (B_S1, B_S1+1, B_S2, B_S2+1, B_S3, B_S3+1): a(f"v_mov_b32 v{k}, 0")

def anyones(a, regs_, t):
    regs_ = list(regs_)
    a(f"v_max_u32 v{t}, v{regs_[0]}, v{regs_[1]}")
    rest = regs_[2:]
    while len(rest) >= 2:
        a(f"v_max3_u32 v{t}, v{t}, v{rest[0]}, v{rest[1]}"); rest = rest[2:]
    if rest: a(f"v_max_u32 v{t}, v{t}, v{rest[0]}")
    a(f"v_cmp_eq_u32 vcc, -1, v{t}")

def wave_sum(a, v, sd):
    for k in (8, 4, 2, 1):
        a(f"v_add_u32_dpp v{v}, v{v}, v{v} row_ror:{k} row_mask:0xf bank_mask:0xf")
    for i in range(4): a(f"v_readlane_b32 s{sd+i}, v{v}, {16*i}")
    a(f"s_add_u32 s{sd}, s{sd}, s{sd+1}\ns_add_u32 s{sd+2}, s{sd+2}, s{sd+3}\ns_add_u32 s{sd}, s{sd}, s{sd+2}")

def publish_row(a):
    a(f"""s_lshl_b32 s34, s96, 11
    s_add_u32 s34, s34, {WS_ROW}
    v_mov_b32 v{T0}, 0
    v_mov_b32 v{T1}, 0
    v_writelane_b32 v{C_LN}, 0, 56
    v_writelane_b32 v{C_OUT}, 0, 56
    s_mov_b32 exec_hi, 0x01ffffff
    v_add3_u32 v{T0}, v{C_LN}, v{C_LN+1}, v{C_LN+2}
    v_add3_u32 v{T1}, v{C_OUT}, v{C_OUT+1}, v{C_OUT+2}
    v_add_u32 v{T0}, v{T0}, v{C_LN+3}
    v_add_u32 v{T1}, v{T1}, v{C_OUT+3}
    s_mov_b32 exec_hi, -1""")
    wave_sum(a, T0, 36)
    a(f"s_sub_u32 s35, s98, s36\nv_writelane_b32 v{C_LN}, s35, 56")
    wave_sum(a, T1, 36)
    a(f"""s_sub_u32 s35, s98, s36
    v_writelane_b32 v{C_OUT}, s35, 56
    s_mov_b32 exec_hi, 0x01ffffff
    buffer_store_dwordx4 {v4(C_LN)}, v{VL}, s[12:15], s34 offen {SC}
    buffer_store_dwordx4 {v4(C_OUT)}, v{VL}, s[12:15], s34 offen offset:1024 {SC}
    s_mov_b32 exec_hi, -1""")

def fetch_row_issue(a, dst):
    a(f"""v_readlane_b32 s34, v{C_K}, s20
    s_andn2_b32 s34, 0x7ff, s34
    s_lshl_b32 s34, s34, 11
    s_add_u32 s34, s34, s33
    s_mov_b32 exec_hi, 0x01ffffff
    buffer_load_dwordx4 {v4(dst)}, v{VL}, s[12:15], s34 offen {SC}
    s_mov_b32 exec_hi, -1""")

def fetch_row_finish(a, dst, ldsaddr):
    _lbl[0] += 1
    L = f"Lrow{_lbl[0]}"
    a(f"""s_mul_i32 s29, s20, {PX}
    s_add_u32 s29, s29, {LXS}
    v_add_u32 v{ldsaddr}, s29, v{VL}
    s_mov_b32 s57, {SPIN}
    {L}:
    v_mov_b32 v{T0}, 0
    s_mov_b32 exec_hi, 0x01ffffff
    s_waitcnt vmcnt(0)
    ds_write_b128 v{ldsaddr}, {v4(dst)}
    v_add3_u32 v{T0}, v{dst}, v{dst+1}, v{dst+2}
    v_add_u32 v{T0}, v{T0}, v{dst+3}
    s_mov_b32 exec_hi, -1""")
    wave_sum(a, T0, 36)
    a(f"""s_cmp_eq_u32 s36, s98
    s_cbranch_scc1 {L}d
    s_mov_b32 exec_hi, 0x01ffffff
    s_waitcnt lgkmcnt(0)
    buffer_load_dwordx4 {v4(dst)}, v{VL}, s[12:15], s34 offen {SC}
    s_mov_b32 exec_hi, -1
    s_sub_u32 s57, s57, 1
    s_cbranch_scc0 {L}""")
    timeout_note(a, _lbl[0])
    a(f"{L}d:")

def gu_prep(a):
    srd(a, 16, 42, 448*3584)
    a(f"""v_mul_u32_u24 v{V_GU}, 3584, v0
    s_and_b32 s100, s2, 7
    s_mul_i32 s100, s100, 28
    s_lshr_b32 s101, s2, 3
    s_add_u32 s100, s100, s101
    s_lshl_b32 s26, s100, 4
    s_lshl_b32 s101, s20, 10
    s_add_u32 s101, s101, {LWT}
    s_and_b32 s45, s45, 0xffff
    s_cmp_ge_u32 s2, 224
    s_cselect_b32 s24, 7, s20""")

def gu_dma(a):
    a(f"""s_cmp_eq_u32 s24, 7
    s_cbranch_scc1 Lngu
    s_mov_b32 m0, s101
    s_add_u32 s101, s101, 8192
    buffer_load_dwordx4 v{V_GU}, s[16:19], s26 offen lds
    s_mov_b32 s16, s44
    s_mov_b32 m0, s101
    s_mov_b32 s17, s45
    buffer_load_dwordx4 v{V_GU}, s[16:19], s26 offen lds
    Lngu:""")

def wd_dma(a, j0, j1, L):
    if j0 == j1: return
    a(f"""s_cmp_lt_u32 s2, 224
    s_cbranch_scc1 {L}
    s_and_b32 s50, s2, 7
    s_cmp_eq_u32 s50, 7
    s_cbranch_scc1 {L}
    s_lshl_b32 s50, s50, 7
    s_bfe_u32 s51, s2, 0x20003
    s_lshl_b32 s51, s51, 5
    s_add_u32 s51, s51, s50""")
    srd(a, 16, 46, 1792*896)
    a(f"""v_lshrrev_b32 v{T1}, 1, v{LANE}
    v_mul_u32_u24 v{T1}, 896, v{T1}
    v_and_b32 v{T2}, 1, v{LANE}
    v_lshl_add_u32 v{T1}, v{T2}, 4, v{T1}
    s_mul_i32 s23, s20, {224*896}
    s_add_u32 s23, s23, s51
    s_add_u32 s23, s23, {j0*32*896}
    s_mul_i32 s25, s20, 7168
    s_add_u32 s25, s25, {LWT + j0*1024}""")
    for j in range(j0, j1):
        a(f"s_mov_b32 m0, s25")
        a(f"s_add_u32 s25, s25, 1024")
        a(f"buffer_load_dwordx4 v{T1}, s[16:19], s23 offen lds")
        a(f"s_add_u32 s23, s23, {32*896}")
    a(f"{L}:")

def b_main(a):
    R, AF, ACC, XU, WU, AD, TH = B_R, B_AF, B_ACC, B_XU, B_WU, B_AD, B_TH
    S1, S2, S3 = B_S1, B_S2, B_S3
    if OPT["sl_u0"]: a(f"s_sleep {OPT['sl_u0']}")
    def uld():
        for ks in range(2):
            for i in range(4):
                a(f"buffer_load_dwordx4 {v4(R+16*ks+4*i)}, v{B_VU}, s[12:15], s{28+2*ks+(i>>1)} offen offset:{2048*(i&1)} {SC}")
    a(f"s_mov_b32 s57, {SPIN}")
    uld()
    a("s_waitcnt vmcnt(8)")
    pro2(a)
    def swaps(ks):
        b = R + 16*ks
        for i in range(4):
            for j in range(i+1, 4):
                a(f"v_swap_b32 v{b+4*i+j}, v{b+4*j+i}")
    def mm(ks, dpp):
        for j in range(4):
            c = "0" if ks == 0 else v4(ACC+4*j)
            a(f"v_mfma_f32_16x16x32_f16 {v4(ACC+4*j)}, {v4(AF+4*ks)}, {v4(R+16*ks+4*j)}, {c}")
            if dpp: a(f"v_add_u32_dpp v{T0}, v{T0}, v{T0} row_ror:{8 >> j} row_mask:0xf bank_mask:0xf")
        a(f"v_mfma_f32_16x16x32_f16 {v4(TH)}, {v4(B_A2+4*ks)}, {v4(R+16*ks+8)}, {'0' if ks == 0 else v4(TH)}")
    if not OPT["part"]:
        a("s_branch Lupw\nLupoll:")
        uld()
        a("Lupw:")
    for ks in range(2):
        a(f"s_waitcnt vmcnt({4-4*ks})")
        b = R + 16*ks
        for i in range(8):
            if ks == 0 and i == 0: a(f"v_add_u32 v{T0}, v{b}, v{b+1}")
            else: a(f"v_add3_u32 v{T0}, v{T0}, v{b+2*i}, v{b+2*i+1}")
        swaps(ks)
        mm(ks, ks == 1)
    a(f"""v_cmp_ne_u32 vcc, s99, v{T0}
    s_cmp_eq_u64 vcc, 0""")
    if OPT["part"]:
        a("s_cbranch_scc0 Lupart")
        def part():
            C4 = B_TH
            a("Lupart:\ns_lshl_b32 s34, s98, 4")
            swaps(0); swaps(1)
            a("Lupchk:")
            for i in range(4):
                a(f"v_add3_u32 v{C4+i}, v{R+4*i}, v{R+4*i+1}, v{R+4*i+2}")
            for i in range(4):
                a(f"v_add3_u32 v{C4+i}, v{C4+i}, v{R+4*i+3}, v{R+16+4*i}")
            for i in range(4):
                a(f"v_add3_u32 v{C4+i}, v{C4+i}, v{R+16+4*i+1}, v{R+16+4*i+2}")
            for i in range(4):
                a(f"v_add_u32 v{C4+i}, v{C4+i}, v{R+16+4*i+3}")
            for k in (8, 4, 2, 1):
                for i in range(4):
                    a(f"v_add_u32_dpp v{C4+i}, v{C4+i}, v{C4+i} row_ror:{k} row_mask:0xf bank_mask:0xf")
            MK = ["s[36:37]", "s[38:39]", "s[24:25]", "vcc"]
            for i in range(4): a(f"v_cmp_ne_u32 {MK[i]}, s34, v{C4+i}")
            a(f"""s_or_b64 s[26:27], s[36:37], s[38:39]""".replace("s[26:27]", "s[100:101]"))
            a(f"""s_or_b64 s[100:101], s[100:101], s[24:25]
            s_or_b64 s[100:101], s[100:101], vcc
            s_cbranch_scc0 Lupgo""")
            if OPT["sl_r"]: a(f"s_sleep {OPT['sl_r']}")
            for i in range(4):
                a(f"s_cmp_eq_u64 {MK[i]}, 0\ns_cbranch_scc1 Lupok{i}")
                for ks in range(2):
                    a(f"buffer_load_dwordx4 {v4(R+16*ks+4*i)}, v{B_VU}, s[12:15], s{28+2*ks+(i>>1)} offen offset:{2048*(i&1)} {SC}")
                a(f"Lupok{i}:")
            a(f"""s_waitcnt vmcnt(0)
            s_sub_u32 s57, s57, 1
            s_cbranch_scc0 Lupchk
            Lupgo:""")
            for ks in range(2):
                swaps(ks); mm(ks, False)
            a("s_nop 7\ns_branch Lupolld")
        TAIL.append(part)
    else:
        a(f"""s_cbranch_scc1 Lupolld
        s_sub_u32 s57, s57, 1
        s_cbranch_scc0 Lupoll""")
        timeout_note(a, 9)
    a("Lupolld:")
    stamp(a, 6)
    if OPT["stamps"] == 3: a(f"s_sub_u32 s{64+2*11}, {SPIN+1}, s57")
    for j in range(4):
        if j in (0, 3): a(f"s_mov_b64 exec, {['s[60:61]', '', '', 's[50:51]'][j]}")
        for r in (0, 2):
            a(f"ds_write2st64_b32 v{AD+j}, v{ACC+4*j+r}, v{ACC+4*j+r+1} offset0:{r*PY//64} offset1:{(r+1)*PY//64}")
    a("s_cmp_lg_u32 s20, 7\ns_cbranch_scc1 Lndc\ns_mov_b64 exec, s[62:63]")
    for r in (0, 2):
        a(f"ds_write2st64_b32 v{B_AD4}, v{TH+r}, v{TH+r+1} offset0:{r*PY//64} offset1:{(r+1)*PY//64}")
    a("Lndc:\ns_mov_b64 exec, -1")
    gu_dma(a)
    wd_dma(a, 0, OPT['wdsplit'], 'Lnwd0')
    a("""s_mov_b32 exec_hi, 0x00ffffff
    s_waitcnt lgkmcnt(0)
    s_barrier""")
    H = R
    a(f"ds_read_b128 {v4(TH)}, v{B_AD4+1}\nds_read_b128 {v4(H)}, v{B_VY} offset:{LY}\nds_read_b128 {v4(H+4)}, v{B_VY} offset:{LY+16}")
    a("s_mov_b64 s[36:37], 1\ns_mov_b64 s[38:39], 0x10000001")
    for hf in range(2):
        a(f"s_waitcnt lgkmcnt({1-hf})")
        if hf == 0:
            a(f"""v_add_f32 v{TH+1}, v{TH+1}, v{TH+2}
            v_add_f32 v{TH}, v{TH}, v{H}
            v_cndmask_b32 v{TH}, v{TH}, v{TH+1}, s[36:37]
            v_mul_f32 v{TH}, 0.5, v{TH}
            v_cndmask_b32 v{H}, v{H}, v{TH}, s[38:39]""")
        for p in range(2):
            x = 4*hf + 2*p
            a(f"v_pk_add_f32 {v2(H+x)}, {v2(H+x)}, {v2(XU+x)}")
        for p in range(2):
            x = 4*hf + 2*p
            a(f"v_pk_add_f32 {v2(S1)}, {v2(S1)}, {v2(H+x)}")
            a(f"v_pk_fma_f32 {v2(S2)}, {v2(H+x)}, {v2(H+x)}, {v2(S2)}")
            a(f"v_pk_fma_f32 {v2(S3)}, {v2(H+x)}, {v2(WU+x)}, {v2(S3)}")
    a(f"""s_mov_b32 exec_hi, -1
    v_add_f32 v{S1}, v{S1}, v{S1+1}
    v_add_f32 v{S2}, v{S2}, v{S2+1}
    v_add_f32 v{S3}, v{S3}, v{S3+1}""")
    reduce3(a, S1, S2, S3, T0, 37, 38, 39)
    M, V, SD, RS, C0, KEY = TH, TH+1, TH+2, TH+4, TH+6, C_KEY
    a(f"""v_mov_b32 v{V}, {fl(1.0/448)}
    v_mul_f32 v{M}, s37, v{V}
    v_mul_f32 v{V}, s38, v{V}
    v_mov_b32 v{KEY}, s39
    v_fma_f32 v{V}, -v{M}, v{M}, v{V}
    v_fma_f32 v{KEY}, -v{M}, s58, v{KEY}
    v_max_f32 v{SD}, 0, v{V}
    v_add_f32 v{V}, {fl(1e-5)}, v{SD}""")
    a(f"""v_rsq_f32 v{RS}, v{V}
    s_lshl_b32 s34, s20, 2
    v_mov_b32 v{T2}, s34
    v_mul_f32 v{KEY}, v{KEY}, v{RS}
    v_cvt_pk_bf16_f32 v{KEY}, v{KEY}, v{KEY}
    v_ashrrev_i32 v{T0}, 31, v{KEY}
    v_or_b32 v{T0}, 0x80000000, v{T0}
    v_xor_b32 v{KEY}, v{KEY}, v{T0}
    v_and_b32 v{KEY}, 0xffff0000, v{KEY}
    v_or_b32 v{KEY}, s32, v{KEY}
    ds_write_b32 v{T2}, v{KEY} offset:{LKEY}
    v_mov_b32 v{C_STK}, 0xffff
    v_lshlrev_b32 v{T1}, 2, v{LANE}
    v_mov_b32 v{T2}, {LKEY}
    s_waitcnt lgkmcnt(0)
    s_barrier
    s_cmp_lg_u32 s20, 0
    s_cbranch_scc1 Lnokey
    s_mov_b64 exec, 0xff
    ds_read_b32 v{T0}, v{T1} offset:{LKEY}
    s_waitcnt lgkmcnt(0)
    v_bfi_b32 v{T0}, v{C_STK}, s59, v{T0}
    buffer_store_dword v{T0}, v{T1}, s[12:15], s27 offen {SC}
    s_mov_b64 exec, -1
    Lnokey:
    ds_read_b128 {v4(ACC)}, v{T2}
    ds_read_b128 {v4(ACC+4)}, v{T2} offset:16""")
    stamp(a, 7)
    sd_chain(a, SD, SD)
    a(f"v_rcp_f32 v{RS}, v{SD}\ns_nop 0\nv_mul_f32 v{C0}, -v{M}, v{RS}")
    for p in range(4):
        a(f"v_pk_fma_f32 {v2(XU+2*p)}, {v2(H+2*p)}, {v2(RS)}, {v2(C0)} op_sel_hi:[1,0,0]")
    for p in range(4):
        a(f"v_pk_add_f32 {v2(H+2*p)}, {v2(H+2*p)}, {v2(XU+2*p)}")
    for p in range(4):
        a(f"v_cvt_pk_bf16_f32 v{C_LN+p}, v{XU+2*p}, v{XU+2*p+1}")
        a(f"v_cvt_pk_bf16_f32 v{C_OUT+p}, v{H+2*p}, v{H+2*p+1}")
    a(f"""s_waitcnt lgkmcnt(0)
    v_max3_u32 v{T0}, v{ACC}, v{ACC+1}, v{ACC+2}
    v_max3_u32 v{T1}, v{ACC+3}, v{ACC+4}, v{ACC+5}
    v_max3_u32 v{T0}, v{T0}, v{ACC+6}, v{ACC+7}
    v_max_u32 v{T0}, v{T0}, v{T1}
    v_cmp_eq_u32 s[60:61], v{T0}, v{KEY}
    s_cmp_eq_u64 s[60:61], 0
    s_cbranch_scc1 Lnoeager""")
    publish_row(a)
    a("Lnoeager:")

QP = {1: "quad_perm:[1,0,3,2]", 2: "quad_perm:[2,3,0,1]", 3: "quad_perm:[3,2,1,0]", 7: "row_half_mirror"}
class Net:
    def __init__(s, a, x, t, fill): s.a = a; s.x = x; s.t = t; s.fill = list(fill)
    def f(s, n=1):
        for _ in range(n):
            if s.fill: s.a(s.fill.pop(0))
    def ce(s, m):
        a, x, t = s.a, s.x, s.t
        s.f()
        if m == 4:
            a(f"v_max_u32_dpp v{t}, v{x}, v{x} row_shl:4 row_mask:0xf bank_mask:0x5")
            a(f"v_min_u32_dpp v{t}, v{x}, v{x} row_shr:4 row_mask:0xf bank_mask:0xa")
            s.x, s.t = t, x
        else:
            a(f"v_mov_b32_dpp v{t}, v{x} {QP[m]} row_mask:0xf bank_mask:0xf")
            a(f"v_med3_u32 v{x}, v{x}, v{t}, v{C_L[1 << (m.bit_length()-1)]}")
    def merge(s, last_clean=True):
        a = s.a
        s.f()
        a(f"v_max_u32_dpp v{s.x}, v{s.x}, v{s.x} row_mirror row_mask:0xf bank_mask:0xf")
        for m in (4, 2, 1): s.ce(m)
        for sw in ("v_permlane16_swap_b32", "v_permlane32_swap_b32"):
            a(f"v_mov_b32 v{s.t}, v{s.x}")
            s.f()
            a(f"{sw} v{s.x}, v{s.t}")
            s.f()
            a(f"v_max_u32_dpp v{s.x}, v{s.t}, v{s.x} row_half_mirror row_mask:0xf bank_mask:0xf")
            if last_clean or "16" in sw:
                for m in (4, 2, 1): s.ce(m)
        s.f(99)

def fast_select(a):
    K, X, Y, P, Q = C_K, C_X, C_Y, C_TMP, C_TMP + 1
    a(f"""v_max_u32 v{P}, v{K}, v{K+1}
    v_max_u32 v{Q}, v{K+2}, v{K+3}
    v_max_u32 v{X}, v{P}, v{Q}""")
    fill = [f"v_min_u32 v{Y}, v{P}, v{Q}", f"v_min_u32 v{P}, v{K}, v{K+1}", f"v_min_u32 v{Q}, v{K+2}, v{K+3}",
            f"v_max3_u32 v{Y}, v{Y}, v{P}, v{Q}"]
    fill += [f"v_max_u32_dpp v{Y}, v{Y}, v{Y} row_ror:{k} row_mask:0xf bank_mask:0xf" for k in (8, 4, 2, 1)]
    fill += [f"v_mov_b32 v{P}, v{Y}", f"v_permlane16_swap_b32 v{Y}, v{P}", f"v_max_u32 v{Y}, v{Y}, v{P}",
             f"v_mov_b32 v{P}, v{Y}", f"v_permlane32_swap_b32 v{Y}, v{P}", f"v_max_u32 v{Y}, v{Y}, v{P}",
             "s_mov_b64 vcc, 0x100"]
    n = Net(a, X, C_TMP + 2, fill)
    for m in (1, 3, 1, 7, 2, 1): n.ce(m)
    n.merge()
    a(f"""s_mov_b64 exec, 0x1ff
    v_cndmask_b32 v{P}, v{n.x}, v{Y}, vcc
    ds_write_b32 v{C_FW}, v{P}""")
    if OPT["rowpf"]:
        m8 = (1 << OPT["rowpf"]) - 1; m32 = m8 * 0x01010101
        a(f"""s_mov_b32 exec_lo, {hex(m32)}
        s_mov_b32 exec_hi, {hex(m32)}
        v_bfi_b32 v{Q}, v{n.x}, 0, v{C_TMP+3}
        v_lshl_add_u32 v{Q}, v{Q}, 11, v{C_PF}
        buffer_load_dword v{JUNK}, v{Q}, s[12:15], s33 offen {SC}""")
    a(f"""s_mov_b64 exec, -1
    s_waitcnt lgkmcnt(0)
    s_barrier
    ds_read_b32 v{X}, v{C_FR}
    ds_read_b32 v{Y}, v{C_FY}
    s_waitcnt lgkmcnt(0)""")
    fill = [f"v_max_u32_dpp v{Y}, v{Y}, v{Y} {QP[m]} row_mask:0xf bank_mask:0xf" for m in (1, 2, 7)]
    n = Net(a, X, C_TMP + 2, fill)
    n.merge(last_clean=False)
    a(f"""v_cmp_gt_u32 vcc, v{Y}, v{n.x}
    s_cmp_eq_u64 vcc, 0
    s_cbranch_scc0 Lfullsel
    v_mov_b32 v{K}, v{n.x}
    Lseldone:""")

def c_select(a):
    K = C_K
    a(f"s_mov_b32 s34, {WS_KEYS}\nv_mov_b32 v{C_TMP+3}, 0x7ff")
    def chk():
        a(f"v_xor_b32 v{T0}, v{K}, v{K+1}")
        a(f"v_xor_b32 v{T1}, v{K+2}, v{K+3}")
        a(f"v_xor_b32 v{T2}, s59, v{K}")
        a(f"v_xor_b32 v{C_X}, s59, v{K+2}")
        a(f"v_or3_b32 v{T0}, v{T0}, v{T1}, v{T2}")
        for i in range(4): a(f"v_bfi_b32 v{K+i}, v{C_STK}, v{C_IX+i}, v{K+i}")
        a(f"v_or_b32 v{T0}, v{T0}, v{C_X}")
        a(f"v_cmp_ne_u16 vcc, 0, v{T0}")
    poll(a, lambda: a(f"buffer_load_dwordx4 {v4(K)}, v{C_KA}, s[12:15], s34 offen {SC}"), chk, pre=OPT["sl_k"])
    stamp(a, 8)
    fast_select(a)
    stamp(a, 9)
    a(f"""v_cmp_eq_u32 vcc, v{K}, v{C_KEY}
    s_and_b64 s[62:63], vcc, s[60:61]
    s_cmp_lg_u64 s[62:63], vcc
    s_cbranch_scc0 Lsel_pub""")
    publish_row(a)
    a("Lsel_pub:")
    fetch_row_issue(a, 84)
    a(f"""s_cmp_eq_u64 vcc, 0
    s_cbranch_scc0 Lsel_done
    s_mov_b32 exec_hi, 0x00ffffff
    buffer_store_dwordx4 {v4(C_OUT)}, v{VL}, s[52:55], s97 offen {['', 'sc1', 'nt', 'sc0 sc1'][OPT['ost']]}
    s_mov_b32 exec_hi, -1
    Lsel_done:""")

def c1(a):
    XR = 84; XF_ = 168; ACC = 52; XU = 60; WF = 88
    a(f"""s_cmp_lg_u32 s20, 0
    s_cbranch_scc1 Lc1_now
    v_lshrrev_b32 v{T0}, 2, v{N}
    v_lshl_add_u32 v{T0}, v{G}, 3, v{T0}
    v_lshlrev_b32 v{T0}, 4, v{T0}
    v_and_b32 v{T1}, 1, v{N}
    v_lshl_add_u32 v{T0}, v{T1}, 3, v{T0}
    v_bfe_u32 v{T1}, v{N}, 1, 1
    v_lshl_add_u32 v{T0}, v{T1}, 13, v{T0}
    v_add_u32 v{T0}, {LWT}, v{T0}""")
    for j in range(14):
        for h in range(2):
            a(f"ds_read_b64_tr_b16 {v2(WF+4*j+2*h)}, v{T0} offset:{(32*j+4*h)*16}")
    a(f"""v_and_b32 v{XU+4}, 7, v{N}
    v_mul_u32_u24 v{XU+4}, {PX}, v{XU+4}
    v_lshl_add_u32 v{XU+4}, v{G}, 4, v{XU+4}
    v_lshlrev_b32 v{XU+5}, 4, v{N}
    v_lshl_add_u32 v{XU+5}, v{G}, 3, v{XU+5}
    s_lshl_b32 s22, s100, 7
    s_add_u32 s22, s22, {WS_ACT}
    Lc1_now:""")
    fetch_row_finish(a, XR, T2)
    a(f"""s_waitcnt lgkmcnt(0)
    s_barrier
    s_cmp_lg_u32 s20, 0
    s_cbranch_scc1 Lc1_epoch""")
    stamp(a, 10)
    for j in range(14):
        a(f"ds_read_b128 {v4(XF_+4*j)}, v{XU+4} offset:{LXS+64*j}")
    for j in range(14):
        a(f"s_waitcnt lgkmcnt({13-j})")
        A = ACC + 4*(j & 1)
        a(f"v_mfma_f32_16x16x32_bf16 {v4(A)}, {v4(WF+4*j)}, {v4(XF_+4*j)}, {'0' if j < 2 else v4(A)}")
    for p in range(2):
        a(f"v_pk_add_f32 {v2(ACC+2*p)}, {v2(ACC+2*p)}, {v2(ACC+4+2*p)}")
    for p in range(2): a(f"v_cvt_pk_bf16_f32 v{ACC+4+p}, v{ACC+2*p}, v{ACC+2*p+1}")
    for p in range(2): a(f"v_mov_b32 v{ACC+6+p}, v{ACC+4+p}")
    for p in range(2): a(f"v_permlane32_swap_b32 v{ACC+4+p}, v{ACC+6+p}")
    for p in range(2):
        a(f"v_lshlrev_b32 v{ACC+2*p}, 16, v{ACC+4+p}")
        a(f"v_and_b32 v{ACC+2*p+1}, 0xffff0000, v{ACC+4+p}")
    for r in range(4): a(f"v_mul_f32 v{XU+r}, {fl(-1.4426950408889634)}, v{ACC+r}")
    for r in range(4): a(f"v_exp_f32 v{XU+r}, v{XU+r}")
    for p in range(2):
        a(f"v_lshlrev_b32 v{XR+2*p}, 16, v{ACC+6+p}")
        a(f"v_and_b32 v{XR+2*p+1}, 0xffff0000, v{ACC+6+p}")
    for r in range(4): a(f"v_add_f32 v{XU+r}, 1.0, v{XU+r}")
    for r in range(4): a(f"v_rcp_f32 v{XU+r}, v{XU+r}")
    for r in range(4): a(f"v_mul_f32 v{ACC+r}, v{ACC+r}, v{XU+r}")
    for p in range(2): a(f"v_cvt_pk_bf16_f32 v{ACC+4+p}, v{ACC+2*p}, v{ACC+2*p+1}")
    for p in range(2):
        a(f"v_lshlrev_b32 v{ACC+2*p}, 16, v{ACC+4+p}")
        a(f"v_and_b32 v{ACC+2*p+1}, 0xffff0000, v{ACC+4+p}")
    for p in range(2): a(f"v_pk_mul_f32 {v2(ACC+2*p)}, {v2(ACC+2*p)}, {v2(XR+2*p)}")
    for p in range(2): a(f"v_cvt_pk_bf16_f32 v{XR+p}, v{ACC+2*p}, v{ACC+2*p+1}")
    for p in range(2): a(f"v_min_u32 v{XR+p}, -2, v{XR+p}")
    a(f"""s_mov_b32 exec_lo, 0x00ff00ff
    s_mov_b32 exec_hi, 0
    buffer_store_dwordx2 {v2(XR)}, v{XU+5}, s[12:15], s22 offen {SC}
    s_branch Lend
    Lc1_epoch:
    s_lshl_b32 s29, s2, 3
    s_add_u32 s29, s29, s20
    s_cmp_lg_u32 s29, 1
    s_cbranch_scc1 Lend
    s_mov_b64 exec, 1
    v_mov_b32 v{T0}, s56
    s_mov_b32 s29, {WS_EPOCH}
    buffer_store_dword v{T0}, v{VL}, s[12:15], s29 offen {SC}
    s_branch Lend""")

def c2(a):
    K = C_K
    OA = 8; OR = 10; SG = 12; VA = 13; VO = 14; VW = 15; WF = 88; AF = 116; ACC = 52; RD = 168
    a(f"""s_mul_i32 s24, s20, 7168
    s_add_u32 s24, s24, {LWT}
    v_lshrrev_b32 v{T0}, 2, v{N}
    v_lshl_add_u32 v{T0}, v{G}, 3, v{T0}
    v_lshlrev_b32 v{T0}, 5, v{T0}
    v_and_b32 v{T1}, 3, v{N}
    v_lshl_add_u32 v{T0}, v{T1}, 3, v{T0}
    v_add_u32 v{VW}, s24, v{T0}""")
    for j in range(7):
        for h in range(2):
            a(f"ds_read_b64_tr_b16 {v2(WF+4*j+2*h)}, v{VW} offset:{(32*j+4*h)*32}")
    a(f"""v_and_b32 v{T1}, 7, v{N}
    v_mul_u32_u24 v{VO}, {PX}, v{T1}
    v_lshl_add_u32 v{VO}, v{G}, 3, v{VO}
    v_add_u32 v{VO}, s51, v{VO}
    v_lshlrev_b32 v{VA}, 4, v{T1}
    v_lshl_add_u32 v{VA}, v{G}, 7, v{VA}
    s_mul_i32 s25, s20, {7*512}
    s_add_u32 s25, s25, {WS_ACT}
    v_and_b32 v{OA}, 0x7ff, v{K}
    v_sub_u32 v{OA}, 2047, v{OA}
    v_mul_u32_u24 v{OA}, 896, v{OA}
    v_lshl_add_u32 v{OA}, v{G}, 3, v{OA}
    v_ashrrev_i32 v{T2}, 31, v{K}
    v_not_b32 v{T2}, v{T2}
    v_or_b32 v{T2}, 0x80000000, v{T2}
    v_xor_b32 v{K+1}, v{K}, v{T2}
    v_and_b32 v{K+1}, 0xffff0000, v{K+1}""")
    sigmoid_mul(a, SG, K+1, "1.0", T2)
    rbf(a, SG, SG)
    a(f"""v_lshlrev_b32 v{T1}, 4, v0
    v_add_u32 v{T1}, {LRED}, v{T1}""")
    def lds():
        for j in range(7):
            a(f"buffer_load_dwordx4 {v4(AF+4*j)}, v{VA}, s[12:15], s25 offen offset:{512*j} {SC}")
    if OPT["c2re"]:
        if OPT["sl_a"]: a(f"s_sleep {OPT['sl_a']}")
        lds()
        fetch_row_finish(a, 84, T2)
        anyones(a, range(AF, AF+28), T0)
        a("s_cmp_eq_u64 vcc, 0\ns_cbranch_scc1 Lactok")
        poll(a, lds, lambda: anyones(a, range(AF, AF+28), T0))
        a("Lactok:")
    else:
        fetch_row_finish(a, 84, T2)
        poll(a, lds, lambda: anyones(a, range(AF, AF+28), T0), pre=OPT["sl_a"])
    stamp(a, 10)
    a("s_waitcnt lgkmcnt(0)")
    for j in range(7):
        A = ACC + 4*(j & 1)
        a(f"v_mfma_f32_16x16x32_bf16 {v4(A)}, {v4(WF+4*j)}, {v4(AF+4*j)}, {'0' if j < 2 else v4(A)}")
    for p in range(2):
        a(f"v_pk_add_f32 {v2(ACC+2*p)}, {v2(ACC+2*p)}, {v2(ACC+4+2*p)}")
    a(f"""ds_write_b128 v{T1}, {v4(ACC)}
    s_waitcnt lgkmcnt(0)
    s_barrier
    s_cmp_lg_u32 s20, 0
    s_cbranch_scc1 Lend
    ds_read_b64 {v2(OR)}, v{VO} offset:{LXS}""")
    for w in range(1, 8):
        a(f"ds_read_b128 {v4(RD+4*w)}, v{T1} offset:{1024*w}")
    a("s_waitcnt lgkmcnt(7)")
    for i in range(2):
        a(f"v_lshlrev_b32 v{RD+2*i}, 16, v{OR+i}")
        a(f"v_and_b32 v{RD+2*i+1}, 0xffff0000, v{OR+i}")
    for w in range(1, 8):
        a(f"s_waitcnt lgkmcnt({7-w})")
        for p in range(2):
            a(f"v_pk_add_f32 {v2(ACC+2*p)}, {v2(ACC+2*p)}, {v2(RD+4*w+2*p)}")
    for rnd in range(2):
        for p in range(2): a(f"v_cvt_pk_bf16_f32 v{ACC+4+p}, v{ACC+2*p}, v{ACC+2*p+1}")
        for p in range(2):
            a(f"v_lshlrev_b32 v{ACC+2*p}, 16, v{ACC+4+p}")
            a(f"v_and_b32 v{ACC+2*p+1}, 0xffff0000, v{ACC+4+p}")
        for p in range(2):
            if rnd == 0: a(f"v_pk_mul_f32 {v2(ACC+2*p)}, {v2(ACC+2*p)}, {v2(SG)} op_sel_hi:[1,0]")
            else: a(f"v_pk_add_f32 {v2(ACC+2*p)}, {v2(ACC+2*p)}, {v2(RD+2*p)}")
    for p in range(2): a(f"v_cvt_pk_bf16_f32 v{OR+p}, v{ACC+2*p}, v{ACC+2*p+1}")
    a(f"""s_mov_b32 exec_lo, 0x00ff00ff
    s_mov_b32 exec_hi, 0x00ff00ff
    buffer_store_dwordx2 {v2(OR)}, v{OA}, s[52:55], s51 offen {['', 'sc1', 'nt', 'sc0 sc1'][OPT['ost']]}""")

def clears(a):
    a(f"""v_mov_b32 v{JUNK+2}, -1
    v_lshlrev_b32 v{T1}, 2, v{LANE}
    s_lshl_b32 s24, s2, 7
    s_add_u32 s24, s24, {WS_ACT}
    s_mov_b32 exec_hi, 0
    buffer_store_dword v{JUNK+2}, v{T1}, s[12:15], s24 offen {SC}
    s_mov_b32 exec_lo, 1
    s_lshl_b32 s23, s96, 11
    s_add_u32 s23, s23, {WS_ROW}
    buffer_load_dword v{JUNK}, v{VL}, s[52:55], s97 offen
    buffer_load_dword v{JUNK+1}, v{VL}, s[12:15], s23 offen
    s_mov_b64 exec, -1""")

def prefetch(a, w0=1, T0=T0, T1=T1):
    a(f"""s_and_b32 s24, s2, 7
    s_lshr_b32 s25, s2, 3
    s_mul_i32 s26, s25, {14*3584}
    s_mov_b32 s18, {448*3584}
    s_mov_b32 s19, 0x00020000
    s_cmp_eq_u32 s20, {w0+2}
    s_cbranch_scc1 Lpf_d
    v_lshrrev_b32 v{T0}, 2, v{LANE}
    v_mul_u32_u24 v{T0}, 3584, v{T0}
    v_and_b32 v{T1}, 3, v{LANE}
    v_lshl_add_u32 v{T0}, v{T1}, 7, v{T0}
    s_mul_i32 s24, s24, 448
    s_cmp_eq_u32 s20, {w0}
    s_cselect_b32 s16, s42, s44
    s_cselect_b32 s17, s43, s45
    s_branch Lpf_go
    Lpf_d:
    v_mul_u32_u24 v{T0}, 896, v{LANE}
    s_lshl_b32 s24, s24, 7
    s_mov_b32 s16, s46
    s_mov_b32 s17, s47
    Lpf_go:
    s_and_b32 s17, s17, 0xffff
    s_add_u32 s26, s26, s24
    s_mov_b32 exec_hi, 0x00ffffff
    buffer_load_dword v{JUNK}, v{T0}, s[16:19], s26 offen
    s_mov_b32 exec_hi, -1""")

def kernel(a):
    if OPT["stamps"]:
        for k in range(NST): a(f"s_mov_b32 s{64+2*k}, 0")
    stamp(a, 0)
    a(f"""s_load_dwordx2 s[8:9], s[0:1], 0
    s_cmp_ge_u32 s2, 256
    s_cbranch_scc1 Lexit
    v_lshrrev_b32 v{T0}, 6, v0
    v_and_b32 v{LANE}, 63, v0
    v_readfirstlane_b32 s20, v{T0}
    v_lshlrev_b32 v{VL}, 4, v{LANE}
    s_and_b32 s21, s2, 31
    s_lshr_b32 s22, s2, 5
    s_mov_b32 s10, {XB}
    s_mov_b32 s11, 0x00020000
    s_cmp_lt_u32 s20, 4
    s_cbranch_scc1 Lloader
    s_getpc_b64 s[30:31]
    Lpc:
    v_and_b32 v{T2}, 255, v0
    v_lshlrev_b32 v{JUNK}, 7, v{T2}
    v_mov_b32 v{JUNK+1}, s31
    v_add_co_u32 v{JUNK}, vcc, s30, v{JUNK}
    v_addc_co_u32 v{JUNK+1}, vcc, 0, v{JUNK+1}, vcc
    v_cmp_gt_u32 vcc, (Lexit-Lpc)/128+1, v{T2}
    s_and_saveexec_b64 s[30:31], vcc
    s_cbranch_execz Lcompute
    global_load_dword v{JUNK+2}, v[{JUNK}:{JUNK+1}], off
    s_branch Lcompute
    Lloader:
    v_cmp_lt_u32 vcc, 29, v{LANE}
    s_lshl_b32 s23, s20, 9
    s_add_u32 s23, s23, s21
    s_mul_i32 s23, s23, 896
    s_mul_i32 s24, s20, {16*PH}
    v_add_u32 v{T1}, {32*896 - 480}, v{VL}
    s_mov_b32 s25, {'s22' if OPT['rot'] else '0'}
    v_cndmask_b32 v{T1}, v{VL}, v{T1}, vcc
    s_mov_b32 exec_lo, 0xcfffffff
    s_mov_b32 exec_hi, 0x03ffffff
    s_mov_b32 s28, 0
    s_waitcnt lgkmcnt(0)""")
    stamp(a, 3, True)
    if OPT["dmau"]:
        a("Ldma:")
        for i in range(8):
            a(f"""s_mul_i32 s26, s25, {2*PH}
            s_mul_i32 s27, s25, {64*896}
            s_add_u32 m0, s26, s24
            s_add_u32 s27, s27, s23
            s_add_u32 s25, s25, 1
            buffer_load_dwordx4 v{T1}, s[8:11], s27 offen lds
            s_and_b32 s25, s25, 7""")
        a(f"""s_add_u32 s24, s24, {LXH}
        s_add_u32 s23, s23, 448
        s_add_u32 s28, s28, 1
        s_cmp_lt_u32 s28, 2""")
        if OPT["b1"]: a("s_cbranch_scc0 Ldmad\ns_barrier\ns_branch Ldma\nLdmad:")
        else: a("s_cbranch_scc1 Ldma")
    else:
        a(f"""Ldma:
        s_mul_i32 s26, s25, {2*PH}
        s_mul_i32 s27, s25, {64*896}
        s_add_u32 s26, s26, s24
        s_add_u32 s27, s27, s23
        s_mov_b32 m0, s26
        s_add_u32 s25, s25, 1
        buffer_load_dwordx4 v{T1}, s[8:11], s27 offen lds
        s_and_b32 s25, s25, 7
        s_add_u32 s28, s28, 1
        s_cmp_lg_u32 s28, 8
        s_cbranch_scc1 Ldma1
        s_add_u32 s24, s24, {LXH}
        s_add_u32 s23, s23, 448
        Ldma1:
        s_cmp_lt_u32 s28, 16
        s_cbranch_scc1 Ldma""")
    def ltail():
        a(f"""Lltail:
        s_mov_b64 exec, -1
        s_load_dwordx2 s[6:7], s[0:1], 96
        s_load_dwordx8 s[40:47], s[0:1], 48
        s_load_dwordx2 s[48:49], s[0:1], 80
        v_and_b32 v{N}, 15, v0
        v_bfe_u32 v{G}, v0, 4, 2""")
        stamp(a, 6, True)
        early = OPT["e2a"]
        if early:
            a("s_waitcnt vmcnt(8)")
            stamp(a, 1)
            a("s_barrier")
        a("s_waitcnt lgkmcnt(0)")
        b_setup(a)
        b_loads(a)
        a("s_cmp_lg_u32 s20, 0\ns_cbranch_scc1 Lw123a")
        clears(a)
        if not early:
            a("s_waitcnt vmcnt(14)")
            stamp(a, 1)
            a("s_barrier")
        a("s_waitcnt vmcnt(6)")
        stamp(a, 2)
        a(f"""s_barrier
        v_mov_b32 v{T0}, {LTAG}
        s_waitcnt vmcnt(5)
        ds_write_b32 v{T0}, v{V_EP}
        s_branch Lprol
        Lw123a:""")
        if OPT["pf"] == 3: prefetch(a)
        if not early:
            a(f"s_waitcnt vmcnt(12)")
            stamp(a, 1)
            a("s_barrier")
        a(f"s_waitcnt vmcnt({4 if OPT['pf'] == 3 else 3})")
        stamp(a, 2)
        a(f"s_barrier")
        if OPT["pf"] == 1: prefetch(a)
        a(f"s_waitcnt vmcnt({2 if OPT['pf'] == 4 else 3})")
        a("Lprol:")
        if OPT["wdh"]: wd_dma(a, 0, 7, "Lnwd2")
        if OPT["w64l"]:
            a("s_mov_b32 s3, s20")
            w64(a, AC1)
            for i in range(8): a(f"v_xor_b32 v{AC1+16+i}, 0x80008000, v{AC1+8+i}")
            a(f"s_lshl_b32 s26, s3, 12\ns_add_u32 s26, s26, {LWT}\nv_add_u32 v{T1}, s26, v{VL}")
            for i in range(6): a(f"ds_write_b128 v{T1}, {v4(AC1+4*i)} offset:{[0, 1024, 2048, 3072, 16384, 17408][i]}")
        if not OPT["prolate"]: pro(a)
        stamp(a, 3)
        def hint_store():
            a(f"""s_cmp_lg_u32 s20, 0
            s_cbranch_scc1 Lnh
            s_lshl_b32 s34, s2, 6
            s_add_u32 s34, s34, {WS_HINT}
            v_add_u32 v{T0}, 1, v{V_EP}
            s_mov_b64 exec, 1
            buffer_store_dword v{T0}, v{VL}, s[12:15], s34 offen {SC}
            s_mov_b64 exec, -1
            Lnh:""")
        if OPT["hint"] == 2: hint_store()
        a("s_waitcnt lgkmcnt(0)\ns_barrier")
        if OPT["hint"] == 1: hint_store()
        a("s_branch Lpro1" if OPT["prolate"] else "s_branch Lpro2")
    if OPT["layout"]: a("s_branch Lltail")
    else: ltail()
    a(f"""Lcompute:
    s_mov_b64 exec, -1
    s_load_dwordx2 s[6:7], s[0:1], 96
    s_load_dwordx8 s[40:47], s[0:1], 48
    s_load_dwordx2 s[48:49], s[0:1], 80
    v_and_b32 v{N}, 15, v0
    v_bfe_u32 v{G}, v0, 4, 2
    s_and_b32 s3, s20, 3""")
    if OPT["prio"]: a("s_setprio 3")
    stamp(a, 9, True)
    a_pre(a)
    stamp(a, 11, True)
    a("s_waitcnt lgkmcnt(0)")
    b_setup(a)
    stamp(a, 1)
    a("s_barrier")
    stamp(a, 2)
    a_main(a)
    stamp(a, 4)
    if OPT["prio"]: a("s_setprio 0")
    a(f"buffer_load_dwordx4 {v4(B_WR)}, v{VL}, s[16:19], 0 offen")
    a(f"buffer_load_dwordx4 {v4(B_XR)}, v{VL}, s[8:11], s97 offen")
    a("Lpro1:")
    pro(a)
    a("Lpro2:")
    a(f"""v_readfirstlane_b32 s56, v{V_EP}
    s_add_u32 s56, s56, 1
    s_mul_i32 s98, s56, {HASH}
    s_lshl_b32 s99, s98, 6
    s_and_b32 s59, s56, 0xffff""")
    if OPT["hint"]:
        a(f"""v_and_b32 v{T1}, 31, v{LANE}
        v_lshlrev_b32 v{T1}, 6, v{T1}
        s_lshl_b32 s34, s20, 11
        s_add_u32 s34, s34, {WS_HINT}
        s_mov_b32 s57, 4000""")
        if OPT["sl_h0"]: a(f"s_sleep {OPT['sl_h0']}")
        a(f"""Lhint:
        buffer_load_dword v{T0}, v{T1}, s[12:15], s34 offen {SC}
        s_waitcnt vmcnt(0)
        v_cmp_ne_u32 vcc, s56, v{T0}
        s_cmp_eq_u64 vcc, 0
        s_cbranch_scc1 Lhintd""")
        if OPT["sl_h"]: a(f"s_sleep {OPT['sl_h']}")
        a(f"""s_sub_u32 s57, s57, 1
        s_cbranch_scc0 Lhint
        Lhintd:""")
    else:
        a("s_barrier")
    stamp(a, 5)
    b_main(a)
    if OPT["wdh"]: a("s_cmp_lt_u32 s20, 4\ns_cbranch_scc1 Lnwd1")
    wd_dma(a, OPT['wdsplit'], 7, 'Lnwd1')
    c_select(a)
    a("s_cmp_ge_u32 s2, 224\ns_cbranch_scc1 Lc2")
    c1(a)
    a("Lc2:\ns_and_b32 s50, s2, 7\ns_cmp_eq_u32 s50, 7\ns_cbranch_scc1 Lend\ns_lshl_b32 s50, s50, 7\ns_bfe_u32 s51, s2, 0x20003\ns_lshl_b32 s51, s51, 5\ns_add_u32 s51, s51, s50")
    c2(a)
    a("Lend:")
    dump_stamps(a)
    if OPT["layout"]:
        a("s_endpgm")
        ltail()
        for f in TAIL: f()
    a("Lexit:\ns_endpgm\nLfullsel:")
    select8(a, C_K, C_TMP, C_L, C_SW, C_SR)
    a("s_branch Lseldone")

NAME = "sequential_preLN__spectral_fnet__moe_arch_mod__prompt_kernel"
def build():
    a = Asm()
    kernel(a)
    body = a.finish()
    if OPT["align"]: body = align_pass(body)
    return gen.HDR + f"""; @launch grid=(256,1,1) block=(512,1,1) lds={LDS_TOTAL}
.amdgcn_target "amdgcn-amd-amdhsa--gfx950"
.text
.globl {NAME}
.p2align 8
.type {NAME},@function
{NAME}:
""" + body + f""".section .rodata,"a"
.p2align 6
.amdhsa_kernel {NAME}
  .amdhsa_next_free_vgpr {NVGPR}
  .amdhsa_next_free_sgpr 102
  .amdhsa_accum_offset {NVGPR}
  .amdhsa_group_segment_fixed_size 0
  .amdhsa_kernarg_size 104
  .amdhsa_user_sgpr_count 2
  .amdhsa_user_sgpr_kernarg_segment_ptr 1
  .amdhsa_system_sgpr_workgroup_id_x 1
.end_amdhsa_kernel
"""

if __name__ == "__main__":
    for x in list(sys.argv[1:]):
        if x.startswith("--"):
            k, _, v = x[2:].partition("=")
            assert k in OPT, k
            OPT[k] = int(v) if v else 1
            sys.argv.remove(x)
    open(sys.argv[1], "w").write(build())
```

```python
import sys
from asmlib import Asm, fl, align_pass
import gen
from gen import srd, v4, v2, rbf, sd_chain, reduce3, unpack8, lim_regs, select8, sigmoid_mul

WS_KEYS = 0x200000
WS_HINT = 0x204000
WS_EPOCH = 0x208000
WS_ACT = 0x210000
WS_STAMP = 0x3c0000
WS_ROW = 0x400000
WS_SIZE = 0x800000
XB = 1835008
PH = 480; PX = 928; PF = 136; PY = 512
PA = 1056; PB = 416; LXB = 32 * PA
LW = LXB + 64 * PB; LCS = LW + 28 * 1024; LTAG = LCS + 256; LF = LCS + 272; LWT = LF + 64 * PF; LDS_TOTAL = LWT + 57344
LY = 0
LSEL = 16384; LSE2 = 16640; LKEY = 17152; LXS = 17408; LRED = 24832
SPIN = 4000000
SC = "sc1"
HASH = "0x9e3779b1"
OPT = dict(stamps=0, cyc=0, align=0, sl_u0=6, sl_k=15, sl_a=4, rowpf=2, barj=6, dbgto=0, ost=0, c2re=1, rot=1, pf=3, wdsplit=0, w64l=0, layout=1, e2a=1, prolate=1, amp=-1, ampw=0, ampb=224, prio=1, wdh=0, cheb=1, ln1emu=1, dmau=1, b1=0, part=0, sl_r=4, hint=0, sl_h=4, sl_h0=0, trim=1)
NST = 14

def stamp(a, k, early=False):
    if OPT["stamps"] == 5:
        if early != 5 and k not in (0, 3, 4, NST - 1): return
    elif OPT["stamps"] == 4:
        if early == 5 or (not early and k not in (0, 1, 2, NST - 1)): return
    elif early: return
    if OPT["stamps"] == 2 and k not in (0, NST - 1): return
    if OPT["stamps"]: a(f"{'s_memtime' if OPT['cyc'] else 's_memrealtime'} s[{64+2*k}:{65+2*k}]")
def dump_stamps(a):
    if OPT["amp"] >= 0:
        k = OPT["amp"]
        a(f"s_memrealtime s[{64+2*(NST-2)}:{65+2*(NST-2)}]")
        a(f"""s_cmp_lg_u32 s2, {OPT['ampb']}
        s_cbranch_scc1 Lampd
        s_cmp_lg_u32 s20, {OPT['ampw']}
        s_cbranch_scc1 Lampd
        s_waitcnt lgkmcnt(0)
        s_sub_u32 s60, s{64+2*k}, s64
        s_mul_i32 s60, s60, 9
        s_add_u32 s60, s60, s{64+2*(NST-2)}
        Lamp:
        s_memrealtime s[62:63]
        s_waitcnt lgkmcnt(0)
        s_sub_u32 s61, s62, s60
        s_cmp_lt_i32 s61, 0
        s_cbranch_scc1 Lamp
        Lampd:""")
        return
    if not OPT["stamps"]: return
    stamp(a, NST - 2)
    a("s_waitcnt vmcnt(0)")
    stamp(a, NST - 1)
    a("s_mov_b64 exec, 1\ns_waitcnt lgkmcnt(0)")
    a(f"s_lshl_b32 s60, s2, 3\ns_add_u32 s60, s60, s20\ns_lshl_b32 s60, s60, 6\ns_add_u32 s60, s60, {WS_STAMP}\nv_mov_b32 v1, 0")
    for k in range(NST):
        a(f"v_mov_b32 v2, s{64+2*k}\nbuffer_store_dword v2, v1, s[12:15], s60 offen offset:{4*k}")

_lbl = [0]
TAIL = []
def timeout_note(a, ident):
    if not OPT["dbgto"]: return
    a(f"""s_lshl_b32 s100, s2, 8
    s_add_u32 s100, s100, s20
    s_add_u32 s100, s100, {ident << 24}
    v_mov_b32 v{JUNK+3}, s100
    s_mov_b32 s100, {0x3f0000 + 4*ident}
    s_mov_b64 exec, 1
    buffer_store_dword v{JUNK+3}, v{VL}, s[12:15], s100 offen
    v_mov_b32 v{JUNK+3}, s36
    buffer_store_dword v{JUNK+3}, v{VL}, s[12:15], s100 offen offset:64
    v_mov_b32 v{JUNK+3}, s98
    buffer_store_dword v{JUNK+3}, v{VL}, s[12:15], s100 offen offset:128
    v_mov_b32 v{JUNK+3}, s34
    buffer_store_dword v{JUNK+3}, v{VL}, s[12:15], s100 offen offset:192
    s_mov_b64 exec, -1""")
def poll(a, loads, check, pre=0):
    _lbl[0] += 1
    L = f"Lpoll{_lbl[0]}"
    if pre: a(f"s_sleep {pre}")
    a(f"s_mov_b32 s57, {SPIN}\n{L}:")
    loads()
    a("s_waitcnt vmcnt(0)")
    check()
    a(f"""s_cmp_eq_u64 vcc, 0
    s_cbranch_scc1 {L}d
    s_sub_u32 s57, s57, 1
    s_cbranch_scc0 {L}""")
    timeout_note(a, _lbl[0])
    a(f"{L}d:")

class LdsQ:
    def __init__(s, a): s.a = a; s.q = []
    def read(s, text, b, n=4):
        s.a(text); s.q.append(set(range(b, b + n)))
    def need(s, b, n=4):
        rs = set(range(b, b + n)); last = -1
        for i, d in enumerate(s.q):
            if d & rs: last = i
        if last >= 0:
            s.a(f"s_waitcnt lgkmcnt({len(s.q) - 1 - last})")
            s.q = s.q[last+1:]

LANE, N, G, T0, T1, T2, VL = 1, 2, 3, 4, 5, 6, 7
B_XR = 8; B_WR = 12; V_EP = 16; VFW = 17; VFR = 18; VXR = 19; VCS = 20; VUS = 21; ST = 22
WC = 28; WSN = 36; WNS = 44
AC1 = 52; AC2 = 68; GR = 84; XF = 88; WD = 120
JUNK = 232; SG2 = 236; V_GU = 238; V_DC = 239; B_A2 = 240; B_AD4 = 248; VXB = 250; NVGPR = 252
B_AF = 28; B_AD = 36; B_VY = 40; B_VU = 41; C_L = {1: 42, 2: 43, 4: 44}; C_SW = 45; C_SR = 46; C_KA = 47
C_FW = 48; C_FR = 49; C_FY = 50; C_PF = 51
B_R = 116; B_ACC = 52; B_XU = 68; B_WU = 76; B_S1, B_S2, B_S3 = 88, 90, 92; B_TH = 96; P_TH = 104; P_EPS = 112; P_BASE = 113
C_K = 148; C_TMP = 152; C_KEY = 156; C_X = 157; C_Y = 158; C_OUT = 160; C_LN = 164; C_IX = 224; C_STK = 159

def trig_block(a, n, k0, eps, base, th, want_sin):
    for i in range(n):
        k = k0 + i
        if k == 0: a(f"v_mov_b32 v{th+i}, v{base}")
        else: a(f"v_fmamk_f32 v{th+i}, v{eps}, {fl(float(k))}, v{base}")
    for i in range(n):
        if want_sin: a(f"v_sin_f32 v{th+n+i}, v{th+i}")
        a(f"v_cos_f32 v{th+i}, v{th+i}")

def w64(a, D):
    EPS, BASE, TH, S = ST + 4, ST + 5, XF, ST
    a(f"""v_lshrrev_b32 v{S}, 1, v{N}
    s_lshl_b32 s25, s3, 3
    v_add_u32 v{S}, s25, v{S}
    v_sub_u32 v{S+1}, 64, v{S}
    v_cmp_eq_u32 vcc, 0, v{S}
    v_and_b32 v{S+2}, 1, v{N}
    v_cndmask_b32 v{S+1}, v{S+1}, 32, vcc
    v_cmp_eq_u32 vcc, 0, v{S+2}
    v_lshlrev_b32 v{S+2}, 3, v{G}
    v_cndmask_b32 v{S+1}, v{S+1}, v{S}, vcc
    v_cvt_f32_u32 v{S+2}, v{S+2}
    v_and_b32 v{S}, 1, v{S+1}
    v_cvt_f32_u32 v{S+1}, v{S+1}
    v_mul_u32_u24 v{S}, 0x8000, v{S}
    v_mul_f32 v{EPS}, {fl(1.0/64)}, v{S+1}
    v_lshl_or_b32 v{S}, v{S}, 16, v{S}
    v_mul_f32 v{BASE}, v{S+2}, v{EPS}""")
    if OPT["cheb"]:
        C2 = S + 3; CV = XF; SV = XF + 8
        a(f"""v_cos_f32 v{C2}, v{EPS}
        v_add_f32 v{CV+1}, v{EPS}, v{BASE}
        v_sin_f32 v{SV}, v{BASE}
        v_cos_f32 v{CV}, v{BASE}
        v_sin_f32 v{SV+1}, v{CV+1}
        v_cos_f32 v{CV+1}, v{CV+1}
        v_add_f32 v{C2}, v{C2}, v{C2}""")
        for i in range(2, 8):
            for Vv in (CV, SV): a(f"v_fma_f32 v{Vv+i}, v{C2}, v{Vv+i-1}, -v{Vv+i-2}")
        for i in range(4):
            a(f"v_cvt_pk_f16_f32 v{D+i}, v{CV+2*i}, v{CV+2*i+1}")
            a(f"v_cvt_pk_f16_f32 v{D+8+i}, v{SV+2*i}, v{SV+2*i+1}")
        for i in range(4):
            a(f"v_xor_b32 v{D+4+i}, v{S}, v{D+i}")
            a(f"v_xor_b32 v{D+12+i}, v{S}, v{D+8+i}")
        return
    for ks in range(2):
        for h in range(2):
            trig_block(a, 4, 32*ks + 4*h, EPS, BASE, TH, True)
            for i in range(2):
                a(f"v_cvt_pk_f16_f32 v{D+4*ks+2*h+i}, v{TH+2*i}, v{TH+2*i+1}")
                a(f"v_cvt_pk_f16_f32 v{D+8+4*ks+2*h+i}, v{TH+4+2*i}, v{TH+4+2*i+1}")

def a_pre(a):
    a("; === phase A set-up: DFT-448 table tile (three-term recurrence), its column sums, DFT-64 fragments")
    EPS, BASE, TH, ONE, TO, CS = ST + 4, ST + 5, XF, XF + 8, XF + 12, AC1
    a(f"""s_and_b32 s25, s3, 1
    s_lshl_b32 s25, s25, 2
    v_and_b32 v{T0}, 3, v{N}
    v_add_u32 v{T0}, s25, v{T0}
    v_lshrrev_b32 v{T1}, 2, v{N}
    s_mul_i32 s26, s22, 28
    s_add_u32 s26, s26, 1
    v_mad_u32_u24 v{T1}, v{T1}, 7, v{T0}
    v_add_u32 v{T1}, s26, v{T1}
    v_cmp_ne_u32 vcc, 7, v{T0}
    s_lshr_b32 s25, s3, 1
    s_mul_i32 s25, s25, {fl(0.25)}
    v_cndmask_b32 v{T1}, 0, v{T1}, vcc
    v_cvt_f32_u32 v{T1}, v{T1}
    v_mul_f32 v{EPS}, {fl(1.0/448)}, v{T1}
    v_lshlrev_b32 v{T0}, 3, v{G}
    v_cvt_f32_u32 v{T2}, v{T0}
    v_fma_f32 v{BASE}, v{T2}, v{EPS}, s25
    s_mul_i32 s25, s3, {7*1024}
    s_add_u32 s25, s25, {LW}
    v_add_u32 v{T1}, s25, v{VL}""")
    for i in range(4): a(f"v_mov_b32 v{ONE+i}, 0x3f803f80")
    if OPT["cheb"]:
        C2 = ST + 3; V = WD
        a(f"v_cos_f32 v{C2}, v{EPS}")
        for j in range(7):
            for i in range(2):
                k = 32*j + i
                if k == 0: a(f"v_mov_b32 v{V}, v{BASE}")
                else: a(f"v_fmamk_f32 v{V+8*j+i}, v{EPS}, {fl(float(k))}, v{BASE}")
        a(f"v_add_f32 v{C2}, v{C2}, v{C2}")
        for j in range(7):
            for i in range(2): a(f"v_cos_f32 v{V+8*j+i}, v{V+8*j+i}")
        for i in range(2, 8):
            for j in range(7):
                a(f"v_fma_f32 v{V+8*j+i}, v{C2}, v{V+8*j+i-1}, -v{V+8*j+i-2}")
        for j in range(7):
            o = V + 56 + 4*j
            for i in range(4): a(f"v_cvt_pk_bf16_f32 v{o+i}, v{V+8*j+2*i}, v{V+8*j+2*i+1}")
            a(f"ds_write_b128 v{T1}, {v4(o)} offset:{j*1024}")
            a(f"v_mfma_f32_16x16x32_bf16 {v4(CS)}, {v4(o)}, {v4(ONE)}, {'0' if j == 0 else v4(CS)}")
    else:
      for j in range(7):
        trig_block(a, 8, 32*j, EPS, BASE, TH, False)
        o = TO + 4*(j & 1)
        for i in range(4): a(f"v_cvt_pk_bf16_f32 v{o+i}, v{TH+2*i}, v{TH+2*i+1}")
        a(f"ds_write_b128 v{T1}, {v4(o)} offset:{j*1024}")
        a(f"v_mfma_f32_16x16x32_bf16 {v4(CS)}, {v4(o)}, {v4(ONE)}, {'0' if j == 0 else v4(CS)}")
    a(f"""v_lshrrev_b32 v{ST}, 1, v{N}
    s_lshl_b32 s25, s3, 3
    v_add_u32 v{ST}, s25, v{ST}
    v_and_b32 v{ST+2}, 1, v{N}
    v_lshlrev_b32 v{VUS}, 16, v{ST}
    v_lshl_add_u32 v{VUS}, v{ST+2}, 6, v{VUS}
    v_lshl_add_u32 v{VUS}, v{G}, 4, v{VUS}
    s_lshl_b32 s25, s3, 6
    v_lshlrev_b32 v{T0}, 4, v{G}
    v_add_u32 v{VCS}, {LCS}, v{T0}
    v_add_u32 v{T1}, s25, v{VCS}
    v_lshlrev_b32 v{SG2+1}, 31, v{G}
    v_or_b32 v{SG2+1}, 1.0, v{SG2+1}
    v_xor_b32 v{SG2}, 0x80000000, v{SG2+1}
    v_pk_fma_f32 {v2(CS)}, {v2(CS)}, {v2(SG2)}, {v2(CS)}
    v_pk_fma_f32 {v2(CS+2)}, {v2(CS+2)}, {v2(SG2)}, {v2(CS+2)}
    ds_write_b128 v{T1}, {v4(CS)}""")
    if OPT["b1"]:
        a(f"v_add_u32 v{T2}, {LW}, v{VL}\ns_waitcnt lgkmcnt(0)\ns_barrier")
        for f in range(28): a(f"ds_read_b128 {v4(WD+4*f)}, v{T2} offset:{f*1024}")
    if OPT["pf"] == 4:
        a("s_waitcnt lgkmcnt(0)\ns_cmp_eq_u32 s20, 7\ns_cbranch_scc1 Lnpf4")
        prefetch(a, 4, XF, XF + 1)
        a("Lnpf4:")
    if not OPT["w64l"]:
        w64(a, WC)
        for i in range(8): a(f"v_xor_b32 v{WNS+i}, 0x80008000, v{WSN+i}")
    stamp(a, 10, True)
    a(f"v_add_u32 v{T2}, {LW}, v{VL}")
    a(f"""s_lshl_b32 s25, s3, 4
    s_mov_b32 s26, {LXB}
    v_add_u32 v{ST}, s25, v{N}
    v_mul_u32_u24 v{VXB}, {PB}, v{ST}
    v_add3_u32 v{VXB}, v{T0}, v{VXB}, s26
    v_and_b32 v{VXR}, 7, v{N}
    v_lshl_add_u32 v{VXR}, s3, 3, v{VXR}
    v_mul_u32_u24 v{VXR}, {PA}, v{VXR}
    v_lshrrev_b32 v{ST+1}, 3, v{N}
    v_lshl_add_u32 v{VXR}, v{ST+1}, 9, v{VXR}
    v_add_u32 v{VXR}, v{T0}, v{VXR}
    v_mul_u32_u24 v{VFW}, {PF}, v{ST}
    v_lshl_add_u32 v{VFW}, v{G}, 3, v{VFW}
    v_add_u32 v{VFW}, {LF}, v{VFW}
    v_lshrrev_b32 v{ST}, 2, v{N}
    v_lshl_add_u32 v{ST}, v{G}, 3, v{ST}
    v_mul_u32_u24 v{VFR}, {PF}, v{ST}
    v_and_b32 v{ST}, 3, v{N}
    v_lshl_add_u32 v{VFR}, v{ST}, 3, v{VFR}
    v_add_u32 v{VFR}, {LF}, v{VFR}
    s_lshl_b32 s23, s21, 11
    s_lshl_b32 s24, s22, 8
    s_add_u32 s23, s23, s24""")
    for r in range(4):
        a(f"s_mov_b32 s{30+2*r}, {hex(((1<<r)|(1<<(20+r))) & 0xffffffff)}")
        a(f"s_mov_b32 s{31+2*r}, {hex(((1<<(8+r))|(1<<(28+r))) & 0xffffffff)}")
    a("s_mov_b64 s[24:25], 0xffff\ns_mov_b32 s38, 0\ns_cmp_eq_u32 s22, 7\ns_cselect_b32 s39, 0xffff0000, 0")

def a_main(a):
    a("; === phase A: DFT-448 GEMM (two K halves) + row statistics, LDS transpose, DFT-64, U stores")
    q = LdsQ(a)
    xr = lambda k: XF + 4*(k & 7)
    def rdx(k):
        if k < 8: q.read(f"ds_read_b128 {v4(xr(k))}, v{VXR} offset:{64*k}", xr(k))
        else: q.read(f"ds_read_b128 {v4(xr(k))}, v{VXB} offset:{64*(k-8)}", xr(k))
    def rdw(j):
        for T in range(4): q.read(f"ds_read_b128 {v4(WD+4*(7*T+j))}, v{T2} offset:{(7*T+j)*1024}", WD+4*(7*T+j))
    for j in range(3): rdx(j); rdw(j)
    BJ = OPT["barj"]
    Q, S, M, RS = ST, ST+1, ST+2, ST+4
    def mf(T, k):
        A = AC1 if k < 7 else AC2; j = k % 7
        a(f"v_mfma_f32_16x16x32_bf16 {v4(A+4*T)}, {v4(WD+4*(7*T+j))}, {v4(xr(k))}, {'0' if j == 0 else v4(A+4*T)}")
    def gram(k): a(f"v_mfma_f32_16x16x32_bf16 {v4(GR)}, {v4(xr(k))}, {v4(xr(k))}, {'0' if k == 0 else v4(GR)}")
    for k in range(8):
        q.need(xr(k))
        gram(k)
        for T in range(4):
            q.need(WD+4*(7*T+k%7))
            mf(T, k)
        if k + 3 < 7: rdx(k + 3); rdw(k + 3)
        elif k + 3 == 7: rdx(7)
        if k == BJ:
            stamp(a, 11)
            a("s_barrier")
            for kk in range(8, min(14, 8 + BJ + 1)): rdx(kk)
        elif k > BJ and 8 + k < 14: rdx(8 + k)
    CS = WD + 28
    for k in range(8, 14):
        q.need(xr(k))
        gram(k)
        mf(1, k)
    for T in range(4): q.read(f"ds_read_b128 {v4(CS+4*T)}, v{VCS} offset:{64*T}", CS+4*T)
    stats = [None, None, f"v_mov_b32 v{Q}, 0", f"v_mov_b32 v{V_EP}, {LTAG}"]
    stats += [f"v_cndmask_b32 v{Q}, v{Q}, v{GR+r}, s[{30+2*r}:{31+2*r}]" for r in range(4)]
    stats += [f"v_add_f32 v{S}, v{AC1+7}, v{AC2+7}", f"v_cndmask_b32 v{S}, 0, v{S}, s[24:25]", None, None,
              f"v_permlane32_swap_b32 v{Q}, v{S}", f"v_add_f32 v{Q}, v{Q}, v{S}", f"v_mov_b32 v{S}, v{Q}", None, None,
              f"v_permlane16_swap_b32 v{Q}, v{S}", f"v_add_f32 v{Q}, v{Q}, v{S}", f"v_mov_b32 v{S}, v{Q}", None, None,
              f"v_permlane32_swap_b32 v{Q}, v{S}", f"v_mul_f32 v{M}, {fl(-1.0/448)}, v{S}", f"v_mul_f32 v{Q}, {fl(1.0/448)}, v{Q}",
              f"v_fma_f32 v{Q}, -v{M}, v{M}, v{Q}", f"v_max_f32 v{Q}, 0, v{Q}"]
    rb = [f"v_cvt_pk_bf16_f32 v{Q}, v{Q}, v{Q}", f"v_and_b32 v{Q}, 0xffff0000, v{Q}"]
    if OPT["ln1emu"]:
        stats += rb + [f"v_add_f32 v{Q}, {fl(1e-5)}, v{Q}"] + rb + [f"v_sqrt_f32 v{Q}, v{Q}", None] + rb + [f"v_rcp_f32 v{RS}, v{Q}"]
    else:
        stats += [f"v_add_f32 v{Q}, {fl(1e-5)}, v{Q}", f"v_rsq_f32 v{RS}, v{Q}"]
    k = stats.index(f"v_max_f32 v{Q}, 0, v{Q}") + 1
    stats[k:k] = [f"v_cvt_pk_bf16_f32 v{V_DC}, v{M}, v{M}", f"v_and_b32 v{V_DC}, 0xffff0000, v{V_DC}",
                  f"v_sub_f32 v{V_DC}, v{V_DC}, v{M}", f"v_mul_f32 v{V_DC}, {fl(448.0)}, v{V_DC}"]
    stats += ["WAITCS", f"v_mul_f32 v{M}, v{M}, v{RS}", f"v_mul_f32 v{V_DC}, v{V_DC}, v{RS}"]
    stats += [f"v_mul_f32 v{CS+i}, v{CS+i}, v{M}" for i in range(16)]
    for k in range(8, 14):
        for T in (0, 2, 3):
            mf(T, k)
            for _ in range(2):
                if stats:
                    t = stats.pop(0)
                    if t == "WAITCS": q.need(CS, 16)
                    elif t: a(t)
    for p in range(2): a(f"v_pk_fma_f32 {v2(AC1+4+2*p)}, {v2(AC2+4+2*p)}, {v2(SG2)}, {v2(AC1+4+2*p)}")
    for t in stats:
        if t == "WAITCS": q.need(CS, 16)
        elif t: a(t)
    stamp(a, 3)
    for T in (0, 2, 3):
        for p in range(2):
            x = AC1 + 4*T + 2*p
            a(f"v_pk_fma_f32 {v2(x)}, {v2(AC2+4*T+2*p)}, {v2(SG2)}, {v2(x)}")
    for T in (1, 0, 2, 3):
        for p in range(2):
            x = AC1 + 4*T + 2*p
            a(f"v_pk_fma_f32 {v2(x)}, {v2(x)}, {v2(RS)}, {v2(CS+4*T+2*p)} op_sel_hi:[1,0,1]")
    a(f"v_cndmask_b32 v{AC1+14}, v{AC1+14}, v{V_DC}, s[38:39]")
    for T in (1, 0, 2, 3):
        for p in range(2):
            x = AC1 + 4*T + 2*p
            a(f"v_cvt_pk_f16_f32 v{AC2+2*T+p}, v{x}, v{x+1}")
        a(f"ds_write_b64 v{VFW}, {v2(AC2+2*T)} offset:{32*T}")
    if OPT["w64l"]: a(f"s_lshl_b32 s26, s3, 12\ns_add_u32 s26, s26, {LWT}\nv_add_u32 v{T1}, s26, v{VL}")
    stamp(a, 5, 5)
    a(f"s_waitcnt lgkmcnt(0)")
    stamp(a, 6, 5)
    a(f"s_barrier")
    stamp(a, 7, 5)
    if OPT["w64l"]:
        for i in (0, 2, 4, 1, 3, 5): a(f"ds_read_b128 {v4(WC+4*i)}, v{T1} offset:{(i % 4 if i < 4 else i - 2 + 2) * 0 + i * 0 + [0, 1024, 2048, 3072, 16384, 17408][i]}")
    FA = WD + 48
    fa = lambda T, ks: FA + (2*T + ks) * 4
    q = LdsQ(a)
    for T in range(2):
        for ks in range(2):
            for TT in (T, T + 2):
                for h in range(2):
                    q.read(f"ds_read_b64_tr_b16 {v2(fa(TT, ks)+2*h)}, v{VFR} offset:{(32*ks+4*h)*PF+32*TT}", fa(TT, ks)+2*h, 2)
    q.read(f"ds_read_b32 v{V_EP}, v{V_EP}", V_EP, 1)
    UR = AC1; UI = AC1 + 8; o = XF
    tagcalc = [f"v_add_u32 v{M}, 1, v{V_EP}", f"s_mov_b32 s98, {HASH}", f"v_mul_lo_u32 v{M}, v{M}, s98"]
    for T in range(2):
        for ks in range(2):
            fr = v4(fa(T, ks)); fi = v4(fa(T + 2, ks))
            q.need(fa(T, ks))
            if T == 0 and ks == 0: stamp(a, 8, 5)
            a(f"v_mfma_f32_16x16x32_f16 {v4(UR+4*T)}, {fr}, {v4(WC+4*ks)}, {'0' if ks == 0 else v4(UR+4*T)}")
            a(f"v_mfma_f32_16x16x32_f16 {v4(UI+4*T)}, {fr}, {v4(WNS+4*ks)}, {'0' if ks == 0 else v4(UI+4*T)}")
            q.need(fa(T + 2, ks))
            a(f"v_mfma_f32_16x16x32_f16 {v4(UR+4*T)}, {fi}, {v4(WSN+4*ks)}, {v4(UR+4*T)}")
            a(f"v_mfma_f32_16x16x32_f16 {v4(UI+4*T)}, {fi}, {v4(WC+4*ks)}, {v4(UI+4*T)}")
            if T == 1 and ks == 1:
                q.need(V_EP, 1)
                for t in tagcalc: a(t)
    stamp(a, 9, 5)
    for r in range(4): a(f"v_cvt_pk_f16_f32 v{o+r}, v{UR+r}, v{UI+r}")
    a(f"buffer_store_dwordx4 {v4(o)}, v{VUS}, s[12:15], s23 offen {SC}")
    stamp(a, 10, 5)
    a(f"v_add3_u32 v{Q}, v{o}, v{o+1}, v{o+2}")
    a(f"v_sub_u32 v{M}, v{M}, v{o+3}")
    a(f"v_sub_u32 v{M}, v{M}, v{Q}")
    for r in range(3): a(f"v_cvt_pk_f16_f32 v{o+4+r}, v{UR+4+r}, v{UI+4+r}")
    a(f"""v_add3_u32 v{Q}, v{o+4}, v{o+5}, v{o+6}
    v_sub_u32 v{o+7}, v{M}, v{Q}
    buffer_store_dwordx4 {v4(o+4)}, v{VUS}, s[12:15], s23 offen offset:128 {SC}""")

def b_ids(a):
    a(f"""s_and_b32 s92, s2, 7
    s_lshr_b32 s93, s2, 6
    s_lshl_b32 s93, s93, 3
    s_or_b32 s92, s92, s93
    s_bfe_u32 s93, s2, 0x10003
    s_bfe_u32 s96, s2, 0x20004
    s_sub_u32 s95, 64, s92
    s_cmp_eq_u32 s92, 0
    s_cselect_b32 s95, 32, s95
    s_cselect_b32 s94, 0, 1
    s_xor_b32 s94, s94, s93
    s_cmp_eq_u32 s93, 0
    s_cselect_b32 s95, s92, s95
    s_lshl_b32 s96, s96, 9
    s_add_u32 s95, s95, s96
    s_lshl_b32 s96, s20, 6
    s_add_u32 s96, s96, s95
    s_mul_i32 s97, s96, 896""")

def b_setup(a):
    srd(a, 12, 6, WS_SIZE)
    srd(a, 52, 48, XB)
    srd(a, 16, 40, 896)
    b_ids(a)

def b_loads(a):
    a(f"""s_mov_b32 s26, {WS_EPOCH}
    v_mov_b32 v{T0}, 0
    buffer_load_dword v{V_EP}, v{T0}, s[12:15], s26 offen {SC}
    buffer_load_dwordx4 {v4(B_WR)}, v{VL}, s[16:19], 0 offen
    buffer_load_dwordx4 {v4(B_XR)}, v{VL}, s[8:11], s97 offen""")

def pro(a):
    a("; === address / twiddle set-up for phases B and C")
    EPS, BASE, TH, AF, AD = P_EPS, P_BASE, P_TH, B_AF, B_AD
    a(f"""s_lshl_b32 s28, s92, 16
    s_lshl_b32 s29, s20, 8
    s_add_u32 s28, s28, s29
    s_add_u32 s29, s28, 4096
    s_add_u32 s30, s28, 32768
    s_add_u32 s31, s28, 36864
    v_lshlrev_b32 v{B_VU}, 13, v{G}
    v_lshl_add_u32 v{B_VU}, v{N}, 4, v{B_VU}
    v_and_b32 v{T0}, 7, v{N}
    v_lshlrev_b32 v{T0}, 6, v{T0}
    v_add_u32 v{T0}, s95, v{T0}
    v_cvt_f32_u32 v{T0}, v{T0}
    v_cmp_gt_u32 vcc, 8, v{N}
    v_mul_f32 v{EPS}, {fl(1.0/2048)}, v{T0}
    v_lshlrev_b32 v{T1}, 2, v{G}
    v_cndmask_b32 v{EPS}, -v{EPS}, v{EPS}, vcc
    v_cvt_f32_u32 v{T1}, v{T1}
    v_mul_f32 v{BASE}, v{T1}, v{EPS}""")
    for ks in range(2):
        trig_block(a, 4, 16*ks, EPS, BASE, TH, True)
        for i in range(4):
            a(f"v_cvt_pk_f16_f32 v{AF+4*ks+i}, v{TH+i}, v{TH+4+i}")
    a(f"""v_lshrrev_b32 v{T0}, 3, v{N}
    v_and_b32 v{T1}, 3, v{N}
    v_mul_u32_u24 v{T1}, 7, v{T1}
    v_lshl_add_u32 v{T1}, v{T0}, 2, v{T1}
    s_mul_i32 s32, s20, 28
    s_add_u32 s32, s32, 1
    v_add_u32 v{T1}, s32, v{T1}
    v_sub_u32 v{T2}, 448, v{T1}
    v_cmp_gt_u32 s[34:35], 2, v{G}
    v_mov_b32 v{TH}, s93
    v_mov_b32 v{TH+1}, s94
    v_cndmask_b32 v{T2}, v{T2}, v{T1}, s[34:35]
    v_cndmask_b32 v{TH}, v{TH+1}, v{TH}, s[34:35]
    v_bfe_u32 v{TH+1}, v{N}, 2, 1
    v_cmp_eq_u32 s[60:61], v{TH}, v{TH+1}
    v_and_b32 v{TH+2}, 1, v{G}
    v_mul_u32_u24 v{TH+2}, {4*PY}, v{TH+2}
    v_add_lshl_u32 v{AD}, v{TH+2}, v{T2}, 2
    v_mov_b32 v{TH+3}, -4
    v_cndmask_b32 v{TH+3}, v{TH+3}, 4, s[34:35]
    v_add_u32 v{AD+1}, v{AD}, v{TH+3}
    v_add_u32 v{AD+2}, v{AD+1}, v{TH+3}
    v_add_u32 v{AD+3}, v{AD+2}, v{TH+3}
    v_cmp_eq_u32 s[50:51], 0, v{T0}
    s_and_b64 s[50:51], s[50:51], s[60:61]
    v_mov_b32 v{TH}, 222
    v_cmp_eq_u32 s[62:63], v{TH}, v{T1}
    s_and_b64 s[62:63], s[62:63], s[60:61]
    s_andn2_b64 s[36:37], s[62:63], s[34:35]
    v_lshlrev_b32 v{TH+2}, 2, v{TH+2}
    v_add_u32 v{TH}, {448*4}, v{TH+2}
    v_cndmask_b32 v{AD+2}, v{AD+2}, v{TH}, s[36:37]
    v_add_u32 v{TH}, {449*4}, v{TH+2}
    v_add_u32 v{B_AD4}, {450*4}, v{TH+2}
    v_cndmask_b32 v{B_AD4}, v{B_AD4}, v{TH}, s[34:35]
    s_mul_i32 s33, s20, {PY*4}
    v_lshlrev_b32 v{B_VY}, 5, v{LANE}
    v_add_u32 v{B_VY}, s33, v{B_VY}
    s_add_u32 s33, s33, {448*4}
    v_mov_b32 v{B_AD4+1}, s33""")
    for i in range(8):
        a(f"v_alignbit_b32 v{B_A2+i}, v{AF+i}, v{AF+i}, 16")
        a(f"v_xor_b32 v{B_A2+i}, 0x8000, v{B_A2+i}")
    lim_regs(a, C_L, LANE, T0)
    a(f"""s_lshl_b32 s34, s20, 5
    s_add_u32 s34, s34, {LSEL}
    v_lshlrev_b32 v{T1}, 2, v{LANE}
    v_add_u32 v{C_SW}, s34, v{T1}
    v_add_u32 v{C_SR}, {LSEL}, v{T1}
    v_lshrrev_b32 v{C_KA}, 1, v0
    v_lshlrev_b32 v{C_KA}, 6, v{C_KA}
    v_and_b32 v{T0}, 1, v0
    v_lshl_add_u32 v{C_KA}, v{T0}, 4, v{C_KA}
    s_lshl_b32 s34, s20, 6
    s_add_u32 s34, s34, {LSE2}
    v_add_u32 v{C_FW}, s34, v{T1}
    v_lshrrev_b32 v{C_PF}, 3, v{LANE}
    v_and_b32 v{C_FY}, 7, v{LANE}
    v_lshlrev_b32 v{C_FR}, 6, v{C_PF}
    v_lshl_add_u32 v{C_FR}, v{C_FY}, 2, v{C_FR}
    v_add_u32 v{C_FR}, {LSE2}, v{C_FR}
    v_lshlrev_b32 v{C_FY}, 6, v{C_FY}
    v_add_u32 v{C_FY}, {LSE2 + 32}, v{C_FY}
    v_lshlrev_b32 v{C_PF}, 7, v{C_PF}
    s_cmp_ge_u32 s2, 224
    s_cselect_b32 s33, 1024, 0
    s_add_u32 s33, s33, {WS_ROW}
    s_lshl_b32 s27, s2, 6
    s_add_u32 s27, s27, {WS_KEYS}
    s_sub_u32 s32, 2047, s96
    v_lshrrev_b32 v{T0}, 1, v0
    v_and_b32 v{T1}, 7, v{T0}
    v_lshrrev_b32 v{T2}, 6, v{T0}
    v_lshl_or_b32 v{T1}, v{T2}, 3, v{T1}
    v_sub_u32 v{T2}, 64, v{T1}
    v_cmp_eq_u32 vcc, 0, v{T1}
    v_bfe_u32 v{TH}, v{T0}, 3, 1
    v_cndmask_b32 v{T2}, v{T2}, 32, vcc
    v_cmp_eq_u32 vcc, 0, v{TH}
    v_bfe_u32 v{TH}, v{T0}, 4, 2
    v_cndmask_b32 v{T1}, v{T2}, v{T1}, vcc
    v_lshl_add_u32 v{T1}, v{TH}, 9, v{T1}
    v_and_b32 v{T0}, 1, v0
    v_lshl_add_u32 v{T1}, v{T0}, 8, v{T1}
    v_sub_u32 v{C_IX}, 2047, v{T1}
    v_subrev_u32 v{C_IX+1}, 64, v{C_IX}
    v_subrev_u32 v{C_IX+2}, 128, v{C_IX}
    v_subrev_u32 v{C_IX+3}, 192, v{C_IX}""")
    gu_prep(a)

def pro2(a):
    XU, WU, S1, S2, S3 = B_XU, B_WU, P_TH, P_TH + 2, P_TH + 4
    unpack8(a, WU, B_WR)
    a(f"""v_pk_add_f32 {v2(S1)}, {v2(WU)}, {v2(WU+2)}
    v_pk_add_f32 {v2(S2)}, {v2(WU+4)}, {v2(WU+6)}
    v_pk_add_f32 {v2(S1)}, {v2(S1)}, {v2(S2)}
    v_add_f32 v{S1}, v{S1}, v{S1+1}
    v_mov_b32 v{S2}, 0
    v_mov_b32 v{S3}, 0""")
    reduce3(a, S1, S2, S3, T0, 58, 39, 39)
    unpack8(a, XU, B_XR)
    for k in (B_S1, B_S1+1, B_S2, B_S2+1, B_S3, B_S3+1): a(f"v_mov_b32 v{k}, 0")

def anyones(a, regs_, t):
    regs_ = list(regs_)
    a(f"v_max_u32 v{t}, v{regs_[0]}, v{regs_[1]}")
    rest = regs_[2:]
    while len(rest) >= 2:
        a(f"v_max3_u32 v{t}, v{t}, v{rest[0]}, v{rest[1]}"); rest = rest[2:]
    if rest: a(f"v_max_u32 v{t}, v{t}, v{rest[0]}")
    a(f"v_cmp_eq_u32 vcc, -1, v{t}")

def wave_sum(a, v, sd):
    for k in (8, 4, 2, 1):
        a(f"v_add_u32_dpp v{v}, v{v}, v{v} row_ror:{k} row_mask:0xf bank_mask:0xf")
    for i in range(4): a(f"v_readlane_b32 s{sd+i}, v{v}, {16*i}")
    a(f"s_add_u32 s{sd}, s{sd}, s{sd+1}\ns_add_u32 s{sd+2}, s{sd+2}, s{sd+3}\ns_add_u32 s{sd}, s{sd}, s{sd+2}")

def publish_row(a):
    a("; publish this row (ln2 and out values, each closed by a checksum word)")
    a(f"""s_lshl_b32 s34, s96, 11
    s_add_u32 s34, s34, {WS_ROW}
    v_mov_b32 v{T0}, 0
    v_mov_b32 v{T1}, 0
    v_writelane_b32 v{C_LN}, 0, 56
    v_writelane_b32 v{C_OUT}, 0, 56
    s_mov_b32 exec_hi, 0x01ffffff
    v_add3_u32 v{T0}, v{C_LN}, v{C_LN+1}, v{C_LN+2}
    v_add3_u32 v{T1}, v{C_OUT}, v{C_OUT+1}, v{C_OUT+2}
    v_add_u32 v{T0}, v{T0}, v{C_LN+3}
    v_add_u32 v{T1}, v{T1}, v{C_OUT+3}
    s_mov_b32 exec_hi, -1""")
    wave_sum(a, T0, 36)
    a(f"s_sub_u32 s35, s98, s36\nv_writelane_b32 v{C_LN}, s35, 56")
    wave_sum(a, T1, 36)
    a(f"""s_sub_u32 s35, s98, s36
    v_writelane_b32 v{C_OUT}, s35, 56
    s_mov_b32 exec_hi, 0x01ffffff
    buffer_store_dwordx4 {v4(C_LN)}, v{VL}, s[12:15], s34 offen {SC}
    buffer_store_dwordx4 {v4(C_OUT)}, v{VL}, s[12:15], s34 offen offset:1024 {SC}
    s_mov_b32 exec_hi, -1""")

def fetch_row_issue(a, dst):
    a(f"""v_readlane_b32 s34, v{C_K}, s20
    s_andn2_b32 s34, 0x7ff, s34
    s_lshl_b32 s34, s34, 11
    s_add_u32 s34, s34, s33
    s_mov_b32 exec_hi, 0x01ffffff
    buffer_load_dwordx4 {v4(dst)}, v{VL}, s[12:15], s34 offen {SC}
    s_mov_b32 exec_hi, -1""")

def fetch_row_finish(a, dst, ldsaddr):
    _lbl[0] += 1
    L = f"Lrow{_lbl[0]}"
    a(f"""s_mul_i32 s29, s20, {PX}
    s_add_u32 s29, s29, {LXS}
    v_add_u32 v{ldsaddr}, s29, v{VL}
    s_mov_b32 s57, {SPIN}
    {L}:
    v_mov_b32 v{T0}, 0
    s_mov_b32 exec_hi, 0x01ffffff
    s_waitcnt vmcnt(0)
    ds_write_b128 v{ldsaddr}, {v4(dst)}
    v_add3_u32 v{T0}, v{dst}, v{dst+1}, v{dst+2}
    v_add_u32 v{T0}, v{T0}, v{dst+3}
    s_mov_b32 exec_hi, -1""")
    wave_sum(a, T0, 36)
    a(f"""s_cmp_eq_u32 s36, s98
    s_cbranch_scc1 {L}d
    s_mov_b32 exec_hi, 0x01ffffff
    s_waitcnt lgkmcnt(0)
    buffer_load_dwordx4 {v4(dst)}, v{VL}, s[12:15], s34 offen {SC}
    s_mov_b32 exec_hi, -1
    s_sub_u32 s57, s57, 1
    s_cbranch_scc0 {L}""")
    timeout_note(a, _lbl[0])
    a(f"{L}d:")

def gu_prep(a):
    srd(a, 16, 42, 448*3584)
    a(f"""v_mul_u32_u24 v{V_GU}, 3584, v0
    s_and_b32 s100, s2, 7
    s_mul_i32 s100, s100, 28
    s_lshr_b32 s101, s2, 3
    s_add_u32 s100, s100, s101
    s_lshl_b32 s26, s100, 4
    s_lshl_b32 s101, s20, 10
    s_add_u32 s101, s101, {LWT}
    s_and_b32 s45, s45, 0xffff
    s_cmp_ge_u32 s2, 224
    s_cselect_b32 s24, 7, s20""")

def gu_dma(a):
    a(f"""s_cmp_eq_u32 s24, 7
    s_cbranch_scc1 Lngu
    s_mov_b32 m0, s101
    s_add_u32 s101, s101, 8192
    buffer_load_dwordx4 v{V_GU}, s[16:19], s26 offen lds
    s_mov_b32 s16, s44
    s_mov_b32 m0, s101
    s_mov_b32 s17, s45
    buffer_load_dwordx4 v{V_GU}, s[16:19], s26 offen lds
    Lngu:""")

def wd_dma(a, j0, j1, L):
    if j0 == j1: return
    a(f"""s_cmp_lt_u32 s2, 224
    s_cbranch_scc1 {L}
    s_and_b32 s50, s2, 7
    s_cmp_eq_u32 s50, 7
    s_cbranch_scc1 {L}
    s_lshl_b32 s50, s50, 7
    s_bfe_u32 s51, s2, 0x20003
    s_lshl_b32 s51, s51, 5
    s_add_u32 s51, s51, s50""")
    srd(a, 16, 46, 1792*896)
    a(f"""v_lshrrev_b32 v{T1}, 1, v{LANE}
    v_mul_u32_u24 v{T1}, 896, v{T1}
    v_and_b32 v{T2}, 1, v{LANE}
    v_lshl_add_u32 v{T1}, v{T2}, 4, v{T1}
    s_mul_i32 s23, s20, {224*896}
    s_add_u32 s23, s23, s51
    s_add_u32 s23, s23, {j0*32*896}
    s_mul_i32 s25, s20, 7168
    s_add_u32 s25, s25, {LWT + j0*1024}""")
    for j in range(j0, j1):
        a(f"s_mov_b32 m0, s25")
        a(f"s_add_u32 s25, s25, 1024")
        a(f"buffer_load_dwordx4 v{T1}, s[16:19], s23 offen lds")
        a(f"s_add_u32 s23, s23, {32*896}")
    a(f"{L}:")

def b_main(a):
    a("; === phase B: fetch + validate U, 32-term DFT stage, h / LN2 / router key")
    R, AF, ACC, XU, WU, AD, TH = B_R, B_AF, B_ACC, B_XU, B_WU, B_AD, B_TH
    S1, S2, S3 = B_S1, B_S2, B_S3
    if OPT["sl_u0"]: a(f"s_sleep {OPT['sl_u0']}")
    def uld():
        for ks in range(2):
            for i in range(4):
                a(f"buffer_load_dwordx4 {v4(R+16*ks+4*i)}, v{B_VU}, s[12:15], s{28+2*ks+(i>>1)} offen offset:{2048*(i&1)} {SC}")
    a(f"s_mov_b32 s57, {SPIN}")
    uld()
    a("s_waitcnt vmcnt(8)")
    pro2(a)
    def swaps(ks):
        b = R + 16*ks
        for i in range(4):
            for j in range(i+1, 4):
                a(f"v_swap_b32 v{b+4*i+j}, v{b+4*j+i}")
    def mm(ks, dpp):
        for j in range(4):
            c = "0" if ks == 0 else v4(ACC+4*j)
            a(f"v_mfma_f32_16x16x32_f16 {v4(ACC+4*j)}, {v4(AF+4*ks)}, {v4(R+16*ks+4*j)}, {c}")
            if dpp: a(f"v_add_u32_dpp v{T0}, v{T0}, v{T0} row_ror:{8 >> j} row_mask:0xf bank_mask:0xf")
        a(f"v_mfma_f32_16x16x32_f16 {v4(TH)}, {v4(B_A2+4*ks)}, {v4(R+16*ks+8)}, {'0' if ks == 0 else v4(TH)}")
    if not OPT["part"]:
        a("s_branch Lupw\nLupoll:")
        uld()
        a("Lupw:")
    for ks in range(2):
        a(f"s_waitcnt vmcnt({4-4*ks})")
        b = R + 16*ks
        for i in range(8):
            if ks == 0 and i == 0: a(f"v_add_u32 v{T0}, v{b}, v{b+1}")
            else: a(f"v_add3_u32 v{T0}, v{T0}, v{b+2*i}, v{b+2*i+1}")
        swaps(ks)
        mm(ks, ks == 1)
    a(f"""v_cmp_ne_u32 vcc, s99, v{T0}
    s_cmp_eq_u64 vcc, 0""")
    if OPT["part"]:
        a("s_cbranch_scc0 Lupart")
        def part():
            C4 = B_TH
            a("Lupart:\ns_lshl_b32 s34, s98, 4")
            swaps(0); swaps(1)
            a("Lupchk:")
            for i in range(4):
                a(f"v_add3_u32 v{C4+i}, v{R+4*i}, v{R+4*i+1}, v{R+4*i+2}")
            for i in range(4):
                a(f"v_add3_u32 v{C4+i}, v{C4+i}, v{R+4*i+3}, v{R+16+4*i}")
            for i in range(4):
                a(f"v_add3_u32 v{C4+i}, v{C4+i}, v{R+16+4*i+1}, v{R+16+4*i+2}")
            for i in range(4):
                a(f"v_add_u32 v{C4+i}, v{C4+i}, v{R+16+4*i+3}")
            for k in (8, 4, 2, 1):
                for i in range(4):
                    a(f"v_add_u32_dpp v{C4+i}, v{C4+i}, v{C4+i} row_ror:{k} row_mask:0xf bank_mask:0xf")
            MK = ["s[36:37]", "s[38:39]", "s[24:25]", "vcc"]
            for i in range(4): a(f"v_cmp_ne_u32 {MK[i]}, s34, v{C4+i}")
            a(f"""s_or_b64 s[26:27], s[36:37], s[38:39]""".replace("s[26:27]", "s[100:101]"))
            a(f"""s_or_b64 s[100:101], s[100:101], s[24:25]
            s_or_b64 s[100:101], s[100:101], vcc
            s_cbranch_scc0 Lupgo""")
            if OPT["sl_r"]: a(f"s_sleep {OPT['sl_r']}")
            for i in range(4):
                a(f"s_cmp_eq_u64 {MK[i]}, 0\ns_cbranch_scc1 Lupok{i}")
                for ks in range(2):
                    a(f"buffer_load_dwordx4 {v4(R+16*ks+4*i)}, v{B_VU}, s[12:15], s{28+2*ks+(i>>1)} offen offset:{2048*(i&1)} {SC}")
                a(f"Lupok{i}:")
            a(f"""s_waitcnt vmcnt(0)
            s_sub_u32 s57, s57, 1
            s_cbranch_scc0 Lupchk
            Lupgo:""")
            for ks in range(2):
                swaps(ks); mm(ks, False)
            a("s_nop 7\ns_branch Lupolld")
        TAIL.append(part)
    else:
        a(f"""s_cbranch_scc1 Lupolld
        s_sub_u32 s57, s57, 1
        s_cbranch_scc0 Lupoll""")
        timeout_note(a, 9)
    a("Lupolld:")
    stamp(a, 6)
    if OPT["stamps"] == 3: a(f"s_sub_u32 s{64+2*11}, {SPIN+1}, s57")
    for j in range(4):
        if j in (0, 3): a(f"s_mov_b64 exec, {['s[60:61]', '', '', 's[50:51]'][j]}")
        for r in (0, 2):
            a(f"ds_write2st64_b32 v{AD+j}, v{ACC+4*j+r}, v{ACC+4*j+r+1} offset0:{r*PY//64} offset1:{(r+1)*PY//64}")
    a("s_cmp_lg_u32 s20, 7\ns_cbranch_scc1 Lndc\ns_mov_b64 exec, s[62:63]")
    for r in (0, 2):
        a(f"ds_write2st64_b32 v{B_AD4}, v{TH+r}, v{TH+r+1} offset0:{r*PY//64} offset1:{(r+1)*PY//64}")
    a("Lndc:\ns_mov_b64 exec, -1")
    gu_dma(a)
    wd_dma(a, 0, OPT['wdsplit'], 'Lnwd0')
    a("""s_mov_b32 exec_hi, 0x00ffffff
    s_waitcnt lgkmcnt(0)
    s_barrier""")
    H = R
    a(f"ds_read_b128 {v4(TH)}, v{B_AD4+1}\nds_read_b128 {v4(H)}, v{B_VY} offset:{LY}\nds_read_b128 {v4(H+4)}, v{B_VY} offset:{LY+16}")
    a("s_mov_b64 s[36:37], 1\ns_mov_b64 s[38:39], 0x10000001")
    for hf in range(2):
        a(f"s_waitcnt lgkmcnt({1-hf})")
        if hf == 0:
            a(f"""v_add_f32 v{TH+1}, v{TH+1}, v{TH+2}
            v_add_f32 v{TH}, v{TH}, v{H}
            v_cndmask_b32 v{TH}, v{TH}, v{TH+1}, s[36:37]
            v_mul_f32 v{TH}, 0.5, v{TH}
            v_cndmask_b32 v{H}, v{H}, v{TH}, s[38:39]""")
        for p in range(2):
            x = 4*hf + 2*p
            a(f"v_pk_add_f32 {v2(H+x)}, {v2(H+x)}, {v2(XU+x)}")
        for p in range(2):
            x = 4*hf + 2*p
            a(f"v_pk_add_f32 {v2(S1)}, {v2(S1)}, {v2(H+x)}")
            a(f"v_pk_fma_f32 {v2(S2)}, {v2(H+x)}, {v2(H+x)}, {v2(S2)}")
            a(f"v_pk_fma_f32 {v2(S3)}, {v2(H+x)}, {v2(WU+x)}, {v2(S3)}")
    a(f"""s_mov_b32 exec_hi, -1
    v_add_f32 v{S1}, v{S1}, v{S1+1}
    v_add_f32 v{S2}, v{S2}, v{S2+1}
    v_add_f32 v{S3}, v{S3}, v{S3+1}""")
    reduce3(a, S1, S2, S3, T0, 37, 38, 39)
    M, V, SD, RS, C0, KEY = TH, TH+1, TH+2, TH+4, TH+6, C_KEY
    a(f"""v_mov_b32 v{V}, {fl(1.0/448)}
    v_mul_f32 v{M}, s37, v{V}
    v_mul_f32 v{V}, s38, v{V}
    v_mov_b32 v{KEY}, s39
    v_fma_f32 v{V}, -v{M}, v{M}, v{V}
    v_fma_f32 v{KEY}, -v{M}, s58, v{KEY}
    v_max_f32 v{SD}, 0, v{V}
    v_add_f32 v{V}, {fl(1e-5)}, v{SD}""")
    a(f"""v_rsq_f32 v{RS}, v{V}
    s_lshl_b32 s34, s20, 2
    v_mov_b32 v{T2}, s34
    v_mul_f32 v{KEY}, v{KEY}, v{RS}
    v_cvt_pk_bf16_f32 v{KEY}, v{KEY}, v{KEY}
    v_ashrrev_i32 v{T0}, 31, v{KEY}
    v_or_b32 v{T0}, 0x80000000, v{T0}
    v_xor_b32 v{KEY}, v{KEY}, v{T0}
    v_and_b32 v{KEY}, 0xffff0000, v{KEY}
    v_or_b32 v{KEY}, s32, v{KEY}
    ds_write_b32 v{T2}, v{KEY} offset:{LKEY}
    v_mov_b32 v{C_STK}, 0xffff
    v_lshlrev_b32 v{T1}, 2, v{LANE}
    v_mov_b32 v{T2}, {LKEY}
    s_waitcnt lgkmcnt(0)
    s_barrier
    s_cmp_lg_u32 s20, 0
    s_cbranch_scc1 Lnokey
    s_mov_b64 exec, 0xff
    ds_read_b32 v{T0}, v{T1} offset:{LKEY}
    s_waitcnt lgkmcnt(0)
    v_bfi_b32 v{T0}, v{C_STK}, s59, v{T0}
    buffer_store_dword v{T0}, v{T1}, s[12:15], s27 offen {SC}
    s_mov_b64 exec, -1
    Lnokey:
    ds_read_b128 {v4(ACC)}, v{T2}
    ds_read_b128 {v4(ACC+4)}, v{T2} offset:16""")
    stamp(a, 7)
    sd_chain(a, SD, SD)
    a(f"v_rcp_f32 v{RS}, v{SD}\ns_nop 0\nv_mul_f32 v{C0}, -v{M}, v{RS}")
    for p in range(4):
        a(f"v_pk_fma_f32 {v2(XU+2*p)}, {v2(H+2*p)}, {v2(RS)}, {v2(C0)} op_sel_hi:[1,0,0]")
    for p in range(4):
        a(f"v_pk_add_f32 {v2(H+2*p)}, {v2(H+2*p)}, {v2(XU+2*p)}")
    for p in range(4):
        a(f"v_cvt_pk_bf16_f32 v{C_LN+p}, v{XU+2*p}, v{XU+2*p+1}")
        a(f"v_cvt_pk_bf16_f32 v{C_OUT+p}, v{H+2*p}, v{H+2*p+1}")
    a(f"""s_waitcnt lgkmcnt(0)
    v_max3_u32 v{T0}, v{ACC}, v{ACC+1}, v{ACC+2}
    v_max3_u32 v{T1}, v{ACC+3}, v{ACC+4}, v{ACC+5}
    v_max3_u32 v{T0}, v{T0}, v{ACC+6}, v{ACC+7}
    v_max_u32 v{T0}, v{T0}, v{T1}
    v_cmp_eq_u32 s[60:61], v{T0}, v{KEY}
    s_cmp_eq_u64 s[60:61], 0
    s_cbranch_scc1 Lnoeager""")
    publish_row(a)
    a("Lnoeager:")

QP = {1: "quad_perm:[1,0,3,2]", 2: "quad_perm:[2,3,0,1]", 3: "quad_perm:[3,2,1,0]", 7: "row_half_mirror"}
class Net:
    def __init__(s, a, x, t, fill): s.a = a; s.x = x; s.t = t; s.fill = list(fill)
    def f(s, n=1):
        for _ in range(n):
            if s.fill: s.a(s.fill.pop(0))
    def ce(s, m):
        a, x, t = s.a, s.x, s.t
        s.f()
        if m == 4:
            a(f"v_max_u32_dpp v{t}, v{x}, v{x} row_shl:4 row_mask:0xf bank_mask:0x5")
            a(f"v_min_u32_dpp v{t}, v{x}, v{x} row_shr:4 row_mask:0xf bank_mask:0xa")
            s.x, s.t = t, x
        else:
            a(f"v_mov_b32_dpp v{t}, v{x} {QP[m]} row_mask:0xf bank_mask:0xf")
            a(f"v_med3_u32 v{x}, v{x}, v{t}, v{C_L[1 << (m.bit_length()-1)]}")
    def merge(s, last_clean=True):
        a = s.a
        s.f()
        a(f"v_max_u32_dpp v{s.x}, v{s.x}, v{s.x} row_mirror row_mask:0xf bank_mask:0xf")
        for m in (4, 2, 1): s.ce(m)
        for sw in ("v_permlane16_swap_b32", "v_permlane32_swap_b32"):
            a(f"v_mov_b32 v{s.t}, v{s.x}")
            s.f()
            a(f"{sw} v{s.x}, v{s.t}")
            s.f()
            a(f"v_max_u32_dpp v{s.x}, v{s.t}, v{s.x} row_half_mirror row_mask:0xf bank_mask:0xf")
            if last_clean or "16" in sw:
                for m in (4, 2, 1): s.ce(m)
        s.f(99)

def fast_select(a):
    K, X, Y, P, Q = C_K, C_X, C_Y, C_TMP, C_TMP + 1
    a(f"""v_max_u32 v{P}, v{K}, v{K+1}
    v_max_u32 v{Q}, v{K+2}, v{K+3}
    v_max_u32 v{X}, v{P}, v{Q}""")
    fill = [f"v_min_u32 v{Y}, v{P}, v{Q}", f"v_min_u32 v{P}, v{K}, v{K+1}", f"v_min_u32 v{Q}, v{K+2}, v{K+3}",
            f"v_max3_u32 v{Y}, v{Y}, v{P}, v{Q}"]
    fill += [f"v_max_u32_dpp v{Y}, v{Y}, v{Y} row_ror:{k} row_mask:0xf bank_mask:0xf" for k in (8, 4, 2, 1)]
    fill += [f"v_mov_b32 v{P}, v{Y}", f"v_permlane16_swap_b32 v{Y}, v{P}", f"v_max_u32 v{Y}, v{Y}, v{P}",
             f"v_mov_b32 v{P}, v{Y}", f"v_permlane32_swap_b32 v{Y}, v{P}", f"v_max_u32 v{Y}, v{Y}, v{P}",
             "s_mov_b64 vcc, 0x100"]
    n = Net(a, X, C_TMP + 2, fill)
    for m in (1, 3, 1, 7, 2, 1): n.ce(m)
    n.merge()
    a(f"""s_mov_b64 exec, 0x1ff
    v_cndmask_b32 v{P}, v{n.x}, v{Y}, vcc
    ds_write_b32 v{C_FW}, v{P}""")
    if OPT["rowpf"]:
        m8 = (1 << OPT["rowpf"]) - 1; m32 = m8 * 0x01010101
        a(f"""s_mov_b32 exec_lo, {hex(m32)}
        s_mov_b32 exec_hi, {hex(m32)}
        v_bfi_b32 v{Q}, v{n.x}, 0, v{C_TMP+3}
        v_lshl_add_u32 v{Q}, v{Q}, 11, v{C_PF}
        buffer_load_dword v{JUNK}, v{Q}, s[12:15], s33 offen {SC}""")
    a(f"""s_mov_b64 exec, -1
    s_waitcnt lgkmcnt(0)
    s_barrier
    ds_read_b32 v{X}, v{C_FR}
    ds_read_b32 v{Y}, v{C_FY}
    s_waitcnt lgkmcnt(0)""")
    fill = [f"v_max_u32_dpp v{Y}, v{Y}, v{Y} {QP[m]} row_mask:0xf bank_mask:0xf" for m in (1, 2, 7)]
    n = Net(a, X, C_TMP + 2, fill)
    n.merge(last_clean=False)
    a(f"""v_cmp_gt_u32 vcc, v{Y}, v{n.x}
    s_cmp_eq_u64 vcc, 0
    s_cbranch_scc0 Lfullsel
    v_mov_b32 v{K}, v{n.x}
    Lseldone:""")

def c_select(a):
    a("; === top-8 selection over all router keys")
    K = C_K
    a(f"s_mov_b32 s34, {WS_KEYS}\nv_mov_b32 v{C_TMP+3}, 0x7ff")
    def chk():
        a(f"v_xor_b32 v{T0}, v{K}, v{K+1}")
        a(f"v_xor_b32 v{T1}, v{K+2}, v{K+3}")
        a(f"v_xor_b32 v{T2}, s59, v{K}")
        a(f"v_xor_b32 v{C_X}, s59, v{K+2}")
        a(f"v_or3_b32 v{T0}, v{T0}, v{T1}, v{T2}")
        for i in range(4): a(f"v_bfi_b32 v{K+i}, v{C_STK}, v{C_IX+i}, v{K+i}")
        a(f"v_or_b32 v{T0}, v{T0}, v{C_X}")
        a(f"v_cmp_ne_u16 vcc, 0, v{T0}")
    poll(a, lambda: a(f"buffer_load_dwordx4 {v4(K)}, v{C_KA}, s[12:15], s34 offen {SC}"), chk, pre=OPT["sl_k"])
    stamp(a, 8)
    fast_select(a)
    stamp(a, 9)
    a(f"""v_cmp_eq_u32 vcc, v{K}, v{C_KEY}
    s_and_b64 s[62:63], vcc, s[60:61]
    s_cmp_lg_u64 s[62:63], vcc
    s_cbranch_scc0 Lsel_pub""")
    publish_row(a)
    a("Lsel_pub:")
    fetch_row_issue(a, 84)
    a(f"""s_cmp_eq_u64 vcc, 0
    s_cbranch_scc0 Lsel_done
    s_mov_b32 exec_hi, 0x00ffffff
    buffer_store_dwordx4 {v4(C_OUT)}, v{VL}, s[52:55], s97 offen {['', 'sc1', 'nt', 'sc0 sc1'][OPT['ost']]}
    s_mov_b32 exec_hi, -1
    Lsel_done:""")

def c1(a):
    a("; === gate / up projection for this workgroup's 8 FFN columns")
    XR = 84; XF_ = 168; ACC = 52; XU = 60; WF = 88
    a(f"""s_cmp_lg_u32 s20, 0
    s_cbranch_scc1 Lc1_now
    v_lshrrev_b32 v{T0}, 2, v{N}
    v_lshl_add_u32 v{T0}, v{G}, 3, v{T0}
    v_lshlrev_b32 v{T0}, 4, v{T0}
    v_and_b32 v{T1}, 1, v{N}
    v_lshl_add_u32 v{T0}, v{T1}, 3, v{T0}
    v_bfe_u32 v{T1}, v{N}, 1, 1
    v_lshl_add_u32 v{T0}, v{T1}, 13, v{T0}
    v_add_u32 v{T0}, {LWT}, v{T0}""")
    for j in range(14):
        for h in range(2):
            a(f"ds_read_b64_tr_b16 {v2(WF+4*j+2*h)}, v{T0} offset:{(32*j+4*h)*16}")
    a(f"""v_and_b32 v{XU+4}, 7, v{N}
    v_mul_u32_u24 v{XU+4}, {PX}, v{XU+4}
    v_lshl_add_u32 v{XU+4}, v{G}, 4, v{XU+4}
    v_lshlrev_b32 v{XU+5}, 4, v{N}
    v_lshl_add_u32 v{XU+5}, v{G}, 3, v{XU+5}
    s_lshl_b32 s22, s100, 7
    s_add_u32 s22, s22, {WS_ACT}
    Lc1_now:""")
    fetch_row_finish(a, XR, T2)
    a(f"""s_waitcnt lgkmcnt(0)
    s_barrier
    s_cmp_lg_u32 s20, 0
    s_cbranch_scc1 Lc1_epoch""")
    stamp(a, 10)
    for j in range(14):
        a(f"ds_read_b128 {v4(XF_+4*j)}, v{XU+4} offset:{LXS+64*j}")
    for j in range(14):
        a(f"s_waitcnt lgkmcnt({13-j})")
        A = ACC + 4*(j & 1)
        a(f"v_mfma_f32_16x16x32_bf16 {v4(A)}, {v4(WF+4*j)}, {v4(XF_+4*j)}, {'0' if j < 2 else v4(A)}")
    for p in range(2):
        a(f"v_pk_add_f32 {v2(ACC+2*p)}, {v2(ACC+2*p)}, {v2(ACC+4+2*p)}")
    for p in range(2): a(f"v_cvt_pk_bf16_f32 v{ACC+4+p}, v{ACC+2*p}, v{ACC+2*p+1}")
    for p in range(2): a(f"v_mov_b32 v{ACC+6+p}, v{ACC+4+p}")
    for p in range(2): a(f"v_permlane32_swap_b32 v{ACC+4+p}, v{ACC+6+p}")
    for p in range(2):
        a(f"v_lshlrev_b32 v{ACC+2*p}, 16, v{ACC+4+p}")
        a(f"v_and_b32 v{ACC+2*p+1}, 0xffff0000, v{ACC+4+p}")
    for r in range(4): a(f"v_mul_f32 v{XU+r}, {fl(-1.4426950408889634)}, v{ACC+r}")
    for r in range(4): a(f"v_exp_f32 v{XU+r}, v{XU+r}")
    for p in range(2):
        a(f"v_lshlrev_b32 v{XR+2*p}, 16, v{ACC+6+p}")
        a(f"v_and_b32 v{XR+2*p+1}, 0xffff0000, v{ACC+6+p}")
    for r in range(4): a(f"v_add_f32 v{XU+r}, 1.0, v{XU+r}")
    for r in range(4): a(f"v_rcp_f32 v{XU+r}, v{XU+r}")
    for r in range(4): a(f"v_mul_f32 v{ACC+r}, v{ACC+r}, v{XU+r}")
    for p in range(2): a(f"v_cvt_pk_bf16_f32 v{ACC+4+p}, v{ACC+2*p}, v{ACC+2*p+1}")
    for p in range(2):
        a(f"v_lshlrev_b32 v{ACC+2*p}, 16, v{ACC+4+p}")
        a(f"v_and_b32 v{ACC+2*p+1}, 0xffff0000, v{ACC+4+p}")
    for p in range(2): a(f"v_pk_mul_f32 {v2(ACC+2*p)}, {v2(ACC+2*p)}, {v2(XR+2*p)}")
    for p in range(2): a(f"v_cvt_pk_bf16_f32 v{XR+p}, v{ACC+2*p}, v{ACC+2*p+1}")
    for p in range(2): a(f"v_min_u32 v{XR+p}, -2, v{XR+p}")
    a(f"""s_mov_b32 exec_lo, 0x00ff00ff
    s_mov_b32 exec_hi, 0
    buffer_store_dwordx2 {v2(XR)}, v{XU+5}, s[12:15], s22 offen {SC}
    s_branch Lend
    Lc1_epoch:
    s_lshl_b32 s29, s2, 3
    s_add_u32 s29, s29, s20
    s_cmp_lg_u32 s29, 1
    s_cbranch_scc1 Lend
    s_mov_b64 exec, 1
    v_mov_b32 v{T0}, s56
    s_mov_b32 s29, {WS_EPOCH}
    buffer_store_dword v{T0}, v{VL}, s[12:15], s29 offen {SC}
    s_branch Lend""")

def c2(a):
    a("; === down projection for 16 output columns, routed rows written")
    K = C_K
    OA = 8; OR = 10; SG = 12; VA = 13; VO = 14; VW = 15; WF = 88; AF = 116; ACC = 52; RD = 168
    a(f"""s_mul_i32 s24, s20, 7168
    s_add_u32 s24, s24, {LWT}
    v_lshrrev_b32 v{T0}, 2, v{N}
    v_lshl_add_u32 v{T0}, v{G}, 3, v{T0}
    v_lshlrev_b32 v{T0}, 5, v{T0}
    v_and_b32 v{T1}, 3, v{N}
    v_lshl_add_u32 v{T0}, v{T1}, 3, v{T0}
    v_add_u32 v{VW}, s24, v{T0}""")
    for j in range(7):
        for h in range(2):
            a(f"ds_read_b64_tr_b16 {v2(WF+4*j+2*h)}, v{VW} offset:{(32*j+4*h)*32}")
    a(f"""v_and_b32 v{T1}, 7, v{N}
    v_mul_u32_u24 v{VO}, {PX}, v{T1}
    v_lshl_add_u32 v{VO}, v{G}, 3, v{VO}
    v_add_u32 v{VO}, s51, v{VO}
    v_lshlrev_b32 v{VA}, 4, v{T1}
    v_lshl_add_u32 v{VA}, v{G}, 7, v{VA}
    s_mul_i32 s25, s20, {7*512}
    s_add_u32 s25, s25, {WS_ACT}
    v_and_b32 v{OA}, 0x7ff, v{K}
    v_sub_u32 v{OA}, 2047, v{OA}
    v_mul_u32_u24 v{OA}, 896, v{OA}
    v_lshl_add_u32 v{OA}, v{G}, 3, v{OA}
    v_ashrrev_i32 v{T2}, 31, v{K}
    v_not_b32 v{T2}, v{T2}
    v_or_b32 v{T2}, 0x80000000, v{T2}
    v_xor_b32 v{K+1}, v{K}, v{T2}
    v_and_b32 v{K+1}, 0xffff0000, v{K+1}""")
    sigmoid_mul(a, SG, K+1, "1.0", T2)
    rbf(a, SG, SG)
    a(f"""v_lshlrev_b32 v{T1}, 4, v0
    v_add_u32 v{T1}, {LRED}, v{T1}""")
    def lds():
        for j in range(7):
            a(f"buffer_load_dwordx4 {v4(AF+4*j)}, v{VA}, s[12:15], s25 offen offset:{512*j} {SC}")
    if OPT["c2re"]:
        if OPT["sl_a"]: a(f"s_sleep {OPT['sl_a']}")
        lds()
        fetch_row_finish(a, 84, T2)
        anyones(a, range(AF, AF+28), T0)
        a("s_cmp_eq_u64 vcc, 0\ns_cbranch_scc1 Lactok")
        poll(a, lds, lambda: anyones(a, range(AF, AF+28), T0))
        a("Lactok:")
    else:
        fetch_row_finish(a, 84, T2)
        poll(a, lds, lambda: anyones(a, range(AF, AF+28), T0), pre=OPT["sl_a"])
    stamp(a, 10)
    a("s_waitcnt lgkmcnt(0)")
    for j in range(7):
        A = ACC + 4*(j & 1)
        a(f"v_mfma_f32_16x16x32_bf16 {v4(A)}, {v4(WF+4*j)}, {v4(AF+4*j)}, {'0' if j < 2 else v4(A)}")
    for p in range(2):
        a(f"v_pk_add_f32 {v2(ACC+2*p)}, {v2(ACC+2*p)}, {v2(ACC+4+2*p)}")
    a(f"""ds_write_b128 v{T1}, {v4(ACC)}
    s_waitcnt lgkmcnt(0)
    s_barrier
    s_cmp_lg_u32 s20, 0
    s_cbranch_scc1 Lend
    ds_read_b64 {v2(OR)}, v{VO} offset:{LXS}""")
    for w in range(1, 8):
        a(f"ds_read_b128 {v4(RD+4*w)}, v{T1} offset:{1024*w}")
    a("s_waitcnt lgkmcnt(7)")
    for i in range(2):
        a(f"v_lshlrev_b32 v{RD+2*i}, 16, v{OR+i}")
        a(f"v_and_b32 v{RD+2*i+1}, 0xffff0000, v{OR+i}")
    for w in range(1, 8):
        a(f"s_waitcnt lgkmcnt({7-w})")
        for p in range(2):
            a(f"v_pk_add_f32 {v2(ACC+2*p)}, {v2(ACC+2*p)}, {v2(RD+4*w+2*p)}")
    for rnd in range(2):
        for p in range(2): a(f"v_cvt_pk_bf16_f32 v{ACC+4+p}, v{ACC+2*p}, v{ACC+2*p+1}")
        for p in range(2):
            a(f"v_lshlrev_b32 v{ACC+2*p}, 16, v{ACC+4+p}")
            a(f"v_and_b32 v{ACC+2*p+1}, 0xffff0000, v{ACC+4+p}")
        for p in range(2):
            if rnd == 0: a(f"v_pk_mul_f32 {v2(ACC+2*p)}, {v2(ACC+2*p)}, {v2(SG)} op_sel_hi:[1,0]")
            else: a(f"v_pk_add_f32 {v2(ACC+2*p)}, {v2(ACC+2*p)}, {v2(RD+2*p)}")
    for p in range(2): a(f"v_cvt_pk_bf16_f32 v{OR+p}, v{ACC+2*p}, v{ACC+2*p+1}")
    a(f"""s_mov_b32 exec_lo, 0x00ff00ff
    s_mov_b32 exec_hi, 0x00ff00ff
    buffer_store_dwordx2 {v2(OR)}, v{OA}, s[52:55], s51 offen {['', 'sc1', 'nt', 'sc0 sc1'][OPT['ost']]}""")

def clears(a):
    a(f"""v_mov_b32 v{JUNK+2}, -1
    v_lshlrev_b32 v{T1}, 2, v{LANE}
    s_lshl_b32 s24, s2, 7
    s_add_u32 s24, s24, {WS_ACT}
    s_mov_b32 exec_hi, 0
    buffer_store_dword v{JUNK+2}, v{T1}, s[12:15], s24 offen {SC}
    s_mov_b32 exec_lo, 1
    s_lshl_b32 s23, s96, 11
    s_add_u32 s23, s23, {WS_ROW}
    buffer_load_dword v{JUNK}, v{VL}, s[52:55], s97 offen
    buffer_load_dword v{JUNK+1}, v{VL}, s[12:15], s23 offen
    s_mov_b64 exec, -1""")

def prefetch(a, w0=1, T0=T0, T1=T1):
    a("; L2 warm-up of the FFN weights (one word per line, values unused)")
    a(f"""s_and_b32 s24, s2, 7
    s_lshr_b32 s25, s2, 3
    s_mul_i32 s26, s25, {14*3584}
    s_mov_b32 s18, {448*3584}
    s_mov_b32 s19, 0x00020000
    s_cmp_eq_u32 s20, {w0+2}
    s_cbranch_scc1 Lpf_d
    v_lshrrev_b32 v{T0}, 2, v{LANE}
    v_mul_u32_u24 v{T0}, 3584, v{T0}
    v_and_b32 v{T1}, 3, v{LANE}
    v_lshl_add_u32 v{T0}, v{T1}, 7, v{T0}
    s_mul_i32 s24, s24, 448
    s_cmp_eq_u32 s20, {w0}
    s_cselect_b32 s16, s42, s44
    s_cselect_b32 s17, s43, s45
    s_branch Lpf_go
    Lpf_d:
    v_mul_u32_u24 v{T0}, 896, v{LANE}
    s_lshl_b32 s24, s24, 7
    s_mov_b32 s16, s46
    s_mov_b32 s17, s47
    Lpf_go:
    s_and_b32 s17, s17, 0xffff
    s_add_u32 s26, s26, s24
    s_mov_b32 exec_hi, 0x00ffffff
    buffer_load_dword v{JUNK}, v{T0}, s[16:19], s26 offen
    s_mov_b32 exec_hi, -1""")

def kernel(a):
    if OPT["stamps"]:
        for k in range(NST): a(f"s_mov_b32 s{64+2*k}, 0")
    stamp(a, 0)
    a(f"""s_load_dwordx2 s[8:9], s[0:1], 0
    s_cmp_ge_u32 s2, 256
    s_cbranch_scc1 Lexit
    v_lshrrev_b32 v{T0}, 6, v0
    v_and_b32 v{LANE}, 63, v0
    v_readfirstlane_b32 s20, v{T0}
    v_lshlrev_b32 v{VL}, 4, v{LANE}
    s_and_b32 s21, s2, 31
    s_lshr_b32 s22, s2, 5
    s_mov_b32 s10, {XB}
    s_mov_b32 s11, 0x00020000
    s_cmp_lt_u32 s20, 4
    s_cbranch_scc1 Lloader
    s_getpc_b64 s[30:31]
    Lpc:
    v_and_b32 v{T2}, 255, v0
    v_lshlrev_b32 v{JUNK}, 7, v{T2}
    v_mov_b32 v{JUNK+1}, s31
    v_add_co_u32 v{JUNK}, vcc, s30, v{JUNK}
    v_addc_co_u32 v{JUNK+1}, vcc, 0, v{JUNK+1}, vcc
    v_cmp_gt_u32 vcc, (Lexit-Lpc)/128+1, v{T2}
    s_and_saveexec_b64 s[30:31], vcc
    s_cbranch_execz Lcompute
    global_load_dword v{JUNK+2}, v[{JUNK}:{JUNK+1}], off
    s_branch Lcompute
    Lloader:
    s_lshl_b32 s23, s20, 9
    s_add_u32 s23, s23, s21
    s_mul_i32 s23, s23, 896
    s_mul_i32 s24, s20, {8*PA}
    v_cmp_lt_u32 vcc, 31, v{LANE}
    v_add_u32 v{T1}, {8*32*896 - 512}, v{VL}
    s_mov_b32 s25, {'s22' if OPT['rot'] else '0'}
    v_cndmask_b32 v{T1}, v{VL}, v{T1}, vcc
    s_waitcnt lgkmcnt(0)""")
    stamp(a, 3, True)
    for hf in range(2):
        for i in range(8):
            a(f"""s_mul_i32 s26, s25, {PA if hf == 0 else 2*PB}
            s_mul_i32 s27, s25, {32*896 if hf == 0 else 64*896}
            s_add_u32 m0, s26, s24
            s_add_u32 s27, s27, s23
            s_add_u32 s25, s25, 1
            buffer_load_dwordx4 v{T1 if hf == 0 else T2}, s[8:11], s27 offen lds
            s_and_b32 s25, s25, 7""")
            if hf == 0 and i == 0:
                a(f"""v_cmp_lt_u32 vcc, 25, v{LANE}
                v_add_u32 v{T2}, {32*896 - 416}, v{VL}
                v_cndmask_b32 v{T2}, v{VL}, v{T2}, vcc""")
        if hf == 0:
            a(f"""s_mul_i32 s24, s20, {16*PB}
            s_add_u32 s24, s24, {LXB}
            s_add_u32 s23, s23, 512
            s_mov_b32 exec_lo, 0xfcffffff
            s_mov_b32 exec_hi, 0x0003ffff""")
    def ltail():
        a(f"""Lltail:
        s_mov_b64 exec, -1
        s_load_dwordx2 s[6:7], s[0:1], 96
        s_load_dwordx8 s[40:47], s[0:1], 48
        s_load_dwordx2 s[48:49], s[0:1], 80
        v_and_b32 v{N}, 15, v0
        v_bfe_u32 v{G}, v0, 4, 2""")
        stamp(a, 6, True)
        early = OPT["e2a"]
        if early:
            a("s_waitcnt vmcnt(8)")
            stamp(a, 1)
            a("s_barrier")
        a("s_waitcnt lgkmcnt(0)")
        b_setup(a)
        b_loads(a)
        a("s_cmp_lg_u32 s20, 0\ns_cbranch_scc1 Lw123a")
        clears(a)
        if not early:
            a("s_waitcnt vmcnt(14)")
            stamp(a, 1)
            a("s_barrier")
        a("s_waitcnt vmcnt(6)")
        stamp(a, 2)
        a(f"""s_barrier
        v_mov_b32 v{T0}, {LTAG}
        s_waitcnt vmcnt(5)
        ds_write_b32 v{T0}, v{V_EP}
        s_branch Lprol
        Lw123a:""")
        if OPT["pf"] == 3: prefetch(a)
        if not early:
            a(f"s_waitcnt vmcnt(12)")
            stamp(a, 1)
            a("s_barrier")
        a(f"s_waitcnt vmcnt({4 if OPT['pf'] == 3 else 3})")
        stamp(a, 2)
        a(f"s_barrier")
        if OPT["pf"] == 1: prefetch(a)
        a(f"s_waitcnt vmcnt({2 if OPT['pf'] == 4 else 3})")
        a("Lprol:")
        if OPT["wdh"]: wd_dma(a, 0, 7, "Lnwd2")
        if OPT["w64l"]:
            a("s_mov_b32 s3, s20")
            w64(a, AC1)
            for i in range(8): a(f"v_xor_b32 v{AC1+16+i}, 0x80008000, v{AC1+8+i}")
            a(f"s_lshl_b32 s26, s3, 12\ns_add_u32 s26, s26, {LWT}\nv_add_u32 v{T1}, s26, v{VL}")
            for i in range(6): a(f"ds_write_b128 v{T1}, {v4(AC1+4*i)} offset:{[0, 1024, 2048, 3072, 16384, 17408][i]}")
        if not OPT["prolate"]: pro(a)
        stamp(a, 3)
        def hint_store():
            a(f"""s_cmp_lg_u32 s20, 0
            s_cbranch_scc1 Lnh
            s_lshl_b32 s34, s2, 6
            s_add_u32 s34, s34, {WS_HINT}
            v_add_u32 v{T0}, 1, v{V_EP}
            s_mov_b64 exec, 1
            buffer_store_dword v{T0}, v{VL}, s[12:15], s34 offen {SC}
            s_mov_b64 exec, -1
            Lnh:""")
        if OPT["hint"] == 2: hint_store()
        a("s_waitcnt lgkmcnt(0)\ns_barrier")
        if OPT["hint"] == 1: hint_store()
        a("s_branch Lpro1" if OPT["prolate"] else "s_branch Lpro2")
    if OPT["layout"]: a("s_branch Lltail")
    else: ltail()
    a(f"""Lcompute:
    s_mov_b64 exec, -1
    s_load_dwordx2 s[6:7], s[0:1], 96
    s_load_dwordx8 s[40:47], s[0:1], 48
    s_load_dwordx2 s[48:49], s[0:1], 80
    v_and_b32 v{N}, 15, v0
    v_bfe_u32 v{G}, v0, 4, 2
    s_and_b32 s3, s20, 3""")
    if OPT["prio"]: a("s_setprio 3")
    stamp(a, 9, True)
    a_pre(a)
    stamp(a, 11, True)
    a("s_waitcnt lgkmcnt(0)")
    b_setup(a)
    stamp(a, 1)
    a("s_barrier")
    stamp(a, 2)
    a_main(a)
    stamp(a, 4)
    if OPT["prio"]: a("s_setprio 0")
    a(f"buffer_load_dwordx4 {v4(B_WR)}, v{VL}, s[16:19], 0 offen")
    a(f"buffer_load_dwordx4 {v4(B_XR)}, v{VL}, s[8:11], s97 offen")
    a("Lpro1:")
    pro(a)
    a("Lpro2:")
    a(f"""v_readfirstlane_b32 s56, v{V_EP}
    s_add_u32 s56, s56, 1
    s_mul_i32 s98, s56, {HASH}
    s_lshl_b32 s99, s98, 6
    s_and_b32 s59, s56, 0xffff""")
    if OPT["hint"]:
        a(f"""v_and_b32 v{T1}, 31, v{LANE}
        v_lshlrev_b32 v{T1}, 6, v{T1}
        s_lshl_b32 s34, s20, 11
        s_add_u32 s34, s34, {WS_HINT}
        s_mov_b32 s57, 4000""")
        if OPT["sl_h0"]: a(f"s_sleep {OPT['sl_h0']}")
        a(f"""Lhint:
        buffer_load_dword v{T0}, v{T1}, s[12:15], s34 offen {SC}
        s_waitcnt vmcnt(0)
        v_cmp_ne_u32 vcc, s56, v{T0}
        s_cmp_eq_u64 vcc, 0
        s_cbranch_scc1 Lhintd""")
        if OPT["sl_h"]: a(f"s_sleep {OPT['sl_h']}")
        a(f"""s_sub_u32 s57, s57, 1
        s_cbranch_scc0 Lhint
        Lhintd:""")
    else:
        a("s_barrier")
    stamp(a, 5)
    b_main(a)
    if OPT["wdh"]: a("s_cmp_lt_u32 s20, 4\ns_cbranch_scc1 Lnwd1")
    wd_dma(a, OPT['wdsplit'], 7, 'Lnwd1')
    c_select(a)
    a("s_cmp_ge_u32 s2, 224\ns_cbranch_scc1 Lc2")
    c1(a)
    a("Lc2:\ns_and_b32 s50, s2, 7\ns_cmp_eq_u32 s50, 7\ns_cbranch_scc1 Lend\ns_lshl_b32 s50, s50, 7\ns_bfe_u32 s51, s2, 0x20003\ns_lshl_b32 s51, s51, 5\ns_add_u32 s51, s51, s50")
    c2(a)
    a("Lend:")
    dump_stamps(a)
    if OPT["layout"]:
        a("s_endpgm")
        ltail()
        for f in TAIL: f()
    a("Lexit:\ns_endpgm\nLfullsel:")
    select8(a, C_K, C_TMP, C_L, C_SW, C_SR)
    a("s_branch Lseldone")

DOC = '''; ---------------------------------------------------------------------------------------------
;      into LDS, waves 4-7 build the cos/sin tables, run the DFT-448 for 28 frequencies (raw bf16 x,
;      sums), then the DFT-64 over s2, and write U (f16) to d_ws.
;      28 workgroups do the down projection for 16 output columns and write the routed rows.
; ---------------------------------------------------------------------------------------------
'''
NAME = "sequential_preLN__spectral_fnet__moe_arch_mod__prompt_kernel"
def build():
    a = Asm()
    kernel(a)
    body = a.finish()
    if OPT["align"]: body = align_pass(body)
    return gen.HDR + f"""; @launch grid=(256,1,1) block=(512,1,1) lds={LDS_TOTAL}
{DOC}.amdgcn_target "amdgcn-amd-amdhsa--gfx950"
.text
.globl {NAME}
.p2align 8
.type {NAME},@function
{NAME}:
""" + body + f""".section .rodata,"a"
.p2align 6
.amdhsa_kernel {NAME}
  .amdhsa_next_free_vgpr {NVGPR}
  .amdhsa_next_free_sgpr 102
  .amdhsa_accum_offset {NVGPR}
  .amdhsa_group_segment_fixed_size 0
  .amdhsa_kernarg_size 104
  .amdhsa_user_sgpr_count 2
  .amdhsa_user_sgpr_kernarg_segment_ptr 1
  .amdhsa_system_sgpr_workgroup_id_x 1
.end_amdhsa_kernel
"""

if __name__ == "__main__":
    for x in list(sys.argv[1:]):
        if x.startswith("--"):
            k, _, v = x[2:].partition("=")
            assert k in OPT, k
            OPT[k] = int(v) if v else 1
            sys.argv.remove(x)
    open(sys.argv[1], "w").write(build())
```

```python
import sys
from asmlib import Asm, fl, align_pass
import gen
from gen import srd, v4, v2, rbf, sd_chain, reduce3, unpack8, lim_regs, select8, sigmoid_mul

WS_KEYS = 0x200000
WS_HINT = 0x204000
WS_EPOCH = 0x208000
WS_ACT = 0x210000
WS_STAMP = 0x3c0000
WS_ROW = 0x400000
WS_SIZE = 0x800000
XB = 1835008
PH = 480; PX = 928; PF = 136; PY = 512
LXH = 64 * PH
LW = 2 * LXH; LCS = LW + 28 * 1024; LTAG = LCS + 256; LF = LCS + 272; LWT = LF + 64 * PF; LDS_TOTAL = LWT + 57344
LY = 0
LSEL = 16384; LSE2 = 16640; LKEY = 17152; LXS = 17408; LRED = 24832
SPIN = 4000000
SC = "sc1"
HASH = "0x9e3779b1"
OPT = dict(stamps=0, cyc=0, align=0, sl_u0=6, sl_k=15, sl_a=4, rowpf=2, barj=5, dbgto=0, ost=0, c2re=1, rot=1, pf=3, wdsplit=0, w64l=0, layout=1, e2a=1, prolate=1, amp=-1, ampw=0, ampb=224, prio=1, wdh=0, cheb=1, ln1emu=1, dmau=1, b1=2, part=0, sl_r=4, hint=0, sl_h=4, sl_h0=0, trim=1)
NST = 14

def stamp(a, k, early=False):
    if OPT["stamps"] == 5:
        if early != 5 and k not in (0, 3, 4, NST - 1): return
    elif OPT["stamps"] == 4:
        if early == 5 or (not early and k not in (0, 1, 2, NST - 1)): return
    elif early: return
    if OPT["stamps"] == 2 and k not in (0, NST - 1): return
    if OPT["stamps"]: a(f"{'s_memtime' if OPT['cyc'] else 's_memrealtime'} s[{64+2*k}:{65+2*k}]")
def dump_stamps(a):
    if OPT["amp"] >= 0:
        k = OPT["amp"]
        a(f"s_memrealtime s[{64+2*(NST-2)}:{65+2*(NST-2)}]")
        a(f"""s_cmp_lg_u32 s2, {OPT['ampb']}
        s_cbranch_scc1 Lampd
        s_cmp_lg_u32 s20, {OPT['ampw']}
        s_cbranch_scc1 Lampd
        s_waitcnt lgkmcnt(0)
        s_sub_u32 s60, s{64+2*k}, s64
        s_mul_i32 s60, s60, 9
        s_add_u32 s60, s60, s{64+2*(NST-2)}
        Lamp:
        s_memrealtime s[62:63]
        s_waitcnt lgkmcnt(0)
        s_sub_u32 s61, s62, s60
        s_cmp_lt_i32 s61, 0
        s_cbranch_scc1 Lamp
        Lampd:""")
        return
    if not OPT["stamps"]: return
    stamp(a, NST - 2)
    a("s_waitcnt vmcnt(0)")
    stamp(a, NST - 1)
    a("s_mov_b64 exec, 1\ns_waitcnt lgkmcnt(0)")
    a(f"s_lshl_b32 s60, s2, 3\ns_add_u32 s60, s60, s20\ns_lshl_b32 s60, s60, 6\ns_add_u32 s60, s60, {WS_STAMP}\nv_mov_b32 v1, 0")
    for k in range(NST):
        a(f"v_mov_b32 v2, s{64+2*k}\nbuffer_store_dword v2, v1, s[12:15], s60 offen offset:{4*k}")

_lbl = [0]
TAIL = []
def timeout_note(a, ident):
    if not OPT["dbgto"]: return
    a(f"""s_lshl_b32 s100, s2, 8
    s_add_u32 s100, s100, s20
    s_add_u32 s100, s100, {ident << 24}
    v_mov_b32 v{JUNK+3}, s100
    s_mov_b32 s100, {0x3f0000 + 4*ident}
    s_mov_b64 exec, 1
    buffer_store_dword v{JUNK+3}, v{VL}, s[12:15], s100 offen
    v_mov_b32 v{JUNK+3}, s36
    buffer_store_dword v{JUNK+3}, v{VL}, s[12:15], s100 offen offset:64
    v_mov_b32 v{JUNK+3}, s98
    buffer_store_dword v{JUNK+3}, v{VL}, s[12:15], s100 offen offset:128
    v_mov_b32 v{JUNK+3}, s34
    buffer_store_dword v{JUNK+3}, v{VL}, s[12:15], s100 offen offset:192
    s_mov_b64 exec, -1""")
def poll(a, loads, check, pre=0):
    _lbl[0] += 1
    L = f"Lpoll{_lbl[0]}"
    if pre: a(f"s_sleep {pre}")
    a(f"s_mov_b32 s57, {SPIN}\n{L}:")
    loads()
    a("s_waitcnt vmcnt(0)")
    check()
    a(f"""s_cmp_eq_u64 vcc, 0
    s_cbranch_scc1 {L}d
    s_sub_u32 s57, s57, 1
    s_cbranch_scc0 {L}""")
    timeout_note(a, _lbl[0])
    a(f"{L}d:")

class LdsQ:
    def __init__(s, a): s.a = a; s.q = []
    def read(s, text, b, n=4):
        s.a(text); s.q.append(set(range(b, b + n)))
    def need(s, b, n=4):
        rs = set(range(b, b + n)); last = -1
        for i, d in enumerate(s.q):
            if d & rs: last = i
        if last >= 0:
            s.a(f"s_waitcnt lgkmcnt({len(s.q) - 1 - last})")
            s.q = s.q[last+1:]

LANE, N, G, T0, T1, T2, VL = 1, 2, 3, 4, 5, 6, 7
B_XR = 8; B_WR = 12; V_EP = 16; VFW = 17; VFR = 18; VXR = 19; VCS = 20; VUS = 21; ST = 22
WC = 28; WSN = 36; WNS = 44
AC1 = 52; AC2 = 68; GR = 84; XF = 88; WD = 116
JUNK = 228; SG2 = 232; V_GU = 234; V_DC = 235; B_A2 = 236; B_AD4 = 244; NVGPR = 248
B_AF = 28; B_AD = 36; B_VY = 40; B_VU = 41; C_L = {1: 42, 2: 43, 4: 44}; C_SW = 45; C_SR = 46; C_KA = 47
C_FW = 48; C_FR = 49; C_FY = 50; C_PF = 51
B_R = 116; B_ACC = 52; B_XU = 68; B_WU = 76; B_S1, B_S2, B_S3 = 88, 90, 92; B_TH = 96; P_TH = 104; P_EPS = 112; P_BASE = 113
C_K = 148; C_TMP = 152; C_KEY = 156; C_X = 157; C_Y = 158; C_OUT = 160; C_LN = 164; C_IX = 224; C_STK = 159

def trig_block(a, n, k0, eps, base, th, want_sin):
    for i in range(n):
        k = k0 + i
        if k == 0: a(f"v_mov_b32 v{th+i}, v{base}")
        else: a(f"v_fmamk_f32 v{th+i}, v{eps}, {fl(float(k))}, v{base}")
    for i in range(n):
        if want_sin: a(f"v_sin_f32 v{th+n+i}, v{th+i}")
        a(f"v_cos_f32 v{th+i}, v{th+i}")

def w64(a, D):
    EPS, BASE, TH, S = ST + 4, ST + 5, XF, ST
    a(f"""v_lshrrev_b32 v{S}, 1, v{N}
    s_lshl_b32 s25, s3, 3
    v_add_u32 v{S}, s25, v{S}
    v_sub_u32 v{S+1}, 64, v{S}
    v_cmp_eq_u32 vcc, 0, v{S}
    v_and_b32 v{S+2}, 1, v{N}
    v_cndmask_b32 v{S+1}, v{S+1}, 32, vcc
    v_cmp_eq_u32 vcc, 0, v{S+2}
    v_lshlrev_b32 v{S+2}, 3, v{G}
    v_cndmask_b32 v{S+1}, v{S+1}, v{S}, vcc
    v_cvt_f32_u32 v{S+2}, v{S+2}
    v_and_b32 v{S}, 1, v{S+1}
    v_cvt_f32_u32 v{S+1}, v{S+1}
    v_mul_u32_u24 v{S}, 0x8000, v{S}
    v_mul_f32 v{EPS}, {fl(1.0/64)}, v{S+1}
    v_lshl_or_b32 v{S}, v{S}, 16, v{S}
    v_mul_f32 v{BASE}, v{S+2}, v{EPS}""")
    if OPT["cheb"]:
        C2 = S + 3; CV = XF; SV = XF + 8
        a(f"""v_cos_f32 v{C2}, v{EPS}
        v_add_f32 v{CV+1}, v{EPS}, v{BASE}
        v_sin_f32 v{SV}, v{BASE}
        v_cos_f32 v{CV}, v{BASE}
        v_sin_f32 v{SV+1}, v{CV+1}
        v_cos_f32 v{CV+1}, v{CV+1}
        v_add_f32 v{C2}, v{C2}, v{C2}""")
        for i in range(2, 8):
            for Vv in (CV, SV): a(f"v_fma_f32 v{Vv+i}, v{C2}, v{Vv+i-1}, -v{Vv+i-2}")
        for i in range(4):
            a(f"v_cvt_pk_f16_f32 v{D+i}, v{CV+2*i}, v{CV+2*i+1}")
            a(f"v_cvt_pk_f16_f32 v{D+8+i}, v{SV+2*i}, v{SV+2*i+1}")
        for i in range(4):
            a(f"v_xor_b32 v{D+4+i}, v{S}, v{D+i}")
            a(f"v_xor_b32 v{D+12+i}, v{S}, v{D+8+i}")
        return
    for ks in range(2):
        for h in range(2):
            trig_block(a, 4, 32*ks + 4*h, EPS, BASE, TH, True)
            for i in range(2):
                a(f"v_cvt_pk_f16_f32 v{D+4*ks+2*h+i}, v{TH+2*i}, v{TH+2*i+1}")
                a(f"v_cvt_pk_f16_f32 v{D+8+4*ks+2*h+i}, v{TH+4+2*i}, v{TH+4+2*i+1}")

def a_pre(a):
    a("; === phase A set-up: DFT-448 table tile (three-term recurrence), its column sums, DFT-64 fragments")
    EPS, BASE, TH, ONE, TO, CS = ST + 4, ST + 5, XF, XF + 8, XF + 12, AC1
    a(f"""s_and_b32 s25, s3, 1
    s_lshl_b32 s25, s25, 2
    v_and_b32 v{T0}, 3, v{N}
    v_add_u32 v{T0}, s25, v{T0}
    v_lshrrev_b32 v{T1}, 2, v{N}
    s_mul_i32 s26, s22, 28
    s_add_u32 s26, s26, 1
    v_mad_u32_u24 v{T1}, v{T1}, 7, v{T0}
    v_add_u32 v{T1}, s26, v{T1}
    v_cmp_ne_u32 vcc, 7, v{T0}
    s_lshr_b32 s25, s3, 1
    s_mul_i32 s25, s25, {fl(0.25)}
    v_cndmask_b32 v{T1}, 0, v{T1}, vcc
    v_cvt_f32_u32 v{T1}, v{T1}
    v_mul_f32 v{EPS}, {fl(1.0/448)}, v{T1}
    v_lshlrev_b32 v{T0}, 3, v{G}
    v_cvt_f32_u32 v{T2}, v{T0}
    v_fma_f32 v{BASE}, v{T2}, v{EPS}, s25
    s_mul_i32 s25, s3, {7*1024}
    s_add_u32 s25, s25, {LW}
    v_add_u32 v{T1}, s25, v{VL}""")
    for i in range(4): a(f"v_mov_b32 v{ONE+i}, 0x3f803f80")
    if OPT["cheb"]:
        C2 = ST + 3; V = WD
        a(f"v_cos_f32 v{C2}, v{EPS}")
        for j in range(7):
            for i in range(2):
                k = 32*j + i
                if k == 0: a(f"v_mov_b32 v{V}, v{BASE}")
                else: a(f"v_fmamk_f32 v{V+8*j+i}, v{EPS}, {fl(float(k))}, v{BASE}")
        a(f"v_add_f32 v{C2}, v{C2}, v{C2}")
        for j in range(7):
            for i in range(2): a(f"v_cos_f32 v{V+8*j+i}, v{V+8*j+i}")
        for i in range(2, 8):
            for j in range(7):
                a(f"v_fma_f32 v{V+8*j+i}, v{C2}, v{V+8*j+i-1}, -v{V+8*j+i-2}")
        for j in range(7):
            o = V + 56 + 4*j
            for i in range(4): a(f"v_cvt_pk_bf16_f32 v{o+i}, v{V+8*j+2*i}, v{V+8*j+2*i+1}")
            a(f"ds_write_b128 v{T1}, {v4(o)} offset:{j*1024}")
            a(f"v_mfma_f32_16x16x32_bf16 {v4(CS)}, {v4(o)}, {v4(ONE)}, {'0' if j == 0 else v4(CS)}")
    else:
      for j in range(7):
        trig_block(a, 8, 32*j, EPS, BASE, TH, False)
        o = TO + 4*(j & 1)
        for i in range(4): a(f"v_cvt_pk_bf16_f32 v{o+i}, v{TH+2*i}, v{TH+2*i+1}")
        a(f"ds_write_b128 v{T1}, {v4(o)} offset:{j*1024}")
        a(f"v_mfma_f32_16x16x32_bf16 {v4(CS)}, {v4(o)}, {v4(ONE)}, {'0' if j == 0 else v4(CS)}")
    a(f"""v_lshrrev_b32 v{ST}, 1, v{N}
    s_lshl_b32 s25, s3, 3
    v_add_u32 v{ST}, s25, v{ST}
    v_and_b32 v{ST+2}, 1, v{N}
    v_lshlrev_b32 v{VUS}, 16, v{ST}
    v_lshl_add_u32 v{VUS}, v{ST+2}, 6, v{VUS}
    v_lshl_add_u32 v{VUS}, v{G}, 4, v{VUS}
    s_lshl_b32 s25, s3, 6
    v_lshlrev_b32 v{T0}, 4, v{G}
    v_add_u32 v{VCS}, {LCS}, v{T0}
    v_add_u32 v{T1}, s25, v{VCS}
    v_lshlrev_b32 v{SG2+1}, 31, v{G}
    v_or_b32 v{SG2+1}, 1.0, v{SG2+1}
    v_xor_b32 v{SG2}, 0x80000000, v{SG2+1}
    v_pk_fma_f32 {v2(CS)}, {v2(CS)}, {v2(SG2)}, {v2(CS)}
    v_pk_fma_f32 {v2(CS+2)}, {v2(CS+2)}, {v2(SG2)}, {v2(CS+2)}
    ds_write_b128 v{T1}, {v4(CS)}""")
    if OPT["b1"] == 2:
        a(f"""v_mov_b32 v{T1}, {LTAG + 4}
        v_mov_b32 v{T2}, 1
        s_waitcnt lgkmcnt(0)
        s_mov_b64 exec, 1
        ds_add_u32 v{T1}, v{T2}
        s_mov_b64 exec, -1""")
        w64(a, WC)
        a(f"""Lwsync:
        ds_read_b32 v{T2}, v{T1}
        s_waitcnt lgkmcnt(0)
        v_readfirstlane_b32 s25, v{T2}
        s_cmp_lt_u32 s25, 4
        s_cbranch_scc1 Lwsync
        v_add_u32 v{T2}, {LW}, v{VL}""")
        for f in range(28): a(f"ds_read_b128 {v4(WD+4*f)}, v{T2} offset:{f*1024}")
        for i in range(8): a(f"v_xor_b32 v{WNS+i}, 0x80008000, v{WSN+i}")
    if OPT["b1"] == 1:
        a(f"v_add_u32 v{T2}, {LW}, v{VL}\ns_waitcnt lgkmcnt(0)\ns_barrier")
        for f in range(28): a(f"ds_read_b128 {v4(WD+4*f)}, v{T2} offset:{f*1024}")
    if OPT["pf"] == 4:
        a("s_waitcnt lgkmcnt(0)\ns_cmp_eq_u32 s20, 7\ns_cbranch_scc1 Lnpf4")
        prefetch(a, 4, XF, XF + 1)
        a("Lnpf4:")
    if not OPT["w64l"] and OPT["b1"] != 2:
        w64(a, WC)
        for i in range(8): a(f"v_xor_b32 v{WNS+i}, 0x80008000, v{WSN+i}")
    stamp(a, 10, True)
    a(f"v_add_u32 v{T2}, {LW}, v{VL}")
    a(f"""s_lshl_b32 s25, s3, 4
    v_add_u32 v{ST}, s25, v{N}
    v_mul_u32_u24 v{VXR}, {PH}, v{ST}
    v_add_u32 v{VXR}, v{T0}, v{VXR}
    v_mul_u32_u24 v{VFW}, {PF}, v{ST}
    v_lshl_add_u32 v{VFW}, v{G}, 3, v{VFW}
    v_add_u32 v{VFW}, {LF}, v{VFW}
    v_lshrrev_b32 v{ST}, 2, v{N}
    v_lshl_add_u32 v{ST}, v{G}, 3, v{ST}
    v_mul_u32_u24 v{VFR}, {PF}, v{ST}
    v_and_b32 v{ST}, 3, v{N}
    v_lshl_add_u32 v{VFR}, v{ST}, 3, v{VFR}
    v_add_u32 v{VFR}, {LF}, v{VFR}
    s_lshl_b32 s23, s21, 11
    s_lshl_b32 s24, s22, 8
    s_add_u32 s23, s23, s24""")
    for r in range(4):
        a(f"s_mov_b32 s{30+2*r}, {hex(((1<<r)|(1<<(20+r))) & 0xffffffff)}")
        a(f"s_mov_b32 s{31+2*r}, {hex(((1<<(8+r))|(1<<(28+r))) & 0xffffffff)}")
    a("s_mov_b64 s[24:25], 0xffff\ns_mov_b32 s38, 0\ns_cmp_eq_u32 s22, 7\ns_cselect_b32 s39, 0xffff0000, 0")

def a_main(a):
    a("; === phase A: DFT-448 GEMM (two K halves) + row statistics, LDS transpose, DFT-64, U stores")
    q = LdsQ(a)
    def rdx(j, hf): q.read(f"ds_read_b128 {v4(XF+4*j)}, v{VXR} offset:{64*j + hf*LXH}", XF+4*j)
    def rdw(j):
        for T in range(4): q.read(f"ds_read_b128 {v4(WD+4*(7*T+j))}, v{T2} offset:{(7*T+j)*1024}", WD+4*(7*T+j))
    if OPT["b1"]:
        for j in range(7): rdx(j, 0)
    else:
        for j in range(3): rdx(j, 0); rdw(j)
    BJ = OPT["barj"]
    Q, S, M, RS = ST, ST+1, ST+2, ST+4
    def mf(A, T, j, first): a(f"v_mfma_f32_16x16x32_bf16 {v4(A+4*T)}, {v4(WD+4*(7*T+j))}, {v4(XF+4*j)}, {'0' if first else v4(A+4*T)}")
    def gram(j, first): a(f"v_mfma_f32_16x16x32_bf16 {v4(GR)}, {v4(XF+4*j)}, {v4(XF+4*j)}, {'0' if first else v4(GR)}")
    for j in range(7):
        q.need(XF + 4*j)
        gram(j, j == 0)
        for T in range(4):
            q.need(WD+4*(7*T+j))
            mf(AC1, T, j, j == 0)
        if j + 3 < 7 and not OPT["b1"]: rdx(j + 3, 0); rdw(j + 3)
        if j == BJ:
            stamp(a, 11)
            a("s_barrier")
            for k in range(BJ + 1): rdx(k, 1)
        elif j > BJ: rdx(j, 1)
    CS = WD + 28
    for j in range(7):
        q.need(XF + 4*j)
        gram(j, False)
        mf(AC2, 1, j, j == 0)
    for T in range(4): q.read(f"ds_read_b128 {v4(CS+4*T)}, v{VCS} offset:{64*T}", CS+4*T)
    stats = [None, None, f"v_mov_b32 v{Q}, 0", f"v_mov_b32 v{V_EP}, {LTAG}"]
    stats += [f"v_cndmask_b32 v{Q}, v{Q}, v{GR+r}, s[{30+2*r}:{31+2*r}]" for r in range(4)]
    stats += [f"v_add_f32 v{S}, v{AC1+7}, v{AC2+7}", f"v_cndmask_b32 v{S}, 0, v{S}, s[24:25]", None, None,
              f"v_permlane32_swap_b32 v{Q}, v{S}", f"v_add_f32 v{Q}, v{Q}, v{S}", f"v_mov_b32 v{S}, v{Q}", None, None,
              f"v_permlane16_swap_b32 v{Q}, v{S}", f"v_add_f32 v{Q}, v{Q}, v{S}", f"v_mov_b32 v{S}, v{Q}", None, None,
              f"v_permlane32_swap_b32 v{Q}, v{S}", f"v_mul_f32 v{M}, {fl(-1.0/448)}, v{S}", f"v_mul_f32 v{Q}, {fl(1.0/448)}, v{Q}",
              f"v_fma_f32 v{Q}, -v{M}, v{M}, v{Q}", f"v_max_f32 v{Q}, 0, v{Q}"]
    rb = [f"v_cvt_pk_bf16_f32 v{Q}, v{Q}, v{Q}", f"v_and_b32 v{Q}, 0xffff0000, v{Q}"]
    if OPT["ln1emu"]:
        stats += rb + [f"v_add_f32 v{Q}, {fl(1e-5)}, v{Q}"] + rb + [f"v_sqrt_f32 v{Q}, v{Q}", None] + rb + [f"v_rcp_f32 v{RS}, v{Q}"]
    else:
        stats += [f"v_add_f32 v{Q}, {fl(1e-5)}, v{Q}", f"v_rsq_f32 v{RS}, v{Q}"]
    k = stats.index(f"v_max_f32 v{Q}, 0, v{Q}") + 1
    stats[k:k] = [f"v_cvt_pk_bf16_f32 v{V_DC}, v{M}, v{M}", f"v_and_b32 v{V_DC}, 0xffff0000, v{V_DC}",
                  f"v_sub_f32 v{V_DC}, v{V_DC}, v{M}", f"v_mul_f32 v{V_DC}, {fl(448.0)}, v{V_DC}"]
    stats += ["WAITCS", f"v_mul_f32 v{M}, v{M}, v{RS}", f"v_mul_f32 v{V_DC}, v{V_DC}, v{RS}"]
    stats += [f"v_mul_f32 v{CS+i}, v{CS+i}, v{M}" for i in range(16)]
    for j in range(7):
        for T in (0, 2, 3):
            mf(AC2, T, j, j == 0)
            for _ in range(2):
                if stats:
                    t = stats.pop(0)
                    if t == "WAITCS": q.need(CS, 16)
                    elif t: a(t)
    for p in range(2): a(f"v_pk_fma_f32 {v2(AC1+4+2*p)}, {v2(AC2+4+2*p)}, {v2(SG2)}, {v2(AC1+4+2*p)}")
    for t in stats:
        if t == "WAITCS": q.need(CS, 16)
        elif t: a(t)
    stamp(a, 3)
    for T in (0, 2, 3):
        for p in range(2):
            x = AC1 + 4*T + 2*p
            a(f"v_pk_fma_f32 {v2(x)}, {v2(AC2+4*T+2*p)}, {v2(SG2)}, {v2(x)}")
    for T in (1, 0, 2, 3):
        for p in range(2):
            x = AC1 + 4*T + 2*p
            a(f"v_pk_fma_f32 {v2(x)}, {v2(x)}, {v2(RS)}, {v2(CS+4*T+2*p)} op_sel_hi:[1,0,1]")
    a(f"v_cndmask_b32 v{AC1+14}, v{AC1+14}, v{V_DC}, s[38:39]")
    for T in (1, 0, 2, 3):
        for p in range(2):
            x = AC1 + 4*T + 2*p
            a(f"v_cvt_pk_f16_f32 v{AC2+2*T+p}, v{x}, v{x+1}")
        a(f"ds_write_b64 v{VFW}, {v2(AC2+2*T)} offset:{32*T}")
    if OPT["w64l"]: a(f"s_lshl_b32 s26, s3, 12\ns_add_u32 s26, s26, {LWT}\nv_add_u32 v{T1}, s26, v{VL}")
    stamp(a, 5, 5)
    a(f"s_waitcnt lgkmcnt(0)")
    stamp(a, 6, 5)
    a(f"s_barrier")
    stamp(a, 7, 5)
    if OPT["w64l"]:
        for i in (0, 2, 4, 1, 3, 5): a(f"ds_read_b128 {v4(WC+4*i)}, v{T1} offset:{(i % 4 if i < 4 else i - 2 + 2) * 0 + i * 0 + [0, 1024, 2048, 3072, 16384, 17408][i]}")
    FA = WD + 48
    fa = lambda T, ks: FA + (2*T + ks) * 4
    q = LdsQ(a)
    for T in range(2):
        for ks in range(2):
            for TT in (T, T + 2):
                for h in range(2):
                    q.read(f"ds_read_b64_tr_b16 {v2(fa(TT, ks)+2*h)}, v{VFR} offset:{(32*ks+4*h)*PF+32*TT}", fa(TT, ks)+2*h, 2)
    q.read(f"ds_read_b32 v{V_EP}, v{V_EP}", V_EP, 1)
    UR = AC1; UI = AC1 + 8; o = XF
    tagcalc = [f"v_add_u32 v{M}, 1, v{V_EP}", f"s_mov_b32 s98, {HASH}", f"v_mul_lo_u32 v{M}, v{M}, s98"]
    for T in range(2):
        for ks in range(2):
            fr = v4(fa(T, ks)); fi = v4(fa(T + 2, ks))
            q.need(fa(T, ks))
            if T == 0 and ks == 0: stamp(a, 8, 5)
            a(f"v_mfma_f32_16x16x32_f16 {v4(UR+4*T)}, {fr}, {v4(WC+4*ks)}, {'0' if ks == 0 else v4(UR+4*T)}")
            a(f"v_mfma_f32_16x16x32_f16 {v4(UI+4*T)}, {fr}, {v4(WNS+4*ks)}, {'0' if ks == 0 else v4(UI+4*T)}")
            q.need(fa(T + 2, ks))
            a(f"v_mfma_f32_16x16x32_f16 {v4(UR+4*T)}, {fi}, {v4(WSN+4*ks)}, {v4(UR+4*T)}")
            a(f"v_mfma_f32_16x16x32_f16 {v4(UI+4*T)}, {fi}, {v4(WC+4*ks)}, {v4(UI+4*T)}")
            if T == 1 and ks == 1:
                q.need(V_EP, 1)
                for t in tagcalc: a(t)
    stamp(a, 9, 5)
    for r in range(4): a(f"v_cvt_pk_f16_f32 v{o+r}, v{UR+r}, v{UI+r}")
    a(f"buffer_store_dwordx4 {v4(o)}, v{VUS}, s[12:15], s23 offen {SC}")
    stamp(a, 10, 5)
    a(f"v_add3_u32 v{Q}, v{o}, v{o+1}, v{o+2}")
    a(f"v_sub_u32 v{M}, v{M}, v{o+3}")
    a(f"v_sub_u32 v{M}, v{M}, v{Q}")
    for r in range(3): a(f"v_cvt_pk_f16_f32 v{o+4+r}, v{UR+4+r}, v{UI+4+r}")
    a(f"""v_add3_u32 v{Q}, v{o+4}, v{o+5}, v{o+6}
    v_sub_u32 v{o+7}, v{M}, v{Q}
    buffer_store_dwordx4 {v4(o+4)}, v{VUS}, s[12:15], s23 offen offset:128 {SC}""")

def b_ids(a):
    a(f"""s_and_b32 s92, s2, 7
    s_lshr_b32 s93, s2, 6
    s_lshl_b32 s93, s93, 3
    s_or_b32 s92, s92, s93
    s_bfe_u32 s93, s2, 0x10003
    s_bfe_u32 s96, s2, 0x20004
    s_sub_u32 s95, 64, s92
    s_cmp_eq_u32 s92, 0
    s_cselect_b32 s95, 32, s95
    s_cselect_b32 s94, 0, 1
    s_xor_b32 s94, s94, s93
    s_cmp_eq_u32 s93, 0
    s_cselect_b32 s95, s92, s95
    s_lshl_b32 s96, s96, 9
    s_add_u32 s95, s95, s96
    s_lshl_b32 s96, s20, 6
    s_add_u32 s96, s96, s95
    s_mul_i32 s97, s96, 896""")

def b_setup(a):
    srd(a, 12, 6, WS_SIZE)
    srd(a, 52, 48, XB)
    srd(a, 16, 40, 896)
    b_ids(a)

def b_loads(a):
    a(f"""s_mov_b32 s26, {WS_EPOCH}
    v_mov_b32 v{T0}, 0
    buffer_load_dword v{V_EP}, v{T0}, s[12:15], s26 offen {SC}
    buffer_load_dwordx4 {v4(B_WR)}, v{VL}, s[16:19], 0 offen
    buffer_load_dwordx4 {v4(B_XR)}, v{VL}, s[8:11], s97 offen""")

def pro(a):
    a("; === address / twiddle set-up for phases B and C")
    EPS, BASE, TH, AF, AD = P_EPS, P_BASE, P_TH, B_AF, B_AD
    a(f"""s_lshl_b32 s28, s92, 16
    s_lshl_b32 s29, s20, 8
    s_add_u32 s28, s28, s29
    s_add_u32 s29, s28, 4096
    s_add_u32 s30, s28, 32768
    s_add_u32 s31, s28, 36864
    v_lshlrev_b32 v{B_VU}, 13, v{G}
    v_lshl_add_u32 v{B_VU}, v{N}, 4, v{B_VU}
    v_and_b32 v{T0}, 7, v{N}
    v_lshlrev_b32 v{T0}, 6, v{T0}
    v_add_u32 v{T0}, s95, v{T0}
    v_cvt_f32_u32 v{T0}, v{T0}
    v_cmp_gt_u32 vcc, 8, v{N}
    v_mul_f32 v{EPS}, {fl(1.0/2048)}, v{T0}
    v_lshlrev_b32 v{T1}, 2, v{G}
    v_cndmask_b32 v{EPS}, -v{EPS}, v{EPS}, vcc
    v_cvt_f32_u32 v{T1}, v{T1}
    v_mul_f32 v{BASE}, v{T1}, v{EPS}""")
    for ks in range(2):
        trig_block(a, 4, 16*ks, EPS, BASE, TH, True)
        for i in range(4):
            a(f"v_cvt_pk_f16_f32 v{AF+4*ks+i}, v{TH+i}, v{TH+4+i}")
    a(f"""v_lshrrev_b32 v{T0}, 3, v{N}
    v_and_b32 v{T1}, 3, v{N}
    v_mul_u32_u24 v{T1}, 7, v{T1}
    v_lshl_add_u32 v{T1}, v{T0}, 2, v{T1}
    s_mul_i32 s32, s20, 28
    s_add_u32 s32, s32, 1
    v_add_u32 v{T1}, s32, v{T1}
    v_sub_u32 v{T2}, 448, v{T1}
    v_cmp_gt_u32 s[34:35], 2, v{G}
    v_mov_b32 v{TH}, s93
    v_mov_b32 v{TH+1}, s94
    v_cndmask_b32 v{T2}, v{T2}, v{T1}, s[34:35]
    v_cndmask_b32 v{TH}, v{TH+1}, v{TH}, s[34:35]
    v_bfe_u32 v{TH+1}, v{N}, 2, 1
    v_cmp_eq_u32 s[60:61], v{TH}, v{TH+1}
    v_and_b32 v{TH+2}, 1, v{G}
    v_mul_u32_u24 v{TH+2}, {4*PY}, v{TH+2}
    v_add_lshl_u32 v{AD}, v{TH+2}, v{T2}, 2
    v_mov_b32 v{TH+3}, -4
    v_cndmask_b32 v{TH+3}, v{TH+3}, 4, s[34:35]
    v_add_u32 v{AD+1}, v{AD}, v{TH+3}
    v_add_u32 v{AD+2}, v{AD+1}, v{TH+3}
    v_add_u32 v{AD+3}, v{AD+2}, v{TH+3}
    v_cmp_eq_u32 s[50:51], 0, v{T0}
    s_and_b64 s[50:51], s[50:51], s[60:61]
    v_mov_b32 v{TH}, 222
    v_cmp_eq_u32 s[62:63], v{TH}, v{T1}
    s_and_b64 s[62:63], s[62:63], s[60:61]
    s_andn2_b64 s[36:37], s[62:63], s[34:35]
    v_lshlrev_b32 v{TH+2}, 2, v{TH+2}
    v_add_u32 v{TH}, {448*4}, v{TH+2}
    v_cndmask_b32 v{AD+2}, v{AD+2}, v{TH}, s[36:37]
    v_add_u32 v{TH}, {449*4}, v{TH+2}
    v_add_u32 v{B_AD4}, {450*4}, v{TH+2}
    v_cndmask_b32 v{B_AD4}, v{B_AD4}, v{TH}, s[34:35]
    s_mul_i32 s33, s20, {PY*4}
    v_lshlrev_b32 v{B_VY}, 5, v{LANE}
    v_add_u32 v{B_VY}, s33, v{B_VY}
    s_add_u32 s33, s33, {448*4}
    v_mov_b32 v{B_AD4+1}, s33""")
    for i in range(8):
        a(f"v_alignbit_b32 v{B_A2+i}, v{AF+i}, v{AF+i}, 16")
        a(f"v_xor_b32 v{B_A2+i}, 0x8000, v{B_A2+i}")
    lim_regs(a, C_L, LANE, T0)
    a(f"""s_lshl_b32 s34, s20, 5
    s_add_u32 s34, s34, {LSEL}
    v_lshlrev_b32 v{T1}, 2, v{LANE}
    v_add_u32 v{C_SW}, s34, v{T1}
    v_add_u32 v{C_SR}, {LSEL}, v{T1}
    v_lshrrev_b32 v{C_KA}, 1, v0
    v_lshlrev_b32 v{C_KA}, 6, v{C_KA}
    v_and_b32 v{T0}, 1, v0
    v_lshl_add_u32 v{C_KA}, v{T0}, 4, v{C_KA}
    s_lshl_b32 s34, s20, 6
    s_add_u32 s34, s34, {LSE2}
    v_add_u32 v{C_FW}, s34, v{T1}
    v_lshrrev_b32 v{C_PF}, 3, v{LANE}
    v_and_b32 v{C_FY}, 7, v{LANE}
    v_lshlrev_b32 v{C_FR}, 6, v{C_PF}
    v_lshl_add_u32 v{C_FR}, v{C_FY}, 2, v{C_FR}
    v_add_u32 v{C_FR}, {LSE2}, v{C_FR}
    v_lshlrev_b32 v{C_FY}, 6, v{C_FY}
    v_add_u32 v{C_FY}, {LSE2 + 32}, v{C_FY}
    v_lshlrev_b32 v{C_PF}, 7, v{C_PF}
    s_cmp_ge_u32 s2, 224
    s_cselect_b32 s33, 1024, 0
    s_add_u32 s33, s33, {WS_ROW}
    s_lshl_b32 s27, s2, 6
    s_add_u32 s27, s27, {WS_KEYS}
    s_sub_u32 s32, 2047, s96
    v_lshrrev_b32 v{T0}, 1, v0
    v_and_b32 v{T1}, 7, v{T0}
    v_lshrrev_b32 v{T2}, 6, v{T0}
    v_lshl_or_b32 v{T1}, v{T2}, 3, v{T1}
    v_sub_u32 v{T2}, 64, v{T1}
    v_cmp_eq_u32 vcc, 0, v{T1}
    v_bfe_u32 v{TH}, v{T0}, 3, 1
    v_cndmask_b32 v{T2}, v{T2}, 32, vcc
    v_cmp_eq_u32 vcc, 0, v{TH}
    v_bfe_u32 v{TH}, v{T0}, 4, 2
    v_cndmask_b32 v{T1}, v{T2}, v{T1}, vcc
    v_lshl_add_u32 v{T1}, v{TH}, 9, v{T1}
    v_and_b32 v{T0}, 1, v0
    v_lshl_add_u32 v{T1}, v{T0}, 8, v{T1}
    v_sub_u32 v{C_IX}, 2047, v{T1}
    v_subrev_u32 v{C_IX+1}, 64, v{C_IX}
    v_subrev_u32 v{C_IX+2}, 128, v{C_IX}
    v_subrev_u32 v{C_IX+3}, 192, v{C_IX}""")
    gu_prep(a)

def pro2(a):
    XU, WU, S1, S2, S3 = B_XU, B_WU, P_TH, P_TH + 2, P_TH + 4
    unpack8(a, WU, B_WR)
    a(f"""v_pk_add_f32 {v2(S1)}, {v2(WU)}, {v2(WU+2)}
    v_pk_add_f32 {v2(S2)}, {v2(WU+4)}, {v2(WU+6)}
    v_pk_add_f32 {v2(S1)}, {v2(S1)}, {v2(S2)}
    v_add_f32 v{S1}, v{S1}, v{S1+1}
    v_mov_b32 v{S2}, 0
    v_mov_b32 v{S3}, 0""")
    reduce3(a, S1, S2, S3, T0, 58, 39, 39)
    unpack8(a, XU, B_XR)
    for k in (B_S1, B_S1+1, B_S2, B_S2+1, B_S3, B_S3+1): a(f"v_mov_b32 v{k}, 0")

def anyones(a, regs_, t):
    regs_ = list(regs_)
    a(f"v_max_u32 v{t}, v{regs_[0]}, v{regs_[1]}")
    rest = regs_[2:]
    while len(rest) >= 2:
        a(f"v_max3_u32 v{t}, v{t}, v{rest[0]}, v{rest[1]}"); rest = rest[2:]
    if rest: a(f"v_max_u32 v{t}, v{t}, v{rest[0]}")
    a(f"v_cmp_eq_u32 vcc, -1, v{t}")

def wave_sum(a, v, sd):
    for k in (8, 4, 2, 1):
        a(f"v_add_u32_dpp v{v}, v{v}, v{v} row_ror:{k} row_mask:0xf bank_mask:0xf")
    for i in range(4): a(f"v_readlane_b32 s{sd+i}, v{v}, {16*i}")
    a(f"s_add_u32 s{sd}, s{sd}, s{sd+1}\ns_add_u32 s{sd+2}, s{sd+2}, s{sd+3}\ns_add_u32 s{sd}, s{sd}, s{sd+2}")

def publish_row(a):
    a("; publish this row (ln2 and out values, each closed by a checksum word)")
    a(f"""s_lshl_b32 s34, s96, 11
    s_add_u32 s34, s34, {WS_ROW}
    v_mov_b32 v{T0}, 0
    v_mov_b32 v{T1}, 0
    v_writelane_b32 v{C_LN}, 0, 56
    v_writelane_b32 v{C_OUT}, 0, 56
    s_mov_b32 exec_hi, 0x01ffffff
    v_add3_u32 v{T0}, v{C_LN}, v{C_LN+1}, v{C_LN+2}
    v_add3_u32 v{T1}, v{C_OUT}, v{C_OUT+1}, v{C_OUT+2}
    v_add_u32 v{T0}, v{T0}, v{C_LN+3}
    v_add_u32 v{T1}, v{T1}, v{C_OUT+3}
    s_mov_b32 exec_hi, -1""")
    wave_sum(a, T0, 36)
    a(f"s_sub_u32 s35, s98, s36\nv_writelane_b32 v{C_LN}, s35, 56")
    wave_sum(a, T1, 36)
    a(f"""s_sub_u32 s35, s98, s36
    v_writelane_b32 v{C_OUT}, s35, 56
    s_mov_b32 exec_hi, 0x01ffffff
    buffer_store_dwordx4 {v4(C_LN)}, v{VL}, s[12:15], s34 offen {SC}
    buffer_store_dwordx4 {v4(C_OUT)}, v{VL}, s[12:15], s34 offen offset:1024 {SC}
    s_mov_b32 exec_hi, -1""")

def fetch_row_issue(a, dst):
    a(f"""v_readlane_b32 s34, v{C_K}, s20
    s_andn2_b32 s34, 0x7ff, s34
    s_lshl_b32 s34, s34, 11
    s_add_u32 s34, s34, s33
    s_mov_b32 exec_hi, 0x01ffffff
    buffer_load_dwordx4 {v4(dst)}, v{VL}, s[12:15], s34 offen {SC}
    s_mov_b32 exec_hi, -1""")

def fetch_row_finish(a, dst, ldsaddr):
    _lbl[0] += 1
    L = f"Lrow{_lbl[0]}"
    a(f"""s_mul_i32 s29, s20, {PX}
    s_add_u32 s29, s29, {LXS}
    v_add_u32 v{ldsaddr}, s29, v{VL}
    s_mov_b32 s57, {SPIN}
    {L}:
    v_mov_b32 v{T0}, 0
    s_mov_b32 exec_hi, 0x01ffffff
    s_waitcnt vmcnt(0)
    ds_write_b128 v{ldsaddr}, {v4(dst)}
    v_add3_u32 v{T0}, v{dst}, v{dst+1}, v{dst+2}
    v_add_u32 v{T0}, v{T0}, v{dst+3}
    s_mov_b32 exec_hi, -1""")
    wave_sum(a, T0, 36)
    a(f"""s_cmp_eq_u32 s36, s98
    s_cbranch_scc1 {L}d
    s_mov_b32 exec_hi, 0x01ffffff
    s_waitcnt lgkmcnt(0)
    buffer_load_dwordx4 {v4(dst)}, v{VL}, s[12:15], s34 offen {SC}
    s_mov_b32 exec_hi, -1
    s_sub_u32 s57, s57, 1
    s_cbranch_scc0 {L}""")
    timeout_note(a, _lbl[0])
    a(f"{L}d:")

def gu_prep(a):
    srd(a, 16, 42, 448*3584)
    a(f"""v_mul_u32_u24 v{V_GU}, 3584, v0
    s_and_b32 s100, s2, 7
    s_mul_i32 s100, s100, 28
    s_lshr_b32 s101, s2, 3
    s_add_u32 s100, s100, s101
    s_lshl_b32 s26, s100, 4
    s_lshl_b32 s101, s20, 10
    s_add_u32 s101, s101, {LWT}
    s_and_b32 s45, s45, 0xffff
    s_cmp_ge_u32 s2, 224
    s_cselect_b32 s24, 7, s20""")

def gu_dma(a):
    a(f"""s_cmp_eq_u32 s24, 7
    s_cbranch_scc1 Lngu
    s_mov_b32 m0, s101
    s_add_u32 s101, s101, 8192
    buffer_load_dwordx4 v{V_GU}, s[16:19], s26 offen lds
    s_mov_b32 s16, s44
    s_mov_b32 m0, s101
    s_mov_b32 s17, s45
    buffer_load_dwordx4 v{V_GU}, s[16:19], s26 offen lds
    Lngu:""")

def wd_dma(a, j0, j1, L):
    if j0 == j1: return
    a(f"""s_cmp_lt_u32 s2, 224
    s_cbranch_scc1 {L}
    s_and_b32 s50, s2, 7
    s_cmp_eq_u32 s50, 7
    s_cbranch_scc1 {L}
    s_lshl_b32 s50, s50, 7
    s_bfe_u32 s51, s2, 0x20003
    s_lshl_b32 s51, s51, 5
    s_add_u32 s51, s51, s50""")
    srd(a, 16, 46, 1792*896)
    a(f"""v_lshrrev_b32 v{T1}, 1, v{LANE}
    v_mul_u32_u24 v{T1}, 896, v{T1}
    v_and_b32 v{T2}, 1, v{LANE}
    v_lshl_add_u32 v{T1}, v{T2}, 4, v{T1}
    s_mul_i32 s23, s20, {224*896}
    s_add_u32 s23, s23, s51
    s_add_u32 s23, s23, {j0*32*896}
    s_mul_i32 s25, s20, 7168
    s_add_u32 s25, s25, {LWT + j0*1024}""")
    for j in range(j0, j1):
        a(f"s_mov_b32 m0, s25")
        a(f"s_add_u32 s25, s25, 1024")
        a(f"buffer_load_dwordx4 v{T1}, s[16:19], s23 offen lds")
        a(f"s_add_u32 s23, s23, {32*896}")
    a(f"{L}:")

def b_main(a):
    a("; === phase B: fetch + validate U, 32-term DFT stage, h / LN2 / router key")
    R, AF, ACC, XU, WU, AD, TH = B_R, B_AF, B_ACC, B_XU, B_WU, B_AD, B_TH
    S1, S2, S3 = B_S1, B_S2, B_S3
    if OPT["sl_u0"]: a(f"s_sleep {OPT['sl_u0']}")
    def uld():
        for ks in range(2):
            for i in range(4):
                a(f"buffer_load_dwordx4 {v4(R+16*ks+4*i)}, v{B_VU}, s[12:15], s{28+2*ks+(i>>1)} offen offset:{2048*(i&1)} {SC}")
    a(f"s_mov_b32 s57, {SPIN}")
    uld()
    a("s_waitcnt vmcnt(8)")
    pro2(a)
    def swaps(ks):
        b = R + 16*ks
        for i in range(4):
            for j in range(i+1, 4):
                a(f"v_swap_b32 v{b+4*i+j}, v{b+4*j+i}")
    def mm(ks, dpp):
        for j in range(4):
            c = "0" if ks == 0 else v4(ACC+4*j)
            a(f"v_mfma_f32_16x16x32_f16 {v4(ACC+4*j)}, {v4(AF+4*ks)}, {v4(R+16*ks+4*j)}, {c}")
            if dpp: a(f"v_add_u32_dpp v{T0}, v{T0}, v{T0} row_ror:{8 >> j} row_mask:0xf bank_mask:0xf")
        a(f"v_mfma_f32_16x16x32_f16 {v4(TH)}, {v4(B_A2+4*ks)}, {v4(R+16*ks+8)}, {'0' if ks == 0 else v4(TH)}")
    if not OPT["part"]:
        a("s_branch Lupw\nLupoll:")
        uld()
        a("Lupw:")
    for ks in range(2):
        a(f"s_waitcnt vmcnt({4-4*ks})")
        b = R + 16*ks
        for i in range(8):
            if ks == 0 and i == 0: a(f"v_add_u32 v{T0}, v{b}, v{b+1}")
            else: a(f"v_add3_u32 v{T0}, v{T0}, v{b+2*i}, v{b+2*i+1}")
        swaps(ks)
        mm(ks, ks == 1)
    a(f"""v_cmp_ne_u32 vcc, s99, v{T0}
    s_cmp_eq_u64 vcc, 0""")
    if OPT["part"]:
        a("s_cbranch_scc0 Lupart")
        def part():
            C4 = B_TH
            a("Lupart:\ns_lshl_b32 s34, s98, 4")
            swaps(0); swaps(1)
            a("Lupchk:")
            for i in range(4):
                a(f"v_add3_u32 v{C4+i}, v{R+4*i}, v{R+4*i+1}, v{R+4*i+2}")
            for i in range(4):
                a(f"v_add3_u32 v{C4+i}, v{C4+i}, v{R+4*i+3}, v{R+16+4*i}")
            for i in range(4):
                a(f"v_add3_u32 v{C4+i}, v{C4+i}, v{R+16+4*i+1}, v{R+16+4*i+2}")
            for i in range(4):
                a(f"v_add_u32 v{C4+i}, v{C4+i}, v{R+16+4*i+3}")
            for k in (8, 4, 2, 1):
                for i in range(4):
                    a(f"v_add_u32_dpp v{C4+i}, v{C4+i}, v{C4+i} row_ror:{k} row_mask:0xf bank_mask:0xf")
            MK = ["s[36:37]", "s[38:39]", "s[24:25]", "vcc"]
            for i in range(4): a(f"v_cmp_ne_u32 {MK[i]}, s34, v{C4+i}")
            a(f"""s_or_b64 s[26:27], s[36:37], s[38:39]""".replace("s[26:27]", "s[100:101]"))
            a(f"""s_or_b64 s[100:101], s[100:101], s[24:25]
            s_or_b64 s[100:101], s[100:101], vcc
            s_cbranch_scc0 Lupgo""")
            if OPT["sl_r"]: a(f"s_sleep {OPT['sl_r']}")
            for i in range(4):
                a(f"s_cmp_eq_u64 {MK[i]}, 0\ns_cbranch_scc1 Lupok{i}")
                for ks in range(2):
                    a(f"buffer_load_dwordx4 {v4(R+16*ks+4*i)}, v{B_VU}, s[12:15], s{28+2*ks+(i>>1)} offen offset:{2048*(i&1)} {SC}")
                a(f"Lupok{i}:")
            a(f"""s_waitcnt vmcnt(0)
            s_sub_u32 s57, s57, 1
            s_cbranch_scc0 Lupchk
            Lupgo:""")
            for ks in range(2):
                swaps(ks); mm(ks, False)
            a("s_nop 7\ns_branch Lupolld")
        TAIL.append(part)
    else:
        a(f"""s_cbranch_scc1 Lupolld
        s_sub_u32 s57, s57, 1
        s_cbranch_scc0 Lupoll""")
        timeout_note(a, 9)
    a("Lupolld:")
    stamp(a, 6)
    if OPT["stamps"] == 3: a(f"s_sub_u32 s{64+2*11}, {SPIN+1}, s57")
    for j in range(4):
        if j in (0, 3): a(f"s_mov_b64 exec, {['s[60:61]', '', '', 's[50:51]'][j]}")
        for r in (0, 2):
            a(f"ds_write2st64_b32 v{AD+j}, v{ACC+4*j+r}, v{ACC+4*j+r+1} offset0:{r*PY//64} offset1:{(r+1)*PY//64}")
    a("s_cmp_lg_u32 s20, 7\ns_cbranch_scc1 Lndc\ns_mov_b64 exec, s[62:63]")
    for r in (0, 2):
        a(f"ds_write2st64_b32 v{B_AD4}, v{TH+r}, v{TH+r+1} offset0:{r*PY//64} offset1:{(r+1)*PY//64}")
    a("Lndc:\ns_mov_b64 exec, -1")
    gu_dma(a)
    wd_dma(a, 0, OPT['wdsplit'], 'Lnwd0')
    a("""s_mov_b32 exec_hi, 0x00ffffff
    s_waitcnt lgkmcnt(0)
    s_barrier""")
    H = R
    a(f"ds_read_b128 {v4(TH)}, v{B_AD4+1}\nds_read_b128 {v4(H)}, v{B_VY} offset:{LY}\nds_read_b128 {v4(H+4)}, v{B_VY} offset:{LY+16}")
    a("s_mov_b64 s[36:37], 1\ns_mov_b64 s[38:39], 0x10000001")
    for hf in range(2):
        a(f"s_waitcnt lgkmcnt({1-hf})")
        if hf == 0:
            a(f"""v_add_f32 v{TH+1}, v{TH+1}, v{TH+2}
            v_add_f32 v{TH}, v{TH}, v{H}
            v_cndmask_b32 v{TH}, v{TH}, v{TH+1}, s[36:37]
            v_mul_f32 v{TH}, 0.5, v{TH}
            v_cndmask_b32 v{H}, v{H}, v{TH}, s[38:39]""")
        for p in range(2):
            x = 4*hf + 2*p
            a(f"v_pk_add_f32 {v2(H+x)}, {v2(H+x)}, {v2(XU+x)}")
        for p in range(2):
            x = 4*hf + 2*p
            a(f"v_pk_add_f32 {v2(S1)}, {v2(S1)}, {v2(H+x)}")
            a(f"v_pk_fma_f32 {v2(S2)}, {v2(H+x)}, {v2(H+x)}, {v2(S2)}")
            a(f"v_pk_fma_f32 {v2(S3)}, {v2(H+x)}, {v2(WU+x)}, {v2(S3)}")
    a(f"""s_mov_b32 exec_hi, -1
    v_add_f32 v{S1}, v{S1}, v{S1+1}
    v_add_f32 v{S2}, v{S2}, v{S2+1}
    v_add_f32 v{S3}, v{S3}, v{S3+1}""")
    reduce3(a, S1, S2, S3, T0, 37, 38, 39)
    M, V, SD, RS, C0, KEY = TH, TH+1, TH+2, TH+4, TH+6, C_KEY
    a(f"""v_mov_b32 v{V}, {fl(1.0/448)}
    v_mul_f32 v{M}, s37, v{V}
    v_mul_f32 v{V}, s38, v{V}
    v_mov_b32 v{KEY}, s39
    v_fma_f32 v{V}, -v{M}, v{M}, v{V}
    v_fma_f32 v{KEY}, -v{M}, s58, v{KEY}
    v_max_f32 v{SD}, 0, v{V}
    v_add_f32 v{V}, {fl(1e-5)}, v{SD}""")
    a(f"""v_rsq_f32 v{RS}, v{V}
    s_lshl_b32 s34, s20, 2
    v_mov_b32 v{T2}, s34
    v_mul_f32 v{KEY}, v{KEY}, v{RS}
    v_cvt_pk_bf16_f32 v{KEY}, v{KEY}, v{KEY}
    v_ashrrev_i32 v{T0}, 31, v{KEY}
    v_or_b32 v{T0}, 0x80000000, v{T0}
    v_xor_b32 v{KEY}, v{KEY}, v{T0}
    v_and_b32 v{KEY}, 0xffff0000, v{KEY}
    v_or_b32 v{KEY}, s32, v{KEY}
    ds_write_b32 v{T2}, v{KEY} offset:{LKEY}
    v_mov_b32 v{C_STK}, 0xffff
    v_lshlrev_b32 v{T1}, 2, v{LANE}
    v_mov_b32 v{T2}, {LKEY}
    s_waitcnt lgkmcnt(0)
    s_barrier
    s_cmp_lg_u32 s20, 0
    s_cbranch_scc1 Lnokey
    s_mov_b64 exec, 0xff
    ds_read_b32 v{T0}, v{T1} offset:{LKEY}
    s_waitcnt lgkmcnt(0)
    v_bfi_b32 v{T0}, v{C_STK}, s59, v{T0}
    buffer_store_dword v{T0}, v{T1}, s[12:15], s27 offen {SC}
    s_mov_b64 exec, -1
    Lnokey:
    ds_read_b128 {v4(ACC)}, v{T2}
    ds_read_b128 {v4(ACC+4)}, v{T2} offset:16""")
    stamp(a, 7)
    sd_chain(a, SD, SD)
    a(f"v_rcp_f32 v{RS}, v{SD}\ns_nop 0\nv_mul_f32 v{C0}, -v{M}, v{RS}")
    for p in range(4):
        a(f"v_pk_fma_f32 {v2(XU+2*p)}, {v2(H+2*p)}, {v2(RS)}, {v2(C0)} op_sel_hi:[1,0,0]")
    for p in range(4):
        a(f"v_pk_add_f32 {v2(H+2*p)}, {v2(H+2*p)}, {v2(XU+2*p)}")
    for p in range(4):
        a(f"v_cvt_pk_bf16_f32 v{C_LN+p}, v{XU+2*p}, v{XU+2*p+1}")
        a(f"v_cvt_pk_bf16_f32 v{C_OUT+p}, v{H+2*p}, v{H+2*p+1}")
    a(f"""s_waitcnt lgkmcnt(0)
    v_max3_u32 v{T0}, v{ACC}, v{ACC+1}, v{ACC+2}
    v_max3_u32 v{T1}, v{ACC+3}, v{ACC+4}, v{ACC+5}
    v_max3_u32 v{T0}, v{T0}, v{ACC+6}, v{ACC+7}
    v_max_u32 v{T0}, v{T0}, v{T1}
    v_cmp_eq_u32 s[60:61], v{T0}, v{KEY}
    s_cmp_eq_u64 s[60:61], 0
    s_cbranch_scc1 Lnoeager""")
    publish_row(a)
    a("Lnoeager:")

QP = {1: "quad_perm:[1,0,3,2]", 2: "quad_perm:[2,3,0,1]", 3: "quad_perm:[3,2,1,0]", 7: "row_half_mirror"}
class Net:
    def __init__(s, a, x, t, fill): s.a = a; s.x = x; s.t = t; s.fill = list(fill)
    def f(s, n=1):
        for _ in range(n):
            if s.fill: s.a(s.fill.pop(0))
    def ce(s, m):
        a, x, t = s.a, s.x, s.t
        s.f()
        if m == 4:
            a(f"v_max_u32_dpp v{t}, v{x}, v{x} row_shl:4 row_mask:0xf bank_mask:0x5")
            a(f"v_min_u32_dpp v{t}, v{x}, v{x} row_shr:4 row_mask:0xf bank_mask:0xa")
            s.x, s.t = t, x
        else:
            a(f"v_mov_b32_dpp v{t}, v{x} {QP[m]} row_mask:0xf bank_mask:0xf")
            a(f"v_med3_u32 v{x}, v{x}, v{t}, v{C_L[1 << (m.bit_length()-1)]}")
    def merge(s, last_clean=True):
        a = s.a
        s.f()
        a(f"v_max_u32_dpp v{s.x}, v{s.x}, v{s.x} row_mirror row_mask:0xf bank_mask:0xf")
        for m in (4, 2, 1): s.ce(m)
        for sw in ("v_permlane16_swap_b32", "v_permlane32_swap_b32"):
            a(f"v_mov_b32 v{s.t}, v{s.x}")
            s.f()
            a(f"{sw} v{s.x}, v{s.t}")
            s.f()
            a(f"v_max_u32_dpp v{s.x}, v{s.t}, v{s.x} row_half_mirror row_mask:0xf bank_mask:0xf")
            if last_clean or "16" in sw:
                for m in (4, 2, 1): s.ce(m)
        s.f(99)

def fast_select(a):
    K, X, Y, P, Q = C_K, C_X, C_Y, C_TMP, C_TMP + 1
    a(f"""v_max_u32 v{P}, v{K}, v{K+1}
    v_max_u32 v{Q}, v{K+2}, v{K+3}
    v_max_u32 v{X}, v{P}, v{Q}""")
    fill = [f"v_min_u32 v{Y}, v{P}, v{Q}", f"v_min_u32 v{P}, v{K}, v{K+1}", f"v_min_u32 v{Q}, v{K+2}, v{K+3}",
            f"v_max3_u32 v{Y}, v{Y}, v{P}, v{Q}"]
    fill += [f"v_max_u32_dpp v{Y}, v{Y}, v{Y} row_ror:{k} row_mask:0xf bank_mask:0xf" for k in (8, 4, 2, 1)]
    fill += [f"v_mov_b32 v{P}, v{Y}", f"v_permlane16_swap_b32 v{Y}, v{P}", f"v_max_u32 v{Y}, v{Y}, v{P}",
             f"v_mov_b32 v{P}, v{Y}", f"v_permlane32_swap_b32 v{Y}, v{P}", f"v_max_u32 v{Y}, v{Y}, v{P}",
             "s_mov_b64 vcc, 0x100"]
    n = Net(a, X, C_TMP + 2, fill)
    for m in (1, 3, 1, 7, 2, 1): n.ce(m)
    n.merge()
    a(f"""s_mov_b64 exec, 0x1ff
    v_cndmask_b32 v{P}, v{n.x}, v{Y}, vcc
    ds_write_b32 v{C_FW}, v{P}""")
    if OPT["rowpf"]:
        m8 = (1 << OPT["rowpf"]) - 1; m32 = m8 * 0x01010101
        a(f"""s_mov_b32 exec_lo, {hex(m32)}
        s_mov_b32 exec_hi, {hex(m32)}
        v_bfi_b32 v{Q}, v{n.x}, 0, v{C_TMP+3}
        v_lshl_add_u32 v{Q}, v{Q}, 11, v{C_PF}
        buffer_load_dword v{JUNK}, v{Q}, s[12:15], s33 offen {SC}""")
    a(f"""s_mov_b64 exec, -1
    s_waitcnt lgkmcnt(0)
    s_barrier
    ds_read_b32 v{X}, v{C_FR}
    ds_read_b32 v{Y}, v{C_FY}
    s_waitcnt lgkmcnt(0)""")
    fill = [f"v_max_u32_dpp v{Y}, v{Y}, v{Y} {QP[m]} row_mask:0xf bank_mask:0xf" for m in (1, 2, 7)]
    n = Net(a, X, C_TMP + 2, fill)
    n.merge(last_clean=False)
    a(f"""v_cmp_gt_u32 vcc, v{Y}, v{n.x}
    s_cmp_eq_u64 vcc, 0
    s_cbranch_scc0 Lfullsel
    v_mov_b32 v{K}, v{n.x}
    Lseldone:""")

def c_select(a):
    a("; === top-8 selection over all router keys")
    K = C_K
    a(f"s_mov_b32 s34, {WS_KEYS}\nv_mov_b32 v{C_TMP+3}, 0x7ff")
    def chk():
        a(f"v_xor_b32 v{T0}, v{K}, v{K+1}")
        a(f"v_xor_b32 v{T1}, v{K+2}, v{K+3}")
        a(f"v_xor_b32 v{T2}, s59, v{K}")
        a(f"v_xor_b32 v{C_X}, s59, v{K+2}")
        a(f"v_or3_b32 v{T0}, v{T0}, v{T1}, v{T2}")
        for i in range(4): a(f"v_bfi_b32 v{K+i}, v{C_STK}, v{C_IX+i}, v{K+i}")
        a(f"v_or_b32 v{T0}, v{T0}, v{C_X}")
        a(f"v_cmp_ne_u16 vcc, 0, v{T0}")
    poll(a, lambda: a(f"buffer_load_dwordx4 {v4(K)}, v{C_KA}, s[12:15], s34 offen {SC}"), chk, pre=OPT["sl_k"])
    stamp(a, 8)
    fast_select(a)
    stamp(a, 9)
    a(f"""v_cmp_eq_u32 vcc, v{K}, v{C_KEY}
    s_and_b64 s[62:63], vcc, s[60:61]
    s_cmp_lg_u64 s[62:63], vcc
    s_cbranch_scc0 Lsel_pub""")
    publish_row(a)
    a("Lsel_pub:")
    fetch_row_issue(a, 84)
    a(f"""s_cmp_eq_u64 vcc, 0
    s_cbranch_scc0 Lsel_done
    s_mov_b32 exec_hi, 0x00ffffff
    buffer_store_dwordx4 {v4(C_OUT)}, v{VL}, s[52:55], s97 offen {['', 'sc1', 'nt', 'sc0 sc1'][OPT['ost']]}
    s_mov_b32 exec_hi, -1
    Lsel_done:""")

def c1(a):
    a("; === gate / up projection for this workgroup's 8 FFN columns")
    XR = 84; XF_ = 168; ACC = 52; XU = 60; WF = 88
    a(f"""s_cmp_lg_u32 s20, 0
    s_cbranch_scc1 Lc1_now
    v_lshrrev_b32 v{T0}, 2, v{N}
    v_lshl_add_u32 v{T0}, v{G}, 3, v{T0}
    v_lshlrev_b32 v{T0}, 4, v{T0}
    v_and_b32 v{T1}, 1, v{N}
    v_lshl_add_u32 v{T0}, v{T1}, 3, v{T0}
    v_bfe_u32 v{T1}, v{N}, 1, 1
    v_lshl_add_u32 v{T0}, v{T1}, 13, v{T0}
    v_add_u32 v{T0}, {LWT}, v{T0}""")
    for j in range(14):
        for h in range(2):
            a(f"ds_read_b64_tr_b16 {v2(WF+4*j+2*h)}, v{T0} offset:{(32*j+4*h)*16}")
    a(f"""v_and_b32 v{XU+4}, 7, v{N}
    v_mul_u32_u24 v{XU+4}, {PX}, v{XU+4}
    v_lshl_add_u32 v{XU+4}, v{G}, 4, v{XU+4}
    v_lshlrev_b32 v{XU+5}, 4, v{N}
    v_lshl_add_u32 v{XU+5}, v{G}, 3, v{XU+5}
    s_lshl_b32 s22, s100, 7
    s_add_u32 s22, s22, {WS_ACT}
    Lc1_now:""")
    fetch_row_finish(a, XR, T2)
    a(f"""s_waitcnt lgkmcnt(0)
    s_barrier
    s_cmp_lg_u32 s20, 0
    s_cbranch_scc1 Lc1_epoch""")
    stamp(a, 10)
    for j in range(14):
        a(f"ds_read_b128 {v4(XF_+4*j)}, v{XU+4} offset:{LXS+64*j}")
    for j in range(14):
        a(f"s_waitcnt lgkmcnt({13-j})")
        A = ACC + 4*(j & 1)
        a(f"v_mfma_f32_16x16x32_bf16 {v4(A)}, {v4(WF+4*j)}, {v4(XF_+4*j)}, {'0' if j < 2 else v4(A)}")
    for p in range(2):
        a(f"v_pk_add_f32 {v2(ACC+2*p)}, {v2(ACC+2*p)}, {v2(ACC+4+2*p)}")
    for p in range(2): a(f"v_cvt_pk_bf16_f32 v{ACC+4+p}, v{ACC+2*p}, v{ACC+2*p+1}")
    for p in range(2): a(f"v_mov_b32 v{ACC+6+p}, v{ACC+4+p}")
    for p in range(2): a(f"v_permlane32_swap_b32 v{ACC+4+p}, v{ACC+6+p}")
    for p in range(2):
        a(f"v_lshlrev_b32 v{ACC+2*p}, 16, v{ACC+4+p}")
        a(f"v_and_b32 v{ACC+2*p+1}, 0xffff0000, v{ACC+4+p}")
    for r in range(4): a(f"v_mul_f32 v{XU+r}, {fl(-1.4426950408889634)}, v{ACC+r}")
    for r in range(4): a(f"v_exp_f32 v{XU+r}, v{XU+r}")
    for p in range(2):
        a(f"v_lshlrev_b32 v{XR+2*p}, 16, v{ACC+6+p}")
        a(f"v_and_b32 v{XR+2*p+1}, 0xffff0000, v{ACC+6+p}")
    for r in range(4): a(f"v_add_f32 v{XU+r}, 1.0, v{XU+r}")
    for r in range(4): a(f"v_rcp_f32 v{XU+r}, v{XU+r}")
    for r in range(4): a(f"v_mul_f32 v{ACC+r}, v{ACC+r}, v{XU+r}")
    for p in range(2): a(f"v_cvt_pk_bf16_f32 v{ACC+4+p}, v{ACC+2*p}, v{ACC+2*p+1}")
    for p in range(2):
        a(f"v_lshlrev_b32 v{ACC+2*p}, 16, v{ACC+4+p}")
        a(f"v_and_b32 v{ACC+2*p+1}, 0xffff0000, v{ACC+4+p}")
    for p in range(2): a(f"v_pk_mul_f32 {v2(ACC+2*p)}, {v2(ACC+2*p)}, {v2(XR+2*p)}")
    for p in range(2): a(f"v_cvt_pk_bf16_f32 v{XR+p}, v{ACC+2*p}, v{ACC+2*p+1}")
    for p in range(2): a(f"v_min_u32 v{XR+p}, -2, v{XR+p}")
    a(f"""s_mov_b32 exec_lo, 0x00ff00ff
    s_mov_b32 exec_hi, 0
    buffer_store_dwordx2 {v2(XR)}, v{XU+5}, s[12:15], s22 offen {SC}
    s_branch Lend
    Lc1_epoch:
    s_lshl_b32 s29, s2, 3
    s_add_u32 s29, s29, s20
    s_cmp_lg_u32 s29, 1
    s_cbranch_scc1 Lend
    s_mov_b64 exec, 1
    v_mov_b32 v{T0}, s56
    s_mov_b32 s29, {WS_EPOCH}
    buffer_store_dword v{T0}, v{VL}, s[12:15], s29 offen {SC}
    s_branch Lend""")

def c2(a):
    a("; === down projection for 16 output columns, routed rows written")
    K = C_K
    OA = 8; OR = 10; SG = 12; VA = 13; VO = 14; VW = 15; WF = 88; AF = 116; ACC = 52; RD = 168
    a(f"""s_mul_i32 s24, s20, 7168
    s_add_u32 s24, s24, {LWT}
    v_lshrrev_b32 v{T0}, 2, v{N}
    v_lshl_add_u32 v{T0}, v{G}, 3, v{T0}
    v_lshlrev_b32 v{T0}, 5, v{T0}
    v_and_b32 v{T1}, 3, v{N}
    v_lshl_add_u32 v{T0}, v{T1}, 3, v{T0}
    v_add_u32 v{VW}, s24, v{T0}""")
    for j in range(7):
        for h in range(2):
            a(f"ds_read_b64_tr_b16 {v2(WF+4*j+2*h)}, v{VW} offset:{(32*j+4*h)*32}")
    a(f"""v_and_b32 v{T1}, 7, v{N}
    v_mul_u32_u24 v{VO}, {PX}, v{T1}
    v_lshl_add_u32 v{VO}, v{G}, 3, v{VO}
    v_add_u32 v{VO}, s51, v{VO}
    v_lshlrev_b32 v{VA}, 4, v{T1}
    v_lshl_add_u32 v{VA}, v{G}, 7, v{VA}
    s_mul_i32 s25, s20, {7*512}
    s_add_u32 s25, s25, {WS_ACT}
    v_and_b32 v{OA}, 0x7ff, v{K}
    v_sub_u32 v{OA}, 2047, v{OA}
    v_mul_u32_u24 v{OA}, 896, v{OA}
    v_lshl_add_u32 v{OA}, v{G}, 3, v{OA}
    v_ashrrev_i32 v{T2}, 31, v{K}
    v_not_b32 v{T2}, v{T2}
    v_or_b32 v{T2}, 0x80000000, v{T2}
    v_xor_b32 v{K+1}, v{K}, v{T2}
    v_and_b32 v{K+1}, 0xffff0000, v{K+1}""")
    sigmoid_mul(a, SG, K+1, "1.0", T2)
    rbf(a, SG, SG)
    a(f"""v_lshlrev_b32 v{T1}, 4, v0
    v_add_u32 v{T1}, {LRED}, v{T1}""")
    def lds():
        for j in range(7):
            a(f"buffer_load_dwordx4 {v4(AF+4*j)}, v{VA}, s[12:15], s25 offen offset:{512*j} {SC}")
    if OPT["c2re"]:
        if OPT["sl_a"]: a(f"s_sleep {OPT['sl_a']}")
        lds()
        fetch_row_finish(a, 84, T2)
        anyones(a, range(AF, AF+28), T0)
        a("s_cmp_eq_u64 vcc, 0\ns_cbranch_scc1 Lactok")
        poll(a, lds, lambda: anyones(a, range(AF, AF+28), T0))
        a("Lactok:")
    else:
        fetch_row_finish(a, 84, T2)
        poll(a, lds, lambda: anyones(a, range(AF, AF+28), T0), pre=OPT["sl_a"])
    stamp(a, 10)
    a("s_waitcnt lgkmcnt(0)")
    for j in range(7):
        A = ACC + 4*(j & 1)
        a(f"v_mfma_f32_16x16x32_bf16 {v4(A)}, {v4(WF+4*j)}, {v4(AF+4*j)}, {'0' if j < 2 else v4(A)}")
    for p in range(2):
        a(f"v_pk_add_f32 {v2(ACC+2*p)}, {v2(ACC+2*p)}, {v2(ACC+4+2*p)}")
    a(f"""ds_write_b128 v{T1}, {v4(ACC)}
    s_waitcnt lgkmcnt(0)
    s_barrier
    s_cmp_lg_u32 s20, 0
    s_cbranch_scc1 Lend
    ds_read_b64 {v2(OR)}, v{VO} offset:{LXS}""")
    for w in range(1, 8):
        a(f"ds_read_b128 {v4(RD+4*w)}, v{T1} offset:{1024*w}")
    a("s_waitcnt lgkmcnt(7)")
    for i in range(2):
        a(f"v_lshlrev_b32 v{RD+2*i}, 16, v{OR+i}")
        a(f"v_and_b32 v{RD+2*i+1}, 0xffff0000, v{OR+i}")
    for w in range(1, 8):
        a(f"s_waitcnt lgkmcnt({7-w})")
        for p in range(2):
            a(f"v_pk_add_f32 {v2(ACC+2*p)}, {v2(ACC+2*p)}, {v2(RD+4*w+2*p)}")
    for rnd in range(2):
        for p in range(2): a(f"v_cvt_pk_bf16_f32 v{ACC+4+p}, v{ACC+2*p}, v{ACC+2*p+1}")
        for p in range(2):
            a(f"v_lshlrev_b32 v{ACC+2*p}, 16, v{ACC+4+p}")
            a(f"v_and_b32 v{ACC+2*p+1}, 0xffff0000, v{ACC+4+p}")
        for p in range(2):
            if rnd == 0: a(f"v_pk_mul_f32 {v2(ACC+2*p)}, {v2(ACC+2*p)}, {v2(SG)} op_sel_hi:[1,0]")
            else: a(f"v_pk_add_f32 {v2(ACC+2*p)}, {v2(ACC+2*p)}, {v2(RD+2*p)}")
    for p in range(2): a(f"v_cvt_pk_bf16_f32 v{OR+p}, v{ACC+2*p}, v{ACC+2*p+1}")
    a(f"""s_mov_b32 exec_lo, 0x00ff00ff
    s_mov_b32 exec_hi, 0x00ff00ff
    buffer_store_dwordx2 {v2(OR)}, v{OA}, s[52:55], s51 offen {['', 'sc1', 'nt', 'sc0 sc1'][OPT['ost']]}""")

def clears(a):
    a(f"""v_mov_b32 v{JUNK+2}, -1
    v_lshlrev_b32 v{T1}, 2, v{LANE}
    s_lshl_b32 s24, s2, 7
    s_add_u32 s24, s24, {WS_ACT}
    s_mov_b32 exec_hi, 0
    buffer_store_dword v{JUNK+2}, v{T1}, s[12:15], s24 offen {SC}
    s_mov_b32 exec_lo, 1
    s_lshl_b32 s23, s96, 11
    s_add_u32 s23, s23, {WS_ROW}
    buffer_load_dword v{JUNK}, v{VL}, s[52:55], s97 offen
    buffer_load_dword v{JUNK+1}, v{VL}, s[12:15], s23 offen
    s_mov_b64 exec, -1""")

def prefetch(a, w0=1, T0=T0, T1=T1):
    a("; L2 warm-up of the FFN weights (one word per line, values unused)")
    a(f"""s_and_b32 s24, s2, 7
    s_lshr_b32 s25, s2, 3
    s_mul_i32 s26, s25, {14*3584}
    s_mov_b32 s18, {448*3584}
    s_mov_b32 s19, 0x00020000
    s_cmp_eq_u32 s20, {w0+2}
    s_cbranch_scc1 Lpf_d
    v_lshrrev_b32 v{T0}, 2, v{LANE}
    v_mul_u32_u24 v{T0}, 3584, v{T0}
    v_and_b32 v{T1}, 3, v{LANE}
    v_lshl_add_u32 v{T0}, v{T1}, 7, v{T0}
    s_mul_i32 s24, s24, 448
    s_cmp_eq_u32 s20, {w0}
    s_cselect_b32 s16, s42, s44
    s_cselect_b32 s17, s43, s45
    s_branch Lpf_go
    Lpf_d:
    v_mul_u32_u24 v{T0}, 896, v{LANE}
    s_lshl_b32 s24, s24, 7
    s_mov_b32 s16, s46
    s_mov_b32 s17, s47
    Lpf_go:
    s_and_b32 s17, s17, 0xffff
    s_add_u32 s26, s26, s24
    s_mov_b32 exec_hi, 0x00ffffff
    buffer_load_dword v{JUNK}, v{T0}, s[16:19], s26 offen
    s_mov_b32 exec_hi, -1""")

def kernel(a):
    if OPT["stamps"]:
        for k in range(NST): a(f"s_mov_b32 s{64+2*k}, 0")
    stamp(a, 0)
    a(f"""v_readfirstlane_b32 s20, v0
    s_cmp_ge_u32 s2, 256
    s_cbranch_scc1 Lexit
    s_cmp_lt_u32 s20, 256
    s_cbranch_scc1 Lloader""")
    if True: a(f"v_mov_b32 v{T1}, {LTAG + 4}\nv_mov_b32 v{T2}, 0\nds_write_b32 v{T1}, v{T2}")
    a(f"""
    s_getpc_b64 s[30:31]
    Lpc:
    v_and_b32 v{T2}, 255, v0
    v_lshlrev_b32 v{JUNK}, 7, v{T2}
    v_mov_b32 v{JUNK+1}, s31
    v_add_co_u32 v{JUNK}, vcc, s30, v{JUNK}
    v_addc_co_u32 v{JUNK+1}, vcc, 0, v{JUNK+1}, vcc
    v_cmp_gt_u32 vcc, (Lexit-Lpc)/128+1, v{T2}
    s_and_saveexec_b64 s[30:31], vcc
    s_cbranch_execz Lpfd
    global_load_dword v{JUNK+2}, v[{JUNK}:{JUNK+1}], off
    Lpfd:
    s_waitcnt lgkmcnt(0)
    s_barrier
    s_branch Lcompute
    Lloader:
    s_load_dwordx2 s[8:9], s[0:1], 0
    s_lshr_b32 s20, s20, 6
    v_and_b32 v{LANE}, 63, v0
    v_lshlrev_b32 v{VL}, 4, v{LANE}
    s_and_b32 s21, s2, 31
    s_lshr_b32 s22, s2, 5
    s_mov_b32 s10, {XB}
    s_mov_b32 s11, 0x00020000
    v_cmp_lt_u32 vcc, 29, v{LANE}
    s_lshl_b32 s23, s20, 9
    s_add_u32 s23, s23, s21
    s_mul_i32 s23, s23, 896
    s_mul_i32 s24, s20, {16*PH}
    v_add_u32 v{T1}, {32*896 - 480}, v{VL}
    s_mov_b32 s25, {'s22' if OPT['rot'] else '0'}
    v_cndmask_b32 v{T1}, v{VL}, v{T1}, vcc
    s_mov_b32 exec_lo, 0xcfffffff
    s_mov_b32 exec_hi, 0x03ffffff
    s_mov_b32 s28, 0""")
    a("s_barrier")
    a("s_waitcnt lgkmcnt(0)")
    stamp(a, 3, True)
    if OPT["dmau"]:
        a("Ldma:")
        for i in range(8):
            a(f"""s_mul_i32 s26, s25, {2*PH}
            s_mul_i32 s27, s25, {64*896}
            s_add_u32 m0, s26, s24
            s_add_u32 s27, s27, s23
            s_add_u32 s25, s25, 1
            buffer_load_dwordx4 v{T1}, s[8:11], s27 offen lds
            s_and_b32 s25, s25, 7""")
        a(f"""s_add_u32 s24, s24, {LXH}
        s_add_u32 s23, s23, 448
        s_add_u32 s28, s28, 1
        s_cmp_lt_u32 s28, 2""")
        if OPT["b1"] == 1: a("s_cbranch_scc0 Ldmad\ns_barrier\ns_branch Ldma\nLdmad:")
        else: a("s_cbranch_scc1 Ldma")
    else:
        a(f"""Ldma:
        s_mul_i32 s26, s25, {2*PH}
        s_mul_i32 s27, s25, {64*896}
        s_add_u32 s26, s26, s24
        s_add_u32 s27, s27, s23
        s_mov_b32 m0, s26
        s_add_u32 s25, s25, 1
        buffer_load_dwordx4 v{T1}, s[8:11], s27 offen lds
        s_and_b32 s25, s25, 7
        s_add_u32 s28, s28, 1
        s_cmp_lg_u32 s28, 8
        s_cbranch_scc1 Ldma1
        s_add_u32 s24, s24, {LXH}
        s_add_u32 s23, s23, 448
        Ldma1:
        s_cmp_lt_u32 s28, 16
        s_cbranch_scc1 Ldma""")
    def ltail():
        a(f"""Lltail:
        s_mov_b64 exec, -1
        s_load_dwordx2 s[6:7], s[0:1], 96
        s_load_dwordx8 s[40:47], s[0:1], 48
        s_load_dwordx2 s[48:49], s[0:1], 80
        v_and_b32 v{N}, 15, v0
        v_bfe_u32 v{G}, v0, 4, 2""")
        stamp(a, 6, True)
        early = OPT["e2a"]
        if early:
            a("s_waitcnt vmcnt(8)")
            stamp(a, 1)
            a("s_barrier")
        a("s_waitcnt lgkmcnt(0)")
        b_setup(a)
        b_loads(a)
        a("s_cmp_lg_u32 s20, 0\ns_cbranch_scc1 Lw123a")
        clears(a)
        if not early:
            a("s_waitcnt vmcnt(14)")
            stamp(a, 1)
            a("s_barrier")
        a("s_waitcnt vmcnt(6)")
        stamp(a, 2)
        a(f"""s_barrier
        v_mov_b32 v{T0}, {LTAG}
        s_waitcnt vmcnt(5)
        ds_write_b32 v{T0}, v{V_EP}
        s_branch Lprol
        Lw123a:""")
        if OPT["pf"] == 3: prefetch(a)
        if not early:
            a(f"s_waitcnt vmcnt(12)")
            stamp(a, 1)
            a("s_barrier")
        a(f"s_waitcnt vmcnt({4 if OPT['pf'] == 3 else 3})")
        stamp(a, 2)
        a(f"s_barrier")
        if OPT["pf"] == 1: prefetch(a)
        a(f"s_waitcnt vmcnt({2 if OPT['pf'] == 4 else 3})")
        a("Lprol:")
        if OPT["wdh"]: wd_dma(a, 0, 7, "Lnwd2")
        if OPT["w64l"]:
            a("s_mov_b32 s3, s20")
            w64(a, AC1)
            for i in range(8): a(f"v_xor_b32 v{AC1+16+i}, 0x80008000, v{AC1+8+i}")
            a(f"s_lshl_b32 s26, s3, 12\ns_add_u32 s26, s26, {LWT}\nv_add_u32 v{T1}, s26, v{VL}")
            for i in range(6): a(f"ds_write_b128 v{T1}, {v4(AC1+4*i)} offset:{[0, 1024, 2048, 3072, 16384, 17408][i]}")
        if not OPT["prolate"]: pro(a)
        stamp(a, 3)
        def hint_store():
            a(f"""s_cmp_lg_u32 s20, 0
            s_cbranch_scc1 Lnh
            s_lshl_b32 s34, s2, 6
            s_add_u32 s34, s34, {WS_HINT}
            v_add_u32 v{T0}, 1, v{V_EP}
            s_mov_b64 exec, 1
            buffer_store_dword v{T0}, v{VL}, s[12:15], s34 offen {SC}
            s_mov_b64 exec, -1
            Lnh:""")
        if OPT["hint"] == 2: hint_store()
        a("s_waitcnt lgkmcnt(0)\ns_barrier")
        if OPT["hint"] == 1: hint_store()
        a("s_branch Lpro1" if OPT["prolate"] else "s_branch Lpro2")
    if OPT["layout"]: a("s_branch Lltail")
    else: ltail()
    a("Lcompute:")
    a(f"""s_mov_b64 exec, -1
    s_load_dwordx2 s[8:9], s[0:1], 0
    s_lshr_b32 s20, s20, 6
    v_and_b32 v{LANE}, 63, v0
    v_lshlrev_b32 v{VL}, 4, v{LANE}
    s_and_b32 s21, s2, 31
    s_lshr_b32 s22, s2, 5
    s_mov_b32 s10, {XB}
    s_mov_b32 s11, 0x00020000
    s_mov_b64 exec, -1
    s_load_dwordx2 s[6:7], s[0:1], 96
    s_load_dwordx8 s[40:47], s[0:1], 48
    s_load_dwordx2 s[48:49], s[0:1], 80
    v_and_b32 v{N}, 15, v0
    v_bfe_u32 v{G}, v0, 4, 2
    s_and_b32 s3, s20, 3""")
    if OPT["prio"]: a("s_setprio 3")
    stamp(a, 9, True)
    a_pre(a)
    stamp(a, 11, True)
    a("s_waitcnt lgkmcnt(0)")
    b_setup(a)
    stamp(a, 1)
    a("s_barrier")
    stamp(a, 2)
    a_main(a)
    stamp(a, 4)
    if OPT["prio"]: a("s_setprio 0")
    a(f"buffer_load_dwordx4 {v4(B_WR)}, v{VL}, s[16:19], 0 offen")
    a(f"buffer_load_dwordx4 {v4(B_XR)}, v{VL}, s[8:11], s97 offen")
    a("Lpro1:")
    pro(a)
    a("Lpro2:")
    a(f"""v_readfirstlane_b32 s56, v{V_EP}
    s_add_u32 s56, s56, 1
    s_mul_i32 s98, s56, {HASH}
    s_lshl_b32 s99, s98, 6
    s_and_b32 s59, s56, 0xffff""")
    if OPT["hint"]:
        a(f"""v_and_b32 v{T1}, 31, v{LANE}
        v_lshlrev_b32 v{T1}, 6, v{T1}
        s_lshl_b32 s34, s20, 11
        s_add_u32 s34, s34, {WS_HINT}
        s_mov_b32 s57, 4000""")
        if OPT["sl_h0"]: a(f"s_sleep {OPT['sl_h0']}")
        a(f"""Lhint:
        buffer_load_dword v{T0}, v{T1}, s[12:15], s34 offen {SC}
        s_waitcnt vmcnt(0)
        v_cmp_ne_u32 vcc, s56, v{T0}
        s_cmp_eq_u64 vcc, 0
        s_cbranch_scc1 Lhintd""")
        if OPT["sl_h"]: a(f"s_sleep {OPT['sl_h']}")
        a(f"""s_sub_u32 s57, s57, 1
        s_cbranch_scc0 Lhint
        Lhintd:""")
    else:
        a("s_barrier")
    stamp(a, 5)
    b_main(a)
    if OPT["wdh"]: a("s_cmp_lt_u32 s20, 4\ns_cbranch_scc1 Lnwd1")
    wd_dma(a, OPT['wdsplit'], 7, 'Lnwd1')
    c_select(a)
    a("s_cmp_ge_u32 s2, 224\ns_cbranch_scc1 Lc2")
    c1(a)
    a("Lc2:\ns_and_b32 s50, s2, 7\ns_cmp_eq_u32 s50, 7\ns_cbranch_scc1 Lend\ns_lshl_b32 s50, s50, 7\ns_bfe_u32 s51, s2, 0x20003\ns_lshl_b32 s51, s51, 5\ns_add_u32 s51, s51, s50")
    c2(a)
    a("Lend:")
    dump_stamps(a)
    if OPT["layout"]:
        a("s_endpgm")
        ltail()
        for f in TAIL: f()
    a("Lexit:\ns_endpgm\nLfullsel:")
    select8(a, C_K, C_TMP, C_L, C_SW, C_SR)
    a("s_branch Lseldone")

DOC = '''; ---------------------------------------------------------------------------------------------
;      into LDS, waves 4-7 build the cos/sin tables, run the DFT-448 for 28 frequencies (raw bf16 x,
;      sums), then the DFT-64 over s2, and write U (f16) to d_ws.
;      28 workgroups do the down projection for 16 output columns and write the routed rows.
; ---------------------------------------------------------------------------------------------
'''
NAME = "sequential_preLN__spectral_fnet__moe_arch_mod__prompt_kernel"
def build():
    a = Asm()
    kernel(a)
    body = a.finish()
    if OPT["align"]: body = align_pass(body)
    return gen.HDR + f"""; @launch grid=(256,1,1) block=(512,1,1) lds={LDS_TOTAL}
{DOC}.amdgcn_target "amdgcn-amd-amdhsa--gfx950"
.text
.globl {NAME}
.p2align 8
.type {NAME},@function
{NAME}:
""" + body + f""".section .rodata,"a"
.p2align 6
.amdhsa_kernel {NAME}
  .amdhsa_next_free_vgpr {NVGPR}
  .amdhsa_next_free_sgpr 102
  .amdhsa_accum_offset {NVGPR}
  .amdhsa_group_segment_fixed_size 0
  .amdhsa_kernarg_size 104
  .amdhsa_user_sgpr_count 2
  .amdhsa_user_sgpr_kernarg_segment_ptr 1
  .amdhsa_system_sgpr_workgroup_id_x 1
.end_amdhsa_kernel
"""

if __name__ == "__main__":
    for x in list(sys.argv[1:]):
        if x.startswith("--"):
            k, _, v = x[2:].partition("=")
            assert k in OPT, k
            OPT[k] = int(v) if v else 1
            sys.argv.remove(x)
    open(sys.argv[1], "w").write(build())
```

```python
import sys
from asmlib import Asm, fl, align_pass
import gen
from gen import srd, v4, v2, rbf, sd_chain, reduce3, unpack8, lim_regs, select8, sigmoid_mul

WS_KEYS = 0x200000
WS_HINT = 0x204000
WS_EPOCH = 0x208000
WS_ACT = 0x210000
WS_STAMP = 0x3c0000
WS_ROW = 0x400000
WS_SIZE = 0x800000
XB = 1835008
PH = 480; PX = 928; PF = 136; PY = 512
LXH = 64 * PH
LW = 2 * LXH; LCS = LW + 28 * 1024; LTAG = LCS + 256; LF = LCS + 272; LWT = LF + 64 * PF; LDS_TOTAL = LWT + 57344
LY = 0
LSEL = 16384; LSE2 = 16640; LKEY = 17152; LXS = 17408; LRED = 24832
SPIN = 4000000
SC = "sc1"
HASH = "0x9e3779b1"
OPT = dict(stamps=0, cyc=0, align=0, sl_u0=6, sl_k=15, sl_a=4, rowpf=2, barj=5, dbgto=0, ost=0, c2re=1, rot=1, pf=3, wdsplit=0, w64l=0, layout=1, e2a=1, prolate=1, amp=-1, ampw=0, ampb=224, prio=1, wdh=0, cheb=1, ln1emu=1, dmau=1, b1=0, part=0, sl_r=4, hint=0, sl_h=4, sl_h0=0, trim=1)
NST = 14

def stamp(a, k, early=False):
    if OPT["stamps"] == 5:
        if early != 5 and k not in (0, 3, 4, NST - 1): return
    elif OPT["stamps"] == 4:
        if early == 5 or (not early and k not in (0, 1, 2, NST - 1)): return
    elif early: return
    if OPT["stamps"] == 2 and k not in (0, NST - 1): return
    if OPT["stamps"]: a(f"{'s_memtime' if OPT['cyc'] else 's_memrealtime'} s[{64+2*k}:{65+2*k}]")
def dump_stamps(a):
    if OPT["amp"] >= 0:
        k = OPT["amp"]
        a(f"s_memrealtime s[{64+2*(NST-2)}:{65+2*(NST-2)}]")
        a(f"""s_cmp_lg_u32 s2, {OPT['ampb']}
        s_cbranch_scc1 Lampd
        s_cmp_lg_u32 s20, {OPT['ampw']}
        s_cbranch_scc1 Lampd
        s_waitcnt lgkmcnt(0)
        s_sub_u32 s60, s{64+2*k}, s64
        s_mul_i32 s60, s60, 9
        s_add_u32 s60, s60, s{64+2*(NST-2)}
        Lamp:
        s_memrealtime s[62:63]
        s_waitcnt lgkmcnt(0)
        s_sub_u32 s61, s62, s60
        s_cmp_lt_i32 s61, 0
        s_cbranch_scc1 Lamp
        Lampd:""")
        return
    if not OPT["stamps"]: return
    stamp(a, NST - 2)
    a("s_waitcnt vmcnt(0)")
    stamp(a, NST - 1)
    a("s_mov_b64 exec, 1\ns_waitcnt lgkmcnt(0)")
    a(f"s_lshl_b32 s60, s2, 3\ns_add_u32 s60, s60, s20\ns_lshl_b32 s60, s60, 6\ns_add_u32 s60, s60, {WS_STAMP}\nv_mov_b32 v1, 0")
    for k in range(NST):
        a(f"v_mov_b32 v2, s{64+2*k}\nbuffer_store_dword v2, v1, s[12:15], s60 offen offset:{4*k}")

_lbl = [0]
TAIL = []
def timeout_note(a, ident):
    if not OPT["dbgto"]: return
    a(f"""s_lshl_b32 s100, s2, 8
    s_add_u32 s100, s100, s20
    s_add_u32 s100, s100, {ident << 24}
    v_mov_b32 v{JUNK+3}, s100
    s_mov_b32 s100, {0x3f0000 + 4*ident}
    s_mov_b64 exec, 1
    buffer_store_dword v{JUNK+3}, v{VL}, s[12:15], s100 offen
    v_mov_b32 v{JUNK+3}, s36
    buffer_store_dword v{JUNK+3}, v{VL}, s[12:15], s100 offen offset:64
    v_mov_b32 v{JUNK+3}, s98
    buffer_store_dword v{JUNK+3}, v{VL}, s[12:15], s100 offen offset:128
    v_mov_b32 v{JUNK+3}, s34
    buffer_store_dword v{JUNK+3}, v{VL}, s[12:15], s100 offen offset:192
    s_mov_b64 exec, -1""")
def poll(a, loads, check, pre=0):
    _lbl[0] += 1
    L = f"Lpoll{_lbl[0]}"
    if pre: a(f"s_sleep {pre}")
    a(f"s_mov_b32 s57, {SPIN}\n{L}:")
    loads()
    a("s_waitcnt vmcnt(0)")
    check()
    a(f"""s_cmp_eq_u64 vcc, 0
    s_cbranch_scc1 {L}d
    s_sub_u32 s57, s57, 1
    s_cbranch_scc0 {L}""")
    timeout_note(a, _lbl[0])
    a(f"{L}d:")

class LdsQ:
    def __init__(s, a): s.a = a; s.q = []
    def read(s, text, b, n=4):
        s.a(text); s.q.append(set(range(b, b + n)))
    def need(s, b, n=4):
        rs = set(range(b, b + n)); last = -1
        for i, d in enumerate(s.q):
            if d & rs: last = i
        if last >= 0:
            s.a(f"s_waitcnt lgkmcnt({len(s.q) - 1 - last})")
            s.q = s.q[last+1:]

LANE, N, G, T0, T1, T2, VL = 1, 2, 3, 4, 5, 6, 7
B_XR = 8; B_WR = 12; V_EP = 16; VFW = 17; VFR = 18; VXR = 19; VCS = 20; VUS = 21; ST = 22
WC = 28; WSN = 36; WNS = 44
AC1 = 52; AC2 = 68; GR = 84; XF = 88; WD = 116
JUNK = 228; SG2 = 232; V_GU = 234; V_DC = 235; B_A2 = 236; B_AD4 = 244; NVGPR = 248
B_AF = 28; B_AD = 36; B_VY = 40; B_VU = 41; C_L = {1: 42, 2: 43, 4: 44}; C_SW = 45; C_SR = 46; C_KA = 47
C_FW = 48; C_FR = 49; C_FY = 50; C_PF = 51
B_R = 116; B_ACC = 52; B_XU = 68; B_WU = 76; B_S1, B_S2, B_S3 = 88, 90, 92; B_TH = 96; P_TH = 104; P_EPS = 112; P_BASE = 113
C_K = 148; C_TMP = 152; C_KEY = 156; C_X = 157; C_Y = 158; C_OUT = 160; C_LN = 164; C_IX = 224; C_STK = 159

def trig_block(a, n, k0, eps, base, th, want_sin):
    for i in range(n):
        k = k0 + i
        if k == 0: a(f"v_mov_b32 v{th+i}, v{base}")
        else: a(f"v_fmamk_f32 v{th+i}, v{eps}, {fl(float(k))}, v{base}")
    for i in range(n):
        if want_sin: a(f"v_sin_f32 v{th+n+i}, v{th+i}")
        a(f"v_cos_f32 v{th+i}, v{th+i}")

def w64(a, D):
    EPS, BASE, TH, S = ST + 4, ST + 5, XF, ST
    a(f"""v_lshrrev_b32 v{S}, 1, v{N}
    s_lshl_b32 s25, s3, 3
    v_add_u32 v{S}, s25, v{S}
    v_sub_u32 v{S+1}, 64, v{S}
    v_cmp_eq_u32 vcc, 0, v{S}
    v_and_b32 v{S+2}, 1, v{N}
    v_cndmask_b32 v{S+1}, v{S+1}, 32, vcc
    v_cmp_eq_u32 vcc, 0, v{S+2}
    v_lshlrev_b32 v{S+2}, 3, v{G}
    v_cndmask_b32 v{S+1}, v{S+1}, v{S}, vcc
    v_cvt_f32_u32 v{S+2}, v{S+2}
    v_and_b32 v{S}, 1, v{S+1}
    v_cvt_f32_u32 v{S+1}, v{S+1}
    v_mul_u32_u24 v{S}, 0x8000, v{S}
    v_mul_f32 v{EPS}, {fl(1.0/64)}, v{S+1}
    v_lshl_or_b32 v{S}, v{S}, 16, v{S}
    v_mul_f32 v{BASE}, v{S+2}, v{EPS}""")
    if OPT["cheb"]:
        C2 = S + 3; CV = XF; SV = XF + 8
        a(f"""v_cos_f32 v{C2}, v{EPS}
        v_add_f32 v{CV+1}, v{EPS}, v{BASE}
        v_sin_f32 v{SV}, v{BASE}
        v_cos_f32 v{CV}, v{BASE}
        v_sin_f32 v{SV+1}, v{CV+1}
        v_cos_f32 v{CV+1}, v{CV+1}
        v_add_f32 v{C2}, v{C2}, v{C2}""")
        for i in range(2, 8):
            for Vv in (CV, SV): a(f"v_fma_f32 v{Vv+i}, v{C2}, v{Vv+i-1}, -v{Vv+i-2}")
        for i in range(4):
            a(f"v_cvt_pk_f16_f32 v{D+i}, v{CV+2*i}, v{CV+2*i+1}")
            a(f"v_cvt_pk_f16_f32 v{D+8+i}, v{SV+2*i}, v{SV+2*i+1}")
        for i in range(4):
            a(f"v_xor_b32 v{D+4+i}, v{S}, v{D+i}")
            a(f"v_xor_b32 v{D+12+i}, v{S}, v{D+8+i}")
        return
    for ks in range(2):
        for h in range(2):
            trig_block(a, 4, 32*ks + 4*h, EPS, BASE, TH, True)
            for i in range(2):
                a(f"v_cvt_pk_f16_f32 v{D+4*ks+2*h+i}, v{TH+2*i}, v{TH+2*i+1}")
                a(f"v_cvt_pk_f16_f32 v{D+8+4*ks+2*h+i}, v{TH+4+2*i}, v{TH+4+2*i+1}")

def a_pre(a):
    a("; === phase A set-up: DFT-448 table tile (three-term recurrence), its column sums, DFT-64 fragments")
    EPS, BASE, TH, ONE, TO, CS = ST + 4, ST + 5, XF, XF + 8, XF + 12, AC1
    a(f"""s_and_b32 s25, s3, 1
    s_lshl_b32 s25, s25, 2
    v_and_b32 v{T0}, 3, v{N}
    v_add_u32 v{T0}, s25, v{T0}
    v_lshrrev_b32 v{T1}, 2, v{N}
    s_mul_i32 s26, s22, 28
    s_add_u32 s26, s26, 1
    v_mad_u32_u24 v{T1}, v{T1}, 7, v{T0}
    v_add_u32 v{T1}, s26, v{T1}
    v_cmp_ne_u32 vcc, 7, v{T0}
    s_lshr_b32 s25, s3, 1
    s_mul_i32 s25, s25, {fl(0.25)}
    v_cndmask_b32 v{T1}, 0, v{T1}, vcc
    v_cvt_f32_u32 v{T1}, v{T1}
    v_mul_f32 v{EPS}, {fl(1.0/448)}, v{T1}
    v_lshlrev_b32 v{T0}, 3, v{G}
    v_cvt_f32_u32 v{T2}, v{T0}
    v_fma_f32 v{BASE}, v{T2}, v{EPS}, s25
    s_mul_i32 s25, s3, {7*1024}
    s_add_u32 s25, s25, {LW}
    v_add_u32 v{T1}, s25, v{VL}""")
    for i in range(4): a(f"v_mov_b32 v{ONE+i}, 0x3f803f80")
    if OPT["cheb"]:
        C2 = ST + 3; V = WD
        a(f"v_cos_f32 v{C2}, v{EPS}")
        for j in range(7):
            for i in range(2):
                k = 32*j + i
                if k == 0: a(f"v_mov_b32 v{V}, v{BASE}")
                else: a(f"v_fmamk_f32 v{V+8*j+i}, v{EPS}, {fl(float(k))}, v{BASE}")
        a(f"v_add_f32 v{C2}, v{C2}, v{C2}")
        for j in range(7):
            for i in range(2): a(f"v_cos_f32 v{V+8*j+i}, v{V+8*j+i}")
        for i in range(2, 8):
            for j in range(7):
                a(f"v_fma_f32 v{V+8*j+i}, v{C2}, v{V+8*j+i-1}, -v{V+8*j+i-2}")
        for j in range(7):
            o = V + 56 + 4*j
            for i in range(4): a(f"v_cvt_pk_bf16_f32 v{o+i}, v{V+8*j+2*i}, v{V+8*j+2*i+1}")
            a(f"ds_write_b128 v{T1}, {v4(o)} offset:{j*1024}")
            a(f"v_mfma_f32_16x16x32_bf16 {v4(CS)}, {v4(o)}, {v4(ONE)}, {'0' if j == 0 else v4(CS)}")
    else:
      for j in range(7):
        trig_block(a, 8, 32*j, EPS, BASE, TH, False)
        o = TO + 4*(j & 1)
        for i in range(4): a(f"v_cvt_pk_bf16_f32 v{o+i}, v{TH+2*i}, v{TH+2*i+1}")
        a(f"ds_write_b128 v{T1}, {v4(o)} offset:{j*1024}")
        a(f"v_mfma_f32_16x16x32_bf16 {v4(CS)}, {v4(o)}, {v4(ONE)}, {'0' if j == 0 else v4(CS)}")
    a(f"""v_lshrrev_b32 v{ST}, 1, v{N}
    s_lshl_b32 s25, s3, 3
    v_add_u32 v{ST}, s25, v{ST}
    v_and_b32 v{ST+2}, 1, v{N}
    v_lshlrev_b32 v{VUS}, 16, v{ST}
    v_lshl_add_u32 v{VUS}, v{ST+2}, 6, v{VUS}
    v_lshl_add_u32 v{VUS}, v{G}, 4, v{VUS}
    s_lshl_b32 s25, s3, 6
    v_lshlrev_b32 v{T0}, 4, v{G}
    v_add_u32 v{VCS}, {LCS}, v{T0}
    v_add_u32 v{T1}, s25, v{VCS}
    v_lshlrev_b32 v{SG2+1}, 31, v{G}
    v_or_b32 v{SG2+1}, 1.0, v{SG2+1}
    v_xor_b32 v{SG2}, 0x80000000, v{SG2+1}
    v_pk_fma_f32 {v2(CS)}, {v2(CS)}, {v2(SG2)}, {v2(CS)}
    v_pk_fma_f32 {v2(CS+2)}, {v2(CS+2)}, {v2(SG2)}, {v2(CS+2)}
    ds_write_b128 v{T1}, {v4(CS)}""")
    if OPT["b1"]:
        a(f"v_add_u32 v{T2}, {LW}, v{VL}\ns_waitcnt lgkmcnt(0)\ns_barrier")
        for f in range(28): a(f"ds_read_b128 {v4(WD+4*f)}, v{T2} offset:{f*1024}")
    if OPT["pf"] == 4:
        a("s_waitcnt lgkmcnt(0)\ns_cmp_eq_u32 s20, 7\ns_cbranch_scc1 Lnpf4")
        prefetch(a, 4, XF, XF + 1)
        a("Lnpf4:")
    if not OPT["w64l"]:
        w64(a, WC)
        for i in range(8): a(f"v_xor_b32 v{WNS+i}, 0x80008000, v{WSN+i}")
    stamp(a, 10, True)
    a(f"v_add_u32 v{T2}, {LW}, v{VL}")
    a(f"""s_lshl_b32 s25, s3, 4
    v_add_u32 v{ST}, s25, v{N}
    v_mul_u32_u24 v{VXR}, {PH}, v{ST}
    v_add_u32 v{VXR}, v{T0}, v{VXR}
    v_mul_u32_u24 v{VFW}, {PF}, v{ST}
    v_lshl_add_u32 v{VFW}, v{G}, 3, v{VFW}
    v_add_u32 v{VFW}, {LF}, v{VFW}
    v_lshrrev_b32 v{ST}, 2, v{N}
    v_lshl_add_u32 v{ST}, v{G}, 3, v{ST}
    v_mul_u32_u24 v{VFR}, {PF}, v{ST}
    v_and_b32 v{ST}, 3, v{N}
    v_lshl_add_u32 v{VFR}, v{ST}, 3, v{VFR}
    v_add_u32 v{VFR}, {LF}, v{VFR}
    s_lshl_b32 s23, s21, 11
    s_lshl_b32 s24, s22, 8
    s_add_u32 s23, s23, s24""")
    for r in range(4):
        a(f"s_mov_b32 s{30+2*r}, {hex(((1<<r)|(1<<(20+r))) & 0xffffffff)}")
        a(f"s_mov_b32 s{31+2*r}, {hex(((1<<(8+r))|(1<<(28+r))) & 0xffffffff)}")
    a("s_mov_b64 s[24:25], 0xffff\ns_mov_b32 s38, 0\ns_cmp_eq_u32 s22, 7\ns_cselect_b32 s39, 0xffff0000, 0")

def a_main(a):
    a("; === phase A: DFT-448 GEMM (two K halves) + row statistics, LDS transpose, DFT-64, U stores")
    q = LdsQ(a)
    def rdx(j, hf): q.read(f"ds_read_b128 {v4(XF+4*j)}, v{VXR} offset:{64*j + hf*LXH}", XF+4*j)
    def rdw(j):
        for T in range(4): q.read(f"ds_read_b128 {v4(WD+4*(7*T+j))}, v{T2} offset:{(7*T+j)*1024}", WD+4*(7*T+j))
    if OPT["b1"]:
        for j in range(7): rdx(j, 0)
    else:
        for j in range(3): rdx(j, 0); rdw(j)
    BJ = OPT["barj"]
    Q, S, M, RS = ST, ST+1, ST+2, ST+4
    def mf(A, T, j, first): a(f"v_mfma_f32_16x16x32_bf16 {v4(A+4*T)}, {v4(WD+4*(7*T+j))}, {v4(XF+4*j)}, {'0' if first else v4(A+4*T)}")
    def gram(j, first): a(f"v_mfma_f32_16x16x32_bf16 {v4(GR)}, {v4(XF+4*j)}, {v4(XF+4*j)}, {'0' if first else v4(GR)}")
    for j in range(7):
        q.need(XF + 4*j)
        gram(j, j == 0)
        for T in range(4):
            q.need(WD+4*(7*T+j))
            mf(AC1, T, j, j == 0)
        if j + 3 < 7 and not OPT["b1"]: rdx(j + 3, 0); rdw(j + 3)
        if j == BJ:
            stamp(a, 11)
            a("s_barrier")
            for k in range(BJ + 1): rdx(k, 1)
        elif j > BJ: rdx(j, 1)
    CS = WD + 28
    for j in range(7):
        q.need(XF + 4*j)
        gram(j, False)
        mf(AC2, 1, j, j == 0)
    for T in range(4): q.read(f"ds_read_b128 {v4(CS+4*T)}, v{VCS} offset:{64*T}", CS+4*T)
    stats = [None, None, f"v_mov_b32 v{Q}, 0", f"v_mov_b32 v{V_EP}, {LTAG}"]
    stats += [f"v_cndmask_b32 v{Q}, v{Q}, v{GR+r}, s[{30+2*r}:{31+2*r}]" for r in range(4)]
    stats += [f"v_add_f32 v{S}, v{AC1+7}, v{AC2+7}", f"v_cndmask_b32 v{S}, 0, v{S}, s[24:25]", None, None,
              f"v_permlane32_swap_b32 v{Q}, v{S}", f"v_add_f32 v{Q}, v{Q}, v{S}", f"v_mov_b32 v{S}, v{Q}", None, None,
              f"v_permlane16_swap_b32 v{Q}, v{S}", f"v_add_f32 v{Q}, v{Q}, v{S}", f"v_mov_b32 v{S}, v{Q}", None, None,
              f"v_permlane32_swap_b32 v{Q}, v{S}", f"v_mul_f32 v{M}, {fl(-1.0/448)}, v{S}", f"v_mul_f32 v{Q}, {fl(1.0/448)}, v{Q}",
              f"v_fma_f32 v{Q}, -v{M}, v{M}, v{Q}", f"v_max_f32 v{Q}, 0, v{Q}"]
    rb = [f"v_cvt_pk_bf16_f32 v{Q}, v{Q}, v{Q}", f"v_and_b32 v{Q}, 0xffff0000, v{Q}"]
    if OPT["ln1emu"]:
        stats += rb + [f"v_add_f32 v{Q}, {fl(1e-5)}, v{Q}"] + rb + [f"v_sqrt_f32 v{Q}, v{Q}", None] + rb + [f"v_rcp_f32 v{RS}, v{Q}"]
    else:
        stats += [f"v_add_f32 v{Q}, {fl(1e-5)}, v{Q}", f"v_rsq_f32 v{RS}, v{Q}"]
    k = stats.index(f"v_max_f32 v{Q}, 0, v{Q}") + 1
    stats[k:k] = [f"v_cvt_pk_bf16_f32 v{V_DC}, v{M}, v{M}", f"v_and_b32 v{V_DC}, 0xffff0000, v{V_DC}",
                  f"v_sub_f32 v{V_DC}, v{V_DC}, v{M}", f"v_mul_f32 v{V_DC}, {fl(448.0)}, v{V_DC}"]
    stats += ["WAITCS", f"v_mul_f32 v{M}, v{M}, v{RS}", f"v_mul_f32 v{V_DC}, v{V_DC}, v{RS}"]
    stats += [f"v_mul_f32 v{CS+i}, v{CS+i}, v{M}" for i in range(16)]
    for j in range(7):
        for T in (0, 2, 3):
            mf(AC2, T, j, j == 0)
            for _ in range(2):
                if stats:
                    t = stats.pop(0)
                    if t == "WAITCS": q.need(CS, 16)
                    elif t: a(t)
    for p in range(2): a(f"v_pk_fma_f32 {v2(AC1+4+2*p)}, {v2(AC2+4+2*p)}, {v2(SG2)}, {v2(AC1+4+2*p)}")
    for t in stats:
        if t == "WAITCS": q.need(CS, 16)
        elif t: a(t)
    stamp(a, 3)
    for T in (0, 2, 3):
        for p in range(2):
            x = AC1 + 4*T + 2*p
            a(f"v_pk_fma_f32 {v2(x)}, {v2(AC2+4*T+2*p)}, {v2(SG2)}, {v2(x)}")
    for T in (1, 0, 2, 3):
        for p in range(2):
            x = AC1 + 4*T + 2*p
            a(f"v_pk_fma_f32 {v2(x)}, {v2(x)}, {v2(RS)}, {v2(CS+4*T+2*p)} op_sel_hi:[1,0,1]")
    a(f"v_cndmask_b32 v{AC1+14}, v{AC1+14}, v{V_DC}, s[38:39]")
    for T in (1, 0, 2, 3):
        for p in range(2):
            x = AC1 + 4*T + 2*p
            a(f"v_cvt_pk_f16_f32 v{AC2+2*T+p}, v{x}, v{x+1}")
        a(f"ds_write_b64 v{VFW}, {v2(AC2+2*T)} offset:{32*T}")
    if OPT["w64l"]: a(f"s_lshl_b32 s26, s3, 12\ns_add_u32 s26, s26, {LWT}\nv_add_u32 v{T1}, s26, v{VL}")
    stamp(a, 5, 5)
    a(f"s_waitcnt lgkmcnt(0)")
    stamp(a, 6, 5)
    a(f"s_barrier")
    stamp(a, 7, 5)
    if OPT["w64l"]:
        for i in (0, 2, 4, 1, 3, 5): a(f"ds_read_b128 {v4(WC+4*i)}, v{T1} offset:{(i % 4 if i < 4 else i - 2 + 2) * 0 + i * 0 + [0, 1024, 2048, 3072, 16384, 17408][i]}")
    FA = WD + 48
    fa = lambda T, ks: FA + (2*T + ks) * 4
    q = LdsQ(a)
    for T in range(2):
        for ks in range(2):
            for TT in (T, T + 2):
                for h in range(2):
                    q.read(f"ds_read_b64_tr_b16 {v2(fa(TT, ks)+2*h)}, v{VFR} offset:{(32*ks+4*h)*PF+32*TT}", fa(TT, ks)+2*h, 2)
    q.read(f"ds_read_b32 v{V_EP}, v{V_EP}", V_EP, 1)
    UR = AC1; UI = AC1 + 8; o = XF
    tagcalc = [f"v_add_u32 v{M}, 1, v{V_EP}", f"s_mov_b32 s98, {HASH}", f"v_mul_lo_u32 v{M}, v{M}, s98"]
    for T in range(2):
        for ks in range(2):
            fr = v4(fa(T, ks)); fi = v4(fa(T + 2, ks))
            q.need(fa(T, ks))
            if T == 0 and ks == 0: stamp(a, 8, 5)
            a(f"v_mfma_f32_16x16x32_f16 {v4(UR+4*T)}, {fr}, {v4(WC+4*ks)}, {'0' if ks == 0 else v4(UR+4*T)}")
            a(f"v_mfma_f32_16x16x32_f16 {v4(UI+4*T)}, {fr}, {v4(WNS+4*ks)}, {'0' if ks == 0 else v4(UI+4*T)}")
            q.need(fa(T + 2, ks))
            a(f"v_mfma_f32_16x16x32_f16 {v4(UR+4*T)}, {fi}, {v4(WSN+4*ks)}, {v4(UR+4*T)}")
            a(f"v_mfma_f32_16x16x32_f16 {v4(UI+4*T)}, {fi}, {v4(WC+4*ks)}, {v4(UI+4*T)}")
            if T == 1 and ks == 1:
                q.need(V_EP, 1)
                for t in tagcalc: a(t)
    stamp(a, 9, 5)
    for r in range(4): a(f"v_cvt_pk_f16_f32 v{o+r}, v{UR+r}, v{UI+r}")
    a(f"buffer_store_dwordx4 {v4(o)}, v{VUS}, s[12:15], s23 offen {SC}")
    stamp(a, 10, 5)
    a(f"v_add3_u32 v{Q}, v{o}, v{o+1}, v{o+2}")
    a(f"v_sub_u32 v{M}, v{M}, v{o+3}")
    a(f"v_sub_u32 v{M}, v{M}, v{Q}")
    for r in range(3): a(f"v_cvt_pk_f16_f32 v{o+4+r}, v{UR+4+r}, v{UI+4+r}")
    a(f"""v_add3_u32 v{Q}, v{o+4}, v{o+5}, v{o+6}
    v_sub_u32 v{o+7}, v{M}, v{Q}
    buffer_store_dwordx4 {v4(o+4)}, v{VUS}, s[12:15], s23 offen offset:128 {SC}""")

def b_ids(a):
    a(f"""s_and_b32 s92, s2, 7
    s_lshr_b32 s93, s2, 6
    s_lshl_b32 s93, s93, 3
    s_or_b32 s92, s92, s93
    s_bfe_u32 s93, s2, 0x10003
    s_bfe_u32 s96, s2, 0x20004
    s_sub_u32 s95, 64, s92
    s_cmp_eq_u32 s92, 0
    s_cselect_b32 s95, 32, s95
    s_cselect_b32 s94, 0, 1
    s_xor_b32 s94, s94, s93
    s_cmp_eq_u32 s93, 0
    s_cselect_b32 s95, s92, s95
    s_lshl_b32 s96, s96, 9
    s_add_u32 s95, s95, s96
    s_lshl_b32 s96, s20, 6
    s_add_u32 s96, s96, s95
    s_mul_i32 s97, s96, 896""")

def b_setup(a):
    srd(a, 12, 6, WS_SIZE)
    srd(a, 52, 48, XB)
    srd(a, 16, 40, 896)
    b_ids(a)

def b_loads(a):
    a(f"""s_mov_b32 s26, {WS_EPOCH}
    v_mov_b32 v{T0}, 0
    buffer_load_dword v{V_EP}, v{T0}, s[12:15], s26 offen {SC}
    buffer_load_dwordx4 {v4(B_WR)}, v{VL}, s[16:19], 0 offen
    buffer_load_dwordx4 {v4(B_XR)}, v{VL}, s[8:11], s97 offen""")

def pro(a):
    a("; === address / twiddle set-up for phases B and C")
    EPS, BASE, TH, AF, AD = P_EPS, P_BASE, P_TH, B_AF, B_AD
    a(f"""s_lshl_b32 s28, s92, 16
    s_lshl_b32 s29, s20, 8
    s_add_u32 s28, s28, s29
    s_add_u32 s29, s28, 4096
    s_add_u32 s30, s28, 32768
    s_add_u32 s31, s28, 36864
    v_lshlrev_b32 v{B_VU}, 13, v{G}
    v_lshl_add_u32 v{B_VU}, v{N}, 4, v{B_VU}
    v_and_b32 v{T0}, 7, v{N}
    v_lshlrev_b32 v{T0}, 6, v{T0}
    v_add_u32 v{T0}, s95, v{T0}
    v_cvt_f32_u32 v{T0}, v{T0}
    v_cmp_gt_u32 vcc, 8, v{N}
    v_mul_f32 v{EPS}, {fl(1.0/2048)}, v{T0}
    v_lshlrev_b32 v{T1}, 2, v{G}
    v_cndmask_b32 v{EPS}, -v{EPS}, v{EPS}, vcc
    v_cvt_f32_u32 v{T1}, v{T1}
    v_mul_f32 v{BASE}, v{T1}, v{EPS}""")
    for ks in range(2):
        trig_block(a, 4, 16*ks, EPS, BASE, TH, True)
        for i in range(4):
            a(f"v_cvt_pk_f16_f32 v{AF+4*ks+i}, v{TH+i}, v{TH+4+i}")
    a(f"""v_lshrrev_b32 v{T0}, 3, v{N}
    v_and_b32 v{T1}, 3, v{N}
    v_mul_u32_u24 v{T1}, 7, v{T1}
    v_lshl_add_u32 v{T1}, v{T0}, 2, v{T1}
    s_mul_i32 s32, s20, 28
    s_add_u32 s32, s32, 1
    v_add_u32 v{T1}, s32, v{T1}
    v_sub_u32 v{T2}, 448, v{T1}
    v_cmp_gt_u32 s[34:35], 2, v{G}
    v_mov_b32 v{TH}, s93
    v_mov_b32 v{TH+1}, s94
    v_cndmask_b32 v{T2}, v{T2}, v{T1}, s[34:35]
    v_cndmask_b32 v{TH}, v{TH+1}, v{TH}, s[34:35]
    v_bfe_u32 v{TH+1}, v{N}, 2, 1
    v_cmp_eq_u32 s[60:61], v{TH}, v{TH+1}
    v_and_b32 v{TH+2}, 1, v{G}
    v_mul_u32_u24 v{TH+2}, {4*PY}, v{TH+2}
    v_add_lshl_u32 v{AD}, v{TH+2}, v{T2}, 2
    v_mov_b32 v{TH+3}, -4
    v_cndmask_b32 v{TH+3}, v{TH+3}, 4, s[34:35]
    v_add_u32 v{AD+1}, v{AD}, v{TH+3}
    v_add_u32 v{AD+2}, v{AD+1}, v{TH+3}
    v_add_u32 v{AD+3}, v{AD+2}, v{TH+3}
    v_cmp_eq_u32 s[50:51], 0, v{T0}
    s_and_b64 s[50:51], s[50:51], s[60:61]
    v_mov_b32 v{TH}, 222
    v_cmp_eq_u32 s[62:63], v{TH}, v{T1}
    s_and_b64 s[62:63], s[62:63], s[60:61]
    s_andn2_b64 s[36:37], s[62:63], s[34:35]
    v_lshlrev_b32 v{TH+2}, 2, v{TH+2}
    v_add_u32 v{TH}, {448*4}, v{TH+2}
    v_cndmask_b32 v{AD+2}, v{AD+2}, v{TH}, s[36:37]
    v_add_u32 v{TH}, {449*4}, v{TH+2}
    v_add_u32 v{B_AD4}, {450*4}, v{TH+2}
    v_cndmask_b32 v{B_AD4}, v{B_AD4}, v{TH}, s[34:35]
    s_mul_i32 s33, s20, {PY*4}
    v_lshlrev_b32 v{B_VY}, 5, v{LANE}
    v_add_u32 v{B_VY}, s33, v{B_VY}
    s_add_u32 s33, s33, {448*4}
    v_mov_b32 v{B_AD4+1}, s33""")
    for i in range(8):
        a(f"v_alignbit_b32 v{B_A2+i}, v{AF+i}, v{AF+i}, 16")
        a(f"v_xor_b32 v{B_A2+i}, 0x8000, v{B_A2+i}")
    lim_regs(a, C_L, LANE, T0)
    a(f"""s_lshl_b32 s34, s20, 5
    s_add_u32 s34, s34, {LSEL}
    v_lshlrev_b32 v{T1}, 2, v{LANE}
    v_add_u32 v{C_SW}, s34, v{T1}
    v_add_u32 v{C_SR}, {LSEL}, v{T1}
    v_lshrrev_b32 v{C_KA}, 1, v0
    v_lshlrev_b32 v{C_KA}, 6, v{C_KA}
    v_and_b32 v{T0}, 1, v0
    v_lshl_add_u32 v{C_KA}, v{T0}, 4, v{C_KA}
    s_lshl_b32 s34, s20, 6
    s_add_u32 s34, s34, {LSE2}
    v_add_u32 v{C_FW}, s34, v{T1}
    v_lshrrev_b32 v{C_PF}, 3, v{LANE}
    v_and_b32 v{C_FY}, 7, v{LANE}
    v_lshlrev_b32 v{C_FR}, 6, v{C_PF}
    v_lshl_add_u32 v{C_FR}, v{C_FY}, 2, v{C_FR}
    v_add_u32 v{C_FR}, {LSE2}, v{C_FR}
    v_lshlrev_b32 v{C_FY}, 6, v{C_FY}
    v_add_u32 v{C_FY}, {LSE2 + 32}, v{C_FY}
    v_lshlrev_b32 v{C_PF}, 7, v{C_PF}
    s_cmp_ge_u32 s2, 224
    s_cselect_b32 s33, 1024, 0
    s_add_u32 s33, s33, {WS_ROW}
    s_lshl_b32 s27, s2, 6
    s_add_u32 s27, s27, {WS_KEYS}
    s_sub_u32 s32, 2047, s96
    v_lshrrev_b32 v{T0}, 1, v0
    v_and_b32 v{T1}, 7, v{T0}
    v_lshrrev_b32 v{T2}, 6, v{T0}
    v_lshl_or_b32 v{T1}, v{T2}, 3, v{T1}
    v_sub_u32 v{T2}, 64, v{T1}
    v_cmp_eq_u32 vcc, 0, v{T1}
    v_bfe_u32 v{TH}, v{T0}, 3, 1
    v_cndmask_b32 v{T2}, v{T2}, 32, vcc
    v_cmp_eq_u32 vcc, 0, v{TH}
    v_bfe_u32 v{TH}, v{T0}, 4, 2
    v_cndmask_b32 v{T1}, v{T2}, v{T1}, vcc
    v_lshl_add_u32 v{T1}, v{TH}, 9, v{T1}
    v_and_b32 v{T0}, 1, v0
    v_lshl_add_u32 v{T1}, v{T0}, 8, v{T1}
    v_sub_u32 v{C_IX}, 2047, v{T1}
    v_subrev_u32 v{C_IX+1}, 64, v{C_IX}
    v_subrev_u32 v{C_IX+2}, 128, v{C_IX}
    v_subrev_u32 v{C_IX+3}, 192, v{C_IX}""")
    gu_prep(a)

def pro2(a):
    XU, WU, S1, S2, S3 = B_XU, B_WU, P_TH, P_TH + 2, P_TH + 4
    unpack8(a, WU, B_WR)
    a(f"""v_pk_add_f32 {v2(S1)}, {v2(WU)}, {v2(WU+2)}
    v_pk_add_f32 {v2(S2)}, {v2(WU+4)}, {v2(WU+6)}
    v_pk_add_f32 {v2(S1)}, {v2(S1)}, {v2(S2)}
    v_add_f32 v{S1}, v{S1}, v{S1+1}
    v_mov_b32 v{S2}, 0
    v_mov_b32 v{S3}, 0""")
    reduce3(a, S1, S2, S3, T0, 58, 39, 39)
    unpack8(a, XU, B_XR)
    for k in (B_S1, B_S1+1, B_S2, B_S2+1, B_S3, B_S3+1): a(f"v_mov_b32 v{k}, 0")

def anyones(a, regs_, t):
    regs_ = list(regs_)
    a(f"v_max_u32 v{t}, v{regs_[0]}, v{regs_[1]}")
    rest = regs_[2:]
    while len(rest) >= 2:
        a(f"v_max3_u32 v{t}, v{t}, v{rest[0]}, v{rest[1]}"); rest = rest[2:]
    if rest: a(f"v_max_u32 v{t}, v{t}, v{rest[0]}")
    a(f"v_cmp_eq_u32 vcc, -1, v{t}")

def wave_sum(a, v, sd):
    for k in (8, 4, 2, 1):
        a(f"v_add_u32_dpp v{v}, v{v}, v{v} row_ror:{k} row_mask:0xf bank_mask:0xf")
    for i in range(4): a(f"v_readlane_b32 s{sd+i}, v{v}, {16*i}")
    a(f"s_add_u32 s{sd}, s{sd}, s{sd+1}\ns_add_u32 s{sd+2}, s{sd+2}, s{sd+3}\ns_add_u32 s{sd}, s{sd}, s{sd+2}")

def publish_row(a):
    a("; publish this row (ln2 and out values, each closed by a checksum word)")
    a(f"""s_lshl_b32 s34, s96, 11
    s_add_u32 s34, s34, {WS_ROW}
    v_mov_b32 v{T0}, 0
    v_mov_b32 v{T1}, 0
    v_writelane_b32 v{C_LN}, 0, 56
    v_writelane_b32 v{C_OUT}, 0, 56
    s_mov_b32 exec_hi, 0x01ffffff
    v_add3_u32 v{T0}, v{C_LN}, v{C_LN+1}, v{C_LN+2}
    v_add3_u32 v{T1}, v{C_OUT}, v{C_OUT+1}, v{C_OUT+2}
    v_add_u32 v{T0}, v{T0}, v{C_LN+3}
    v_add_u32 v{T1}, v{T1}, v{C_OUT+3}
    s_mov_b32 exec_hi, -1""")
    wave_sum(a, T0, 36)
    a(f"s_sub_u32 s35, s98, s36\nv_writelane_b32 v{C_LN}, s35, 56")
    wave_sum(a, T1, 36)
    a(f"""s_sub_u32 s35, s98, s36
    v_writelane_b32 v{C_OUT}, s35, 56
    s_mov_b32 exec_hi, 0x01ffffff
    buffer_store_dwordx4 {v4(C_LN)}, v{VL}, s[12:15], s34 offen {SC}
    buffer_store_dwordx4 {v4(C_OUT)}, v{VL}, s[12:15], s34 offen offset:1024 {SC}
    s_mov_b32 exec_hi, -1""")

def fetch_row_issue(a, dst):
    a(f"""v_readlane_b32 s34, v{C_K}, s20
    s_andn2_b32 s34, 0x7ff, s34
    s_lshl_b32 s34, s34, 11
    s_add_u32 s34, s34, s33
    s_mov_b32 exec_hi, 0x01ffffff
    buffer_load_dwordx4 {v4(dst)}, v{VL}, s[12:15], s34 offen {SC}
    s_mov_b32 exec_hi, -1""")

def fetch_row_finish(a, dst, ldsaddr):
    _lbl[0] += 1
    L = f"Lrow{_lbl[0]}"
    a(f"""s_mul_i32 s29, s20, {PX}
    s_add_u32 s29, s29, {LXS}
    v_add_u32 v{ldsaddr}, s29, v{VL}
    s_mov_b32 s57, {SPIN}
    {L}:
    v_mov_b32 v{T0}, 0
    s_mov_b32 exec_hi, 0x01ffffff
    s_waitcnt vmcnt(0)
    ds_write_b128 v{ldsaddr}, {v4(dst)}
    v_add3_u32 v{T0}, v{dst}, v{dst+1}, v{dst+2}
    v_add_u32 v{T0}, v{T0}, v{dst+3}
    s_mov_b32 exec_hi, -1""")
    wave_sum(a, T0, 36)
    a(f"""s_cmp_eq_u32 s36, s98
    s_cbranch_scc1 {L}d
    s_mov_b32 exec_hi, 0x01ffffff
    s_waitcnt lgkmcnt(0)
    buffer_load_dwordx4 {v4(dst)}, v{VL}, s[12:15], s34 offen {SC}
    s_mov_b32 exec_hi, -1
    s_sub_u32 s57, s57, 1
    s_cbranch_scc0 {L}""")
    timeout_note(a, _lbl[0])
    a(f"{L}d:")

def gu_prep(a):
    srd(a, 16, 42, 448*3584)
    a(f"""v_mul_u32_u24 v{V_GU}, 3584, v0
    s_and_b32 s100, s2, 7
    s_mul_i32 s100, s100, 28
    s_lshr_b32 s101, s2, 3
    s_add_u32 s100, s100, s101
    s_lshl_b32 s26, s100, 4
    s_lshl_b32 s101, s20, 10
    s_add_u32 s101, s101, {LWT}
    s_and_b32 s45, s45, 0xffff
    s_cmp_ge_u32 s2, 224
    s_cselect_b32 s24, 7, s20""")

def gu_dma(a):
    a(f"""s_cmp_eq_u32 s24, 7
    s_cbranch_scc1 Lngu
    s_mov_b32 m0, s101
    s_add_u32 s101, s101, 8192
    buffer_load_dwordx4 v{V_GU}, s[16:19], s26 offen lds
    s_mov_b32 s16, s44
    s_mov_b32 m0, s101
    s_mov_b32 s17, s45
    buffer_load_dwordx4 v{V_GU}, s[16:19], s26 offen lds
    Lngu:""")

def wd_dma(a, j0, j1, L):
    if j0 == j1: return
    a(f"""s_cmp_lt_u32 s2, 224
    s_cbranch_scc1 {L}
    s_and_b32 s50, s2, 7
    s_cmp_eq_u32 s50, 7
    s_cbranch_scc1 {L}
    s_lshl_b32 s50, s50, 7
    s_bfe_u32 s51, s2, 0x20003
    s_lshl_b32 s51, s51, 5
    s_add_u32 s51, s51, s50""")
    srd(a, 16, 46, 1792*896)
    a(f"""v_lshrrev_b32 v{T1}, 1, v{LANE}
    v_mul_u32_u24 v{T1}, 896, v{T1}
    v_and_b32 v{T2}, 1, v{LANE}
    v_lshl_add_u32 v{T1}, v{T2}, 4, v{T1}
    s_mul_i32 s23, s20, {224*896}
    s_add_u32 s23, s23, s51
    s_add_u32 s23, s23, {j0*32*896}
    s_mul_i32 s25, s20, 7168
    s_add_u32 s25, s25, {LWT + j0*1024}""")
    for j in range(j0, j1):
        a(f"s_mov_b32 m0, s25")
        a(f"s_add_u32 s25, s25, 1024")
        a(f"buffer_load_dwordx4 v{T1}, s[16:19], s23 offen lds")
        a(f"s_add_u32 s23, s23, {32*896}")
    a(f"{L}:")

def b_main(a):
    a("; === phase B: fetch + validate U, 32-term DFT stage, h / LN2 / router key")
    R, AF, ACC, XU, WU, AD, TH = B_R, B_AF, B_ACC, B_XU, B_WU, B_AD, B_TH
    S1, S2, S3 = B_S1, B_S2, B_S3
    if OPT["sl_u0"]: a(f"s_sleep {OPT['sl_u0']}")
    def uld():
        for ks in range(2):
            for i in range(4):
                a(f"buffer_load_dwordx4 {v4(R+16*ks+4*i)}, v{B_VU}, s[12:15], s{28+2*ks+(i>>1)} offen offset:{2048*(i&1)} {SC}")
    a(f"s_mov_b32 s57, {SPIN}")
    uld()
    a("s_waitcnt vmcnt(8)")
    pro2(a)
    def swaps(ks):
        b = R + 16*ks
        for i in range(4):
            for j in range(i+1, 4):
                a(f"v_swap_b32 v{b+4*i+j}, v{b+4*j+i}")
    def mm(ks, dpp):
        for j in range(4):
            c = "0" if ks == 0 else v4(ACC+4*j)
            a(f"v_mfma_f32_16x16x32_f16 {v4(ACC+4*j)}, {v4(AF+4*ks)}, {v4(R+16*ks+4*j)}, {c}")
            if dpp: a(f"v_add_u32_dpp v{T0}, v{T0}, v{T0} row_ror:{8 >> j} row_mask:0xf bank_mask:0xf")
        a(f"v_mfma_f32_16x16x32_f16 {v4(TH)}, {v4(B_A2+4*ks)}, {v4(R+16*ks+8)}, {'0' if ks == 0 else v4(TH)}")
    if not OPT["part"]:
        a("s_branch Lupw\nLupoll:")
        uld()
        a("Lupw:")
    for ks in range(2):
        a(f"s_waitcnt vmcnt({4-4*ks})")
        b = R + 16*ks
        for i in range(8):
            if ks == 0 and i == 0: a(f"v_add_u32 v{T0}, v{b}, v{b+1}")
            else: a(f"v_add3_u32 v{T0}, v{T0}, v{b+2*i}, v{b+2*i+1}")
        swaps(ks)
        mm(ks, ks == 1)
    a(f"""v_cmp_ne_u32 vcc, s99, v{T0}
    s_cmp_eq_u64 vcc, 0""")
    if OPT["part"]:
        a("s_cbranch_scc0 Lupart")
        def part():
            C4 = B_TH
            a("Lupart:\ns_lshl_b32 s34, s98, 4")
            swaps(0); swaps(1)
            a("Lupchk:")
            for i in range(4):
                a(f"v_add3_u32 v{C4+i}, v{R+4*i}, v{R+4*i+1}, v{R+4*i+2}")
            for i in range(4):
                a(f"v_add3_u32 v{C4+i}, v{C4+i}, v{R+4*i+3}, v{R+16+4*i}")
            for i in range(4):
                a(f"v_add3_u32 v{C4+i}, v{C4+i}, v{R+16+4*i+1}, v{R+16+4*i+2}")
            for i in range(4):
                a(f"v_add_u32 v{C4+i}, v{C4+i}, v{R+16+4*i+3}")
            for k in (8, 4, 2, 1):
                for i in range(4):
                    a(f"v_add_u32_dpp v{C4+i}, v{C4+i}, v{C4+i} row_ror:{k} row_mask:0xf bank_mask:0xf")
            MK = ["s[36:37]", "s[38:39]", "s[24:25]", "vcc"]
            for i in range(4): a(f"v_cmp_ne_u32 {MK[i]}, s34, v{C4+i}")
            a(f"""s_or_b64 s[26:27], s[36:37], s[38:39]""".replace("s[26:27]", "s[100:101]"))
            a(f"""s_or_b64 s[100:101], s[100:101], s[24:25]
            s_or_b64 s[100:101], s[100:101], vcc
            s_cbranch_scc0 Lupgo""")
            if OPT["sl_r"]: a(f"s_sleep {OPT['sl_r']}")
            for i in range(4):
                a(f"s_cmp_eq_u64 {MK[i]}, 0\ns_cbranch_scc1 Lupok{i}")
                for ks in range(2):
                    a(f"buffer_load_dwordx4 {v4(R+16*ks+4*i)}, v{B_VU}, s[12:15], s{28+2*ks+(i>>1)} offen offset:{2048*(i&1)} {SC}")
                a(f"Lupok{i}:")
            a(f"""s_waitcnt vmcnt(0)
            s_sub_u32 s57, s57, 1
            s_cbranch_scc0 Lupchk
            Lupgo:""")
            for ks in range(2):
                swaps(ks); mm(ks, False)
            a("s_nop 7\ns_branch Lupolld")
        TAIL.append(part)
    else:
        a(f"""s_cbranch_scc1 Lupolld
        s_sub_u32 s57, s57, 1
        s_cbranch_scc0 Lupoll""")
        timeout_note(a, 9)
    a("Lupolld:")
    stamp(a, 6)
    if OPT["stamps"] == 3: a(f"s_sub_u32 s{64+2*11}, {SPIN+1}, s57")
    for j in range(4):
        if j in (0, 3): a(f"s_mov_b64 exec, {['s[60:61]', '', '', 's[50:51]'][j]}")
        for r in (0, 2):
            a(f"ds_write2st64_b32 v{AD+j}, v{ACC+4*j+r}, v{ACC+4*j+r+1} offset0:{r*PY//64} offset1:{(r+1)*PY//64}")
    a("s_cmp_lg_u32 s20, 7\ns_cbranch_scc1 Lndc\ns_mov_b64 exec, s[62:63]")
    for r in (0, 2):
        a(f"ds_write2st64_b32 v{B_AD4}, v{TH+r}, v{TH+r+1} offset0:{r*PY//64} offset1:{(r+1)*PY//64}")
    a("Lndc:\ns_mov_b64 exec, -1")
    gu_dma(a)
    wd_dma(a, 0, OPT['wdsplit'], 'Lnwd0')
    a("""s_mov_b32 exec_hi, 0x00ffffff
    s_waitcnt lgkmcnt(0)
    s_barrier""")
    H = R
    a(f"ds_read_b128 {v4(TH)}, v{B_AD4+1}\nds_read_b128 {v4(H)}, v{B_VY} offset:{LY}\nds_read_b128 {v4(H+4)}, v{B_VY} offset:{LY+16}")
    a("s_mov_b64 s[36:37], 1\ns_mov_b64 s[38:39], 0x10000001")
    for hf in range(2):
        a(f"s_waitcnt lgkmcnt({1-hf})")
        if hf == 0:
            a(f"""v_add_f32 v{TH+1}, v{TH+1}, v{TH+2}
            v_add_f32 v{TH}, v{TH}, v{H}
            v_cndmask_b32 v{TH}, v{TH}, v{TH+1}, s[36:37]
            v_mul_f32 v{TH}, 0.5, v{TH}
            v_cndmask_b32 v{H}, v{H}, v{TH}, s[38:39]""")
        for p in range(2):
            x = 4*hf + 2*p
            a(f"v_pk_add_f32 {v2(H+x)}, {v2(H+x)}, {v2(XU+x)}")
        for p in range(2):
            x = 4*hf + 2*p
            a(f"v_pk_add_f32 {v2(S1)}, {v2(S1)}, {v2(H+x)}")
            a(f"v_pk_fma_f32 {v2(S2)}, {v2(H+x)}, {v2(H+x)}, {v2(S2)}")
            a(f"v_pk_fma_f32 {v2(S3)}, {v2(H+x)}, {v2(WU+x)}, {v2(S3)}")
    a(f"""s_mov_b32 exec_hi, -1
    v_add_f32 v{S1}, v{S1}, v{S1+1}
    v_add_f32 v{S2}, v{S2}, v{S2+1}
    v_add_f32 v{S3}, v{S3}, v{S3+1}""")
    reduce3(a, S1, S2, S3, T0, 37, 38, 39)
    M, V, SD, RS, C0, KEY = TH, TH+1, TH+2, TH+4, TH+6, C_KEY
    a(f"""v_mov_b32 v{V}, {fl(1.0/448)}
    v_mul_f32 v{M}, s37, v{V}
    v_mul_f32 v{V}, s38, v{V}
    v_mov_b32 v{KEY}, s39
    v_fma_f32 v{V}, -v{M}, v{M}, v{V}
    v_fma_f32 v{KEY}, -v{M}, s58, v{KEY}
    v_max_f32 v{SD}, 0, v{V}
    v_add_f32 v{V}, {fl(1e-5)}, v{SD}""")
    a(f"""v_rsq_f32 v{RS}, v{V}
    s_lshl_b32 s34, s20, 2
    v_mov_b32 v{T2}, s34
    v_mul_f32 v{KEY}, v{KEY}, v{RS}
    v_cvt_pk_bf16_f32 v{KEY}, v{KEY}, v{KEY}
    v_ashrrev_i32 v{T0}, 31, v{KEY}
    v_or_b32 v{T0}, 0x80000000, v{T0}
    v_xor_b32 v{KEY}, v{KEY}, v{T0}
    v_and_b32 v{KEY}, 0xffff0000, v{KEY}
    v_or_b32 v{KEY}, s32, v{KEY}
    ds_write_b32 v{T2}, v{KEY} offset:{LKEY}
    v_mov_b32 v{C_STK}, 0xffff
    v_lshlrev_b32 v{T1}, 2, v{LANE}
    v_mov_b32 v{T2}, {LKEY}
    s_waitcnt lgkmcnt(0)
    s_barrier
    s_cmp_lg_u32 s20, 0
    s_cbranch_scc1 Lnokey
    s_mov_b64 exec, 0xff
    ds_read_b32 v{T0}, v{T1} offset:{LKEY}
    s_waitcnt lgkmcnt(0)
    v_bfi_b32 v{T0}, v{C_STK}, s59, v{T0}
    buffer_store_dword v{T0}, v{T1}, s[12:15], s27 offen {SC}
    s_mov_b64 exec, -1
    Lnokey:
    ds_read_b128 {v4(ACC)}, v{T2}
    ds_read_b128 {v4(ACC+4)}, v{T2} offset:16""")
    stamp(a, 7)
    sd_chain(a, SD, SD)
    a(f"v_rcp_f32 v{RS}, v{SD}\ns_nop 0\nv_mul_f32 v{C0}, -v{M}, v{RS}")
    for p in range(4):
        a(f"v_pk_fma_f32 {v2(XU+2*p)}, {v2(H+2*p)}, {v2(RS)}, {v2(C0)} op_sel_hi:[1,0,0]")
    for p in range(4):
        a(f"v_pk_add_f32 {v2(H+2*p)}, {v2(H+2*p)}, {v2(XU+2*p)}")
    for p in range(4):
        a(f"v_cvt_pk_bf16_f32 v{C_LN+p}, v{XU+2*p}, v{XU+2*p+1}")
        a(f"v_cvt_pk_bf16_f32 v{C_OUT+p}, v{H+2*p}, v{H+2*p+1}")
    a(f"""s_waitcnt lgkmcnt(0)
    v_max3_u32 v{T0}, v{ACC}, v{ACC+1}, v{ACC+2}
    v_max3_u32 v{T1}, v{ACC+3}, v{ACC+4}, v{ACC+5}
    v_max3_u32 v{T0}, v{T0}, v{ACC+6}, v{ACC+7}
    v_max_u32 v{T0}, v{T0}, v{T1}
    v_cmp_eq_u32 s[60:61], v{T0}, v{KEY}
    s_cmp_eq_u64 s[60:61], 0
    s_cbranch_scc1 Lnoeager""")
    publish_row(a)
    a("Lnoeager:")

QP = {1: "quad_perm:[1,0,3,2]", 2: "quad_perm:[2,3,0,1]", 3: "quad_perm:[3,2,1,0]", 7: "row_half_mirror"}
class Net:
    def __init__(s, a, x, t, fill): s.a = a; s.x = x; s.t = t; s.fill = list(fill)
    def f(s, n=1):
        for _ in range(n):
            if s.fill: s.a(s.fill.pop(0))
    def ce(s, m):
        a, x, t = s.a, s.x, s.t
        s.f()
        if m == 4:
            a(f"v_max_u32_dpp v{t}, v{x}, v{x} row_shl:4 row_mask:0xf bank_mask:0x5")
            a(f"v_min_u32_dpp v{t}, v{x}, v{x} row_shr:4 row_mask:0xf bank_mask:0xa")
            s.x, s.t = t, x
        else:
            a(f"v_mov_b32_dpp v{t}, v{x} {QP[m]} row_mask:0xf bank_mask:0xf")
            a(f"v_med3_u32 v{x}, v{x}, v{t}, v{C_L[1 << (m.bit_length()-1)]}")
    def merge(s, last_clean=True):
        a = s.a
        s.f()
        a(f"v_max_u32_dpp v{s.x}, v{s.x}, v{s.x} row_mirror row_mask:0xf bank_mask:0xf")
        for m in (4, 2, 1): s.ce(m)
        for sw in ("v_permlane16_swap_b32", "v_permlane32_swap_b32"):
            a(f"v_mov_b32 v{s.t}, v{s.x}")
            s.f()
            a(f"{sw} v{s.x}, v{s.t}")
            s.f()
            a(f"v_max_u32_dpp v{s.x}, v{s.t}, v{s.x} row_half_mirror row_mask:0xf bank_mask:0xf")
            if last_clean or "16" in sw:
                for m in (4, 2, 1): s.ce(m)
        s.f(99)

def fast_select(a):
    K, X, Y, P, Q = C_K, C_X, C_Y, C_TMP, C_TMP + 1
    a(f"""v_max_u32 v{P}, v{K}, v{K+1}
    v_max_u32 v{Q}, v{K+2}, v{K+3}
    v_max_u32 v{X}, v{P}, v{Q}""")
    fill = [f"v_min_u32 v{Y}, v{P}, v{Q}", f"v_min_u32 v{P}, v{K}, v{K+1}", f"v_min_u32 v{Q}, v{K+2}, v{K+3}",
            f"v_max3_u32 v{Y}, v{Y}, v{P}, v{Q}"]
    fill += [f"v_max_u32_dpp v{Y}, v{Y}, v{Y} row_ror:{k} row_mask:0xf bank_mask:0xf" for k in (8, 4, 2, 1)]
    fill += [f"v_mov_b32 v{P}, v{Y}", f"v_permlane16_swap_b32 v{Y}, v{P}", f"v_max_u32 v{Y}, v{Y}, v{P}",
             f"v_mov_b32 v{P}, v{Y}", f"v_permlane32_swap_b32 v{Y}, v{P}", f"v_max_u32 v{Y}, v{Y}, v{P}",
             "s_mov_b64 vcc, 0x100"]
    n = Net(a, X, C_TMP + 2, fill)
    for m in (1, 3, 1, 7, 2, 1): n.ce(m)
    n.merge()
    a(f"""s_mov_b64 exec, 0x1ff
    v_cndmask_b32 v{P}, v{n.x}, v{Y}, vcc
    ds_write_b32 v{C_FW}, v{P}""")
    if OPT["rowpf"]:
        m8 = (1 << OPT["rowpf"]) - 1; m32 = m8 * 0x01010101
        a(f"""s_mov_b32 exec_lo, {hex(m32)}
        s_mov_b32 exec_hi, {hex(m32)}
        v_bfi_b32 v{Q}, v{n.x}, 0, v{C_TMP+3}
        v_lshl_add_u32 v{Q}, v{Q}, 11, v{C_PF}
        buffer_load_dword v{JUNK}, v{Q}, s[12:15], s33 offen {SC}""")
    a(f"""s_mov_b64 exec, -1
    s_waitcnt lgkmcnt(0)
    s_barrier
    ds_read_b32 v{X}, v{C_FR}
    ds_read_b32 v{Y}, v{C_FY}
    s_waitcnt lgkmcnt(0)""")
    fill = [f"v_max_u32_dpp v{Y}, v{Y}, v{Y} {QP[m]} row_mask:0xf bank_mask:0xf" for m in (1, 2, 7)]
    n = Net(a, X, C_TMP + 2, fill)
    n.merge(last_clean=False)
    a(f"""v_cmp_gt_u32 vcc, v{Y}, v{n.x}
    s_cmp_eq_u64 vcc, 0
    s_cbranch_scc0 Lfullsel
    v_mov_b32 v{K}, v{n.x}
    Lseldone:""")

def c_select(a):
    a("; === top-8 selection over all router keys")
    K = C_K
    a(f"s_mov_b32 s34, {WS_KEYS}\nv_mov_b32 v{C_TMP+3}, 0x7ff")
    def chk():
        a(f"v_xor_b32 v{T0}, v{K}, v{K+1}")
        a(f"v_xor_b32 v{T1}, v{K+2}, v{K+3}")
        a(f"v_xor_b32 v{T2}, s59, v{K}")
        a(f"v_xor_b32 v{C_X}, s59, v{K+2}")
        a(f"v_or3_b32 v{T0}, v{T0}, v{T1}, v{T2}")
        for i in range(4): a(f"v_bfi_b32 v{K+i}, v{C_STK}, v{C_IX+i}, v{K+i}")
        a(f"v_or_b32 v{T0}, v{T0}, v{C_X}")
        a(f"v_cmp_ne_u16 vcc, 0, v{T0}")
    poll(a, lambda: a(f"buffer_load_dwordx4 {v4(K)}, v{C_KA}, s[12:15], s34 offen {SC}"), chk, pre=OPT["sl_k"])
    stamp(a, 8)
    fast_select(a)
    stamp(a, 9)
    a(f"""v_cmp_eq_u32 vcc, v{K}, v{C_KEY}
    s_and_b64 s[62:63], vcc, s[60:61]
    s_cmp_lg_u64 s[62:63], vcc
    s_cbranch_scc0 Lsel_pub""")
    publish_row(a)
    a("Lsel_pub:")
    fetch_row_issue(a, 84)
    a(f"""s_cmp_eq_u64 vcc, 0
    s_cbranch_scc0 Lsel_done
    s_mov_b32 exec_hi, 0x00ffffff
    buffer_store_dwordx4 {v4(C_OUT)}, v{VL}, s[52:55], s97 offen {['', 'sc1', 'nt', 'sc0 sc1'][OPT['ost']]}
    s_mov_b32 exec_hi, -1
    Lsel_done:""")

def c1(a):
    a("; === gate / up projection for this workgroup's 8 FFN columns")
    XR = 84; XF_ = 168; ACC = 52; XU = 60; WF = 88
    a(f"""s_cmp_lg_u32 s20, 0
    s_cbranch_scc1 Lc1_now
    v_lshrrev_b32 v{T0}, 2, v{N}
    v_lshl_add_u32 v{T0}, v{G}, 3, v{T0}
    v_lshlrev_b32 v{T0}, 4, v{T0}
    v_and_b32 v{T1}, 1, v{N}
    v_lshl_add_u32 v{T0}, v{T1}, 3, v{T0}
    v_bfe_u32 v{T1}, v{N}, 1, 1
    v_lshl_add_u32 v{T0}, v{T1}, 13, v{T0}
    v_add_u32 v{T0}, {LWT}, v{T0}""")
    for j in range(14):
        for h in range(2):
            a(f"ds_read_b64_tr_b16 {v2(WF+4*j+2*h)}, v{T0} offset:{(32*j+4*h)*16}")
    a(f"""v_and_b32 v{XU+4}, 7, v{N}
    v_mul_u32_u24 v{XU+4}, {PX}, v{XU+4}
    v_lshl_add_u32 v{XU+4}, v{G}, 4, v{XU+4}
    v_lshlrev_b32 v{XU+5}, 4, v{N}
    v_lshl_add_u32 v{XU+5}, v{G}, 3, v{XU+5}
    s_lshl_b32 s22, s100, 7
    s_add_u32 s22, s22, {WS_ACT}
    Lc1_now:""")
    fetch_row_finish(a, XR, T2)
    a(f"""s_waitcnt lgkmcnt(0)
    s_barrier
    s_cmp_lg_u32 s20, 0
    s_cbranch_scc1 Lc1_epoch""")
    stamp(a, 10)
    for j in range(14):
        a(f"ds_read_b128 {v4(XF_+4*j)}, v{XU+4} offset:{LXS+64*j}")
    for j in range(14):
        a(f"s_waitcnt lgkmcnt({13-j})")
        A = ACC + 4*(j & 1)
        a(f"v_mfma_f32_16x16x32_bf16 {v4(A)}, {v4(WF+4*j)}, {v4(XF_+4*j)}, {'0' if j < 2 else v4(A)}")
    for p in range(2):
        a(f"v_pk_add_f32 {v2(ACC+2*p)}, {v2(ACC+2*p)}, {v2(ACC+4+2*p)}")
    for p in range(2): a(f"v_cvt_pk_bf16_f32 v{ACC+4+p}, v{ACC+2*p}, v{ACC+2*p+1}")
    for p in range(2): a(f"v_mov_b32 v{ACC+6+p}, v{ACC+4+p}")
    for p in range(2): a(f"v_permlane32_swap_b32 v{ACC+4+p}, v{ACC+6+p}")
    for p in range(2):
        a(f"v_lshlrev_b32 v{ACC+2*p}, 16, v{ACC+4+p}")
        a(f"v_and_b32 v{ACC+2*p+1}, 0xffff0000, v{ACC+4+p}")
    for r in range(4): a(f"v_mul_f32 v{XU+r}, {fl(-1.4426950408889634)}, v{ACC+r}")
    for r in range(4): a(f"v_exp_f32 v{XU+r}, v{XU+r}")
    for p in range(2):
        a(f"v_lshlrev_b32 v{XR+2*p}, 16, v{ACC+6+p}")
        a(f"v_and_b32 v{XR+2*p+1}, 0xffff0000, v{ACC+6+p}")
    for r in range(4): a(f"v_add_f32 v{XU+r}, 1.0, v{XU+r}")
    for r in range(4): a(f"v_rcp_f32 v{XU+r}, v{XU+r}")
    for r in range(4): a(f"v_mul_f32 v{ACC+r}, v{ACC+r}, v{XU+r}")
    for p in range(2): a(f"v_cvt_pk_bf16_f32 v{ACC+4+p}, v{ACC+2*p}, v{ACC+2*p+1}")
    for p in range(2):
        a(f"v_lshlrev_b32 v{ACC+2*p}, 16, v{ACC+4+p}")
        a(f"v_and_b32 v{ACC+2*p+1}, 0xffff0000, v{ACC+4+p}")
    for p in range(2): a(f"v_pk_mul_f32 {v2(ACC+2*p)}, {v2(ACC+2*p)}, {v2(XR+2*p)}")
    for p in range(2): a(f"v_cvt_pk_bf16_f32 v{XR+p}, v{ACC+2*p}, v{ACC+2*p+1}")
    for p in range(2): a(f"v_min_u32 v{XR+p}, -2, v{XR+p}")
    a(f"""s_mov_b32 exec_lo, 0x00ff00ff
    s_mov_b32 exec_hi, 0
    buffer_store_dwordx2 {v2(XR)}, v{XU+5}, s[12:15], s22 offen {SC}
    s_branch Lend
    Lc1_epoch:
    s_lshl_b32 s29, s2, 3
    s_add_u32 s29, s29, s20
    s_cmp_lg_u32 s29, 1
    s_cbranch_scc1 Lend
    s_mov_b64 exec, 1
    v_mov_b32 v{T0}, s56
    s_mov_b32 s29, {WS_EPOCH}
    buffer_store_dword v{T0}, v{VL}, s[12:15], s29 offen {SC}
    s_branch Lend""")

def c2(a):
    a("; === down projection for 16 output columns, routed rows written")
    K = C_K
    OA = 8; OR = 10; SG = 12; VA = 13; VO = 14; VW = 15; WF = 88; AF = 116; ACC = 52; RD = 168
    a(f"""s_mul_i32 s24, s20, 7168
    s_add_u32 s24, s24, {LWT}
    v_lshrrev_b32 v{T0}, 2, v{N}
    v_lshl_add_u32 v{T0}, v{G}, 3, v{T0}
    v_lshlrev_b32 v{T0}, 5, v{T0}
    v_and_b32 v{T1}, 3, v{N}
    v_lshl_add_u32 v{T0}, v{T1}, 3, v{T0}
    v_add_u32 v{VW}, s24, v{T0}""")
    for j in range(7):
        for h in range(2):
            a(f"ds_read_b64_tr_b16 {v2(WF+4*j+2*h)}, v{VW} offset:{(32*j+4*h)*32}")
    a(f"""v_and_b32 v{T1}, 7, v{N}
    v_mul_u32_u24 v{VO}, {PX}, v{T1}
    v_lshl_add_u32 v{VO}, v{G}, 3, v{VO}
    v_add_u32 v{VO}, s51, v{VO}
    v_lshlrev_b32 v{VA}, 4, v{T1}
    v_lshl_add_u32 v{VA}, v{G}, 7, v{VA}
    s_mul_i32 s25, s20, {7*512}
    s_add_u32 s25, s25, {WS_ACT}
    v_and_b32 v{OA}, 0x7ff, v{K}
    v_sub_u32 v{OA}, 2047, v{OA}
    v_mul_u32_u24 v{OA}, 896, v{OA}
    v_lshl_add_u32 v{OA}, v{G}, 3, v{OA}
    v_ashrrev_i32 v{T2}, 31, v{K}
    v_not_b32 v{T2}, v{T2}
    v_or_b32 v{T2}, 0x80000000, v{T2}
    v_xor_b32 v{K+1}, v{K}, v{T2}
    v_and_b32 v{K+1}, 0xffff0000, v{K+1}""")
    sigmoid_mul(a, SG, K+1, "1.0", T2)
    rbf(a, SG, SG)
    a(f"""v_lshlrev_b32 v{T1}, 4, v0
    v_add_u32 v{T1}, {LRED}, v{T1}""")
    def lds():
        for j in range(7):
            a(f"buffer_load_dwordx4 {v4(AF+4*j)}, v{VA}, s[12:15], s25 offen offset:{512*j} {SC}")
    if OPT["c2re"]:
        if OPT["sl_a"]: a(f"s_sleep {OPT['sl_a']}")
        lds()
        fetch_row_finish(a, 84, T2)
        anyones(a, range(AF, AF+28), T0)
        a("s_cmp_eq_u64 vcc, 0\ns_cbranch_scc1 Lactok")
        poll(a, lds, lambda: anyones(a, range(AF, AF+28), T0))
        a("Lactok:")
    else:
        fetch_row_finish(a, 84, T2)
        poll(a, lds, lambda: anyones(a, range(AF, AF+28), T0), pre=OPT["sl_a"])
    stamp(a, 10)
    a("s_waitcnt lgkmcnt(0)")
    for j in range(7):
        A = ACC + 4*(j & 1)
        a(f"v_mfma_f32_16x16x32_bf16 {v4(A)}, {v4(WF+4*j)}, {v4(AF+4*j)}, {'0' if j < 2 else v4(A)}")
    for p in range(2):
        a(f"v_pk_add_f32 {v2(ACC+2*p)}, {v2(ACC+2*p)}, {v2(ACC+4+2*p)}")
    a(f"""ds_write_b128 v{T1}, {v4(ACC)}
    s_waitcnt lgkmcnt(0)
    s_barrier
    s_cmp_lg_u32 s20, 0
    s_cbranch_scc1 Lend
    ds_read_b64 {v2(OR)}, v{VO} offset:{LXS}""")
    for w in range(1, 8):
        a(f"ds_read_b128 {v4(RD+4*w)}, v{T1} offset:{1024*w}")
    a("s_waitcnt lgkmcnt(7)")
    for i in range(2):
        a(f"v_lshlrev_b32 v{RD+2*i}, 16, v{OR+i}")
        a(f"v_and_b32 v{RD+2*i+1}, 0xffff0000, v{OR+i}")
    for w in range(1, 8):
        a(f"s_waitcnt lgkmcnt({7-w})")
        for p in range(2):
            a(f"v_pk_add_f32 {v2(ACC+2*p)}, {v2(ACC+2*p)}, {v2(RD+4*w+2*p)}")
    for rnd in range(2):
        for p in range(2): a(f"v_cvt_pk_bf16_f32 v{ACC+4+p}, v{ACC+2*p}, v{ACC+2*p+1}")
        for p in range(2):
            a(f"v_lshlrev_b32 v{ACC+2*p}, 16, v{ACC+4+p}")
            a(f"v_and_b32 v{ACC+2*p+1}, 0xffff0000, v{ACC+4+p}")
        for p in range(2):
            if rnd == 0: a(f"v_pk_mul_f32 {v2(ACC+2*p)}, {v2(ACC+2*p)}, {v2(SG)} op_sel_hi:[1,0]")
            else: a(f"v_pk_add_f32 {v2(ACC+2*p)}, {v2(ACC+2*p)}, {v2(RD+2*p)}")
    for p in range(2): a(f"v_cvt_pk_bf16_f32 v{OR+p}, v{ACC+2*p}, v{ACC+2*p+1}")
    a(f"""s_mov_b32 exec_lo, 0x00ff00ff
    s_mov_b32 exec_hi, 0x00ff00ff
    buffer_store_dwordx2 {v2(OR)}, v{OA}, s[52:55], s51 offen {['', 'sc1', 'nt', 'sc0 sc1'][OPT['ost']]}""")

def clears(a):
    a(f"""v_mov_b32 v{JUNK+2}, -1
    v_lshlrev_b32 v{T1}, 2, v{LANE}
    s_lshl_b32 s24, s2, 7
    s_add_u32 s24, s24, {WS_ACT}
    s_mov_b32 exec_hi, 0
    buffer_store_dword v{JUNK+2}, v{T1}, s[12:15], s24 offen {SC}
    s_mov_b32 exec_lo, 1
    s_lshl_b32 s23, s96, 11
    s_add_u32 s23, s23, {WS_ROW}
    buffer_load_dword v{JUNK}, v{VL}, s[52:55], s97 offen
    buffer_load_dword v{JUNK+1}, v{VL}, s[12:15], s23 offen
    s_mov_b64 exec, -1""")

def prefetch(a, w0=1, T0=T0, T1=T1):
    a("; L2 warm-up of the FFN weights (one word per line, values unused)")
    a(f"""s_and_b32 s24, s2, 7
    s_lshr_b32 s25, s2, 3
    s_mul_i32 s26, s25, {14*3584}
    s_mov_b32 s18, {448*3584}
    s_mov_b32 s19, 0x00020000
    s_cmp_eq_u32 s20, {w0+2}
    s_cbranch_scc1 Lpf_d
    v_lshrrev_b32 v{T0}, 2, v{LANE}
    v_mul_u32_u24 v{T0}, 3584, v{T0}
    v_and_b32 v{T1}, 3, v{LANE}
    v_lshl_add_u32 v{T0}, v{T1}, 7, v{T0}
    s_mul_i32 s24, s24, 448
    s_cmp_eq_u32 s20, {w0}
    s_cselect_b32 s16, s42, s44
    s_cselect_b32 s17, s43, s45
    s_branch Lpf_go
    Lpf_d:
    v_mul_u32_u24 v{T0}, 896, v{LANE}
    s_lshl_b32 s24, s24, 7
    s_mov_b32 s16, s46
    s_mov_b32 s17, s47
    Lpf_go:
    s_and_b32 s17, s17, 0xffff
    s_add_u32 s26, s26, s24
    s_mov_b32 exec_hi, 0x00ffffff
    buffer_load_dword v{JUNK}, v{T0}, s[16:19], s26 offen
    s_mov_b32 exec_hi, -1""")

def kernel(a):
    if OPT["stamps"]:
        for k in range(NST): a(f"s_mov_b32 s{64+2*k}, 0")
    stamp(a, 0)
    a(f"""s_load_dwordx2 s[8:9], s[0:1], 0
    s_cmp_ge_u32 s2, 256
    s_cbranch_scc1 Lexit
    v_lshrrev_b32 v{T0}, 6, v0
    v_and_b32 v{LANE}, 63, v0
    v_readfirstlane_b32 s20, v{T0}
    v_lshlrev_b32 v{VL}, 4, v{LANE}
    s_and_b32 s21, s2, 31
    s_lshr_b32 s22, s2, 5
    s_mov_b32 s10, {XB}
    s_mov_b32 s11, 0x00020000
    s_cmp_lt_u32 s20, 4
    s_cbranch_scc1 Lloader
    s_getpc_b64 s[30:31]
    Lpc:
    v_and_b32 v{T2}, 255, v0
    v_lshlrev_b32 v{JUNK}, 7, v{T2}
    v_mov_b32 v{JUNK+1}, s31
    v_add_co_u32 v{JUNK}, vcc, s30, v{JUNK}
    v_addc_co_u32 v{JUNK+1}, vcc, 0, v{JUNK+1}, vcc
    v_cmp_gt_u32 vcc, (Lexit-Lpc)/128+1, v{T2}
    s_and_saveexec_b64 s[30:31], vcc
    s_cbranch_execz Lcompute
    global_load_dword v{JUNK+2}, v[{JUNK}:{JUNK+1}], off
    s_branch Lcompute
    Lloader:
    v_cmp_lt_u32 vcc, 29, v{LANE}
    s_lshl_b32 s23, s20, 9
    s_add_u32 s23, s23, s21
    s_mul_i32 s23, s23, 896
    s_mul_i32 s24, s20, {16*PH}
    v_add_u32 v{T1}, {32*896 - 480}, v{VL}
    s_mov_b32 s25, {'s22' if OPT['rot'] else '0'}
    v_cndmask_b32 v{T1}, v{VL}, v{T1}, vcc
    s_mov_b32 exec_lo, 0xcfffffff
    s_mov_b32 exec_hi, 0x03ffffff
    s_mov_b32 s28, 0
    s_waitcnt lgkmcnt(0)""")
    stamp(a, 3, True)
    if OPT["dmau"]:
        a("Ldma:")
        for i in range(8):
            a(f"""s_mul_i32 s26, s25, {2*PH}
            s_mul_i32 s27, s25, {64*896}
            s_add_u32 m0, s26, s24
            s_add_u32 s27, s27, s23
            s_add_u32 s25, s25, 1
            buffer_load_dwordx4 v{T1}, s[8:11], s27 offen lds
            s_and_b32 s25, s25, 7""")
        a(f"""s_add_u32 s24, s24, {LXH}
        s_add_u32 s23, s23, 448
        s_add_u32 s28, s28, 1
        s_cmp_lt_u32 s28, 2""")
        if OPT["b1"]: a("s_cbranch_scc0 Ldmad\ns_barrier\ns_branch Ldma\nLdmad:")
        else: a("s_cbranch_scc1 Ldma")
    else:
        a(f"""Ldma:
        s_mul_i32 s26, s25, {2*PH}
        s_mul_i32 s27, s25, {64*896}
        s_add_u32 s26, s26, s24
        s_add_u32 s27, s27, s23
        s_mov_b32 m0, s26
        s_add_u32 s25, s25, 1
        buffer_load_dwordx4 v{T1}, s[8:11], s27 offen lds
        s_and_b32 s25, s25, 7
        s_add_u32 s28, s28, 1
        s_cmp_lg_u32 s28, 8
        s_cbranch_scc1 Ldma1
        s_add_u32 s24, s24, {LXH}
        s_add_u32 s23, s23, 448
        Ldma1:
        s_cmp_lt_u32 s28, 16
        s_cbranch_scc1 Ldma""")
    def ltail():
        a(f"""Lltail:
        s_mov_b64 exec, -1
        s_load_dwordx2 s[6:7], s[0:1], 96
        s_load_dwordx8 s[40:47], s[0:1], 48
        s_load_dwordx2 s[48:49], s[0:1], 80
        v_and_b32 v{N}, 15, v0
        v_bfe_u32 v{G}, v0, 4, 2""")
        stamp(a, 6, True)
        early = OPT["e2a"]
        if early:
            a("s_waitcnt vmcnt(8)")
            stamp(a, 1)
            a("s_barrier")
        a("s_waitcnt lgkmcnt(0)")
        b_setup(a)
        b_loads(a)
        a("s_cmp_lg_u32 s20, 0\ns_cbranch_scc1 Lw123a")
        clears(a)
        if not early:
            a("s_waitcnt vmcnt(14)")
            stamp(a, 1)
            a("s_barrier")
        a("s_waitcnt vmcnt(6)")
        stamp(a, 2)
        a(f"""s_barrier
        v_mov_b32 v{T0}, {LTAG}
        s_waitcnt vmcnt(5)
        ds_write_b32 v{T0}, v{V_EP}
        s_branch Lprol
        Lw123a:""")
        if OPT["pf"] == 3: prefetch(a)
        if not early:
            a(f"s_waitcnt vmcnt(12)")
            stamp(a, 1)
            a("s_barrier")
        a(f"s_waitcnt vmcnt({4 if OPT['pf'] == 3 else 3})")
        stamp(a, 2)
        a(f"s_barrier")
        if OPT["pf"] == 1: prefetch(a)
        a(f"s_waitcnt vmcnt({2 if OPT['pf'] == 4 else 3})")
        a("Lprol:")
        if OPT["wdh"]: wd_dma(a, 0, 7, "Lnwd2")
        if OPT["w64l"]:
            a("s_mov_b32 s3, s20")
            w64(a, AC1)
            for i in range(8): a(f"v_xor_b32 v{AC1+16+i}, 0x80008000, v{AC1+8+i}")
            a(f"s_lshl_b32 s26, s3, 12\ns_add_u32 s26, s26, {LWT}\nv_add_u32 v{T1}, s26, v{VL}")
            for i in range(6): a(f"ds_write_b128 v{T1}, {v4(AC1+4*i)} offset:{[0, 1024, 2048, 3072, 16384, 17408][i]}")
        if not OPT["prolate"]: pro(a)
        stamp(a, 3)
        def hint_store():
            a(f"""s_cmp_lg_u32 s20, 0
            s_cbranch_scc1 Lnh
            s_lshl_b32 s34, s2, 6
            s_add_u32 s34, s34, {WS_HINT}
            v_add_u32 v{T0}, 1, v{V_EP}
            s_mov_b64 exec, 1
            buffer_store_dword v{T0}, v{VL}, s[12:15], s34 offen {SC}
            s_mov_b64 exec, -1
            Lnh:""")
        if OPT["hint"] == 2: hint_store()
        a("s_waitcnt lgkmcnt(0)\ns_barrier")
        if OPT["hint"] == 1: hint_store()
        a("s_branch Lpro1" if OPT["prolate"] else "s_branch Lpro2")
    if OPT["layout"]: a("s_branch Lltail")
    else: ltail()
    a(f"""Lcompute:
    s_mov_b64 exec, -1
    s_load_dwordx2 s[6:7], s[0:1], 96
    s_load_dwordx8 s[40:47], s[0:1], 48
    s_load_dwordx2 s[48:49], s[0:1], 80
    v_and_b32 v{N}, 15, v0
    v_bfe_u32 v{G}, v0, 4, 2
    s_and_b32 s3, s20, 3""")
    if OPT["prio"]: a("s_setprio 3")
    stamp(a, 9, True)
    a_pre(a)
    stamp(a, 11, True)
    a("s_waitcnt lgkmcnt(0)")
    b_setup(a)
    stamp(a, 1)
    a("s_barrier")
    stamp(a, 2)
    a_main(a)
    stamp(a, 4)
    if OPT["prio"]: a("s_setprio 0")
    a(f"buffer_load_dwordx4 {v4(B_WR)}, v{VL}, s[16:19], 0 offen")
    a(f"buffer_load_dwordx4 {v4(B_XR)}, v{VL}, s[8:11], s97 offen")
    a("Lpro1:")
    pro(a)
    a("Lpro2:")
    a(f"""v_readfirstlane_b32 s56, v{V_EP}
    s_add_u32 s56, s56, 1
    s_mul_i32 s98, s56, {HASH}
    s_lshl_b32 s99, s98, 6
    s_and_b32 s59, s56, 0xffff""")
    if OPT["hint"]:
        a(f"""v_and_b32 v{T1}, 31, v{LANE}
        v_lshlrev_b32 v{T1}, 6, v{T1}
        s_lshl_b32 s34, s20, 11
        s_add_u32 s34, s34, {WS_HINT}
        s_mov_b32 s57, 4000""")
        if OPT["sl_h0"]: a(f"s_sleep {OPT['sl_h0']}")
        a(f"""Lhint:
        buffer_load_dword v{T0}, v{T1}, s[12:15], s34 offen {SC}
        s_waitcnt vmcnt(0)
        v_cmp_ne_u32 vcc, s56, v{T0}
        s_cmp_eq_u64 vcc, 0
        s_cbranch_scc1 Lhintd""")
        if OPT["sl_h"]: a(f"s_sleep {OPT['sl_h']}")
        a(f"""s_sub_u32 s57, s57, 1
        s_cbranch_scc0 Lhint
        Lhintd:""")
    else:
        a("s_barrier")
    stamp(a, 5)
    b_main(a)
    if OPT["wdh"]: a("s_cmp_lt_u32 s20, 4\ns_cbranch_scc1 Lnwd1")
    wd_dma(a, OPT['wdsplit'], 7, 'Lnwd1')
    c_select(a)
    a("s_cmp_ge_u32 s2, 224\ns_cbranch_scc1 Lc2")
    c1(a)
    a("Lc2:\ns_and_b32 s50, s2, 7\ns_cmp_eq_u32 s50, 7\ns_cbranch_scc1 Lend\ns_lshl_b32 s50, s50, 7\ns_bfe_u32 s51, s2, 0x20003\ns_lshl_b32 s51, s51, 5\ns_add_u32 s51, s51, s50")
    c2(a)
    a("Lend:")
    dump_stamps(a)
    if OPT["layout"]:
        a("s_endpgm")
        ltail()
        for f in TAIL: f()
    a("Lexit:\ns_endpgm\nLfullsel:")
    select8(a, C_K, C_TMP, C_L, C_SW, C_SR)
    a("s_branch Lseldone")

DOC = '''; ---------------------------------------------------------------------------------------------
;      into LDS, waves 4-7 build the cos/sin tables, run the DFT-448 for 28 frequencies (raw bf16 x,
;      sums), then the DFT-64 over s2, and write U (f16) to d_ws.
;      28 workgroups do the down projection for 16 output columns and write the routed rows.
; ---------------------------------------------------------------------------------------------
'''
NAME = "sequential_preLN__spectral_fnet__moe_arch_mod__prompt_kernel"
def build():
    a = Asm()
    kernel(a)
    body = a.finish()
    if OPT["align"]: body = align_pass(body)
    return gen.HDR + f"""; @launch grid=(256,1,1) block=(512,1,1) lds={LDS_TOTAL}
{DOC}.amdgcn_target "amdgcn-amd-amdhsa--gfx950"
.text
.globl {NAME}
.p2align 8
.type {NAME},@function
{NAME}:
""" + body + f""".section .rodata,"a"
.p2align 6
.amdhsa_kernel {NAME}
  .amdhsa_next_free_vgpr {NVGPR}
  .amdhsa_next_free_sgpr 102
  .amdhsa_accum_offset {NVGPR}
  .amdhsa_group_segment_fixed_size 0
  .amdhsa_kernarg_size 104
  .amdhsa_user_sgpr_count 2
  .amdhsa_user_sgpr_kernarg_segment_ptr 1
  .amdhsa_system_sgpr_workgroup_id_x 1
.end_amdhsa_kernel
"""

if __name__ == "__main__":
    for x in list(sys.argv[1:]):
        if x.startswith("--"):
            k, _, v = x[2:].partition("=")
            assert k in OPT, k
            OPT[k] = int(v) if v else 1
            sys.argv.remove(x)
    open(sys.argv[1], "w").write(build())
```

```python
import sys
from asmlib import Asm, fl, align_pass
import gen
from gen import srd, v4, v2, rbf, sd_chain, reduce3, unpack8, lim_regs, select8, sigmoid_mul

WS_KEYS = 0x200000
WS_HINT = 0x204000
WS_EPOCH = 0x208000
WS_ACT = 0x210000
WS_STAMP = 0x3c0000
WS_ROW = 0x400000
WS_SIZE = 0x800000
XB = 1835008
PH = 480; PX = 928; PF = 136; PY = 512
LXH = 64 * PH
LW = 2 * LXH; LCS = LW + 28 * 1024; LTAG = LCS + 256; LF = LCS + 272; LWT = LF + 64 * PF; LDS_TOTAL = LWT + 57344
LY = 0
LSEL = 16384; LSE2 = 16640; LKEY = 17152; LXS = 17408; LRED = 24832
SPIN = 4000000
SC = "sc1"
HASH = "0x9e3779b1"
OPT = dict(stamps=0, cyc=0, align=0, sl_u0=4, sl_k=15, sl_a=4, rowpf=2, barj=5, dbgto=0, ost=0, c2re=1, rot=1, pf=3, wdsplit=0, w64l=0, layout=1, e2a=1, prolate=1, amp=-1, ampw=0, ampb=224, prio=1, wdh=0, cheb=1, ln1emu=1, dmau=1, b1=0, part=0, sl_r=4, hint=0, sl_h=4, sl_h0=0, trim=1, prosplit=0, warm=0)
NST = 14

def stamp(a, k, early=False):
    if OPT["stamps"] == 5:
        if early != 5 and k not in (0, 3, 4, NST - 1): return
    elif OPT["stamps"] == 4:
        if early == 5 or (not early and k not in (0, 1, 2, NST - 1)): return
    elif early: return
    if OPT["stamps"] == 2 and k not in (0, NST - 1): return
    if OPT["stamps"]: a(f"{'s_memtime' if OPT['cyc'] else 's_memrealtime'} s[{64+2*k}:{65+2*k}]")
def dump_stamps(a):
    if OPT["amp"] >= 0:
        k = OPT["amp"]
        a(f"s_memrealtime s[{64+2*(NST-2)}:{65+2*(NST-2)}]")
        a(f"""s_cmp_lg_u32 s2, {OPT['ampb']}
        s_cbranch_scc1 Lampd
        s_cmp_lg_u32 s20, {OPT['ampw']}
        s_cbranch_scc1 Lampd
        s_waitcnt lgkmcnt(0)
        s_sub_u32 s60, s{64+2*k}, s64
        s_mul_i32 s60, s60, 9
        s_add_u32 s60, s60, s{64+2*(NST-2)}
        Lamp:
        s_memrealtime s[62:63]
        s_waitcnt lgkmcnt(0)
        s_sub_u32 s61, s62, s60
        s_cmp_lt_i32 s61, 0
        s_cbranch_scc1 Lamp
        Lampd:""")
        return
    if not OPT["stamps"]: return
    stamp(a, NST - 2)
    a("s_waitcnt vmcnt(0)")
    stamp(a, NST - 1)
    a("s_mov_b64 exec, 1\ns_waitcnt lgkmcnt(0)")
    a(f"s_lshl_b32 s60, s2, 3\ns_add_u32 s60, s60, s20\ns_lshl_b32 s60, s60, 6\ns_add_u32 s60, s60, {WS_STAMP}\nv_mov_b32 v1, 0")
    for k in range(NST):
        a(f"v_mov_b32 v2, s{64+2*k}\nbuffer_store_dword v2, v1, s[12:15], s60 offen offset:{4*k}")

_lbl = [0]
TAIL = []
def timeout_note(a, ident):
    if not OPT["dbgto"]: return
    a(f"""s_lshl_b32 s100, s2, 8
    s_add_u32 s100, s100, s20
    s_add_u32 s100, s100, {ident << 24}
    v_mov_b32 v{JUNK+3}, s100
    s_mov_b32 s100, {0x3f0000 + 4*ident}
    s_mov_b64 exec, 1
    buffer_store_dword v{JUNK+3}, v{VL}, s[12:15], s100 offen
    v_mov_b32 v{JUNK+3}, s36
    buffer_store_dword v{JUNK+3}, v{VL}, s[12:15], s100 offen offset:64
    v_mov_b32 v{JUNK+3}, s98
    buffer_store_dword v{JUNK+3}, v{VL}, s[12:15], s100 offen offset:128
    v_mov_b32 v{JUNK+3}, s34
    buffer_store_dword v{JUNK+3}, v{VL}, s[12:15], s100 offen offset:192
    s_mov_b64 exec, -1""")
def poll(a, loads, check, pre=0):
    _lbl[0] += 1
    L = f"Lpoll{_lbl[0]}"
    if pre: a(f"s_sleep {pre}")
    a(f"s_mov_b32 s57, {SPIN}\n{L}:")
    loads()
    a("s_waitcnt vmcnt(0)")
    check()
    a(f"""s_cmp_eq_u64 vcc, 0
    s_cbranch_scc1 {L}d
    s_sub_u32 s57, s57, 1
    s_cbranch_scc0 {L}""")
    timeout_note(a, _lbl[0])
    a(f"{L}d:")

class LdsQ:
    def __init__(s, a): s.a = a; s.q = []
    def read(s, text, b, n=4):
        s.a(text); s.q.append(set(range(b, b + n)))
    def need(s, b, n=4):
        rs = set(range(b, b + n)); last = -1
        for i, d in enumerate(s.q):
            if d & rs: last = i
        if last >= 0:
            s.a(f"s_waitcnt lgkmcnt({len(s.q) - 1 - last})")
            s.q = s.q[last+1:]

LANE, N, G, T0, T1, T2, VL = 1, 2, 3, 4, 5, 6, 7
B_XR = 8; B_WR = 12; V_EP = 16; VFW = 17; VFR = 18; VXR = 19; VCS = 20; VUS = 21; ST = 22
WC = 28; WSN = 36; WNS = 44
AC1 = 52; AC2 = 68; GR = 84; XF = 88; WD = 116
JUNK = 228; SG2 = 232; V_GU = 234; V_DC = 235; B_A2 = 236; B_AD4 = 244; NVGPR = 248
B_AF = 28; B_AD = 36; B_VY = 40; B_VU = 41; C_L = {1: 42, 2: 43, 4: 44}; C_SW = 45; C_SR = 46; C_KA = 47
C_FW = 48; C_FR = 49; C_FY = 50; C_PF = 51
B_R = 116; B_ACC = 52; B_XU = 68; B_WU = 76; B_S1, B_S2, B_S3 = 88, 90, 92; B_TH = 96; P_TH = 104; P_EPS = 112; P_BASE = 113
C_K = 148; C_TMP = 152; C_KEY = 156; C_X = 157; C_Y = 158; C_OUT = 160; C_LN = 164; C_IX = 224; C_STK = 159

def trig_block(a, n, k0, eps, base, th, want_sin):
    for i in range(n):
        k = k0 + i
        if k == 0: a(f"v_mov_b32 v{th+i}, v{base}")
        else: a(f"v_fmamk_f32 v{th+i}, v{eps}, {fl(float(k))}, v{base}")
    for i in range(n):
        if want_sin: a(f"v_sin_f32 v{th+n+i}, v{th+i}")
        a(f"v_cos_f32 v{th+i}, v{th+i}")

def w64(a, D):
    EPS, BASE, TH, S = ST + 4, ST + 5, XF, ST
    a(f"""v_lshrrev_b32 v{S}, 1, v{N}
    s_lshl_b32 s25, s3, 3
    v_add_u32 v{S}, s25, v{S}
    v_sub_u32 v{S+1}, 64, v{S}
    v_cmp_eq_u32 vcc, 0, v{S}
    v_and_b32 v{S+2}, 1, v{N}
    v_cndmask_b32 v{S+1}, v{S+1}, 32, vcc
    v_cmp_eq_u32 vcc, 0, v{S+2}
    v_lshlrev_b32 v{S+2}, 3, v{G}
    v_cndmask_b32 v{S+1}, v{S+1}, v{S}, vcc
    v_cvt_f32_u32 v{S+2}, v{S+2}
    v_and_b32 v{S}, 1, v{S+1}
    v_cvt_f32_u32 v{S+1}, v{S+1}
    v_mul_u32_u24 v{S}, 0x8000, v{S}
    v_mul_f32 v{EPS}, {fl(1.0/64)}, v{S+1}
    v_lshl_or_b32 v{S}, v{S}, 16, v{S}
    v_mul_f32 v{BASE}, v{S+2}, v{EPS}""")
    if OPT["cheb"]:
        C2 = S + 3; CV = XF; SV = XF + 8
        a(f"""v_cos_f32 v{C2}, v{EPS}
        v_add_f32 v{CV+1}, v{EPS}, v{BASE}
        v_sin_f32 v{SV}, v{BASE}
        v_cos_f32 v{CV}, v{BASE}
        v_sin_f32 v{SV+1}, v{CV+1}
        v_cos_f32 v{CV+1}, v{CV+1}
        v_add_f32 v{C2}, v{C2}, v{C2}""")
        for i in range(2, 8):
            for Vv in (CV, SV): a(f"v_fma_f32 v{Vv+i}, v{C2}, v{Vv+i-1}, -v{Vv+i-2}")
        for i in range(4):
            a(f"v_cvt_pk_f16_f32 v{D+i}, v{CV+2*i}, v{CV+2*i+1}")
            a(f"v_cvt_pk_f16_f32 v{D+8+i}, v{SV+2*i}, v{SV+2*i+1}")
        for i in range(4):
            a(f"v_xor_b32 v{D+4+i}, v{S}, v{D+i}")
            a(f"v_xor_b32 v{D+12+i}, v{S}, v{D+8+i}")
        return
    for ks in range(2):
        for h in range(2):
            trig_block(a, 4, 32*ks + 4*h, EPS, BASE, TH, True)
            for i in range(2):
                a(f"v_cvt_pk_f16_f32 v{D+4*ks+2*h+i}, v{TH+2*i}, v{TH+2*i+1}")
                a(f"v_cvt_pk_f16_f32 v{D+8+4*ks+2*h+i}, v{TH+4+2*i}, v{TH+4+2*i+1}")

def a_pre(a):
    a("; === phase A set-up: DFT-448 table tile (three-term recurrence), its column sums, DFT-64 fragments")
    EPS, BASE, TH, ONE, TO, CS = ST + 4, ST + 5, XF, XF + 8, XF + 12, AC1
    a(f"""s_and_b32 s25, s3, 1
    s_lshl_b32 s25, s25, 2
    v_and_b32 v{T0}, 3, v{N}
    v_add_u32 v{T0}, s25, v{T0}
    v_lshrrev_b32 v{T1}, 2, v{N}
    s_mul_i32 s26, s22, 28
    s_add_u32 s26, s26, 1
    v_mad_u32_u24 v{T1}, v{T1}, 7, v{T0}
    v_add_u32 v{T1}, s26, v{T1}
    v_cmp_ne_u32 vcc, 7, v{T0}
    s_lshr_b32 s25, s3, 1
    s_mul_i32 s25, s25, {fl(0.25)}
    v_cndmask_b32 v{T1}, 0, v{T1}, vcc
    v_cvt_f32_u32 v{T1}, v{T1}
    v_mul_f32 v{EPS}, {fl(1.0/448)}, v{T1}
    v_lshlrev_b32 v{T0}, 3, v{G}
    v_cvt_f32_u32 v{T2}, v{T0}
    v_fma_f32 v{BASE}, v{T2}, v{EPS}, s25
    s_mul_i32 s25, s3, {7*1024}
    s_add_u32 s25, s25, {LW}
    v_add_u32 v{T1}, s25, v{VL}""")
    for i in range(4): a(f"v_mov_b32 v{ONE+i}, 0x3f803f80")
    if OPT["cheb"]:
        C2 = ST + 3; V = WD
        a(f"v_cos_f32 v{C2}, v{EPS}")
        for j in range(7):
            for i in range(2):
                k = 32*j + i
                if k == 0: a(f"v_mov_b32 v{V}, v{BASE}")
                else: a(f"v_fmamk_f32 v{V+8*j+i}, v{EPS}, {fl(float(k))}, v{BASE}")
        a(f"v_add_f32 v{C2}, v{C2}, v{C2}")
        for j in range(7):
            for i in range(2): a(f"v_cos_f32 v{V+8*j+i}, v{V+8*j+i}")
        for i in range(2, 8):
            for j in range(7):
                a(f"v_fma_f32 v{V+8*j+i}, v{C2}, v{V+8*j+i-1}, -v{V+8*j+i-2}")
        for j in range(7):
            o = V + 56 + 4*j
            for i in range(4): a(f"v_cvt_pk_bf16_f32 v{o+i}, v{V+8*j+2*i}, v{V+8*j+2*i+1}")
            a(f"ds_write_b128 v{T1}, {v4(o)} offset:{j*1024}")
            a(f"v_mfma_f32_16x16x32_bf16 {v4(CS)}, {v4(o)}, {v4(ONE)}, {'0' if j == 0 else v4(CS)}")
    else:
      for j in range(7):
        trig_block(a, 8, 32*j, EPS, BASE, TH, False)
        o = TO + 4*(j & 1)
        for i in range(4): a(f"v_cvt_pk_bf16_f32 v{o+i}, v{TH+2*i}, v{TH+2*i+1}")
        a(f"ds_write_b128 v{T1}, {v4(o)} offset:{j*1024}")
        a(f"v_mfma_f32_16x16x32_bf16 {v4(CS)}, {v4(o)}, {v4(ONE)}, {'0' if j == 0 else v4(CS)}")
    a(f"""v_lshrrev_b32 v{ST}, 1, v{N}
    s_lshl_b32 s25, s3, 3
    v_add_u32 v{ST}, s25, v{ST}
    v_and_b32 v{ST+2}, 1, v{N}
    v_lshlrev_b32 v{VUS}, 16, v{ST}
    v_lshl_add_u32 v{VUS}, v{ST+2}, 6, v{VUS}
    v_lshl_add_u32 v{VUS}, v{G}, 4, v{VUS}
    s_lshl_b32 s25, s3, 6
    v_lshlrev_b32 v{T0}, 4, v{G}
    v_add_u32 v{VCS}, {LCS}, v{T0}
    v_add_u32 v{T1}, s25, v{VCS}
    v_lshlrev_b32 v{SG2+1}, 31, v{G}
    v_or_b32 v{SG2+1}, 1.0, v{SG2+1}
    v_xor_b32 v{SG2}, 0x80000000, v{SG2+1}
    v_pk_fma_f32 {v2(CS)}, {v2(CS)}, {v2(SG2)}, {v2(CS)}
    v_pk_fma_f32 {v2(CS+2)}, {v2(CS+2)}, {v2(SG2)}, {v2(CS+2)}
    ds_write_b128 v{T1}, {v4(CS)}""")
    if OPT["b1"] == 2:
        a(f"""v_mov_b32 v{T1}, {LTAG + 4}
        v_mov_b32 v{T2}, 1
        s_waitcnt lgkmcnt(0)
        s_mov_b64 exec, 1
        ds_add_u32 v{T1}, v{T2}
        s_mov_b64 exec, -1""")
        w64(a, WC)
        a(f"""Lwsync:
        ds_read_b32 v{T2}, v{T1}
        s_waitcnt lgkmcnt(0)
        v_readfirstlane_b32 s25, v{T2}
        s_cmp_lt_u32 s25, 4
        s_cbranch_scc1 Lwsync
        v_add_u32 v{T2}, {LW}, v{VL}""")
        for f in range(28): a(f"ds_read_b128 {v4(WD+4*f)}, v{T2} offset:{f*1024}")
        for i in range(8): a(f"v_xor_b32 v{WNS+i}, 0x80008000, v{WSN+i}")
    if OPT["b1"] == 1:
        a(f"v_add_u32 v{T2}, {LW}, v{VL}\ns_waitcnt lgkmcnt(0)\ns_barrier")
        for f in range(28): a(f"ds_read_b128 {v4(WD+4*f)}, v{T2} offset:{f*1024}")
    if OPT["pf"] == 4:
        a("s_waitcnt lgkmcnt(0)\ns_cmp_eq_u32 s20, 7\ns_cbranch_scc1 Lnpf4")
        prefetch(a, 4, XF, XF + 1)
        a("Lnpf4:")
    if not OPT["w64l"] and OPT["b1"] != 2:
        w64(a, WC)
        for i in range(8): a(f"v_xor_b32 v{WNS+i}, 0x80008000, v{WSN+i}")
    stamp(a, 10, True)
    a(f"v_add_u32 v{T2}, {LW}, v{VL}")
    a(f"""s_lshl_b32 s25, s3, 4
    v_add_u32 v{ST}, s25, v{N}
    v_mul_u32_u24 v{VXR}, {PH}, v{ST}
    v_add_u32 v{VXR}, v{T0}, v{VXR}
    v_mul_u32_u24 v{VFW}, {PF}, v{ST}
    v_lshl_add_u32 v{VFW}, v{G}, 3, v{VFW}
    v_add_u32 v{VFW}, {LF}, v{VFW}
    v_lshrrev_b32 v{ST}, 2, v{N}
    v_lshl_add_u32 v{ST}, v{G}, 3, v{ST}
    v_mul_u32_u24 v{VFR}, {PF}, v{ST}
    v_and_b32 v{ST}, 3, v{N}
    v_lshl_add_u32 v{VFR}, v{ST}, 3, v{VFR}
    v_add_u32 v{VFR}, {LF}, v{VFR}
    s_lshl_b32 s23, s21, 11
    s_lshl_b32 s24, s22, 8
    s_add_u32 s23, s23, s24""")
    for r in range(4):
        a(f"s_mov_b32 s{30+2*r}, {hex(((1<<r)|(1<<(20+r))) & 0xffffffff)}")
        a(f"s_mov_b32 s{31+2*r}, {hex(((1<<(8+r))|(1<<(28+r))) & 0xffffffff)}")
    a("s_mov_b64 s[24:25], 0xffff\ns_mov_b32 s38, 0\ns_cmp_eq_u32 s22, 7\ns_cselect_b32 s39, 0xffff0000, 0")

def a_main(a):
    a("; === phase A: DFT-448 GEMM (two K halves) + row statistics, LDS transpose, DFT-64, U stores")
    q = LdsQ(a)
    def rdx(j, hf): q.read(f"ds_read_b128 {v4(XF+4*j)}, v{VXR} offset:{64*j + hf*LXH}", XF+4*j)
    def rdw(j):
        for T in range(4): q.read(f"ds_read_b128 {v4(WD+4*(7*T+j))}, v{T2} offset:{(7*T+j)*1024}", WD+4*(7*T+j))
    if OPT["b1"]:
        for j in range(7): rdx(j, 0)
    else:
        for j in range(3): rdx(j, 0); rdw(j)
    BJ = OPT["barj"]
    Q, S, M, RS = ST, ST+1, ST+2, ST+4
    def mf(A, T, j, first): a(f"v_mfma_f32_16x16x32_bf16 {v4(A+4*T)}, {v4(WD+4*(7*T+j))}, {v4(XF+4*j)}, {'0' if first else v4(A+4*T)}")
    def gram(j, first): a(f"v_mfma_f32_16x16x32_bf16 {v4(GR)}, {v4(XF+4*j)}, {v4(XF+4*j)}, {'0' if first else v4(GR)}")
    for j in range(7):
        q.need(XF + 4*j)
        gram(j, j == 0)
        for T in range(4):
            q.need(WD+4*(7*T+j))
            mf(AC1, T, j, j == 0)
        if j + 3 < 7 and not OPT["b1"]: rdx(j + 3, 0); rdw(j + 3)
        if j == BJ:
            stamp(a, 11)
            a("s_barrier")
            for k in range(BJ + 1): rdx(k, 1)
        elif j > BJ: rdx(j, 1)
    CS = WD + 28
    for j in range(7):
        q.need(XF + 4*j)
        gram(j, False)
        mf(AC2, 1, j, j == 0)
    for T in range(4): q.read(f"ds_read_b128 {v4(CS+4*T)}, v{VCS} offset:{64*T}", CS+4*T)
    stats = [None, None, f"v_mov_b32 v{Q}, 0", f"v_mov_b32 v{V_EP}, {LTAG}"]
    stats += [f"v_cndmask_b32 v{Q}, v{Q}, v{GR+r}, s[{30+2*r}:{31+2*r}]" for r in range(4)]
    stats += [f"v_add_f32 v{S}, v{AC1+7}, v{AC2+7}", f"v_cndmask_b32 v{S}, 0, v{S}, s[24:25]", None, None,
              f"v_permlane32_swap_b32 v{Q}, v{S}", f"v_add_f32 v{Q}, v{Q}, v{S}", f"v_mov_b32 v{S}, v{Q}", None, None,
              f"v_permlane16_swap_b32 v{Q}, v{S}", f"v_add_f32 v{Q}, v{Q}, v{S}", f"v_mov_b32 v{S}, v{Q}", None, None,
              f"v_permlane32_swap_b32 v{Q}, v{S}", f"v_mul_f32 v{M}, {fl(-1.0/448)}, v{S}", f"v_mul_f32 v{Q}, {fl(1.0/448)}, v{Q}",
              f"v_fma_f32 v{Q}, -v{M}, v{M}, v{Q}", f"v_max_f32 v{Q}, 0, v{Q}"]
    rb = [f"v_cvt_pk_bf16_f32 v{Q}, v{Q}, v{Q}", f"v_and_b32 v{Q}, 0xffff0000, v{Q}"]
    if OPT["ln1emu"]:
        stats += rb + [f"v_add_f32 v{Q}, {fl(1e-5)}, v{Q}"] + rb + [f"v_sqrt_f32 v{Q}, v{Q}", None] + rb + [f"v_rcp_f32 v{RS}, v{Q}"]
    else:
        stats += [f"v_add_f32 v{Q}, {fl(1e-5)}, v{Q}", f"v_rsq_f32 v{RS}, v{Q}"]
    k = stats.index(f"v_max_f32 v{Q}, 0, v{Q}") + 1
    stats[k:k] = [f"v_cvt_pk_bf16_f32 v{V_DC}, v{M}, v{M}", f"v_and_b32 v{V_DC}, 0xffff0000, v{V_DC}",
                  f"v_sub_f32 v{V_DC}, v{V_DC}, v{M}", f"v_mul_f32 v{V_DC}, {fl(448.0)}, v{V_DC}"]
    stats += ["WAITCS", f"v_mul_f32 v{M}, v{M}, v{RS}", f"v_mul_f32 v{V_DC}, v{V_DC}, v{RS}"]
    stats += [f"v_mul_f32 v{CS+i}, v{CS+i}, v{M}" for i in range(16)]
    for j in range(7):
        for T in (0, 2, 3):
            mf(AC2, T, j, j == 0)
            for _ in range(2):
                if stats:
                    t = stats.pop(0)
                    if t == "WAITCS": q.need(CS, 16)
                    elif t: a(t)
    for p in range(2): a(f"v_pk_fma_f32 {v2(AC1+4+2*p)}, {v2(AC2+4+2*p)}, {v2(SG2)}, {v2(AC1+4+2*p)}")
    for t in stats:
        if t == "WAITCS": q.need(CS, 16)
        elif t: a(t)
    stamp(a, 3)
    for T in (0, 2, 3):
        for p in range(2):
            x = AC1 + 4*T + 2*p
            a(f"v_pk_fma_f32 {v2(x)}, {v2(AC2+4*T+2*p)}, {v2(SG2)}, {v2(x)}")
    for T in (1, 0, 2, 3):
        for p in range(2):
            x = AC1 + 4*T + 2*p
            a(f"v_pk_fma_f32 {v2(x)}, {v2(x)}, {v2(RS)}, {v2(CS+4*T+2*p)} op_sel_hi:[1,0,1]")
    a(f"v_cndmask_b32 v{AC1+14}, v{AC1+14}, v{V_DC}, s[38:39]")
    for T in (1, 0, 2, 3):
        for p in range(2):
            x = AC1 + 4*T + 2*p
            a(f"v_cvt_pk_f16_f32 v{AC2+2*T+p}, v{x}, v{x+1}")
        a(f"ds_write_b64 v{VFW}, {v2(AC2+2*T)} offset:{32*T}")
    if OPT["w64l"]: a(f"s_lshl_b32 s26, s3, 12\ns_add_u32 s26, s26, {LWT}\nv_add_u32 v{T1}, s26, v{VL}")
    stamp(a, 5, 5)
    a(f"s_waitcnt lgkmcnt(0)")
    stamp(a, 6, 5)
    a(f"s_barrier")
    stamp(a, 7, 5)
    if OPT["w64l"]:
        for i in (0, 2, 4, 1, 3, 5): a(f"ds_read_b128 {v4(WC+4*i)}, v{T1} offset:{(i % 4 if i < 4 else i - 2 + 2) * 0 + i * 0 + [0, 1024, 2048, 3072, 16384, 17408][i]}")
    FA = WD + 48
    fa = lambda T, ks: FA + (2*T + ks) * 4
    q = LdsQ(a)
    for T in range(2):
        for ks in range(2):
            for TT in (T, T + 2):
                for h in range(2):
                    q.read(f"ds_read_b64_tr_b16 {v2(fa(TT, ks)+2*h)}, v{VFR} offset:{(32*ks+4*h)*PF+32*TT}", fa(TT, ks)+2*h, 2)
    q.read(f"ds_read_b32 v{V_EP}, v{V_EP}", V_EP, 1)
    UR = AC1; UI = AC1 + 8; o = XF
    tagcalc = [f"v_add_u32 v{M}, 1, v{V_EP}", f"s_mov_b32 s98, {HASH}", f"v_mul_lo_u32 v{M}, v{M}, s98"]
    for T in range(2):
        for ks in range(2):
            fr = v4(fa(T, ks)); fi = v4(fa(T + 2, ks))
            q.need(fa(T, ks))
            if T == 0 and ks == 0: stamp(a, 8, 5)
            a(f"v_mfma_f32_16x16x32_f16 {v4(UR+4*T)}, {fr}, {v4(WC+4*ks)}, {'0' if ks == 0 else v4(UR+4*T)}")
            a(f"v_mfma_f32_16x16x32_f16 {v4(UI+4*T)}, {fr}, {v4(WNS+4*ks)}, {'0' if ks == 0 else v4(UI+4*T)}")
            q.need(fa(T + 2, ks))
            a(f"v_mfma_f32_16x16x32_f16 {v4(UR+4*T)}, {fi}, {v4(WSN+4*ks)}, {v4(UR+4*T)}")
            a(f"v_mfma_f32_16x16x32_f16 {v4(UI+4*T)}, {fi}, {v4(WC+4*ks)}, {v4(UI+4*T)}")
            if T == 1 and ks == 1:
                q.need(V_EP, 1)
                for t in tagcalc: a(t)
    stamp(a, 9, 5)
    for r in range(4): a(f"v_cvt_pk_f16_f32 v{o+r}, v{UR+r}, v{UI+r}")
    a(f"buffer_store_dwordx4 {v4(o)}, v{VUS}, s[12:15], s23 offen {SC}")
    stamp(a, 10, 5)
    a(f"v_add3_u32 v{Q}, v{o}, v{o+1}, v{o+2}")
    a(f"v_sub_u32 v{M}, v{M}, v{o+3}")
    a(f"v_sub_u32 v{M}, v{M}, v{Q}")
    for r in range(3): a(f"v_cvt_pk_f16_f32 v{o+4+r}, v{UR+4+r}, v{UI+4+r}")
    a(f"""v_add3_u32 v{Q}, v{o+4}, v{o+5}, v{o+6}
    v_sub_u32 v{o+7}, v{M}, v{Q}
    buffer_store_dwordx4 {v4(o+4)}, v{VUS}, s[12:15], s23 offen offset:128 {SC}""")

def b_ids(a):
    a(f"""s_and_b32 s92, s2, 7
    s_lshr_b32 s93, s2, 6
    s_lshl_b32 s93, s93, 3
    s_or_b32 s92, s92, s93
    s_bfe_u32 s93, s2, 0x10003
    s_bfe_u32 s96, s2, 0x20004
    s_sub_u32 s95, 64, s92
    s_cmp_eq_u32 s92, 0
    s_cselect_b32 s95, 32, s95
    s_cselect_b32 s94, 0, 1
    s_xor_b32 s94, s94, s93
    s_cmp_eq_u32 s93, 0
    s_cselect_b32 s95, s92, s95
    s_lshl_b32 s96, s96, 9
    s_add_u32 s95, s95, s96
    s_lshl_b32 s96, s20, 6
    s_add_u32 s96, s96, s95
    s_mul_i32 s97, s96, 896""")

def b_setup(a):
    srd(a, 12, 6, WS_SIZE)
    srd(a, 52, 48, XB)
    srd(a, 16, 40, 896)
    b_ids(a)

def b_loads(a):
    a(f"""s_mov_b32 s26, {WS_EPOCH}
    v_mov_b32 v{T0}, 0
    buffer_load_dword v{V_EP}, v{T0}, s[12:15], s26 offen {SC}
    buffer_load_dwordx4 {v4(B_WR)}, v{VL}, s[16:19], 0 offen
    buffer_load_dwordx4 {v4(B_XR)}, v{VL}, s[8:11], s97 offen""")

def pro(a, part=0):
    a("; === address / twiddle set-up for phases B and C")
    EPS, BASE, TH, AF, AD = P_EPS, P_BASE, P_TH, B_AF, B_AD
    a(f"""s_lshl_b32 s28, s92, 16
    s_lshl_b32 s29, s20, 8
    s_add_u32 s28, s28, s29
    s_add_u32 s29, s28, 4096
    s_add_u32 s30, s28, 32768
    s_add_u32 s31, s28, 36864
    v_lshlrev_b32 v{B_VU}, 13, v{G}
    v_lshl_add_u32 v{B_VU}, v{N}, 4, v{B_VU}""") if part != 2 else None
    if part == 1: return
    a(f"""v_and_b32 v{T0}, 7, v{N}
    v_lshlrev_b32 v{T0}, 6, v{T0}
    v_add_u32 v{T0}, s95, v{T0}
    v_cvt_f32_u32 v{T0}, v{T0}
    v_cmp_gt_u32 vcc, 8, v{N}
    v_mul_f32 v{EPS}, {fl(1.0/2048)}, v{T0}
    v_lshlrev_b32 v{T1}, 2, v{G}
    v_cndmask_b32 v{EPS}, -v{EPS}, v{EPS}, vcc
    v_cvt_f32_u32 v{T1}, v{T1}
    v_mul_f32 v{BASE}, v{T1}, v{EPS}""")
    for ks in range(2):
        trig_block(a, 4, 16*ks, EPS, BASE, TH, True)
        for i in range(4):
            a(f"v_cvt_pk_f16_f32 v{AF+4*ks+i}, v{TH+i}, v{TH+4+i}")
    a(f"""v_lshrrev_b32 v{T0}, 3, v{N}
    v_and_b32 v{T1}, 3, v{N}
    v_mul_u32_u24 v{T1}, 7, v{T1}
    v_lshl_add_u32 v{T1}, v{T0}, 2, v{T1}
    s_mul_i32 s32, s20, 28
    s_add_u32 s32, s32, 1
    v_add_u32 v{T1}, s32, v{T1}
    v_sub_u32 v{T2}, 448, v{T1}
    v_cmp_gt_u32 s[34:35], 2, v{G}
    v_mov_b32 v{TH}, s93
    v_mov_b32 v{TH+1}, s94
    v_cndmask_b32 v{T2}, v{T2}, v{T1}, s[34:35]
    v_cndmask_b32 v{TH}, v{TH+1}, v{TH}, s[34:35]
    v_bfe_u32 v{TH+1}, v{N}, 2, 1
    v_cmp_eq_u32 s[60:61], v{TH}, v{TH+1}
    v_and_b32 v{TH+2}, 1, v{G}
    v_mul_u32_u24 v{TH+2}, {4*PY}, v{TH+2}
    v_add_lshl_u32 v{AD}, v{TH+2}, v{T2}, 2
    v_mov_b32 v{TH+3}, -4
    v_cndmask_b32 v{TH+3}, v{TH+3}, 4, s[34:35]
    v_add_u32 v{AD+1}, v{AD}, v{TH+3}
    v_add_u32 v{AD+2}, v{AD+1}, v{TH+3}
    v_add_u32 v{AD+3}, v{AD+2}, v{TH+3}
    v_cmp_eq_u32 s[50:51], 0, v{T0}
    s_and_b64 s[50:51], s[50:51], s[60:61]
    v_mov_b32 v{TH}, 222
    v_cmp_eq_u32 s[62:63], v{TH}, v{T1}
    s_and_b64 s[62:63], s[62:63], s[60:61]
    s_andn2_b64 s[36:37], s[62:63], s[34:35]
    v_lshlrev_b32 v{TH+2}, 2, v{TH+2}
    v_add_u32 v{TH}, {448*4}, v{TH+2}
    v_cndmask_b32 v{AD+2}, v{AD+2}, v{TH}, s[36:37]
    v_add_u32 v{TH}, {449*4}, v{TH+2}
    v_add_u32 v{B_AD4}, {450*4}, v{TH+2}
    v_cndmask_b32 v{B_AD4}, v{B_AD4}, v{TH}, s[34:35]
    s_mul_i32 s33, s20, {PY*4}
    v_lshlrev_b32 v{B_VY}, 5, v{LANE}
    v_add_u32 v{B_VY}, s33, v{B_VY}
    s_add_u32 s33, s33, {448*4}
    v_mov_b32 v{B_AD4+1}, s33""")
    for i in range(8):
        a(f"v_alignbit_b32 v{B_A2+i}, v{AF+i}, v{AF+i}, 16")
        a(f"v_xor_b32 v{B_A2+i}, 0x8000, v{B_A2+i}")
    lim_regs(a, C_L, LANE, T0)
    a(f"""s_lshl_b32 s34, s20, 5
    s_add_u32 s34, s34, {LSEL}
    v_lshlrev_b32 v{T1}, 2, v{LANE}
    v_add_u32 v{C_SW}, s34, v{T1}
    v_add_u32 v{C_SR}, {LSEL}, v{T1}
    v_lshrrev_b32 v{C_KA}, 1, v0
    v_lshlrev_b32 v{C_KA}, 6, v{C_KA}
    v_and_b32 v{T0}, 1, v0
    v_lshl_add_u32 v{C_KA}, v{T0}, 4, v{C_KA}
    s_lshl_b32 s34, s20, 6
    s_add_u32 s34, s34, {LSE2}
    v_add_u32 v{C_FW}, s34, v{T1}
    v_lshrrev_b32 v{C_PF}, 3, v{LANE}
    v_and_b32 v{C_FY}, 7, v{LANE}
    v_lshlrev_b32 v{C_FR}, 6, v{C_PF}
    v_lshl_add_u32 v{C_FR}, v{C_FY}, 2, v{C_FR}
    v_add_u32 v{C_FR}, {LSE2}, v{C_FR}
    v_lshlrev_b32 v{C_FY}, 6, v{C_FY}
    v_add_u32 v{C_FY}, {LSE2 + 32}, v{C_FY}
    v_lshlrev_b32 v{C_PF}, 7, v{C_PF}
    s_cmp_ge_u32 s2, 224
    s_cselect_b32 s33, 1024, 0
    s_add_u32 s33, s33, {WS_ROW}
    s_lshl_b32 s27, s2, 6
    s_add_u32 s27, s27, {WS_KEYS}
    s_sub_u32 s32, 2047, s96
    v_lshrrev_b32 v{T0}, 1, v0
    v_and_b32 v{T1}, 7, v{T0}
    v_lshrrev_b32 v{T2}, 6, v{T0}
    v_lshl_or_b32 v{T1}, v{T2}, 3, v{T1}
    v_sub_u32 v{T2}, 64, v{T1}
    v_cmp_eq_u32 vcc, 0, v{T1}
    v_bfe_u32 v{TH}, v{T0}, 3, 1
    v_cndmask_b32 v{T2}, v{T2}, 32, vcc
    v_cmp_eq_u32 vcc, 0, v{TH}
    v_bfe_u32 v{TH}, v{T0}, 4, 2
    v_cndmask_b32 v{T1}, v{T2}, v{T1}, vcc
    v_lshl_add_u32 v{T1}, v{TH}, 9, v{T1}
    v_and_b32 v{T0}, 1, v0
    v_lshl_add_u32 v{T1}, v{T0}, 8, v{T1}
    v_sub_u32 v{C_IX}, 2047, v{T1}
    v_subrev_u32 v{C_IX+1}, 64, v{C_IX}
    v_subrev_u32 v{C_IX+2}, 128, v{C_IX}
    v_subrev_u32 v{C_IX+3}, 192, v{C_IX}""")
    gu_prep(a)

def pro2(a):
    XU, WU, S1, S2, S3 = B_XU, B_WU, P_TH, P_TH + 2, P_TH + 4
    unpack8(a, WU, B_WR)
    a(f"""v_pk_add_f32 {v2(S1)}, {v2(WU)}, {v2(WU+2)}
    v_pk_add_f32 {v2(S2)}, {v2(WU+4)}, {v2(WU+6)}
    v_pk_add_f32 {v2(S1)}, {v2(S1)}, {v2(S2)}
    v_add_f32 v{S1}, v{S1}, v{S1+1}
    v_mov_b32 v{S2}, 0
    v_mov_b32 v{S3}, 0""")
    reduce3(a, S1, S2, S3, T0, 58, 39, 39)
    unpack8(a, XU, B_XR)
    for k in (B_S1, B_S1+1, B_S2, B_S2+1, B_S3, B_S3+1): a(f"v_mov_b32 v{k}, 0")

def anyones(a, regs_, t):
    regs_ = list(regs_)
    a(f"v_max_u32 v{t}, v{regs_[0]}, v{regs_[1]}")
    rest = regs_[2:]
    while len(rest) >= 2:
        a(f"v_max3_u32 v{t}, v{t}, v{rest[0]}, v{rest[1]}"); rest = rest[2:]
    if rest: a(f"v_max_u32 v{t}, v{t}, v{rest[0]}")
    a(f"v_cmp_eq_u32 vcc, -1, v{t}")

def wave_sum(a, v, sd):
    for k in (8, 4, 2, 1):
        a(f"v_add_u32_dpp v{v}, v{v}, v{v} row_ror:{k} row_mask:0xf bank_mask:0xf")
    for i in range(4): a(f"v_readlane_b32 s{sd+i}, v{v}, {16*i}")
    a(f"s_add_u32 s{sd}, s{sd}, s{sd+1}\ns_add_u32 s{sd+2}, s{sd+2}, s{sd+3}\ns_add_u32 s{sd}, s{sd}, s{sd+2}")

def publish_row(a):
    a("; publish this row (ln2 and out values, each closed by a checksum word)")
    a(f"""s_lshl_b32 s34, s96, 11
    s_add_u32 s34, s34, {WS_ROW}
    v_mov_b32 v{T0}, 0
    v_mov_b32 v{T1}, 0
    v_writelane_b32 v{C_LN}, 0, 56
    v_writelane_b32 v{C_OUT}, 0, 56
    s_mov_b32 exec_hi, 0x01ffffff
    v_add3_u32 v{T0}, v{C_LN}, v{C_LN+1}, v{C_LN+2}
    v_add3_u32 v{T1}, v{C_OUT}, v{C_OUT+1}, v{C_OUT+2}
    v_add_u32 v{T0}, v{T0}, v{C_LN+3}
    v_add_u32 v{T1}, v{T1}, v{C_OUT+3}
    s_mov_b32 exec_hi, -1""")
    wave_sum(a, T0, 36)
    a(f"s_sub_u32 s35, s98, s36\nv_writelane_b32 v{C_LN}, s35, 56")
    wave_sum(a, T1, 36)
    a(f"""s_sub_u32 s35, s98, s36
    v_writelane_b32 v{C_OUT}, s35, 56
    s_mov_b32 exec_hi, 0x01ffffff
    buffer_store_dwordx4 {v4(C_LN)}, v{VL}, s[12:15], s34 offen {SC}
    buffer_store_dwordx4 {v4(C_OUT)}, v{VL}, s[12:15], s34 offen offset:1024 {SC}
    s_mov_b32 exec_hi, -1""")

def fetch_row_issue(a, dst):
    a(f"""v_readlane_b32 s34, v{C_K}, s20
    s_andn2_b32 s34, 0x7ff, s34
    s_lshl_b32 s34, s34, 11
    s_add_u32 s34, s34, s33
    s_mov_b32 exec_hi, 0x01ffffff
    buffer_load_dwordx4 {v4(dst)}, v{VL}, s[12:15], s34 offen {SC}
    s_mov_b32 exec_hi, -1""")

def fetch_row_finish(a, dst, ldsaddr):
    _lbl[0] += 1
    L = f"Lrow{_lbl[0]}"
    a(f"""s_mul_i32 s29, s20, {PX}
    s_add_u32 s29, s29, {LXS}
    v_add_u32 v{ldsaddr}, s29, v{VL}
    s_mov_b32 s57, {SPIN}
    {L}:
    v_mov_b32 v{T0}, 0
    s_mov_b32 exec_hi, 0x01ffffff
    s_waitcnt vmcnt(0)
    ds_write_b128 v{ldsaddr}, {v4(dst)}
    v_add3_u32 v{T0}, v{dst}, v{dst+1}, v{dst+2}
    v_add_u32 v{T0}, v{T0}, v{dst+3}
    s_mov_b32 exec_hi, -1""")
    wave_sum(a, T0, 36)
    a(f"""s_cmp_eq_u32 s36, s98
    s_cbranch_scc1 {L}d
    s_mov_b32 exec_hi, 0x01ffffff
    s_waitcnt lgkmcnt(0)
    buffer_load_dwordx4 {v4(dst)}, v{VL}, s[12:15], s34 offen {SC}
    s_mov_b32 exec_hi, -1
    s_sub_u32 s57, s57, 1
    s_cbranch_scc0 {L}""")
    timeout_note(a, _lbl[0])
    a(f"{L}d:")

def gu_prep(a):
    srd(a, 16, 42, 448*3584)
    a(f"""v_mul_u32_u24 v{V_GU}, 3584, v0
    s_and_b32 s100, s2, 7
    s_mul_i32 s100, s100, 28
    s_lshr_b32 s101, s2, 3
    s_add_u32 s100, s100, s101
    s_lshl_b32 s26, s100, 4
    s_lshl_b32 s101, s20, 10
    s_add_u32 s101, s101, {LWT}
    s_and_b32 s45, s45, 0xffff
    s_cmp_ge_u32 s2, 224
    s_cselect_b32 s24, 7, s20""")

def gu_dma(a):
    a(f"""s_cmp_eq_u32 s24, 7
    s_cbranch_scc1 Lngu
    s_mov_b32 m0, s101
    s_add_u32 s101, s101, 8192
    buffer_load_dwordx4 v{V_GU}, s[16:19], s26 offen lds
    s_mov_b32 s16, s44
    s_mov_b32 m0, s101
    s_mov_b32 s17, s45
    buffer_load_dwordx4 v{V_GU}, s[16:19], s26 offen lds
    Lngu:""")

def wd_dma(a, j0, j1, L):
    if j0 == j1: return
    a(f"""s_cmp_lt_u32 s2, 224
    s_cbranch_scc1 {L}
    s_and_b32 s50, s2, 7
    s_cmp_eq_u32 s50, 7
    s_cbranch_scc1 {L}
    s_lshl_b32 s50, s50, 7
    s_bfe_u32 s51, s2, 0x20003
    s_lshl_b32 s51, s51, 5
    s_add_u32 s51, s51, s50""")
    srd(a, 16, 46, 1792*896)
    a(f"""v_lshrrev_b32 v{T1}, 1, v{LANE}
    v_mul_u32_u24 v{T1}, 896, v{T1}
    v_and_b32 v{T2}, 1, v{LANE}
    v_lshl_add_u32 v{T1}, v{T2}, 4, v{T1}
    s_mul_i32 s23, s20, {224*896}
    s_add_u32 s23, s23, s51
    s_add_u32 s23, s23, {j0*32*896}
    s_mul_i32 s25, s20, 7168
    s_add_u32 s25, s25, {LWT + j0*1024}""")
    for j in range(j0, j1):
        a(f"s_mov_b32 m0, s25")
        a(f"s_add_u32 s25, s25, 1024")
        a(f"buffer_load_dwordx4 v{T1}, s[16:19], s23 offen lds")
        a(f"s_add_u32 s23, s23, {32*896}")
    a(f"{L}:")

def b_main(a):
    a("; === phase B: fetch + validate U, 32-term DFT stage, h / LN2 / router key")
    R, AF, ACC, XU, WU, AD, TH = B_R, B_AF, B_ACC, B_XU, B_WU, B_AD, B_TH
    S1, S2, S3 = B_S1, B_S2, B_S3
    if OPT["sl_u0"]: a(f"s_sleep {OPT['sl_u0']}")
    def uld():
        for ks in range(2):
            for i in range(4):
                a(f"buffer_load_dwordx4 {v4(R+16*ks+4*i)}, v{B_VU}, s[12:15], s{28+2*ks+(i>>1)} offen offset:{2048*(i&1)} {SC}")
    a(f"s_mov_b32 s57, {SPIN}")
    uld()
    if OPT["prosplit"]: pro(a, 2)
    a("s_waitcnt vmcnt(8)")
    pro2(a)
    def swaps(ks):
        b = R + 16*ks
        for i in range(4):
            for j in range(i+1, 4):
                a(f"v_swap_b32 v{b+4*i+j}, v{b+4*j+i}")
    def mm(ks, dpp):
        for j in range(4):
            c = "0" if ks == 0 else v4(ACC+4*j)
            a(f"v_mfma_f32_16x16x32_f16 {v4(ACC+4*j)}, {v4(AF+4*ks)}, {v4(R+16*ks+4*j)}, {c}")
            if dpp: a(f"v_add_u32_dpp v{T0}, v{T0}, v{T0} row_ror:{8 >> j} row_mask:0xf bank_mask:0xf")
        a(f"v_mfma_f32_16x16x32_f16 {v4(TH)}, {v4(B_A2+4*ks)}, {v4(R+16*ks+8)}, {'0' if ks == 0 else v4(TH)}")
    if not OPT["part"]:
        a("s_branch Lupw\nLupoll:")
        uld()
        a("Lupw:")
    for ks in range(2):
        a(f"s_waitcnt vmcnt({4-4*ks})")
        b = R + 16*ks
        for i in range(8):
            if ks == 0 and i == 0: a(f"v_add_u32 v{T0}, v{b}, v{b+1}")
            else: a(f"v_add3_u32 v{T0}, v{T0}, v{b+2*i}, v{b+2*i+1}")
        swaps(ks)
        mm(ks, ks == 1)
    a(f"""v_cmp_ne_u32 vcc, s99, v{T0}
    s_cmp_eq_u64 vcc, 0""")
    if OPT["part"]:
        a("s_cbranch_scc0 Lupart")
        def part():
            C4 = B_TH
            a("Lupart:\ns_lshl_b32 s34, s98, 4")
            swaps(0); swaps(1)
            a("Lupchk:")
            for i in range(4):
                a(f"v_add3_u32 v{C4+i}, v{R+4*i}, v{R+4*i+1}, v{R+4*i+2}")
            for i in range(4):
                a(f"v_add3_u32 v{C4+i}, v{C4+i}, v{R+4*i+3}, v{R+16+4*i}")
            for i in range(4):
                a(f"v_add3_u32 v{C4+i}, v{C4+i}, v{R+16+4*i+1}, v{R+16+4*i+2}")
            for i in range(4):
                a(f"v_add_u32 v{C4+i}, v{C4+i}, v{R+16+4*i+3}")
            for k in (8, 4, 2, 1):
                for i in range(4):
                    a(f"v_add_u32_dpp v{C4+i}, v{C4+i}, v{C4+i} row_ror:{k} row_mask:0xf bank_mask:0xf")
            MK = ["s[36:37]", "s[38:39]", "s[24:25]", "vcc"]
            for i in range(4): a(f"v_cmp_ne_u32 {MK[i]}, s34, v{C4+i}")
            a(f"""s_or_b64 s[26:27], s[36:37], s[38:39]""".replace("s[26:27]", "s[100:101]"))
            a(f"""s_or_b64 s[100:101], s[100:101], s[24:25]
            s_or_b64 s[100:101], s[100:101], vcc
            s_cbranch_scc0 Lupgo""")
            if OPT["sl_r"]: a(f"s_sleep {OPT['sl_r']}")
            for i in range(4):
                a(f"s_cmp_eq_u64 {MK[i]}, 0\ns_cbranch_scc1 Lupok{i}")
                for ks in range(2):
                    a(f"buffer_load_dwordx4 {v4(R+16*ks+4*i)}, v{B_VU}, s[12:15], s{28+2*ks+(i>>1)} offen offset:{2048*(i&1)} {SC}")
                a(f"Lupok{i}:")
            a(f"""s_waitcnt vmcnt(0)
            s_sub_u32 s57, s57, 1
            s_cbranch_scc0 Lupchk
            Lupgo:""")
            for ks in range(2):
                swaps(ks); mm(ks, False)
            a("s_nop 7\ns_branch Lupolld")
        TAIL.append(part)
    else:
        a(f"""s_cbranch_scc1 Lupolld
        s_sub_u32 s57, s57, 1
        s_cbranch_scc0 Lupoll""")
        timeout_note(a, 9)
    a("Lupolld:")
    stamp(a, 6)
    if OPT["stamps"] == 3: a(f"s_sub_u32 s{64+2*11}, {SPIN+1}, s57")
    for j in range(4):
        if j in (0, 3): a(f"s_mov_b64 exec, {['s[60:61]', '', '', 's[50:51]'][j]}")
        for r in (0, 2):
            a(f"ds_write2st64_b32 v{AD+j}, v{ACC+4*j+r}, v{ACC+4*j+r+1} offset0:{r*PY//64} offset1:{(r+1)*PY//64}")
    a("s_cmp_lg_u32 s20, 7\ns_cbranch_scc1 Lndc\ns_mov_b64 exec, s[62:63]")
    for r in (0, 2):
        a(f"ds_write2st64_b32 v{B_AD4}, v{TH+r}, v{TH+r+1} offset0:{r*PY//64} offset1:{(r+1)*PY//64}")
    a("Lndc:\ns_mov_b64 exec, -1")
    gu_dma(a)
    wd_dma(a, 0, OPT['wdsplit'], 'Lnwd0')
    a("""s_mov_b32 exec_hi, 0x00ffffff
    s_waitcnt lgkmcnt(0)
    s_barrier""")
    H = R
    a(f"ds_read_b128 {v4(TH)}, v{B_AD4+1}\nds_read_b128 {v4(H)}, v{B_VY} offset:{LY}\nds_read_b128 {v4(H+4)}, v{B_VY} offset:{LY+16}")
    a("s_mov_b64 s[36:37], 1\ns_mov_b64 s[38:39], 0x10000001")
    for hf in range(2):
        a(f"s_waitcnt lgkmcnt({1-hf})")
        if hf == 0:
            a(f"""v_add_f32 v{TH+1}, v{TH+1}, v{TH+2}
            v_add_f32 v{TH}, v{TH}, v{H}
            v_cndmask_b32 v{TH}, v{TH}, v{TH+1}, s[36:37]
            v_mul_f32 v{TH}, 0.5, v{TH}
            v_cndmask_b32 v{H}, v{H}, v{TH}, s[38:39]""")
        for p in range(2):
            x = 4*hf + 2*p
            a(f"v_pk_add_f32 {v2(H+x)}, {v2(H+x)}, {v2(XU+x)}")
        for p in range(2):
            x = 4*hf + 2*p
            a(f"v_pk_add_f32 {v2(S1)}, {v2(S1)}, {v2(H+x)}")
            a(f"v_pk_fma_f32 {v2(S2)}, {v2(H+x)}, {v2(H+x)}, {v2(S2)}")
            a(f"v_pk_fma_f32 {v2(S3)}, {v2(H+x)}, {v2(WU+x)}, {v2(S3)}")
    a(f"""s_mov_b32 exec_hi, -1
    v_add_f32 v{S1}, v{S1}, v{S1+1}
    v_add_f32 v{S2}, v{S2}, v{S2+1}
    v_add_f32 v{S3}, v{S3}, v{S3+1}""")
    reduce3(a, S1, S2, S3, T0, 37, 38, 39)
    M, V, SD, RS, C0, KEY = TH, TH+1, TH+2, TH+4, TH+6, C_KEY
    a(f"""v_mov_b32 v{V}, {fl(1.0/448)}
    v_mul_f32 v{M}, s37, v{V}
    v_mul_f32 v{V}, s38, v{V}
    v_mov_b32 v{KEY}, s39
    v_fma_f32 v{V}, -v{M}, v{M}, v{V}
    v_fma_f32 v{KEY}, -v{M}, s58, v{KEY}
    v_max_f32 v{SD}, 0, v{V}
    v_add_f32 v{V}, {fl(1e-5)}, v{SD}""")
    a(f"""v_rsq_f32 v{RS}, v{V}
    s_lshl_b32 s34, s20, 2
    v_mov_b32 v{T2}, s34
    v_mul_f32 v{KEY}, v{KEY}, v{RS}
    v_cvt_pk_bf16_f32 v{KEY}, v{KEY}, v{KEY}
    v_ashrrev_i32 v{T0}, 31, v{KEY}
    v_or_b32 v{T0}, 0x80000000, v{T0}
    v_xor_b32 v{KEY}, v{KEY}, v{T0}
    v_and_b32 v{KEY}, 0xffff0000, v{KEY}
    v_or_b32 v{KEY}, s32, v{KEY}
    ds_write_b32 v{T2}, v{KEY} offset:{LKEY}
    v_mov_b32 v{C_STK}, 0xffff
    v_lshlrev_b32 v{T1}, 2, v{LANE}
    v_mov_b32 v{T2}, {LKEY}
    s_waitcnt lgkmcnt(0)
    s_barrier
    s_cmp_lg_u32 s20, 0
    s_cbranch_scc1 Lnokey
    s_mov_b64 exec, 0xff
    ds_read_b32 v{T0}, v{T1} offset:{LKEY}
    s_waitcnt lgkmcnt(0)
    v_bfi_b32 v{T0}, v{C_STK}, s59, v{T0}
    buffer_store_dword v{T0}, v{T1}, s[12:15], s27 offen {SC}
    s_mov_b64 exec, -1
    Lnokey:
    ds_read_b128 {v4(ACC)}, v{T2}
    ds_read_b128 {v4(ACC+4)}, v{T2} offset:16""")
    stamp(a, 7)
    sd_chain(a, SD, SD)
    a(f"v_rcp_f32 v{RS}, v{SD}\ns_nop 0\nv_mul_f32 v{C0}, -v{M}, v{RS}")
    for p in range(4):
        a(f"v_pk_fma_f32 {v2(XU+2*p)}, {v2(H+2*p)}, {v2(RS)}, {v2(C0)} op_sel_hi:[1,0,0]")
    for p in range(4):
        a(f"v_pk_add_f32 {v2(H+2*p)}, {v2(H+2*p)}, {v2(XU+2*p)}")
    for p in range(4):
        a(f"v_cvt_pk_bf16_f32 v{C_LN+p}, v{XU+2*p}, v{XU+2*p+1}")
        a(f"v_cvt_pk_bf16_f32 v{C_OUT+p}, v{H+2*p}, v{H+2*p+1}")
    a(f"""s_waitcnt lgkmcnt(0)
    v_max3_u32 v{T0}, v{ACC}, v{ACC+1}, v{ACC+2}
    v_max3_u32 v{T1}, v{ACC+3}, v{ACC+4}, v{ACC+5}
    v_max3_u32 v{T0}, v{T0}, v{ACC+6}, v{ACC+7}
    v_max_u32 v{T0}, v{T0}, v{T1}
    v_cmp_eq_u32 s[60:61], v{T0}, v{KEY}
    s_cmp_eq_u64 s[60:61], 0
    s_cbranch_scc1 Lnoeager""")
    publish_row(a)
    a("Lnoeager:")

QP = {1: "quad_perm:[1,0,3,2]", 2: "quad_perm:[2,3,0,1]", 3: "quad_perm:[3,2,1,0]", 7: "row_half_mirror"}
class Net:
    def __init__(s, a, x, t, fill): s.a = a; s.x = x; s.t = t; s.fill = list(fill)
    def f(s, n=1):
        for _ in range(n):
            if s.fill: s.a(s.fill.pop(0))
    def ce(s, m):
        a, x, t = s.a, s.x, s.t
        s.f()
        if m == 4:
            a(f"v_max_u32_dpp v{t}, v{x}, v{x} row_shl:4 row_mask:0xf bank_mask:0x5")
            a(f"v_min_u32_dpp v{t}, v{x}, v{x} row_shr:4 row_mask:0xf bank_mask:0xa")
            s.x, s.t = t, x
        else:
            a(f"v_mov_b32_dpp v{t}, v{x} {QP[m]} row_mask:0xf bank_mask:0xf")
            a(f"v_med3_u32 v{x}, v{x}, v{t}, v{C_L[1 << (m.bit_length()-1)]}")
    def merge(s, last_clean=True):
        a = s.a
        s.f()
        a(f"v_max_u32_dpp v{s.x}, v{s.x}, v{s.x} row_mirror row_mask:0xf bank_mask:0xf")
        for m in (4, 2, 1): s.ce(m)
        for sw in ("v_permlane16_swap_b32", "v_permlane32_swap_b32"):
            a(f"v_mov_b32 v{s.t}, v{s.x}")
            s.f()
            a(f"{sw} v{s.x}, v{s.t}")
            s.f()
            a(f"v_max_u32_dpp v{s.x}, v{s.t}, v{s.x} row_half_mirror row_mask:0xf bank_mask:0xf")
            if last_clean or "16" in sw:
                for m in (4, 2, 1): s.ce(m)
        s.f(99)

def fast_select(a):
    K, X, Y, P, Q = C_K, C_X, C_Y, C_TMP, C_TMP + 1
    a(f"""v_max_u32 v{P}, v{K}, v{K+1}
    v_max_u32 v{Q}, v{K+2}, v{K+3}
    v_max_u32 v{X}, v{P}, v{Q}""")
    fill = [f"v_min_u32 v{Y}, v{P}, v{Q}", f"v_min_u32 v{P}, v{K}, v{K+1}", f"v_min_u32 v{Q}, v{K+2}, v{K+3}",
            f"v_max3_u32 v{Y}, v{Y}, v{P}, v{Q}"]
    fill += [f"v_max_u32_dpp v{Y}, v{Y}, v{Y} row_ror:{k} row_mask:0xf bank_mask:0xf" for k in (8, 4, 2, 1)]
    fill += [f"v_mov_b32 v{P}, v{Y}", f"v_permlane16_swap_b32 v{Y}, v{P}", f"v_max_u32 v{Y}, v{Y}, v{P}",
             f"v_mov_b32 v{P}, v{Y}", f"v_permlane32_swap_b32 v{Y}, v{P}", f"v_max_u32 v{Y}, v{Y}, v{P}",
             "s_mov_b64 vcc, 0x100"]
    n = Net(a, X, C_TMP + 2, fill)
    for m in (1, 3, 1, 7, 2, 1): n.ce(m)
    n.merge()
    a(f"""s_mov_b64 exec, 0x1ff
    v_cndmask_b32 v{P}, v{n.x}, v{Y}, vcc
    ds_write_b32 v{C_FW}, v{P}""")
    if OPT["rowpf"]:
        m8 = (1 << OPT["rowpf"]) - 1; m32 = m8 * 0x01010101
        a(f"""s_mov_b32 exec_lo, {hex(m32)}
        s_mov_b32 exec_hi, {hex(m32)}
        v_bfi_b32 v{Q}, v{n.x}, 0, v{C_TMP+3}
        v_lshl_add_u32 v{Q}, v{Q}, 11, v{C_PF}
        buffer_load_dword v{JUNK}, v{Q}, s[12:15], s33 offen {SC}""")
    a(f"""s_mov_b64 exec, -1
    s_waitcnt lgkmcnt(0)
    s_barrier
    ds_read_b32 v{X}, v{C_FR}
    ds_read_b32 v{Y}, v{C_FY}
    s_waitcnt lgkmcnt(0)""")
    fill = [f"v_max_u32_dpp v{Y}, v{Y}, v{Y} {QP[m]} row_mask:0xf bank_mask:0xf" for m in (1, 2, 7)]
    n = Net(a, X, C_TMP + 2, fill)
    n.merge(last_clean=False)
    a(f"""v_cmp_gt_u32 vcc, v{Y}, v{n.x}
    s_cmp_eq_u64 vcc, 0
    s_cbranch_scc0 Lfullsel
    v_mov_b32 v{K}, v{n.x}
    Lseldone:""")

def c_select(a):
    a("; === top-8 selection over all router keys")
    K = C_K
    a(f"s_mov_b32 s34, {WS_KEYS}\nv_mov_b32 v{C_TMP+3}, 0x7ff")
    def chk():
        a(f"v_xor_b32 v{T0}, v{K}, v{K+1}")
        a(f"v_xor_b32 v{T1}, v{K+2}, v{K+3}")
        a(f"v_xor_b32 v{T2}, s59, v{K}")
        a(f"v_xor_b32 v{C_X}, s59, v{K+2}")
        a(f"v_or3_b32 v{T0}, v{T0}, v{T1}, v{T2}")
        for i in range(4): a(f"v_bfi_b32 v{K+i}, v{C_STK}, v{C_IX+i}, v{K+i}")
        a(f"v_or_b32 v{T0}, v{T0}, v{C_X}")
        a(f"v_cmp_ne_u16 vcc, 0, v{T0}")
    poll(a, lambda: a(f"buffer_load_dwordx4 {v4(K)}, v{C_KA}, s[12:15], s34 offen {SC}"), chk, pre=OPT["sl_k"])
    stamp(a, 8)
    fast_select(a)
    stamp(a, 9)
    a(f"""v_cmp_eq_u32 vcc, v{K}, v{C_KEY}
    s_and_b64 s[62:63], vcc, s[60:61]
    s_cmp_lg_u64 s[62:63], vcc
    s_cbranch_scc0 Lsel_pub""")
    publish_row(a)
    a("Lsel_pub:")
    fetch_row_issue(a, 84)
    a(f"""s_cmp_eq_u64 vcc, 0
    s_cbranch_scc0 Lsel_done
    s_mov_b32 exec_hi, 0x00ffffff
    buffer_store_dwordx4 {v4(C_OUT)}, v{VL}, s[52:55], s97 offen {['', 'sc1', 'nt', 'sc0 sc1'][OPT['ost']]}
    s_mov_b32 exec_hi, -1
    Lsel_done:""")

def c1(a):
    a("; === gate / up projection for this workgroup's 8 FFN columns")
    XR = 84; XF_ = 168; ACC = 52; XU = 60; WF = 88
    a(f"""s_cmp_lg_u32 s20, 0
    s_cbranch_scc1 Lc1_now
    v_lshrrev_b32 v{T0}, 2, v{N}
    v_lshl_add_u32 v{T0}, v{G}, 3, v{T0}
    v_lshlrev_b32 v{T0}, 4, v{T0}
    v_and_b32 v{T1}, 1, v{N}
    v_lshl_add_u32 v{T0}, v{T1}, 3, v{T0}
    v_bfe_u32 v{T1}, v{N}, 1, 1
    v_lshl_add_u32 v{T0}, v{T1}, 13, v{T0}
    v_add_u32 v{T0}, {LWT}, v{T0}""")
    for j in range(14):
        for h in range(2):
            a(f"ds_read_b64_tr_b16 {v2(WF+4*j+2*h)}, v{T0} offset:{(32*j+4*h)*16}")
    a(f"""v_and_b32 v{XU+4}, 7, v{N}
    v_mul_u32_u24 v{XU+4}, {PX}, v{XU+4}
    v_lshl_add_u32 v{XU+4}, v{G}, 4, v{XU+4}
    v_lshlrev_b32 v{XU+5}, 4, v{N}
    v_lshl_add_u32 v{XU+5}, v{G}, 3, v{XU+5}
    s_lshl_b32 s22, s100, 7
    s_add_u32 s22, s22, {WS_ACT}
    Lc1_now:""")
    fetch_row_finish(a, XR, T2)
    a(f"""s_waitcnt lgkmcnt(0)
    s_barrier
    s_cmp_lg_u32 s20, 0
    s_cbranch_scc1 Lc1_epoch""")
    stamp(a, 10)
    for j in range(14):
        a(f"ds_read_b128 {v4(XF_+4*j)}, v{XU+4} offset:{LXS+64*j}")
    for j in range(14):
        a(f"s_waitcnt lgkmcnt({13-j})")
        A = ACC + 4*(j & 1)
        a(f"v_mfma_f32_16x16x32_bf16 {v4(A)}, {v4(WF+4*j)}, {v4(XF_+4*j)}, {'0' if j < 2 else v4(A)}")
    for p in range(2):
        a(f"v_pk_add_f32 {v2(ACC+2*p)}, {v2(ACC+2*p)}, {v2(ACC+4+2*p)}")
    for p in range(2): a(f"v_cvt_pk_bf16_f32 v{ACC+4+p}, v{ACC+2*p}, v{ACC+2*p+1}")
    for p in range(2): a(f"v_mov_b32 v{ACC+6+p}, v{ACC+4+p}")
    for p in range(2): a(f"v_permlane32_swap_b32 v{ACC+4+p}, v{ACC+6+p}")
    for p in range(2):
        a(f"v_lshlrev_b32 v{ACC+2*p}, 16, v{ACC+4+p}")
        a(f"v_and_b32 v{ACC+2*p+1}, 0xffff0000, v{ACC+4+p}")
    for r in range(4): a(f"v_mul_f32 v{XU+r}, {fl(-1.4426950408889634)}, v{ACC+r}")
    for r in range(4): a(f"v_exp_f32 v{XU+r}, v{XU+r}")
    for p in range(2):
        a(f"v_lshlrev_b32 v{XR+2*p}, 16, v{ACC+6+p}")
        a(f"v_and_b32 v{XR+2*p+1}, 0xffff0000, v{ACC+6+p}")
    for r in range(4): a(f"v_add_f32 v{XU+r}, 1.0, v{XU+r}")
    for r in range(4): a(f"v_rcp_f32 v{XU+r}, v{XU+r}")
    for r in range(4): a(f"v_mul_f32 v{ACC+r}, v{ACC+r}, v{XU+r}")
    for p in range(2): a(f"v_cvt_pk_bf16_f32 v{ACC+4+p}, v{ACC+2*p}, v{ACC+2*p+1}")
    for p in range(2):
        a(f"v_lshlrev_b32 v{ACC+2*p}, 16, v{ACC+4+p}")
        a(f"v_and_b32 v{ACC+2*p+1}, 0xffff0000, v{ACC+4+p}")
    for p in range(2): a(f"v_pk_mul_f32 {v2(ACC+2*p)}, {v2(ACC+2*p)}, {v2(XR+2*p)}")
    for p in range(2): a(f"v_cvt_pk_bf16_f32 v{XR+p}, v{ACC+2*p}, v{ACC+2*p+1}")
    for p in range(2): a(f"v_min_u32 v{XR+p}, -2, v{XR+p}")
    a(f"""s_mov_b32 exec_lo, 0x00ff00ff
    s_mov_b32 exec_hi, 0
    buffer_store_dwordx2 {v2(XR)}, v{XU+5}, s[12:15], s22 offen {SC}
    s_branch Lend
    Lc1_epoch:
    s_lshl_b32 s29, s2, 3
    s_add_u32 s29, s29, s20
    s_cmp_lg_u32 s29, 1
    s_cbranch_scc1 Lend
    s_mov_b64 exec, 1
    v_mov_b32 v{T0}, s56
    s_mov_b32 s29, {WS_EPOCH}
    buffer_store_dword v{T0}, v{VL}, s[12:15], s29 offen {SC}
    s_branch Lend""")

def c2(a):
    a("; === down projection for 16 output columns, routed rows written")
    K = C_K
    OA = 8; OR = 10; SG = 12; VA = 13; VO = 14; VW = 15; WF = 88; AF = 116; ACC = 52; RD = 168
    a(f"""s_mul_i32 s24, s20, 7168
    s_add_u32 s24, s24, {LWT}
    v_lshrrev_b32 v{T0}, 2, v{N}
    v_lshl_add_u32 v{T0}, v{G}, 3, v{T0}
    v_lshlrev_b32 v{T0}, 5, v{T0}
    v_and_b32 v{T1}, 3, v{N}
    v_lshl_add_u32 v{T0}, v{T1}, 3, v{T0}
    v_add_u32 v{VW}, s24, v{T0}""")
    for j in range(7):
        for h in range(2):
            a(f"ds_read_b64_tr_b16 {v2(WF+4*j+2*h)}, v{VW} offset:{(32*j+4*h)*32}")
    a(f"""v_and_b32 v{T1}, 7, v{N}
    v_mul_u32_u24 v{VO}, {PX}, v{T1}
    v_lshl_add_u32 v{VO}, v{G}, 3, v{VO}
    v_add_u32 v{VO}, s51, v{VO}
    v_lshlrev_b32 v{VA}, 4, v{T1}
    v_lshl_add_u32 v{VA}, v{G}, 7, v{VA}
    s_mul_i32 s25, s20, {7*512}
    s_add_u32 s25, s25, {WS_ACT}
    v_and_b32 v{OA}, 0x7ff, v{K}
    v_sub_u32 v{OA}, 2047, v{OA}
    v_mul_u32_u24 v{OA}, 896, v{OA}
    v_lshl_add_u32 v{OA}, v{G}, 3, v{OA}
    v_ashrrev_i32 v{T2}, 31, v{K}
    v_not_b32 v{T2}, v{T2}
    v_or_b32 v{T2}, 0x80000000, v{T2}
    v_xor_b32 v{K+1}, v{K}, v{T2}
    v_and_b32 v{K+1}, 0xffff0000, v{K+1}""")
    sigmoid_mul(a, SG, K+1, "1.0", T2)
    rbf(a, SG, SG)
    a(f"""v_lshlrev_b32 v{T1}, 4, v0
    v_add_u32 v{T1}, {LRED}, v{T1}""")
    def lds():
        for j in range(7):
            a(f"buffer_load_dwordx4 {v4(AF+4*j)}, v{VA}, s[12:15], s25 offen offset:{512*j} {SC}")
    if OPT["c2re"]:
        if OPT["sl_a"]: a(f"s_sleep {OPT['sl_a']}")
        lds()
        fetch_row_finish(a, 84, T2)
        anyones(a, range(AF, AF+28), T0)
        a("s_cmp_eq_u64 vcc, 0\ns_cbranch_scc1 Lactok")
        poll(a, lds, lambda: anyones(a, range(AF, AF+28), T0))
        a("Lactok:")
    else:
        fetch_row_finish(a, 84, T2)
        poll(a, lds, lambda: anyones(a, range(AF, AF+28), T0), pre=OPT["sl_a"])
    stamp(a, 10)
    a("s_waitcnt lgkmcnt(0)")
    for j in range(7):
        A = ACC + 4*(j & 1)
        a(f"v_mfma_f32_16x16x32_bf16 {v4(A)}, {v4(WF+4*j)}, {v4(AF+4*j)}, {'0' if j < 2 else v4(A)}")
    for p in range(2):
        a(f"v_pk_add_f32 {v2(ACC+2*p)}, {v2(ACC+2*p)}, {v2(ACC+4+2*p)}")
    a(f"""ds_write_b128 v{T1}, {v4(ACC)}
    s_waitcnt lgkmcnt(0)
    s_barrier
    s_cmp_lg_u32 s20, 0
    s_cbranch_scc1 Lend
    ds_read_b64 {v2(OR)}, v{VO} offset:{LXS}""")
    for w in range(1, 8):
        a(f"ds_read_b128 {v4(RD+4*w)}, v{T1} offset:{1024*w}")
    a("s_waitcnt lgkmcnt(7)")
    for i in range(2):
        a(f"v_lshlrev_b32 v{RD+2*i}, 16, v{OR+i}")
        a(f"v_and_b32 v{RD+2*i+1}, 0xffff0000, v{OR+i}")
    for w in range(1, 8):
        a(f"s_waitcnt lgkmcnt({7-w})")
        for p in range(2):
            a(f"v_pk_add_f32 {v2(ACC+2*p)}, {v2(ACC+2*p)}, {v2(RD+4*w+2*p)}")
    for rnd in range(2):
        for p in range(2): a(f"v_cvt_pk_bf16_f32 v{ACC+4+p}, v{ACC+2*p}, v{ACC+2*p+1}")
        for p in range(2):
            a(f"v_lshlrev_b32 v{ACC+2*p}, 16, v{ACC+4+p}")
            a(f"v_and_b32 v{ACC+2*p+1}, 0xffff0000, v{ACC+4+p}")
        for p in range(2):
            if rnd == 0: a(f"v_pk_mul_f32 {v2(ACC+2*p)}, {v2(ACC+2*p)}, {v2(SG)} op_sel_hi:[1,0]")
            else: a(f"v_pk_add_f32 {v2(ACC+2*p)}, {v2(ACC+2*p)}, {v2(RD+2*p)}")
    for p in range(2): a(f"v_cvt_pk_bf16_f32 v{OR+p}, v{ACC+2*p}, v{ACC+2*p+1}")
    a(f"""s_mov_b32 exec_lo, 0x00ff00ff
    s_mov_b32 exec_hi, 0x00ff00ff
    buffer_store_dwordx2 {v2(OR)}, v{OA}, s[52:55], s51 offen {['', 'sc1', 'nt', 'sc0 sc1'][OPT['ost']]}""")

def clears(a):
    a(f"""v_mov_b32 v{JUNK+2}, -1
    v_lshlrev_b32 v{T1}, 2, v{LANE}
    s_lshl_b32 s24, s2, 7
    s_add_u32 s24, s24, {WS_ACT}
    s_mov_b32 exec_hi, 0
    buffer_store_dword v{JUNK+2}, v{T1}, s[12:15], s24 offen {SC}
    s_mov_b32 exec_lo, 1
    s_lshl_b32 s23, s96, 11
    s_add_u32 s23, s23, {WS_ROW}
    buffer_load_dword v{JUNK}, v{VL}, s[52:55], s97 offen
    buffer_load_dword v{JUNK+1}, v{VL}, s[12:15], s23 offen
    s_mov_b64 exec, -1""")

def prefetch(a, w0=1, T0=T0, T1=T1):
    a("; L2 warm-up of the FFN weights (one word per line, values unused)")
    a(f"""s_and_b32 s24, s2, 7
    s_lshr_b32 s25, s2, 3
    s_mul_i32 s26, s25, {14*3584}
    s_mov_b32 s18, {448*3584}
    s_mov_b32 s19, 0x00020000
    s_cmp_eq_u32 s20, {w0+2}
    s_cbranch_scc1 Lpf_d
    v_lshrrev_b32 v{T0}, 2, v{LANE}
    v_mul_u32_u24 v{T0}, 3584, v{T0}
    v_and_b32 v{T1}, 3, v{LANE}
    v_lshl_add_u32 v{T0}, v{T1}, 7, v{T0}
    s_mul_i32 s24, s24, 448
    s_cmp_eq_u32 s20, {w0}
    s_cselect_b32 s16, s42, s44
    s_cselect_b32 s17, s43, s45
    s_branch Lpf_go
    Lpf_d:
    v_mul_u32_u24 v{T0}, 896, v{LANE}
    s_lshl_b32 s24, s24, 7
    s_mov_b32 s16, s46
    s_mov_b32 s17, s47
    Lpf_go:
    s_and_b32 s17, s17, 0xffff
    s_add_u32 s26, s26, s24
    s_mov_b32 exec_hi, 0x00ffffff
    buffer_load_dword v{JUNK}, v{T0}, s[16:19], s26 offen
    s_mov_b32 exec_hi, -1""")

def kernel(a):
    if OPT["stamps"]:
        for k in range(NST): a(f"s_mov_b32 s{64+2*k}, 0")
    stamp(a, 0)
    a(f"""v_readfirstlane_b32 s20, v0
    s_cmp_ge_u32 s2, 256
    s_cbranch_scc1 Lexit
    s_cmp_lt_u32 s20, 256
    s_cbranch_scc1 Lloader""")
    if OPT["b1"] == 2: a(f"v_mov_b32 v{T1}, {LTAG + 4}\nv_mov_b32 v{T2}, 0\nds_write_b32 v{T1}, v{T2}")
    a(f"""
    s_getpc_b64 s[30:31]
    Lpc:
    v_and_b32 v{T2}, 255, v0
    v_lshlrev_b32 v{JUNK}, 7, v{T2}
    v_mov_b32 v{JUNK+1}, s31
    v_add_co_u32 v{JUNK}, vcc, s30, v{JUNK}
    v_addc_co_u32 v{JUNK+1}, vcc, 0, v{JUNK+1}, vcc
    v_cmp_gt_u32 vcc, (Lexit-Lpc)/128+1, v{T2}
    s_and_saveexec_b64 s[30:31], vcc
    s_cbranch_execz Lpfd
    global_load_dword v{JUNK+2}, v[{JUNK}:{JUNK+1}], off
    Lpfd:""")
    if OPT["b1"] == 2: a("s_waitcnt lgkmcnt(0)\ns_barrier")
    a(f"""s_branch Lcompute
    Lloader:
    s_load_dwordx2 s[8:9], s[0:1], 0
    s_lshr_b32 s20, s20, 6
    v_and_b32 v{LANE}, 63, v0
    v_lshlrev_b32 v{VL}, 4, v{LANE}
    s_and_b32 s21, s2, 31
    s_lshr_b32 s22, s2, 5
    s_mov_b32 s10, {XB}
    s_mov_b32 s11, 0x00020000
    v_cmp_lt_u32 vcc, 29, v{LANE}
    s_lshl_b32 s23, s20, 9
    s_add_u32 s23, s23, s21
    s_mul_i32 s23, s23, 896
    s_mul_i32 s24, s20, {16*PH}
    v_add_u32 v{T1}, {32*896 - 480}, v{VL}
    s_mov_b32 s25, {'s22' if OPT['rot'] else '0'}
    v_cndmask_b32 v{T1}, v{VL}, v{T1}, vcc
    s_mov_b32 exec_lo, 0xcfffffff
    s_mov_b32 exec_hi, 0x03ffffff
    s_mov_b32 s28, 0""")
    if OPT["b1"] == 2: a("s_barrier")
    a("s_waitcnt lgkmcnt(0)")
    stamp(a, 3, True)
    if OPT["dmau"]:
        a("Ldma:")
        for i in range(8):
            a(f"""s_mul_i32 s26, s25, {2*PH}
            s_mul_i32 s27, s25, {64*896}
            s_add_u32 m0, s26, s24
            s_add_u32 s27, s27, s23
            s_add_u32 s25, s25, 1
            buffer_load_dwordx4 v{T1}, s[8:11], s27 offen lds
            s_and_b32 s25, s25, 7""")
        a(f"""s_add_u32 s24, s24, {LXH}
        s_add_u32 s23, s23, 448
        s_add_u32 s28, s28, 1
        s_cmp_lt_u32 s28, 2""")
        if OPT["b1"] == 1: a("s_cbranch_scc0 Ldmad\ns_barrier\ns_branch Ldma\nLdmad:")
        else: a("s_cbranch_scc1 Ldma")
    else:
        a(f"""Ldma:
        s_mul_i32 s26, s25, {2*PH}
        s_mul_i32 s27, s25, {64*896}
        s_add_u32 s26, s26, s24
        s_add_u32 s27, s27, s23
        s_mov_b32 m0, s26
        s_add_u32 s25, s25, 1
        buffer_load_dwordx4 v{T1}, s[8:11], s27 offen lds
        s_and_b32 s25, s25, 7
        s_add_u32 s28, s28, 1
        s_cmp_lg_u32 s28, 8
        s_cbranch_scc1 Ldma1
        s_add_u32 s24, s24, {LXH}
        s_add_u32 s23, s23, 448
        Ldma1:
        s_cmp_lt_u32 s28, 16
        s_cbranch_scc1 Ldma""")
    def ltail():
        a(f"""Lltail:
        s_mov_b64 exec, -1
        s_load_dwordx2 s[6:7], s[0:1], 96
        s_load_dwordx8 s[40:47], s[0:1], 48
        s_load_dwordx2 s[48:49], s[0:1], 80
        v_and_b32 v{N}, 15, v0
        v_bfe_u32 v{G}, v0, 4, 2""")
        stamp(a, 6, True)
        early = OPT["e2a"]
        if early:
            a("s_waitcnt vmcnt(8)")
            stamp(a, 1)
            a("s_barrier")
        a("s_waitcnt lgkmcnt(0)")
        b_setup(a)
        b_loads(a)
        a("s_cmp_lg_u32 s20, 0\ns_cbranch_scc1 Lw123a")
        clears(a)
        if not early:
            a("s_waitcnt vmcnt(14)")
            stamp(a, 1)
            a("s_barrier")
        a("s_waitcnt vmcnt(6)")
        stamp(a, 2)
        a(f"""s_barrier
        v_mov_b32 v{T0}, {LTAG}
        s_waitcnt vmcnt(5)
        ds_write_b32 v{T0}, v{V_EP}
        s_branch Lprol
        Lw123a:""")
        if OPT["pf"] == 3: prefetch(a)
        if not early:
            a(f"s_waitcnt vmcnt(12)")
            stamp(a, 1)
            a("s_barrier")
        a(f"s_waitcnt vmcnt({4 if OPT['pf'] == 3 else 3})")
        stamp(a, 2)
        a(f"s_barrier")
        if OPT["pf"] == 1: prefetch(a)
        a(f"s_waitcnt vmcnt({2 if OPT['pf'] == 4 else 3})")
        a("Lprol:")
        if OPT["wdh"]: wd_dma(a, 0, 7, "Lnwd2")
        if OPT["w64l"]:
            a("s_mov_b32 s3, s20")
            w64(a, AC1)
            for i in range(8): a(f"v_xor_b32 v{AC1+16+i}, 0x80008000, v{AC1+8+i}")
            a(f"s_lshl_b32 s26, s3, 12\ns_add_u32 s26, s26, {LWT}\nv_add_u32 v{T1}, s26, v{VL}")
            for i in range(6): a(f"ds_write_b128 v{T1}, {v4(AC1+4*i)} offset:{[0, 1024, 2048, 3072, 16384, 17408][i]}")
        if not OPT["prolate"]: pro(a)
        stamp(a, 3)
        def hint_store():
            a(f"""s_cmp_lg_u32 s20, 0
            s_cbranch_scc1 Lnh
            s_lshl_b32 s34, s2, 6
            s_add_u32 s34, s34, {WS_HINT}
            v_add_u32 v{T0}, 1, v{V_EP}
            s_mov_b64 exec, 1
            buffer_store_dword v{T0}, v{VL}, s[12:15], s34 offen {SC}
            s_mov_b64 exec, -1
            Lnh:""")
        if OPT["hint"] == 2: hint_store()
        a("s_waitcnt lgkmcnt(0)\ns_barrier")
        if OPT["hint"] == 1: hint_store()
        a("s_branch Lpro1" if OPT["prolate"] else "s_branch Lpro2")
    if OPT["layout"]: a("s_branch Lltail")
    else: ltail()
    a("Lcompute:")
    a(f"""s_mov_b64 exec, -1
    s_load_dwordx2 s[8:9], s[0:1], 0
    s_lshr_b32 s20, s20, 6
    v_and_b32 v{LANE}, 63, v0
    v_lshlrev_b32 v{VL}, 4, v{LANE}
    s_and_b32 s21, s2, 31
    s_lshr_b32 s22, s2, 5
    s_mov_b32 s10, {XB}
    s_mov_b32 s11, 0x00020000
    s_load_dwordx2 s[6:7], s[0:1], 96
    s_load_dwordx8 s[40:47], s[0:1], 48
    s_load_dwordx2 s[48:49], s[0:1], 80
    v_and_b32 v{N}, 15, v0
    v_bfe_u32 v{G}, v0, 4, 2
    s_and_b32 s3, s20, 3""")
    if OPT["prio"]: a("s_setprio 3")
    stamp(a, 9, True)
    a_pre(a)
    stamp(a, 11, True)
    a("s_waitcnt lgkmcnt(0)")
    b_setup(a)
    for i in range(OPT["warm"]): a(f"v_mfma_f32_16x16x32_bf16 {v4(AC2+4*(i%4))}, {v4(WC)}, {v4(WSN)}, {v4(AC2+4*(i%4))}")
    stamp(a, 1)
    a("s_barrier")
    stamp(a, 2)
    a_main(a)
    stamp(a, 4)
    if OPT["prio"]: a("s_setprio 0")
    a(f"buffer_load_dwordx4 {v4(B_WR)}, v{VL}, s[16:19], 0 offen")
    a(f"buffer_load_dwordx4 {v4(B_XR)}, v{VL}, s[8:11], s97 offen")
    a("Lpro1:")
    pro(a, 1 if OPT["prosplit"] else 0)
    a("Lpro2:")
    a(f"""v_readfirstlane_b32 s56, v{V_EP}
    s_add_u32 s56, s56, 1
    s_mul_i32 s98, s56, {HASH}
    s_lshl_b32 s99, s98, 6
    s_and_b32 s59, s56, 0xffff""")
    if OPT["hint"]:
        a(f"""v_and_b32 v{T1}, 31, v{LANE}
        v_lshlrev_b32 v{T1}, 6, v{T1}
        s_lshl_b32 s34, s20, 11
        s_add_u32 s34, s34, {WS_HINT}
        s_mov_b32 s57, 4000""")
        if OPT["sl_h0"]: a(f"s_sleep {OPT['sl_h0']}")
        a(f"""Lhint:
        buffer_load_dword v{T0}, v{T1}, s[12:15], s34 offen {SC}
        s_waitcnt vmcnt(0)
        v_cmp_ne_u32 vcc, s56, v{T0}
        s_cmp_eq_u64 vcc, 0
        s_cbranch_scc1 Lhintd""")
        if OPT["sl_h"]: a(f"s_sleep {OPT['sl_h']}")
        a(f"""s_sub_u32 s57, s57, 1
        s_cbranch_scc0 Lhint
        Lhintd:""")
    else:
        a("s_barrier")
    stamp(a, 5)
    b_main(a)
    if OPT["wdh"]: a("s_cmp_lt_u32 s20, 4\ns_cbranch_scc1 Lnwd1")
    wd_dma(a, OPT['wdsplit'], 7, 'Lnwd1')
    c_select(a)
    a("s_cmp_ge_u32 s2, 224\ns_cbranch_scc1 Lc2")
    c1(a)
    a("Lc2:\ns_and_b32 s50, s2, 7\ns_cmp_eq_u32 s50, 7\ns_cbranch_scc1 Lend\ns_lshl_b32 s50, s50, 7\ns_bfe_u32 s51, s2, 0x20003\ns_lshl_b32 s51, s51, 5\ns_add_u32 s51, s51, s50")
    c2(a)
    a("Lend:")
    dump_stamps(a)
    if OPT["layout"]:
        a("s_endpgm")
        ltail()
        for f in TAIL: f()
    a("Lexit:\ns_endpgm\nLfullsel:")
    select8(a, C_K, C_TMP, C_L, C_SW, C_SR)
    a("s_branch Lseldone")

DOC = '''; ---------------------------------------------------------------------------------------------
;      into LDS, waves 4-7 build the cos/sin tables, run the DFT-448 for 28 frequencies (raw bf16 x,
;      sums), then the DFT-64 over s2, and write U (f16) to d_ws.
;      28 workgroups do the down projection for 16 output columns and write the routed rows.
; ---------------------------------------------------------------------------------------------
'''
NAME = "sequential_preLN__spectral_fnet__moe_arch_mod__prompt_kernel"
def build():
    a = Asm()
    kernel(a)
    body = a.finish()
    if OPT["align"]: body = align_pass(body)
    return gen.HDR + f"""; @launch grid=(256,1,1) block=(512,1,1) lds={LDS_TOTAL}
{DOC}.amdgcn_target "amdgcn-amd-amdhsa--gfx950"
.text
.globl {NAME}
.p2align 8
.type {NAME},@function
{NAME}:
""" + body + f""".section .rodata,"a"
.p2align 6
.amdhsa_kernel {NAME}
  .amdhsa_next_free_vgpr {NVGPR}
  .amdhsa_next_free_sgpr 102
  .amdhsa_accum_offset {NVGPR}
  .amdhsa_group_segment_fixed_size 0
  .amdhsa_kernarg_size 104
  .amdhsa_user_sgpr_count 2
  .amdhsa_user_sgpr_kernarg_segment_ptr 1
  .amdhsa_system_sgpr_workgroup_id_x 1
.end_amdhsa_kernel
"""

if __name__ == "__main__":
    for x in list(sys.argv[1:]):
        if x.startswith("--"):
            k, _, v = x[2:].partition("=")
            assert k in OPT, k
            OPT[k] = int(v) if v else 1
            sys.argv.remove(x)
    open(sys.argv[1], "w").write(build())
```

```python
import sys
from asmlib import Asm, fl, align_pass
import gen
from gen import srd, v4, v2, rbf, sd_chain, reduce3, unpack8, lim_regs, select8, sigmoid_mul

WS_KEYS = 0x200000
WS_HINT = 0x204000
WS_EPOCH = 0x208000
WS_ACT = 0x210000
WS_STAMP = 0x3c0000
WS_ROW = 0x400000
WS_SIZE = 0x800000
XB = 1835008
PH = 480; PX = 928; PF = 136; PY = 512
LXH = 64 * PH
LW = 2 * LXH; LCS = LW + 28 * 1024; LTAG = LCS + 256; LF = LCS + 272; LWT = LF + 64 * PF; LDS_TOTAL = LWT + 57344
LY = 0
LSEL = 16384; LSE2 = 16640; LKEY = 17152; LXS = 17408; LRED = 24832
SPIN = 4000000
SC = "sc1"
HASH = "0x9e3779b1"
OPT = dict(stamps=0, cyc=0, align=0, sl_u0=4, sl_k=15, sl_a=4, rowpf=2, barj=5, dbgto=0, ost=0, c2re=1, rot=1, pf=3, wdsplit=0, w64l=0, layout=1, e2a=1, prolate=1, amp=-1, ampw=0, ampb=224, prio=1, wdh=0, cheb=1, ln1emu=1, dmau=1, b1=0, part=0, sl_r=4, hint=0, sl_h=4, sl_h0=0, trim=1, prosplit=0, warm=0, amap=0)
NST = 14

def stamp(a, k, early=False):
    if OPT["stamps"] == 5:
        if early != 5 and k not in (0, 3, 4, NST - 1): return
    elif OPT["stamps"] == 4:
        if early == 5 or (not early and k not in (0, 1, 2, NST - 1)): return
    elif early: return
    if OPT["stamps"] == 2 and k not in (0, NST - 1): return
    if OPT["stamps"]: a(f"{'s_memtime' if OPT['cyc'] else 's_memrealtime'} s[{64+2*k}:{65+2*k}]")
def dump_stamps(a):
    if OPT["amp"] >= 0:
        k = OPT["amp"]
        a(f"s_memrealtime s[{64+2*(NST-2)}:{65+2*(NST-2)}]")
        a(f"""s_cmp_lg_u32 s2, {OPT['ampb']}
        s_cbranch_scc1 Lampd
        s_cmp_lg_u32 s20, {OPT['ampw']}
        s_cbranch_scc1 Lampd
        s_waitcnt lgkmcnt(0)
        s_sub_u32 s60, s{64+2*k}, s64
        s_mul_i32 s60, s60, 9
        s_add_u32 s60, s60, s{64+2*(NST-2)}
        Lamp:
        s_memrealtime s[62:63]
        s_waitcnt lgkmcnt(0)
        s_sub_u32 s61, s62, s60
        s_cmp_lt_i32 s61, 0
        s_cbranch_scc1 Lamp
        Lampd:""")
        return
    if not OPT["stamps"]: return
    stamp(a, NST - 2)
    a("s_waitcnt vmcnt(0)")
    stamp(a, NST - 1)
    a("s_mov_b64 exec, 1\ns_waitcnt lgkmcnt(0)")
    a(f"s_lshl_b32 s60, s2, 3\ns_add_u32 s60, s60, s20\ns_lshl_b32 s60, s60, 6\ns_add_u32 s60, s60, {WS_STAMP}\nv_mov_b32 v1, 0")
    for k in range(NST):
        a(f"v_mov_b32 v2, s{64+2*k}\nbuffer_store_dword v2, v1, s[12:15], s60 offen offset:{4*k}")

_lbl = [0]
TAIL = []
def timeout_note(a, ident):
    if not OPT["dbgto"]: return
    a(f"""s_lshl_b32 s100, s2, 8
    s_add_u32 s100, s100, s20
    s_add_u32 s100, s100, {ident << 24}
    v_mov_b32 v{JUNK+3}, s100
    s_mov_b32 s100, {0x3f0000 + 4*ident}
    s_mov_b64 exec, 1
    buffer_store_dword v{JUNK+3}, v{VL}, s[12:15], s100 offen
    v_mov_b32 v{JUNK+3}, s36
    buffer_store_dword v{JUNK+3}, v{VL}, s[12:15], s100 offen offset:64
    v_mov_b32 v{JUNK+3}, s98
    buffer_store_dword v{JUNK+3}, v{VL}, s[12:15], s100 offen offset:128
    v_mov_b32 v{JUNK+3}, s34
    buffer_store_dword v{JUNK+3}, v{VL}, s[12:15], s100 offen offset:192
    s_mov_b64 exec, -1""")
def poll(a, loads, check, pre=0):
    _lbl[0] += 1
    L = f"Lpoll{_lbl[0]}"
    if pre: a(f"s_sleep {pre}")
    a(f"s_mov_b32 s57, {SPIN}\n{L}:")
    loads()
    a("s_waitcnt vmcnt(0)")
    check()
    a(f"""s_cmp_eq_u64 vcc, 0
    s_cbranch_scc1 {L}d
    s_sub_u32 s57, s57, 1
    s_cbranch_scc0 {L}""")
    timeout_note(a, _lbl[0])
    a(f"{L}d:")

class LdsQ:
    def __init__(s, a): s.a = a; s.q = []
    def read(s, text, b, n=4):
        s.a(text); s.q.append(set(range(b, b + n)))
    def need(s, b, n=4):
        rs = set(range(b, b + n)); last = -1
        for i, d in enumerate(s.q):
            if d & rs: last = i
        if last >= 0:
            s.a(f"s_waitcnt lgkmcnt({len(s.q) - 1 - last})")
            s.q = s.q[last+1:]

LANE, N, G, T0, T1, T2, VL = 1, 2, 3, 4, 5, 6, 7
B_XR = 8; B_WR = 12; V_EP = 16; VFW = 17; VFR = 18; VXR = 19; VCS = 20; VUS = 21; ST = 22
WC = 28; WSN = 36; WNS = 44
AC1 = 52; AC2 = 68; GR = 84; XF = 88; WD = 116
JUNK = 228; SG2 = 232; V_GU = 234; V_DC = 235; B_A2 = 236; B_AD4 = 244; NVGPR = 248
B_AF = 28; B_AD = 36; B_VY = 40; B_VU = 41; C_L = {1: 42, 2: 43, 4: 44}; C_SW = 45; C_SR = 46; C_KA = 47
C_FW = 48; C_FR = 49; C_FY = 50; C_PF = 51
B_R = 116; B_ACC = 52; B_XU = 68; B_WU = 76; B_S1, B_S2, B_S3 = 88, 90, 92; B_TH = 96; P_TH = 104; P_EPS = 112; P_BASE = 113
C_K = 148; C_TMP = 152; C_KEY = 156; C_X = 157; C_Y = 158; C_OUT = 160; C_LN = 164; C_IX = 224; C_STK = 159

def trig_block(a, n, k0, eps, base, th, want_sin):
    for i in range(n):
        k = k0 + i
        if k == 0: a(f"v_mov_b32 v{th+i}, v{base}")
        else: a(f"v_fmamk_f32 v{th+i}, v{eps}, {fl(float(k))}, v{base}")
    for i in range(n):
        if want_sin: a(f"v_sin_f32 v{th+n+i}, v{th+i}")
        a(f"v_cos_f32 v{th+i}, v{th+i}")

def w64(a, D):
    EPS, BASE, TH, S = ST + 4, ST + 5, XF, ST
    a(f"""v_lshrrev_b32 v{S}, 1, v{N}
    s_lshl_b32 s25, s3, 3
    v_add_u32 v{S}, s25, v{S}
    v_sub_u32 v{S+1}, 64, v{S}
    v_cmp_eq_u32 vcc, 0, v{S}
    v_and_b32 v{S+2}, 1, v{N}
    v_cndmask_b32 v{S+1}, v{S+1}, 32, vcc
    v_cmp_eq_u32 vcc, 0, v{S+2}
    v_lshlrev_b32 v{S+2}, 3, v{G}
    v_cndmask_b32 v{S+1}, v{S+1}, v{S}, vcc
    v_cvt_f32_u32 v{S+2}, v{S+2}
    v_and_b32 v{S}, 1, v{S+1}
    v_cvt_f32_u32 v{S+1}, v{S+1}
    v_mul_u32_u24 v{S}, 0x8000, v{S}
    v_mul_f32 v{EPS}, {fl(1.0/64)}, v{S+1}
    v_lshl_or_b32 v{S}, v{S}, 16, v{S}
    v_mul_f32 v{BASE}, v{S+2}, v{EPS}""")
    if OPT["cheb"]:
        C2 = S + 3; CV = XF; SV = XF + 8
        a(f"""v_cos_f32 v{C2}, v{EPS}
        v_add_f32 v{CV+1}, v{EPS}, v{BASE}
        v_sin_f32 v{SV}, v{BASE}
        v_cos_f32 v{CV}, v{BASE}
        v_sin_f32 v{SV+1}, v{CV+1}
        v_cos_f32 v{CV+1}, v{CV+1}
        v_add_f32 v{C2}, v{C2}, v{C2}""")
        for i in range(2, 8):
            for Vv in (CV, SV): a(f"v_fma_f32 v{Vv+i}, v{C2}, v{Vv+i-1}, -v{Vv+i-2}")
        for i in range(4):
            a(f"v_cvt_pk_f16_f32 v{D+i}, v{CV+2*i}, v{CV+2*i+1}")
            a(f"v_cvt_pk_f16_f32 v{D+8+i}, v{SV+2*i}, v{SV+2*i+1}")
        for i in range(4):
            a(f"v_xor_b32 v{D+4+i}, v{S}, v{D+i}")
            a(f"v_xor_b32 v{D+12+i}, v{S}, v{D+8+i}")
        return
    for ks in range(2):
        for h in range(2):
            trig_block(a, 4, 32*ks + 4*h, EPS, BASE, TH, True)
            for i in range(2):
                a(f"v_cvt_pk_f16_f32 v{D+4*ks+2*h+i}, v{TH+2*i}, v{TH+2*i+1}")
                a(f"v_cvt_pk_f16_f32 v{D+8+4*ks+2*h+i}, v{TH+4+2*i}, v{TH+4+2*i+1}")

def a_pre(a):
    a("; === phase A set-up: DFT-448 table tile (three-term recurrence), its column sums, DFT-64 fragments")
    EPS, BASE, TH, ONE, TO, CS = ST + 4, ST + 5, XF, XF + 8, XF + 12, AC1
    a(f"""s_and_b32 s25, s3, 1
    s_lshl_b32 s25, s25, 2
    v_and_b32 v{T0}, 3, v{N}
    v_add_u32 v{T0}, s25, v{T0}
    v_lshrrev_b32 v{T1}, 2, v{N}
    s_mul_i32 s26, s22, 28
    s_add_u32 s26, s26, 1
    v_mad_u32_u24 v{T1}, v{T1}, 7, v{T0}
    v_add_u32 v{T1}, s26, v{T1}
    v_cmp_ne_u32 vcc, 7, v{T0}
    s_lshr_b32 s25, s3, 1
    s_mul_i32 s25, s25, {fl(0.25)}
    v_cndmask_b32 v{T1}, 0, v{T1}, vcc
    v_cvt_f32_u32 v{T1}, v{T1}
    v_mul_f32 v{EPS}, {fl(1.0/448)}, v{T1}
    v_lshlrev_b32 v{T0}, 3, v{G}
    v_cvt_f32_u32 v{T2}, v{T0}
    v_fma_f32 v{BASE}, v{T2}, v{EPS}, s25
    s_mul_i32 s25, s3, {7*1024}
    s_add_u32 s25, s25, {LW}
    v_add_u32 v{T1}, s25, v{VL}""")
    for i in range(4): a(f"v_mov_b32 v{ONE+i}, 0x3f803f80")
    if OPT["cheb"]:
        C2 = ST + 3; V = WD
        a(f"v_cos_f32 v{C2}, v{EPS}")
        for j in range(7):
            for i in range(2):
                k = 32*j + i
                if k == 0: a(f"v_mov_b32 v{V}, v{BASE}")
                else: a(f"v_fmamk_f32 v{V+8*j+i}, v{EPS}, {fl(float(k))}, v{BASE}")
        a(f"v_add_f32 v{C2}, v{C2}, v{C2}")
        for j in range(7):
            for i in range(2): a(f"v_cos_f32 v{V+8*j+i}, v{V+8*j+i}")
        for i in range(2, 8):
            for j in range(7):
                a(f"v_fma_f32 v{V+8*j+i}, v{C2}, v{V+8*j+i-1}, -v{V+8*j+i-2}")
        for j in range(7):
            o = V + 56 + 4*j
            for i in range(4): a(f"v_cvt_pk_bf16_f32 v{o+i}, v{V+8*j+2*i}, v{V+8*j+2*i+1}")
            a(f"ds_write_b128 v{T1}, {v4(o)} offset:{j*1024}")
            a(f"v_mfma_f32_16x16x32_bf16 {v4(CS)}, {v4(o)}, {v4(ONE)}, {'0' if j == 0 else v4(CS)}")
    else:
      for j in range(7):
        trig_block(a, 8, 32*j, EPS, BASE, TH, False)
        o = TO + 4*(j & 1)
        for i in range(4): a(f"v_cvt_pk_bf16_f32 v{o+i}, v{TH+2*i}, v{TH+2*i+1}")
        a(f"ds_write_b128 v{T1}, {v4(o)} offset:{j*1024}")
        a(f"v_mfma_f32_16x16x32_bf16 {v4(CS)}, {v4(o)}, {v4(ONE)}, {'0' if j == 0 else v4(CS)}")
    a(f"""v_lshrrev_b32 v{ST}, 1, v{N}
    s_lshl_b32 s25, s3, 3
    v_add_u32 v{ST}, s25, v{ST}
    v_and_b32 v{ST+2}, 1, v{N}
    v_lshlrev_b32 v{VUS}, 16, v{ST}
    v_lshl_add_u32 v{VUS}, v{ST+2}, 6, v{VUS}
    v_lshl_add_u32 v{VUS}, v{G}, 4, v{VUS}
    s_lshl_b32 s25, s3, 6
    v_lshlrev_b32 v{T0}, 4, v{G}
    v_add_u32 v{VCS}, {LCS}, v{T0}
    v_add_u32 v{T1}, s25, v{VCS}
    v_lshlrev_b32 v{SG2+1}, 31, v{G}
    v_or_b32 v{SG2+1}, 1.0, v{SG2+1}
    v_xor_b32 v{SG2}, 0x80000000, v{SG2+1}
    v_pk_fma_f32 {v2(CS)}, {v2(CS)}, {v2(SG2)}, {v2(CS)}
    v_pk_fma_f32 {v2(CS+2)}, {v2(CS+2)}, {v2(SG2)}, {v2(CS+2)}
    ds_write_b128 v{T1}, {v4(CS)}""")
    if OPT["b1"] == 2:
        a(f"""v_mov_b32 v{T1}, {LTAG + 4}
        v_mov_b32 v{T2}, 1
        s_waitcnt lgkmcnt(0)
        s_mov_b64 exec, 1
        ds_add_u32 v{T1}, v{T2}
        s_mov_b64 exec, -1""")
        w64(a, WC)
        a(f"""Lwsync:
        ds_read_b32 v{T2}, v{T1}
        s_waitcnt lgkmcnt(0)
        v_readfirstlane_b32 s25, v{T2}
        s_cmp_lt_u32 s25, 4
        s_cbranch_scc1 Lwsync
        v_add_u32 v{T2}, {LW}, v{VL}""")
        for f in range(28): a(f"ds_read_b128 {v4(WD+4*f)}, v{T2} offset:{f*1024}")
        for i in range(8): a(f"v_xor_b32 v{WNS+i}, 0x80008000, v{WSN+i}")
    if OPT["b1"] == 1:
        a(f"v_add_u32 v{T2}, {LW}, v{VL}\ns_waitcnt lgkmcnt(0)\ns_barrier")
        for f in range(28): a(f"ds_read_b128 {v4(WD+4*f)}, v{T2} offset:{f*1024}")
    if OPT["pf"] == 4:
        a("s_waitcnt lgkmcnt(0)\ns_cmp_eq_u32 s20, 7\ns_cbranch_scc1 Lnpf4")
        prefetch(a, 4, XF, XF + 1)
        a("Lnpf4:")
    if not OPT["w64l"] and OPT["b1"] != 2:
        w64(a, WC)
        for i in range(8): a(f"v_xor_b32 v{WNS+i}, 0x80008000, v{WSN+i}")
    stamp(a, 10, True)
    a(f"v_add_u32 v{T2}, {LW}, v{VL}")
    a(f"""s_lshl_b32 s25, s3, 4
    v_add_u32 v{ST}, s25, v{N}
    v_mul_u32_u24 v{VXR}, {PH}, v{ST}
    v_add_u32 v{VXR}, v{T0}, v{VXR}
    v_mul_u32_u24 v{VFW}, {PF}, v{ST}
    v_lshl_add_u32 v{VFW}, v{G}, 3, v{VFW}
    v_add_u32 v{VFW}, {LF}, v{VFW}
    v_lshrrev_b32 v{ST}, 2, v{N}
    v_lshl_add_u32 v{ST}, v{G}, 3, v{ST}
    v_mul_u32_u24 v{VFR}, {PF}, v{ST}
    v_and_b32 v{ST}, 3, v{N}
    v_lshl_add_u32 v{VFR}, v{ST}, 3, v{VFR}
    v_add_u32 v{VFR}, {LF}, v{VFR}
    s_lshl_b32 s23, s21, 11
    s_lshl_b32 s24, s22, 8
    s_add_u32 s23, s23, s24""")
    for r in range(4):
        a(f"s_mov_b32 s{30+2*r}, {hex(((1<<r)|(1<<(20+r))) & 0xffffffff)}")
        a(f"s_mov_b32 s{31+2*r}, {hex(((1<<(8+r))|(1<<(28+r))) & 0xffffffff)}")
    a("s_mov_b64 s[24:25], 0xffff\ns_mov_b32 s38, 0\ns_cmp_eq_u32 s22, 7\ns_cselect_b32 s39, 0xffff0000, 0")

def a_main(a):
    a("; === phase A: DFT-448 GEMM (two K halves) + row statistics, LDS transpose, DFT-64, U stores")
    q = LdsQ(a)
    def rdx(j, hf): q.read(f"ds_read_b128 {v4(XF+4*j)}, v{VXR} offset:{64*j + hf*LXH}", XF+4*j)
    def rdw(j):
        for T in range(4): q.read(f"ds_read_b128 {v4(WD+4*(7*T+j))}, v{T2} offset:{(7*T+j)*1024}", WD+4*(7*T+j))
    if OPT["b1"]:
        for j in range(7): rdx(j, 0)
    else:
        for j in range(3): rdx(j, 0); rdw(j)
    BJ = OPT["barj"]
    Q, S, M, RS = ST, ST+1, ST+2, ST+4
    def mf(A, T, j, first): a(f"v_mfma_f32_16x16x32_bf16 {v4(A+4*T)}, {v4(WD+4*(7*T+j))}, {v4(XF+4*j)}, {'0' if first else v4(A+4*T)}")
    def gram(j, first): a(f"v_mfma_f32_16x16x32_bf16 {v4(GR)}, {v4(XF+4*j)}, {v4(XF+4*j)}, {'0' if first else v4(GR)}")
    for j in range(7):
        q.need(XF + 4*j)
        gram(j, j == 0)
        for T in range(4):
            q.need(WD+4*(7*T+j))
            mf(AC1, T, j, j == 0)
        if j + 3 < 7 and not OPT["b1"]: rdx(j + 3, 0); rdw(j + 3)
        if j == BJ:
            stamp(a, 11)
            a("s_barrier")
            for k in range(BJ + 1): rdx(k, 1)
        elif j > BJ: rdx(j, 1)
    CS = WD + 28
    for j in range(7):
        q.need(XF + 4*j)
        gram(j, False)
        mf(AC2, 1, j, j == 0)
    for T in range(4): q.read(f"ds_read_b128 {v4(CS+4*T)}, v{VCS} offset:{64*T}", CS+4*T)
    stats = [None, None, f"v_mov_b32 v{Q}, 0", f"v_mov_b32 v{V_EP}, {LTAG}"]
    stats += [f"v_cndmask_b32 v{Q}, v{Q}, v{GR+r}, s[{30+2*r}:{31+2*r}]" for r in range(4)]
    stats += [f"v_add_f32 v{S}, v{AC1+7}, v{AC2+7}", f"v_cndmask_b32 v{S}, 0, v{S}, s[24:25]", None, None,
              f"v_permlane32_swap_b32 v{Q}, v{S}", f"v_add_f32 v{Q}, v{Q}, v{S}", f"v_mov_b32 v{S}, v{Q}", None, None,
              f"v_permlane16_swap_b32 v{Q}, v{S}", f"v_add_f32 v{Q}, v{Q}, v{S}", f"v_mov_b32 v{S}, v{Q}", None, None,
              f"v_permlane32_swap_b32 v{Q}, v{S}", f"v_mul_f32 v{M}, {fl(-1.0/448)}, v{S}", f"v_mul_f32 v{Q}, {fl(1.0/448)}, v{Q}",
              f"v_fma_f32 v{Q}, -v{M}, v{M}, v{Q}", f"v_max_f32 v{Q}, 0, v{Q}"]
    rb = [f"v_cvt_pk_bf16_f32 v{Q}, v{Q}, v{Q}", f"v_and_b32 v{Q}, 0xffff0000, v{Q}"]
    if OPT["ln1emu"]:
        stats += rb + [f"v_add_f32 v{Q}, {fl(1e-5)}, v{Q}"] + rb + [f"v_sqrt_f32 v{Q}, v{Q}", None] + rb + [f"v_rcp_f32 v{RS}, v{Q}"]
    else:
        stats += [f"v_add_f32 v{Q}, {fl(1e-5)}, v{Q}", f"v_rsq_f32 v{RS}, v{Q}"]
    k = stats.index(f"v_max_f32 v{Q}, 0, v{Q}") + 1
    stats[k:k] = [f"v_cvt_pk_bf16_f32 v{V_DC}, v{M}, v{M}", f"v_and_b32 v{V_DC}, 0xffff0000, v{V_DC}",
                  f"v_sub_f32 v{V_DC}, v{V_DC}, v{M}", f"v_mul_f32 v{V_DC}, {fl(448.0)}, v{V_DC}"]
    stats += ["WAITCS", f"v_mul_f32 v{M}, v{M}, v{RS}", f"v_mul_f32 v{V_DC}, v{V_DC}, v{RS}"]
    stats += [f"v_mul_f32 v{CS+i}, v{CS+i}, v{M}" for i in range(16)]
    for j in range(7):
        for T in (0, 2, 3):
            mf(AC2, T, j, j == 0)
            for _ in range(2):
                if stats:
                    t = stats.pop(0)
                    if t == "WAITCS": q.need(CS, 16)
                    elif t: a(t)
    for p in range(2): a(f"v_pk_fma_f32 {v2(AC1+4+2*p)}, {v2(AC2+4+2*p)}, {v2(SG2)}, {v2(AC1+4+2*p)}")
    for t in stats:
        if t == "WAITCS": q.need(CS, 16)
        elif t: a(t)
    stamp(a, 3)
    for T in (0, 2, 3):
        for p in range(2):
            x = AC1 + 4*T + 2*p
            a(f"v_pk_fma_f32 {v2(x)}, {v2(AC2+4*T+2*p)}, {v2(SG2)}, {v2(x)}")
    for T in (1, 0, 2, 3):
        for p in range(2):
            x = AC1 + 4*T + 2*p
            a(f"v_pk_fma_f32 {v2(x)}, {v2(x)}, {v2(RS)}, {v2(CS+4*T+2*p)} op_sel_hi:[1,0,1]")
    a(f"v_cndmask_b32 v{AC1+14}, v{AC1+14}, v{V_DC}, s[38:39]")
    for T in (1, 0, 2, 3):
        for p in range(2):
            x = AC1 + 4*T + 2*p
            a(f"v_cvt_pk_f16_f32 v{AC2+2*T+p}, v{x}, v{x+1}")
        a(f"ds_write_b64 v{VFW}, {v2(AC2+2*T)} offset:{32*T}")
    if OPT["w64l"]: a(f"s_lshl_b32 s26, s3, 12\ns_add_u32 s26, s26, {LWT}\nv_add_u32 v{T1}, s26, v{VL}")
    stamp(a, 5, 5)
    a(f"s_waitcnt lgkmcnt(0)")
    stamp(a, 6, 5)
    a(f"s_barrier")
    stamp(a, 7, 5)
    if OPT["w64l"]:
        for i in (0, 2, 4, 1, 3, 5): a(f"ds_read_b128 {v4(WC+4*i)}, v{T1} offset:{(i % 4 if i < 4 else i - 2 + 2) * 0 + i * 0 + [0, 1024, 2048, 3072, 16384, 17408][i]}")
    FA = WD + 48
    fa = lambda T, ks: FA + (2*T + ks) * 4
    q = LdsQ(a)
    for T in range(2):
        for ks in range(2):
            for TT in (T, T + 2):
                for h in range(2):
                    q.read(f"ds_read_b64_tr_b16 {v2(fa(TT, ks)+2*h)}, v{VFR} offset:{(32*ks+4*h)*PF+32*TT}", fa(TT, ks)+2*h, 2)
    q.read(f"ds_read_b32 v{V_EP}, v{V_EP}", V_EP, 1)
    UR = AC1; UI = AC1 + 8; o = XF
    tagcalc = [f"v_add_u32 v{M}, 1, v{V_EP}", f"s_mov_b32 s98, {HASH}", f"v_mul_lo_u32 v{M}, v{M}, s98"]
    for T in range(2):
        for ks in range(2):
            fr = v4(fa(T, ks)); fi = v4(fa(T + 2, ks))
            q.need(fa(T, ks))
            if T == 0 and ks == 0: stamp(a, 8, 5)
            a(f"v_mfma_f32_16x16x32_f16 {v4(UR+4*T)}, {fr}, {v4(WC+4*ks)}, {'0' if ks == 0 else v4(UR+4*T)}")
            a(f"v_mfma_f32_16x16x32_f16 {v4(UI+4*T)}, {fr}, {v4(WNS+4*ks)}, {'0' if ks == 0 else v4(UI+4*T)}")
            q.need(fa(T + 2, ks))
            a(f"v_mfma_f32_16x16x32_f16 {v4(UR+4*T)}, {fi}, {v4(WSN+4*ks)}, {v4(UR+4*T)}")
            a(f"v_mfma_f32_16x16x32_f16 {v4(UI+4*T)}, {fi}, {v4(WC+4*ks)}, {v4(UI+4*T)}")
            if T == 1 and ks == 1:
                q.need(V_EP, 1)
                for t in tagcalc: a(t)
    stamp(a, 9, 5)
    for r in range(4): a(f"v_cvt_pk_f16_f32 v{o+r}, v{UR+r}, v{UI+r}")
    a(f"buffer_store_dwordx4 {v4(o)}, v{VUS}, s[12:15], s23 offen {SC}")
    stamp(a, 10, 5)
    a(f"v_add3_u32 v{Q}, v{o}, v{o+1}, v{o+2}")
    a(f"v_sub_u32 v{M}, v{M}, v{o+3}")
    a(f"v_sub_u32 v{M}, v{M}, v{Q}")
    for r in range(3): a(f"v_cvt_pk_f16_f32 v{o+4+r}, v{UR+4+r}, v{UI+4+r}")
    a(f"""v_add3_u32 v{Q}, v{o+4}, v{o+5}, v{o+6}
    v_sub_u32 v{o+7}, v{M}, v{Q}
    buffer_store_dwordx4 {v4(o+4)}, v{VUS}, s[12:15], s23 offen offset:128 {SC}""")

def b_ids(a):
    a(f"""s_and_b32 s92, s2, 7
    s_lshr_b32 s93, s2, 6
    s_lshl_b32 s93, s93, 3
    s_or_b32 s92, s92, s93
    s_bfe_u32 s93, s2, 0x10003
    s_bfe_u32 s96, s2, 0x20004
    s_sub_u32 s95, 64, s92
    s_cmp_eq_u32 s92, 0
    s_cselect_b32 s95, 32, s95
    s_cselect_b32 s94, 0, 1
    s_xor_b32 s94, s94, s93
    s_cmp_eq_u32 s93, 0
    s_cselect_b32 s95, s92, s95
    s_lshl_b32 s96, s96, 9
    s_add_u32 s95, s95, s96
    s_lshl_b32 s96, s20, 6
    s_add_u32 s96, s96, s95
    s_mul_i32 s97, s96, 896""")

def b_setup(a):
    srd(a, 12, 6, WS_SIZE)
    srd(a, 52, 48, XB)
    srd(a, 16, 40, 896)
    b_ids(a)

def b_loads(a):
    a(f"""s_mov_b32 s26, {WS_EPOCH}
    v_mov_b32 v{T0}, 0
    buffer_load_dword v{V_EP}, v{T0}, s[12:15], s26 offen {SC}
    buffer_load_dwordx4 {v4(B_WR)}, v{VL}, s[16:19], 0 offen
    buffer_load_dwordx4 {v4(B_XR)}, v{VL}, s[8:11], s97 offen""")

def pro(a, part=0):
    a("; === address / twiddle set-up for phases B and C")
    EPS, BASE, TH, AF, AD = P_EPS, P_BASE, P_TH, B_AF, B_AD
    a(f"""s_lshl_b32 s28, s92, 16
    s_lshl_b32 s29, s20, 8
    s_add_u32 s28, s28, s29
    s_add_u32 s29, s28, 4096
    s_add_u32 s30, s28, 32768
    s_add_u32 s31, s28, 36864
    v_lshlrev_b32 v{B_VU}, 13, v{G}
    v_lshl_add_u32 v{B_VU}, v{N}, 4, v{B_VU}""") if part != 2 else None
    if part == 1: return
    a(f"""v_and_b32 v{T0}, 7, v{N}
    v_lshlrev_b32 v{T0}, 6, v{T0}
    v_add_u32 v{T0}, s95, v{T0}
    v_cvt_f32_u32 v{T0}, v{T0}
    v_cmp_gt_u32 vcc, 8, v{N}
    v_mul_f32 v{EPS}, {fl(1.0/2048)}, v{T0}
    v_lshlrev_b32 v{T1}, 2, v{G}
    v_cndmask_b32 v{EPS}, -v{EPS}, v{EPS}, vcc
    v_cvt_f32_u32 v{T1}, v{T1}
    v_mul_f32 v{BASE}, v{T1}, v{EPS}""")
    for ks in range(2):
        trig_block(a, 4, 16*ks, EPS, BASE, TH, True)
        for i in range(4):
            a(f"v_cvt_pk_f16_f32 v{AF+4*ks+i}, v{TH+i}, v{TH+4+i}")
    a(f"""v_lshrrev_b32 v{T0}, 3, v{N}
    v_and_b32 v{T1}, 3, v{N}
    v_mul_u32_u24 v{T1}, 7, v{T1}
    v_lshl_add_u32 v{T1}, v{T0}, 2, v{T1}
    s_mul_i32 s32, s20, 28
    s_add_u32 s32, s32, 1
    v_add_u32 v{T1}, s32, v{T1}
    v_sub_u32 v{T2}, 448, v{T1}
    v_cmp_gt_u32 s[34:35], 2, v{G}
    v_mov_b32 v{TH}, s93
    v_mov_b32 v{TH+1}, s94
    v_cndmask_b32 v{T2}, v{T2}, v{T1}, s[34:35]
    v_cndmask_b32 v{TH}, v{TH+1}, v{TH}, s[34:35]
    v_bfe_u32 v{TH+1}, v{N}, 2, 1
    v_cmp_eq_u32 s[60:61], v{TH}, v{TH+1}
    v_and_b32 v{TH+2}, 1, v{G}
    v_mul_u32_u24 v{TH+2}, {4*PY}, v{TH+2}
    v_add_lshl_u32 v{AD}, v{TH+2}, v{T2}, 2
    v_mov_b32 v{TH+3}, -4
    v_cndmask_b32 v{TH+3}, v{TH+3}, 4, s[34:35]
    v_add_u32 v{AD+1}, v{AD}, v{TH+3}
    v_add_u32 v{AD+2}, v{AD+1}, v{TH+3}
    v_add_u32 v{AD+3}, v{AD+2}, v{TH+3}
    v_cmp_eq_u32 s[50:51], 0, v{T0}
    s_and_b64 s[50:51], s[50:51], s[60:61]
    v_mov_b32 v{TH}, 222
    v_cmp_eq_u32 s[62:63], v{TH}, v{T1}
    s_and_b64 s[62:63], s[62:63], s[60:61]
    s_andn2_b64 s[36:37], s[62:63], s[34:35]
    v_lshlrev_b32 v{TH+2}, 2, v{TH+2}
    v_add_u32 v{TH}, {448*4}, v{TH+2}
    v_cndmask_b32 v{AD+2}, v{AD+2}, v{TH}, s[36:37]
    v_add_u32 v{TH}, {449*4}, v{TH+2}
    v_add_u32 v{B_AD4}, {450*4}, v{TH+2}
    v_cndmask_b32 v{B_AD4}, v{B_AD4}, v{TH}, s[34:35]
    s_mul_i32 s33, s20, {PY*4}
    v_lshlrev_b32 v{B_VY}, 5, v{LANE}
    v_add_u32 v{B_VY}, s33, v{B_VY}
    s_add_u32 s33, s33, {448*4}
    v_mov_b32 v{B_AD4+1}, s33""")
    for i in range(8):
        a(f"v_alignbit_b32 v{B_A2+i}, v{AF+i}, v{AF+i}, 16")
        a(f"v_xor_b32 v{B_A2+i}, 0x8000, v{B_A2+i}")
    lim_regs(a, C_L, LANE, T0)
    a(f"""s_lshl_b32 s34, s20, 5
    s_add_u32 s34, s34, {LSEL}
    v_lshlrev_b32 v{T1}, 2, v{LANE}
    v_add_u32 v{C_SW}, s34, v{T1}
    v_add_u32 v{C_SR}, {LSEL}, v{T1}
    v_lshrrev_b32 v{C_KA}, 1, v0
    v_lshlrev_b32 v{C_KA}, 6, v{C_KA}
    v_and_b32 v{T0}, 1, v0
    v_lshl_add_u32 v{C_KA}, v{T0}, 4, v{C_KA}
    s_lshl_b32 s34, s20, 6
    s_add_u32 s34, s34, {LSE2}
    v_add_u32 v{C_FW}, s34, v{T1}
    v_lshrrev_b32 v{C_PF}, 3, v{LANE}
    v_and_b32 v{C_FY}, 7, v{LANE}
    v_lshlrev_b32 v{C_FR}, 6, v{C_PF}
    v_lshl_add_u32 v{C_FR}, v{C_FY}, 2, v{C_FR}
    v_add_u32 v{C_FR}, {LSE2}, v{C_FR}
    v_lshlrev_b32 v{C_FY}, 6, v{C_FY}
    v_add_u32 v{C_FY}, {LSE2 + 32}, v{C_FY}
    v_lshlrev_b32 v{C_PF}, 7, v{C_PF}
    s_cmp_ge_u32 s2, 224
    s_cselect_b32 s33, 1024, 0
    s_add_u32 s33, s33, {WS_ROW}
    s_lshl_b32 s27, s2, 6
    s_add_u32 s27, s27, {WS_KEYS}
    s_sub_u32 s32, 2047, s96
    v_lshrrev_b32 v{T0}, 1, v0
    v_and_b32 v{T1}, 7, v{T0}
    v_lshrrev_b32 v{T2}, 6, v{T0}
    v_lshl_or_b32 v{T1}, v{T2}, 3, v{T1}
    v_sub_u32 v{T2}, 64, v{T1}
    v_cmp_eq_u32 vcc, 0, v{T1}
    v_bfe_u32 v{TH}, v{T0}, 3, 1
    v_cndmask_b32 v{T2}, v{T2}, 32, vcc
    v_cmp_eq_u32 vcc, 0, v{TH}
    v_bfe_u32 v{TH}, v{T0}, 4, 2
    v_cndmask_b32 v{T1}, v{T2}, v{T1}, vcc
    v_lshl_add_u32 v{T1}, v{TH}, 9, v{T1}
    v_and_b32 v{T0}, 1, v0
    v_lshl_add_u32 v{T1}, v{T0}, 8, v{T1}
    v_sub_u32 v{C_IX}, 2047, v{T1}
    v_subrev_u32 v{C_IX+1}, 64, v{C_IX}
    v_subrev_u32 v{C_IX+2}, 128, v{C_IX}
    v_subrev_u32 v{C_IX+3}, 192, v{C_IX}""")
    gu_prep(a)

def pro2(a):
    XU, WU, S1, S2, S3 = B_XU, B_WU, P_TH, P_TH + 2, P_TH + 4
    unpack8(a, WU, B_WR)
    a(f"""v_pk_add_f32 {v2(S1)}, {v2(WU)}, {v2(WU+2)}
    v_pk_add_f32 {v2(S2)}, {v2(WU+4)}, {v2(WU+6)}
    v_pk_add_f32 {v2(S1)}, {v2(S1)}, {v2(S2)}
    v_add_f32 v{S1}, v{S1}, v{S1+1}
    v_mov_b32 v{S2}, 0
    v_mov_b32 v{S3}, 0""")
    reduce3(a, S1, S2, S3, T0, 58, 39, 39)
    unpack8(a, XU, B_XR)
    for k in (B_S1, B_S1+1, B_S2, B_S2+1, B_S3, B_S3+1): a(f"v_mov_b32 v{k}, 0")

def anyones(a, regs_, t):
    regs_ = list(regs_)
    a(f"v_max_u32 v{t}, v{regs_[0]}, v{regs_[1]}")
    rest = regs_[2:]
    while len(rest) >= 2:
        a(f"v_max3_u32 v{t}, v{t}, v{rest[0]}, v{rest[1]}"); rest = rest[2:]
    if rest: a(f"v_max_u32 v{t}, v{t}, v{rest[0]}")
    a(f"v_cmp_eq_u32 vcc, -1, v{t}")

def wave_sum(a, v, sd):
    for k in (8, 4, 2, 1):
        a(f"v_add_u32_dpp v{v}, v{v}, v{v} row_ror:{k} row_mask:0xf bank_mask:0xf")
    for i in range(4): a(f"v_readlane_b32 s{sd+i}, v{v}, {16*i}")
    a(f"s_add_u32 s{sd}, s{sd}, s{sd+1}\ns_add_u32 s{sd+2}, s{sd+2}, s{sd+3}\ns_add_u32 s{sd}, s{sd}, s{sd+2}")

def publish_row(a):
    a("; publish this row (ln2 and out values, each closed by a checksum word)")
    a(f"""s_lshl_b32 s34, s96, 11
    s_add_u32 s34, s34, {WS_ROW}
    v_mov_b32 v{T0}, 0
    v_mov_b32 v{T1}, 0
    v_writelane_b32 v{C_LN}, 0, 56
    v_writelane_b32 v{C_OUT}, 0, 56
    s_mov_b32 exec_hi, 0x01ffffff
    v_add3_u32 v{T0}, v{C_LN}, v{C_LN+1}, v{C_LN+2}
    v_add3_u32 v{T1}, v{C_OUT}, v{C_OUT+1}, v{C_OUT+2}
    v_add_u32 v{T0}, v{T0}, v{C_LN+3}
    v_add_u32 v{T1}, v{T1}, v{C_OUT+3}
    s_mov_b32 exec_hi, -1""")
    wave_sum(a, T0, 36)
    a(f"s_sub_u32 s35, s98, s36\nv_writelane_b32 v{C_LN}, s35, 56")
    wave_sum(a, T1, 36)
    a(f"""s_sub_u32 s35, s98, s36
    v_writelane_b32 v{C_OUT}, s35, 56
    s_mov_b32 exec_hi, 0x01ffffff
    buffer_store_dwordx4 {v4(C_LN)}, v{VL}, s[12:15], s34 offen {SC}
    buffer_store_dwordx4 {v4(C_OUT)}, v{VL}, s[12:15], s34 offen offset:1024 {SC}
    s_mov_b32 exec_hi, -1""")

def fetch_row_issue(a, dst):
    a(f"""v_readlane_b32 s34, v{C_K}, s20
    s_andn2_b32 s34, 0x7ff, s34
    s_lshl_b32 s34, s34, 11
    s_add_u32 s34, s34, s33
    s_mov_b32 exec_hi, 0x01ffffff
    buffer_load_dwordx4 {v4(dst)}, v{VL}, s[12:15], s34 offen {SC}
    s_mov_b32 exec_hi, -1""")

def fetch_row_finish(a, dst, ldsaddr):
    _lbl[0] += 1
    L = f"Lrow{_lbl[0]}"
    a(f"""s_mul_i32 s29, s20, {PX}
    s_add_u32 s29, s29, {LXS}
    v_add_u32 v{ldsaddr}, s29, v{VL}
    s_mov_b32 s57, {SPIN}
    {L}:
    v_mov_b32 v{T0}, 0
    s_mov_b32 exec_hi, 0x01ffffff
    s_waitcnt vmcnt(0)
    ds_write_b128 v{ldsaddr}, {v4(dst)}
    v_add3_u32 v{T0}, v{dst}, v{dst+1}, v{dst+2}
    v_add_u32 v{T0}, v{T0}, v{dst+3}
    s_mov_b32 exec_hi, -1""")
    wave_sum(a, T0, 36)
    a(f"""s_cmp_eq_u32 s36, s98
    s_cbranch_scc1 {L}d
    s_mov_b32 exec_hi, 0x01ffffff
    s_waitcnt lgkmcnt(0)
    buffer_load_dwordx4 {v4(dst)}, v{VL}, s[12:15], s34 offen {SC}
    s_mov_b32 exec_hi, -1
    s_sub_u32 s57, s57, 1
    s_cbranch_scc0 {L}""")
    timeout_note(a, _lbl[0])
    a(f"{L}d:")

def gu_prep(a):
    srd(a, 16, 42, 448*3584)
    a(f"""v_mul_u32_u24 v{V_GU}, 3584, v0
    s_and_b32 s100, s2, 7
    s_mul_i32 s100, s100, 28
    s_lshr_b32 s101, s2, 3
    s_add_u32 s100, s100, s101
    s_lshl_b32 s26, s100, 4
    s_lshl_b32 s101, s20, 10
    s_add_u32 s101, s101, {LWT}
    s_and_b32 s45, s45, 0xffff
    s_cmp_ge_u32 s2, 224
    s_cselect_b32 s24, 7, s20""")

def gu_dma(a):
    a(f"""s_cmp_eq_u32 s24, 7
    s_cbranch_scc1 Lngu
    s_mov_b32 m0, s101
    s_add_u32 s101, s101, 8192
    buffer_load_dwordx4 v{V_GU}, s[16:19], s26 offen lds
    s_mov_b32 s16, s44
    s_mov_b32 m0, s101
    s_mov_b32 s17, s45
    buffer_load_dwordx4 v{V_GU}, s[16:19], s26 offen lds
    Lngu:""")

def wd_dma(a, j0, j1, L):
    if j0 == j1: return
    a(f"""s_cmp_lt_u32 s2, 224
    s_cbranch_scc1 {L}
    s_and_b32 s50, s2, 7
    s_cmp_eq_u32 s50, 7
    s_cbranch_scc1 {L}
    s_lshl_b32 s50, s50, 7
    s_bfe_u32 s51, s2, 0x20003
    s_lshl_b32 s51, s51, 5
    s_add_u32 s51, s51, s50""")
    srd(a, 16, 46, 1792*896)
    a(f"""v_lshrrev_b32 v{T1}, 1, v{LANE}
    v_mul_u32_u24 v{T1}, 896, v{T1}
    v_and_b32 v{T2}, 1, v{LANE}
    v_lshl_add_u32 v{T1}, v{T2}, 4, v{T1}
    s_mul_i32 s23, s20, {224*896}
    s_add_u32 s23, s23, s51
    s_add_u32 s23, s23, {j0*32*896}
    s_mul_i32 s25, s20, 7168
    s_add_u32 s25, s25, {LWT + j0*1024}""")
    for j in range(j0, j1):
        a(f"s_mov_b32 m0, s25")
        a(f"s_add_u32 s25, s25, 1024")
        a(f"buffer_load_dwordx4 v{T1}, s[16:19], s23 offen lds")
        a(f"s_add_u32 s23, s23, {32*896}")
    a(f"{L}:")

def b_main(a):
    a("; === phase B: fetch + validate U, 32-term DFT stage, h / LN2 / router key")
    R, AF, ACC, XU, WU, AD, TH = B_R, B_AF, B_ACC, B_XU, B_WU, B_AD, B_TH
    S1, S2, S3 = B_S1, B_S2, B_S3
    if OPT["sl_u0"]: a(f"s_sleep {OPT['sl_u0']}")
    def uld():
        for ks in range(2):
            for i in range(4):
                a(f"buffer_load_dwordx4 {v4(R+16*ks+4*i)}, v{B_VU}, s[12:15], s{28+2*ks+(i>>1)} offen offset:{2048*(i&1)} {SC}")
    a(f"s_mov_b32 s57, {SPIN}")
    uld()
    if OPT["prosplit"]: pro(a, 2)
    a("s_waitcnt vmcnt(8)")
    pro2(a)
    def swaps(ks):
        b = R + 16*ks
        for i in range(4):
            for j in range(i+1, 4):
                a(f"v_swap_b32 v{b+4*i+j}, v{b+4*j+i}")
    def mm(ks, dpp):
        for j in range(4):
            c = "0" if ks == 0 else v4(ACC+4*j)
            a(f"v_mfma_f32_16x16x32_f16 {v4(ACC+4*j)}, {v4(AF+4*ks)}, {v4(R+16*ks+4*j)}, {c}")
            if dpp: a(f"v_add_u32_dpp v{T0}, v{T0}, v{T0} row_ror:{8 >> j} row_mask:0xf bank_mask:0xf")
        a(f"v_mfma_f32_16x16x32_f16 {v4(TH)}, {v4(B_A2+4*ks)}, {v4(R+16*ks+8)}, {'0' if ks == 0 else v4(TH)}")
    if not OPT["part"]:
        a("s_branch Lupw\nLupoll:")
        uld()
        a("Lupw:")
    for ks in range(2):
        a(f"s_waitcnt vmcnt({4-4*ks})")
        b = R + 16*ks
        for i in range(8):
            if ks == 0 and i == 0: a(f"v_add_u32 v{T0}, v{b}, v{b+1}")
            else: a(f"v_add3_u32 v{T0}, v{T0}, v{b+2*i}, v{b+2*i+1}")
        swaps(ks)
        mm(ks, ks == 1)
    a(f"""v_cmp_ne_u32 vcc, s99, v{T0}
    s_cmp_eq_u64 vcc, 0""")
    if OPT["part"]:
        a("s_cbranch_scc0 Lupart")
        def part():
            C4 = B_TH
            a("Lupart:\ns_lshl_b32 s34, s98, 4")
            swaps(0); swaps(1)
            a("Lupchk:")
            for i in range(4):
                a(f"v_add3_u32 v{C4+i}, v{R+4*i}, v{R+4*i+1}, v{R+4*i+2}")
            for i in range(4):
                a(f"v_add3_u32 v{C4+i}, v{C4+i}, v{R+4*i+3}, v{R+16+4*i}")
            for i in range(4):
                a(f"v_add3_u32 v{C4+i}, v{C4+i}, v{R+16+4*i+1}, v{R+16+4*i+2}")
            for i in range(4):
                a(f"v_add_u32 v{C4+i}, v{C4+i}, v{R+16+4*i+3}")
            for k in (8, 4, 2, 1):
                for i in range(4):
                    a(f"v_add_u32_dpp v{C4+i}, v{C4+i}, v{C4+i} row_ror:{k} row_mask:0xf bank_mask:0xf")
            MK = ["s[36:37]", "s[38:39]", "s[24:25]", "vcc"]
            for i in range(4): a(f"v_cmp_ne_u32 {MK[i]}, s34, v{C4+i}")
            a(f"""s_or_b64 s[26:27], s[36:37], s[38:39]""".replace("s[26:27]", "s[100:101]"))
            a(f"""s_or_b64 s[100:101], s[100:101], s[24:25]
            s_or_b64 s[100:101], s[100:101], vcc
            s_cbranch_scc0 Lupgo""")
            if OPT["sl_r"]: a(f"s_sleep {OPT['sl_r']}")
            for i in range(4):
                a(f"s_cmp_eq_u64 {MK[i]}, 0\ns_cbranch_scc1 Lupok{i}")
                for ks in range(2):
                    a(f"buffer_load_dwordx4 {v4(R+16*ks+4*i)}, v{B_VU}, s[12:15], s{28+2*ks+(i>>1)} offen offset:{2048*(i&1)} {SC}")
                a(f"Lupok{i}:")
            a(f"""s_waitcnt vmcnt(0)
            s_sub_u32 s57, s57, 1
            s_cbranch_scc0 Lupchk
            Lupgo:""")
            for ks in range(2):
                swaps(ks); mm(ks, False)
            a("s_nop 7\ns_branch Lupolld")
        TAIL.append(part)
    else:
        a(f"""s_cbranch_scc1 Lupolld
        s_sub_u32 s57, s57, 1
        s_cbranch_scc0 Lupoll""")
        timeout_note(a, 9)
    a("Lupolld:")
    stamp(a, 6)
    if OPT["stamps"] == 3: a(f"s_sub_u32 s{64+2*11}, {SPIN+1}, s57")
    for j in range(4):
        if j in (0, 3): a(f"s_mov_b64 exec, {['s[60:61]', '', '', 's[50:51]'][j]}")
        for r in (0, 2):
            a(f"ds_write2st64_b32 v{AD+j}, v{ACC+4*j+r}, v{ACC+4*j+r+1} offset0:{r*PY//64} offset1:{(r+1)*PY//64}")
    a("s_cmp_lg_u32 s20, 7\ns_cbranch_scc1 Lndc\ns_mov_b64 exec, s[62:63]")
    for r in (0, 2):
        a(f"ds_write2st64_b32 v{B_AD4}, v{TH+r}, v{TH+r+1} offset0:{r*PY//64} offset1:{(r+1)*PY//64}")
    a("Lndc:\ns_mov_b64 exec, -1")
    gu_dma(a)
    wd_dma(a, 0, OPT['wdsplit'], 'Lnwd0')
    a("""s_mov_b32 exec_hi, 0x00ffffff
    s_waitcnt lgkmcnt(0)
    s_barrier""")
    H = R
    a(f"ds_read_b128 {v4(TH)}, v{B_AD4+1}\nds_read_b128 {v4(H)}, v{B_VY} offset:{LY}\nds_read_b128 {v4(H+4)}, v{B_VY} offset:{LY+16}")
    a("s_mov_b64 s[36:37], 1\ns_mov_b64 s[38:39], 0x10000001")
    for hf in range(2):
        a(f"s_waitcnt lgkmcnt({1-hf})")
        if hf == 0:
            a(f"""v_add_f32 v{TH+1}, v{TH+1}, v{TH+2}
            v_add_f32 v{TH}, v{TH}, v{H}
            v_cndmask_b32 v{TH}, v{TH}, v{TH+1}, s[36:37]
            v_mul_f32 v{TH}, 0.5, v{TH}
            v_cndmask_b32 v{H}, v{H}, v{TH}, s[38:39]""")
        for p in range(2):
            x = 4*hf + 2*p
            a(f"v_pk_add_f32 {v2(H+x)}, {v2(H+x)}, {v2(XU+x)}")
        for p in range(2):
            x = 4*hf + 2*p
            a(f"v_pk_add_f32 {v2(S1)}, {v2(S1)}, {v2(H+x)}")
            a(f"v_pk_fma_f32 {v2(S2)}, {v2(H+x)}, {v2(H+x)}, {v2(S2)}")
            a(f"v_pk_fma_f32 {v2(S3)}, {v2(H+x)}, {v2(WU+x)}, {v2(S3)}")
    a(f"""s_mov_b32 exec_hi, -1
    v_add_f32 v{S1}, v{S1}, v{S1+1}
    v_add_f32 v{S2}, v{S2}, v{S2+1}
    v_add_f32 v{S3}, v{S3}, v{S3+1}""")
    reduce3(a, S1, S2, S3, T0, 37, 38, 39)
    M, V, SD, RS, C0, KEY = TH, TH+1, TH+2, TH+4, TH+6, C_KEY
    a(f"""v_mov_b32 v{V}, {fl(1.0/448)}
    v_mul_f32 v{M}, s37, v{V}
    v_mul_f32 v{V}, s38, v{V}
    v_mov_b32 v{KEY}, s39
    v_fma_f32 v{V}, -v{M}, v{M}, v{V}
    v_fma_f32 v{KEY}, -v{M}, s58, v{KEY}
    v_max_f32 v{SD}, 0, v{V}
    v_add_f32 v{V}, {fl(1e-5)}, v{SD}""")
    a(f"""v_rsq_f32 v{RS}, v{V}
    s_lshl_b32 s34, s20, 2
    v_mov_b32 v{T2}, s34
    v_mul_f32 v{KEY}, v{KEY}, v{RS}
    v_cvt_pk_bf16_f32 v{KEY}, v{KEY}, v{KEY}
    v_ashrrev_i32 v{T0}, 31, v{KEY}
    v_or_b32 v{T0}, 0x80000000, v{T0}
    v_xor_b32 v{KEY}, v{KEY}, v{T0}
    v_and_b32 v{KEY}, 0xffff0000, v{KEY}
    v_or_b32 v{KEY}, s32, v{KEY}
    ds_write_b32 v{T2}, v{KEY} offset:{LKEY}
    v_mov_b32 v{C_STK}, 0xffff
    v_lshlrev_b32 v{T1}, 2, v{LANE}
    v_mov_b32 v{T2}, {LKEY}
    s_waitcnt lgkmcnt(0)
    s_barrier
    s_cmp_lg_u32 s20, 0
    s_cbranch_scc1 Lnokey
    s_mov_b64 exec, 0xff
    ds_read_b32 v{T0}, v{T1} offset:{LKEY}
    s_waitcnt lgkmcnt(0)
    v_bfi_b32 v{T0}, v{C_STK}, s59, v{T0}
    buffer_store_dword v{T0}, v{T1}, s[12:15], s27 offen {SC}
    s_mov_b64 exec, -1
    Lnokey:
    ds_read_b128 {v4(ACC)}, v{T2}
    ds_read_b128 {v4(ACC+4)}, v{T2} offset:16""")
    stamp(a, 7)
    sd_chain(a, SD, SD)
    a(f"v_rcp_f32 v{RS}, v{SD}\ns_nop 0\nv_mul_f32 v{C0}, -v{M}, v{RS}")
    for p in range(4):
        a(f"v_pk_fma_f32 {v2(XU+2*p)}, {v2(H+2*p)}, {v2(RS)}, {v2(C0)} op_sel_hi:[1,0,0]")
    for p in range(4):
        a(f"v_pk_add_f32 {v2(H+2*p)}, {v2(H+2*p)}, {v2(XU+2*p)}")
    for p in range(4):
        a(f"v_cvt_pk_bf16_f32 v{C_LN+p}, v{XU+2*p}, v{XU+2*p+1}")
        a(f"v_cvt_pk_bf16_f32 v{C_OUT+p}, v{H+2*p}, v{H+2*p+1}")
    a(f"""s_waitcnt lgkmcnt(0)
    v_max3_u32 v{T0}, v{ACC}, v{ACC+1}, v{ACC+2}
    v_max3_u32 v{T1}, v{ACC+3}, v{ACC+4}, v{ACC+5}
    v_max3_u32 v{T0}, v{T0}, v{ACC+6}, v{ACC+7}
    v_max_u32 v{T0}, v{T0}, v{T1}
    v_cmp_eq_u32 s[60:61], v{T0}, v{KEY}
    s_cmp_eq_u64 s[60:61], 0
    s_cbranch_scc1 Lnoeager""")
    publish_row(a)
    a("Lnoeager:")

QP = {1: "quad_perm:[1,0,3,2]", 2: "quad_perm:[2,3,0,1]", 3: "quad_perm:[3,2,1,0]", 7: "row_half_mirror"}
class Net:
    def __init__(s, a, x, t, fill): s.a = a; s.x = x; s.t = t; s.fill = list(fill)
    def f(s, n=1):
        for _ in range(n):
            if s.fill: s.a(s.fill.pop(0))
    def ce(s, m):
        a, x, t = s.a, s.x, s.t
        s.f()
        if m == 4:
            a(f"v_max_u32_dpp v{t}, v{x}, v{x} row_shl:4 row_mask:0xf bank_mask:0x5")
            a(f"v_min_u32_dpp v{t}, v{x}, v{x} row_shr:4 row_mask:0xf bank_mask:0xa")
            s.x, s.t = t, x
        else:
            a(f"v_mov_b32_dpp v{t}, v{x} {QP[m]} row_mask:0xf bank_mask:0xf")
            a(f"v_med3_u32 v{x}, v{x}, v{t}, v{C_L[1 << (m.bit_length()-1)]}")
    def merge(s, last_clean=True):
        a = s.a
        s.f()
        a(f"v_max_u32_dpp v{s.x}, v{s.x}, v{s.x} row_mirror row_mask:0xf bank_mask:0xf")
        for m in (4, 2, 1): s.ce(m)
        for sw in ("v_permlane16_swap_b32", "v_permlane32_swap_b32"):
            a(f"v_mov_b32 v{s.t}, v{s.x}")
            s.f()
            a(f"{sw} v{s.x}, v{s.t}")
            s.f()
            a(f"v_max_u32_dpp v{s.x}, v{s.t}, v{s.x} row_half_mirror row_mask:0xf bank_mask:0xf")
            if last_clean or "16" in sw:
                for m in (4, 2, 1): s.ce(m)
        s.f(99)

def fast_select(a):
    K, X, Y, P, Q = C_K, C_X, C_Y, C_TMP, C_TMP + 1
    a(f"""v_max_u32 v{P}, v{K}, v{K+1}
    v_max_u32 v{Q}, v{K+2}, v{K+3}
    v_max_u32 v{X}, v{P}, v{Q}""")
    fill = [f"v_min_u32 v{Y}, v{P}, v{Q}", f"v_min_u32 v{P}, v{K}, v{K+1}", f"v_min_u32 v{Q}, v{K+2}, v{K+3}",
            f"v_max3_u32 v{Y}, v{Y}, v{P}, v{Q}"]
    fill += [f"v_max_u32_dpp v{Y}, v{Y}, v{Y} row_ror:{k} row_mask:0xf bank_mask:0xf" for k in (8, 4, 2, 1)]
    fill += [f"v_mov_b32 v{P}, v{Y}", f"v_permlane16_swap_b32 v{Y}, v{P}", f"v_max_u32 v{Y}, v{Y}, v{P}",
             f"v_mov_b32 v{P}, v{Y}", f"v_permlane32_swap_b32 v{Y}, v{P}", f"v_max_u32 v{Y}, v{Y}, v{P}",
             "s_mov_b64 vcc, 0x100"]
    n = Net(a, X, C_TMP + 2, fill)
    for m in (1, 3, 1, 7, 2, 1): n.ce(m)
    n.merge()
    a(f"""s_mov_b64 exec, 0x1ff
    v_cndmask_b32 v{P}, v{n.x}, v{Y}, vcc
    ds_write_b32 v{C_FW}, v{P}""")
    if OPT["rowpf"]:
        m8 = (1 << OPT["rowpf"]) - 1; m32 = m8 * 0x01010101
        a(f"""s_mov_b32 exec_lo, {hex(m32)}
        s_mov_b32 exec_hi, {hex(m32)}
        v_bfi_b32 v{Q}, v{n.x}, 0, v{C_TMP+3}
        v_lshl_add_u32 v{Q}, v{Q}, 11, v{C_PF}
        buffer_load_dword v{JUNK}, v{Q}, s[12:15], s33 offen {SC}""")
    a(f"""s_mov_b64 exec, -1
    s_waitcnt lgkmcnt(0)
    s_barrier
    ds_read_b32 v{X}, v{C_FR}
    ds_read_b32 v{Y}, v{C_FY}
    s_waitcnt lgkmcnt(0)""")
    fill = [f"v_max_u32_dpp v{Y}, v{Y}, v{Y} {QP[m]} row_mask:0xf bank_mask:0xf" for m in (1, 2, 7)]
    n = Net(a, X, C_TMP + 2, fill)
    n.merge(last_clean=False)
    a(f"""v_cmp_gt_u32 vcc, v{Y}, v{n.x}
    s_cmp_eq_u64 vcc, 0
    s_cbranch_scc0 Lfullsel
    v_mov_b32 v{K}, v{n.x}
    Lseldone:""")

def c_select(a):
    a("; === top-8 selection over all router keys")
    K = C_K
    a(f"s_mov_b32 s34, {WS_KEYS}\nv_mov_b32 v{C_TMP+3}, 0x7ff")
    def chk():
        a(f"v_xor_b32 v{T0}, v{K}, v{K+1}")
        a(f"v_xor_b32 v{T1}, v{K+2}, v{K+3}")
        a(f"v_xor_b32 v{T2}, s59, v{K}")
        a(f"v_xor_b32 v{C_X}, s59, v{K+2}")
        a(f"v_or3_b32 v{T0}, v{T0}, v{T1}, v{T2}")
        for i in range(4): a(f"v_bfi_b32 v{K+i}, v{C_STK}, v{C_IX+i}, v{K+i}")
        a(f"v_or_b32 v{T0}, v{T0}, v{C_X}")
        a(f"v_cmp_ne_u16 vcc, 0, v{T0}")
    poll(a, lambda: a(f"buffer_load_dwordx4 {v4(K)}, v{C_KA}, s[12:15], s34 offen {SC}"), chk, pre=OPT["sl_k"])
    stamp(a, 8)
    fast_select(a)
    stamp(a, 9)
    a(f"""v_cmp_eq_u32 vcc, v{K}, v{C_KEY}
    s_and_b64 s[62:63], vcc, s[60:61]
    s_cmp_lg_u64 s[62:63], vcc
    s_cbranch_scc0 Lsel_pub""")
    publish_row(a)
    a("Lsel_pub:")
    fetch_row_issue(a, 84)
    a(f"""s_cmp_eq_u64 vcc, 0
    s_cbranch_scc0 Lsel_done
    s_mov_b32 exec_hi, 0x00ffffff
    buffer_store_dwordx4 {v4(C_OUT)}, v{VL}, s[52:55], s97 offen {['', 'sc1', 'nt', 'sc0 sc1'][OPT['ost']]}
    s_mov_b32 exec_hi, -1
    Lsel_done:""")

def c1(a):
    a("; === gate / up projection for this workgroup's 8 FFN columns")
    XR = 84; XF_ = 168; ACC = 52; XU = 60; WF = 88
    a(f"""s_cmp_lg_u32 s20, 0
    s_cbranch_scc1 Lc1_now
    v_lshrrev_b32 v{T0}, 2, v{N}
    v_lshl_add_u32 v{T0}, v{G}, 3, v{T0}
    v_lshlrev_b32 v{T0}, 4, v{T0}
    v_and_b32 v{T1}, 1, v{N}
    v_lshl_add_u32 v{T0}, v{T1}, 3, v{T0}
    v_bfe_u32 v{T1}, v{N}, 1, 1
    v_lshl_add_u32 v{T0}, v{T1}, 13, v{T0}
    v_add_u32 v{T0}, {LWT}, v{T0}""")
    for j in range(14):
        for h in range(2):
            a(f"ds_read_b64_tr_b16 {v2(WF+4*j+2*h)}, v{T0} offset:{(32*j+4*h)*16}")
    a(f"""v_and_b32 v{XU+4}, 7, v{N}
    v_mul_u32_u24 v{XU+4}, {PX}, v{XU+4}
    v_lshl_add_u32 v{XU+4}, v{G}, 4, v{XU+4}
    v_lshlrev_b32 v{XU+5}, 4, v{N}
    v_lshl_add_u32 v{XU+5}, v{G}, 3, v{XU+5}
    s_lshl_b32 s22, s100, 7
    s_add_u32 s22, s22, {WS_ACT}
    Lc1_now:""")
    fetch_row_finish(a, XR, T2)
    a(f"""s_waitcnt lgkmcnt(0)
    s_barrier
    s_cmp_lg_u32 s20, 0
    s_cbranch_scc1 Lc1_epoch""")
    stamp(a, 10)
    for j in range(14):
        a(f"ds_read_b128 {v4(XF_+4*j)}, v{XU+4} offset:{LXS+64*j}")
    for j in range(14):
        a(f"s_waitcnt lgkmcnt({13-j})")
        A = ACC + 4*(j & 1)
        a(f"v_mfma_f32_16x16x32_bf16 {v4(A)}, {v4(WF+4*j)}, {v4(XF_+4*j)}, {'0' if j < 2 else v4(A)}")
    for p in range(2):
        a(f"v_pk_add_f32 {v2(ACC+2*p)}, {v2(ACC+2*p)}, {v2(ACC+4+2*p)}")
    for p in range(2): a(f"v_cvt_pk_bf16_f32 v{ACC+4+p}, v{ACC+2*p}, v{ACC+2*p+1}")
    for p in range(2): a(f"v_mov_b32 v{ACC+6+p}, v{ACC+4+p}")
    for p in range(2): a(f"v_permlane32_swap_b32 v{ACC+4+p}, v{ACC+6+p}")
    for p in range(2):
        a(f"v_lshlrev_b32 v{ACC+2*p}, 16, v{ACC+4+p}")
        a(f"v_and_b32 v{ACC+2*p+1}, 0xffff0000, v{ACC+4+p}")
    for r in range(4): a(f"v_mul_f32 v{XU+r}, {fl(-1.4426950408889634)}, v{ACC+r}")
    for r in range(4): a(f"v_exp_f32 v{XU+r}, v{XU+r}")
    for p in range(2):
        a(f"v_lshlrev_b32 v{XR+2*p}, 16, v{ACC+6+p}")
        a(f"v_and_b32 v{XR+2*p+1}, 0xffff0000, v{ACC+6+p}")
    for r in range(4): a(f"v_add_f32 v{XU+r}, 1.0, v{XU+r}")
    for r in range(4): a(f"v_rcp_f32 v{XU+r}, v{XU+r}")
    for r in range(4): a(f"v_mul_f32 v{ACC+r}, v{ACC+r}, v{XU+r}")
    for p in range(2): a(f"v_cvt_pk_bf16_f32 v{ACC+4+p}, v{ACC+2*p}, v{ACC+2*p+1}")
    for p in range(2):
        a(f"v_lshlrev_b32 v{ACC+2*p}, 16, v{ACC+4+p}")
        a(f"v_and_b32 v{ACC+2*p+1}, 0xffff0000, v{ACC+4+p}")
    for p in range(2): a(f"v_pk_mul_f32 {v2(ACC+2*p)}, {v2(ACC+2*p)}, {v2(XR+2*p)}")
    for p in range(2): a(f"v_cvt_pk_bf16_f32 v{XR+p}, v{ACC+2*p}, v{ACC+2*p+1}")
    for p in range(2): a(f"v_min_u32 v{XR+p}, -2, v{XR+p}")
    a(f"""s_mov_b32 exec_lo, 0x00ff00ff
    s_mov_b32 exec_hi, 0
    buffer_store_dwordx2 {v2(XR)}, v{XU+5}, s[12:15], s22 offen {SC}
    s_branch Lend
    Lc1_epoch:
    s_lshl_b32 s29, s2, 3
    s_add_u32 s29, s29, s20
    s_cmp_lg_u32 s29, 1
    s_cbranch_scc1 Lend
    s_mov_b64 exec, 1
    v_mov_b32 v{T0}, s56
    s_mov_b32 s29, {WS_EPOCH}
    buffer_store_dword v{T0}, v{VL}, s[12:15], s29 offen {SC}
    s_branch Lend""")

def c2(a):
    a("; === down projection for 16 output columns, routed rows written")
    K = C_K
    OA = 8; OR = 10; SG = 12; VA = 13; VO = 14; VW = 15; WF = 88; AF = 116; ACC = 52; RD = 168
    a(f"""s_mul_i32 s24, s20, 7168
    s_add_u32 s24, s24, {LWT}
    v_lshrrev_b32 v{T0}, 2, v{N}
    v_lshl_add_u32 v{T0}, v{G}, 3, v{T0}
    v_lshlrev_b32 v{T0}, 5, v{T0}
    v_and_b32 v{T1}, 3, v{N}
    v_lshl_add_u32 v{T0}, v{T1}, 3, v{T0}
    v_add_u32 v{VW}, s24, v{T0}""")
    for j in range(7):
        for h in range(2):
            a(f"ds_read_b64_tr_b16 {v2(WF+4*j+2*h)}, v{VW} offset:{(32*j+4*h)*32}")
    a(f"""v_and_b32 v{T1}, 7, v{N}
    v_mul_u32_u24 v{VO}, {PX}, v{T1}
    v_lshl_add_u32 v{VO}, v{G}, 3, v{VO}
    v_add_u32 v{VO}, s51, v{VO}
    v_lshlrev_b32 v{VA}, 4, v{T1}
    v_lshl_add_u32 v{VA}, v{G}, 7, v{VA}
    s_mul_i32 s25, s20, {7*512}
    s_add_u32 s25, s25, {WS_ACT}
    v_and_b32 v{OA}, 0x7ff, v{K}
    v_sub_u32 v{OA}, 2047, v{OA}
    v_mul_u32_u24 v{OA}, 896, v{OA}
    v_lshl_add_u32 v{OA}, v{G}, 3, v{OA}
    v_ashrrev_i32 v{T2}, 31, v{K}
    v_not_b32 v{T2}, v{T2}
    v_or_b32 v{T2}, 0x80000000, v{T2}
    v_xor_b32 v{K+1}, v{K}, v{T2}
    v_and_b32 v{K+1}, 0xffff0000, v{K+1}""")
    sigmoid_mul(a, SG, K+1, "1.0", T2)
    rbf(a, SG, SG)
    a(f"""v_lshlrev_b32 v{T1}, 4, v0
    v_add_u32 v{T1}, {LRED}, v{T1}""")
    def lds():
        for j in range(7):
            a(f"buffer_load_dwordx4 {v4(AF+4*j)}, v{VA}, s[12:15], s25 offen offset:{512*j} {SC}")
    if OPT["c2re"]:
        if OPT["sl_a"]: a(f"s_sleep {OPT['sl_a']}")
        lds()
        fetch_row_finish(a, 84, T2)
        anyones(a, range(AF, AF+28), T0)
        a("s_cmp_eq_u64 vcc, 0\ns_cbranch_scc1 Lactok")
        poll(a, lds, lambda: anyones(a, range(AF, AF+28), T0))
        a("Lactok:")
    else:
        fetch_row_finish(a, 84, T2)
        poll(a, lds, lambda: anyones(a, range(AF, AF+28), T0), pre=OPT["sl_a"])
    stamp(a, 10)
    a("s_waitcnt lgkmcnt(0)")
    for j in range(7):
        A = ACC + 4*(j & 1)
        a(f"v_mfma_f32_16x16x32_bf16 {v4(A)}, {v4(WF+4*j)}, {v4(AF+4*j)}, {'0' if j < 2 else v4(A)}")
    for p in range(2):
        a(f"v_pk_add_f32 {v2(ACC+2*p)}, {v2(ACC+2*p)}, {v2(ACC+4+2*p)}")
    a(f"""ds_write_b128 v{T1}, {v4(ACC)}
    s_waitcnt lgkmcnt(0)
    s_barrier
    s_cmp_lg_u32 s20, 0
    s_cbranch_scc1 Lend
    ds_read_b64 {v2(OR)}, v{VO} offset:{LXS}""")
    for w in range(1, 8):
        a(f"ds_read_b128 {v4(RD+4*w)}, v{T1} offset:{1024*w}")
    a("s_waitcnt lgkmcnt(7)")
    for i in range(2):
        a(f"v_lshlrev_b32 v{RD+2*i}, 16, v{OR+i}")
        a(f"v_and_b32 v{RD+2*i+1}, 0xffff0000, v{OR+i}")
    for w in range(1, 8):
        a(f"s_waitcnt lgkmcnt({7-w})")
        for p in range(2):
            a(f"v_pk_add_f32 {v2(ACC+2*p)}, {v2(ACC+2*p)}, {v2(RD+4*w+2*p)}")
    for rnd in range(2):
        for p in range(2): a(f"v_cvt_pk_bf16_f32 v{ACC+4+p}, v{ACC+2*p}, v{ACC+2*p+1}")
        for p in range(2):
            a(f"v_lshlrev_b32 v{ACC+2*p}, 16, v{ACC+4+p}")
            a(f"v_and_b32 v{ACC+2*p+1}, 0xffff0000, v{ACC+4+p}")
        for p in range(2):
            if rnd == 0: a(f"v_pk_mul_f32 {v2(ACC+2*p)}, {v2(ACC+2*p)}, {v2(SG)} op_sel_hi:[1,0]")
            else: a(f"v_pk_add_f32 {v2(ACC+2*p)}, {v2(ACC+2*p)}, {v2(RD+2*p)}")
    for p in range(2): a(f"v_cvt_pk_bf16_f32 v{OR+p}, v{ACC+2*p}, v{ACC+2*p+1}")
    a(f"""s_mov_b32 exec_lo, 0x00ff00ff
    s_mov_b32 exec_hi, 0x00ff00ff
    buffer_store_dwordx2 {v2(OR)}, v{OA}, s[52:55], s51 offen {['', 'sc1', 'nt', 'sc0 sc1'][OPT['ost']]}""")

def clears(a):
    a(f"""v_mov_b32 v{JUNK+2}, -1
    v_lshlrev_b32 v{T1}, 2, v{LANE}
    s_lshl_b32 s24, s2, 7
    s_add_u32 s24, s24, {WS_ACT}
    s_mov_b32 exec_hi, 0
    buffer_store_dword v{JUNK+2}, v{T1}, s[12:15], s24 offen {SC}
    s_mov_b32 exec_lo, 1
    s_lshl_b32 s23, s96, 11
    s_add_u32 s23, s23, {WS_ROW}
    buffer_load_dword v{JUNK}, v{VL}, s[52:55], s97 offen
    buffer_load_dword v{JUNK+1}, v{VL}, s[12:15], s23 offen
    s_mov_b64 exec, -1""")

def prefetch(a, w0=1, T0=T0, T1=T1):
    a("; L2 warm-up of the FFN weights (one word per line, values unused)")
    a(f"""s_and_b32 s24, s2, 7
    s_lshr_b32 s25, s2, 3
    s_mul_i32 s26, s25, {14*3584}
    s_mov_b32 s18, {448*3584}
    s_mov_b32 s19, 0x00020000
    s_cmp_eq_u32 s20, {w0+2}
    s_cbranch_scc1 Lpf_d
    v_lshrrev_b32 v{T0}, 2, v{LANE}
    v_mul_u32_u24 v{T0}, 3584, v{T0}
    v_and_b32 v{T1}, 3, v{LANE}
    v_lshl_add_u32 v{T0}, v{T1}, 7, v{T0}
    s_mul_i32 s24, s24, 448
    s_cmp_eq_u32 s20, {w0}
    s_cselect_b32 s16, s42, s44
    s_cselect_b32 s17, s43, s45
    s_branch Lpf_go
    Lpf_d:
    v_mul_u32_u24 v{T0}, 896, v{LANE}
    s_lshl_b32 s24, s24, 7
    s_mov_b32 s16, s46
    s_mov_b32 s17, s47
    Lpf_go:
    s_and_b32 s17, s17, 0xffff
    s_add_u32 s26, s26, s24
    s_mov_b32 exec_hi, 0x00ffffff
    buffer_load_dword v{JUNK}, v{T0}, s[16:19], s26 offen
    s_mov_b32 exec_hi, -1""")

def amap():
    m = OPT["amap"]
    if m == 0: return "s_and_b32 s21, s2, 31\ns_lshr_b32 s22, s2, 5"
    lc = m
    return (f"s_bfe_u32 s22, s2, {hex(((3-lc) << 16) | 0)}\ns_lshl_b32 s22, s22, {lc}\ns_bfe_u32 s21, s2, {hex((lc << 16) | 3)}\ns_or_b32 s22, s22, s21\n"
            f"s_bfe_u32 s21, s2, {hex((lc << 16) | (3-lc))}\ns_lshl_b32 s21, s21, {5-lc}\ns_lshr_b32 s12, s2, {3+lc}\ns_or_b32 s21, s21, s12")

def kernel(a):
    if OPT["stamps"]:
        for k in range(NST): a(f"s_mov_b32 s{64+2*k}, 0")
    stamp(a, 0)
    a(f"""v_readfirstlane_b32 s20, v0
    s_cmp_ge_u32 s2, 256
    s_cbranch_scc1 Lexit
    s_cmp_lt_u32 s20, 256
    s_cbranch_scc1 Lloader""")
    if OPT["b1"] == 2: a(f"v_mov_b32 v{T1}, {LTAG + 4}\nv_mov_b32 v{T2}, 0\nds_write_b32 v{T1}, v{T2}")
    a(f"""
    s_getpc_b64 s[30:31]
    Lpc:
    v_and_b32 v{T2}, 255, v0
    v_lshlrev_b32 v{JUNK}, 7, v{T2}
    v_mov_b32 v{JUNK+1}, s31
    v_add_co_u32 v{JUNK}, vcc, s30, v{JUNK}
    v_addc_co_u32 v{JUNK+1}, vcc, 0, v{JUNK+1}, vcc
    v_cmp_gt_u32 vcc, (Lexit-Lpc)/128+1, v{T2}
    s_and_saveexec_b64 s[30:31], vcc
    s_cbranch_execz Lpfd
    global_load_dword v{JUNK+2}, v[{JUNK}:{JUNK+1}], off
    Lpfd:""")
    if OPT["b1"] == 2: a("s_waitcnt lgkmcnt(0)\ns_barrier")
    a(f"""s_branch Lcompute
    Lloader:
    s_load_dwordx2 s[8:9], s[0:1], 0
    s_lshr_b32 s20, s20, 6
    v_and_b32 v{LANE}, 63, v0
    v_lshlrev_b32 v{VL}, 4, v{LANE}
    {amap()}
    s_mov_b32 s10, {XB}
    s_mov_b32 s11, 0x00020000
    v_cmp_lt_u32 vcc, 29, v{LANE}
    s_lshl_b32 s23, s20, 9
    s_add_u32 s23, s23, s21
    s_mul_i32 s23, s23, 896
    s_mul_i32 s24, s20, {16*PH}
    v_add_u32 v{T1}, {32*896 - 480}, v{VL}
    s_mov_b32 s25, {'s22' if OPT['rot'] else '0'}
    v_cndmask_b32 v{T1}, v{VL}, v{T1}, vcc
    s_mov_b32 exec_lo, 0xcfffffff
    s_mov_b32 exec_hi, 0x03ffffff
    s_mov_b32 s28, 0""")
    if OPT["b1"] == 2: a("s_barrier")
    a("s_waitcnt lgkmcnt(0)")
    stamp(a, 3, True)
    if OPT["dmau"]:
        a("Ldma:")
        for i in range(8):
            a(f"""s_mul_i32 s26, s25, {2*PH}
            s_mul_i32 s27, s25, {64*896}
            s_add_u32 m0, s26, s24
            s_add_u32 s27, s27, s23
            s_add_u32 s25, s25, 1
            buffer_load_dwordx4 v{T1}, s[8:11], s27 offen lds
            s_and_b32 s25, s25, 7""")
        a(f"""s_add_u32 s24, s24, {LXH}
        s_add_u32 s23, s23, 448
        s_add_u32 s28, s28, 1
        s_cmp_lt_u32 s28, 2""")
        if OPT["b1"] == 1: a("s_cbranch_scc0 Ldmad\ns_barrier\ns_branch Ldma\nLdmad:")
        else: a("s_cbranch_scc1 Ldma")
    else:
        a(f"""Ldma:
        s_mul_i32 s26, s25, {2*PH}
        s_mul_i32 s27, s25, {64*896}
        s_add_u32 s26, s26, s24
        s_add_u32 s27, s27, s23
        s_mov_b32 m0, s26
        s_add_u32 s25, s25, 1
        buffer_load_dwordx4 v{T1}, s[8:11], s27 offen lds
        s_and_b32 s25, s25, 7
        s_add_u32 s28, s28, 1
        s_cmp_lg_u32 s28, 8
        s_cbranch_scc1 Ldma1
        s_add_u32 s24, s24, {LXH}
        s_add_u32 s23, s23, 448
        Ldma1:
        s_cmp_lt_u32 s28, 16
        s_cbranch_scc1 Ldma""")
    def ltail():
        a(f"""Lltail:
        s_mov_b64 exec, -1
        s_load_dwordx2 s[6:7], s[0:1], 96
        s_load_dwordx8 s[40:47], s[0:1], 48
        s_load_dwordx2 s[48:49], s[0:1], 80
        v_and_b32 v{N}, 15, v0
        v_bfe_u32 v{G}, v0, 4, 2""")
        stamp(a, 6, True)
        early = OPT["e2a"]
        if early:
            a("s_waitcnt vmcnt(8)")
            stamp(a, 1)
            a("s_barrier")
        a("s_waitcnt lgkmcnt(0)")
        b_setup(a)
        b_loads(a)
        a("s_cmp_lg_u32 s20, 0\ns_cbranch_scc1 Lw123a")
        clears(a)
        if not early:
            a("s_waitcnt vmcnt(14)")
            stamp(a, 1)
            a("s_barrier")
        a("s_waitcnt vmcnt(6)")
        stamp(a, 2)
        a(f"""s_barrier
        v_mov_b32 v{T0}, {LTAG}
        s_waitcnt vmcnt(5)
        ds_write_b32 v{T0}, v{V_EP}
        s_branch Lprol
        Lw123a:""")
        if OPT["pf"] == 3: prefetch(a)
        if not early:
            a(f"s_waitcnt vmcnt(12)")
            stamp(a, 1)
            a("s_barrier")
        a(f"s_waitcnt vmcnt({4 if OPT['pf'] == 3 else 3})")
        stamp(a, 2)
        a(f"s_barrier")
        if OPT["pf"] == 1: prefetch(a)
        a(f"s_waitcnt vmcnt({2 if OPT['pf'] == 4 else 3})")
        a("Lprol:")
        if OPT["wdh"]: wd_dma(a, 0, 7, "Lnwd2")
        if OPT["w64l"]:
            a("s_mov_b32 s3, s20")
            w64(a, AC1)
            for i in range(8): a(f"v_xor_b32 v{AC1+16+i}, 0x80008000, v{AC1+8+i}")
            a(f"s_lshl_b32 s26, s3, 12\ns_add_u32 s26, s26, {LWT}\nv_add_u32 v{T1}, s26, v{VL}")
            for i in range(6): a(f"ds_write_b128 v{T1}, {v4(AC1+4*i)} offset:{[0, 1024, 2048, 3072, 16384, 17408][i]}")
        if not OPT["prolate"]: pro(a)
        stamp(a, 3)
        def hint_store():
            a(f"""s_cmp_lg_u32 s20, 0
            s_cbranch_scc1 Lnh
            s_lshl_b32 s34, s2, 6
            s_add_u32 s34, s34, {WS_HINT}
            v_add_u32 v{T0}, 1, v{V_EP}
            s_mov_b64 exec, 1
            buffer_store_dword v{T0}, v{VL}, s[12:15], s34 offen {SC}
            s_mov_b64 exec, -1
            Lnh:""")
        if OPT["hint"] == 2: hint_store()
        a("s_waitcnt lgkmcnt(0)\ns_barrier")
        if OPT["hint"] == 1: hint_store()
        a("s_branch Lpro1" if OPT["prolate"] else "s_branch Lpro2")
    if OPT["layout"]: a("s_branch Lltail")
    else: ltail()
    a("Lcompute:")
    a(f"""s_mov_b64 exec, -1
    s_load_dwordx2 s[8:9], s[0:1], 0
    s_lshr_b32 s20, s20, 6
    v_and_b32 v{LANE}, 63, v0
    v_lshlrev_b32 v{VL}, 4, v{LANE}
    {amap()}
    s_mov_b32 s10, {XB}
    s_mov_b32 s11, 0x00020000
    s_load_dwordx2 s[6:7], s[0:1], 96
    s_load_dwordx8 s[40:47], s[0:1], 48
    s_load_dwordx2 s[48:49], s[0:1], 80
    v_and_b32 v{N}, 15, v0
    v_bfe_u32 v{G}, v0, 4, 2
    s_and_b32 s3, s20, 3""")
    if OPT["prio"]: a("s_setprio 3")
    stamp(a, 9, True)
    a_pre(a)
    stamp(a, 11, True)
    a("s_waitcnt lgkmcnt(0)")
    b_setup(a)
    for i in range(OPT["warm"]): a(f"v_mfma_f32_16x16x32_bf16 {v4(AC2+4*(i%4))}, {v4(WC)}, {v4(WSN)}, {v4(AC2+4*(i%4))}")
    stamp(a, 1)
    a("s_barrier")
    stamp(a, 2)
    a_main(a)
    stamp(a, 4)
    if OPT["prio"]: a("s_setprio 0")
    a(f"buffer_load_dwordx4 {v4(B_WR)}, v{VL}, s[16:19], 0 offen")
    a(f"buffer_load_dwordx4 {v4(B_XR)}, v{VL}, s[8:11], s97 offen")
    a("Lpro1:")
    pro(a, 1 if OPT["prosplit"] else 0)
    a("Lpro2:")
    a(f"""v_readfirstlane_b32 s56, v{V_EP}
    s_add_u32 s56, s56, 1
    s_mul_i32 s98, s56, {HASH}
    s_lshl_b32 s99, s98, 6
    s_and_b32 s59, s56, 0xffff""")
    if OPT["hint"]:
        a(f"""v_and_b32 v{T1}, 31, v{LANE}
        v_lshlrev_b32 v{T1}, 6, v{T1}
        s_lshl_b32 s34, s20, 11
        s_add_u32 s34, s34, {WS_HINT}
        s_mov_b32 s57, 4000""")
        if OPT["sl_h0"]: a(f"s_sleep {OPT['sl_h0']}")
        a(f"""Lhint:
        buffer_load_dword v{T0}, v{T1}, s[12:15], s34 offen {SC}
        s_waitcnt vmcnt(0)
        v_cmp_ne_u32 vcc, s56, v{T0}
        s_cmp_eq_u64 vcc, 0
        s_cbranch_scc1 Lhintd""")
        if OPT["sl_h"]: a(f"s_sleep {OPT['sl_h']}")
        a(f"""s_sub_u32 s57, s57, 1
        s_cbranch_scc0 Lhint
        Lhintd:""")
    else:
        a("s_barrier")
    stamp(a, 5)
    b_main(a)
    if OPT["wdh"]: a("s_cmp_lt_u32 s20, 4\ns_cbranch_scc1 Lnwd1")
    wd_dma(a, OPT['wdsplit'], 7, 'Lnwd1')
    c_select(a)
    a("s_cmp_ge_u32 s2, 224\ns_cbranch_scc1 Lc2")
    c1(a)
    a("Lc2:\ns_and_b32 s50, s2, 7\ns_cmp_eq_u32 s50, 7\ns_cbranch_scc1 Lend\ns_lshl_b32 s50, s50, 7\ns_bfe_u32 s51, s2, 0x20003\ns_lshl_b32 s51, s51, 5\ns_add_u32 s51, s51, s50")
    c2(a)
    a("Lend:")
    dump_stamps(a)
    if OPT["layout"]:
        a("s_endpgm")
        ltail()
        for f in TAIL: f()
    a("Lexit:\ns_endpgm\nLfullsel:")
    select8(a, C_K, C_TMP, C_L, C_SW, C_SR)
    a("s_branch Lseldone")

DOC = '''; ---------------------------------------------------------------------------------------------
;      into LDS, waves 4-7 build the cos/sin tables, run the DFT-448 for 28 frequencies (raw bf16 x,
;      sums), then the DFT-64 over s2, and write U (f16) to d_ws.
;      28 workgroups do the down projection for 16 output columns and write the routed rows.
; ---------------------------------------------------------------------------------------------
'''
NAME = "sequential_preLN__spectral_fnet__moe_arch_mod__prompt_kernel"
def build():
    a = Asm()
    kernel(a)
    body = a.finish()
    if OPT["align"]: body = align_pass(body)
    return gen.HDR + f"""; @launch grid=(256,1,1) block=(512,1,1) lds={LDS_TOTAL}
{DOC}.amdgcn_target "amdgcn-amd-amdhsa--gfx950"
.text
.globl {NAME}
.p2align 8
.type {NAME},@function
{NAME}:
""" + body + f""".section .rodata,"a"
.p2align 6
.amdhsa_kernel {NAME}
  .amdhsa_next_free_vgpr {NVGPR}
  .amdhsa_next_free_sgpr 102
  .amdhsa_accum_offset {NVGPR}
  .amdhsa_group_segment_fixed_size 0
  .amdhsa_kernarg_size 104
  .amdhsa_user_sgpr_count 2
  .amdhsa_user_sgpr_kernarg_segment_ptr 1
  .amdhsa_system_sgpr_workgroup_id_x 1
.end_amdhsa_kernel
"""

if __name__ == "__main__":
    for x in list(sys.argv[1:]):
        if x.startswith("--"):
            k, _, v = x[2:].partition("=")
            assert k in OPT, k
            OPT[k] = int(v) if v else 1
            sys.argv.remove(x)
    open(sys.argv[1], "w").write(build())
```

```python
import sys
from asmlib import Asm, fl, align_pass
import gen
from gen import srd, v4, v2, rbf, sd_chain, reduce3, unpack8, lim_regs, select8, sigmoid_mul

WS_KEYS = 0x220000
WS_HINT = 0x204000
WS_EPOCH = 0x208000
WS_ACT = 0x210000
WS_STAMP = 0x3c0000
WS_ROW = 0x400000
WS_SIZE = 0x800000
XB = 1835008
PH = 480; PX = 928; PF = 136; PY = 512
LXH = 64 * PH
LW = 2 * LXH; LCS = LW + 28 * 1024; LTAG = LCS + 256; LF = LCS + 272; LWT = LF + 64 * PF; LDS_TOTAL = LWT + 57344
LY = 0
LSEL = 16384; LSE2 = 16640; LKEY = 17152; LXS = 17408; LRED = 24832
SPIN = 4000000
SC = "sc1"
HASH = "0x9e3779b1"
OPT = dict(stamps=0, cyc=0, align=0, sl_u0=4, sl_k=15, sl_a=4, rowpf=2, barj=5, dbgto=0, ost=0, c2re=1, rot=1, pf=3, wdsplit=0, w64l=0, layout=1, e2a=1, prolate=1, amp=-1, ampw=0, ampb=224, prio=1, wdh=0, cheb=1, ln1emu=1, dmau=1, b1=0, part=0, sl_r=4, hint=0, sl_h=4, sl_h0=0, trim=1, prosplit=0, warm=0, amap=0, ksh=5)
NST = 14

def stamp(a, k, early=False):
    if OPT["stamps"] == 5:
        if early != 5 and k not in (0, 3, 4, NST - 1): return
    elif OPT["stamps"] == 4:
        if early == 5 or (not early and k not in (0, 1, 2, NST - 1)): return
    elif early: return
    if OPT["stamps"] == 2 and k not in (0, NST - 1): return
    if OPT["stamps"]: a(f"{'s_memtime' if OPT['cyc'] else 's_memrealtime'} s[{64+2*k}:{65+2*k}]")
def dump_stamps(a):
    if OPT["amp"] >= 0:
        k = OPT["amp"]
        a(f"s_memrealtime s[{64+2*(NST-2)}:{65+2*(NST-2)}]")
        a(f"""s_cmp_lg_u32 s2, {OPT['ampb']}
        s_cbranch_scc1 Lampd
        s_cmp_lg_u32 s20, {OPT['ampw']}
        s_cbranch_scc1 Lampd
        s_waitcnt lgkmcnt(0)
        s_sub_u32 s60, s{64+2*k}, s64
        s_mul_i32 s60, s60, 9
        s_add_u32 s60, s60, s{64+2*(NST-2)}
        Lamp:
        s_memrealtime s[62:63]
        s_waitcnt lgkmcnt(0)
        s_sub_u32 s61, s62, s60
        s_cmp_lt_i32 s61, 0
        s_cbranch_scc1 Lamp
        Lampd:""")
        return
    if not OPT["stamps"]: return
    stamp(a, NST - 2)
    a("s_waitcnt vmcnt(0)")
    stamp(a, NST - 1)
    a("s_mov_b64 exec, 1\ns_waitcnt lgkmcnt(0)")
    a(f"s_lshl_b32 s60, s2, 3\ns_add_u32 s60, s60, s20\ns_lshl_b32 s60, s60, 6\ns_add_u32 s60, s60, {WS_STAMP}\nv_mov_b32 v1, 0")
    for k in range(NST):
        a(f"v_mov_b32 v2, s{64+2*k}\nbuffer_store_dword v2, v1, s[12:15], s60 offen offset:{4*k}")

_lbl = [0]
TAIL = []
def timeout_note(a, ident):
    if not OPT["dbgto"]: return
    a(f"""s_lshl_b32 s100, s2, 8
    s_add_u32 s100, s100, s20
    s_add_u32 s100, s100, {ident << 24}
    v_mov_b32 v{JUNK+3}, s100
    s_mov_b32 s100, {0x3f0000 + 4*ident}
    s_mov_b64 exec, 1
    buffer_store_dword v{JUNK+3}, v{VL}, s[12:15], s100 offen
    v_mov_b32 v{JUNK+3}, s36
    buffer_store_dword v{JUNK+3}, v{VL}, s[12:15], s100 offen offset:64
    v_mov_b32 v{JUNK+3}, s98
    buffer_store_dword v{JUNK+3}, v{VL}, s[12:15], s100 offen offset:128
    v_mov_b32 v{JUNK+3}, s34
    buffer_store_dword v{JUNK+3}, v{VL}, s[12:15], s100 offen offset:192
    s_mov_b64 exec, -1""")
def poll(a, loads, check, pre=0):
    _lbl[0] += 1
    L = f"Lpoll{_lbl[0]}"
    if pre: a(f"s_sleep {pre}")
    a(f"s_mov_b32 s57, {SPIN}\n{L}:")
    loads()
    a("s_waitcnt vmcnt(0)")
    check()
    a(f"""s_cmp_eq_u64 vcc, 0
    s_cbranch_scc1 {L}d
    s_sub_u32 s57, s57, 1
    s_cbranch_scc0 {L}""")
    timeout_note(a, _lbl[0])
    a(f"{L}d:")

class LdsQ:
    def __init__(s, a): s.a = a; s.q = []
    def read(s, text, b, n=4):
        s.a(text); s.q.append(set(range(b, b + n)))
    def need(s, b, n=4):
        rs = set(range(b, b + n)); last = -1
        for i, d in enumerate(s.q):
            if d & rs: last = i
        if last >= 0:
            s.a(f"s_waitcnt lgkmcnt({len(s.q) - 1 - last})")
            s.q = s.q[last+1:]

LANE, N, G, T0, T1, T2, VL = 1, 2, 3, 4, 5, 6, 7
B_XR = 8; B_WR = 12; V_EP = 16; VFW = 17; VFR = 18; VXR = 19; VCS = 20; VUS = 21; ST = 22
WC = 28; WSN = 36; WNS = 44
AC1 = 52; AC2 = 68; GR = 84; XF = 88; WD = 116
JUNK = 228; SG2 = 232; V_GU = 234; V_DC = 235; B_A2 = 236; B_AD4 = 244; NVGPR = 248
B_AF = 28; B_AD = 36; B_VY = 40; B_VU = 41; C_L = {1: 42, 2: 43, 4: 44}; C_SW = 45; C_SR = 46; C_KA = 47
C_FW = 48; C_FR = 49; C_FY = 50; C_PF = 51
B_R = 116; B_ACC = 52; B_XU = 68; B_WU = 76; B_S1, B_S2, B_S3 = 88, 90, 92; B_TH = 96; P_TH = 104; P_EPS = 112; P_BASE = 113
C_K = 148; C_TMP = 152; C_KEY = 156; C_X = 157; C_Y = 158; C_OUT = 160; C_LN = 164; C_IX = 224; C_STK = 159

def trig_block(a, n, k0, eps, base, th, want_sin):
    for i in range(n):
        k = k0 + i
        if k == 0: a(f"v_mov_b32 v{th+i}, v{base}")
        else: a(f"v_fmamk_f32 v{th+i}, v{eps}, {fl(float(k))}, v{base}")
    for i in range(n):
        if want_sin: a(f"v_sin_f32 v{th+n+i}, v{th+i}")
        a(f"v_cos_f32 v{th+i}, v{th+i}")

def w64(a, D):
    EPS, BASE, TH, S = ST + 4, ST + 5, XF, ST
    a(f"""v_lshrrev_b32 v{S}, 1, v{N}
    s_lshl_b32 s25, s3, 3
    v_add_u32 v{S}, s25, v{S}
    v_sub_u32 v{S+1}, 64, v{S}
    v_cmp_eq_u32 vcc, 0, v{S}
    v_and_b32 v{S+2}, 1, v{N}
    v_cndmask_b32 v{S+1}, v{S+1}, 32, vcc
    v_cmp_eq_u32 vcc, 0, v{S+2}
    v_lshlrev_b32 v{S+2}, 3, v{G}
    v_cndmask_b32 v{S+1}, v{S+1}, v{S}, vcc
    v_cvt_f32_u32 v{S+2}, v{S+2}
    v_and_b32 v{S}, 1, v{S+1}
    v_cvt_f32_u32 v{S+1}, v{S+1}
    v_mul_u32_u24 v{S}, 0x8000, v{S}
    v_mul_f32 v{EPS}, {fl(1.0/64)}, v{S+1}
    v_lshl_or_b32 v{S}, v{S}, 16, v{S}
    v_mul_f32 v{BASE}, v{S+2}, v{EPS}""")
    if OPT["cheb"]:
        C2 = S + 3; CV = XF; SV = XF + 8
        a(f"""v_cos_f32 v{C2}, v{EPS}
        v_add_f32 v{CV+1}, v{EPS}, v{BASE}
        v_sin_f32 v{SV}, v{BASE}
        v_cos_f32 v{CV}, v{BASE}
        v_sin_f32 v{SV+1}, v{CV+1}
        v_cos_f32 v{CV+1}, v{CV+1}
        v_add_f32 v{C2}, v{C2}, v{C2}""")
        for i in range(2, 8):
            for Vv in (CV, SV): a(f"v_fma_f32 v{Vv+i}, v{C2}, v{Vv+i-1}, -v{Vv+i-2}")
        for i in range(4):
            a(f"v_cvt_pk_f16_f32 v{D+i}, v{CV+2*i}, v{CV+2*i+1}")
            a(f"v_cvt_pk_f16_f32 v{D+8+i}, v{SV+2*i}, v{SV+2*i+1}")
        for i in range(4):
            a(f"v_xor_b32 v{D+4+i}, v{S}, v{D+i}")
            a(f"v_xor_b32 v{D+12+i}, v{S}, v{D+8+i}")
        return
    for ks in range(2):
        for h in range(2):
            trig_block(a, 4, 32*ks + 4*h, EPS, BASE, TH, True)
            for i in range(2):
                a(f"v_cvt_pk_f16_f32 v{D+4*ks+2*h+i}, v{TH+2*i}, v{TH+2*i+1}")
                a(f"v_cvt_pk_f16_f32 v{D+8+4*ks+2*h+i}, v{TH+4+2*i}, v{TH+4+2*i+1}")

def a_pre(a):
    a("; === phase A set-up: DFT-448 table tile (three-term recurrence), its column sums, DFT-64 fragments")
    EPS, BASE, TH, ONE, TO, CS = ST + 4, ST + 5, XF, XF + 8, XF + 12, AC1
    a(f"""s_and_b32 s25, s3, 1
    s_lshl_b32 s25, s25, 2
    v_and_b32 v{T0}, 3, v{N}
    v_add_u32 v{T0}, s25, v{T0}
    v_lshrrev_b32 v{T1}, 2, v{N}
    s_mul_i32 s26, s22, 28
    s_add_u32 s26, s26, 1
    v_mad_u32_u24 v{T1}, v{T1}, 7, v{T0}
    v_add_u32 v{T1}, s26, v{T1}
    v_cmp_ne_u32 vcc, 7, v{T0}
    s_lshr_b32 s25, s3, 1
    s_mul_i32 s25, s25, {fl(0.25)}
    v_cndmask_b32 v{T1}, 0, v{T1}, vcc
    v_cvt_f32_u32 v{T1}, v{T1}
    v_mul_f32 v{EPS}, {fl(1.0/448)}, v{T1}
    v_lshlrev_b32 v{T0}, 3, v{G}
    v_cvt_f32_u32 v{T2}, v{T0}
    v_fma_f32 v{BASE}, v{T2}, v{EPS}, s25
    s_mul_i32 s25, s3, {7*1024}
    s_add_u32 s25, s25, {LW}
    v_add_u32 v{T1}, s25, v{VL}""")
    for i in range(4): a(f"v_mov_b32 v{ONE+i}, 0x3f803f80")
    if OPT["cheb"]:
        C2 = ST + 3; V = WD
        a(f"v_cos_f32 v{C2}, v{EPS}")
        for j in range(7):
            for i in range(2):
                k = 32*j + i
                if k == 0: a(f"v_mov_b32 v{V}, v{BASE}")
                else: a(f"v_fmamk_f32 v{V+8*j+i}, v{EPS}, {fl(float(k))}, v{BASE}")
        a(f"v_add_f32 v{C2}, v{C2}, v{C2}")
        for j in range(7):
            for i in range(2): a(f"v_cos_f32 v{V+8*j+i}, v{V+8*j+i}")
        for i in range(2, 8):
            for j in range(7):
                a(f"v_fma_f32 v{V+8*j+i}, v{C2}, v{V+8*j+i-1}, -v{V+8*j+i-2}")
        for j in range(7):
            o = V + 56 + 4*j
            for i in range(4): a(f"v_cvt_pk_bf16_f32 v{o+i}, v{V+8*j+2*i}, v{V+8*j+2*i+1}")
            a(f"ds_write_b128 v{T1}, {v4(o)} offset:{j*1024}")
            a(f"v_mfma_f32_16x16x32_bf16 {v4(CS)}, {v4(o)}, {v4(ONE)}, {'0' if j == 0 else v4(CS)}")
    else:
      for j in range(7):
        trig_block(a, 8, 32*j, EPS, BASE, TH, False)
        o = TO + 4*(j & 1)
        for i in range(4): a(f"v_cvt_pk_bf16_f32 v{o+i}, v{TH+2*i}, v{TH+2*i+1}")
        a(f"ds_write_b128 v{T1}, {v4(o)} offset:{j*1024}")
        a(f"v_mfma_f32_16x16x32_bf16 {v4(CS)}, {v4(o)}, {v4(ONE)}, {'0' if j == 0 else v4(CS)}")
    a(f"""v_lshrrev_b32 v{ST}, 1, v{N}
    s_lshl_b32 s25, s3, 3
    v_add_u32 v{ST}, s25, v{ST}
    v_and_b32 v{ST+2}, 1, v{N}
    v_lshlrev_b32 v{VUS}, 16, v{ST}
    v_lshl_add_u32 v{VUS}, v{ST+2}, 6, v{VUS}
    v_lshl_add_u32 v{VUS}, v{G}, 4, v{VUS}
    s_lshl_b32 s25, s3, 6
    v_lshlrev_b32 v{T0}, 4, v{G}
    v_add_u32 v{VCS}, {LCS}, v{T0}
    v_add_u32 v{T1}, s25, v{VCS}
    v_lshlrev_b32 v{SG2+1}, 31, v{G}
    v_or_b32 v{SG2+1}, 1.0, v{SG2+1}
    v_xor_b32 v{SG2}, 0x80000000, v{SG2+1}
    v_pk_fma_f32 {v2(CS)}, {v2(CS)}, {v2(SG2)}, {v2(CS)}
    v_pk_fma_f32 {v2(CS+2)}, {v2(CS+2)}, {v2(SG2)}, {v2(CS+2)}
    ds_write_b128 v{T1}, {v4(CS)}""")
    if OPT["b1"] == 2:
        a(f"""v_mov_b32 v{T1}, {LTAG + 4}
        v_mov_b32 v{T2}, 1
        s_waitcnt lgkmcnt(0)
        s_mov_b64 exec, 1
        ds_add_u32 v{T1}, v{T2}
        s_mov_b64 exec, -1""")
        w64(a, WC)
        a(f"""Lwsync:
        ds_read_b32 v{T2}, v{T1}
        s_waitcnt lgkmcnt(0)
        v_readfirstlane_b32 s25, v{T2}
        s_cmp_lt_u32 s25, 4
        s_cbranch_scc1 Lwsync
        v_add_u32 v{T2}, {LW}, v{VL}""")
        for f in range(28): a(f"ds_read_b128 {v4(WD+4*f)}, v{T2} offset:{f*1024}")
        for i in range(8): a(f"v_xor_b32 v{WNS+i}, 0x80008000, v{WSN+i}")
    if OPT["b1"] == 1:
        a(f"v_add_u32 v{T2}, {LW}, v{VL}\ns_waitcnt lgkmcnt(0)\ns_barrier")
        for f in range(28): a(f"ds_read_b128 {v4(WD+4*f)}, v{T2} offset:{f*1024}")
    if OPT["pf"] == 4:
        a("s_waitcnt lgkmcnt(0)\ns_cmp_eq_u32 s20, 7\ns_cbranch_scc1 Lnpf4")
        prefetch(a, 4, XF, XF + 1)
        a("Lnpf4:")
    if not OPT["w64l"] and OPT["b1"] != 2:
        w64(a, WC)
        for i in range(8): a(f"v_xor_b32 v{WNS+i}, 0x80008000, v{WSN+i}")
    stamp(a, 10, True)
    a(f"v_add_u32 v{T2}, {LW}, v{VL}")
    a(f"""s_lshl_b32 s25, s3, 4
    v_add_u32 v{ST}, s25, v{N}
    v_mul_u32_u24 v{VXR}, {PH}, v{ST}
    v_add_u32 v{VXR}, v{T0}, v{VXR}
    v_mul_u32_u24 v{VFW}, {PF}, v{ST}
    v_lshl_add_u32 v{VFW}, v{G}, 3, v{VFW}
    v_add_u32 v{VFW}, {LF}, v{VFW}
    v_lshrrev_b32 v{ST}, 2, v{N}
    v_lshl_add_u32 v{ST}, v{G}, 3, v{ST}
    v_mul_u32_u24 v{VFR}, {PF}, v{ST}
    v_and_b32 v{ST}, 3, v{N}
    v_lshl_add_u32 v{VFR}, v{ST}, 3, v{VFR}
    v_add_u32 v{VFR}, {LF}, v{VFR}
    s_lshl_b32 s23, s21, 11
    s_lshl_b32 s24, s22, 8
    s_add_u32 s23, s23, s24""")
    for r in range(4):
        a(f"s_mov_b32 s{30+2*r}, {hex(((1<<r)|(1<<(20+r))) & 0xffffffff)}")
        a(f"s_mov_b32 s{31+2*r}, {hex(((1<<(8+r))|(1<<(28+r))) & 0xffffffff)}")
    a("s_mov_b64 s[24:25], 0xffff\ns_mov_b32 s38, 0\ns_cmp_eq_u32 s22, 7\ns_cselect_b32 s39, 0xffff0000, 0")

def a_main(a):
    a("; === phase A: DFT-448 GEMM (two K halves) + row statistics, LDS transpose, DFT-64, U stores")
    q = LdsQ(a)
    def rdx(j, hf): q.read(f"ds_read_b128 {v4(XF+4*j)}, v{VXR} offset:{64*j + hf*LXH}", XF+4*j)
    def rdw(j):
        for T in range(4): q.read(f"ds_read_b128 {v4(WD+4*(7*T+j))}, v{T2} offset:{(7*T+j)*1024}", WD+4*(7*T+j))
    if OPT["b1"]:
        for j in range(7): rdx(j, 0)
    else:
        for j in range(3): rdx(j, 0); rdw(j)
    BJ = OPT["barj"]
    Q, S, M, RS = ST, ST+1, ST+2, ST+4
    def mf(A, T, j, first): a(f"v_mfma_f32_16x16x32_bf16 {v4(A+4*T)}, {v4(WD+4*(7*T+j))}, {v4(XF+4*j)}, {'0' if first else v4(A+4*T)}")
    def gram(j, first): a(f"v_mfma_f32_16x16x32_bf16 {v4(GR)}, {v4(XF+4*j)}, {v4(XF+4*j)}, {'0' if first else v4(GR)}")
    for j in range(7):
        q.need(XF + 4*j)
        gram(j, j == 0)
        for T in range(4):
            q.need(WD+4*(7*T+j))
            mf(AC1, T, j, j == 0)
        if j + 3 < 7 and not OPT["b1"]: rdx(j + 3, 0); rdw(j + 3)
        if j == BJ:
            stamp(a, 11)
            a("s_barrier")
            for k in range(BJ + 1): rdx(k, 1)
        elif j > BJ: rdx(j, 1)
    CS = WD + 28
    for j in range(7):
        q.need(XF + 4*j)
        gram(j, False)
        mf(AC2, 1, j, j == 0)
    for T in range(4): q.read(f"ds_read_b128 {v4(CS+4*T)}, v{VCS} offset:{64*T}", CS+4*T)
    stats = [None, None, f"v_mov_b32 v{Q}, 0", f"v_mov_b32 v{V_EP}, {LTAG}"]
    stats += [f"v_cndmask_b32 v{Q}, v{Q}, v{GR+r}, s[{30+2*r}:{31+2*r}]" for r in range(4)]
    stats += [f"v_add_f32 v{S}, v{AC1+7}, v{AC2+7}", f"v_cndmask_b32 v{S}, 0, v{S}, s[24:25]", None, None,
              f"v_permlane32_swap_b32 v{Q}, v{S}", f"v_add_f32 v{Q}, v{Q}, v{S}", f"v_mov_b32 v{S}, v{Q}", None, None,
              f"v_permlane16_swap_b32 v{Q}, v{S}", f"v_add_f32 v{Q}, v{Q}, v{S}", f"v_mov_b32 v{S}, v{Q}", None, None,
              f"v_permlane32_swap_b32 v{Q}, v{S}", f"v_mul_f32 v{M}, {fl(-1.0/448)}, v{S}", f"v_mul_f32 v{Q}, {fl(1.0/448)}, v{Q}",
              f"v_fma_f32 v{Q}, -v{M}, v{M}, v{Q}", f"v_max_f32 v{Q}, 0, v{Q}"]
    rb = [f"v_cvt_pk_bf16_f32 v{Q}, v{Q}, v{Q}", f"v_and_b32 v{Q}, 0xffff0000, v{Q}"]
    if OPT["ln1emu"]:
        stats += rb + [f"v_add_f32 v{Q}, {fl(1e-5)}, v{Q}"] + rb + [f"v_sqrt_f32 v{Q}, v{Q}", None] + rb + [f"v_rcp_f32 v{RS}, v{Q}"]
    else:
        stats += [f"v_add_f32 v{Q}, {fl(1e-5)}, v{Q}", f"v_rsq_f32 v{RS}, v{Q}"]
    k = stats.index(f"v_max_f32 v{Q}, 0, v{Q}") + 1
    stats[k:k] = [f"v_cvt_pk_bf16_f32 v{V_DC}, v{M}, v{M}", f"v_and_b32 v{V_DC}, 0xffff0000, v{V_DC}",
                  f"v_sub_f32 v{V_DC}, v{V_DC}, v{M}", f"v_mul_f32 v{V_DC}, {fl(448.0)}, v{V_DC}"]
    stats += ["WAITCS", f"v_mul_f32 v{M}, v{M}, v{RS}", f"v_mul_f32 v{V_DC}, v{V_DC}, v{RS}"]
    stats += [f"v_mul_f32 v{CS+i}, v{CS+i}, v{M}" for i in range(16)]
    for j in range(7):
        for T in (0, 2, 3):
            mf(AC2, T, j, j == 0)
            for _ in range(2):
                if stats:
                    t = stats.pop(0)
                    if t == "WAITCS": q.need(CS, 16)
                    elif t: a(t)
    for p in range(2): a(f"v_pk_fma_f32 {v2(AC1+4+2*p)}, {v2(AC2+4+2*p)}, {v2(SG2)}, {v2(AC1+4+2*p)}")
    for t in stats:
        if t == "WAITCS": q.need(CS, 16)
        elif t: a(t)
    stamp(a, 3)
    for T in (0, 2, 3):
        for p in range(2):
            x = AC1 + 4*T + 2*p
            a(f"v_pk_fma_f32 {v2(x)}, {v2(AC2+4*T+2*p)}, {v2(SG2)}, {v2(x)}")
    for T in (1, 0, 2, 3):
        for p in range(2):
            x = AC1 + 4*T + 2*p
            a(f"v_pk_fma_f32 {v2(x)}, {v2(x)}, {v2(RS)}, {v2(CS+4*T+2*p)} op_sel_hi:[1,0,1]")
    a(f"v_cndmask_b32 v{AC1+14}, v{AC1+14}, v{V_DC}, s[38:39]")
    for T in (1, 0, 2, 3):
        for p in range(2):
            x = AC1 + 4*T + 2*p
            a(f"v_cvt_pk_f16_f32 v{AC2+2*T+p}, v{x}, v{x+1}")
        a(f"ds_write_b64 v{VFW}, {v2(AC2+2*T)} offset:{32*T}")
    if OPT["w64l"]: a(f"s_lshl_b32 s26, s3, 12\ns_add_u32 s26, s26, {LWT}\nv_add_u32 v{T1}, s26, v{VL}")
    stamp(a, 5, 5)
    a(f"s_waitcnt lgkmcnt(0)")
    stamp(a, 6, 5)
    a(f"s_barrier")
    stamp(a, 7, 5)
    if OPT["w64l"]:
        for i in (0, 2, 4, 1, 3, 5): a(f"ds_read_b128 {v4(WC+4*i)}, v{T1} offset:{(i % 4 if i < 4 else i - 2 + 2) * 0 + i * 0 + [0, 1024, 2048, 3072, 16384, 17408][i]}")
    FA = WD + 48
    fa = lambda T, ks: FA + (2*T + ks) * 4
    q = LdsQ(a)
    for T in range(2):
        for ks in range(2):
            for TT in (T, T + 2):
                for h in range(2):
                    q.read(f"ds_read_b64_tr_b16 {v2(fa(TT, ks)+2*h)}, v{VFR} offset:{(32*ks+4*h)*PF+32*TT}", fa(TT, ks)+2*h, 2)
    q.read(f"ds_read_b32 v{V_EP}, v{V_EP}", V_EP, 1)
    UR = AC1; UI = AC1 + 8; o = XF
    tagcalc = [f"v_add_u32 v{M}, 1, v{V_EP}", f"s_mov_b32 s98, {HASH}", f"v_mul_lo_u32 v{M}, v{M}, s98"]
    for T in range(2):
        for ks in range(2):
            fr = v4(fa(T, ks)); fi = v4(fa(T + 2, ks))
            q.need(fa(T, ks))
            if T == 0 and ks == 0: stamp(a, 8, 5)
            a(f"v_mfma_f32_16x16x32_f16 {v4(UR+4*T)}, {fr}, {v4(WC+4*ks)}, {'0' if ks == 0 else v4(UR+4*T)}")
            a(f"v_mfma_f32_16x16x32_f16 {v4(UI+4*T)}, {fr}, {v4(WNS+4*ks)}, {'0' if ks == 0 else v4(UI+4*T)}")
            q.need(fa(T + 2, ks))
            a(f"v_mfma_f32_16x16x32_f16 {v4(UR+4*T)}, {fi}, {v4(WSN+4*ks)}, {v4(UR+4*T)}")
            a(f"v_mfma_f32_16x16x32_f16 {v4(UI+4*T)}, {fi}, {v4(WC+4*ks)}, {v4(UI+4*T)}")
            if T == 1 and ks == 1:
                q.need(V_EP, 1)
                for t in tagcalc: a(t)
    stamp(a, 9, 5)
    for r in range(4): a(f"v_cvt_pk_f16_f32 v{o+r}, v{UR+r}, v{UI+r}")
    a(f"buffer_store_dwordx4 {v4(o)}, v{VUS}, s[12:15], s23 offen {SC}")
    stamp(a, 10, 5)
    a(f"v_add3_u32 v{Q}, v{o}, v{o+1}, v{o+2}")
    a(f"v_sub_u32 v{M}, v{M}, v{o+3}")
    a(f"v_sub_u32 v{M}, v{M}, v{Q}")
    for r in range(3): a(f"v_cvt_pk_f16_f32 v{o+4+r}, v{UR+4+r}, v{UI+4+r}")
    a(f"""v_add3_u32 v{Q}, v{o+4}, v{o+5}, v{o+6}
    v_sub_u32 v{o+7}, v{M}, v{Q}
    buffer_store_dwordx4 {v4(o+4)}, v{VUS}, s[12:15], s23 offen offset:128 {SC}""")

def b_ids(a):
    a(f"""s_and_b32 s92, s2, 7
    s_lshr_b32 s93, s2, 6
    s_lshl_b32 s93, s93, 3
    s_or_b32 s92, s92, s93
    s_bfe_u32 s93, s2, 0x10003
    s_bfe_u32 s96, s2, 0x20004
    s_sub_u32 s95, 64, s92
    s_cmp_eq_u32 s92, 0
    s_cselect_b32 s95, 32, s95
    s_cselect_b32 s94, 0, 1
    s_xor_b32 s94, s94, s93
    s_cmp_eq_u32 s93, 0
    s_cselect_b32 s95, s92, s95
    s_lshl_b32 s96, s96, 9
    s_add_u32 s95, s95, s96
    s_lshl_b32 s96, s20, 6
    s_add_u32 s96, s96, s95
    s_mul_i32 s97, s96, 896""")

def b_setup(a):
    srd(a, 12, 6, WS_SIZE)
    srd(a, 52, 48, XB)
    srd(a, 16, 40, 896)
    b_ids(a)

def b_loads(a):
    a(f"""s_mov_b32 s26, {WS_EPOCH}
    v_mov_b32 v{T0}, 0
    buffer_load_dword v{V_EP}, v{T0}, s[12:15], s26 offen {SC}
    buffer_load_dwordx4 {v4(B_WR)}, v{VL}, s[16:19], 0 offen
    buffer_load_dwordx4 {v4(B_XR)}, v{VL}, s[8:11], s97 offen""")

def pro(a, part=0):
    a("; === address / twiddle set-up for phases B and C")
    EPS, BASE, TH, AF, AD = P_EPS, P_BASE, P_TH, B_AF, B_AD
    a(f"""s_lshl_b32 s28, s92, 16
    s_lshl_b32 s29, s20, 8
    s_add_u32 s28, s28, s29
    s_add_u32 s29, s28, 4096
    s_add_u32 s30, s28, 32768
    s_add_u32 s31, s28, 36864
    v_lshlrev_b32 v{B_VU}, 13, v{G}
    v_lshl_add_u32 v{B_VU}, v{N}, 4, v{B_VU}""") if part != 2 else None
    if part == 1: return
    a(f"""v_and_b32 v{T0}, 7, v{N}
    v_lshlrev_b32 v{T0}, 6, v{T0}
    v_add_u32 v{T0}, s95, v{T0}
    v_cvt_f32_u32 v{T0}, v{T0}
    v_cmp_gt_u32 vcc, 8, v{N}
    v_mul_f32 v{EPS}, {fl(1.0/2048)}, v{T0}
    v_lshlrev_b32 v{T1}, 2, v{G}
    v_cndmask_b32 v{EPS}, -v{EPS}, v{EPS}, vcc
    v_cvt_f32_u32 v{T1}, v{T1}
    v_mul_f32 v{BASE}, v{T1}, v{EPS}""")
    for ks in range(2):
        trig_block(a, 4, 16*ks, EPS, BASE, TH, True)
        for i in range(4):
            a(f"v_cvt_pk_f16_f32 v{AF+4*ks+i}, v{TH+i}, v{TH+4+i}")
    a(f"""v_lshrrev_b32 v{T0}, 3, v{N}
    v_and_b32 v{T1}, 3, v{N}
    v_mul_u32_u24 v{T1}, 7, v{T1}
    v_lshl_add_u32 v{T1}, v{T0}, 2, v{T1}
    s_mul_i32 s32, s20, 28
    s_add_u32 s32, s32, 1
    v_add_u32 v{T1}, s32, v{T1}
    v_sub_u32 v{T2}, 448, v{T1}
    v_cmp_gt_u32 s[34:35], 2, v{G}
    v_mov_b32 v{TH}, s93
    v_mov_b32 v{TH+1}, s94
    v_cndmask_b32 v{T2}, v{T2}, v{T1}, s[34:35]
    v_cndmask_b32 v{TH}, v{TH+1}, v{TH}, s[34:35]
    v_bfe_u32 v{TH+1}, v{N}, 2, 1
    v_cmp_eq_u32 s[60:61], v{TH}, v{TH+1}
    v_and_b32 v{TH+2}, 1, v{G}
    v_mul_u32_u24 v{TH+2}, {4*PY}, v{TH+2}
    v_add_lshl_u32 v{AD}, v{TH+2}, v{T2}, 2
    v_mov_b32 v{TH+3}, -4
    v_cndmask_b32 v{TH+3}, v{TH+3}, 4, s[34:35]
    v_add_u32 v{AD+1}, v{AD}, v{TH+3}
    v_add_u32 v{AD+2}, v{AD+1}, v{TH+3}
    v_add_u32 v{AD+3}, v{AD+2}, v{TH+3}
    v_cmp_eq_u32 s[50:51], 0, v{T0}
    s_and_b64 s[50:51], s[50:51], s[60:61]
    v_mov_b32 v{TH}, 222
    v_cmp_eq_u32 s[62:63], v{TH}, v{T1}
    s_and_b64 s[62:63], s[62:63], s[60:61]
    s_andn2_b64 s[36:37], s[62:63], s[34:35]
    v_lshlrev_b32 v{TH+2}, 2, v{TH+2}
    v_add_u32 v{TH}, {448*4}, v{TH+2}
    v_cndmask_b32 v{AD+2}, v{AD+2}, v{TH}, s[36:37]
    v_add_u32 v{TH}, {449*4}, v{TH+2}
    v_add_u32 v{B_AD4}, {450*4}, v{TH+2}
    v_cndmask_b32 v{B_AD4}, v{B_AD4}, v{TH}, s[34:35]
    s_mul_i32 s33, s20, {PY*4}
    v_lshlrev_b32 v{B_VY}, 5, v{LANE}
    v_add_u32 v{B_VY}, s33, v{B_VY}
    s_add_u32 s33, s33, {448*4}
    v_mov_b32 v{B_AD4+1}, s33""")
    for i in range(8):
        a(f"v_alignbit_b32 v{B_A2+i}, v{AF+i}, v{AF+i}, 16")
        a(f"v_xor_b32 v{B_A2+i}, 0x8000, v{B_A2+i}")
    lim_regs(a, C_L, LANE, T0)
    a(f"""s_lshl_b32 s34, s20, 5
    s_add_u32 s34, s34, {LSEL}
    v_lshlrev_b32 v{T1}, 2, v{LANE}
    v_add_u32 v{C_SW}, s34, v{T1}
    v_add_u32 v{C_SR}, {LSEL}, v{T1}
    v_lshrrev_b32 v{C_KA}, 1, v0
    v_lshlrev_b32 v{C_KA}, {OPT['ksh']}, v{C_KA}
    v_and_b32 v{T0}, 1, v0
    v_lshl_add_u32 v{C_KA}, v{T0}, 4, v{C_KA}
    s_lshl_b32 s34, s20, 6
    s_add_u32 s34, s34, {LSE2}
    v_add_u32 v{C_FW}, s34, v{T1}
    v_lshrrev_b32 v{C_PF}, 3, v{LANE}
    v_and_b32 v{C_FY}, 7, v{LANE}
    v_lshlrev_b32 v{C_FR}, 6, v{C_PF}
    v_lshl_add_u32 v{C_FR}, v{C_FY}, 2, v{C_FR}
    v_add_u32 v{C_FR}, {LSE2}, v{C_FR}
    v_lshlrev_b32 v{C_FY}, 6, v{C_FY}
    v_add_u32 v{C_FY}, {LSE2 + 32}, v{C_FY}
    v_lshlrev_b32 v{C_PF}, 7, v{C_PF}
    s_cmp_ge_u32 s2, 224
    s_cselect_b32 s33, 1024, 0
    s_add_u32 s33, s33, {WS_ROW}
    s_lshl_b32 s27, s2, {OPT['ksh']}
    s_add_u32 s27, s27, {WS_KEYS}
    s_sub_u32 s32, 2047, s96
    v_lshrrev_b32 v{T0}, 1, v0
    v_and_b32 v{T1}, 7, v{T0}
    v_lshrrev_b32 v{T2}, 6, v{T0}
    v_lshl_or_b32 v{T1}, v{T2}, 3, v{T1}
    v_sub_u32 v{T2}, 64, v{T1}
    v_cmp_eq_u32 vcc, 0, v{T1}
    v_bfe_u32 v{TH}, v{T0}, 3, 1
    v_cndmask_b32 v{T2}, v{T2}, 32, vcc
    v_cmp_eq_u32 vcc, 0, v{TH}
    v_bfe_u32 v{TH}, v{T0}, 4, 2
    v_cndmask_b32 v{T1}, v{T2}, v{T1}, vcc
    v_lshl_add_u32 v{T1}, v{TH}, 9, v{T1}
    v_and_b32 v{T0}, 1, v0
    v_lshl_add_u32 v{T1}, v{T0}, 8, v{T1}
    v_sub_u32 v{C_IX}, 2047, v{T1}
    v_subrev_u32 v{C_IX+1}, 64, v{C_IX}
    v_subrev_u32 v{C_IX+2}, 128, v{C_IX}
    v_subrev_u32 v{C_IX+3}, 192, v{C_IX}""")
    gu_prep(a)

def pro2(a):
    XU, WU, S1, S2, S3 = B_XU, B_WU, P_TH, P_TH + 2, P_TH + 4
    unpack8(a, WU, B_WR)
    a(f"""v_pk_add_f32 {v2(S1)}, {v2(WU)}, {v2(WU+2)}
    v_pk_add_f32 {v2(S2)}, {v2(WU+4)}, {v2(WU+6)}
    v_pk_add_f32 {v2(S1)}, {v2(S1)}, {v2(S2)}
    v_add_f32 v{S1}, v{S1}, v{S1+1}
    v_mov_b32 v{S2}, 0
    v_mov_b32 v{S3}, 0""")
    reduce3(a, S1, S2, S3, T0, 58, 39, 39)
    unpack8(a, XU, B_XR)
    for k in (B_S1, B_S1+1, B_S2, B_S2+1, B_S3, B_S3+1): a(f"v_mov_b32 v{k}, 0")

def anyones(a, regs_, t):
    regs_ = list(regs_)
    a(f"v_max_u32 v{t}, v{regs_[0]}, v{regs_[1]}")
    rest = regs_[2:]
    while len(rest) >= 2:
        a(f"v_max3_u32 v{t}, v{t}, v{rest[0]}, v{rest[1]}"); rest = rest[2:]
    if rest: a(f"v_max_u32 v{t}, v{t}, v{rest[0]}")
    a(f"v_cmp_eq_u32 vcc, -1, v{t}")

def wave_sum(a, v, sd):
    for k in (8, 4, 2, 1):
        a(f"v_add_u32_dpp v{v}, v{v}, v{v} row_ror:{k} row_mask:0xf bank_mask:0xf")
    for i in range(4): a(f"v_readlane_b32 s{sd+i}, v{v}, {16*i}")
    a(f"s_add_u32 s{sd}, s{sd}, s{sd+1}\ns_add_u32 s{sd+2}, s{sd+2}, s{sd+3}\ns_add_u32 s{sd}, s{sd}, s{sd+2}")

def publish_row(a):
    a("; publish this row (ln2 and out values, each closed by a checksum word)")
    a(f"""s_lshl_b32 s34, s96, 11
    s_add_u32 s34, s34, {WS_ROW}
    v_mov_b32 v{T0}, 0
    v_mov_b32 v{T1}, 0
    v_writelane_b32 v{C_LN}, 0, 56
    v_writelane_b32 v{C_OUT}, 0, 56
    s_mov_b32 exec_hi, 0x01ffffff
    v_add3_u32 v{T0}, v{C_LN}, v{C_LN+1}, v{C_LN+2}
    v_add3_u32 v{T1}, v{C_OUT}, v{C_OUT+1}, v{C_OUT+2}
    v_add_u32 v{T0}, v{T0}, v{C_LN+3}
    v_add_u32 v{T1}, v{T1}, v{C_OUT+3}
    s_mov_b32 exec_hi, -1""")
    wave_sum(a, T0, 36)
    a(f"s_sub_u32 s35, s98, s36\nv_writelane_b32 v{C_LN}, s35, 56")
    wave_sum(a, T1, 36)
    a(f"""s_sub_u32 s35, s98, s36
    v_writelane_b32 v{C_OUT}, s35, 56
    s_mov_b32 exec_hi, 0x01ffffff
    buffer_store_dwordx4 {v4(C_LN)}, v{VL}, s[12:15], s34 offen {SC}
    buffer_store_dwordx4 {v4(C_OUT)}, v{VL}, s[12:15], s34 offen offset:1024 {SC}
    s_mov_b32 exec_hi, -1""")

def fetch_row_issue(a, dst):
    a(f"""v_readlane_b32 s34, v{C_K}, s20
    s_andn2_b32 s34, 0x7ff, s34
    s_lshl_b32 s34, s34, 11
    s_add_u32 s34, s34, s33
    s_mov_b32 exec_hi, 0x01ffffff
    buffer_load_dwordx4 {v4(dst)}, v{VL}, s[12:15], s34 offen {SC}
    s_mov_b32 exec_hi, -1""")

def fetch_row_finish(a, dst, ldsaddr):
    _lbl[0] += 1
    L = f"Lrow{_lbl[0]}"
    a(f"""s_mul_i32 s29, s20, {PX}
    s_add_u32 s29, s29, {LXS}
    v_add_u32 v{ldsaddr}, s29, v{VL}
    s_mov_b32 s57, {SPIN}
    {L}:
    v_mov_b32 v{T0}, 0
    s_mov_b32 exec_hi, 0x01ffffff
    s_waitcnt vmcnt(0)
    ds_write_b128 v{ldsaddr}, {v4(dst)}
    v_add3_u32 v{T0}, v{dst}, v{dst+1}, v{dst+2}
    v_add_u32 v{T0}, v{T0}, v{dst+3}
    s_mov_b32 exec_hi, -1""")
    wave_sum(a, T0, 36)
    a(f"""s_cmp_eq_u32 s36, s98
    s_cbranch_scc1 {L}d
    s_mov_b32 exec_hi, 0x01ffffff
    s_waitcnt lgkmcnt(0)
    buffer_load_dwordx4 {v4(dst)}, v{VL}, s[12:15], s34 offen {SC}
    s_mov_b32 exec_hi, -1
    s_sub_u32 s57, s57, 1
    s_cbranch_scc0 {L}""")
    timeout_note(a, _lbl[0])
    a(f"{L}d:")

def gu_prep(a):
    srd(a, 16, 42, 448*3584)
    a(f"""v_mul_u32_u24 v{V_GU}, 3584, v0
    s_and_b32 s100, s2, 7
    s_mul_i32 s100, s100, 28
    s_lshr_b32 s101, s2, 3
    s_add_u32 s100, s100, s101
    s_lshl_b32 s26, s100, 4
    s_lshl_b32 s101, s20, 10
    s_add_u32 s101, s101, {LWT}
    s_and_b32 s45, s45, 0xffff
    s_cmp_ge_u32 s2, 224
    s_cselect_b32 s24, 7, s20""")

def gu_dma(a):
    a(f"""s_cmp_eq_u32 s24, 7
    s_cbranch_scc1 Lngu
    s_mov_b32 m0, s101
    s_add_u32 s101, s101, 8192
    buffer_load_dwordx4 v{V_GU}, s[16:19], s26 offen lds
    s_mov_b32 s16, s44
    s_mov_b32 m0, s101
    s_mov_b32 s17, s45
    buffer_load_dwordx4 v{V_GU}, s[16:19], s26 offen lds
    Lngu:""")

def wd_dma(a, j0, j1, L):
    if j0 == j1: return
    a(f"""s_cmp_lt_u32 s2, 224
    s_cbranch_scc1 {L}
    s_and_b32 s50, s2, 7
    s_cmp_eq_u32 s50, 7
    s_cbranch_scc1 {L}
    s_lshl_b32 s50, s50, 7
    s_bfe_u32 s51, s2, 0x20003
    s_lshl_b32 s51, s51, 5
    s_add_u32 s51, s51, s50""")
    srd(a, 16, 46, 1792*896)
    a(f"""v_lshrrev_b32 v{T1}, 1, v{LANE}
    v_mul_u32_u24 v{T1}, 896, v{T1}
    v_and_b32 v{T2}, 1, v{LANE}
    v_lshl_add_u32 v{T1}, v{T2}, 4, v{T1}
    s_mul_i32 s23, s20, {224*896}
    s_add_u32 s23, s23, s51
    s_add_u32 s23, s23, {j0*32*896}
    s_mul_i32 s25, s20, 7168
    s_add_u32 s25, s25, {LWT + j0*1024}""")
    for j in range(j0, j1):
        a(f"s_mov_b32 m0, s25")
        a(f"s_add_u32 s25, s25, 1024")
        a(f"buffer_load_dwordx4 v{T1}, s[16:19], s23 offen lds")
        a(f"s_add_u32 s23, s23, {32*896}")
    a(f"{L}:")

def b_main(a):
    a("; === phase B: fetch + validate U, 32-term DFT stage, h / LN2 / router key")
    R, AF, ACC, XU, WU, AD, TH = B_R, B_AF, B_ACC, B_XU, B_WU, B_AD, B_TH
    S1, S2, S3 = B_S1, B_S2, B_S3
    if OPT["sl_u0"]: a(f"s_sleep {OPT['sl_u0']}")
    def uld():
        for ks in range(2):
            for i in range(4):
                a(f"buffer_load_dwordx4 {v4(R+16*ks+4*i)}, v{B_VU}, s[12:15], s{28+2*ks+(i>>1)} offen offset:{2048*(i&1)} {SC}")
    a(f"s_mov_b32 s57, {SPIN}")
    uld()
    if OPT["prosplit"]: pro(a, 2)
    a("s_waitcnt vmcnt(8)")
    pro2(a)
    def swaps(ks):
        b = R + 16*ks
        for i in range(4):
            for j in range(i+1, 4):
                a(f"v_swap_b32 v{b+4*i+j}, v{b+4*j+i}")
    def mm(ks, dpp):
        for j in range(4):
            c = "0" if ks == 0 else v4(ACC+4*j)
            a(f"v_mfma_f32_16x16x32_f16 {v4(ACC+4*j)}, {v4(AF+4*ks)}, {v4(R+16*ks+4*j)}, {c}")
            if dpp: a(f"v_add_u32_dpp v{T0}, v{T0}, v{T0} row_ror:{8 >> j} row_mask:0xf bank_mask:0xf")
        a(f"v_mfma_f32_16x16x32_f16 {v4(TH)}, {v4(B_A2+4*ks)}, {v4(R+16*ks+8)}, {'0' if ks == 0 else v4(TH)}")
    if not OPT["part"]:
        a("s_branch Lupw\nLupoll:")
        uld()
        a("Lupw:")
    for ks in range(2):
        a(f"s_waitcnt vmcnt({4-4*ks})")
        b = R + 16*ks
        for i in range(8):
            if ks == 0 and i == 0: a(f"v_add_u32 v{T0}, v{b}, v{b+1}")
            else: a(f"v_add3_u32 v{T0}, v{T0}, v{b+2*i}, v{b+2*i+1}")
        swaps(ks)
        mm(ks, ks == 1)
    a(f"""v_cmp_ne_u32 vcc, s99, v{T0}
    s_cmp_eq_u64 vcc, 0""")
    if OPT["part"]:
        a("s_cbranch_scc0 Lupart")
        def part():
            C4 = B_TH
            a("Lupart:\ns_lshl_b32 s34, s98, 4")
            swaps(0); swaps(1)
            a("Lupchk:")
            for i in range(4):
                a(f"v_add3_u32 v{C4+i}, v{R+4*i}, v{R+4*i+1}, v{R+4*i+2}")
            for i in range(4):
                a(f"v_add3_u32 v{C4+i}, v{C4+i}, v{R+4*i+3}, v{R+16+4*i}")
            for i in range(4):
                a(f"v_add3_u32 v{C4+i}, v{C4+i}, v{R+16+4*i+1}, v{R+16+4*i+2}")
            for i in range(4):
                a(f"v_add_u32 v{C4+i}, v{C4+i}, v{R+16+4*i+3}")
            for k in (8, 4, 2, 1):
                for i in range(4):
                    a(f"v_add_u32_dpp v{C4+i}, v{C4+i}, v{C4+i} row_ror:{k} row_mask:0xf bank_mask:0xf")
            MK = ["s[36:37]", "s[38:39]", "s[24:25]", "vcc"]
            for i in range(4): a(f"v_cmp_ne_u32 {MK[i]}, s34, v{C4+i}")
            a(f"""s_or_b64 s[26:27], s[36:37], s[38:39]""".replace("s[26:27]", "s[100:101]"))
            a(f"""s_or_b64 s[100:101], s[100:101], s[24:25]
            s_or_b64 s[100:101], s[100:101], vcc
            s_cbranch_scc0 Lupgo""")
            if OPT["sl_r"]: a(f"s_sleep {OPT['sl_r']}")
            for i in range(4):
                a(f"s_cmp_eq_u64 {MK[i]}, 0\ns_cbranch_scc1 Lupok{i}")
                for ks in range(2):
                    a(f"buffer_load_dwordx4 {v4(R+16*ks+4*i)}, v{B_VU}, s[12:15], s{28+2*ks+(i>>1)} offen offset:{2048*(i&1)} {SC}")
                a(f"Lupok{i}:")
            a(f"""s_waitcnt vmcnt(0)
            s_sub_u32 s57, s57, 1
            s_cbranch_scc0 Lupchk
            Lupgo:""")
            for ks in range(2):
                swaps(ks); mm(ks, False)
            a("s_nop 7\ns_branch Lupolld")
        TAIL.append(part)
    else:
        a(f"""s_cbranch_scc1 Lupolld
        s_sub_u32 s57, s57, 1
        s_cbranch_scc0 Lupoll""")
        timeout_note(a, 9)
    a("Lupolld:")
    stamp(a, 6)
    if OPT["stamps"] == 3: a(f"s_sub_u32 s{64+2*11}, {SPIN+1}, s57")
    for j in range(4):
        if j in (0, 3): a(f"s_mov_b64 exec, {['s[60:61]', '', '', 's[50:51]'][j]}")
        for r in (0, 2):
            a(f"ds_write2st64_b32 v{AD+j}, v{ACC+4*j+r}, v{ACC+4*j+r+1} offset0:{r*PY//64} offset1:{(r+1)*PY//64}")
    a("s_cmp_lg_u32 s20, 7\ns_cbranch_scc1 Lndc\ns_mov_b64 exec, s[62:63]")
    for r in (0, 2):
        a(f"ds_write2st64_b32 v{B_AD4}, v{TH+r}, v{TH+r+1} offset0:{r*PY//64} offset1:{(r+1)*PY//64}")
    a("Lndc:\ns_mov_b64 exec, -1")
    gu_dma(a)
    wd_dma(a, 0, OPT['wdsplit'], 'Lnwd0')
    a("""s_mov_b32 exec_hi, 0x00ffffff
    s_waitcnt lgkmcnt(0)
    s_barrier""")
    H = R
    a(f"ds_read_b128 {v4(TH)}, v{B_AD4+1}\nds_read_b128 {v4(H)}, v{B_VY} offset:{LY}\nds_read_b128 {v4(H+4)}, v{B_VY} offset:{LY+16}")
    a("s_mov_b64 s[36:37], 1\ns_mov_b64 s[38:39], 0x10000001")
    for hf in range(2):
        a(f"s_waitcnt lgkmcnt({1-hf})")
        if hf == 0:
            a(f"""v_add_f32 v{TH+1}, v{TH+1}, v{TH+2}
            v_add_f32 v{TH}, v{TH}, v{H}
            v_cndmask_b32 v{TH}, v{TH}, v{TH+1}, s[36:37]
            v_mul_f32 v{TH}, 0.5, v{TH}
            v_cndmask_b32 v{H}, v{H}, v{TH}, s[38:39]""")
        for p in range(2):
            x = 4*hf + 2*p
            a(f"v_pk_add_f32 {v2(H+x)}, {v2(H+x)}, {v2(XU+x)}")
        for p in range(2):
            x = 4*hf + 2*p
            a(f"v_pk_add_f32 {v2(S1)}, {v2(S1)}, {v2(H+x)}")
            a(f"v_pk_fma_f32 {v2(S2)}, {v2(H+x)}, {v2(H+x)}, {v2(S2)}")
            a(f"v_pk_fma_f32 {v2(S3)}, {v2(H+x)}, {v2(WU+x)}, {v2(S3)}")
    a(f"""s_mov_b32 exec_hi, -1
    v_add_f32 v{S1}, v{S1}, v{S1+1}
    v_add_f32 v{S2}, v{S2}, v{S2+1}
    v_add_f32 v{S3}, v{S3}, v{S3+1}""")
    reduce3(a, S1, S2, S3, T0, 37, 38, 39)
    M, V, SD, RS, C0, KEY = TH, TH+1, TH+2, TH+4, TH+6, C_KEY
    a(f"""v_mov_b32 v{V}, {fl(1.0/448)}
    v_mul_f32 v{M}, s37, v{V}
    v_mul_f32 v{V}, s38, v{V}
    v_mov_b32 v{KEY}, s39
    v_fma_f32 v{V}, -v{M}, v{M}, v{V}
    v_fma_f32 v{KEY}, -v{M}, s58, v{KEY}
    v_max_f32 v{SD}, 0, v{V}
    v_add_f32 v{V}, {fl(1e-5)}, v{SD}""")
    a(f"""v_rsq_f32 v{RS}, v{V}
    s_lshl_b32 s34, s20, 2
    v_mov_b32 v{T2}, s34
    v_mul_f32 v{KEY}, v{KEY}, v{RS}
    v_cvt_pk_bf16_f32 v{KEY}, v{KEY}, v{KEY}
    v_ashrrev_i32 v{T0}, 31, v{KEY}
    v_or_b32 v{T0}, 0x80000000, v{T0}
    v_xor_b32 v{KEY}, v{KEY}, v{T0}
    v_and_b32 v{KEY}, 0xffff0000, v{KEY}
    v_or_b32 v{KEY}, s32, v{KEY}
    ds_write_b32 v{T2}, v{KEY} offset:{LKEY}
    v_mov_b32 v{C_STK}, 0xffff
    v_lshlrev_b32 v{T1}, 2, v{LANE}
    v_mov_b32 v{T2}, {LKEY}
    s_waitcnt lgkmcnt(0)
    s_barrier
    s_cmp_lg_u32 s20, 0
    s_cbranch_scc1 Lnokey
    s_mov_b64 exec, 0xff
    ds_read_b32 v{T0}, v{T1} offset:{LKEY}
    s_waitcnt lgkmcnt(0)
    v_bfi_b32 v{T0}, v{C_STK}, s59, v{T0}
    buffer_store_dword v{T0}, v{T1}, s[12:15], s27 offen {SC}
    s_mov_b64 exec, -1
    Lnokey:
    ds_read_b128 {v4(ACC)}, v{T2}
    ds_read_b128 {v4(ACC+4)}, v{T2} offset:16""")
    stamp(a, 7)
    sd_chain(a, SD, SD)
    a(f"v_rcp_f32 v{RS}, v{SD}\ns_nop 0\nv_mul_f32 v{C0}, -v{M}, v{RS}")
    for p in range(4):
        a(f"v_pk_fma_f32 {v2(XU+2*p)}, {v2(H+2*p)}, {v2(RS)}, {v2(C0)} op_sel_hi:[1,0,0]")
    for p in range(4):
        a(f"v_pk_add_f32 {v2(H+2*p)}, {v2(H+2*p)}, {v2(XU+2*p)}")
    for p in range(4):
        a(f"v_cvt_pk_bf16_f32 v{C_LN+p}, v{XU+2*p}, v{XU+2*p+1}")
        a(f"v_cvt_pk_bf16_f32 v{C_OUT+p}, v{H+2*p}, v{H+2*p+1}")
    a(f"""s_waitcnt lgkmcnt(0)
    v_max3_u32 v{T0}, v{ACC}, v{ACC+1}, v{ACC+2}
    v_max3_u32 v{T1}, v{ACC+3}, v{ACC+4}, v{ACC+5}
    v_max3_u32 v{T0}, v{T0}, v{ACC+6}, v{ACC+7}
    v_max_u32 v{T0}, v{T0}, v{T1}
    v_cmp_eq_u32 s[60:61], v{T0}, v{KEY}
    s_cmp_eq_u64 s[60:61], 0
    s_cbranch_scc1 Lnoeager""")
    publish_row(a)
    a("Lnoeager:")

QP = {1: "quad_perm:[1,0,3,2]", 2: "quad_perm:[2,3,0,1]", 3: "quad_perm:[3,2,1,0]", 7: "row_half_mirror"}
class Net:
    def __init__(s, a, x, t, fill): s.a = a; s.x = x; s.t = t; s.fill = list(fill)
    def f(s, n=1):
        for _ in range(n):
            if s.fill: s.a(s.fill.pop(0))
    def ce(s, m):
        a, x, t = s.a, s.x, s.t
        s.f()
        if m == 4:
            a(f"v_max_u32_dpp v{t}, v{x}, v{x} row_shl:4 row_mask:0xf bank_mask:0x5")
            a(f"v_min_u32_dpp v{t}, v{x}, v{x} row_shr:4 row_mask:0xf bank_mask:0xa")
            s.x, s.t = t, x
        else:
            a(f"v_mov_b32_dpp v{t}, v{x} {QP[m]} row_mask:0xf bank_mask:0xf")
            a(f"v_med3_u32 v{x}, v{x}, v{t}, v{C_L[1 << (m.bit_length()-1)]}")
    def merge(s, last_clean=True):
        a = s.a
        s.f()
        a(f"v_max_u32_dpp v{s.x}, v{s.x}, v{s.x} row_mirror row_mask:0xf bank_mask:0xf")
        for m in (4, 2, 1): s.ce(m)
        for sw in ("v_permlane16_swap_b32", "v_permlane32_swap_b32"):
            a(f"v_mov_b32 v{s.t}, v{s.x}")
            s.f()
            a(f"{sw} v{s.x}, v{s.t}")
            s.f()
            a(f"v_max_u32_dpp v{s.x}, v{s.t}, v{s.x} row_half_mirror row_mask:0xf bank_mask:0xf")
            if last_clean or "16" in sw:
                for m in (4, 2, 1): s.ce(m)
        s.f(99)

def fast_select(a):
    K, X, Y, P, Q = C_K, C_X, C_Y, C_TMP, C_TMP + 1
    a(f"""v_max_u32 v{P}, v{K}, v{K+1}
    v_max_u32 v{Q}, v{K+2}, v{K+3}
    v_max_u32 v{X}, v{P}, v{Q}""")
    fill = [f"v_min_u32 v{Y}, v{P}, v{Q}", f"v_min_u32 v{P}, v{K}, v{K+1}", f"v_min_u32 v{Q}, v{K+2}, v{K+3}",
            f"v_max3_u32 v{Y}, v{Y}, v{P}, v{Q}"]
    fill += [f"v_max_u32_dpp v{Y}, v{Y}, v{Y} row_ror:{k} row_mask:0xf bank_mask:0xf" for k in (8, 4, 2, 1)]
    fill += [f"v_mov_b32 v{P}, v{Y}", f"v_permlane16_swap_b32 v{Y}, v{P}", f"v_max_u32 v{Y}, v{Y}, v{P}",
             f"v_mov_b32 v{P}, v{Y}", f"v_permlane32_swap_b32 v{Y}, v{P}", f"v_max_u32 v{Y}, v{Y}, v{P}",
             "s_mov_b64 vcc, 0x100"]
    n = Net(a, X, C_TMP + 2, fill)
    for m in (1, 3, 1, 7, 2, 1): n.ce(m)
    n.merge()
    a(f"""s_mov_b64 exec, 0x1ff
    v_cndmask_b32 v{P}, v{n.x}, v{Y}, vcc
    ds_write_b32 v{C_FW}, v{P}""")
    if OPT["rowpf"]:
        m8 = (1 << OPT["rowpf"]) - 1; m32 = m8 * 0x01010101
        a(f"""s_mov_b32 exec_lo, {hex(m32)}
        s_mov_b32 exec_hi, {hex(m32)}
        v_bfi_b32 v{Q}, v{n.x}, 0, v{C_TMP+3}
        v_lshl_add_u32 v{Q}, v{Q}, 11, v{C_PF}
        buffer_load_dword v{JUNK}, v{Q}, s[12:15], s33 offen {SC}""")
    a(f"""s_mov_b64 exec, -1
    s_waitcnt lgkmcnt(0)
    s_barrier
    ds_read_b32 v{X}, v{C_FR}
    ds_read_b32 v{Y}, v{C_FY}
    s_waitcnt lgkmcnt(0)""")
    fill = [f"v_max_u32_dpp v{Y}, v{Y}, v{Y} {QP[m]} row_mask:0xf bank_mask:0xf" for m in (1, 2, 7)]
    n = Net(a, X, C_TMP + 2, fill)
    n.merge(last_clean=False)
    a(f"""v_cmp_gt_u32 vcc, v{Y}, v{n.x}
    s_cmp_eq_u64 vcc, 0
    s_cbranch_scc0 Lfullsel
    v_mov_b32 v{K}, v{n.x}
    Lseldone:""")

def c_select(a):
    a("; === top-8 selection over all router keys")
    K = C_K
    a(f"s_mov_b32 s34, {WS_KEYS}\nv_mov_b32 v{C_TMP+3}, 0x7ff")
    def chk():
        a(f"v_xor_b32 v{T0}, v{K}, v{K+1}")
        a(f"v_xor_b32 v{T1}, v{K+2}, v{K+3}")
        a(f"v_xor_b32 v{T2}, s59, v{K}")
        a(f"v_xor_b32 v{C_X}, s59, v{K+2}")
        a(f"v_or3_b32 v{T0}, v{T0}, v{T1}, v{T2}")
        for i in range(4): a(f"v_bfi_b32 v{K+i}, v{C_STK}, v{C_IX+i}, v{K+i}")
        a(f"v_or_b32 v{T0}, v{T0}, v{C_X}")
        a(f"v_cmp_ne_u16 vcc, 0, v{T0}")
    poll(a, lambda: a(f"buffer_load_dwordx4 {v4(K)}, v{C_KA}, s[12:15], s34 offen {SC}"), chk, pre=OPT["sl_k"])
    stamp(a, 8)
    fast_select(a)
    stamp(a, 9)
    a(f"""v_cmp_eq_u32 vcc, v{K}, v{C_KEY}
    s_and_b64 s[62:63], vcc, s[60:61]
    s_cmp_lg_u64 s[62:63], vcc
    s_cbranch_scc0 Lsel_pub""")
    publish_row(a)
    a("Lsel_pub:")
    fetch_row_issue(a, 84)
    a(f"""s_cmp_eq_u64 vcc, 0
    s_cbranch_scc0 Lsel_done
    s_mov_b32 exec_hi, 0x00ffffff
    buffer_store_dwordx4 {v4(C_OUT)}, v{VL}, s[52:55], s97 offen {['', 'sc1', 'nt', 'sc0 sc1'][OPT['ost']]}
    s_mov_b32 exec_hi, -1
    Lsel_done:""")

def c1(a):
    a("; === gate / up projection for this workgroup's 8 FFN columns")
    XR = 84; XF_ = 168; ACC = 52; XU = 60; WF = 88
    a(f"""s_cmp_lg_u32 s20, 0
    s_cbranch_scc1 Lc1_now
    v_lshrrev_b32 v{T0}, 2, v{N}
    v_lshl_add_u32 v{T0}, v{G}, 3, v{T0}
    v_lshlrev_b32 v{T0}, 4, v{T0}
    v_and_b32 v{T1}, 1, v{N}
    v_lshl_add_u32 v{T0}, v{T1}, 3, v{T0}
    v_bfe_u32 v{T1}, v{N}, 1, 1
    v_lshl_add_u32 v{T0}, v{T1}, 13, v{T0}
    v_add_u32 v{T0}, {LWT}, v{T0}""")
    for j in range(14):
        for h in range(2):
            a(f"ds_read_b64_tr_b16 {v2(WF+4*j+2*h)}, v{T0} offset:{(32*j+4*h)*16}")
    a(f"""v_and_b32 v{XU+4}, 7, v{N}
    v_mul_u32_u24 v{XU+4}, {PX}, v{XU+4}
    v_lshl_add_u32 v{XU+4}, v{G}, 4, v{XU+4}
    v_lshlrev_b32 v{XU+5}, 4, v{N}
    v_lshl_add_u32 v{XU+5}, v{G}, 3, v{XU+5}
    s_lshl_b32 s22, s100, 7
    s_add_u32 s22, s22, {WS_ACT}
    Lc1_now:""")
    fetch_row_finish(a, XR, T2)
    a(f"""s_waitcnt lgkmcnt(0)
    s_barrier
    s_cmp_lg_u32 s20, 0
    s_cbranch_scc1 Lc1_epoch""")
    stamp(a, 10)
    for j in range(14):
        a(f"ds_read_b128 {v4(XF_+4*j)}, v{XU+4} offset:{LXS+64*j}")
    for j in range(14):
        a(f"s_waitcnt lgkmcnt({13-j})")
        A = ACC + 4*(j & 1)
        a(f"v_mfma_f32_16x16x32_bf16 {v4(A)}, {v4(WF+4*j)}, {v4(XF_+4*j)}, {'0' if j < 2 else v4(A)}")
    for p in range(2):
        a(f"v_pk_add_f32 {v2(ACC+2*p)}, {v2(ACC+2*p)}, {v2(ACC+4+2*p)}")
    for p in range(2): a(f"v_cvt_pk_bf16_f32 v{ACC+4+p}, v{ACC+2*p}, v{ACC+2*p+1}")
    for p in range(2): a(f"v_mov_b32 v{ACC+6+p}, v{ACC+4+p}")
    for p in range(2): a(f"v_permlane32_swap_b32 v{ACC+4+p}, v{ACC+6+p}")
    for p in range(2):
        a(f"v_lshlrev_b32 v{ACC+2*p}, 16, v{ACC+4+p}")
        a(f"v_and_b32 v{ACC+2*p+1}, 0xffff0000, v{ACC+4+p}")
    for r in range(4): a(f"v_mul_f32 v{XU+r}, {fl(-1.4426950408889634)}, v{ACC+r}")
    for r in range(4): a(f"v_exp_f32 v{XU+r}, v{XU+r}")
    for p in range(2):
        a(f"v_lshlrev_b32 v{XR+2*p}, 16, v{ACC+6+p}")
        a(f"v_and_b32 v{XR+2*p+1}, 0xffff0000, v{ACC+6+p}")
    for r in range(4): a(f"v_add_f32 v{XU+r}, 1.0, v{XU+r}")
    for r in range(4): a(f"v_rcp_f32 v{XU+r}, v{XU+r}")
    for r in range(4): a(f"v_mul_f32 v{ACC+r}, v{ACC+r}, v{XU+r}")
    for p in range(2): a(f"v_cvt_pk_bf16_f32 v{ACC+4+p}, v{ACC+2*p}, v{ACC+2*p+1}")
    for p in range(2):
        a(f"v_lshlrev_b32 v{ACC+2*p}, 16, v{ACC+4+p}")
        a(f"v_and_b32 v{ACC+2*p+1}, 0xffff0000, v{ACC+4+p}")
    for p in range(2): a(f"v_pk_mul_f32 {v2(ACC+2*p)}, {v2(ACC+2*p)}, {v2(XR+2*p)}")
    for p in range(2): a(f"v_cvt_pk_bf16_f32 v{XR+p}, v{ACC+2*p}, v{ACC+2*p+1}")
    for p in range(2): a(f"v_min_u32 v{XR+p}, -2, v{XR+p}")
    a(f"""s_mov_b32 exec_lo, 0x00ff00ff
    s_mov_b32 exec_hi, 0
    buffer_store_dwordx2 {v2(XR)}, v{XU+5}, s[12:15], s22 offen {SC}
    s_branch Lend
    Lc1_epoch:
    s_lshl_b32 s29, s2, 3
    s_add_u32 s29, s29, s20
    s_cmp_lg_u32 s29, 1
    s_cbranch_scc1 Lend
    s_mov_b64 exec, 1
    v_mov_b32 v{T0}, s56
    s_mov_b32 s29, {WS_EPOCH}
    buffer_store_dword v{T0}, v{VL}, s[12:15], s29 offen {SC}
    s_branch Lend""")

def c2(a):
    a("; === down projection for 16 output columns, routed rows written")
    K = C_K
    OA = 8; OR = 10; SG = 12; VA = 13; VO = 14; VW = 15; WF = 88; AF = 116; ACC = 52; RD = 168
    a(f"""s_mul_i32 s24, s20, 7168
    s_add_u32 s24, s24, {LWT}
    v_lshrrev_b32 v{T0}, 2, v{N}
    v_lshl_add_u32 v{T0}, v{G}, 3, v{T0}
    v_lshlrev_b32 v{T0}, 5, v{T0}
    v_and_b32 v{T1}, 3, v{N}
    v_lshl_add_u32 v{T0}, v{T1}, 3, v{T0}
    v_add_u32 v{VW}, s24, v{T0}""")
    for j in range(7):
        for h in range(2):
            a(f"ds_read_b64_tr_b16 {v2(WF+4*j+2*h)}, v{VW} offset:{(32*j+4*h)*32}")
    a(f"""v_and_b32 v{T1}, 7, v{N}
    v_mul_u32_u24 v{VO}, {PX}, v{T1}
    v_lshl_add_u32 v{VO}, v{G}, 3, v{VO}
    v_add_u32 v{VO}, s51, v{VO}
    v_lshlrev_b32 v{VA}, 4, v{T1}
    v_lshl_add_u32 v{VA}, v{G}, 7, v{VA}
    s_mul_i32 s25, s20, {7*512}
    s_add_u32 s25, s25, {WS_ACT}
    v_and_b32 v{OA}, 0x7ff, v{K}
    v_sub_u32 v{OA}, 2047, v{OA}
    v_mul_u32_u24 v{OA}, 896, v{OA}
    v_lshl_add_u32 v{OA}, v{G}, 3, v{OA}
    v_ashrrev_i32 v{T2}, 31, v{K}
    v_not_b32 v{T2}, v{T2}
    v_or_b32 v{T2}, 0x80000000, v{T2}
    v_xor_b32 v{K+1}, v{K}, v{T2}
    v_and_b32 v{K+1}, 0xffff0000, v{K+1}""")
    sigmoid_mul(a, SG, K+1, "1.0", T2)
    rbf(a, SG, SG)
    a(f"""v_lshlrev_b32 v{T1}, 4, v0
    v_add_u32 v{T1}, {LRED}, v{T1}""")
    def lds():
        for j in range(7):
            a(f"buffer_load_dwordx4 {v4(AF+4*j)}, v{VA}, s[12:15], s25 offen offset:{512*j} {SC}")
    if OPT["c2re"]:
        if OPT["sl_a"]: a(f"s_sleep {OPT['sl_a']}")
        lds()
        fetch_row_finish(a, 84, T2)
        anyones(a, range(AF, AF+28), T0)
        a("s_cmp_eq_u64 vcc, 0\ns_cbranch_scc1 Lactok")
        poll(a, lds, lambda: anyones(a, range(AF, AF+28), T0))
        a("Lactok:")
    else:
        fetch_row_finish(a, 84, T2)
        poll(a, lds, lambda: anyones(a, range(AF, AF+28), T0), pre=OPT["sl_a"])
    stamp(a, 10)
    a("s_waitcnt lgkmcnt(0)")
    for j in range(7):
        A = ACC + 4*(j & 1)
        a(f"v_mfma_f32_16x16x32_bf16 {v4(A)}, {v4(WF+4*j)}, {v4(AF+4*j)}, {'0' if j < 2 else v4(A)}")
    for p in range(2):
        a(f"v_pk_add_f32 {v2(ACC+2*p)}, {v2(ACC+2*p)}, {v2(ACC+4+2*p)}")
    a(f"""ds_write_b128 v{T1}, {v4(ACC)}
    s_waitcnt lgkmcnt(0)
    s_barrier
    s_cmp_lg_u32 s20, 0
    s_cbranch_scc1 Lend
    ds_read_b64 {v2(OR)}, v{VO} offset:{LXS}""")
    for w in range(1, 8):
        a(f"ds_read_b128 {v4(RD+4*w)}, v{T1} offset:{1024*w}")
    a("s_waitcnt lgkmcnt(7)")
    for i in range(2):
        a(f"v_lshlrev_b32 v{RD+2*i}, 16, v{OR+i}")
        a(f"v_and_b32 v{RD+2*i+1}, 0xffff0000, v{OR+i}")
    for w in range(1, 8):
        a(f"s_waitcnt lgkmcnt({7-w})")
        for p in range(2):
            a(f"v_pk_add_f32 {v2(ACC+2*p)}, {v2(ACC+2*p)}, {v2(RD+4*w+2*p)}")
    for rnd in range(2):
        for p in range(2): a(f"v_cvt_pk_bf16_f32 v{ACC+4+p}, v{ACC+2*p}, v{ACC+2*p+1}")
        for p in range(2):
            a(f"v_lshlrev_b32 v{ACC+2*p}, 16, v{ACC+4+p}")
            a(f"v_and_b32 v{ACC+2*p+1}, 0xffff0000, v{ACC+4+p}")
        for p in range(2):
            if rnd == 0: a(f"v_pk_mul_f32 {v2(ACC+2*p)}, {v2(ACC+2*p)}, {v2(SG)} op_sel_hi:[1,0]")
            else: a(f"v_pk_add_f32 {v2(ACC+2*p)}, {v2(ACC+2*p)}, {v2(RD+2*p)}")
    for p in range(2): a(f"v_cvt_pk_bf16_f32 v{OR+p}, v{ACC+2*p}, v{ACC+2*p+1}")
    a(f"""s_mov_b32 exec_lo, 0x00ff00ff
    s_mov_b32 exec_hi, 0x00ff00ff
    buffer_store_dwordx2 {v2(OR)}, v{OA}, s[52:55], s51 offen {['', 'sc1', 'nt', 'sc0 sc1'][OPT['ost']]}""")

def clears(a):
    a(f"""v_mov_b32 v{JUNK+2}, -1
    v_lshlrev_b32 v{T1}, 2, v{LANE}
    s_lshl_b32 s24, s2, 7
    s_add_u32 s24, s24, {WS_ACT}
    s_mov_b32 exec_hi, 0
    buffer_store_dword v{JUNK+2}, v{T1}, s[12:15], s24 offen {SC}
    s_mov_b32 exec_lo, 1
    s_lshl_b32 s23, s96, 11
    s_add_u32 s23, s23, {WS_ROW}
    buffer_load_dword v{JUNK}, v{VL}, s[52:55], s97 offen
    buffer_load_dword v{JUNK+1}, v{VL}, s[12:15], s23 offen
    s_mov_b64 exec, -1""")

def prefetch(a, w0=1, T0=T0, T1=T1):
    a("; L2 warm-up of the FFN weights (one word per line, values unused)")
    a(f"""s_and_b32 s24, s2, 7
    s_lshr_b32 s25, s2, 3
    s_mul_i32 s26, s25, {14*3584}
    s_mov_b32 s18, {448*3584}
    s_mov_b32 s19, 0x00020000
    s_cmp_eq_u32 s20, {w0+2}
    s_cbranch_scc1 Lpf_d
    v_lshrrev_b32 v{T0}, 2, v{LANE}
    v_mul_u32_u24 v{T0}, 3584, v{T0}
    v_and_b32 v{T1}, 3, v{LANE}
    v_lshl_add_u32 v{T0}, v{T1}, 7, v{T0}
    s_mul_i32 s24, s24, 448
    s_cmp_eq_u32 s20, {w0}
    s_cselect_b32 s16, s42, s44
    s_cselect_b32 s17, s43, s45
    s_branch Lpf_go
    Lpf_d:
    v_mul_u32_u24 v{T0}, 896, v{LANE}
    s_lshl_b32 s24, s24, 7
    s_mov_b32 s16, s46
    s_mov_b32 s17, s47
    Lpf_go:
    s_and_b32 s17, s17, 0xffff
    s_add_u32 s26, s26, s24
    s_mov_b32 exec_hi, 0x00ffffff
    buffer_load_dword v{JUNK}, v{T0}, s[16:19], s26 offen
    s_mov_b32 exec_hi, -1""")

def amap():
    m = OPT["amap"]
    if m == 0: return "s_and_b32 s21, s2, 31\ns_lshr_b32 s22, s2, 5"
    lc = m
    return (f"s_bfe_u32 s22, s2, {hex(((3-lc) << 16) | 0)}\ns_lshl_b32 s22, s22, {lc}\ns_bfe_u32 s21, s2, {hex((lc << 16) | 3)}\ns_or_b32 s22, s22, s21\n"
            f"s_bfe_u32 s21, s2, {hex((lc << 16) | (3-lc))}\ns_lshl_b32 s21, s21, {5-lc}\ns_lshr_b32 s12, s2, {3+lc}\ns_or_b32 s21, s21, s12")

def kernel(a):
    if OPT["stamps"]:
        for k in range(NST): a(f"s_mov_b32 s{64+2*k}, 0")
    stamp(a, 0)
    a(f"""v_readfirstlane_b32 s20, v0
    s_cmp_ge_u32 s2, 256
    s_cbranch_scc1 Lexit
    s_cmp_lt_u32 s20, 256
    s_cbranch_scc1 Lloader""")
    if OPT["b1"] == 2: a(f"v_mov_b32 v{T1}, {LTAG + 4}\nv_mov_b32 v{T2}, 0\nds_write_b32 v{T1}, v{T2}")
    a(f"""
    s_getpc_b64 s[30:31]
    Lpc:
    v_and_b32 v{T2}, 255, v0
    v_lshlrev_b32 v{JUNK}, 7, v{T2}
    v_mov_b32 v{JUNK+1}, s31
    v_add_co_u32 v{JUNK}, vcc, s30, v{JUNK}
    v_addc_co_u32 v{JUNK+1}, vcc, 0, v{JUNK+1}, vcc
    v_cmp_gt_u32 vcc, (Lexit-Lpc)/128+1, v{T2}
    s_and_saveexec_b64 s[30:31], vcc
    s_cbranch_execz Lpfd
    global_load_dword v{JUNK+2}, v[{JUNK}:{JUNK+1}], off
    Lpfd:""")
    if OPT["b1"] == 2: a("s_waitcnt lgkmcnt(0)\ns_barrier")
    a(f"""s_branch Lcompute
    Lloader:
    s_load_dwordx2 s[8:9], s[0:1], 0
    s_lshr_b32 s20, s20, 6
    v_and_b32 v{LANE}, 63, v0
    v_lshlrev_b32 v{VL}, 4, v{LANE}
    {amap()}
    s_mov_b32 s10, {XB}
    s_mov_b32 s11, 0x00020000
    v_cmp_lt_u32 vcc, 29, v{LANE}
    s_lshl_b32 s23, s20, 9
    s_add_u32 s23, s23, s21
    s_mul_i32 s23, s23, 896
    s_mul_i32 s24, s20, {16*PH}
    v_add_u32 v{T1}, {32*896 - 480}, v{VL}
    s_mov_b32 s25, {'s22' if OPT['rot'] else '0'}
    v_cndmask_b32 v{T1}, v{VL}, v{T1}, vcc
    s_mov_b32 exec_lo, 0xcfffffff
    s_mov_b32 exec_hi, 0x03ffffff
    s_mov_b32 s28, 0""")
    if OPT["b1"] == 2: a("s_barrier")
    a("s_waitcnt lgkmcnt(0)")
    stamp(a, 3, True)
    if OPT["dmau"]:
        a("Ldma:")
        for i in range(8):
            a(f"""s_mul_i32 s26, s25, {2*PH}
            s_mul_i32 s27, s25, {64*896}
            s_add_u32 m0, s26, s24
            s_add_u32 s27, s27, s23
            s_add_u32 s25, s25, 1
            buffer_load_dwordx4 v{T1}, s[8:11], s27 offen lds
            s_and_b32 s25, s25, 7""")
        a(f"""s_add_u32 s24, s24, {LXH}
        s_add_u32 s23, s23, 448
        s_add_u32 s28, s28, 1
        s_cmp_lt_u32 s28, 2""")
        if OPT["b1"] == 1: a("s_cbranch_scc0 Ldmad\ns_barrier\ns_branch Ldma\nLdmad:")
        else: a("s_cbranch_scc1 Ldma")
    else:
        a(f"""Ldma:
        s_mul_i32 s26, s25, {2*PH}
        s_mul_i32 s27, s25, {64*896}
        s_add_u32 s26, s26, s24
        s_add_u32 s27, s27, s23
        s_mov_b32 m0, s26
        s_add_u32 s25, s25, 1
        buffer_load_dwordx4 v{T1}, s[8:11], s27 offen lds
        s_and_b32 s25, s25, 7
        s_add_u32 s28, s28, 1
        s_cmp_lg_u32 s28, 8
        s_cbranch_scc1 Ldma1
        s_add_u32 s24, s24, {LXH}
        s_add_u32 s23, s23, 448
        Ldma1:
        s_cmp_lt_u32 s28, 16
        s_cbranch_scc1 Ldma""")
    def ltail():
        a(f"""Lltail:
        s_mov_b64 exec, -1
        s_load_dwordx2 s[6:7], s[0:1], 96
        s_load_dwordx8 s[40:47], s[0:1], 48
        s_load_dwordx2 s[48:49], s[0:1], 80
        v_and_b32 v{N}, 15, v0
        v_bfe_u32 v{G}, v0, 4, 2""")
        stamp(a, 6, True)
        early = OPT["e2a"]
        if early:
            a("s_waitcnt vmcnt(8)")
            stamp(a, 1)
            a("s_barrier")
        a("s_waitcnt lgkmcnt(0)")
        b_setup(a)
        b_loads(a)
        a("s_cmp_lg_u32 s20, 0\ns_cbranch_scc1 Lw123a")
        clears(a)
        if not early:
            a("s_waitcnt vmcnt(14)")
            stamp(a, 1)
            a("s_barrier")
        a("s_waitcnt vmcnt(6)")
        stamp(a, 2)
        a(f"""s_barrier
        v_mov_b32 v{T0}, {LTAG}
        s_waitcnt vmcnt(5)
        ds_write_b32 v{T0}, v{V_EP}
        s_branch Lprol
        Lw123a:""")
        if OPT["pf"] == 3: prefetch(a)
        if not early:
            a(f"s_waitcnt vmcnt(12)")
            stamp(a, 1)
            a("s_barrier")
        a(f"s_waitcnt vmcnt({4 if OPT['pf'] == 3 else 3})")
        stamp(a, 2)
        a(f"s_barrier")
        if OPT["pf"] == 1: prefetch(a)
        a(f"s_waitcnt vmcnt({2 if OPT['pf'] == 4 else 3})")
        a("Lprol:")
        if OPT["wdh"]: wd_dma(a, 0, 7, "Lnwd2")
        if OPT["w64l"]:
            a("s_mov_b32 s3, s20")
            w64(a, AC1)
            for i in range(8): a(f"v_xor_b32 v{AC1+16+i}, 0x80008000, v{AC1+8+i}")
            a(f"s_lshl_b32 s26, s3, 12\ns_add_u32 s26, s26, {LWT}\nv_add_u32 v{T1}, s26, v{VL}")
            for i in range(6): a(f"ds_write_b128 v{T1}, {v4(AC1+4*i)} offset:{[0, 1024, 2048, 3072, 16384, 17408][i]}")
        if not OPT["prolate"]: pro(a)
        stamp(a, 3)
        def hint_store():
            a(f"""s_cmp_lg_u32 s20, 0
            s_cbranch_scc1 Lnh
            s_lshl_b32 s34, s2, 6
            s_add_u32 s34, s34, {WS_HINT}
            v_add_u32 v{T0}, 1, v{V_EP}
            s_mov_b64 exec, 1
            buffer_store_dword v{T0}, v{VL}, s[12:15], s34 offen {SC}
            s_mov_b64 exec, -1
            Lnh:""")
        if OPT["hint"] == 2: hint_store()
        a("s_waitcnt lgkmcnt(0)\ns_barrier")
        if OPT["hint"] == 1: hint_store()
        a("s_branch Lpro1" if OPT["prolate"] else "s_branch Lpro2")
    if OPT["layout"]: a("s_branch Lltail")
    else: ltail()
    a("Lcompute:")
    a(f"""s_mov_b64 exec, -1
    s_load_dwordx2 s[8:9], s[0:1], 0
    s_lshr_b32 s20, s20, 6
    v_and_b32 v{LANE}, 63, v0
    v_lshlrev_b32 v{VL}, 4, v{LANE}
    {amap()}
    s_mov_b32 s10, {XB}
    s_mov_b32 s11, 0x00020000
    s_load_dwordx2 s[6:7], s[0:1], 96
    s_load_dwordx8 s[40:47], s[0:1], 48
    s_load_dwordx2 s[48:49], s[0:1], 80
    v_and_b32 v{N}, 15, v0
    v_bfe_u32 v{G}, v0, 4, 2
    s_and_b32 s3, s20, 3""")
    if OPT["prio"]: a("s_setprio 3")
    stamp(a, 9, True)
    a_pre(a)
    stamp(a, 11, True)
    a("s_waitcnt lgkmcnt(0)")
    b_setup(a)
    for i in range(OPT["warm"]): a(f"v_mfma_f32_16x16x32_bf16 {v4(AC2+4*(i%4))}, {v4(WC)}, {v4(WSN)}, {v4(AC2+4*(i%4))}")
    stamp(a, 1)
    a("s_barrier")
    stamp(a, 2)
    a_main(a)
    stamp(a, 4)
    if OPT["prio"]: a("s_setprio 0")
    a(f"buffer_load_dwordx4 {v4(B_WR)}, v{VL}, s[16:19], 0 offen")
    a(f"buffer_load_dwordx4 {v4(B_XR)}, v{VL}, s[8:11], s97 offen")
    a("Lpro1:")
    pro(a, 1 if OPT["prosplit"] else 0)
    a("Lpro2:")
    a(f"""v_readfirstlane_b32 s56, v{V_EP}
    s_add_u32 s56, s56, 1
    s_mul_i32 s98, s56, {HASH}
    s_lshl_b32 s99, s98, 6
    s_and_b32 s59, s56, 0xffff""")
    if OPT["hint"]:
        a(f"""v_and_b32 v{T1}, 31, v{LANE}
        v_lshlrev_b32 v{T1}, 6, v{T1}
        s_lshl_b32 s34, s20, 11
        s_add_u32 s34, s34, {WS_HINT}
        s_mov_b32 s57, 4000""")
        if OPT["sl_h0"]: a(f"s_sleep {OPT['sl_h0']}")
        a(f"""Lhint:
        buffer_load_dword v{T0}, v{T1}, s[12:15], s34 offen {SC}
        s_waitcnt vmcnt(0)
        v_cmp_ne_u32 vcc, s56, v{T0}
        s_cmp_eq_u64 vcc, 0
        s_cbranch_scc1 Lhintd""")
        if OPT["sl_h"]: a(f"s_sleep {OPT['sl_h']}")
        a(f"""s_sub_u32 s57, s57, 1
        s_cbranch_scc0 Lhint
        Lhintd:""")
    else:
        a("s_barrier")
    stamp(a, 5)
    b_main(a)
    if OPT["wdh"]: a("s_cmp_lt_u32 s20, 4\ns_cbranch_scc1 Lnwd1")
    wd_dma(a, OPT['wdsplit'], 7, 'Lnwd1')
    c_select(a)
    a("s_cmp_ge_u32 s2, 224\ns_cbranch_scc1 Lc2")
    c1(a)
    a("Lc2:\ns_and_b32 s50, s2, 7\ns_cmp_eq_u32 s50, 7\ns_cbranch_scc1 Lend\ns_lshl_b32 s50, s50, 7\ns_bfe_u32 s51, s2, 0x20003\ns_lshl_b32 s51, s51, 5\ns_add_u32 s51, s51, s50")
    c2(a)
    a("Lend:")
    dump_stamps(a)
    if OPT["layout"]:
        a("s_endpgm")
        ltail()
        for f in TAIL: f()
    a("Lexit:\ns_endpgm\nLfullsel:")
    select8(a, C_K, C_TMP, C_L, C_SW, C_SR)
    a("s_branch Lseldone")

DOC = '''; ---------------------------------------------------------------------------------------------
;      into LDS, waves 4-7 build the cos/sin tables, run the DFT-448 for 28 frequencies (raw bf16 x,
;      sums), then the DFT-64 over s2, and write U (f16) to d_ws.
;      28 workgroups do the down projection for 16 output columns and write the routed rows.
; ---------------------------------------------------------------------------------------------
'''
NAME = "sequential_preLN__spectral_fnet__moe_arch_mod__prompt_kernel"
def build():
    a = Asm()
    kernel(a)
    body = a.finish()
    if OPT["align"]: body = align_pass(body)
    return gen.HDR + f"""; @launch grid=(256,1,1) block=(512,1,1) lds={LDS_TOTAL}
{DOC}.amdgcn_target "amdgcn-amd-amdhsa--gfx950"
.text
.globl {NAME}
.p2align 8
.type {NAME},@function
{NAME}:
""" + body + f""".section .rodata,"a"
.p2align 6
.amdhsa_kernel {NAME}
  .amdhsa_next_free_vgpr {NVGPR}
  .amdhsa_next_free_sgpr 102
  .amdhsa_accum_offset {NVGPR}
  .amdhsa_group_segment_fixed_size 0
  .amdhsa_kernarg_size 104
  .amdhsa_user_sgpr_count 2
  .amdhsa_user_sgpr_kernarg_segment_ptr 1
  .amdhsa_system_sgpr_workgroup_id_x 1
.end_amdhsa_kernel
"""

if __name__ == "__main__":
    for x in list(sys.argv[1:]):
        if x.startswith("--"):
            k, _, v = x[2:].partition("=")
            assert k in OPT, k
            OPT[k] = int(v) if v else 1
            sys.argv.remove(x)
    open(sys.argv[1], "w").write(build())
```

```python
import sys
from asmlib import Asm, fl, align_pass
import gen
from gen import srd, v4, v2, rbf, sd_chain, reduce3, unpack8, lim_regs, select8, sigmoid_mul

WS_KEYS = 0x220000
WS_HINT = 0x204000
WS_EPOCH = 0x208000
WS_ACT = 0x210000
WS_STAMP = 0x3c0000
WS_ROW = 0x400000
WS_SIZE = 0x800000
XB = 1835008
PH = 480; PX = 928; PF = 136; PY = 512
LXH = 64 * PH
LW = 2 * LXH; LCS = LW + 28 * 1024; LTAG = LCS + 256; LF = LCS + 272; LWT = LF + 64 * PF; LDS_TOTAL = LWT + 57344
LY = 0
LSEL = 16384; LSE2 = 16640; LKEY = 17152; LXS = 17408; LRED = 24832
SPIN = 4000000
SC = "sc1"
HASH = "0x9e3779b1"
OPT = dict(stamps=0, cyc=0, align=0, sl_u0=4, sl_k=17, sl_a=4, rowpf=2, barj=5, dbgto=0, ost=0, c2re=1, rot=1, pf=3, wdsplit=0, w64l=0, layout=1, e2a=1, prolate=1, amp=-1, ampw=0, ampb=224, prio=1, wdh=0, cheb=1, ln1emu=1, dmau=1, b1=0, part=0, sl_r=4, hint=0, sl_h=4, sl_h0=0, trim=1, prosplit=0, warm=0, amap=0, ksh=5, kperm=0)
NST = 14

def stamp(a, k, early=False):
    if OPT["stamps"] == 5:
        if early != 5 and k not in (0, 3, 4, NST - 1): return
    elif OPT["stamps"] == 4:
        if early == 5 or (not early and k not in (0, 1, 2, NST - 1)): return
    elif early: return
    if OPT["stamps"] == 2 and k not in (0, NST - 1): return
    if OPT["stamps"]: a(f"{'s_memtime' if OPT['cyc'] else 's_memrealtime'} s[{64+2*k}:{65+2*k}]")
def dump_stamps(a):
    if OPT["amp"] >= 0:
        k = OPT["amp"]
        a(f"s_memrealtime s[{64+2*(NST-2)}:{65+2*(NST-2)}]")
        a(f"""s_cmp_lg_u32 s2, {OPT['ampb']}
        s_cbranch_scc1 Lampd
        s_cmp_lg_u32 s20, {OPT['ampw']}
        s_cbranch_scc1 Lampd
        s_waitcnt lgkmcnt(0)
        s_sub_u32 s60, s{64+2*k}, s64
        s_mul_i32 s60, s60, 9
        s_add_u32 s60, s60, s{64+2*(NST-2)}
        Lamp:
        s_memrealtime s[62:63]
        s_waitcnt lgkmcnt(0)
        s_sub_u32 s61, s62, s60
        s_cmp_lt_i32 s61, 0
        s_cbranch_scc1 Lamp
        Lampd:""")
        return
    if not OPT["stamps"]: return
    stamp(a, NST - 2)
    a("s_waitcnt vmcnt(0)")
    stamp(a, NST - 1)
    a("s_mov_b64 exec, 1\ns_waitcnt lgkmcnt(0)")
    a(f"s_lshl_b32 s60, s2, 3\ns_add_u32 s60, s60, s20\ns_lshl_b32 s60, s60, 6\ns_add_u32 s60, s60, {WS_STAMP}\nv_mov_b32 v1, 0")
    for k in range(NST):
        a(f"v_mov_b32 v2, s{64+2*k}\nbuffer_store_dword v2, v1, s[12:15], s60 offen offset:{4*k}")

_lbl = [0]
TAIL = []
def timeout_note(a, ident):
    if not OPT["dbgto"]: return
    a(f"""s_lshl_b32 s100, s2, 8
    s_add_u32 s100, s100, s20
    s_add_u32 s100, s100, {ident << 24}
    v_mov_b32 v{JUNK+3}, s100
    s_mov_b32 s100, {0x3f0000 + 4*ident}
    s_mov_b64 exec, 1
    buffer_store_dword v{JUNK+3}, v{VL}, s[12:15], s100 offen
    v_mov_b32 v{JUNK+3}, s36
    buffer_store_dword v{JUNK+3}, v{VL}, s[12:15], s100 offen offset:64
    v_mov_b32 v{JUNK+3}, s98
    buffer_store_dword v{JUNK+3}, v{VL}, s[12:15], s100 offen offset:128
    v_mov_b32 v{JUNK+3}, s34
    buffer_store_dword v{JUNK+3}, v{VL}, s[12:15], s100 offen offset:192
    s_mov_b64 exec, -1""")
def poll(a, loads, check, pre=0):
    _lbl[0] += 1
    L = f"Lpoll{_lbl[0]}"
    if pre: a(f"s_sleep {pre}")
    a(f"s_mov_b32 s57, {SPIN}\n{L}:")
    loads()
    a("s_waitcnt vmcnt(0)")
    check()
    a(f"""s_cmp_eq_u64 vcc, 0
    s_cbranch_scc1 {L}d
    s_sub_u32 s57, s57, 1
    s_cbranch_scc0 {L}""")
    timeout_note(a, _lbl[0])
    a(f"{L}d:")

class LdsQ:
    def __init__(s, a): s.a = a; s.q = []
    def read(s, text, b, n=4):
        s.a(text); s.q.append(set(range(b, b + n)))
    def need(s, b, n=4):
        rs = set(range(b, b + n)); last = -1
        for i, d in enumerate(s.q):
            if d & rs: last = i
        if last >= 0:
            s.a(f"s_waitcnt lgkmcnt({len(s.q) - 1 - last})")
            s.q = s.q[last+1:]

LANE, N, G, T0, T1, T2, VL = 1, 2, 3, 4, 5, 6, 7
B_XR = 8; B_WR = 12; V_EP = 16; VFW = 17; VFR = 18; VXR = 19; VCS = 20; VUS = 21; ST = 22
WC = 28; WSN = 36; WNS = 44
AC1 = 52; AC2 = 68; GR = 84; XF = 88; WD = 116
JUNK = 228; SG2 = 232; V_GU = 234; V_DC = 235; B_A2 = 236; B_AD4 = 244; NVGPR = 248
B_AF = 28; B_AD = 36; B_VY = 40; B_VU = 41; C_L = {1: 42, 2: 43, 4: 44}; C_SW = 45; C_SR = 46; C_KA = 47
C_FW = 48; C_FR = 49; C_FY = 50; C_PF = 51
B_R = 116; B_ACC = 52; B_XU = 68; B_WU = 76; B_S1, B_S2, B_S3 = 88, 90, 92; B_TH = 96; P_TH = 104; P_EPS = 112; P_BASE = 113
C_K = 148; C_TMP = 152; C_KEY = 156; C_X = 157; C_Y = 158; C_OUT = 160; C_LN = 164; C_IX = 224; C_STK = 159

def trig_block(a, n, k0, eps, base, th, want_sin):
    for i in range(n):
        k = k0 + i
        if k == 0: a(f"v_mov_b32 v{th+i}, v{base}")
        else: a(f"v_fmamk_f32 v{th+i}, v{eps}, {fl(float(k))}, v{base}")
    for i in range(n):
        if want_sin: a(f"v_sin_f32 v{th+n+i}, v{th+i}")
        a(f"v_cos_f32 v{th+i}, v{th+i}")

def w64(a, D):
    EPS, BASE, TH, S = ST + 4, ST + 5, XF, ST
    a(f"""v_lshrrev_b32 v{S}, 1, v{N}
    s_lshl_b32 s25, s3, 3
    v_add_u32 v{S}, s25, v{S}
    v_sub_u32 v{S+1}, 64, v{S}
    v_cmp_eq_u32 vcc, 0, v{S}
    v_and_b32 v{S+2}, 1, v{N}
    v_cndmask_b32 v{S+1}, v{S+1}, 32, vcc
    v_cmp_eq_u32 vcc, 0, v{S+2}
    v_lshlrev_b32 v{S+2}, 3, v{G}
    v_cndmask_b32 v{S+1}, v{S+1}, v{S}, vcc
    v_cvt_f32_u32 v{S+2}, v{S+2}
    v_and_b32 v{S}, 1, v{S+1}
    v_cvt_f32_u32 v{S+1}, v{S+1}
    v_mul_u32_u24 v{S}, 0x8000, v{S}
    v_mul_f32 v{EPS}, {fl(1.0/64)}, v{S+1}
    v_lshl_or_b32 v{S}, v{S}, 16, v{S}
    v_mul_f32 v{BASE}, v{S+2}, v{EPS}""")
    if OPT["cheb"]:
        C2 = S + 3; CV = XF; SV = XF + 8
        a(f"""v_cos_f32 v{C2}, v{EPS}
        v_add_f32 v{CV+1}, v{EPS}, v{BASE}
        v_sin_f32 v{SV}, v{BASE}
        v_cos_f32 v{CV}, v{BASE}
        v_sin_f32 v{SV+1}, v{CV+1}
        v_cos_f32 v{CV+1}, v{CV+1}
        v_add_f32 v{C2}, v{C2}, v{C2}""")
        for i in range(2, 8):
            for Vv in (CV, SV): a(f"v_fma_f32 v{Vv+i}, v{C2}, v{Vv+i-1}, -v{Vv+i-2}")
        for i in range(4):
            a(f"v_cvt_pk_f16_f32 v{D+i}, v{CV+2*i}, v{CV+2*i+1}")
            a(f"v_cvt_pk_f16_f32 v{D+8+i}, v{SV+2*i}, v{SV+2*i+1}")
        for i in range(4):
            a(f"v_xor_b32 v{D+4+i}, v{S}, v{D+i}")
            a(f"v_xor_b32 v{D+12+i}, v{S}, v{D+8+i}")
        return
    for ks in range(2):
        for h in range(2):
            trig_block(a, 4, 32*ks + 4*h, EPS, BASE, TH, True)
            for i in range(2):
                a(f"v_cvt_pk_f16_f32 v{D+4*ks+2*h+i}, v{TH+2*i}, v{TH+2*i+1}")
                a(f"v_cvt_pk_f16_f32 v{D+8+4*ks+2*h+i}, v{TH+4+2*i}, v{TH+4+2*i+1}")

def a_pre(a):
    a("; === phase A set-up: DFT-448 table tile (three-term recurrence), its column sums, DFT-64 fragments")
    EPS, BASE, TH, ONE, TO, CS = ST + 4, ST + 5, XF, XF + 8, XF + 12, AC1
    a(f"""s_and_b32 s25, s3, 1
    s_lshl_b32 s25, s25, 2
    v_and_b32 v{T0}, 3, v{N}
    v_add_u32 v{T0}, s25, v{T0}
    v_lshrrev_b32 v{T1}, 2, v{N}
    s_mul_i32 s26, s22, 28
    s_add_u32 s26, s26, 1
    v_mad_u32_u24 v{T1}, v{T1}, 7, v{T0}
    v_add_u32 v{T1}, s26, v{T1}
    v_cmp_ne_u32 vcc, 7, v{T0}
    s_lshr_b32 s25, s3, 1
    s_mul_i32 s25, s25, {fl(0.25)}
    v_cndmask_b32 v{T1}, 0, v{T1}, vcc
    v_cvt_f32_u32 v{T1}, v{T1}
    v_mul_f32 v{EPS}, {fl(1.0/448)}, v{T1}
    v_lshlrev_b32 v{T0}, 3, v{G}
    v_cvt_f32_u32 v{T2}, v{T0}
    v_fma_f32 v{BASE}, v{T2}, v{EPS}, s25
    s_mul_i32 s25, s3, {7*1024}
    s_add_u32 s25, s25, {LW}
    v_add_u32 v{T1}, s25, v{VL}""")
    for i in range(4): a(f"v_mov_b32 v{ONE+i}, 0x3f803f80")
    if OPT["cheb"]:
        C2 = ST + 3; V = WD
        a(f"v_cos_f32 v{C2}, v{EPS}")
        for j in range(7):
            for i in range(2):
                k = 32*j + i
                if k == 0: a(f"v_mov_b32 v{V}, v{BASE}")
                else: a(f"v_fmamk_f32 v{V+8*j+i}, v{EPS}, {fl(float(k))}, v{BASE}")
        a(f"v_add_f32 v{C2}, v{C2}, v{C2}")
        for j in range(7):
            for i in range(2): a(f"v_cos_f32 v{V+8*j+i}, v{V+8*j+i}")
        for i in range(2, 8):
            for j in range(7):
                a(f"v_fma_f32 v{V+8*j+i}, v{C2}, v{V+8*j+i-1}, -v{V+8*j+i-2}")
        for j in range(7):
            o = V + 56 + 4*j
            for i in range(4): a(f"v_cvt_pk_bf16_f32 v{o+i}, v{V+8*j+2*i}, v{V+8*j+2*i+1}")
            a(f"ds_write_b128 v{T1}, {v4(o)} offset:{j*1024}")
            a(f"v_mfma_f32_16x16x32_bf16 {v4(CS)}, {v4(o)}, {v4(ONE)}, {'0' if j == 0 else v4(CS)}")
    else:
      for j in range(7):
        trig_block(a, 8, 32*j, EPS, BASE, TH, False)
        o = TO + 4*(j & 1)
        for i in range(4): a(f"v_cvt_pk_bf16_f32 v{o+i}, v{TH+2*i}, v{TH+2*i+1}")
        a(f"ds_write_b128 v{T1}, {v4(o)} offset:{j*1024}")
        a(f"v_mfma_f32_16x16x32_bf16 {v4(CS)}, {v4(o)}, {v4(ONE)}, {'0' if j == 0 else v4(CS)}")
    a(f"""v_lshrrev_b32 v{ST}, 1, v{N}
    s_lshl_b32 s25, s3, 3
    v_add_u32 v{ST}, s25, v{ST}
    v_and_b32 v{ST+2}, 1, v{N}
    v_lshlrev_b32 v{VUS}, 16, v{ST}
    v_lshl_add_u32 v{VUS}, v{ST+2}, 6, v{VUS}
    v_lshl_add_u32 v{VUS}, v{G}, 4, v{VUS}
    s_lshl_b32 s25, s3, 6
    v_lshlrev_b32 v{T0}, 4, v{G}
    v_add_u32 v{VCS}, {LCS}, v{T0}
    v_add_u32 v{T1}, s25, v{VCS}
    v_lshlrev_b32 v{SG2+1}, 31, v{G}
    v_or_b32 v{SG2+1}, 1.0, v{SG2+1}
    v_xor_b32 v{SG2}, 0x80000000, v{SG2+1}
    v_pk_fma_f32 {v2(CS)}, {v2(CS)}, {v2(SG2)}, {v2(CS)}
    v_pk_fma_f32 {v2(CS+2)}, {v2(CS+2)}, {v2(SG2)}, {v2(CS+2)}
    ds_write_b128 v{T1}, {v4(CS)}""")
    if OPT["b1"] == 2:
        a(f"""v_mov_b32 v{T1}, {LTAG + 4}
        v_mov_b32 v{T2}, 1
        s_waitcnt lgkmcnt(0)
        s_mov_b64 exec, 1
        ds_add_u32 v{T1}, v{T2}
        s_mov_b64 exec, -1""")
        w64(a, WC)
        a(f"""Lwsync:
        ds_read_b32 v{T2}, v{T1}
        s_waitcnt lgkmcnt(0)
        v_readfirstlane_b32 s25, v{T2}
        s_cmp_lt_u32 s25, 4
        s_cbranch_scc1 Lwsync
        v_add_u32 v{T2}, {LW}, v{VL}""")
        for f in range(28): a(f"ds_read_b128 {v4(WD+4*f)}, v{T2} offset:{f*1024}")
        for i in range(8): a(f"v_xor_b32 v{WNS+i}, 0x80008000, v{WSN+i}")
    if OPT["b1"] == 1:
        a(f"v_add_u32 v{T2}, {LW}, v{VL}\ns_waitcnt lgkmcnt(0)\ns_barrier")
        for f in range(28): a(f"ds_read_b128 {v4(WD+4*f)}, v{T2} offset:{f*1024}")
    if OPT["pf"] == 4:
        a("s_waitcnt lgkmcnt(0)\ns_cmp_eq_u32 s20, 7\ns_cbranch_scc1 Lnpf4")
        prefetch(a, 4, XF, XF + 1)
        a("Lnpf4:")
    if not OPT["w64l"] and OPT["b1"] != 2:
        w64(a, WC)
        for i in range(8): a(f"v_xor_b32 v{WNS+i}, 0x80008000, v{WSN+i}")
    stamp(a, 10, True)
    a(f"v_add_u32 v{T2}, {LW}, v{VL}")
    a(f"""s_lshl_b32 s25, s3, 4
    v_add_u32 v{ST}, s25, v{N}
    v_mul_u32_u24 v{VXR}, {PH}, v{ST}
    v_add_u32 v{VXR}, v{T0}, v{VXR}
    v_mul_u32_u24 v{VFW}, {PF}, v{ST}
    v_lshl_add_u32 v{VFW}, v{G}, 3, v{VFW}
    v_add_u32 v{VFW}, {LF}, v{VFW}
    v_lshrrev_b32 v{ST}, 2, v{N}
    v_lshl_add_u32 v{ST}, v{G}, 3, v{ST}
    v_mul_u32_u24 v{VFR}, {PF}, v{ST}
    v_and_b32 v{ST}, 3, v{N}
    v_lshl_add_u32 v{VFR}, v{ST}, 3, v{VFR}
    v_add_u32 v{VFR}, {LF}, v{VFR}
    s_lshl_b32 s23, s21, 11
    s_lshl_b32 s24, s22, 8
    s_add_u32 s23, s23, s24""")
    for r in range(4):
        a(f"s_mov_b32 s{30+2*r}, {hex(((1<<r)|(1<<(20+r))) & 0xffffffff)}")
        a(f"s_mov_b32 s{31+2*r}, {hex(((1<<(8+r))|(1<<(28+r))) & 0xffffffff)}")
    a("s_mov_b64 s[24:25], 0xffff\ns_mov_b32 s38, 0\ns_cmp_eq_u32 s22, 7\ns_cselect_b32 s39, 0xffff0000, 0")

def a_main(a):
    a("; === phase A: DFT-448 GEMM (two K halves) + row statistics, LDS transpose, DFT-64, U stores")
    q = LdsQ(a)
    def rdx(j, hf): q.read(f"ds_read_b128 {v4(XF+4*j)}, v{VXR} offset:{64*j + hf*LXH}", XF+4*j)
    def rdw(j):
        for T in range(4): q.read(f"ds_read_b128 {v4(WD+4*(7*T+j))}, v{T2} offset:{(7*T+j)*1024}", WD+4*(7*T+j))
    if OPT["b1"]:
        for j in range(7): rdx(j, 0)
    else:
        for j in range(3): rdx(j, 0); rdw(j)
    BJ = OPT["barj"]
    Q, S, M, RS = ST, ST+1, ST+2, ST+4
    def mf(A, T, j, first): a(f"v_mfma_f32_16x16x32_bf16 {v4(A+4*T)}, {v4(WD+4*(7*T+j))}, {v4(XF+4*j)}, {'0' if first else v4(A+4*T)}")
    def gram(j, first): a(f"v_mfma_f32_16x16x32_bf16 {v4(GR)}, {v4(XF+4*j)}, {v4(XF+4*j)}, {'0' if first else v4(GR)}")
    for j in range(7):
        q.need(XF + 4*j)
        gram(j, j == 0)
        for T in range(4):
            q.need(WD+4*(7*T+j))
            mf(AC1, T, j, j == 0)
        if j + 3 < 7 and not OPT["b1"]: rdx(j + 3, 0); rdw(j + 3)
        if j == BJ:
            stamp(a, 11)
            a("s_barrier")
            for k in range(BJ + 1): rdx(k, 1)
        elif j > BJ: rdx(j, 1)
    CS = WD + 28
    for j in range(7):
        q.need(XF + 4*j)
        gram(j, False)
        mf(AC2, 1, j, j == 0)
    for T in range(4): q.read(f"ds_read_b128 {v4(CS+4*T)}, v{VCS} offset:{64*T}", CS+4*T)
    stats = [None, None, f"v_mov_b32 v{Q}, 0", f"v_mov_b32 v{V_EP}, {LTAG}"]
    stats += [f"v_cndmask_b32 v{Q}, v{Q}, v{GR+r}, s[{30+2*r}:{31+2*r}]" for r in range(4)]
    stats += [f"v_add_f32 v{S}, v{AC1+7}, v{AC2+7}", f"v_cndmask_b32 v{S}, 0, v{S}, s[24:25]", None, None,
              f"v_permlane32_swap_b32 v{Q}, v{S}", f"v_add_f32 v{Q}, v{Q}, v{S}", f"v_mov_b32 v{S}, v{Q}", None, None,
              f"v_permlane16_swap_b32 v{Q}, v{S}", f"v_add_f32 v{Q}, v{Q}, v{S}", f"v_mov_b32 v{S}, v{Q}", None, None,
              f"v_permlane32_swap_b32 v{Q}, v{S}", f"v_mul_f32 v{M}, {fl(-1.0/448)}, v{S}", f"v_mul_f32 v{Q}, {fl(1.0/448)}, v{Q}",
              f"v_fma_f32 v{Q}, -v{M}, v{M}, v{Q}", f"v_max_f32 v{Q}, 0, v{Q}"]
    rb = [f"v_cvt_pk_bf16_f32 v{Q}, v{Q}, v{Q}", f"v_and_b32 v{Q}, 0xffff0000, v{Q}"]
    if OPT["ln1emu"]:
        stats += rb + [f"v_add_f32 v{Q}, {fl(1e-5)}, v{Q}"] + rb + [f"v_sqrt_f32 v{Q}, v{Q}", None] + rb + [f"v_rcp_f32 v{RS}, v{Q}"]
    else:
        stats += [f"v_add_f32 v{Q}, {fl(1e-5)}, v{Q}", f"v_rsq_f32 v{RS}, v{Q}"]
    k = stats.index(f"v_max_f32 v{Q}, 0, v{Q}") + 1
    stats[k:k] = [f"v_cvt_pk_bf16_f32 v{V_DC}, v{M}, v{M}", f"v_and_b32 v{V_DC}, 0xffff0000, v{V_DC}",
                  f"v_sub_f32 v{V_DC}, v{V_DC}, v{M}", f"v_mul_f32 v{V_DC}, {fl(448.0)}, v{V_DC}"]
    stats += ["WAITCS", f"v_mul_f32 v{M}, v{M}, v{RS}", f"v_mul_f32 v{V_DC}, v{V_DC}, v{RS}"]
    stats += [f"v_mul_f32 v{CS+i}, v{CS+i}, v{M}" for i in range(16)]
    for j in range(7):
        for T in (0, 2, 3):
            mf(AC2, T, j, j == 0)
            for _ in range(2):
                if stats:
                    t = stats.pop(0)
                    if t == "WAITCS": q.need(CS, 16)
                    elif t: a(t)
    for p in range(2): a(f"v_pk_fma_f32 {v2(AC1+4+2*p)}, {v2(AC2+4+2*p)}, {v2(SG2)}, {v2(AC1+4+2*p)}")
    for t in stats:
        if t == "WAITCS": q.need(CS, 16)
        elif t: a(t)
    stamp(a, 3)
    for T in (0, 2, 3):
        for p in range(2):
            x = AC1 + 4*T + 2*p
            a(f"v_pk_fma_f32 {v2(x)}, {v2(AC2+4*T+2*p)}, {v2(SG2)}, {v2(x)}")
    for T in (1, 0, 2, 3):
        for p in range(2):
            x = AC1 + 4*T + 2*p
            a(f"v_pk_fma_f32 {v2(x)}, {v2(x)}, {v2(RS)}, {v2(CS+4*T+2*p)} op_sel_hi:[1,0,1]")
    a(f"v_cndmask_b32 v{AC1+14}, v{AC1+14}, v{V_DC}, s[38:39]")
    for T in (1, 0, 2, 3):
        for p in range(2):
            x = AC1 + 4*T + 2*p
            a(f"v_cvt_pk_f16_f32 v{AC2+2*T+p}, v{x}, v{x+1}")
        a(f"ds_write_b64 v{VFW}, {v2(AC2+2*T)} offset:{32*T}")
    if OPT["w64l"]: a(f"s_lshl_b32 s26, s3, 12\ns_add_u32 s26, s26, {LWT}\nv_add_u32 v{T1}, s26, v{VL}")
    stamp(a, 5, 5)
    a(f"s_waitcnt lgkmcnt(0)")
    stamp(a, 6, 5)
    a(f"s_barrier")
    stamp(a, 7, 5)
    if OPT["w64l"]:
        for i in (0, 2, 4, 1, 3, 5): a(f"ds_read_b128 {v4(WC+4*i)}, v{T1} offset:{(i % 4 if i < 4 else i - 2 + 2) * 0 + i * 0 + [0, 1024, 2048, 3072, 16384, 17408][i]}")
    FA = WD + 48
    fa = lambda T, ks: FA + (2*T + ks) * 4
    q = LdsQ(a)
    for T in range(2):
        for ks in range(2):
            for TT in (T, T + 2):
                for h in range(2):
                    q.read(f"ds_read_b64_tr_b16 {v2(fa(TT, ks)+2*h)}, v{VFR} offset:{(32*ks+4*h)*PF+32*TT}", fa(TT, ks)+2*h, 2)
    q.read(f"ds_read_b32 v{V_EP}, v{V_EP}", V_EP, 1)
    UR = AC1; UI = AC1 + 8; o = XF
    tagcalc = [f"v_add_u32 v{M}, 1, v{V_EP}", f"s_mov_b32 s98, {HASH}", f"v_mul_lo_u32 v{M}, v{M}, s98"]
    for T in range(2):
        for ks in range(2):
            fr = v4(fa(T, ks)); fi = v4(fa(T + 2, ks))
            q.need(fa(T, ks))
            if T == 0 and ks == 0: stamp(a, 8, 5)
            a(f"v_mfma_f32_16x16x32_f16 {v4(UR+4*T)}, {fr}, {v4(WC+4*ks)}, {'0' if ks == 0 else v4(UR+4*T)}")
            a(f"v_mfma_f32_16x16x32_f16 {v4(UI+4*T)}, {fr}, {v4(WNS+4*ks)}, {'0' if ks == 0 else v4(UI+4*T)}")
            q.need(fa(T + 2, ks))
            a(f"v_mfma_f32_16x16x32_f16 {v4(UR+4*T)}, {fi}, {v4(WSN+4*ks)}, {v4(UR+4*T)}")
            a(f"v_mfma_f32_16x16x32_f16 {v4(UI+4*T)}, {fi}, {v4(WC+4*ks)}, {v4(UI+4*T)}")
            if T == 1 and ks == 1:
                q.need(V_EP, 1)
                for t in tagcalc: a(t)
    stamp(a, 9, 5)
    for r in range(4): a(f"v_cvt_pk_f16_f32 v{o+r}, v{UR+r}, v{UI+r}")
    a(f"buffer_store_dwordx4 {v4(o)}, v{VUS}, s[12:15], s23 offen {SC}")
    stamp(a, 10, 5)
    a(f"v_add3_u32 v{Q}, v{o}, v{o+1}, v{o+2}")
    a(f"v_sub_u32 v{M}, v{M}, v{o+3}")
    a(f"v_sub_u32 v{M}, v{M}, v{Q}")
    for r in range(3): a(f"v_cvt_pk_f16_f32 v{o+4+r}, v{UR+4+r}, v{UI+4+r}")
    a(f"""v_add3_u32 v{Q}, v{o+4}, v{o+5}, v{o+6}
    v_sub_u32 v{o+7}, v{M}, v{Q}
    buffer_store_dwordx4 {v4(o+4)}, v{VUS}, s[12:15], s23 offen offset:128 {SC}""")

def b_ids(a):
    a(f"""s_and_b32 s92, s2, 7
    s_lshr_b32 s93, s2, 6
    s_lshl_b32 s93, s93, 3
    s_or_b32 s92, s92, s93
    s_bfe_u32 s93, s2, 0x10003
    s_bfe_u32 s96, s2, 0x20004
    s_sub_u32 s95, 64, s92
    s_cmp_eq_u32 s92, 0
    s_cselect_b32 s95, 32, s95
    s_cselect_b32 s94, 0, 1
    s_xor_b32 s94, s94, s93
    s_cmp_eq_u32 s93, 0
    s_cselect_b32 s95, s92, s95
    s_lshl_b32 s96, s96, 9
    s_add_u32 s95, s95, s96
    s_lshl_b32 s96, s20, 6
    s_add_u32 s96, s96, s95
    s_mul_i32 s97, s96, 896""")

def b_setup(a):
    srd(a, 12, 6, WS_SIZE)
    srd(a, 52, 48, XB)
    srd(a, 16, 40, 896)
    b_ids(a)

def b_loads(a):
    a(f"""s_mov_b32 s26, {WS_EPOCH}
    v_mov_b32 v{T0}, 0
    buffer_load_dword v{V_EP}, v{T0}, s[12:15], s26 offen {SC}
    buffer_load_dwordx4 {v4(B_WR)}, v{VL}, s[16:19], 0 offen
    buffer_load_dwordx4 {v4(B_XR)}, v{VL}, s[8:11], s97 offen""")

def pro(a, part=0):
    a("; === address / twiddle set-up for phases B and C")
    EPS, BASE, TH, AF, AD = P_EPS, P_BASE, P_TH, B_AF, B_AD
    a(f"""s_lshl_b32 s28, s92, 16
    s_lshl_b32 s29, s20, 8
    s_add_u32 s28, s28, s29
    s_add_u32 s29, s28, 4096
    s_add_u32 s30, s28, 32768
    s_add_u32 s31, s28, 36864
    v_lshlrev_b32 v{B_VU}, 13, v{G}
    v_lshl_add_u32 v{B_VU}, v{N}, 4, v{B_VU}""") if part != 2 else None
    if part == 1: return
    a(f"""v_and_b32 v{T0}, 7, v{N}
    v_lshlrev_b32 v{T0}, 6, v{T0}
    v_add_u32 v{T0}, s95, v{T0}
    v_cvt_f32_u32 v{T0}, v{T0}
    v_cmp_gt_u32 vcc, 8, v{N}
    v_mul_f32 v{EPS}, {fl(1.0/2048)}, v{T0}
    v_lshlrev_b32 v{T1}, 2, v{G}
    v_cndmask_b32 v{EPS}, -v{EPS}, v{EPS}, vcc
    v_cvt_f32_u32 v{T1}, v{T1}
    v_mul_f32 v{BASE}, v{T1}, v{EPS}""")
    for ks in range(2):
        trig_block(a, 4, 16*ks, EPS, BASE, TH, True)
        for i in range(4):
            a(f"v_cvt_pk_f16_f32 v{AF+4*ks+i}, v{TH+i}, v{TH+4+i}")
    a(f"""v_lshrrev_b32 v{T0}, 3, v{N}
    v_and_b32 v{T1}, 3, v{N}
    v_mul_u32_u24 v{T1}, 7, v{T1}
    v_lshl_add_u32 v{T1}, v{T0}, 2, v{T1}
    s_mul_i32 s32, s20, 28
    s_add_u32 s32, s32, 1
    v_add_u32 v{T1}, s32, v{T1}
    v_sub_u32 v{T2}, 448, v{T1}
    v_cmp_gt_u32 s[34:35], 2, v{G}
    v_mov_b32 v{TH}, s93
    v_mov_b32 v{TH+1}, s94
    v_cndmask_b32 v{T2}, v{T2}, v{T1}, s[34:35]
    v_cndmask_b32 v{TH}, v{TH+1}, v{TH}, s[34:35]
    v_bfe_u32 v{TH+1}, v{N}, 2, 1
    v_cmp_eq_u32 s[60:61], v{TH}, v{TH+1}
    v_and_b32 v{TH+2}, 1, v{G}
    v_mul_u32_u24 v{TH+2}, {4*PY}, v{TH+2}
    v_add_lshl_u32 v{AD}, v{TH+2}, v{T2}, 2
    v_mov_b32 v{TH+3}, -4
    v_cndmask_b32 v{TH+3}, v{TH+3}, 4, s[34:35]
    v_add_u32 v{AD+1}, v{AD}, v{TH+3}
    v_add_u32 v{AD+2}, v{AD+1}, v{TH+3}
    v_add_u32 v{AD+3}, v{AD+2}, v{TH+3}
    v_cmp_eq_u32 s[50:51], 0, v{T0}
    s_and_b64 s[50:51], s[50:51], s[60:61]
    v_mov_b32 v{TH}, 222
    v_cmp_eq_u32 s[62:63], v{TH}, v{T1}
    s_and_b64 s[62:63], s[62:63], s[60:61]
    s_andn2_b64 s[36:37], s[62:63], s[34:35]
    v_lshlrev_b32 v{TH+2}, 2, v{TH+2}
    v_add_u32 v{TH}, {448*4}, v{TH+2}
    v_cndmask_b32 v{AD+2}, v{AD+2}, v{TH}, s[36:37]
    v_add_u32 v{TH}, {449*4}, v{TH+2}
    v_add_u32 v{B_AD4}, {450*4}, v{TH+2}
    v_cndmask_b32 v{B_AD4}, v{B_AD4}, v{TH}, s[34:35]
    s_mul_i32 s33, s20, {PY*4}
    v_lshlrev_b32 v{B_VY}, 5, v{LANE}
    v_add_u32 v{B_VY}, s33, v{B_VY}
    s_add_u32 s33, s33, {448*4}
    v_mov_b32 v{B_AD4+1}, s33""")
    for i in range(8):
        a(f"v_alignbit_b32 v{B_A2+i}, v{AF+i}, v{AF+i}, 16")
        a(f"v_xor_b32 v{B_A2+i}, 0x8000, v{B_A2+i}")
    lim_regs(a, C_L, LANE, T0)
    a(f"""s_lshl_b32 s34, s20, 5
    s_add_u32 s34, s34, {LSEL}
    v_lshlrev_b32 v{T1}, 2, v{LANE}
    v_add_u32 v{C_SW}, s34, v{T1}
    v_add_u32 v{C_SR}, {LSEL}, v{T1}
    v_lshrrev_b32 v{C_KA}, 1, v0
    v_lshlrev_b32 v{C_KA}, {OPT['ksh']}, v{C_KA}
    v_and_b32 v{T0}, 1, v0
    v_lshl_add_u32 v{C_KA}, v{T0}, 4, v{C_KA}
    s_lshl_b32 s34, s20, 6
    s_add_u32 s34, s34, {LSE2}
    v_add_u32 v{C_FW}, s34, v{T1}
    v_lshrrev_b32 v{C_PF}, 3, v{LANE}
    v_and_b32 v{C_FY}, 7, v{LANE}
    v_lshlrev_b32 v{C_FR}, 6, v{C_PF}
    v_lshl_add_u32 v{C_FR}, v{C_FY}, 2, v{C_FR}
    v_add_u32 v{C_FR}, {LSE2}, v{C_FR}
    v_lshlrev_b32 v{C_FY}, 6, v{C_FY}
    v_add_u32 v{C_FY}, {LSE2 + 32}, v{C_FY}
    v_lshlrev_b32 v{C_PF}, 7, v{C_PF}
    s_cmp_ge_u32 s2, 224
    s_cselect_b32 s33, 1024, 0
    s_add_u32 s33, s33, {WS_ROW}
    {"s_and_b32 s27, s2, 7" if OPT['kperm'] else "s_mov_b32 s27, s2"}
    {"s_lshl_b32 s27, s27, 5" if OPT['kperm'] else ""}
    {"s_lshr_b32 s32, s2, 3" if OPT['kperm'] else ""}
    {"s_or_b32 s27, s27, s32" if OPT['kperm'] else ""}
    s_lshl_b32 s27, s27, {OPT['ksh']}
    s_add_u32 s27, s27, {WS_KEYS}
    s_sub_u32 s32, 2047, s96
    {f"v_bfe_u32 v{T0}, v0, 1, 5" if OPT['kperm'] else f"v_lshrrev_b32 v{T0}, 1, v0"}
    {f"v_lshlrev_b32 v{T0}, 3, v{T0}" if OPT['kperm'] else ""}
    {f"v_or_b32 v{T0}, s20, v{T0}" if OPT['kperm'] else ""}
    v_and_b32 v{T1}, 7, v{T0}
    v_lshrrev_b32 v{T2}, 6, v{T0}
    v_lshl_or_b32 v{T1}, v{T2}, 3, v{T1}
    v_sub_u32 v{T2}, 64, v{T1}
    v_cmp_eq_u32 vcc, 0, v{T1}
    v_bfe_u32 v{TH}, v{T0}, 3, 1
    v_cndmask_b32 v{T2}, v{T2}, 32, vcc
    v_cmp_eq_u32 vcc, 0, v{TH}
    v_bfe_u32 v{TH}, v{T0}, 4, 2
    v_cndmask_b32 v{T1}, v{T2}, v{T1}, vcc
    v_lshl_add_u32 v{T1}, v{TH}, 9, v{T1}
    v_and_b32 v{T0}, 1, v0
    v_lshl_add_u32 v{T1}, v{T0}, 8, v{T1}
    v_sub_u32 v{C_IX}, 2047, v{T1}
    v_subrev_u32 v{C_IX+1}, 64, v{C_IX}
    v_subrev_u32 v{C_IX+2}, 128, v{C_IX}
    v_subrev_u32 v{C_IX+3}, 192, v{C_IX}""")
    gu_prep(a)

def pro2(a):
    XU, WU, S1, S2, S3 = B_XU, B_WU, P_TH, P_TH + 2, P_TH + 4
    unpack8(a, WU, B_WR)
    a(f"""v_pk_add_f32 {v2(S1)}, {v2(WU)}, {v2(WU+2)}
    v_pk_add_f32 {v2(S2)}, {v2(WU+4)}, {v2(WU+6)}
    v_pk_add_f32 {v2(S1)}, {v2(S1)}, {v2(S2)}
    v_add_f32 v{S1}, v{S1}, v{S1+1}
    v_mov_b32 v{S2}, 0
    v_mov_b32 v{S3}, 0""")
    reduce3(a, S1, S2, S3, T0, 58, 39, 39)
    unpack8(a, XU, B_XR)
    for k in (B_S1, B_S1+1, B_S2, B_S2+1, B_S3, B_S3+1): a(f"v_mov_b32 v{k}, 0")

def anyones(a, regs_, t):
    regs_ = list(regs_)
    a(f"v_max_u32 v{t}, v{regs_[0]}, v{regs_[1]}")
    rest = regs_[2:]
    while len(rest) >= 2:
        a(f"v_max3_u32 v{t}, v{t}, v{rest[0]}, v{rest[1]}"); rest = rest[2:]
    if rest: a(f"v_max_u32 v{t}, v{t}, v{rest[0]}")
    a(f"v_cmp_eq_u32 vcc, -1, v{t}")

def wave_sum(a, v, sd):
    for k in (8, 4, 2, 1):
        a(f"v_add_u32_dpp v{v}, v{v}, v{v} row_ror:{k} row_mask:0xf bank_mask:0xf")
    for i in range(4): a(f"v_readlane_b32 s{sd+i}, v{v}, {16*i}")
    a(f"s_add_u32 s{sd}, s{sd}, s{sd+1}\ns_add_u32 s{sd+2}, s{sd+2}, s{sd+3}\ns_add_u32 s{sd}, s{sd}, s{sd+2}")

def publish_row(a):
    a("; publish this row (ln2 and out values, each closed by a checksum word)")
    a(f"""s_lshl_b32 s34, s96, 11
    s_add_u32 s34, s34, {WS_ROW}
    v_mov_b32 v{T0}, 0
    v_mov_b32 v{T1}, 0
    v_writelane_b32 v{C_LN}, 0, 56
    v_writelane_b32 v{C_OUT}, 0, 56
    s_mov_b32 exec_hi, 0x01ffffff
    v_add3_u32 v{T0}, v{C_LN}, v{C_LN+1}, v{C_LN+2}
    v_add3_u32 v{T1}, v{C_OUT}, v{C_OUT+1}, v{C_OUT+2}
    v_add_u32 v{T0}, v{T0}, v{C_LN+3}
    v_add_u32 v{T1}, v{T1}, v{C_OUT+3}
    s_mov_b32 exec_hi, -1""")
    wave_sum(a, T0, 36)
    a(f"s_sub_u32 s35, s98, s36\nv_writelane_b32 v{C_LN}, s35, 56")
    wave_sum(a, T1, 36)
    a(f"""s_sub_u32 s35, s98, s36
    v_writelane_b32 v{C_OUT}, s35, 56
    s_mov_b32 exec_hi, 0x01ffffff
    buffer_store_dwordx4 {v4(C_LN)}, v{VL}, s[12:15], s34 offen {SC}
    buffer_store_dwordx4 {v4(C_OUT)}, v{VL}, s[12:15], s34 offen offset:1024 {SC}
    s_mov_b32 exec_hi, -1""")

def fetch_row_issue(a, dst):
    a(f"""v_readlane_b32 s34, v{C_K}, s20
    s_andn2_b32 s34, 0x7ff, s34
    s_lshl_b32 s34, s34, 11
    s_add_u32 s34, s34, s33
    s_mov_b32 exec_hi, 0x01ffffff
    buffer_load_dwordx4 {v4(dst)}, v{VL}, s[12:15], s34 offen {SC}
    s_mov_b32 exec_hi, -1""")

def fetch_row_finish(a, dst, ldsaddr):
    _lbl[0] += 1
    L = f"Lrow{_lbl[0]}"
    a(f"""s_mul_i32 s29, s20, {PX}
    s_add_u32 s29, s29, {LXS}
    v_add_u32 v{ldsaddr}, s29, v{VL}
    s_mov_b32 s57, {SPIN}
    {L}:
    v_mov_b32 v{T0}, 0
    s_mov_b32 exec_hi, 0x01ffffff
    s_waitcnt vmcnt(0)
    ds_write_b128 v{ldsaddr}, {v4(dst)}
    v_add3_u32 v{T0}, v{dst}, v{dst+1}, v{dst+2}
    v_add_u32 v{T0}, v{T0}, v{dst+3}
    s_mov_b32 exec_hi, -1""")
    wave_sum(a, T0, 36)
    a(f"""s_cmp_eq_u32 s36, s98
    s_cbranch_scc1 {L}d
    s_mov_b32 exec_hi, 0x01ffffff
    s_waitcnt lgkmcnt(0)
    buffer_load_dwordx4 {v4(dst)}, v{VL}, s[12:15], s34 offen {SC}
    s_mov_b32 exec_hi, -1
    s_sub_u32 s57, s57, 1
    s_cbranch_scc0 {L}""")
    timeout_note(a, _lbl[0])
    a(f"{L}d:")

def gu_prep(a):
    srd(a, 16, 42, 448*3584)
    a(f"""v_mul_u32_u24 v{V_GU}, 3584, v0
    s_and_b32 s100, s2, 7
    s_mul_i32 s100, s100, 28
    s_lshr_b32 s101, s2, 3
    s_add_u32 s100, s100, s101
    s_lshl_b32 s26, s100, 4
    s_lshl_b32 s101, s20, 10
    s_add_u32 s101, s101, {LWT}
    s_and_b32 s45, s45, 0xffff
    s_cmp_ge_u32 s2, 224
    s_cselect_b32 s24, 7, s20""")

def gu_dma(a):
    a(f"""s_cmp_eq_u32 s24, 7
    s_cbranch_scc1 Lngu
    s_mov_b32 m0, s101
    s_add_u32 s101, s101, 8192
    buffer_load_dwordx4 v{V_GU}, s[16:19], s26 offen lds
    s_mov_b32 s16, s44
    s_mov_b32 m0, s101
    s_mov_b32 s17, s45
    buffer_load_dwordx4 v{V_GU}, s[16:19], s26 offen lds
    Lngu:""")

def wd_dma(a, j0, j1, L):
    if j0 == j1: return
    a(f"""s_cmp_lt_u32 s2, 224
    s_cbranch_scc1 {L}
    s_and_b32 s50, s2, 7
    s_cmp_eq_u32 s50, 7
    s_cbranch_scc1 {L}
    s_lshl_b32 s50, s50, 7
    s_bfe_u32 s51, s2, 0x20003
    s_lshl_b32 s51, s51, 5
    s_add_u32 s51, s51, s50""")
    srd(a, 16, 46, 1792*896)
    a(f"""v_lshrrev_b32 v{T1}, 1, v{LANE}
    v_mul_u32_u24 v{T1}, 896, v{T1}
    v_and_b32 v{T2}, 1, v{LANE}
    v_lshl_add_u32 v{T1}, v{T2}, 4, v{T1}
    s_mul_i32 s23, s20, {224*896}
    s_add_u32 s23, s23, s51
    s_add_u32 s23, s23, {j0*32*896}
    s_mul_i32 s25, s20, 7168
    s_add_u32 s25, s25, {LWT + j0*1024}""")
    for j in range(j0, j1):
        a(f"s_mov_b32 m0, s25")
        a(f"s_add_u32 s25, s25, 1024")
        a(f"buffer_load_dwordx4 v{T1}, s[16:19], s23 offen lds")
        a(f"s_add_u32 s23, s23, {32*896}")
    a(f"{L}:")

def b_main(a):
    a("; === phase B: fetch + validate U, 32-term DFT stage, h / LN2 / router key")
    R, AF, ACC, XU, WU, AD, TH = B_R, B_AF, B_ACC, B_XU, B_WU, B_AD, B_TH
    S1, S2, S3 = B_S1, B_S2, B_S3
    if OPT["sl_u0"]: a(f"s_sleep {OPT['sl_u0']}")
    def uld():
        for ks in range(2):
            for i in range(4):
                a(f"buffer_load_dwordx4 {v4(R+16*ks+4*i)}, v{B_VU}, s[12:15], s{28+2*ks+(i>>1)} offen offset:{2048*(i&1)} {SC}")
    a(f"s_mov_b32 s57, {SPIN}")
    uld()
    if OPT["prosplit"]: pro(a, 2)
    a("s_waitcnt vmcnt(8)")
    pro2(a)
    def swaps(ks):
        b = R + 16*ks
        for i in range(4):
            for j in range(i+1, 4):
                a(f"v_swap_b32 v{b+4*i+j}, v{b+4*j+i}")
    def mm(ks, dpp):
        for j in range(4):
            c = "0" if ks == 0 else v4(ACC+4*j)
            a(f"v_mfma_f32_16x16x32_f16 {v4(ACC+4*j)}, {v4(AF+4*ks)}, {v4(R+16*ks+4*j)}, {c}")
            if dpp: a(f"v_add_u32_dpp v{T0}, v{T0}, v{T0} row_ror:{8 >> j} row_mask:0xf bank_mask:0xf")
        a(f"v_mfma_f32_16x16x32_f16 {v4(TH)}, {v4(B_A2+4*ks)}, {v4(R+16*ks+8)}, {'0' if ks == 0 else v4(TH)}")
    if not OPT["part"]:
        a("s_branch Lupw\nLupoll:")
        uld()
        a("Lupw:")
    for ks in range(2):
        a(f"s_waitcnt vmcnt({4-4*ks})")
        b = R + 16*ks
        for i in range(8):
            if ks == 0 and i == 0: a(f"v_add_u32 v{T0}, v{b}, v{b+1}")
            else: a(f"v_add3_u32 v{T0}, v{T0}, v{b+2*i}, v{b+2*i+1}")
        swaps(ks)
        mm(ks, ks == 1)
    a(f"""v_cmp_ne_u32 vcc, s99, v{T0}
    s_cmp_eq_u64 vcc, 0""")
    if OPT["part"]:
        a("s_cbranch_scc0 Lupart")
        def part():
            C4 = B_TH
            a("Lupart:\ns_lshl_b32 s34, s98, 4")
            swaps(0); swaps(1)
            a("Lupchk:")
            for i in range(4):
                a(f"v_add3_u32 v{C4+i}, v{R+4*i}, v{R+4*i+1}, v{R+4*i+2}")
            for i in range(4):
                a(f"v_add3_u32 v{C4+i}, v{C4+i}, v{R+4*i+3}, v{R+16+4*i}")
            for i in range(4):
                a(f"v_add3_u32 v{C4+i}, v{C4+i}, v{R+16+4*i+1}, v{R+16+4*i+2}")
            for i in range(4):
                a(f"v_add_u32 v{C4+i}, v{C4+i}, v{R+16+4*i+3}")
            for k in (8, 4, 2, 1):
                for i in range(4):
                    a(f"v_add_u32_dpp v{C4+i}, v{C4+i}, v{C4+i} row_ror:{k} row_mask:0xf bank_mask:0xf")
            MK = ["s[36:37]", "s[38:39]", "s[24:25]", "vcc"]
            for i in range(4): a(f"v_cmp_ne_u32 {MK[i]}, s34, v{C4+i}")
            a(f"""s_or_b64 s[26:27], s[36:37], s[38:39]""".replace("s[26:27]", "s[100:101]"))
            a(f"""s_or_b64 s[100:101], s[100:101], s[24:25]
            s_or_b64 s[100:101], s[100:101], vcc
            s_cbranch_scc0 Lupgo""")
            if OPT["sl_r"]: a(f"s_sleep {OPT['sl_r']}")
            for i in range(4):
                a(f"s_cmp_eq_u64 {MK[i]}, 0\ns_cbranch_scc1 Lupok{i}")
                for ks in range(2):
                    a(f"buffer_load_dwordx4 {v4(R+16*ks+4*i)}, v{B_VU}, s[12:15], s{28+2*ks+(i>>1)} offen offset:{2048*(i&1)} {SC}")
                a(f"Lupok{i}:")
            a(f"""s_waitcnt vmcnt(0)
            s_sub_u32 s57, s57, 1
            s_cbranch_scc0 Lupchk
            Lupgo:""")
            for ks in range(2):
                swaps(ks); mm(ks, False)
            a("s_nop 7\ns_branch Lupolld")
        TAIL.append(part)
    else:
        a(f"""s_cbranch_scc1 Lupolld
        s_sub_u32 s57, s57, 1
        s_cbranch_scc0 Lupoll""")
        timeout_note(a, 9)
    a("Lupolld:")
    stamp(a, 6)
    if OPT["stamps"] == 3: a(f"s_sub_u32 s{64+2*11}, {SPIN+1}, s57")
    for j in range(4):
        if j in (0, 3): a(f"s_mov_b64 exec, {['s[60:61]', '', '', 's[50:51]'][j]}")
        for r in (0, 2):
            a(f"ds_write2st64_b32 v{AD+j}, v{ACC+4*j+r}, v{ACC+4*j+r+1} offset0:{r*PY//64} offset1:{(r+1)*PY//64}")
    a("s_cmp_lg_u32 s20, 7\ns_cbranch_scc1 Lndc\ns_mov_b64 exec, s[62:63]")
    for r in (0, 2):
        a(f"ds_write2st64_b32 v{B_AD4}, v{TH+r}, v{TH+r+1} offset0:{r*PY//64} offset1:{(r+1)*PY//64}")
    a("Lndc:\ns_mov_b64 exec, -1")
    gu_dma(a)
    wd_dma(a, 0, OPT['wdsplit'], 'Lnwd0')
    a("""s_mov_b32 exec_hi, 0x00ffffff
    s_waitcnt lgkmcnt(0)
    s_barrier""")
    H = R
    a(f"ds_read_b128 {v4(TH)}, v{B_AD4+1}\nds_read_b128 {v4(H)}, v{B_VY} offset:{LY}\nds_read_b128 {v4(H+4)}, v{B_VY} offset:{LY+16}")
    a("s_mov_b64 s[36:37], 1\ns_mov_b64 s[38:39], 0x10000001")
    for hf in range(2):
        a(f"s_waitcnt lgkmcnt({1-hf})")
        if hf == 0:
            a(f"""v_add_f32 v{TH+1}, v{TH+1}, v{TH+2}
            v_add_f32 v{TH}, v{TH}, v{H}
            v_cndmask_b32 v{TH}, v{TH}, v{TH+1}, s[36:37]
            v_mul_f32 v{TH}, 0.5, v{TH}
            v_cndmask_b32 v{H}, v{H}, v{TH}, s[38:39]""")
        for p in range(2):
            x = 4*hf + 2*p
            a(f"v_pk_add_f32 {v2(H+x)}, {v2(H+x)}, {v2(XU+x)}")
        for p in range(2):
            x = 4*hf + 2*p
            a(f"v_pk_add_f32 {v2(S1)}, {v2(S1)}, {v2(H+x)}")
            a(f"v_pk_fma_f32 {v2(S2)}, {v2(H+x)}, {v2(H+x)}, {v2(S2)}")
            a(f"v_pk_fma_f32 {v2(S3)}, {v2(H+x)}, {v2(WU+x)}, {v2(S3)}")
    a(f"""s_mov_b32 exec_hi, -1
    v_add_f32 v{S1}, v{S1}, v{S1+1}
    v_add_f32 v{S2}, v{S2}, v{S2+1}
    v_add_f32 v{S3}, v{S3}, v{S3+1}""")
    reduce3(a, S1, S2, S3, T0, 37, 38, 39)
    M, V, SD, RS, C0, KEY = TH, TH+1, TH+2, TH+4, TH+6, C_KEY
    a(f"""v_mov_b32 v{V}, {fl(1.0/448)}
    v_mul_f32 v{M}, s37, v{V}
    v_mul_f32 v{V}, s38, v{V}
    v_mov_b32 v{KEY}, s39
    v_fma_f32 v{V}, -v{M}, v{M}, v{V}
    v_fma_f32 v{KEY}, -v{M}, s58, v{KEY}
    v_max_f32 v{SD}, 0, v{V}
    v_add_f32 v{V}, {fl(1e-5)}, v{SD}""")
    a(f"""v_rsq_f32 v{RS}, v{V}
    s_lshl_b32 s34, s20, 2
    v_mov_b32 v{T2}, s34
    v_mul_f32 v{KEY}, v{KEY}, v{RS}
    v_cvt_pk_bf16_f32 v{KEY}, v{KEY}, v{KEY}
    v_ashrrev_i32 v{T0}, 31, v{KEY}
    v_or_b32 v{T0}, 0x80000000, v{T0}
    v_xor_b32 v{KEY}, v{KEY}, v{T0}
    v_and_b32 v{KEY}, 0xffff0000, v{KEY}
    v_or_b32 v{KEY}, s32, v{KEY}
    ds_write_b32 v{T2}, v{KEY} offset:{LKEY}
    v_mov_b32 v{C_STK}, 0xffff
    v_lshlrev_b32 v{T1}, 2, v{LANE}
    v_mov_b32 v{T2}, {LKEY}
    s_waitcnt lgkmcnt(0)
    s_barrier
    s_cmp_lg_u32 s20, 0
    s_cbranch_scc1 Lnokey
    s_mov_b64 exec, 0xff
    ds_read_b32 v{T0}, v{T1} offset:{LKEY}
    s_waitcnt lgkmcnt(0)
    v_bfi_b32 v{T0}, v{C_STK}, s59, v{T0}
    buffer_store_dword v{T0}, v{T1}, s[12:15], s27 offen {SC}
    s_mov_b64 exec, -1
    Lnokey:
    ds_read_b128 {v4(ACC)}, v{T2}
    ds_read_b128 {v4(ACC+4)}, v{T2} offset:16""")
    stamp(a, 7)
    sd_chain(a, SD, SD)
    a(f"v_rcp_f32 v{RS}, v{SD}\ns_nop 0\nv_mul_f32 v{C0}, -v{M}, v{RS}")
    for p in range(4):
        a(f"v_pk_fma_f32 {v2(XU+2*p)}, {v2(H+2*p)}, {v2(RS)}, {v2(C0)} op_sel_hi:[1,0,0]")
    for p in range(4):
        a(f"v_pk_add_f32 {v2(H+2*p)}, {v2(H+2*p)}, {v2(XU+2*p)}")
    for p in range(4):
        a(f"v_cvt_pk_bf16_f32 v{C_LN+p}, v{XU+2*p}, v{XU+2*p+1}")
        a(f"v_cvt_pk_bf16_f32 v{C_OUT+p}, v{H+2*p}, v{H+2*p+1}")
    a(f"""s_waitcnt lgkmcnt(0)
    v_max3_u32 v{T0}, v{ACC}, v{ACC+1}, v{ACC+2}
    v_max3_u32 v{T1}, v{ACC+3}, v{ACC+4}, v{ACC+5}
    v_max3_u32 v{T0}, v{T0}, v{ACC+6}, v{ACC+7}
    v_max_u32 v{T0}, v{T0}, v{T1}
    v_cmp_eq_u32 s[60:61], v{T0}, v{KEY}
    s_cmp_eq_u64 s[60:61], 0
    s_cbranch_scc1 Lnoeager""")
    publish_row(a)
    a("Lnoeager:")

QP = {1: "quad_perm:[1,0,3,2]", 2: "quad_perm:[2,3,0,1]", 3: "quad_perm:[3,2,1,0]", 7: "row_half_mirror"}
class Net:
    def __init__(s, a, x, t, fill): s.a = a; s.x = x; s.t = t; s.fill = list(fill)
    def f(s, n=1):
        for _ in range(n):
            if s.fill: s.a(s.fill.pop(0))
    def ce(s, m):
        a, x, t = s.a, s.x, s.t
        s.f()
        if m == 4:
            a(f"v_max_u32_dpp v{t}, v{x}, v{x} row_shl:4 row_mask:0xf bank_mask:0x5")
            a(f"v_min_u32_dpp v{t}, v{x}, v{x} row_shr:4 row_mask:0xf bank_mask:0xa")
            s.x, s.t = t, x
        else:
            a(f"v_mov_b32_dpp v{t}, v{x} {QP[m]} row_mask:0xf bank_mask:0xf")
            a(f"v_med3_u32 v{x}, v{x}, v{t}, v{C_L[1 << (m.bit_length()-1)]}")
    def merge(s, last_clean=True):
        a = s.a
        s.f()
        a(f"v_max_u32_dpp v{s.x}, v{s.x}, v{s.x} row_mirror row_mask:0xf bank_mask:0xf")
        for m in (4, 2, 1): s.ce(m)
        for sw in ("v_permlane16_swap_b32", "v_permlane32_swap_b32"):
            a(f"v_mov_b32 v{s.t}, v{s.x}")
            s.f()
            a(f"{sw} v{s.x}, v{s.t}")
            s.f()
            a(f"v_max_u32_dpp v{s.x}, v{s.t}, v{s.x} row_half_mirror row_mask:0xf bank_mask:0xf")
            if last_clean or "16" in sw:
                for m in (4, 2, 1): s.ce(m)
        s.f(99)

def fast_select(a):
    K, X, Y, P, Q = C_K, C_X, C_Y, C_TMP, C_TMP + 1
    a(f"""v_max_u32 v{P}, v{K}, v{K+1}
    v_max_u32 v{Q}, v{K+2}, v{K+3}
    v_max_u32 v{X}, v{P}, v{Q}""")
    fill = [f"v_min_u32 v{Y}, v{P}, v{Q}", f"v_min_u32 v{P}, v{K}, v{K+1}", f"v_min_u32 v{Q}, v{K+2}, v{K+3}",
            f"v_max3_u32 v{Y}, v{Y}, v{P}, v{Q}"]
    fill += [f"v_max_u32_dpp v{Y}, v{Y}, v{Y} row_ror:{k} row_mask:0xf bank_mask:0xf" for k in (8, 4, 2, 1)]
    fill += [f"v_mov_b32 v{P}, v{Y}", f"v_permlane16_swap_b32 v{Y}, v{P}", f"v_max_u32 v{Y}, v{Y}, v{P}",
             f"v_mov_b32 v{P}, v{Y}", f"v_permlane32_swap_b32 v{Y}, v{P}", f"v_max_u32 v{Y}, v{Y}, v{P}",
             "s_mov_b64 vcc, 0x100"]
    n = Net(a, X, C_TMP + 2, fill)
    for m in (1, 3, 1, 7, 2, 1): n.ce(m)
    n.merge()
    a(f"""s_mov_b64 exec, 0x1ff
    v_cndmask_b32 v{P}, v{n.x}, v{Y}, vcc
    ds_write_b32 v{C_FW}, v{P}""")
    if OPT["rowpf"]:
        m8 = (1 << OPT["rowpf"]) - 1; m32 = m8 * 0x01010101
        a(f"""s_mov_b32 exec_lo, {hex(m32)}
        s_mov_b32 exec_hi, {hex(m32)}
        v_bfi_b32 v{Q}, v{n.x}, 0, v{C_TMP+3}
        v_lshl_add_u32 v{Q}, v{Q}, 11, v{C_PF}
        buffer_load_dword v{JUNK}, v{Q}, s[12:15], s33 offen {SC}""")
    a(f"""s_mov_b64 exec, -1
    s_waitcnt lgkmcnt(0)
    s_barrier
    ds_read_b32 v{X}, v{C_FR}
    ds_read_b32 v{Y}, v{C_FY}
    s_waitcnt lgkmcnt(0)""")
    fill = [f"v_max_u32_dpp v{Y}, v{Y}, v{Y} {QP[m]} row_mask:0xf bank_mask:0xf" for m in (1, 2, 7)]
    n = Net(a, X, C_TMP + 2, fill)
    n.merge(last_clean=False)
    a(f"""v_cmp_gt_u32 vcc, v{Y}, v{n.x}
    s_cmp_eq_u64 vcc, 0
    s_cbranch_scc0 Lfullsel
    v_mov_b32 v{K}, v{n.x}
    Lseldone:""")

def c_select(a):
    a("; === top-8 selection over all router keys")
    K = C_K
    a(f"s_mov_b32 s34, {WS_KEYS}\nv_mov_b32 v{C_TMP+3}, 0x7ff")
    def chk():
        a(f"v_xor_b32 v{T0}, v{K}, v{K+1}")
        a(f"v_xor_b32 v{T1}, v{K+2}, v{K+3}")
        a(f"v_xor_b32 v{T2}, s59, v{K}")
        a(f"v_xor_b32 v{C_X}, s59, v{K+2}")
        a(f"v_or3_b32 v{T0}, v{T0}, v{T1}, v{T2}")
        for i in range(4): a(f"v_bfi_b32 v{K+i}, v{C_STK}, v{C_IX+i}, v{K+i}")
        a(f"v_or_b32 v{T0}, v{T0}, v{C_X}")
        a(f"v_cmp_ne_u16 vcc, 0, v{T0}")
    poll(a, lambda: a(f"buffer_load_dwordx4 {v4(K)}, v{C_KA}, s[12:15], s34 offen {SC}"), chk, pre=OPT["sl_k"])
    stamp(a, 8)
    fast_select(a)
    stamp(a, 9)
    a(f"""v_cmp_eq_u32 vcc, v{K}, v{C_KEY}
    s_and_b64 s[62:63], vcc, s[60:61]
    s_cmp_lg_u64 s[62:63], vcc
    s_cbranch_scc0 Lsel_pub""")
    publish_row(a)
    a("Lsel_pub:")
    fetch_row_issue(a, 84)
    a(f"""s_cmp_eq_u64 vcc, 0
    s_cbranch_scc0 Lsel_done
    s_mov_b32 exec_hi, 0x00ffffff
    buffer_store_dwordx4 {v4(C_OUT)}, v{VL}, s[52:55], s97 offen {['', 'sc1', 'nt', 'sc0 sc1'][OPT['ost']]}
    s_mov_b32 exec_hi, -1
    Lsel_done:""")

def c1(a):
    a("; === gate / up projection for this workgroup's 8 FFN columns")
    XR = 84; XF_ = 168; ACC = 52; XU = 60; WF = 88
    a(f"""s_cmp_lg_u32 s20, 0
    s_cbranch_scc1 Lc1_now
    v_lshrrev_b32 v{T0}, 2, v{N}
    v_lshl_add_u32 v{T0}, v{G}, 3, v{T0}
    v_lshlrev_b32 v{T0}, 4, v{T0}
    v_and_b32 v{T1}, 1, v{N}
    v_lshl_add_u32 v{T0}, v{T1}, 3, v{T0}
    v_bfe_u32 v{T1}, v{N}, 1, 1
    v_lshl_add_u32 v{T0}, v{T1}, 13, v{T0}
    v_add_u32 v{T0}, {LWT}, v{T0}""")
    for j in range(14):
        for h in range(2):
            a(f"ds_read_b64_tr_b16 {v2(WF+4*j+2*h)}, v{T0} offset:{(32*j+4*h)*16}")
    a(f"""v_and_b32 v{XU+4}, 7, v{N}
    v_mul_u32_u24 v{XU+4}, {PX}, v{XU+4}
    v_lshl_add_u32 v{XU+4}, v{G}, 4, v{XU+4}
    v_lshlrev_b32 v{XU+5}, 4, v{N}
    v_lshl_add_u32 v{XU+5}, v{G}, 3, v{XU+5}
    s_lshl_b32 s22, s100, 7
    s_add_u32 s22, s22, {WS_ACT}
    Lc1_now:""")
    fetch_row_finish(a, XR, T2)
    a(f"""s_waitcnt lgkmcnt(0)
    s_barrier
    s_cmp_lg_u32 s20, 0
    s_cbranch_scc1 Lc1_epoch""")
    stamp(a, 10)
    for j in range(14):
        a(f"ds_read_b128 {v4(XF_+4*j)}, v{XU+4} offset:{LXS+64*j}")
    for j in range(14):
        a(f"s_waitcnt lgkmcnt({13-j})")
        A = ACC + 4*(j & 1)
        a(f"v_mfma_f32_16x16x32_bf16 {v4(A)}, {v4(WF+4*j)}, {v4(XF_+4*j)}, {'0' if j < 2 else v4(A)}")
    for p in range(2):
        a(f"v_pk_add_f32 {v2(ACC+2*p)}, {v2(ACC+2*p)}, {v2(ACC+4+2*p)}")
    for p in range(2): a(f"v_cvt_pk_bf16_f32 v{ACC+4+p}, v{ACC+2*p}, v{ACC+2*p+1}")
    for p in range(2): a(f"v_mov_b32 v{ACC+6+p}, v{ACC+4+p}")
    for p in range(2): a(f"v_permlane32_swap_b32 v{ACC+4+p}, v{ACC+6+p}")
    for p in range(2):
        a(f"v_lshlrev_b32 v{ACC+2*p}, 16, v{ACC+4+p}")
        a(f"v_and_b32 v{ACC+2*p+1}, 0xffff0000, v{ACC+4+p}")
    for r in range(4): a(f"v_mul_f32 v{XU+r}, {fl(-1.4426950408889634)}, v{ACC+r}")
    for r in range(4): a(f"v_exp_f32 v{XU+r}, v{XU+r}")
    for p in range(2):
        a(f"v_lshlrev_b32 v{XR+2*p}, 16, v{ACC+6+p}")
        a(f"v_and_b32 v{XR+2*p+1}, 0xffff0000, v{ACC+6+p}")
    for r in range(4): a(f"v_add_f32 v{XU+r}, 1.0, v{XU+r}")
    for r in range(4): a(f"v_rcp_f32 v{XU+r}, v{XU+r}")
    for r in range(4): a(f"v_mul_f32 v{ACC+r}, v{ACC+r}, v{XU+r}")
    for p in range(2): a(f"v_cvt_pk_bf16_f32 v{ACC+4+p}, v{ACC+2*p}, v{ACC+2*p+1}")
    for p in range(2):
        a(f"v_lshlrev_b32 v{ACC+2*p}, 16, v{ACC+4+p}")
        a(f"v_and_b32 v{ACC+2*p+1}, 0xffff0000, v{ACC+4+p}")
    for p in range(2): a(f"v_pk_mul_f32 {v2(ACC+2*p)}, {v2(ACC+2*p)}, {v2(XR+2*p)}")
    for p in range(2): a(f"v_cvt_pk_bf16_f32 v{XR+p}, v{ACC+2*p}, v{ACC+2*p+1}")
    for p in range(2): a(f"v_min_u32 v{XR+p}, -2, v{XR+p}")
    a(f"""s_mov_b32 exec_lo, 0x00ff00ff
    s_mov_b32 exec_hi, 0
    buffer_store_dwordx2 {v2(XR)}, v{XU+5}, s[12:15], s22 offen {SC}
    s_branch Lend
    Lc1_epoch:
    s_lshl_b32 s29, s2, 3
    s_add_u32 s29, s29, s20
    s_cmp_lg_u32 s29, 1
    s_cbranch_scc1 Lend
    s_mov_b64 exec, 1
    v_mov_b32 v{T0}, s56
    s_mov_b32 s29, {WS_EPOCH}
    buffer_store_dword v{T0}, v{VL}, s[12:15], s29 offen {SC}
    s_branch Lend""")

def c2(a):
    a("; === down projection for 16 output columns, routed rows written")
    K = C_K
    OA = 8; OR = 10; SG = 12; VA = 13; VO = 14; VW = 15; WF = 88; AF = 116; ACC = 52; RD = 168
    a(f"""s_mul_i32 s24, s20, 7168
    s_add_u32 s24, s24, {LWT}
    v_lshrrev_b32 v{T0}, 2, v{N}
    v_lshl_add_u32 v{T0}, v{G}, 3, v{T0}
    v_lshlrev_b32 v{T0}, 5, v{T0}
    v_and_b32 v{T1}, 3, v{N}
    v_lshl_add_u32 v{T0}, v{T1}, 3, v{T0}
    v_add_u32 v{VW}, s24, v{T0}""")
    for j in range(7):
        for h in range(2):
            a(f"ds_read_b64_tr_b16 {v2(WF+4*j+2*h)}, v{VW} offset:{(32*j+4*h)*32}")
    a(f"""v_and_b32 v{T1}, 7, v{N}
    v_mul_u32_u24 v{VO}, {PX}, v{T1}
    v_lshl_add_u32 v{VO}, v{G}, 3, v{VO}
    v_add_u32 v{VO}, s51, v{VO}
    v_lshlrev_b32 v{VA}, 4, v{T1}
    v_lshl_add_u32 v{VA}, v{G}, 7, v{VA}
    s_mul_i32 s25, s20, {7*512}
    s_add_u32 s25, s25, {WS_ACT}
    v_and_b32 v{OA}, 0x7ff, v{K}
    v_sub_u32 v{OA}, 2047, v{OA}
    v_mul_u32_u24 v{OA}, 896, v{OA}
    v_lshl_add_u32 v{OA}, v{G}, 3, v{OA}
    v_ashrrev_i32 v{T2}, 31, v{K}
    v_not_b32 v{T2}, v{T2}
    v_or_b32 v{T2}, 0x80000000, v{T2}
    v_xor_b32 v{K+1}, v{K}, v{T2}
    v_and_b32 v{K+1}, 0xffff0000, v{K+1}""")
    sigmoid_mul(a, SG, K+1, "1.0", T2)
    rbf(a, SG, SG)
    a(f"""v_lshlrev_b32 v{T1}, 4, v0
    v_add_u32 v{T1}, {LRED}, v{T1}""")
    def lds():
        for j in range(7):
            a(f"buffer_load_dwordx4 {v4(AF+4*j)}, v{VA}, s[12:15], s25 offen offset:{512*j} {SC}")
    if OPT["c2re"]:
        if OPT["sl_a"]: a(f"s_sleep {OPT['sl_a']}")
        lds()
        fetch_row_finish(a, 84, T2)
        anyones(a, range(AF, AF+28), T0)
        a("s_cmp_eq_u64 vcc, 0\ns_cbranch_scc1 Lactok")
        poll(a, lds, lambda: anyones(a, range(AF, AF+28), T0))
        a("Lactok:")
    else:
        fetch_row_finish(a, 84, T2)
        poll(a, lds, lambda: anyones(a, range(AF, AF+28), T0), pre=OPT["sl_a"])
    stamp(a, 10)
    a("s_waitcnt lgkmcnt(0)")
    for j in range(7):
        A = ACC + 4*(j & 1)
        a(f"v_mfma_f32_16x16x32_bf16 {v4(A)}, {v4(WF+4*j)}, {v4(AF+4*j)}, {'0' if j < 2 else v4(A)}")
    for p in range(2):
        a(f"v_pk_add_f32 {v2(ACC+2*p)}, {v2(ACC+2*p)}, {v2(ACC+4+2*p)}")
    a(f"""ds_write_b128 v{T1}, {v4(ACC)}
    s_waitcnt lgkmcnt(0)
    s_barrier
    s_cmp_lg_u32 s20, 0
    s_cbranch_scc1 Lend
    ds_read_b64 {v2(OR)}, v{VO} offset:{LXS}""")
    for w in range(1, 8):
        a(f"ds_read_b128 {v4(RD+4*w)}, v{T1} offset:{1024*w}")
    a("s_waitcnt lgkmcnt(7)")
    for i in range(2):
        a(f"v_lshlrev_b32 v{RD+2*i}, 16, v{OR+i}")
        a(f"v_and_b32 v{RD+2*i+1}, 0xffff0000, v{OR+i}")
    for w in range(1, 8):
        a(f"s_waitcnt lgkmcnt({7-w})")
        for p in range(2):
            a(f"v_pk_add_f32 {v2(ACC+2*p)}, {v2(ACC+2*p)}, {v2(RD+4*w+2*p)}")
    for rnd in range(2):
        for p in range(2): a(f"v_cvt_pk_bf16_f32 v{ACC+4+p}, v{ACC+2*p}, v{ACC+2*p+1}")
        for p in range(2):
            a(f"v_lshlrev_b32 v{ACC+2*p}, 16, v{ACC+4+p}")
            a(f"v_and_b32 v{ACC+2*p+1}, 0xffff0000, v{ACC+4+p}")
        for p in range(2):
            if rnd == 0: a(f"v_pk_mul_f32 {v2(ACC+2*p)}, {v2(ACC+2*p)}, {v2(SG)} op_sel_hi:[1,0]")
            else: a(f"v_pk_add_f32 {v2(ACC+2*p)}, {v2(ACC+2*p)}, {v2(RD+2*p)}")
    for p in range(2): a(f"v_cvt_pk_bf16_f32 v{OR+p}, v{ACC+2*p}, v{ACC+2*p+1}")
    a(f"""s_mov_b32 exec_lo, 0x00ff00ff
    s_mov_b32 exec_hi, 0x00ff00ff
    buffer_store_dwordx2 {v2(OR)}, v{OA}, s[52:55], s51 offen {['', 'sc1', 'nt', 'sc0 sc1'][OPT['ost']]}""")

def clears(a):
    a(f"""v_mov_b32 v{JUNK+2}, -1
    v_lshlrev_b32 v{T1}, 2, v{LANE}
    s_lshl_b32 s24, s2, 7
    s_add_u32 s24, s24, {WS_ACT}
    s_mov_b32 exec_hi, 0
    buffer_store_dword v{JUNK+2}, v{T1}, s[12:15], s24 offen {SC}
    s_mov_b32 exec_lo, 1
    s_lshl_b32 s23, s96, 11
    s_add_u32 s23, s23, {WS_ROW}
    buffer_load_dword v{JUNK}, v{VL}, s[52:55], s97 offen
    buffer_load_dword v{JUNK+1}, v{VL}, s[12:15], s23 offen
    s_mov_b64 exec, -1""")

def prefetch(a, w0=1, T0=T0, T1=T1):
    a("; L2 warm-up of the FFN weights (one word per line, values unused)")
    a(f"""s_and_b32 s24, s2, 7
    s_lshr_b32 s25, s2, 3
    s_mul_i32 s26, s25, {14*3584}
    s_mov_b32 s18, {448*3584}
    s_mov_b32 s19, 0x00020000
    s_cmp_eq_u32 s20, {w0+2}
    s_cbranch_scc1 Lpf_d
    v_lshrrev_b32 v{T0}, 2, v{LANE}
    v_mul_u32_u24 v{T0}, 3584, v{T0}
    v_and_b32 v{T1}, 3, v{LANE}
    v_lshl_add_u32 v{T0}, v{T1}, 7, v{T0}
    s_mul_i32 s24, s24, 448
    s_cmp_eq_u32 s20, {w0}
    s_cselect_b32 s16, s42, s44
    s_cselect_b32 s17, s43, s45
    s_branch Lpf_go
    Lpf_d:
    v_mul_u32_u24 v{T0}, 896, v{LANE}
    s_lshl_b32 s24, s24, 7
    s_mov_b32 s16, s46
    s_mov_b32 s17, s47
    Lpf_go:
    s_and_b32 s17, s17, 0xffff
    s_add_u32 s26, s26, s24
    s_mov_b32 exec_hi, 0x00ffffff
    buffer_load_dword v{JUNK}, v{T0}, s[16:19], s26 offen
    s_mov_b32 exec_hi, -1""")

def amap():
    m = OPT["amap"]
    if m == 0: return "s_and_b32 s21, s2, 31\ns_lshr_b32 s22, s2, 5"
    lc = m
    return (f"s_bfe_u32 s22, s2, {hex(((3-lc) << 16) | 0)}\ns_lshl_b32 s22, s22, {lc}\ns_bfe_u32 s21, s2, {hex((lc << 16) | 3)}\ns_or_b32 s22, s22, s21\n"
            f"s_bfe_u32 s21, s2, {hex((lc << 16) | (3-lc))}\ns_lshl_b32 s21, s21, {5-lc}\ns_lshr_b32 s12, s2, {3+lc}\ns_or_b32 s21, s21, s12")

def kernel(a):
    if OPT["stamps"]:
        for k in range(NST): a(f"s_mov_b32 s{64+2*k}, 0")
    stamp(a, 0)
    a(f"""v_readfirstlane_b32 s20, v0
    s_cmp_ge_u32 s2, 256
    s_cbranch_scc1 Lexit
    s_cmp_lt_u32 s20, 256
    s_cbranch_scc1 Lloader""")
    if OPT["b1"] == 2: a(f"v_mov_b32 v{T1}, {LTAG + 4}\nv_mov_b32 v{T2}, 0\nds_write_b32 v{T1}, v{T2}")
    a(f"""
    s_getpc_b64 s[30:31]
    Lpc:
    v_and_b32 v{T2}, 255, v0
    v_lshlrev_b32 v{JUNK}, 7, v{T2}
    v_mov_b32 v{JUNK+1}, s31
    v_add_co_u32 v{JUNK}, vcc, s30, v{JUNK}
    v_addc_co_u32 v{JUNK+1}, vcc, 0, v{JUNK+1}, vcc
    v_cmp_gt_u32 vcc, (Lexit-Lpc)/128+1, v{T2}
    s_and_saveexec_b64 s[30:31], vcc
    s_cbranch_execz Lpfd
    global_load_dword v{JUNK+2}, v[{JUNK}:{JUNK+1}], off
    Lpfd:""")
    if OPT["b1"] == 2: a("s_waitcnt lgkmcnt(0)\ns_barrier")
    a(f"""s_branch Lcompute
    Lloader:
    s_load_dwordx2 s[8:9], s[0:1], 0
    s_lshr_b32 s20, s20, 6
    v_and_b32 v{LANE}, 63, v0
    v_lshlrev_b32 v{VL}, 4, v{LANE}
    {amap()}
    s_mov_b32 s10, {XB}
    s_mov_b32 s11, 0x00020000
    v_cmp_lt_u32 vcc, 29, v{LANE}
    s_lshl_b32 s23, s20, 9
    s_add_u32 s23, s23, s21
    s_mul_i32 s23, s23, 896
    s_mul_i32 s24, s20, {16*PH}
    v_add_u32 v{T1}, {32*896 - 480}, v{VL}
    s_mov_b32 s25, {'s22' if OPT['rot'] else '0'}
    v_cndmask_b32 v{T1}, v{VL}, v{T1}, vcc
    s_mov_b32 exec_lo, 0xcfffffff
    s_mov_b32 exec_hi, 0x03ffffff
    s_mov_b32 s28, 0""")
    if OPT["b1"] == 2: a("s_barrier")
    a("s_waitcnt lgkmcnt(0)")
    stamp(a, 3, True)
    if OPT["dmau"]:
        a("Ldma:")
        for i in range(8):
            a(f"""s_mul_i32 s26, s25, {2*PH}
            s_mul_i32 s27, s25, {64*896}
            s_add_u32 m0, s26, s24
            s_add_u32 s27, s27, s23
            s_add_u32 s25, s25, 1
            buffer_load_dwordx4 v{T1}, s[8:11], s27 offen lds
            s_and_b32 s25, s25, 7""")
        a(f"""s_add_u32 s24, s24, {LXH}
        s_add_u32 s23, s23, 448
        s_add_u32 s28, s28, 1
        s_cmp_lt_u32 s28, 2""")
        if OPT["b1"] == 1: a("s_cbranch_scc0 Ldmad\ns_barrier\ns_branch Ldma\nLdmad:")
        else: a("s_cbranch_scc1 Ldma")
    else:
        a(f"""Ldma:
        s_mul_i32 s26, s25, {2*PH}
        s_mul_i32 s27, s25, {64*896}
        s_add_u32 s26, s26, s24
        s_add_u32 s27, s27, s23
        s_mov_b32 m0, s26
        s_add_u32 s25, s25, 1
        buffer_load_dwordx4 v{T1}, s[8:11], s27 offen lds
        s_and_b32 s25, s25, 7
        s_add_u32 s28, s28, 1
        s_cmp_lg_u32 s28, 8
        s_cbranch_scc1 Ldma1
        s_add_u32 s24, s24, {LXH}
        s_add_u32 s23, s23, 448
        Ldma1:
        s_cmp_lt_u32 s28, 16
        s_cbranch_scc1 Ldma""")
    def ltail():
        a(f"""Lltail:
        s_mov_b64 exec, -1
        s_load_dwordx2 s[6:7], s[0:1], 96
        s_load_dwordx8 s[40:47], s[0:1], 48
        s_load_dwordx2 s[48:49], s[0:1], 80
        v_and_b32 v{N}, 15, v0
        v_bfe_u32 v{G}, v0, 4, 2""")
        stamp(a, 6, True)
        early = OPT["e2a"]
        if early:
            a("s_waitcnt vmcnt(8)")
            stamp(a, 1)
            a("s_barrier")
        a("s_waitcnt lgkmcnt(0)")
        b_setup(a)
        b_loads(a)
        a("s_cmp_lg_u32 s20, 0\ns_cbranch_scc1 Lw123a")
        clears(a)
        if not early:
            a("s_waitcnt vmcnt(14)")
            stamp(a, 1)
            a("s_barrier")
        a("s_waitcnt vmcnt(6)")
        stamp(a, 2)
        a(f"""s_barrier
        v_mov_b32 v{T0}, {LTAG}
        s_waitcnt vmcnt(5)
        ds_write_b32 v{T0}, v{V_EP}
        s_branch Lprol
        Lw123a:""")
        if OPT["pf"] == 3: prefetch(a)
        if not early:
            a(f"s_waitcnt vmcnt(12)")
            stamp(a, 1)
            a("s_barrier")
        a(f"s_waitcnt vmcnt({4 if OPT['pf'] == 3 else 3})")
        stamp(a, 2)
        a(f"s_barrier")
        if OPT["pf"] == 1: prefetch(a)
        a(f"s_waitcnt vmcnt({2 if OPT['pf'] == 4 else 3})")
        a("Lprol:")
        if OPT["wdh"]: wd_dma(a, 0, 7, "Lnwd2")
        if OPT["w64l"]:
            a("s_mov_b32 s3, s20")
            w64(a, AC1)
            for i in range(8): a(f"v_xor_b32 v{AC1+16+i}, 0x80008000, v{AC1+8+i}")
            a(f"s_lshl_b32 s26, s3, 12\ns_add_u32 s26, s26, {LWT}\nv_add_u32 v{T1}, s26, v{VL}")
            for i in range(6): a(f"ds_write_b128 v{T1}, {v4(AC1+4*i)} offset:{[0, 1024, 2048, 3072, 16384, 17408][i]}")
        if not OPT["prolate"]: pro(a)
        stamp(a, 3)
        def hint_store():
            a(f"""s_cmp_lg_u32 s20, 0
            s_cbranch_scc1 Lnh
            s_lshl_b32 s34, s2, 6
            s_add_u32 s34, s34, {WS_HINT}
            v_add_u32 v{T0}, 1, v{V_EP}
            s_mov_b64 exec, 1
            buffer_store_dword v{T0}, v{VL}, s[12:15], s34 offen {SC}
            s_mov_b64 exec, -1
            Lnh:""")
        if OPT["hint"] == 2: hint_store()
        a("s_waitcnt lgkmcnt(0)\ns_barrier")
        if OPT["hint"] == 1: hint_store()
        a("s_branch Lpro1" if OPT["prolate"] else "s_branch Lpro2")
    if OPT["layout"]: a("s_branch Lltail")
    else: ltail()
    a("Lcompute:")
    a(f"""s_mov_b64 exec, -1
    s_load_dwordx2 s[8:9], s[0:1], 0
    s_lshr_b32 s20, s20, 6
    v_and_b32 v{LANE}, 63, v0
    v_lshlrev_b32 v{VL}, 4, v{LANE}
    {amap()}
    s_mov_b32 s10, {XB}
    s_mov_b32 s11, 0x00020000
    s_load_dwordx2 s[6:7], s[0:1], 96
    s_load_dwordx8 s[40:47], s[0:1], 48
    s_load_dwordx2 s[48:49], s[0:1], 80
    v_and_b32 v{N}, 15, v0
    v_bfe_u32 v{G}, v0, 4, 2
    s_and_b32 s3, s20, 3""")
    if OPT["prio"]: a("s_setprio 3")
    stamp(a, 9, True)
    a_pre(a)
    stamp(a, 11, True)
    a("s_waitcnt lgkmcnt(0)")
    b_setup(a)
    for i in range(OPT["warm"]): a(f"v_mfma_f32_16x16x32_bf16 {v4(AC2+4*(i%4))}, {v4(WC)}, {v4(WSN)}, {v4(AC2+4*(i%4))}")
    stamp(a, 1)
    a("s_barrier")
    stamp(a, 2)
    a_main(a)
    stamp(a, 4)
    if OPT["prio"]: a("s_setprio 0")
    a(f"buffer_load_dwordx4 {v4(B_WR)}, v{VL}, s[16:19], 0 offen")
    a(f"buffer_load_dwordx4 {v4(B_XR)}, v{VL}, s[8:11], s97 offen")
    a("Lpro1:")
    pro(a, 1 if OPT["prosplit"] else 0)
    a("Lpro2:")
    a(f"""v_readfirstlane_b32 s56, v{V_EP}
    s_add_u32 s56, s56, 1
    s_mul_i32 s98, s56, {HASH}
    s_lshl_b32 s99, s98, 6
    s_and_b32 s59, s56, 0xffff""")
    if OPT["hint"]:
        a(f"""v_and_b32 v{T1}, 31, v{LANE}
        v_lshlrev_b32 v{T1}, 6, v{T1}
        s_lshl_b32 s34, s20, 11
        s_add_u32 s34, s34, {WS_HINT}
        s_mov_b32 s57, 4000""")
        if OPT["sl_h0"]: a(f"s_sleep {OPT['sl_h0']}")
        a(f"""Lhint:
        buffer_load_dword v{T0}, v{T1}, s[12:15], s34 offen {SC}
        s_waitcnt vmcnt(0)
        v_cmp_ne_u32 vcc, s56, v{T0}
        s_cmp_eq_u64 vcc, 0
        s_cbranch_scc1 Lhintd""")
        if OPT["sl_h"]: a(f"s_sleep {OPT['sl_h']}")
        a(f"""s_sub_u32 s57, s57, 1
        s_cbranch_scc0 Lhint
        Lhintd:""")
    else:
        a("s_barrier")
    stamp(a, 5)
    b_main(a)
    if OPT["wdh"]: a("s_cmp_lt_u32 s20, 4\ns_cbranch_scc1 Lnwd1")
    wd_dma(a, OPT['wdsplit'], 7, 'Lnwd1')
    c_select(a)
    a("s_cmp_ge_u32 s2, 224\ns_cbranch_scc1 Lc2")
    c1(a)
    a("Lc2:\ns_and_b32 s50, s2, 7\ns_cmp_eq_u32 s50, 7\ns_cbranch_scc1 Lend\ns_lshl_b32 s50, s50, 7\ns_bfe_u32 s51, s2, 0x20003\ns_lshl_b32 s51, s51, 5\ns_add_u32 s51, s51, s50")
    c2(a)
    a("Lend:")
    dump_stamps(a)
    if OPT["layout"]:
        a("s_endpgm")
        ltail()
        for f in TAIL: f()
    a("Lexit:\ns_endpgm\nLfullsel:")
    select8(a, C_K, C_TMP, C_L, C_SW, C_SR)
    a("s_branch Lseldone")

DOC = '''; ---------------------------------------------------------------------------------------------
;      into LDS, waves 4-7 build the cos/sin tables, run the DFT-448 for 28 frequencies (raw bf16 x,
;      sums), then the DFT-64 over s2, and write U (f16) to d_ws.
;      28 workgroups do the down projection for 16 output columns and write the routed rows.
; ---------------------------------------------------------------------------------------------
'''
NAME = "sequential_preLN__spectral_fnet__moe_arch_mod__prompt_kernel"
def build():
    a = Asm()
    kernel(a)
    body = a.finish()
    if OPT["align"]: body = align_pass(body)
    return gen.HDR + f"""; @launch grid=(256,1,1) block=(512,1,1) lds={LDS_TOTAL}
{DOC}.amdgcn_target "amdgcn-amd-amdhsa--gfx950"
.text
.globl {NAME}
.p2align 8
.type {NAME},@function
{NAME}:
""" + body + f""".section .rodata,"a"
.p2align 6
.amdhsa_kernel {NAME}
  .amdhsa_next_free_vgpr {NVGPR}
  .amdhsa_next_free_sgpr 102
  .amdhsa_accum_offset {NVGPR}
  .amdhsa_group_segment_fixed_size 0
  .amdhsa_kernarg_size 104
  .amdhsa_user_sgpr_count 2
  .amdhsa_user_sgpr_kernarg_segment_ptr 1
  .amdhsa_system_sgpr_workgroup_id_x 1
.end_amdhsa_kernel
"""

if __name__ == "__main__":
    for x in list(sys.argv[1:]):
        if x.startswith("--"):
            k, _, v = x[2:].partition("=")
            assert k in OPT, k
            OPT[k] = int(v) if v else 1
            sys.argv.remove(x)
    open(sys.argv[1], "w").write(build())
```

```python
import sys
from asmlib import Asm, fl, align_pass
import gen
from gen import srd, v4, v2, rbf, sd_chain, reduce3, unpack8, lim_regs, select8, sigmoid_mul

WS_KEYS = 0x220000
WS_HINT = 0x204000
WS_EPOCH = 0x208000
WS_ACT = 0x210000
WS_STAMP = 0x3c0000
WS_ROW = 0x400000
WS_SIZE = 0x800000
XB = 1835008
PH = 480; PX = 928; PF = 136; PY = 512
LXH = 64 * PH
LW = 2 * LXH; LCS = LW + 28 * 1024; LTAG = LCS + 256; LF = LCS + 272; LWT = LF + 64 * PF; LDS_TOTAL = LWT + 57344
LY = 0
LSEL = 16384; LSE2 = 16640; LKEY = 17152; LXS = 17408; LRED = 24832
SPIN = 4000000
SC = "sc1"
HASH = "0x9e3779b1"
OPT = dict(stamps=0, cyc=0, align=0, sl_u0=4, sl_k=17, sl_a=4, rowpf=2, barj=5, dbgto=0, ost=0, c2re=1, rot=1, pf=3, wdsplit=0, w64l=0, layout=1, e2a=1, prolate=1, amp=-1, ampw=0, ampb=224, prio=1, wdh=0, cheb=1, ln1emu=1, dmau=1, b1=0, part=0, sl_r=4, hint=0, sl_h=4, sl_h0=0, trim=1, prosplit=0, warm=0, amap=0, ksh=5, kperm=0, amask=0)
NST = 14

def stamp(a, k, early=False):
    if OPT["stamps"] == 5:
        if early != 5 and k not in (0, 3, 4, NST - 1): return
    elif OPT["stamps"] == 4:
        if early == 5 or (not early and k not in (0, 1, 2, NST - 1)): return
    elif early: return
    if OPT["stamps"] == 2 and k not in (0, NST - 1): return
    if OPT["stamps"]: a(f"{'s_memtime' if OPT['cyc'] else 's_memrealtime'} s[{64+2*k}:{65+2*k}]")
def dump_stamps(a):
    if OPT["amp"] >= 0:
        k = OPT["amp"]
        a(f"s_memrealtime s[{64+2*(NST-2)}:{65+2*(NST-2)}]")
        a(f"""s_cmp_lg_u32 s2, {OPT['ampb']}
        s_cbranch_scc1 Lampd
        s_cmp_lg_u32 s20, {OPT['ampw']}
        s_cbranch_scc1 Lampd
        s_waitcnt lgkmcnt(0)
        s_sub_u32 s60, s{64+2*k}, s64
        s_mul_i32 s60, s60, 9
        s_add_u32 s60, s60, s{64+2*(NST-2)}
        Lamp:
        s_memrealtime s[62:63]
        s_waitcnt lgkmcnt(0)
        s_sub_u32 s61, s62, s60
        s_cmp_lt_i32 s61, 0
        s_cbranch_scc1 Lamp
        Lampd:""")
        return
    if not OPT["stamps"]: return
    stamp(a, NST - 2)
    a("s_waitcnt vmcnt(0)")
    stamp(a, NST - 1)
    a("s_mov_b64 exec, 1\ns_waitcnt lgkmcnt(0)")
    a(f"s_lshl_b32 s60, s2, 3\ns_add_u32 s60, s60, s20\ns_lshl_b32 s60, s60, 6\ns_add_u32 s60, s60, {WS_STAMP}\nv_mov_b32 v1, 0")
    for k in range(NST):
        a(f"v_mov_b32 v2, s{64+2*k}\nbuffer_store_dword v2, v1, s[12:15], s60 offen offset:{4*k}")

_lbl = [0]
TAIL = []
def timeout_note(a, ident):
    if not OPT["dbgto"]: return
    a(f"""s_lshl_b32 s100, s2, 8
    s_add_u32 s100, s100, s20
    s_add_u32 s100, s100, {ident << 24}
    v_mov_b32 v{JUNK+3}, s100
    s_mov_b32 s100, {0x3f0000 + 4*ident}
    s_mov_b64 exec, 1
    buffer_store_dword v{JUNK+3}, v{VL}, s[12:15], s100 offen
    v_mov_b32 v{JUNK+3}, s36
    buffer_store_dword v{JUNK+3}, v{VL}, s[12:15], s100 offen offset:64
    v_mov_b32 v{JUNK+3}, s98
    buffer_store_dword v{JUNK+3}, v{VL}, s[12:15], s100 offen offset:128
    v_mov_b32 v{JUNK+3}, s34
    buffer_store_dword v{JUNK+3}, v{VL}, s[12:15], s100 offen offset:192
    s_mov_b64 exec, -1""")
def poll(a, loads, check, pre=0):
    _lbl[0] += 1
    L = f"Lpoll{_lbl[0]}"
    if pre: a(f"s_sleep {pre}")
    a(f"s_mov_b32 s57, {SPIN}\n{L}:")
    loads()
    a("s_waitcnt vmcnt(0)")
    check()
    a(f"""s_cmp_eq_u64 vcc, 0
    s_cbranch_scc1 {L}d
    s_sub_u32 s57, s57, 1
    s_cbranch_scc0 {L}""")
    timeout_note(a, _lbl[0])
    a(f"{L}d:")

class LdsQ:
    def __init__(s, a): s.a = a; s.q = []
    def read(s, text, b, n=4):
        s.a(text); s.q.append(set(range(b, b + n)))
    def need(s, b, n=4):
        rs = set(range(b, b + n)); last = -1
        for i, d in enumerate(s.q):
            if d & rs: last = i
        if last >= 0:
            s.a(f"s_waitcnt lgkmcnt({len(s.q) - 1 - last})")
            s.q = s.q[last+1:]

LANE, N, G, T0, T1, T2, VL = 1, 2, 3, 4, 5, 6, 7
B_XR = 8; B_WR = 12; V_EP = 16; VFW = 17; VFR = 18; VXR = 19; VCS = 20; VUS = 21; ST = 22
WC = 28; WSN = 36; WNS = 44
AC1 = 52; AC2 = 68; GR = 84; XF = 88; WD = 116
JUNK = 228; SG2 = 232; V_GU = 234; V_DC = 235; B_A2 = 236; B_AD4 = 244; NVGPR = 248
B_AF = 28; B_AD = 36; B_VY = 40; B_VU = 41; C_L = {1: 42, 2: 43, 4: 44}; C_SW = 45; C_SR = 46; C_KA = 47
C_FW = 48; C_FR = 49; C_FY = 50; C_PF = 51
B_R = 116; B_ACC = 52; B_XU = 68; B_WU = 76; B_S1, B_S2, B_S3 = 88, 90, 92; B_TH = 96; P_TH = 104; P_EPS = 112; P_BASE = 113
C_K = 148; C_TMP = 152; C_KEY = 156; C_X = 157; C_Y = 158; C_OUT = 160; C_LN = 164; C_IX = 224; C_STK = 159

def trig_block(a, n, k0, eps, base, th, want_sin):
    for i in range(n):
        k = k0 + i
        if k == 0: a(f"v_mov_b32 v{th+i}, v{base}")
        else: a(f"v_fmamk_f32 v{th+i}, v{eps}, {fl(float(k))}, v{base}")
    for i in range(n):
        if want_sin: a(f"v_sin_f32 v{th+n+i}, v{th+i}")
        a(f"v_cos_f32 v{th+i}, v{th+i}")

def w64(a, D):
    EPS, BASE, TH, S = ST + 4, ST + 5, XF, ST
    a(f"""v_lshrrev_b32 v{S}, 1, v{N}
    s_lshl_b32 s25, s3, 3
    v_add_u32 v{S}, s25, v{S}
    v_sub_u32 v{S+1}, 64, v{S}
    v_cmp_eq_u32 vcc, 0, v{S}
    v_and_b32 v{S+2}, 1, v{N}
    v_cndmask_b32 v{S+1}, v{S+1}, 32, vcc
    v_cmp_eq_u32 vcc, 0, v{S+2}
    v_lshlrev_b32 v{S+2}, 3, v{G}
    v_cndmask_b32 v{S+1}, v{S+1}, v{S}, vcc
    v_cvt_f32_u32 v{S+2}, v{S+2}
    v_and_b32 v{S}, 1, v{S+1}
    v_cvt_f32_u32 v{S+1}, v{S+1}
    v_mul_u32_u24 v{S}, 0x8000, v{S}
    v_mul_f32 v{EPS}, {fl(1.0/64)}, v{S+1}
    v_lshl_or_b32 v{S}, v{S}, 16, v{S}
    v_mul_f32 v{BASE}, v{S+2}, v{EPS}""")
    if OPT["cheb"]:
        C2 = S + 3; CV = XF; SV = XF + 8
        a(f"""v_cos_f32 v{C2}, v{EPS}
        v_add_f32 v{CV+1}, v{EPS}, v{BASE}
        v_sin_f32 v{SV}, v{BASE}
        v_cos_f32 v{CV}, v{BASE}
        v_sin_f32 v{SV+1}, v{CV+1}
        v_cos_f32 v{CV+1}, v{CV+1}
        v_add_f32 v{C2}, v{C2}, v{C2}""")
        for i in range(2, 8):
            for Vv in (CV, SV): a(f"v_fma_f32 v{Vv+i}, v{C2}, v{Vv+i-1}, -v{Vv+i-2}")
        for i in range(4):
            a(f"v_cvt_pk_f16_f32 v{D+i}, v{CV+2*i}, v{CV+2*i+1}")
            a(f"v_cvt_pk_f16_f32 v{D+8+i}, v{SV+2*i}, v{SV+2*i+1}")
        for i in range(4):
            a(f"v_xor_b32 v{D+4+i}, v{S}, v{D+i}")
            a(f"v_xor_b32 v{D+12+i}, v{S}, v{D+8+i}")
        return
    for ks in range(2):
        for h in range(2):
            trig_block(a, 4, 32*ks + 4*h, EPS, BASE, TH, True)
            for i in range(2):
                a(f"v_cvt_pk_f16_f32 v{D+4*ks+2*h+i}, v{TH+2*i}, v{TH+2*i+1}")
                a(f"v_cvt_pk_f16_f32 v{D+8+4*ks+2*h+i}, v{TH+4+2*i}, v{TH+4+2*i+1}")

def a_pre(a):
    a("; === phase A set-up: DFT-448 table tile (three-term recurrence), its column sums, DFT-64 fragments")
    EPS, BASE, TH, ONE, TO, CS = ST + 4, ST + 5, XF, XF + 8, XF + 12, AC1
    a(f"""s_and_b32 s25, s3, 1
    s_lshl_b32 s25, s25, 2
    v_and_b32 v{T0}, 3, v{N}
    v_add_u32 v{T0}, s25, v{T0}
    v_lshrrev_b32 v{T1}, 2, v{N}
    s_mul_i32 s26, s22, 28
    s_add_u32 s26, s26, 1
    v_mad_u32_u24 v{T1}, v{T1}, 7, v{T0}
    v_add_u32 v{T1}, s26, v{T1}
    v_cmp_ne_u32 vcc, 7, v{T0}
    s_lshr_b32 s25, s3, 1
    s_mul_i32 s25, s25, {fl(0.25)}
    v_cndmask_b32 v{T1}, 0, v{T1}, vcc
    v_cvt_f32_u32 v{T1}, v{T1}
    v_mul_f32 v{EPS}, {fl(1.0/448)}, v{T1}
    v_lshlrev_b32 v{T0}, 3, v{G}
    v_cvt_f32_u32 v{T2}, v{T0}
    v_fma_f32 v{BASE}, v{T2}, v{EPS}, s25
    s_mul_i32 s25, s3, {7*1024}
    s_add_u32 s25, s25, {LW}
    v_add_u32 v{T1}, s25, v{VL}""")
    for i in range(4): a(f"v_mov_b32 v{ONE+i}, 0x3f803f80")
    if OPT["cheb"]:
        C2 = ST + 3; V = WD
        a(f"v_cos_f32 v{C2}, v{EPS}")
        for j in range(7):
            for i in range(2):
                k = 32*j + i
                if k == 0: a(f"v_mov_b32 v{V}, v{BASE}")
                else: a(f"v_fmamk_f32 v{V+8*j+i}, v{EPS}, {fl(float(k))}, v{BASE}")
        a(f"v_add_f32 v{C2}, v{C2}, v{C2}")
        for j in range(7):
            for i in range(2): a(f"v_cos_f32 v{V+8*j+i}, v{V+8*j+i}")
        for i in range(2, 8):
            for j in range(7):
                a(f"v_fma_f32 v{V+8*j+i}, v{C2}, v{V+8*j+i-1}, -v{V+8*j+i-2}")
        for j in range(7):
            o = V + 56 + 4*j
            for i in range(4): a(f"v_cvt_pk_bf16_f32 v{o+i}, v{V+8*j+2*i}, v{V+8*j+2*i+1}")
            a(f"ds_write_b128 v{T1}, {v4(o)} offset:{j*1024}")
            a(f"v_mfma_f32_16x16x32_bf16 {v4(CS)}, {v4(o)}, {v4(ONE)}, {'0' if j == 0 else v4(CS)}")
    else:
      for j in range(7):
        trig_block(a, 8, 32*j, EPS, BASE, TH, False)
        o = TO + 4*(j & 1)
        for i in range(4): a(f"v_cvt_pk_bf16_f32 v{o+i}, v{TH+2*i}, v{TH+2*i+1}")
        a(f"ds_write_b128 v{T1}, {v4(o)} offset:{j*1024}")
        a(f"v_mfma_f32_16x16x32_bf16 {v4(CS)}, {v4(o)}, {v4(ONE)}, {'0' if j == 0 else v4(CS)}")
    a(f"""v_lshrrev_b32 v{ST}, 1, v{N}
    s_lshl_b32 s25, s3, 3
    v_add_u32 v{ST}, s25, v{ST}
    v_and_b32 v{ST+2}, 1, v{N}
    v_lshlrev_b32 v{VUS}, 16, v{ST}
    v_lshl_add_u32 v{VUS}, v{ST+2}, 6, v{VUS}
    v_lshl_add_u32 v{VUS}, v{G}, 4, v{VUS}
    s_lshl_b32 s25, s3, 6
    v_lshlrev_b32 v{T0}, 4, v{G}
    v_add_u32 v{VCS}, {LCS}, v{T0}
    v_add_u32 v{T1}, s25, v{VCS}
    v_lshlrev_b32 v{SG2+1}, 31, v{G}
    v_or_b32 v{SG2+1}, 1.0, v{SG2+1}
    v_xor_b32 v{SG2}, 0x80000000, v{SG2+1}
    v_pk_fma_f32 {v2(CS)}, {v2(CS)}, {v2(SG2)}, {v2(CS)}
    v_pk_fma_f32 {v2(CS+2)}, {v2(CS+2)}, {v2(SG2)}, {v2(CS+2)}
    ds_write_b128 v{T1}, {v4(CS)}""")
    if OPT["b1"] == 2:
        a(f"""v_mov_b32 v{T1}, {LTAG + 4}
        v_mov_b32 v{T2}, 1
        s_waitcnt lgkmcnt(0)
        s_mov_b64 exec, 1
        ds_add_u32 v{T1}, v{T2}
        s_mov_b64 exec, -1""")
        w64(a, WC)
        a(f"""Lwsync:
        ds_read_b32 v{T2}, v{T1}
        s_waitcnt lgkmcnt(0)
        v_readfirstlane_b32 s25, v{T2}
        s_cmp_lt_u32 s25, 4
        s_cbranch_scc1 Lwsync
        v_add_u32 v{T2}, {LW}, v{VL}""")
        for f in range(28): a(f"ds_read_b128 {v4(WD+4*f)}, v{T2} offset:{f*1024}")
        for i in range(8): a(f"v_xor_b32 v{WNS+i}, 0x80008000, v{WSN+i}")
    if OPT["b1"] == 1:
        a(f"v_add_u32 v{T2}, {LW}, v{VL}\ns_waitcnt lgkmcnt(0)\ns_barrier")
        for f in range(28): a(f"ds_read_b128 {v4(WD+4*f)}, v{T2} offset:{f*1024}")
    if OPT["pf"] == 4:
        a("s_waitcnt lgkmcnt(0)\ns_cmp_eq_u32 s20, 7\ns_cbranch_scc1 Lnpf4")
        prefetch(a, 4, XF, XF + 1)
        a("Lnpf4:")
    if not OPT["w64l"] and OPT["b1"] != 2:
        w64(a, WC)
        for i in range(8): a(f"v_xor_b32 v{WNS+i}, 0x80008000, v{WSN+i}")
    stamp(a, 10, True)
    a(f"v_add_u32 v{T2}, {LW}, v{VL}")
    a(f"""s_lshl_b32 s25, s3, 4
    v_add_u32 v{ST}, s25, v{N}
    v_mul_u32_u24 v{VXR}, {PH}, v{ST}
    v_add_u32 v{VXR}, v{T0}, v{VXR}
    v_mul_u32_u24 v{VFW}, {PF}, v{ST}
    v_lshl_add_u32 v{VFW}, v{G}, 3, v{VFW}
    v_add_u32 v{VFW}, {LF}, v{VFW}
    v_lshrrev_b32 v{ST}, 2, v{N}
    v_lshl_add_u32 v{ST}, v{G}, 3, v{ST}
    v_mul_u32_u24 v{VFR}, {PF}, v{ST}
    v_and_b32 v{ST}, 3, v{N}
    v_lshl_add_u32 v{VFR}, v{ST}, 3, v{VFR}
    v_add_u32 v{VFR}, {LF}, v{VFR}
    s_lshl_b32 s23, s21, 11
    s_lshl_b32 s24, s22, 8
    s_add_u32 s23, s23, s24""")
    for r in range(4):
        a(f"s_mov_b32 s{30+2*r}, {hex(((1<<r)|(1<<(20+r))) & 0xffffffff)}")
        a(f"s_mov_b32 s{31+2*r}, {hex(((1<<(8+r))|(1<<(28+r))) & 0xffffffff)}")
    a("s_mov_b64 s[24:25], 0xffff\ns_mov_b32 s38, 0\ns_cmp_eq_u32 s22, 7\ns_cselect_b32 s39, 0xffff0000, 0")

def a_main(a):
    a("; === phase A: DFT-448 GEMM (two K halves) + row statistics, LDS transpose, DFT-64, U stores")
    q = LdsQ(a)
    def rdx(j, hf): q.read(f"ds_read_b128 {v4(XF+4*j)}, v{VXR} offset:{64*j + hf*LXH}", XF+4*j)
    def rdw(j):
        for T in range(4): q.read(f"ds_read_b128 {v4(WD+4*(7*T+j))}, v{T2} offset:{(7*T+j)*1024}", WD+4*(7*T+j))
    if OPT["b1"]:
        for j in range(7): rdx(j, 0)
    else:
        for j in range(3): rdx(j, 0); rdw(j)
    BJ = OPT["barj"]
    Q, S, M, RS = ST, ST+1, ST+2, ST+4
    def mf(A, T, j, first): a(f"v_mfma_f32_16x16x32_bf16 {v4(A+4*T)}, {v4(WD+4*(7*T+j))}, {v4(XF+4*j)}, {'0' if first else v4(A+4*T)}")
    def gram(j, first): a(f"v_mfma_f32_16x16x32_bf16 {v4(GR)}, {v4(XF+4*j)}, {v4(XF+4*j)}, {'0' if first else v4(GR)}")
    for j in range(7):
        q.need(XF + 4*j)
        gram(j, j == 0)
        for T in range(4):
            q.need(WD+4*(7*T+j))
            mf(AC1, T, j, j == 0)
        if j + 3 < 7 and not OPT["b1"]: rdx(j + 3, 0); rdw(j + 3)
        if j == BJ:
            stamp(a, 11)
            a("s_barrier")
            for k in range(BJ + 1): rdx(k, 1)
        elif j > BJ: rdx(j, 1)
    CS = WD + 28
    for j in range(7):
        q.need(XF + 4*j)
        gram(j, False)
        mf(AC2, 1, j, j == 0)
    for T in range(4): q.read(f"ds_read_b128 {v4(CS+4*T)}, v{VCS} offset:{64*T}", CS+4*T)
    stats = [None, None, f"v_mov_b32 v{Q}, 0", f"v_mov_b32 v{V_EP}, {LTAG}"]
    stats += [f"v_cndmask_b32 v{Q}, v{Q}, v{GR+r}, s[{30+2*r}:{31+2*r}]" for r in range(4)]
    stats += [f"v_add_f32 v{S}, v{AC1+7}, v{AC2+7}", f"v_cndmask_b32 v{S}, 0, v{S}, s[24:25]", None, None,
              f"v_permlane32_swap_b32 v{Q}, v{S}", f"v_add_f32 v{Q}, v{Q}, v{S}", f"v_mov_b32 v{S}, v{Q}", None, None,
              f"v_permlane16_swap_b32 v{Q}, v{S}", f"v_add_f32 v{Q}, v{Q}, v{S}", f"v_mov_b32 v{S}, v{Q}", None, None,
              f"v_permlane32_swap_b32 v{Q}, v{S}", f"v_mul_f32 v{M}, {fl(-1.0/448)}, v{S}", f"v_mul_f32 v{Q}, {fl(1.0/448)}, v{Q}",
              f"v_fma_f32 v{Q}, -v{M}, v{M}, v{Q}", f"v_max_f32 v{Q}, 0, v{Q}"]
    rb = [f"v_cvt_pk_bf16_f32 v{Q}, v{Q}, v{Q}", f"v_and_b32 v{Q}, 0xffff0000, v{Q}"]
    if OPT["ln1emu"]:
        stats += rb + [f"v_add_f32 v{Q}, {fl(1e-5)}, v{Q}"] + rb + [f"v_sqrt_f32 v{Q}, v{Q}", None] + rb + [f"v_rcp_f32 v{RS}, v{Q}"]
    else:
        stats += [f"v_add_f32 v{Q}, {fl(1e-5)}, v{Q}", f"v_rsq_f32 v{RS}, v{Q}"]
    k = stats.index(f"v_max_f32 v{Q}, 0, v{Q}") + 1
    stats[k:k] = [f"v_cvt_pk_bf16_f32 v{V_DC}, v{M}, v{M}", f"v_and_b32 v{V_DC}, 0xffff0000, v{V_DC}",
                  f"v_sub_f32 v{V_DC}, v{V_DC}, v{M}", f"v_mul_f32 v{V_DC}, {fl(448.0)}, v{V_DC}"]
    stats += ["WAITCS", f"v_mul_f32 v{M}, v{M}, v{RS}", f"v_mul_f32 v{V_DC}, v{V_DC}, v{RS}"]
    stats += [f"v_mul_f32 v{CS+i}, v{CS+i}, v{M}" for i in range(16)]
    for j in range(7):
        for T in (0, 2, 3):
            mf(AC2, T, j, j == 0)
            for _ in range(2):
                if stats:
                    t = stats.pop(0)
                    if t == "WAITCS": q.need(CS, 16)
                    elif t: a(t)
    for p in range(2): a(f"v_pk_fma_f32 {v2(AC1+4+2*p)}, {v2(AC2+4+2*p)}, {v2(SG2)}, {v2(AC1+4+2*p)}")
    for t in stats:
        if t == "WAITCS": q.need(CS, 16)
        elif t: a(t)
    stamp(a, 3)
    for T in (0, 2, 3):
        for p in range(2):
            x = AC1 + 4*T + 2*p
            a(f"v_pk_fma_f32 {v2(x)}, {v2(AC2+4*T+2*p)}, {v2(SG2)}, {v2(x)}")
    for T in (1, 0, 2, 3):
        for p in range(2):
            x = AC1 + 4*T + 2*p
            a(f"v_pk_fma_f32 {v2(x)}, {v2(x)}, {v2(RS)}, {v2(CS+4*T+2*p)} op_sel_hi:[1,0,1]")
    a(f"v_cndmask_b32 v{AC1+14}, v{AC1+14}, v{V_DC}, s[38:39]")
    for T in (1, 0, 2, 3):
        for p in range(2):
            x = AC1 + 4*T + 2*p
            a(f"v_cvt_pk_f16_f32 v{AC2+2*T+p}, v{x}, v{x+1}")
        a(f"ds_write_b64 v{VFW}, {v2(AC2+2*T)} offset:{32*T}")
    if OPT["w64l"]: a(f"s_lshl_b32 s26, s3, 12\ns_add_u32 s26, s26, {LWT}\nv_add_u32 v{T1}, s26, v{VL}")
    stamp(a, 5, 5)
    a(f"s_waitcnt lgkmcnt(0)")
    stamp(a, 6, 5)
    a(f"s_barrier")
    stamp(a, 7, 5)
    if OPT["w64l"]:
        for i in (0, 2, 4, 1, 3, 5): a(f"ds_read_b128 {v4(WC+4*i)}, v{T1} offset:{(i % 4 if i < 4 else i - 2 + 2) * 0 + i * 0 + [0, 1024, 2048, 3072, 16384, 17408][i]}")
    FA = WD + 48
    fa = lambda T, ks: FA + (2*T + ks) * 4
    q = LdsQ(a)
    for T in range(2):
        for ks in range(2):
            for TT in (T, T + 2):
                for h in range(2):
                    q.read(f"ds_read_b64_tr_b16 {v2(fa(TT, ks)+2*h)}, v{VFR} offset:{(32*ks+4*h)*PF+32*TT}", fa(TT, ks)+2*h, 2)
    q.read(f"ds_read_b32 v{V_EP}, v{V_EP}", V_EP, 1)
    UR = AC1; UI = AC1 + 8; o = XF
    tagcalc = [f"v_add_u32 v{M}, 1, v{V_EP}", f"s_mov_b32 s98, {HASH}", f"v_mul_lo_u32 v{M}, v{M}, s98"]
    for T in range(2):
        for ks in range(2):
            fr = v4(fa(T, ks)); fi = v4(fa(T + 2, ks))
            q.need(fa(T, ks))
            if T == 0 and ks == 0: stamp(a, 8, 5)
            a(f"v_mfma_f32_16x16x32_f16 {v4(UR+4*T)}, {fr}, {v4(WC+4*ks)}, {'0' if ks == 0 else v4(UR+4*T)}")
            a(f"v_mfma_f32_16x16x32_f16 {v4(UI+4*T)}, {fr}, {v4(WNS+4*ks)}, {'0' if ks == 0 else v4(UI+4*T)}")
            q.need(fa(T + 2, ks))
            a(f"v_mfma_f32_16x16x32_f16 {v4(UR+4*T)}, {fi}, {v4(WSN+4*ks)}, {v4(UR+4*T)}")
            a(f"v_mfma_f32_16x16x32_f16 {v4(UI+4*T)}, {fi}, {v4(WC+4*ks)}, {v4(UI+4*T)}")
            if T == 1 and ks == 1:
                q.need(V_EP, 1)
                for t in tagcalc: a(t)
    stamp(a, 9, 5)
    for r in range(4): a(f"v_cvt_pk_f16_f32 v{o+r}, v{UR+r}, v{UI+r}")
    a(f"buffer_store_dwordx4 {v4(o)}, v{VUS}, s[12:15], s23 offen {SC}")
    stamp(a, 10, 5)
    a(f"v_add3_u32 v{Q}, v{o}, v{o+1}, v{o+2}")
    a(f"v_sub_u32 v{M}, v{M}, v{o+3}")
    a(f"v_sub_u32 v{M}, v{M}, v{Q}")
    for r in range(3): a(f"v_cvt_pk_f16_f32 v{o+4+r}, v{UR+4+r}, v{UI+4+r}")
    a(f"""v_add3_u32 v{Q}, v{o+4}, v{o+5}, v{o+6}
    v_sub_u32 v{o+7}, v{M}, v{Q}
    buffer_store_dwordx4 {v4(o+4)}, v{VUS}, s[12:15], s23 offen offset:128 {SC}""")

def b_ids(a):
    a(f"""s_and_b32 s92, s2, 7
    s_lshr_b32 s93, s2, 6
    s_lshl_b32 s93, s93, 3
    s_or_b32 s92, s92, s93
    s_bfe_u32 s93, s2, 0x10003
    s_bfe_u32 s96, s2, 0x20004
    s_sub_u32 s95, 64, s92
    s_cmp_eq_u32 s92, 0
    s_cselect_b32 s95, 32, s95
    s_cselect_b32 s94, 0, 1
    s_xor_b32 s94, s94, s93
    s_cmp_eq_u32 s93, 0
    s_cselect_b32 s95, s92, s95
    s_lshl_b32 s96, s96, 9
    s_add_u32 s95, s95, s96
    s_lshl_b32 s96, s20, 6
    s_add_u32 s96, s96, s95
    s_mul_i32 s97, s96, 896""")

def b_setup(a):
    srd(a, 12, 6, WS_SIZE)
    srd(a, 52, 48, XB)
    srd(a, 16, 40, 896)
    b_ids(a)

def b_loads(a):
    a(f"""s_mov_b32 s26, {WS_EPOCH}
    v_mov_b32 v{T0}, 0
    buffer_load_dword v{V_EP}, v{T0}, s[12:15], s26 offen {SC}
    buffer_load_dwordx4 {v4(B_WR)}, v{VL}, s[16:19], 0 offen
    buffer_load_dwordx4 {v4(B_XR)}, v{VL}, s[8:11], s97 offen""")

def pro(a, part=0):
    a("; === address / twiddle set-up for phases B and C")
    EPS, BASE, TH, AF, AD = P_EPS, P_BASE, P_TH, B_AF, B_AD
    a(f"""s_lshl_b32 s28, s92, 16
    s_lshl_b32 s29, s20, 8
    s_add_u32 s28, s28, s29
    s_add_u32 s29, s28, 4096
    s_add_u32 s30, s28, 32768
    s_add_u32 s31, s28, 36864
    v_lshlrev_b32 v{B_VU}, 13, v{G}
    v_lshl_add_u32 v{B_VU}, v{N}, 4, v{B_VU}""") if part != 2 else None
    if part == 1: return
    a(f"""v_and_b32 v{T0}, 7, v{N}
    v_lshlrev_b32 v{T0}, 6, v{T0}
    v_add_u32 v{T0}, s95, v{T0}
    v_cvt_f32_u32 v{T0}, v{T0}
    v_cmp_gt_u32 vcc, 8, v{N}
    v_mul_f32 v{EPS}, {fl(1.0/2048)}, v{T0}
    v_lshlrev_b32 v{T1}, 2, v{G}
    v_cndmask_b32 v{EPS}, -v{EPS}, v{EPS}, vcc
    v_cvt_f32_u32 v{T1}, v{T1}
    v_mul_f32 v{BASE}, v{T1}, v{EPS}""")
    for ks in range(2):
        trig_block(a, 4, 16*ks, EPS, BASE, TH, True)
        for i in range(4):
            a(f"v_cvt_pk_f16_f32 v{AF+4*ks+i}, v{TH+i}, v{TH+4+i}")
    a(f"""v_lshrrev_b32 v{T0}, 3, v{N}
    v_and_b32 v{T1}, 3, v{N}
    v_mul_u32_u24 v{T1}, 7, v{T1}
    v_lshl_add_u32 v{T1}, v{T0}, 2, v{T1}
    s_mul_i32 s32, s20, 28
    s_add_u32 s32, s32, 1
    v_add_u32 v{T1}, s32, v{T1}
    v_sub_u32 v{T2}, 448, v{T1}
    v_cmp_gt_u32 s[34:35], 2, v{G}
    v_mov_b32 v{TH}, s93
    v_mov_b32 v{TH+1}, s94
    v_cndmask_b32 v{T2}, v{T2}, v{T1}, s[34:35]
    v_cndmask_b32 v{TH}, v{TH+1}, v{TH}, s[34:35]
    v_bfe_u32 v{TH+1}, v{N}, 2, 1
    v_cmp_eq_u32 s[60:61], v{TH}, v{TH+1}
    v_and_b32 v{TH+2}, 1, v{G}
    v_mul_u32_u24 v{TH+2}, {4*PY}, v{TH+2}
    v_add_lshl_u32 v{AD}, v{TH+2}, v{T2}, 2
    v_mov_b32 v{TH+3}, -4
    v_cndmask_b32 v{TH+3}, v{TH+3}, 4, s[34:35]
    v_add_u32 v{AD+1}, v{AD}, v{TH+3}
    v_add_u32 v{AD+2}, v{AD+1}, v{TH+3}
    v_add_u32 v{AD+3}, v{AD+2}, v{TH+3}
    v_cmp_eq_u32 s[50:51], 0, v{T0}
    s_and_b64 s[50:51], s[50:51], s[60:61]
    v_mov_b32 v{TH}, 222
    v_cmp_eq_u32 s[62:63], v{TH}, v{T1}
    s_and_b64 s[62:63], s[62:63], s[60:61]
    s_andn2_b64 s[36:37], s[62:63], s[34:35]
    v_lshlrev_b32 v{TH+2}, 2, v{TH+2}
    v_add_u32 v{TH}, {448*4}, v{TH+2}
    v_cndmask_b32 v{AD+2}, v{AD+2}, v{TH}, s[36:37]
    v_add_u32 v{TH}, {449*4}, v{TH+2}
    v_add_u32 v{B_AD4}, {450*4}, v{TH+2}
    v_cndmask_b32 v{B_AD4}, v{B_AD4}, v{TH}, s[34:35]
    s_mul_i32 s33, s20, {PY*4}
    v_lshlrev_b32 v{B_VY}, 5, v{LANE}
    v_add_u32 v{B_VY}, s33, v{B_VY}
    s_add_u32 s33, s33, {448*4}
    v_mov_b32 v{B_AD4+1}, s33""")
    for i in range(8):
        a(f"v_alignbit_b32 v{B_A2+i}, v{AF+i}, v{AF+i}, 16")
        a(f"v_xor_b32 v{B_A2+i}, 0x8000, v{B_A2+i}")
    lim_regs(a, C_L, LANE, T0)
    a(f"""s_lshl_b32 s34, s20, 5
    s_add_u32 s34, s34, {LSEL}
    v_lshlrev_b32 v{T1}, 2, v{LANE}
    v_add_u32 v{C_SW}, s34, v{T1}
    v_add_u32 v{C_SR}, {LSEL}, v{T1}
    v_lshrrev_b32 v{C_KA}, 1, v0
    v_lshlrev_b32 v{C_KA}, {OPT['ksh']}, v{C_KA}
    v_and_b32 v{T0}, 1, v0
    v_lshl_add_u32 v{C_KA}, v{T0}, 4, v{C_KA}
    s_lshl_b32 s34, s20, 6
    s_add_u32 s34, s34, {LSE2}
    v_add_u32 v{C_FW}, s34, v{T1}
    v_lshrrev_b32 v{C_PF}, 3, v{LANE}
    v_and_b32 v{C_FY}, 7, v{LANE}
    v_lshlrev_b32 v{C_FR}, 6, v{C_PF}
    v_lshl_add_u32 v{C_FR}, v{C_FY}, 2, v{C_FR}
    v_add_u32 v{C_FR}, {LSE2}, v{C_FR}
    v_lshlrev_b32 v{C_FY}, 6, v{C_FY}
    v_add_u32 v{C_FY}, {LSE2 + 32}, v{C_FY}
    v_lshlrev_b32 v{C_PF}, 7, v{C_PF}
    s_cmp_ge_u32 s2, 224
    s_cselect_b32 s33, 1024, 0
    s_add_u32 s33, s33, {WS_ROW}
    {"s_and_b32 s27, s2, 7" if OPT['kperm'] else "s_mov_b32 s27, s2"}
    {"s_lshl_b32 s27, s27, 5" if OPT['kperm'] else ""}
    {"s_lshr_b32 s32, s2, 3" if OPT['kperm'] else ""}
    {"s_or_b32 s27, s27, s32" if OPT['kperm'] else ""}
    s_lshl_b32 s27, s27, {OPT['ksh']}
    s_add_u32 s27, s27, {WS_KEYS}
    s_sub_u32 s32, 2047, s96
    {f"v_bfe_u32 v{T0}, v0, 1, 5" if OPT['kperm'] else f"v_lshrrev_b32 v{T0}, 1, v0"}
    {f"v_lshlrev_b32 v{T0}, 3, v{T0}" if OPT['kperm'] else ""}
    {f"v_or_b32 v{T0}, s20, v{T0}" if OPT['kperm'] else ""}
    v_and_b32 v{T1}, 7, v{T0}
    v_lshrrev_b32 v{T2}, 6, v{T0}
    v_lshl_or_b32 v{T1}, v{T2}, 3, v{T1}
    v_sub_u32 v{T2}, 64, v{T1}
    v_cmp_eq_u32 vcc, 0, v{T1}
    v_bfe_u32 v{TH}, v{T0}, 3, 1
    v_cndmask_b32 v{T2}, v{T2}, 32, vcc
    v_cmp_eq_u32 vcc, 0, v{TH}
    v_bfe_u32 v{TH}, v{T0}, 4, 2
    v_cndmask_b32 v{T1}, v{T2}, v{T1}, vcc
    v_lshl_add_u32 v{T1}, v{TH}, 9, v{T1}
    v_and_b32 v{T0}, 1, v0
    v_lshl_add_u32 v{T1}, v{T0}, 8, v{T1}
    v_sub_u32 v{C_IX}, 2047, v{T1}
    v_subrev_u32 v{C_IX+1}, 64, v{C_IX}
    v_subrev_u32 v{C_IX+2}, 128, v{C_IX}
    v_subrev_u32 v{C_IX+3}, 192, v{C_IX}""")
    gu_prep(a)

def pro2(a):
    XU, WU, S1, S2, S3 = B_XU, B_WU, P_TH, P_TH + 2, P_TH + 4
    unpack8(a, WU, B_WR)
    a(f"""v_pk_add_f32 {v2(S1)}, {v2(WU)}, {v2(WU+2)}
    v_pk_add_f32 {v2(S2)}, {v2(WU+4)}, {v2(WU+6)}
    v_pk_add_f32 {v2(S1)}, {v2(S1)}, {v2(S2)}
    v_add_f32 v{S1}, v{S1}, v{S1+1}
    v_mov_b32 v{S2}, 0
    v_mov_b32 v{S3}, 0""")
    reduce3(a, S1, S2, S3, T0, 58, 39, 39)
    unpack8(a, XU, B_XR)
    for k in (B_S1, B_S1+1, B_S2, B_S2+1, B_S3, B_S3+1): a(f"v_mov_b32 v{k}, 0")

def anyones(a, regs_, t):
    regs_ = list(regs_)
    a(f"v_max_u32 v{t}, v{regs_[0]}, v{regs_[1]}")
    rest = regs_[2:]
    while len(rest) >= 2:
        a(f"v_max3_u32 v{t}, v{t}, v{rest[0]}, v{rest[1]}"); rest = rest[2:]
    if rest: a(f"v_max_u32 v{t}, v{t}, v{rest[0]}")
    a(f"v_cmp_eq_u32 vcc, -1, v{t}")

def wave_sum(a, v, sd):
    for k in (8, 4, 2, 1):
        a(f"v_add_u32_dpp v{v}, v{v}, v{v} row_ror:{k} row_mask:0xf bank_mask:0xf")
    for i in range(4): a(f"v_readlane_b32 s{sd+i}, v{v}, {16*i}")
    a(f"s_add_u32 s{sd}, s{sd}, s{sd+1}\ns_add_u32 s{sd+2}, s{sd+2}, s{sd+3}\ns_add_u32 s{sd}, s{sd}, s{sd+2}")

def publish_row(a):
    a("; publish this row (ln2 and out values, each closed by a checksum word)")
    a(f"""s_lshl_b32 s34, s96, 11
    s_add_u32 s34, s34, {WS_ROW}
    v_mov_b32 v{T0}, 0
    v_mov_b32 v{T1}, 0
    v_writelane_b32 v{C_LN}, 0, 56
    v_writelane_b32 v{C_OUT}, 0, 56
    s_mov_b32 exec_hi, 0x01ffffff
    v_add3_u32 v{T0}, v{C_LN}, v{C_LN+1}, v{C_LN+2}
    v_add3_u32 v{T1}, v{C_OUT}, v{C_OUT+1}, v{C_OUT+2}
    v_add_u32 v{T0}, v{T0}, v{C_LN+3}
    v_add_u32 v{T1}, v{T1}, v{C_OUT+3}
    s_mov_b32 exec_hi, -1""")
    wave_sum(a, T0, 36)
    a(f"s_sub_u32 s35, s98, s36\nv_writelane_b32 v{C_LN}, s35, 56")
    wave_sum(a, T1, 36)
    a(f"""s_sub_u32 s35, s98, s36
    v_writelane_b32 v{C_OUT}, s35, 56
    s_mov_b32 exec_hi, 0x01ffffff
    buffer_store_dwordx4 {v4(C_LN)}, v{VL}, s[12:15], s34 offen {SC}
    buffer_store_dwordx4 {v4(C_OUT)}, v{VL}, s[12:15], s34 offen offset:1024 {SC}
    s_mov_b32 exec_hi, -1""")

def fetch_row_issue(a, dst):
    a(f"""v_readlane_b32 s34, v{C_K}, s20
    s_andn2_b32 s34, 0x7ff, s34
    s_lshl_b32 s34, s34, 11
    s_add_u32 s34, s34, s33
    s_mov_b32 exec_hi, 0x01ffffff
    buffer_load_dwordx4 {v4(dst)}, v{VL}, s[12:15], s34 offen {SC}
    s_mov_b32 exec_hi, -1""")

def fetch_row_finish(a, dst, ldsaddr):
    _lbl[0] += 1
    L = f"Lrow{_lbl[0]}"
    a(f"""s_mul_i32 s29, s20, {PX}
    s_add_u32 s29, s29, {LXS}
    v_add_u32 v{ldsaddr}, s29, v{VL}
    s_mov_b32 s57, {SPIN}
    {L}:
    v_mov_b32 v{T0}, 0
    s_mov_b32 exec_hi, 0x01ffffff
    s_waitcnt vmcnt(0)
    ds_write_b128 v{ldsaddr}, {v4(dst)}
    v_add3_u32 v{T0}, v{dst}, v{dst+1}, v{dst+2}
    v_add_u32 v{T0}, v{T0}, v{dst+3}
    s_mov_b32 exec_hi, -1""")
    wave_sum(a, T0, 36)
    a(f"""s_cmp_eq_u32 s36, s98
    s_cbranch_scc1 {L}d
    s_mov_b32 exec_hi, 0x01ffffff
    s_waitcnt lgkmcnt(0)
    buffer_load_dwordx4 {v4(dst)}, v{VL}, s[12:15], s34 offen {SC}
    s_mov_b32 exec_hi, -1
    s_sub_u32 s57, s57, 1
    s_cbranch_scc0 {L}""")
    timeout_note(a, _lbl[0])
    a(f"{L}d:")

def gu_prep(a):
    srd(a, 16, 42, 448*3584)
    a(f"""v_mul_u32_u24 v{V_GU}, 3584, v0
    s_and_b32 s100, s2, 7
    s_mul_i32 s100, s100, 28
    s_lshr_b32 s101, s2, 3
    s_add_u32 s100, s100, s101
    s_lshl_b32 s26, s100, 4
    s_lshl_b32 s101, s20, 10
    s_add_u32 s101, s101, {LWT}
    s_and_b32 s45, s45, 0xffff
    s_cmp_ge_u32 s2, 224
    s_cselect_b32 s24, 7, s20""")

def gu_dma(a):
    a(f"""s_cmp_eq_u32 s24, 7
    s_cbranch_scc1 Lngu
    s_mov_b32 m0, s101
    s_add_u32 s101, s101, 8192
    buffer_load_dwordx4 v{V_GU}, s[16:19], s26 offen lds
    s_mov_b32 s16, s44
    s_mov_b32 m0, s101
    s_mov_b32 s17, s45
    buffer_load_dwordx4 v{V_GU}, s[16:19], s26 offen lds
    Lngu:""")

def wd_dma(a, j0, j1, L):
    if j0 == j1: return
    a(f"""s_cmp_lt_u32 s2, 224
    s_cbranch_scc1 {L}
    s_and_b32 s50, s2, 7
    s_cmp_eq_u32 s50, 7
    s_cbranch_scc1 {L}
    s_lshl_b32 s50, s50, 7
    s_bfe_u32 s51, s2, 0x20003
    s_lshl_b32 s51, s51, 5
    s_add_u32 s51, s51, s50""")
    srd(a, 16, 46, 1792*896)
    a(f"""v_lshrrev_b32 v{T1}, 1, v{LANE}
    v_mul_u32_u24 v{T1}, 896, v{T1}
    v_and_b32 v{T2}, 1, v{LANE}
    v_lshl_add_u32 v{T1}, v{T2}, 4, v{T1}
    s_mul_i32 s23, s20, {224*896}
    s_add_u32 s23, s23, s51
    s_add_u32 s23, s23, {j0*32*896}
    s_mul_i32 s25, s20, 7168
    s_add_u32 s25, s25, {LWT + j0*1024}""")
    for j in range(j0, j1):
        a(f"s_mov_b32 m0, s25")
        a(f"s_add_u32 s25, s25, 1024")
        a(f"buffer_load_dwordx4 v{T1}, s[16:19], s23 offen lds")
        a(f"s_add_u32 s23, s23, {32*896}")
    a(f"{L}:")

def b_main(a):
    a("; === phase B: fetch + validate U, 32-term DFT stage, h / LN2 / router key")
    R, AF, ACC, XU, WU, AD, TH = B_R, B_AF, B_ACC, B_XU, B_WU, B_AD, B_TH
    S1, S2, S3 = B_S1, B_S2, B_S3
    if OPT["sl_u0"]: a(f"s_sleep {OPT['sl_u0']}")
    def uld():
        for ks in range(2):
            for i in range(4):
                a(f"buffer_load_dwordx4 {v4(R+16*ks+4*i)}, v{B_VU}, s[12:15], s{28+2*ks+(i>>1)} offen offset:{2048*(i&1)} {SC}")
    a(f"s_mov_b32 s57, {SPIN}")
    uld()
    if OPT["prosplit"]: pro(a, 2)
    a("s_waitcnt vmcnt(8)")
    pro2(a)
    def swaps(ks):
        b = R + 16*ks
        for i in range(4):
            for j in range(i+1, 4):
                a(f"v_swap_b32 v{b+4*i+j}, v{b+4*j+i}")
    def mm(ks, dpp):
        for j in range(4):
            c = "0" if ks == 0 else v4(ACC+4*j)
            a(f"v_mfma_f32_16x16x32_f16 {v4(ACC+4*j)}, {v4(AF+4*ks)}, {v4(R+16*ks+4*j)}, {c}")
            if dpp: a(f"v_add_u32_dpp v{T0}, v{T0}, v{T0} row_ror:{8 >> j} row_mask:0xf bank_mask:0xf")
        a(f"v_mfma_f32_16x16x32_f16 {v4(TH)}, {v4(B_A2+4*ks)}, {v4(R+16*ks+8)}, {'0' if ks == 0 else v4(TH)}")
    if not OPT["part"]:
        a("s_branch Lupw\nLupoll:")
        uld()
        a("Lupw:")
    for ks in range(2):
        a(f"s_waitcnt vmcnt({4-4*ks})")
        b = R + 16*ks
        for i in range(8):
            if ks == 0 and i == 0: a(f"v_add_u32 v{T0}, v{b}, v{b+1}")
            else: a(f"v_add3_u32 v{T0}, v{T0}, v{b+2*i}, v{b+2*i+1}")
        swaps(ks)
        mm(ks, ks == 1)
    a(f"""v_cmp_ne_u32 vcc, s99, v{T0}
    s_cmp_eq_u64 vcc, 0""")
    if OPT["part"]:
        a("s_cbranch_scc0 Lupart")
        def part():
            C4 = B_TH
            a("Lupart:\ns_lshl_b32 s34, s98, 4")
            swaps(0); swaps(1)
            a("Lupchk:")
            for i in range(4):
                a(f"v_add3_u32 v{C4+i}, v{R+4*i}, v{R+4*i+1}, v{R+4*i+2}")
            for i in range(4):
                a(f"v_add3_u32 v{C4+i}, v{C4+i}, v{R+4*i+3}, v{R+16+4*i}")
            for i in range(4):
                a(f"v_add3_u32 v{C4+i}, v{C4+i}, v{R+16+4*i+1}, v{R+16+4*i+2}")
            for i in range(4):
                a(f"v_add_u32 v{C4+i}, v{C4+i}, v{R+16+4*i+3}")
            for k in (8, 4, 2, 1):
                for i in range(4):
                    a(f"v_add_u32_dpp v{C4+i}, v{C4+i}, v{C4+i} row_ror:{k} row_mask:0xf bank_mask:0xf")
            MK = ["s[36:37]", "s[38:39]", "s[24:25]", "vcc"]
            for i in range(4): a(f"v_cmp_ne_u32 {MK[i]}, s34, v{C4+i}")
            a(f"""s_or_b64 s[26:27], s[36:37], s[38:39]""".replace("s[26:27]", "s[100:101]"))
            a(f"""s_or_b64 s[100:101], s[100:101], s[24:25]
            s_or_b64 s[100:101], s[100:101], vcc
            s_cbranch_scc0 Lupgo""")
            if OPT["sl_r"]: a(f"s_sleep {OPT['sl_r']}")
            for i in range(4):
                a(f"s_cmp_eq_u64 {MK[i]}, 0\ns_cbranch_scc1 Lupok{i}")
                for ks in range(2):
                    a(f"buffer_load_dwordx4 {v4(R+16*ks+4*i)}, v{B_VU}, s[12:15], s{28+2*ks+(i>>1)} offen offset:{2048*(i&1)} {SC}")
                a(f"Lupok{i}:")
            a(f"""s_waitcnt vmcnt(0)
            s_sub_u32 s57, s57, 1
            s_cbranch_scc0 Lupchk
            Lupgo:""")
            for ks in range(2):
                swaps(ks); mm(ks, False)
            a("s_nop 7\ns_branch Lupolld")
        TAIL.append(part)
    else:
        a(f"""s_cbranch_scc1 Lupolld
        s_sub_u32 s57, s57, 1
        s_cbranch_scc0 Lupoll""")
        timeout_note(a, 9)
    a("Lupolld:")
    stamp(a, 6)
    if OPT["stamps"] == 3: a(f"s_sub_u32 s{64+2*11}, {SPIN+1}, s57")
    for j in range(4):
        if j in (0, 3): a(f"s_mov_b64 exec, {['s[60:61]', '', '', 's[50:51]'][j]}")
        for r in (0, 2):
            a(f"ds_write2st64_b32 v{AD+j}, v{ACC+4*j+r}, v{ACC+4*j+r+1} offset0:{r*PY//64} offset1:{(r+1)*PY//64}")
    a("s_cmp_lg_u32 s20, 7\ns_cbranch_scc1 Lndc\ns_mov_b64 exec, s[62:63]")
    for r in (0, 2):
        a(f"ds_write2st64_b32 v{B_AD4}, v{TH+r}, v{TH+r+1} offset0:{r*PY//64} offset1:{(r+1)*PY//64}")
    a("Lndc:\ns_mov_b64 exec, -1")
    gu_dma(a)
    wd_dma(a, 0, OPT['wdsplit'], 'Lnwd0')
    a("""s_mov_b32 exec_hi, 0x00ffffff
    s_waitcnt lgkmcnt(0)
    s_barrier""")
    H = R
    a(f"ds_read_b128 {v4(TH)}, v{B_AD4+1}\nds_read_b128 {v4(H)}, v{B_VY} offset:{LY}\nds_read_b128 {v4(H+4)}, v{B_VY} offset:{LY+16}")
    a("s_mov_b64 s[36:37], 1\ns_mov_b64 s[38:39], 0x10000001")
    for hf in range(2):
        a(f"s_waitcnt lgkmcnt({1-hf})")
        if hf == 0:
            a(f"""v_add_f32 v{TH+1}, v{TH+1}, v{TH+2}
            v_add_f32 v{TH}, v{TH}, v{H}
            v_cndmask_b32 v{TH}, v{TH}, v{TH+1}, s[36:37]
            v_mul_f32 v{TH}, 0.5, v{TH}
            v_cndmask_b32 v{H}, v{H}, v{TH}, s[38:39]""")
        for p in range(2):
            x = 4*hf + 2*p
            a(f"v_pk_add_f32 {v2(H+x)}, {v2(H+x)}, {v2(XU+x)}")
        for p in range(2):
            x = 4*hf + 2*p
            a(f"v_pk_add_f32 {v2(S1)}, {v2(S1)}, {v2(H+x)}")
            a(f"v_pk_fma_f32 {v2(S2)}, {v2(H+x)}, {v2(H+x)}, {v2(S2)}")
            a(f"v_pk_fma_f32 {v2(S3)}, {v2(H+x)}, {v2(WU+x)}, {v2(S3)}")
    a(f"""s_mov_b32 exec_hi, -1
    v_add_f32 v{S1}, v{S1}, v{S1+1}
    v_add_f32 v{S2}, v{S2}, v{S2+1}
    v_add_f32 v{S3}, v{S3}, v{S3+1}""")
    reduce3(a, S1, S2, S3, T0, 37, 38, 39)
    M, V, SD, RS, C0, KEY = TH, TH+1, TH+2, TH+4, TH+6, C_KEY
    a(f"""v_mov_b32 v{V}, {fl(1.0/448)}
    v_mul_f32 v{M}, s37, v{V}
    v_mul_f32 v{V}, s38, v{V}
    v_mov_b32 v{KEY}, s39
    v_fma_f32 v{V}, -v{M}, v{M}, v{V}
    v_fma_f32 v{KEY}, -v{M}, s58, v{KEY}
    v_max_f32 v{SD}, 0, v{V}
    v_add_f32 v{V}, {fl(1e-5)}, v{SD}""")
    a(f"""v_rsq_f32 v{RS}, v{V}
    s_lshl_b32 s34, s20, 2
    v_mov_b32 v{T2}, s34
    v_mul_f32 v{KEY}, v{KEY}, v{RS}
    v_cvt_pk_bf16_f32 v{KEY}, v{KEY}, v{KEY}
    v_ashrrev_i32 v{T0}, 31, v{KEY}
    v_or_b32 v{T0}, 0x80000000, v{T0}
    v_xor_b32 v{KEY}, v{KEY}, v{T0}
    v_and_b32 v{KEY}, 0xffff0000, v{KEY}
    v_or_b32 v{KEY}, s32, v{KEY}
    ds_write_b32 v{T2}, v{KEY} offset:{LKEY}
    v_mov_b32 v{C_STK}, 0xffff
    v_lshlrev_b32 v{T1}, 2, v{LANE}
    v_mov_b32 v{T2}, {LKEY}
    s_waitcnt lgkmcnt(0)
    s_barrier
    s_cmp_lg_u32 s20, 0
    s_cbranch_scc1 Lnokey
    s_mov_b64 exec, 0xff
    ds_read_b32 v{T0}, v{T1} offset:{LKEY}
    s_waitcnt lgkmcnt(0)
    v_bfi_b32 v{T0}, v{C_STK}, s59, v{T0}
    buffer_store_dword v{T0}, v{T1}, s[12:15], s27 offen {SC}
    s_mov_b64 exec, -1
    Lnokey:
    ds_read_b128 {v4(ACC)}, v{T2}
    ds_read_b128 {v4(ACC+4)}, v{T2} offset:16""")
    stamp(a, 7)
    sd_chain(a, SD, SD)
    a(f"v_rcp_f32 v{RS}, v{SD}\ns_nop 0\nv_mul_f32 v{C0}, -v{M}, v{RS}")
    for p in range(4):
        a(f"v_pk_fma_f32 {v2(XU+2*p)}, {v2(H+2*p)}, {v2(RS)}, {v2(C0)} op_sel_hi:[1,0,0]")
    for p in range(4):
        a(f"v_pk_add_f32 {v2(H+2*p)}, {v2(H+2*p)}, {v2(XU+2*p)}")
    for p in range(4):
        a(f"v_cvt_pk_bf16_f32 v{C_LN+p}, v{XU+2*p}, v{XU+2*p+1}")
        a(f"v_cvt_pk_bf16_f32 v{C_OUT+p}, v{H+2*p}, v{H+2*p+1}")
    a(f"""s_waitcnt lgkmcnt(0)
    v_max3_u32 v{T0}, v{ACC}, v{ACC+1}, v{ACC+2}
    v_max3_u32 v{T1}, v{ACC+3}, v{ACC+4}, v{ACC+5}
    v_max3_u32 v{T0}, v{T0}, v{ACC+6}, v{ACC+7}
    v_max_u32 v{T0}, v{T0}, v{T1}
    v_cmp_eq_u32 s[60:61], v{T0}, v{KEY}
    s_cmp_eq_u64 s[60:61], 0
    s_cbranch_scc1 Lnoeager""")
    publish_row(a)
    a("Lnoeager:")

QP = {1: "quad_perm:[1,0,3,2]", 2: "quad_perm:[2,3,0,1]", 3: "quad_perm:[3,2,1,0]", 7: "row_half_mirror"}
class Net:
    def __init__(s, a, x, t, fill): s.a = a; s.x = x; s.t = t; s.fill = list(fill)
    def f(s, n=1):
        for _ in range(n):
            if s.fill: s.a(s.fill.pop(0))
    def ce(s, m):
        a, x, t = s.a, s.x, s.t
        s.f()
        if m == 4:
            a(f"v_max_u32_dpp v{t}, v{x}, v{x} row_shl:4 row_mask:0xf bank_mask:0x5")
            a(f"v_min_u32_dpp v{t}, v{x}, v{x} row_shr:4 row_mask:0xf bank_mask:0xa")
            s.x, s.t = t, x
        else:
            a(f"v_mov_b32_dpp v{t}, v{x} {QP[m]} row_mask:0xf bank_mask:0xf")
            a(f"v_med3_u32 v{x}, v{x}, v{t}, v{C_L[1 << (m.bit_length()-1)]}")
    def merge(s, last_clean=True):
        a = s.a
        s.f()
        a(f"v_max_u32_dpp v{s.x}, v{s.x}, v{s.x} row_mirror row_mask:0xf bank_mask:0xf")
        for m in (4, 2, 1): s.ce(m)
        for sw in ("v_permlane16_swap_b32", "v_permlane32_swap_b32"):
            a(f"v_mov_b32 v{s.t}, v{s.x}")
            s.f()
            a(f"{sw} v{s.x}, v{s.t}")
            s.f()
            a(f"v_max_u32_dpp v{s.x}, v{s.t}, v{s.x} row_half_mirror row_mask:0xf bank_mask:0xf")
            if last_clean or "16" in sw:
                for m in (4, 2, 1): s.ce(m)
        s.f(99)

def fast_select(a):
    K, X, Y, P, Q = C_K, C_X, C_Y, C_TMP, C_TMP + 1
    a(f"""v_max_u32 v{P}, v{K}, v{K+1}
    v_max_u32 v{Q}, v{K+2}, v{K+3}
    v_max_u32 v{X}, v{P}, v{Q}""")
    fill = [f"v_min_u32 v{Y}, v{P}, v{Q}", f"v_min_u32 v{P}, v{K}, v{K+1}", f"v_min_u32 v{Q}, v{K+2}, v{K+3}",
            f"v_max3_u32 v{Y}, v{Y}, v{P}, v{Q}"]
    fill += [f"v_max_u32_dpp v{Y}, v{Y}, v{Y} row_ror:{k} row_mask:0xf bank_mask:0xf" for k in (8, 4, 2, 1)]
    fill += [f"v_mov_b32 v{P}, v{Y}", f"v_permlane16_swap_b32 v{Y}, v{P}", f"v_max_u32 v{Y}, v{Y}, v{P}",
             f"v_mov_b32 v{P}, v{Y}", f"v_permlane32_swap_b32 v{Y}, v{P}", f"v_max_u32 v{Y}, v{Y}, v{P}",
             "s_mov_b64 vcc, 0x100"]
    n = Net(a, X, C_TMP + 2, fill)
    for m in (1, 3, 1, 7, 2, 1): n.ce(m)
    n.merge()
    a(f"""s_mov_b64 exec, 0x1ff
    v_cndmask_b32 v{P}, v{n.x}, v{Y}, vcc
    ds_write_b32 v{C_FW}, v{P}""")
    if OPT["rowpf"]:
        m8 = (1 << OPT["rowpf"]) - 1; m32 = m8 * 0x01010101
        a(f"""s_mov_b32 exec_lo, {hex(m32)}
        s_mov_b32 exec_hi, {hex(m32)}
        v_bfi_b32 v{Q}, v{n.x}, 0, v{C_TMP+3}
        v_lshl_add_u32 v{Q}, v{Q}, 11, v{C_PF}
        buffer_load_dword v{JUNK}, v{Q}, s[12:15], s33 offen {SC}""")
    a(f"""s_mov_b64 exec, -1
    s_waitcnt lgkmcnt(0)
    s_barrier
    ds_read_b32 v{X}, v{C_FR}
    ds_read_b32 v{Y}, v{C_FY}
    s_waitcnt lgkmcnt(0)""")
    fill = [f"v_max_u32_dpp v{Y}, v{Y}, v{Y} {QP[m]} row_mask:0xf bank_mask:0xf" for m in (1, 2, 7)]
    n = Net(a, X, C_TMP + 2, fill)
    n.merge(last_clean=False)
    a(f"""v_cmp_gt_u32 vcc, v{Y}, v{n.x}
    s_cmp_eq_u64 vcc, 0
    s_cbranch_scc0 Lfullsel
    v_mov_b32 v{K}, v{n.x}
    Lseldone:""")

def c_select(a):
    a("; === top-8 selection over all router keys")
    K = C_K
    a(f"s_mov_b32 s34, {WS_KEYS}\nv_mov_b32 v{C_TMP+3}, 0x7ff")
    def chk():
        a(f"v_xor_b32 v{T0}, v{K}, v{K+1}")
        a(f"v_xor_b32 v{T1}, v{K+2}, v{K+3}")
        a(f"v_xor_b32 v{T2}, s59, v{K}")
        a(f"v_xor_b32 v{C_X}, s59, v{K+2}")
        a(f"v_or3_b32 v{T0}, v{T0}, v{T1}, v{T2}")
        for i in range(4): a(f"v_bfi_b32 v{K+i}, v{C_STK}, v{C_IX+i}, v{K+i}")
        a(f"v_or_b32 v{T0}, v{T0}, v{C_X}")
        a(f"v_cmp_ne_u16 vcc, 0, v{T0}")
    poll(a, lambda: a(f"buffer_load_dwordx4 {v4(K)}, v{C_KA}, s[12:15], s34 offen {SC}"), chk, pre=OPT["sl_k"])
    stamp(a, 8)
    fast_select(a)
    stamp(a, 9)
    a(f"""v_cmp_eq_u32 vcc, v{K}, v{C_KEY}
    s_and_b64 s[62:63], vcc, s[60:61]
    s_cmp_lg_u64 s[62:63], vcc
    s_cbranch_scc0 Lsel_pub""")
    publish_row(a)
    a("Lsel_pub:")
    fetch_row_issue(a, 84)
    a(f"""s_cmp_eq_u64 vcc, 0
    s_cbranch_scc0 Lsel_done
    s_mov_b32 exec_hi, 0x00ffffff
    buffer_store_dwordx4 {v4(C_OUT)}, v{VL}, s[52:55], s97 offen {['', 'sc1', 'nt', 'sc0 sc1'][OPT['ost']]}
    s_mov_b32 exec_hi, -1
    Lsel_done:""")

def c1(a):
    a("; === gate / up projection for this workgroup's 8 FFN columns")
    XR = 84; XF_ = 168; ACC = 52; XU = 60; WF = 88
    a(f"""s_cmp_lg_u32 s20, 0
    s_cbranch_scc1 Lc1_now
    v_lshrrev_b32 v{T0}, 2, v{N}
    v_lshl_add_u32 v{T0}, v{G}, 3, v{T0}
    v_lshlrev_b32 v{T0}, 4, v{T0}
    v_and_b32 v{T1}, 1, v{N}
    v_lshl_add_u32 v{T0}, v{T1}, 3, v{T0}
    v_bfe_u32 v{T1}, v{N}, 1, 1
    v_lshl_add_u32 v{T0}, v{T1}, 13, v{T0}
    v_add_u32 v{T0}, {LWT}, v{T0}""")
    for j in range(14):
        for h in range(2):
            a(f"ds_read_b64_tr_b16 {v2(WF+4*j+2*h)}, v{T0} offset:{(32*j+4*h)*16}")
    a(f"""v_and_b32 v{XU+4}, 7, v{N}
    v_mul_u32_u24 v{XU+4}, {PX}, v{XU+4}
    v_lshl_add_u32 v{XU+4}, v{G}, 4, v{XU+4}
    v_lshlrev_b32 v{XU+5}, 4, v{N}
    v_lshl_add_u32 v{XU+5}, v{G}, 3, v{XU+5}
    s_lshl_b32 s22, s100, 7
    s_add_u32 s22, s22, {WS_ACT}
    Lc1_now:""")
    fetch_row_finish(a, XR, T2)
    a(f"""s_waitcnt lgkmcnt(0)
    s_barrier
    s_cmp_lg_u32 s20, 0
    s_cbranch_scc1 Lc1_epoch""")
    stamp(a, 10)
    for j in range(14):
        a(f"ds_read_b128 {v4(XF_+4*j)}, v{XU+4} offset:{LXS+64*j}")
    for j in range(14):
        a(f"s_waitcnt lgkmcnt({13-j})")
        A = ACC + 4*(j & 1)
        a(f"v_mfma_f32_16x16x32_bf16 {v4(A)}, {v4(WF+4*j)}, {v4(XF_+4*j)}, {'0' if j < 2 else v4(A)}")
    for p in range(2):
        a(f"v_pk_add_f32 {v2(ACC+2*p)}, {v2(ACC+2*p)}, {v2(ACC+4+2*p)}")
    for p in range(2): a(f"v_cvt_pk_bf16_f32 v{ACC+4+p}, v{ACC+2*p}, v{ACC+2*p+1}")
    for p in range(2): a(f"v_mov_b32 v{ACC+6+p}, v{ACC+4+p}")
    for p in range(2): a(f"v_permlane32_swap_b32 v{ACC+4+p}, v{ACC+6+p}")
    for p in range(2):
        a(f"v_lshlrev_b32 v{ACC+2*p}, 16, v{ACC+4+p}")
        a(f"v_and_b32 v{ACC+2*p+1}, 0xffff0000, v{ACC+4+p}")
    for r in range(4): a(f"v_mul_f32 v{XU+r}, {fl(-1.4426950408889634)}, v{ACC+r}")
    for r in range(4): a(f"v_exp_f32 v{XU+r}, v{XU+r}")
    for p in range(2):
        a(f"v_lshlrev_b32 v{XR+2*p}, 16, v{ACC+6+p}")
        a(f"v_and_b32 v{XR+2*p+1}, 0xffff0000, v{ACC+6+p}")
    for r in range(4): a(f"v_add_f32 v{XU+r}, 1.0, v{XU+r}")
    for r in range(4): a(f"v_rcp_f32 v{XU+r}, v{XU+r}")
    for r in range(4): a(f"v_mul_f32 v{ACC+r}, v{ACC+r}, v{XU+r}")
    for p in range(2): a(f"v_cvt_pk_bf16_f32 v{ACC+4+p}, v{ACC+2*p}, v{ACC+2*p+1}")
    for p in range(2):
        a(f"v_lshlrev_b32 v{ACC+2*p}, 16, v{ACC+4+p}")
        a(f"v_and_b32 v{ACC+2*p+1}, 0xffff0000, v{ACC+4+p}")
    for p in range(2): a(f"v_pk_mul_f32 {v2(ACC+2*p)}, {v2(ACC+2*p)}, {v2(XR+2*p)}")
    for p in range(2): a(f"v_cvt_pk_bf16_f32 v{XR+p}, v{ACC+2*p}, v{ACC+2*p+1}")
    for p in range(2): a(f"v_min_u32 v{XR+p}, -2, v{XR+p}")
    a(f"""s_mov_b32 exec_lo, 0x00ff00ff
    s_mov_b32 exec_hi, 0
    buffer_store_dwordx2 {v2(XR)}, v{XU+5}, s[12:15], s22 offen {SC}
    s_branch Lend
    Lc1_epoch:
    s_lshl_b32 s29, s2, 3
    s_add_u32 s29, s29, s20
    s_cmp_lg_u32 s29, 1
    s_cbranch_scc1 Lend
    s_mov_b64 exec, 1
    v_mov_b32 v{T0}, s56
    s_mov_b32 s29, {WS_EPOCH}
    buffer_store_dword v{T0}, v{VL}, s[12:15], s29 offen {SC}
    s_branch Lend""")

def c2(a):
    a("; === down projection for 16 output columns, routed rows written")
    K = C_K
    OA = 8; OR = 10; SG = 12; VA = 13; VO = 14; VW = 15; WF = 88; AF = 116; ACC = 52; RD = 168
    a(f"""s_mul_i32 s24, s20, 7168
    s_add_u32 s24, s24, {LWT}
    v_lshrrev_b32 v{T0}, 2, v{N}
    v_lshl_add_u32 v{T0}, v{G}, 3, v{T0}
    v_lshlrev_b32 v{T0}, 5, v{T0}
    v_and_b32 v{T1}, 3, v{N}
    v_lshl_add_u32 v{T0}, v{T1}, 3, v{T0}
    v_add_u32 v{VW}, s24, v{T0}""")
    for j in range(7):
        for h in range(2):
            a(f"ds_read_b64_tr_b16 {v2(WF+4*j+2*h)}, v{VW} offset:{(32*j+4*h)*32}")
    a(f"""v_and_b32 v{T1}, 7, v{N}
    v_mul_u32_u24 v{VO}, {PX}, v{T1}
    v_lshl_add_u32 v{VO}, v{G}, 3, v{VO}
    v_add_u32 v{VO}, s51, v{VO}
    v_lshlrev_b32 v{VA}, 4, v{T1}
    v_lshl_add_u32 v{VA}, v{G}, 7, v{VA}
    s_mul_i32 s25, s20, {7*512}
    s_add_u32 s25, s25, {WS_ACT}
    v_and_b32 v{OA}, 0x7ff, v{K}
    v_sub_u32 v{OA}, 2047, v{OA}
    v_mul_u32_u24 v{OA}, 896, v{OA}
    v_lshl_add_u32 v{OA}, v{G}, 3, v{OA}
    v_ashrrev_i32 v{T2}, 31, v{K}
    v_not_b32 v{T2}, v{T2}
    v_or_b32 v{T2}, 0x80000000, v{T2}
    v_xor_b32 v{K+1}, v{K}, v{T2}
    v_and_b32 v{K+1}, 0xffff0000, v{K+1}""")
    sigmoid_mul(a, SG, K+1, "1.0", T2)
    rbf(a, SG, SG)
    a(f"""v_lshlrev_b32 v{T1}, 4, v0
    v_add_u32 v{T1}, {LRED}, v{T1}""")
    def lds():
        for j in range(7):
            a(f"buffer_load_dwordx4 {v4(AF+4*j)}, v{VA}, s[12:15], s25 offen offset:{512*j} {SC}")
    if OPT["c2re"]:
        if OPT["sl_a"]: a(f"s_sleep {OPT['sl_a']}")
        msk = "s_mov_b32 exec_lo, 0x00ff00ff\ns_mov_b32 exec_hi, 0x00ff00ff" if OPT["amask"] else ""
        a(msk)
        lds()
        a("s_mov_b64 exec, -1")
        fetch_row_finish(a, 84, T2)
        a(msk)
        anyones(a, range(AF, AF+28), T0)
        a("s_cmp_eq_u64 vcc, 0\ns_cbranch_scc1 Lactok")
        poll(a, lds, lambda: anyones(a, range(AF, AF+28), T0))
        a("Lactok:\ns_mov_b64 exec, -1")
    else:
        fetch_row_finish(a, 84, T2)
        poll(a, lds, lambda: anyones(a, range(AF, AF+28), T0), pre=OPT["sl_a"])
    stamp(a, 10)
    a("s_waitcnt lgkmcnt(0)")
    for j in range(7):
        A = ACC + 4*(j & 1)
        a(f"v_mfma_f32_16x16x32_bf16 {v4(A)}, {v4(WF+4*j)}, {v4(AF+4*j)}, {'0' if j < 2 else v4(A)}")
    for p in range(2):
        a(f"v_pk_add_f32 {v2(ACC+2*p)}, {v2(ACC+2*p)}, {v2(ACC+4+2*p)}")
    a(f"""ds_write_b128 v{T1}, {v4(ACC)}
    s_waitcnt lgkmcnt(0)
    s_barrier
    s_cmp_lg_u32 s20, 0
    s_cbranch_scc1 Lend
    ds_read_b64 {v2(OR)}, v{VO} offset:{LXS}""")
    for w in range(1, 8):
        a(f"ds_read_b128 {v4(RD+4*w)}, v{T1} offset:{1024*w}")
    a("s_waitcnt lgkmcnt(7)")
    for i in range(2):
        a(f"v_lshlrev_b32 v{RD+2*i}, 16, v{OR+i}")
        a(f"v_and_b32 v{RD+2*i+1}, 0xffff0000, v{OR+i}")
    for w in range(1, 8):
        a(f"s_waitcnt lgkmcnt({7-w})")
        for p in range(2):
            a(f"v_pk_add_f32 {v2(ACC+2*p)}, {v2(ACC+2*p)}, {v2(RD+4*w+2*p)}")
    for rnd in range(2):
        for p in range(2): a(f"v_cvt_pk_bf16_f32 v{ACC+4+p}, v{ACC+2*p}, v{ACC+2*p+1}")
        for p in range(2):
            a(f"v_lshlrev_b32 v{ACC+2*p}, 16, v{ACC+4+p}")
            a(f"v_and_b32 v{ACC+2*p+1}, 0xffff0000, v{ACC+4+p}")
        for p in range(2):
            if rnd == 0: a(f"v_pk_mul_f32 {v2(ACC+2*p)}, {v2(ACC+2*p)}, {v2(SG)} op_sel_hi:[1,0]")
            else: a(f"v_pk_add_f32 {v2(ACC+2*p)}, {v2(ACC+2*p)}, {v2(RD+2*p)}")
    for p in range(2): a(f"v_cvt_pk_bf16_f32 v{OR+p}, v{ACC+2*p}, v{ACC+2*p+1}")
    a(f"""s_mov_b32 exec_lo, 0x00ff00ff
    s_mov_b32 exec_hi, 0x00ff00ff
    buffer_store_dwordx2 {v2(OR)}, v{OA}, s[52:55], s51 offen {['', 'sc1', 'nt', 'sc0 sc1'][OPT['ost']]}""")

def clears(a):
    a(f"""v_mov_b32 v{JUNK+2}, -1
    v_lshlrev_b32 v{T1}, 2, v{LANE}
    s_lshl_b32 s24, s2, 7
    s_add_u32 s24, s24, {WS_ACT}
    s_mov_b32 exec_hi, 0
    buffer_store_dword v{JUNK+2}, v{T1}, s[12:15], s24 offen {SC}
    s_mov_b32 exec_lo, 1
    s_lshl_b32 s23, s96, 11
    s_add_u32 s23, s23, {WS_ROW}
    buffer_load_dword v{JUNK}, v{VL}, s[52:55], s97 offen
    buffer_load_dword v{JUNK+1}, v{VL}, s[12:15], s23 offen
    s_mov_b64 exec, -1""")

def prefetch(a, w0=1, T0=T0, T1=T1):
    a("; L2 warm-up of the FFN weights (one word per line, values unused)")
    a(f"""s_and_b32 s24, s2, 7
    s_lshr_b32 s25, s2, 3
    s_mul_i32 s26, s25, {14*3584}
    s_mov_b32 s18, {448*3584}
    s_mov_b32 s19, 0x00020000
    s_cmp_eq_u32 s20, {w0+2}
    s_cbranch_scc1 Lpf_d
    v_lshrrev_b32 v{T0}, 2, v{LANE}
    v_mul_u32_u24 v{T0}, 3584, v{T0}
    v_and_b32 v{T1}, 3, v{LANE}
    v_lshl_add_u32 v{T0}, v{T1}, 7, v{T0}
    s_mul_i32 s24, s24, 448
    s_cmp_eq_u32 s20, {w0}
    s_cselect_b32 s16, s42, s44
    s_cselect_b32 s17, s43, s45
    s_branch Lpf_go
    Lpf_d:
    v_mul_u32_u24 v{T0}, 896, v{LANE}
    s_lshl_b32 s24, s24, 7
    s_mov_b32 s16, s46
    s_mov_b32 s17, s47
    Lpf_go:
    s_and_b32 s17, s17, 0xffff
    s_add_u32 s26, s26, s24
    s_mov_b32 exec_hi, 0x00ffffff
    buffer_load_dword v{JUNK}, v{T0}, s[16:19], s26 offen
    s_mov_b32 exec_hi, -1""")

def amap():
    m = OPT["amap"]
    if m == 0: return "s_and_b32 s21, s2, 31\ns_lshr_b32 s22, s2, 5"
    lc = m
    return (f"s_bfe_u32 s22, s2, {hex(((3-lc) << 16) | 0)}\ns_lshl_b32 s22, s22, {lc}\ns_bfe_u32 s21, s2, {hex((lc << 16) | 3)}\ns_or_b32 s22, s22, s21\n"
            f"s_bfe_u32 s21, s2, {hex((lc << 16) | (3-lc))}\ns_lshl_b32 s21, s21, {5-lc}\ns_lshr_b32 s12, s2, {3+lc}\ns_or_b32 s21, s21, s12")

def kernel(a):
    if OPT["stamps"]:
        for k in range(NST): a(f"s_mov_b32 s{64+2*k}, 0")
    stamp(a, 0)
    a(f"""v_readfirstlane_b32 s20, v0
    s_cmp_ge_u32 s2, 256
    s_cbranch_scc1 Lexit
    s_cmp_lt_u32 s20, 256
    s_cbranch_scc1 Lloader""")
    if OPT["b1"] == 2: a(f"v_mov_b32 v{T1}, {LTAG + 4}\nv_mov_b32 v{T2}, 0\nds_write_b32 v{T1}, v{T2}")
    a(f"""
    s_getpc_b64 s[30:31]
    Lpc:
    v_and_b32 v{T2}, 255, v0
    v_lshlrev_b32 v{JUNK}, 7, v{T2}
    v_mov_b32 v{JUNK+1}, s31
    v_add_co_u32 v{JUNK}, vcc, s30, v{JUNK}
    v_addc_co_u32 v{JUNK+1}, vcc, 0, v{JUNK+1}, vcc
    v_cmp_gt_u32 vcc, (Lexit-Lpc)/128+1, v{T2}
    s_and_saveexec_b64 s[30:31], vcc
    s_cbranch_execz Lpfd
    global_load_dword v{JUNK+2}, v[{JUNK}:{JUNK+1}], off
    Lpfd:""")
    if OPT["b1"] == 2: a("s_waitcnt lgkmcnt(0)\ns_barrier")
    a(f"""s_branch Lcompute
    Lloader:
    s_load_dwordx2 s[8:9], s[0:1], 0
    s_lshr_b32 s20, s20, 6
    v_and_b32 v{LANE}, 63, v0
    v_lshlrev_b32 v{VL}, 4, v{LANE}
    {amap()}
    s_mov_b32 s10, {XB}
    s_mov_b32 s11, 0x00020000
    v_cmp_lt_u32 vcc, 29, v{LANE}
    s_lshl_b32 s23, s20, 9
    s_add_u32 s23, s23, s21
    s_mul_i32 s23, s23, 896
    s_mul_i32 s24, s20, {16*PH}
    v_add_u32 v{T1}, {32*896 - 480}, v{VL}
    s_mov_b32 s25, {'s22' if OPT['rot'] else '0'}
    v_cndmask_b32 v{T1}, v{VL}, v{T1}, vcc
    s_mov_b32 exec_lo, 0xcfffffff
    s_mov_b32 exec_hi, 0x03ffffff
    s_mov_b32 s28, 0""")
    if OPT["b1"] == 2: a("s_barrier")
    a("s_waitcnt lgkmcnt(0)")
    stamp(a, 3, True)
    if OPT["dmau"]:
        a("Ldma:")
        for i in range(8):
            a(f"""s_mul_i32 s26, s25, {2*PH}
            s_mul_i32 s27, s25, {64*896}
            s_add_u32 m0, s26, s24
            s_add_u32 s27, s27, s23
            s_add_u32 s25, s25, 1
            buffer_load_dwordx4 v{T1}, s[8:11], s27 offen lds
            s_and_b32 s25, s25, 7""")
        a(f"""s_add_u32 s24, s24, {LXH}
        s_add_u32 s23, s23, 448
        s_add_u32 s28, s28, 1
        s_cmp_lt_u32 s28, 2""")
        if OPT["b1"] == 1: a("s_cbranch_scc0 Ldmad\ns_barrier\ns_branch Ldma\nLdmad:")
        else: a("s_cbranch_scc1 Ldma")
    else:
        a(f"""Ldma:
        s_mul_i32 s26, s25, {2*PH}
        s_mul_i32 s27, s25, {64*896}
        s_add_u32 s26, s26, s24
        s_add_u32 s27, s27, s23
        s_mov_b32 m0, s26
        s_add_u32 s25, s25, 1
        buffer_load_dwordx4 v{T1}, s[8:11], s27 offen lds
        s_and_b32 s25, s25, 7
        s_add_u32 s28, s28, 1
        s_cmp_lg_u32 s28, 8
        s_cbranch_scc1 Ldma1
        s_add_u32 s24, s24, {LXH}
        s_add_u32 s23, s23, 448
        Ldma1:
        s_cmp_lt_u32 s28, 16
        s_cbranch_scc1 Ldma""")
    def ltail():
        a(f"""Lltail:
        s_mov_b64 exec, -1
        s_load_dwordx2 s[6:7], s[0:1], 96
        s_load_dwordx8 s[40:47], s[0:1], 48
        s_load_dwordx2 s[48:49], s[0:1], 80
        v_and_b32 v{N}, 15, v0
        v_bfe_u32 v{G}, v0, 4, 2""")
        stamp(a, 6, True)
        early = OPT["e2a"]
        if early:
            a("s_waitcnt vmcnt(8)")
            stamp(a, 1)
            a("s_barrier")
        a("s_waitcnt lgkmcnt(0)")
        b_setup(a)
        b_loads(a)
        a("s_cmp_lg_u32 s20, 0\ns_cbranch_scc1 Lw123a")
        clears(a)
        if not early:
            a("s_waitcnt vmcnt(14)")
            stamp(a, 1)
            a("s_barrier")
        a("s_waitcnt vmcnt(6)")
        stamp(a, 2)
        a(f"""s_barrier
        v_mov_b32 v{T0}, {LTAG}
        s_waitcnt vmcnt(5)
        ds_write_b32 v{T0}, v{V_EP}
        s_branch Lprol
        Lw123a:""")
        if OPT["pf"] == 3: prefetch(a)
        if not early:
            a(f"s_waitcnt vmcnt(12)")
            stamp(a, 1)
            a("s_barrier")
        a(f"s_waitcnt vmcnt({4 if OPT['pf'] == 3 else 3})")
        stamp(a, 2)
        a(f"s_barrier")
        if OPT["pf"] == 1: prefetch(a)
        a(f"s_waitcnt vmcnt({2 if OPT['pf'] == 4 else 3})")
        a("Lprol:")
        if OPT["wdh"]: wd_dma(a, 0, 7, "Lnwd2")
        if OPT["w64l"]:
            a("s_mov_b32 s3, s20")
            w64(a, AC1)
            for i in range(8): a(f"v_xor_b32 v{AC1+16+i}, 0x80008000, v{AC1+8+i}")
            a(f"s_lshl_b32 s26, s3, 12\ns_add_u32 s26, s26, {LWT}\nv_add_u32 v{T1}, s26, v{VL}")
            for i in range(6): a(f"ds_write_b128 v{T1}, {v4(AC1+4*i)} offset:{[0, 1024, 2048, 3072, 16384, 17408][i]}")
        if not OPT["prolate"]: pro(a)
        stamp(a, 3)
        def hint_store():
            a(f"""s_cmp_lg_u32 s20, 0
            s_cbranch_scc1 Lnh
            s_lshl_b32 s34, s2, 6
            s_add_u32 s34, s34, {WS_HINT}
            v_add_u32 v{T0}, 1, v{V_EP}
            s_mov_b64 exec, 1
            buffer_store_dword v{T0}, v{VL}, s[12:15], s34 offen {SC}
            s_mov_b64 exec, -1
            Lnh:""")
        if OPT["hint"] == 2: hint_store()
        a("s_waitcnt lgkmcnt(0)\ns_barrier")
        if OPT["hint"] == 1: hint_store()
        a("s_branch Lpro1" if OPT["prolate"] else "s_branch Lpro2")
    if OPT["layout"]: a("s_branch Lltail")
    else: ltail()
    a("Lcompute:")
    a(f"""s_mov_b64 exec, -1
    s_load_dwordx2 s[8:9], s[0:1], 0
    s_lshr_b32 s20, s20, 6
    v_and_b32 v{LANE}, 63, v0
    v_lshlrev_b32 v{VL}, 4, v{LANE}
    {amap()}
    s_mov_b32 s10, {XB}
    s_mov_b32 s11, 0x00020000
    s_load_dwordx2 s[6:7], s[0:1], 96
    s_load_dwordx8 s[40:47], s[0:1], 48
    s_load_dwordx2 s[48:49], s[0:1], 80
    v_and_b32 v{N}, 15, v0
    v_bfe_u32 v{G}, v0, 4, 2
    s_and_b32 s3, s20, 3""")
    if OPT["prio"]: a("s_setprio 3")
    stamp(a, 9, True)
    a_pre(a)
    stamp(a, 11, True)
    a("s_waitcnt lgkmcnt(0)")
    b_setup(a)
    for i in range(OPT["warm"]): a(f"v_mfma_f32_16x16x32_bf16 {v4(AC2+4*(i%4))}, {v4(WC)}, {v4(WSN)}, {v4(AC2+4*(i%4))}")
    stamp(a, 1)
    a("s_barrier")
    stamp(a, 2)
    a_main(a)
    stamp(a, 4)
    if OPT["prio"]: a("s_setprio 0")
    a(f"buffer_load_dwordx4 {v4(B_WR)}, v{VL}, s[16:19], 0 offen")
    a(f"buffer_load_dwordx4 {v4(B_XR)}, v{VL}, s[8:11], s97 offen")
    a("Lpro1:")
    pro(a, 1 if OPT["prosplit"] else 0)
    a("Lpro2:")
    a(f"""v_readfirstlane_b32 s56, v{V_EP}
    s_add_u32 s56, s56, 1
    s_mul_i32 s98, s56, {HASH}
    s_lshl_b32 s99, s98, 6
    s_and_b32 s59, s56, 0xffff""")
    if OPT["hint"]:
        a(f"""v_and_b32 v{T1}, 31, v{LANE}
        v_lshlrev_b32 v{T1}, 6, v{T1}
        s_lshl_b32 s34, s20, 11
        s_add_u32 s34, s34, {WS_HINT}
        s_mov_b32 s57, 4000""")
        if OPT["sl_h0"]: a(f"s_sleep {OPT['sl_h0']}")
        a(f"""Lhint:
        buffer_load_dword v{T0}, v{T1}, s[12:15], s34 offen {SC}
        s_waitcnt vmcnt(0)
        v_cmp_ne_u32 vcc, s56, v{T0}
        s_cmp_eq_u64 vcc, 0
        s_cbranch_scc1 Lhintd""")
        if OPT["sl_h"]: a(f"s_sleep {OPT['sl_h']}")
        a(f"""s_sub_u32 s57, s57, 1
        s_cbranch_scc0 Lhint
        Lhintd:""")
    else:
        a("s_barrier")
    stamp(a, 5)
    b_main(a)
    if OPT["wdh"]: a("s_cmp_lt_u32 s20, 4\ns_cbranch_scc1 Lnwd1")
    wd_dma(a, OPT['wdsplit'], 7, 'Lnwd1')
    c_select(a)
    a("s_cmp_ge_u32 s2, 224\ns_cbranch_scc1 Lc2")
    c1(a)
    a("Lc2:\ns_and_b32 s50, s2, 7\ns_cmp_eq_u32 s50, 7\ns_cbranch_scc1 Lend\ns_lshl_b32 s50, s50, 7\ns_bfe_u32 s51, s2, 0x20003\ns_lshl_b32 s51, s51, 5\ns_add_u32 s51, s51, s50")
    c2(a)
    a("Lend:")
    dump_stamps(a)
    if OPT["layout"]:
        a("s_endpgm")
        ltail()
        for f in TAIL: f()
    a("Lexit:\ns_endpgm\nLfullsel:")
    select8(a, C_K, C_TMP, C_L, C_SW, C_SR)
    a("s_branch Lseldone")

DOC = '''; ---------------------------------------------------------------------------------------------
;      into LDS, waves 4-7 build the cos/sin tables, run the DFT-448 for 28 frequencies (raw bf16 x,
;      sums), then the DFT-64 over s2, and write U (f16) to d_ws.
;      28 workgroups do the down projection for 16 output columns and write the routed rows.
; ---------------------------------------------------------------------------------------------
'''
NAME = "sequential_preLN__spectral_fnet__moe_arch_mod__prompt_kernel"
def build():
    a = Asm()
    kernel(a)
    body = a.finish()
    if OPT["align"]: body = align_pass(body)
    return gen.HDR + f"""; @launch grid=(256,1,1) block=(512,1,1) lds={LDS_TOTAL}
{DOC}.amdgcn_target "amdgcn-amd-amdhsa--gfx950"
.text
.globl {NAME}
.p2align 8
.type {NAME},@function
{NAME}:
""" + body + f""".section .rodata,"a"
.p2align 6
.amdhsa_kernel {NAME}
  .amdhsa_next_free_vgpr {NVGPR}
  .amdhsa_next_free_sgpr 102
  .amdhsa_accum_offset {NVGPR}
  .amdhsa_group_segment_fixed_size 0
  .amdhsa_kernarg_size 104
  .amdhsa_user_sgpr_count 2
  .amdhsa_user_sgpr_kernarg_segment_ptr 1
  .amdhsa_system_sgpr_workgroup_id_x 1
.end_amdhsa_kernel
"""

if __name__ == "__main__":
    for x in list(sys.argv[1:]):
        if x.startswith("--"):
            k, _, v = x[2:].partition("=")
            assert k in OPT, k
            OPT[k] = int(v) if v else 1
            sys.argv.remove(x)
    open(sys.argv[1], "w").write(build())
```

```python
import sys
from asmlib import Asm, fl, align_pass
import gen
from gen import srd, v4, v2, rbf, sd_chain, reduce3, unpack8, lim_regs, select8, sigmoid_mul

WS_KEYS = 0x220000
WS_HINT = 0x204000
WS_EPOCH = 0x208000
WS_ACT = 0x210000
WS_STAMP = 0x3c0000
WS_ROW = 0x400000
WS_SIZE = 0x800000
XB = 1835008
PH = 480; PX = 928; PF = 136; PY = 512
LXH = 64 * PH
LW = 2 * LXH; LCS = LW + 28 * 1024; LTAG = LCS + 256; LF = LCS + 272; LWT = LF + 64 * PF; LDS_TOTAL = LWT + 57344
LY = 0
LSEL = 16384; LSE2 = 16640; LKEY = 17152; LXS = 17408; LRED = 24832
SPIN = 4000000
SC = "sc1"
HASH = "0x9e3779b1"
OPT = dict(stamps=0, cyc=0, align=0, sl_u0=4, sl_k=17, sl_a=4, rowpf=2, barj=5, dbgto=0, ost=0, c2re=1, rot=1, pf=3, wdsplit=0, w64l=0, layout=1, e2a=1, prolate=1, amp=-1, ampw=0, ampb=224, prio=1, wdh=0, cheb=1, ln1emu=1, dmau=1, b1=0, part=0, sl_r=4, hint=0, sl_h=4, sl_h0=0, trim=1, prosplit=0, warm=0, amap=0, ksh=5, kperm=0, amask=0, pfm=7, pfl=0, ustag=1, xstag=0, cstag=1)
NST = 14

def stamp(a, k, early=False):
    if OPT["stamps"] == 5:
        if early != 5 and k not in (0, 3, 4, NST - 1): return
    elif OPT["stamps"] == 4:
        if early == 5 or (not early and k not in (0, 1, 2, NST - 1)): return
    elif early: return
    if OPT["stamps"] == 2 and k not in (0, NST - 1): return
    if OPT["stamps"]: a(f"{'s_memtime' if OPT['cyc'] else 's_memrealtime'} s[{64+2*k}:{65+2*k}]")
def dump_stamps(a):
    if OPT["amp"] >= 0:
        k = OPT["amp"]
        a(f"s_memrealtime s[{64+2*(NST-2)}:{65+2*(NST-2)}]")
        a(f"""s_cmp_lg_u32 s2, {OPT['ampb']}
        s_cbranch_scc1 Lampd
        s_cmp_lg_u32 s20, {OPT['ampw']}
        s_cbranch_scc1 Lampd
        s_waitcnt lgkmcnt(0)
        s_sub_u32 s60, s{64+2*k}, s64
        s_mul_i32 s60, s60, 9
        s_add_u32 s60, s60, s{64+2*(NST-2)}
        Lamp:
        s_memrealtime s[62:63]
        s_waitcnt lgkmcnt(0)
        s_sub_u32 s61, s62, s60
        s_cmp_lt_i32 s61, 0
        s_cbranch_scc1 Lamp
        Lampd:""")
        return
    if not OPT["stamps"]: return
    stamp(a, NST - 2)
    a("s_waitcnt vmcnt(0)")
    stamp(a, NST - 1)
    a("s_mov_b64 exec, 1\ns_waitcnt lgkmcnt(0)")
    a(f"s_lshl_b32 s60, s2, 3\ns_add_u32 s60, s60, s20\ns_lshl_b32 s60, s60, 6\ns_add_u32 s60, s60, {WS_STAMP}\nv_mov_b32 v1, 0")
    for k in range(NST):
        a(f"v_mov_b32 v2, s{64+2*k}\nbuffer_store_dword v2, v1, s[12:15], s60 offen offset:{4*k}")

_lbl = [0]
TAIL = []
def timeout_note(a, ident):
    if not OPT["dbgto"]: return
    a(f"""s_lshl_b32 s100, s2, 8
    s_add_u32 s100, s100, s20
    s_add_u32 s100, s100, {ident << 24}
    v_mov_b32 v{JUNK+3}, s100
    s_mov_b32 s100, {0x3f0000 + 4*ident}
    s_mov_b64 exec, 1
    buffer_store_dword v{JUNK+3}, v{VL}, s[12:15], s100 offen
    v_mov_b32 v{JUNK+3}, s36
    buffer_store_dword v{JUNK+3}, v{VL}, s[12:15], s100 offen offset:64
    v_mov_b32 v{JUNK+3}, s98
    buffer_store_dword v{JUNK+3}, v{VL}, s[12:15], s100 offen offset:128
    v_mov_b32 v{JUNK+3}, s34
    buffer_store_dword v{JUNK+3}, v{VL}, s[12:15], s100 offen offset:192
    s_mov_b64 exec, -1""")
def poll(a, loads, check, pre=0):
    _lbl[0] += 1
    L = f"Lpoll{_lbl[0]}"
    if pre: a(f"s_sleep {pre}")
    a(f"s_mov_b32 s57, {SPIN}\n{L}:")
    loads()
    a("s_waitcnt vmcnt(0)")
    check()
    a(f"""s_cmp_eq_u64 vcc, 0
    s_cbranch_scc1 {L}d
    s_sub_u32 s57, s57, 1
    s_cbranch_scc0 {L}""")
    timeout_note(a, _lbl[0])
    a(f"{L}d:")

class LdsQ:
    def __init__(s, a): s.a = a; s.q = []
    def read(s, text, b, n=4):
        s.a(text); s.q.append(set(range(b, b + n)))
    def need(s, b, n=4):
        rs = set(range(b, b + n)); last = -1
        for i, d in enumerate(s.q):
            if d & rs: last = i
        if last >= 0:
            s.a(f"s_waitcnt lgkmcnt({len(s.q) - 1 - last})")
            s.q = s.q[last+1:]

LANE, N, G, T0, T1, T2, VL = 1, 2, 3, 4, 5, 6, 7
B_XR = 8; B_WR = 12; V_EP = 16; VFW = 17; VFR = 18; VXR = 19; VCS = 20; VUS = 21; ST = 22
WC = 28; WSN = 36; WNS = 44
AC1 = 52; AC2 = 68; GR = 84; XF = 88; WD = 116
JUNK = 228; SG2 = 232; V_GU = 234; V_DC = 235; B_A2 = 236; B_AD4 = 244; NVGPR = 248
B_AF = 28; B_AD = 36; B_VY = 40; B_VU = 41; C_L = {1: 42, 2: 43, 4: 44}; C_SW = 45; C_SR = 46; C_KA = 47
C_FW = 48; C_FR = 49; C_FY = 50; C_PF = 51
B_R = 116; B_ACC = 52; B_XU = 68; B_WU = 76; B_S1, B_S2, B_S3 = 88, 90, 92; B_TH = 96; P_TH = 104; P_EPS = 112; P_BASE = 113
C_K = 148; C_TMP = 152; C_KEY = 156; C_X = 157; C_Y = 158; C_OUT = 160; C_LN = 164; C_IX = 224; C_STK = 159

def trig_block(a, n, k0, eps, base, th, want_sin):
    for i in range(n):
        k = k0 + i
        if k == 0: a(f"v_mov_b32 v{th+i}, v{base}")
        else: a(f"v_fmamk_f32 v{th+i}, v{eps}, {fl(float(k))}, v{base}")
    for i in range(n):
        if want_sin: a(f"v_sin_f32 v{th+n+i}, v{th+i}")
        a(f"v_cos_f32 v{th+i}, v{th+i}")

def w64(a, D):
    EPS, BASE, TH, S = ST + 4, ST + 5, XF, ST
    a(f"""v_lshrrev_b32 v{S}, 1, v{N}
    s_lshl_b32 s25, s3, 3
    v_add_u32 v{S}, s25, v{S}
    v_sub_u32 v{S+1}, 64, v{S}
    v_cmp_eq_u32 vcc, 0, v{S}
    v_and_b32 v{S+2}, 1, v{N}
    v_cndmask_b32 v{S+1}, v{S+1}, 32, vcc
    v_cmp_eq_u32 vcc, 0, v{S+2}
    v_lshlrev_b32 v{S+2}, 3, v{G}
    v_cndmask_b32 v{S+1}, v{S+1}, v{S}, vcc
    v_cvt_f32_u32 v{S+2}, v{S+2}
    v_and_b32 v{S}, 1, v{S+1}
    v_cvt_f32_u32 v{S+1}, v{S+1}
    v_mul_u32_u24 v{S}, 0x8000, v{S}
    v_mul_f32 v{EPS}, {fl(1.0/64)}, v{S+1}
    v_lshl_or_b32 v{S}, v{S}, 16, v{S}
    v_mul_f32 v{BASE}, v{S+2}, v{EPS}""")
    if OPT["cheb"]:
        C2 = S + 3; CV = XF; SV = XF + 8
        a(f"""v_cos_f32 v{C2}, v{EPS}
        v_add_f32 v{CV+1}, v{EPS}, v{BASE}
        v_sin_f32 v{SV}, v{BASE}
        v_cos_f32 v{CV}, v{BASE}
        v_sin_f32 v{SV+1}, v{CV+1}
        v_cos_f32 v{CV+1}, v{CV+1}
        v_add_f32 v{C2}, v{C2}, v{C2}""")
        for i in range(2, 8):
            for Vv in (CV, SV): a(f"v_fma_f32 v{Vv+i}, v{C2}, v{Vv+i-1}, -v{Vv+i-2}")
        for i in range(4):
            a(f"v_cvt_pk_f16_f32 v{D+i}, v{CV+2*i}, v{CV+2*i+1}")
            a(f"v_cvt_pk_f16_f32 v{D+8+i}, v{SV+2*i}, v{SV+2*i+1}")
        for i in range(4):
            a(f"v_xor_b32 v{D+4+i}, v{S}, v{D+i}")
            a(f"v_xor_b32 v{D+12+i}, v{S}, v{D+8+i}")
        return
    for ks in range(2):
        for h in range(2):
            trig_block(a, 4, 32*ks + 4*h, EPS, BASE, TH, True)
            for i in range(2):
                a(f"v_cvt_pk_f16_f32 v{D+4*ks+2*h+i}, v{TH+2*i}, v{TH+2*i+1}")
                a(f"v_cvt_pk_f16_f32 v{D+8+4*ks+2*h+i}, v{TH+4+2*i}, v{TH+4+2*i+1}")

def a_pre(a):
    a("; === phase A set-up: DFT-448 table tile (three-term recurrence), its column sums, DFT-64 fragments")
    EPS, BASE, TH, ONE, TO, CS = ST + 4, ST + 5, XF, XF + 8, XF + 12, AC1
    a(f"""s_and_b32 s25, s3, 1
    s_lshl_b32 s25, s25, 2
    v_and_b32 v{T0}, 3, v{N}
    v_add_u32 v{T0}, s25, v{T0}
    v_lshrrev_b32 v{T1}, 2, v{N}
    s_mul_i32 s26, s22, 28
    s_add_u32 s26, s26, 1
    v_mad_u32_u24 v{T1}, v{T1}, 7, v{T0}
    v_add_u32 v{T1}, s26, v{T1}
    v_cmp_ne_u32 vcc, 7, v{T0}
    s_lshr_b32 s25, s3, 1
    s_mul_i32 s25, s25, {fl(0.25)}
    v_cndmask_b32 v{T1}, 0, v{T1}, vcc
    v_cvt_f32_u32 v{T1}, v{T1}
    v_mul_f32 v{EPS}, {fl(1.0/448)}, v{T1}
    v_lshlrev_b32 v{T0}, 3, v{G}
    v_cvt_f32_u32 v{T2}, v{T0}
    v_fma_f32 v{BASE}, v{T2}, v{EPS}, s25
    s_mul_i32 s25, s3, {7*1024}
    s_add_u32 s25, s25, {LW}
    v_add_u32 v{T1}, s25, v{VL}""")
    for i in range(4): a(f"v_mov_b32 v{ONE+i}, 0x3f803f80")
    if OPT["cheb"]:
        C2 = ST + 3; V = WD
        a(f"v_cos_f32 v{C2}, v{EPS}")
        for j in range(7):
            for i in range(2):
                k = 32*j + i
                if k == 0: a(f"v_mov_b32 v{V}, v{BASE}")
                else: a(f"v_fmamk_f32 v{V+8*j+i}, v{EPS}, {fl(float(k))}, v{BASE}")
        a(f"v_add_f32 v{C2}, v{C2}, v{C2}")
        for j in range(7):
            for i in range(2): a(f"v_cos_f32 v{V+8*j+i}, v{V+8*j+i}")
        for i in range(2, 8):
            for j in range(7):
                a(f"v_fma_f32 v{V+8*j+i}, v{C2}, v{V+8*j+i-1}, -v{V+8*j+i-2}")
        for j in range(7):
            o = V + 56 + 4*j
            for i in range(4): a(f"v_cvt_pk_bf16_f32 v{o+i}, v{V+8*j+2*i}, v{V+8*j+2*i+1}")
            a(f"ds_write_b128 v{T1}, {v4(o)} offset:{j*1024}")
            a(f"v_mfma_f32_16x16x32_bf16 {v4(CS)}, {v4(o)}, {v4(ONE)}, {'0' if j == 0 else v4(CS)}")
    else:
      for j in range(7):
        trig_block(a, 8, 32*j, EPS, BASE, TH, False)
        o = TO + 4*(j & 1)
        for i in range(4): a(f"v_cvt_pk_bf16_f32 v{o+i}, v{TH+2*i}, v{TH+2*i+1}")
        a(f"ds_write_b128 v{T1}, {v4(o)} offset:{j*1024}")
        a(f"v_mfma_f32_16x16x32_bf16 {v4(CS)}, {v4(o)}, {v4(ONE)}, {'0' if j == 0 else v4(CS)}")
    a(f"""v_lshrrev_b32 v{ST}, 1, v{N}
    s_lshl_b32 s25, s3, 3
    v_add_u32 v{ST}, s25, v{ST}
    v_and_b32 v{ST+2}, 1, v{N}
    v_lshlrev_b32 v{VUS}, 16, v{ST}
    v_lshl_add_u32 v{VUS}, v{ST+2}, 6, v{VUS}
    v_lshl_add_u32 v{VUS}, v{G}, 4, v{VUS}
    s_lshl_b32 s25, s3, 6
    v_lshlrev_b32 v{T0}, 4, v{G}
    v_add_u32 v{VCS}, {LCS}, v{T0}
    v_add_u32 v{T1}, s25, v{VCS}
    v_lshlrev_b32 v{SG2+1}, 31, v{G}
    v_or_b32 v{SG2+1}, 1.0, v{SG2+1}
    v_xor_b32 v{SG2}, 0x80000000, v{SG2+1}
    v_pk_fma_f32 {v2(CS)}, {v2(CS)}, {v2(SG2)}, {v2(CS)}
    v_pk_fma_f32 {v2(CS+2)}, {v2(CS+2)}, {v2(SG2)}, {v2(CS+2)}
    ds_write_b128 v{T1}, {v4(CS)}""")
    if OPT["b1"] == 2:
        a(f"""v_mov_b32 v{T1}, {LTAG + 4}
        v_mov_b32 v{T2}, 1
        s_waitcnt lgkmcnt(0)
        s_mov_b64 exec, 1
        ds_add_u32 v{T1}, v{T2}
        s_mov_b64 exec, -1""")
        w64(a, WC)
        a(f"""Lwsync:
        ds_read_b32 v{T2}, v{T1}
        s_waitcnt lgkmcnt(0)
        v_readfirstlane_b32 s25, v{T2}
        s_cmp_lt_u32 s25, 4
        s_cbranch_scc1 Lwsync
        v_add_u32 v{T2}, {LW}, v{VL}""")
        for f in range(28): a(f"ds_read_b128 {v4(WD+4*f)}, v{T2} offset:{f*1024}")
        for i in range(8): a(f"v_xor_b32 v{WNS+i}, 0x80008000, v{WSN+i}")
    if OPT["b1"] == 1:
        a(f"v_add_u32 v{T2}, {LW}, v{VL}\ns_waitcnt lgkmcnt(0)\ns_barrier")
        for f in range(28): a(f"ds_read_b128 {v4(WD+4*f)}, v{T2} offset:{f*1024}")
    if OPT["pf"] == 4:
        a("s_waitcnt lgkmcnt(0)\ns_cmp_eq_u32 s20, 7\ns_cbranch_scc1 Lnpf4")
        prefetch(a, 4, XF, XF + 1)
        a("Lnpf4:")
    if not OPT["w64l"] and OPT["b1"] != 2:
        w64(a, WC)
        for i in range(8): a(f"v_xor_b32 v{WNS+i}, 0x80008000, v{WSN+i}")
    stamp(a, 10, True)
    a(f"v_add_u32 v{T2}, {LW}, v{VL}")
    a(f"""s_lshl_b32 s25, s3, 4
    v_add_u32 v{ST}, s25, v{N}
    v_mul_u32_u24 v{VXR}, {PH}, v{ST}
    v_add_u32 v{VXR}, v{T0}, v{VXR}
    v_mul_u32_u24 v{VFW}, {PF}, v{ST}
    v_lshl_add_u32 v{VFW}, v{G}, 3, v{VFW}
    v_add_u32 v{VFW}, {LF}, v{VFW}
    v_lshrrev_b32 v{ST}, 2, v{N}
    v_lshl_add_u32 v{ST}, v{G}, 3, v{ST}
    v_mul_u32_u24 v{VFR}, {PF}, v{ST}
    v_and_b32 v{ST}, 3, v{N}
    v_lshl_add_u32 v{VFR}, v{ST}, 3, v{VFR}
    v_add_u32 v{VFR}, {LF}, v{VFR}
    s_lshl_b32 s23, s21, 11
    s_lshl_b32 s24, s22, 8
    s_add_u32 s23, s23, s24""")
    for r in range(4):
        a(f"s_mov_b32 s{30+2*r}, {hex(((1<<r)|(1<<(20+r))) & 0xffffffff)}")
        a(f"s_mov_b32 s{31+2*r}, {hex(((1<<(8+r))|(1<<(28+r))) & 0xffffffff)}")
    a("s_mov_b64 s[24:25], 0xffff\ns_mov_b32 s38, 0\ns_cmp_eq_u32 s22, 7\ns_cselect_b32 s39, 0xffff0000, 0")

def a_main(a):
    a("; === phase A: DFT-448 GEMM (two K halves) + row statistics, LDS transpose, DFT-64, U stores")
    q = LdsQ(a)
    def rdx(j, hf): q.read(f"ds_read_b128 {v4(XF+4*j)}, v{VXR} offset:{64*j + hf*LXH}", XF+4*j)
    def rdw(j):
        for T in range(4): q.read(f"ds_read_b128 {v4(WD+4*(7*T+j))}, v{T2} offset:{(7*T+j)*1024}", WD+4*(7*T+j))
    if OPT["b1"]:
        for j in range(7): rdx(j, 0)
    else:
        for j in range(3): rdx(j, 0); rdw(j)
    BJ = OPT["barj"]
    Q, S, M, RS = ST, ST+1, ST+2, ST+4
    def mf(A, T, j, first): a(f"v_mfma_f32_16x16x32_bf16 {v4(A+4*T)}, {v4(WD+4*(7*T+j))}, {v4(XF+4*j)}, {'0' if first else v4(A+4*T)}")
    def gram(j, first): a(f"v_mfma_f32_16x16x32_bf16 {v4(GR)}, {v4(XF+4*j)}, {v4(XF+4*j)}, {'0' if first else v4(GR)}")
    for j in range(7):
        q.need(XF + 4*j)
        gram(j, j == 0)
        for T in range(4):
            q.need(WD+4*(7*T+j))
            mf(AC1, T, j, j == 0)
        if j + 3 < 7 and not OPT["b1"]: rdx(j + 3, 0); rdw(j + 3)
        if j == BJ:
            if OPT["stamps"] != 3: stamp(a, 11)
            a("s_barrier")
            for k in range(BJ + 1): rdx(k, 1)
        elif j > BJ: rdx(j, 1)
    CS = WD + 28
    for j in range(7):
        q.need(XF + 4*j)
        gram(j, False)
        mf(AC2, 1, j, j == 0)
    for T in range(4): q.read(f"ds_read_b128 {v4(CS+4*T)}, v{VCS} offset:{64*T}", CS+4*T)
    stats = [None, None, f"v_mov_b32 v{Q}, 0", f"v_mov_b32 v{V_EP}, {LTAG}"]
    stats += [f"v_cndmask_b32 v{Q}, v{Q}, v{GR+r}, s[{30+2*r}:{31+2*r}]" for r in range(4)]
    stats += [f"v_add_f32 v{S}, v{AC1+7}, v{AC2+7}", f"v_cndmask_b32 v{S}, 0, v{S}, s[24:25]", None, None,
              f"v_permlane32_swap_b32 v{Q}, v{S}", f"v_add_f32 v{Q}, v{Q}, v{S}", f"v_mov_b32 v{S}, v{Q}", None, None,
              f"v_permlane16_swap_b32 v{Q}, v{S}", f"v_add_f32 v{Q}, v{Q}, v{S}", f"v_mov_b32 v{S}, v{Q}", None, None,
              f"v_permlane32_swap_b32 v{Q}, v{S}", f"v_mul_f32 v{M}, {fl(-1.0/448)}, v{S}", f"v_mul_f32 v{Q}, {fl(1.0/448)}, v{Q}",
              f"v_fma_f32 v{Q}, -v{M}, v{M}, v{Q}", f"v_max_f32 v{Q}, 0, v{Q}"]
    rb = [f"v_cvt_pk_bf16_f32 v{Q}, v{Q}, v{Q}", f"v_and_b32 v{Q}, 0xffff0000, v{Q}"]
    if OPT["ln1emu"]:
        stats += rb + [f"v_add_f32 v{Q}, {fl(1e-5)}, v{Q}"] + rb + [f"v_sqrt_f32 v{Q}, v{Q}", None] + rb + [f"v_rcp_f32 v{RS}, v{Q}"]
    else:
        stats += [f"v_add_f32 v{Q}, {fl(1e-5)}, v{Q}", f"v_rsq_f32 v{RS}, v{Q}"]
    k = stats.index(f"v_max_f32 v{Q}, 0, v{Q}") + 1
    stats[k:k] = [f"v_cvt_pk_bf16_f32 v{V_DC}, v{M}, v{M}", f"v_and_b32 v{V_DC}, 0xffff0000, v{V_DC}",
                  f"v_sub_f32 v{V_DC}, v{V_DC}, v{M}", f"v_mul_f32 v{V_DC}, {fl(448.0)}, v{V_DC}"]
    stats += ["WAITCS", f"v_mul_f32 v{M}, v{M}, v{RS}", f"v_mul_f32 v{V_DC}, v{V_DC}, v{RS}"]
    stats += [f"v_mul_f32 v{CS+i}, v{CS+i}, v{M}" for i in range(16)]
    for j in range(7):
        for T in (0, 2, 3):
            mf(AC2, T, j, j == 0)
            for _ in range(2):
                if stats:
                    t = stats.pop(0)
                    if t == "WAITCS": q.need(CS, 16)
                    elif t: a(t)
    for p in range(2): a(f"v_pk_fma_f32 {v2(AC1+4+2*p)}, {v2(AC2+4+2*p)}, {v2(SG2)}, {v2(AC1+4+2*p)}")
    for t in stats:
        if t == "WAITCS": q.need(CS, 16)
        elif t: a(t)
    stamp(a, 3)
    for T in (0, 2, 3):
        for p in range(2):
            x = AC1 + 4*T + 2*p
            a(f"v_pk_fma_f32 {v2(x)}, {v2(AC2+4*T+2*p)}, {v2(SG2)}, {v2(x)}")
    for T in (1, 0, 2, 3):
        for p in range(2):
            x = AC1 + 4*T + 2*p
            a(f"v_pk_fma_f32 {v2(x)}, {v2(x)}, {v2(RS)}, {v2(CS+4*T+2*p)} op_sel_hi:[1,0,1]")
    a(f"v_cndmask_b32 v{AC1+14}, v{AC1+14}, v{V_DC}, s[38:39]")
    for T in (1, 0, 2, 3):
        for p in range(2):
            x = AC1 + 4*T + 2*p
            a(f"v_cvt_pk_f16_f32 v{AC2+2*T+p}, v{x}, v{x+1}")
        a(f"ds_write_b64 v{VFW}, {v2(AC2+2*T)} offset:{32*T}")
    if OPT["w64l"]: a(f"s_lshl_b32 s26, s3, 12\ns_add_u32 s26, s26, {LWT}\nv_add_u32 v{T1}, s26, v{VL}")
    stamp(a, 5, 5)
    a(f"s_waitcnt lgkmcnt(0)")
    stamp(a, 6, 5)
    a(f"s_barrier")
    stamp(a, 7, 5)
    if OPT["w64l"]:
        for i in (0, 2, 4, 1, 3, 5): a(f"ds_read_b128 {v4(WC+4*i)}, v{T1} offset:{(i % 4 if i < 4 else i - 2 + 2) * 0 + i * 0 + [0, 1024, 2048, 3072, 16384, 17408][i]}")
    FA = WD + 48
    fa = lambda T, ks: FA + (2*T + ks) * 4
    q = LdsQ(a)
    for T in range(2):
        for ks in range(2):
            for TT in (T, T + 2):
                for h in range(2):
                    q.read(f"ds_read_b64_tr_b16 {v2(fa(TT, ks)+2*h)}, v{VFR} offset:{(32*ks+4*h)*PF+32*TT}", fa(TT, ks)+2*h, 2)
    q.read(f"ds_read_b32 v{V_EP}, v{V_EP}", V_EP, 1)
    UR = AC1; UI = AC1 + 8; o = XF
    tagcalc = [f"v_add_u32 v{M}, 1, v{V_EP}", f"s_mov_b32 s98, {HASH}", f"v_mul_lo_u32 v{M}, v{M}, s98"]
    for T in range(2):
        for ks in range(2):
            fr = v4(fa(T, ks)); fi = v4(fa(T + 2, ks))
            q.need(fa(T, ks))
            if T == 0 and ks == 0: stamp(a, 8, 5)
            a(f"v_mfma_f32_16x16x32_f16 {v4(UR+4*T)}, {fr}, {v4(WC+4*ks)}, {'0' if ks == 0 else v4(UR+4*T)}")
            a(f"v_mfma_f32_16x16x32_f16 {v4(UI+4*T)}, {fr}, {v4(WNS+4*ks)}, {'0' if ks == 0 else v4(UI+4*T)}")
            q.need(fa(T + 2, ks))
            a(f"v_mfma_f32_16x16x32_f16 {v4(UR+4*T)}, {fi}, {v4(WSN+4*ks)}, {v4(UR+4*T)}")
            a(f"v_mfma_f32_16x16x32_f16 {v4(UI+4*T)}, {fi}, {v4(WC+4*ks)}, {v4(UI+4*T)}")
            if T == 1 and ks == 1:
                q.need(V_EP, 1)
                for t in tagcalc: a(t)
    stamp(a, 9, 5)
    for r in range(4): a(f"v_cvt_pk_f16_f32 v{o+r}, v{UR+r}, v{UI+r}")
    a(f"buffer_store_dwordx4 {v4(o)}, v{VUS}, s[12:15], s23 offen {SC}")
    stamp(a, 10, 5)
    a(f"v_add3_u32 v{Q}, v{o}, v{o+1}, v{o+2}")
    a(f"v_sub_u32 v{M}, v{M}, v{o+3}")
    a(f"v_sub_u32 v{M}, v{M}, v{Q}")
    for r in range(3): a(f"v_cvt_pk_f16_f32 v{o+4+r}, v{UR+4+r}, v{UI+4+r}")
    a(f"""v_add3_u32 v{Q}, v{o+4}, v{o+5}, v{o+6}
    v_sub_u32 v{o+7}, v{M}, v{Q}
    buffer_store_dwordx4 {v4(o+4)}, v{VUS}, s[12:15], s23 offen offset:128 {SC}""")

def b_ids(a):
    a(f"""s_and_b32 s92, s2, 7
    s_lshr_b32 s93, s2, 6
    s_lshl_b32 s93, s93, 3
    s_or_b32 s92, s92, s93
    s_bfe_u32 s93, s2, 0x10003
    s_bfe_u32 s96, s2, 0x20004
    s_sub_u32 s95, 64, s92
    s_cmp_eq_u32 s92, 0
    s_cselect_b32 s95, 32, s95
    s_cselect_b32 s94, 0, 1
    s_xor_b32 s94, s94, s93
    s_cmp_eq_u32 s93, 0
    s_cselect_b32 s95, s92, s95
    s_lshl_b32 s96, s96, 9
    s_add_u32 s95, s95, s96
    s_lshl_b32 s96, s20, 6
    s_add_u32 s96, s96, s95
    s_mul_i32 s97, s96, 896""")

def b_setup(a):
    srd(a, 12, 6, WS_SIZE)
    srd(a, 52, 48, XB)
    srd(a, 16, 40, 896)
    b_ids(a)

def b_loads(a):
    a(f"""s_mov_b32 s26, {WS_EPOCH}
    v_mov_b32 v{T0}, 0
    buffer_load_dword v{V_EP}, v{T0}, s[12:15], s26 offen {SC}
    buffer_load_dwordx4 {v4(B_WR)}, v{VL}, s[16:19], 0 offen
    buffer_load_dwordx4 {v4(B_XR)}, v{VL}, s[8:11], s97 offen""")

def pro(a, part=0):
    a("; === address / twiddle set-up for phases B and C")
    EPS, BASE, TH, AF, AD = P_EPS, P_BASE, P_TH, B_AF, B_AD
    cs = {0: "s_mov_b32 s21, s20", 1: "s_bfe_u32 s21, s2, 0x10004\ns_lshl_b32 s21, s21, 2\ns_xor_b32 s21, s21, s20",
          2: "s_bfe_u32 s21, s2, 0x20004\ns_lshl_b32 s21, s21, 1\ns_add_u32 s21, s21, s20\ns_and_b32 s21, s21, 7",
          3: "s_bfe_u32 s21, s2, 0x30003\ns_add_u32 s21, s21, s20\ns_and_b32 s21, s21, 7"}[OPT["cstag"]]
    a(cs)
    a(f"""s_lshl_b32 s28, s92, 16
    s_lshl_b32 s29, s21, 8
    s_add_u32 s28, s28, s29
    {"s_lshl_b32 s29, s93, 15" if OPT["ustag"] else "s_mov_b32 s29, 0"}
    s_add_u32 s28, s28, s29
    s_xor_b32 s30, s28, 32768
    s_add_u32 s29, s28, 4096
    s_add_u32 s31, s30, 4096
    v_lshlrev_b32 v{B_VU}, 13, v{G}
    v_lshl_add_u32 v{B_VU}, v{N}, 4, v{B_VU}""") if part != 2 else None
    if part == 1: return
    a(f"""v_and_b32 v{T0}, 7, v{N}
    v_lshlrev_b32 v{T0}, 6, v{T0}
    v_add_u32 v{T0}, s95, v{T0}
    v_cvt_f32_u32 v{T0}, v{T0}
    v_cmp_gt_u32 vcc, 8, v{N}
    v_mul_f32 v{EPS}, {fl(1.0/2048)}, v{T0}
    v_lshlrev_b32 v{T1}, 2, v{G}
    {"s_lshl_b32 s34, s93, 4" if OPT["ustag"] else "s_mov_b32 s34, 0"}
    v_cndmask_b32 v{EPS}, -v{EPS}, v{EPS}, vcc
    v_or_b32 v{T1}, s34, v{T1}
    v_xor_b32 v{T2}, 16, v{T1}""")
    for ks in range(2):
        a(f"v_cvt_f32_u32 v{BASE}, v{T2 if ks else T1}\nv_mul_f32 v{BASE}, v{BASE}, v{EPS}")
        trig_block(a, 4, 0, EPS, BASE, TH, True)
        for i in range(4):
            a(f"v_cvt_pk_f16_f32 v{AF+4*ks+i}, v{TH+i}, v{TH+4+i}")
    a(f"""v_lshrrev_b32 v{T0}, 3, v{N}
    v_and_b32 v{T1}, 3, v{N}
    v_mul_u32_u24 v{T1}, 7, v{T1}
    v_lshl_add_u32 v{T1}, v{T0}, 2, v{T1}
    s_mul_i32 s32, s21, 28
    s_add_u32 s32, s32, 1
    v_add_u32 v{T1}, s32, v{T1}
    v_sub_u32 v{T2}, 448, v{T1}
    v_cmp_gt_u32 s[34:35], 2, v{G}
    v_mov_b32 v{TH}, s93
    v_mov_b32 v{TH+1}, s94
    v_cndmask_b32 v{T2}, v{T2}, v{T1}, s[34:35]
    v_cndmask_b32 v{TH}, v{TH+1}, v{TH}, s[34:35]
    v_bfe_u32 v{TH+1}, v{N}, 2, 1
    v_cmp_eq_u32 s[60:61], v{TH}, v{TH+1}
    v_and_b32 v{TH+2}, 1, v{G}
    v_mul_u32_u24 v{TH+2}, {4*PY}, v{TH+2}
    v_add_lshl_u32 v{AD}, v{TH+2}, v{T2}, 2
    v_mov_b32 v{TH+3}, -4
    v_cndmask_b32 v{TH+3}, v{TH+3}, 4, s[34:35]
    v_add_u32 v{AD+1}, v{AD}, v{TH+3}
    v_add_u32 v{AD+2}, v{AD+1}, v{TH+3}
    v_add_u32 v{AD+3}, v{AD+2}, v{TH+3}
    v_cmp_eq_u32 s[50:51], 0, v{T0}
    s_and_b64 s[50:51], s[50:51], s[60:61]
    v_mov_b32 v{TH}, 222
    v_cmp_eq_u32 s[62:63], v{TH}, v{T1}
    s_and_b64 s[62:63], s[62:63], s[60:61]
    s_andn2_b64 s[36:37], s[62:63], s[34:35]
    v_lshlrev_b32 v{TH+2}, 2, v{TH+2}
    v_add_u32 v{TH}, {448*4}, v{TH+2}
    v_cndmask_b32 v{AD+2}, v{AD+2}, v{TH}, s[36:37]
    v_add_u32 v{TH}, {449*4}, v{TH+2}
    v_add_u32 v{B_AD4}, {450*4}, v{TH+2}
    v_cndmask_b32 v{B_AD4}, v{B_AD4}, v{TH}, s[34:35]
    s_mul_i32 s33, s20, {PY*4}
    v_lshlrev_b32 v{B_VY}, 5, v{LANE}
    v_add_u32 v{B_VY}, s33, v{B_VY}
    s_add_u32 s33, s33, {448*4}
    v_mov_b32 v{B_AD4+1}, s33""")
    for i in range(8):
        a(f"v_alignbit_b32 v{B_A2+i}, v{AF+i}, v{AF+i}, 16")
        a(f"v_xor_b32 v{B_A2+i}, 0x8000, v{B_A2+i}")
    lim_regs(a, C_L, LANE, T0)
    a(f"""s_lshl_b32 s34, s20, 5
    s_add_u32 s34, s34, {LSEL}
    v_lshlrev_b32 v{T1}, 2, v{LANE}
    v_add_u32 v{C_SW}, s34, v{T1}
    v_add_u32 v{C_SR}, {LSEL}, v{T1}
    v_lshrrev_b32 v{C_KA}, 1, v0
    v_lshlrev_b32 v{C_KA}, {OPT['ksh']}, v{C_KA}
    v_and_b32 v{T0}, 1, v0
    v_lshl_add_u32 v{C_KA}, v{T0}, 4, v{C_KA}
    s_lshl_b32 s34, s20, 6
    s_add_u32 s34, s34, {LSE2}
    v_add_u32 v{C_FW}, s34, v{T1}
    v_lshrrev_b32 v{C_PF}, 3, v{LANE}
    v_and_b32 v{C_FY}, 7, v{LANE}
    v_lshlrev_b32 v{C_FR}, 6, v{C_PF}
    v_lshl_add_u32 v{C_FR}, v{C_FY}, 2, v{C_FR}
    v_add_u32 v{C_FR}, {LSE2}, v{C_FR}
    v_lshlrev_b32 v{C_FY}, 6, v{C_FY}
    v_add_u32 v{C_FY}, {LSE2 + 32}, v{C_FY}
    v_lshlrev_b32 v{C_PF}, 7, v{C_PF}
    s_cmp_ge_u32 s2, 224
    s_cselect_b32 s33, 1024, 0
    s_add_u32 s33, s33, {WS_ROW}
    {"s_and_b32 s27, s2, 7" if OPT['kperm'] else "s_mov_b32 s27, s2"}
    {"s_lshl_b32 s27, s27, 5" if OPT['kperm'] else ""}
    {"s_lshr_b32 s32, s2, 3" if OPT['kperm'] else ""}
    {"s_or_b32 s27, s27, s32" if OPT['kperm'] else ""}
    s_lshl_b32 s27, s27, {OPT['ksh']}
    s_add_u32 s27, s27, {WS_KEYS}
    s_sub_u32 s32, 2047, s96
    {f"v_bfe_u32 v{T0}, v0, 1, 5" if OPT['kperm'] else f"v_lshrrev_b32 v{T0}, 1, v0"}
    {f"v_lshlrev_b32 v{T0}, 3, v{T0}" if OPT['kperm'] else ""}
    {f"v_or_b32 v{T0}, s20, v{T0}" if OPT['kperm'] else ""}
    v_and_b32 v{T1}, 7, v{T0}
    v_lshrrev_b32 v{T2}, 6, v{T0}
    v_lshl_or_b32 v{T1}, v{T2}, 3, v{T1}
    v_sub_u32 v{T2}, 64, v{T1}
    v_cmp_eq_u32 vcc, 0, v{T1}
    v_bfe_u32 v{TH}, v{T0}, 3, 1
    v_cndmask_b32 v{T2}, v{T2}, 32, vcc
    v_cmp_eq_u32 vcc, 0, v{TH}
    v_bfe_u32 v{TH}, v{T0}, 4, 2
    v_cndmask_b32 v{T1}, v{T2}, v{T1}, vcc
    v_lshl_add_u32 v{T1}, v{TH}, 9, v{T1}
    v_and_b32 v{T0}, 1, v0
    v_lshl_add_u32 v{T1}, v{T0}, 8, v{T1}
    v_sub_u32 v{C_IX}, 2047, v{T1}
    v_subrev_u32 v{C_IX+1}, 64, v{C_IX}
    v_subrev_u32 v{C_IX+2}, 128, v{C_IX}
    v_subrev_u32 v{C_IX+3}, 192, v{C_IX}""")
    gu_prep(a)

def pro2(a):
    XU, WU, S1, S2, S3 = B_XU, B_WU, P_TH, P_TH + 2, P_TH + 4
    unpack8(a, WU, B_WR)
    a(f"""v_pk_add_f32 {v2(S1)}, {v2(WU)}, {v2(WU+2)}
    v_pk_add_f32 {v2(S2)}, {v2(WU+4)}, {v2(WU+6)}
    v_pk_add_f32 {v2(S1)}, {v2(S1)}, {v2(S2)}
    v_add_f32 v{S1}, v{S1}, v{S1+1}
    v_mov_b32 v{S2}, 0
    v_mov_b32 v{S3}, 0""")
    reduce3(a, S1, S2, S3, T0, 58, 39, 39)
    unpack8(a, XU, B_XR)
    for k in (B_S1, B_S1+1, B_S2, B_S2+1, B_S3, B_S3+1): a(f"v_mov_b32 v{k}, 0")

def anyones(a, regs_, t):
    regs_ = list(regs_)
    a(f"v_max_u32 v{t}, v{regs_[0]}, v{regs_[1]}")
    rest = regs_[2:]
    while len(rest) >= 2:
        a(f"v_max3_u32 v{t}, v{t}, v{rest[0]}, v{rest[1]}"); rest = rest[2:]
    if rest: a(f"v_max_u32 v{t}, v{t}, v{rest[0]}")
    a(f"v_cmp_eq_u32 vcc, -1, v{t}")

def wave_sum(a, v, sd):
    for k in (8, 4, 2, 1):
        a(f"v_add_u32_dpp v{v}, v{v}, v{v} row_ror:{k} row_mask:0xf bank_mask:0xf")
    for i in range(4): a(f"v_readlane_b32 s{sd+i}, v{v}, {16*i}")
    a(f"s_add_u32 s{sd}, s{sd}, s{sd+1}\ns_add_u32 s{sd+2}, s{sd+2}, s{sd+3}\ns_add_u32 s{sd}, s{sd}, s{sd+2}")

def publish_row(a):
    a("; publish this row (ln2 and out values, each closed by a checksum word)")
    a(f"""s_lshl_b32 s34, s96, 11
    s_add_u32 s34, s34, {WS_ROW}
    v_mov_b32 v{T0}, 0
    v_mov_b32 v{T1}, 0
    v_writelane_b32 v{C_LN}, 0, 56
    v_writelane_b32 v{C_OUT}, 0, 56
    s_mov_b32 exec_hi, 0x01ffffff
    v_add3_u32 v{T0}, v{C_LN}, v{C_LN+1}, v{C_LN+2}
    v_add3_u32 v{T1}, v{C_OUT}, v{C_OUT+1}, v{C_OUT+2}
    v_add_u32 v{T0}, v{T0}, v{C_LN+3}
    v_add_u32 v{T1}, v{T1}, v{C_OUT+3}
    s_mov_b32 exec_hi, -1""")
    wave_sum(a, T0, 36)
    a(f"s_sub_u32 s35, s98, s36\nv_writelane_b32 v{C_LN}, s35, 56")
    wave_sum(a, T1, 36)
    a(f"""s_sub_u32 s35, s98, s36
    v_writelane_b32 v{C_OUT}, s35, 56
    s_mov_b32 exec_hi, 0x01ffffff
    buffer_store_dwordx4 {v4(C_LN)}, v{VL}, s[12:15], s34 offen {SC}
    buffer_store_dwordx4 {v4(C_OUT)}, v{VL}, s[12:15], s34 offen offset:1024 {SC}
    s_mov_b32 exec_hi, -1""")

def fetch_row_issue(a, dst):
    a(f"""v_readlane_b32 s34, v{C_K}, s20
    s_andn2_b32 s34, 0x7ff, s34
    s_lshl_b32 s34, s34, 11
    s_add_u32 s34, s34, s33
    s_mov_b32 exec_hi, 0x01ffffff
    buffer_load_dwordx4 {v4(dst)}, v{VL}, s[12:15], s34 offen {SC}
    s_mov_b32 exec_hi, -1""")

def fetch_row_finish(a, dst, ldsaddr):
    _lbl[0] += 1
    L = f"Lrow{_lbl[0]}"
    a(f"""s_mul_i32 s29, s20, {PX}
    s_add_u32 s29, s29, {LXS}
    v_add_u32 v{ldsaddr}, s29, v{VL}
    s_mov_b32 s57, {SPIN}
    {L}:
    v_mov_b32 v{T0}, 0
    s_mov_b32 exec_hi, 0x01ffffff
    s_waitcnt vmcnt(0)
    ds_write_b128 v{ldsaddr}, {v4(dst)}
    v_add3_u32 v{T0}, v{dst}, v{dst+1}, v{dst+2}
    v_add_u32 v{T0}, v{T0}, v{dst+3}
    s_mov_b32 exec_hi, -1""")
    wave_sum(a, T0, 36)
    a(f"""s_cmp_eq_u32 s36, s98
    s_cbranch_scc1 {L}d
    s_mov_b32 exec_hi, 0x01ffffff
    s_waitcnt lgkmcnt(0)
    buffer_load_dwordx4 {v4(dst)}, v{VL}, s[12:15], s34 offen {SC}
    s_mov_b32 exec_hi, -1
    s_sub_u32 s57, s57, 1
    s_cbranch_scc0 {L}""")
    timeout_note(a, _lbl[0])
    a(f"{L}d:")

def gu_prep(a):
    srd(a, 16, 42, 448*3584)
    a(f"""v_mul_u32_u24 v{V_GU}, 3584, v0
    s_and_b32 s100, s2, 7
    s_mul_i32 s100, s100, 28
    s_lshr_b32 s101, s2, 3
    s_add_u32 s100, s100, s101
    s_lshl_b32 s26, s100, 4
    s_lshl_b32 s101, s20, 10
    s_add_u32 s101, s101, {LWT}
    s_and_b32 s45, s45, 0xffff
    s_cmp_ge_u32 s2, 224
    s_cselect_b32 s24, 7, s20""")

def gu_dma(a):
    a(f"""s_cmp_eq_u32 s24, 7
    s_cbranch_scc1 Lngu
    s_mov_b32 m0, s101
    s_add_u32 s101, s101, 8192
    buffer_load_dwordx4 v{V_GU}, s[16:19], s26 offen lds
    s_mov_b32 s16, s44
    s_mov_b32 m0, s101
    s_mov_b32 s17, s45
    buffer_load_dwordx4 v{V_GU}, s[16:19], s26 offen lds
    Lngu:""")

def wd_dma(a, j0, j1, L):
    if j0 == j1: return
    a(f"""s_cmp_lt_u32 s2, 224
    s_cbranch_scc1 {L}
    s_and_b32 s50, s2, 7
    s_cmp_eq_u32 s50, 7
    s_cbranch_scc1 {L}
    s_lshl_b32 s50, s50, 7
    s_bfe_u32 s51, s2, 0x20003
    s_lshl_b32 s51, s51, 5
    s_add_u32 s51, s51, s50""")
    srd(a, 16, 46, 1792*896)
    a(f"""v_lshrrev_b32 v{T1}, 1, v{LANE}
    v_mul_u32_u24 v{T1}, 896, v{T1}
    v_and_b32 v{T2}, 1, v{LANE}
    v_lshl_add_u32 v{T1}, v{T2}, 4, v{T1}
    s_mul_i32 s23, s20, {224*896}
    s_add_u32 s23, s23, s51
    s_add_u32 s23, s23, {j0*32*896}
    s_mul_i32 s25, s20, 7168
    s_add_u32 s25, s25, {LWT + j0*1024}""")
    for j in range(j0, j1):
        a(f"s_mov_b32 m0, s25")
        a(f"s_add_u32 s25, s25, 1024")
        a(f"buffer_load_dwordx4 v{T1}, s[16:19], s23 offen lds")
        a(f"s_add_u32 s23, s23, {32*896}")
    a(f"{L}:")

def b_main(a):
    a("; === phase B: fetch + validate U, 32-term DFT stage, h / LN2 / router key")
    R, AF, ACC, XU, WU, AD, TH = B_R, B_AF, B_ACC, B_XU, B_WU, B_AD, B_TH
    S1, S2, S3 = B_S1, B_S2, B_S3
    if OPT["sl_u0"]: a(f"s_sleep {OPT['sl_u0']}")
    def uld():
        for ks in range(2):
            for i in range(4):
                a(f"buffer_load_dwordx4 {v4(R+16*ks+4*i)}, v{B_VU}, s[12:15], s{28+2*ks+(i>>1)} offen offset:{2048*(i&1)} {SC}")
    a(f"s_mov_b32 s57, {SPIN}")
    uld()
    if OPT["prosplit"]: pro(a, 2)
    a("s_waitcnt vmcnt(8)")
    pro2(a)
    def swaps(ks):
        b = R + 16*ks
        for i in range(4):
            for j in range(i+1, 4):
                a(f"v_swap_b32 v{b+4*i+j}, v{b+4*j+i}")
    def mm(ks, dpp):
        for j in range(4):
            c = "0" if ks == 0 else v4(ACC+4*j)
            a(f"v_mfma_f32_16x16x32_f16 {v4(ACC+4*j)}, {v4(AF+4*ks)}, {v4(R+16*ks+4*j)}, {c}")
            if dpp: a(f"v_add_u32_dpp v{T0}, v{T0}, v{T0} row_ror:{8 >> j} row_mask:0xf bank_mask:0xf")
        a(f"v_mfma_f32_16x16x32_f16 {v4(TH)}, {v4(B_A2+4*ks)}, {v4(R+16*ks+8)}, {'0' if ks == 0 else v4(TH)}")
    if not OPT["part"]:
        a("s_branch Lupw\nLupoll:")
        uld()
        a("Lupw:")
    for ks in range(2):
        a(f"s_waitcnt vmcnt({4-4*ks})")
        b = R + 16*ks
        for i in range(8):
            if ks == 0 and i == 0: a(f"v_add_u32 v{T0}, v{b}, v{b+1}")
            else: a(f"v_add3_u32 v{T0}, v{T0}, v{b+2*i}, v{b+2*i+1}")
        swaps(ks)
        mm(ks, ks == 1)
    a(f"""v_cmp_ne_u32 vcc, s99, v{T0}
    s_cmp_eq_u64 vcc, 0""")
    if OPT["part"]:
        a("s_cbranch_scc0 Lupart")
        def part():
            C4 = B_TH
            a("Lupart:\ns_lshl_b32 s34, s98, 4")
            swaps(0); swaps(1)
            a("Lupchk:")
            for i in range(4):
                a(f"v_add3_u32 v{C4+i}, v{R+4*i}, v{R+4*i+1}, v{R+4*i+2}")
            for i in range(4):
                a(f"v_add3_u32 v{C4+i}, v{C4+i}, v{R+4*i+3}, v{R+16+4*i}")
            for i in range(4):
                a(f"v_add3_u32 v{C4+i}, v{C4+i}, v{R+16+4*i+1}, v{R+16+4*i+2}")
            for i in range(4):
                a(f"v_add_u32 v{C4+i}, v{C4+i}, v{R+16+4*i+3}")
            for k in (8, 4, 2, 1):
                for i in range(4):
                    a(f"v_add_u32_dpp v{C4+i}, v{C4+i}, v{C4+i} row_ror:{k} row_mask:0xf bank_mask:0xf")
            MK = ["s[36:37]", "s[38:39]", "s[24:25]", "vcc"]
            for i in range(4): a(f"v_cmp_ne_u32 {MK[i]}, s34, v{C4+i}")
            a(f"""s_or_b64 s[26:27], s[36:37], s[38:39]""".replace("s[26:27]", "s[100:101]"))
            a(f"""s_or_b64 s[100:101], s[100:101], s[24:25]
            s_or_b64 s[100:101], s[100:101], vcc
            s_cbranch_scc0 Lupgo""")
            if OPT["sl_r"]: a(f"s_sleep {OPT['sl_r']}")
            for i in range(4):
                a(f"s_cmp_eq_u64 {MK[i]}, 0\ns_cbranch_scc1 Lupok{i}")
                for ks in range(2):
                    a(f"buffer_load_dwordx4 {v4(R+16*ks+4*i)}, v{B_VU}, s[12:15], s{28+2*ks+(i>>1)} offen offset:{2048*(i&1)} {SC}")
                a(f"Lupok{i}:")
            a(f"""s_waitcnt vmcnt(0)
            s_sub_u32 s57, s57, 1
            s_cbranch_scc0 Lupchk
            Lupgo:""")
            for ks in range(2):
                swaps(ks); mm(ks, False)
            a("s_nop 7\ns_branch Lupolld")
        TAIL.append(part)
    else:
        a(f"""s_cbranch_scc1 Lupolld
        s_sub_u32 s57, s57, 1
        s_cbranch_scc0 Lupoll""")
        timeout_note(a, 9)
    a("Lupolld:")
    stamp(a, 6)
    if OPT["stamps"] == 3: a(f"s_sub_u32 s{64+2*11}, {SPIN+1}, s57")
    if OPT["stamps"] == 3: a(f"s_sub_u32 s{64+2*11}, {SPIN+1}, s57")
    for j in range(4):
        if j in (0, 3): a(f"s_mov_b64 exec, {['s[60:61]', '', '', 's[50:51]'][j]}")
        for r in (0, 2):
            a(f"ds_write2st64_b32 v{AD+j}, v{ACC+4*j+r}, v{ACC+4*j+r+1} offset0:{r*PY//64} offset1:{(r+1)*PY//64}")
    a("s_cmp_lg_u32 s21, 7\ns_cbranch_scc1 Lndc\ns_mov_b64 exec, s[62:63]")
    for r in (0, 2):
        a(f"ds_write2st64_b32 v{B_AD4}, v{TH+r}, v{TH+r+1} offset0:{r*PY//64} offset1:{(r+1)*PY//64}")
    a("Lndc:\ns_mov_b64 exec, -1")
    if OPT["pfl"]:
        a(f"s_lshl_b32 s36, 1, s20\ns_and_b32 s36, s36, {OPT['pfl'] << 1}\ns_cbranch_scc0 Lpflx")
        prefetch(a, sfx="l", R=4, X=36)
        a("Lpflx:")
    gu_dma(a)
    wd_dma(a, 0, OPT['wdsplit'], 'Lnwd0')
    a("""s_mov_b32 exec_hi, 0x00ffffff
    s_waitcnt lgkmcnt(0)
    s_barrier""")
    H = R
    a(f"ds_read_b128 {v4(TH)}, v{B_AD4+1}\nds_read_b128 {v4(H)}, v{B_VY} offset:{LY}\nds_read_b128 {v4(H+4)}, v{B_VY} offset:{LY+16}")
    a("s_mov_b64 s[36:37], 1\ns_mov_b64 s[38:39], 0x10000001")
    for hf in range(2):
        a(f"s_waitcnt lgkmcnt({1-hf})")
        if hf == 0:
            a(f"""v_add_f32 v{TH+1}, v{TH+1}, v{TH+2}
            v_add_f32 v{TH}, v{TH}, v{H}
            v_cndmask_b32 v{TH}, v{TH}, v{TH+1}, s[36:37]
            v_mul_f32 v{TH}, 0.5, v{TH}
            v_cndmask_b32 v{H}, v{H}, v{TH}, s[38:39]""")
        for p in range(2):
            x = 4*hf + 2*p
            a(f"v_pk_add_f32 {v2(H+x)}, {v2(H+x)}, {v2(XU+x)}")
        for p in range(2):
            x = 4*hf + 2*p
            a(f"v_pk_add_f32 {v2(S1)}, {v2(S1)}, {v2(H+x)}")
            a(f"v_pk_fma_f32 {v2(S2)}, {v2(H+x)}, {v2(H+x)}, {v2(S2)}")
            a(f"v_pk_fma_f32 {v2(S3)}, {v2(H+x)}, {v2(WU+x)}, {v2(S3)}")
    a(f"""s_mov_b32 exec_hi, -1
    v_add_f32 v{S1}, v{S1}, v{S1+1}
    v_add_f32 v{S2}, v{S2}, v{S2+1}
    v_add_f32 v{S3}, v{S3}, v{S3+1}""")
    reduce3(a, S1, S2, S3, T0, 37, 38, 39)
    M, V, SD, RS, C0, KEY = TH, TH+1, TH+2, TH+4, TH+6, C_KEY
    a(f"""v_mov_b32 v{V}, {fl(1.0/448)}
    v_mul_f32 v{M}, s37, v{V}
    v_mul_f32 v{V}, s38, v{V}
    v_mov_b32 v{KEY}, s39
    v_fma_f32 v{V}, -v{M}, v{M}, v{V}
    v_fma_f32 v{KEY}, -v{M}, s58, v{KEY}
    v_max_f32 v{SD}, 0, v{V}
    v_add_f32 v{V}, {fl(1e-5)}, v{SD}""")
    a(f"""v_rsq_f32 v{RS}, v{V}
    s_lshl_b32 s34, s20, 2
    v_mov_b32 v{T2}, s34
    v_mul_f32 v{KEY}, v{KEY}, v{RS}
    v_cvt_pk_bf16_f32 v{KEY}, v{KEY}, v{KEY}
    v_ashrrev_i32 v{T0}, 31, v{KEY}
    v_or_b32 v{T0}, 0x80000000, v{T0}
    v_xor_b32 v{KEY}, v{KEY}, v{T0}
    v_and_b32 v{KEY}, 0xffff0000, v{KEY}
    v_or_b32 v{KEY}, s32, v{KEY}
    ds_write_b32 v{T2}, v{KEY} offset:{LKEY}
    v_mov_b32 v{C_STK}, 0xffff
    v_lshlrev_b32 v{T1}, 2, v{LANE}
    v_mov_b32 v{T2}, {LKEY}
    s_waitcnt lgkmcnt(0)
    s_barrier
    s_cmp_lg_u32 s20, 0
    s_cbranch_scc1 Lnokey
    s_mov_b64 exec, 0xff
    ds_read_b32 v{T0}, v{T1} offset:{LKEY}
    s_waitcnt lgkmcnt(0)
    v_bfi_b32 v{T0}, v{C_STK}, s59, v{T0}
    buffer_store_dword v{T0}, v{T1}, s[12:15], s27 offen {SC}
    s_mov_b64 exec, -1
    Lnokey:
    ds_read_b128 {v4(ACC)}, v{T2}
    ds_read_b128 {v4(ACC+4)}, v{T2} offset:16""")
    stamp(a, 7)
    sd_chain(a, SD, SD)
    a(f"v_rcp_f32 v{RS}, v{SD}\ns_nop 0\nv_mul_f32 v{C0}, -v{M}, v{RS}")
    for p in range(4):
        a(f"v_pk_fma_f32 {v2(XU+2*p)}, {v2(H+2*p)}, {v2(RS)}, {v2(C0)} op_sel_hi:[1,0,0]")
    for p in range(4):
        a(f"v_pk_add_f32 {v2(H+2*p)}, {v2(H+2*p)}, {v2(XU+2*p)}")
    for p in range(4):
        a(f"v_cvt_pk_bf16_f32 v{C_LN+p}, v{XU+2*p}, v{XU+2*p+1}")
        a(f"v_cvt_pk_bf16_f32 v{C_OUT+p}, v{H+2*p}, v{H+2*p+1}")
    a(f"""s_waitcnt lgkmcnt(0)
    v_max3_u32 v{T0}, v{ACC}, v{ACC+1}, v{ACC+2}
    v_max3_u32 v{T1}, v{ACC+3}, v{ACC+4}, v{ACC+5}
    v_max3_u32 v{T0}, v{T0}, v{ACC+6}, v{ACC+7}
    v_max_u32 v{T0}, v{T0}, v{T1}
    v_cmp_eq_u32 s[60:61], v{T0}, v{KEY}
    s_cmp_eq_u64 s[60:61], 0
    s_cbranch_scc1 Lnoeager""")
    publish_row(a)
    a("Lnoeager:")

QP = {1: "quad_perm:[1,0,3,2]", 2: "quad_perm:[2,3,0,1]", 3: "quad_perm:[3,2,1,0]", 7: "row_half_mirror"}
class Net:
    def __init__(s, a, x, t, fill): s.a = a; s.x = x; s.t = t; s.fill = list(fill)
    def f(s, n=1):
        for _ in range(n):
            if s.fill: s.a(s.fill.pop(0))
    def ce(s, m):
        a, x, t = s.a, s.x, s.t
        s.f()
        if m == 4:
            a(f"v_max_u32_dpp v{t}, v{x}, v{x} row_shl:4 row_mask:0xf bank_mask:0x5")
            a(f"v_min_u32_dpp v{t}, v{x}, v{x} row_shr:4 row_mask:0xf bank_mask:0xa")
            s.x, s.t = t, x
        else:
            a(f"v_mov_b32_dpp v{t}, v{x} {QP[m]} row_mask:0xf bank_mask:0xf")
            a(f"v_med3_u32 v{x}, v{x}, v{t}, v{C_L[1 << (m.bit_length()-1)]}")
    def merge(s, last_clean=True):
        a = s.a
        s.f()
        a(f"v_max_u32_dpp v{s.x}, v{s.x}, v{s.x} row_mirror row_mask:0xf bank_mask:0xf")
        for m in (4, 2, 1): s.ce(m)
        for sw in ("v_permlane16_swap_b32", "v_permlane32_swap_b32"):
            a(f"v_mov_b32 v{s.t}, v{s.x}")
            s.f()
            a(f"{sw} v{s.x}, v{s.t}")
            s.f()
            a(f"v_max_u32_dpp v{s.x}, v{s.t}, v{s.x} row_half_mirror row_mask:0xf bank_mask:0xf")
            if last_clean or "16" in sw:
                for m in (4, 2, 1): s.ce(m)
        s.f(99)

def fast_select(a):
    K, X, Y, P, Q = C_K, C_X, C_Y, C_TMP, C_TMP + 1
    a(f"""v_max_u32 v{P}, v{K}, v{K+1}
    v_max_u32 v{Q}, v{K+2}, v{K+3}
    v_max_u32 v{X}, v{P}, v{Q}""")
    fill = [f"v_min_u32 v{Y}, v{P}, v{Q}", f"v_min_u32 v{P}, v{K}, v{K+1}", f"v_min_u32 v{Q}, v{K+2}, v{K+3}",
            f"v_max3_u32 v{Y}, v{Y}, v{P}, v{Q}"]
    fill += [f"v_max_u32_dpp v{Y}, v{Y}, v{Y} row_ror:{k} row_mask:0xf bank_mask:0xf" for k in (8, 4, 2, 1)]
    fill += [f"v_mov_b32 v{P}, v{Y}", f"v_permlane16_swap_b32 v{Y}, v{P}", f"v_max_u32 v{Y}, v{Y}, v{P}",
             f"v_mov_b32 v{P}, v{Y}", f"v_permlane32_swap_b32 v{Y}, v{P}", f"v_max_u32 v{Y}, v{Y}, v{P}",
             "s_mov_b64 vcc, 0x100"]
    n = Net(a, X, C_TMP + 2, fill)
    for m in (1, 3, 1, 7, 2, 1): n.ce(m)
    n.merge()
    a(f"""s_mov_b64 exec, 0x1ff
    v_cndmask_b32 v{P}, v{n.x}, v{Y}, vcc
    ds_write_b32 v{C_FW}, v{P}""")
    if OPT["rowpf"]:
        m8 = (1 << OPT["rowpf"]) - 1; m32 = m8 * 0x01010101
        a(f"""s_mov_b32 exec_lo, {hex(m32)}
        s_mov_b32 exec_hi, {hex(m32)}
        v_bfi_b32 v{Q}, v{n.x}, 0, v{C_TMP+3}
        v_lshl_add_u32 v{Q}, v{Q}, 11, v{C_PF}
        buffer_load_dword v{JUNK}, v{Q}, s[12:15], s33 offen {SC}""")
    a(f"""s_mov_b64 exec, -1
    s_waitcnt lgkmcnt(0)
    s_barrier
    ds_read_b32 v{X}, v{C_FR}
    ds_read_b32 v{Y}, v{C_FY}
    s_waitcnt lgkmcnt(0)""")
    fill = [f"v_max_u32_dpp v{Y}, v{Y}, v{Y} {QP[m]} row_mask:0xf bank_mask:0xf" for m in (1, 2, 7)]
    n = Net(a, X, C_TMP + 2, fill)
    n.merge(last_clean=False)
    a(f"""v_cmp_gt_u32 vcc, v{Y}, v{n.x}
    s_cmp_eq_u64 vcc, 0
    s_cbranch_scc0 Lfullsel
    v_mov_b32 v{K}, v{n.x}
    Lseldone:""")

def c_select(a):
    a("; === top-8 selection over all router keys")
    K = C_K
    a(f"s_mov_b32 s34, {WS_KEYS}\nv_mov_b32 v{C_TMP+3}, 0x7ff")
    def chk():
        a(f"v_xor_b32 v{T0}, v{K}, v{K+1}")
        a(f"v_xor_b32 v{T1}, v{K+2}, v{K+3}")
        a(f"v_xor_b32 v{T2}, s59, v{K}")
        a(f"v_xor_b32 v{C_X}, s59, v{K+2}")
        a(f"v_or3_b32 v{T0}, v{T0}, v{T1}, v{T2}")
        for i in range(4): a(f"v_bfi_b32 v{K+i}, v{C_STK}, v{C_IX+i}, v{K+i}")
        a(f"v_or_b32 v{T0}, v{T0}, v{C_X}")
        a(f"v_cmp_ne_u16 vcc, 0, v{T0}")
    poll(a, lambda: a(f"buffer_load_dwordx4 {v4(K)}, v{C_KA}, s[12:15], s34 offen {SC}"), chk, pre=OPT["sl_k"])
    stamp(a, 8)
    fast_select(a)
    stamp(a, 9)
    a(f"""v_cmp_eq_u32 vcc, v{K}, v{C_KEY}
    s_and_b64 s[62:63], vcc, s[60:61]
    s_cmp_lg_u64 s[62:63], vcc
    s_cbranch_scc0 Lsel_pub""")
    publish_row(a)
    a("Lsel_pub:")
    fetch_row_issue(a, 84)
    a(f"""s_cmp_eq_u64 vcc, 0
    s_cbranch_scc0 Lsel_done
    s_mov_b32 exec_hi, 0x00ffffff
    buffer_store_dwordx4 {v4(C_OUT)}, v{VL}, s[52:55], s97 offen {['', 'sc1', 'nt', 'sc0 sc1'][OPT['ost']]}
    s_mov_b32 exec_hi, -1
    Lsel_done:""")

def c1(a):
    a("; === gate / up projection for this workgroup's 8 FFN columns")
    XR = 84; XF_ = 168; ACC = 52; XU = 60; WF = 88
    a(f"""s_cmp_lg_u32 s20, 0
    s_cbranch_scc1 Lc1_now
    v_lshrrev_b32 v{T0}, 2, v{N}
    v_lshl_add_u32 v{T0}, v{G}, 3, v{T0}
    v_lshlrev_b32 v{T0}, 4, v{T0}
    v_and_b32 v{T1}, 1, v{N}
    v_lshl_add_u32 v{T0}, v{T1}, 3, v{T0}
    v_bfe_u32 v{T1}, v{N}, 1, 1
    v_lshl_add_u32 v{T0}, v{T1}, 13, v{T0}
    v_add_u32 v{T0}, {LWT}, v{T0}""")
    for j in range(14):
        for h in range(2):
            a(f"ds_read_b64_tr_b16 {v2(WF+4*j+2*h)}, v{T0} offset:{(32*j+4*h)*16}")
    a(f"""v_and_b32 v{XU+4}, 7, v{N}
    v_mul_u32_u24 v{XU+4}, {PX}, v{XU+4}
    v_lshl_add_u32 v{XU+4}, v{G}, 4, v{XU+4}
    v_lshlrev_b32 v{XU+5}, 4, v{N}
    v_lshl_add_u32 v{XU+5}, v{G}, 3, v{XU+5}
    s_lshl_b32 s22, s100, 7
    s_add_u32 s22, s22, {WS_ACT}
    Lc1_now:""")
    fetch_row_finish(a, XR, T2)
    a(f"""s_waitcnt lgkmcnt(0)
    s_barrier
    s_cmp_lg_u32 s20, 0
    s_cbranch_scc1 Lc1_epoch""")
    stamp(a, 10)
    for j in range(14):
        a(f"ds_read_b128 {v4(XF_+4*j)}, v{XU+4} offset:{LXS+64*j}")
    for j in range(14):
        a(f"s_waitcnt lgkmcnt({13-j})")
        A = ACC + 4*(j & 1)
        a(f"v_mfma_f32_16x16x32_bf16 {v4(A)}, {v4(WF+4*j)}, {v4(XF_+4*j)}, {'0' if j < 2 else v4(A)}")
    for p in range(2):
        a(f"v_pk_add_f32 {v2(ACC+2*p)}, {v2(ACC+2*p)}, {v2(ACC+4+2*p)}")
    for p in range(2): a(f"v_cvt_pk_bf16_f32 v{ACC+4+p}, v{ACC+2*p}, v{ACC+2*p+1}")
    for p in range(2): a(f"v_mov_b32 v{ACC+6+p}, v{ACC+4+p}")
    for p in range(2): a(f"v_permlane32_swap_b32 v{ACC+4+p}, v{ACC+6+p}")
    for p in range(2):
        a(f"v_lshlrev_b32 v{ACC+2*p}, 16, v{ACC+4+p}")
        a(f"v_and_b32 v{ACC+2*p+1}, 0xffff0000, v{ACC+4+p}")
    for r in range(4): a(f"v_mul_f32 v{XU+r}, {fl(-1.4426950408889634)}, v{ACC+r}")
    for r in range(4): a(f"v_exp_f32 v{XU+r}, v{XU+r}")
    for p in range(2):
        a(f"v_lshlrev_b32 v{XR+2*p}, 16, v{ACC+6+p}")
        a(f"v_and_b32 v{XR+2*p+1}, 0xffff0000, v{ACC+6+p}")
    for r in range(4): a(f"v_add_f32 v{XU+r}, 1.0, v{XU+r}")
    for r in range(4): a(f"v_rcp_f32 v{XU+r}, v{XU+r}")
    for r in range(4): a(f"v_mul_f32 v{ACC+r}, v{ACC+r}, v{XU+r}")
    for p in range(2): a(f"v_cvt_pk_bf16_f32 v{ACC+4+p}, v{ACC+2*p}, v{ACC+2*p+1}")
    for p in range(2):
        a(f"v_lshlrev_b32 v{ACC+2*p}, 16, v{ACC+4+p}")
        a(f"v_and_b32 v{ACC+2*p+1}, 0xffff0000, v{ACC+4+p}")
    for p in range(2): a(f"v_pk_mul_f32 {v2(ACC+2*p)}, {v2(ACC+2*p)}, {v2(XR+2*p)}")
    for p in range(2): a(f"v_cvt_pk_bf16_f32 v{XR+p}, v{ACC+2*p}, v{ACC+2*p+1}")
    for p in range(2): a(f"v_min_u32 v{XR+p}, -2, v{XR+p}")
    a(f"""s_mov_b32 exec_lo, 0x00ff00ff
    s_mov_b32 exec_hi, 0
    buffer_store_dwordx2 {v2(XR)}, v{XU+5}, s[12:15], s22 offen {SC}
    s_branch Lend
    Lc1_epoch:
    s_lshl_b32 s29, s2, 3
    s_add_u32 s29, s29, s20
    s_cmp_lg_u32 s29, 1
    s_cbranch_scc1 Lend
    s_mov_b64 exec, 1
    v_mov_b32 v{T0}, s56
    s_mov_b32 s29, {WS_EPOCH}
    buffer_store_dword v{T0}, v{VL}, s[12:15], s29 offen {SC}
    s_branch Lend""")

def c2(a):
    a("; === down projection for 16 output columns, routed rows written")
    K = C_K
    OA = 8; OR = 10; SG = 12; VA = 13; VO = 14; VW = 15; WF = 88; AF = 116; ACC = 52; RD = 168
    a(f"""s_mul_i32 s24, s20, 7168
    s_add_u32 s24, s24, {LWT}
    v_lshrrev_b32 v{T0}, 2, v{N}
    v_lshl_add_u32 v{T0}, v{G}, 3, v{T0}
    v_lshlrev_b32 v{T0}, 5, v{T0}
    v_and_b32 v{T1}, 3, v{N}
    v_lshl_add_u32 v{T0}, v{T1}, 3, v{T0}
    v_add_u32 v{VW}, s24, v{T0}""")
    for j in range(7):
        for h in range(2):
            a(f"ds_read_b64_tr_b16 {v2(WF+4*j+2*h)}, v{VW} offset:{(32*j+4*h)*32}")
    a(f"""v_and_b32 v{T1}, 7, v{N}
    v_mul_u32_u24 v{VO}, {PX}, v{T1}
    v_lshl_add_u32 v{VO}, v{G}, 3, v{VO}
    v_add_u32 v{VO}, s51, v{VO}
    v_lshlrev_b32 v{VA}, 4, v{T1}
    v_lshl_add_u32 v{VA}, v{G}, 7, v{VA}
    s_mul_i32 s25, s20, {7*512}
    s_add_u32 s25, s25, {WS_ACT}
    v_and_b32 v{OA}, 0x7ff, v{K}
    v_sub_u32 v{OA}, 2047, v{OA}
    v_mul_u32_u24 v{OA}, 896, v{OA}
    v_lshl_add_u32 v{OA}, v{G}, 3, v{OA}
    v_ashrrev_i32 v{T2}, 31, v{K}
    v_not_b32 v{T2}, v{T2}
    v_or_b32 v{T2}, 0x80000000, v{T2}
    v_xor_b32 v{K+1}, v{K}, v{T2}
    v_and_b32 v{K+1}, 0xffff0000, v{K+1}""")
    sigmoid_mul(a, SG, K+1, "1.0", T2)
    rbf(a, SG, SG)
    a(f"""v_lshlrev_b32 v{T1}, 4, v0
    v_add_u32 v{T1}, {LRED}, v{T1}""")
    def lds():
        for j in range(7):
            a(f"buffer_load_dwordx4 {v4(AF+4*j)}, v{VA}, s[12:15], s25 offen offset:{512*j} {SC}")
    if OPT["c2re"]:
        if OPT["sl_a"]: a(f"s_sleep {OPT['sl_a']}")
        msk = "s_mov_b32 exec_lo, 0x00ff00ff\ns_mov_b32 exec_hi, 0x00ff00ff" if OPT["amask"] else ""
        a(msk)
        lds()
        a("s_mov_b64 exec, -1")
        fetch_row_finish(a, 84, T2)
        a(msk)
        anyones(a, range(AF, AF+28), T0)
        a("s_cmp_eq_u64 vcc, 0\ns_cbranch_scc1 Lactok")
        poll(a, lds, lambda: anyones(a, range(AF, AF+28), T0))
        a("Lactok:\ns_mov_b64 exec, -1")
    else:
        fetch_row_finish(a, 84, T2)
        poll(a, lds, lambda: anyones(a, range(AF, AF+28), T0), pre=OPT["sl_a"])
    stamp(a, 10)
    a("s_waitcnt lgkmcnt(0)")
    for j in range(7):
        A = ACC + 4*(j & 1)
        a(f"v_mfma_f32_16x16x32_bf16 {v4(A)}, {v4(WF+4*j)}, {v4(AF+4*j)}, {'0' if j < 2 else v4(A)}")
    for p in range(2):
        a(f"v_pk_add_f32 {v2(ACC+2*p)}, {v2(ACC+2*p)}, {v2(ACC+4+2*p)}")
    a(f"""ds_write_b128 v{T1}, {v4(ACC)}
    s_waitcnt lgkmcnt(0)
    s_barrier
    s_cmp_lg_u32 s20, 0
    s_cbranch_scc1 Lend
    ds_read_b64 {v2(OR)}, v{VO} offset:{LXS}""")
    for w in range(1, 8):
        a(f"ds_read_b128 {v4(RD+4*w)}, v{T1} offset:{1024*w}")
    a("s_waitcnt lgkmcnt(7)")
    for i in range(2):
        a(f"v_lshlrev_b32 v{RD+2*i}, 16, v{OR+i}")
        a(f"v_and_b32 v{RD+2*i+1}, 0xffff0000, v{OR+i}")
    for w in range(1, 8):
        a(f"s_waitcnt lgkmcnt({7-w})")
        for p in range(2):
            a(f"v_pk_add_f32 {v2(ACC+2*p)}, {v2(ACC+2*p)}, {v2(RD+4*w+2*p)}")
    for rnd in range(2):
        for p in range(2): a(f"v_cvt_pk_bf16_f32 v{ACC+4+p}, v{ACC+2*p}, v{ACC+2*p+1}")
        for p in range(2):
            a(f"v_lshlrev_b32 v{ACC+2*p}, 16, v{ACC+4+p}")
            a(f"v_and_b32 v{ACC+2*p+1}, 0xffff0000, v{ACC+4+p}")
        for p in range(2):
            if rnd == 0: a(f"v_pk_mul_f32 {v2(ACC+2*p)}, {v2(ACC+2*p)}, {v2(SG)} op_sel_hi:[1,0]")
            else: a(f"v_pk_add_f32 {v2(ACC+2*p)}, {v2(ACC+2*p)}, {v2(RD+2*p)}")
    for p in range(2): a(f"v_cvt_pk_bf16_f32 v{OR+p}, v{ACC+2*p}, v{ACC+2*p+1}")
    a(f"""s_mov_b32 exec_lo, 0x00ff00ff
    s_mov_b32 exec_hi, 0x00ff00ff
    buffer_store_dwordx2 {v2(OR)}, v{OA}, s[52:55], s51 offen {['', 'sc1', 'nt', 'sc0 sc1'][OPT['ost']]}""")

def clears(a):
    a(f"""v_mov_b32 v{JUNK+2}, -1
    v_lshlrev_b32 v{T1}, 2, v{LANE}
    s_lshl_b32 s24, s2, 7
    s_add_u32 s24, s24, {WS_ACT}
    s_mov_b32 exec_hi, 0
    buffer_store_dword v{JUNK+2}, v{T1}, s[12:15], s24 offen {SC}
    s_mov_b32 exec_lo, 1
    s_lshl_b32 s23, s96, 11
    s_add_u32 s23, s23, {WS_ROW}
    buffer_load_dword v{JUNK}, v{VL}, s[52:55], s97 offen
    buffer_load_dword v{JUNK+1}, v{VL}, s[12:15], s23 offen
    s_mov_b64 exec, -1""")

def prefetch(a, w0=1, T0=T0, T1=T1, sfx="", R=16, X=24):
    a("; L2 warm-up of the FFN weights (one word per line, values unused)")
    a(f"""s_and_b32 s{X+0}, s2, 7
    s_lshr_b32 s{X+1}, s2, 3
    s_mul_i32 s{X+2}, s{X+1}, {14*3584}
    s_mov_b32 s{R+2}, {448*3584}
    s_mov_b32 s{R+3}, 0x00020000
    s_cmp_eq_u32 s20, {w0+2}
    s_cbranch_scc1 Lpf_d{sfx}
    v_lshrrev_b32 v{T0}, 2, v{LANE}
    v_mul_u32_u24 v{T0}, 3584, v{T0}
    v_and_b32 v{T1}, 3, v{LANE}
    v_lshl_add_u32 v{T0}, v{T1}, 7, v{T0}
    s_mul_i32 s{X+0}, s{X+0}, 448
    s_cmp_eq_u32 s20, {w0}
    s_cselect_b32 s{R+0}, s42, s44
    s_cselect_b32 s{R+1}, s43, s45
    s_branch Lpf_go{sfx}
    Lpf_d{sfx}:
    v_mul_u32_u24 v{T0}, 896, v{LANE}
    s_lshl_b32 s{X+0}, s{X+0}, 7
    s_mov_b32 s{R+0}, s46
    s_mov_b32 s{R+1}, s47
    Lpf_go{sfx}:
    s_and_b32 s{R+1}, s{R+1}, 0xffff
    s_add_u32 s{X+2}, s{X+2}, s{X+0}
    s_mov_b32 exec_hi, 0x00ffffff
    buffer_load_dword v{JUNK}, v{T0}, s[{R}:{R+3}], s{X+2} offen
    s_mov_b32 exec_hi, -1""")

def amap():
    m = OPT["amap"]
    if m == 0: return "s_and_b32 s21, s2, 31\ns_lshr_b32 s22, s2, 5"
    lc = m
    return (f"s_bfe_u32 s22, s2, {hex(((3-lc) << 16) | 0)}\ns_lshl_b32 s22, s22, {lc}\ns_bfe_u32 s21, s2, {hex((lc << 16) | 3)}\ns_or_b32 s22, s22, s21\n"
            f"s_bfe_u32 s21, s2, {hex((lc << 16) | (3-lc))}\ns_lshl_b32 s21, s21, {5-lc}\ns_lshr_b32 s12, s2, {3+lc}\ns_or_b32 s21, s21, s12")

def kernel(a):
    if OPT["stamps"]:
        for k in range(NST): a(f"s_mov_b32 s{64+2*k}, 0")
    stamp(a, 0)
    a(f"""v_readfirstlane_b32 s20, v0
    s_cmp_ge_u32 s2, 256
    s_cbranch_scc1 Lexit
    s_cmp_lt_u32 s20, 256
    s_cbranch_scc1 Lloader""")
    if OPT["b1"] == 2: a(f"v_mov_b32 v{T1}, {LTAG + 4}\nv_mov_b32 v{T2}, 0\nds_write_b32 v{T1}, v{T2}")
    a(f"""
    s_getpc_b64 s[30:31]
    Lpc:
    v_and_b32 v{T2}, 255, v0
    v_lshlrev_b32 v{JUNK}, 7, v{T2}
    v_mov_b32 v{JUNK+1}, s31
    v_add_co_u32 v{JUNK}, vcc, s30, v{JUNK}
    v_addc_co_u32 v{JUNK+1}, vcc, 0, v{JUNK+1}, vcc
    v_cmp_gt_u32 vcc, (Lexit-Lpc)/128+1, v{T2}
    s_and_saveexec_b64 s[30:31], vcc
    s_cbranch_execz Lpfd
    global_load_dword v{JUNK+2}, v[{JUNK}:{JUNK+1}], off
    Lpfd:""")
    if OPT["b1"] == 2: a("s_waitcnt lgkmcnt(0)\ns_barrier")
    a(f"""s_branch Lcompute
    Lloader:
    s_load_dwordx2 s[8:9], s[0:1], 0
    s_lshr_b32 s20, s20, 6
    v_and_b32 v{LANE}, 63, v0
    v_lshlrev_b32 v{VL}, 4, v{LANE}
    {amap()}
    s_mov_b32 s10, {XB}
    s_mov_b32 s11, 0x00020000
    v_cmp_lt_u32 vcc, 29, v{LANE}
    s_lshl_b32 s23, s20, 9
    s_add_u32 s23, s23, s21
    s_mul_i32 s23, s23, 896
    s_mul_i32 s24, s20, {16*PH}
    v_add_u32 v{T1}, {32*896 - 480}, v{VL}
    s_mov_b32 s25, {'s22' if OPT['rot'] else '0'}
    v_cndmask_b32 v{T1}, v{VL}, v{T1}, vcc
    s_mov_b32 exec_lo, 0xcfffffff
    s_mov_b32 exec_hi, 0x03ffffff
    s_mov_b32 s28, 0""")
    if OPT["b1"] == 2: a("s_barrier")
    a("s_waitcnt lgkmcnt(0)")
    stamp(a, 3, True)
    if OPT["dmau"]:
        a("Ldma:")
        for i in range(8):
            a(f"""s_mul_i32 s26, s25, {2*PH}
            s_mul_i32 s27, s25, {64*896}
            s_add_u32 m0, s26, s24
            s_add_u32 s27, s27, s23
            s_add_u32 s25, s25, 1
            buffer_load_dwordx4 v{T1}, s[8:11], s27 offen lds
            s_and_b32 s25, s25, 7""")
        a(f"""s_add_u32 s24, s24, {LXH}
        s_add_u32 s23, s23, 448
        s_add_u32 s28, s28, 1
        s_cmp_lt_u32 s28, 2""")
        if OPT["b1"] == 1: a("s_cbranch_scc0 Ldmad\ns_barrier\ns_branch Ldma\nLdmad:")
        else: a("s_cbranch_scc1 Ldma")
    else:
        a(f"""Ldma:
        s_mul_i32 s26, s25, {2*PH}
        s_mul_i32 s27, s25, {64*896}
        s_add_u32 s26, s26, s24
        s_add_u32 s27, s27, s23
        s_mov_b32 m0, s26
        s_add_u32 s25, s25, 1
        buffer_load_dwordx4 v{T1}, s[8:11], s27 offen lds
        s_and_b32 s25, s25, 7
        s_add_u32 s28, s28, 1
        s_cmp_lg_u32 s28, 8
        s_cbranch_scc1 Ldma1
        s_add_u32 s24, s24, {LXH}
        s_add_u32 s23, s23, 448
        Ldma1:
        s_cmp_lt_u32 s28, 16
        s_cbranch_scc1 Ldma""")
    def ltail():
        a(f"""Lltail:
        s_mov_b64 exec, -1
        s_load_dwordx2 s[6:7], s[0:1], 96
        s_load_dwordx8 s[40:47], s[0:1], 48
        s_load_dwordx2 s[48:49], s[0:1], 80
        v_and_b32 v{N}, 15, v0
        v_bfe_u32 v{G}, v0, 4, 2""")
        stamp(a, 6, True)
        early = OPT["e2a"]
        if early:
            a("s_waitcnt vmcnt(8)")
            stamp(a, 1)
            a("s_barrier")
        a("s_waitcnt lgkmcnt(0)")
        b_setup(a)
        b_loads(a)
        a("s_cmp_lg_u32 s20, 0\ns_cbranch_scc1 Lw123a")
        clears(a)
        if not early:
            a("s_waitcnt vmcnt(14)")
            stamp(a, 1)
            a("s_barrier")
        a("s_waitcnt vmcnt(6)")
        stamp(a, 2)
        a(f"""s_barrier
        v_mov_b32 v{T0}, {LTAG}
        s_waitcnt vmcnt(5)
        ds_write_b32 v{T0}, v{V_EP}
        s_branch Lprol
        Lw123a:""")
        if OPT["pf"] == 3:
            a(f"s_lshl_b32 s24, 1, s20\ns_and_b32 s24, s24, {OPT['pfm'] << 1}\ns_cbranch_scc1 Lpfe\nbuffer_load_dword v{JUNK}, v{T0}, s[16:19], 0 offen\ns_branch Lpfx\nLpfe:")
            prefetch(a)
            a("Lpfx:")
        if not early:
            a(f"s_waitcnt vmcnt(12)")
            stamp(a, 1)
            a("s_barrier")
        a(f"s_waitcnt vmcnt({4 if OPT['pf'] == 3 else 3})")
        stamp(a, 2)
        a(f"s_barrier")
        if OPT["pf"] == 1: prefetch(a)
        a(f"s_waitcnt vmcnt({2 if OPT['pf'] == 4 else 3})")
        a("Lprol:")
        if OPT["wdh"]: wd_dma(a, 0, 7, "Lnwd2")
        if OPT["w64l"]:
            a("s_mov_b32 s3, s20")
            w64(a, AC1)
            for i in range(8): a(f"v_xor_b32 v{AC1+16+i}, 0x80008000, v{AC1+8+i}")
            a(f"s_lshl_b32 s26, s3, 12\ns_add_u32 s26, s26, {LWT}\nv_add_u32 v{T1}, s26, v{VL}")
            for i in range(6): a(f"ds_write_b128 v{T1}, {v4(AC1+4*i)} offset:{[0, 1024, 2048, 3072, 16384, 17408][i]}")
        if not OPT["prolate"]: pro(a)
        stamp(a, 3)
        def hint_store():
            a(f"""s_cmp_lg_u32 s20, 0
            s_cbranch_scc1 Lnh
            s_lshl_b32 s34, s2, 6
            s_add_u32 s34, s34, {WS_HINT}
            v_add_u32 v{T0}, 1, v{V_EP}
            s_mov_b64 exec, 1
            buffer_store_dword v{T0}, v{VL}, s[12:15], s34 offen {SC}
            s_mov_b64 exec, -1
            Lnh:""")
        if OPT["hint"] == 2: hint_store()
        a("s_waitcnt lgkmcnt(0)\ns_barrier")
        if OPT["hint"] == 1: hint_store()
        a("s_branch Lpro1" if OPT["prolate"] else "s_branch Lpro2")
    if OPT["layout"]: a("s_branch Lltail")
    else: ltail()
    a("Lcompute:")
    a(f"""s_mov_b64 exec, -1
    s_load_dwordx2 s[8:9], s[0:1], 0
    s_lshr_b32 s20, s20, 6
    v_and_b32 v{LANE}, 63, v0
    v_lshlrev_b32 v{VL}, 4, v{LANE}
    {amap()}
    s_mov_b32 s10, {XB}
    s_mov_b32 s11, 0x00020000
    s_load_dwordx2 s[6:7], s[0:1], 96
    s_load_dwordx8 s[40:47], s[0:1], 48
    s_load_dwordx2 s[48:49], s[0:1], 80
    v_and_b32 v{N}, 15, v0
    v_bfe_u32 v{G}, v0, 4, 2
    s_and_b32 s3, s20, 3""")
    if OPT["prio"]: a("s_setprio 3")
    stamp(a, 9, True)
    a_pre(a)
    stamp(a, 11, True)
    a("s_waitcnt lgkmcnt(0)")
    b_setup(a)
    for i in range(OPT["warm"]): a(f"v_mfma_f32_16x16x32_bf16 {v4(AC2+4*(i%4))}, {v4(WC)}, {v4(WSN)}, {v4(AC2+4*(i%4))}")
    stamp(a, 1)
    a("s_barrier")
    stamp(a, 2)
    a_main(a)
    stamp(a, 4)
    if OPT["prio"]: a("s_setprio 0")
    a(f"buffer_load_dwordx4 {v4(B_WR)}, v{VL}, s[16:19], 0 offen")
    a(f"buffer_load_dwordx4 {v4(B_XR)}, v{VL}, s[8:11], s97 offen")
    a("Lpro1:")
    pro(a, 1 if OPT["prosplit"] else 0)
    a("Lpro2:")
    a(f"""v_readfirstlane_b32 s56, v{V_EP}
    s_add_u32 s56, s56, 1
    s_mul_i32 s98, s56, {HASH}
    s_lshl_b32 s99, s98, 6
    s_and_b32 s59, s56, 0xffff""")
    if OPT["hint"]:
        a(f"""v_and_b32 v{T1}, 31, v{LANE}
        v_lshlrev_b32 v{T1}, 6, v{T1}
        s_lshl_b32 s34, s20, 11
        s_add_u32 s34, s34, {WS_HINT}
        s_mov_b32 s57, 4000""")
        if OPT["sl_h0"]: a(f"s_sleep {OPT['sl_h0']}")
        a(f"""Lhint:
        buffer_load_dword v{T0}, v{T1}, s[12:15], s34 offen {SC}
        s_waitcnt vmcnt(0)
        v_cmp_ne_u32 vcc, s56, v{T0}
        s_cmp_eq_u64 vcc, 0
        s_cbranch_scc1 Lhintd""")
        if OPT["sl_h"]: a(f"s_sleep {OPT['sl_h']}")
        a(f"""s_sub_u32 s57, s57, 1
        s_cbranch_scc0 Lhint
        Lhintd:""")
    else:
        a("s_barrier")
    stamp(a, 5)
    b_main(a)
    if OPT["wdh"]: a("s_cmp_lt_u32 s20, 4\ns_cbranch_scc1 Lnwd1")
    wd_dma(a, OPT['wdsplit'], 7, 'Lnwd1')
    c_select(a)
    a("s_cmp_ge_u32 s2, 224\ns_cbranch_scc1 Lc2")
    c1(a)
    a("Lc2:\ns_and_b32 s50, s2, 7\ns_cmp_eq_u32 s50, 7\ns_cbranch_scc1 Lend\ns_lshl_b32 s50, s50, 7\ns_bfe_u32 s51, s2, 0x20003\ns_lshl_b32 s51, s51, 5\ns_add_u32 s51, s51, s50")
    c2(a)
    a("Lend:")
    dump_stamps(a)
    if OPT["layout"]:
        a("s_endpgm")
        ltail()
        for f in TAIL: f()
    a("Lexit:\ns_endpgm\nLfullsel:")
    select8(a, C_K, C_TMP, C_L, C_SW, C_SR)
    a("s_branch Lseldone")

DOC = '''; ---------------------------------------------------------------------------------------------
;      into LDS, waves 4-7 build the cos/sin tables, run the DFT-448 for 28 frequencies (raw bf16 x,
;      sums), then the DFT-64 over s2, and write U (f16) to d_ws.
;      28 workgroups do the down projection for 16 output columns and write the routed rows.
; ---------------------------------------------------------------------------------------------
'''
NAME = "sequential_preLN__spectral_fnet__moe_arch_mod__prompt_kernel"
def build():
    a = Asm()
    kernel(a)
    body = a.finish()
    if OPT["align"]: body = align_pass(body)
    return gen.HDR + f"""; @launch grid=(256,1,1) block=(512,1,1) lds={LDS_TOTAL}
{DOC}.amdgcn_target "amdgcn-amd-amdhsa--gfx950"
.text
.globl {NAME}
.p2align 8
.type {NAME},@function
{NAME}:
""" + body + f""".section .rodata,"a"
.p2align 6
.amdhsa_kernel {NAME}
  .amdhsa_next_free_vgpr {NVGPR}
  .amdhsa_next_free_sgpr 102
  .amdhsa_accum_offset {NVGPR}
  .amdhsa_group_segment_fixed_size 0
  .amdhsa_kernarg_size 104
  .amdhsa_user_sgpr_count 2
  .amdhsa_user_sgpr_kernarg_segment_ptr 1
  .amdhsa_system_sgpr_workgroup_id_x 1
.end_amdhsa_kernel
"""

if __name__ == "__main__":
    for x in list(sys.argv[1:]):
        if x.startswith("--"):
            k, _, v = x[2:].partition("=")
            assert k in OPT, k
            OPT[k] = int(v) if v else 1
            sys.argv.remove(x)
    open(sys.argv[1], "w").write(build())
```
